```python
import torch

def _softmax(x, axis=-1):
    return torch.softmax(x, dim=axis)
def _gelu(x):
    return torch.nn.functional.gelu(x, approximate="tanh")
def _silu(x):
    return torch.nn.functional.silu(x)
def _sigmoid(x):
    return torch.sigmoid(x)
def _layernorm(x, axis=-1, eps=1e-5):
    m = x.mean(dim=axis, keepdim=True)
    v = x.var(dim=axis, keepdim=True, unbiased=False)
    return (x - m) / torch.sqrt(v + eps)
def _scatter_add(tgt, idx, src, axis=0):
    return tgt.clone().index_add_(axis, idx, src)
def _segment_sum(src, seg, n):
    out = torch.zeros((n,) + src.shape[1:], dtype=src.dtype)
    return out.index_add_(0, seg, src)
def _pad(x, pw):
    flat = tuple(v for pair in reversed(pw) for v in pair)
    return torch.nn.functional.pad(x, flat)

kernel_name = 'recurrent_scan__mha_block_cached__glu_gated_reglu__prompt'

def setup_inputs():

    _w = (lambda a: (lambda t: t.to(torch.bfloat16) if t.is_floating_point() else t)(torch.as_tensor(a)))
    def _A_setup():
        B, Sq, D = 1, 2048, 640
        H, Sk, Dh = 32, 2048, 128
        return {
            "x": _w((lambda *s: torch.randn(*s, dtype=torch.bfloat16) * 0.05)(B, Sq, D)),
            "k_cache": _w((lambda *s: torch.randn(*s, dtype=torch.bfloat16) * 1.6)(B, H, Sk, Dh)),
            "v_cache": _w((lambda *s: torch.randn(*s, dtype=torch.bfloat16) * 1.6)(B, H, Sk, Dh)),
            "wq": _w((lambda *s: torch.randn(*s, dtype=torch.bfloat16) * 1.6)(D, H * Dh) * (D ** -0.5)),
            "wo": _w((lambda *s: torch.randn(*s, dtype=torch.bfloat16) * 1.6)(H * Dh, D) * ((H * Dh) ** -0.5)),
        }
    _A_in = _A_setup()

    def _B_setup():
        B, S, D, F = 1, 2048, 640, 1728
        return {
            "x": _w((lambda *s: torch.randn(*s, dtype=torch.bfloat16) * 0.05)(B, S, D)),
            "W_gate": _w((lambda *s: torch.randn(*s, dtype=torch.bfloat16) * 0.2)(D, F) * (2.0 / D) ** 0.5),
            "W_up": _w((lambda *s: torch.randn(*s, dtype=torch.bfloat16) * 0.2)(D, F) * (2.0 / D) ** 0.5),
            "W_down": _w((lambda *s: torch.randn(*s, dtype=torch.bfloat16) * 0.2)(F, D) * (1.0 / F) ** 0.5),
        }
    _B_in = _B_setup()

    return {
        "A_x": _A_in["x"],
        "A_k_cache": _A_in["k_cache"],
        "A_v_cache": _A_in["v_cache"],
        "A_wq": _A_in["wq"],
        "A_wo": _A_in["wo"],
        "B_x": _B_in["x"],
        "B_W_gate": _B_in["W_gate"],
        "B_W_up": _B_in["W_up"],
        "B_W_down": _B_in["W_down"],
    }

def reference(A_x, A_k_cache, A_v_cache, A_wq, A_wo, B_x, B_W_gate, B_W_up, B_W_down):
    def _A_ref(x, k_cache, v_cache, wq, wo):
        B, Sq, D = x.shape
        H, Dh = 32, 128
        q = (lambda x, *d: x.permute(*d))((x @ wq).reshape(B, Sq, H, Dh), 0, 2, 1, 3)
        scores = torch.einsum("bhqd,bhkd->bhqk", q, k_cache) * (Dh ** -0.5)
        p = _softmax(scores, axis=-1)
        o = torch.einsum("bhqk,bhkd->bhqd", p, v_cache)
        return (lambda x, *d: x.permute(*d))(o, 0, 2, 1, 3).reshape(B, Sq, H * Dh) @ wo

    def _B_ref(x, W_gate, W_up, W_down):
        gate = torch.einsum("bsd,df->bsf", x, W_gate)
        up = torch.einsum("bsd,df->bsf", x, W_up)
        gate = gate * (lambda x, dt: x.to(dt))(gate > 0, gate.dtype)
        h = gate * up
        return torch.einsum("bsf,fd->bsd", h, W_down)

    x = A_x
    xn = _layernorm(x, axis=-1)
    s = _A_ref(xn, A_k_cache, A_v_cache, A_wq, A_wo)
    g = _silu(_B_ref(xn, B_W_gate, B_W_up, B_W_down))
    return x + s * g
```

```python
import re, sys
sys.setrecursionlimit(100000)

TRANS = ("v_exp_f32", "v_log_f32", "v_rcp_f32", "v_rsq_f32", "v_sqrt_f32", "v_sin_f32", "v_cos_f32", "v_rcp_iflag_f32")

def regs_of(tok):
    tok = tok.strip()
    neg = tok.lstrip("-")
    m = re.fullmatch(r"\|?(?:abs\()?([vas])(\d+)\)?\|?", neg)
    if m: return {(m.group(1), int(m.group(2)))}
    m = re.fullmatch(r"([vas])\[(\d+):(\d+)\]", neg)
    if m: return {(m.group(1), i) for i in range(int(m.group(2)), int(m.group(3)) + 1)}
    if neg in ("vcc", "vcc_lo", "vcc_hi"): return {("s", "vcc")}
    if neg == "m0": return {("s", "m0")}
    if neg in ("exec", "exec_lo", "exec_hi"): return {("s", "exec")}
    return set()

class I:
    def __init__(self, text, idx, lineno):
        self.text = text; self.idx = idx; self.lineno = lineno
        parts = text.split(None, 1)
        self.op = re.sub(r"_(e32|e64|sdwa|dpp)$", "", parts[0])
        rest = parts[1] if len(parts) > 1 else ""
        ops = [x.strip() for x in re.split(r",(?![^\[]*\])", rest)] if rest else []
        self.mods = ""
        if ops:
            sp = ops[-1].split(None, 1)
            if len(sp) > 1:
                ops[-1] = sp[0]; self.mods = sp[1]
        self.ops = ops
        op = self.op
        self.mfma = op.startswith("v_mfma")
        self.valu = op.startswith("v_") and not self.mfma
        self.salu = op.startswith("s_") and not op.startswith(("s_load", "s_waitcnt", "s_nop", "s_barrier", "s_branch", "s_cbranch", "s_endpgm", "s_memtime", "s_memrealtime", "s_sleep", "s_setprio", "s_buffer_load"))
        self.smem = op.startswith(("s_load", "s_memtime", "s_memrealtime", "s_buffer_load"))
        self.ds = op.startswith("ds_")
        self.vmem = op.startswith(("buffer_", "global_"))
        self.trans = op in TRANS
        self.dma = self.vmem and (" lds" in (" " + self.mods) or "load_lds" in op)
        self.W = set(); self.R = set(); self.srcC = set(); self.AB = set(); self.stdata = set()
        R = lambda toks: set().union(*[regs_of(t) for t in toks]) if toks else set()
        if self.mfma:
            self.W = regs_of(ops[0]); self.AB = R(ops[1:3]); self.srcC = regs_of(ops[3]); self.R = self.AB | self.srcC
            self.passes = 4 if "16x16x32" in op else (8 if "32x32x16" in op else None)
            assert self.passes, op
        elif self.valu:
            if op.startswith("v_cmp"):
                self.W = regs_of(ops[0]); self.R = R(ops[1:])
                if op.startswith("v_cmpx"): self.W |= {("s", "exec")}
            elif op.startswith("v_permlane") and "swap" in op:
                self.W = R(ops[:2]); self.R = R(ops[:2])
            elif op in ("v_add_co_u32", "v_sub_co_u32", "v_addc_co_u32", "v_subb_co_u32", "v_subrev_co_u32", "v_mad_u64_u32", "v_div_scale_f32"):
                self.W = R(ops[:2]); self.R = R(ops[2:])
            elif op == "v_nop":
                pass
            else:
                self.W = regs_of(ops[0]); self.R = R(ops[1:])
                if op in ("v_fmac_f32", "v_dot2c_f32_bf16", "v_writelane_b32") or "fmac" in op: self.R |= self.W
                if op == "v_cndmask_b32" and len(ops) == 3: self.R |= {("s", "vcc")}
                if op == "v_div_fmas_f32": self.R |= {("s", "vcc")}
        elif self.ds:
            if op.startswith(("ds_read", "ds_bpermute", "ds_permute", "ds_swizzle")) or "_rtn" in op:
                self.W = regs_of(ops[0]); self.R = R(ops[1:])
            else:
                self.R = R(ops)
        elif self.vmem:
            if op.startswith(("buffer_wbl2", "buffer_inv")):
                pass
            elif self.dma:
                self.R = R(ops) | {("s", "m0")}
            elif "load" in op:
                self.W = regs_of(ops[0]); self.R = R(ops[1:])
            elif "atomic" in op:
                self.R = R(ops)
                if "sc0" in self.mods.split():
                    self.W = regs_of(ops[0])
            else:
                self.R = R(ops)
                d = regs_of(ops[0]) if op.startswith("buffer") else regs_of(ops[1])
                if "x3" in op or "x4" in op: self.stdata = d
        elif self.smem:
            self.W = regs_of(ops[0]); self.R = R(ops[1:])
        elif self.salu:
            if op.startswith(("s_cmp", "s_bitcmp")):
                self.R = R(ops)
            else:
                self.W = regs_of(ops[0]) if ops else set(); self.R = R(ops[1:])
                if "saveexec" in op: self.W |= {("s", "exec")}; self.R |= {("s", "exec")}
                if op in ("s_addk_i32", "s_mulk_i32"): self.R |= self.W
        elif op.startswith("s_cbranch_vcc"):
            self.R = {("s", "vcc")}
        self.states = 1
        if op == "s_nop": self.states = int(ops[0], 0) + 1

def parse(text):
    ins = []; labels = {}
    in_text = True
    for ln, line in enumerate(text.splitlines(), 1):
        s = re.split(r";|//", line)[0].strip()
        if not s: continue
        if s.startswith(".section") : in_text = False; continue
        if s.startswith(".text"): in_text = True; continue
        if not in_text: continue
        if s.startswith("."):
            if not s.endswith(":"): continue
        m = re.fullmatch(r"([\w.$]+):", s)
        if m:
            labels[m.group(1)] = len(ins); continue
        ins.append(I(s, len(ins), ln))
    return ins, labels

def succs(ins, labels, i):
    x = ins[i]
    if x.op == "s_endpgm": return []
    if x.op == "s_branch": return [labels[x.ops[0]]]
    out = [i + 1] if i + 1 < len(ins) else []
    if x.op.startswith("s_cbranch"): out.append(labels[x.ops[0]])
    return out

def vregs(S): return {r for r in S if r[0] in "va"}
def sregs(S): return {r for r in S if r[0] == "s"}

def need(p, c):
    res = []
    if p.valu:
        pw = vregs(p.W); ps = sregs(p.W)
        if c.mfma and pw & c.R: res.append((2, "VALU->MFMA operand"))
        if p.trans and c.valu and not c.trans and pw & c.R: res.append((1, "trans->VALU"))
        if c.op in ("v_readfirstlane_b32", "v_readlane_b32") and pw & c.R: res.append((1, "VALU->readlane"))
        if c.op.startswith("v_permlane") and pw & c.R: res.append((2, "VALU->permlane"))
        if c.valu and ("row_" in c.mods or "quad_perm" in c.mods or "wave_" in c.mods) and pw & c.R: res.append((2, "VALU->DPP"))
        if ps:
            if c.valu and (ps - {("s", "exec")}) & c.R: res.append((4 if c.op in ("v_readlane_b32", "v_writelane_b32", "v_div_fmas_f32") else 2, "VALU sgpr->VALU"))
            if c.vmem and ps & c.R: res.append((5, "VALU sgpr->VMEM"))
            if (c.salu or c.op.startswith("s_cbranch") or c.smem) and ps & c.R and not c.op.startswith("s_cbranch_vcc"): res.append((0, ""))
            if ("s", "exec") in ps and (c.mfma or c.op.startswith(("v_permlane", "v_readlane", "v_readfirstlane"))): res.append((4, "VALU exec->MFMA/lane"))
    if p.mfma:
        a = {4: 8, 8: 12}[p.passes]
        if c.mfma:
            if p.W & c.AB: res.append((a, "MFMA D->MFMA A/B"))
            if p.W & c.srcC and not (p.W == c.srcC and p.passes == c.passes): res.append((a - 2, "MFMA D->overlap C"))
        elif (c.valu or c.vmem or c.ds) and p.W & (c.R | c.W): res.append((a, "MFMA D->VALU/mem"))
        if c.valu and p.srcC & c.W: res.append(({4: 3, 8: 7}[p.passes], "MFMA srcC WAR"))
    if p.salu and ("s", "m0") in p.W and (c.dma or c.op in ("v_writelane_b32", "v_readlane_b32") and ("s", "m0") in c.R): res.append((1, "m0->DMA"))
    if p.stdata and p.stdata & c.W: res.append((2 if c.valu else 1, "store data WAR"))
    res = [r for r in res if r[0] > 0]
    return max(res) if res else None

def check_hazards(ins, labels):
    preds = [[] for _ in ins]
    for i in range(len(ins)):
        for s in succs(ins, labels, i):
            if s < len(ins): preds[s].append(i)
    errs = []
    MAXW = 13
    for c in ins:
        stack = [(p, 0) for p in preds[c.idx]]
        seen = set()
        while stack:
            pi, d = stack.pop()
            if (pi, d) in seen: continue
            seen.add((pi, d))
            p = ins[pi]
            n = need(p, c)
            if n and d < n[0]:
                errs.append("HAZARD line %d -> %d: need %d have %d (%s)\n    %s\n    %s" % (p.lineno, c.lineno, n[0], d, n[1], p.text, c.text))
            nd = d + p.states
            if nd < MAXW:
                for q in preds[pi]: stack.append((q, nd))
    return errs

def check_waits(ins, labels, entries):
    errs = set()
    seen = set()
    stack = [(e, (), ()) for e in entries]
    steps = 0
    while stack:
        i, lg, vm = stack.pop()
        while True:
            steps += 1
            if steps > 5000000:
                errs.add("wait checker: too many steps"); return sorted(errs)
            x = ins[i]
            if x.op.startswith("s_cbranch") or x.op == "s_branch" or i in labels.values():
                key = (i, lg, vm)
                if key in seen: break
                seen.add(key)
            touched = x.R | x.W
            for q, nm in ((lg, "lgkm"), (vm, "vm")):
                for (pi) in q:
                    p = ins[pi]
                    if p.W & touched and not (x.op == "s_waitcnt"):
                        errs.add("WAIT line %d uses pending %s result of line %d\n    %s\n    %s" % (x.lineno, nm, p.lineno, p.text, x.text))
            if x.op == "s_waitcnt":
                t = x.text
                m = re.search(r"lgkmcnt\((\d+)\)", t)
                if m:
                    n = int(m.group(1))
                    if any(ins[p].smem for p in lg):
                        if n == 0: lg = ()
                    else:
                        lg = lg[len(lg) - n:] if n < len(lg) else lg
                        if n == 0: lg = ()
                m = re.search(r"vmcnt\((\d+)\)", t)
                if m:
                    n = int(m.group(1))
                    vm = vm[len(vm) - n:] if 0 < n < len(vm) else (() if n == 0 else vm)
            elif x.ds or x.smem:
                lg = lg + (i,)
                if len(lg) > 40: lg = lg[-40:]
            elif x.vmem:
                vm = vm + (i,)
                if len(vm) > 63:
                    errs.add("vmcnt overflow (>63 outstanding) at line %d" % x.lineno); vm = vm[-63:]
            ss = succs(ins, labels, i)
            if not ss: break
            for s in ss[1:]: stack.append((s, lg, vm))
            i = ss[0]
    return sorted(errs)

def check(text, entries):
    ins, labels = parse(text)
    errs = check_hazards(ins, labels) + check_waits(ins, labels, [labels[e] for e in entries])
    return errs

if __name__ == "__main__":
    t = open(sys.argv[1]).read()
    ins, labels = parse(t)
    ents = [l for l in labels if l.endswith("_kernel")]
    e = check(t, ents)
    print("\n".join(e) if e else "clean (%d instrs)" % len(ins))
```

```python
import math
from gen import *
import gen as G_

NST = 8
INFL = 6

def gen_k3(e, name):
    SA, SW, SX, SO = 8, 12, 16, 20
    WAVE, SL, OA, OW, OW2, CNT, T0 = 68, 69, 70, 71, 72, 73, 80
    VL = 1; VA = 2; VW = 6; VXO = 7; VX = 8; VT = 20
    ACC = [32, 112]
    def stage(st, k):
        i = st * 9 + k
        return a(4 * i, 4) if i < 64 else v(192 + 4 * (i - 64), 4)
    e(".text\n.globl %s\n.p2align 8\n.type %s,@function\n%s:" % (name, name, name))
    e("s_cmp_ge_u32 s2, 256\ns_cbranch_scc1 K3_END")
    e("s_load_dwordx2 s[44:45], s[0:1], 0\ns_load_dwordx2 s[46:47], s[0:1], 72\ns_load_dwordx2 s[48:49], s[0:1], 88")
    e("v_and_b32 %s, 63, v0\nv_lshrrev_b32 %s, 6, v0\ns_nop 0\nv_readfirstlane_b32 %s, %s" % (v(VL), v(VT), s(WAVE), v(VT)))
    RT, CT = T0 + 4, T0 + 5
    e("s_bfe_u32 %s, s2, 0x20001\ns_lshl_b32 %s, %s, 3\ns_lshr_b32 %s, s2, 5\ns_add_u32 %s, %s, %s" % (s(RT), s(RT), s(RT), s(T0), s(RT), s(RT), s(T0)))
    e("s_and_b32 %s, s2, 1\ns_lshl_b32 %s, %s, 2\ns_bfe_u32 %s, s2, 0x20003\ns_add_u32 %s, %s, %s" % (s(CT), s(CT), s(CT), s(T0), s(CT), s(CT), s(T0)))
    e("v_lshlrev_b32 %s, 4, %s" % (v(VW), v(VL)))
    e("s_lshl_b32 %s, %s, 10\nv_add_u32 %s, %s, %s" % (s(T0), s(WAVE), v(VA), s(T0), v(VW)))
    for p in range(1, 4): e("v_xor_b32 %s, %d, %s" % (v(VA + p), p * 1024, v(VA)))
    e("v_and_b32 %s, 15, %s\nv_mul_u32_u24 %s, 1280, %s\nv_lshrrev_b32 %s, 4, %s\nv_lshl_add_u32 %s, %s, 3, %s" % (v(VT), v(VL), v(VT), v(VT), v(VT + 1), v(VL), v(VXO), v(VT + 1), v(VT)))
    e("s_waitcnt lgkmcnt(0)")
    e("s_mul_i32 %s, %s, %d" % (s(T0), s(RT), NSLAB * 4096))
    srd(e, SA, 48, s(T0), NSLAB * 4096)
    e("s_mul_i32 %s, %s, %d\ns_add_u32 %s, %s, %d" % (s(T0), s(CT), NSLAB * 5120, s(T0), s(T0), WF_OFF))
    srd(e, SW, 48, s(T0), NSLAB * 5120)
    e("s_lshl_b32 %s, %s, 2\ns_add_u32 %s, %s, %s\ns_mul_i32 %s, %s, %d\ns_mul_i32 %s, %s, 160\ns_add_u32 %s, %s, %s" % (
        s(T0), s(RT), s(T0), s(T0), s(WAVE), s(T0), s(T0), 16 * 1280, s(T0 + 1), s(CT), s(T0), s(T0), s(T0 + 1)))
    srd(e, SX, 44, s(T0), 15 * 1280 + 160)
    srd(e, SO, 46, s(T0), 15 * 1280 + 160)
    e("s_add_u32 %s, %s, 128" % (s(SL), s(WAVE)))
    def addr_ops():
        return ["s_lshl_b32 %s, %s, 12" % (s(OA), s(SL)), "s_mul_i32 %s, %s, 5120" % (s(OW), s(SL)), "s_add_u32 %s, %s, 4096" % (s(OW2), s(OW))]
    def adv_ops():
        return ["s_add_u32 %s, %s, 4" % (s(SL), s(SL)), "s_cmp_ge_u32 %s, 192" % s(SL), "s_cselect_b32 %s, %s, %s" % (s(SL), s(WAVE), s(SL))]
    def loads(st):
        l = []
        for k in range(5):
            l.append("buffer_load_dwordx4 %s, %s, %s, %s offen offset:%d" % (stage(st, 4 + k), v(VW), s(SW, 4), s(OW if k < 4 else OW2), (k % 4) * 1024))
        for p in range(4):
            l.append("buffer_load_dwordx4 %s, %s, %s, %s offen" % (stage(st, p), v(VA + p), s(SA, 4), s(OA)))
        return l
    for nb in range(5):
        e("buffer_load_dwordx2 %s, %s, %s, 0 offen offset:%d" % (v(VX + 2 * nb, 2), v(VXO), s(SX, 4), nb * 32))
    for st in range(INFL):
        e.ext(addr_ops()); e.ext(loads(st)); e.ext(adv_ops())
    for r in range(32, 192): e("v_mov_b32 %s, 0" % v(r))
    for ph, trips in ((0, 16 // NST), (1, 32 // NST)):
        mf = []
        for st in range(NST):
            for nb in range(5):
                for p in range(4):
                    d = v(ACC[ph] + (nb * 4 + p) * 4, 4)
                    mf.append("%s %s, %s, %s, %s" % (MF, d, stage(st, 4 + nb), stage(st, p), d))
        G = Gaps(mf)
        for st in range(NST):
            b = st * 20
            g = b
            for x in addr_ops(): g = G.place("s", x, g) + 1
            for x in loads((st + INFL) % NST): g = G.place("m", x, g) + 1
            for x in adv_ops(): g = G.place("s", x, g) + 1
            if st == NST - 1:
                g = G.place("s", "s_sub_u32 %s, %s, 1" % (s(CNT), s(CNT)), g) + 1
                g = G.place("s", "s_cmp_lg_u32 %s, 0" % s(CNT), g) + 1
            assert g <= b + 19
            G.put(b + 19, "s", "s_waitcnt vmcnt(%d)" % (9 * (INFL - 1)))
        e("s_mov_b32 %s, %d" % (s(CNT), trips))
        e("s_waitcnt vmcnt(%d)" % (9 * (INFL - 1)))
        e(".p2align 6\nK3_LOOP%d:" % ph)
        e.ext(G.lines())
        e("s_cbranch_scc1 K3_LOOP%d" % ph)
    for p in range(1, 4):
        e("s_xor_b32 %s, %s, %d\ns_mul_i32 %s, %s, 30720\ns_add_u32 %s, %s, %d" % (s(T0), s(WAVE), p, s(T0), s(T0), s(T0), s(T0), (p - 1) * 10240))
        e("v_add_u32 %s, %s, %s" % (v(VT + p), s(T0), v(VW)))
    e("s_mul_i32 %s, %s, 30720\nv_add_u32 %s, %s, %s" % (s(T0), s(WAVE), v(VT), s(T0), v(VW)))
    e("s_nop 4")
    for p in range(1, 4):
        for m in range(2):
            for nb in range(5):
                e("ds_write_b128 %s, %s offset:%d" % (v(VT + p), v(ACC[m] + (nb * 4 + p) * 4, 4), (m * 5 + nb) * 1024))
    e("s_waitcnt lgkmcnt(0)\ns_barrier")
    for i in range(3):
        for m in range(2):
            for nb in range(5):
                e("ds_read_b128 %s, %s offset:%d" % (v(ACC[m] + (nb * 4 + i + 1) * 4, 4), v(VT), i * 10240 + (m * 5 + nb) * 1024))
    e("s_waitcnt lgkmcnt(0) vmcnt(0)")
    for m in range(2):
        for nb in range(5):
            b = ACC[m] + nb * 16
            for h in range(2):
                e("v_pk_add_f32 %s, %s, %s" % (v(b + 2 * h, 2), v(b + 2 * h, 2), v(b + 4 + 2 * h, 2)))
                e("v_pk_add_f32 %s, %s, %s" % (v(b + 8 + 2 * h, 2), v(b + 8 + 2 * h, 2), v(b + 12 + 2 * h, 2)))
            for h in range(2):
                e("v_pk_add_f32 %s, %s, %s" % (v(b + 2 * h, 2), v(b + 2 * h, 2), v(b + 8 + 2 * h, 2)))
    for nb in range(5):
        d = ACC[0] + nb * 16; sx = ACC[1] + nb * 16
        for r in range(4): e("v_mul_f32 %s, %s, %s" % (v(d + 4 + r), f2u(-math.log2(math.e)), v(d + r)))
        for r in range(4): e("v_exp_f32 %s, %s" % (v(d + 4 + r), v(d + 4 + r)))
        for r in range(4): e("v_mul_f32 %s, %s, %s" % (v(sx + r), v(sx + r), v(d + r)))
        for r in range(4): e("v_add_f32 %s, 1.0, %s" % (v(d + 4 + r), v(d + 4 + r)))
        for r in range(4): e("v_rcp_f32 %s, %s" % (v(d + 4 + r), v(d + 4 + r)))
        for h in range(2):
            e("v_lshlrev_b32 %s, 16, %s" % (v(d + 8 + 2 * h), v(VX + 2 * nb + h)))
            e("v_and_b32 %s, 0xffff0000, %s" % (v(d + 9 + 2 * h), v(VX + 2 * nb + h)))
        for r in range(4): e("v_fma_f32 %s, %s, %s, %s" % (v(d + 8 + r), v(sx + r), v(d + 4 + r), v(d + 8 + r)))
        for h in range(2): e("v_cvt_pk_bf16_f32 %s, %s, %s" % (v(d + 12 + h), v(d + 8 + 2 * h), v(d + 9 + 2 * h)))
        e("buffer_store_dwordx2 %s, %s, %s, 0 offen offset:%d" % (v(d + 12, 2), v(VXO), s(SO, 4), nb * 32))
    e("K3_END:\ns_endpgm")
    e(kd(name))
```

```python
import re
from asmcheck import I

class Gaps:
    def __init__(self, mfmas):
        self.m = list(mfmas)
        n = len(self.m)
        self.sc = [[] for _ in range(n)]
        self.ds = [[] for _ in range(n)]
        self.va = [[] for _ in range(n)]
        self.used = [0] * n
        self.noscalar = [False] * n
    def n(self): return len(self.m)
    def fits(self, g, kind):
        u = self.used[g]
        if kind == "s": return len(self.sc[g]) == 0 and not self.noscalar[g]
        if kind == "d": return u <= 1 and not self.ds[g]
        if kind == "v": return u <= 1
        if kind == "e": return u == 0
        if kind == "m": return u == 0 and len(self.sc[g]) == 0
        if kind == "b": return u == 0
        raise ValueError(kind)
    def put(self, g, kind, text):
        if kind == "s": self.sc[g].append(text)
        elif kind == "d": self.ds[g].append(text); self.used[g] += 1
        elif kind == "v": self.va[g].append(text); self.used[g] += 1
        elif kind == "e": self.va[g].append(text); self.used[g] += 2
        elif kind == "m": self.va[g].append(text); self.used[g] += 2; self.noscalar[g] = True
        elif kind == "b": self.va[g].append(text); self.used[g] += 2
        return g
    def place(self, kind, text, lo, hi=None, force=False):
        hi = self.n() - 1 if hi is None else hi
        for g in range(max(lo, 0), hi + 1):
            if self.fits(g, kind): return self.put(g, kind, text)
        if force:
            g = min(range(max(lo, 0), hi + 1), key=lambda x: self.used[x])
            return self.put(g, kind, text)
        raise RuntimeError("cannot place %s in [%d,%d]" % (text, lo, hi))
    def lines(self):
        out = []
        for g in range(self.n()):
            out.append(self.m[g]); out += self.sc[g] + self.ds[g] + self.va[g]
        return out
    def pattern(self):
        s = []
        for g in range(self.n()):
            t = "s" * len(self.sc[g]) + "d" * len(self.ds[g])
            for x in self.va[g]:
                t += "e" if x.startswith("v_exp") else ("m" if x.startswith(("buffer", "global")) else ("b" if x.startswith("s_barrier") else "v"))
            s.append(t or "-")
        return " ".join(s)

def auto_lgkm(G, pend_in=(), loop=False):
    def run(pend, insert):
        pend = list(pend)
        hist = []
        issued = len(pend)
        done = 0
        allops = list(pend)
        pre = None
        start_cnt = []
        for g in range(G.n()):
            mi = I(G.m[g], 0, 0)
            needidx = -1
            for k in range(done, len(allops)):
                if allops[k] & (mi.R | mi.W): needidx = k
            if needidx >= 0:
                if not insert:
                    done = needidx + 1
                else:
                    h = g - 1
                    while h >= 0 and not (G.fits(h, "s")): h -= 1
                    if h >= 0 and start_cnt[h] > needidx:
                        N = start_cnt[h] - (needidx + 1)
                        N = min(N, 15)
                        G.put(h, "s", "s_waitcnt lgkmcnt(%d)" % N)
                    elif g == 0 or h < 0:
                        N = len(pend) - (needidx + 1)
                        assert needidx < len(pend)
                        pre = min(N, pre) if pre is not None else N
                    else:
                        raise RuntimeError("DS result needed too early at gap %d: %s" % (g, G.m[g]))
                    done = needidx + 1
            start_cnt.append(len(allops))
            for x in G.sc[g]:
                m = re.search(r"lgkmcnt\((\d+)\)", x)
                if m: done = max(done, len(allops) - int(m.group(1)))
            for x in G.ds[g]:
                allops.append(I(x, 0, 0).W)
        return pre, allops[done:]
    if loop:
        _, out = run(pend_in, False)
        pre, out2 = run(out, True)
        if pre is not None:
            h = G.n() - 1; later = 0
            while True:
                later += len(G.ds[h])
                if G.fits(h, "s"): break
                h -= 1
            N = pre - later
            assert N >= 0, "loop wrap wait impossible"
            N = min(N, 15)
            G.put(h, "s", "s_waitcnt lgkmcnt(%d)" % N)
            out2 = out2[len(out2) - pre:] if pre else []
        return None, out2
    return run(pend_in, True)
```

```python
import sys, math
from sched import Gaps, auto_lgkm
import asmcheck

NAME = "recurrent_scan__mha_block_cached__glu_gated_reglu__prompt"
MF = "v_mfma_f32_16x16x32_bf16"

NSLAB = 182
AF_BYTES = 32 * NSLAB * 4096
WF_OFF = 0x1800000
WF_BYTES = 8 * NSLAB * 5120
assert AF_BYTES <= WF_OFF

class E:
    def __init__(self): self.L = []
    def __call__(self, s):
        for x in s.split("\n"):
            x = x.strip()
            if x: self.L.append(x)
    def ext(self, l): self.L += l
    def text(self): return "\n".join(self.L) + "\n"

def v(a, n=1): return "v%d" % a if n == 1 else "v[%d:%d]" % (a, a + n - 1)
def a(a_, n=1): return "a%d" % a_ if n == 1 else "a[%d:%d]" % (a_, a_ + n - 1)
def s(a_, n=1): return "s%d" % a_ if n == 1 else "s[%d:%d]" % (a_, a_ + n - 1)
def f2u(x):
    import struct
    return "0x%08x" % struct.unpack("<I", struct.pack("<f", x))[0]

def kd(name, vgpr=512, acc=256):
    return """.section .rodata,"a"
.p2align 6
.amdhsa_kernel %s
  .amdhsa_next_free_vgpr %d
  .amdhsa_next_free_sgpr 102
  .amdhsa_accum_offset %d
  .amdhsa_group_segment_fixed_size 0
  .amdhsa_kernarg_size 96
  .amdhsa_user_sgpr_count 2
  .amdhsa_user_sgpr_kernarg_segment_ptr 1
  .amdhsa_system_sgpr_workgroup_id_x 1
.end_amdhsa_kernel
""" % (name, vgpr, acc)

def srd(e, d, base, off_lo, nbytes, off_hi=None):
    e("s_add_u32 %s, %s, %s" % (s(d), s(base), off_lo))
    e("s_addc_u32 %s, %s, %s" % (s(d + 1), s(base + 1), off_hi if off_hi is not None else 0))
    e("s_mov_b32 %s, %s" % (s(d + 2), nbytes))
    e("s_mov_b32 %s, 0x20000" % s(d + 3))

S_X, S_WQ, S_WG, S_WU, S_K, S_V, S_AF, S_T, S_WF = 8, 12, 16, 20, 24, 28, 32, 36, 40
S_PTR = 44
S_WAVE, S_HEAD, S_QT, S_FS = 68, 69, 70, 71
S_XOFF, S_WQOFF, S_WGOFF, S_M0W = 72, 73, 74, 75
S_KVOFF, S_M0K, S_TOG, S_RETRY = 76, 77, 78, 79
S_TMP = 80
S_MASK = 90
def ptr(i): return S_PTR + 2 * i

L_K = 0
L_V = 65536
L_W = 98304
L_CS = 65536 + 3 * 8192 + 0
L_SPARE = 131072
LDS_BYTES = 163840

V_LANE = 1
V_XO = 2
V_WQO = 6
V_WGO = 8
V_AQ = 9
V_AG = 13
V_CQ, V_CG = 17, 18
V_KA = 20
V_VA = 24
V_KD = 32
V_VD = 34
V_T = 36
V_ACCQ = 64
V_ACCG = 192
V_Q = 64
V_S = 128
V_P = 192
V_NEGM = 224
V_L = 240
A_ACCU = 0
A_X = 64
A_W = 128
A_CF = 160
A_RS = 176; A_GR = 192; A_CS = 208; A_ONE = 224
A_O = 0
A_KF = 128
A_VF = 160

def accreg(blk, qb):
    if blk < 8: return v(V_ACCQ + (blk * 4 + qb) * 4, 4)
    if blk < 12: return v(V_ACCG + ((blk - 8) * 4 + qb) * 4, 4)
    return a(A_ACCU + ((blk - 12) * 4 + qb) * 4, 4)

def w_read(dst, blk, j, slot, cs=False):
    if blk < 8:
        sl, b = blk >> 1, blk & 1
        ar = V_CQ if cs else V_AQ + sl
        off = slot * 16384 + j * 1024 + b * 8
    else:
        u = (blk - 8) & 3
        ar = V_CG if cs else V_AG + u
        off = slot * 16384 + 2048 + (1024 if blk >= 12 else 0) + j * 512
    return "ds_read_b64_tr_b16 %s, %s offset:%d" % (a(dst + 2 * j, 2), v(ar), off)

def w_dma(heavy):
    l = ["buffer_load_dwordx4 %s, %s, %s offen lds" % (v(V_WQO), s(S_WQ, 4), s(S_WQOFF)),
         "buffer_load_dwordx4 %s, %s, %s offen offset:1024 lds" % (v(V_WQO + 1), s(S_WQ, 4), s(S_WQOFF))]
    if heavy:
        l += ["buffer_load_dwordx4 %s, %s, %s offen offset:2048 lds" % (v(V_WGO), s(S_WG, 4), s(S_WGOFF)),
              "buffer_load_dwordx4 %s, %s, %s offen offset:3072 lds" % (v(V_WGO), s(S_WU, 4), s(S_WGOFF))]
    return l

def x_load(ring, qb, off):
    return "buffer_load_dwordx4 %s, %s, %s, %s offen offset:%d" % (a(A_X + (ring * 4 + qb) * 4, 4), v(V_XO + qb), s(S_X, 4), s(S_XOFF), off)

def gen_proj(e, heavy, tag):
    NB = 16 if heavy else 8
    CS = [0, 1, 8, 12] if heavy else [0, 1]
    ND = 4 if heavy else 2
    e("s_mov_b32 %s, 0\ns_mov_b32 %s, 0\ns_mov_b32 %s, 0" % (s(S_XOFF), s(S_WQOFF), s(S_WGOFF)))
    for sl in range(4):
        e("s_add_u32 m0, %s, %d" % (s(S_M0W), sl * 16384))
        e("s_nop 0")
        e.ext(w_dma(heavy))
        e("s_add_u32 %s, %s, %d\ns_add_u32 %s, %s, %d" % (s(S_WQOFF), s(S_WQOFF), 32 * 8192, s(S_WGOFF), s(S_WGOFF), 32 * 3456))
        if sl < 3:
            for qb in range(4): e(x_load(sl, qb, sl * 64))
    for r in range(V_ACCQ, 256 if heavy else V_ACCG): e("v_mov_b32 %s, 0" % v(r))
    if heavy:
        for r in range(A_ACCU, A_ACCU + 64): e("v_accvgpr_write_b32 %s, 0" % a(r))
    for r in range(A_RS, A_RS + 48): e("v_accvgpr_write_b32 %s, 0" % a(r))
    e("v_mov_b32 %s, 0x3f803f80" % v(V_T))
    for r in range(4): e("v_accvgpr_write_b32 %s, %s" % (a(A_ONE + r), v(V_T)))
    e("s_waitcnt vmcnt(%d)\ns_barrier" % (3 * ND + 8))
    ones = a(A_ONE, 4)
    mf = []; pos = {}
    slab_start = []
    last_use = {}
    cs_pos = {}
    for u in range(4):
        slab_start.append(len(mf))
        xr = lambda qb: a(A_X + (u * 4 + qb) * 4, 4)
        extra = []
        for qb in range(4):
            extra.append("%s %s, %s, %s, %s" % (MF, a(A_RS + 4 * qb, 4), ones, xr(qb), a(A_RS + 4 * qb, 4)))
            extra.append("%s %s, %s, %s, %s" % (MF, a(A_GR + 4 * qb, 4), xr(qb), xr(qb), a(A_GR + 4 * qb, 4)))
        for f in range(NB):
            pos[(u, f)] = len(mf)
            wr = a(A_W + 4 * (f % 8), 4)
            for qb in range(4):
                mf.append("%s %s, %s, %s, %s" % (MF, accreg(f, qb), wr, xr(qb), accreg(f, qb)))
            last_use[(u, f)] = len(mf) - 1
        for i, c in enumerate(CS):
            cs_pos[(u, i)] = len(mf)
            mf.append("%s %s, %s, %s, %s" % (MF, a(A_CS + 4 * i, 4), a(A_CF + 4 * i, 4), ones, a(A_CS + 4 * i, 4)))
        mf += extra
    G = Gaps(mf)
    NG = len(mf) // 4
    PRE = 8 if NB > 8 else 8
    pre_reads = []
    for u in range(4):
        st = slab_start[u]
        g = st
        for qb in range(4):
            g = G.place("m", x_load((u + 3) % 4, qb, ((u + 3)) * 64), g + 1) + 1
    NPRE = 5 if heavy else 4
    bar = {}
    for u in range(4):
        st = slab_start[u]
        lastg = st
        items = []
        for f in range(NPRE, NB):
            lo = st if f < 8 else last_use[(u, f - 8)]
            items.append((lo, [w_read(A_W + 4 * (f % 8), f, j, u) for j in range(2)], pos[(u, f)] - 6))
        for i, c in enumerate(CS):
            items.append((st + 3 * i, [w_read(A_CF + 4 * i, c, j, u, cs=True) for j in range(2)], cs_pos[(u, i)] - 6))
        items.sort(key=lambda t: (t[0], t[2]))
        cur = st
        for lo, rd, hi in items:
            for r in rd:
                cur = G.place("d", r, max(lo, cur), hi)
        lastg = cur
        b = lastg + 7
        b = G.place("b", "s_barrier", b)
        G.put(b, "s", "s_waitcnt vmcnt(%d) lgkmcnt(0)" % (2 * ND + 8))
        bar[u] = b
        g = G.place("s", "s_add_u32 m0, %s, %d" % (s(S_M0W), u * 16384), b + 1)
        for d in w_dma(heavy):
            g = G.place("m", d, g + 2)
        g = G.place("s", "s_add_u32 %s, %s, %d" % (s(S_WQOFF), s(S_WQOFF), 32 * 8192), g + 1)
        if heavy: g = G.place("s", "s_add_u32 %s, %s, %d" % (s(S_WGOFF), s(S_WGOFF), 32 * 3456), g + 1)
        assert g < st + NG
        cur = b + 1
        un = (u + 1) % 4
        for f in range(NPRE):
            lo = last_use[(u, NB - 8 + f)]
            for j in range(2):
                r = w_read(A_W + 4 * f, f, j, un)
                cur = G.place("d", r, max(lo, cur), st + NG - 1)
                if un == 0: pre_reads.append(r)
    G.place("s", "s_add_u32 %s, %s, 256" % (s(S_XOFF), s(S_XOFF)), slab_start[3] + 12)
    G.place("s", "s_cmp_lt_u32 %s, 1280" % s(S_XOFF), G.n() - 3)
    auto_lgkm(G, loop=True)
    if VERBOSE: print("proj", tag, G.pattern())
    e.ext(pre_reads)
    e("s_waitcnt lgkmcnt(0)")
    e(".p2align 6\nPROJ_%s:" % tag)
    e.ext(G.lines())
    e("s_cbranch_scc1 PROJ_%s" % tag)

def kv_dma(which, i):
    vo = (V_KD if which == "K" else V_VD) + i
    return "buffer_load_dwordx4 %s, %s, %s offen offset:%d lds" % (v(vo), s(S_K if which == "K" else S_V, 4), s(S_KVOFF), 1024 * i)

def gen_proj_epilogue(e, heavy, tag):
    NB = 16 if heavy else 8
    CS = [0, 1, 8, 12] if heavy else [0, 1]
    T = V_T
    e("s_waitcnt vmcnt(0) lgkmcnt(0)\ns_barrier")
    kv_preload(e)
    e("s_nop 7")
    for i in range(len(CS)):
        for r in range(4): e("v_accvgpr_read_b32 %s, %s" % (v(T + 4 * i + r), a(A_CS + 4 * i + r)))
    e("v_lshrrev_b32 %s, 4, %s\nv_lshlrev_b32 %s, 4, %s" % (v(T + 16), v(V_LANE), v(T + 16), v(T + 16)))
    e("v_add_u32 %s, %d, %s" % (v(T + 16), L_SPARE, v(T + 16)))
    e("s_lshl_b32 %s, %s, 7\ns_lshl_b32 %s, %s, 6" % (s(S_TMP), s(S_WAVE), s(S_TMP + 1), s(S_WAVE)))
    e("v_add_u32 %s, %s, %s\nv_add_u32 %s, %s, %s" % (v(T + 17), s(S_TMP), v(T + 16), v(T + 18), s(S_TMP + 1), v(T + 16)))
    e("ds_write_b128 %s, %s" % (v(T + 17), v(T, 4)))
    e("ds_write_b128 %s, %s offset:64" % (v(T + 17), v(T + 4, 4)))
    if heavy:
        e("ds_write_b128 %s, %s offset:512" % (v(T + 18), v(T + 8, 4)))
        e("ds_write_b128 %s, %s offset:768" % (v(T + 18), v(T + 12, 4)))
    e("v_and_b32 %s, 3, %s" % (v(T + 19), v(V_LANE)))
    for k in range(1, 4): e("v_cmp_eq_u32 %s, %d, %s" % (s(S_MASK + 2 * (k - 1), 2), k, v(T + 19)))
    e("v_and_b32 %s, 15, %s\nv_lshrrev_b32 %s, 2, %s\nv_lshlrev_b32 %s, 4, %s\nv_add_u32 %s, %s, %s\nv_lshlrev_b32 %s, 2, %s" % (
        v(T + 19), v(V_LANE), v(T + 20), v(T + 19), v(T + 20), v(T + 20), v(T + 19), v(T + 19), v(T + 20), v(T + 19), v(T + 19)))
    e("s_waitcnt lgkmcnt(0)")
    for qb in range(4):
        for r in range(4): e("v_accvgpr_read_b32 %s, %s" % (v(T + r), a(A_GR + 4 * qb + r)))
        for k in range(1, 4): e("v_cndmask_b32 %s, %s, %s, %s" % (v(T), v(T), v(T + k), s(S_MASK + 2 * (k - 1), 2)))
        e("ds_bpermute_b32 %s, %s, %s" % (v(T + 4 + qb), v(T + 19), v(T)))
        e("s_waitcnt lgkmcnt(0)")
    e("s_barrier")
    NM = T + 8
    RQ = T + 20
    for qb in range(4):
        e("v_accvgpr_read_b32 %s, %s" % (v(T), a(A_RS + 4 * qb)))
        e("v_mul_f32 %s, %s, %s" % (v(NM + 2 * qb), f2u(-1.0 / 640), v(T)))
        e("v_mul_f32 %s, %s, %s" % (v(T + 1), f2u(1.0 / 640), v(T + 4 + qb)))
        e("v_fma_f32 %s, -%s, %s, %s" % (v(T + 1), v(NM + 2 * qb), v(NM + 2 * qb), v(T + 1)))
        e("v_max_f32 %s, 0, %s" % (v(T + 1), v(T + 1)))
        e("v_add_f32 %s, %s, %s" % (v(T + 1), f2u(1e-5), v(T + 1)))
        e("v_rsq_f32 %s, %s" % (v(T + 4 + qb), v(T + 1)))
        e("v_mov_b32 %s, %s" % (v(NM + 2 * qb + 1), v(NM + 2 * qb)))
    csr = [T, V_XO]
    CB = T + 16
    if heavy:
        for qb in range(4):
            e("v_mul_f32 %s, %s, %s" % (v(RQ + 2 * qb), v(T + 4 + qb), v(T + 4 + qb)))
            e("v_mov_b32 %s, %s" % (v(RQ + 2 * qb + 1), v(RQ + 2 * qb)))
        U = V_WQO
        e("v_lshlrev_b32 %s, 4, %s" % (v(T + 17), v(V_LANE)))
        for fb in range(4):
            e("ds_read_b128 %s, %s offset:%d" % (v(csr[0], 4), v(CB), (8 + fb) * 64))
            e("ds_read_b128 %s, %s offset:%d" % (v(csr[1], 4), v(CB), (12 + fb) * 64))
            e("s_waitcnt lgkmcnt(0)")
            for qb in range(4):
                g0 = V_ACCG + (fb * 4 + qb) * 4
                for r in range(4): e("v_accvgpr_read_b32 %s, %s" % (v(U + r), a(A_ACCU + (fb * 4 + qb) * 4 + r)))
                for h in range(2):
                    e("v_pk_fma_f32 %s, %s, %s, %s" % (v(g0 + 2 * h, 2), v(NM + 2 * qb, 2), v(csr[0] + 2 * h, 2), v(g0 + 2 * h, 2)))
                    e("v_pk_fma_f32 %s, %s, %s, %s" % (v(U + 2 * h, 2), v(NM + 2 * qb, 2), v(csr[1] + 2 * h, 2), v(U + 2 * h, 2)))
                for r in range(4): e("v_max_f32 %s, 0, %s" % (v(g0 + r), v(g0 + r)))
                for h in range(2):
                    e("v_pk_mul_f32 %s, %s, %s" % (v(U + 2 * h, 2), v(U + 2 * h, 2), v(RQ + 2 * qb, 2)))
                for h in range(2):
                    e("v_pk_mul_f32 %s, %s, %s" % (v(g0 + 2 * h, 2), v(g0 + 2 * h, 2), v(U + 2 * h, 2)))
                d0 = V_ACCG + ((fb & ~1) * 4 + qb) * 4 + 2 * (fb & 1)
                e("v_cvt_pk_bf16_f32 %s, %s, %s" % (v(d0), v(g0), v(g0 + 1)))
                e("v_cvt_pk_bf16_f32 %s, %s, %s" % (v(d0 + 1), v(g0 + 2), v(g0 + 3)))
            if fb & 1:
                e("s_lshl_b32 %s, %s, 13\ns_add_u32 %s, %s, %d" % (s(S_TMP), s(S_FS), s(S_TMP), s(S_TMP), (128 + (fb >> 1)) * 4096))
                for qb in range(4):
                    d0 = V_ACCG + ((fb & ~1) * 4 + qb) * 4
                    e("buffer_store_dwordx4 %s, %s, %s, %s offen offset:%d%s" % (v(d0, 4), v(T + 17), s(S_AF, 4), s(S_TMP), 1024 * qb, STFL))
    c = math.log2(math.e) / math.sqrt(128.0)
    for qb in range(4):
        e("v_mul_f32 %s, %s, %s" % (v(RQ + 2 * qb), f2u(c), v(T + 4 + qb)))
        e("v_mov_b32 %s, %s" % (v(RQ + 2 * qb + 1), v(RQ + 2 * qb)))
    for sl in range(4):
        e("ds_read_b128 %s, %s offset:%d" % (v(csr[0], 4), v(CB), (2 * sl) * 64))
        e("ds_read_b128 %s, %s offset:%d" % (v(csr[1], 4), v(CB), (2 * sl + 1) * 64))
        e("s_waitcnt lgkmcnt(0)")
        for qb in range(4):
            for b in range(2):
                g0 = V_ACCQ + ((2 * sl + b) * 4 + qb) * 4
                for h in range(2):
                    e("v_pk_fma_f32 %s, %s, %s, %s" % (v(g0 + 2 * h, 2), v(NM + 2 * qb, 2), v(csr[b] + 2 * h, 2), v(g0 + 2 * h, 2)))
                for h in range(2):
                    e("v_pk_mul_f32 %s, %s, %s" % (v(g0 + 2 * h, 2), v(g0 + 2 * h, 2), v(RQ + 2 * qb, 2)))
            d0 = V_Q + (sl * 4 + qb) * 4
            for b in range(2):
                g0 = V_ACCQ + ((2 * sl + b) * 4 + qb) * 4
                e("v_cvt_pk_bf16_f32 %s, %s, %s" % (v(d0 + 2 * b), v(g0), v(g0 + 1)))
                e("v_cvt_pk_bf16_f32 %s, %s, %s" % (v(d0 + 2 * b + 1), v(g0 + 2), v(g0 + 3)))

def kv_preload(e):
    e("s_mov_b32 %s, 0" % s(S_KVOFF))
    for i in range(8):
        e("s_add_u32 m0, %s, %d\ns_nop 0" % (s(S_M0K), L_K + i * 8192))
        e(kv_dma("K", 0)); e(kv_dma("K", 1))
        if i >= 3:
            e("s_add_u32 m0, %s, %d\ns_nop 0" % (s(S_M0K), L_V + (i - 3) * 8192))
            e(kv_dma("V", 0)); e(kv_dma("V", 1))
        e("s_add_u32 %s, %s, 8192" % (s(S_KVOFF), s(S_KVOFF)))

def Sreg(buf, qb, kb): return V_S + buf * 32 + qb * 8 + kb * 4
def Preg(buf, qb): return V_P + buf * 16 + qb * 4

def qk_mfmas(buf, czero=False):
    out = []
    for kb in range(2):
        for qb in range(4):
            for sl in range(4):
                d = v(Sreg(buf, qb, kb), 4)
                c = d if sl else ("0" if czero else v(V_NEGM + 4 * qb, 4))
                out.append("%s %s, %s, %s, %s" % (MF, d, a(A_KF + (kb * 4 + sl) * 4, 4), v(V_Q + (sl * 4 + qb) * 4, 4), c))
    return out

def pv_mfmas(buf):
    out = []
    for qb in range(4):
        out.append("%s %s, %s, %s, %s" % (MF, v(V_L + 4 * qb, 4), a(A_ONE, 4), v(Preg(buf, qb), 4), v(V_L + 4 * qb, 4)))
    for db in range(8):
        for qb in range(4):
            o = a(A_O + (db * 4 + qb) * 4, 4)
            out.append("%s %s, %s, %s, %s" % (MF, o, a(A_VF + db * 4, 4), v(Preg(buf, qb), 4), o))
    return out

def k_read(kb, sl, off): return "ds_read_b128 %s, %s offset:%d" % (a(A_KF + (kb * 4 + sl) * 4, 4), v(V_KA + sl), off + kb * 4096)
def v_read(db, j, off): return "ds_read_b64_tr_b16 %s, %s offset:%d" % (a(A_VF + db * 4 + 2 * j, 2), v(V_VA + db), off + j * 4096)

def softmax_ops(buf):
    ex = []; cv = []
    for qb in range(4):
        for kb in range(2):
            for r in range(4):
                x = v(Sreg(buf, qb, kb) + r)
                ex.append("v_exp_f32 %s, %s" % (x, x))
            for h in range(2):
                b = Sreg(buf, qb, kb) + 2 * h
                cv.append("v_cvt_pk_bf16_f32 %s, %s, %s" % (v(Preg(buf, qb) + kb * 2 + h), v(b), v(b + 1)))
    return ex, cv

def add_step(G, st, sbuf, do_qk, do_pv, do_sm, koff, voff, kslot_m0, vslot_m0, barrier, kreads=True, force=False):
    nq = 32 if do_qk else 0
    npv = 36 if do_pv else 0
    end = st + nq + npv - 1
    cur = st
    if barrier is not None:
        b = G.place("b", "s_barrier", st)
        G.put(b, "s", "s_waitcnt vmcnt(%d)" % barrier)
        cur = b + 1
    first_read = cur
    return end

def gen_attention(e):
    T = V_T
    e("ATT_START:")
    for r in range(128): e("v_accvgpr_write_b32 %s, 0" % a(A_O + r))
    for r in range(16): e("v_mov_b32 %s, 0" % v(V_L + r))
    e("s_waitcnt vmcnt(16)\ns_barrier")
    for kb in range(2):
        for sl in range(4): e(k_read(kb, sl, 0))
    e("s_waitcnt lgkmcnt(0)")
    e.ext(qk_mfmas(0, czero=True))
    for kb in range(2):
        for sl in range(4): e(k_read(kb, sl, 8192))
    e("s_nop 7")
    for qb in range(4):
        b = Sreg(0, qb, 0)
        e("v_max3_f32 %s, %s, %s, %s" % (v(T + qb), v(b), v(b + 1), v(b + 2)))
        e("v_max3_f32 %s, %s, %s, %s" % (v(T + qb), v(T + qb), v(b + 3), v(b + 4)))
        e("v_max3_f32 %s, %s, %s, %s" % (v(T + qb), v(T + qb), v(b + 5), v(b + 6)))
        e("v_max3_f32 %s, %s, %s, %s" % (v(T + qb), v(T + qb), v(b + 7), v(V_NEGM + 4 * qb)))
    for sw in ("v_permlane32_swap_b32", "v_permlane16_swap_b32"):
        for qb in range(4): e("v_mov_b32 %s, %s" % (v(T + 4 + qb), v(T + qb)))
        e("s_nop 1")
        for qb in range(4): e("%s %s, %s" % (sw, v(T + qb), v(T + 4 + qb)))
        for qb in range(4): e("v_max_f32 %s, %s, %s" % (v(T + qb), v(T + qb), v(T + 4 + qb)))
    for qb in range(4):
        for r in range(4): e("v_sub_f32 %s, 0, %s" % (v(V_NEGM + 4 * qb + r), v(T + qb)))
        for r in range(8): e("v_sub_f32 %s, %s, %s" % (v(Sreg(0, qb, 0) + r), v(Sreg(0, qb, 0) + r), v(T + qb)))
    e("s_waitcnt lgkmcnt(0)")

    def build(steps, loop, pend):
        mf = []; starts = []
        for sp in steps:
            starts.append(len(mf))
            if sp["qk"]: mf += qk_mfmas(1 - sp["buf"])
            if sp["pv"]: mf += pv_mfmas(1 - sp["buf"])
        G = Gaps(mf)
        for sp, st in zip(steps, starts):
            nq = 32 if sp["qk"] else 0
            npv = 36 if sp["pv"] else 0
            end = st + nq + npv - 1
            full = sp["qk"] and sp["pv"]
            cur = st; g = st; c2 = st
            if sp.get("bar") is not None:
                b = G.place("b", "s_barrier", st)
                G.put(b, "s", "s_waitcnt vmcnt(%d) lgkmcnt(0)" % sp["bar"])
                cur = b + 1
            if sp["pv"] and sp["qk"]:
                for i in range(16):
                    lo = st + 4 * (i // 2) + (i % 2)
                    cur = G.place("d", v_read(i // 2, i % 2, sp["voff"]), max(cur, lo)) + 1
            if sp.get("vnext") is not None:
                c2 = st + nq + 4 + 3
                for i in range(16):
                    lo = st + nq + 4 + 4 * (i // 2) + 3
                    if lo > end: lo = end
                    c2 = G.place("d", v_read(i // 2, i % 2, sp["vnext"]), min(max(c2, lo), end), end, force=True) + 1
            if sp.get("koff") is not None:
                if full:
                    c2 = st + 32
                    for i in range(8):
                        c2 = G.place("d", k_read(i // 4, i % 4, sp["koff"]), max(c2, st + 32 + 3 * i)) + 1
                else:
                    c2 = st + 16
                    for i in range(4): c2 = G.place("d", k_read(0, i, sp["koff"]), c2) + 1
                    for i in range(4): G.put(end, "d", k_read(1, i, sp["koff"]))
            if sp.get("dma"):
                g = st + (33 if full else 2)
                for wi, which in enumerate(sp["dma"]):
                    g = G.place("s", "s_add_u32 m0, %s, %s" % (s(S_M0K), sp["m0" + which]), g)
                    for i in range(2):
                        g = G.place("m", kv_dma(which, i), g + 2)
                    g += 1
                g = G.place("s", "s_add_u32 %s, %s, 8192" % (s(S_KVOFF), s(S_KVOFF)), g)
            marks = {"dma": g, "kread": c2 if sp.get("koff") is not None else st, "vread": cur}
            for (after, chain) in sp.get("misc", []):
                gg = marks[after] if isinstance(after, str) else st + after
                for (kind, text) in chain:
                    gg = G.place(kind, text, gg + (1 if kind == "s" else 0), end)
                marks["last"] = max(marks.get("last", 0), gg)
            if sp["sm"]:
                ex, cv = softmax_ops(sp["buf"])
                n = end - st + 1
                eg = []
                g = st
                for i, x in enumerate(ex):
                    tgt = st + (i * (n - 3)) // 32
                    g = G.place("e", x, min(max(g, tgt), end), end, force=True)
                    eg.append(g)
                g = st
                for i, x in enumerate(cv):
                    g = G.place("v", x, min(max(g, eg[2 * i + 1] + 1), end), end, force=True)
        pre, out = auto_lgkm(G, pend, loop=loop)
        return G, pre, out

    G, pre, pend = build([dict(buf=0, qk=True, pv=False, sm=True, koff=16384, dma="KV", m0K=L_K + 0, m0V=L_V + 5 * 8192)], False, [])
    if VERBOSE: print("step0", G.pattern())
    e.ext(G.lines())
    e("s_waitcnt lgkmcnt(0)")
    for sl in range(4): e("v_add_u32 %s, 16384, %s" % (v(V_KA + sl), v(V_KA + sl)))
    e("s_mov_b32 %s, 16384\ns_mov_b32 %s, 49152" % (s(S_TOG), s(S_TMP + 2)))
    e("s_mov_b32 %s, %d\ns_mov_b32 %s, %d" % (s(S_TMP + 3), 1 * 8192, s(S_TMP + 4), 6 * 8192 + L_V))
    def adv(r, base):
        return [("s", "s_add_u32 %s, %s, 8192" % (s(r), s(r))), ("s", "s_and_b32 %s, %s, 0xffff" % (s(r), s(r)))] + \
               ([("s", "s_or_b32 %s, %s, %d" % (s(r), s(r), base))] if base else [])
    miscA = [("kread", [("v", "v_xor_b32 %s, %s, %s" % (v(V_KA + i), s(S_TMP + 2), v(V_KA + i))) for i in range(4)]),
             ("dma", adv(S_TMP + 3, 0) + adv(S_TMP + 4, L_V))]
    miscB = [(34, [("v", "v_xor_b32 %s, %s, %s" % (v(V_VA + i), s(S_TOG), v(V_VA + i))) for i in range(8)] +
                  [("s", "s_xor_b32 %s, %s, 32768" % (s(S_TOG), s(S_TOG))), ("s", "s_xor_b32 %s, %s, 32768" % (s(S_TMP + 2), s(S_TMP + 2)))]),
             ("dma", adv(S_TMP + 3, 0) + adv(S_TMP + 4, L_V)),
             ("last", [("s", "s_cmp_lt_u32 %s, %d" % (s(S_KVOFF), (63 + 8) * 8192))])]
    G, pre, pend = build([dict(buf=1, qk=True, pv=True, sm=True, koff=8192, voff=0, dma="KV", m0K=s(S_TMP + 3), m0V=s(S_TMP + 4), misc=miscA),
                          dict(buf=0, qk=True, pv=True, sm=True, koff=0, voff=8192, bar=16, dma="KV", m0K=s(S_TMP + 3), m0V=s(S_TMP + 4), misc=miscB)], True, [])
    if VERBOSE: print("loop", G.pattern())
    e(".p2align 6\nATT_LOOP:")
    e.ext(G.lines())
    e("s_cbranch_scc1 ATT_LOOP")
    e("s_waitcnt vmcnt(0) lgkmcnt(0)\ns_barrier")
    for i in range(16): e(v_read(i // 2, i % 2, 0))
    e("s_waitcnt lgkmcnt(0)")
    G, pre, pend = build([dict(buf=1, qk=False, pv=True, sm=True, vnext=8192)], False, [])
    if VERBOSE: print("step63", G.pattern())
    e.ext(G.lines())
    e("s_waitcnt lgkmcnt(0)\ns_nop 1")
    e.ext(pv_mfmas(1))
    e("s_nop 7")

def gen_att_epilogue(e):
    T = V_T
    for qb in range(4): e("v_rcp_f32 %s, %s" % (v(T + 2 * qb), v(V_L + 4 * qb)))
    e("v_max3_f32 %s, %s, %s, %s" % (v(T + 8), v(V_L), v(V_L + 4), v(V_L + 8)))
    e("v_max_f32 %s, %s, %s" % (v(T + 8), v(T + 8), v(V_L + 12)))
    for qb in range(4): e("v_mov_b32 %s, %s" % (v(T + 2 * qb + 1), v(T + 2 * qb)))
    e("v_mul_f32 %s, %s, %s" % (v(T + 8), f2u(2.0 ** 64), v(T + 8)))
    e("v_mul_f32 %s, 0, %s" % (v(T + 8), v(T + 8)))
    for qb in range(4): e("v_fma_f32 %s, %s, 0, %s" % (v(T + 8), v(V_L + 4 * qb), v(T + 8)))
    e("v_mov_b32 %s, 0\nv_mov_b32 %s, 0\nv_mov_b32 %s, 0" % (v(T + 9), v(T + 10), v(T + 11)))
    W = T + 12
    for sl in range(4):
        for qb in range(4):
            d0 = V_S + (sl * 4 + qb) * 4
            for b in range(2):
                for r in range(4): e("v_accvgpr_read_b32 %s, %s" % (v(W + 4 * b + r), a(A_O + ((2 * sl + b) * 4 + qb) * 4 + r)))
            for h in range(4):
                e("v_pk_mul_f32 %s, %s, %s" % (v(W + 2 * h, 2), v(W + 2 * h, 2), v(T + 2 * qb, 2)))
            for h in range(4):
                e("v_pk_fma_f32 %s, %s, %s, %s" % (v(T + 8, 2), v(W + 2 * h, 2), v(T + 10, 2), v(T + 8, 2)))
            for h in range(4):
                e("v_cvt_pk_bf16_f32 %s, %s, %s" % (v(d0 + h), v(W + 2 * h), v(W + 2 * h + 1)))
    e("v_cmp_u_f32 vcc, %s, %s" % (v(T + 8), v(T + 9)))
    e("s_cmp_lg_u64 vcc, 0\ns_cselect_b32 %s, 1, 0" % s(S_TMP))
    e("v_mov_b32 %s, %s" % (v(W), s(S_TMP)))
    e("s_lshl_b32 %s, %s, 2\ns_add_u32 %s, %s, %d" % (s(S_TMP + 1), s(S_WAVE), s(S_TMP + 1), s(S_TMP + 1), L_SPARE + 2048))
    e("v_mov_b32 %s, %s\nv_mov_b32 %s, %d" % (v(W + 1), s(S_TMP + 1), v(W + 2), L_SPARE + 2048))
    e("ds_write_b32 %s, %s\ns_waitcnt lgkmcnt(0)\ns_barrier" % (v(W + 1), v(W)))
    e("ds_read_b128 %s, %s\ns_waitcnt lgkmcnt(0)" % (v(W + 4, 4), v(W + 2)))
    e("v_or3_b32 %s, %s, %s, %s\nv_or_b32 %s, %s, %s\ns_nop 0" % (v(W + 4), v(W + 4), v(W + 5), v(W + 6), v(W + 4), v(W + 4), v(W + 7)))
    e("v_readfirstlane_b32 %s, %s" % (s(S_TMP), v(W + 4)))
    e("s_nop 3\ns_andn2_b32 %s, %s, %s" % (s(S_TMP), s(S_TMP), s(S_RETRY)))
    e("s_cbranch_scc1 ATT_RETRY")
    e("v_lshlrev_b32 %s, 4, %s" % (v(W), v(V_LANE)))
    e("s_lshl_b32 %s, %s, 14" % (s(S_TMP), s(S_HEAD)))
    for sl in range(4):
        for qb in range(4):
            e("buffer_store_dwordx4 %s, %s, %s, %s offen offset:%d%s" % (v(V_S + (sl * 4 + qb) * 4, 4), v(W), s(S_AF, 4), s(S_TMP), 1024 * qb, STFL))
        if sl < 3: e("s_add_u32 %s, %s, 4096" % (s(S_TMP), s(S_TMP)))

def gen_kv_addr(e):
    T = V_T; L = V_LANE
    e("v_and_b32 %s, 15, %s\nv_lshrrev_b32 %s, 4, %s\nv_xor_b32 %s, %s, %s" % (v(T), v(L), v(T + 1), v(L), v(T + 1), v(T + 1), v(T)))
    e("v_lshlrev_b32 %s, 8, %s\nv_lshl_add_u32 %s, %s, 4, %s" % (v(T), v(T), v(T), v(T + 1), v(T)))
    for sl in range(4): e("v_xor_b32 %s, %d, %s" % (v(V_KA + sl), sl * 64, v(T)))
    e("v_lshrrev_b32 %s, 2, %s\nv_and_b32 %s, 7, %s\nv_lshlrev_b32 %s, 8, %s\nv_lshl_add_u32 %s, %s, 5, %s" % (v(T), v(L), v(T + 1), v(T), v(T), v(T), v(T), v(T + 1), v(T)))
    e("v_and_b32 %s, 3, %s\nv_lshl_add_u32 %s, %s, 3, %s\nv_add_u32 %s, %d, %s" % (v(T + 1), v(L), v(T), v(T + 1), v(T), v(T), L_V, v(T)))
    for db in range(8): e("v_xor_b32 %s, %d, %s" % (v(V_VA + db), db * 32, v(T)))

def gen_retry(e):
    T = V_T
    e("ATT_RETRY:")
    e("s_mov_b32 %s, 1" % s(S_RETRY))
    gen_kv_addr(e)
    for qb in range(4): e("v_mov_b32 %s, 0xff800000" % v(V_NEGM + 4 * qb))
    e("s_mov_b32 %s, 0" % s(S_KVOFF))
    e("RETRY_LOOP:")
    e("s_barrier")
    e("s_add_u32 m0, %s, %d\ns_nop 0" % (s(S_M0K), L_K))
    e(kv_dma("K", 0)); e(kv_dma("K", 1))
    e("s_waitcnt vmcnt(0)\ns_barrier")
    for kb in range(2):
        for sl in range(4): e(k_read(kb, sl, 0))
    e("s_waitcnt lgkmcnt(0)")
    e.ext(qk_mfmas(0, czero=True))
    e("s_nop 7")
    for qb in range(4):
        b = Sreg(0, qb, 0); m = v(V_NEGM + 4 * qb)
        for k in range(4): e("v_max3_f32 %s, %s, %s, %s" % (m, m, v(b + 2 * k), v(b + 2 * k + 1)))
    e("s_add_u32 %s, %s, 8192\ns_cmp_lt_u32 %s, %d\ns_cbranch_scc1 RETRY_LOOP" % (s(S_KVOFF), s(S_KVOFF), s(S_KVOFF), 64 * 8192))
    e("s_barrier")
    kv_preload(e)
    e("s_branch ATT_START")

def gen_wtransform(e):
    T = V_T; L = V_LANE
    e("s_sub_u32 %s, %s, 27\ns_lshl_b32 %s, %s, 3\ns_add_u32 %s, %s, %s" % (s(S_TMP + 5), s(S_FS), s(S_TMP + 5), s(S_TMP + 5), s(S_TMP + 5), s(S_TMP + 5), s(S_QT)))
    e("v_lshlrev_b32 %s, 4, %s" % (v(T), v(L)))
    e("v_lshrrev_b32 %s, 2, %s\nv_mul_u32_u24 %s, 1280, %s\nv_and_b32 %s, 3, %s\nv_lshl_add_u32 %s, %s, 3, %s" % (v(T + 1), v(L), v(T + 1), v(T + 1), v(T + 2), v(L), v(T + 1), v(T + 2), v(T + 1)))
    e("s_mul_i32 %s, %s, 320\nv_add_u32 %s, %s, %s" % (s(S_TMP), s(S_WAVE), v(T + 1), s(S_TMP), v(T + 1)))
    e("WT_LOOP:")
    e("s_cmp_lt_u32 %s, 128" % s(S_TMP + 5))
    e("s_cselect_b32 %s, %s, %s\ns_cselect_b32 %s, %s, %s" % (s(S_T), s(ptr(4)), s(ptr(8)), s(S_T + 1), s(ptr(4) + 1), s(ptr(8) + 1)))
    e("s_mov_b32 %s, %d\ns_cselect_b32 %s, %d, %s\ns_mov_b32 %s, 0x20000" % (s(S_T + 2), 1728 * 1280, s(S_T + 2), 4096 * 1280, s(S_T + 2), s(S_T + 3)))
    e("s_and_b32 %s, %s, 127\ns_mul_i32 %s, %s, 40960" % (s(S_TMP), s(S_TMP + 5), s(S_TMP), s(S_TMP)))
    e("s_mul_i32 %s, %s, 10240\ns_add_u32 %s, %s, %s" % (s(S_TMP + 1), s(S_WAVE), s(S_TMP), s(S_TMP), s(S_TMP + 1)))
    e("s_barrier")
    for i in range(10):
        if i % 4 == 0:
            e("s_add_u32 m0, %s, %d\ns_add_u32 %s, %s, %d" % (s(S_TMP + 1), i * 1024, s(S_TMP + 2), s(S_TMP), i * 1024))
        e("buffer_load_dwordx4 %s, %s, %s offen offset:%d lds" % (v(T), s(S_T, 4), s(S_TMP + 2), (i % 4) * 1024))
    e("s_waitcnt vmcnt(0)\ns_barrier")
    D = V_S
    for i in range(10):
        for j in range(2):
            e("ds_read_b64_tr_b16 %s, %s offset:%d" % (v(D + 4 * i + 2 * j, 2), v(T + 1), i * 32 + j * 16 * 1280))
    e("s_lshl_b32 %s, %s, 1\ns_mul_i32 %s, %s, %d\ns_add_u32 %s, %s, %s\ns_mul_i32 %s, %s, 5120" % (s(S_TMP), s(S_WAVE), s(S_TMP), s(S_TMP), NSLAB, s(S_TMP), s(S_TMP), s(S_TMP + 5), s(S_TMP), s(S_TMP)))
    e("s_waitcnt lgkmcnt(0)")
    for i in range(10):
        if i == 4: e("s_add_u32 %s, %s, 4096" % (s(S_TMP), s(S_TMP)))
        if i == 5: e("s_add_u32 %s, %s, %d" % (s(S_TMP), s(S_TMP), NSLAB * 5120 - 4096))
        if i == 9: e("s_add_u32 %s, %s, 4096" % (s(S_TMP), s(S_TMP)))
        e("buffer_store_dwordx4 %s, %s, %s, %s offen offset:%d%s" % (v(D + 4 * i, 4), v(T), s(S_WF, 4), s(S_TMP), ((i % 5) % 4) * 1024, STFL))
    e("s_add_u32 %s, %s, 40\ns_cmp_lt_u32 %s, %d" % (s(S_TMP + 5), s(S_TMP + 5), s(S_TMP + 5), NSLAB))
    e("s_waitcnt vmcnt(0)")
    e("s_cbranch_scc1 WT_LOOP")

def gen_k1(e, name):
    T = V_T; L = V_LANE
    e(".text\n.globl %s\n.p2align 8\n.type %s,@function\n%s:" % (name, name, name))
    e("s_cmp_ge_u32 s2, 256\ns_cbranch_scc1 K1_END")
    e("s_load_dwordx8 %s, s[0:1], 0\ns_load_dwordx8 %s, s[0:1], 32\ns_load_dwordx8 %s, s[0:1], 64" % (s(S_PTR, 8), s(S_PTR + 8, 8), s(S_PTR + 16, 8)))
    e("v_and_b32 %s, 63, v0\nv_lshrrev_b32 %s, 6, v0\ns_nop 0\nv_readfirstlane_b32 %s, %s" % (v(L), v(T), s(S_WAVE), v(T)))
    e("s_and_b32 %s, s2, 7\ns_lshr_b32 %s, s2, 3\ns_and_b32 %s, %s, 3\ns_lshr_b32 %s, %s, 2" % (s(S_TMP), s(S_TMP + 1), s(S_TMP + 2), s(S_TMP + 1), s(S_QT), s(S_TMP + 1)))
    e("s_lshl_b32 %s, %s, 2\ns_add_u32 %s, %s, %s" % (s(S_HEAD), s(S_TMP), s(S_HEAD), s(S_HEAD), s(S_TMP + 2)))
    e("s_lshl_b32 %s, %s, 3\ns_add_u32 %s, %s, %s" % (s(S_FS), s(S_TMP + 2), s(S_FS), s(S_FS), s(S_TMP)))
    e("s_mov_b32 %s, 0" % s(S_RETRY))
    e("v_and_b32 %s, 15, %s\nv_mul_u32_u24 %s, 1280, %s\nv_lshrrev_b32 %s, 4, %s\nv_lshl_add_u32 %s, %s, 4, %s" % (v(T), v(L), v(T), v(T), v(T + 1), v(L), v(V_XO), v(T + 1), v(T)))
    for qb in range(1, 4): e("v_add_u32 %s, %d, %s" % (v(V_XO + qb), qb * 16 * 1280, v(V_XO)))
    e("v_lshrrev_b32 %s, 4, %s\nv_lshlrev_b32 %s, 2, %s\nv_and_b32 %s, 15, %s\nv_xor_b32 %s, %s, %s" % (v(T), v(L), v(T + 1), v(T), v(T + 2), v(L), v(T + 1), v(T + 1), v(T + 2)))
    e("v_lshlrev_b32 %s, 13, %s\nv_lshl_add_u32 %s, %s, 4, %s" % (v(T), v(T), v(T), v(T + 1), v(T)))
    e("s_lshl_b32 %s, %s, 16\nv_add_u32 %s, %s, %s\nv_add_u32 %s, %d, %s" % (s(S_TMP), s(S_WAVE), v(V_WQO), s(S_TMP), v(T), v(V_WQO + 1), 4 * 8192 - 1024, v(V_WQO)))
    e("v_lshrrev_b32 %s, 3, %s\nv_bfe_u32 %s, %s, 4, 1\nv_lshlrev_b32 %s, 1, %s" % (v(T), v(L), v(T + 1), v(L), v(T + 1), v(T + 1)))
    e("s_and_b32 %s, %s, 1\ns_lshl_b32 %s, %s, 2\nv_or_b32 %s, %s, %s" % (s(S_TMP), s(S_WAVE), s(S_TMP), s(S_TMP), v(T + 1), s(S_TMP), v(T + 1)))
    e("v_and_b32 %s, 7, %s\nv_xor_b32 %s, %s, %s" % (v(T + 2), v(L), v(T + 1), v(T + 1), v(T + 2)))
    e("s_lshl_b32 %s, %s, 3\nv_add_u32 %s, %s, %s\nv_mul_u32_u24 %s, 3456, %s\nv_lshl_add_u32 %s, %s, 4, %s" % (s(S_TMP), s(S_WAVE), v(T), s(S_TMP), v(T), v(T), v(T), v(V_WGO), v(T + 1), v(T)))
    e("v_bfe_u32 %s, %s, 2, 2\nv_lshrrev_b32 %s, 4, %s\nv_and_b32 %s, 3, %s" % (v(T), v(L), v(T + 1), v(L), v(T + 2), v(L)))
    e("v_lshlrev_b32 %s, 12, %s\nv_add_u32 %s, %d, %s" % (v(T + 3), v(T + 1), v(T + 3), L_W, v(T + 3)))
    e("v_mul_u32_u24 %s, 320, %s\nv_add_u32 %s, %s, %s\nv_lshl_add_u32 %s, %s, 4, %s" % (v(T + 4), v(T), v(T + 4), v(T + 4), v(T + 3), v(T + 4), v(T + 2), v(T + 4)))
    for sl in range(4): e("v_xor_b32 %s, %d, %s" % (v(V_AQ + sl), sl * 64, v(T + 4)))
    e("s_lshl_b32 %s, %s, 6\nv_xor_b32 %s, %s, %s" % (s(S_TMP), s(S_WAVE), v(V_CQ), s(S_TMP), v(T + 4)))
    e("v_lshl_add_u32 %s, %s, 7, %s\nv_lshl_add_u32 %s, %s, 3, %s" % (v(T + 4), v(T), v(T + 3), v(T + 4), v(T + 2), v(T + 4)))
    e("v_bfe_u32 %s, %s, 3, 2\nv_lshl_add_u32 %s, %s, 5, %s" % (v(T + 5), v(L), v(T + 4), v(T + 5), v(T + 4)))
    for u in range(4): e("v_xor_b32 %s, %d, %s" % (v(V_AG + u), u * 32, v(T + 4)))
    e("s_lshl_b32 %s, %s, 5\nv_xor_b32 %s, %s, %s" % (s(S_TMP), s(S_WAVE), v(V_CG), s(S_TMP), v(T + 4)))
    e("v_lshrrev_b32 %s, 4, %s\ns_lshl_b32 %s, %s, 3\nv_add_u32 %s, %s, %s\nv_and_b32 %s, 15, %s" % (v(T), v(L), s(S_TMP), s(S_WAVE), v(T), s(S_TMP), v(T), v(T + 1), v(L)))
    e("v_lshlrev_b32 %s, 8, %s" % (v(T + 2), v(T)))
    for i in range(2):
        e("v_add_u32 %s, %d, %s\nv_and_b32 %s, 15, %s\nv_xor_b32 %s, %s, %s\nv_lshl_add_u32 %s, %s, 4, %s" % (v(T + 3), 4 * i, v(T), v(T + 4), v(T + 3), v(T + 4), v(T + 4), v(T + 1), v(V_KD + i), v(T + 4), v(T + 2)))
        e("v_and_b32 %s, 7, %s\nv_lshlrev_b32 %s, 1, %s\nv_xor_b32 %s, %s, %s\nv_lshl_add_u32 %s, %s, 4, %s" % (v(T + 4), v(T + 3), v(T + 4), v(T + 4), v(T + 4), v(T + 4), v(T + 1), v(V_VD + i), v(T + 4), v(T + 2)))
    gen_kv_addr(e)
    e("s_lshl_b32 %s, %s, 12\ns_add_u32 %s, %s, %d\ns_lshl_b32 %s, %s, 11" % (s(S_M0W), s(S_WAVE), s(S_M0W), s(S_M0W), L_W, s(S_M0K), s(S_WAVE)))
    e("s_waitcnt lgkmcnt(0)")
    e("s_lshl_b32 %s, %s, 2\ns_add_u32 %s, %s, %s" % (s(S_TMP + 1), s(S_QT), s(S_TMP + 1), s(S_TMP + 1), s(S_WAVE)))
    e("s_mul_i32 %s, %s, %d" % (s(S_TMP), s(S_TMP + 1), 64 * 1280))
    srd(e, S_X, ptr(0), s(S_TMP), 64 * 1280)
    e("s_mul_i32 %s, %s, %d" % (s(S_TMP), s(S_TMP + 1), NSLAB * 4096))
    srd(e, S_AF, ptr(11), s(S_TMP), NSLAB * 4096)
    srd(e, S_WF, ptr(11), WF_OFF, WF_BYTES)
    e("s_lshl_b32 %s, %s, 8\ns_sub_u32 %s, %d, %s" % (s(S_TMP), s(S_HEAD), s(S_TMP + 1), 640 * 8192, s(S_TMP)))
    srd(e, S_WQ, ptr(3), s(S_TMP), s(S_TMP + 1))
    for (d, p, sh) in ((S_WG, 6, 2048), (S_WU, 7, 3072)):
        e("s_lshl_b32 %s, %s, 7\ns_sub_u32 %s, %d, %s" % (s(S_TMP), s(S_FS), s(S_TMP + 1), 640 * 3456 + sh, s(S_TMP)))
        srd(e, d, ptr(p), s(S_TMP), s(S_TMP + 1))
        e("s_sub_u32 %s, %s, %d\ns_subb_u32 %s, %s, 0" % (s(d), s(d), sh, s(d + 1), s(d + 1)))
    e("s_lshl_b32 %s, %s, 19" % (s(S_TMP), s(S_HEAD)))
    srd(e, S_K, ptr(1), s(S_TMP), 524288)
    srd(e, S_V, ptr(2), s(S_TMP), 524288 + 3 * 8192)
    e("s_sub_u32 %s, %s, %d\ns_subb_u32 %s, %s, 0" % (s(S_V), s(S_V), 3 * 8192, s(S_V + 1), s(S_V + 1)))
    e("s_cmp_ge_u32 %s, 27\ns_cbranch_scc1 LIGHT" % s(S_FS))
    gen_proj(e, True, "H")
    gen_proj_epilogue(e, True, "H")
    e("PROJ_DONE:")
    for qb in range(4): e("v_mov_b32 %s, 0xff800000" % v(V_NEGM + 4 * qb))
    gen_attention(e)
    gen_att_epilogue(e)
    e("K1_END:\ns_endpgm")
    gen_retry(e)
    e("LIGHT:")
    gen_wtransform(e)
    gen_proj(e, False, "L")
    gen_proj_epilogue(e, False, "L")
    e("s_branch PROJ_DONE")
    e(kd(name))

VERBOSE = False
STFL = ""

def main():
    global VERBOSE
    VERBOSE = "-v" in sys.argv
    from gen_k3 import gen_k3
    e = E()
    hdr = open("cdna_kernels/%s.s.ref" % NAME).read().split("; Override launch")[0]
    e.L += hdr.strip().split("\n")
    e("; @launch kernel=attn_kernel grid=(256,1,1) block=(256,1,1) lds=%d" % LDS_BYTES)
    e("; @launch kernel=%s_kernel grid=(256,1,1) block=(256,1,1) lds=%d" % (NAME, 131072))
    e('.amdgcn_target "amdgcn-amd-amdhsa--gfx950"')
    gen_k1(e, "attn_kernel")
    gen_k3(e, NAME + "_kernel")
    t = e.text()
    errs = asmcheck.check(t, ["attn_kernel", NAME + "_kernel"])
    if errs:
        print("\n".join(errs[:40])); print(len(errs), "problems")
    out = [x for x in sys.argv[1:] if not x.startswith("-")]
    open(out[0] if out else "cdna_kernels/%s.s" % NAME, "w").write(t)

if __name__ == "__main__":
    main()
```

```python
import sys, math, os, struct, re
from sched import Gaps, auto_lgkm
import asmcheck

NAME = "recurrent_scan__mha_block_cached__glu_gated_reglu__prompt"
MF = "v_mfma_f32_16x16x32_bf16"
OPT = dict(x.split("=") for x in sys.argv[1:] if "=" in x)
def opt(k, d): return type(d)(OPT.get(k, d))
VERBOSE = "-v" in sys.argv
STAMPS = "--stamps" in sys.argv
STFL = opt("stfl", " sc1").replace("_", " ")
LDFL = opt("ldfl", " sc1").replace("_", " ")

NSLAB = 182
WF_OFF = 0x1800000
WF_BYTES = 8 * NSLAB * 5120
XF_OFF = 0x2000000
FL_OFF = 0x2400000

class E:
    def __init__(self): self.L = []
    def __call__(self, s):
        for x in s.split("\n"):
            x = x.strip()
            if x: self.L.append(x)
    def ext(self, l): self.L += l
    def text(self): return "\n".join(self.L) + "\n"

def v(a, n=1): return "v%d" % a if n == 1 else "v[%d:%d]" % (a, a + n - 1)
def a(a_, n=1): return "a%d" % a_ if n == 1 else "a[%d:%d]" % (a_, a_ + n - 1)
def s(a_, n=1): return "s%d" % a_ if n == 1 else "s[%d:%d]" % (a_, a_ + n - 1)
def f2u(x): return "0x%08x" % struct.unpack("<I", struct.pack("<f", x))[0]

def kd(name, vgpr=512, acc=256):
    return """.section .rodata,"a"
.p2align 6
.amdhsa_kernel %s
  .amdhsa_next_free_vgpr %d
  .amdhsa_next_free_sgpr 102
  .amdhsa_accum_offset %d
  .amdhsa_group_segment_fixed_size 0
  .amdhsa_kernarg_size 96
  .amdhsa_user_sgpr_count 2
  .amdhsa_user_sgpr_kernarg_segment_ptr 1
  .amdhsa_system_sgpr_workgroup_id_x 1
.end_amdhsa_kernel
""" % (name, vgpr, acc)

def stamp(e, i):
    if not STAMPS: return
    e("s_waitcnt lgkmcnt(0)\ns_memtime s[98:99]\ns_memrealtime s[100:101]\ns_waitcnt lgkmcnt(0)")
    e("v_writelane_b32 v0, s98, %d\nv_writelane_b32 v19, s100, %d" % (i, i))
def stamp_fin(e):
    if not STAMPS: return
    e("s_lshl_b32 s98, s2, 2\ns_add_u32 s98, s98, %s\ns_lshl_b32 s98, s98, 9\ns_add_u32 s98, s98, %d" % (s(S_WAVE), 0x4000000))
    e("s_add_u32 s96, %s, s98\ns_addc_u32 s97, %s, 0\ns_mov_b32 s98, 512\ns_mov_b32 s99, 0x20000" % (s(ptr(11)), s(ptr(11) + 1)))
    e("v_mov_b32 v18, v0\nv_lshlrev_b32 v20, 3, v1\nbuffer_store_dwordx2 v[18:19], v20, s[96:99], 0 offen\ns_waitcnt vmcnt(0)")

def srd(e, d, base, off_lo, nbytes):
    e("s_add_u32 %s, %s, %s" % (s(d), s(base), off_lo))
    e("s_addc_u32 %s, %s, 0" % (s(d + 1), s(base + 1)))
    e("s_mov_b32 %s, %s" % (s(d + 2), nbytes))
    e("s_mov_b32 %s, 0x20000" % s(d + 3))

def resolve_vm(lines):
    out = []; ops = []
    for x in lines:
        m = re.search(r"WAITVM\{([^}]*)\}", x)
        if m:
            need = set(m.group(1).split(","))
            idx = [i for i, t in enumerate(ops) if t in need]
            n = len(ops) - 1 - max(idx) if idx else 63
            assert n <= 63
            x = x.replace(m.group(0), "vmcnt(%d)" % min(n, 63))
        elif x.startswith(("buffer_", "global_")):
            t = x.split(";#")[1].strip() if ";#" in x else ""
            ops.append(t)
        out.append(x)
    return out

S_FL = 4
S_X, S_WQ, S_WG, S_WU, S_K, S_V, S_AF, S_T, S_WF = 8, 12, 16, 20, 24, 28, 32, 36, 40
S_PTR = 44
S_WAVE, S_HEAD, S_QT, S_FS = 68, 69, 70, 71
S_XOFF, S_WQOFF, S_WGOFF, S_M0W = 72, 73, 74, 75
S_KVOFF, S_M0K, S_TOG, S_RETRY = 76, 77, 78, 79
S_TMP = 80
S_TRS, S_TRM, S_TRD, S_TRU = 88, 89, 90, 91
S_EPOCH, S_TAG, S_MYFL = 92, 93, 94
S_HL = 3
def ptr(i): return S_PTR + 2 * i

L_K = 0
L_V = 65536
RW = 7
L_TR = 114688
L_MISC = 155648
LDS_BYTES = 163840

V_LANE = 1
V_L16 = 2
V_WD = 3
V_TRA = 6
V_AQ = 10
V_AG = 14
V_KA = 20
V_VA = 24
V_KD = 32
V_VD = 34
V_PL = 36
V_T = 40
V_ACCQ = 64
V_ACCG = 192
V_Q = 64
V_S = 128
V_P = 192
V_NEGM = 224
V_L = 240
A_ACCU = 0
XD = 7
A_X = 64
A_W = 176
A_TR = 208
A_ONE = 224
A_O = 0
A_KF = 128
A_VF = 160

def accreg(blk, qb):
    if blk < 8: return v(V_ACCQ + (blk * 4 + qb) * 4, 4)
    if blk < 12: return v(V_ACCG + ((blk - 8) * 4 + qb) * 4, 4)
    return a(A_ACCU + ((blk - 12) * 4 + qb) * 4, 4)

def w_read(dst, blk, j, rel):
    if blk < 8:
        ar = V_AQ + (blk >> 1); off = rel + j * 1024 + (blk & 1) * 8
    else:
        ar = V_AG + ((blk - 8) & 3); off = rel + 2048 + (1024 if blk >= 12 else 0) + j * 512
    assert 0 <= off < 65536
    return "ds_read_b64_tr_b16 %s, %s offset:%d" % (a(dst + 2 * j, 2), v(ar), off)

def w_dma(heavy, tag):
    l = ["buffer_load_dwordx4 %s, %s, %s offen lds ;#%s" % (v(V_WD), s(S_WQ, 4), s(S_WQOFF), tag),
         "buffer_load_dwordx4 %s, %s, %s offen offset:1024 lds ;#%s" % (v(V_WD + 1), s(S_WQ, 4), s(S_WQOFF), tag)]
    if heavy:
        l += ["buffer_load_dwordx4 %s, %s, %s offen offset:2048 lds ;#%s" % (v(V_WD + 2), s(S_WG, 4), s(S_WGOFF), tag),
              "buffer_load_dwordx4 %s, %s, %s offen offset:3072 lds ;#%s" % (v(V_WD + 2), s(S_WU, 4), s(S_WGOFF), tag)]
    return l

def x_load(sl, qb):
    return "buffer_load_dwordx4 %s, %s, %s, %s offen offset:%d%s ;#x%d" % (a(A_X + ((sl % XD) * 4 + qb) * 4, 4), v(V_L16), s(S_X, 4), s(S_XOFF), qb * 1024, LDFL, sl)

def kv_dma(which, i, tag=""):
    vo = (V_KD if which == "K" else V_VD) + i
    return "buffer_load_dwordx4 %s, %s, %s offen offset:%d lds ;#%s" % (v(vo), s(S_K if which == "K" else S_V, 4), s(S_KVOFF), 1024 * i, tag)

def set_flag(e, stage):
    e("s_add_u32 %s, %s, %d\ns_mov_b64 exec, 1\nv_mov_b32 %s, %s" % (s(S_TMP + 7), s(S_TAG), stage, v(V_PL), s(S_TMP + 7)))
    e("buffer_store_dword %s, off, %s, %s sc1" % (v(V_PL), s(S_FL, 4), s(S_MYFL)))
    e("s_mov_b64 exec, -1")

def poll_load(allq, qoff=None):
    if allq: return "buffer_load_dwordx4 %s, %s, %s, 0 offen sc1" % (v(V_PL, 4), v(V_L16), s(S_FL, 4))
    return "buffer_load_dword %s, %s, %s, %s offen sc1" % (v(V_PL), v(V_PL + 3), s(S_FL, 4), qoff)

def poll_spin(e, allq, qoff, stage, tag):
    e("s_mov_b32 %s, 0\ns_add_u32 %s, %s, %d" % (s(S_TMP + 7), s(S_TMP + 6), s(S_TAG), stage))
    e("SPIN_%s:" % tag)
    n = 4 if allq else 1
    for i in range(n): e("v_subrev_u32 %s, %s, %s" % (v(V_PL + i), s(S_TMP + 6), v(V_PL + i)))
    if allq: e("v_max3_u32 %s, %s, %s, %s\nv_max_u32 %s, %s, %s" % (v(V_PL), v(V_PL), v(V_PL + 1), v(V_PL + 2), v(V_PL), v(V_PL), v(V_PL + 3)))
    e("v_cmp_lt_u32 vcc, %d, %s" % (3 - stage, v(V_PL)))
    e("s_add_u32 %s, %s, 1" % (s(S_TMP + 7), s(S_TMP + 7)))
    e("s_cmp_eq_u64 vcc, 0\ns_cbranch_scc1 SPUN_%s" % tag)
    e("s_cmp_ge_u32 %s, 0x40000\ns_cbranch_scc1 SPUN_%s" % (s(S_TMP + 7), tag))
    e("s_sleep %d" % opt("slp", 2))
    e(poll_load(allq, qoff))
    e("s_waitcnt vmcnt(0)\ns_branch SPIN_%s" % tag)
    e("SPUN_%s:" % tag)

def zero_acc(e, heavy=True):
    for r in range(V_ACCQ, 256): e("v_mov_b32 %s, 0" % v(r))
    for r in range(A_ACCU, A_ACCU + 64): e("v_accvgpr_write_b32 %s, 0" % a(r))

def gen_ln(e):
    T = V_T; L = V_LANE
    R = V_ACCQ
    U = R + 40
    e("v_and_b32 %s, 7, %s\nv_lshrrev_b32 %s, 3, %s\nv_mul_u32_u24 %s, 1280, %s\nv_lshl_add_u32 %s, %s, 4, %s" % (v(T), v(L), v(T + 1), v(L), v(T + 2), v(T), v(T + 2), v(T + 1), v(T + 2)))
    e("s_lshl_b32 %s, %s, 5\ns_add_u32 %s, %s, %s\ns_mul_i32 %s, %s, %d" % (s(S_TMP), s(S_QT), s(S_TMP), s(S_TMP), s(S_HEAD), s(S_TMP), s(S_TMP), 8 * 1280))
    srd(e, S_T, ptr(0), s(S_TMP), 8 * 1280)
    for i in range(10): e("buffer_load_dwordx4 %s, %s, %s, 0 offen offset:%d" % (v(R + 4 * i, 4), v(T + 2), s(S_T, 4), 128 * i))
    yield
    e("v_lshrrev_b32 %s, 5, %s\nv_lshlrev_b32 %s, 12, %s\nv_and_b32 %s, 3, %s\nv_lshl_add_u32 %s, %s, 8, %s\nv_lshl_add_u32 %s, %s, 4, %s" % (
        v(T + 3), v(L), v(T + 3), v(T + 3), v(T + 1), v(T + 1), v(T + 3), v(T + 1), v(T + 3), v(T + 3), v(T), v(T + 3)))
    e("s_lshr_b32 %s, %s, 3\ns_lshl2_add_u32 %s, %s, %s\ns_mul_i32 %s, %s, %d" % (s(S_TMP), s(S_HEAD), s(S_TMP), s(S_QT), s(S_TMP), s(S_TMP), s(S_TMP), 20 * 4096))
    e("s_bfe_u32 %s, %s, 0x20001\ns_lshl_b32 %s, %s, 10\ns_add_u32 %s, %s, %s" % (s(S_TMP + 1), s(S_HEAD), s(S_TMP + 1), s(S_TMP + 1), s(S_TMP), s(S_TMP), s(S_TMP + 1)))
    e("s_and_b32 %s, %s, 1\ns_lshl_b32 %s, %s, 7\ns_add_u32 %s, %s, %s\ns_add_u32 %s, %s, %d" % (s(S_TMP + 1), s(S_HEAD), s(S_TMP + 1), s(S_TMP + 1), s(S_TMP), s(S_TMP), s(S_TMP + 1), s(S_TMP), s(S_TMP), XF_OFF))
    A0 = T + 4
    e("v_mov_b32 %s, 0\nv_mov_b32 %s, 0\nv_mov_b32 %s, 0\nv_mov_b32 %s, 0" % (v(A0), v(A0 + 1), v(A0 + 2), v(A0 + 3)))
    for i in range(10):
        e("s_waitcnt vmcnt(%d)" % (9 - i))
        for k in range(4):
            d = 4 * i + k
            e("v_lshlrev_b32 %s, 16, %s\nv_and_b32 %s, 0xffff0000, %s" % (v(U + 2 * d), v(R + d), v(U + 2 * d + 1), v(R + d)))
        for k in range(4):
            d = 4 * i + k
            e("v_pk_add_f32 %s, %s, %s" % (v(A0 + 2 * (k & 1), 2), v(A0 + 2 * (k & 1), 2), v(U + 2 * d, 2)))
    srd(e, S_T, ptr(11), s(S_TMP), 20 * 4096)
    def reduce8():
        e("v_pk_add_f32 %s, %s, %s" % (v(A0, 2), v(A0, 2), v(A0 + 2, 2)))
        e("v_add_f32 %s, %s, %s\ns_nop 1" % (v(A0), v(A0), v(A0 + 1)))
        e("v_add_f32_dpp %s, %s, %s row_ror:8 row_mask:0xf bank_mask:0xf" % (v(A0), v(A0), v(A0)))
        for sw in ("v_permlane32_swap_b32", "v_permlane16_swap_b32"):
            e("v_mov_b32 %s, %s\ns_nop 1\n%s %s, %s\nv_add_f32 %s, %s, %s" % (v(A0 + 1), v(A0), sw, v(A0), v(A0 + 1), v(A0), v(A0), v(A0 + 1)))
    reduce8()
    M = T + 8
    e("v_mul_f32 %s, %s, %s\nv_mul_f32 %s, %s, %s" % (v(M), f2u(-1.0 / 640), v(A0), v(M + 1), f2u(-1.0 / 640), v(A0)))
    e("v_mov_b32 %s, 0\nv_mov_b32 %s, 0\nv_mov_b32 %s, 0\nv_mov_b32 %s, 0" % (v(A0), v(A0 + 1), v(A0 + 2), v(A0 + 3)))
    for d0 in range(0, 40, 4):
        for d in range(d0, d0 + 4): e("v_pk_add_f32 %s, %s, %s" % (v(U + 2 * d, 2), v(U + 2 * d, 2), v(M, 2)))
        for d in range(d0, d0 + 4): e("v_pk_fma_f32 %s, %s, %s, %s" % (v(A0 + 2 * (d & 1), 2), v(U + 2 * d, 2), v(U + 2 * d, 2), v(A0 + 2 * (d & 1), 2)))
    reduce8()
    e("v_mov_b32 %s, %s\nv_fmac_f32 %s, %s, %s\nv_rsq_f32 %s, %s\ns_nop 0\nv_mov_b32 %s, %s" % (v(M), f2u(1e-5), v(M), f2u(1.0 / 640), v(A0), v(M), v(M), v(M + 1), v(M)))
    e("s_mov_b32 %s, 0" % s(S_TMP))
    for i in range(10):
        for k in range(4):
            d = 4 * i + k
            e("v_pk_mul_f32 %s, %s, %s" % (v(U + 2 * d, 2), v(U + 2 * d, 2), v(M, 2)))
        for k in range(4):
            d = 4 * i + k
            e("v_cvt_pk_bf16_f32 %s, %s, %s" % (v(R + d), v(U + 2 * d), v(U + 2 * d + 1)))
        e("buffer_store_dwordx4 %s, %s, %s, %s offen%s" % (v(R + 4 * i, 4), v(T + 3), s(S_T, 4), s(S_TMP), STFL))
        if i < 9: e("s_add_u32 %s, %s, 8192" % (s(S_TMP), s(S_TMP)))
    stamp(e, 17)
    yield
    e("s_waitcnt vmcnt(0) lgkmcnt(0)")
    stamp(e, 18)
    set_flag(e, 1)
    e("v_and_b32 %s, 31, %s\nv_lshlrev_b32 %s, 2, %s\ns_lshl_b32 %s, %s, 7" % (v(V_PL + 3), v(L), v(V_PL + 3), v(V_PL + 3), s(S_TMP + 5), s(S_QT)))
    e(poll_load(False, s(S_TMP + 5)))
    e("s_waitcnt vmcnt(0)")
    poll_spin(e, False, s(S_TMP + 5), 1, "XN")
    yield

def gen_w_initial(e, heavy_any=True):
    def slabs():
        for sl in range(RW):
            e("s_add_u32 m0, %s, %d\ns_nop 0" % (s(S_TMP + 2), sl * 16384))
            e.ext(w_dma(True, "init"))
            e("s_add_u32 %s, %s, %d\ns_add_u32 %s, %s, %d" % (s(S_WQOFF), s(S_WQOFF), 32 * 8192, s(S_WGOFF), s(S_WGOFF), 32 * 3456))
    e("s_mov_b32 %s, %s\ns_mov_b32 %s, %s" % (s(S_TMP + 2), s(S_M0W), s(S_TMP + 3), s(S_WAVE)))
    e("WINIT:")
    e("s_lshl_b32 %s, %s, 16\ns_mul_i32 %s, %s, %d" % (s(S_WQOFF), s(S_TMP + 3), s(S_WGOFF), s(S_TMP + 3), 8 * 3456))
    slabs()
    e("s_cmp_eq_u32 %s, 2\ns_mov_b32 %s, 0\ns_mov_b32 %s, 0\ns_cbranch_scc1 WINIT" % (s(S_TMP + 3), s(S_TMP + 3), s(S_TMP + 2)))

def gen_proj(e0, heavy, tag):
    e = E()
    NB = 16 if heavy else 8
    NG = NB * 4
    T = V_T; L = V_LANE
    e("s_mov_b32 %s, 0" % s(S_XOFF))
    for sl in range(XD - 1):
        for qb in range(4): e(x_load(sl, qb))
        e("s_add_u32 %s, %s, 4096" % (s(S_XOFF), s(S_XOFF)))
    e("s_lshl_b32 %s, %s, 16\ns_add_u32 %s, %s, %d" % (s(S_WQOFF), s(S_WAVE), s(S_WQOFF), s(S_WQOFF), RW * 32 * 8192))
    e("s_mul_i32 %s, %s, %d\ns_add_u32 %s, %s, %d" % (s(S_WGOFF), s(S_WAVE), 8 * 3456, s(S_WGOFF), s(S_WGOFF), RW * 32 * 3456))
    e("s_waitcnt WAITVM{x0}\ns_barrier")
    stamp(e, 3)
    mf = []
    for sl in range(20):
        for f in range(NB):
            wr = a(A_W + 4 * (f % 8), 4)
            for qb in range(4):
                mf.append("%s %s, %s, %s, %s" % (MF, accreg(f, qb), wr, a(A_X + ((sl % XD) * 4 + qb) * 4, 4), accreg(f, qb)))
    G = Gaps(mf)
    NPRE = 5 if heavy else 3
    base = lambda sl: 65536 if (sl % RW) >= 4 else 0
    rel = lambda sl: (sl % RW) * 16384 - base(sl)
    aregs = list(range(V_AQ, V_AQ + 4)) + (list(range(V_AG, V_AG + 4)) if heavy else [])
    pre_reads = [w_read(A_W + 4 * f, f, j, rel(0)) for f in range(NPRE) for j in range(2)]
    late = {13: [("V", 4)], 14: [("K", 0), ("K", 1)], 15: [("K", 2), ("K", 3)], 16: [("K", 4), ("K", 5)], 17: [("K", 6), ("K", 7)],
            18: [("V", 0), ("V", 1)], 19: [("V", 2), ("V", 3)]}
    bars = {}
    for sl in range(20):
        st = sl * NG; end = st + NG - 1
        g = st
        if sl + XD - 1 < 20:
            for qb in range(4): g = G.place("m", x_load(sl + XD - 1, qb), g + 1) + 1
            G.place("s", "s_add_u32 %s, %s, 4096" % (s(S_XOFF), s(S_XOFF)), g)
        cur = st
        for f in range(NPRE, NB):
            lo = st if f < 8 else st + 4 * (f - 8) + 3
            for j in range(2): cur = G.place("d", w_read(A_W + 4 * (f % 8), f, j, rel(sl)), max(lo, cur), st + 4 * f - 5)
        lastread = cur
        if sl < 19 and base(sl + 1) != base(sl):
            d = base(sl + 1) - base(sl)
            gg = lastread
            for r in aregs:
                gg = G.place("v", ("v_add_u32 %s, %d, %s" % (v(r), d, v(r))) if d > 0 else ("v_subrev_u32 %s, %d, %s" % (v(r), -d, v(r))), gg + (0 if gg > lastread else 1))
            lastread = max(lastread, gg - 6)
        b = G.place("b", "s_barrier", lastread + 7)
        need = ["x%d" % (sl + 1), "w%d" % (sl + 1)] + (["trs"] if sl == 9 else [])
        G.put(b, "s", "s_waitcnt WAITVM{%s} lgkmcnt(0)" % ",".join(need))
        bars[sl] = b
        g = b
        if sl + RW < 20:
            g = G.place("s", "s_add_u32 m0, %s, %d" % (s(S_M0W), (sl % RW) * 16384), b + 1)
            for d in w_dma(heavy, "w%d" % (sl + RW)): g = G.place("m", d, g + 2)
            g = G.place("s", "s_add_u32 %s, %s, %d" % (s(S_WQOFF), s(S_WQOFF), 32 * 8192), g + 1)
            if heavy: g = G.place("s", "s_add_u32 %s, %s, %d" % (s(S_WGOFF), s(S_WGOFF), 32 * 3456), g + 1)
        else:
            for which, i in late[sl]:
                g = G.place("s", "s_add_u32 m0, %s, %d" % (s(S_M0K), (L_K if which == "K" else L_V) + i * 8192), g + 1)
                g = G.place("s", "s_mov_b32 %s, %d" % (s(S_KVOFF), (i + (3 if which == "V" else 0)) * 8192), g + 1)
                for k in range(2): g = G.place("m", kv_dma(which, k, "%s%d" % (which, i)), g + 1 + k)
        assert g <= end, (sl, g - st)
        if sl < 19:
            cur = b + 1
            for f in range(NPRE):
                lo = st + 4 * (NB - 8 + f) + 3
                for j in range(2): cur = G.place("d", w_read(A_W + 4 * f, f, j, rel(sl + 1)), max(lo, cur), end + 4 * f - 4 + opt("slack", 0))
    for i in range(10):
        sl = i // 2; st = sl * NG
        g = st + (9 if i % 2 == 0 else 0) if i % 2 == 0 else gprev
        t0, t1 = v(V_TRA + 2), v(V_TRA + 3)
        seq = [("v", "v_add_u32 %s, %d, %s" % (t0, 64 * i, v(L))), ("v", "v_mul_u32_u24 %s, 820, %s" % (t1, t0)), ("v", "v_lshrrev_b32 %s, 16, %s" % (t1, t1)),
               ("v", "v_lshlrev_b32 %s, 1, %s" % (t1, t1)), ("v", "v_xor_b32 %s, %s, %s" % (t0, t0, t1)), ("v", "v_lshlrev_b32 %s, 4, %s" % (t0, t0)),
               ("s", "s_add_u32 m0, %s, %d" % (s(S_TRM), i * 1024)),
               ("m", "buffer_load_dwordx4 %s, %s, %s offen lds ;#trs" % (t0, s(S_T, 4), s(S_TRS)))]
        if heavy:
            for k, x in seq: g = G.place(k, x, g + (1 if k != "v" else 0), bars[sl] - 1)
            gprev = g + 1
        else:
            for k, x in seq: G.va[bars[sl] - 1].append(x if k != "m" else "s_nop 0\n" + x)
            gprev = 0
    for i in range(10):
        sl = 10 + i // 2; st = sl * NG
        t0 = v(V_TRA + 2 + (i % 2))
        seq = [("v", "v_xor_b32 %s, %s, %s" % (t0, s(S_TRU), v(V_TRA + 1))), ("v", "v_lshl_add_u32 %s, %s, 5, %s" % (t0, t0, v(V_TRA))),
               ("s", "s_add_u32 %s, %s, 1" % (s(S_TRU), s(S_TRU)))] + \
              [("d", "ds_read_b64_tr_b16 %s, %s offset:%d" % (a(A_TR + 4 * i + 2 * j, 2), t0, j * 16 * 1280)) for j in range(2)]
        if heavy:
            g = (bars[sl - 1] + 2) if i % 2 == 0 else gprev
            for k, x in seq: g = G.place(k, x, g + (1 if k != "v" else 0), bars[sl] - 1)
            gprev = g
        else:
            for k, x in seq: G.va[bars[sl] - 3].append(x)
        adds = {4: 4096, 5: NSLAB * 5120 - 4096, 9: 4096}
        g2 = max(bars[sl] + 1, gst) if i else bars[sl] + 1
        if i in adds: g2 = G.place("s", "s_add_u32 %s, %s, %d" % (s(S_TRD), s(S_TRD), adds[i]), g2 + 1)
        g2 = G.place("m", "buffer_store_dwordx4 %s, %s, %s, %s offen offset:%d%s ;#trd" % (a(A_TR + 4 * i, 4), v(V_L16), s(S_WF, 4), s(S_TRD), ((i % 5) % 4) * 1024, STFL), g2 + 1)
        gst = g2
    auto_lgkm(G)
    if VERBOSE: print("proj", tag, G.pattern())
    e.ext(pre_reads)
    e("s_waitcnt lgkmcnt(0)")
    for x in G.lines(): e(x)
    stamp(e, 4)
    U = T
    CQ = T + 8
    c = math.log2(math.e) / math.sqrt(128.0)
    e("v_mov_b32 %s, %s\nv_mov_b32 %s, %s" % (v(CQ), f2u(c), v(CQ + 1), f2u(c)))
    e("s_mov_b32 %s, %d" % (s(S_KVOFF), 8 * 8192))
    if not heavy: e("s_nop 4")
    def qconv(sl):
        for qb in range(4):
            for b in range(2):
                g0 = V_ACCQ + ((2 * sl + b) * 4 + qb) * 4
                for h in range(2): e("v_pk_mul_f32 %s, %s, %s" % (v(g0 + 2 * h, 2), v(g0 + 2 * h, 2), v(CQ, 2)))
            d0 = V_Q + (sl * 4 + qb) * 4
            for b in range(2):
                g0 = V_ACCQ + ((2 * sl + b) * 4 + qb) * 4
                e("v_cvt_pk_bf16_f32 %s, %s, %s" % (v(d0 + 2 * b), v(g0), v(g0 + 1)))
                e("v_cvt_pk_bf16_f32 %s, %s, %s" % (v(d0 + 2 * b + 1), v(g0 + 2), v(g0 + 3)))
    if heavy:
        for fb in range(4):
            for qb in range(4):
                g0 = V_ACCG + (fb * 4 + qb) * 4
                u0 = U + 4 * (qb & 1)
                for r in range(4): e("v_max_f32 %s, 0, %s" % (v(g0 + r), v(g0 + r)))
                for r in range(4): e("v_accvgpr_read_b32 %s, %s" % (v(u0 + r), a(A_ACCU + (fb * 4 + qb) * 4 + r)))
                for h in range(2): e("v_pk_mul_f32 %s, %s, %s" % (v(g0 + 2 * h, 2), v(g0 + 2 * h, 2), v(u0 + 2 * h, 2)))
                d0 = V_ACCG + ((fb & ~1) * 4 + qb) * 4 + 2 * (fb & 1)
                e("v_cvt_pk_bf16_f32 %s, %s, %s" % (v(d0), v(g0), v(g0 + 1)))
                e("v_cvt_pk_bf16_f32 %s, %s, %s" % (v(d0 + 1), v(g0 + 2), v(g0 + 3)))
                if fb & 1:
                    if qb == 0: e("s_lshl_b32 %s, %s, 13\ns_add_u32 %s, %s, %d" % (s(S_TMP), s(S_FS), s(S_TMP), s(S_TMP), (128 + (fb >> 1)) * 4096))
                    e("buffer_store_dwordx4 %s, %s, %s, %s offen offset:%d%s" % (v(d0 - 2, 4), v(V_L16), s(S_AF, 4), s(S_TMP), 1024 * qb, STFL))
    for sl in range(4): qconv(sl)
    e("s_waitcnt WAITVM{K0,K1,K2,K3}")
    e0.ext(resolve_vm(e.L))

def kv_preload(e):
    e("s_mov_b32 %s, 0" % s(S_KVOFF))
    for i in range(8):
        e("s_add_u32 m0, %s, %d\ns_nop 0" % (s(S_M0K), L_K + i * 8192))
        e(kv_dma("K", 0)); e(kv_dma("K", 1))
        if i >= 3:
            e("s_add_u32 m0, %s, %d\ns_nop 0" % (s(S_M0K), L_V + (i - 3) * 8192))
            e(kv_dma("V", 0)); e(kv_dma("V", 1))
        e("s_add_u32 %s, %s, 8192" % (s(S_KVOFF), s(S_KVOFF)))
    e("s_waitcnt vmcnt(0)")

def Sreg(buf, qb, kb): return V_S + buf * 32 + qb * 8 + kb * 4
def Preg(buf, qb): return V_P + buf * 16 + qb * 4

def qk_mfmas(buf, czero=False):
    out = []
    for kb in range(2):
        for qb in range(4):
            for sl in range(4):
                d = v(Sreg(buf, qb, kb), 4)
                c = d if sl else ("0" if czero else v(V_NEGM + 4 * qb, 4))
                out.append("%s %s, %s, %s, %s" % (MF, d, a(A_KF + (kb * 4 + sl) * 4, 4), v(V_Q + (sl * 4 + qb) * 4, 4), c))
    return out

def pv_mfmas(buf):
    out = []
    for qb in range(4):
        out.append("%s %s, %s, %s, %s" % (MF, v(V_L + 4 * qb, 4), a(A_ONE, 4), v(Preg(buf, qb), 4), v(V_L + 4 * qb, 4)))
    for db in range(8):
        for qb in range(4):
            o = a(A_O + (db * 4 + qb) * 4, 4)
            out.append("%s %s, %s, %s, %s" % (MF, o, a(A_VF + db * 4, 4), v(Preg(buf, qb), 4), o))
    return out

def k_read(kb, sl, off): return "ds_read_b128 %s, %s offset:%d" % (a(A_KF + (kb * 4 + sl) * 4, 4), v(V_KA + sl), off + kb * 4096)
def v_read(db, j, off): return "ds_read_b64_tr_b16 %s, %s offset:%d" % (a(A_VF + db * 4 + 2 * j, 2), v(V_VA + db), off + j * 4096)

def softmax_ops(buf):
    ex = []; cv = []
    for qb in range(4):
        for kb in range(2):
            for r in range(4):
                x = v(Sreg(buf, qb, kb) + r)
                ex.append("v_exp_f32 %s, %s" % (x, x))
            for h in range(2):
                b = Sreg(buf, qb, kb) + 2 * h
                cv.append("v_cvt_pk_bf16_f32 %s, %s, %s" % (v(Preg(buf, qb) + kb * 2 + h), v(b), v(b + 1)))
    return ex, cv

def gen_attention(e):
    T = V_T
    e("ATT_START:")
    stamp(e, 5)
    e("s_barrier")
    for kb in range(2):
        for sl in range(4): e(k_read(kb, sl, 0))
    z = ["v_mov_b32 %s, 0x3f803f80" % v(T)] + ["v_accvgpr_write_b32 %s, %s" % (a(A_ONE + r), v(T)) for r in range(4)] + \
        ["v_accvgpr_write_b32 %s, 0" % a(A_O + r) for r in range(128)] + ["v_mov_b32 %s, 0" % v(V_L + r) for r in range(16)]
    e.ext(z[:24]); z = z[24:]
    e("s_waitcnt lgkmcnt(0)")
    G = Gaps(qk_mfmas(0, czero=True))
    for i in range(4): G.place("d", k_read(0, i, 8192), 16 + i)
    g = 0
    while z:
        try: g = G.place("v", z[0], g); z.pop(0)
        except RuntimeError: break
    e.ext(G.lines())
    for i in range(4): e(k_read(1, i, 8192))
    e.ext(z[:8]); z = z[8:]
    for qb in range(4):
        b = Sreg(0, qb, 0)
        e("v_max3_f32 %s, %s, %s, %s" % (v(T + qb), v(b), v(b + 1), v(b + 2)))
        e("v_max3_f32 %s, %s, %s, %s" % (v(T + qb), v(T + qb), v(b + 3), v(b + 4)))
        e("v_max3_f32 %s, %s, %s, %s" % (v(T + qb), v(T + qb), v(b + 5), v(b + 6)))
        e("v_max3_f32 %s, %s, %s, %s" % (v(T + qb), v(T + qb), v(b + 7), v(V_NEGM + 4 * qb)))
    for sw in ("v_permlane32_swap_b32", "v_permlane16_swap_b32"):
        for qb in range(4): e("v_mov_b32 %s, %s" % (v(T + 4 + qb), v(T + qb)))
        e.ext(z[:2]); z = z[2:]
        for qb in range(4): e("%s %s, %s" % (sw, v(T + qb), v(T + 4 + qb)))
        for qb in range(4): e("v_max_f32 %s, %s, %s" % (v(T + qb), v(T + qb), v(T + 4 + qb)))
    for qb in range(4):
        for r in range(4): e("v_sub_f32 %s, 0, %s" % (v(V_NEGM + 4 * qb + r), v(T + qb)))
    for qb in range(4):
        for r in range(8): e("v_sub_f32 %s, %s, %s" % (v(Sreg(0, qb, 0) + r), v(Sreg(0, qb, 0) + r), v(T + qb)))
    e.ext(z)
    e("s_waitcnt lgkmcnt(0)")

    def build(steps, loop, pend):
        mf = []; starts = []
        for sp in steps:
            starts.append(len(mf))
            if sp["qk"]: mf += qk_mfmas(1 - sp["buf"])
            if sp["pv"]: mf += pv_mfmas(1 - sp["buf"])
        G = Gaps(mf)
        for sp, st in zip(steps, starts):
            nq = 32 if sp["qk"] else 0
            npv = 36 if sp["pv"] else 0
            end = st + nq + npv - 1
            full = sp["qk"] and sp["pv"]
            cur = st; g = st; c2 = st
            if sp.get("bar") is not None:
                b = G.place("b", "s_barrier", st)
                G.put(b, "s", "s_waitcnt vmcnt(%d) lgkmcnt(0)" % sp["bar"])
                cur = b + 1
            if full:
                for i in range(16):
                    lo = st + 4 * (i // 2) + (i % 2)
                    cur = G.place("d", v_read(i // 2, i % 2, sp["voff"]), max(cur, lo)) + 1
            if sp.get("vnext") is not None:
                c2 = st + nq + 4 + 3
                for i in range(16):
                    lo = min(st + nq + 4 + 4 * (i // 2) + 3, end)
                    c2 = G.place("d", v_read(i // 2, i % 2, sp["vnext"]), min(max(c2, lo), end), end, force=True) + 1
            if sp.get("koff") is not None:
                if full:
                    c2 = st + 32
                    for i in range(8):
                        c2 = G.place("d", k_read(i // 4, i % 4, sp["koff"]), max(c2, st + 32 + 3 * i)) + 1
                else:
                    c2 = st + 16
                    for i in range(4): c2 = G.place("d", k_read(0, i, sp["koff"]), c2) + 1
                    for i in range(4): G.put(end, "d", k_read(1, i, sp["koff"]))
            if sp.get("dma"):
                g = st + (33 if full else 2)
                for wi, which in enumerate(sp["dma"]):
                    g = G.place("s", "s_add_u32 m0, %s, %s" % (s(S_M0K), sp["m0" + which]), g)
                    for i in range(2): g = G.place("m", kv_dma(which, i), g + 2)
                    g += 1
                g = G.place("s", "s_add_u32 %s, %s, 8192" % (s(S_KVOFF), s(S_KVOFF)), g)
            marks = {"dma": g, "kread": c2 if sp.get("koff") is not None else st, "vread": cur}
            for (after, chain) in sp.get("misc", []):
                gg = marks[after] if isinstance(after, str) else st + after
                for (kind, text) in chain:
                    gg = G.place(kind, text, gg + (1 if kind == "s" else 0), end)
                marks["last"] = max(marks.get("last", 0), gg)
            if sp["sm"]:
                ex, cv = softmax_ops(sp["buf"])
                n = end - st + 1
                if full:
                    eg = []; g = st
                    for i, x in enumerate(ex):
                        tgt = st + (i * (n - 3)) // 32
                        g = G.place("e", x, max(g, tgt), end); eg.append(g)
                    g = st
                    for i, x in enumerate(cv): g = G.place("v", x, max(g, eg[2 * i + 1] + 1), end)
                else:
                    for i, x in enumerate(ex): G.put(st + (i * (n - 1)) // 32, "e", x)
                    for i, x in enumerate(cv): G.put(min(st + ((2 * i + 1) * (n - 1)) // 32 + 1, end), "v", x)
        pre, out = auto_lgkm(G, pend, loop=loop)
        return G, pre, out

    G, pre, pend = build([dict(buf=0, qk=True, pv=False, sm=True, koff=16384)], False, [])
    e.ext(G.lines())
    for sl in range(4): e("v_add_u32 %s, 16384, %s" % (v(V_KA + sl), v(V_KA + sl)))
    e("s_mov_b32 %s, 16384\ns_mov_b32 %s, 49152" % (s(S_TOG), s(S_TMP + 2)))
    e("s_mov_b32 %s, %d\ns_mov_b32 %s, %d" % (s(S_TMP + 3), 1 * 8192, s(S_TMP + 4), 6 * 8192 + L_V))
    e("s_waitcnt vmcnt(0) lgkmcnt(0)\ns_barrier")
    for which, m0 in (("K", L_K), ("V", L_V + 5 * 8192)):
        e("s_add_u32 m0, %s, %d\ns_nop 0" % (s(S_M0K), m0))
        e(kv_dma(which, 0)); e(kv_dma(which, 1))
    e("s_add_u32 %s, %s, 8192" % (s(S_KVOFF), s(S_KVOFF)))
    e("s_cmp_lg_u32 %s, 0\ns_cbranch_scc1 NOSIG2" % s(S_WAVE))
    set_flag(e, 2)
    e("NOSIG2:")
    def adv(r, base):
        return [("s", "s_add_u32 %s, %s, 8192" % (s(r), s(r))), ("s", "s_and_b32 %s, %s, 0xffff" % (s(r), s(r)))] + \
               ([("s", "s_or_b32 %s, %s, %d" % (s(r), s(r), base))] if base else [])
    miscA = [("kread", [("v", "v_xor_b32 %s, %s, %s" % (v(V_KA + i), s(S_TMP + 2), v(V_KA + i))) for i in range(4)]),
             ("dma", adv(S_TMP + 3, 0) + adv(S_TMP + 4, L_V))]
    miscB = [(34, [("v", "v_xor_b32 %s, %s, %s" % (v(V_VA + i), s(S_TOG), v(V_VA + i))) for i in range(8)] +
                  [("s", "s_xor_b32 %s, %s, 32768" % (s(S_TOG), s(S_TOG))), ("s", "s_xor_b32 %s, %s, 32768" % (s(S_TMP + 2), s(S_TMP + 2)))]),
             ("dma", adv(S_TMP + 3, 0) + adv(S_TMP + 4, L_V)),
             ("last", [("s", "s_cmp_lt_u32 %s, %d" % (s(S_KVOFF), (63 + 8) * 8192))])]
    G, pre, pend = build([dict(buf=1, qk=True, pv=True, sm=True, koff=8192, voff=0, dma="KV", m0K=s(S_TMP + 3), m0V=s(S_TMP + 4), misc=miscA),
                          dict(buf=0, qk=True, pv=True, sm=True, koff=0, voff=8192, bar=16, dma="KV", m0K=s(S_TMP + 3), m0V=s(S_TMP + 4), misc=miscB)], True, [])
    if VERBOSE: print("loop", G.pattern())
    stamp(e, 6)
    e(".p2align 6\nATT_LOOP:")
    e.ext(G.lines())
    e("s_cbranch_scc1 ATT_LOOP")
    stamp(e, 7)
    for i in range(16): e(v_read(i // 2, i % 2, 0))
    e("s_waitcnt vmcnt(0) lgkmcnt(0)\ns_barrier")
    e("s_cmp_lg_u32 %s, 0\ns_cbranch_scc1 NOPOLL2" % s(S_WAVE))
    e(poll_load(True))
    e("NOPOLL2:")
    G, pre, pend = build([dict(buf=1, qk=False, pv=True, sm=True, vnext=8192)], False, [])
    e.ext(G.lines())
    e("s_waitcnt lgkmcnt(0)\ns_nop 1")
    e.ext(pv_mfmas(1))

NST, INFL = 4, 3
K_SA, K_SW, K_SX, K_SO = S_WQ, S_WG, S_WU, S_T
K_RND, K_OA, K_OW, K_OW2, K_CNT, K_ROT, K_FLG = S_XOFF, S_WQOFF, S_WGOFF, S_M0W, S_KVOFF, S_TOG, S_TRS
KV_A = 3; KV_XO = 7; KV_X = 8
K_ACC = [64, 144]
def kstage(st, k):
    r = 128 + 4 * (st * 9 + k)
    return a(r, 4) if r < 256 else v(224 + (r - 256), 4)
def k_addr_down(r):
    t = S_TMP
    return ["s_lshl2_add_u32 %s, %s, %s" % (s(t), s(K_RND), s(S_WAVE)), "s_add_u32 %s, %s, %d" % (s(t), s(t), 128 + 28 * (r // 7)),
            "s_add_u32 %s, %s, 1" % (s(K_RND), s(K_RND)), "s_cmp_eq_u32 %s, 7" % s(K_RND), "s_cselect_b32 %s, 0, %s" % (s(K_RND), s(K_RND)),
            "s_lshl_b32 %s, %s, 12" % (s(K_OA), s(t)), "s_mul_i32 %s, %s, 5120" % (s(K_OW), s(t)), "s_add_u32 %s, %s, 4096" % (s(K_OW2), s(K_OW))]
def k_addr_o():
    t = S_TMP
    return ["s_add_u32 %s, %s, %s" % (s(t), s(K_CNT), s(K_ROT)), "s_and_b32 %s, %s, 7" % (s(t), s(t)),
            "s_andn2_b32 %s, %s, 7" % (s(t + 1), s(K_CNT)), "s_or_b32 %s, %s, %s" % (s(t), s(t), s(t + 1)),
            "s_lshl2_add_u32 %s, %s, %s" % (s(t), s(t), s(S_WAVE)), "s_add_u32 %s, %s, 1" % (s(K_CNT), s(K_CNT)),
            "s_lshl_b32 %s, %s, 12" % (s(K_OA), s(t)), "s_mul_i32 %s, %s, 5120" % (s(K_OW), s(t)), "s_add_u32 %s, %s, 4096" % (s(K_OW2), s(K_OW))]
def k_loads(st, tag=""):
    l = []
    for k in range(5):
        l.append("buffer_load_dwordx4 %s, %s, %s, %s offen offset:%d%s ;#%s" % (kstage(st, 4 + k), v(V_L16), s(K_SW, 4), s(K_OW if k < 4 else K_OW2), (k % 4) * 1024, LDFL, tag))
    for p in range(4):
        l.append("buffer_load_dwordx4 %s, %s, %s, %s offen%s ;#%s" % (kstage(st, p), v(KV_A + p), s(K_SA, 4), s(K_OA), LDFL, tag))
    return l

def gen_tail_setup(e):
    L = V_LANE; t = S_TMP
    RT, CT = t + 4, t + 5
    e("s_bfe_u32 %s, s2, 0x20001\ns_lshl_b32 %s, %s, 3\ns_lshr_b32 %s, s2, 5\ns_add_u32 %s, %s, %s" % (s(RT), s(RT), s(RT), s(t), s(RT), s(RT), s(t)))
    e("s_and_b32 %s, s2, 1\ns_lshl_b32 %s, %s, 2\ns_bfe_u32 %s, s2, 0x20003\ns_add_u32 %s, %s, %s" % (s(CT), s(CT), s(CT), s(t + 1), s(CT), s(CT), s(t + 1)))
    e("s_lshl1_add_u32 %s, %s, %s" % (s(K_ROT), s(t + 1), s(t)))
    e("s_sub_u32 %s, %s, 7\ns_cselect_b32 %s, %s, %s" % (s(K_RND), s(K_ROT), s(K_RND), s(K_ROT), s(K_RND)))
    e("s_lshr_b32 %s, %s, 2\ns_lshl_b32 %s, %s, 7" % (s(K_FLG), s(RT), s(K_FLG), s(K_FLG)))
    e("s_lshl_b32 %s, %s, 10\nv_add_u32 %s, %s, %s" % (s(t), s(S_WAVE), v(KV_A), s(t), v(V_L16)))
    for p in range(1, 4): e("v_xor_b32 %s, %d, %s" % (v(KV_A + p), p * 1024, v(KV_A)))
    e("v_and_b32 %s, 15, %s\nv_mul_u32_u24 %s, 1280, %s\nv_lshrrev_b32 %s, 4, %s\nv_lshl_add_u32 %s, %s, 3, %s" % (v(KV_XO), v(L), v(KV_XO), v(KV_XO), v(KV_X), v(L), v(KV_XO), v(KV_X), v(KV_XO)))
    e("s_mul_i32 %s, %s, %d" % (s(t), s(RT), NSLAB * 4096))
    srd(e, K_SA, ptr(11), s(t), NSLAB * 4096)
    e("s_mul_i32 %s, %s, %d\ns_add_u32 %s, %s, %d" % (s(t), s(CT), NSLAB * 5120, s(t), s(t), WF_OFF))
    srd(e, K_SW, ptr(11), s(t), NSLAB * 5120)
    e("s_lshl_b32 %s, %s, 2\ns_add_u32 %s, %s, %s\ns_mul_i32 %s, %s, %d\ns_mul_i32 %s, %s, 160\ns_add_u32 %s, %s, %s" % (
        s(t), s(RT), s(t), s(t), s(S_WAVE), s(t), s(t), 16 * 1280, s(t + 1), s(CT), s(t), s(t), s(t + 1)))
    srd(e, K_SX, ptr(0), s(t), 15 * 1280 + 160)
    srd(e, K_SO, ptr(9), s(t), 15 * 1280 + 160)

def gen_att_epilogue(e):
    T = V_T
    stamp(e, 8)
    gen_tail_setup(e)
    e("s_cmp_lg_u32 %s, 0\ns_cbranch_scc1 SPUN_EARLY" % s(S_WAVE))
    e("s_waitcnt vmcnt(0)")
    poll_spin(e, True, None, 2, "EARLY")
    e("s_barrier")
    for nb in range(5):
        e("buffer_load_dwordx2 %s, %s, %s, 0 offen offset:%d" % (v(KV_X + 2 * nb, 2), v(KV_XO), s(K_SX, 4), nb * 32))
    for st in range(INFL):
        e.ext(k_addr_down(st)); e.ext(k_loads(st))
    for qb in range(4): e("v_rcp_f32 %s, %s" % (v(T + 2 * qb), v(V_L + 4 * qb)))
    e("v_max3_f32 %s, %s, %s, %s" % (v(T + 8), v(V_L), v(V_L + 4), v(V_L + 8)))
    e("v_max_f32 %s, %s, %s" % (v(T + 8), v(T + 8), v(V_L + 12)))
    for qb in range(4): e("v_mov_b32 %s, %s" % (v(T + 2 * qb + 1), v(T + 2 * qb)))
    e("v_mul_f32 %s, %s, %s" % (v(T + 8), f2u(2.0 ** 64), v(T + 8)))
    e("v_mul_f32 %s, 0, %s" % (v(T + 8), v(T + 8)))
    for qb in range(4): e("v_fma_f32 %s, %s, 0, %s" % (v(T + 8), v(V_L + 4 * qb), v(T + 8)))
    e("v_mov_b32 %s, 0\nv_mov_b32 %s, 0\nv_mov_b32 %s, 0" % (v(T + 9), v(T + 10), v(T + 11)))
    e("s_lshl_b32 %s, %s, 14" % (s(S_TMP + 2), s(S_HEAD)))
    W = T + 12
    for sl in range(4):
        for qb in range(4):
            d0 = V_S + (sl * 4 + qb) * 4
            for b in range(2):
                for r in range(4): e("v_accvgpr_read_b32 %s, %s" % (v(W + 4 * b + r), a(A_O + ((2 * sl + b) * 4 + qb) * 4 + r)))
            for h in range(4): e("v_pk_mul_f32 %s, %s, %s" % (v(W + 2 * h, 2), v(W + 2 * h, 2), v(T + 2 * qb, 2)))
            for h in range(4): e("v_pk_fma_f32 %s, %s, %s, %s" % (v(T + 8, 2), v(W + 2 * h, 2), v(T + 10, 2), v(T + 8, 2)))
            for h in range(4): e("v_cvt_pk_bf16_f32 %s, %s, %s" % (v(d0 + h), v(W + 2 * h), v(W + 2 * h + 1)))
            e("buffer_store_dwordx4 %s, %s, %s, %s offen offset:%d%s" % (v(d0, 4), v(V_L16), s(S_AF, 4), s(S_TMP + 2), 1024 * qb, STFL))
        if sl < 3: e("s_add_u32 %s, %s, 4096" % (s(S_TMP + 2), s(S_TMP + 2)))
    e("v_cmp_u_f32 vcc, %s, %s" % (v(T + 8), v(T + 9)))
    e("s_cmp_lg_u64 vcc, 0\ns_cselect_b32 %s, 1, 0" % s(S_TMP))
    e("v_mov_b32 %s, %s" % (v(W), s(S_TMP)))
    e("s_lshl_b32 %s, %s, 2\ns_add_u32 %s, %s, %d" % (s(S_TMP + 1), s(S_WAVE), s(S_TMP + 1), s(S_TMP + 1), L_MISC))
    e("v_mov_b32 %s, %s\nv_mov_b32 %s, %d" % (v(W + 1), s(S_TMP + 1), v(W + 2), L_MISC))
    e("ds_write_b32 %s, %s" % (v(W + 1), v(W)))
    stamp(e, 9)
    e("s_waitcnt vmcnt(0) lgkmcnt(0)\ns_barrier")
    e("ds_read_b128 %s, %s\ns_waitcnt lgkmcnt(0)" % (v(W + 4, 4), v(W + 2)))
    e("v_or3_b32 %s, %s, %s, %s\nv_or_b32 %s, %s, %s\ns_nop 0" % (v(W + 4), v(W + 4), v(W + 5), v(W + 6), v(W + 4), v(W + 4), v(W + 7)))
    e("v_readfirstlane_b32 %s, %s" % (s(S_TMP), v(W + 4)))
    e("s_nop 3\ns_andn2_b32 %s, %s, %s" % (s(S_TMP), s(S_TMP), s(S_RETRY)))
    e("s_cbranch_scc1 ATT_RETRY")
    e("s_cmp_lg_u32 %s, 0\ns_cbranch_scc1 NOSIG3" % s(S_WAVE))
    set_flag(e, 3)
    e("s_cmp_lg_u32 s2, 0\ns_cbranch_scc1 NOSIG3")
    e("s_add_u32 %s, %s, 1\ns_mov_b64 exec, 1\nv_mov_b32 %s, %s\ns_movk_i32 %s, 4096" % (s(S_TMP + 7), s(S_EPOCH), v(V_PL + 1), s(S_TMP + 7), s(S_TMP + 6)))
    e("buffer_store_dword %s, off, %s, %s sc1\ns_mov_b64 exec, -1" % (v(V_PL + 1), s(S_FL, 4), s(S_TMP + 6)))
    e("NOSIG3:")
    stamp(e, 10)

def tail_mfmas(ph, st, first=False):
    mf = []
    for nb in range(5):
        for p in range(4):
            d = v(K_ACC[ph] + (nb * 4 + p) * 4, 4)
            mf.append("%s %s, %s, %s, %s" % (MF, d, kstage(st, 4 + nb), kstage(st, p), "0" if first else d))
    return mf

def tail_round(G, b, addr, loads, wait, extra=()):
    for i, x in enumerate(addr): G.put(b + i // 3, "s", x)
    g = b + 3
    for x in loads: g = G.place("m", x, g) + 1
    for k, x in extra: g = G.place(k, x, g) + 1
    assert g <= b + 19, g - b
    G.put(b + 19, "s", wait)

def reduce_write(e, m, VT):
    for p in range(1, 4):
        for nb in range(5):
            e("ds_write_b128 %s, %s offset:%d" % (v(VT + p), v(K_ACC[m] + (nb * 4 + p) * 4, 4), (m * 5 + nb) * 1024))
def reduce_read(e, m, VT):
    for nb in range(5):
        for i in range(3):
            e("ds_read_b128 %s, %s offset:%d" % (v(K_ACC[m] + (nb * 4 + i + 1) * 4, 4), v(VT), i * 10240 + (m * 5 + nb) * 1024))
def reduce_add(e, m, nb):
    b = K_ACC[m] + nb * 16
    e("s_waitcnt lgkmcnt(%d)" % (3 * (4 - nb)))
    for h in range(2):
        e("v_pk_add_f32 %s, %s, %s" % (v(b + 2 * h, 2), v(b + 2 * h, 2), v(b + 4 + 2 * h, 2)))
        e("v_pk_add_f32 %s, %s, %s" % (v(b + 8 + 2 * h, 2), v(b + 8 + 2 * h, 2), v(b + 12 + 2 * h, 2)))
    for h in range(2):
        e("v_pk_add_f32 %s, %s, %s" % (v(b + 2 * h, 2), v(b + 2 * h, 2), v(b + 8 + 2 * h, 2)))

def gen_tail(e):
    VT = V_T; t = S_TMP
    W18 = "s_waitcnt vmcnt(%d)" % (9 * (INFL - 1))
    for p in range(1, 4):
        e("s_xor_b32 %s, %s, %d\ns_mul_i32 %s, %s, 30720\ns_add_u32 %s, %s, %d" % (s(t), s(S_WAVE), p, s(t), s(t), s(t), s(t), (p - 1) * 10240))
        e("v_add_u32 %s, %s, %s" % (v(VT + p), s(t), v(V_L16)))
    e("s_mul_i32 %s, %s, 30720\nv_add_u32 %s, %s, %s" % (s(t), s(S_WAVE), v(VT), s(t), v(V_L16)))
    e("v_and_b32 %s, 31, %s\nv_lshlrev_b32 %s, 2, %s" % (v(V_PL + 3), v(V_LANE), v(V_PL + 3), v(V_PL + 3)))
    e("s_mov_b32 %s, 0" % s(K_CNT))
    PR = opt("pollr", 8)
    def rounds(r0, r1):
        mf = []
        for r in range(r0, r1): mf += tail_mfmas(0, r % NST, first=(r == 0))
        G = Gaps(mf)
        for r in range(r0, r1):
            lr = r + INFL
            tail_round(G, (r - r0) * 20, k_addr_down(lr) if lr < 14 else k_addr_o(), k_loads(lr % NST), W18)
        return G.lines()
    e.ext(rounds(0, PR + 1))
    e("s_cmp_lg_u32 %s, 0\ns_cbranch_scc1 NOPOLL3" % s(S_WAVE))
    e(poll_load(False, s(K_FLG)))
    e("NOPOLL3:")
    e.ext(rounds(PR + 1, 11))
    stamp(e, 11)
    e("s_cmp_lg_u32 %s, 0\ns_cbranch_scc1 SPUN_O" % s(S_WAVE))
    if PR > 8: e("s_waitcnt vmcnt(%d)" % (9 * (10 - PR)))
    poll_spin(e, False, s(K_FLG), 3, "O")
    e("s_barrier")
    stamp(e, 12)
    e.ext(rounds(11, 14))
    for r in range(K_ACC[1], K_ACC[1] + 80): e("v_mov_b32 %s, 0" % v(r))
    reduce_write(e, 0, VT)
    e("s_waitcnt lgkmcnt(0)\ns_barrier")
    reduce_read(e, 0, VT)
    stamp(e, 13)
    def obody(first):
        mf = []
        for st in range(NST): mf += tail_mfmas(1, (st + 14) % NST)
        G = Gaps(mf)
        for st in range(NST):
            ex = [("s", "s_cmp_lt_u32 %s, %d" % (s(K_CNT), 32 + INFL))] if st == NST - 1 else []
            tail_round(G, st * 20, k_addr_o(), k_loads((st + 14 + INFL) % NST), W18, ex)
        return G.lines()
    e(".p2align 6\nTAIL_O:")
    e.ext(obody(False))
    e("s_cbranch_scc1 TAIL_O")
    stamp(e, 14)
    e("s_waitcnt lgkmcnt(0)\ns_nop 5")
    reduce_write(e, 1, VT)
    for nb in range(5):
        b = K_ACC[0] + nb * 16
        for h in range(2):
            e("v_pk_add_f32 %s, %s, %s" % (v(b + 2 * h, 2), v(b + 2 * h, 2), v(b + 4 + 2 * h, 2)))
            e("v_pk_add_f32 %s, %s, %s" % (v(b + 8 + 2 * h, 2), v(b + 8 + 2 * h, 2), v(b + 12 + 2 * h, 2)))
        for h in range(2):
            e("v_pk_add_f32 %s, %s, %s" % (v(b + 2 * h, 2), v(b + 2 * h, 2), v(b + 8 + 2 * h, 2)))
    e("s_waitcnt lgkmcnt(0)\ns_barrier")
    reduce_read(e, 1, VT)
    for nb in range(5):
        d = K_ACC[0] + nb * 16
        for r in range(4): e("v_mul_f32 %s, %s, %s" % (v(d + 4 + r), f2u(-math.log2(math.e)), v(d + r)))
        for r in range(4): e("v_exp_f32 %s, %s" % (v(d + 4 + r), v(d + 4 + r)))
        for h in range(2):
            e("v_lshlrev_b32 %s, 16, %s" % (v(d + 8 + 2 * h), v(KV_X + 2 * nb + h)))
            e("v_and_b32 %s, 0xffff0000, %s" % (v(d + 9 + 2 * h), v(KV_X + 2 * nb + h)))
        for r in range(4): e("v_add_f32 %s, 1.0, %s" % (v(d + 4 + r), v(d + 4 + r)))
        for r in range(4): e("v_rcp_f32 %s, %s" % (v(d + 4 + r), v(d + 4 + r)))
        e("s_nop 0")
        for r in range(4): e("v_mul_f32 %s, %s, %s" % (v(d + 4 + r), v(d + 4 + r), v(d + r)))
    for nb in range(5):
        d = K_ACC[0] + nb * 16; sx = K_ACC[1] + nb * 16
        reduce_add(e, 1, nb)
        for r in range(4): e("v_fma_f32 %s, %s, %s, %s" % (v(d + 8 + r), v(sx + r), v(d + 4 + r), v(d + 8 + r)))
        for h in range(2): e("v_cvt_pk_bf16_f32 %s, %s, %s" % (v(d + 12 + h), v(d + 8 + 2 * h), v(d + 9 + 2 * h)))
        e("buffer_store_dwordx2 %s, %s, %s, 0 offen offset:%d" % (v(d + 12, 2), v(KV_XO), s(K_SO, 4), nb * 32))
    stamp(e, 15)
    if STAMPS: e("s_waitcnt vmcnt(0)")
    stamp(e, 16)
    stamp_fin(e)

def gen_kv_addr(e):
    T = V_T + 12; L = V_LANE
    e("v_and_b32 %s, 15, %s\nv_lshrrev_b32 %s, 4, %s\nv_xor_b32 %s, %s, %s" % (v(T), v(L), v(T + 1), v(L), v(T + 1), v(T + 1), v(T)))
    e("v_lshlrev_b32 %s, 8, %s\nv_lshl_add_u32 %s, %s, 4, %s" % (v(T), v(T), v(T), v(T + 1), v(T)))
    for sl in range(4): e("v_xor_b32 %s, %d, %s" % (v(V_KA + sl), sl * 64, v(T)))
    e("v_lshrrev_b32 %s, 2, %s\nv_and_b32 %s, 7, %s\nv_lshlrev_b32 %s, 8, %s\nv_lshl_add_u32 %s, %s, 5, %s" % (v(T), v(L), v(T + 1), v(T), v(T), v(T), v(T), v(T + 1), v(T)))
    e("v_and_b32 %s, 3, %s\nv_lshl_add_u32 %s, %s, 3, %s\nv_add_u32 %s, %d, %s" % (v(T + 1), v(L), v(T), v(T + 1), v(T), v(T), L_V, v(T)))
    for db in range(8): e("v_xor_b32 %s, %d, %s" % (v(V_VA + db), db * 32, v(T)))

def gen_retry(e):
    e("ATT_RETRY:")
    e("s_mov_b32 %s, 1" % s(S_RETRY))
    gen_kv_addr(e)
    for qb in range(4): e("v_mov_b32 %s, 0xff800000" % v(V_NEGM + 4 * qb))
    e("s_mov_b32 %s, 0" % s(S_KVOFF))
    e("RETRY_LOOP:")
    e("s_barrier")
    e("s_add_u32 m0, %s, %d\ns_nop 0" % (s(S_M0K), L_K))
    e(kv_dma("K", 0)); e(kv_dma("K", 1))
    e("s_waitcnt vmcnt(0)\ns_barrier")
    for kb in range(2):
        for sl in range(4): e(k_read(kb, sl, 0))
    e("s_waitcnt lgkmcnt(0)")
    e.ext(qk_mfmas(0, czero=True))
    e("s_nop 7")
    for qb in range(4):
        b = Sreg(0, qb, 0); m = v(V_NEGM + 4 * qb)
        for k in range(4): e("v_max3_f32 %s, %s, %s, %s" % (m, m, v(b + 2 * k), v(b + 2 * k + 1)))
    e("s_add_u32 %s, %s, 8192\ns_cmp_lt_u32 %s, %d\ns_cbranch_scc1 RETRY_LOOP" % (s(S_KVOFF), s(S_KVOFF), s(S_KVOFF), 64 * 8192))
    e("s_barrier")
    kv_preload(e)
    e("s_branch ATT_START")

def gen_common_setup(e):
    T = V_T + 12; L = V_LANE
    e("s_lshl2_add_u32 %s, %s, %s" % (s(S_TMP + 1), s(S_QT), s(S_WAVE)))
    e("s_mul_i32 %s, %s, %d" % (s(S_TMP), s(S_TMP + 1), NSLAB * 4096))
    srd(e, S_AF, ptr(11), s(S_TMP), NSLAB * 4096)
    e("s_mul_i32 %s, %s, %d\ns_add_u32 %s, %s, %d" % (s(S_TMP), s(S_TMP + 1), 20 * 4096, s(S_TMP), s(S_TMP), XF_OFF))
    srd(e, S_X, ptr(11), s(S_TMP), 20 * 4096)
    srd(e, S_WF, ptr(11), WF_OFF, WF_BYTES)
    e("s_cmp_lt_u32 s2, %d\ns_cselect_b32 %s, %s, 0" % (NSLAB, s(S_WF + 2), s(S_WF + 2)))
    srd(e, S_FL, ptr(11), FL_OFF, 8192)
    e("s_lshl_b32 %s, %s, 5\ns_add_u32 %s, %s, %s\ns_lshl_b32 %s, %s, 2" % (s(S_MYFL), s(S_QT), s(S_MYFL), s(S_MYFL), s(S_HEAD), s(S_MYFL), s(S_MYFL)))
    e("s_lshl_b32 %s, %s, 19" % (s(S_TMP), s(S_HEAD)))
    srd(e, S_K, ptr(1), s(S_TMP), 524288)
    srd(e, S_V, ptr(2), s(S_TMP), 524288 + 3 * 8192)
    e("s_sub_u32 %s, %s, %d\ns_subb_u32 %s, %s, 0" % (s(S_V), s(S_V), 3 * 8192, s(S_V + 1), s(S_V + 1)))
    e("v_bfe_u32 %s, %s, 2, 2\nv_lshrrev_b32 %s, 4, %s\nv_and_b32 %s, 3, %s" % (v(T), v(L), v(T + 1), v(L), v(T + 2), v(L)))
    e("v_lshlrev_b32 %s, 12, %s" % (v(T + 3), v(T + 1)))
    e("v_mul_u32_u24 %s, 320, %s\nv_add_u32 %s, %s, %s\nv_lshl_add_u32 %s, %s, 4, %s" % (v(T + 4), v(T), v(T + 4), v(T + 4), v(T + 3), v(T + 4), v(T + 2), v(T + 4)))
    for sl in range(4): e("v_xor_b32 %s, %d, %s" % (v(V_AQ + sl), sl * 64, v(T + 4)))
    e("v_lshl_add_u32 %s, %s, 7, %s\nv_lshl_add_u32 %s, %s, 3, %s" % (v(T + 4), v(T), v(T + 3), v(T + 4), v(T + 2), v(T + 4)))
    e("v_bfe_u32 %s, %s, 3, 2\nv_lshl_add_u32 %s, %s, 5, %s" % (v(T + 5), v(L), v(T + 4), v(T + 5), v(T + 4)))
    for u in range(4): e("v_xor_b32 %s, %d, %s" % (v(V_AG + u), u * 32, v(T + 4)))
    e("v_lshrrev_b32 %s, 4, %s\ns_lshl_b32 %s, %s, 3\nv_add_u32 %s, %s, %s\nv_and_b32 %s, 15, %s" % (v(T), v(L), s(S_TMP), s(S_WAVE), v(T), s(S_TMP), v(T), v(T + 1), v(L)))
    e("v_lshlrev_b32 %s, 8, %s" % (v(T + 2), v(T)))
    for i in range(2):
        e("v_add_u32 %s, %d, %s\nv_and_b32 %s, 15, %s\nv_xor_b32 %s, %s, %s\nv_lshl_add_u32 %s, %s, 4, %s" % (v(T + 3), 4 * i, v(T), v(T + 4), v(T + 3), v(T + 4), v(T + 4), v(T + 1), v(V_KD + i), v(T + 4), v(T + 2)))
        e("v_and_b32 %s, 7, %s\nv_lshlrev_b32 %s, 1, %s\nv_xor_b32 %s, %s, %s\nv_lshl_add_u32 %s, %s, 4, %s" % (v(T + 4), v(T + 3), v(T + 4), v(T + 4), v(T + 4), v(T + 4), v(T + 1), v(V_VD + i), v(T + 4), v(T + 2)))
    gen_kv_addr(e)
    e("v_lshrrev_b32 %s, 2, %s\nv_and_b32 %s, 7, %s\nv_mul_u32_u24 %s, 1280, %s\nv_and_b32 %s, 3, %s\nv_lshl_add_u32 %s, %s, 3, %s\nv_add_u32 %s, %d, %s" % (
        v(T), v(L), v(V_TRA + 1), v(T), v(T), v(T), v(T + 2), v(L), v(T), v(T + 2), v(T), v(V_TRA), L_TR, v(T)))
    e("s_mul_i32 %s, %s, 10" % (s(S_TRU), s(S_WAVE)))
    e("s_lshl_b32 %s, %s, 1\ns_mul_i32 %s, %s, %d\ns_add_u32 %s, %s, s2\ns_mul_i32 %s, %s, 5120" % (s(S_TRD), s(S_WAVE), s(S_TRD), s(S_TRD), NSLAB, s(S_TRD), s(S_TRD), s(S_TRD), s(S_TRD)))
    e("s_and_b32 %s, s2, 127\ns_mul_i32 %s, %s, 40960" % (s(S_TRS), s(S_TRS), s(S_TRS)))
    e("s_mul_i32 %s, %s, 10240\ns_add_u32 %s, %s, %s\ns_add_u32 %s, %s, %d" % (s(S_TRM), s(S_WAVE), s(S_TRS), s(S_TRS), s(S_TRM), s(S_TRM), s(S_TRM), L_TR))

def gen_w_setup(e):
    T = V_T + 12; L = V_LANE
    e("v_lshrrev_b32 %s, 4, %s\nv_lshlrev_b32 %s, 2, %s\nv_and_b32 %s, 15, %s\nv_xor_b32 %s, %s, %s" % (v(T), v(L), v(T + 1), v(T), v(T + 2), v(L), v(T + 1), v(T + 1), v(T + 2)))
    e("v_lshlrev_b32 %s, 13, %s\nv_lshl_add_u32 %s, %s, 4, %s" % (v(T), v(T), v(V_WD), v(T + 1), v(T)))
    e("v_add_u32 %s, %d, %s" % (v(V_WD + 1), 4 * 8192 - 1024, v(V_WD)))
    e("v_lshrrev_b32 %s, 3, %s\nv_bfe_u32 %s, %s, 4, 1\nv_lshlrev_b32 %s, 1, %s" % (v(T), v(L), v(T + 1), v(L), v(T + 1), v(T + 1)))
    e("s_and_b32 %s, %s, 1\ns_lshl_b32 %s, %s, 2\nv_or_b32 %s, %s, %s" % (s(S_TMP), s(S_WAVE), s(S_TMP), s(S_TMP), v(T + 1), s(S_TMP), v(T + 1)))
    e("v_and_b32 %s, 7, %s\nv_xor_b32 %s, %s, %s" % (v(T + 2), v(L), v(T + 1), v(T + 1), v(T + 2)))
    e("v_mul_u32_u24 %s, 3456, %s\nv_lshl_add_u32 %s, %s, 4, %s" % (v(T), v(T), v(V_WD + 2), v(T + 1), v(T)))
    e("s_lshl_b32 %s, %s, 8\ns_sub_u32 %s, %d, %s" % (s(S_TMP), s(S_HEAD), s(S_TMP + 1), 640 * 8192, s(S_TMP)))
    srd(e, S_WQ, ptr(3), s(S_TMP), s(S_TMP + 1))
    for (d, p, sh) in ((S_WG, 6, 2048), (S_WU, 7, 3072)):
        e("s_lshl_b32 %s, %s, 7\ns_sub_u32 %s, %d, %s" % (s(S_TMP), s(S_FS), s(S_TMP + 1), 640 * 3456 + sh, s(S_TMP)))
        e("s_cmp_lt_u32 %s, 27\ns_cselect_b32 %s, %s, 0" % (s(S_FS), s(S_TMP + 1), s(S_TMP + 1)))
        srd(e, d, ptr(p), s(S_TMP), s(S_TMP + 1))
        e("s_sub_u32 %s, %s, %d\ns_subb_u32 %s, %s, 0" % (s(d), s(d), sh, s(d + 1), s(d + 1)))

def gen_kernel(e, name):
    T = V_T; L = V_LANE
    e(".text\n.globl %s\n.p2align 8\n.type %s,@function\n%s:" % (name, name, name))
    e("s_cmp_ge_u32 s2, 256\ns_cbranch_scc1 K_END")
    e("s_load_dwordx8 %s, s[0:1], 0\ns_load_dwordx8 %s, s[0:1], 32\ns_load_dwordx8 %s, s[0:1], 64" % (s(S_PTR, 8), s(S_PTR + 8, 8), s(S_PTR + 16, 8)))
    e("v_and_b32 %s, 63, v0\nv_lshrrev_b32 %s, 6, v0\nv_lshlrev_b32 %s, 4, %s\nv_readfirstlane_b32 %s, %s" % (v(L), v(T), v(V_L16), v(L), s(S_WAVE), v(T)))
    e("s_and_b32 %s, s2, 7\ns_lshr_b32 %s, s2, 3\ns_and_b32 %s, %s, 3\ns_lshr_b32 %s, %s, 2" % (s(S_TMP), s(S_TMP + 1), s(S_HL), s(S_TMP + 1), s(S_QT), s(S_TMP + 1)))
    e("s_lshl_b32 %s, %s, 2\ns_add_u32 %s, %s, %s" % (s(S_HEAD), s(S_TMP), s(S_HEAD), s(S_HEAD), s(S_HL)))
    e("s_lshl_b32 %s, %s, 3\ns_add_u32 %s, %s, %s" % (s(S_FS), s(S_HL), s(S_FS), s(S_FS), s(S_TMP)))
    e("s_mov_b32 %s, 0" % s(S_RETRY))
    e("s_lshl_b32 %s, %s, 12\ns_lshl_b32 %s, %s, 11" % (s(S_M0W), s(S_WAVE), s(S_M0K), s(S_WAVE)))
    if STAMPS: e("v_mov_b32 v0, -1\nv_mov_b32 v19, -1")
    stamp(e, 0)
    e("s_cmp_lg_u32 %s, 0\ns_waitcnt lgkmcnt(0)\ns_cbranch_scc1 NOT_W0" % s(S_WAVE))
    ln = gen_ln(e)
    next(ln)
    e("s_add_u32 %s, %s, %d\ns_addc_u32 %s, %s, 0\ns_load_dword %s, %s, 0" % (s(S_TMP + 2), s(ptr(11)), FL_OFF + 4096, s(S_TMP + 3), s(ptr(11) + 1), s(S_EPOCH), s(S_TMP + 2, 2)))
    gen_w_setup(e); gen_common_setup(e)
    stamp(e, 1)
    next(ln)
    e("s_nop 1")
    zero_acc(e)
    e("s_waitcnt lgkmcnt(0)\ns_mul_i32 %s, %s, 0x9e3779b1\ns_add_u32 %s, %s, 0x7f4a7c15" % (s(S_TAG), s(S_EPOCH), s(S_TAG), s(S_TAG)))
    next(ln)
    e("s_branch W_JOIN")
    e("NOT_W0:")
    gen_w_setup(e)
    gen_w_initial(e)
    gen_common_setup(e)
    stamp(e, 1)
    e("s_mov_b32 %s, 0\ns_mov_b32 %s, 0" % (s(S_TAG), s(S_EPOCH)))
    zero_acc(e)
    e("s_waitcnt vmcnt(36)")
    e("W_JOIN:")
    e("s_cmp_lt_u32 s2, 128")
    e("s_cselect_b32 %s, %s, %s\ns_cselect_b32 %s, %s, %s" % (s(S_T), s(ptr(4)), s(ptr(8)), s(S_T + 1), s(ptr(4) + 1), s(ptr(8) + 1)))
    e("s_mov_b32 %s, %d\ns_cselect_b32 %s, %d, %s\ns_mov_b32 %s, 0x20000" % (s(S_T + 2), 1728 * 1280, s(S_T + 2), 4096 * 1280, s(S_T + 2), s(S_T + 3)))
    e("s_barrier")
    stamp(e, 2)
    e("s_cmp_ge_u32 %s, 27\ns_cbranch_scc1 LIGHT" % s(S_FS))
    gen_proj(e, True, "H")
    e("PROJ_DONE:")
    for qb in range(4): e("v_mov_b32 %s, 0xff800000" % v(V_NEGM + 4 * qb))
    gen_attention(e)
    gen_att_epilogue(e)
    gen_tail(e)
    e("K_END:\ns_endpgm")
    gen_retry(e)
    e("LIGHT:")
    gen_proj(e, False, "L")
    e("s_branch PROJ_DONE")
    e(kd(name))

def main():
    e = E()
    hdr = open("cdna_kernels/%s.s.ref" % NAME).read().split("; Override launch")[0]
    e.L += hdr.strip().split("\n")
    e("; @launch grid=(256,1,1) block=(256,1,1) lds=%d" % LDS_BYTES)
    e('.amdgcn_target "amdgcn-amd-amdhsa--gfx950"')
    gen_kernel(e, NAME + "_kernel")
    t = re.sub(r" ;#\w*", "", e.text())
    lw = [i for i, x in enumerate(t.split("\n")) if x == "WINIT:"][0]
    errs = [x for x in asmcheck.check(t, [NAME + "_kernel"]) if not (x.startswith("vmcnt overflow") and lw < int(x.split()[-1]) < lw + 70)]
    if errs:
        print("\n".join(errs[:40])); print(len(errs), "problems")
    out = [x for x in sys.argv[1:] if x.endswith(".s")]
    open(out[0] if out else "cdna_kernels/%s.s" % NAME, "w").write(t)

if __name__ == "__main__":
    main()
```

```python
import sys, math, os, struct, re
from sched import Gaps, auto_lgkm
import asmcheck

NAME = "recurrent_scan__mha_block_cached__glu_gated_reglu__prompt"
MF = "v_mfma_f32_16x16x32_bf16"
OPT = dict(x.split("=") for x in sys.argv[1:] if "=" in x)
def opt(k, d): return type(d)(OPT.get(k, d))
VERBOSE = "-v" in sys.argv
STAMPS = "--stamps" in sys.argv
STFL = opt("stfl", " sc1").replace("_", " ")
LDFL = opt("ldfl", " sc1").replace("_", " ")

NSLAB = 182
WF_OFF = 0x1800000
WF_BYTES = 8 * NSLAB * 5120
XF_OFF = 0x2000000
FL_OFF = 0x2400000

class E:
    def __init__(self): self.L = []
    def __call__(self, s):
        for x in s.split("\n"):
            x = x.strip()
            if x: self.L.append(x)
    def ext(self, l): self.L += l
    def text(self): return "\n".join(self.L) + "\n"

def v(a, n=1): return "v%d" % a if n == 1 else "v[%d:%d]" % (a, a + n - 1)
def a(a_, n=1): return "a%d" % a_ if n == 1 else "a[%d:%d]" % (a_, a_ + n - 1)
def s(a_, n=1): return "s%d" % a_ if n == 1 else "s[%d:%d]" % (a_, a_ + n - 1)
def f2u(x): return "0x%08x" % struct.unpack("<I", struct.pack("<f", x))[0]

def kd(name, vgpr=512, acc=256):
    return """.section .rodata,"a"
.p2align 6
.amdhsa_kernel %s
  .amdhsa_next_free_vgpr %d
  .amdhsa_next_free_sgpr 102
  .amdhsa_accum_offset %d
  .amdhsa_group_segment_fixed_size 0
  .amdhsa_kernarg_size 96
  .amdhsa_user_sgpr_count 2
  .amdhsa_user_sgpr_kernarg_segment_ptr 1
  .amdhsa_system_sgpr_workgroup_id_x 1
.end_amdhsa_kernel
""" % (name, vgpr, acc)

def stamp(e, i):
    if not STAMPS: return
    e("s_waitcnt lgkmcnt(0)\ns_memtime s[98:99]\ns_memrealtime s[100:101]\ns_waitcnt lgkmcnt(0)")
    e("v_writelane_b32 v0, s98, %d\nv_writelane_b32 v19, s100, %d" % (i, i))
def stamp_fin(e):
    if not STAMPS: return
    e("s_lshl_b32 s98, s2, 2\ns_add_u32 s98, s98, %s\ns_lshl_b32 s98, s98, 9\ns_add_u32 s98, s98, %d" % (s(S_WAVE), 0x4000000))
    e("s_add_u32 s96, %s, s98\ns_addc_u32 s97, %s, 0\ns_mov_b32 s98, 512\ns_mov_b32 s99, 0x20000" % (s(ptr(11)), s(ptr(11) + 1)))
    e("v_mov_b32 v18, v0\nv_lshlrev_b32 v20, 3, v1\nbuffer_store_dwordx2 v[18:19], v20, s[96:99], 0 offen\ns_waitcnt vmcnt(0)")

def srd(e, d, base, off_lo, nbytes):
    e("s_add_u32 %s, %s, %s" % (s(d), s(base), off_lo))
    e("s_addc_u32 %s, %s, 0" % (s(d + 1), s(base + 1)))
    e("s_mov_b32 %s, %s" % (s(d + 2), nbytes))
    e("s_mov_b32 %s, 0x20000" % s(d + 3))

def resolve_vm(lines):
    out = []; ops = []; waited = set(); lastm0 = None
    for x in lines:
        if x.startswith("s_add_u32 m0,"): lastm0 = x.split(",")[1].strip()
        if " lds" in x and ";#" in x:
            tg = x.split(";#")[1].strip()
            exp = s(S_M0W) if tg.startswith("w") else (s(S_TRM) if tg == "trs" else s(S_M0K))
            assert lastm0 == exp, "M0 collision at %s" % x
        m = re.search(r"WAITVM\{([^}]*)\}", x)
        if m:
            need = set(m.group(1).split(","))
            waited |= need
            idx = [i for i, t in enumerate(ops) if t in need]
            n = len(ops) - 1 - max(idx) if idx else 63
            assert n <= 63
            x = x.replace(m.group(0), "vmcnt(%d)" % min(n, 63))
        elif x.startswith(("buffer_", "global_")):
            t = x.split(";#")[1].strip() if ";#" in x else ""
            assert t not in waited, "op %s issued after its wait" % t
            ops.append(t)
        out.append(x)
    return out

S_FL = 4
S_X, S_WQ, S_WG, S_WU, S_K, S_V, S_AF, S_T, S_WF = 8, 12, 16, 20, 24, 28, 32, 36, 40
S_PTR = 44
S_WAVE, S_HEAD, S_QT, S_FS = 68, 69, 70, 71
S_XOFF, S_WQOFF, S_WGOFF, S_M0W = 72, 73, 74, 75
S_KVOFF, S_M0K, S_TOG, S_RETRY = 76, 77, 78, 79
S_TMP = 80
S_TRS, S_TRM, S_TRD, S_TRU = 88, 89, 90, 91
S_EPOCH, S_TAG, S_MYFL = 92, 93, 94
S_HL = 3
S_LN = 84
def ptr(i): return S_PTR + 2 * i

L_K = 0
L_V = 65536
RW = 7
L_TR = 114688
L_MISC = 155648
LDS_BYTES = 163840

V_LANE = 1
V_L16 = 2
V_WD = 3
V_TRA = 6
V_AQ = 10
V_AG = 14
V_KA = 20
V_VA = 24
V_KD = 32
V_VD = 34
V_DUMP = 18
V_TC = 62
V_PL = 36
V_T = 40
V_ACCQ = 64
V_ACCG = 192
V_Q = 64
V_S = 128
V_P = 192
V_NEGM = 224
V_L = 240
A_ACCU = 0
XD = 7
A_X = 64
A_W = 176
A_TR = 208
A_ONE = 224
A_O = 0
A_KF = 128
A_VF = 160

def accreg(blk, qb):
    if blk < 8: return v(V_ACCQ + (blk * 4 + qb) * 4, 4)
    if blk < 12: return v(V_ACCG + ((blk - 8) * 4 + qb) * 4, 4)
    return a(A_ACCU + ((blk - 12) * 4 + qb) * 4, 4)

def w_read(dst, blk, j, rel):
    if blk < 8:
        ar = V_AQ + (blk >> 1); off = rel + j * 1024 + (blk & 1) * 8
    else:
        ar = V_AG + ((blk - 8) & 3); off = rel + 2048 + (1024 if blk >= 12 else 0) + j * 512
    assert 0 <= off < 65536
    return "ds_read_b64_tr_b16 %s, %s offset:%d" % (a(dst + 2 * j, 2), v(ar), off)

def w_dma(heavy, tag):
    l = ["buffer_load_dwordx4 %s, %s, %s offen lds ;#%s" % (v(V_WD), s(S_WQ, 4), s(S_WQOFF), tag),
         "buffer_load_dwordx4 %s, %s, %s offen offset:1024 lds ;#%s" % (v(V_WD + 1), s(S_WQ, 4), s(S_WQOFF), tag)]
    if heavy:
        l += ["buffer_load_dwordx4 %s, %s, %s offen offset:2048 lds ;#%s" % (v(V_WD + 2), s(S_WG, 4), s(S_WGOFF), tag),
              "buffer_load_dwordx4 %s, %s, %s offen offset:3072 lds ;#%s" % (v(V_WD + 2), s(S_WU, 4), s(S_WGOFF), tag)]
    return l

def x_load(sl, qb):
    return "buffer_load_dwordx4 %s, %s, %s, %s offen offset:%d%s ;#x%d" % (a(A_X + ((sl % XD) * 4 + qb) * 4, 4), v(V_L16), s(S_X, 4), s(S_XOFF), qb * 1024, LDFL, sl)

def kv_dma(which, i, tag=""):
    vo = (V_KD if which == "K" else V_VD) + i
    return "buffer_load_dwordx4 %s, %s, %s offen offset:%d lds ;#%s" % (v(vo), s(S_K if which == "K" else S_V, 4), s(S_KVOFF), 1024 * i, tag)

def set_flag(e, stage):
    e("s_add_u32 %s, %s, %d\ns_mov_b64 exec, 1\nv_mov_b32 %s, %s" % (s(S_TMP + 7), s(S_TAG), stage, v(V_PL), s(S_TMP + 7)))
    e("buffer_store_dword %s, off, %s, %s sc1" % (v(V_PL), s(S_FL, 4), s(S_MYFL)))
    e("s_mov_b64 exec, -1")

def poll_load(allq, qoff=None):
    if allq: return "buffer_load_dwordx4 %s, %s, %s, 0 offen sc1" % (v(V_PL, 4), v(V_L16), s(S_FL, 4))
    return "buffer_load_dword %s, %s, %s, %s offen sc1" % (v(V_PL), v(V_PL + 3), s(S_FL, 4), qoff)

def poll_spin(e, allq, qoff, stage, tag):
    e("s_mov_b32 %s, 0\ns_add_u32 %s, %s, %d" % (s(S_TMP + 7), s(S_TMP + 6), s(S_TAG), stage))
    e("SPIN_%s:" % tag)
    n = 4 if allq else 1
    for i in range(n): e("v_subrev_u32 %s, %s, %s" % (v(V_PL + i), s(S_TMP + 6), v(V_PL + i)))
    if allq: e("v_max3_u32 %s, %s, %s, %s\nv_max_u32 %s, %s, %s" % (v(V_PL), v(V_PL), v(V_PL + 1), v(V_PL + 2), v(V_PL), v(V_PL), v(V_PL + 3)))
    e("v_cmp_lt_u32 vcc, %d, %s" % (3 - stage, v(V_PL)))
    e("s_add_u32 %s, %s, 1" % (s(S_TMP + 7), s(S_TMP + 7)))
    e("s_cmp_eq_u64 vcc, 0\ns_cbranch_scc1 SPUN_%s" % tag)
    e("s_cmp_ge_u32 %s, 0x40000\ns_cbranch_scc1 SPUN_%s" % (s(S_TMP + 7), tag))
    e("s_sleep %d" % opt("slp", 2))
    e(poll_load(allq, qoff))
    e("s_waitcnt vmcnt(0)\ns_branch SPIN_%s" % tag)
    e("SPUN_%s:" % tag)

def zero_acc(e, heavy=True):
    for r in range(V_ACCQ, 256): e("v_mov_b32 %s, 0" % v(r))
    for r in range(A_ACCU, A_ACCU + 64): e("v_accvgpr_write_b32 %s, 0" % a(r))

NI = opt("ni", 1)

def gen_ln_loads(e):
    T = V_T; L = V_LANE
    R = V_ACCQ
    e("v_bfe_u32 %s, %s, 1, 3\nv_lshrrev_b32 %s, 4, %s\nv_and_b32 %s, 1, %s" % (v(T), v(L), v(T + 1), v(L), v(T + 2), v(L)))
    e("v_mul_u32_u24 %s, 1280, %s\nv_lshl_add_u32 %s, %s, 4, %s\nv_lshl_add_u32 %s, %s, 3, %s" % (v(T + 3), v(T), v(T + 3), v(T + 1), v(T + 3), v(T + 3), v(T + 2), v(T + 3)))
    e("s_lshl_b32 %s, %s, 5\ns_add_u32 %s, %s, %s\ns_mul_i32 %s, %s, %d\ns_mul_i32 %s, %s, 320" % (s(S_TMP), s(S_QT), s(S_TMP), s(S_TMP), s(S_HEAD), s(S_TMP), s(S_TMP), 8 * 1280, s(S_TMP + 1), s(S_WAVE)))
    e("s_waitcnt lgkmcnt(0)")
    srd(e, S_T, ptr(0), s(S_TMP), 8 * 1280)
    for i in range(5): e("buffer_load_dwordx2 %s, %s, %s, %s offen offset:%d" % (v(R + 2 * i, 2), v(T + 3), s(S_T, 4), s(S_TMP + 1), 64 * i))

def gen_ln_compute(e, nyounger):
    T = V_T; L = V_LANE
    R = V_ACCQ; U = R + 10
    e("v_and_b32 %s, 15, %s\nv_lshlrev_b32 %s, 3, %s\nv_lshl_add_u32 %s, %s, 8, %s" % (v(T + 3), v(L), v(T + 3), v(T + 3), v(T + 3), v(T + 1), v(T + 3)))
    e("s_lshr_b32 %s, %s, 3\ns_lshl2_add_u32 %s, %s, %s\ns_mul_i32 %s, %s, %d" % (s(S_TMP), s(S_HEAD), s(S_TMP), s(S_QT), s(S_TMP), s(S_TMP), s(S_TMP), 20 * 4096))
    e("s_bfe_u32 %s, %s, 0x20001\ns_lshl_b32 %s, %s, 10\ns_add_u32 %s, %s, %s" % (s(S_TMP + 1), s(S_HEAD), s(S_TMP + 1), s(S_TMP + 1), s(S_TMP), s(S_TMP), s(S_TMP + 1)))
    e("s_and_b32 %s, %s, 1\ns_lshl_b32 %s, %s, 7\ns_add_u32 %s, %s, %s\ns_add_u32 %s, %s, %d" % (s(S_TMP + 1), s(S_HEAD), s(S_TMP + 1), s(S_TMP + 1), s(S_TMP), s(S_TMP), s(S_TMP + 1), s(S_TMP), s(S_TMP), XF_OFF))
    srd(e, S_LN, ptr(11), s(S_TMP), 20 * 4096)
    e("s_mul_i32 %s, %s, %d" % (s(S_TMP), s(S_WAVE), 5 * 4096))
    e("v_lshlrev_b32 %s, 5, %s\nv_add_u32 %s, %d, %s\ns_lshl_b32 %s, %s, 3\nv_add_u32 %s, %s, %s" % (v(T + 4), v(T), v(T + 4), L_MISC, v(T + 4), s(S_TMP + 1), s(S_WAVE), v(T + 5), s(S_TMP + 1), v(T + 4)))
    A0 = T + 6; M = T + 8
    e("s_waitcnt vmcnt(%d)" % nyounger)
    stamp(e, 17)
    for d in range(10): e("v_lshlrev_b32 %s, 16, %s\nv_and_b32 %s, 0xffff0000, %s" % (v(U + 2 * d), v(R + d), v(U + 2 * d + 1), v(R + d)))
    e("v_pk_add_f32 %s, %s, %s\nv_pk_add_f32 %s, %s, %s" % (v(A0, 2), v(U, 2), v(U + 2, 2), v(M, 2), v(U + 4, 2), v(U + 6, 2)))
    for d in range(4, 10): e("v_pk_add_f32 %s, %s, %s" % (v((A0, M)[d & 1], 2), v((A0, M)[d & 1], 2), v(U + 2 * d, 2)))
    def reduce(dst):
        e("v_pk_add_f32 %s, %s, %s" % (v(A0, 2), v(A0, 2), v(M, 2) if dst == M else v(T + 10, 2)))
        e("v_add_f32 %s, %s, %s\ns_nop 1" % (v(A0), v(A0), v(A0 + 1)))
        e("v_add_f32_dpp %s, %s, %s quad_perm:[1,0,3,2] row_mask:0xf bank_mask:0xf" % (v(A0), v(A0), v(A0)))
        for sw in ("v_permlane32_swap_b32", "v_permlane16_swap_b32"):
            e("v_mov_b32 %s, %s\ns_nop 1\n%s %s, %s\nv_add_f32 %s, %s, %s" % (v(A0 + 1), v(A0), sw, v(A0), v(A0 + 1), v(A0), v(A0), v(A0 + 1)))
    reduce(M)
    e("v_mul_f32 %s, %s, %s\nv_mul_f32 %s, %s, %s" % (v(M), f2u(-1.0 / 160), v(A0), v(M + 1), f2u(-1.0 / 160), v(A0)))
    for d in range(10): e("v_pk_add_f32 %s, %s, %s" % (v(U + 2 * d, 2), v(U + 2 * d, 2), v(M, 2)))
    e("v_pk_mul_f32 %s, %s, %s\nv_pk_mul_f32 %s, %s, %s" % (v(A0, 2), v(U, 2), v(U, 2), v(T + 10, 2), v(U + 2, 2), v(U + 2, 2)))
    for d in range(2, 10): e("v_pk_fma_f32 %s, %s, %s, %s" % (v((A0, T + 10)[d & 1], 2), v(U + 2 * d, 2), v(U + 2 * d, 2), v((A0, T + 10)[d & 1], 2)))
    reduce(None)
    e("v_mov_b32 %s, %s" % (v(M + 1), v(A0)))
    e("ds_write_b64 %s, %s\ns_waitcnt lgkmcnt(0)\ns_barrier" % (v(T + 5), v(M, 2)))
    X = T + 12
    e("ds_read_b128 %s, %s\nds_read_b128 %s, %s offset:16\ns_waitcnt lgkmcnt(0)" % (v(X, 4), v(T + 4), v(X + 4, 4), v(T + 4)))
    e("v_pk_add_f32 %s, %s, %s\nv_pk_add_f32 %s, %s, %s\nv_pk_add_f32 %s, %s, %s" % (v(A0, 2), v(X, 2), v(X + 2, 2), v(T + 10, 2), v(X + 4, 2), v(X + 6, 2), v(A0, 2), v(A0, 2), v(T + 10, 2)))
    e("v_mul_f32 %s, 0.25, %s" % (v(A0), v(A0)) if False else "v_mul_f32 %s, %s, %s" % (v(A0), f2u(0.25), v(A0)))
    for k in range(4): e("v_sub_f32 %s, %s, %s" % (v(X + 2 * k), v(X + 2 * k), v(A0)))
    e("v_mul_f32 %s, %s, %s" % (v(X + 1), v(X), v(X)))
    for k in range(1, 4): e("v_fmac_f32 %s, %s, %s" % (v(X + 1), v(X + 2 * k), v(X + 2 * k)))
    e("v_fmac_f32 %s, %s, %s" % (v(A0 + 1), f2u(160.0), v(X + 1)))
    e("v_mov_b32 %s, %s\nv_fmac_f32 %s, %s, %s\nv_rsq_f32 %s, %s" % (v(X), f2u(1e-5), v(X), f2u(1.0 / 640), v(A0 + 1), v(X), v(X)))
    e("v_sub_f32 %s, %s, %s" % (v(M), v(A0), v(M)))
    e("v_mov_b32 %s, %s\nv_mul_f32 %s, %s, %s\nv_mul_f32 %s, %s, %s" % (v(X + 1), v(X), v(M + 1), v(M), v(X), v(M), v(M), v(X)))
    for i in range(5):
        for d in (2 * i, 2 * i + 1): e("v_pk_fma_f32 %s, %s, %s, %s" % (v(U + 2 * d, 2), v(U + 2 * d, 2), v(X, 2), v(M, 2)))
        for d in (2 * i, 2 * i + 1): e("v_cvt_pk_bf16_f32 %s, %s, %s" % (v(R + d), v(U + 2 * d), v(U + 2 * d + 1)))
        e("buffer_store_dwordx2 %s, %s, %s, %s offen%s" % (v(R + 2 * i, 2), v(T + 3), s(S_LN, 4), s(S_TMP), STFL))
        if i < 4: e("s_add_u32 %s, %s, 4096" % (s(S_TMP), s(S_TMP)))

def w_slab(e, sl, heavy):
    e("s_add_u32 m0, %s, %d\ns_nop 0" % (s(S_M0W), (sl % RW) * 16384))
    e.ext(w_dma(heavy, "w%d" % sl))
    e("s_add_u32 %s, %s, %d\ns_add_u32 %s, %s, %d" % (s(S_WQOFF), s(S_WQOFF), 32 * 8192, s(S_WGOFF), s(S_WGOFF), 32 * 3456))

def gen_proj(e0, heavy, tag):
    e = E()
    NB = 16 if heavy else 8
    NG = NB * 4
    T = V_T; L = V_LANE
    e("s_mov_b32 %s, 0" % s(S_XOFF))
    NX0 = opt("nx0", 2)
    defer = []
    for sl in range(RW):
        t = E()
        if sl >= NI: w_slab(t, sl, heavy)
        if sl < XD - 1:
            for qb in range(4): t(x_load(sl, qb))
            t("s_add_u32 %s, %s, 4096" % (s(S_XOFF), s(S_XOFF)))
        if sl < NX0: e.ext(t.L)
        else: defer += [x for x in t.L if not x.startswith("s_nop")]
    if NI == 0: e("s_waitcnt WAITVM{w0}\ns_barrier")
    mf = []
    for sl in range(20):
        for f in range(NB):
            wr = a(A_W + 4 * (f % 8), 4)
            for qb in range(4):
                mf.append("%s %s, %s, %s, %s" % (MF, accreg(f, qb), wr, a(A_X + ((sl % XD) * 4 + qb) * 4, 4), accreg(f, qb) if sl else "0"))
    G = Gaps(mf)
    NPRE = 5 if heavy else 3
    base = lambda sl: 65536 if (sl % RW) >= 4 else 0
    rel = lambda sl: (sl % RW) * 16384 - base(sl)
    aregs = list(range(V_AQ, V_AQ + 4)) + (list(range(V_AG, V_AG + 4)) if heavy else [])
    pre_reads = [w_read(A_W + 4 * f, f, j, rel(0)) for f in range(NPRE) for j in range(2)]
    late = {13: [("V", 4)], 14: [("K", 0), ("K", 1)], 15: [("K", 2), ("K", 3)], 16: [("K", 4), ("K", 5)], 17: [("K", 6), ("K", 7)],
            18: [("V", 0), ("V", 1)], 19: [("V", 2), ("V", 3)]}
    bars = {}
    ramp = list(defer)
    RPS = opt("rps", 14 if heavy else 9)
    for sl in range(20):
        st = sl * NG; end = st + NG - 1
        g = st
        xl = []
        if sl + XD - 1 < 20:
            xl = [x_load(sl + XD - 1, qb) for qb in range(4)] + ["s_add_u32 %s, %s, 4096" % (s(S_XOFF), s(S_XOFF))]
        if ramp is not None:
            ramp += xl
        else:
            for x in xl[:4]: g = G.place("m", x, g + 1) + 1
            if xl: G.place("s", xl[4], g)
        cur = st
        for f in range(NPRE, NB):
            lo = st if f < 8 else st + 4 * (f - 8) + 3
            for j in range(2): cur = G.place("d", w_read(A_W + 4 * (f % 8), f, j, rel(sl)), max(lo, cur), st + 4 * f - 5)
        lastread = cur
        if sl < 19 and base(sl + 1) != base(sl):
            d = base(sl + 1) - base(sl)
            gg = lastread
            for r in aregs:
                gg = G.place("v", ("v_add_u32 %s, %d, %s" % (v(r), d, v(r))) if d > 0 else ("v_subrev_u32 %s, %d, %s" % (v(r), -d, v(r))), gg + (0 if gg > lastread else 1))
            lastread = max(lastread, gg - 6)
        b = G.place("b", "s_barrier", lastread + 7)
        need = ["x%d" % (sl + 1), "w%d" % (sl + 1)] + (["trs"] if sl == 19 else [])
        G.put(b, "s", "s_waitcnt WAITVM{%s} lgkmcnt(0)" % ",".join(need))
        bars[sl] = b
        g = b
        if ramp is not None:
            t = E(); w_slab(t, sl + RW, heavy)
            post = [x for x in t.L if not x.startswith("s_nop")]
            rampinfo = (st, b, end, post)
        elif sl + RW < 20:
            g = G.place("s", "s_add_u32 m0, %s, %d" % (s(S_M0W), (sl % RW) * 16384), b + 1)
            for d in w_dma(heavy, "w%d" % (sl + RW)): g = G.place("m", d, g + 2)
            g = G.place("s", "s_add_u32 %s, %s, %d" % (s(S_WQOFF), s(S_WQOFF), 32 * 8192), g + 1)
            if heavy: g = G.place("s", "s_add_u32 %s, %s, %d" % (s(S_WGOFF), s(S_WGOFF), 32 * 3456), g + 1)
        else:
            for which, i in late[sl]:
                g = G.place("s", "s_add_u32 m0, %s, %d" % (s(S_M0K), (L_K if which == "K" else L_V) + i * 8192), g + 1)
                g = G.place("s", "s_mov_b32 %s, %d" % (s(S_KVOFF), (i + (3 if which == "V" else 0)) * 8192), g + 1)
                for k in range(2): g = G.place("m", kv_dma(which, k, "%s%d" % (which, i)), g + 1 + k)
        assert g <= end, (sl, g - st)
        if sl < 19:
            cur = b + 1
            for f in range(NPRE):
                lo = st + 4 * (NB - 8 + f) + 3
                for j in range(2): cur = G.place("d", w_read(A_W + 4 * f, f, j, rel(sl + 1)), max(lo, cur), end + 4 * f - 4 + opt("slack", 0))
        if ramp is not None:
            st_, b_, end_, post = rampinfo
            q = [(x, st_) for x in ramp] + [(x, b_ + 1) for x in post]
            g = st_; nv = 0
            while q and nv < RPS:
                x, lo = q[0]
                k = "m" if x.startswith("buffer") else "s"
                try: g = G.place(k, x, max(g + 1, lo), end_)
                except RuntimeError: break
                q.pop(0); nv += (k == "m")
            while q and not q[0][0].startswith("buffer") and " m0," not in q[0][0]:
                G.va[g].append(q.pop(0)[0])
            ramp = [x for x, _ in q] if q else None
    WT = opt("wt", 6)
    if WT:
        k = 1
        for sl in [int(x) for x in opt("wts", "0.4.8").split(".")]:
            g = sl * NG + opt("wtg", 0)
            seq = [("s", "s_mov_b32 %s, %d" % (s(S_TMP), k * WT * 32 * 8192)), ("m", "buffer_load_dword %s, %s, %s, %s offen" % (v(V_DUMP), v(V_TC + 1), s(S_WQ, 4), s(S_TMP)))]
            if heavy:
                seq += [("s", "s_mov_b32 %s, %d" % (s(S_TMP), k * WT * 32 * 3456)),
                        ("m", "buffer_load_dword %s, %s, %s, %s offen offset:2048" % (v(V_DUMP), v(V_TC), s(S_WG, 4), s(S_TMP))),
                        ("m", "buffer_load_dword %s, %s, %s, %s offen offset:3072" % (v(V_DUMP), v(V_TC), s(S_WU, 4), s(S_TMP)))]
            for kk, x in seq: g = G.place(kk, x, g + 1)
            k += 1
    if opt("kvt", 9):
        g = opt("kvt", 9) * NG
        t0 = v(V_TC)
        seq = [("v", "v_min_u32 %s, 15, %s" % (t0, v(L))), ("v", "v_lshlrev_b32 %s, 7, %s" % (t0, t0)),
               ("s", "s_lshl2_add_u32 %s, %s, %s" % (s(S_TMP), s(S_QT), s(S_WAVE))), ("s", "s_lshl_b32 %s, %s, 11" % (s(S_TMP), s(S_TMP))),
               ("m", "buffer_load_dword %s, %s, %s, %s offen" % (v(V_DUMP), t0, s(S_K, 4), s(S_TMP))),
               ("s", "s_add_u32 %s, %s, %d" % (s(S_TMP), s(S_TMP), 3 * 8192)),
               ("m", "buffer_load_dword %s, %s, %s, %s offen" % (v(V_DUMP), t0, s(S_V, 4), s(S_TMP)))]
        for kk, x in seq: g = G.place(kk, x, g + 1)
    TS = opt("ts", 13); TPS = opt("tps", 5)
    for i in range(10):
        sl = TS + i // TPS; st = sl * NG
        g = st + (9 if sl + XD - 1 < 20 else 0) if i % TPS == 0 else gprev
        t0 = v(V_T + 12 + i)
        seq = [
               ("s", "s_add_u32 m0, %s, %d" % (s(S_TRM), i * 1024)),
               ("m", "buffer_load_dwordx4 %s, %s, %s offen lds ;#trs" % (t0, s(S_T, 4), s(S_TRS)))]
        if heavy:
            for k, x in seq: g = G.place(k, x, g + (1 if k != "v" else 0), bars[sl] - 1)
            gprev = g + 1
        else:
            for k, x in seq: G.va[bars[sl] - 1].append(x if k != "m" else "s_nop 0\n" + x)
            gprev = 0
    trpost = []
    g = bars[19] + 1
    for i in range(10):
        t0 = v(V_T + 12 + i)
        pre = ["v_add_u32 %s, %d, %s" % (t0, i, v(V_TRA + 2)), "v_xor_b32 %s, %s, %s" % (t0, t0, v(V_TRA + 1)), "v_lshl_add_u32 %s, %s, 5, %s" % (t0, t0, v(V_TRA))]
        if i == 0: pre = ["v_mov_b32 %s, %s" % (v(V_TRA + 2), s(S_TRU))] + pre
        gg = bars[17] + 1 if i == 0 else gv
        for x in pre: gg = G.place("v", x, gg, bars[19] - 1, force=True)
        gv = gg
        for j in range(2):
            x = "ds_read_b64_tr_b16 %s, %s offset:%d" % (a(A_TR + 4 * i + 2 * j, 2), t0, j * 16 * 1280)
            try: g = G.place("d", x, g) + 1
            except RuntimeError: trpost.append(x); g = G.n()
    trst = []
    adds = {4: 4096, 5: NSLAB * 5120 - 4096, 9: 4096}
    for i in range(10):
        if i in adds: trst.append("s_add_u32 %s, %s, %d" % (s(S_TRD), s(S_TRD), adds[i]))
        trst.append("buffer_store_dwordx4 %s, %s, %s, %s offen offset:%d%s ;#trd" % (a(A_TR + 4 * i, 4), v(V_L16), s(S_WF, 4), s(S_TRD), ((i % 5) % 4) * 1024, STFL))
    auto_lgkm(G)
    if VERBOSE: print("proj", tag, G.pattern())
    e.ext(pre_reads)
    e("s_waitcnt WAITVM{x0} lgkmcnt(0)")
    stamp(e, 3)
    nm = 0
    for x in G.lines():
        if x.startswith("v_mfma"):
            if STAMPS and nm % (4 * NG) == 0 and nm: stamp(e, 18 + nm // (4 * NG))
            nm += 1
        e(x)
    e.ext(trpost)
    stamp(e, 4)
    U = T
    CQ = T + 8
    c = math.log2(math.e) / math.sqrt(128.0)
    e("v_mov_b32 %s, %s\nv_mov_b32 %s, %s" % (v(CQ), f2u(c), v(CQ + 1), f2u(c)))
    e("s_mov_b32 %s, %d" % (s(S_KVOFF), 8 * 8192))
    if not heavy: e("s_nop 4")
    def qconv(sl):
        for qb in range(4):
            for b in range(2):
                g0 = V_ACCQ + ((2 * sl + b) * 4 + qb) * 4
                for h in range(2): e("v_pk_mul_f32 %s, %s, %s" % (v(g0 + 2 * h, 2), v(g0 + 2 * h, 2), v(CQ, 2)))
            d0 = V_Q + (sl * 4 + qb) * 4
            for b in range(2):
                g0 = V_ACCQ + ((2 * sl + b) * 4 + qb) * 4
                e("v_cvt_pk_bf16_f32 %s, %s, %s" % (v(d0 + 2 * b), v(g0), v(g0 + 1)))
                e("v_cvt_pk_bf16_f32 %s, %s, %s" % (v(d0 + 2 * b + 1), v(g0 + 2), v(g0 + 3)))
    if heavy:
        for fb in range(4):
            for qb in range(4):
                g0 = V_ACCG + (fb * 4 + qb) * 4
                u0 = U + 4 * (qb & 1)
                for r in range(4): e("v_max_f32 %s, 0, %s" % (v(g0 + r), v(g0 + r)))
                for r in range(4): e("v_accvgpr_read_b32 %s, %s" % (v(u0 + r), a(A_ACCU + (fb * 4 + qb) * 4 + r)))
                for h in range(2): e("v_pk_mul_f32 %s, %s, %s" % (v(g0 + 2 * h, 2), v(g0 + 2 * h, 2), v(u0 + 2 * h, 2)))
                d0 = V_ACCG + ((fb & ~1) * 4 + qb) * 4 + 2 * (fb & 1)
                e("v_cvt_pk_bf16_f32 %s, %s, %s" % (v(d0), v(g0), v(g0 + 1)))
                e("v_cvt_pk_bf16_f32 %s, %s, %s" % (v(d0 + 1), v(g0 + 2), v(g0 + 3)))
                if fb & 1:
                    if qb == 0: e("s_lshl_b32 %s, %s, 13\ns_add_u32 %s, %s, %d" % (s(S_TMP), s(S_FS), s(S_TMP), s(S_TMP), (128 + (fb >> 1)) * 4096))
                    e("buffer_store_dwordx4 %s, %s, %s, %s offen offset:%d%s" % (v(d0 - 2, 4), v(V_L16), s(S_AF, 4), s(S_TMP), 1024 * qb, STFL))
    e("s_waitcnt lgkmcnt(0)")
    for sl in range(4):
        qconv(sl)
        k = (len(trst) + 3 - sl) // (4 - sl)
        e.ext(trst[:k]); trst = trst[k:]
    e("s_waitcnt WAITVM{K0,K1,K2,K3}")
    e0.ext(resolve_vm(e.L))

def kv_preload(e):
    e("s_mov_b32 %s, 0" % s(S_KVOFF))
    for i in range(8):
        e("s_add_u32 m0, %s, %d\ns_nop 0" % (s(S_M0K), L_K + i * 8192))
        e(kv_dma("K", 0)); e(kv_dma("K", 1))
        if i >= 3:
            e("s_add_u32 m0, %s, %d\ns_nop 0" % (s(S_M0K), L_V + (i - 3) * 8192))
            e(kv_dma("V", 0)); e(kv_dma("V", 1))
        e("s_add_u32 %s, %s, 8192" % (s(S_KVOFF), s(S_KVOFF)))
    e("s_waitcnt vmcnt(0)")

def Sreg(buf, qb, kb): return V_S + buf * 32 + qb * 8 + kb * 4
def Preg(buf, qb): return V_P + buf * 16 + qb * 4

def qk_mfmas(buf, czero=False):
    out = []
    for kb in range(2):
        for qb in range(4):
            for sl in range(4):
                d = v(Sreg(buf, qb, kb), 4)
                c = d if sl else ("0" if czero else v(V_NEGM + 4 * qb, 4))
                out.append("%s %s, %s, %s, %s" % (MF, d, a(A_KF + (kb * 4 + sl) * 4, 4), v(V_Q + (sl * 4 + qb) * 4, 4), c))
    return out

def pv_mfmas(buf):
    out = []
    for qb in range(4):
        out.append("%s %s, %s, %s, %s" % (MF, v(V_L + 4 * qb, 4), a(A_ONE, 4), v(Preg(buf, qb), 4), v(V_L + 4 * qb, 4)))
    for db in range(8):
        for qb in range(4):
            o = a(A_O + (db * 4 + qb) * 4, 4)
            out.append("%s %s, %s, %s, %s" % (MF, o, a(A_VF + db * 4, 4), v(Preg(buf, qb), 4), o))
    return out

def k_read(kb, sl, off): return "ds_read_b128 %s, %s offset:%d" % (a(A_KF + (kb * 4 + sl) * 4, 4), v(V_KA + sl), off + kb * 4096)
def v_read(db, j, off): return "ds_read_b64_tr_b16 %s, %s offset:%d" % (a(A_VF + db * 4 + 2 * j, 2), v(V_VA + db), off + j * 4096)

def softmax_ops(buf):
    ex = []; cv = []
    for qb in range(4):
        for kb in range(2):
            for r in range(4):
                x = v(Sreg(buf, qb, kb) + r)
                ex.append("v_exp_f32 %s, %s" % (x, x))
            for h in range(2):
                b = Sreg(buf, qb, kb) + 2 * h
                cv.append("v_cvt_pk_bf16_f32 %s, %s, %s" % (v(Preg(buf, qb) + kb * 2 + h), v(b), v(b + 1)))
    return ex, cv

def gen_attention(e):
    T = V_T
    e("ATT_START:")
    stamp(e, 5)
    e("s_barrier")
    for kb in range(2):
        for sl in range(4): e(k_read(kb, sl, 0))
    z = ["v_mov_b32 %s, 0x3f803f80" % v(T)] + ["v_accvgpr_write_b32 %s, %s" % (a(A_ONE + r), v(T)) for r in range(4)] + \
        ["v_accvgpr_write_b32 %s, 0" % a(A_O + r) for r in range(128)] + ["v_mov_b32 %s, 0" % v(V_L + r) for r in range(16)]
    e.ext(z[:24]); z = z[24:]
    e("s_waitcnt lgkmcnt(0)")
    G = Gaps(qk_mfmas(0, czero=True))
    for i in range(4): G.place("d", k_read(0, i, 8192), 16 + i)
    g = 0
    while z:
        try: g = G.place("v", z[0], g); z.pop(0)
        except RuntimeError: break
    e.ext(G.lines())
    for i in range(4): e(k_read(1, i, 8192))
    e.ext(z[:8]); z = z[8:]
    for qb in range(4):
        b = Sreg(0, qb, 0)
        e("v_max3_f32 %s, %s, %s, %s" % (v(T + qb), v(b), v(b + 1), v(b + 2)))
        e("v_max3_f32 %s, %s, %s, %s" % (v(T + qb), v(T + qb), v(b + 3), v(b + 4)))
        e("v_max3_f32 %s, %s, %s, %s" % (v(T + qb), v(T + qb), v(b + 5), v(b + 6)))
        e("v_max3_f32 %s, %s, %s, %s" % (v(T + qb), v(T + qb), v(b + 7), v(V_NEGM + 4 * qb)))
    for sw in ("v_permlane32_swap_b32", "v_permlane16_swap_b32"):
        for qb in range(4): e("v_mov_b32 %s, %s" % (v(T + 4 + qb), v(T + qb)))
        e.ext(z[:2]); z = z[2:]
        for qb in range(4): e("%s %s, %s" % (sw, v(T + qb), v(T + 4 + qb)))
        for qb in range(4): e("v_max_f32 %s, %s, %s" % (v(T + qb), v(T + qb), v(T + 4 + qb)))
    for qb in range(4):
        for r in range(4): e("v_sub_f32 %s, 0, %s" % (v(V_NEGM + 4 * qb + r), v(T + qb)))
    for qb in range(4):
        for r in range(8): e("v_sub_f32 %s, %s, %s" % (v(Sreg(0, qb, 0) + r), v(Sreg(0, qb, 0) + r), v(T + qb)))
    e.ext(z)
    e("s_waitcnt lgkmcnt(0)")

    def build(steps, loop, pend):
        mf = []; starts = []
        for sp in steps:
            starts.append(len(mf))
            if sp["qk"]: mf += qk_mfmas(1 - sp["buf"])
            if sp["pv"]: mf += pv_mfmas(1 - sp["buf"])
        G = Gaps(mf)
        for sp, st in zip(steps, starts):
            nq = 32 if sp["qk"] else 0
            npv = 36 if sp["pv"] else 0
            end = st + nq + npv - 1
            full = sp["qk"] and sp["pv"]
            cur = st; g = st; c2 = st
            if sp.get("bar") is not None:
                b = G.place("b", "s_barrier", st)
                G.put(b, "s", "s_waitcnt vmcnt(%d) lgkmcnt(0)" % sp["bar"])
                cur = b + 1
            if full:
                for i in range(16):
                    lo = st + 4 * (i // 2) + (i % 2)
                    cur = G.place("d", v_read(i // 2, i % 2, sp["voff"]), max(cur, lo)) + 1
            if sp.get("vnext") is not None:
                c2 = st + nq + 4 + 3
                for i in range(16):
                    lo = min(st + nq + 4 + 4 * (i // 2) + 3, end)
                    c2 = G.place("d", v_read(i // 2, i % 2, sp["vnext"]), min(max(c2, lo), end), end, force=True) + 1
            if sp.get("koff") is not None:
                if full:
                    c2 = st + 32
                    for i in range(8):
                        c2 = G.place("d", k_read(i // 4, i % 4, sp["koff"]), max(c2, st + 32 + 3 * i)) + 1
                else:
                    c2 = st + 16
                    for i in range(4): c2 = G.place("d", k_read(0, i, sp["koff"]), c2) + 1
                    for i in range(4): G.put(end, "d", k_read(1, i, sp["koff"]))
            if sp.get("dma"):
                g = st + (33 if full else 2)
                for wi, which in enumerate(sp["dma"]):
                    g = G.place("s", "s_add_u32 m0, %s, %s" % (s(S_M0K), sp["m0" + which]), g)
                    for i in range(2): g = G.place("m", kv_dma(which, i), g + 2)
                    g += 1
                g = G.place("s", "s_add_u32 %s, %s, 8192" % (s(S_KVOFF), s(S_KVOFF)), g)
            marks = {"dma": g, "kread": c2 if sp.get("koff") is not None else st, "vread": cur}
            for (after, chain) in sp.get("misc", []):
                gg = marks[after] if isinstance(after, str) else st + after
                for (kind, text) in chain:
                    gg = G.place(kind, text, gg + (1 if kind == "s" else 0), end)
                marks["last"] = max(marks.get("last", 0), gg)
            if sp["sm"]:
                ex, cv = softmax_ops(sp["buf"])
                n = end - st + 1
                if full:
                    eg = []; g = st
                    for i, x in enumerate(ex):
                        tgt = st + (i * (n - 3)) // 32
                        g = G.place("e", x, max(g, tgt), end); eg.append(g)
                    g = st
                    for i, x in enumerate(cv): g = G.place("v", x, max(g, eg[2 * i + 1] + 1), end)
                else:
                    for i, x in enumerate(ex): G.put(st + (i * (n - 1)) // 32, "e", x)
                    for i, x in enumerate(cv): G.put(min(st + ((2 * i + 1) * (n - 1)) // 32 + 1, end), "v", x)
        pre, out = auto_lgkm(G, pend, loop=loop)
        return G, pre, out

    G, pre, pend = build([dict(buf=0, qk=True, pv=False, sm=True, koff=16384)], False, [])
    e.ext(G.lines())
    for sl in range(4): e("v_add_u32 %s, 16384, %s" % (v(V_KA + sl), v(V_KA + sl)))
    e("s_mov_b32 %s, 16384\ns_mov_b32 %s, 49152" % (s(S_TOG), s(S_TMP + 2)))
    e("s_mov_b32 %s, %d\ns_mov_b32 %s, %d" % (s(S_TMP + 3), 1 * 8192, s(S_TMP + 4), 6 * 8192 + L_V))
    e("s_waitcnt vmcnt(0) lgkmcnt(0)\ns_barrier")
    for which, m0 in (("K", L_K), ("V", L_V + 5 * 8192)):
        e("s_add_u32 m0, %s, %d\ns_nop 0" % (s(S_M0K), m0))
        e(kv_dma(which, 0)); e(kv_dma(which, 1))
    e("s_add_u32 %s, %s, 8192" % (s(S_KVOFF), s(S_KVOFF)))
    e("s_cmp_lg_u32 %s, 0\ns_cbranch_scc1 NOSIG2" % s(S_WAVE))
    set_flag(e, 2)
    e("NOSIG2:")
    def adv(r, base):
        return [("s", "s_add_u32 %s, %s, 8192" % (s(r), s(r))), ("s", "s_and_b32 %s, %s, 0xffff" % (s(r), s(r)))] + \
               ([("s", "s_or_b32 %s, %s, %d" % (s(r), s(r), base))] if base else [])
    miscA = [("kread", [("v", "v_xor_b32 %s, %s, %s" % (v(V_KA + i), s(S_TMP + 2), v(V_KA + i))) for i in range(4)]),
             ("dma", adv(S_TMP + 3, 0) + adv(S_TMP + 4, L_V))]
    miscB = [(34, [("v", "v_xor_b32 %s, %s, %s" % (v(V_VA + i), s(S_TOG), v(V_VA + i))) for i in range(8)] +
                  [("s", "s_xor_b32 %s, %s, 32768" % (s(S_TOG), s(S_TOG))), ("s", "s_xor_b32 %s, %s, 32768" % (s(S_TMP + 2), s(S_TMP + 2)))]),
             ("dma", adv(S_TMP + 3, 0) + adv(S_TMP + 4, L_V)),
             ("last", [("s", "s_cmp_lt_u32 %s, %d" % (s(S_KVOFF), (63 + 8) * 8192))])]
    G, pre, pend = build([dict(buf=1, qk=True, pv=True, sm=True, koff=8192, voff=0, dma="KV", m0K=s(S_TMP + 3), m0V=s(S_TMP + 4), misc=miscA),
                          dict(buf=0, qk=True, pv=True, sm=True, koff=0, voff=8192, bar=16, dma="KV", m0K=s(S_TMP + 3), m0V=s(S_TMP + 4), misc=miscB)], True, [])
    if VERBOSE: print("loop", G.pattern())
    stamp(e, 6)
    e(".p2align 6\nATT_LOOP:")
    e.ext(G.lines())
    e("s_cbranch_scc1 ATT_LOOP")
    stamp(e, 7)
    for i in range(16): e(v_read(i // 2, i % 2, 0))
    e("s_waitcnt vmcnt(0) lgkmcnt(0)\ns_barrier")
    e("s_cmp_lg_u32 %s, 0\ns_cbranch_scc1 NOPOLL2" % s(S_WAVE))
    e(poll_load(True))
    e("NOPOLL2:")
    G, pre, pend = build([dict(buf=1, qk=False, pv=True, sm=True, vnext=8192)], False, [])
    e.ext(G.lines())
    e("s_waitcnt lgkmcnt(0)\ns_nop 1")
    e.ext(pv_mfmas(1))

NST, INFL = 4, 3
K_SA, K_SW, K_SX, K_SO = S_WQ, S_WG, S_WU, S_T
K_RND, K_OA, K_OW, K_OW2, K_CNT, K_ROT, K_FLG = S_XOFF, S_WQOFF, S_WGOFF, S_M0W, S_KVOFF, S_TOG, S_TRS
KV_A = 3; KV_XO = 7; KV_X = 8
K_ACC = [64, 144]
def kstage(st, k):
    r = 128 + 4 * (st * 9 + k)
    return a(r, 4) if r < 256 else v(224 + (r - 256), 4)
def k_addr_down(r):
    t = S_TMP
    return ["s_lshl2_add_u32 %s, %s, %s" % (s(t), s(K_RND), s(S_WAVE)), "s_add_u32 %s, %s, %d" % (s(t), s(t), 128 + 28 * (r // 7)),
            "s_add_u32 %s, %s, 1" % (s(K_RND), s(K_RND)), "s_cmp_eq_u32 %s, 7" % s(K_RND), "s_cselect_b32 %s, 0, %s" % (s(K_RND), s(K_RND)),
            "s_lshl_b32 %s, %s, 12" % (s(K_OA), s(t)), "s_mul_i32 %s, %s, 5120" % (s(K_OW), s(t)), "s_add_u32 %s, %s, 4096" % (s(K_OW2), s(K_OW))]
def k_addr_o():
    t = S_TMP
    return ["s_add_u32 %s, %s, %s" % (s(t), s(K_CNT), s(K_ROT)), "s_and_b32 %s, %s, 7" % (s(t), s(t)),
            "s_andn2_b32 %s, %s, 7" % (s(t + 1), s(K_CNT)), "s_or_b32 %s, %s, %s" % (s(t), s(t), s(t + 1)),
            "s_lshl2_add_u32 %s, %s, %s" % (s(t), s(t), s(S_WAVE)), "s_add_u32 %s, %s, 1" % (s(K_CNT), s(K_CNT)),
            "s_lshl_b32 %s, %s, 12" % (s(K_OA), s(t)), "s_mul_i32 %s, %s, 5120" % (s(K_OW), s(t)), "s_add_u32 %s, %s, 4096" % (s(K_OW2), s(K_OW))]
def k_loads(st, tag=""):
    l = []
    for k in range(5):
        l.append("buffer_load_dwordx4 %s, %s, %s, %s offen offset:%d%s ;#%s" % (kstage(st, 4 + k), v(V_L16), s(K_SW, 4), s(K_OW if k < 4 else K_OW2), (k % 4) * 1024, LDFL, tag))
    for p in range(4):
        l.append("buffer_load_dwordx4 %s, %s, %s, %s offen%s ;#%s" % (kstage(st, p), v(KV_A + p), s(K_SA, 4), s(K_OA), LDFL, tag))
    return l

def gen_tail_setup(e):
    L = V_LANE; t = S_TMP
    RT, CT = t + 4, t + 5
    e("s_bfe_u32 %s, s2, 0x20001\ns_lshl_b32 %s, %s, 3\ns_lshr_b32 %s, s2, 5\ns_add_u32 %s, %s, %s" % (s(RT), s(RT), s(RT), s(t), s(RT), s(RT), s(t)))
    e("s_and_b32 %s, s2, 1\ns_lshl_b32 %s, %s, 2\ns_bfe_u32 %s, s2, 0x20003\ns_add_u32 %s, %s, %s" % (s(CT), s(CT), s(CT), s(t + 1), s(CT), s(CT), s(t + 1)))
    e("s_lshl1_add_u32 %s, %s, %s" % (s(K_ROT), s(t + 1), s(t)))
    e("s_sub_u32 %s, %s, 7\ns_cselect_b32 %s, %s, %s" % (s(K_RND), s(K_ROT), s(K_RND), s(K_ROT), s(K_RND)))
    e("s_lshr_b32 %s, %s, 2\ns_lshl_b32 %s, %s, 7" % (s(K_FLG), s(RT), s(K_FLG), s(K_FLG)))
    e("s_lshl_b32 %s, %s, 10\nv_add_u32 %s, %s, %s" % (s(t), s(S_WAVE), v(KV_A), s(t), v(V_L16)))
    for p in range(1, 4): e("v_xor_b32 %s, %d, %s" % (v(KV_A + p), p * 1024, v(KV_A)))
    e("v_and_b32 %s, 15, %s\nv_mul_u32_u24 %s, 1280, %s\nv_lshrrev_b32 %s, 4, %s\nv_lshl_add_u32 %s, %s, 3, %s" % (v(KV_XO), v(L), v(KV_XO), v(KV_XO), v(KV_X), v(L), v(KV_XO), v(KV_X), v(KV_XO)))
    e("s_mul_i32 %s, %s, %d" % (s(t), s(RT), NSLAB * 4096))
    srd(e, K_SA, ptr(11), s(t), NSLAB * 4096)
    e("s_mul_i32 %s, %s, %d\ns_add_u32 %s, %s, %d" % (s(t), s(CT), NSLAB * 5120, s(t), s(t), WF_OFF))
    srd(e, K_SW, ptr(11), s(t), NSLAB * 5120)
    e("s_lshl_b32 %s, %s, 2\ns_add_u32 %s, %s, %s\ns_mul_i32 %s, %s, %d\ns_mul_i32 %s, %s, 160\ns_add_u32 %s, %s, %s" % (
        s(t), s(RT), s(t), s(t), s(S_WAVE), s(t), s(t), 16 * 1280, s(t + 1), s(CT), s(t), s(t), s(t + 1)))
    srd(e, K_SX, ptr(0), s(t), 15 * 1280 + 160)
    srd(e, K_SO, ptr(9), s(t), 15 * 1280 + 160)

def gen_att_epilogue(e):
    T = V_T
    stamp(e, 8)
    gen_tail_setup(e)
    e("s_cmp_lg_u32 %s, 0\ns_waitcnt vmcnt(0)\ns_cbranch_scc1 SPUN_EARLY" % s(S_WAVE))
    poll_spin(e, True, None, 2, "EARLY")
    e("s_barrier")
    e.ext(k_addr_down(0)); e.ext(k_loads(0))
    Z = V_P; C = V_P + 4
    for qb in range(4): e("v_rcp_f32 %s, %s" % (v(T + 2 * qb), v(V_L + 4 * qb)))
    e("v_max3_f32 %s, %s, %s, %s" % (v(T + 8), v(V_L), v(V_L + 4), v(V_L + 8)))
    e("v_max_f32 %s, %s, %s" % (v(T + 8), v(T + 8), v(V_L + 12)))
    for qb in range(4): e("v_mov_b32 %s, %s" % (v(T + 2 * qb + 1), v(T + 2 * qb)))
    e("v_mul_f32 %s, %s, %s" % (v(T + 8), f2u(2.0 ** 64), v(T + 8)))
    e("v_mul_f32 %s, 0, %s" % (v(T + 8), v(T + 8)))
    for qb in range(4): e("v_fma_f32 %s, %s, 0, %s" % (v(T + 8), v(V_L + 4 * qb), v(T + 8)))
    for r in range(4): e("v_mov_b32 %s, 0" % v(Z + r))
    e("s_lshl_b32 %s, %s, 14" % (s(S_TMP + 2), s(S_HEAD)))
    W = T + 12
    late = k_addr_down(1) + k_loads(1) + k_addr_down(2) + k_loads(2)
    NEARLY = opt("eld", 0)
    for sl in range(4):
        for qb in range(4):
            d0 = V_S + (sl * 4 + qb) * 4
            for b in range(2):
                for r in range(4): e("v_accvgpr_read_b32 %s, %s" % (v(W + 4 * b + r), a(A_O + ((2 * sl + b) * 4 + qb) * 4 + r)))
            for h in range(4): e("v_pk_mul_f32 %s, %s, %s" % (v(W + 2 * h, 2), v(W + 2 * h, 2), v(T + 2 * qb, 2)))
            for h in range(4): e("v_cvt_pk_bf16_f32 %s, %s, %s" % (v(d0 + h), v(W + 2 * h), v(W + 2 * h + 1)))
            e("buffer_store_dwordx4 %s, %s, %s, %s offen offset:%d%s" % (v(d0, 4), v(V_L16), s(S_AF, 4), s(S_TMP + 2), 1024 * qb, STFL))
            e("s_add_u32 %s, %s, 4096" % (s(S_TMP + 2), s(S_TMP + 2)) if qb == 3 else "s_nop 0")
            e("%s %s, %s, %s, %s" % (MF, v(C, 4), v(Z, 4), v(d0, 4), "0" if sl + qb == 0 else v(C, 4)))
    e.ext(late)
    e("v_cmp_u_f32 vcc, %s, %s" % (v(T + 8), v(C)))
    e("s_cmp_lg_u64 vcc, 0\ns_cselect_b32 %s, 1, 0" % s(S_TMP))
    e("v_mov_b32 %s, %s" % (v(W), s(S_TMP)))
    e("s_lshl_b32 %s, %s, 2\ns_add_u32 %s, %s, %d" % (s(S_TMP + 1), s(S_WAVE), s(S_TMP + 1), s(S_TMP + 1), L_MISC))
    e("v_mov_b32 %s, %s\nv_mov_b32 %s, %d" % (v(W + 1), s(S_TMP + 1), v(W + 2), L_MISC))
    e("ds_write_b32 %s, %s" % (v(W + 1), v(W)))
    stamp(e, 9)
    e("s_waitcnt lgkmcnt(0)\ns_barrier")
    e("ds_read_b128 %s, %s\ns_waitcnt lgkmcnt(0)" % (v(W + 4, 4), v(W + 2)))
    e("v_or3_b32 %s, %s, %s, %s\nv_or_b32 %s, %s, %s\ns_nop 0" % (v(W + 4), v(W + 4), v(W + 5), v(W + 6), v(W + 4), v(W + 4), v(W + 7)))
    e("v_readfirstlane_b32 %s, %s" % (s(S_TMP), v(W + 4)))
    e("s_nop 3\ns_andn2_b32 %s, %s, %s" % (s(S_TMP), s(S_TMP), s(S_RETRY)))
    e("s_cbranch_scc1 ATT_RETRY")

def gen_sig3(e):
    e("s_barrier")
    e("s_cmp_lg_u32 %s, 0\ns_cbranch_scc1 NOSIG3" % s(S_WAVE))
    set_flag(e, 3)
    e("s_cmp_lg_u32 s2, 0\ns_cbranch_scc1 NOSIG3")
    e("s_add_u32 %s, %s, 1\ns_mov_b64 exec, 1\nv_mov_b32 %s, %s\ns_movk_i32 %s, 4096" % (s(S_TMP + 7), s(S_EPOCH), v(V_PL + 1), s(S_TMP + 7), s(S_TMP + 6)))
    e("buffer_store_dword %s, off, %s, %s sc1\ns_mov_b64 exec, -1" % (v(V_PL + 1), s(S_FL, 4), s(S_TMP + 6)))
    e("NOSIG3:")
    stamp(e, 10)

def tail_mfmas(ph, st, first=False):
    mf = []
    for nb in range(5):
        for p in range(4):
            d = v(K_ACC[ph] + (nb * 4 + p) * 4, 4)
            mf.append("%s %s, %s, %s, %s" % (MF, d, kstage(st, 4 + nb), kstage(st, p), "0" if first else d))
    return mf

def tail_round(G, b, addr, loads, wait, extra=()):
    for i, x in enumerate(addr): G.put(b + i // 3, "s", x)
    g = b + 3
    for x in loads: g = G.place("m", x, g) + 1
    for k, x in extra: g = G.place(k, x, g) + 1
    assert g <= b + 19, g - b
    G.put(b + 19, "s", wait)

def reduce_write(e, m, VT):
    for p in range(1, 4):
        for nb in range(5):
            e("ds_write_b128 %s, %s offset:%d" % (v(VT + p), v(K_ACC[m] + (nb * 4 + p) * 4, 4), (m * 5 + nb) * 1024))
def reduce_read(e, m, VT):
    for nb in range(5):
        for i in range(3):
            e("ds_read_b128 %s, %s offset:%d" % (v(K_ACC[m] + (nb * 4 + i + 1) * 4, 4), v(VT), i * 10240 + (m * 5 + nb) * 1024))
def reduce_add(e, m, nb):
    b = K_ACC[m] + nb * 16
    e("s_waitcnt lgkmcnt(%d)" % (3 * (4 - nb)))
    for h in range(2):
        e("v_pk_add_f32 %s, %s, %s" % (v(b + 2 * h, 2), v(b + 2 * h, 2), v(b + 4 + 2 * h, 2)))
        e("v_pk_add_f32 %s, %s, %s" % (v(b + 8 + 2 * h, 2), v(b + 8 + 2 * h, 2), v(b + 12 + 2 * h, 2)))
    for h in range(2):
        e("v_pk_add_f32 %s, %s, %s" % (v(b + 2 * h, 2), v(b + 2 * h, 2), v(b + 8 + 2 * h, 2)))

def gen_tail(e):
    VT = V_T; t = S_TMP
    W18 = "s_waitcnt vmcnt(%d)" % (9 * (INFL - 1))
    for p in range(1, 4):
        e("s_xor_b32 %s, %s, %d\ns_mul_i32 %s, %s, 30720\ns_add_u32 %s, %s, %d" % (s(t), s(S_WAVE), p, s(t), s(t), s(t), s(t), (p - 1) * 10240))
        e("v_add_u32 %s, %s, %s" % (v(VT + p), s(t), v(V_L16)))
    e("s_mul_i32 %s, %s, 30720\nv_add_u32 %s, %s, %s" % (s(t), s(S_WAVE), v(VT), s(t), v(V_L16)))
    e("v_and_b32 %s, 31, %s\nv_lshlrev_b32 %s, 2, %s" % (v(V_PL + 3), v(V_LANE), v(V_PL + 3), v(V_PL + 3)))
    e("s_mov_b32 %s, 0" % s(K_CNT))
    PR = opt("pollr", 8)
    def rounds(r0, r1):
        mf = []
        for r in range(r0, r1): mf += tail_mfmas(0, r % NST, first=(r == 0))
        G = Gaps(mf)
        for r in range(r0, r1):
            lr = r + INFL
            tail_round(G, (r - r0) * 20, k_addr_down(lr) if lr < 14 else k_addr_o(), k_loads(lr % NST), W18)
        return G.lines()
    e("s_waitcnt vmcnt(34)")
    e.ext(rounds(0, 1))
    gen_sig3(e)
    e.ext(rounds(1, PR + 1))
    e("s_cmp_lg_u32 %s, 0\ns_cbranch_scc1 NOPOLL3" % s(S_WAVE))
    e(poll_load(False, s(K_FLG)))
    e("NOPOLL3:")
    e.ext(rounds(PR + 1, 11))
    stamp(e, 11)
    e("s_cmp_lg_u32 %s, 0\ns_cbranch_scc1 SPUN_O" % s(S_WAVE))
    if PR > 8: e("s_waitcnt vmcnt(%d)" % (9 * (10 - PR)))
    poll_spin(e, False, s(K_FLG), 3, "O")
    e("s_barrier")
    stamp(e, 12)
    e.ext(rounds(11, 14))
    for nb in range(5):
        e("buffer_load_dwordx2 %s, %s, %s, 0 offen offset:%d" % (v(KV_X + 2 * nb, 2), v(KV_XO), s(K_SX, 4), nb * 32))
    for r in range(K_ACC[1], K_ACC[1] + 80): e("v_mov_b32 %s, 0" % v(r))
    reduce_write(e, 0, VT)
    e("s_waitcnt lgkmcnt(0)\ns_barrier")
    reduce_read(e, 0, VT)
    stamp(e, 13)
    def obody(first):
        mf = []
        for st in range(NST): mf += tail_mfmas(1, (st + 14) % NST)
        G = Gaps(mf)
        for st in range(NST):
            ex = [("s", "s_cmp_lt_u32 %s, %d" % (s(K_CNT), 32 + INFL))] if st == NST - 1 else []
            tail_round(G, st * 20, k_addr_o(), k_loads((st + 14 + INFL) % NST), W18, ex)
        return G.lines()
    e(".p2align 6\nTAIL_O:")
    e.ext(obody(False))
    e("s_cbranch_scc1 TAIL_O")
    stamp(e, 14)
    e("s_waitcnt lgkmcnt(0)\ns_nop 5")
    reduce_write(e, 1, VT)
    for nb in range(5):
        b = K_ACC[0] + nb * 16
        for h in range(2):
            e("v_pk_add_f32 %s, %s, %s" % (v(b + 2 * h, 2), v(b + 2 * h, 2), v(b + 4 + 2 * h, 2)))
            e("v_pk_add_f32 %s, %s, %s" % (v(b + 8 + 2 * h, 2), v(b + 8 + 2 * h, 2), v(b + 12 + 2 * h, 2)))
        for h in range(2):
            e("v_pk_add_f32 %s, %s, %s" % (v(b + 2 * h, 2), v(b + 2 * h, 2), v(b + 8 + 2 * h, 2)))
    e("s_waitcnt lgkmcnt(0)\ns_barrier")
    reduce_read(e, 1, VT)
    for nb in range(5):
        d = K_ACC[0] + nb * 16
        for r in range(4): e("v_mul_f32 %s, %s, %s" % (v(d + 4 + r), f2u(-math.log2(math.e)), v(d + r)))
        for r in range(4): e("v_exp_f32 %s, %s" % (v(d + 4 + r), v(d + 4 + r)))
        for h in range(2):
            e("v_lshlrev_b32 %s, 16, %s" % (v(d + 8 + 2 * h), v(KV_X + 2 * nb + h)))
            e("v_and_b32 %s, 0xffff0000, %s" % (v(d + 9 + 2 * h), v(KV_X + 2 * nb + h)))
        for r in range(4): e("v_add_f32 %s, 1.0, %s" % (v(d + 4 + r), v(d + 4 + r)))
        for r in range(4): e("v_rcp_f32 %s, %s" % (v(d + 4 + r), v(d + 4 + r)))
        e("s_nop 0")
        for r in range(4): e("v_mul_f32 %s, %s, %s" % (v(d + 4 + r), v(d + 4 + r), v(d + r)))
    for nb in range(5):
        d = K_ACC[0] + nb * 16; sx = K_ACC[1] + nb * 16
        reduce_add(e, 1, nb)
        for r in range(4): e("v_fma_f32 %s, %s, %s, %s" % (v(d + 8 + r), v(sx + r), v(d + 4 + r), v(d + 8 + r)))
        for h in range(2): e("v_cvt_pk_bf16_f32 %s, %s, %s" % (v(d + 12 + h), v(d + 8 + 2 * h), v(d + 9 + 2 * h)))
        e("buffer_store_dwordx2 %s, %s, %s, 0 offen offset:%d" % (v(d + 12, 2), v(KV_XO), s(K_SO, 4), nb * 32))
    stamp(e, 15)
    if STAMPS: e("s_waitcnt vmcnt(0)")
    stamp(e, 16)
    stamp_fin(e)

def gen_kv_addr(e):
    T = V_T + 12; L = V_LANE
    e("v_and_b32 %s, 15, %s\nv_lshrrev_b32 %s, 4, %s\nv_xor_b32 %s, %s, %s" % (v(T), v(L), v(T + 1), v(L), v(T + 1), v(T + 1), v(T)))
    e("v_lshlrev_b32 %s, 8, %s\nv_lshl_add_u32 %s, %s, 4, %s" % (v(T), v(T), v(T), v(T + 1), v(T)))
    for sl in range(4): e("v_xor_b32 %s, %d, %s" % (v(V_KA + sl), sl * 64, v(T)))
    e("v_lshrrev_b32 %s, 2, %s\nv_and_b32 %s, 7, %s\nv_lshlrev_b32 %s, 8, %s\nv_lshl_add_u32 %s, %s, 5, %s" % (v(T), v(L), v(T + 1), v(T), v(T), v(T), v(T), v(T + 1), v(T)))
    e("v_and_b32 %s, 3, %s\nv_lshl_add_u32 %s, %s, 3, %s\nv_add_u32 %s, %d, %s" % (v(T + 1), v(L), v(T), v(T + 1), v(T), v(T), L_V, v(T)))
    for db in range(8): e("v_xor_b32 %s, %d, %s" % (v(V_VA + db), db * 32, v(T)))

def gen_retry(e):
    e("ATT_RETRY:")
    e("s_waitcnt vmcnt(0)\ns_mov_b32 %s, 1" % s(S_RETRY))
    gen_kv_addr(e)
    for qb in range(4): e("v_mov_b32 %s, 0xff800000" % v(V_NEGM + 4 * qb))
    e("s_mov_b32 %s, 0" % s(S_KVOFF))
    e("RETRY_LOOP:")
    e("s_barrier")
    e("s_add_u32 m0, %s, %d\ns_nop 0" % (s(S_M0K), L_K))
    e(kv_dma("K", 0)); e(kv_dma("K", 1))
    e("s_waitcnt vmcnt(0)\ns_barrier")
    for kb in range(2):
        for sl in range(4): e(k_read(kb, sl, 0))
    e("s_waitcnt lgkmcnt(0)")
    e.ext(qk_mfmas(0, czero=True))
    e("s_nop 7")
    for qb in range(4):
        b = Sreg(0, qb, 0); m = v(V_NEGM + 4 * qb)
        for k in range(4): e("v_max3_f32 %s, %s, %s, %s" % (m, m, v(b + 2 * k), v(b + 2 * k + 1)))
    e("s_add_u32 %s, %s, 8192\ns_cmp_lt_u32 %s, %d\ns_cbranch_scc1 RETRY_LOOP" % (s(S_KVOFF), s(S_KVOFF), s(S_KVOFF), 64 * 8192))
    e("s_barrier")
    kv_preload(e)
    e("s_branch ATT_START")

def gen_common_setup(e):
    T = V_T + 12; L = V_LANE
    e("s_lshl2_add_u32 %s, %s, %s" % (s(S_TMP + 1), s(S_QT), s(S_WAVE)))
    e("s_mul_i32 %s, %s, %d" % (s(S_TMP), s(S_TMP + 1), NSLAB * 4096))
    srd(e, S_AF, ptr(11), s(S_TMP), NSLAB * 4096)
    e("s_mul_i32 %s, %s, %d\ns_add_u32 %s, %s, %d" % (s(S_TMP), s(S_TMP + 1), 20 * 4096, s(S_TMP), s(S_TMP), XF_OFF))
    srd(e, S_X, ptr(11), s(S_TMP), 20 * 4096)
    srd(e, S_WF, ptr(11), WF_OFF, WF_BYTES)
    e("s_cmp_lt_u32 s2, %d\ns_cselect_b32 %s, %s, 0" % (NSLAB, s(S_WF + 2), s(S_WF + 2)))
    srd(e, S_FL, ptr(11), FL_OFF, 8192)
    e("s_lshl_b32 %s, %s, 5\ns_add_u32 %s, %s, %s\ns_lshl_b32 %s, %s, 2" % (s(S_MYFL), s(S_QT), s(S_MYFL), s(S_MYFL), s(S_HEAD), s(S_MYFL), s(S_MYFL)))
    e("s_lshl_b32 %s, %s, 19" % (s(S_TMP), s(S_HEAD)))
    srd(e, S_K, ptr(1), s(S_TMP), 524288)
    srd(e, S_V, ptr(2), s(S_TMP), 524288 + 3 * 8192)
    e("s_sub_u32 %s, %s, %d\ns_subb_u32 %s, %s, 0" % (s(S_V), s(S_V), 3 * 8192, s(S_V + 1), s(S_V + 1)))
    e("v_bfe_u32 %s, %s, 2, 2\nv_lshrrev_b32 %s, 4, %s\nv_and_b32 %s, 3, %s" % (v(T), v(L), v(T + 1), v(L), v(T + 2), v(L)))
    e("v_lshlrev_b32 %s, 12, %s" % (v(T + 3), v(T + 1)))
    e("v_mul_u32_u24 %s, 320, %s\nv_add_u32 %s, %s, %s\nv_lshl_add_u32 %s, %s, 4, %s" % (v(T + 4), v(T), v(T + 4), v(T + 4), v(T + 3), v(T + 4), v(T + 2), v(T + 4)))
    for sl in range(4): e("v_xor_b32 %s, %d, %s" % (v(V_AQ + sl), sl * 64, v(T + 4)))
    e("v_lshl_add_u32 %s, %s, 7, %s\nv_lshl_add_u32 %s, %s, 3, %s" % (v(T + 4), v(T), v(T + 3), v(T + 4), v(T + 2), v(T + 4)))
    e("v_bfe_u32 %s, %s, 3, 2\nv_lshl_add_u32 %s, %s, 5, %s" % (v(T + 5), v(L), v(T + 4), v(T + 5), v(T + 4)))
    for u in range(4): e("v_xor_b32 %s, %d, %s" % (v(V_AG + u), u * 32, v(T + 4)))
    e("v_lshrrev_b32 %s, 4, %s\ns_lshl_b32 %s, %s, 3\nv_add_u32 %s, %s, %s\nv_and_b32 %s, 15, %s" % (v(T), v(L), s(S_TMP), s(S_WAVE), v(T), s(S_TMP), v(T), v(T + 1), v(L)))
    e("v_lshlrev_b32 %s, 8, %s" % (v(T + 2), v(T)))
    for i in range(2):
        e("v_add_u32 %s, %d, %s\nv_and_b32 %s, 15, %s\nv_xor_b32 %s, %s, %s\nv_lshl_add_u32 %s, %s, 4, %s" % (v(T + 3), 4 * i, v(T), v(T + 4), v(T + 3), v(T + 4), v(T + 4), v(T + 1), v(V_KD + i), v(T + 4), v(T + 2)))
        e("v_and_b32 %s, 7, %s\nv_lshlrev_b32 %s, 1, %s\nv_xor_b32 %s, %s, %s\nv_lshl_add_u32 %s, %s, 4, %s" % (v(T + 4), v(T + 3), v(T + 4), v(T + 4), v(T + 4), v(T + 4), v(T + 1), v(V_VD + i), v(T + 4), v(T + 2)))
    gen_kv_addr(e)
    e("v_lshrrev_b32 %s, 2, %s\nv_and_b32 %s, 7, %s\nv_mul_u32_u24 %s, 1280, %s\nv_and_b32 %s, 3, %s\nv_lshl_add_u32 %s, %s, 3, %s\nv_add_u32 %s, %d, %s" % (
        v(T), v(L), v(V_TRA + 1), v(T), v(T), v(T), v(T + 2), v(L), v(T), v(T + 2), v(T), v(V_TRA), L_TR, v(T)))
    e("s_mul_i32 %s, %s, 10" % (s(S_TRU), s(S_WAVE)))
    e("s_lshl_b32 %s, %s, 1\ns_mul_i32 %s, %s, %d\ns_add_u32 %s, %s, s2\ns_mul_i32 %s, %s, 5120" % (s(S_TRD), s(S_WAVE), s(S_TRD), s(S_TRD), NSLAB, s(S_TRD), s(S_TRD), s(S_TRD), s(S_TRD)))
    e("s_and_b32 %s, s2, 127\ns_mul_i32 %s, %s, 40960" % (s(S_TRS), s(S_TRS), s(S_TRS)))
    e("s_mul_i32 %s, %s, 10240\ns_add_u32 %s, %s, %s\ns_add_u32 %s, %s, %d" % (s(S_TRM), s(S_WAVE), s(S_TRS), s(S_TRS), s(S_TRM), s(S_TRM), s(S_TRM), L_TR))

def gen_w_setup(e):
    T = V_T + 12; L = V_LANE
    e("v_lshrrev_b32 %s, 4, %s\nv_lshlrev_b32 %s, 2, %s\nv_and_b32 %s, 15, %s\nv_xor_b32 %s, %s, %s" % (v(T), v(L), v(T + 1), v(T), v(T + 2), v(L), v(T + 1), v(T + 1), v(T + 2)))
    e("v_lshlrev_b32 %s, 13, %s\nv_lshl_add_u32 %s, %s, 4, %s" % (v(T), v(T), v(V_WD), v(T + 1), v(T)))
    e("v_add_u32 %s, %d, %s" % (v(V_WD + 1), 4 * 8192 - 1024, v(V_WD)))
    e("v_lshrrev_b32 %s, 3, %s\nv_bfe_u32 %s, %s, 4, 1\nv_lshlrev_b32 %s, 1, %s" % (v(T), v(L), v(T + 1), v(L), v(T + 1), v(T + 1)))
    e("s_and_b32 %s, %s, 1\ns_lshl_b32 %s, %s, 2\nv_or_b32 %s, %s, %s" % (s(S_TMP), s(S_WAVE), s(S_TMP), s(S_TMP), v(T + 1), s(S_TMP), v(T + 1)))
    e("v_and_b32 %s, 7, %s\nv_xor_b32 %s, %s, %s" % (v(T + 2), v(L), v(T + 1), v(T + 1), v(T + 2)))
    e("v_mul_u32_u24 %s, 3456, %s\nv_lshl_add_u32 %s, %s, 4, %s" % (v(T), v(T), v(V_WD + 2), v(T + 1), v(T)))
    e("s_lshl_b32 %s, %s, 8\ns_sub_u32 %s, %d, %s" % (s(S_TMP), s(S_HEAD), s(S_TMP + 1), 640 * 8192, s(S_TMP)))
    srd(e, S_WQ, ptr(3), s(S_TMP), s(S_TMP + 1))
    for (d, p, sh) in ((S_WG, 6, 2048), (S_WU, 7, 3072)):
        e("s_lshl_b32 %s, %s, 7\ns_sub_u32 %s, %d, %s" % (s(S_TMP), s(S_FS), s(S_TMP + 1), 640 * 3456 + sh, s(S_TMP)))
        e("s_cmp_lt_u32 %s, 27\ns_cselect_b32 %s, %s, 0" % (s(S_FS), s(S_TMP + 1), s(S_TMP + 1)))
        srd(e, d, ptr(p), s(S_TMP), s(S_TMP + 1))
        e("s_sub_u32 %s, %s, %d\ns_subb_u32 %s, %s, 0" % (s(d), s(d), sh, s(d + 1), s(d + 1)))

def gen_kernel(e, name):
    T = V_T; L = V_LANE
    e(".text\n.globl %s\n.p2align 8\n.type %s,@function\n%s:" % (name, name, name))
    e("s_cmp_ge_u32 s2, 256\ns_cbranch_scc1 K_END")
    e("s_load_dwordx8 %s, s[0:1], 0\ns_load_dwordx8 %s, s[0:1], 32\ns_load_dwordx8 %s, s[0:1], 64" % (s(S_PTR, 8), s(S_PTR + 8, 8), s(S_PTR + 16, 8)))
    e("v_and_b32 %s, 63, v0\nv_lshrrev_b32 %s, 6, v0\nv_lshlrev_b32 %s, 4, %s\nv_readfirstlane_b32 %s, %s" % (v(L), v(T), v(V_L16), v(L), s(S_WAVE), v(T)))
    e("s_and_b32 %s, s2, 7\ns_lshr_b32 %s, s2, 3\ns_and_b32 %s, %s, 3\ns_lshr_b32 %s, %s, 2" % (s(S_TMP), s(S_TMP + 1), s(S_HL), s(S_TMP + 1), s(S_QT), s(S_TMP + 1)))
    e("s_lshl_b32 %s, %s, 2\ns_add_u32 %s, %s, %s" % (s(S_HEAD), s(S_TMP), s(S_HEAD), s(S_HEAD), s(S_HL)))
    e("s_lshl_b32 %s, %s, 3\ns_add_u32 %s, %s, %s" % (s(S_FS), s(S_HL), s(S_FS), s(S_FS), s(S_TMP)))
    e("s_mov_b32 %s, 0" % s(S_RETRY))
    e("s_lshl_b32 %s, %s, 12\ns_lshl_b32 %s, %s, 11" % (s(S_M0W), s(S_WAVE), s(S_M0K), s(S_WAVE)))
    if STAMPS: e("v_mov_b32 v0, -1\nv_mov_b32 v19, -1")
    stamp(e, 0)
    gen_ln_loads(e)
    if opt("tlb", 0):
        e("v_mov_b32 %s, %d\nglobal_load_dword %s, %s, %s" % (v(T + 12), FL_OFF + 4096, v(V_PL + 1), v(T + 12), s(ptr(11), 2)))
    e("s_add_u32 %s, %s, %d\ns_addc_u32 %s, %s, 0\ns_load_dword %s, %s, 0" % (s(S_TMP + 2), s(ptr(11)), FL_OFF + 4096, s(S_TMP + 3), s(ptr(11) + 1), s(S_EPOCH), s(S_TMP + 2, 2)))
    ny = 4 * NI + opt("tlb", 0)
    if opt("cpf", 1):
        e("s_getpc_b64 %s\nCODE0:" % s(S_TMP + 4, 2))
        e("s_lshr_b32 %s, s2, 3\ns_lshl2_add_u32 %s, %s, %s\ns_lshl_b32 %s, %s, 9" % (s(S_TMP), s(S_TMP), s(S_TMP), s(S_WAVE), s(S_TMP), s(S_TMP)))
        e("v_and_b32 %s, 3, %s\nv_lshlrev_b32 %s, 7, %s\nv_add_u32 %s, %s, %s\nv_min_u32 %s, CODE1-CODE0-4, %s" % (v(T + 12), v(L), v(T + 12), v(T + 12), v(T + 12), s(S_TMP), v(T + 12), v(T + 12), v(T + 12)))
        e("global_load_dword %s, %s, %s" % (v(V_PL), v(T + 12), s(S_TMP + 4, 2)))
        ny += 1
    gen_w_setup(e)
    e("s_lshl_b32 %s, %s, 16\ns_mul_i32 %s, %s, %d" % (s(S_WQOFF), s(S_WAVE), s(S_WGOFF), s(S_WAVE), 8 * 3456))
    for sl in range(NI): w_slab(e, sl, True)
    WT = opt("wt", 6)
    if WT:
        X = V_TC
        e("s_lshl2_add_u32 %s, %s, %s\ns_add_u32 %s, %s, %d" % (s(S_TMP), s(S_QT), s(S_WAVE), s(S_TMP), s(S_TMP), 32 * NI))
        e("v_lshrrev_b32 %s, 1, %s\nv_min_u32 %s, %d, %s\nv_lshlrev_b32 %s, 5, %s\nv_add_u32 %s, %s, %s" % (v(X), v(L), v(X), WT - 1, v(X), v(X), v(X), v(X), s(S_TMP), v(X)))
        e("v_and_b32 %s, 1, %s\nv_lshlrev_b32 %s, 7, %s\nv_lshl_add_u32 %s, %s, 13, %s\nv_mul_u32_u24 %s, 3456, %s" % (v(X + 1), v(L), v(X + 1), v(X + 1), v(X + 1), v(X), v(X + 1), v(X), v(X)))
        e("buffer_load_dword %s, %s, %s, 0 offen" % (v(V_PL + 1), v(X + 1), s(S_WQ, 4)))
        e("buffer_load_dword %s, %s, %s, 0 offen offset:2048" % (v(V_PL + 2), v(X), s(S_WG, 4)))
        e("buffer_load_dword %s, %s, %s, 0 offen offset:3072" % (v(V_DUMP), v(X), s(S_WU, 4)))
        ny += 3
    gen_common_setup(e)
    stamp(e, 1)
    gen_ln_compute(e, ny)
    e("s_mul_i32 %s, %s, 0x9e3779b1\ns_add_u32 %s, %s, 0x7f4a7c15" % (s(S_TAG), s(S_EPOCH), s(S_TAG), s(S_TAG)))
    e("v_and_b32 %s, 31, %s\nv_lshlrev_b32 %s, 2, %s\ns_lshl_b32 %s, %s, 7" % (v(V_PL + 3), v(L), v(V_PL + 3), v(V_PL + 3), s(S_XOFF), s(S_QT)))
    for i in range(10):
        t0, t1 = v(V_T + 12 + i), v(V_TRA + 3)
        e("v_add_u32 %s, %d, %s\nv_mul_u32_u24 %s, 820, %s\nv_lshrrev_b32 %s, 16, %s\nv_lshlrev_b32 %s, 1, %s\nv_xor_b32 %s, %s, %s\nv_lshlrev_b32 %s, 4, %s" % (
            t0, 64 * i, v(L), t1, t0, t1, t1, t1, t1, t0, t0, t1, t0, t0))
    e("s_waitcnt vmcnt(0)\ns_barrier")
    stamp(e, 18)
    e("s_cmp_lg_u32 %s, 0\ns_cbranch_scc1 SPUN_XN" % s(S_WAVE))
    set_flag(e, 1)
    e(poll_load(False, s(S_XOFF)))
    e("s_waitcnt vmcnt(0)")
    poll_spin(e, False, s(S_XOFF), 1, "XN")
    e("s_cmp_lt_u32 s2, 128")
    e("s_cselect_b32 %s, %s, %s\ns_cselect_b32 %s, %s, %s" % (s(S_T), s(ptr(4)), s(ptr(8)), s(S_T + 1), s(ptr(4) + 1), s(ptr(8) + 1)))
    e("s_mov_b32 %s, %d\ns_cselect_b32 %s, %d, %s\ns_mov_b32 %s, 0x20000" % (s(S_T + 2), 1728 * 1280, s(S_T + 2), 4096 * 1280, s(S_T + 2), s(S_T + 3)))
    e("s_barrier")
    stamp(e, 2)
    e("s_cmp_ge_u32 %s, 27\ns_cbranch_scc1 LIGHT" % s(S_FS))
    gen_proj(e, True, "H")
    e("PROJ_DONE:")
    for qb in range(4): e("v_mov_b32 %s, 0xff800000" % v(V_NEGM + 4 * qb))
    gen_attention(e)
    gen_att_epilogue(e)
    gen_tail(e)
    e("K_END:\ns_endpgm")
    gen_retry(e)
    e("LIGHT:")
    gen_proj(e, False, "L")
    e("s_branch PROJ_DONE")
    e("CODE1:")
    e(kd(name))

def main():
    e = E()
    hdr = open("cdna_kernels/%s.s.ref" % NAME).read().split("; Override launch")[0]
    e.L += hdr.strip().split("\n")
    e("; @launch grid=(256,1,1) block=(256,1,1) lds=%d" % LDS_BYTES)
    e('.amdgcn_target "amdgcn-amd-amdhsa--gfx950"')
    gen_kernel(e, NAME + "_kernel")
    t = re.sub(r" ;#\w*", "", e.text())
    errs = [x for x in asmcheck.check(t, [NAME + "_kernel"]) if x.count("buffer_load_dword v%d," % V_DUMP) != 2]
    if errs:
        print("\n".join(errs[:40])); print(len(errs), "problems")
    out = [x for x in sys.argv[1:] if x.endswith(".s")]
    open(out[0] if out else "cdna_kernels/%s.s" % NAME, "w").write(t)

if __name__ == "__main__":
    main()
```

```python
import sys, math, os, struct, re
from sched import Gaps, auto_lgkm
import asmcheck

NAME = "recurrent_scan__mha_block_cached__glu_gated_reglu__prompt"
MF = "v_mfma_f32_16x16x32_bf16"
OPT = dict(x.split("=") for x in sys.argv[1:] if "=" in x)
def opt(k, d): return type(d)(OPT.get(k, d))
VERBOSE = "-v" in sys.argv
STAMPS = "--stamps" in sys.argv
STFL = opt("stfl", " sc1").replace("_", " ")
LDFL = opt("ldfl", " sc1").replace("_", " ")

NSLAB = 182
WF_OFF = 0x1800000
WF_BYTES = 8 * NSLAB * 5120
XF_OFF = 0x2000000
FL_OFF = 0x2400000

class E:
    def __init__(self): self.L = []
    def __call__(self, s):
        for x in s.split("\n"):
            x = x.strip()
            if x: self.L.append(x)
    def ext(self, l): self.L += l
    def text(self): return "\n".join(self.L) + "\n"

def v(a, n=1): return "v%d" % a if n == 1 else "v[%d:%d]" % (a, a + n - 1)
def a(a_, n=1): return "a%d" % a_ if n == 1 else "a[%d:%d]" % (a_, a_ + n - 1)
def s(a_, n=1): return "s%d" % a_ if n == 1 else "s[%d:%d]" % (a_, a_ + n - 1)
def f2u(x): return "0x%08x" % struct.unpack("<I", struct.pack("<f", x))[0]

def kd(name, vgpr=512, acc=256):
    return """.section .rodata,"a"
.p2align 6
.amdhsa_kernel %s
  .amdhsa_next_free_vgpr %d
  .amdhsa_next_free_sgpr 102
  .amdhsa_accum_offset %d
  .amdhsa_group_segment_fixed_size 0
  .amdhsa_kernarg_size 96
  .amdhsa_user_sgpr_count 2
  .amdhsa_user_sgpr_kernarg_segment_ptr 1
  .amdhsa_system_sgpr_workgroup_id_x 1
.end_amdhsa_kernel
""" % (name, vgpr, acc)

def stamp(e, i):
    if not STAMPS: return
    e("s_waitcnt lgkmcnt(0)\ns_memtime s[98:99]\ns_memrealtime s[100:101]\ns_waitcnt lgkmcnt(0)")
    e("v_writelane_b32 v0, s98, %d\nv_writelane_b32 v19, s100, %d" % (i, i))
def stamp_fin(e):
    if not STAMPS: return
    if opt("dbgout", -1) >= 0:
        e("s_cmp_lg_u32 s2, %d\ns_cbranch_scc1 NODBG\ns_cmp_lg_u32 %s, 0\ns_cbranch_scc1 NODBG" % (opt("dbgout", -1), s(S_WAVE)))
        e("v_readlane_b32 s98, v19, 0\ns_nop 3\nv_subrev_u32 v18, s98, v19\nv_lshlrev_b32 v20, 2, v1\nv_subrev_u32 v20, 4, v20")
        e("s_mov_b32 s96, %s\ns_mov_b32 s97, %s\ns_mov_b32 s98, 64\ns_mov_b32 s99, 0x20000" % (s(ptr(10)), s(ptr(10) + 1)))
        e("buffer_store_dword v18, v20, s[96:99], 0 offen\ns_waitcnt vmcnt(0)\nNODBG:")
        return
    e("s_lshl_b32 s98, s2, 2\ns_add_u32 s98, s98, %s\ns_lshl_b32 s98, s98, 9\ns_add_u32 s98, s98, %d" % (s(S_WAVE), 0x4000000))
    e("s_add_u32 s96, %s, s98\ns_addc_u32 s97, %s, 0\ns_mov_b32 s98, 512\ns_mov_b32 s99, 0x20000" % (s(ptr(11)), s(ptr(11) + 1)))
    e("v_mov_b32 v18, v0\nv_lshlrev_b32 v20, 3, v1\nbuffer_store_dwordx2 v[18:19], v20, s[96:99], 0 offen\ns_waitcnt vmcnt(0)")

def srd(e, d, base, off_lo, nbytes):
    e("s_add_u32 %s, %s, %s" % (s(d), s(base), off_lo))
    e("s_addc_u32 %s, %s, 0" % (s(d + 1), s(base + 1)))
    e("s_mov_b32 %s, %s" % (s(d + 2), nbytes))
    e("s_mov_b32 %s, 0x20000" % s(d + 3))

def resolve_vm(lines):
    out = []; ops = []; waited = set(); lastm0 = None
    for x in lines:
        if x.startswith("s_add_u32 m0,"): lastm0 = x.split(",")[1].strip()
        if " lds" in x and ";#" in x:
            tg = x.split(";#")[1].strip()
            exp = s(S_M0W) if tg.startswith("w") else (s(S_TRM) if tg == "trs" else s(S_M0K))
            assert lastm0 == exp, "M0 collision at %s" % x
        m = re.search(r"WAITVM\{([^}]*)\}", x)
        if m:
            need = set(m.group(1).split(","))
            waited |= need
            idx = [i for i, t in enumerate(ops) if t in need]
            n = len(ops) - 1 - max(idx) if idx else 63
            assert n <= 63
            x = x.replace(m.group(0), "vmcnt(%d)" % min(n, 63))
        elif x.startswith(("buffer_", "global_")):
            t = x.split(";#")[1].strip() if ";#" in x else ""
            assert t not in waited, "op %s issued after its wait" % t
            ops.append(t)
        out.append(x)
    return out

S_FL = 4
S_X, S_WQ, S_WG, S_WU, S_K, S_V, S_AF, S_T, S_WF = 8, 12, 16, 20, 24, 28, 32, 36, 40
S_PTR = 44
S_WAVE, S_HEAD, S_QT, S_FS = 68, 69, 70, 71
S_XOFF, S_WQOFF, S_WGOFF, S_M0W = 72, 73, 74, 75
S_KVOFF, S_M0K, S_TOG, S_RETRY = 76, 77, 78, 79
S_TMP = 80
S_TRS, S_TRM, S_TRD, S_TRU = 88, 89, 90, 91
S_EPOCH, S_TAG, S_MYFL = 92, 93, 94
S_HL = 3
S_LN = 84
def ptr(i): return S_PTR + 2 * i

L_K = 0
L_V = 65536
RW = 7
L_TR = 114688
L_MISC = 155648
LDS_BYTES = 163840

V_LANE = 1
V_L16 = 2
V_WD = 3
V_TRA = 6
V_AQ = 10
V_AG = 14
V_KA = 20
V_VA = 24
V_KD = 32
V_VD = 34
V_DUMP = 18
V_TC = 62
V_PL = 36
V_T = 40
V_ACCQ = 64
V_ACCG = 192
V_Q = 64
V_S = 128
V_P = 192
V_NEGM = 224
V_L = 240
A_ACCU = 0
XD = 7
A_X = 64
A_W = 176
A_TR = 208
A_ONE = 224
A_O = 0
A_KF = 128
A_VF = 160

def accreg(blk, qb):
    if blk < 8: return v(V_ACCQ + (blk * 4 + qb) * 4, 4)
    if blk < 12: return v(V_ACCG + ((blk - 8) * 4 + qb) * 4, 4)
    return a(A_ACCU + ((blk - 12) * 4 + qb) * 4, 4)

def w_read(dst, blk, j, rel):
    if blk < 8:
        ar = V_AQ + (blk >> 1); off = rel + j * 1024 + (blk & 1) * 8
    else:
        ar = V_AG + ((blk - 8) & 3); off = rel + 2048 + (1024 if blk >= 12 else 0) + j * 512
    assert 0 <= off < 65536
    return "ds_read_b64_tr_b16 %s, %s offset:%d" % (a(dst + 2 * j, 2), v(ar), off)

def w_dma(heavy, tag):
    l = ["buffer_load_dwordx4 %s, %s, %s offen lds ;#%s" % (v(V_WD), s(S_WQ, 4), s(S_WQOFF), tag),
         "buffer_load_dwordx4 %s, %s, %s offen offset:1024 lds ;#%s" % (v(V_WD + 1), s(S_WQ, 4), s(S_WQOFF), tag)]
    if heavy:
        l += ["buffer_load_dwordx4 %s, %s, %s offen offset:2048 lds ;#%s" % (v(V_WD + 2), s(S_WG, 4), s(S_WGOFF), tag),
              "buffer_load_dwordx4 %s, %s, %s offen offset:3072 lds ;#%s" % (v(V_WD + 2), s(S_WU, 4), s(S_WGOFF), tag)]
    return l

def x_load(sl, qb):
    return "buffer_load_dwordx4 %s, %s, %s, %s offen offset:%d%s ;#x%d" % (a(A_X + ((sl % XD) * 4 + qb) * 4, 4), v(V_L16), s(S_X, 4), s(S_XOFF), qb * 1024, LDFL, sl)

def kv_dma(which, i, tag=""):
    vo = (V_KD if which == "K" else V_VD) + i
    return "buffer_load_dwordx4 %s, %s, %s offen offset:%d lds ;#%s" % (v(vo), s(S_K if which == "K" else S_V, 4), s(S_KVOFF), 1024 * i, tag)

def set_flag(e, stage):
    e("s_add_u32 %s, %s, %d\ns_mov_b64 exec, 1\nv_mov_b32 %s, %s" % (s(S_TMP + 7), s(S_TAG), stage, v(V_PL), s(S_TMP + 7)))
    e("buffer_store_dword %s, off, %s, %s sc1" % (v(V_PL), s(S_FL, 4), s(S_MYFL)))
    e("s_mov_b64 exec, -1")

def poll_load(allq, qoff=None):
    if allq: return "buffer_load_dwordx4 %s, %s, %s, 0 offen sc1" % (v(V_PL, 4), v(V_L16), s(S_FL, 4))
    return "buffer_load_dword %s, %s, %s, %s offen sc1" % (v(V_PL), v(V_PL + 3), s(S_FL, 4), qoff)

def poll_spin(e, allq, qoff, stage, tag):
    e("s_mov_b32 %s, 0\ns_add_u32 %s, %s, %d" % (s(S_TMP + 7), s(S_TMP + 6), s(S_TAG), stage))
    e("SPIN_%s:" % tag)
    n = 4 if allq else 1
    for i in range(n): e("v_subrev_u32 %s, %s, %s" % (v(V_PL + i), s(S_TMP + 6), v(V_PL + i)))
    if allq: e("v_max3_u32 %s, %s, %s, %s\nv_max_u32 %s, %s, %s" % (v(V_PL), v(V_PL), v(V_PL + 1), v(V_PL + 2), v(V_PL), v(V_PL), v(V_PL + 3)))
    e("v_cmp_lt_u32 vcc, %d, %s" % (3 - stage, v(V_PL)))
    e("s_add_u32 %s, %s, 1" % (s(S_TMP + 7), s(S_TMP + 7)))
    e("s_cmp_eq_u64 vcc, 0\ns_cbranch_scc1 SPUN_%s" % tag)
    e("s_cmp_ge_u32 %s, 0x40000\ns_cbranch_scc1 SPUN_%s" % (s(S_TMP + 7), tag))
    e("s_sleep %d" % opt("slp", 2))
    e(poll_load(allq, qoff))
    e("s_waitcnt vmcnt(0)\ns_branch SPIN_%s" % tag)
    e("SPUN_%s:" % tag)

def zero_acc(e, heavy=True):
    for r in range(V_ACCQ, 256): e("v_mov_b32 %s, 0" % v(r))
    for r in range(A_ACCU, A_ACCU + 64): e("v_accvgpr_write_b32 %s, 0" % a(r))

NI = opt("ni", 1)

def gen_ln_loads(e):
    T = V_T; L = V_LANE
    R = V_ACCQ
    e("v_bfe_u32 %s, %s, 1, 3\nv_lshrrev_b32 %s, 4, %s\nv_and_b32 %s, 1, %s" % (v(T), v(L), v(T + 1), v(L), v(T + 2), v(L)))
    e("v_mul_u32_u24 %s, 1280, %s\nv_lshl_add_u32 %s, %s, 4, %s\nv_lshl_add_u32 %s, %s, 3, %s" % (v(T + 3), v(T), v(T + 3), v(T + 1), v(T + 3), v(T + 3), v(T + 2), v(T + 3)))
    e("s_lshl_b32 %s, %s, 5\ns_add_u32 %s, %s, %s\ns_mul_i32 %s, %s, %d\ns_mul_i32 %s, %s, 320" % (s(S_TMP), s(S_QT), s(S_TMP), s(S_TMP), s(S_HEAD), s(S_TMP), s(S_TMP), 8 * 1280, s(S_TMP + 1), s(S_WAVE)))
    e("s_waitcnt lgkmcnt(0)")
    srd(e, S_T, ptr(0), s(S_TMP), 8 * 1280)
    for i in range(5): e("buffer_load_dwordx2 %s, %s, %s, %s offen offset:%d" % (v(R + 2 * i, 2), v(T + 3), s(S_T, 4), s(S_TMP + 1), 64 * i))

def gen_ln_compute(e, nyounger):
    T = V_T; L = V_LANE
    R = V_ACCQ; U = R + 10
    e("v_and_b32 %s, 15, %s\nv_lshlrev_b32 %s, 3, %s\nv_lshl_add_u32 %s, %s, 8, %s" % (v(T + 3), v(L), v(T + 3), v(T + 3), v(T + 3), v(T + 1), v(T + 3)))
    e("s_lshr_b32 %s, %s, 3\ns_lshl2_add_u32 %s, %s, %s\ns_mul_i32 %s, %s, %d" % (s(S_TMP), s(S_HEAD), s(S_TMP), s(S_QT), s(S_TMP), s(S_TMP), s(S_TMP), 20 * 4096))
    e("s_bfe_u32 %s, %s, 0x20001\ns_lshl_b32 %s, %s, 10\ns_add_u32 %s, %s, %s" % (s(S_TMP + 1), s(S_HEAD), s(S_TMP + 1), s(S_TMP + 1), s(S_TMP), s(S_TMP), s(S_TMP + 1)))
    e("s_and_b32 %s, %s, 1\ns_lshl_b32 %s, %s, 7\ns_add_u32 %s, %s, %s\ns_add_u32 %s, %s, %d" % (s(S_TMP + 1), s(S_HEAD), s(S_TMP + 1), s(S_TMP + 1), s(S_TMP), s(S_TMP), s(S_TMP + 1), s(S_TMP), s(S_TMP), XF_OFF))
    srd(e, S_LN, ptr(11), s(S_TMP), 20 * 4096)
    e("s_mul_i32 %s, %s, %d" % (s(S_TMP), s(S_WAVE), 5 * 4096))
    e("v_lshlrev_b32 %s, 5, %s\nv_add_u32 %s, %d, %s\ns_lshl_b32 %s, %s, 3\nv_add_u32 %s, %s, %s" % (v(T + 4), v(T), v(T + 4), L_MISC, v(T + 4), s(S_TMP + 1), s(S_WAVE), v(T + 5), s(S_TMP + 1), v(T + 4)))
    A0 = T + 6; M = T + 8
    e("s_waitcnt vmcnt(%d)" % nyounger)
    stamp(e, 17)
    for d in range(10): e("v_lshlrev_b32 %s, 16, %s\nv_and_b32 %s, 0xffff0000, %s" % (v(U + 2 * d), v(R + d), v(U + 2 * d + 1), v(R + d)))
    e("v_pk_add_f32 %s, %s, %s\nv_pk_add_f32 %s, %s, %s" % (v(A0, 2), v(U, 2), v(U + 2, 2), v(M, 2), v(U + 4, 2), v(U + 6, 2)))
    for d in range(4, 10): e("v_pk_add_f32 %s, %s, %s" % (v((A0, M)[d & 1], 2), v((A0, M)[d & 1], 2), v(U + 2 * d, 2)))
    def reduce(dst):
        e("v_pk_add_f32 %s, %s, %s" % (v(A0, 2), v(A0, 2), v(M, 2) if dst == M else v(T + 10, 2)))
        e("v_add_f32 %s, %s, %s\ns_nop 1" % (v(A0), v(A0), v(A0 + 1)))
        e("v_add_f32_dpp %s, %s, %s quad_perm:[1,0,3,2] row_mask:0xf bank_mask:0xf" % (v(A0), v(A0), v(A0)))
        for sw in ("v_permlane32_swap_b32", "v_permlane16_swap_b32"):
            e("v_mov_b32 %s, %s\ns_nop 1\n%s %s, %s\nv_add_f32 %s, %s, %s" % (v(A0 + 1), v(A0), sw, v(A0), v(A0 + 1), v(A0), v(A0), v(A0 + 1)))
    reduce(M)
    e("v_mul_f32 %s, %s, %s\nv_mul_f32 %s, %s, %s" % (v(M), f2u(-1.0 / 160), v(A0), v(M + 1), f2u(-1.0 / 160), v(A0)))
    for d in range(10): e("v_pk_add_f32 %s, %s, %s" % (v(U + 2 * d, 2), v(U + 2 * d, 2), v(M, 2)))
    e("v_pk_mul_f32 %s, %s, %s\nv_pk_mul_f32 %s, %s, %s" % (v(A0, 2), v(U, 2), v(U, 2), v(T + 10, 2), v(U + 2, 2), v(U + 2, 2)))
    for d in range(2, 10): e("v_pk_fma_f32 %s, %s, %s, %s" % (v((A0, T + 10)[d & 1], 2), v(U + 2 * d, 2), v(U + 2 * d, 2), v((A0, T + 10)[d & 1], 2)))
    reduce(None)
    e("v_mov_b32 %s, %s" % (v(M + 1), v(A0)))
    e("ds_write_b64 %s, %s\ns_waitcnt lgkmcnt(0)\ns_barrier" % (v(T + 5), v(M, 2)))
    X = T + 12
    e("ds_read_b128 %s, %s\nds_read_b128 %s, %s offset:16\ns_waitcnt lgkmcnt(0)" % (v(X, 4), v(T + 4), v(X + 4, 4), v(T + 4)))
    e("v_pk_add_f32 %s, %s, %s\nv_pk_add_f32 %s, %s, %s\nv_pk_add_f32 %s, %s, %s" % (v(A0, 2), v(X, 2), v(X + 2, 2), v(T + 10, 2), v(X + 4, 2), v(X + 6, 2), v(A0, 2), v(A0, 2), v(T + 10, 2)))
    e("v_mul_f32 %s, 0.25, %s" % (v(A0), v(A0)) if False else "v_mul_f32 %s, %s, %s" % (v(A0), f2u(0.25), v(A0)))
    for k in range(4): e("v_sub_f32 %s, %s, %s" % (v(X + 2 * k), v(X + 2 * k), v(A0)))
    e("v_mul_f32 %s, %s, %s" % (v(X + 1), v(X), v(X)))
    for k in range(1, 4): e("v_fmac_f32 %s, %s, %s" % (v(X + 1), v(X + 2 * k), v(X + 2 * k)))
    e("v_fmac_f32 %s, %s, %s" % (v(A0 + 1), f2u(160.0), v(X + 1)))
    e("v_mov_b32 %s, %s\nv_fmac_f32 %s, %s, %s\nv_rsq_f32 %s, %s" % (v(X), f2u(1e-5), v(X), f2u(1.0 / 640), v(A0 + 1), v(X), v(X)))
    e("v_sub_f32 %s, %s, %s" % (v(M), v(A0), v(M)))
    e("v_mov_b32 %s, %s\nv_mul_f32 %s, %s, %s\nv_mul_f32 %s, %s, %s" % (v(X + 1), v(X), v(M + 1), v(M), v(X), v(M), v(M), v(X)))
    for i in range(5):
        for d in (2 * i, 2 * i + 1): e("v_pk_fma_f32 %s, %s, %s, %s" % (v(U + 2 * d, 2), v(U + 2 * d, 2), v(X, 2), v(M, 2)))
        for d in (2 * i, 2 * i + 1): e("v_cvt_pk_bf16_f32 %s, %s, %s" % (v(R + d), v(U + 2 * d), v(U + 2 * d + 1)))
        e("buffer_store_dwordx2 %s, %s, %s, %s offen%s" % (v(R + 2 * i, 2), v(T + 3), s(S_LN, 4), s(S_TMP), STFL))
        if i < 4: e("s_add_u32 %s, %s, 4096" % (s(S_TMP), s(S_TMP)))

def w_slab(e, sl, heavy):
    e("s_add_u32 m0, %s, %d\ns_nop 0" % (s(S_M0W), (sl % RW) * 16384))
    e.ext(w_dma(heavy, "w%d" % sl))
    e("s_add_u32 %s, %s, %d\ns_add_u32 %s, %s, %d" % (s(S_WQOFF), s(S_WQOFF), 32 * 8192, s(S_WGOFF), s(S_WGOFF), 32 * 3456))

def gen_proj(e0, heavy, tag):
    e = E()
    NB = 16 if heavy else 8
    NG = NB * 4
    T = V_T; L = V_LANE
    e("s_mov_b32 %s, 0" % s(S_XOFF))
    NX0 = opt("nx0", 2)
    defer = []
    for sl in range(RW):
        t = E()
        if sl >= NI: w_slab(t, sl, heavy)
        if sl < XD - 1:
            for qb in range(4): t(x_load(sl, qb))
            t("s_add_u32 %s, %s, 4096" % (s(S_XOFF), s(S_XOFF)))
        if sl < NX0: e.ext(t.L)
        else: defer += [x for x in t.L if not x.startswith("s_nop")]
    if NI == 0: e("s_waitcnt WAITVM{w0}\ns_barrier")
    mf = []
    for sl in range(20):
        for f in range(NB):
            wr = a(A_W + 4 * (f % 8), 4)
            for qb in range(4):
                mf.append("%s %s, %s, %s, %s" % (MF, accreg(f, qb), wr, a(A_X + ((sl % XD) * 4 + qb) * 4, 4), accreg(f, qb) if sl else "0"))
    G = Gaps(mf)
    NPRE = 5 if heavy else 3
    base = lambda sl: 65536 if (sl % RW) >= 4 else 0
    rel = lambda sl: (sl % RW) * 16384 - base(sl)
    aregs = list(range(V_AQ, V_AQ + 4)) + (list(range(V_AG, V_AG + 4)) if heavy else [])
    pre_reads = [w_read(A_W + 4 * f, f, j, rel(0)) for f in range(NPRE) for j in range(2)]
    late = {13: [("V", 4)], 14: [("K", 0), ("K", 1)], 15: [("K", 2), ("K", 3)], 16: [("K", 4), ("K", 5)], 17: [("K", 6), ("K", 7)],
            18: [("V", 0), ("V", 1)], 19: [("V", 2), ("V", 3)]}
    bars = {}
    ramp = list(defer)
    RPS = opt("rps", 14 if heavy else 9)
    for sl in range(20):
        st = sl * NG; end = st + NG - 1
        g = st
        xl = []
        if sl + XD - 1 < 20:
            xl = [x_load(sl + XD - 1, qb) for qb in range(4)] + ["s_add_u32 %s, %s, 4096" % (s(S_XOFF), s(S_XOFF))]
        if ramp is not None:
            ramp += xl
        else:
            for x in xl[:4]: g = G.place("m", x, g + 1) + 1
            if xl: G.place("s", xl[4], g)
        cur = st
        for f in range(NPRE, NB):
            lo = st if f < 8 else st + 4 * (f - 8) + 3
            for j in range(2): cur = G.place("d", w_read(A_W + 4 * (f % 8), f, j, rel(sl)), max(lo, cur), st + 4 * f - 5)
        lastread = cur
        if sl < 19 and base(sl + 1) != base(sl):
            d = base(sl + 1) - base(sl)
            gg = lastread
            for r in aregs:
                gg = G.place("v", ("v_add_u32 %s, %d, %s" % (v(r), d, v(r))) if d > 0 else ("v_subrev_u32 %s, %d, %s" % (v(r), -d, v(r))), gg + (0 if gg > lastread else 1))
            lastread = max(lastread, gg - 6)
        b = G.place("b", "s_barrier", lastread + 7)
        need = ["x%d" % (sl + 1), "w%d" % (sl + 1)] + (["trs"] if sl == 19 else [])
        G.put(b, "s", "s_waitcnt WAITVM{%s} lgkmcnt(0)" % ",".join(need))
        bars[sl] = b
        g = b
        if ramp is not None:
            t = E(); w_slab(t, sl + RW, heavy)
            post = [x for x in t.L if not x.startswith("s_nop")]
            rampinfo = (st, b, end, post)
        elif sl + RW < 20:
            g = G.place("s", "s_add_u32 m0, %s, %d" % (s(S_M0W), (sl % RW) * 16384), b + 1)
            for d in w_dma(heavy, "w%d" % (sl + RW)): g = G.place("m", d, g + 2)
            g = G.place("s", "s_add_u32 %s, %s, %d" % (s(S_WQOFF), s(S_WQOFF), 32 * 8192), g + 1)
            if heavy: g = G.place("s", "s_add_u32 %s, %s, %d" % (s(S_WGOFF), s(S_WGOFF), 32 * 3456), g + 1)
        else:
            for which, i in late[sl]:
                g = G.place("s", "s_add_u32 m0, %s, %d" % (s(S_M0K), (L_K if which == "K" else L_V) + i * 8192), g + 1)
                g = G.place("s", "s_mov_b32 %s, %d" % (s(S_KVOFF), (i + (3 if which == "V" else 0)) * 8192), g + 1)
                for k in range(2): g = G.place("m", kv_dma(which, k, "%s%d" % (which, i)), g + 1 + k)
        assert g <= end, (sl, g - st)
        if sl < 19:
            cur = b + 1
            for f in range(NPRE):
                lo = st + 4 * (NB - 8 + f) + 3
                for j in range(2): cur = G.place("d", w_read(A_W + 4 * f, f, j, rel(sl + 1)), max(lo, cur), end + 4 * f - 4 + opt("slack", 0))
        if ramp is not None:
            st_, b_, end_, post = rampinfo
            q = [(x, st_) for x in ramp] + [(x, b_ + 1) for x in post]
            g = st_; nv = 0
            while q and nv < RPS:
                x, lo = q[0]
                k = "m" if x.startswith("buffer") else "s"
                try: g = G.place(k, x, max(g + 1, lo), end_)
                except RuntimeError: break
                q.pop(0); nv += (k == "m")
            while q and not q[0][0].startswith("buffer") and " m0," not in q[0][0]:
                G.va[g].append(q.pop(0)[0])
            ramp = [x for x, _ in q] if q else None
    WT = opt("wt", 6)
    if WT:
        k = 1
        for sl in [int(x) for x in opt("wts", "0.4.8").split(".")]:
            g = sl * NG + opt("wtg", 0)
            seq = [("s", "s_mov_b32 %s, %d" % (s(S_TMP), k * WT * 32 * 8192)), ("m", "buffer_load_dword %s, %s, %s, %s offen" % (v(V_DUMP), v(V_TC + 1), s(S_WQ, 4), s(S_TMP)))]
            if heavy:
                seq += [("s", "s_mov_b32 %s, %d" % (s(S_TMP), k * WT * 32 * 3456)),
                        ("m", "buffer_load_dword %s, %s, %s, %s offen offset:2048" % (v(V_DUMP), v(V_TC), s(S_WG, 4), s(S_TMP))),
                        ("m", "buffer_load_dword %s, %s, %s, %s offen offset:3072" % (v(V_DUMP), v(V_TC), s(S_WU, 4), s(S_TMP)))]
            for kk, x in seq: g = G.place(kk, x, g + 1)
            k += 1
    if opt("kvt", 9):
        g = opt("kvt", 9) * NG
        t0 = v(V_TC)
        seq = [("v", "v_min_u32 %s, 15, %s" % (t0, v(L))), ("v", "v_lshlrev_b32 %s, 7, %s" % (t0, t0)),
               ("s", "s_lshl2_add_u32 %s, %s, %s" % (s(S_TMP), s(S_QT), s(S_WAVE))), ("s", "s_lshl_b32 %s, %s, 11" % (s(S_TMP), s(S_TMP))),
               ("m", "buffer_load_dword %s, %s, %s, %s offen" % (v(V_DUMP), t0, s(S_K, 4), s(S_TMP))),
               ("s", "s_add_u32 %s, %s, %d" % (s(S_TMP), s(S_TMP), 3 * 8192)),
               ("m", "buffer_load_dword %s, %s, %s, %s offen" % (v(V_DUMP), t0, s(S_V, 4), s(S_TMP)))]
        for kk, x in seq: g = G.place(kk, x, g + 1)
    TS = opt("ts", 13); TPS = opt("tps", 5)
    for i in range(10):
        sl = TS + i // TPS; st = sl * NG
        g = st + (9 if sl + XD - 1 < 20 else 0) if i % TPS == 0 else gprev
        t0 = v(V_T + 12 + i)
        seq = [
               ("s", "s_add_u32 m0, %s, %d" % (s(S_TRM), i * 1024)),
               ("m", "buffer_load_dwordx4 %s, %s, %s offen lds ;#trs" % (t0, s(S_T, 4), s(S_TRS)))]
        if heavy:
            for k, x in seq: g = G.place(k, x, g + (1 if k != "v" else 0), bars[sl] - 1)
            gprev = g + 1
        else:
            for k, x in seq: G.va[bars[sl] - 1].append(x if k != "m" else "s_nop 0\n" + x)
            gprev = 0
    trpost = []
    g = bars[19] + 1
    for i in range(10):
        t0 = v(V_T + 12 + i)
        pre = ["v_add_u32 %s, %d, %s" % (t0, i, v(V_TRA + 2)), "v_xor_b32 %s, %s, %s" % (t0, t0, v(V_TRA + 1)), "v_lshl_add_u32 %s, %s, 5, %s" % (t0, t0, v(V_TRA))]
        if i == 0: pre = ["v_mov_b32 %s, %s" % (v(V_TRA + 2), s(S_TRU))] + pre
        gg = bars[17] + 1 if i == 0 else gv
        for x in pre: gg = G.place("v", x, gg, bars[19] - 1, force=True)
        gv = gg
        for j in range(2):
            x = "ds_read_b64_tr_b16 %s, %s offset:%d" % (a(A_TR + 4 * i + 2 * j, 2), t0, j * 16 * 1280)
            try: g = G.place("d", x, g) + 1
            except RuntimeError: trpost.append(x); g = G.n()
    trst = []
    adds = {4: 4096, 5: NSLAB * 5120 - 4096, 9: 4096}
    for i in range(10):
        if i in adds: trst.append("s_add_u32 %s, %s, %d" % (s(S_TRD), s(S_TRD), adds[i]))
        trst.append("buffer_store_dwordx4 %s, %s, %s, %s offen offset:%d%s ;#trd" % (a(A_TR + 4 * i, 4), v(V_L16), s(S_WF, 4), s(S_TRD), ((i % 5) % 4) * 1024, STFL))
    auto_lgkm(G)
    if VERBOSE: print("proj", tag, G.pattern())
    e.ext(pre_reads)
    e("s_waitcnt WAITVM{x0} lgkmcnt(0)")
    stamp(e, 3)
    nm = 0
    for x in G.lines():
        if x.startswith("v_mfma"):
            if STAMPS and nm % (4 * NG) == 0 and nm: stamp(e, 18 + nm // (4 * NG))
            nm += 1
        e(x)
    e.ext(trpost)
    stamp(e, 4)
    U = T
    CQ = T + 8
    c = math.log2(math.e) / math.sqrt(128.0)
    e("v_mov_b32 %s, %s\nv_mov_b32 %s, %s" % (v(CQ), f2u(c), v(CQ + 1), f2u(c)))
    e("s_mov_b32 %s, %d" % (s(S_KVOFF), 8 * 8192))
    if not heavy: e("s_nop 4")
    def qconv(sl):
        for qb in range(4):
            for b in range(2):
                g0 = V_ACCQ + ((2 * sl + b) * 4 + qb) * 4
                for h in range(2): e("v_pk_mul_f32 %s, %s, %s" % (v(g0 + 2 * h, 2), v(g0 + 2 * h, 2), v(CQ, 2)))
            d0 = V_Q + (sl * 4 + qb) * 4
            for b in range(2):
                g0 = V_ACCQ + ((2 * sl + b) * 4 + qb) * 4
                e("v_cvt_pk_bf16_f32 %s, %s, %s" % (v(d0 + 2 * b), v(g0), v(g0 + 1)))
                e("v_cvt_pk_bf16_f32 %s, %s, %s" % (v(d0 + 2 * b + 1), v(g0 + 2), v(g0 + 3)))
    if heavy:
        for fb in range(4):
            for qb in range(4):
                g0 = V_ACCG + (fb * 4 + qb) * 4
                u0 = U + 4 * (qb & 1)
                for r in range(4): e("v_max_f32 %s, 0, %s" % (v(g0 + r), v(g0 + r)))
                for r in range(4): e("v_accvgpr_read_b32 %s, %s" % (v(u0 + r), a(A_ACCU + (fb * 4 + qb) * 4 + r)))
                for h in range(2): e("v_pk_mul_f32 %s, %s, %s" % (v(g0 + 2 * h, 2), v(g0 + 2 * h, 2), v(u0 + 2 * h, 2)))
                d0 = V_ACCG + ((fb & ~1) * 4 + qb) * 4 + 2 * (fb & 1)
                e("v_cvt_pk_bf16_f32 %s, %s, %s" % (v(d0), v(g0), v(g0 + 1)))
                e("v_cvt_pk_bf16_f32 %s, %s, %s" % (v(d0 + 1), v(g0 + 2), v(g0 + 3)))
                if fb & 1:
                    if qb == 0: e("s_lshl_b32 %s, %s, 13\ns_add_u32 %s, %s, %d" % (s(S_TMP), s(S_FS), s(S_TMP), s(S_TMP), (128 + (fb >> 1)) * 4096))
                    e("buffer_store_dwordx4 %s, %s, %s, %s offen offset:%d%s" % (v(d0 - 2, 4), v(V_L16), s(S_AF, 4), s(S_TMP), 1024 * qb, STFL))
    e("s_waitcnt lgkmcnt(0)")
    for sl in range(4):
        qconv(sl)
        k = (len(trst) + 3 - sl) // (4 - sl)
        e.ext(trst[:k]); trst = trst[k:]
    e("s_waitcnt WAITVM{K0,K1,K2,K3}")
    e0.ext(resolve_vm(e.L))

def kv_preload(e):
    e("s_mov_b32 %s, 0" % s(S_KVOFF))
    for i in range(8):
        e("s_add_u32 m0, %s, %d\ns_nop 0" % (s(S_M0K), L_K + i * 8192))
        e(kv_dma("K", 0)); e(kv_dma("K", 1))
        if i >= 3:
            e("s_add_u32 m0, %s, %d\ns_nop 0" % (s(S_M0K), L_V + (i - 3) * 8192))
            e(kv_dma("V", 0)); e(kv_dma("V", 1))
        e("s_add_u32 %s, %s, 8192" % (s(S_KVOFF), s(S_KVOFF)))
    e("s_waitcnt vmcnt(0)")

def Sreg(buf, qb, kb): return V_S + buf * 32 + qb * 8 + kb * 4
def Preg(buf, qb): return V_P + buf * 16 + qb * 4

def qk_mfmas(buf, czero=False):
    out = []
    for kb in range(2):
        for qb in range(4):
            for sl in range(4):
                d = v(Sreg(buf, qb, kb), 4)
                c = d if sl else ("0" if czero else v(V_NEGM + 4 * qb, 4))
                out.append("%s %s, %s, %s, %s" % (MF, d, a(A_KF + (kb * 4 + sl) * 4, 4), v(V_Q + (sl * 4 + qb) * 4, 4), c))
    return out

def pv_mfmas(buf):
    out = []
    for qb in range(4):
        out.append("%s %s, %s, %s, %s" % (MF, v(V_L + 4 * qb, 4), a(A_ONE, 4), v(Preg(buf, qb), 4), v(V_L + 4 * qb, 4)))
    for db in range(8):
        for qb in range(4):
            o = a(A_O + (db * 4 + qb) * 4, 4)
            out.append("%s %s, %s, %s, %s" % (MF, o, a(A_VF + db * 4, 4), v(Preg(buf, qb), 4), o))
    return out

def k_read(kb, sl, off): return "ds_read_b128 %s, %s offset:%d" % (a(A_KF + (kb * 4 + sl) * 4, 4), v(V_KA + sl), off + kb * 4096)
def v_read(db, j, off): return "ds_read_b64_tr_b16 %s, %s offset:%d" % (a(A_VF + db * 4 + 2 * j, 2), v(V_VA + db), off + j * 4096)

def softmax_ops(buf):
    ex = []; cv = []
    for qb in range(4):
        for kb in range(2):
            for r in range(4):
                x = v(Sreg(buf, qb, kb) + r)
                ex.append("v_exp_f32 %s, %s" % (x, x))
            for h in range(2):
                b = Sreg(buf, qb, kb) + 2 * h
                cv.append("v_cvt_pk_bf16_f32 %s, %s, %s" % (v(Preg(buf, qb) + kb * 2 + h), v(b), v(b + 1)))
    return ex, cv

def gen_attention(e):
    T = V_T
    e("ATT_START:")
    stamp(e, 5)
    e("s_barrier")
    for kb in range(2):
        for sl in range(4): e(k_read(kb, sl, 0))
    z = ["v_mov_b32 %s, 0x3f803f80" % v(T)] + ["v_accvgpr_write_b32 %s, %s" % (a(A_ONE + r), v(T)) for r in range(4)] + \
        ["v_accvgpr_write_b32 %s, 0" % a(A_O + r) for r in range(128)] + ["v_mov_b32 %s, 0" % v(V_L + r) for r in range(16)]
    e.ext(z[:24]); z = z[24:]
    e("s_waitcnt lgkmcnt(0)")
    G = Gaps(qk_mfmas(0, czero=True))
    for i in range(4): G.place("d", k_read(0, i, 8192), 16 + i)
    g = 0
    while z:
        try: g = G.place("v", z[0], g); z.pop(0)
        except RuntimeError: break
    e.ext(G.lines())
    for i in range(4): e(k_read(1, i, 8192))
    e.ext(z[:8]); z = z[8:]
    for qb in range(4):
        b = Sreg(0, qb, 0)
        e("v_max3_f32 %s, %s, %s, %s" % (v(T + qb), v(b), v(b + 1), v(b + 2)))
        e("v_max3_f32 %s, %s, %s, %s" % (v(T + qb), v(T + qb), v(b + 3), v(b + 4)))
        e("v_max3_f32 %s, %s, %s, %s" % (v(T + qb), v(T + qb), v(b + 5), v(b + 6)))
        e("v_max3_f32 %s, %s, %s, %s" % (v(T + qb), v(T + qb), v(b + 7), v(V_NEGM + 4 * qb)))
    for sw in ("v_permlane32_swap_b32", "v_permlane16_swap_b32"):
        for qb in range(4): e("v_mov_b32 %s, %s" % (v(T + 4 + qb), v(T + qb)))
        e.ext(z[:2]); z = z[2:]
        for qb in range(4): e("%s %s, %s" % (sw, v(T + qb), v(T + 4 + qb)))
        for qb in range(4): e("v_max_f32 %s, %s, %s" % (v(T + qb), v(T + qb), v(T + 4 + qb)))
    for qb in range(4):
        for r in range(4): e("v_sub_f32 %s, 0, %s" % (v(V_NEGM + 4 * qb + r), v(T + qb)))
    for qb in range(4):
        for r in range(8): e("v_sub_f32 %s, %s, %s" % (v(Sreg(0, qb, 0) + r), v(Sreg(0, qb, 0) + r), v(T + qb)))
    e.ext(z)
    e("s_waitcnt lgkmcnt(0)")

    def build(steps, loop, pend):
        mf = []; starts = []
        for sp in steps:
            starts.append(len(mf))
            if sp["qk"]: mf += qk_mfmas(1 - sp["buf"])
            if sp["pv"]: mf += pv_mfmas(1 - sp["buf"])
        G = Gaps(mf)
        for sp, st in zip(steps, starts):
            nq = 32 if sp["qk"] else 0
            npv = 36 if sp["pv"] else 0
            end = st + nq + npv - 1
            full = sp["qk"] and sp["pv"]
            cur = st; g = st; c2 = st
            if sp.get("bar") is not None:
                b = G.place("b", "s_barrier", st)
                G.put(b, "s", "s_waitcnt vmcnt(%d) lgkmcnt(0)" % sp["bar"])
                cur = b + 1
            if full:
                for i in range(16):
                    lo = st + 4 * (i // 2) + (i % 2)
                    cur = G.place("d", v_read(i // 2, i % 2, sp["voff"]), max(cur, lo)) + 1
            if sp.get("vnext") is not None:
                c2 = st + nq + 4 + 3
                for i in range(16):
                    lo = min(st + nq + 4 + 4 * (i // 2) + 3, end)
                    c2 = G.place("d", v_read(i // 2, i % 2, sp["vnext"]), min(max(c2, lo), end), end, force=True) + 1
            if sp.get("koff") is not None:
                if full:
                    c2 = st + 32
                    for i in range(8):
                        c2 = G.place("d", k_read(i // 4, i % 4, sp["koff"]), max(c2, st + 32 + 3 * i)) + 1
                else:
                    c2 = st + 16
                    for i in range(4): c2 = G.place("d", k_read(0, i, sp["koff"]), c2) + 1
                    for i in range(4): G.put(end, "d", k_read(1, i, sp["koff"]))
            if sp.get("dma"):
                g = st + (33 if full else 2)
                for wi, which in enumerate(sp["dma"]):
                    g = G.place("s", "s_add_u32 m0, %s, %s" % (s(S_M0K), sp["m0" + which]), g)
                    for i in range(2): g = G.place("m", kv_dma(which, i), g + 2)
                    g += 1
                g = G.place("s", "s_add_u32 %s, %s, 8192" % (s(S_KVOFF), s(S_KVOFF)), g)
            marks = {"dma": g, "kread": c2 if sp.get("koff") is not None else st, "vread": cur}
            for (after, chain) in sp.get("misc", []):
                gg = marks[after] if isinstance(after, str) else st + after
                for (kind, text) in chain:
                    gg = G.place(kind, text, gg + (1 if kind == "s" else 0), end)
                marks["last"] = max(marks.get("last", 0), gg)
            if sp["sm"]:
                ex, cv = softmax_ops(sp["buf"])
                n = end - st + 1
                if full:
                    eg = []; g = st
                    for i, x in enumerate(ex):
                        tgt = st + (i * (n - 3)) // 32
                        g = G.place("e", x, max(g, tgt), end); eg.append(g)
                    g = st
                    for i, x in enumerate(cv): g = G.place("v", x, max(g, eg[2 * i + 1] + 1), end)
                else:
                    for i, x in enumerate(ex): G.put(st + (i * (n - 1)) // 32, "e", x)
                    for i, x in enumerate(cv): G.put(min(st + ((2 * i + 1) * (n - 1)) // 32 + 1, end), "v", x)
        pre, out = auto_lgkm(G, pend, loop=loop)
        return G, pre, out

    G, pre, pend = build([dict(buf=0, qk=True, pv=False, sm=True, koff=16384)], False, [])
    e.ext(G.lines())
    for sl in range(4): e("v_add_u32 %s, 16384, %s" % (v(V_KA + sl), v(V_KA + sl)))
    e("s_mov_b32 %s, 16384\ns_mov_b32 %s, 49152" % (s(S_TOG), s(S_TMP + 2)))
    e("s_mov_b32 %s, %d\ns_mov_b32 %s, %d" % (s(S_TMP + 3), 1 * 8192, s(S_TMP + 4), 6 * 8192 + L_V))
    e("s_waitcnt vmcnt(0) lgkmcnt(0)\ns_barrier")
    for which, m0 in (("K", L_K), ("V", L_V + 5 * 8192)):
        e("s_add_u32 m0, %s, %d\ns_nop 0" % (s(S_M0K), m0))
        e(kv_dma(which, 0)); e(kv_dma(which, 1))
    e("s_add_u32 %s, %s, 8192" % (s(S_KVOFF), s(S_KVOFF)))
    e("s_cmp_lg_u32 %s, 0\ns_cbranch_scc1 NOSIG2" % s(S_WAVE))
    set_flag(e, 2)
    e("NOSIG2:")
    def adv(r, base):
        return [("s", "s_add_u32 %s, %s, 8192" % (s(r), s(r))), ("s", "s_and_b32 %s, %s, 0xffff" % (s(r), s(r)))] + \
               ([("s", "s_or_b32 %s, %s, %d" % (s(r), s(r), base))] if base else [])
    miscA = [("kread", [("v", "v_xor_b32 %s, %s, %s" % (v(V_KA + i), s(S_TMP + 2), v(V_KA + i))) for i in range(4)]),
             ("dma", adv(S_TMP + 3, 0) + adv(S_TMP + 4, L_V))]
    miscB = [(34, [("v", "v_xor_b32 %s, %s, %s" % (v(V_VA + i), s(S_TOG), v(V_VA + i))) for i in range(8)] +
                  [("s", "s_xor_b32 %s, %s, 32768" % (s(S_TOG), s(S_TOG))), ("s", "s_xor_b32 %s, %s, 32768" % (s(S_TMP + 2), s(S_TMP + 2)))]),
             ("dma", adv(S_TMP + 3, 0) + adv(S_TMP + 4, L_V)),
             ("last", [("s", "s_cmp_lt_u32 %s, %d" % (s(S_KVOFF), (63 + 8) * 8192))])]
    G, pre, pend = build([dict(buf=1, qk=True, pv=True, sm=True, koff=8192, voff=0, dma="KV", m0K=s(S_TMP + 3), m0V=s(S_TMP + 4), misc=miscA),
                          dict(buf=0, qk=True, pv=True, sm=True, koff=0, voff=8192, bar=16, dma="KV", m0K=s(S_TMP + 3), m0V=s(S_TMP + 4), misc=miscB)], True, [])
    if VERBOSE: print("loop", G.pattern())
    stamp(e, 6)
    e(".p2align 6\nATT_LOOP:")
    e.ext(G.lines())
    e("s_cbranch_scc1 ATT_LOOP")
    stamp(e, 7)
    for i in range(16): e(v_read(i // 2, i % 2, 0))
    e("s_waitcnt vmcnt(0) lgkmcnt(0)\ns_barrier")
    e("s_cmp_lg_u32 %s, 0\ns_cbranch_scc1 NOPOLL2" % s(S_WAVE))
    e(poll_load(True))
    e("NOPOLL2:")
    G, pre, pend = build([dict(buf=1, qk=False, pv=True, sm=True, vnext=8192)], False, [])
    e.ext(G.lines())
    e("s_waitcnt lgkmcnt(0)\ns_nop 1")
    e.ext(pv_mfmas(1))

NST, INFL = 4, 3
K_SA, K_SW, K_SX, K_SO = S_WQ, S_WG, S_WU, S_T
K_RND, K_OA, K_OW, K_OW2, K_CNT, K_ROT, K_FLG = S_XOFF, S_WQOFF, S_WGOFF, S_M0W, S_KVOFF, S_TOG, S_TRS
KV_A = 3; KV_XO = 7; KV_X = 8
K_ACC = [64, 144]
def kstage(st, k):
    r = 128 + 4 * (st * 9 + k)
    return a(r, 4) if r < 256 else v(224 + (r - 256), 4)
def k_addr_down(r):
    t = S_TMP
    return ["s_lshl2_add_u32 %s, %s, %s" % (s(t), s(K_RND), s(S_WAVE)), "s_add_u32 %s, %s, %d" % (s(t), s(t), 128 + 28 * (r // 7)),
            "s_add_u32 %s, %s, 1" % (s(K_RND), s(K_RND)), "s_cmp_eq_u32 %s, 7" % s(K_RND), "s_cselect_b32 %s, 0, %s" % (s(K_RND), s(K_RND)),
            "s_lshl_b32 %s, %s, 12" % (s(K_OA), s(t)), "s_mul_i32 %s, %s, 5120" % (s(K_OW), s(t)), "s_add_u32 %s, %s, 4096" % (s(K_OW2), s(K_OW))]
def k_addr_o():
    t = S_TMP
    return ["s_add_u32 %s, %s, %s" % (s(t), s(K_CNT), s(K_ROT)), "s_and_b32 %s, %s, 7" % (s(t), s(t)),
            "s_andn2_b32 %s, %s, 7" % (s(t + 1), s(K_CNT)), "s_or_b32 %s, %s, %s" % (s(t), s(t), s(t + 1)),
            "s_lshl2_add_u32 %s, %s, %s" % (s(t), s(t), s(S_WAVE)), "s_add_u32 %s, %s, 1" % (s(K_CNT), s(K_CNT)),
            "s_lshl_b32 %s, %s, 12" % (s(K_OA), s(t)), "s_mul_i32 %s, %s, 5120" % (s(K_OW), s(t)), "s_add_u32 %s, %s, 4096" % (s(K_OW2), s(K_OW))]
def k_loads(st, tag=""):
    l = []
    for k in range(5):
        l.append("buffer_load_dwordx4 %s, %s, %s, %s offen offset:%d%s ;#%s" % (kstage(st, 4 + k), v(V_L16), s(K_SW, 4), s(K_OW if k < 4 else K_OW2), (k % 4) * 1024, LDFL, tag))
    for p in range(4):
        l.append("buffer_load_dwordx4 %s, %s, %s, %s offen%s ;#%s" % (kstage(st, p), v(KV_A + p), s(K_SA, 4), s(K_OA), LDFL, tag))
    return l

def gen_tail_setup(e):
    L = V_LANE; t = S_TMP
    RT, CT = t + 4, t + 5
    e("s_bfe_u32 %s, s2, 0x20001\ns_lshl_b32 %s, %s, 3\ns_lshr_b32 %s, s2, 5\ns_add_u32 %s, %s, %s" % (s(RT), s(RT), s(RT), s(t), s(RT), s(RT), s(t)))
    e("s_and_b32 %s, s2, 1\ns_lshl_b32 %s, %s, 2\ns_bfe_u32 %s, s2, 0x20003\ns_add_u32 %s, %s, %s" % (s(CT), s(CT), s(CT), s(t + 1), s(CT), s(CT), s(t + 1)))
    e("s_lshl1_add_u32 %s, %s, %s" % (s(K_ROT), s(t + 1), s(t)))
    e("s_sub_u32 %s, %s, 7\ns_cselect_b32 %s, %s, %s" % (s(K_RND), s(K_ROT), s(K_RND), s(K_ROT), s(K_RND)))
    e("s_lshr_b32 %s, %s, 2\ns_lshl_b32 %s, %s, 7" % (s(K_FLG), s(RT), s(K_FLG), s(K_FLG)))
    e("s_lshl_b32 %s, %s, 10\nv_add_u32 %s, %s, %s" % (s(t), s(S_WAVE), v(KV_A), s(t), v(V_L16)))
    for p in range(1, 4): e("v_xor_b32 %s, %d, %s" % (v(KV_A + p), p * 1024, v(KV_A)))
    e("v_and_b32 %s, 15, %s\nv_mul_u32_u24 %s, 1280, %s\nv_lshrrev_b32 %s, 4, %s\nv_lshl_add_u32 %s, %s, 3, %s" % (v(KV_XO), v(L), v(KV_XO), v(KV_XO), v(KV_X), v(L), v(KV_XO), v(KV_X), v(KV_XO)))
    e("s_mul_i32 %s, %s, %d" % (s(t), s(RT), NSLAB * 4096))
    srd(e, K_SA, ptr(11), s(t), NSLAB * 4096)
    e("s_mul_i32 %s, %s, %d\ns_add_u32 %s, %s, %d" % (s(t), s(CT), NSLAB * 5120, s(t), s(t), WF_OFF))
    srd(e, K_SW, ptr(11), s(t), NSLAB * 5120)
    e("s_lshl_b32 %s, %s, 2\ns_add_u32 %s, %s, %s\ns_mul_i32 %s, %s, %d\ns_mul_i32 %s, %s, 160\ns_add_u32 %s, %s, %s" % (
        s(t), s(RT), s(t), s(t), s(S_WAVE), s(t), s(t), 16 * 1280, s(t + 1), s(CT), s(t), s(t), s(t + 1)))
    srd(e, K_SX, ptr(0), s(t), 15 * 1280 + 160)
    srd(e, K_SO, ptr(9), s(t), 15 * 1280 + 160)

def gen_att_epilogue(e):
    T = V_T
    stamp(e, 8)
    gen_tail_setup(e)
    e("s_cmp_lg_u32 %s, 0\ns_waitcnt vmcnt(0)\ns_cbranch_scc1 SPUN_EARLY" % s(S_WAVE))
    poll_spin(e, True, None, 2, "EARLY")
    e("s_barrier")
    e.ext(k_addr_down(0)); e.ext(k_loads(0))
    Z = V_P; C = V_P + 4
    for qb in range(4): e("v_rcp_f32 %s, %s" % (v(T + 2 * qb), v(V_L + 4 * qb)))
    e("v_max3_f32 %s, %s, %s, %s" % (v(T + 8), v(V_L), v(V_L + 4), v(V_L + 8)))
    e("v_max_f32 %s, %s, %s" % (v(T + 8), v(T + 8), v(V_L + 12)))
    for qb in range(4): e("v_mov_b32 %s, %s" % (v(T + 2 * qb + 1), v(T + 2 * qb)))
    e("v_mul_f32 %s, %s, %s" % (v(T + 8), f2u(2.0 ** 64), v(T + 8)))
    e("v_mul_f32 %s, 0, %s" % (v(T + 8), v(T + 8)))
    for qb in range(4): e("v_fma_f32 %s, %s, 0, %s" % (v(T + 8), v(V_L + 4 * qb), v(T + 8)))
    for r in range(4): e("v_mov_b32 %s, 0" % v(Z + r))
    e("s_lshl_b32 %s, %s, 14" % (s(S_TMP + 2), s(S_HEAD)))
    W = T + 12
    late = k_addr_down(1) + k_loads(1) + k_addr_down(2) + k_loads(2)
    NEARLY = opt("eld", 0)
    for sl in range(4):
        for qb in range(4):
            d0 = V_S + (sl * 4 + qb) * 4
            for b in range(2):
                for r in range(4): e("v_accvgpr_read_b32 %s, %s" % (v(W + 4 * b + r), a(A_O + ((2 * sl + b) * 4 + qb) * 4 + r)))
            for h in range(4): e("v_pk_mul_f32 %s, %s, %s" % (v(W + 2 * h, 2), v(W + 2 * h, 2), v(T + 2 * qb, 2)))
            for h in range(4): e("v_cvt_pk_bf16_f32 %s, %s, %s" % (v(d0 + h), v(W + 2 * h), v(W + 2 * h + 1)))
            e("buffer_store_dwordx4 %s, %s, %s, %s offen offset:%d%s" % (v(d0, 4), v(V_L16), s(S_AF, 4), s(S_TMP + 2), 1024 * qb, STFL))
            e("s_add_u32 %s, %s, 4096" % (s(S_TMP + 2), s(S_TMP + 2)) if qb == 3 else "s_nop 0")
            e("%s %s, %s, %s, %s" % (MF, v(C, 4), v(Z, 4), v(d0, 4), "0" if sl + qb == 0 else v(C, 4)))
    e.ext(late)
    e("v_cmp_u_f32 vcc, %s, %s" % (v(T + 8), v(C)))
    e("s_cmp_lg_u64 vcc, 0\ns_cselect_b32 %s, 1, 0" % s(S_TMP))
    e("v_mov_b32 %s, %s" % (v(W), s(S_TMP)))
    e("s_lshl_b32 %s, %s, 2\ns_add_u32 %s, %s, %d" % (s(S_TMP + 1), s(S_WAVE), s(S_TMP + 1), s(S_TMP + 1), L_MISC))
    e("v_mov_b32 %s, %s\nv_mov_b32 %s, %d" % (v(W + 1), s(S_TMP + 1), v(W + 2), L_MISC))
    e("ds_write_b32 %s, %s" % (v(W + 1), v(W)))
    stamp(e, 9)
    e("s_waitcnt lgkmcnt(0)\ns_barrier")
    e("ds_read_b128 %s, %s\ns_waitcnt lgkmcnt(0)" % (v(W + 4, 4), v(W + 2)))
    e("v_or3_b32 %s, %s, %s, %s\nv_or_b32 %s, %s, %s\ns_nop 0" % (v(W + 4), v(W + 4), v(W + 5), v(W + 6), v(W + 4), v(W + 4), v(W + 7)))
    e("v_readfirstlane_b32 %s, %s" % (s(S_TMP), v(W + 4)))
    e("s_nop 3\ns_andn2_b32 %s, %s, %s" % (s(S_TMP), s(S_TMP), s(S_RETRY)))
    e("s_cbranch_scc1 ATT_RETRY")

def gen_sig3(e):
    e("s_barrier")
    e("s_cmp_lg_u32 %s, 0\ns_cbranch_scc1 NOSIG3" % s(S_WAVE))
    set_flag(e, 3)
    e("s_cmp_lg_u32 s2, 0\ns_cbranch_scc1 NOSIG3")
    e("s_add_u32 %s, %s, 1\ns_mov_b64 exec, 1\nv_mov_b32 %s, %s\ns_movk_i32 %s, 4096" % (s(S_TMP + 7), s(S_EPOCH), v(V_PL + 1), s(S_TMP + 7), s(S_TMP + 6)))
    e("buffer_store_dword %s, off, %s, %s sc1\ns_mov_b64 exec, -1" % (v(V_PL + 1), s(S_FL, 4), s(S_TMP + 6)))
    e("NOSIG3:")
    stamp(e, 10)

def tail_mfmas(ph, st, first=False):
    mf = []
    for nb in range(5):
        for p in range(4):
            d = v(K_ACC[ph] + (nb * 4 + p) * 4, 4)
            mf.append("%s %s, %s, %s, %s" % (MF, d, kstage(st, 4 + nb), kstage(st, p), "0" if first else d))
    return mf

def tail_round(G, b, addr, loads, wait, extra=()):
    for i, x in enumerate(addr): G.put(b + i // 3, "s", x)
    g = b + 3
    for x in loads: g = G.place("m", x, g) + 1
    for k, x in extra: g = G.place(k, x, g) + 1
    assert g <= b + 19, g - b
    G.put(b + 19, "s", wait)

def reduce_write(e, m, VT):
    for p in range(1, 4):
        for nb in range(5):
            e("ds_write_b128 %s, %s offset:%d" % (v(VT + p), v(K_ACC[m] + (nb * 4 + p) * 4, 4), (m * 5 + nb) * 1024))
def reduce_read(e, m, VT):
    for nb in range(5):
        for i in range(3):
            e("ds_read_b128 %s, %s offset:%d" % (v(K_ACC[m] + (nb * 4 + i + 1) * 4, 4), v(VT), i * 10240 + (m * 5 + nb) * 1024))
def reduce_add(e, m, nb):
    b = K_ACC[m] + nb * 16
    e("s_waitcnt lgkmcnt(%d)" % (3 * (4 - nb)))
    for h in range(2):
        e("v_pk_add_f32 %s, %s, %s" % (v(b + 2 * h, 2), v(b + 2 * h, 2), v(b + 4 + 2 * h, 2)))
        e("v_pk_add_f32 %s, %s, %s" % (v(b + 8 + 2 * h, 2), v(b + 8 + 2 * h, 2), v(b + 12 + 2 * h, 2)))
    for h in range(2):
        e("v_pk_add_f32 %s, %s, %s" % (v(b + 2 * h, 2), v(b + 2 * h, 2), v(b + 8 + 2 * h, 2)))

def gen_tail(e):
    VT = V_T; t = S_TMP
    W18 = "s_waitcnt vmcnt(%d)" % (9 * (INFL - 1))
    for p in range(1, 4):
        e("s_xor_b32 %s, %s, %d\ns_mul_i32 %s, %s, 30720\ns_add_u32 %s, %s, %d" % (s(t), s(S_WAVE), p, s(t), s(t), s(t), s(t), (p - 1) * 10240))
        e("v_add_u32 %s, %s, %s" % (v(VT + p), s(t), v(V_L16)))
    e("s_mul_i32 %s, %s, 30720\nv_add_u32 %s, %s, %s" % (s(t), s(S_WAVE), v(VT), s(t), v(V_L16)))
    e("v_and_b32 %s, 31, %s\nv_lshlrev_b32 %s, 2, %s" % (v(V_PL + 3), v(V_LANE), v(V_PL + 3), v(V_PL + 3)))
    e("s_mov_b32 %s, 0" % s(K_CNT))
    PR = opt("pollr", 8)
    def rounds(r0, r1):
        mf = []
        for r in range(r0, r1): mf += tail_mfmas(0, r % NST, first=(r == 0))
        G = Gaps(mf)
        for r in range(r0, r1):
            lr = r + INFL
            tail_round(G, (r - r0) * 20, k_addr_down(lr) if lr < 14 else k_addr_o(), k_loads(lr % NST), W18)
        return G.lines()
    e("s_waitcnt vmcnt(34)")
    e.ext(rounds(0, 1))
    gen_sig3(e)
    e.ext(rounds(1, PR + 1))
    e("s_cmp_lg_u32 %s, 0\ns_cbranch_scc1 NOPOLL3" % s(S_WAVE))
    e(poll_load(False, s(K_FLG)))
    e("NOPOLL3:")
    e.ext(rounds(PR + 1, 11))
    stamp(e, 11)
    e("s_cmp_lg_u32 %s, 0\ns_cbranch_scc1 SPUN_O" % s(S_WAVE))
    if PR > 8: e("s_waitcnt vmcnt(%d)" % (9 * (10 - PR)))
    poll_spin(e, False, s(K_FLG), 3, "O")
    e("s_barrier")
    stamp(e, 12)
    e.ext(rounds(11, 14))
    for nb in range(5):
        e("buffer_load_dwordx2 %s, %s, %s, 0 offen offset:%d" % (v(KV_X + 2 * nb, 2), v(KV_XO), s(K_SX, 4), nb * 32))
    for r in range(K_ACC[1], K_ACC[1] + 80): e("v_mov_b32 %s, 0" % v(r))
    reduce_write(e, 0, VT)
    e("s_waitcnt lgkmcnt(0)\ns_barrier")
    reduce_read(e, 0, VT)
    stamp(e, 13)
    def obody(first):
        mf = []
        for st in range(NST): mf += tail_mfmas(1, (st + 14) % NST)
        G = Gaps(mf)
        for st in range(NST):
            ex = [("s", "s_cmp_lt_u32 %s, %d" % (s(K_CNT), 32 + INFL))] if st == NST - 1 else []
            tail_round(G, st * 20, k_addr_o(), k_loads((st + 14 + INFL) % NST), W18, ex)
        return G.lines()
    e(".p2align 6\nTAIL_O:")
    e.ext(obody(False))
    e("s_cbranch_scc1 TAIL_O")
    stamp(e, 14)
    e("s_waitcnt lgkmcnt(0)\ns_nop 5")
    reduce_write(e, 1, VT)
    for nb in range(5):
        b = K_ACC[0] + nb * 16
        for h in range(2):
            e("v_pk_add_f32 %s, %s, %s" % (v(b + 2 * h, 2), v(b + 2 * h, 2), v(b + 4 + 2 * h, 2)))
            e("v_pk_add_f32 %s, %s, %s" % (v(b + 8 + 2 * h, 2), v(b + 8 + 2 * h, 2), v(b + 12 + 2 * h, 2)))
        for h in range(2):
            e("v_pk_add_f32 %s, %s, %s" % (v(b + 2 * h, 2), v(b + 2 * h, 2), v(b + 8 + 2 * h, 2)))
    e("s_waitcnt lgkmcnt(0)\ns_barrier")
    reduce_read(e, 1, VT)
    for nb in range(5):
        d = K_ACC[0] + nb * 16
        for r in range(4): e("v_mul_f32 %s, %s, %s" % (v(d + 4 + r), f2u(-math.log2(math.e)), v(d + r)))
        for r in range(4): e("v_exp_f32 %s, %s" % (v(d + 4 + r), v(d + 4 + r)))
        for h in range(2):
            e("v_lshlrev_b32 %s, 16, %s" % (v(d + 8 + 2 * h), v(KV_X + 2 * nb + h)))
            e("v_and_b32 %s, 0xffff0000, %s" % (v(d + 9 + 2 * h), v(KV_X + 2 * nb + h)))
        for r in range(4): e("v_add_f32 %s, 1.0, %s" % (v(d + 4 + r), v(d + 4 + r)))
        for r in range(4): e("v_rcp_f32 %s, %s" % (v(d + 4 + r), v(d + 4 + r)))
        e("s_nop 0")
        for r in range(4): e("v_mul_f32 %s, %s, %s" % (v(d + 4 + r), v(d + 4 + r), v(d + r)))
    for nb in range(5):
        d = K_ACC[0] + nb * 16; sx = K_ACC[1] + nb * 16
        reduce_add(e, 1, nb)
        for r in range(4): e("v_fma_f32 %s, %s, %s, %s" % (v(d + 8 + r), v(sx + r), v(d + 4 + r), v(d + 8 + r)))
        for h in range(2): e("v_cvt_pk_bf16_f32 %s, %s, %s" % (v(d + 12 + h), v(d + 8 + 2 * h), v(d + 9 + 2 * h)))
        e("buffer_store_dwordx2 %s, %s, %s, 0 offen offset:%d" % (v(d + 12, 2), v(KV_XO), s(K_SO, 4), nb * 32))
    stamp(e, 15)
    if STAMPS: e("s_waitcnt vmcnt(0)")
    stamp(e, 16)
    stamp_fin(e)

def gen_kv_addr(e):
    T = V_T + 12; L = V_LANE
    e("v_and_b32 %s, 15, %s\nv_lshrrev_b32 %s, 4, %s\nv_xor_b32 %s, %s, %s" % (v(T), v(L), v(T + 1), v(L), v(T + 1), v(T + 1), v(T)))
    e("v_lshlrev_b32 %s, 8, %s\nv_lshl_add_u32 %s, %s, 4, %s" % (v(T), v(T), v(T), v(T + 1), v(T)))
    for sl in range(4): e("v_xor_b32 %s, %d, %s" % (v(V_KA + sl), sl * 64, v(T)))
    e("v_lshrrev_b32 %s, 2, %s\nv_and_b32 %s, 7, %s\nv_lshlrev_b32 %s, 8, %s\nv_lshl_add_u32 %s, %s, 5, %s" % (v(T), v(L), v(T + 1), v(T), v(T), v(T), v(T), v(T + 1), v(T)))
    e("v_and_b32 %s, 3, %s\nv_lshl_add_u32 %s, %s, 3, %s\nv_add_u32 %s, %d, %s" % (v(T + 1), v(L), v(T), v(T + 1), v(T), v(T), L_V, v(T)))
    for db in range(8): e("v_xor_b32 %s, %d, %s" % (v(V_VA + db), db * 32, v(T)))

def gen_retry(e):
    e("ATT_RETRY:")
    e("s_waitcnt vmcnt(0)\ns_mov_b32 %s, 1" % s(S_RETRY))
    gen_kv_addr(e)
    for qb in range(4): e("v_mov_b32 %s, 0xff800000" % v(V_NEGM + 4 * qb))
    e("s_mov_b32 %s, 0" % s(S_KVOFF))
    e("RETRY_LOOP:")
    e("s_barrier")
    e("s_add_u32 m0, %s, %d\ns_nop 0" % (s(S_M0K), L_K))
    e(kv_dma("K", 0)); e(kv_dma("K", 1))
    e("s_waitcnt vmcnt(0)\ns_barrier")
    for kb in range(2):
        for sl in range(4): e(k_read(kb, sl, 0))
    e("s_waitcnt lgkmcnt(0)")
    e.ext(qk_mfmas(0, czero=True))
    e("s_nop 7")
    for qb in range(4):
        b = Sreg(0, qb, 0); m = v(V_NEGM + 4 * qb)
        for k in range(4): e("v_max3_f32 %s, %s, %s, %s" % (m, m, v(b + 2 * k), v(b + 2 * k + 1)))
    e("s_add_u32 %s, %s, 8192\ns_cmp_lt_u32 %s, %d\ns_cbranch_scc1 RETRY_LOOP" % (s(S_KVOFF), s(S_KVOFF), s(S_KVOFF), 64 * 8192))
    e("s_barrier")
    kv_preload(e)
    e("s_branch ATT_START")

def gen_common_setup(e):
    T = V_T + 12; L = V_LANE
    e("s_lshl2_add_u32 %s, %s, %s" % (s(S_TMP + 1), s(S_QT), s(S_WAVE)))
    e("s_mul_i32 %s, %s, %d" % (s(S_TMP), s(S_TMP + 1), NSLAB * 4096))
    srd(e, S_AF, ptr(11), s(S_TMP), NSLAB * 4096)
    e("s_mul_i32 %s, %s, %d\ns_add_u32 %s, %s, %d" % (s(S_TMP), s(S_TMP + 1), 20 * 4096, s(S_TMP), s(S_TMP), XF_OFF))
    srd(e, S_X, ptr(11), s(S_TMP), 20 * 4096)
    srd(e, S_WF, ptr(11), WF_OFF, WF_BYTES)
    e("s_cmp_lt_u32 s2, %d\ns_cselect_b32 %s, %s, 0" % (NSLAB, s(S_WF + 2), s(S_WF + 2)))
    srd(e, S_FL, ptr(11), FL_OFF, 8192)
    e("s_lshl_b32 %s, %s, 5\ns_add_u32 %s, %s, %s\ns_lshl_b32 %s, %s, 2" % (s(S_MYFL), s(S_QT), s(S_MYFL), s(S_MYFL), s(S_HEAD), s(S_MYFL), s(S_MYFL)))
    e("s_lshl_b32 %s, %s, 19" % (s(S_TMP), s(S_HEAD)))
    srd(e, S_K, ptr(1), s(S_TMP), 524288)
    srd(e, S_V, ptr(2), s(S_TMP), 524288 + 3 * 8192)
    e("s_sub_u32 %s, %s, %d\ns_subb_u32 %s, %s, 0" % (s(S_V), s(S_V), 3 * 8192, s(S_V + 1), s(S_V + 1)))
    e("v_bfe_u32 %s, %s, 2, 2\nv_lshrrev_b32 %s, 4, %s\nv_and_b32 %s, 3, %s" % (v(T), v(L), v(T + 1), v(L), v(T + 2), v(L)))
    e("v_lshlrev_b32 %s, 12, %s" % (v(T + 3), v(T + 1)))
    e("v_mul_u32_u24 %s, 320, %s\nv_add_u32 %s, %s, %s\nv_lshl_add_u32 %s, %s, 4, %s" % (v(T + 4), v(T), v(T + 4), v(T + 4), v(T + 3), v(T + 4), v(T + 2), v(T + 4)))
    for sl in range(4): e("v_xor_b32 %s, %d, %s" % (v(V_AQ + sl), sl * 64, v(T + 4)))
    e("v_lshl_add_u32 %s, %s, 7, %s\nv_lshl_add_u32 %s, %s, 3, %s" % (v(T + 4), v(T), v(T + 3), v(T + 4), v(T + 2), v(T + 4)))
    e("v_bfe_u32 %s, %s, 3, 2\nv_lshl_add_u32 %s, %s, 5, %s" % (v(T + 5), v(L), v(T + 4), v(T + 5), v(T + 4)))
    for u in range(4): e("v_xor_b32 %s, %d, %s" % (v(V_AG + u), u * 32, v(T + 4)))
    e("v_lshrrev_b32 %s, 4, %s\ns_lshl_b32 %s, %s, 3\nv_add_u32 %s, %s, %s\nv_and_b32 %s, 15, %s" % (v(T), v(L), s(S_TMP), s(S_WAVE), v(T), s(S_TMP), v(T), v(T + 1), v(L)))
    e("v_lshlrev_b32 %s, 8, %s" % (v(T + 2), v(T)))
    for i in range(2):
        e("v_add_u32 %s, %d, %s\nv_and_b32 %s, 15, %s\nv_xor_b32 %s, %s, %s\nv_lshl_add_u32 %s, %s, 4, %s" % (v(T + 3), 4 * i, v(T), v(T + 4), v(T + 3), v(T + 4), v(T + 4), v(T + 1), v(V_KD + i), v(T + 4), v(T + 2)))
        e("v_and_b32 %s, 7, %s\nv_lshlrev_b32 %s, 1, %s\nv_xor_b32 %s, %s, %s\nv_lshl_add_u32 %s, %s, 4, %s" % (v(T + 4), v(T + 3), v(T + 4), v(T + 4), v(T + 4), v(T + 4), v(T + 1), v(V_VD + i), v(T + 4), v(T + 2)))
    gen_kv_addr(e)
    e("v_lshrrev_b32 %s, 2, %s\nv_and_b32 %s, 7, %s\nv_mul_u32_u24 %s, 1280, %s\nv_and_b32 %s, 3, %s\nv_lshl_add_u32 %s, %s, 3, %s\nv_add_u32 %s, %d, %s" % (
        v(T), v(L), v(V_TRA + 1), v(T), v(T), v(T), v(T + 2), v(L), v(T), v(T + 2), v(T), v(V_TRA), L_TR, v(T)))
    e("s_mul_i32 %s, %s, 10" % (s(S_TRU), s(S_WAVE)))
    e("s_lshl_b32 %s, %s, 1\ns_mul_i32 %s, %s, %d\ns_add_u32 %s, %s, s2\ns_mul_i32 %s, %s, 5120" % (s(S_TRD), s(S_WAVE), s(S_TRD), s(S_TRD), NSLAB, s(S_TRD), s(S_TRD), s(S_TRD), s(S_TRD)))
    e("s_and_b32 %s, s2, 127\ns_mul_i32 %s, %s, 40960" % (s(S_TRS), s(S_TRS), s(S_TRS)))
    e("s_mul_i32 %s, %s, 10240\ns_add_u32 %s, %s, %s\ns_add_u32 %s, %s, %d" % (s(S_TRM), s(S_WAVE), s(S_TRS), s(S_TRS), s(S_TRM), s(S_TRM), s(S_TRM), L_TR))

def gen_w_setup(e):
    T = V_T + 12; L = V_LANE
    e("v_lshrrev_b32 %s, 4, %s\nv_lshlrev_b32 %s, 2, %s\nv_and_b32 %s, 15, %s\nv_xor_b32 %s, %s, %s" % (v(T), v(L), v(T + 1), v(T), v(T + 2), v(L), v(T + 1), v(T + 1), v(T + 2)))
    e("v_lshlrev_b32 %s, 13, %s\nv_lshl_add_u32 %s, %s, 4, %s" % (v(T), v(T), v(V_WD), v(T + 1), v(T)))
    e("v_add_u32 %s, %d, %s" % (v(V_WD + 1), 4 * 8192 - 1024, v(V_WD)))
    e("v_lshrrev_b32 %s, 3, %s\nv_bfe_u32 %s, %s, 4, 1\nv_lshlrev_b32 %s, 1, %s" % (v(T), v(L), v(T + 1), v(L), v(T + 1), v(T + 1)))
    e("s_and_b32 %s, %s, 1\ns_lshl_b32 %s, %s, 2\nv_or_b32 %s, %s, %s" % (s(S_TMP), s(S_WAVE), s(S_TMP), s(S_TMP), v(T + 1), s(S_TMP), v(T + 1)))
    e("v_and_b32 %s, 7, %s\nv_xor_b32 %s, %s, %s" % (v(T + 2), v(L), v(T + 1), v(T + 1), v(T + 2)))
    e("v_mul_u32_u24 %s, 3456, %s\nv_lshl_add_u32 %s, %s, 4, %s" % (v(T), v(T), v(V_WD + 2), v(T + 1), v(T)))
    e("s_lshl_b32 %s, %s, 8\ns_sub_u32 %s, %d, %s" % (s(S_TMP), s(S_HEAD), s(S_TMP + 1), 640 * 8192, s(S_TMP)))
    srd(e, S_WQ, ptr(3), s(S_TMP), s(S_TMP + 1))
    for (d, p, sh) in ((S_WG, 6, 2048), (S_WU, 7, 3072)):
        e("s_lshl_b32 %s, %s, 7\ns_sub_u32 %s, %d, %s" % (s(S_TMP), s(S_FS), s(S_TMP + 1), 640 * 3456 + sh, s(S_TMP)))
        e("s_cmp_lt_u32 %s, 27\ns_cselect_b32 %s, %s, 0" % (s(S_FS), s(S_TMP + 1), s(S_TMP + 1)))
        srd(e, d, ptr(p), s(S_TMP), s(S_TMP + 1))
        e("s_sub_u32 %s, %s, %d\ns_subb_u32 %s, %s, 0" % (s(d), s(d), sh, s(d + 1), s(d + 1)))

def gen_kernel(e, name):
    T = V_T; L = V_LANE
    e(".text\n.globl %s\n.p2align 8\n.type %s,@function\n%s:" % (name, name, name))
    e("s_cmp_ge_u32 s2, 256\ns_cbranch_scc1 K_END")
    e("s_load_dwordx8 %s, s[0:1], 0\ns_load_dwordx8 %s, s[0:1], 32\ns_load_dwordx8 %s, s[0:1], 64" % (s(S_PTR, 8), s(S_PTR + 8, 8), s(S_PTR + 16, 8)))
    e("v_and_b32 %s, 63, v0\nv_lshrrev_b32 %s, 6, v0\nv_lshlrev_b32 %s, 4, %s\nv_readfirstlane_b32 %s, %s" % (v(L), v(T), v(V_L16), v(L), s(S_WAVE), v(T)))
    e("s_and_b32 %s, s2, 7\ns_lshr_b32 %s, s2, 3\ns_and_b32 %s, %s, 3\ns_lshr_b32 %s, %s, 2" % (s(S_TMP), s(S_TMP + 1), s(S_HL), s(S_TMP + 1), s(S_QT), s(S_TMP + 1)))
    e("s_lshl_b32 %s, %s, 2\ns_add_u32 %s, %s, %s" % (s(S_HEAD), s(S_TMP), s(S_HEAD), s(S_HEAD), s(S_HL)))
    e("s_lshl_b32 %s, %s, 3\ns_add_u32 %s, %s, %s" % (s(S_FS), s(S_HL), s(S_FS), s(S_FS), s(S_TMP)))
    e("s_mov_b32 %s, 0" % s(S_RETRY))
    e("s_lshl_b32 %s, %s, 12\ns_lshl_b32 %s, %s, 11" % (s(S_M0W), s(S_WAVE), s(S_M0K), s(S_WAVE)))
    if STAMPS: e("v_mov_b32 v0, -1\nv_mov_b32 v19, -1")
    stamp(e, 0)
    gen_ln_loads(e)
    if opt("tlb", 0):
        e("v_mov_b32 %s, %d\nglobal_load_dword %s, %s, %s" % (v(T + 12), FL_OFF + 4096, v(V_PL + 1), v(T + 12), s(ptr(11), 2)))
    e("s_add_u32 %s, %s, %d\ns_addc_u32 %s, %s, 0\ns_load_dword %s, %s, 0" % (s(S_TMP + 2), s(ptr(11)), FL_OFF + 4096, s(S_TMP + 3), s(ptr(11) + 1), s(S_EPOCH), s(S_TMP + 2, 2)))
    ny = 4 * NI + opt("tlb", 0)
    if opt("cpf", 1):
        e("s_getpc_b64 %s\nCODE0:" % s(S_TMP + 4, 2))
        e("s_lshr_b32 %s, s2, 3\ns_lshl2_add_u32 %s, %s, %s\ns_lshl_b32 %s, %s, 9" % (s(S_TMP), s(S_TMP), s(S_TMP), s(S_WAVE), s(S_TMP), s(S_TMP)))
        e("v_and_b32 %s, 3, %s\nv_lshlrev_b32 %s, 7, %s\nv_add_u32 %s, %s, %s\nv_min_u32 %s, CODE1-CODE0-4, %s" % (v(T + 12), v(L), v(T + 12), v(T + 12), v(T + 12), s(S_TMP), v(T + 12), v(T + 12), v(T + 12)))
        e("global_load_dword %s, %s, %s" % (v(V_PL), v(T + 12), s(S_TMP + 4, 2)))
        ny += 1
    gen_w_setup(e)
    e("s_lshl_b32 %s, %s, 16\ns_mul_i32 %s, %s, %d" % (s(S_WQOFF), s(S_WAVE), s(S_WGOFF), s(S_WAVE), 8 * 3456))
    for sl in range(NI): w_slab(e, sl, True)
    WT = opt("wt", 6)
    if WT:
        X = V_TC
        e("s_lshl2_add_u32 %s, %s, %s\ns_add_u32 %s, %s, %d" % (s(S_TMP), s(S_QT), s(S_WAVE), s(S_TMP), s(S_TMP), 32 * NI))
        e("v_lshrrev_b32 %s, 1, %s\nv_min_u32 %s, %d, %s\nv_lshlrev_b32 %s, 5, %s\nv_add_u32 %s, %s, %s" % (v(X), v(L), v(X), WT - 1, v(X), v(X), v(X), v(X), s(S_TMP), v(X)))
        e("v_and_b32 %s, 1, %s\nv_lshlrev_b32 %s, 7, %s\nv_lshl_add_u32 %s, %s, 13, %s\nv_mul_u32_u24 %s, 3456, %s" % (v(X + 1), v(L), v(X + 1), v(X + 1), v(X + 1), v(X), v(X + 1), v(X), v(X)))
        e("buffer_load_dword %s, %s, %s, 0 offen" % (v(V_PL + 1), v(X + 1), s(S_WQ, 4)))
        e("buffer_load_dword %s, %s, %s, 0 offen offset:2048" % (v(V_PL + 2), v(X), s(S_WG, 4)))
        e("buffer_load_dword %s, %s, %s, 0 offen offset:3072" % (v(V_DUMP), v(X), s(S_WU, 4)))
        ny += 3
    gen_common_setup(e)
    stamp(e, 1)
    gen_ln_compute(e, ny)
    e("s_mul_i32 %s, %s, 0x9e3779b1\ns_add_u32 %s, %s, 0x7f4a7c15" % (s(S_TAG), s(S_EPOCH), s(S_TAG), s(S_TAG)))
    e("v_and_b32 %s, 31, %s\nv_lshlrev_b32 %s, 2, %s\ns_lshl_b32 %s, %s, 7" % (v(V_PL + 3), v(L), v(V_PL + 3), v(V_PL + 3), s(S_XOFF), s(S_QT)))
    for i in range(10):
        t0, t1 = v(V_T + 12 + i), v(V_TRA + 3)
        e("v_add_u32 %s, %d, %s\nv_mul_u32_u24 %s, 820, %s\nv_lshrrev_b32 %s, 16, %s\nv_lshlrev_b32 %s, 1, %s\nv_xor_b32 %s, %s, %s\nv_lshlrev_b32 %s, 4, %s" % (
            t0, 64 * i, v(L), t1, t0, t1, t1, t1, t1, t0, t0, t1, t0, t0))
    e("s_waitcnt vmcnt(0)\ns_barrier")
    stamp(e, 18)
    e("s_cmp_lg_u32 %s, 0\ns_cbranch_scc1 SPUN_XN" % s(S_WAVE))
    set_flag(e, 1)
    e(poll_load(False, s(S_XOFF)))
    e("s_waitcnt vmcnt(0)")
    poll_spin(e, False, s(S_XOFF), 1, "XN")
    e("s_cmp_lt_u32 s2, 128")
    e("s_cselect_b32 %s, %s, %s\ns_cselect_b32 %s, %s, %s" % (s(S_T), s(ptr(4)), s(ptr(8)), s(S_T + 1), s(ptr(4) + 1), s(ptr(8) + 1)))
    e("s_mov_b32 %s, %d\ns_cselect_b32 %s, %d, %s\ns_mov_b32 %s, 0x20000" % (s(S_T + 2), 1728 * 1280, s(S_T + 2), 4096 * 1280, s(S_T + 2), s(S_T + 3)))
    e("s_barrier")
    stamp(e, 2)
    e("s_cmp_ge_u32 %s, 27\ns_cbranch_scc1 LIGHT" % s(S_FS))
    gen_proj(e, True, "H")
    e("PROJ_DONE:")
    for qb in range(4): e("v_mov_b32 %s, 0xff800000" % v(V_NEGM + 4 * qb))
    gen_attention(e)
    gen_att_epilogue(e)
    gen_tail(e)
    e("K_END:\ns_endpgm")
    gen_retry(e)
    e("LIGHT:")
    gen_proj(e, False, "L")
    e("s_branch PROJ_DONE")
    e("CODE1:")
    e(kd(name))

def main():
    e = E()
    hdr = open("cdna_kernels/%s.s.ref" % NAME).read().split("; Override launch")[0]
    e.L += hdr.strip().split("\n")
    e("; @launch grid=(256,1,1) block=(256,1,1) lds=%d" % LDS_BYTES)
    e('.amdgcn_target "amdgcn-amd-amdhsa--gfx950"')
    gen_kernel(e, NAME + "_kernel")
    t = re.sub(r" ;#\w*", "", e.text())
    errs = [x for x in asmcheck.check(t, [NAME + "_kernel"]) if x.count("buffer_load_dword v%d," % V_DUMP) != 2]
    if errs:
        print("\n".join(errs[:40])); print(len(errs), "problems")
    out = [x for x in sys.argv[1:] if x.endswith(".s")]
    open(out[0] if out else "cdna_kernels/%s.s" % NAME, "w").write(t)

if __name__ == "__main__":
    main()
```

```python
import sys, math, os, struct, re
from sched import Gaps, auto_lgkm
import asmcheck

NAME = "recurrent_scan__mha_block_cached__glu_gated_reglu__prompt"
MF = "v_mfma_f32_16x16x32_bf16"
OPT = dict(x.split("=") for x in sys.argv[1:] if "=" in x)
def opt(k, d): return type(d)(OPT.get(k, d))
VERBOSE = "-v" in sys.argv
STAMPS = "--stamps" in sys.argv
STFL = opt("stfl", " sc1").replace("_", " ")
LDFL = opt("ldfl", " sc1").replace("_", " ")

NSLAB = 182
WF_OFF = 0x1800000
WF_BYTES = 8 * NSLAB * 5120
XF_OFF = 0x2000000
FL_OFF = 0x2400000

class E:
    def __init__(self): self.L = []
    def __call__(self, s):
        for x in s.split("\n"):
            x = x.strip()
            if x: self.L.append(x)
    def ext(self, l): self.L += l
    def text(self): return "\n".join(self.L) + "\n"

def v(a, n=1): return "v%d" % a if n == 1 else "v[%d:%d]" % (a, a + n - 1)
def a(a_, n=1): return "a%d" % a_ if n == 1 else "a[%d:%d]" % (a_, a_ + n - 1)
def s(a_, n=1): return "s%d" % a_ if n == 1 else "s[%d:%d]" % (a_, a_ + n - 1)
def f2u(x): return "0x%08x" % struct.unpack("<I", struct.pack("<f", x))[0]

def kd(name, vgpr=512, acc=256):
    return """.section .rodata,"a"
.p2align 6
.amdhsa_kernel %s
  .amdhsa_next_free_vgpr %d
  .amdhsa_next_free_sgpr 102
  .amdhsa_accum_offset %d
  .amdhsa_group_segment_fixed_size 0
  .amdhsa_kernarg_size 96
  .amdhsa_user_sgpr_count 2
  .amdhsa_user_sgpr_kernarg_segment_ptr 1
  .amdhsa_system_sgpr_workgroup_id_x 1
.end_amdhsa_kernel
""" % (name, vgpr, acc)

def stamp(e, i):
    if not STAMPS: return
    e("s_waitcnt lgkmcnt(0)\ns_memtime s[98:99]\ns_memrealtime s[100:101]\ns_waitcnt lgkmcnt(0)")
    e("v_writelane_b32 v0, s98, %d\nv_writelane_b32 v19, s100, %d" % (i, i))
def stamp_fin(e):
    if not STAMPS: return
    if opt("echo", ""):
        i, j = [int(x) for x in opt("echo", "").split(".")]
        e("s_nop 1\nv_readlane_b32 s96, v19, %d\nv_readlane_b32 s97, v19, %d\nv_readlane_b32 s98, v19, 16\ns_nop 3\ns_sub_u32 s96, s97, s96\ns_min_u32 s96, s96, 20000" % (i, j))
        e("ECHO:\ns_sleep 1\ns_memrealtime s[100:101]\ns_waitcnt lgkmcnt(0)\ns_sub_u32 s97, s100, s98\ns_cmp_lt_u32 s97, s96\ns_cbranch_scc1 ECHO")
        return
    if opt("dbgout", -1) >= 0:
        e("s_cmp_lg_u32 s2, %d\ns_cbranch_scc1 NODBG\ns_cmp_lg_u32 %s, 0\ns_cbranch_scc1 NODBG" % (opt("dbgout", -1), s(S_WAVE)))
        e("v_readlane_b32 s98, v19, 0\ns_nop 3\nv_subrev_u32 v18, s98, v19\nv_lshlrev_b32 v20, 2, v1\nv_subrev_u32 v20, 4, v20")
        e("s_mov_b32 s96, %s\ns_mov_b32 s97, %s\ns_mov_b32 s98, 64\ns_mov_b32 s99, 0x20000" % (s(ptr(10)), s(ptr(10) + 1)))
        e("buffer_store_dword v18, v20, s[96:99], 0 offen\ns_waitcnt vmcnt(0)\nNODBG:")
        return
    e("s_lshl_b32 s98, s2, 2\ns_add_u32 s98, s98, %s\ns_lshl_b32 s98, s98, 9\ns_add_u32 s98, s98, %d" % (s(S_WAVE), 0x4000000))
    e("s_add_u32 s96, %s, s98\ns_addc_u32 s97, %s, 0\ns_mov_b32 s98, 512\ns_mov_b32 s99, 0x20000" % (s(ptr(11)), s(ptr(11) + 1)))
    e("v_mov_b32 v18, v0\nv_lshlrev_b32 v20, 3, v1\nbuffer_store_dwordx2 v[18:19], v20, s[96:99], 0 offen\ns_waitcnt vmcnt(0)")

def srd(e, d, base, off_lo, nbytes):
    e("s_add_u32 %s, %s, %s" % (s(d), s(base), off_lo))
    e("s_addc_u32 %s, %s, 0" % (s(d + 1), s(base + 1)))
    e("s_mov_b32 %s, %s" % (s(d + 2), nbytes))
    e("s_mov_b32 %s, 0x20000" % s(d + 3))

def resolve_vm(lines):
    out = []; ops = []; waited = set(); lastm0 = None
    for x in lines:
        if x.startswith("s_add_u32 m0,"): lastm0 = x.split(",")[1].strip()
        if " lds" in x and ";#" in x:
            tg = x.split(";#")[1].strip()
            exp = s(S_M0W) if tg.startswith("w") else (s(S_TRM) if tg == "trs" else s(S_M0K))
            assert lastm0 == exp, "M0 collision at %s" % x
        m = re.search(r"WAITVM\{([^}]*)\}", x)
        if m:
            need = set(m.group(1).split(","))
            waited |= need
            idx = [i for i, t in enumerate(ops) if t in need]
            n = len(ops) - 1 - max(idx) if idx else 63
            assert n <= 63
            x = x.replace(m.group(0), "vmcnt(%d)" % min(n, 63))
        elif x.startswith(("buffer_", "global_")):
            t = x.split(";#")[1].strip() if ";#" in x else ""
            assert t not in waited, "op %s issued after its wait" % t
            ops.append(t)
        out.append(x)
    return out

S_FL = 4
S_X, S_WQ, S_WG, S_WU, S_K, S_V, S_AF, S_T, S_WF = 8, 12, 16, 20, 24, 28, 32, 36, 40
S_PTR = 44
S_WAVE, S_HEAD, S_QT, S_FS = 68, 69, 70, 71
S_XOFF, S_WQOFF, S_WGOFF, S_M0W = 72, 73, 74, 75
S_KVOFF, S_M0K, S_TOG, S_RETRY = 76, 77, 78, 79
S_TMP = 80
S_TRS, S_TRM, S_TRD, S_TRU = 88, 89, 90, 91
S_EPOCH, S_TAG, S_MYFL = 92, 93, 94
S_HL = 3
S_LN = 84
def ptr(i): return S_PTR + 2 * i

L_K = 0
L_V = 65536
RW = 7
L_TR = 114688
L_MISC = 155648
LDS_BYTES = 163840

V_LANE = 1
V_L16 = 2
V_WD = 3
V_TRA = 6
V_AQ = 10
V_AG = 14
V_KA = 20
V_VA = 24
V_KD = 32
V_VD = 34
V_DUMP = 18
V_TC = 62
V_PL = 36
V_T = 40
V_ACCQ = 64
V_ACCG = 192
V_Q = 64
V_S = 128
V_P = 192
V_NEGM = 224
V_L = 240
A_ACCU = 0
XD = 7
A_X = 64
A_W = 176
A_TR = 208
A_ONE = 224
A_O = 0
A_KF = 128
A_VF = 160

def accreg(blk, qb):
    if blk < 8: return v(V_ACCQ + (blk * 4 + qb) * 4, 4)
    if blk < 12: return v(V_ACCG + ((blk - 8) * 4 + qb) * 4, 4)
    return a(A_ACCU + ((blk - 12) * 4 + qb) * 4, 4)

def w_read(dst, blk, j, rel):
    if blk < 8:
        ar = V_AQ + (blk >> 1); off = rel + j * 1024 + (blk & 1) * 8
    else:
        ar = V_AG + ((blk - 8) & 3); off = rel + 2048 + (1024 if blk >= 12 else 0) + j * 512
    assert 0 <= off < 65536
    return "ds_read_b64_tr_b16 %s, %s offset:%d" % (a(dst + 2 * j, 2), v(ar), off)

def w_dma(heavy, tag):
    l = ["buffer_load_dwordx4 %s, %s, %s offen lds ;#%s" % (v(V_WD), s(S_WQ, 4), s(S_WQOFF), tag),
         "buffer_load_dwordx4 %s, %s, %s offen offset:1024 lds ;#%s" % (v(V_WD + 1), s(S_WQ, 4), s(S_WQOFF), tag)]
    if heavy:
        l += ["buffer_load_dwordx4 %s, %s, %s offen offset:2048 lds ;#%s" % (v(V_WD + 2), s(S_WG, 4), s(S_WGOFF), tag),
              "buffer_load_dwordx4 %s, %s, %s offen offset:3072 lds ;#%s" % (v(V_WD + 2), s(S_WU, 4), s(S_WGOFF), tag)]
    return l

def x_load(sl, qb):
    return "buffer_load_dwordx4 %s, %s, %s, %s offen offset:%d%s ;#x%d" % (a(A_X + ((sl % XD) * 4 + qb) * 4, 4), v(V_L16), s(S_X, 4), s(S_XOFF), qb * 1024, LDFL, sl)

def kv_dma(which, i, tag=""):
    vo = (V_KD if which == "K" else V_VD) + i
    return "buffer_load_dwordx4 %s, %s, %s offen offset:%d lds ;#%s" % (v(vo), s(S_K if which == "K" else S_V, 4), s(S_KVOFF), 1024 * i, tag)

def set_flag(e, stage):
    e("s_add_u32 %s, %s, %d\ns_mov_b64 exec, 1\nv_mov_b32 %s, %s" % (s(S_TMP + 7), s(S_TAG), stage, v(V_PL), s(S_TMP + 7)))
    e("buffer_store_dword %s, off, %s, %s sc1" % (v(V_PL), s(S_FL, 4), s(S_MYFL)))
    e("s_mov_b64 exec, -1")

def poll_load(allq, qoff=None):
    if allq: return "buffer_load_dwordx4 %s, %s, %s, 0 offen sc1" % (v(V_PL, 4), v(V_L16), s(S_FL, 4))
    return "buffer_load_dword %s, %s, %s, %s offen sc1" % (v(V_PL), v(V_PL + 3), s(S_FL, 4), qoff)

def poll_spin(e, allq, qoff, stage, tag):
    e("s_mov_b32 %s, 0\ns_add_u32 %s, %s, %d" % (s(S_TMP + 7), s(S_TMP + 6), s(S_TAG), stage))
    e("SPIN_%s:" % tag)
    n = 4 if allq else 1
    for i in range(n): e("v_subrev_u32 %s, %s, %s" % (v(V_PL + i), s(S_TMP + 6), v(V_PL + i)))
    if allq: e("v_max3_u32 %s, %s, %s, %s\nv_max_u32 %s, %s, %s" % (v(V_PL), v(V_PL), v(V_PL + 1), v(V_PL + 2), v(V_PL), v(V_PL), v(V_PL + 3)))
    e("v_cmp_lt_u32 vcc, %d, %s" % (3 - stage, v(V_PL)))
    e("s_add_u32 %s, %s, 1" % (s(S_TMP + 7), s(S_TMP + 7)))
    e("s_cmp_eq_u64 vcc, 0\ns_cbranch_scc1 SPUN_%s" % tag)
    e("s_cmp_ge_u32 %s, 0x40000\ns_cbranch_scc1 SPUN_%s" % (s(S_TMP + 7), tag))
    e("s_sleep %d" % opt("slp", 2))
    e(poll_load(allq, qoff))
    e("s_waitcnt vmcnt(0)\ns_branch SPIN_%s" % tag)
    e("SPUN_%s:" % tag)

def zero_acc(e, heavy=True):
    for r in range(V_ACCQ, 256): e("v_mov_b32 %s, 0" % v(r))
    for r in range(A_ACCU, A_ACCU + 64): e("v_accvgpr_write_b32 %s, 0" % a(r))

NI = opt("ni", 1)

def gen_ln_loads(e):
    T = V_T; L = V_LANE
    R = V_ACCQ
    e("v_bfe_u32 %s, %s, 1, 3\nv_lshrrev_b32 %s, 4, %s\nv_and_b32 %s, 1, %s" % (v(T), v(L), v(T + 1), v(L), v(T + 2), v(L)))
    e("v_mul_u32_u24 %s, 1280, %s\nv_lshl_add_u32 %s, %s, 4, %s\nv_lshl_add_u32 %s, %s, 3, %s" % (v(T + 3), v(T), v(T + 3), v(T + 1), v(T + 3), v(T + 3), v(T + 2), v(T + 3)))
    e("s_lshl_b32 %s, %s, 5\ns_add_u32 %s, %s, %s\ns_mul_i32 %s, %s, %d\ns_mul_i32 %s, %s, 320" % (s(S_TMP), s(S_QT), s(S_TMP), s(S_TMP), s(S_HEAD), s(S_TMP), s(S_TMP), 8 * 1280, s(S_TMP + 1), s(S_WAVE)))
    e("s_waitcnt lgkmcnt(0)")
    srd(e, S_T, ptr(0), s(S_TMP), 8 * 1280)
    for i in range(5): e("buffer_load_dwordx2 %s, %s, %s, %s offen offset:%d" % (v(R + 2 * i, 2), v(T + 3), s(S_T, 4), s(S_TMP + 1), 64 * i))

def gen_ln_compute(e, nyounger):
    T = V_T; L = V_LANE
    R = V_ACCQ; U = R + 10
    e("v_and_b32 %s, 15, %s\nv_lshlrev_b32 %s, 3, %s\nv_lshl_add_u32 %s, %s, 8, %s" % (v(T + 3), v(L), v(T + 3), v(T + 3), v(T + 3), v(T + 1), v(T + 3)))
    e("s_lshr_b32 %s, %s, 3\ns_lshl2_add_u32 %s, %s, %s\ns_mul_i32 %s, %s, %d" % (s(S_TMP), s(S_HEAD), s(S_TMP), s(S_QT), s(S_TMP), s(S_TMP), s(S_TMP), 20 * 4096))
    e("s_bfe_u32 %s, %s, 0x20001\ns_lshl_b32 %s, %s, 10\ns_add_u32 %s, %s, %s" % (s(S_TMP + 1), s(S_HEAD), s(S_TMP + 1), s(S_TMP + 1), s(S_TMP), s(S_TMP), s(S_TMP + 1)))
    e("s_and_b32 %s, %s, 1\ns_lshl_b32 %s, %s, 7\ns_add_u32 %s, %s, %s\ns_add_u32 %s, %s, %d" % (s(S_TMP + 1), s(S_HEAD), s(S_TMP + 1), s(S_TMP + 1), s(S_TMP), s(S_TMP), s(S_TMP + 1), s(S_TMP), s(S_TMP), XF_OFF))
    srd(e, S_LN, ptr(11), s(S_TMP), 20 * 4096)
    e("s_mul_i32 %s, %s, %d" % (s(S_TMP), s(S_WAVE), 5 * 4096))
    e("v_lshlrev_b32 %s, 5, %s\nv_add_u32 %s, %d, %s\ns_lshl_b32 %s, %s, 3\nv_add_u32 %s, %s, %s" % (v(T + 4), v(T), v(T + 4), L_MISC, v(T + 4), s(S_TMP + 1), s(S_WAVE), v(T + 5), s(S_TMP + 1), v(T + 4)))
    A0 = T + 6; M = T + 8
    e("s_waitcnt vmcnt(%d)" % nyounger)
    stamp(e, 17)
    for d in range(10): e("v_lshlrev_b32 %s, 16, %s\nv_and_b32 %s, 0xffff0000, %s" % (v(U + 2 * d), v(R + d), v(U + 2 * d + 1), v(R + d)))
    e("v_pk_add_f32 %s, %s, %s\nv_pk_add_f32 %s, %s, %s" % (v(A0, 2), v(U, 2), v(U + 2, 2), v(M, 2), v(U + 4, 2), v(U + 6, 2)))
    for d in range(4, 10): e("v_pk_add_f32 %s, %s, %s" % (v((A0, M)[d & 1], 2), v((A0, M)[d & 1], 2), v(U + 2 * d, 2)))
    def reduce(dst):
        e("v_pk_add_f32 %s, %s, %s" % (v(A0, 2), v(A0, 2), v(M, 2) if dst == M else v(T + 10, 2)))
        e("v_add_f32 %s, %s, %s\ns_nop 1" % (v(A0), v(A0), v(A0 + 1)))
        e("v_add_f32_dpp %s, %s, %s quad_perm:[1,0,3,2] row_mask:0xf bank_mask:0xf" % (v(A0), v(A0), v(A0)))
        for sw in ("v_permlane32_swap_b32", "v_permlane16_swap_b32"):
            e("v_mov_b32 %s, %s\ns_nop 1\n%s %s, %s\nv_add_f32 %s, %s, %s" % (v(A0 + 1), v(A0), sw, v(A0), v(A0 + 1), v(A0), v(A0), v(A0 + 1)))
    reduce(M)
    e("v_mul_f32 %s, %s, %s\nv_mul_f32 %s, %s, %s" % (v(M), f2u(-1.0 / 160), v(A0), v(M + 1), f2u(-1.0 / 160), v(A0)))
    for d in range(10): e("v_pk_add_f32 %s, %s, %s" % (v(U + 2 * d, 2), v(U + 2 * d, 2), v(M, 2)))
    e("v_pk_mul_f32 %s, %s, %s\nv_pk_mul_f32 %s, %s, %s" % (v(A0, 2), v(U, 2), v(U, 2), v(T + 10, 2), v(U + 2, 2), v(U + 2, 2)))
    for d in range(2, 10): e("v_pk_fma_f32 %s, %s, %s, %s" % (v((A0, T + 10)[d & 1], 2), v(U + 2 * d, 2), v(U + 2 * d, 2), v((A0, T + 10)[d & 1], 2)))
    reduce(None)
    e("v_mov_b32 %s, %s" % (v(M + 1), v(A0)))
    e("ds_write_b64 %s, %s\ns_waitcnt lgkmcnt(0)\ns_barrier" % (v(T + 5), v(M, 2)))
    X = T + 12
    e("ds_read_b128 %s, %s\nds_read_b128 %s, %s offset:16\ns_waitcnt lgkmcnt(0)" % (v(X, 4), v(T + 4), v(X + 4, 4), v(T + 4)))
    e("v_pk_add_f32 %s, %s, %s\nv_pk_add_f32 %s, %s, %s\nv_pk_add_f32 %s, %s, %s" % (v(A0, 2), v(X, 2), v(X + 2, 2), v(T + 10, 2), v(X + 4, 2), v(X + 6, 2), v(A0, 2), v(A0, 2), v(T + 10, 2)))
    e("v_mul_f32 %s, 0.25, %s" % (v(A0), v(A0)) if False else "v_mul_f32 %s, %s, %s" % (v(A0), f2u(0.25), v(A0)))
    for k in range(4): e("v_sub_f32 %s, %s, %s" % (v(X + 2 * k), v(X + 2 * k), v(A0)))
    e("v_mul_f32 %s, %s, %s" % (v(X + 1), v(X), v(X)))
    for k in range(1, 4): e("v_fmac_f32 %s, %s, %s" % (v(X + 1), v(X + 2 * k), v(X + 2 * k)))
    e("v_fmac_f32 %s, %s, %s" % (v(A0 + 1), f2u(160.0), v(X + 1)))
    e("v_mov_b32 %s, %s\nv_fmac_f32 %s, %s, %s\nv_rsq_f32 %s, %s" % (v(X), f2u(1e-5), v(X), f2u(1.0 / 640), v(A0 + 1), v(X), v(X)))
    e("v_sub_f32 %s, %s, %s" % (v(M), v(A0), v(M)))
    e("v_mov_b32 %s, %s\nv_mul_f32 %s, %s, %s\nv_mul_f32 %s, %s, %s" % (v(X + 1), v(X), v(M + 1), v(M), v(X), v(M), v(M), v(X)))
    for i in range(5):
        for d in (2 * i, 2 * i + 1): e("v_pk_fma_f32 %s, %s, %s, %s" % (v(U + 2 * d, 2), v(U + 2 * d, 2), v(X, 2), v(M, 2)))
        for d in (2 * i, 2 * i + 1): e("v_cvt_pk_bf16_f32 %s, %s, %s" % (v(R + d), v(U + 2 * d), v(U + 2 * d + 1)))
        e("buffer_store_dwordx2 %s, %s, %s, %s offen%s" % (v(R + 2 * i, 2), v(T + 3), s(S_LN, 4), s(S_TMP), STFL))
        if i < 4: e("s_add_u32 %s, %s, 4096" % (s(S_TMP), s(S_TMP)))

def w_slab(e, sl, heavy):
    e("s_add_u32 m0, %s, %d\ns_nop 0" % (s(S_M0W), (sl % RW) * 16384))
    e.ext(w_dma(heavy, "w%d" % sl))
    e("s_add_u32 %s, %s, %d\ns_add_u32 %s, %s, %d" % (s(S_WQOFF), s(S_WQOFF), 32 * 8192, s(S_WGOFF), s(S_WGOFF), 32 * 3456))

def gen_proj(e0, heavy, tag):
    e = E()
    NB = 16 if heavy else 8
    NG = NB * 4
    T = V_T; L = V_LANE
    e("s_mov_b32 %s, 0" % s(S_XOFF))
    NX0 = opt("nx0", 2)
    defer = []
    for sl in range(RW):
        t = E()
        if sl >= NI: w_slab(t, sl, heavy)
        if sl < XD - 1:
            for qb in range(4): t(x_load(sl, qb))
            t("s_add_u32 %s, %s, 4096" % (s(S_XOFF), s(S_XOFF)))
        if sl < NX0: e.ext(t.L)
        else: defer += [x for x in t.L if not x.startswith("s_nop")]
    if NI == 0: e("s_waitcnt WAITVM{w0}\ns_barrier")
    mf = []
    for sl in range(20):
        for f in range(NB):
            wr = a(A_W + 4 * (f % 8), 4)
            for qb in range(4):
                mf.append("%s %s, %s, %s, %s" % (MF, accreg(f, qb), wr, a(A_X + ((sl % XD) * 4 + qb) * 4, 4), accreg(f, qb) if sl else "0"))
    G = Gaps(mf)
    NPRE = 5 if heavy else 3
    base = lambda sl: 65536 if (sl % RW) >= 4 else 0
    rel = lambda sl: (sl % RW) * 16384 - base(sl)
    aregs = list(range(V_AQ, V_AQ + 4)) + (list(range(V_AG, V_AG + 4)) if heavy else [])
    pre_reads = [w_read(A_W + 4 * f, f, j, rel(0)) for f in range(NPRE) for j in range(2)]
    late = {13: [("V", 4)], 14: [("K", 0), ("K", 1)], 15: [("K", 2), ("K", 3)], 16: [("K", 4), ("K", 5)], 17: [("K", 6), ("K", 7)],
            18: [("V", 0), ("V", 1)], 19: [("V", 2), ("V", 3)]}
    bars = {}
    ramp = list(defer)
    RPS = opt("rps", 14 if heavy else 9)
    for sl in range(20):
        st = sl * NG; end = st + NG - 1
        g = st
        xl = []
        if sl + XD - 1 < 20:
            xl = [x_load(sl + XD - 1, qb) for qb in range(4)] + ["s_add_u32 %s, %s, 4096" % (s(S_XOFF), s(S_XOFF))]
        if ramp is not None:
            ramp += xl
        else:
            for x in xl[:4]: g = G.place("m", x, g + 1) + 1
            if xl: G.place("s", xl[4], g)
        cur = st
        for f in range(NPRE, NB):
            lo = st if f < 8 else st + 4 * (f - 8) + 3
            for j in range(2): cur = G.place("d", w_read(A_W + 4 * (f % 8), f, j, rel(sl)), max(lo, cur), st + 4 * f - 5)
        lastread = cur
        if sl < 19 and base(sl + 1) != base(sl):
            d = base(sl + 1) - base(sl)
            gg = lastread
            for r in aregs:
                gg = G.place("v", ("v_add_u32 %s, %d, %s" % (v(r), d, v(r))) if d > 0 else ("v_subrev_u32 %s, %d, %s" % (v(r), -d, v(r))), gg + (0 if gg > lastread else 1))
            lastread = max(lastread, gg - 6)
        b = G.place("b", "s_barrier", lastread + 7)
        need = ["x%d" % (sl + 1), "w%d" % (sl + 1)] + (["trs"] if sl == 19 else [])
        G.put(b, "s", "s_waitcnt WAITVM{%s} lgkmcnt(0)" % ",".join(need))
        bars[sl] = b
        g = b
        if ramp is not None:
            t = E(); w_slab(t, sl + RW, heavy)
            post = [x for x in t.L if not x.startswith("s_nop")]
            rampinfo = (st, b, end, post)
        elif sl + RW < 20:
            g = G.place("s", "s_add_u32 m0, %s, %d" % (s(S_M0W), (sl % RW) * 16384), b + 1)
            for d in w_dma(heavy, "w%d" % (sl + RW)): g = G.place("m", d, g + 2)
            g = G.place("s", "s_add_u32 %s, %s, %d" % (s(S_WQOFF), s(S_WQOFF), 32 * 8192), g + 1)
            if heavy: g = G.place("s", "s_add_u32 %s, %s, %d" % (s(S_WGOFF), s(S_WGOFF), 32 * 3456), g + 1)
        else:
            for which, i in late[sl]:
                g = G.place("s", "s_add_u32 m0, %s, %d" % (s(S_M0K), (L_K if which == "K" else L_V) + i * 8192), g + 1)
                g = G.place("s", "s_mov_b32 %s, %d" % (s(S_KVOFF), (i + (3 if which == "V" else 0)) * 8192), g + 1)
                for k in range(2): g = G.place("m", kv_dma(which, k, "%s%d" % (which, i)), g + 1 + k)
        assert g <= end, (sl, g - st)
        if sl < 19:
            cur = b + 1
            for f in range(NPRE):
                lo = st + 4 * (NB - 8 + f) + 3
                for j in range(2): cur = G.place("d", w_read(A_W + 4 * f, f, j, rel(sl + 1)), max(lo, cur), end + 4 * f - 4 + opt("slack", 0))
        if ramp is not None:
            st_, b_, end_, post = rampinfo
            q = [(x, st_) for x in ramp] + [(x, b_ + 1) for x in post]
            g = st_; nv = 0
            while q and nv < RPS:
                x, lo = q[0]
                k = "m" if x.startswith("buffer") else "s"
                try: g = G.place(k, x, max(g + 1, lo), end_)
                except RuntimeError: break
                q.pop(0); nv += (k == "m")
            while q and not q[0][0].startswith("buffer") and " m0," not in q[0][0]:
                G.va[g].append(q.pop(0)[0])
            ramp = [x for x, _ in q] if q else None
    WT = opt("wt", 6)
    if WT:
        k = 1
        for sl in [int(x) for x in opt("wts", "0.4.8").split(".")]:
            g = sl * NG + opt("wtg", 0)
            seq = [("s", "s_mov_b32 %s, %d" % (s(S_TMP), k * WT * 32 * 8192)), ("m", "buffer_load_dword %s, %s, %s, %s offen" % (v(V_DUMP), v(V_TC + 1), s(S_WQ, 4), s(S_TMP)))]
            if heavy:
                seq += [("s", "s_mov_b32 %s, %d" % (s(S_TMP), k * WT * 32 * 3456)),
                        ("m", "buffer_load_dword %s, %s, %s, %s offen offset:2048" % (v(V_DUMP), v(V_TC), s(S_WG, 4), s(S_TMP))),
                        ("m", "buffer_load_dword %s, %s, %s, %s offen offset:3072" % (v(V_DUMP), v(V_TC), s(S_WU, 4), s(S_TMP)))]
            for kk, x in seq: g = G.place(kk, x, g + 1)
            k += 1
    if opt("kvt", 9):
        g = opt("kvt", 9) * NG
        t0 = v(V_TC)
        seq = [("v", "v_min_u32 %s, 15, %s" % (t0, v(L))), ("v", "v_lshlrev_b32 %s, 7, %s" % (t0, t0)),
               ("s", "s_lshl2_add_u32 %s, %s, %s" % (s(S_TMP), s(S_QT), s(S_WAVE))), ("s", "s_lshl_b32 %s, %s, 11" % (s(S_TMP), s(S_TMP))),
               ("m", "buffer_load_dword %s, %s, %s, %s offen" % (v(V_DUMP), t0, s(S_K, 4), s(S_TMP))),
               ("s", "s_add_u32 %s, %s, %d" % (s(S_TMP), s(S_TMP), 3 * 8192)),
               ("m", "buffer_load_dword %s, %s, %s, %s offen" % (v(V_DUMP), t0, s(S_V, 4), s(S_TMP)))]
        for kk, x in seq: g = G.place(kk, x, g + 1)
    TS = opt("ts", 13); TPS = opt("tps", 5)
    for i in range(10):
        sl = TS + i // TPS; st = sl * NG
        g = st + (9 if sl + XD - 1 < 20 else 0) if i % TPS == 0 else gprev
        t0 = v(V_T + 12 + i)
        seq = [
               ("s", "s_add_u32 m0, %s, %d" % (s(S_TRM), i * 1024)),
               ("m", "buffer_load_dwordx4 %s, %s, %s offen lds ;#trs" % (t0, s(S_T, 4), s(S_TRS)))]
        if heavy:
            for k, x in seq: g = G.place(k, x, g + (1 if k != "v" else 0), bars[sl] - 1)
            gprev = g + 1
        else:
            for k, x in seq: G.va[bars[sl] - 1].append(x if k != "m" else "s_nop 0\n" + x)
            gprev = 0
    trpost = []
    g = bars[19] + 1
    for i in range(10):
        t0 = v(V_T + 12 + i)
        pre = ["v_add_u32 %s, %d, %s" % (t0, i, v(V_TRA + 2)), "v_xor_b32 %s, %s, %s" % (t0, t0, v(V_TRA + 1)), "v_lshl_add_u32 %s, %s, 5, %s" % (t0, t0, v(V_TRA))]
        if i == 0: pre = ["v_mov_b32 %s, %s" % (v(V_TRA + 2), s(S_TRU))] + pre
        gg = bars[17] + 1 if i == 0 else gv
        for x in pre: gg = G.place("v", x, gg, bars[19] - 1, force=True)
        gv = gg
        for j in range(2):
            x = "ds_read_b64_tr_b16 %s, %s offset:%d" % (a(A_TR + 4 * i + 2 * j, 2), t0, j * 16 * 1280)
            try: g = G.place("d", x, g) + 1
            except RuntimeError: trpost.append(x); g = G.n()
    trst = []
    adds = {4: 4096, 5: NSLAB * 5120 - 4096, 9: 4096}
    for i in range(10):
        if i in adds: trst.append("s_add_u32 %s, %s, %d" % (s(S_TRD), s(S_TRD), adds[i]))
        trst.append("buffer_store_dwordx4 %s, %s, %s, %s offen offset:%d%s ;#trd" % (a(A_TR + 4 * i, 4), v(V_L16), s(S_WF, 4), s(S_TRD), ((i % 5) % 4) * 1024, STFL))
    auto_lgkm(G)
    if VERBOSE: print("proj", tag, G.pattern())
    e.ext(pre_reads)
    e("s_waitcnt WAITVM{x0} lgkmcnt(0)")
    stamp(e, 3)
    nm = 0
    for x in G.lines():
        if x.startswith("v_mfma"):
            if STAMPS and nm % (4 * NG) == 0 and nm: stamp(e, 18 + nm // (4 * NG))
            nm += 1
        e(x)
    e.ext(trpost)
    stamp(e, 4)
    U = T
    CQ = T + 8
    c = math.log2(math.e) / math.sqrt(128.0)
    e("v_mov_b32 %s, %s\nv_mov_b32 %s, %s" % (v(CQ), f2u(c), v(CQ + 1), f2u(c)))
    e("s_mov_b32 %s, %d" % (s(S_KVOFF), 8 * 8192))
    if not heavy: e("s_nop 4")
    def qconv(sl):
        for qb in range(4):
            for b in range(2):
                g0 = V_ACCQ + ((2 * sl + b) * 4 + qb) * 4
                for h in range(2): e("v_pk_mul_f32 %s, %s, %s" % (v(g0 + 2 * h, 2), v(g0 + 2 * h, 2), v(CQ, 2)))
            d0 = V_Q + (sl * 4 + qb) * 4
            for b in range(2):
                g0 = V_ACCQ + ((2 * sl + b) * 4 + qb) * 4
                e("v_cvt_pk_bf16_f32 %s, %s, %s" % (v(d0 + 2 * b), v(g0), v(g0 + 1)))
                e("v_cvt_pk_bf16_f32 %s, %s, %s" % (v(d0 + 2 * b + 1), v(g0 + 2), v(g0 + 3)))
    if heavy:
        for fb in range(4):
            for qb in range(4):
                g0 = V_ACCG + (fb * 4 + qb) * 4
                u0 = U + 4 * (qb & 1)
                for r in range(4): e("v_max_f32 %s, 0, %s" % (v(g0 + r), v(g0 + r)))
                for r in range(4): e("v_accvgpr_read_b32 %s, %s" % (v(u0 + r), a(A_ACCU + (fb * 4 + qb) * 4 + r)))
                for h in range(2): e("v_pk_mul_f32 %s, %s, %s" % (v(g0 + 2 * h, 2), v(g0 + 2 * h, 2), v(u0 + 2 * h, 2)))
                d0 = V_ACCG + ((fb & ~1) * 4 + qb) * 4 + 2 * (fb & 1)
                e("v_cvt_pk_bf16_f32 %s, %s, %s" % (v(d0), v(g0), v(g0 + 1)))
                e("v_cvt_pk_bf16_f32 %s, %s, %s" % (v(d0 + 1), v(g0 + 2), v(g0 + 3)))
                if fb & 1:
                    if qb == 0: e("s_lshl_b32 %s, %s, 13\ns_add_u32 %s, %s, %d" % (s(S_TMP), s(S_FS), s(S_TMP), s(S_TMP), (128 + (fb >> 1)) * 4096))
                    e("buffer_store_dwordx4 %s, %s, %s, %s offen offset:%d%s" % (v(d0 - 2, 4), v(V_L16), s(S_AF, 4), s(S_TMP), 1024 * qb, STFL))
    e("s_waitcnt lgkmcnt(0)")
    for sl in range(4):
        qconv(sl)
        k = (len(trst) + 3 - sl) // (4 - sl)
        e.ext(trst[:k]); trst = trst[k:]
    e("s_waitcnt WAITVM{K0,K1,K2,K3}")
    e0.ext(resolve_vm(e.L))

def kv_preload(e):
    e("s_mov_b32 %s, 0" % s(S_KVOFF))
    for i in range(8):
        e("s_add_u32 m0, %s, %d\ns_nop 0" % (s(S_M0K), L_K + i * 8192))
        e(kv_dma("K", 0)); e(kv_dma("K", 1))
        if i >= 3:
            e("s_add_u32 m0, %s, %d\ns_nop 0" % (s(S_M0K), L_V + (i - 3) * 8192))
            e(kv_dma("V", 0)); e(kv_dma("V", 1))
        e("s_add_u32 %s, %s, 8192" % (s(S_KVOFF), s(S_KVOFF)))
    e("s_waitcnt vmcnt(0)")

def Sreg(buf, qb, kb): return V_S + buf * 32 + qb * 8 + kb * 4
def Preg(buf, qb): return V_P + buf * 16 + qb * 4

def qk_mfmas(buf, czero=False):
    out = []
    for kb in range(2):
        for qb in range(4):
            for sl in range(4):
                d = v(Sreg(buf, qb, kb), 4)
                c = d if sl else ("0" if czero else v(V_NEGM + 4 * qb, 4))
                out.append("%s %s, %s, %s, %s" % (MF, d, a(A_KF + (kb * 4 + sl) * 4, 4), v(V_Q + (sl * 4 + qb) * 4, 4), c))
    return out

def pv_mfmas(buf):
    out = []
    for qb in range(4):
        out.append("%s %s, %s, %s, %s" % (MF, v(V_L + 4 * qb, 4), a(A_ONE, 4), v(Preg(buf, qb), 4), v(V_L + 4 * qb, 4)))
    for db in range(8):
        for qb in range(4):
            o = a(A_O + (db * 4 + qb) * 4, 4)
            out.append("%s %s, %s, %s, %s" % (MF, o, a(A_VF + db * 4, 4), v(Preg(buf, qb), 4), o))
    return out

def k_read(kb, sl, off): return "ds_read_b128 %s, %s offset:%d" % (a(A_KF + (kb * 4 + sl) * 4, 4), v(V_KA + sl), off + kb * 4096)
def v_read(db, j, off): return "ds_read_b64_tr_b16 %s, %s offset:%d" % (a(A_VF + db * 4 + 2 * j, 2), v(V_VA + db), off + j * 4096)

def softmax_ops(buf):
    ex = []; cv = []
    for qb in range(4):
        for kb in range(2):
            for r in range(4):
                x = v(Sreg(buf, qb, kb) + r)
                ex.append("v_exp_f32 %s, %s" % (x, x))
            for h in range(2):
                b = Sreg(buf, qb, kb) + 2 * h
                cv.append("v_cvt_pk_bf16_f32 %s, %s, %s" % (v(Preg(buf, qb) + kb * 2 + h), v(b), v(b + 1)))
    return ex, cv

def gen_attention(e):
    T = V_T
    e("ATT_START:")
    stamp(e, 5)
    e("s_barrier")
    for kb in range(2):
        for sl in range(4): e(k_read(kb, sl, 0))
    z = ["v_mov_b32 %s, 0x3f803f80" % v(T)] + ["v_accvgpr_write_b32 %s, %s" % (a(A_ONE + r), v(T)) for r in range(4)] + \
        ["v_accvgpr_write_b32 %s, 0" % a(A_O + r) for r in range(128)] + ["v_mov_b32 %s, 0" % v(V_L + r) for r in range(16)]
    e.ext(z[:24]); z = z[24:]
    e("s_waitcnt lgkmcnt(0)")
    G = Gaps(qk_mfmas(0, czero=True))
    for i in range(4): G.place("d", k_read(0, i, 8192), 16 + i)
    g = 0
    while z:
        try: g = G.place("v", z[0], g); z.pop(0)
        except RuntimeError: break
    e.ext(G.lines())
    for i in range(4): e(k_read(1, i, 8192))
    e.ext(z[:8]); z = z[8:]
    for qb in range(4):
        b = Sreg(0, qb, 0)
        e("v_max3_f32 %s, %s, %s, %s" % (v(T + qb), v(b), v(b + 1), v(b + 2)))
        e("v_max3_f32 %s, %s, %s, %s" % (v(T + qb), v(T + qb), v(b + 3), v(b + 4)))
        e("v_max3_f32 %s, %s, %s, %s" % (v(T + qb), v(T + qb), v(b + 5), v(b + 6)))
        e("v_max3_f32 %s, %s, %s, %s" % (v(T + qb), v(T + qb), v(b + 7), v(V_NEGM + 4 * qb)))
    for sw in ("v_permlane32_swap_b32", "v_permlane16_swap_b32"):
        for qb in range(4): e("v_mov_b32 %s, %s" % (v(T + 4 + qb), v(T + qb)))
        e.ext(z[:2]); z = z[2:]
        for qb in range(4): e("%s %s, %s" % (sw, v(T + qb), v(T + 4 + qb)))
        for qb in range(4): e("v_max_f32 %s, %s, %s" % (v(T + qb), v(T + qb), v(T + 4 + qb)))
    for qb in range(4):
        for r in range(4): e("v_sub_f32 %s, 0, %s" % (v(V_NEGM + 4 * qb + r), v(T + qb)))
    for qb in range(4):
        for r in range(8): e("v_sub_f32 %s, %s, %s" % (v(Sreg(0, qb, 0) + r), v(Sreg(0, qb, 0) + r), v(T + qb)))
    e.ext(z)
    e("s_waitcnt lgkmcnt(0)")

    def build(steps, loop, pend):
        mf = []; starts = []
        for sp in steps:
            starts.append(len(mf))
            if sp["qk"]: mf += qk_mfmas(1 - sp["buf"])
            if sp["pv"]: mf += pv_mfmas(1 - sp["buf"])
        G = Gaps(mf)
        for sp, st in zip(steps, starts):
            nq = 32 if sp["qk"] else 0
            npv = 36 if sp["pv"] else 0
            end = st + nq + npv - 1
            full = sp["qk"] and sp["pv"]
            cur = st; g = st; c2 = st
            if sp.get("bar") is not None:
                b = G.place("b", "s_barrier", st)
                G.put(b, "s", "s_waitcnt vmcnt(%d) lgkmcnt(0)" % sp["bar"])
                cur = b + 1
            if full:
                for i in range(16):
                    lo = st + 4 * (i // 2) + (i % 2)
                    cur = G.place("d", v_read(i // 2, i % 2, sp["voff"]), max(cur, lo)) + 1
            if sp.get("vnext") is not None:
                c2 = st + nq + 4 + 3
                for i in range(16):
                    lo = min(st + nq + 4 + 4 * (i // 2) + 3, end)
                    c2 = G.place("d", v_read(i // 2, i % 2, sp["vnext"]), min(max(c2, lo), end), end, force=True) + 1
            if sp.get("koff") is not None:
                if full:
                    c2 = st + 32
                    for i in range(8):
                        c2 = G.place("d", k_read(i // 4, i % 4, sp["koff"]), max(c2, st + 32 + 3 * i)) + 1
                else:
                    c2 = st + 16
                    for i in range(4): c2 = G.place("d", k_read(0, i, sp["koff"]), c2) + 1
                    for i in range(4): G.put(end, "d", k_read(1, i, sp["koff"]))
            if sp.get("dma"):
                g = st + (33 if full else 2)
                for wi, which in enumerate(sp["dma"]):
                    g = G.place("s", "s_add_u32 m0, %s, %s" % (s(S_M0K), sp["m0" + which]), g)
                    for i in range(2): g = G.place("m", kv_dma(which, i), g + 2)
                    g += 1
                g = G.place("s", "s_add_u32 %s, %s, 8192" % (s(S_KVOFF), s(S_KVOFF)), g)
            marks = {"dma": g, "kread": c2 if sp.get("koff") is not None else st, "vread": cur}
            for (after, chain) in sp.get("misc", []):
                gg = marks[after] if isinstance(after, str) else st + after
                for (kind, text) in chain:
                    gg = G.place(kind, text, gg + (1 if kind == "s" else 0), end)
                marks["last"] = max(marks.get("last", 0), gg)
            if sp["sm"]:
                ex, cv = softmax_ops(sp["buf"])
                n = end - st + 1
                if full:
                    eg = []; g = st
                    for i, x in enumerate(ex):
                        tgt = st + (i * (n - 3)) // 32
                        g = G.place("e", x, max(g, tgt), end); eg.append(g)
                    g = st
                    for i, x in enumerate(cv): g = G.place("v", x, max(g, eg[2 * i + 1] + 1), end)
                else:
                    for i, x in enumerate(ex): G.put(st + (i * (n - 1)) // 32, "e", x)
                    for i, x in enumerate(cv): G.put(min(st + ((2 * i + 1) * (n - 1)) // 32 + 1, end), "v", x)
        pre, out = auto_lgkm(G, pend, loop=loop)
        return G, pre, out

    G, pre, pend = build([dict(buf=0, qk=True, pv=False, sm=True, koff=16384)], False, [])
    e.ext(G.lines())
    for sl in range(4): e("v_add_u32 %s, 16384, %s" % (v(V_KA + sl), v(V_KA + sl)))
    e("s_mov_b32 %s, 16384\ns_mov_b32 %s, 49152" % (s(S_TOG), s(S_TMP + 2)))
    e("s_mov_b32 %s, %d\ns_mov_b32 %s, %d" % (s(S_TMP + 3), 1 * 8192, s(S_TMP + 4), 6 * 8192 + L_V))
    e("s_waitcnt vmcnt(0) lgkmcnt(0)\ns_barrier")
    for which, m0 in (("K", L_K), ("V", L_V + 5 * 8192)):
        e("s_add_u32 m0, %s, %d\ns_nop 0" % (s(S_M0K), m0))
        e(kv_dma(which, 0)); e(kv_dma(which, 1))
    e("s_add_u32 %s, %s, 8192" % (s(S_KVOFF), s(S_KVOFF)))
    e("s_cmp_lg_u32 %s, 0\ns_cbranch_scc1 NOSIG2" % s(S_WAVE))
    set_flag(e, 2)
    e("NOSIG2:")
    def adv(r, base):
        return [("s", "s_add_u32 %s, %s, 8192" % (s(r), s(r))), ("s", "s_and_b32 %s, %s, 0xffff" % (s(r), s(r)))] + \
               ([("s", "s_or_b32 %s, %s, %d" % (s(r), s(r), base))] if base else [])
    miscA = [("kread", [("v", "v_xor_b32 %s, %s, %s" % (v(V_KA + i), s(S_TMP + 2), v(V_KA + i))) for i in range(4)]),
             ("dma", adv(S_TMP + 3, 0) + adv(S_TMP + 4, L_V))]
    miscB = [(34, [("v", "v_xor_b32 %s, %s, %s" % (v(V_VA + i), s(S_TOG), v(V_VA + i))) for i in range(8)] +
                  [("s", "s_xor_b32 %s, %s, 32768" % (s(S_TOG), s(S_TOG))), ("s", "s_xor_b32 %s, %s, 32768" % (s(S_TMP + 2), s(S_TMP + 2)))]),
             ("dma", adv(S_TMP + 3, 0) + adv(S_TMP + 4, L_V)),
             ("last", [("s", "s_cmp_lt_u32 %s, %d" % (s(S_KVOFF), (63 + 8) * 8192))])]
    G, pre, pend = build([dict(buf=1, qk=True, pv=True, sm=True, koff=8192, voff=0, dma="KV", m0K=s(S_TMP + 3), m0V=s(S_TMP + 4), misc=miscA),
                          dict(buf=0, qk=True, pv=True, sm=True, koff=0, voff=8192, bar=16, dma="KV", m0K=s(S_TMP + 3), m0V=s(S_TMP + 4), misc=miscB)], True, [])
    if VERBOSE: print("loop", G.pattern())
    stamp(e, 6)
    e(".p2align 6\nATT_LOOP:")
    e.ext(G.lines())
    e("s_cbranch_scc1 ATT_LOOP")
    stamp(e, 7)
    for i in range(16): e(v_read(i // 2, i % 2, 0))
    e("s_waitcnt vmcnt(0) lgkmcnt(0)\ns_barrier")
    e("s_cmp_lg_u32 %s, 0\ns_cbranch_scc1 NOPOLL2" % s(S_WAVE))
    e(poll_load(True))
    e("NOPOLL2:")
    G, pre, pend = build([dict(buf=1, qk=False, pv=True, sm=True, vnext=8192)], False, [])
    e.ext(G.lines())
    e("s_waitcnt lgkmcnt(0)\ns_nop 1")
    e.ext(pv_mfmas(1))

NST, INFL = 4, 3
K_SA, K_SW, K_SX, K_SO = S_WQ, S_WG, S_WU, S_T
K_RND, K_OA, K_OW, K_OW2, K_CNT, K_ROT, K_FLG = S_XOFF, S_WQOFF, S_WGOFF, S_M0W, S_KVOFF, S_TOG, S_TRS
KV_A = 3; KV_XO = 7; KV_X = 8
K_ACC = [64, 144]
def kstage(st, k):
    r = 128 + 4 * (st * 9 + k)
    return a(r, 4) if r < 256 else v(224 + (r - 256), 4)
def k_addr_down(r):
    t = S_TMP
    return ["s_lshl2_add_u32 %s, %s, %s" % (s(t), s(K_RND), s(S_WAVE)), "s_add_u32 %s, %s, %d" % (s(t), s(t), 128 + 28 * (r // 7)),
            "s_add_u32 %s, %s, 1" % (s(K_RND), s(K_RND)), "s_cmp_eq_u32 %s, 7" % s(K_RND), "s_cselect_b32 %s, 0, %s" % (s(K_RND), s(K_RND)),
            "s_lshl_b32 %s, %s, 12" % (s(K_OA), s(t)), "s_mul_i32 %s, %s, 5120" % (s(K_OW), s(t)), "s_add_u32 %s, %s, 4096" % (s(K_OW2), s(K_OW))]
def k_addr_o():
    t = S_TMP
    return ["s_add_u32 %s, %s, %s" % (s(t), s(K_CNT), s(K_ROT)), "s_and_b32 %s, %s, 7" % (s(t), s(t)),
            "s_andn2_b32 %s, %s, 7" % (s(t + 1), s(K_CNT)), "s_or_b32 %s, %s, %s" % (s(t), s(t), s(t + 1)),
            "s_lshl2_add_u32 %s, %s, %s" % (s(t), s(t), s(S_WAVE)), "s_add_u32 %s, %s, 1" % (s(K_CNT), s(K_CNT)),
            "s_lshl_b32 %s, %s, 12" % (s(K_OA), s(t)), "s_mul_i32 %s, %s, 5120" % (s(K_OW), s(t)), "s_add_u32 %s, %s, 4096" % (s(K_OW2), s(K_OW))]
def k_loads(st, tag=""):
    l = []
    for k in range(5):
        l.append("buffer_load_dwordx4 %s, %s, %s, %s offen offset:%d%s ;#%s" % (kstage(st, 4 + k), v(V_L16), s(K_SW, 4), s(K_OW if k < 4 else K_OW2), (k % 4) * 1024, LDFL, tag))
    for p in range(4):
        l.append("buffer_load_dwordx4 %s, %s, %s, %s offen%s ;#%s" % (kstage(st, p), v(KV_A + p), s(K_SA, 4), s(K_OA), LDFL, tag))
    return l

def gen_tail_setup(e):
    L = V_LANE; t = S_TMP
    RT, CT = t + 4, t + 5
    e("s_bfe_u32 %s, s2, 0x20001\ns_lshl_b32 %s, %s, 3\ns_lshr_b32 %s, s2, 5\ns_add_u32 %s, %s, %s" % (s(RT), s(RT), s(RT), s(t), s(RT), s(RT), s(t)))
    e("s_and_b32 %s, s2, 1\ns_lshl_b32 %s, %s, 2\ns_bfe_u32 %s, s2, 0x20003\ns_add_u32 %s, %s, %s" % (s(CT), s(CT), s(CT), s(t + 1), s(CT), s(CT), s(t + 1)))
    e("s_lshl1_add_u32 %s, %s, %s" % (s(K_ROT), s(t + 1), s(t)))
    e("s_sub_u32 %s, %s, 7\ns_cselect_b32 %s, %s, %s" % (s(K_RND), s(K_ROT), s(K_RND), s(K_ROT), s(K_RND)))
    e("s_lshr_b32 %s, %s, 2\ns_lshl_b32 %s, %s, 7" % (s(K_FLG), s(RT), s(K_FLG), s(K_FLG)))
    e("s_lshl_b32 %s, %s, 10\nv_add_u32 %s, %s, %s" % (s(t), s(S_WAVE), v(KV_A), s(t), v(V_L16)))
    for p in range(1, 4): e("v_xor_b32 %s, %d, %s" % (v(KV_A + p), p * 1024, v(KV_A)))
    e("v_and_b32 %s, 15, %s\nv_mul_u32_u24 %s, 1280, %s\nv_lshrrev_b32 %s, 4, %s\nv_lshl_add_u32 %s, %s, 3, %s" % (v(KV_XO), v(L), v(KV_XO), v(KV_XO), v(KV_X), v(L), v(KV_XO), v(KV_X), v(KV_XO)))
    e("s_mul_i32 %s, %s, %d" % (s(t), s(RT), NSLAB * 4096))
    srd(e, K_SA, ptr(11), s(t), NSLAB * 4096)
    e("s_mul_i32 %s, %s, %d\ns_add_u32 %s, %s, %d" % (s(t), s(CT), NSLAB * 5120, s(t), s(t), WF_OFF))
    srd(e, K_SW, ptr(11), s(t), NSLAB * 5120)
    e("s_lshl_b32 %s, %s, 2\ns_add_u32 %s, %s, %s\ns_mul_i32 %s, %s, %d\ns_mul_i32 %s, %s, 160\ns_add_u32 %s, %s, %s" % (
        s(t), s(RT), s(t), s(t), s(S_WAVE), s(t), s(t), 16 * 1280, s(t + 1), s(CT), s(t), s(t), s(t + 1)))
    srd(e, K_SX, ptr(0), s(t), 15 * 1280 + 160)
    srd(e, K_SO, ptr(9), s(t), 15 * 1280 + 160)

def gen_att_epilogue(e):
    T = V_T
    stamp(e, 8)
    gen_tail_setup(e)
    e("s_cmp_lg_u32 %s, 0\ns_waitcnt vmcnt(0)\ns_cbranch_scc1 SPUN_EARLY" % s(S_WAVE))
    poll_spin(e, True, None, 2, "EARLY")
    e("s_barrier")
    e.ext(k_addr_down(0)); e.ext(k_loads(0))
    Z = V_P; C = V_P + 4
    for qb in range(4): e("v_rcp_f32 %s, %s" % (v(T + 2 * qb), v(V_L + 4 * qb)))
    e("v_max3_f32 %s, %s, %s, %s" % (v(T + 8), v(V_L), v(V_L + 4), v(V_L + 8)))
    e("v_max_f32 %s, %s, %s" % (v(T + 8), v(T + 8), v(V_L + 12)))
    for qb in range(4): e("v_mov_b32 %s, %s" % (v(T + 2 * qb + 1), v(T + 2 * qb)))
    e("v_mul_f32 %s, %s, %s" % (v(T + 8), f2u(2.0 ** 64), v(T + 8)))
    e("v_mul_f32 %s, 0, %s" % (v(T + 8), v(T + 8)))
    for qb in range(4): e("v_fma_f32 %s, %s, 0, %s" % (v(T + 8), v(V_L + 4 * qb), v(T + 8)))
    for r in range(4): e("v_mov_b32 %s, 0" % v(Z + r))
    e("s_lshl_b32 %s, %s, 14" % (s(S_TMP + 2), s(S_HEAD)))
    W = T + 12
    late = k_addr_down(1) + k_loads(1) + k_addr_down(2) + k_loads(2)
    NEARLY = opt("eld", 0)
    for sl in range(4):
        for qb in range(4):
            d0 = V_S + (sl * 4 + qb) * 4
            for b in range(2):
                for r in range(4): e("v_accvgpr_read_b32 %s, %s" % (v(W + 4 * b + r), a(A_O + ((2 * sl + b) * 4 + qb) * 4 + r)))
            for h in range(4): e("v_pk_mul_f32 %s, %s, %s" % (v(W + 2 * h, 2), v(W + 2 * h, 2), v(T + 2 * qb, 2)))
            for h in range(4): e("v_cvt_pk_bf16_f32 %s, %s, %s" % (v(d0 + h), v(W + 2 * h), v(W + 2 * h + 1)))
            e("buffer_store_dwordx4 %s, %s, %s, %s offen offset:%d%s" % (v(d0, 4), v(V_L16), s(S_AF, 4), s(S_TMP + 2), 1024 * qb, STFL))
            e("s_add_u32 %s, %s, 4096" % (s(S_TMP + 2), s(S_TMP + 2)) if qb == 3 else "s_nop 0")
            e("%s %s, %s, %s, %s" % (MF, v(C, 4), v(Z, 4), v(d0, 4), "0" if sl + qb == 0 else v(C, 4)))
    e.ext(late)
    e("v_cmp_u_f32 vcc, %s, %s" % (v(T + 8), v(C)))
    e("s_cmp_lg_u64 vcc, 0\ns_cselect_b32 %s, 1, 0" % s(S_TMP))
    e("v_mov_b32 %s, %s" % (v(W), s(S_TMP)))
    e("s_lshl_b32 %s, %s, 2\ns_add_u32 %s, %s, %d" % (s(S_TMP + 1), s(S_WAVE), s(S_TMP + 1), s(S_TMP + 1), L_MISC))
    e("v_mov_b32 %s, %s\nv_mov_b32 %s, %d" % (v(W + 1), s(S_TMP + 1), v(W + 2), L_MISC))
    e("ds_write_b32 %s, %s" % (v(W + 1), v(W)))
    stamp(e, 9)
    e("s_waitcnt lgkmcnt(0)\ns_barrier")
    e("ds_read_b128 %s, %s\ns_waitcnt lgkmcnt(0)" % (v(W + 4, 4), v(W + 2)))
    e("v_or3_b32 %s, %s, %s, %s\nv_or_b32 %s, %s, %s\ns_nop 0" % (v(W + 4), v(W + 4), v(W + 5), v(W + 6), v(W + 4), v(W + 4), v(W + 7)))
    e("v_readfirstlane_b32 %s, %s" % (s(S_TMP), v(W + 4)))
    e("s_nop 3\ns_andn2_b32 %s, %s, %s" % (s(S_TMP), s(S_TMP), s(S_RETRY)))
    e("s_cbranch_scc1 ATT_RETRY")

def gen_sig3(e):
    e("s_barrier")
    e("s_cmp_lg_u32 %s, 0\ns_cbranch_scc1 NOSIG3" % s(S_WAVE))
    set_flag(e, 3)
    e("s_cmp_lg_u32 s2, 0\ns_cbranch_scc1 NOSIG3")
    e("s_add_u32 %s, %s, 1\ns_mov_b64 exec, 1\nv_mov_b32 %s, %s\ns_movk_i32 %s, 4096" % (s(S_TMP + 7), s(S_EPOCH), v(V_PL + 1), s(S_TMP + 7), s(S_TMP + 6)))
    e("buffer_store_dword %s, off, %s, %s sc1\ns_mov_b64 exec, -1" % (v(V_PL + 1), s(S_FL, 4), s(S_TMP + 6)))
    e("NOSIG3:")
    stamp(e, 10)

def tail_mfmas(ph, st, first=False):
    mf = []
    for nb in range(5):
        for p in range(4):
            d = v(K_ACC[ph] + (nb * 4 + p) * 4, 4)
            mf.append("%s %s, %s, %s, %s" % (MF, d, kstage(st, 4 + nb), kstage(st, p), "0" if first else d))
    return mf

def tail_round(G, b, addr, loads, wait, extra=()):
    for i, x in enumerate(addr): G.put(b + i // 3, "s", x)
    g = b + 3
    for x in loads: g = G.place("m", x, g) + 1
    for k, x in extra: g = G.place(k, x, g) + 1
    assert g <= b + 19, g - b
    G.put(b + 19, "s", wait)

def reduce_write(e, m, VT):
    for p in range(1, 4):
        for nb in range(5):
            e("ds_write_b128 %s, %s offset:%d" % (v(VT + p), v(K_ACC[m] + (nb * 4 + p) * 4, 4), (m * 5 + nb) * 1024))
def reduce_read(e, m, VT):
    for nb in range(5):
        for i in range(3):
            e("ds_read_b128 %s, %s offset:%d" % (v(K_ACC[m] + (nb * 4 + i + 1) * 4, 4), v(VT), i * 10240 + (m * 5 + nb) * 1024))
def reduce_add(e, m, nb):
    b = K_ACC[m] + nb * 16
    e("s_waitcnt lgkmcnt(%d)" % (3 * (4 - nb)))
    for h in range(2):
        e("v_pk_add_f32 %s, %s, %s" % (v(b + 2 * h, 2), v(b + 2 * h, 2), v(b + 4 + 2 * h, 2)))
        e("v_pk_add_f32 %s, %s, %s" % (v(b + 8 + 2 * h, 2), v(b + 8 + 2 * h, 2), v(b + 12 + 2 * h, 2)))
    for h in range(2):
        e("v_pk_add_f32 %s, %s, %s" % (v(b + 2 * h, 2), v(b + 2 * h, 2), v(b + 8 + 2 * h, 2)))

def gen_tail(e):
    VT = V_T; t = S_TMP
    W18 = "s_waitcnt vmcnt(%d)" % (9 * (INFL - 1))
    for p in range(1, 4):
        e("s_xor_b32 %s, %s, %d\ns_mul_i32 %s, %s, 30720\ns_add_u32 %s, %s, %d" % (s(t), s(S_WAVE), p, s(t), s(t), s(t), s(t), (p - 1) * 10240))
        e("v_add_u32 %s, %s, %s" % (v(VT + p), s(t), v(V_L16)))
    e("s_mul_i32 %s, %s, 30720\nv_add_u32 %s, %s, %s" % (s(t), s(S_WAVE), v(VT), s(t), v(V_L16)))
    e("v_and_b32 %s, 31, %s\nv_lshlrev_b32 %s, 2, %s" % (v(V_PL + 3), v(V_LANE), v(V_PL + 3), v(V_PL + 3)))
    e("s_mov_b32 %s, 0" % s(K_CNT))
    PR = opt("pollr", 8)
    def rounds(r0, r1):
        mf = []
        for r in range(r0, r1): mf += tail_mfmas(0, r % NST, first=(r == 0))
        G = Gaps(mf)
        for r in range(r0, r1):
            lr = r + INFL
            tail_round(G, (r - r0) * 20, k_addr_down(lr) if lr < 14 else k_addr_o(), k_loads(lr % NST), W18)
        return G.lines()
    e("s_waitcnt vmcnt(34)")
    e.ext(rounds(0, 1))
    gen_sig3(e)
    e.ext(rounds(1, PR + 1))
    e("s_cmp_lg_u32 %s, 0\ns_cbranch_scc1 NOPOLL3" % s(S_WAVE))
    e(poll_load(False, s(K_FLG)))
    e("NOPOLL3:")
    e.ext(rounds(PR + 1, 11))
    stamp(e, 11)
    e("s_cmp_lg_u32 %s, 0\ns_cbranch_scc1 SPUN_O" % s(S_WAVE))
    if PR > 8: e("s_waitcnt vmcnt(%d)" % (9 * (10 - PR)))
    poll_spin(e, False, s(K_FLG), 3, "O")
    e("s_barrier")
    stamp(e, 12)
    e.ext(rounds(11, 14))
    for nb in range(5):
        e("buffer_load_dwordx2 %s, %s, %s, 0 offen offset:%d" % (v(KV_X + 2 * nb, 2), v(KV_XO), s(K_SX, 4), nb * 32))
    for r in range(K_ACC[1], K_ACC[1] + 80): e("v_mov_b32 %s, 0" % v(r))
    reduce_write(e, 0, VT)
    e("s_waitcnt lgkmcnt(0)\ns_barrier")
    reduce_read(e, 0, VT)
    stamp(e, 13)
    def obody(first):
        mf = []
        for st in range(NST): mf += tail_mfmas(1, (st + 14) % NST)
        G = Gaps(mf)
        for st in range(NST):
            ex = [("s", "s_cmp_lt_u32 %s, %d" % (s(K_CNT), 32 + INFL))] if st == NST - 1 else []
            tail_round(G, st * 20, k_addr_o(), k_loads((st + 14 + INFL) % NST), W18, ex)
        return G.lines()
    e(".p2align 6\nTAIL_O:")
    e.ext(obody(False))
    e("s_cbranch_scc1 TAIL_O")
    stamp(e, 14)
    e("s_waitcnt lgkmcnt(0)\ns_nop 5")
    reduce_write(e, 1, VT)
    for nb in range(5):
        b = K_ACC[0] + nb * 16
        for h in range(2):
            e("v_pk_add_f32 %s, %s, %s" % (v(b + 2 * h, 2), v(b + 2 * h, 2), v(b + 4 + 2 * h, 2)))
            e("v_pk_add_f32 %s, %s, %s" % (v(b + 8 + 2 * h, 2), v(b + 8 + 2 * h, 2), v(b + 12 + 2 * h, 2)))
        for h in range(2):
            e("v_pk_add_f32 %s, %s, %s" % (v(b + 2 * h, 2), v(b + 2 * h, 2), v(b + 8 + 2 * h, 2)))
    e("s_waitcnt lgkmcnt(0)\ns_barrier")
    reduce_read(e, 1, VT)
    for nb in range(5):
        d = K_ACC[0] + nb * 16
        for r in range(4): e("v_mul_f32 %s, %s, %s" % (v(d + 4 + r), f2u(-math.log2(math.e)), v(d + r)))
        for r in range(4): e("v_exp_f32 %s, %s" % (v(d + 4 + r), v(d + 4 + r)))
        for h in range(2):
            e("v_lshlrev_b32 %s, 16, %s" % (v(d + 8 + 2 * h), v(KV_X + 2 * nb + h)))
            e("v_and_b32 %s, 0xffff0000, %s" % (v(d + 9 + 2 * h), v(KV_X + 2 * nb + h)))
        for r in range(4): e("v_add_f32 %s, 1.0, %s" % (v(d + 4 + r), v(d + 4 + r)))
        for r in range(4): e("v_rcp_f32 %s, %s" % (v(d + 4 + r), v(d + 4 + r)))
        e("s_nop 0")
        for r in range(4): e("v_mul_f32 %s, %s, %s" % (v(d + 4 + r), v(d + 4 + r), v(d + r)))
    for nb in range(5):
        d = K_ACC[0] + nb * 16; sx = K_ACC[1] + nb * 16
        reduce_add(e, 1, nb)
        for r in range(4): e("v_fma_f32 %s, %s, %s, %s" % (v(d + 8 + r), v(sx + r), v(d + 4 + r), v(d + 8 + r)))
        for h in range(2): e("v_cvt_pk_bf16_f32 %s, %s, %s" % (v(d + 12 + h), v(d + 8 + 2 * h), v(d + 9 + 2 * h)))
        e("buffer_store_dwordx2 %s, %s, %s, 0 offen offset:%d" % (v(d + 12, 2), v(KV_XO), s(K_SO, 4), nb * 32))
    stamp(e, 15)
    if STAMPS: e("s_waitcnt vmcnt(0)")
    stamp(e, 16)
    stamp_fin(e)

def gen_kv_addr(e):
    T = V_T + 12; L = V_LANE
    e("v_and_b32 %s, 15, %s\nv_lshrrev_b32 %s, 4, %s\nv_xor_b32 %s, %s, %s" % (v(T), v(L), v(T + 1), v(L), v(T + 1), v(T + 1), v(T)))
    e("v_lshlrev_b32 %s, 8, %s\nv_lshl_add_u32 %s, %s, 4, %s" % (v(T), v(T), v(T), v(T + 1), v(T)))
    for sl in range(4): e("v_xor_b32 %s, %d, %s" % (v(V_KA + sl), sl * 64, v(T)))
    e("v_lshrrev_b32 %s, 2, %s\nv_and_b32 %s, 7, %s\nv_lshlrev_b32 %s, 8, %s\nv_lshl_add_u32 %s, %s, 5, %s" % (v(T), v(L), v(T + 1), v(T), v(T), v(T), v(T), v(T + 1), v(T)))
    e("v_and_b32 %s, 3, %s\nv_lshl_add_u32 %s, %s, 3, %s\nv_add_u32 %s, %d, %s" % (v(T + 1), v(L), v(T), v(T + 1), v(T), v(T), L_V, v(T)))
    for db in range(8): e("v_xor_b32 %s, %d, %s" % (v(V_VA + db), db * 32, v(T)))

def gen_retry(e):
    e("ATT_RETRY:")
    e("s_waitcnt vmcnt(0)\ns_mov_b32 %s, 1" % s(S_RETRY))
    gen_kv_addr(e)
    for qb in range(4): e("v_mov_b32 %s, 0xff800000" % v(V_NEGM + 4 * qb))
    e("s_mov_b32 %s, 0" % s(S_KVOFF))
    e("RETRY_LOOP:")
    e("s_barrier")
    e("s_add_u32 m0, %s, %d\ns_nop 0" % (s(S_M0K), L_K))
    e(kv_dma("K", 0)); e(kv_dma("K", 1))
    e("s_waitcnt vmcnt(0)\ns_barrier")
    for kb in range(2):
        for sl in range(4): e(k_read(kb, sl, 0))
    e("s_waitcnt lgkmcnt(0)")
    e.ext(qk_mfmas(0, czero=True))
    e("s_nop 7")
    for qb in range(4):
        b = Sreg(0, qb, 0); m = v(V_NEGM + 4 * qb)
        for k in range(4): e("v_max3_f32 %s, %s, %s, %s" % (m, m, v(b + 2 * k), v(b + 2 * k + 1)))
    e("s_add_u32 %s, %s, 8192\ns_cmp_lt_u32 %s, %d\ns_cbranch_scc1 RETRY_LOOP" % (s(S_KVOFF), s(S_KVOFF), s(S_KVOFF), 64 * 8192))
    e("s_barrier")
    kv_preload(e)
    e("s_branch ATT_START")

def gen_common_setup(e):
    T = V_T + 12; L = V_LANE
    e("s_lshl2_add_u32 %s, %s, %s" % (s(S_TMP + 1), s(S_QT), s(S_WAVE)))
    e("s_mul_i32 %s, %s, %d" % (s(S_TMP), s(S_TMP + 1), NSLAB * 4096))
    srd(e, S_AF, ptr(11), s(S_TMP), NSLAB * 4096)
    e("s_mul_i32 %s, %s, %d\ns_add_u32 %s, %s, %d" % (s(S_TMP), s(S_TMP + 1), 20 * 4096, s(S_TMP), s(S_TMP), XF_OFF))
    srd(e, S_X, ptr(11), s(S_TMP), 20 * 4096)
    srd(e, S_WF, ptr(11), WF_OFF, WF_BYTES)
    e("s_cmp_lt_u32 s2, %d\ns_cselect_b32 %s, %s, 0" % (NSLAB, s(S_WF + 2), s(S_WF + 2)))
    srd(e, S_FL, ptr(11), FL_OFF, 8192)
    e("s_lshl_b32 %s, %s, 5\ns_add_u32 %s, %s, %s\ns_lshl_b32 %s, %s, 2" % (s(S_MYFL), s(S_QT), s(S_MYFL), s(S_MYFL), s(S_HEAD), s(S_MYFL), s(S_MYFL)))
    e("s_lshl_b32 %s, %s, 19" % (s(S_TMP), s(S_HEAD)))
    srd(e, S_K, ptr(1), s(S_TMP), 524288)
    srd(e, S_V, ptr(2), s(S_TMP), 524288 + 3 * 8192)
    e("s_sub_u32 %s, %s, %d\ns_subb_u32 %s, %s, 0" % (s(S_V), s(S_V), 3 * 8192, s(S_V + 1), s(S_V + 1)))
    e("v_bfe_u32 %s, %s, 2, 2\nv_lshrrev_b32 %s, 4, %s\nv_and_b32 %s, 3, %s" % (v(T), v(L), v(T + 1), v(L), v(T + 2), v(L)))
    e("v_lshlrev_b32 %s, 12, %s" % (v(T + 3), v(T + 1)))
    e("v_mul_u32_u24 %s, 320, %s\nv_add_u32 %s, %s, %s\nv_lshl_add_u32 %s, %s, 4, %s" % (v(T + 4), v(T), v(T + 4), v(T + 4), v(T + 3), v(T + 4), v(T + 2), v(T + 4)))
    for sl in range(4): e("v_xor_b32 %s, %d, %s" % (v(V_AQ + sl), sl * 64, v(T + 4)))
    e("v_lshl_add_u32 %s, %s, 7, %s\nv_lshl_add_u32 %s, %s, 3, %s" % (v(T + 4), v(T), v(T + 3), v(T + 4), v(T + 2), v(T + 4)))
    e("v_bfe_u32 %s, %s, 3, 2\nv_lshl_add_u32 %s, %s, 5, %s" % (v(T + 5), v(L), v(T + 4), v(T + 5), v(T + 4)))
    for u in range(4): e("v_xor_b32 %s, %d, %s" % (v(V_AG + u), u * 32, v(T + 4)))
    e("v_lshrrev_b32 %s, 4, %s\ns_lshl_b32 %s, %s, 3\nv_add_u32 %s, %s, %s\nv_and_b32 %s, 15, %s" % (v(T), v(L), s(S_TMP), s(S_WAVE), v(T), s(S_TMP), v(T), v(T + 1), v(L)))
    e("v_lshlrev_b32 %s, 8, %s" % (v(T + 2), v(T)))
    for i in range(2):
        e("v_add_u32 %s, %d, %s\nv_and_b32 %s, 15, %s\nv_xor_b32 %s, %s, %s\nv_lshl_add_u32 %s, %s, 4, %s" % (v(T + 3), 4 * i, v(T), v(T + 4), v(T + 3), v(T + 4), v(T + 4), v(T + 1), v(V_KD + i), v(T + 4), v(T + 2)))
        e("v_and_b32 %s, 7, %s\nv_lshlrev_b32 %s, 1, %s\nv_xor_b32 %s, %s, %s\nv_lshl_add_u32 %s, %s, 4, %s" % (v(T + 4), v(T + 3), v(T + 4), v(T + 4), v(T + 4), v(T + 4), v(T + 1), v(V_VD + i), v(T + 4), v(T + 2)))
    gen_kv_addr(e)
    e("v_lshrrev_b32 %s, 2, %s\nv_and_b32 %s, 7, %s\nv_mul_u32_u24 %s, 1280, %s\nv_and_b32 %s, 3, %s\nv_lshl_add_u32 %s, %s, 3, %s\nv_add_u32 %s, %d, %s" % (
        v(T), v(L), v(V_TRA + 1), v(T), v(T), v(T), v(T + 2), v(L), v(T), v(T + 2), v(T), v(V_TRA), L_TR, v(T)))
    e("s_mul_i32 %s, %s, 10" % (s(S_TRU), s(S_WAVE)))
    e("s_lshl_b32 %s, %s, 1\ns_mul_i32 %s, %s, %d\ns_add_u32 %s, %s, s2\ns_mul_i32 %s, %s, 5120" % (s(S_TRD), s(S_WAVE), s(S_TRD), s(S_TRD), NSLAB, s(S_TRD), s(S_TRD), s(S_TRD), s(S_TRD)))
    e("s_and_b32 %s, s2, 127\ns_mul_i32 %s, %s, 40960" % (s(S_TRS), s(S_TRS), s(S_TRS)))
    e("s_mul_i32 %s, %s, 10240\ns_add_u32 %s, %s, %s\ns_add_u32 %s, %s, %d" % (s(S_TRM), s(S_WAVE), s(S_TRS), s(S_TRS), s(S_TRM), s(S_TRM), s(S_TRM), L_TR))

def gen_w_setup(e):
    T = V_T + 12; L = V_LANE
    e("v_lshrrev_b32 %s, 4, %s\nv_lshlrev_b32 %s, 2, %s\nv_and_b32 %s, 15, %s\nv_xor_b32 %s, %s, %s" % (v(T), v(L), v(T + 1), v(T), v(T + 2), v(L), v(T + 1), v(T + 1), v(T + 2)))
    e("v_lshlrev_b32 %s, 13, %s\nv_lshl_add_u32 %s, %s, 4, %s" % (v(T), v(T), v(V_WD), v(T + 1), v(T)))
    e("v_add_u32 %s, %d, %s" % (v(V_WD + 1), 4 * 8192 - 1024, v(V_WD)))
    e("v_lshrrev_b32 %s, 3, %s\nv_bfe_u32 %s, %s, 4, 1\nv_lshlrev_b32 %s, 1, %s" % (v(T), v(L), v(T + 1), v(L), v(T + 1), v(T + 1)))
    e("s_and_b32 %s, %s, 1\ns_lshl_b32 %s, %s, 2\nv_or_b32 %s, %s, %s" % (s(S_TMP), s(S_WAVE), s(S_TMP), s(S_TMP), v(T + 1), s(S_TMP), v(T + 1)))
    e("v_and_b32 %s, 7, %s\nv_xor_b32 %s, %s, %s" % (v(T + 2), v(L), v(T + 1), v(T + 1), v(T + 2)))
    e("v_mul_u32_u24 %s, 3456, %s\nv_lshl_add_u32 %s, %s, 4, %s" % (v(T), v(T), v(V_WD + 2), v(T + 1), v(T)))
    e("s_lshl_b32 %s, %s, 8\ns_sub_u32 %s, %d, %s" % (s(S_TMP), s(S_HEAD), s(S_TMP + 1), 640 * 8192, s(S_TMP)))
    srd(e, S_WQ, ptr(3), s(S_TMP), s(S_TMP + 1))
    for (d, p, sh) in ((S_WG, 6, 2048), (S_WU, 7, 3072)):
        e("s_lshl_b32 %s, %s, 7\ns_sub_u32 %s, %d, %s" % (s(S_TMP), s(S_FS), s(S_TMP + 1), 640 * 3456 + sh, s(S_TMP)))
        e("s_cmp_lt_u32 %s, 27\ns_cselect_b32 %s, %s, 0" % (s(S_FS), s(S_TMP + 1), s(S_TMP + 1)))
        srd(e, d, ptr(p), s(S_TMP), s(S_TMP + 1))
        e("s_sub_u32 %s, %s, %d\ns_subb_u32 %s, %s, 0" % (s(d), s(d), sh, s(d + 1), s(d + 1)))

def gen_kernel(e, name):
    T = V_T; L = V_LANE
    e(".text\n.globl %s\n.p2align 8\n.type %s,@function\n%s:" % (name, name, name))
    e("s_cmp_ge_u32 s2, 256\ns_cbranch_scc1 K_END")
    e("s_load_dwordx8 %s, s[0:1], 0\ns_load_dwordx8 %s, s[0:1], 32\ns_load_dwordx8 %s, s[0:1], 64" % (s(S_PTR, 8), s(S_PTR + 8, 8), s(S_PTR + 16, 8)))
    e("v_and_b32 %s, 63, v0\nv_lshrrev_b32 %s, 6, v0\nv_lshlrev_b32 %s, 4, %s\nv_readfirstlane_b32 %s, %s" % (v(L), v(T), v(V_L16), v(L), s(S_WAVE), v(T)))
    e("s_and_b32 %s, s2, 7\ns_lshr_b32 %s, s2, 3\ns_and_b32 %s, %s, 3\ns_lshr_b32 %s, %s, 2" % (s(S_TMP), s(S_TMP + 1), s(S_HL), s(S_TMP + 1), s(S_QT), s(S_TMP + 1)))
    e("s_lshl_b32 %s, %s, 2\ns_add_u32 %s, %s, %s" % (s(S_HEAD), s(S_TMP), s(S_HEAD), s(S_HEAD), s(S_HL)))
    e("s_lshl_b32 %s, %s, 3\ns_add_u32 %s, %s, %s" % (s(S_FS), s(S_HL), s(S_FS), s(S_FS), s(S_TMP)))
    e("s_mov_b32 %s, 0" % s(S_RETRY))
    e("s_lshl_b32 %s, %s, 12\ns_lshl_b32 %s, %s, 11" % (s(S_M0W), s(S_WAVE), s(S_M0K), s(S_WAVE)))
    if STAMPS: e("v_mov_b32 v0, -1\nv_mov_b32 v19, -1")
    stamp(e, 0)
    gen_ln_loads(e)
    if opt("tlb", 0):
        e("v_mov_b32 %s, %d\nglobal_load_dword %s, %s, %s" % (v(T + 12), FL_OFF + 4096, v(V_PL + 1), v(T + 12), s(ptr(11), 2)))
    e("s_add_u32 %s, %s, %d\ns_addc_u32 %s, %s, 0\ns_load_dword %s, %s, 0" % (s(S_TMP + 2), s(ptr(11)), FL_OFF + 4096, s(S_TMP + 3), s(ptr(11) + 1), s(S_EPOCH), s(S_TMP + 2, 2)))
    ny = 4 * NI + opt("tlb", 0)
    if opt("cpf", 1):
        e("s_getpc_b64 %s\nCODE0:" % s(S_TMP + 4, 2))
        e("s_lshr_b32 %s, s2, 3\ns_lshl2_add_u32 %s, %s, %s\ns_lshl_b32 %s, %s, 9" % (s(S_TMP), s(S_TMP), s(S_TMP), s(S_WAVE), s(S_TMP), s(S_TMP)))
        e("v_and_b32 %s, 3, %s\nv_lshlrev_b32 %s, 7, %s\nv_add_u32 %s, %s, %s\nv_min_u32 %s, CODE1-CODE0-4, %s" % (v(T + 12), v(L), v(T + 12), v(T + 12), v(T + 12), s(S_TMP), v(T + 12), v(T + 12), v(T + 12)))
        e("global_load_dword %s, %s, %s" % (v(V_PL), v(T + 12), s(S_TMP + 4, 2)))
        ny += 1
    gen_w_setup(e)
    e("s_lshl_b32 %s, %s, 16\ns_mul_i32 %s, %s, %d" % (s(S_WQOFF), s(S_WAVE), s(S_WGOFF), s(S_WAVE), 8 * 3456))
    for sl in range(NI): w_slab(e, sl, True)
    WT = opt("wt", 6)
    if WT:
        X = V_TC
        e("s_lshl2_add_u32 %s, %s, %s\ns_add_u32 %s, %s, %d" % (s(S_TMP), s(S_QT), s(S_WAVE), s(S_TMP), s(S_TMP), 32 * NI))
        e("v_lshrrev_b32 %s, 1, %s\nv_min_u32 %s, %d, %s\nv_lshlrev_b32 %s, 5, %s\nv_add_u32 %s, %s, %s" % (v(X), v(L), v(X), WT - 1, v(X), v(X), v(X), v(X), s(S_TMP), v(X)))
        e("v_and_b32 %s, 1, %s\nv_lshlrev_b32 %s, 7, %s\nv_lshl_add_u32 %s, %s, 13, %s\nv_mul_u32_u24 %s, 3456, %s" % (v(X + 1), v(L), v(X + 1), v(X + 1), v(X + 1), v(X), v(X + 1), v(X), v(X)))
        e("buffer_load_dword %s, %s, %s, 0 offen" % (v(V_PL + 1), v(X + 1), s(S_WQ, 4)))
        e("buffer_load_dword %s, %s, %s, 0 offen offset:2048" % (v(V_PL + 2), v(X), s(S_WG, 4)))
        e("buffer_load_dword %s, %s, %s, 0 offen offset:3072" % (v(V_DUMP), v(X), s(S_WU, 4)))
        ny += 3
    gen_common_setup(e)
    stamp(e, 1)
    gen_ln_compute(e, ny)
    e("s_mul_i32 %s, %s, 0x9e3779b1\ns_add_u32 %s, %s, 0x7f4a7c15" % (s(S_TAG), s(S_EPOCH), s(S_TAG), s(S_TAG)))
    e("v_and_b32 %s, 31, %s\nv_lshlrev_b32 %s, 2, %s\ns_lshl_b32 %s, %s, 7" % (v(V_PL + 3), v(L), v(V_PL + 3), v(V_PL + 3), s(S_XOFF), s(S_QT)))
    for i in range(10):
        t0, t1 = v(V_T + 12 + i), v(V_TRA + 3)
        e("v_add_u32 %s, %d, %s\nv_mul_u32_u24 %s, 820, %s\nv_lshrrev_b32 %s, 16, %s\nv_lshlrev_b32 %s, 1, %s\nv_xor_b32 %s, %s, %s\nv_lshlrev_b32 %s, 4, %s" % (
            t0, 64 * i, v(L), t1, t0, t1, t1, t1, t1, t0, t0, t1, t0, t0))
    e("s_waitcnt vmcnt(0)\ns_barrier")
    stamp(e, 18)
    e("s_cmp_lg_u32 %s, 0\ns_cbranch_scc1 SPUN_XN" % s(S_WAVE))
    set_flag(e, 1)
    e(poll_load(False, s(S_XOFF)))
    e("s_waitcnt vmcnt(0)")
    poll_spin(e, False, s(S_XOFF), 1, "XN")
    e("s_cmp_lt_u32 s2, 128")
    e("s_cselect_b32 %s, %s, %s\ns_cselect_b32 %s, %s, %s" % (s(S_T), s(ptr(4)), s(ptr(8)), s(S_T + 1), s(ptr(4) + 1), s(ptr(8) + 1)))
    e("s_mov_b32 %s, %d\ns_cselect_b32 %s, %d, %s\ns_mov_b32 %s, 0x20000" % (s(S_T + 2), 1728 * 1280, s(S_T + 2), 4096 * 1280, s(S_T + 2), s(S_T + 3)))
    e("s_barrier")
    stamp(e, 2)
    e("s_cmp_ge_u32 %s, 27\ns_cbranch_scc1 LIGHT" % s(S_FS))
    gen_proj(e, True, "H")
    e("PROJ_DONE:")
    for qb in range(4): e("v_mov_b32 %s, 0xff800000" % v(V_NEGM + 4 * qb))
    gen_attention(e)
    gen_att_epilogue(e)
    gen_tail(e)
    e("K_END:\ns_endpgm")
    gen_retry(e)
    e("LIGHT:")
    gen_proj(e, False, "L")
    e("s_branch PROJ_DONE")
    e("CODE1:")
    e(kd(name))

def main():
    e = E()
    hdr = open("cdna_kernels/%s.s.ref" % NAME).read().split("; Override launch")[0]
    e.L += hdr.strip().split("\n")
    e("; @launch grid=(256,1,1) block=(256,1,1) lds=%d" % LDS_BYTES)
    e('.amdgcn_target "amdgcn-amd-amdhsa--gfx950"')
    gen_kernel(e, NAME + "_kernel")
    t = re.sub(r" ;#\w*", "", e.text())
    errs = [x for x in asmcheck.check(t, [NAME + "_kernel"]) if x.count("buffer_load_dword v%d," % V_DUMP) != 2]
    if errs:
        print("\n".join(errs[:40])); print(len(errs), "problems")
    out = [x for x in sys.argv[1:] if x.endswith(".s")]
    open(out[0] if out else "cdna_kernels/%s.s" % NAME, "w").write(t)

if __name__ == "__main__":
    main()
```

```python
import re
from asmcheck import I

class Gaps:
    def __init__(self, mfmas):
        self.m = list(mfmas)
        n = len(self.m)
        self.sc = [[] for _ in range(n)]
        self.ds = [[] for _ in range(n)]
        self.va = [[] for _ in range(n)]
        self.used = [0] * n
        self.noscalar = [False] * n
        for g in range(n):
            if self.m[g].startswith("v_smfmac"): self.used[g] = 1
    def n(self): return len(self.m)
    def fits(self, g, kind):
        u = self.used[g]
        if kind == "s": return len(self.sc[g]) == 0 and not self.noscalar[g]
        if kind == "d": return u <= 1 and not self.ds[g]
        if kind == "v": return u <= 1
        if kind == "e": return u == 0
        if kind == "m": return u == 0 and len(self.sc[g]) == 0
        if kind == "b": return u == 0
        raise ValueError(kind)
    def put(self, g, kind, text):
        if kind == "s": self.sc[g].append(text)
        elif kind == "d": self.ds[g].append(text); self.used[g] += 1
        elif kind == "v": self.va[g].append(text); self.used[g] += 1
        elif kind == "e": self.va[g].append(text); self.used[g] += 2
        elif kind == "m": self.va[g].append(text); self.used[g] += 2; self.noscalar[g] = True
        elif kind == "b": self.va[g].append(text); self.used[g] += 2
        return g
    def place(self, kind, text, lo, hi=None, force=False):
        hi = self.n() - 1 if hi is None else hi
        for g in range(max(lo, 0), hi + 1):
            if self.fits(g, kind): return self.put(g, kind, text)
        if force:
            g = min(range(max(lo, 0), hi + 1), key=lambda x: self.used[x])
            return self.put(g, kind, text)
        raise RuntimeError("cannot place %s in [%d,%d]" % (text, lo, hi))
    def lines(self):
        out = []
        for g in range(self.n()):
            out.append(self.m[g]); out += self.sc[g] + self.ds[g] + self.va[g]
        return out
    def pattern(self):
        s = []
        for g in range(self.n()):
            t = "s" * len(self.sc[g]) + "d" * len(self.ds[g])
            for x in self.va[g]:
                t += "e" if x.startswith("v_exp") else ("m" if x.startswith(("buffer", "global")) else ("b" if x.startswith("s_barrier") else "v"))
            s.append(t or "-")
        return " ".join(s)

def auto_lgkm(G, pend_in=(), loop=False, eager=None):
    def run(pend, insert):
        pend = list(pend)
        hist = []
        issued = len(pend)
        done = 0
        allops = list(pend)
        pre = None
        start_cnt = []
        for g in range(G.n()):
            mi = I(G.m[g], 0, 0)
            needidx = -1
            for k in range(done, len(allops)):
                if allops[k] & (mi.R | mi.W): needidx = k
            if needidx >= 0:
                if not insert:
                    done = needidx + 1
                else:
                    h = g - 1
                    while h >= 0 and not (G.fits(h, "s")): h -= 1
                    if h >= 0 and start_cnt[h] > needidx:
                        N = start_cnt[h] - (needidx + 1)
                        N = min(N, 15)
                        if eager is not None and h - eager >= 0:
                            N = min(N, start_cnt[h] - start_cnt[h - eager])
                        G.put(h, "s", "s_waitcnt lgkmcnt(%d)" % N)
                        needidx = max(needidx, start_cnt[h] - N - 1)
                    elif g == 0 or h < 0:
                        N = len(pend) - (needidx + 1)
                        assert needidx < len(pend)
                        pre = min(N, pre) if pre is not None else N
                    else:
                        raise RuntimeError("DS result needed too early at gap %d: %s" % (g, G.m[g]))
                    done = needidx + 1
            start_cnt.append(len(allops))
            for x in G.sc[g]:
                m = re.search(r"lgkmcnt\((\d+)\)", x)
                if m: done = max(done, len(allops) - int(m.group(1)))
            for x in G.ds[g]:
                allops.append(I(x, 0, 0).W)
        return pre, allops[done:]
    if loop:
        _, out = run(pend_in, False)
        pre, out2 = run(out, True)
        if pre is not None:
            h = G.n() - 1; later = 0
            while True:
                later += len(G.ds[h])
                if G.fits(h, "s"): break
                h -= 1
            N = pre - later
            assert N >= 0, "loop wrap wait impossible"
            N = min(N, 15)
            G.put(h, "s", "s_waitcnt lgkmcnt(%d)" % N)
            out2 = out2[len(out2) - pre:] if pre else []
        return None, out2
    return run(pend_in, True)
```

```python
import sys, math, os, struct, re
from sched import Gaps, auto_lgkm
import asmcheck

NAME = "recurrent_scan__mha_block_cached__glu_gated_reglu__prompt"
MF = "v_mfma_f32_16x16x32_bf16"
OPT = dict(x.split("=") for x in sys.argv[1:] if "=" in x)
def opt(k, d): return type(d)(OPT.get(k, d))
VERBOSE = "-v" in sys.argv
STAMPS = "--stamps" in sys.argv
STFL = opt("stfl", " sc1").replace("_", " ")
LDFL = opt("ldfl", " sc1").replace("_", " ")

NSLAB = 182
DSC = 1.0
WF_OFF = 0x1800000
WF_BYTES = 8 * NSLAB * 5120
XF_OFF = 0x2000000
XP_OFF = 0x2800000
MAXST = 3
FL_OFF = 0x2400000

class E:
    def __init__(self): self.L = []
    def __call__(self, s):
        for x in s.split("\n"):
            x = x.strip()
            if x: self.L.append(x)
    def ext(self, l): self.L += l
    def text(self): return "\n".join(self.L) + "\n"

def v(a, n=1): return "v%d" % a if n == 1 else "v[%d:%d]" % (a, a + n - 1)
def a(a_, n=1): return "a%d" % a_ if n == 1 else "a[%d:%d]" % (a_, a_ + n - 1)
def s(a_, n=1): return "s%d" % a_ if n == 1 else "s[%d:%d]" % (a_, a_ + n - 1)
def f2u(x): return "0x%08x" % struct.unpack("<I", struct.pack("<f", x))[0]

def kd(name, vgpr=512, acc=256):
    return """.section .rodata,"a"
.p2align 6
.amdhsa_kernel %s
  .amdhsa_next_free_vgpr %d
  .amdhsa_next_free_sgpr 102
  .amdhsa_accum_offset %d
  .amdhsa_group_segment_fixed_size 0
  .amdhsa_kernarg_size 96
  .amdhsa_user_sgpr_count 2
  .amdhsa_user_sgpr_kernarg_segment_ptr 1
  .amdhsa_system_sgpr_workgroup_id_x 1
.end_amdhsa_kernel
""" % (name, vgpr, acc)

def stamp(e, i):
    if not STAMPS: return
    e("s_waitcnt lgkmcnt(0)\ns_memtime s[98:99]\ns_memrealtime s[100:101]\ns_waitcnt lgkmcnt(0)")
    e("v_writelane_b32 v0, s98, %d\nv_writelane_b32 v19, s100, %d" % (i, i))
def stamp_fin(e):
    if not STAMPS: return
    if opt("echo", ""):
        i, j = [int(x) for x in opt("echo", "").split(".")]
        e("s_nop 1\nv_readlane_b32 s96, v19, %d\nv_readlane_b32 s97, v19, %d\nv_readlane_b32 s98, v19, 16\ns_nop 3\ns_sub_u32 s96, s97, s96\ns_min_u32 s96, s96, 20000" % (i, j))
        e("ECHO:\ns_sleep 1\ns_memrealtime s[100:101]\ns_waitcnt lgkmcnt(0)\ns_sub_u32 s97, s100, s98\ns_cmp_lt_u32 s97, s96\ns_cbranch_scc1 ECHO")
        return
    if opt("dbgout", -1) >= 0:
        e("s_cmp_lg_u32 s2, %d\ns_cbranch_scc1 NODBG\ns_cmp_lg_u32 %s, 0\ns_cbranch_scc1 NODBG" % (opt("dbgout", -1), s(S_WAVE)))
        e("v_readlane_b32 s98, v19, 0\ns_nop 3\nv_subrev_u32 v18, s98, v19\nv_lshlrev_b32 v20, 2, v1\nv_subrev_u32 v20, 4, v20")
        e("s_mov_b32 s96, %s\ns_mov_b32 s97, %s\ns_mov_b32 s98, 64\ns_mov_b32 s99, 0x20000" % (s(ptr(10)), s(ptr(10) + 1)))
        e("buffer_store_dword v18, v20, s[96:99], 0 offen\ns_waitcnt vmcnt(0)\nNODBG:")
        return
    e("s_lshl_b32 s98, s2, 2\ns_add_u32 s98, s98, %s\ns_lshl_b32 s98, s98, 9\ns_add_u32 s98, s98, %d" % (s(S_WAVE), 0x4000000))
    e("s_add_u32 s96, %s, s98\ns_addc_u32 s97, %s, 0\ns_mov_b32 s98, 512\ns_mov_b32 s99, 0x20000" % (s(ptr(11)), s(ptr(11) + 1)))
    e("v_mov_b32 v18, v0\nv_lshlrev_b32 v20, 3, v1\nbuffer_store_dwordx2 v[18:19], v20, s[96:99], 0 offen\ns_waitcnt vmcnt(0)")

def srd(e, d, base, off_lo, nbytes):
    e("s_add_u32 %s, %s, %s" % (s(d), s(base), off_lo))
    e("s_addc_u32 %s, %s, 0" % (s(d + 1), s(base + 1)))
    e("s_mov_b32 %s, %s" % (s(d + 2), nbytes))
    e("s_mov_b32 %s, 0x20000" % s(d + 3))

def uncond(x): return False
def resolve_vm(lines):
    out = []; ops = []; waited = set(); lastm0 = None; done = 0
    for x in lines:
        mm = re.search(r"vmcnt\((\d+)\)", x)
        if mm and not x.startswith("@") and uncond(x): done = max(done, len(ops) - int(mm.group(1)))
        if x.startswith(("buffer_", "global_")) and len(ops) - done >= 58:
            out.append("s_waitcnt vmcnt(52)"); done = len(ops) - 52
        if x.startswith("s_add_u32 m0,"): lastm0 = x.split(",")[1].strip()
        if " lds" in x and ";#" in x:
            tg = x.split(";#")[1].strip()
            exp = s(S_M0W) if tg.startswith("w") else (s(S_TRM) if tg == "trs" else s(S_M0K))
            if tg.startswith("D"): exp = s(T_M0W)
            assert lastm0 == exp, "M0 collision at %s" % x
        m = re.search(r"WAITVM\{([^}]*)\}", x)
        if m:
            need = set(m.group(1).split(","))
            waited |= need
            idx = [i for i, t in enumerate(ops) if t in need]
            n = len(ops) - 1 - max(idx) if idx else 63
            done = max(done, len(ops) - min(n, 63))
            x = x.replace(m.group(0), "vmcnt(%d)" % min(n, 63))
        elif x.startswith(("buffer_", "global_")):
            t = x.split(";#")[1].strip() if ";#" in x else ""
            assert t not in waited, "op %s issued after its wait" % t
            ops.append(t)
        out.append(x)
    return out

S_FL = 4
S_X, S_WQ, S_WG, S_WU, S_K, S_V, S_AF, S_T, S_WF = 8, 12, 16, 20, 24, 28, 32, 36, 40
S_PTR = 44
S_WAVE, S_HEAD, S_QT, S_FS = 68, 69, 70, 71
S_XOFF, S_WQOFF, S_WGOFF, S_M0W = 72, 73, 74, 75
S_KVOFF, S_M0K, S_TOG, S_RETRY = 76, 77, 78, 79
S_TMP = 80
S_TRS, S_TRM, S_TRD, S_TRU = 88, 89, 90, 91
S_EPOCH, S_TAG, S_MYFL = 92, 93, 94
S_HL = 3
S_EVT = 85
EVT1 = (45 + 9) * 8192
NWH = opt("nwh", 0)
S_LN = 84
def ptr(i): return S_PTR + 2 * i

L_K = 0
L_V = 65536
RW = 7
L_TR = 114688
L_MISC = 155648
LDS_BYTES = 163840

V_LANE = 1
V_L16 = 2
V_WD = 3
V_TRA = 6
V_AQ = 10
V_AG = 14
V_KA = 20
V_VA = 24
V_KD = 32
V_VD = 34
V_DUMP = 18
V_TC = 62
V_PL = 36
V_T = 40
V_ACCQ = 64
V_ACCG = 192
V_Q = 64
V_S = 128
V_P = 192
V_NEGM = 224
V_L = 240
A_ACCU = 0
XD = 7
A_X = 64
A_W = 176
A_TR = 208
A_ONE = 224
A_O = 0
A_KF = 128
A_VF = 160

def accreg(blk, qb):
    if blk < 8: return v(V_ACCQ + (blk * 4 + qb) * 4, 4)
    if blk < 12: return v(V_ACCG + ((blk - 8) * 4 + qb) * 4, 4)
    return a(A_ACCU + ((blk - 12) * 4 + qb) * 4, 4)

def w_read(dst, blk, j, rel):
    if blk < 8:
        ar = V_AQ + (blk >> 1); off = rel + j * 1024 + (blk & 1) * 8
    else:
        ar = V_AG + ((blk - 8) & 3); off = rel + 2048 + (1024 if blk >= 12 else 0) + j * 512
    assert 0 <= off < 65536
    return "ds_read_b64_tr_b16 %s, %s offset:%d" % (a(dst + 2 * j, 2), v(ar), off)

def w_dma(heavy, tag):
    l = ["buffer_load_dwordx4 %s, %s, %s offen lds ;#%s" % (v(V_WD), s(S_WQ, 4), s(S_WQOFF), tag),
         "buffer_load_dwordx4 %s, %s, %s offen offset:1024 lds ;#%s" % (v(V_WD + 1), s(S_WQ, 4), s(S_WQOFF), tag)]
    if heavy:
        l += ["buffer_load_dwordx4 %s, %s, %s offen offset:2048 lds ;#%s" % (v(V_WD + 2), s(S_WG, 4), s(S_WGOFF), tag),
              "buffer_load_dwordx4 %s, %s, %s offen offset:3072 lds ;#%s" % (v(V_WD + 2), s(S_WU, 4), s(S_WGOFF), tag)]
    return l

def x_load(sl, qb):
    return "buffer_load_dwordx4 %s, %s, %s, %s offen offset:%d%s ;#x%d" % (a(A_X + ((sl % XD) * 4 + qb) * 4, 4), v(V_L16), s(S_X, 4), s(S_XOFF), qb * 1024, LDFL, sl)

def kv_dma(which, i, tag=""):
    vo = (V_KD if which == "K" else V_VD) + i
    return "buffer_load_dwordx4 %s, %s, %s offen offset:%d lds ;#%s" % (v(vo), s(S_K if which == "K" else S_V, 4), s(S_KVOFF), 1024 * i, tag)

def set_flag(e, stage):
    e("s_add_u32 %s, %s, %d\ns_mov_b64 exec, 1\nv_mov_b32 %s, %s" % (s(S_TMP + 7), s(S_TAG), stage, v(V_PL), s(S_TMP + 7)))
    e("buffer_store_dword %s, off, %s, %s sc1" % (v(V_PL), s(S_FL, 4), s(S_MYFL)))
    e("s_mov_b64 exec, -1")

def poll_load(allq, qoff=None):
    if allq: return "buffer_load_dwordx4 %s, %s, %s, 0 offen sc1" % (v(V_PL, 4), v(V_L16), s(S_FL, 4))
    return "buffer_load_dword %s, %s, %s, %s offen sc1" % (v(V_PL), v(V_PL + 3), s(S_FL, 4), qoff)

def poll_spin(e, allq, qoff, stage, tag):
    e("s_mov_b32 %s, 0\ns_add_u32 %s, %s, %d" % (s(S_TMP + 7), s(S_TMP + 6), s(S_TAG), stage))
    e("SPIN_%s:" % tag)
    n = 4 if allq else 1
    for i in range(n): e("v_subrev_u32 %s, %s, %s" % (v(V_PL + i), s(S_TMP + 6), v(V_PL + i)))
    if allq: e("v_max3_u32 %s, %s, %s, %s\nv_max_u32 %s, %s, %s" % (v(V_PL), v(V_PL), v(V_PL + 1), v(V_PL + 2), v(V_PL), v(V_PL), v(V_PL + 3)))
    e("v_cmp_lt_u32 vcc, %d, %s" % (MAXST - stage, v(V_PL)))
    e("s_add_u32 %s, %s, 1" % (s(S_TMP + 7), s(S_TMP + 7)))
    e("s_cmp_eq_u64 vcc, 0\ns_cbranch_scc1 SPUN_%s" % tag)
    e("s_cmp_ge_u32 %s, 0x40000\ns_cbranch_scc1 SPUN_%s" % (s(S_TMP + 7), tag))
    e("s_sleep %d" % opt("slp", 2))
    e(poll_load(allq, qoff))
    e("s_waitcnt vmcnt(0)\ns_branch SPIN_%s" % tag)
    e("SPUN_%s:" % tag)

def zero_acc(e, heavy=True):
    for r in range(V_ACCQ, 256): e("v_mov_b32 %s, 0" % v(r))
    for r in range(A_ACCU, A_ACCU + 64): e("v_accvgpr_write_b32 %s, 0" % a(r))

NI = opt("ni", 1)

def gen_ln_loads(e):
    T = V_T; L = V_LANE
    R = V_ACCQ
    e("v_bfe_u32 %s, %s, 1, 3\nv_lshrrev_b32 %s, 4, %s\nv_and_b32 %s, 1, %s" % (v(T), v(L), v(T + 1), v(L), v(T + 2), v(L)))
    e("v_mul_u32_u24 %s, 1280, %s\nv_lshl_add_u32 %s, %s, 4, %s\nv_lshl_add_u32 %s, %s, 3, %s" % (v(T + 3), v(T), v(T + 3), v(T + 1), v(T + 3), v(T + 3), v(T + 2), v(T + 3)))
    e("s_lshl_b32 %s, %s, 5\ns_add_u32 %s, %s, %s\ns_mul_i32 %s, %s, %d\ns_mul_i32 %s, %s, 320" % (s(S_TMP), s(S_QT), s(S_TMP), s(S_TMP), s(S_HEAD), s(S_TMP), s(S_TMP), 8 * 1280, s(S_TMP + 1), s(S_WAVE)))
    e("s_waitcnt lgkmcnt(0)")
    srd(e, S_T, ptr(0), s(S_TMP), 8 * 1280)
    for i in range(5): e("buffer_load_dwordx2 %s, %s, %s, %s offen offset:%d" % (v(R + 2 * i, 2), v(T + 3), s(S_T, 4), s(S_TMP + 1), 64 * i))

def gen_ln_compute(e, nyounger):
    T = V_T; L = V_LANE
    R = V_ACCQ; U = R + 10
    e("v_and_b32 %s, 15, %s\nv_lshlrev_b32 %s, 3, %s\nv_lshl_add_u32 %s, %s, 8, %s" % (v(T + 3), v(L), v(T + 3), v(T + 3), v(T + 3), v(T + 1), v(T + 3)))
    e("s_lshr_b32 %s, %s, 3\ns_lshl2_add_u32 %s, %s, %s\ns_mul_i32 %s, %s, %d" % (s(S_TMP), s(S_HEAD), s(S_TMP), s(S_QT), s(S_TMP), s(S_TMP), s(S_TMP), 20 * 4096))
    e("s_bfe_u32 %s, %s, 0x20001\ns_lshl_b32 %s, %s, 10\ns_add_u32 %s, %s, %s" % (s(S_TMP + 1), s(S_HEAD), s(S_TMP + 1), s(S_TMP + 1), s(S_TMP), s(S_TMP), s(S_TMP + 1)))
    e("s_and_b32 %s, %s, 1\ns_lshl_b32 %s, %s, 7\ns_add_u32 %s, %s, %s\ns_add_u32 %s, %s, %d" % (s(S_TMP + 1), s(S_HEAD), s(S_TMP + 1), s(S_TMP + 1), s(S_TMP), s(S_TMP), s(S_TMP + 1), s(S_TMP), s(S_TMP), XF_OFF))
    srd(e, S_LN, ptr(11), s(S_TMP), 20 * 4096)
    e("s_mul_i32 %s, %s, %d" % (s(S_TMP), s(S_WAVE), 5 * 4096))
    e("v_lshlrev_b32 %s, 5, %s\nv_add_u32 %s, %d, %s\ns_lshl_b32 %s, %s, 3\nv_add_u32 %s, %s, %s" % (v(T + 4), v(T), v(T + 4), L_MISC, v(T + 4), s(S_TMP + 1), s(S_WAVE), v(T + 5), s(S_TMP + 1), v(T + 4)))
    A0 = T + 6; M = T + 8
    e("s_waitcnt vmcnt(%d)" % nyounger)
    stamp(e, 17)
    for d in range(10): e("v_lshlrev_b32 %s, 16, %s\nv_and_b32 %s, 0xffff0000, %s" % (v(U + 2 * d), v(R + d), v(U + 2 * d + 1), v(R + d)))
    e("v_pk_add_f32 %s, %s, %s\nv_pk_add_f32 %s, %s, %s" % (v(A0, 2), v(U, 2), v(U + 2, 2), v(M, 2), v(U + 4, 2), v(U + 6, 2)))
    for d in range(4, 10): e("v_pk_add_f32 %s, %s, %s" % (v((A0, M)[d & 1], 2), v((A0, M)[d & 1], 2), v(U + 2 * d, 2)))
    def reduce(dst):
        e("v_pk_add_f32 %s, %s, %s" % (v(A0, 2), v(A0, 2), v(M, 2) if dst == M else v(T + 10, 2)))
        e("v_add_f32 %s, %s, %s\ns_nop 1" % (v(A0), v(A0), v(A0 + 1)))
        e("v_add_f32_dpp %s, %s, %s quad_perm:[1,0,3,2] row_mask:0xf bank_mask:0xf" % (v(A0), v(A0), v(A0)))
        for sw in ("v_permlane32_swap_b32", "v_permlane16_swap_b32"):
            e("v_mov_b32 %s, %s\ns_nop 1\n%s %s, %s\nv_add_f32 %s, %s, %s" % (v(A0 + 1), v(A0), sw, v(A0), v(A0 + 1), v(A0), v(A0), v(A0 + 1)))
    reduce(M)
    e("v_mul_f32 %s, %s, %s\nv_mul_f32 %s, %s, %s" % (v(M), f2u(-1.0 / 160), v(A0), v(M + 1), f2u(-1.0 / 160), v(A0)))
    for d in range(10): e("v_pk_add_f32 %s, %s, %s" % (v(U + 2 * d, 2), v(U + 2 * d, 2), v(M, 2)))
    e("v_pk_mul_f32 %s, %s, %s\nv_pk_mul_f32 %s, %s, %s" % (v(A0, 2), v(U, 2), v(U, 2), v(T + 10, 2), v(U + 2, 2), v(U + 2, 2)))
    for d in range(2, 10): e("v_pk_fma_f32 %s, %s, %s, %s" % (v((A0, T + 10)[d & 1], 2), v(U + 2 * d, 2), v(U + 2 * d, 2), v((A0, T + 10)[d & 1], 2)))
    reduce(None)
    e("v_mov_b32 %s, %s" % (v(M + 1), v(A0)))
    e("ds_write_b64 %s, %s\ns_waitcnt lgkmcnt(0)\ns_barrier" % (v(T + 5), v(M, 2)))
    X = T + 12
    e("ds_read_b128 %s, %s\nds_read_b128 %s, %s offset:16\ns_waitcnt lgkmcnt(0)" % (v(X, 4), v(T + 4), v(X + 4, 4), v(T + 4)))
    e("v_pk_add_f32 %s, %s, %s\nv_pk_add_f32 %s, %s, %s\nv_pk_add_f32 %s, %s, %s" % (v(A0, 2), v(X, 2), v(X + 2, 2), v(T + 10, 2), v(X + 4, 2), v(X + 6, 2), v(A0, 2), v(A0, 2), v(T + 10, 2)))
    e("v_mul_f32 %s, 0.25, %s" % (v(A0), v(A0)) if False else "v_mul_f32 %s, %s, %s" % (v(A0), f2u(0.25), v(A0)))
    for k in range(4): e("v_sub_f32 %s, %s, %s" % (v(X + 2 * k), v(X + 2 * k), v(A0)))
    e("v_mul_f32 %s, %s, %s" % (v(X + 1), v(X), v(X)))
    for k in range(1, 4): e("v_fmac_f32 %s, %s, %s" % (v(X + 1), v(X + 2 * k), v(X + 2 * k)))
    e("v_fmac_f32 %s, %s, %s" % (v(A0 + 1), f2u(160.0), v(X + 1)))
    e("v_mov_b32 %s, %s\nv_fmac_f32 %s, %s, %s\nv_rsq_f32 %s, %s" % (v(X), f2u(1e-5), v(X), f2u(1.0 / 640), v(A0 + 1), v(X), v(X)))
    e("v_sub_f32 %s, %s, %s" % (v(M), v(A0), v(M)))
    e("v_mov_b32 %s, %s\nv_mul_f32 %s, %s, %s\nv_mul_f32 %s, %s, %s" % (v(X + 1), v(X), v(M + 1), v(M), v(X), v(M), v(M), v(X)))
    for i in range(5):
        for d in (2 * i, 2 * i + 1): e("v_pk_fma_f32 %s, %s, %s, %s" % (v(U + 2 * d, 2), v(U + 2 * d, 2), v(X, 2), v(M, 2)))
        for d in (2 * i, 2 * i + 1): e("v_cvt_pk_bf16_f32 %s, %s, %s" % (v(R + d), v(U + 2 * d), v(U + 2 * d + 1)))
        e("buffer_store_dwordx2 %s, %s, %s, %s offen%s" % (v(R + 2 * i, 2), v(T + 3), s(S_LN, 4), s(S_TMP), STFL))
        if i < 4: e("s_add_u32 %s, %s, 4096" % (s(S_TMP), s(S_TMP)))

def w_slab(e, sl, heavy):
    e("s_add_u32 m0, %s, %d\ns_nop 0" % (s(S_M0W), (sl % RW) * 16384))
    e.ext(w_dma(heavy, "w%d" % sl))
    e("s_add_u32 %s, %s, %d\ns_add_u32 %s, %s, %d" % (s(S_WQOFF), s(S_WQOFF), 32 * 8192, s(S_WGOFF), s(S_WGOFF), 32 * 3456))

def gen_proj(e0, heavy, tag):
    e = E()
    NB = 16 if heavy else 8
    NG = NB * 4
    T = V_T; L = V_LANE
    e("s_mov_b32 %s, 0" % s(S_XOFF))
    NX0 = opt("nx0", 2)
    defer = []
    for sl in range(RW):
        t = E()
        if sl >= NI: w_slab(t, sl, heavy)
        if sl < XD - 1:
            for qb in range(4): t(x_load(sl, qb))
            t("s_add_u32 %s, %s, 4096" % (s(S_XOFF), s(S_XOFF)))
        if sl < NX0: e.ext(t.L)
        else: defer += [x for x in t.L if not x.startswith("s_nop")]
    if NI == 0: e("s_waitcnt WAITVM{w0}\ns_barrier")
    mf = []
    for sl in range(20):
        for f in range(NB):
            wr = a(A_W + 4 * (f % 8), 4)
            for qb in range(4):
                mf.append("%s %s, %s, %s, %s" % (MF, accreg(f, qb), wr, a(A_X + ((sl % XD) * 4 + qb) * 4, 4), accreg(f, qb) if sl else "0"))
    G = Gaps(mf)
    NPRE = 5 if heavy else 3
    base = lambda sl: 65536 if (sl % RW) >= 4 else 0
    rel = lambda sl: (sl % RW) * 16384 - base(sl)
    aregs = list(range(V_AQ, V_AQ + 4)) + (list(range(V_AG, V_AG + 4)) if heavy else [])
    pre_reads = [w_read(A_W + 4 * f, f, j, rel(0)) for f in range(NPRE) for j in range(2)]
    late = {13: [("V", 4)], 14: [("K", 0), ("K", 1)], 15: [("K", 2), ("K", 3)], 16: [("K", 4), ("K", 5)], 17: [("K", 6), ("K", 7)],
            18: [("V", 0), ("V", 1)], 19: [("V", 2), ("V", 3)]}
    bars = {}
    ramp = list(defer)
    RPS = opt("rps", 14 if heavy else 9)
    for sl in range(20):
        st = sl * NG; end = st + NG - 1
        g = st
        xl = []
        if sl + XD - 1 < 20:
            xl = [x_load(sl + XD - 1, qb) for qb in range(4)] + ["s_add_u32 %s, %s, 4096" % (s(S_XOFF), s(S_XOFF))]
        if ramp is not None:
            ramp += xl
        else:
            for x in xl[:4]: g = G.place("m", x, g + 1) + 1
            if xl: G.place("s", xl[4], g)
        cur = st
        for f in range(NPRE, NB):
            lo = st if f < 8 else st + 4 * (f - 8) + 3
            for j in range(2): cur = G.place("d", w_read(A_W + 4 * (f % 8), f, j, rel(sl)), max(lo, cur), st + 4 * f - 5)
        lastread = cur
        if sl < 19 and base(sl + 1) != base(sl):
            d = base(sl + 1) - base(sl)
            gg = lastread
            for r in aregs:
                gg = G.place("v", ("v_add_u32 %s, %d, %s" % (v(r), d, v(r))) if d > 0 else ("v_subrev_u32 %s, %d, %s" % (v(r), -d, v(r))), gg + (0 if gg > lastread else 1))
            lastread = max(lastread, gg - 6)
        b = G.place("b", "s_barrier", lastread + 7)
        need = ["x%d" % (sl + 1), "w%d" % (sl + 1)] + (["trs"] if sl == 19 else [])
        G.put(b, "s", "s_waitcnt WAITVM{%s} lgkmcnt(0)" % ",".join(need))
        bars[sl] = b
        g = b
        if ramp is not None:
            t = E(); w_slab(t, sl + RW, heavy)
            post = [x for x in t.L if not x.startswith("s_nop")]
            rampinfo = (st, b, end, post)
        elif sl + RW < 20:
            g = G.place("s", "s_add_u32 m0, %s, %d" % (s(S_M0W), (sl % RW) * 16384), b + 1)
            for d in w_dma(heavy, "w%d" % (sl + RW)): g = G.place("m", d, g + 2)
            g = G.place("s", "s_add_u32 %s, %s, %d" % (s(S_WQOFF), s(S_WQOFF), 32 * 8192), g + 1)
            if heavy: g = G.place("s", "s_add_u32 %s, %s, %d" % (s(S_WGOFF), s(S_WGOFF), 32 * 3456), g + 1)
        else:
            for which, i in late[sl]:
                g = G.place("s", "s_add_u32 m0, %s, %d" % (s(S_M0K), (L_K if which == "K" else L_V) + i * 8192), g + 1)
                g = G.place("s", "s_mov_b32 %s, %d" % (s(S_KVOFF), (i + (3 if which == "V" else 0)) * 8192), g + 1)
                for k in range(2): g = G.place("m", kv_dma(which, k, "%s%d" % (which, i)), g + 1 + k)
        assert g <= end, (sl, g - st)
        if sl < 19:
            cur = b + 1
            for f in range(NPRE):
                lo = st + 4 * (NB - 8 + f) + 3
                for j in range(2): cur = G.place("d", w_read(A_W + 4 * f, f, j, rel(sl + 1)), max(lo, cur), end + 4 * f - 4 + opt("slack", 0))
        if ramp is not None:
            st_, b_, end_, post = rampinfo
            q = [(x, st_) for x in ramp] + [(x, b_ + 1) for x in post]
            g = st_; nv = 0
            while q and nv < RPS:
                x, lo = q[0]
                k = "m" if x.startswith("buffer") else "s"
                try: g = G.place(k, x, max(g + 1, lo), end_)
                except RuntimeError: break
                q.pop(0); nv += (k == "m")
            while q and not q[0][0].startswith("buffer") and " m0," not in q[0][0]:
                G.va[g].append(q.pop(0)[0])
            ramp = [x for x, _ in q] if q else None
    WT = opt("wt", 6)
    if WT:
        k = 1
        for sl in [int(x) for x in opt("wts", "0.4.8").split(".")]:
            g = sl * NG + opt("wtg", 0)
            seq = [("s", "s_mov_b32 %s, %d" % (s(S_TMP), k * WT * 32 * 8192)), ("m", "buffer_load_dword %s, %s, %s, %s offen" % (v(V_DUMP), v(V_TC + 1), s(S_WQ, 4), s(S_TMP)))]
            if heavy:
                seq += [("s", "s_mov_b32 %s, %d" % (s(S_TMP), k * WT * 32 * 3456)),
                        ("m", "buffer_load_dword %s, %s, %s, %s offen offset:2048" % (v(V_DUMP), v(V_TC), s(S_WG, 4), s(S_TMP))),
                        ("m", "buffer_load_dword %s, %s, %s, %s offen offset:3072" % (v(V_DUMP), v(V_TC), s(S_WU, 4), s(S_TMP)))]
            for kk, x in seq: g = G.place(kk, x, g + 1)
            k += 1
    if opt("kvt", 9):
        g = opt("kvt", 9) * NG
        t0 = v(V_TC)
        seq = [("v", "v_min_u32 %s, 15, %s" % (t0, v(L))), ("v", "v_lshlrev_b32 %s, 7, %s" % (t0, t0)),
               ("s", "s_lshl2_add_u32 %s, %s, %s" % (s(S_TMP), s(S_QT), s(S_WAVE))), ("s", "s_lshl_b32 %s, %s, 11" % (s(S_TMP), s(S_TMP))),
               ("m", "buffer_load_dword %s, %s, %s, %s offen" % (v(V_DUMP), t0, s(S_K, 4), s(S_TMP))),
               ("s", "s_add_u32 %s, %s, %d" % (s(S_TMP), s(S_TMP), 3 * 8192)),
               ("m", "buffer_load_dword %s, %s, %s, %s offen" % (v(V_DUMP), t0, s(S_V, 4), s(S_TMP)))]
        for kk, x in seq: g = G.place(kk, x, g + 1)
    TS = opt("ts", 13); TPS = opt("tps", 5)
    for i in range(10):
        sl = TS + i // TPS; st = sl * NG
        g = st + (9 if sl + XD - 1 < 20 else 0) if i % TPS == 0 else gprev
        t0 = v(V_T + 12 + i)
        seq = [
               ("s", "s_add_u32 m0, %s, %d" % (s(S_TRM), i * 1024)),
               ("m", "buffer_load_dwordx4 %s, %s, %s offen lds ;#trs" % (t0, s(S_T, 4), s(S_TRS)))]
        if heavy:
            for k, x in seq: g = G.place(k, x, g + (1 if k != "v" else 0), bars[sl] - 1)
            gprev = g + 1
        else:
            for k, x in seq: G.va[bars[sl] - 1].append(x if k != "m" else "s_nop 0\n" + x)
            gprev = 0
    trpost = []
    g = bars[19] + 1
    for i in range(10):
        t0 = v(V_T + 12 + i)
        pre = ["v_add_u32 %s, %d, %s" % (t0, i, v(V_TRA + 2)), "v_xor_b32 %s, %s, %s" % (t0, t0, v(V_TRA + 1)), "v_lshl_add_u32 %s, %s, 5, %s" % (t0, t0, v(V_TRA))]
        if i == 0: pre = ["v_mov_b32 %s, %s" % (v(V_TRA + 2), s(S_TRU))] + pre
        gg = bars[17] + 1 if i == 0 else gv
        for x in pre: gg = G.place("v", x, gg, bars[19] - 1, force=True)
        gv = gg
        for j in range(2):
            x = "ds_read_b64_tr_b16 %s, %s offset:%d" % (a(A_TR + 4 * i + 2 * j, 2), t0, j * 16 * 1280)
            try: g = G.place("d", x, g) + 1
            except RuntimeError: trpost.append(x); g = G.n()
    trst = []
    adds = {4: 4096, 5: NSLAB * 5120 - 4096, 9: 4096}
    for i in range(10):
        if i in adds: trst.append("s_add_u32 %s, %s, %d" % (s(S_TRD), s(S_TRD), adds[i]))
        trst.append("buffer_store_dwordx4 %s, %s, %s, %s offen offset:%d%s ;#trd" % (a(A_TR + 4 * i, 4), v(V_L16), s(S_WF, 4), s(S_TRD), ((i % 5) % 4) * 1024, STFL))
    auto_lgkm(G)
    g = 15 * NG
    for x in gen_tail_setup():
        k = "v" if x.startswith("v_") else "s"
        g = G.place(k, x, g + 1)
    ll = G.lines()
    i0 = min(i for i, x in enumerate(ll) if x.startswith("s_bfe_u32"))
    assert not any(re.search(r";#[xw]\d", x) or "v%d," % V_DUMP in x for x in ll[i0:]), "tail setup overlaps projection loads"
    if VERBOSE: print("proj", tag, G.pattern())
    e.ext(pre_reads)
    e("s_waitcnt WAITVM{x0} lgkmcnt(0)")
    stamp(e, 3)
    nm = 0
    for x in G.lines():
        if x.startswith("v_mfma"):
            if STAMPS and nm % (4 * NG) == 0 and nm: stamp(e, 18 + nm // (4 * NG))
            nm += 1
        e(x)
    e.ext(trpost)
    stamp(e, 4)
    U = T
    CQ = T + 8
    c = math.log2(math.e) / math.sqrt(128.0)
    e("v_mov_b32 %s, %s\nv_mov_b32 %s, %s" % (v(CQ), f2u(c), v(CQ + 1), f2u(c)))
    e("s_mov_b32 %s, %d" % (s(S_KVOFF), 8 * 8192))
    if not heavy: e("s_nop 4")
    def qconv(sl):
        for qb in range(4):
            for b in range(2):
                g0 = V_ACCQ + ((2 * sl + b) * 4 + qb) * 4
                for h in range(2): e("v_pk_mul_f32 %s, %s, %s" % (v(g0 + 2 * h, 2), v(g0 + 2 * h, 2), v(CQ, 2)))
            d0 = V_Q + (sl * 4 + qb) * 4
            for b in range(2):
                g0 = V_ACCQ + ((2 * sl + b) * 4 + qb) * 4
                e("v_cvt_pk_bf16_f32 %s, %s, %s" % (v(d0 + 2 * b), v(g0), v(g0 + 1)))
                e("v_cvt_pk_bf16_f32 %s, %s, %s" % (v(d0 + 2 * b + 1), v(g0 + 2), v(g0 + 3)))
    if heavy:
        for fb in range(4):
            for qb in range(4):
                g0 = V_ACCG + (fb * 4 + qb) * 4
                u0 = U + 4 * (qb & 1)
                for r in range(4): e("v_max_f32 %s, 0, %s" % (v(g0 + r), v(g0 + r)))
                for r in range(4): e("v_accvgpr_read_b32 %s, %s" % (v(u0 + r), a(A_ACCU + (fb * 4 + qb) * 4 + r)))
                for h in range(2): e("v_pk_mul_f32 %s, %s, %s" % (v(g0 + 2 * h, 2), v(g0 + 2 * h, 2), v(u0 + 2 * h, 2)))
                d0 = V_ACCG + ((fb & ~1) * 4 + qb) * 4 + 2 * (fb & 1)
                e("v_cvt_pk_bf16_f32 %s, %s, %s" % (v(d0), v(g0), v(g0 + 1)))
                e("v_cvt_pk_bf16_f32 %s, %s, %s" % (v(d0 + 1), v(g0 + 2), v(g0 + 3)))
                if fb & 1:
                    if qb == 0: e("s_lshl_b32 %s, %s, 13\ns_add_u32 %s, %s, %d" % (s(S_TMP), s(S_FS), s(S_TMP), s(S_TMP), (128 + (fb >> 1)) * 4096))
                    e("buffer_store_dwordx4 %s, %s, %s, %s offen offset:%d%s" % (v(d0 - 2, 4), v(V_L16), s(S_AF, 4), s(S_TMP), 1024 * qb, STFL))
    e("s_waitcnt lgkmcnt(0)")
    for sl in range(4):
        qconv(sl)
        k = (len(trst) + 3 - sl) // (4 - sl)
        e.ext(trst[:k]); trst = trst[k:]
    e("s_waitcnt WAITVM{K0,K1,K2,K3}")
    e0.ext(resolve_vm(e.L))

def kv_preload(e):
    e("s_mov_b32 %s, 0" % s(S_KVOFF))
    for i in range(8):
        e("s_add_u32 m0, %s, %d\ns_nop 0" % (s(S_M0K), L_K + i * 8192))
        e(kv_dma("K", 0)); e(kv_dma("K", 1))
        if i >= 3:
            e("s_add_u32 m0, %s, %d\ns_nop 0" % (s(S_M0K), L_V + (i - 3) * 8192))
            e(kv_dma("V", 0)); e(kv_dma("V", 1))
        e("s_add_u32 %s, %s, 8192" % (s(S_KVOFF), s(S_KVOFF)))
    e("s_waitcnt vmcnt(0)")

def Sreg(buf, qb, kb): return V_S + buf * 32 + qb * 8 + kb * 4
def Preg(buf, qb): return V_P + buf * 16 + qb * 4

def qk_mfmas(buf, czero=False):
    out = []
    order = {"kqs": [(kb, qb, sl) for kb in range(2) for qb in range(4) for sl in range(4)],
             "ksq": [(kb, qb, sl) for kb in range(2) for sl in range(4) for qb in range(4)],
             "snake": [(kb, qb, sl) for kb in range(2) for qb in range(4) for sl in range(4)]}[opt("qko", "kqs")]
    for kb, qb, sl0 in order:
                sl = sl0
                d = v(Sreg(buf, qb, kb), 4)
                if opt("qko", "kqs") == "snake":
                    first = sl0 == 0
                    sl = sl0 if qb % 2 == 0 else 3 - sl0
                    c = ("0" if czero else v(V_NEGM + 4 * qb, 4)) if first else d
                    out.append("%s %s, %s, %s, %s" % (MF, d, a(A_KF + (kb * 4 + sl) * 4, 4), v(V_Q + (sl * 4 + qb) * 4, 4), c))
                    continue
                c = d if sl else ("0" if czero else v(V_NEGM + 4 * qb, 4))
                out.append("%s %s, %s, %s, %s" % (MF, d, a(A_KF + (kb * 4 + sl) * 4, 4), v(V_Q + (sl * 4 + qb) * 4, 4), c))
    return out

def pv_mfmas(buf, tailmode=False):
    out = []
    for qb in range(4):
        out.append("%s %s, %s, %s, %s" % (MF, v(V_L + 4 * qb, 4), a(A_ONE, 4), v(Preg(buf, qb), 4), v(V_L + 4 * qb, 4)))
    pvo = opt("pvo", "dq")
    order = {"dq": [(db, qb) for db in range(8) for qb in range(4)],
             "snake": [(db, qb if db % 2 == 0 else 3 - qb) for db in range(8) for qb in range(4)],
             "qd2": [(2 * h + d, qb) for h in range(4) for qb in range(4) for d in range(2)],
             "qd4": [(4 * h + d, qb) for h in range(2) for qb in range(4) for d in range(4)]}[pvo if not tailmode else "dq"]
    for db, qb in order:
            o = a(A_O + (db * 4 + qb) * 4, 4)
            out.append("%s %s, %s, %s, %s" % (MF, o, a(A_VF + db * 4, 4), v(Preg(buf, qb), 4), o))
    return out

def k_read(kb, sl, off): return "ds_read_b128 %s, %s offset:%d" % (a(A_KF + (kb * 4 + sl) * 4, 4), v(V_KA + sl), off + kb * 4096)
def v_read(db, j, off): return "ds_read_b64_tr_b16 %s, %s offset:%d" % (a(A_VF + db * 4 + 2 * j, 2), v(V_VA + db), off + j * 4096)

def softmax_ops(buf):
    ex = []; cv = []
    for qb in range(4):
        for kb in range(2):
            for r in range(4):
                x = v(Sreg(buf, qb, kb) + r)
                ex.append("v_exp_f32 %s, %s" % (x, x))
            for h in range(2):
                b = Sreg(buf, qb, kb) + 2 * h
                cv.append("v_cvt_pk_bf16_f32 %s, %s, %s" % (v(Preg(buf, qb) + kb * 2 + h), v(b), v(b + 1)))
    return ex, cv

def gen_attention(e):
    T = V_T
    e("ATT_START:")
    stamp(e, 5)
    e("s_barrier")
    for kb in range(2):
        for sl in range(4): e(k_read(kb, sl, 0))
    z = ["v_mov_b32 %s, 0x3f803f80" % v(T)] + ["v_accvgpr_write_b32 %s, %s" % (a(A_ONE + r), v(T)) for r in range(4)] + \
        ["v_accvgpr_write_b32 %s, 0" % a(A_O + r) for r in range(128)] + ["v_mov_b32 %s, 0" % v(V_L + r) for r in range(16)]
    e.ext(z[:24]); z = z[24:]
    e("s_waitcnt lgkmcnt(0)")
    G = Gaps(qk_mfmas(0, czero=True))
    for i in range(4): G.place("d", k_read(0, i, 8192), 16 + i)
    g = 0
    while z:
        try: g = G.place("v", z[0], g); z.pop(0)
        except RuntimeError: break
    e.ext(G.lines())
    for i in range(4): e(k_read(1, i, 8192))
    e.ext(z[:8]); z = z[8:]
    for qb in range(4):
        b = Sreg(0, qb, 0)
        e("v_max3_f32 %s, %s, %s, %s" % (v(T + qb), v(b), v(b + 1), v(b + 2)))
        e("v_max3_f32 %s, %s, %s, %s" % (v(T + qb), v(T + qb), v(b + 3), v(b + 4)))
        e("v_max3_f32 %s, %s, %s, %s" % (v(T + qb), v(T + qb), v(b + 5), v(b + 6)))
        e("v_max3_f32 %s, %s, %s, %s" % (v(T + qb), v(T + qb), v(b + 7), v(V_NEGM + 4 * qb)))
    for sw in ("v_permlane32_swap_b32", "v_permlane16_swap_b32"):
        for qb in range(4): e("v_mov_b32 %s, %s" % (v(T + 4 + qb), v(T + qb)))
        e.ext(z[:2]); z = z[2:]
        for qb in range(4): e("%s %s, %s" % (sw, v(T + qb), v(T + 4 + qb)))
        for qb in range(4): e("v_max_f32 %s, %s, %s" % (v(T + qb), v(T + qb), v(T + 4 + qb)))
    for qb in range(4):
        for r in range(4): e("v_sub_f32 %s, 0, %s" % (v(V_NEGM + 4 * qb + r), v(T + qb)))
    for qb in range(4):
        for r in range(8): e("v_sub_f32 %s, %s, %s" % (v(Sreg(0, qb, 0) + r), v(Sreg(0, qb, 0) + r), v(T + qb)))
    e.ext(z)
    e("s_waitcnt lgkmcnt(0)")

    def build(steps, loop, pend):
        mf = []; starts = []
        for sp in steps:
            starts.append(len(mf))
            if sp["qk"]: mf += qk_mfmas(1 - sp["buf"])
            if sp["pv"]: mf += pv_mfmas(1 - sp["buf"], not sp["qk"])
        G = Gaps(mf)
        for sp, st in zip(steps, starts):
            nq = 32 if sp["qk"] else 0
            npv = 36 if sp["pv"] else 0
            end = st + nq + npv - 1
            full = sp["qk"] and sp["pv"]
            cur = st; g = st; c2 = st
            if sp.get("bar") is not None:
                b = G.place("b", "s_barrier", st)
                G.put(b, "s", "s_waitcnt vmcnt(%d) lgkmcnt(0)" % sp["bar"])
                cur = b + 1
            if full:
                for i in range(16):
                    lo = st + 4 * (i // 2) + (i % 2)
                    cur = G.place("d", v_read(i // 2, i % 2, sp["voff"]), max(cur, lo)) + 1
            if sp.get("vnext") is not None:
                c2 = st + nq + 4 + 3
                for i in range(16):
                    lo = min(st + nq + 4 + 4 * (i // 2) + 3, end)
                    c2 = G.place("d", v_read(i // 2, i % 2, sp["vnext"]), min(max(c2, lo), end), end, force=True) + 1
            if sp.get("koff") is not None:
                if full:
                    c2 = st + 32
                    for i in range(8):
                        c2 = G.place("d", k_read(i // 4, i % 4, sp["koff"]), max(c2, st + 32 + 3 * i)) + 1
                else:
                    c2 = st + 16
                    for i in range(4): c2 = G.place("d", k_read(0, i, sp["koff"]), c2) + 1
                    for i in range(4): G.put(end, "d", k_read(1, i, sp["koff"]))
            if sp.get("dma"):
                g = st + (33 if full else 2)
                for wi, which in enumerate(sp["dma"]):
                    g = G.place("s", "s_add_u32 m0, %s, %s" % (s(S_M0K), sp["m0" + which]), g)
                    for i in range(2): g = G.place("m", kv_dma(which, i), g + 2)
                    g += 1
                g = G.place("s", "s_add_u32 %s, %s, 8192" % (s(S_KVOFF), s(S_KVOFF)), g)
            marks = {"dma": g, "kread": c2 if sp.get("koff") is not None else st, "vread": cur}
            for (after, chain) in sp.get("misc", []):
                gg = marks[after] if isinstance(after, str) else st + after
                for (kind, text) in chain:
                    gg = G.place(kind, text, gg + (1 if kind == "s" else 0), end)
                marks["last"] = max(marks.get("last", 0), gg)
            if sp["sm"]:
                ex, cv = softmax_ops(sp["buf"])
                n = end - st + 1
                if full:
                    eg = []; g = st
                    for i, x in enumerate(ex):
                        tgt = st + (i * (n - 3)) // 32
                        g = G.place("e", x, max(g, tgt), end); eg.append(g)
                    g = st
                    for i, x in enumerate(cv): g = G.place("v", x, max(g, eg[2 * i + 1] + 1), end)
                else:
                    for i, x in enumerate(ex): G.put(st + (i * (n - 1)) // 32, "e", x)
                    for i, x in enumerate(cv): G.put(min(st + ((2 * i + 1) * (n - 1)) // 32 + 1, end), "v", x)
        pre, out = auto_lgkm(G, pend, loop=loop)
        return G, pre, out

    G, pre, pend = build([dict(buf=0, qk=True, pv=False, sm=True, koff=16384)], False, [])
    e.ext(G.lines())
    for sl in range(4): e("v_add_u32 %s, 16384, %s" % (v(V_KA + sl), v(V_KA + sl)))
    e("s_mov_b32 %s, 16384\ns_mov_b32 %s, 49152" % (s(S_TOG), s(S_TMP + 2)))
    e("s_mov_b32 %s, %d\ns_mov_b32 %s, %d" % (s(S_TMP + 3), 1 * 8192, s(S_TMP + 4), 6 * 8192 + L_V))
    e("s_waitcnt vmcnt(0) lgkmcnt(0)\ns_barrier")
    for which, m0 in (("K", L_K), ("V", L_V + 5 * 8192)):
        e("s_add_u32 m0, %s, %d\ns_nop 0" % (s(S_M0K), m0))
        e(kv_dma(which, 0)); e(kv_dma(which, 1))
    e("s_add_u32 %s, %s, 8192" % (s(S_KVOFF), s(S_KVOFF)))
    e("s_cmp_lg_u32 %s, 0\ns_cbranch_scc1 NOSIG2" % s(S_WAVE))
    set_flag(e, 2)
    e("NOSIG2:")
    def adv(r, base):
        return [("s", "s_add_u32 %s, %s, 8192" % (s(r), s(r))), ("s", "s_and_b32 %s, %s, 0xffff" % (s(r), s(r)))] + \
               ([("s", "s_or_b32 %s, %s, %d" % (s(r), s(r), base))] if base else [])
    miscA = [("kread", [("v", "v_xor_b32 %s, %s, %s" % (v(V_KA + i), s(S_TMP + 2), v(V_KA + i))) for i in range(4)]),
             ("dma", adv(S_TMP + 3, 0) + adv(S_TMP + 4, L_V)),
             ("last", [("s", "s_cmp_eq_u32 %s, %s" % (s(S_KVOFF), s(S_EVT))), ("s", "s_cbranch_scc1 ATT_EVT\nATT_EVTR:")])]
    miscB = [(34, [("v", "v_xor_b32 %s, %s, %s" % (v(V_VA + i), s(S_TOG), v(V_VA + i))) for i in range(8)] +
                  [("s", "s_xor_b32 %s, %s, 32768" % (s(S_TOG), s(S_TOG))), ("s", "s_xor_b32 %s, %s, 32768" % (s(S_TMP + 2), s(S_TMP + 2)))]),
             ("dma", adv(S_TMP + 3, 0) + adv(S_TMP + 4, L_V)),
             ("last", [("s", "s_cmp_lt_u32 %s, %d" % (s(S_KVOFF), (63 + 8) * 8192))])]
    G, pre, pend = build([dict(buf=1, qk=True, pv=True, sm=True, koff=8192, voff=0, dma="KV", m0K=s(S_TMP + 3), m0V=s(S_TMP + 4), misc=miscA),
                          dict(buf=0, qk=True, pv=True, sm=True, koff=0, voff=8192, bar=16, dma="KV", m0K=s(S_TMP + 3), m0V=s(S_TMP + 4), misc=miscB)], True, [])
    if VERBOSE: print("loop", G.pattern())
    stamp(e, 6)
    e("s_cmp_eq_u32 %s, 0\ns_cselect_b32 %s, %d, 0" % (s(S_WAVE), s(S_EVT), EVT1))
    e(".p2align 6\nATT_LOOP:")
    for x in G.lines(): e(x)
    e("s_cbranch_scc1 ATT_LOOP")
    stamp(e, 7)
    for i in range(16): e(v_read(i // 2, i % 2, 0))
    e("s_sub_u32 %s, %s, 7\ns_cselect_b32 %s, %s, %s\ns_mov_b32 %s, 0" % (s(K_RND), s(K_ROT), s(K_RND), s(K_ROT), s(K_RND), s(K_CNT)))
    h = E()
    h.ext(k_addr_down(0))
    h("s_waitcnt vmcnt(0) lgkmcnt(0)\ns_barrier")
    h.ext(k_loads(0))
    G, pre, pend = build([dict(buf=1, qk=False, pv=True, sm=True, vnext=8192)], False, [])
    h.ext(G.lines())
    h("s_waitcnt lgkmcnt(0)\ns_barrier")
    G = Gaps(pv_mfmas(1, True))
    su = E(); gen_t8_setup(su)
    g = 0
    for r in (1, 2):
        for i, x in enumerate(k_addr_down(r)): G.put(g + i // 3, "s", x)
        g += 3
        for x in k_loads(r): g = G.place("m", x, g) + 1
    h.ext(G.lines())
    h.ext(su.L)
    for sg in range(NWH):
        for k, x in t8_w(sg): h(x + ("\ns_nop 0" if k == "s" else ""))
    return h.L

def gen_events(e):
    e("ATT_EVT:")
    e("s_cmp_eq_u32 %s, %d\ns_cbranch_scc0 ATT_EVT2" % (s(S_EVT), EVT1))
    e(poll_load(True))
    e("s_mov_b32 %s, %d\ns_branch ATT_EVTR" % (s(S_EVT), EVT1 + 6 * 8192))
    e("ATT_EVT2:")
    e("s_waitcnt vmcnt(24)")
    poll_spin(e, True, None, 2, "EARLY")
    e("s_branch ATT_EVTR")

NST, INFL = 4, 3
K_SA, K_SW, K_SX, K_SO = S_WQ, S_WG, S_WU, S_X
K_RND, K_OA, K_OW, K_OW2 = S_XOFF, S_WQOFF, S_WGOFF, S_M0W
K_CNT, K_ROT, K_FLG, K_RND0 = 96, 97, 95, 87
KV_A = [3, 4, 5, 62]; KV_XO = 63; KV_X = 8
KV_RED = 20
KGRP = [a(128 + 4 * i, 4) for i in range(8)] + [a(192 + 4 * i, 4) for i in range(8)] + [a(228 + 4 * i, 4) for i in range(7)] + \
       [v(224 + 4 * i, 4) for i in range(4)] + [a(160 + 4 * i, 4) for i in range(8)] + [a(224, 4)]
KGRP += [a(4 * i, 4) for i in range(27)]
def kstage(st, k): return KGRP[st * 9 + k]
R1 = opt("r1", 7); NPRE2 = opt("npre2", 4)
def kbuf(r): return r % NST if r < R1 + NPRE2 else (4 + r - R1 - NPRE2)
def kacc(m, nb, p):
    i = nb * 4 + p
    if m == 0: return 128 + 4 * i
    return 64 + 4 * i if i < 16 else 208 + 4 * (i - 16)
def k_addr_down(r):
    t = S_TMP
    return ["s_lshl2_add_u32 %s, %s, %s" % (s(t), s(K_RND), s(S_WAVE)), "s_add_u32 %s, %s, %d" % (s(t), s(t), 128 + 28 * (r // 7)),
            "s_add_u32 %s, %s, 1" % (s(K_RND), s(K_RND)), "s_cmp_eq_u32 %s, 7" % s(K_RND), "s_cselect_b32 %s, 0, %s" % (s(K_RND), s(K_RND)),
            "s_lshl_b32 %s, %s, 12" % (s(K_OA), s(t)), "s_mul_i32 %s, %s, 5120" % (s(K_OW), s(t)), "s_add_u32 %s, %s, 4096" % (s(K_OW2), s(K_OW))]
def k_addr_o():
    t = S_TMP
    return ["s_add_u32 %s, %s, %s" % (s(t), s(K_CNT), s(K_ROT)), "s_and_b32 %s, %s, 7" % (s(t), s(t)),
            "s_andn2_b32 %s, %s, 7" % (s(t + 1), s(K_CNT)), "s_or_b32 %s, %s, %s" % (s(t), s(t), s(t + 1)),
            "s_cmp_lt_u32 %s, 32" % s(K_CNT), "s_cselect_b32 %s, %s, 64" % (s(t), s(t)),
            "s_lshl2_add_u32 %s, %s, %s" % (s(t), s(t), s(S_WAVE)), "s_add_u32 %s, %s, 1" % (s(K_CNT), s(K_CNT)),
            "s_lshl_b32 %s, %s, 12" % (s(K_OA), s(t)), "s_mul_i32 %s, %s, 5120" % (s(K_OW), s(t)), "s_add_u32 %s, %s, 4096" % (s(K_OW2), s(K_OW))]
def k_loads(r):
    st = kbuf(r); tag = "L%d" % r
    l = []
    for k in range(5):
        l.append("buffer_load_dwordx4 %s, %s, %s, %s offen offset:%d%s ;#%s" % (kstage(st, 4 + k), v(V_L16), s(K_SW, 4), s(K_OW if k < 4 else K_OW2), (k % 4) * 1024, LDFL, tag))
    for p in range(4):
        l.append("buffer_load_dwordx4 %s, %s, %s, %s offen%s ;#%s" % (kstage(st, p), v(KV_A[p]), s(K_SA, 4), s(K_OA), LDFL, tag))
    return l

T_SA, T_SW, T_XS, T_XL = S_T, S_WF, S_K, S_V
T_M0W, T_OA, T_OW, T_PAIR = 88, 89, 90, 91
TV_AR, TV_WR, TV_L4K, TV_TAG = 24, 25, 26, 27
T_XO = S_V

def gen_tail_setup():
    e = E()
    L = V_LANE; t = S_TMP
    RT, CT = t + 4, t + 5
    e("s_bfe_u32 %s, s2, 0x10002\ns_lshl_b32 %s, %s, 3\ns_lshr_b32 %s, s2, 5\ns_add_u32 %s, %s, %s" % (s(t + 2), s(t + 2), s(t + 2), s(t), s(t + 2), s(t + 2), s(t)))
    e("s_bfe_u32 %s, s2, 0x20003" % s(t + 3))
    e("s_lshl1_add_u32 %s, %s, %s" % (s(K_ROT), s(t + 3), s(t)))
    e("s_bfe_u32 %s, s2, 0x10001\ns_lshl1_add_u32 %s, %s, %s" % (s(RT), s(RT), s(t + 2), s(RT)))
    e("s_and_b32 %s, s2, 1\ns_lshl1_add_u32 %s, %s, %s" % (s(CT), s(CT), s(t + 3), s(CT)))
    e("s_lshl_b32 %s, %s, 10\nv_add_u32 %s, %s, %s" % (s(t), s(S_WAVE), v(KV_A[0]), s(t), v(V_L16)))
    for p in range(1, 4): e("v_xor_b32 %s, %d, %s" % (v(KV_A[p]), p * 1024, v(KV_A[0])))
    e("v_and_b32 %s, 15, %s\nv_mul_u32_u24 %s, 1280, %s\nv_lshrrev_b32 %s, 4, %s\nv_lshl_add_u32 %s, %s, 3, %s" % (v(KV_XO), v(L), v(KV_XO), v(KV_XO), v(V_T), v(L), v(KV_XO), v(V_T), v(KV_XO)))
    e("s_mul_i32 %s, %s, %d" % (s(t), s(RT), NSLAB * 4096))
    srd(e, K_SA, ptr(11), s(t), NSLAB * 4096)
    e("s_mul_i32 %s, %s, %d\ns_add_u32 %s, %s, %d" % (s(t), s(CT), NSLAB * 5120, s(t), s(t), WF_OFF))
    srd(e, K_SW, ptr(11), s(t), NSLAB * 5120)
    e("s_lshl_b32 %s, %s, 2\ns_add_u32 %s, %s, %s\ns_mul_i32 %s, %s, %d\ns_mul_i32 %s, %s, 160\ns_add_u32 %s, %s, %s" % (
        s(t), s(RT), s(t), s(t), s(S_WAVE), s(t), s(t), 16 * 1280, s(t + 1), s(CT), s(t), s(t), s(t + 1)))
    srd(e, K_SX, ptr(0), s(t), 15 * 1280 + 160)
    srd(e, K_SO, ptr(9), s(t), 15 * 1280 + 160)
    out = []
    for x in e.L:
        if x.startswith("s_addc"): out[-1] += "\n" + x
        else: out.append(x)
    return out

def gen_t8_setup(e):
    t = S_TMP; L = V_LANE
    R, Cc, KQ = t + 3, t + 4, t + 5
    e("s_bfe_u32 %s, s2, 0x10002\ns_lshl_b32 %s, %s, 3\ns_lshr_b32 %s, s2, 5\ns_add_u32 %s, %s, %s" % (s(R), s(R), s(R), s(t), s(R), s(R), s(t)))
    e("s_bfe_u32 %s, s2, 0x20003\ns_and_b32 %s, s2, 3" % (s(Cc), s(KQ)))
    e("s_lshr_b32 %s, %s, 1\ns_lshl2_add_u32 %s, %s, %s\ns_lshl_b32 %s, %s, 5" % (s(K_FLG), s(R), s(K_FLG), s(K_FLG), s(KQ), s(K_FLG), s(K_FLG)))
    e("s_lshr_b32 %s, %s, 1\ns_lshl1_add_u32 %s, %s, %s\ns_mul_i32 %s, %s, %d" % (s(t), s(S_WAVE), s(t), s(R), s(t), s(t), s(t), NSLAB * 4096))
    e("s_lshl_b32 %s, %s, 17\ns_add_u32 %s, %s, %s\ns_and_b32 %s, %s, 1\ns_lshl_b32 %s, %s, 11\ns_add_u32 %s, %s, %s" % (
        s(t + 1), s(KQ), s(t), s(t), s(t + 1), s(t + 1), s(S_WAVE), s(t + 1), s(t + 1), s(t), s(t), s(t + 1)))
    srd(e, T_SA, ptr(11), s(t), 32 * 4096 - 2048)
    e("s_and_b32 %s, %s, 1\ns_lshl1_add_u32 %s, %s, %s\ns_mul_i32 %s, %s, %d" % (s(t), s(S_WAVE), s(t), s(Cc), s(t), s(t), s(t), NSLAB))
    e("s_lshl_b32 %s, %s, 5\ns_add_u32 %s, %s, %s\ns_lshr_b32 %s, %s, 1\ns_add_u32 %s, %s, %s\ns_mul_i32 %s, %s, 5120\ns_add_u32 %s, %s, %d" % (
        s(t + 1), s(KQ), s(t), s(t), s(t + 1), s(t + 1), s(S_WAVE), s(t), s(t), s(t + 1), s(t), s(t), s(t), s(t), WF_OFF))
    srd(e, T_SW, ptr(11), s(t), 31 * 5120)
    e("s_mul_i32 %s, %s, 5120" % (s(T_M0W), s(S_WAVE)))
    e("v_mov_b32 %s, %s\nv_add_u32 %s, 4096, %s" % (v(TV_WR), v(V_L16), v(TV_L4K), v(V_L16)))
    e("v_and_b32 %s, 7, %s\nv_lshlrev_b32 %s, 2, %s" % (v(V_PL + 3), v(L), v(V_PL + 3), v(V_PL + 3)))

XPB = 12288
def gen_xp_setup(e):
    t = S_TMP
    R, Cc, KQ = t + 3, t + 4, t + 5
    e("s_lshl2_add_u32 %s, %s, %s\ns_mul_i32 %s, %s, %d\ns_add_u32 %s, %s, %d" % (s(t), s(R), s(Cc), s(t), s(t), 12 * XPB, s(t), s(t), XP_OFF))
    srd(e, T_XS, ptr(11), s(t), 12 * XPB)
    for ch in range(2):
        d = T_XO + ch
        e("s_and_b32 %s, %s, 2\ns_add_u32 %s, %s, %d\ns_xor_b32 %s, %s, %s\ns_mul_i32 %s, %s, 3\ns_add_u32 %s, %s, %s\ns_sub_u32 %s, %s, 1" % (
            s(t), s(S_WAVE), s(t), s(t), ch, s(t + 1), s(t), s(KQ), s(t), s(t), s(t), s(t), s(t + 1), s(t), s(t)))
        e("s_mul_i32 %s, %s, %d\ns_and_b32 %s, %s, 1\ns_mul_i32 %s, %s, 6144\ns_add_u32 %s, %s, %s" % (s(t), s(t), XPB, s(d), s(S_WAVE), s(d), s(d), s(d), s(d), s(t)))
        e("s_cmp_eq_u32 %s, 0\ns_cselect_b32 %s, 0x1000000, %s" % (s(t + 1), s(d), s(d)))
    e("s_mul_i32 %s, %s, %d\ns_mul_i32 %s, %s, 3072\ns_add_u32 %s, %s, %s" % (s(T_XO + 2), s(KQ), 3 * XPB, s(t), s(S_WAVE), s(T_XO + 2), s(T_XO + 2), s(t)))

ND0 = opt("nd0", 2)
NW0 = opt("nw0", 6)
RW8, RA8, RF8 = 6, 5, 10
def t8_w(sg):
    base = (sg % RW8) * 20480; tag = "D%d" % sg
    W = lambda vo, off: ("m", "buffer_load_dwordx4 %s, %s, %s offen offset:%d%s lds ;#%s" % (v(vo), s(T_SW, 4), s(T_OW), off, LDFL, tag))
    return [("s", "s_mov_b32 %s, %d\ns_add_u32 m0, %s, %d" % (s(T_OW), sg * 10240, s(T_M0W), base)),
            W(V_L16, 0), W(V_L16, 1024), W(V_L16, 2048), W(V_L16, 3072),
            ("s", "s_add_u32 m0, %s, %d" % (s(T_M0W), base + 4096)), W(TV_L4K, 0)]
def t8_af(sg, half, j): return a((sg % RA8) * 16 + half * 8 + j * 4, 4)
def t8_a(sg):
    l = [("s", "s_mov_b32 %s, %d" % (s(T_OA), sg * 8192))]
    for half in range(2):
        for j in range(2):
            l.append(("m", "buffer_load_dwordx4 %s, %s, %s, %s offen offset:%d%s ;#A%d" % (t8_af(sg, half, j), v(TV_L4K if half else V_L16), s(T_SA, 4), s(T_OA), j * 1024, LDFL, sg)))
    return l
def t8_wf(F): return a(80 + (F % RF8) * 4, 4)
def t8_read(F):
    sg, f = F // 20, F % 20
    return "ds_read_b128 %s, %s offset:%d" % (t8_wf(F), v(TV_WR), (sg % 3) * 20480 + f * 1024)
def t8_acc(n10, j):
    i = n10 * 2 + j
    return 64 + 4 * i if i < 16 else 208 + 4 * (i - 16)

def gen_t8(e, extra_loads):
    mf = []
    for F in range(320):
        sg, f = F // 20, F % 20
        for j in range(2):
            d = v(t8_acc(f % 10, j), 4)
            mf.append("%s %s, %s, %s, %s" % (MF, d, t8_wf(F), t8_af(sg, f // 10, j), "0" if F < 10 else d))
    G = Gaps(mf)
    DA = opt("t8d", 8)
    bars = []
    cur = 0
    for F in range(DA, 320):
        sg, f = F // 20, F % 20
        lo = 2 * (F - DA)
        if f == 0:
            if sg % 3 == 0:
                d = 61440 if sg % 6 == 3 else -61440
                G.place("v", ("v_add_u32 %s, %d, %s" % (v(TV_WR), d, v(TV_WR))) if d > 0 else ("v_subrev_u32 %s, %d, %s" % (v(TV_WR), -d, v(TV_WR))), cur - 1, cur - 1)
            b = G.place("b", "s_barrier", max(cur, lo - 1))
            G.put(b, "s", "s_waitcnt WAITVM{D%d,A%d}" % (sg, sg))
            bars.append(b); cur = b + 1
        cur = G.place("d", t8_read(F), max(cur, lo)) + 1
    q = []
    for sg in range(min(ND0, NW0), 16):
        if sg >= NW0: q.append((t8_w(sg), bars[sg - RW8 + 1] if sg >= RW8 else 0))
        if sg >= ND0: q.append((t8_a(sg), 40 * (sg - RA8 + 1) if sg >= RA8 else 0))
    q.append((extra_loads, 40 * opt("t8x", 12)))
    g = 0; lastm = -9
    MG = opt("mg", 4)
    post = []
    for seq, lo in q:
        g = max(g, lo)
        for k, x in seq:
            if post: post.append(x); continue
            try:
                g = G.place(k, x, max(g + 1, lastm + MG if k == "m" else 0))
                if k == "m": lastm = g
            except RuntimeError: post.append(x)
    assert not post, len(post)
    auto_lgkm(G, eager=opt("eag", 8))
    if VERBOSE: print("t8", G.pattern())
    for F in range(DA): e(t8_read(F))
    e("s_waitcnt lgkmcnt(0)")
    nm = 0
    for x in G.lines():
        if x.startswith("v_mfma"):
            if STAMPS and opt("t8st", 0) and nm % 160 == 0 and nm: stamp(e, 25 + nm // 160)
            nm += 1
        if opt("t8noa", 0) and ";#A" in x: x = x.replace(s(T_OA), "0")
        if opt("t8now", 0) and ";#D" in x: x = x.replace(s(T_OW), "0")
        if opt("t8nr", 0) and x.startswith("ds_read") and nm % 4 < 2: continue
        e(x)

def tail_mfmas(ph, st, first=False):
    mf = []
    for nb in range(5):
        for p in range(4):
            d = v(kacc(ph, nb, p), 4)
            mf.append("%s %s, %s, %s, %s" % (MF, d, kstage(st, 4 + nb), kstage(st, p), "0" if first else d))
    return mf

def tail_round(r, lr, extra=()):
    G = Gaps(tail_mfmas(0, kbuf(r), first=(r == 0)))
    g = 0
    if lr is not None:
        addr = k_addr_down(lr)
        for i, x in enumerate(addr): G.put(i // 3, "s", x)
        g = (len(addr) + 2) // 3
        for x in k_loads(lr): g = G.place("m", x, g) + 1
    post = []
    for k, x in extra:
        if not post:
            try:
                g = G.place(k, x, g) + 1; continue
            except RuntimeError: pass
        post.append(x + ("\ns_nop 0" if " m0," in x else ""))
    return G.lines() + (["s_nop 0"] if post else []) + post

def reduce_write(e, m):
    for p in range(1, 4):
        for nb in range(5):
            e("ds_write_b128 %s, %s offset:%d" % (v(KV_RED + p), v(kacc(m, nb, p), 4), nb * 1024))
def reduce_read(e, m):
    for nb in range(5):
        for i in range(3):
            e("ds_read_b128 %s, %s offset:%d" % (v(kacc(m, nb, i + 1), 4), v(KV_RED), i * 5120 + nb * 1024))
def reduce_add(e, m, nb):
    b = kacc(m, nb, 0)
    for h in range(2):
        e("v_pk_add_f32 %s, %s, %s" % (v(b + 2 * h, 2), v(b + 2 * h, 2), v(b + 4 + 2 * h, 2)))
        e("v_pk_add_f32 %s, %s, %s" % (v(b + 8 + 2 * h, 2), v(b + 8 + 2 * h, 2), v(b + 12 + 2 * h, 2)))
    for h in range(2):
        e("v_pk_add_f32 %s, %s, %s" % (v(b + 2 * h, 2), v(b + 2 * h, 2), v(b + 8 + 2 * h, 2)))

def gen_tail(e0, head):
    e = E(); e.ext(head)
    T = V_T; t = S_TMP
    stamp(e, 8)
    Z = T + 20; C = V_PL
    Z = 240 + 8; C = 240 + 12
    for qb in range(4): e("v_rcp_f32 %s, %s" % (v(T + 2 * qb), v(V_L + 4 * qb)))
    e("v_max3_f32 %s, %s, %s, %s" % (v(T + 8), v(V_L), v(V_L + 4), v(V_L + 8)))
    e("v_max_f32 %s, %s, %s" % (v(T + 8), v(T + 8), v(V_L + 12)))
    for qb in range(4): e("v_mov_b32 %s, %s" % (v(T + 2 * qb + 1), v(T + 2 * qb)))
    e("v_mul_f32 %s, %s, %s" % (v(T + 8), f2u(2.0 ** 64), v(T + 8)))
    e("v_mul_f32 %s, 0, %s" % (v(T + 8), v(T + 8)))
    for qb in range(4): e("v_fma_f32 %s, %s, 0, %s" % (v(T + 8), v(V_L + 4 * qb), v(T + 8)))
    for r in range(4): e("v_mov_b32 %s, 0" % v(Z + r))
    e("s_lshl_b32 %s, %s, 14" % (s(t + 2), s(S_HEAD)))
    W = T + 12
    def group(i):
        sl, qb = i // 4, i % 4
        d0 = 208 + 4 * (i % 4)
        for b in range(2):
            for r in range(4): e("v_accvgpr_read_b32 %s, %s" % (v(W + 4 * b + r), a(A_O + ((2 * sl + b) * 4 + qb) * 4 + r)))
        for h in range(4): e("v_pk_mul_f32 %s, %s, %s" % (v(W + 2 * h, 2), v(W + 2 * h, 2), v(T + 2 * qb, 2)))
        for h in range(4): e("v_cvt_pk_bf16_f32 %s, %s, %s" % (v(d0 + h), v(W + 2 * h), v(W + 2 * h + 1)))
        e("buffer_store_dwordx4 %s, %s, %s, %s offen offset:%d%s ;#ost" % (v(d0, 4), v(V_L16), s(S_AF, 4), s(t + 2), 1024 * qb, STFL))
        e("s_add_u32 %s, %s, 4096" % (s(t + 2), s(t + 2)) if qb == 3 else "s_nop 0")
        e("%s %s, %s, %s, %s" % (MF, v(C, 4), v(Z, 4), v(d0, 4), "0" if i == 0 else v(C, 4)))
    G0 = opt("g0", 15); GPR = opt("gpr", 4)
    NLR = opt("nlr", 1)
    CK = R1 - NLR - 1
    PR = CK - opt("polld", 1)
    def cond(lines):
        for x in lines: e(("@" + x) if x.startswith("buffer") else x)
    gi = 0
    wq = [x for sg in range(NWH, NW0) for x in t8_w(sg)]
    WPG = opt("wpg", 0)
    def wsome(n):
        while wq and n > 0:
            k, x = wq.pop(0); n -= (k == "m")
            e(x + ("\ns_nop 0" if k == "s" else ""))
    while gi < G0:
        group(gi); gi += 1; wsome(WPG)
    e("s_waitcnt WAITVM{L0}")
    sig = None
    dq = [x for sg in range(ND0) for x in t8_a(sg)]
    for r in range(R1):
        if r <= CK:
            ex = []
        else:
            nleft = R1 - r
            nm = sum(1 for k, _ in dq if k == "m")
            want = (nm + nleft - 1) // nleft
            ex = []
            while dq and (want > 0 or (dq[0][0] == "s" and " m0," not in dq[0][1] and ("T" or True) and nleft == 1)):
                k, x = dq.pop(0); ex.append((k, x)); want -= (k == "m")
        for x in tail_round(r, r + INFL if r + INFL < R1 else None, ex): e(x)
        if gi < 16:
            for _ in range(min(GPR, 16 - gi)): group(gi); gi += 1
            if gi == 16:
                sig = r + opt("sigd", 1)
                e("s_nop 7")
                e("v_cmp_u_f32 vcc, %s, %s" % (v(T + 8), v(C)))
                e("s_cmp_lg_u64 vcc, 0\ns_cselect_b32 %s, 1, 0" % s(t))
                e("v_mov_b32 %s, %s" % (v(W), s(t)))
                e("s_lshl_b32 %s, %s, 2\ns_add_u32 %s, %s, %d" % (s(t + 1), s(S_WAVE), s(t + 1), s(t + 1), L_MISC))
                e("v_mov_b32 %s, %s\nv_mov_b32 %s, %d" % (v(W + 1), s(t + 1), v(W + 2), L_MISC))
                e("ds_write_b32 %s, %s" % (v(W + 1), v(W)))
                stamp(e, 9)
        if sig is not None: wsome(99 if r == PR else opt("wpr", 10))
        need = (["L%d" % (r + 1)] if r + 1 < R1 else ["D0", "A0"]) + (["ost"] if r == sig else [])
        e("s_waitcnt WAITVM{%s}" % ",".join(need))
        if r == sig:
            e("s_waitcnt lgkmcnt(0)\ns_barrier")
            e("ds_read_b128 %s, %s\ns_waitcnt lgkmcnt(0)" % (v(W + 4, 4), v(W + 2)))
            e("v_or3_b32 %s, %s, %s, %s\nv_or_b32 %s, %s, %s\ns_nop 0" % (v(W + 4), v(W + 4), v(W + 5), v(W + 6), v(W + 4), v(W + 4), v(W + 7)))
            e("v_readfirstlane_b32 %s, %s" % (s(t), v(W + 4)))
            e("s_nop 3\ns_andn2_b32 %s, %s, %s" % (s(t), s(t), s(S_RETRY)))
            e("s_cbranch_scc1 ATT_RETRY")
            e("s_cmp_lg_u32 %s, 0\ns_cbranch_scc1 NOSIG3" % s(S_WAVE))
            w0 = E()
            set_flag(w0, 3)
            w0("s_cmp_lg_u32 s2, 0\ns_cbranch_scc1 NOSIG3")
            w0("s_add_u32 %s, %s, 0x10001\ns_mov_b64 exec, 1\nv_mov_b32 %s, %s\ns_movk_i32 %s, 4096" % (s(t + 7), s(S_EPOCH), v(V_PL + 1), s(t + 7), s(t + 6)))
            w0("buffer_store_dword %s, off, %s, %s sc1\ns_mov_b64 exec, -1" % (v(V_PL + 1), s(S_FL, 4), s(t + 6)))
            cond(w0.L)
            e("NOSIG3:")
            stamp(e, 10)
            gen_xp_setup(e)
        if r == PR:
            e("s_cmp_lg_u32 %s, 0\ns_cbranch_scc1 NOPOLL3" % s(S_WAVE))
            cond([poll_load(False, s(K_FLG))])
            e("NOPOLL3:")
        if r == CK:
            stamp(e, 11)
            e("s_cmp_lg_u32 %s, 0\ns_cbranch_scc1 SPUN_O" % s(S_WAVE))
            e("s_waitcnt vmcnt(%d)" % (9 * sum(1 for q in range(PR + 1, CK + 1) if q + INFL < R1)))
            w0 = E(); poll_spin(w0, False, s(K_FLG), 3, "O"); cond(w0.L)
            e("s_barrier")
            stamp(e, 12)
    assert sig is not None and sig <= PR and sig < CK and not dq, (sig, PR, dq)
    e("s_barrier")
    stamp(e, 13)
    ex = []
    for r in range(R1, min(R1 + NPRE2, 14)):
        ad = k_addr_down(r)
        ex += [("s", "\n".join(ad[:5])), ("s", "\n".join(ad[5:]))] + [("m", x) for x in k_loads(r)]
    t8 = E(); gen_t8(t8, ex)
    for x in t8.L: e(x)
    stamp(e, 14)
    L_OWN = 0; L_RED = 81920
    e("s_add_u32 %s, %s, 0x10000\ns_and_b32 %s, %s, 0x1fff0000\ns_or_b32 %s, %s, 0x40000000\nv_mov_b32 %s, %s" % (s(t), s(S_EPOCH), s(t), s(t), s(T_OA), s(t), v(TV_TAG), s(T_OA)))
    e("s_nop 3")
    PK = [40, 8]
    PK = [40, 28] if False else [40, 240]
    n = 0
    for ch in range(2):
        for j in range(2):
            vals = [t8_acc(5 * ch + nb, j) + k for nb in range(5) for k in range(4)]
            pb = PK[n % 2]; n += 1
            for gi_ in range(3):
                vs = vals[7 * gi_:7 * gi_ + 7]
                if len(vs) < 7: vs = vs + [TV_TAG]
                for h in range(3): e("v_cvt_pk_bf16_f32 %s, %s, %s" % (v(pb + 4 * gi_ + h), v(vs[2 * h]), v(vs[2 * h + 1])))
                e("v_cvt_pk_bf16_f32 %s, %s, %s" % (v(pb + 4 * gi_ + 3), v(vs[6]), v(TV_TAG)))
                off = j * 3072 + gi_ * 1024
                e("buffer_store_dwordx4 %s, %s, %s, %s offen offset:%d%s ;#xst" % (v(pb + 4 * gi_, 4), v(TV_L4K if off >= 4096 else V_L16), s(T_XS, 4), s(T_XO + ch), off % 4096, STFL))
    stamp(e, 23)
    assert 14 - R1 - NPRE2 <= 3
    for r in range(R1 + NPRE2, 14):
        e.ext(k_addr_down(r)); e.ext(k_loads(r))
    e("s_and_b32 %s, %s, 1\ns_mul_i32 %s, %s, 10240\ns_add_u32 %s, %s, %d\nv_add_u32 %s, %s, %s" % (s(t), s(S_WAVE), s(t), s(t), s(t), s(t), L_OWN, v(TV_AR), s(t), v(V_L16)))
    for ch in range(2):
        e("s_cmp_lg_u32 %s, 0x1000000\ns_cbranch_scc1 NOOWN%d" % (s(T_XO + ch), ch))
        for j in range(2):
            for nb in range(5): e("ds_write_b128 %s, %s offset:%d" % (v(TV_AR), v(t8_acc(5 * ch + nb, j), 4), (j * 5 + nb) * 1024))
        e("NOOWN%d:" % ch)
    for nb in range(5):
        e("buffer_load_dwordx2 %s, %s, %s, 0 offen offset:%d ;#xx" % (v(KV_X + 2 * nb, 2), v(KV_XO), s(K_SX, 4), nb * 32))
    for p in range(1, 4):
        e("s_xor_b32 %s, %s, %d\ns_mul_i32 %s, %s, 15360\ns_add_u32 %s, %s, %d" % (s(t), s(S_WAVE), p, s(t), s(t), s(t), s(t), L_RED + (p - 1) * 5120))
        e("v_add_u32 %s, %s, %s" % (v(KV_RED + p), s(t), v(V_L16)))
    e("s_mul_i32 %s, %s, 15360\ns_add_u32 %s, %s, %d\nv_add_u32 %s, %s, %s" % (s(t), s(S_WAVE), s(t), s(t), L_RED, v(KV_RED), s(t), v(V_L16)))
    e("s_mul_i32 %s, %s, 5120\ns_add_u32 %s, %s, %d\ns_waitcnt lgkmcnt(0)\nv_add_u32 %s, %s, %s" % (s(t), s(S_WAVE), s(t), s(t), L_OWN, v(TV_AR), s(t), v(V_L16)))
    XR = 64
    def xloads():
        l = []
        for i in range(3):
            l.append("s_add_u32 %s, %s, %d" % (s(t + 2), s(T_XO + 2), i * XPB))
            for k in range(3): l.append("buffer_load_dwordx4 %s, %s, %s, %s offen offset:%d%s ;#xr" % (v(XR + (i * 3 + k) * 4, 4), v(V_L16), s(T_XS, 4), s(t + 2), k * 1024, LDFL))
        return l
    if R1 < 14: e("s_waitcnt WAITVM{L%d}" % R1)
    for r in range(R1, 14):
        for x in tail_round(r, None): e(x)
        if r < 13: e("s_waitcnt WAITVM{L%d}" % (r + 1))
    stamp(e, 24)
    e.ext(xloads())
    OW = lambda nb: 104 + 4 * nb
    reduce_write(e, 0)
    e("s_waitcnt lgkmcnt(0)\ns_barrier")
    reduce_read(e, 0)
    for nb in range(5): e("ds_read_b128 %s, %s offset:%d" % (v(OW(nb), 4), v(TV_AR), nb * 1024))
    e("s_waitcnt WAITVM{xx}")
    for nb in range(5):
        d = kacc(0, nb, 0)
        e("s_waitcnt lgkmcnt(%d)" % min(15, 3 * (4 - nb) + 5))
        reduce_add(e, 0, nb)
        for k in range(4): e("v_mul_f32 %s, %s, %s" % (v(d + 4 + k), f2u(-math.log2(math.e) * DSC), v(d + k)))
        for k in range(4): e("v_exp_f32 %s, %s" % (v(d + 4 + k), v(d + 4 + k)))
        if DSC != 1.0:
            for k in range(4): e("v_mul_f32 %s, %s, %s" % (v(d + k), f2u(DSC), v(d + k)))
        for h in range(2):
            e("v_lshlrev_b32 %s, 16, %s" % (v(d + 8 + 2 * h), v(KV_X + 2 * nb + h)))
            e("v_and_b32 %s, 0xffff0000, %s" % (v(d + 9 + 2 * h), v(KV_X + 2 * nb + h)))
        for k in range(4): e("v_add_f32 %s, 1.0, %s" % (v(d + 4 + k), v(d + 4 + k)))
        for k in range(4): e("v_rcp_f32 %s, %s" % (v(d + 4 + k), v(d + 4 + k)))
        e("s_nop 0")
        for k in range(4): e("v_mul_f32 %s, %s, %s" % (v(d + 4 + k), v(d + 4 + k), v(d + k)))
    e("s_mov_b32 %s, 0" % s(t + 7))
    e("XCHK:")
    e("s_waitcnt vmcnt(0) lgkmcnt(0)")
    for i in range(9): e("v_xor_b32 %s, %s, %s" % (v(40 + i), s(T_OA), v(XR + 4 * i + 3)))
    for i in range(4): e("v_or3_b32 %s, %s, %s, %s" % (v(40), v(40), v(41 + 2 * i), v(42 + 2 * i)))
    e("v_cmp_lt_u32 vcc, 0xffff, %s" % v(40))
    e("s_add_u32 %s, %s, 1" % (s(t + 7), s(t + 7)))
    e("s_cmp_eq_u64 vcc, 0\ns_cbranch_scc1 XOK")
    e("s_cmp_ge_u32 %s, 0x40000\ns_cbranch_scc1 XOK" % s(t + 7))
    e("s_sleep %d" % opt("xslp", 4))
    cond(xloads())
    e("s_branch XCHK")
    e("XOK:")
    stamp(e, 25)
    for nb in range(5):
        d = kacc(0, nb, 0); o = OW(nb)
        for i in range(3):
            for k in range(4):
                idx = nb * 4 + k; gi_, pos = idx // 7, idx % 7
                src = XR + (i * 3 + gi_) * 4 + pos // 2
                e(("v_and_b32 %s, 0xffff0000, %s" if pos & 1 else "v_lshlrev_b32 %s, 16, %s") % (v(40 + 4 * i + k), v(src)))
        for h in range(2):
            e("v_pk_add_f32 %s, %s, %s" % (v(o + 2 * h, 2), v(o + 2 * h, 2), v(40 + 2 * h, 2)))
            e("v_pk_add_f32 %s, %s, %s" % (v(44 + 2 * h, 2), v(44 + 2 * h, 2), v(48 + 2 * h, 2)))
        for h in range(2): e("v_pk_add_f32 %s, %s, %s" % (v(o + 2 * h, 2), v(o + 2 * h, 2), v(44 + 2 * h, 2)))
        for r in range(4): e("v_fma_f32 %s, %s, %s, %s" % (v(d + 8 + r), v(o + r), v(d + 4 + r), v(d + 8 + r)))
        for h in range(2): e("v_cvt_pk_bf16_f32 %s, %s, %s" % (v(d + 12 + h), v(d + 8 + 2 * h), v(d + 9 + 2 * h)))
        e("buffer_store_dwordx2 %s, %s, %s, 0 offen offset:%d%s" % (v(d + 12, 2), v(KV_XO), s(K_SO, 4), nb * 32, opt("ofl", "").replace("_", " ")))
    e0.ext([x.lstrip("@") for x in resolve_vm(e.L)])
    e = e0
    stamp(e, 15)
    if STAMPS: e("s_waitcnt vmcnt(0)")
    stamp(e, 16)
    stamp_fin(e)

def gen_kv_addr(e):
    T = V_T + 12; L = V_LANE
    e("v_and_b32 %s, 15, %s\nv_lshrrev_b32 %s, 4, %s\nv_xor_b32 %s, %s, %s" % (v(T), v(L), v(T + 1), v(L), v(T + 1), v(T + 1), v(T)))
    e("v_lshlrev_b32 %s, 8, %s\nv_lshl_add_u32 %s, %s, 4, %s" % (v(T), v(T), v(T), v(T + 1), v(T)))
    for sl in range(4): e("v_xor_b32 %s, %d, %s" % (v(V_KA + sl), sl * 64, v(T)))
    e("v_lshrrev_b32 %s, 2, %s\nv_and_b32 %s, 7, %s\nv_lshlrev_b32 %s, 8, %s\nv_lshl_add_u32 %s, %s, 5, %s" % (v(T), v(L), v(T + 1), v(T), v(T), v(T), v(T), v(T + 1), v(T)))
    e("v_and_b32 %s, 3, %s\nv_lshl_add_u32 %s, %s, 3, %s\nv_add_u32 %s, %d, %s" % (v(T + 1), v(L), v(T), v(T + 1), v(T), v(T), L_V, v(T)))
    for db in range(8): e("v_xor_b32 %s, %d, %s" % (v(V_VA + db), db * 32, v(T)))

def gen_retry(e):
    e("ATT_RETRY:")
    e("s_waitcnt vmcnt(0)\ns_mov_b32 %s, 1" % s(S_RETRY))
    gen_kv_addr(e)
    for qb in range(4): e("v_mov_b32 %s, 0xff800000" % v(V_NEGM + 4 * qb))
    e("s_mov_b32 %s, 0" % s(S_KVOFF))
    e("RETRY_LOOP:")
    e("s_barrier")
    e("s_add_u32 m0, %s, %d\ns_nop 0" % (s(S_M0K), L_K))
    e(kv_dma("K", 0)); e(kv_dma("K", 1))
    e("s_waitcnt vmcnt(0)\ns_barrier")
    for kb in range(2):
        for sl in range(4): e(k_read(kb, sl, 0))
    e("s_waitcnt lgkmcnt(0)")
    e.ext(qk_mfmas(0, czero=True))
    e("s_nop 7")
    for qb in range(4):
        b = Sreg(0, qb, 0); m = v(V_NEGM + 4 * qb)
        for k in range(4): e("v_max3_f32 %s, %s, %s, %s" % (m, m, v(b + 2 * k), v(b + 2 * k + 1)))
    e("s_add_u32 %s, %s, 8192\ns_cmp_lt_u32 %s, %d\ns_cbranch_scc1 RETRY_LOOP" % (s(S_KVOFF), s(S_KVOFF), s(S_KVOFF), 64 * 8192))
    e("s_barrier")
    kv_preload(e)
    e("s_branch ATT_START")

def gen_common_setup(e):
    T = V_T + 12; L = V_LANE
    e("s_lshl2_add_u32 %s, %s, %s" % (s(S_TMP + 1), s(S_QT), s(S_WAVE)))
    e("s_mul_i32 %s, %s, %d" % (s(S_TMP), s(S_TMP + 1), NSLAB * 4096))
    srd(e, S_AF, ptr(11), s(S_TMP), NSLAB * 4096)
    e("s_mul_i32 %s, %s, %d\ns_add_u32 %s, %s, %d" % (s(S_TMP), s(S_TMP + 1), 20 * 4096, s(S_TMP), s(S_TMP), XF_OFF))
    srd(e, S_X, ptr(11), s(S_TMP), 20 * 4096)
    srd(e, S_WF, ptr(11), WF_OFF, WF_BYTES)
    e("s_cmp_lt_u32 s2, %d\ns_cselect_b32 %s, %s, 0" % (NSLAB, s(S_WF + 2), s(S_WF + 2)))
    srd(e, S_FL, ptr(11), FL_OFF, 8192)
    e("s_lshl_b32 %s, %s, 5\ns_add_u32 %s, %s, %s\ns_lshl_b32 %s, %s, 2" % (s(S_MYFL), s(S_QT), s(S_MYFL), s(S_MYFL), s(S_HEAD), s(S_MYFL), s(S_MYFL)))
    e("s_lshl_b32 %s, %s, 19" % (s(S_TMP), s(S_HEAD)))
    srd(e, S_K, ptr(1), s(S_TMP), 524288)
    srd(e, S_V, ptr(2), s(S_TMP), 524288 + 3 * 8192)
    e("s_sub_u32 %s, %s, %d\ns_subb_u32 %s, %s, 0" % (s(S_V), s(S_V), 3 * 8192, s(S_V + 1), s(S_V + 1)))
    e("v_bfe_u32 %s, %s, 2, 2\nv_lshrrev_b32 %s, 4, %s\nv_and_b32 %s, 3, %s" % (v(T), v(L), v(T + 1), v(L), v(T + 2), v(L)))
    e("v_lshlrev_b32 %s, 12, %s" % (v(T + 3), v(T + 1)))
    e("v_mul_u32_u24 %s, 320, %s\nv_add_u32 %s, %s, %s\nv_lshl_add_u32 %s, %s, 4, %s" % (v(T + 4), v(T), v(T + 4), v(T + 4), v(T + 3), v(T + 4), v(T + 2), v(T + 4)))
    for sl in range(4): e("v_xor_b32 %s, %d, %s" % (v(V_AQ + sl), sl * 64, v(T + 4)))
    e("v_lshl_add_u32 %s, %s, 7, %s\nv_lshl_add_u32 %s, %s, 3, %s" % (v(T + 4), v(T), v(T + 3), v(T + 4), v(T + 2), v(T + 4)))
    e("v_bfe_u32 %s, %s, 3, 2\nv_lshl_add_u32 %s, %s, 5, %s" % (v(T + 5), v(L), v(T + 4), v(T + 5), v(T + 4)))
    for u in range(4): e("v_xor_b32 %s, %d, %s" % (v(V_AG + u), u * 32, v(T + 4)))
    e("v_lshrrev_b32 %s, 4, %s\ns_lshl_b32 %s, %s, 3\nv_add_u32 %s, %s, %s\nv_and_b32 %s, 15, %s" % (v(T), v(L), s(S_TMP), s(S_WAVE), v(T), s(S_TMP), v(T), v(T + 1), v(L)))
    e("v_lshlrev_b32 %s, 8, %s" % (v(T + 2), v(T)))
    for i in range(2):
        e("v_add_u32 %s, %d, %s\nv_and_b32 %s, 15, %s\nv_xor_b32 %s, %s, %s\nv_lshl_add_u32 %s, %s, 4, %s" % (v(T + 3), 4 * i, v(T), v(T + 4), v(T + 3), v(T + 4), v(T + 4), v(T + 1), v(V_KD + i), v(T + 4), v(T + 2)))
        e("v_and_b32 %s, 7, %s\nv_lshlrev_b32 %s, 1, %s\nv_xor_b32 %s, %s, %s\nv_lshl_add_u32 %s, %s, 4, %s" % (v(T + 4), v(T + 3), v(T + 4), v(T + 4), v(T + 4), v(T + 4), v(T + 1), v(V_VD + i), v(T + 4), v(T + 2)))
    gen_kv_addr(e)
    e("v_lshrrev_b32 %s, 2, %s\nv_and_b32 %s, 7, %s\nv_mul_u32_u24 %s, 1280, %s\nv_and_b32 %s, 3, %s\nv_lshl_add_u32 %s, %s, 3, %s\nv_add_u32 %s, %d, %s" % (
        v(T), v(L), v(V_TRA + 1), v(T), v(T), v(T), v(T + 2), v(L), v(T), v(T + 2), v(T), v(V_TRA), L_TR, v(T)))
    e("s_mul_i32 %s, %s, 10" % (s(S_TRU), s(S_WAVE)))
    e("s_lshl_b32 %s, %s, 1\ns_mul_i32 %s, %s, %d\ns_add_u32 %s, %s, s2\ns_mul_i32 %s, %s, 5120" % (s(S_TRD), s(S_WAVE), s(S_TRD), s(S_TRD), NSLAB, s(S_TRD), s(S_TRD), s(S_TRD), s(S_TRD)))
    e("s_and_b32 %s, s2, 127\ns_mul_i32 %s, %s, 40960" % (s(S_TRS), s(S_TRS), s(S_TRS)))
    e("s_mul_i32 %s, %s, 10240\ns_add_u32 %s, %s, %s\ns_add_u32 %s, %s, %d" % (s(S_TRM), s(S_WAVE), s(S_TRS), s(S_TRS), s(S_TRM), s(S_TRM), s(S_TRM), L_TR))

def gen_w_setup(e):
    T = V_T + 12; L = V_LANE
    e("v_lshrrev_b32 %s, 4, %s\nv_lshlrev_b32 %s, 2, %s\nv_and_b32 %s, 15, %s\nv_xor_b32 %s, %s, %s" % (v(T), v(L), v(T + 1), v(T), v(T + 2), v(L), v(T + 1), v(T + 1), v(T + 2)))
    e("v_lshlrev_b32 %s, 13, %s\nv_lshl_add_u32 %s, %s, 4, %s" % (v(T), v(T), v(V_WD), v(T + 1), v(T)))
    e("v_add_u32 %s, %d, %s" % (v(V_WD + 1), 4 * 8192 - 1024, v(V_WD)))
    e("v_lshrrev_b32 %s, 3, %s\nv_bfe_u32 %s, %s, 4, 1\nv_lshlrev_b32 %s, 1, %s" % (v(T), v(L), v(T + 1), v(L), v(T + 1), v(T + 1)))
    e("s_and_b32 %s, %s, 1\ns_lshl_b32 %s, %s, 2\nv_or_b32 %s, %s, %s" % (s(S_TMP), s(S_WAVE), s(S_TMP), s(S_TMP), v(T + 1), s(S_TMP), v(T + 1)))
    e("v_and_b32 %s, 7, %s\nv_xor_b32 %s, %s, %s" % (v(T + 2), v(L), v(T + 1), v(T + 1), v(T + 2)))
    e("v_mul_u32_u24 %s, 3456, %s\nv_lshl_add_u32 %s, %s, 4, %s" % (v(T), v(T), v(V_WD + 2), v(T + 1), v(T)))
    e("s_lshl_b32 %s, %s, 8\ns_sub_u32 %s, %d, %s" % (s(S_TMP), s(S_HEAD), s(S_TMP + 1), 640 * 8192, s(S_TMP)))
    srd(e, S_WQ, ptr(3), s(S_TMP), s(S_TMP + 1))
    for (d, p, sh) in ((S_WG, 6, 2048), (S_WU, 7, 3072)):
        e("s_lshl_b32 %s, %s, 7\ns_sub_u32 %s, %d, %s" % (s(S_TMP), s(S_FS), s(S_TMP + 1), 640 * 3456 + sh, s(S_TMP)))
        e("s_cmp_lt_u32 %s, 27\ns_cselect_b32 %s, %s, 0" % (s(S_FS), s(S_TMP + 1), s(S_TMP + 1)))
        srd(e, d, ptr(p), s(S_TMP), s(S_TMP + 1))
        e("s_sub_u32 %s, %s, %d\ns_subb_u32 %s, %s, 0" % (s(d), s(d), sh, s(d + 1), s(d + 1)))

def gen_kernel(e, name):
    T = V_T; L = V_LANE
    e(".text\n.globl %s\n.p2align 8\n.type %s,@function\n%s:" % (name, name, name))
    e("s_cmp_ge_u32 s2, 256\ns_cbranch_scc1 K_END")
    e("s_load_dwordx8 %s, s[0:1], 0\ns_load_dwordx8 %s, s[0:1], 32\ns_load_dwordx8 %s, s[0:1], 64" % (s(S_PTR, 8), s(S_PTR + 8, 8), s(S_PTR + 16, 8)))
    e("v_and_b32 %s, 63, v0\nv_lshrrev_b32 %s, 6, v0\nv_lshlrev_b32 %s, 4, %s\nv_readfirstlane_b32 %s, %s" % (v(L), v(T), v(V_L16), v(L), s(S_WAVE), v(T)))
    e("s_and_b32 %s, s2, 7\ns_lshr_b32 %s, s2, 3\ns_and_b32 %s, %s, 3\ns_lshr_b32 %s, %s, 2" % (s(S_TMP), s(S_TMP + 1), s(S_HL), s(S_TMP + 1), s(S_QT), s(S_TMP + 1)))
    e("s_lshl_b32 %s, %s, 2\ns_add_u32 %s, %s, %s" % (s(S_HEAD), s(S_TMP), s(S_HEAD), s(S_HEAD), s(S_HL)))
    e("s_lshl_b32 %s, %s, 3\ns_add_u32 %s, %s, %s" % (s(S_FS), s(S_HL), s(S_FS), s(S_FS), s(S_TMP)))
    e("s_mov_b32 %s, 0" % s(S_RETRY))
    e("s_lshl_b32 %s, %s, 12\ns_lshl_b32 %s, %s, 11" % (s(S_M0W), s(S_WAVE), s(S_M0K), s(S_WAVE)))
    if STAMPS: e("v_mov_b32 v0, -1\nv_mov_b32 v19, -1")
    stamp(e, 0)
    gen_ln_loads(e)
    if opt("tlb", 0):
        e("v_mov_b32 %s, %d\nglobal_load_dword %s, %s, %s" % (v(T + 12), FL_OFF + 4096, v(V_PL + 1), v(T + 12), s(ptr(11), 2)))
    e("s_add_u32 %s, %s, %d\ns_addc_u32 %s, %s, 0\ns_load_dword %s, %s, 0" % (s(S_TMP + 2), s(ptr(11)), FL_OFF + 4096, s(S_TMP + 3), s(ptr(11) + 1), s(S_EPOCH), s(S_TMP + 2, 2)))
    ny = 4 * NI + opt("tlb", 0)
    if opt("cpf", 1):
        e("s_getpc_b64 %s\nCODE0:" % s(S_TMP + 4, 2))
        e("s_lshr_b32 %s, s2, 3\ns_lshl2_add_u32 %s, %s, %s\ns_lshl_b32 %s, %s, 9" % (s(S_TMP), s(S_TMP), s(S_TMP), s(S_WAVE), s(S_TMP), s(S_TMP)))
        e("v_and_b32 %s, 3, %s\nv_lshlrev_b32 %s, 7, %s\nv_add_u32 %s, %s, %s\nv_min_u32 %s, CODE1-CODE0-4, %s" % (v(T + 12), v(L), v(T + 12), v(T + 12), v(T + 12), s(S_TMP), v(T + 12), v(T + 12), v(T + 12)))
        e("global_load_dword %s, %s, %s" % (v(V_PL), v(T + 12), s(S_TMP + 4, 2)))
        ny += 1
    gen_w_setup(e)
    e("s_lshl_b32 %s, %s, 16\ns_mul_i32 %s, %s, %d" % (s(S_WQOFF), s(S_WAVE), s(S_WGOFF), s(S_WAVE), 8 * 3456))
    for sl in range(NI): w_slab(e, sl, True)
    WT = opt("wt", 6)
    if WT:
        X = V_TC
        e("s_lshl2_add_u32 %s, %s, %s\ns_add_u32 %s, %s, %d" % (s(S_TMP), s(S_QT), s(S_WAVE), s(S_TMP), s(S_TMP), 32 * NI))
        e("v_lshrrev_b32 %s, 1, %s\nv_min_u32 %s, %d, %s\nv_lshlrev_b32 %s, 5, %s\nv_add_u32 %s, %s, %s" % (v(X), v(L), v(X), WT - 1, v(X), v(X), v(X), v(X), s(S_TMP), v(X)))
        e("v_and_b32 %s, 1, %s\nv_lshlrev_b32 %s, 7, %s\nv_lshl_add_u32 %s, %s, 13, %s\nv_mul_u32_u24 %s, 3456, %s" % (v(X + 1), v(L), v(X + 1), v(X + 1), v(X + 1), v(X), v(X + 1), v(X), v(X)))
        e("buffer_load_dword %s, %s, %s, 0 offen" % (v(V_PL + 1), v(X + 1), s(S_WQ, 4)))
        e("buffer_load_dword %s, %s, %s, 0 offen offset:2048" % (v(V_PL + 2), v(X), s(S_WG, 4)))
        e("buffer_load_dword %s, %s, %s, 0 offen offset:3072" % (v(V_DUMP), v(X), s(S_WU, 4)))
        ny += 3
    gen_common_setup(e)
    stamp(e, 1)
    gen_ln_compute(e, ny)
    e("s_mul_i32 %s, %s, 0x9e3779b1\ns_add_u32 %s, %s, 0x7f4a7c15" % (s(S_TAG), s(S_EPOCH), s(S_TAG), s(S_TAG)))
    e("v_and_b32 %s, 31, %s\nv_lshlrev_b32 %s, 2, %s\ns_lshl_b32 %s, %s, 7" % (v(V_PL + 3), v(L), v(V_PL + 3), v(V_PL + 3), s(S_XOFF), s(S_QT)))
    for i in range(10):
        t0, t1 = v(V_T + 12 + i), v(V_TRA + 3)
        e("v_add_u32 %s, %d, %s\nv_mul_u32_u24 %s, 820, %s\nv_lshrrev_b32 %s, 16, %s\nv_lshlrev_b32 %s, 1, %s\nv_xor_b32 %s, %s, %s\nv_lshlrev_b32 %s, 4, %s" % (
            t0, 64 * i, v(L), t1, t0, t1, t1, t1, t1, t0, t0, t1, t0, t0))
    e("s_waitcnt vmcnt(0)\ns_barrier")
    stamp(e, 18)
    e("s_cmp_lg_u32 %s, 0\ns_cbranch_scc1 SPUN_XN" % s(S_WAVE))
    set_flag(e, 1)
    e(poll_load(False, s(S_XOFF)))
    e("s_waitcnt vmcnt(0)")
    poll_spin(e, False, s(S_XOFF), 1, "XN")
    e("s_cmp_lt_u32 s2, 128")
    e("s_cselect_b32 %s, %s, %s\ns_cselect_b32 %s, %s, %s" % (s(S_T), s(ptr(4)), s(ptr(8)), s(S_T + 1), s(ptr(4) + 1), s(ptr(8) + 1)))
    e("s_mov_b32 %s, %d\ns_cselect_b32 %s, %d, %s\ns_mov_b32 %s, 0x20000" % (s(S_T + 2), 1728 * 1280, s(S_T + 2), 4096 * 1280, s(S_T + 2), s(S_T + 3)))
    e("s_barrier")
    stamp(e, 2)
    e("s_cmp_ge_u32 %s, 27\ns_cbranch_scc1 LIGHT" % s(S_FS))
    gen_proj(e, True, "H")
    e("PROJ_DONE:")
    for qb in range(4): e("v_mov_b32 %s, 0xff800000" % v(V_NEGM + 4 * qb))
    head = gen_attention(e)
    gen_tail(e, head)
    e("K_END:\ns_endpgm")
    gen_events(e)
    gen_retry(e)
    e("LIGHT:")
    gen_proj(e, False, "L")
    e("s_branch PROJ_DONE")
    e("CODE1:")
    e(kd(name))

def main():
    e = E()
    hdr = open("cdna_kernels/%s.s.ref" % NAME).read().split("; Override launch")[0]
    e.L += hdr.strip().split("\n")
    e("; @launch grid=(256,1,1) block=(256,1,1) lds=%d" % LDS_BYTES)
    e('.amdgcn_target "amdgcn-amd-amdhsa--gfx950"')
    gen_kernel(e, NAME + "_kernel")
    t = re.sub(r" ;#\w*", "", e.text())
    errs = [x for x in asmcheck.check(t, [NAME + "_kernel"]) if x.count("buffer_load_dword v%d," % V_DUMP) != 2 and poll_load(True) not in x]
    if errs:
        print("\n".join(errs[:40])); print(len(errs), "problems")
    out = [x for x in sys.argv[1:] if x.endswith(".s")]
    open(out[0] if out else "cdna_kernels/%s.s" % NAME, "w").write(t)

if __name__ == "__main__":
    main()
```

```python
import sys, math, os, struct, re
from sched import Gaps, auto_lgkm
import asmcheck

NAME = "recurrent_scan__mha_block_cached__glu_gated_reglu__prompt"
MF = "v_mfma_f32_16x16x32_bf16"
OPT = dict(x.split("=") for x in sys.argv[1:] if "=" in x)
def opt(k, d): return type(d)(OPT.get(k, d))
VERBOSE = "-v" in sys.argv
STAMPS = "--stamps" in sys.argv
STFL = opt("stfl", " sc1").replace("_", " ")
LDFL = opt("ldfl", " sc1").replace("_", " ")

NSLAB = 182
QSC = math.log2(math.e) / math.sqrt(128.0)
DSC = 1.0 / (QSC * QSC)
WF_OFF = 0x1800000
WF_BYTES = 8 * NSLAB * 5120
XF_OFF = 0x2000000
XP_OFF = 0x2800000
MAXST = 3
FL_OFF = 0x2400000

class E:
    def __init__(self): self.L = []
    def __call__(self, s):
        for x in s.split("\n"):
            x = x.strip()
            if x: self.L.append(x)
    def ext(self, l): self.L += l
    def text(self): return "\n".join(self.L) + "\n"

def v(a, n=1): return "v%d" % a if n == 1 else "v[%d:%d]" % (a, a + n - 1)
def a(a_, n=1): return "a%d" % a_ if n == 1 else "a[%d:%d]" % (a_, a_ + n - 1)
def s(a_, n=1): return "s%d" % a_ if n == 1 else "s[%d:%d]" % (a_, a_ + n - 1)
def f2u(x): return "0x%08x" % struct.unpack("<I", struct.pack("<f", x))[0]

def kd(name, vgpr=512, acc=256):
    return """.section .rodata,"a"
.p2align 6
.amdhsa_kernel %s
  .amdhsa_next_free_vgpr %d
  .amdhsa_next_free_sgpr 102
  .amdhsa_accum_offset %d
  .amdhsa_group_segment_fixed_size 0
  .amdhsa_kernarg_size 96
  .amdhsa_user_sgpr_count 2
  .amdhsa_user_sgpr_kernarg_segment_ptr 1
  .amdhsa_system_sgpr_workgroup_id_x 1
.end_amdhsa_kernel
""" % (name, vgpr, acc)

def stamp(e, i):
    if not STAMPS: return
    e("s_waitcnt lgkmcnt(0)\ns_memtime s[98:99]\ns_memrealtime s[100:101]\ns_waitcnt lgkmcnt(0)")
    e("v_writelane_b32 v0, s98, %d\nv_writelane_b32 v19, s100, %d" % (i, i))
def stamp_fin(e):
    if not STAMPS: return
    if opt("echo", ""):
        i, j = [int(x) for x in opt("echo", "").split(".")]
        e("s_nop 1\nv_readlane_b32 s96, v19, %d\nv_readlane_b32 s97, v19, %d\nv_readlane_b32 s98, v19, 16\ns_nop 3\ns_sub_u32 s96, s97, s96\ns_min_u32 s96, s96, 20000" % (i, j))
        e("ECHO:\ns_sleep 1\ns_memrealtime s[100:101]\ns_waitcnt lgkmcnt(0)\ns_sub_u32 s97, s100, s98\ns_cmp_lt_u32 s97, s96\ns_cbranch_scc1 ECHO")
        return
    if opt("dbgout", -1) >= 0:
        e("s_cmp_lg_u32 s2, %d\ns_cbranch_scc1 NODBG\ns_cmp_lg_u32 %s, 0\ns_cbranch_scc1 NODBG" % (opt("dbgout", -1), s(S_WAVE)))
        e("v_readlane_b32 s98, v19, 0\ns_nop 3\nv_subrev_u32 v18, s98, v19\nv_lshlrev_b32 v20, 2, v1\nv_subrev_u32 v20, 4, v20")
        e("s_mov_b32 s96, %s\ns_mov_b32 s97, %s\ns_mov_b32 s98, 64\ns_mov_b32 s99, 0x20000" % (s(ptr(10)), s(ptr(10) + 1)))
        e("buffer_store_dword v18, v20, s[96:99], 0 offen\ns_waitcnt vmcnt(0)\nNODBG:")
        return
    e("s_lshl_b32 s98, s2, 2\ns_add_u32 s98, s98, %s\ns_lshl_b32 s98, s98, 9\ns_add_u32 s98, s98, %d" % (s(S_WAVE), 0x4000000))
    e("s_add_u32 s96, %s, s98\ns_addc_u32 s97, %s, 0\ns_mov_b32 s98, 512\ns_mov_b32 s99, 0x20000" % (s(ptr(11)), s(ptr(11) + 1)))
    e("v_mov_b32 v18, v0\nv_lshlrev_b32 v20, 3, v1\nbuffer_store_dwordx2 v[18:19], v20, s[96:99], 0 offen\ns_waitcnt vmcnt(0)")

def srd(e, d, base, off_lo, nbytes):
    e("s_add_u32 %s, %s, %s" % (s(d), s(base), off_lo))
    e("s_addc_u32 %s, %s, 0" % (s(d + 1), s(base + 1)))
    e("s_mov_b32 %s, %s" % (s(d + 2), nbytes))
    e("s_mov_b32 %s, 0x20000" % s(d + 3))

def uncond(x): return False
def resolve_vm(lines):
    out = []; ops = []; waited = set(); lastm0 = None; done = 0; marks = {}
    for x in lines:
        mm = re.search(r"vmcnt\((\d+)\)", x)
        if mm and not x.startswith("@") and uncond(x): done = max(done, len(ops) - int(mm.group(1)))
        if x.startswith(("buffer_", "global_")) and len(ops) - done >= 58:
            out.append("s_waitcnt vmcnt(52)"); done = len(ops) - 52
        if x.startswith("s_add_u32 m0,"): lastm0 = x.split(",")[1].strip()
        if " lds" in x and ";#" in x:
            tg = x.split(";#")[1].strip()
            exp = s(S_M0W) if tg.startswith("w") else (s(S_TRM) if tg == "trs" else s(S_M0K))
            if tg.startswith("D"): exp = s(T_M0W)
            assert lastm0 == exp, "M0 collision at %s" % x
        if x.startswith("MARK"):
            marks[x.split()[1]] = len(ops); continue
        m = re.search(r"SINCE\{(\w+)\}", x)
        if m: x = x.replace(m.group(0), "vmcnt(%d)" % min(63, len(ops) - marks[m.group(1)]))
        m = re.search(r"WAITVM\{([^}]*)\}", x)
        if m:
            need = set(m.group(1).split(","))
            waited |= need
            idx = [i for i, t in enumerate(ops) if t in need]
            n = len(ops) - 1 - max(idx) if idx else 63
            done = max(done, len(ops) - min(n, 63))
            x = x.replace(m.group(0), "vmcnt(%d)" % min(n, 63))
        elif x.startswith(("buffer_", "global_")):
            t = x.split(";#")[1].strip() if ";#" in x else ""
            assert t not in waited, "op %s issued after its wait" % t
            ops.append(t)
        out.append(x)
    return out

S_FL = 4
S_X, S_WQ, S_WG, S_WU, S_K, S_V, S_AF, S_T, S_WF = 8, 12, 16, 20, 24, 28, 32, 36, 40
S_PTR = 44
S_WAVE, S_HEAD, S_QT, S_FS = 68, 69, 70, 71
S_XOFF, S_WQOFF, S_WGOFF, S_M0W = 72, 73, 74, 75
S_KVOFF, S_M0K, S_TOG, S_RETRY = 76, 77, 78, 79
S_TMP = 80
S_TRS, S_TRM, S_TRD, S_TRU = 88, 89, 90, 91
S_EPOCH, S_TAG, S_MYFL = 92, 93, 94
S_HL = 3
S_EVT = 85
EVT1 = (46 + 9) * 8192
EVTE = (62 + 9) * 8192
NWH = opt("nwh", 0)
S_LN = 84
def ptr(i): return S_PTR + 2 * i

L_K = 0
L_V = 65536
RW = 7
L_TR = 114688
L_MISC = 155648
LDS_BYTES = 163840

V_LANE = 1
V_L16 = 2
V_WD = 3
V_TRA = 6
V_AQ = 10
V_AG = 14
V_KA = 20
V_VA = 24
V_KD = 32
V_VD = 34
V_DUMP = 18
V_TC = 62
V_PL = 36
V_T = 40
V_ACCQ = 64
V_ACCG = 192
V_Q = 64
V_S = 128
V_P = 192
V_NEGM = 224
V_L = 240
A_ACCU = 0
XD = 7
A_X = 64
A_W = 176
A_TR = 208
A_ONE = 248
A_O = 64
A_KF = 208
A_VF = 0
V_AHI = 44

def qacc(blk, qb): return (V_S if blk & 1 else V_Q) + ((blk >> 1) * 4 + qb) * 4
def accreg(blk, qb):
    if blk < 8: return v(qacc(blk, qb), 4)
    if blk < 12: return v(V_ACCG + ((blk - 8) * 4 + qb) * 4, 4)
    return a(A_ACCU + ((blk - 12) * 4 + qb) * 4, 4)

def w_read(dst, blk, j, rel):
    if blk < 8:
        ar = V_AQ + (blk >> 1); off = rel + j * 1024 + (blk & 1) * 8
    else:
        ar = V_AG + ((blk - 8) & 3); off = rel + 2048 + (1024 if blk >= 12 else 0) + j * 512
    if rel >= 65536: ar += V_AHI - V_AQ; off -= 65536
    assert 0 <= off < 65536
    return "ds_read_b64_tr_b16 %s, %s offset:%d" % (a(dst + 2 * j, 2), v(ar), off)

def w_dma(heavy, tag):
    l = ["buffer_load_dwordx4 %s, %s, %s offen lds ;#%s" % (v(V_WD), s(S_WQ, 4), s(S_WQOFF), tag),
         "buffer_load_dwordx4 %s, %s, %s offen offset:1024 lds ;#%s" % (v(V_WD + 1), s(S_WQ, 4), s(S_WQOFF), tag)]
    if heavy:
        l += ["buffer_load_dwordx4 %s, %s, %s offen offset:2048 lds ;#%s" % (v(V_WD + 2), s(S_WG, 4), s(S_WGOFF), tag),
              "buffer_load_dwordx4 %s, %s, %s offen offset:3072 lds ;#%s" % (v(V_WD + 2), s(S_WU, 4), s(S_WGOFF), tag)]
    return l

def x_load(sl, qb):
    return "buffer_load_dwordx4 %s, %s, %s, %s offen offset:%d%s ;#x%d" % (a(A_X + ((sl % XD) * 4 + qb) * 4, 4), v(V_L16), s(S_X, 4), s(S_XOFF), qb * 1024, LDFL, sl)

def kv_dma(which, i, tag=""):
    vo = (V_KD if which == "K" else V_VD) + i
    return "buffer_load_dwordx4 %s, %s, %s offen offset:%d lds ;#%s" % (v(vo), s(S_K if which == "K" else S_V, 4), s(S_KVOFF), 1024 * i, tag)

def set_flag(e, stage):
    e("s_add_u32 %s, %s, %d\ns_mov_b64 exec, 1\nv_mov_b32 %s, %s" % (s(S_TMP + 7), s(S_TAG), stage, v(V_PL), s(S_TMP + 7)))
    e("buffer_store_dword %s, off, %s, %s sc1" % (v(V_PL), s(S_FL, 4), s(S_MYFL)))
    e("s_mov_b64 exec, -1")

def poll_load(allq, qoff=None):
    if allq: return "buffer_load_dwordx4 %s, %s, %s, 0 offen sc1" % (v(V_PL, 4), v(V_L16), s(S_FL, 4))
    return "buffer_load_dword %s, %s, %s, %s offen sc1" % (v(V_PL), v(V_PL + 3), s(S_FL, 4), qoff)

def poll_spin(e, allq, qoff, stage, tag):
    e("s_mov_b32 %s, 0\ns_add_u32 %s, %s, %d" % (s(S_TMP + 7), s(S_TMP + 6), s(S_TAG), stage))
    e("SPIN_%s:" % tag)
    n = 4 if allq else 1
    for i in range(n): e("v_subrev_u32 %s, %s, %s" % (v(V_PL + i), s(S_TMP + 6), v(V_PL + i)))
    if allq: e("v_max3_u32 %s, %s, %s, %s\nv_max_u32 %s, %s, %s" % (v(V_PL), v(V_PL), v(V_PL + 1), v(V_PL + 2), v(V_PL), v(V_PL), v(V_PL + 3)))
    e("v_cmp_lt_u32 vcc, %d, %s" % (MAXST - stage, v(V_PL)))
    e("s_add_u32 %s, %s, 1" % (s(S_TMP + 7), s(S_TMP + 7)))
    e("s_cmp_eq_u64 vcc, 0\ns_cbranch_scc1 SPUN_%s" % tag)
    e("s_cmp_ge_u32 %s, 0x40000\ns_cbranch_scc1 SPUN_%s" % (s(S_TMP + 7), tag))
    e("s_sleep %d" % opt("slp", 2))
    e(poll_load(allq, qoff))
    e("s_waitcnt vmcnt(0)\ns_branch SPIN_%s" % tag)
    e("SPUN_%s:" % tag)

def zero_acc(e, heavy=True):
    for r in range(V_ACCQ, 256): e("v_mov_b32 %s, 0" % v(r))
    for r in range(A_ACCU, A_ACCU + 64): e("v_accvgpr_write_b32 %s, 0" % a(r))

NI = opt("ni", 1)

def gen_ln_loads(e):
    T = V_T; L = V_LANE
    R = V_ACCQ
    e("v_bfe_u32 %s, %s, 1, 3\nv_lshrrev_b32 %s, 4, %s\nv_and_b32 %s, 1, %s" % (v(T), v(L), v(T + 1), v(L), v(T + 2), v(L)))
    e("v_mul_u32_u24 %s, 1280, %s\nv_lshl_add_u32 %s, %s, 4, %s\nv_lshl_add_u32 %s, %s, 3, %s" % (v(T + 3), v(T), v(T + 3), v(T + 1), v(T + 3), v(T + 3), v(T + 2), v(T + 3)))
    e("s_lshl_b32 %s, %s, 5\ns_add_u32 %s, %s, %s\ns_mul_i32 %s, %s, %d\ns_mul_i32 %s, %s, 320" % (s(S_TMP), s(S_QT), s(S_TMP), s(S_TMP), s(S_HEAD), s(S_TMP), s(S_TMP), 8 * 1280, s(S_TMP + 1), s(S_WAVE)))
    e("s_waitcnt lgkmcnt(0)")
    srd(e, S_T, ptr(0), s(S_TMP), 8 * 1280)
    for i in range(5): e("buffer_load_dwordx2 %s, %s, %s, %s offen offset:%d" % (v(R + 2 * i, 2), v(T + 3), s(S_T, 4), s(S_TMP + 1), 64 * i))

def gen_ln_compute(e, nyounger):
    T = V_T; L = V_LANE
    R = V_ACCQ; U = R + 10
    e("v_and_b32 %s, 15, %s\nv_lshlrev_b32 %s, 3, %s\nv_lshl_add_u32 %s, %s, 8, %s" % (v(T + 3), v(L), v(T + 3), v(T + 3), v(T + 3), v(T + 1), v(T + 3)))
    e("s_lshr_b32 %s, %s, 3\ns_lshl2_add_u32 %s, %s, %s\ns_mul_i32 %s, %s, %d" % (s(S_TMP), s(S_HEAD), s(S_TMP), s(S_QT), s(S_TMP), s(S_TMP), s(S_TMP), 20 * 4096))
    e("s_bfe_u32 %s, %s, 0x20001\ns_lshl_b32 %s, %s, 10\ns_add_u32 %s, %s, %s" % (s(S_TMP + 1), s(S_HEAD), s(S_TMP + 1), s(S_TMP + 1), s(S_TMP), s(S_TMP), s(S_TMP + 1)))
    e("s_and_b32 %s, %s, 1\ns_lshl_b32 %s, %s, 7\ns_add_u32 %s, %s, %s\ns_add_u32 %s, %s, %d" % (s(S_TMP + 1), s(S_HEAD), s(S_TMP + 1), s(S_TMP + 1), s(S_TMP), s(S_TMP), s(S_TMP + 1), s(S_TMP), s(S_TMP), XF_OFF))
    srd(e, S_LN, ptr(11), s(S_TMP), 20 * 4096)
    e("s_mul_i32 %s, %s, %d" % (s(S_TMP), s(S_WAVE), 5 * 4096))
    e("v_lshlrev_b32 %s, 5, %s\nv_add_u32 %s, %d, %s\ns_lshl_b32 %s, %s, 3\nv_add_u32 %s, %s, %s" % (v(T + 4), v(T), v(T + 4), L_MISC, v(T + 4), s(S_TMP + 1), s(S_WAVE), v(T + 5), s(S_TMP + 1), v(T + 4)))
    A0 = T + 6; M = T + 8
    e("s_waitcnt vmcnt(%d)" % nyounger)
    stamp(e, 17)
    for d in range(10): e("v_lshlrev_b32 %s, 16, %s\nv_and_b32 %s, 0xffff0000, %s" % (v(U + 2 * d), v(R + d), v(U + 2 * d + 1), v(R + d)))
    e("v_pk_add_f32 %s, %s, %s\nv_pk_add_f32 %s, %s, %s" % (v(A0, 2), v(U, 2), v(U + 2, 2), v(M, 2), v(U + 4, 2), v(U + 6, 2)))
    for d in range(4, 10): e("v_pk_add_f32 %s, %s, %s" % (v((A0, M)[d & 1], 2), v((A0, M)[d & 1], 2), v(U + 2 * d, 2)))
    def reduce(dst):
        e("v_pk_add_f32 %s, %s, %s" % (v(A0, 2), v(A0, 2), v(M, 2) if dst == M else v(T + 10, 2)))
        e("v_add_f32 %s, %s, %s\ns_nop 1" % (v(A0), v(A0), v(A0 + 1)))
        e("v_add_f32_dpp %s, %s, %s quad_perm:[1,0,3,2] row_mask:0xf bank_mask:0xf" % (v(A0), v(A0), v(A0)))
        for sw in ("v_permlane32_swap_b32", "v_permlane16_swap_b32"):
            e("v_mov_b32 %s, %s\ns_nop 1\n%s %s, %s\nv_add_f32 %s, %s, %s" % (v(A0 + 1), v(A0), sw, v(A0), v(A0 + 1), v(A0), v(A0), v(A0 + 1)))
    reduce(M)
    e("v_mul_f32 %s, %s, %s\nv_mul_f32 %s, %s, %s" % (v(M), f2u(-1.0 / 160), v(A0), v(M + 1), f2u(-1.0 / 160), v(A0)))
    for d in range(10): e("v_pk_add_f32 %s, %s, %s" % (v(U + 2 * d, 2), v(U + 2 * d, 2), v(M, 2)))
    e("v_pk_mul_f32 %s, %s, %s\nv_pk_mul_f32 %s, %s, %s" % (v(A0, 2), v(U, 2), v(U, 2), v(T + 10, 2), v(U + 2, 2), v(U + 2, 2)))
    for d in range(2, 10): e("v_pk_fma_f32 %s, %s, %s, %s" % (v((A0, T + 10)[d & 1], 2), v(U + 2 * d, 2), v(U + 2 * d, 2), v((A0, T + 10)[d & 1], 2)))
    reduce(None)
    e("v_mov_b32 %s, %s" % (v(M + 1), v(A0)))
    e("ds_write_b64 %s, %s\ns_waitcnt lgkmcnt(0)\ns_barrier" % (v(T + 5), v(M, 2)))
    X = T + 12
    e("ds_read_b128 %s, %s\nds_read_b128 %s, %s offset:16\ns_waitcnt lgkmcnt(0)" % (v(X, 4), v(T + 4), v(X + 4, 4), v(T + 4)))
    e("v_pk_add_f32 %s, %s, %s\nv_pk_add_f32 %s, %s, %s\nv_pk_add_f32 %s, %s, %s" % (v(A0, 2), v(X, 2), v(X + 2, 2), v(T + 10, 2), v(X + 4, 2), v(X + 6, 2), v(A0, 2), v(A0, 2), v(T + 10, 2)))
    e("v_mul_f32 %s, 0.25, %s" % (v(A0), v(A0)) if False else "v_mul_f32 %s, %s, %s" % (v(A0), f2u(0.25), v(A0)))
    for k in range(4): e("v_sub_f32 %s, %s, %s" % (v(X + 2 * k), v(X + 2 * k), v(A0)))
    e("v_mul_f32 %s, %s, %s" % (v(X + 1), v(X), v(X)))
    for k in range(1, 4): e("v_fmac_f32 %s, %s, %s" % (v(X + 1), v(X + 2 * k), v(X + 2 * k)))
    e("v_fmac_f32 %s, %s, %s" % (v(A0 + 1), f2u(160.0), v(X + 1)))
    e("v_mov_b32 %s, %s\nv_fmac_f32 %s, %s, %s\nv_rsq_f32 %s, %s" % (v(X), f2u(1e-5 * DSC), v(X), f2u(DSC / 640), v(A0 + 1), v(X), v(X)))
    e("v_sub_f32 %s, %s, %s" % (v(M), v(A0), v(M)))
    e("v_mov_b32 %s, %s\nv_mul_f32 %s, %s, %s\nv_mul_f32 %s, %s, %s" % (v(X + 1), v(X), v(M + 1), v(M), v(X), v(M), v(M), v(X)))
    for i in range(5):
        for d in (2 * i, 2 * i + 1): e("v_pk_fma_f32 %s, %s, %s, %s" % (v(U + 2 * d, 2), v(U + 2 * d, 2), v(X, 2), v(M, 2)))
        for d in (2 * i, 2 * i + 1): e("v_cvt_pk_bf16_f32 %s, %s, %s" % (v(R + d), v(U + 2 * d), v(U + 2 * d + 1)))
        e("buffer_store_dwordx2 %s, %s, %s, %s offen%s" % (v(R + 2 * i, 2), v(T + 3), s(S_LN, 4), s(S_TMP), STFL))
        if i < 4: e("s_add_u32 %s, %s, 4096" % (s(S_TMP), s(S_TMP)))

def w_slab(e, sl, heavy):
    e("s_add_u32 m0, %s, %d\ns_nop 0" % (s(S_M0W), (sl % RW) * 16384))
    e.ext(w_dma(heavy, "w%d" % sl))
    e("s_add_u32 %s, %s, %d\ns_add_u32 %s, %s, %d" % (s(S_WQOFF), s(S_WQOFF), 32 * 8192, s(S_WGOFF), s(S_WGOFF), 32 * 3456))

def gen_proj(e0, heavy, tag):
    e = E()
    T = V_T; L = V_LANE
    NS = opt("ns", 4) if heavy else 0
    GU = [b for fb in range(4) for b in (12 + fb, 8 + fb)]
    units = []
    for sl in range(20 - NS): units.append((sl, list(range(8)) + (GU if heavy else [])))
    for part in ((GU[:4], GU[4:]) if opt("split", 1) else (GU,)):
        for sl in range(20 - NS, 20): units.append((sl, part))
    for sl in range(20 - NS, 20): units.append((sl, list(range(8))))
    order = [(sl, b) for sl, bl in units for b in bl]
    NF = len(order)
    mf = []
    for F, (sl, b) in enumerate(order):
        for qb in range(4):
            mf.append("%s %s, %s, %s, %s" % (MF, accreg(b, qb), a(A_W + 4 * (F % 8), 4), a(A_X + ((sl % XD) * 4 + qb) * 4, 4), accreg(b, qb) if sl else "0"))
    NP = len(mf)
    for sl in range(4):
        for kb in range(2):
            for qb in range(4):
                d = v(Sreg(0, qb, kb), 4)
                mf.append("%s %s, %s, %s, %s" % (MF, d, a(A_KF + (kb * 4 + sl) * 4, 4), v(V_Q + (sl * 4 + qb) * 4, 4), d if sl else "0"))
    G = Gaps(mf)
    ustart = []; n = 0
    for sl, bl in units: ustart.append(n); n += len(bl)
    lastF = {}; lastU = {}; lastblk = {}
    for u, (sl, bl) in enumerate(units):
        lastU[sl] = u; lastF[sl] = ustart[u] + len(bl) - 1
        for i, b in enumerate(bl): lastblk[b] = ustart[u] + i
    G1 = lambda sl: 4 * ustart[sl]
    DA = opt("pda", 6)
    rd = lambda F, j: w_read(A_W + 4 * (F % 8), order[F][1], j, (order[F][0] % RW) * 16384)
    pre_reads = [rd(F, j) for F in range(DA) for j in range(2)]
    TRW = opt("trw", 15) if heavy else 14
    bars = {}; cur = 0; seen = {0}
    def barrier(u, lo, need):
        bb = G.place("b", "s_barrier", lo)
        G.put(bb, "s", "s_waitcnt WAITVM{%s}" % ",".join(need))
        bars[u] = bb
        return bb + 1
    for F in range(DA, NF):
        lo = 4 * (F - DA)
        if F in ustart:
            u = ustart.index(F); sl = units[u][0]
            need = (["x%d" % sl, "w%d" % sl] if sl not in seen else []) + (["trs"] if u == TRW else [])
            seen.add(sl)
            if need or units[u][1][0] == 0: cur = barrier(u, max(cur, lo - 1), need or ["none"])
        for j in range(2): cur = G.place("d", rd(F, j), max(cur, lo + 2 * j), 4 * F - 6) + 1
    NU = len(units)
    cur = barrier(NU, cur + 1, ["K0", "K1"])
    kord = [(kb, sl) for sl in range(4) for kb in range(2)]
    for kb, sl in kord: cur = G.place("d", k_read(kb, sl, 0), cur) + 1
    barrier(NU + 1, max(cur + 5, NP), ["none"])
    kpost = []
    for i, (kb, sl) in enumerate(kord):
        lo = NP + 4 * i + 3
        try: cur = G.place("d", k_read(kb, sl, 8192), max(cur, lo)) + 1
        except RuntimeError: kpost.append(k_read(kb, sl, 8192))
    freeg = lambda sl: min(x for x in bars.values() if x >= 4 * lastF[sl])
    def wseq(sl):
        return [("s", "s_add_u32 m0, %s, %d" % (s(S_M0W), (sl % RW) * 16384))] + [("m", x) for x in w_dma(heavy, "w%d" % sl)] + \
               [("s", "s_add_u32 %s, %s, %d\ns_add_u32 %s, %s, %d" % (s(S_WQOFF), s(S_WQOFF), 32 * 8192, s(S_WGOFF), s(S_WGOFF), 32 * 3456))]
    def xseq(sl): return [("m", x_load(sl, qb)) for qb in range(4)] + [("s", "s_add_u32 %s, %s, 4096" % (s(S_XOFF), s(S_XOFF)))]
    def kvseq(which, i):
        return [("s", "s_add_u32 m0, %s, %d\ns_mov_b32 %s, %d" % (s(S_M0K), (L_K if which == "K" else L_V) + i * 8192, s(S_KVOFF), (i + (3 if which == "V" else 0)) * 8192))] + \
               [("m", kv_dma(which, k, "%s%d" % (which, i))) for k in range(2)]
    NX0 = opt("nx0", 2)
    e("s_mov_b32 %s, 0" % s(S_XOFF))
    q = []
    for sl in range(20):
        for kind in "wx":
            if kind == "w" and sl < NI: continue
            seq = wseq(sl) if kind == "w" else xseq(sl)
            if sl < NX0:
                for k, x in seq: e(x + ("\ns_nop 0" if " m0," in x else ""))
            else:
                lo = 0 if sl < 7 else (freeg(sl - RW) if kind == "w" else 4 * lastF[sl - XD] + 3)
                q.append((lo, seq))
    late = {13: [("V", 4)], 14: [("K", 0), ("K", 1)], 15: [("K", 2), ("K", 3)], 16: [("K", 4), ("K", 5)], 17: [("K", 6), ("K", 7)],
            18: [("V", 0), ("V", 1)], 19: [("V", 2), ("V", 3)]}
    side = []
    for sl in range(13, 20):
        for which, i in late[sl]: side.append((freeg(sl), kvseq(which, i)))
    WT = opt("wt", 6)
    if WT:
        for k, sl in enumerate([int(x) for x in opt("wts", "0.4.8").split(".")], 1):
            seq = [("s", "s_mov_b32 %s, %d" % (s(S_TMP), k * WT * 32 * 8192)), ("m", "buffer_load_dword %s, %s, %s, %s offen" % (v(V_DUMP), v(V_TC + 1), s(S_WQ, 4), s(S_TMP)))]
            if heavy:
                seq += [("s", "s_mov_b32 %s, %d" % (s(S_TMP), k * WT * 32 * 3456)),
                        ("m", "buffer_load_dword %s, %s, %s, %s offen offset:2048" % (v(V_DUMP), v(V_TC), s(S_WG, 4), s(S_TMP))),
                        ("m", "buffer_load_dword %s, %s, %s, %s offen offset:3072" % (v(V_DUMP), v(V_TC), s(S_WU, 4), s(S_TMP)))]
            side.append((G1(sl) + opt("wtg", 30), seq))
    t0 = v(V_TRA + 3)
    if opt("kvt", 14): side.append((G1(opt("kvt", 14)), [("v", "v_min_u32 %s, 15, %s" % (t0, v(L))), ("v", "v_lshlrev_b32 %s, 7, %s" % (t0, t0)),
               ("s", "s_lshl2_add_u32 %s, %s, %s\ns_lshl_b32 %s, %s, 11" % (s(S_TMP), s(S_QT), s(S_WAVE), s(S_TMP), s(S_TMP))),
               ("m", "buffer_load_dword %s, %s, %s, %s offen" % (v(V_DUMP), t0, s(S_K, 4), s(S_TMP))),
               ("s", "s_add_u32 %s, %s, %d" % (s(S_TMP), s(S_TMP), 3 * 8192)),
               ("m", "buffer_load_dword %s, %s, %s, %s offen" % (v(V_DUMP), t0, s(S_V, 4), s(S_TMP)))]))
    TS, TPS = (opt("ts", 9), opt("tps", 4)) if heavy else (6, 3)
    for i in range(10):
        side.append((G1(TS + i // TPS), [("s", "s_add_u32 m0, %s, %d" % (s(S_TRM), i * 1024)),
                                         ("m", "buffer_load_dwordx4 %s, %s, %s offen lds ;#trs" % (v(V_T + 12 + i), s(S_T, 4), s(S_TRS)))]))
    gv = gv0 = G1(TS + 9 // TPS + 2); g = bars[TRW] + 1
    for i in range(10):
        t0 = v(V_T + 12 + i)
        pre = ["v_add_u32 %s, %d, %s" % (t0, i, v(V_TRA + 2)), "v_xor_b32 %s, %s, %s" % (t0, t0, v(V_TRA + 1)), "v_lshl_add_u32 %s, %s, 5, %s" % (t0, t0, v(V_TRA))]
        if i == 0: pre = ["v_mov_b32 %s, %s" % (v(V_TRA + 2), s(S_TRU))] + pre
        for x in pre:
            while not G.ds[gv]: gv += 1
            gv = G.place("v", x, gv, bars[TRW] - 1); gv += 1
        for j in range(2):
            g = G.place("d", "ds_read_b64_tr_b16 %s, %s offset:%d" % (a(A_TR + 4 * i + 2 * j, 2), t0, j * 16 * 1280), g) + opt("trs", 4 if heavy else 2)
    trend = g
    adds = {4: 4096, 5: NSLAB * 5120 - 4096, 9: 4096}
    for i in range(10):
        seq = [("s", "s_add_u32 %s, %s, %d" % (s(S_TRD), s(S_TRD), adds[i]))] if i in adds else []
        seq.append(("m", "buffer_store_dwordx4 %s, %s, %s, %s offen offset:%d%s ;#trd" % (a(A_TR + 4 * i, 4), v(V_L16), s(S_WF, 4), s(S_TRD), ((i % 5) % 4) * 1024, STFL)))
        side.append((trend + 30 + i * opt("trsp", 10 if heavy else 4), seq))
    side.sort(key=lambda t: t[0])
    MG = opt("pmg", 4 if heavy else 2)
    g = 0; lastm = -9; vpost = []
    trlast = 0; lastload = 0
    while q or side:
        if side and (not q or side[0][0] <= max(g, q[0][0])): lo, seq = side.pop(0)
        else: lo, seq = q.pop(0)
        g = max(g, lo)
        for k, x in seq:
            if not vpost:
                try:
                    g = G.place(k, x, max(g + 1, lastm + MG if k == "m" else 0))
                    if k == "m": lastm = g
                    if "#trd" in x: trlast = g
                    if "#trs" in x: assert g < gv0, "transform staging issued after its offset register was reused"
                    if re.search(r";#[xw]\d|;#trs", x) or "v%d," % V_DUMP in x: lastload = g
                    continue
                except RuntimeError: pass
            vpost.append(x + ("\ns_nop 0" if " m0," in x else ""))
    assert trlast < bars[NU], "transform stores must be issued before the K fragments reuse their registers"
    auto_lgkm(G, eager=opt("peag", 8))
    g = lastload + 2
    for x in gen_tail_setup():
        g = G.place("v" if x.startswith("v_") else "s", x, g + 1)
    setup_end = g
    g = max(g, trlast)
    for x in gen_tail_setup2(): g = G.place("v" if x.startswith("v_") else "s", x, g + 1)
    HZ = 8
    post = []
    def lay(items):
        g = 0; out = []
        for lo, k, x, hi in items:
            if not out:
                try:
                    g = G.place(k, x, max(g + (0 if k == "v" else 1), lo), hi, force=(hi is not None)); continue
                except RuntimeError: pass
            assert hi is None
            out.append(x)
        return out
    its = []
    for sl in range(4):
        for qb in range(4):
            d0 = V_Q + (sl * 4 + qb) * 4
            lo = 4 * lastblk[2 * sl + 1] + qb + HZ
            hi = NP - 3 if sl < 2 else NP + 8 * sl - 3
            for b in range(2):
                g0 = qacc(2 * sl + b, qb)
                for h in range(2): its.append((min(lo, hi), "v", "v_cvt_pk_bf16_f32 %s, %s, %s" % (v(d0 + 2 * b + h), v(g0 + 2 * h), v(g0 + 2 * h + 1)), hi))
    assert not lay(its)
    its = []
    if heavy:
        U = T
        for fb in range(4):
            for qb in range(4):
                g0 = V_ACCG + (fb * 4 + qb) * 4
                lo = max(4 * lastblk[8 + fb] + qb + HZ, setup_end + 1)
                for r in range(4): its.append((lo, "v", "v_accvgpr_read_b32 %s, %s" % (v(U + r), a(A_ACCU + (fb * 4 + qb) * 4 + r)), None))
                for r in range(4): its.append((lo, "v", "v_max_f32 %s, 0, %s" % (v(g0 + r), v(g0 + r)), None))
                for r in range(4): its.append((lo, "v", "v_mul_f32 %s, %s, %s" % (v(g0 + r), v(g0 + r), v(U + r)), None))
                d0 = V_ACCG + ((fb & ~1) * 4 + qb) * 4 + 2 * (fb & 1)
                for h in range(2): its.append((lo, "v", "v_cvt_pk_bf16_f32 %s, %s, %s" % (v(d0 + h), v(g0 + 2 * h), v(g0 + 2 * h + 1)), None))
                if fb & 1:
                    if qb == 0: its.append((lo, "s", "s_lshl_b32 %s, %s, 13\ns_add_u32 %s, %s, %d" % (s(S_TMP + 6), s(S_FS), s(S_TMP + 6), s(S_TMP + 6), (128 + (fb >> 1)) * 4096), None))
                    its.append((lo, "m", "buffer_store_dwordx4 %s, %s, %s, %s offen offset:%d%s" % (v(d0 - 2, 4), v(V_L16), s(S_AF, 4), s(S_TMP + 6), 1024 * qb, STFL), None))
    post += lay(its)
    its = [(setup_end + 1, "v", "v_mov_b32 %s, 0x3f803f80" % v(V_TRA + 2), None)] + [(setup_end + 2, "v", "v_accvgpr_write_b32 %s, %s" % (a(A_ONE + r), v(V_TRA + 2)), None) for r in range(4)]
    zs = []
    for k in range(XD):
        sl = max(x for x in range(20) if x % XD == k)
        zs.append((4 * lastF[sl] + 4, range(A_X + 16 * k, A_X + 16 * k + 16)))
    for k in range(4):
        F = max(x for x in range(NF) if x % 8 == k)
        zs.append((4 * F + 4, range(A_W + 4 * k, A_W + 4 * k + 4)))
    for lo, rr in sorted(zs, key=lambda t: t[0]):
        for r in rr: its.append((lo, "v", "v_accvgpr_write_b32 %s, 0" % a(r), None))
    post += lay(its)
    if VERBOSE: print("proj", tag, G.pattern(), "| post", len(post), len(vpost), len(kpost))
    e.ext(pre_reads)
    e("s_waitcnt WAITVM{x0} lgkmcnt(0)")
    stamp(e, 3)
    nm = 0
    for x in G.lines():
        if x.startswith("v_mfma"):
            if STAMPS and nm % (NP // 5) == 0 and 0 < nm < NP: stamp(e, 18 + nm // (NP // 5))
            if nm == NP: stamp(e, 4)
            nm += 1
        e(x)
    for x in kpost + vpost + post: e(x)
    e("s_mov_b32 %s, %d" % (s(S_KVOFF), 8 * 8192))
    e("s_nop 1")
    for r in range(16): e("v_mov_b32 %s, 0" % v(V_L + r))
    for qb in range(4): e("v_mov_b32 %s, 0xff800000" % v(V_NEGM + 4 * qb))
    e("s_waitcnt WAITVM{K2,K3}")
    e0.ext(resolve_vm(e.L))

def kv_preload(e):
    e("s_mov_b32 %s, 0" % s(S_KVOFF))
    for i in range(8):
        e("s_add_u32 m0, %s, %d\ns_nop 0" % (s(S_M0K), L_K + i * 8192))
        e(kv_dma("K", 0)); e(kv_dma("K", 1))
        if i >= 3:
            e("s_add_u32 m0, %s, %d\ns_nop 0" % (s(S_M0K), L_V + (i - 3) * 8192))
            e(kv_dma("V", 0)); e(kv_dma("V", 1))
        e("s_add_u32 %s, %s, 8192" % (s(S_KVOFF), s(S_KVOFF)))
    e("s_waitcnt vmcnt(0)")

def Sreg(buf, qb, kb): return V_S + buf * 32 + qb * 8 + kb * 4
def Preg(buf, qb): return V_P + buf * 16 + qb * 4

def qk_mfmas(buf, czero=False):
    out = []
    order = {"kqs": [(kb, qb, sl) for kb in range(2) for qb in range(4) for sl in range(4)],
             "ksq": [(kb, qb, sl) for kb in range(2) for sl in range(4) for qb in range(4)],
             "snake": [(kb, qb, sl) for kb in range(2) for qb in range(4) for sl in range(4)]}[opt("qko", "snake")]
    for kb, qb, sl0 in order:
                sl = sl0
                d = v(Sreg(buf, qb, kb), 4)
                if opt("qko", "snake") == "snake":
                    first = sl0 == 0
                    sl = sl0 if qb % 2 == 0 else 3 - sl0
                    c = ("0" if czero else v(V_NEGM + 4 * qb, 4)) if first else d
                    out.append("%s %s, %s, %s, %s" % (MF, d, a(A_KF + (kb * 4 + sl) * 4, 4), v(V_Q + (sl * 4 + qb) * 4, 4), c))
                    continue
                c = d if sl else ("0" if czero else v(V_NEGM + 4 * qb, 4))
                out.append("%s %s, %s, %s, %s" % (MF, d, a(A_KF + (kb * 4 + sl) * 4, 4), v(V_Q + (sl * 4 + qb) * 4, 4), c))
    return out

def pv_mfmas(buf, tailmode=False):
    out = []
    for qb in range(4):
        out.append("%s %s, %s, %s, %s" % (MF, v(V_L + 4 * qb, 4), a(A_ONE, 4), v(Preg(buf, qb), 4), v(V_L + 4 * qb, 4)))
    pvo = opt("pvo", "qd2")
    order = {"dq": [(db, qb) for db in range(8) for qb in range(4)],
             "snake": [(db, qb if db % 2 == 0 else 3 - qb) for db in range(8) for qb in range(4)],
             "qd2": [(2 * h + d, qb) for h in range(4) for qb in range(4) for d in range(2)],
             "qd4": [(4 * h + d, qb) for h in range(2) for qb in range(4) for d in range(4)]}[pvo if not tailmode else "dq"]
    for db, qb in order:
            o = a(A_O + (db * 4 + qb) * 4, 4)
            out.append("%s %s, %s, %s, %s" % (MF, o, a(A_VF + db * 4, 4), v(Preg(buf, qb), 4), o))
    return out

def k_read(kb, sl, off): return "ds_read_b128 %s, %s offset:%d" % (a(A_KF + (kb * 4 + sl) * 4, 4), v(V_KA + sl), off + kb * 4096)
def v_read(db, j, off): return "ds_read_b64_tr_b16 %s, %s offset:%d" % (a(A_VF + db * 4 + 2 * j, 2), v(V_VA + db), off + j * 4096)

def softmax_ops(buf):
    ex = []; cv = []
    for qb in range(4):
        for kb in range(2):
            for r in range(4):
                x = v(Sreg(buf, qb, kb) + r)
                ex.append("v_exp_f32 %s, %s" % (x, x))
            for h in range(2):
                b = Sreg(buf, qb, kb) + 2 * h
                cv.append("v_cvt_pk_bf16_f32 %s, %s, %s" % (v(Preg(buf, qb) + kb * 2 + h), v(b), v(b + 1)))
    return ex, cv

def gen_attention(e):
    T = V_T
    e("ATT_START:")
    stamp(e, 5)
    e("s_barrier")
    z = ["s_nop 0"] * 4
    for qb in range(4):
        b = Sreg(0, qb, 0)
        e("v_max3_f32 %s, %s, %s, %s" % (v(T + qb), v(b), v(b + 1), v(b + 2)))
        e("v_max3_f32 %s, %s, %s, %s" % (v(T + qb), v(T + qb), v(b + 3), v(b + 4)))
        e("v_max3_f32 %s, %s, %s, %s" % (v(T + qb), v(T + qb), v(b + 5), v(b + 6)))
        e("v_max3_f32 %s, %s, %s, %s" % (v(T + qb), v(T + qb), v(b + 7), v(V_NEGM + 4 * qb)))
    for sw in ("v_permlane32_swap_b32", "v_permlane16_swap_b32"):
        for qb in range(4): e("v_mov_b32 %s, %s" % (v(T + 4 + qb), v(T + qb)))
        e.ext(z[:2]); z = z[2:]
        for qb in range(4): e("%s %s, %s" % (sw, v(T + qb), v(T + 4 + qb)))
        for qb in range(4): e("v_max_f32 %s, %s, %s" % (v(T + qb), v(T + qb), v(T + 4 + qb)))
    for qb in range(4):
        for r in range(4): e("v_sub_f32 %s, 0, %s" % (v(V_NEGM + 4 * qb + r), v(T + qb)))
    for qb in range(4):
        for r in range(8): e("v_sub_f32 %s, %s, %s" % (v(Sreg(0, qb, 0) + r), v(Sreg(0, qb, 0) + r), v(T + qb)))
    e.ext(z)
    e("s_waitcnt lgkmcnt(0)")

    def build(steps, loop, pend):
        mf = []; starts = []
        for sp in steps:
            starts.append(len(mf))
            if sp["qk"]: mf += qk_mfmas(1 - sp["buf"])
            if sp["pv"]: mf += pv_mfmas(1 - sp["buf"], not sp["qk"])
        G = Gaps(mf)
        for sp, st in zip(steps, starts):
            nq = 32 if sp["qk"] else 0
            npv = 36 if sp["pv"] else 0
            end = st + nq + npv - 1
            full = sp["qk"] and sp["pv"]
            cur = st; g = st; c2 = st
            if sp.get("bar") is not None:
                b = G.place("b", "s_barrier", st)
                G.put(b, "s", "s_waitcnt vmcnt(%d) lgkmcnt(0)" % sp["bar"])
                cur = b + 1
            if sp.get("bar63"):
                G.put(st + 5, "s", "s_waitcnt vmcnt(0)\ns_barrier")
            if full:
                for i in range(16):
                    lo = st + 4 * (i // 2) + (i % 2)
                    cur = G.place("d", v_read(i // 2, i % 2, sp["voff"]), max(cur, lo)) + 1
            if sp.get("vnext") is not None:
                c2 = st + nq + 4 + 3
                for i in range(16):
                    lo = min(st + nq + 4 + 4 * (i // 2) + 3, end)
                    c2 = G.place("d", v_read(i // 2, i % 2, sp["vnext"]), min(max(c2, lo), end), end, force=True) + 1
            if sp.get("koff") is not None:
                if full:
                    c2 = st + 32
                    for i in range(8):
                        c2 = G.place("d", k_read(i // 4, i % 4, sp["koff"]), max(c2, st + 32 + 3 * i)) + 1
                else:
                    c2 = st + 16
                    for i in range(4): c2 = G.place("d", k_read(0, i, sp["koff"]), c2) + 1
                    for i in range(4): G.put(end, "d", k_read(1, i, sp["koff"]))
            if sp.get("dma"):
                g = st + (33 if full else 2)
                for wi, which in enumerate(sp["dma"]):
                    g = G.place("s", "s_add_u32 m0, %s, %s" % (s(S_M0K), sp["m0" + which]), g)
                    for i in range(2): g = G.place("m", kv_dma(which, i), g + 2)
                    g += 1
                g = G.place("s", "s_add_u32 %s, %s, 8192" % (s(S_KVOFF), s(S_KVOFF)), g)
            marks = {"dma": g, "kread": c2 if sp.get("koff") is not None else st, "vread": cur}
            for (after, chain) in sp.get("misc", []):
                gg = marks[after] if isinstance(after, str) else st + after
                for (kind, text) in chain:
                    gg = G.place(kind, text, gg + (1 if kind == "s" else 0), end)
                marks["last"] = max(marks.get("last", 0), gg)
            if sp["sm"]:
                ex, cv = softmax_ops(sp["buf"])
                n = end - st + 1
                if full:
                    eg = []; g = st
                    for i, x in enumerate(ex):
                        tgt = st + (i * (n - 3)) // 32
                        g = G.place("e", x, max(g, tgt), end); eg.append(g)
                    g = st
                    for i, x in enumerate(cv): g = G.place("v", x, max(g, eg[2 * i + 1] + 1), end)
                else:
                    for i, x in enumerate(ex): G.put(st + (i * (n - 1)) // 32, "e", x)
                    for i, x in enumerate(cv): G.put(min(st + ((2 * i + 1) * (n - 1)) // 32 + 1, end), "v", x)
        pre, out = auto_lgkm(G, pend, loop=loop)
        return G, pre, out

    G, pre, pend = build([dict(buf=0, qk=True, pv=False, sm=True, koff=16384)], False, [])
    e.ext(G.lines())
    for sl in range(4): e("v_add_u32 %s, 16384, %s" % (v(V_KA + sl), v(V_KA + sl)))
    e("s_mov_b32 %s, 16384\ns_mov_b32 %s, 49152" % (s(S_TOG), s(S_TMP + 2)))
    e("s_mov_b32 %s, %d\ns_mov_b32 %s, %d" % (s(S_TMP + 3), 1 * 8192, s(S_TMP + 4), 6 * 8192 + L_V))
    e("s_waitcnt vmcnt(0) lgkmcnt(0)\ns_barrier")
    for which, m0 in (("K", L_K), ("V", L_V + 5 * 8192)):
        e("s_add_u32 m0, %s, %d\ns_nop 0" % (s(S_M0K), m0))
        e(kv_dma(which, 0)); e(kv_dma(which, 1))
    e("s_add_u32 %s, %s, 8192" % (s(S_KVOFF), s(S_KVOFF)))
    e("s_cmp_lg_u32 %s, 0\ns_cbranch_scc1 NOSIG2" % s(S_WAVE))
    set_flag(e, 2)
    e("NOSIG2:")
    def adv(r, base):
        return [("s", "s_add_u32 %s, %s, 8192" % (s(r), s(r))), ("s", "s_and_b32 %s, %s, 0xffff" % (s(r), s(r)))] + \
               ([("s", "s_or_b32 %s, %s, %d" % (s(r), s(r), base))] if base else [])
    miscA = [("kread", [("v", "v_xor_b32 %s, %s, %s" % (v(V_KA + i), s(S_TMP + 2), v(V_KA + i))) for i in range(4)]),
             ("dma", adv(S_TMP + 3, 0) + adv(S_TMP + 4, L_V))]
    miscB = [(34, [("v", "v_xor_b32 %s, %s, %s" % (v(V_VA + i), s(S_TOG), v(V_VA + i))) for i in range(8)] +
                  [("s", "s_xor_b32 %s, %s, 32768" % (s(S_TOG), s(S_TOG))), ("s", "s_xor_b32 %s, %s, 32768" % (s(S_TMP + 2), s(S_TMP + 2)))]),
             ("dma", adv(S_TMP + 3, 0) + adv(S_TMP + 4, L_V)),
             ("last", [("s", "s_cmp_lt_u32 %s, %s" % (s(S_KVOFF), s(S_EVT)))])]
    G, pre, pend = build([dict(buf=1, qk=True, pv=True, sm=True, koff=8192, voff=0, dma="KV", m0K=s(S_TMP + 3), m0V=s(S_TMP + 4), misc=miscA),
                          dict(buf=0, qk=True, pv=True, sm=True, koff=0, voff=8192, bar=16, dma="KV", m0K=s(S_TMP + 3), m0V=s(S_TMP + 4), misc=miscB)], True, [])
    if VERBOSE: print("loop", G.pattern())
    stamp(e, 6)
    e("s_mov_b32 %s, %d\ns_cmp_eq_u32 %s, 0\ns_cselect_b32 %s, %d, %s" % (s(S_EVT), EVTE, s(S_WAVE), s(S_EVT), EVT1, s(S_EVT)))
    e(".p2align 6\nATT_LOOP:")
    for x in G.lines(): e(x)
    e("s_cbranch_scc1 ATT_LOOP")
    e("s_cmp_lt_u32 %s, %d\ns_cbranch_scc1 ATT_EVT" % (s(S_KVOFF), EVTE))
    stamp(e, 7)
    e("s_waitcnt lgkmcnt(0)")
    vr = [v_read(i // 2, i % 2, 0) for i in range(16)]
    e.ext(vr)
    h = E()
    G, pre, pend = build([dict(buf=1, qk=False, pv=True, sm=True, vnext=8192, bar63=True)], False, [asmcheck.I(x, 0, 0).W for x in vr])
    assert pre is None
    pq = [x for sg in range(NPRE_X) for x in t8_w(sg) + t8_a(sg)]
    assert NPRE_X <= 3
    g = 6
    while pq and g < 36:
        k, x = pq.pop(0)
        if k == "s": G.sc[g].append(x); g += 1
        else: G.va[g].append(x); g += opt("x63", 3)
    for x in G.lines(): h(x)
    G = Gaps(pv_mfmas(1, True))
    G.put(opt("b64", 8), "b", "s_barrier")
    G.put(opt("b64", 8), "s", "s_waitcnt lgkmcnt(0)")
    g = 0; post = []
    for k, x in pq:
        if not post:
            try:
                g = G.place(k, x, g) + (opt("x64", 3) if k == "m" else 1); continue
            except RuntimeError: pass
        post.append(x + ("\ns_nop 0" if k == "s" else ""))
    pre, pend = auto_lgkm(G, pend)
    h("s_nop 1")
    if pre is not None: h("s_waitcnt lgkmcnt(%d)" % pre)
    for x in G.lines(): h(x)
    h("v_and_b32 %s, 7, %s\nv_lshlrev_b32 %s, 2, %s" % (v(V_PL + 3), v(V_LANE), v(V_PL + 3), v(V_PL + 3)))
    for x in post: h(x)
    return h.L

def gen_events(e):
    e("ATT_EVT:")
    e("s_cmp_eq_u32 %s, %d\ns_cbranch_scc0 ATT_EVT2" % (s(S_EVT), EVT1))
    e(poll_load(True))
    e("s_mov_b32 %s, %d\ns_branch ATT_LOOP" % (s(S_EVT), EVT1 + 6 * 8192))
    e("ATT_EVT2:")
    e("s_waitcnt vmcnt(24)")
    poll_spin(e, True, None, 2, "EARLY")
    e("s_mov_b32 %s, %d\ns_branch ATT_LOOP" % (s(S_EVT), EVTE))

K_SX, K_SO = S_WU, S_X
T_SA, T_SW, T_XS = S_T, S_WF, S_WQ
T_XO = S_WG
T_TAG = S_WG + 3
T_M0W, T_OA, T_OW = 88, 89, 90
T_BA, T_BW = (S_XOFF, S_WQOFF), (S_WGOFF, S_M0W)
K_FLG = 95
KV_XO = 63; KV_X = 8
TV_WR, TV_L4K, TV_TAG, TV_OW, TV_OR = 60, 61, 62, 3, 4
XPB = 12288
NSD, NSG = 7, 23
RW8, RA8, RF8 = 6, 5, 10
L_OWN = [122880, 0]

def join_scalar(lines):
    out = []
    for x in lines:
        if x.startswith(("s_addc", "s_cselect")): out[-1] += "\n" + x
        else: out.append(x)
    return out

def gen_tail_setup():
    e = E()
    L = V_LANE; t = S_TMP
    R, Cc, KQ = t + 3, t + 4, t + 5
    e("s_bfe_u32 %s, s2, 0x10002\ns_lshl_b32 %s, %s, 3\ns_lshr_b32 %s, s2, 5\ns_add_u32 %s, %s, %s" % (s(R), s(R), s(R), s(t), s(R), s(R), s(t)))
    e("s_bfe_u32 %s, s2, 0x20003\ns_and_b32 %s, s2, 3" % (s(Cc), s(KQ)))
    e("s_lshr_b32 %s, %s, 1\ns_lshl1_add_u32 %s, %s, %s\ns_lshl2_add_u32 %s, %s, %s\ns_mul_i32 %s, %s, %d" % (s(t), s(KQ), s(t), s(R), s(t), s(t), s(t), s(S_WAVE), s(t), s(t), 16 * 1280))
    e("s_and_b32 %s, %s, 1\ns_lshl1_add_u32 %s, %s, %s\ns_mul_i32 %s, %s, 160\ns_add_u32 %s, %s, %s" % (s(t + 1), s(KQ), s(t + 1), s(Cc), s(t + 1), s(t + 1), s(t + 1), s(t), s(t), s(t + 1)))
    srd(e, K_SX, ptr(0), s(t), 15 * 1280 + 160)
    srd(e, K_SO, ptr(9), s(t), 15 * 1280 + 160)
    e("v_and_b32 %s, 15, %s\nv_mul_u32_u24 %s, 1280, %s\nv_lshrrev_b32 %s, 4, %s\nv_lshl_add_u32 %s, %s, 3, %s" % (v(KV_XO), v(L), v(KV_XO), v(KV_XO), v(V_T), v(L), v(KV_XO), v(V_T), v(KV_XO)))
    e("s_lshr_b32 %s, %s, 1\ns_lshl2_add_u32 %s, %s, %s\ns_lshl_b32 %s, %s, 5" % (s(K_FLG), s(R), s(K_FLG), s(K_FLG), s(KQ), s(K_FLG), s(K_FLG)))
    e("s_mul_i32 %s, %s, 7\ns_add_u32 %s, %s, 64\ns_lshl_b32 %s, %s, 13\ns_mul_i32 %s, %s, 10240" % (s(t), s(KQ), s(t), s(t), s(T_BA[0]), s(t), s(T_BW[0]), s(t)))
    e("s_lshl_b32 %s, %s, 17\ns_mul_i32 %s, %s, %d" % (s(T_BA[1]), s(KQ), s(T_BW[1]), s(KQ), 16 * 10240))
    e("s_lshl2_add_u32 %s, %s, %s\ns_mul_i32 %s, %s, %d\ns_add_u32 %s, %s, %d" % (s(t), s(R), s(Cc), s(t), s(t), 24 * XPB, s(t), s(t), XP_OFF))
    srd(e, T_XS, ptr(11), s(t), 24 * XPB)
    for ch in range(2):
        d = T_XO + ch
        e("s_and_b32 %s, %s, 2\ns_add_u32 %s, %s, %d\ns_xor_b32 %s, %s, %s\ns_mul_i32 %s, %s, 3\ns_add_u32 %s, %s, %s\ns_sub_u32 %s, %s, 1" % (
            s(t), s(S_WAVE), s(t), s(t), ch, s(t + 1), s(t), s(KQ), s(t), s(t), s(t), s(t), s(t + 1), s(t), s(t)))
        e("s_mul_i32 %s, %s, %d\ns_and_b32 %s, %s, 1\ns_mul_i32 %s, %s, 6144\ns_add_u32 %s, %s, %s" % (s(t), s(t), XPB, s(d), s(S_WAVE), s(d), s(d), s(d), s(d), s(t)))
        e("s_cmp_eq_u32 %s, 0\ns_cselect_b32 %s, 0x1000000, %s" % (s(t + 1), s(d), s(d)))
    e("s_mul_i32 %s, %s, %d\ns_mul_i32 %s, %s, 3072\ns_add_u32 %s, %s, %s" % (s(T_XO + 2), s(KQ), 3 * XPB, s(t), s(S_WAVE), s(T_XO + 2), s(T_XO + 2), s(t)))
    e("s_add_u32 %s, %s, 0x10000\ns_and_b32 %s, %s, 0x1fff0000\ns_or_b32 %s, %s, 0x40000000\nv_mov_b32 %s, %s" % (s(t), s(S_EPOCH), s(t), s(t), s(T_TAG), s(t), v(TV_TAG), s(T_TAG)))
    e("s_and_b32 %s, %s, 1\ns_mul_i32 %s, %s, 10240\nv_add_u32 %s, %s, %s" % (s(t), s(S_WAVE), s(t), s(t), v(TV_OW), s(t), v(V_L16)))
    e("s_mul_i32 %s, %s, 5120\nv_add_u32 %s, %s, %s" % (s(t), s(S_WAVE), v(TV_OR), s(t), v(V_L16)))
    e("s_lshr_b32 %s, %s, 1\ns_lshl1_add_u32 %s, %s, %s\ns_mul_i32 %s, %s, %d" % (s(t), s(S_WAVE), s(t), s(R), s(t), s(t), s(t), NSLAB * 4096))
    e("s_and_b32 %s, %s, 1\ns_lshl_b32 %s, %s, 11\ns_add_u32 %s, %s, %s" % (s(t + 1), s(S_WAVE), s(t + 1), s(t + 1), s(t), s(t), s(t + 1)))
    srd(e, T_SA, ptr(11), s(t), NSLAB * 4096 - 2048)
    e("s_mul_i32 %s, %s, 5120" % (s(T_M0W), s(S_WAVE)))
    e("s_and_b32 %s, %s, 1\ns_lshl1_add_u32 %s, %s, %s\ns_mul_i32 %s, %s, %d" % (s(t), s(S_WAVE), s(t), s(Cc), s(t), s(t), s(t), NSLAB))
    e("s_lshr_b32 %s, %s, 1\ns_add_u32 %s, %s, %s\ns_mul_i32 %s, %s, 5120\ns_add_u32 %s, %s, %d" % (s(t + 1), s(S_WAVE), s(t), s(t), s(t + 1), s(t), s(t), s(t), s(t), WF_OFF))
    return join_scalar(e.L)

def gen_tail_setup2():
    e = E()
    srd(e, T_SW, ptr(11), s(S_TMP), (NSLAB - 1) * 5120)
    e("v_mov_b32 %s, %s\nv_add_u32 %s, 4096, %s" % (v(TV_WR), v(V_L16), v(TV_L4K), v(V_L16)))
    return join_scalar(e.L)

def t8_w(sg):
    base = (sg % RW8) * 20480; tag = "D%d" % sg
    m, i = (0, sg) if sg < NSD else (1, sg - NSD)
    W = lambda vo, off: ("m", "buffer_load_dwordx4 %s, %s, %s offen offset:%d%s lds ;#%s" % (v(vo), s(T_SW, 4), s(T_OW), off, LDFL, tag))
    return [("s", "s_add_u32 %s, %s, %d\ns_add_u32 m0, %s, %d" % (s(T_OW), s(T_BW[m]), i * 10240, s(T_M0W), base)),
            W(V_L16, 0), W(V_L16, 1024), W(V_L16, 2048), W(V_L16, 3072),
            ("s", "s_add_u32 m0, %s, %d" % (s(T_M0W), base + 4096)), W(TV_L4K, 0)]
def t8_af(sg, half, j): return a((32, 48, 192, 208, 224)[sg % RA8] + half * 8 + j * 4, 4)
def t8_a(sg):
    m, i = (0, sg) if sg < NSD else (1, sg - NSD)
    l = [("s", "s_add_u32 %s, %s, %d" % (s(T_OA), s(T_BA[m]), i * 8192))]
    for half in range(2):
        for j in range(2):
            l.append(("m", "buffer_load_dwordx4 %s, %s, %s, %s offen offset:%d%s ;#A%d" % (t8_af(sg, half, j), v(TV_L4K if half else V_L16), s(T_SA, 4), s(T_OA), j * 1024, LDFL, sg)))
    return l
def t8_wf(F):
    k = F % RF8
    return a(4 * k if k < 8 else 240 + 4 * (k - 8), 4)
def t8_read(F):
    sg, f = F // 20, F % 20
    return "ds_read_b128 %s, %s offset:%d" % (t8_wf(F), v(TV_WR), (sg % 3) * 20480 + f * 1024)
def t8_acc(m, n10, j):
    i = n10 * 2 + j
    if m == 0: return 128 + 4 * i
    return 64 + 4 * i if i < 16 else 208 + 4 * (i - 16)
NPRE_X = opt("nprex", 2)
NPRE_G = opt("npreg", 2)

def cond_lines(lines): return [("@" + x) if x.startswith("buffer") else x for x in lines]

def publish(m):
    out = []; n = 0
    for ch in range(2):
        out.append(("s", "s_add_u32 %s, %s, %d" % (s(S_TMP + 2), s(T_XO + ch), m * 12 * XPB)))
        for j in range(2):
            vals = [t8_acc(m, 5 * ch + nb, j) + k for nb in range(5) for k in range(4)]
            pb = (40, 240)[n % 2]; n += 1
            for gi in range(3):
                vs = vals[7 * gi:7 * gi + 7]
                if len(vs) < 7: vs = vs + [TV_TAG]
                for h in range(3): out.append(("v", "v_cvt_pk_bf16_f32 %s, %s, %s" % (v(pb + 4 * gi + h), v(vs[2 * h]), v(vs[2 * h + 1]))))
                out.append(("v", "v_cvt_pk_bf16_f32 %s, %s, %s" % (v(pb + 4 * gi + 3), v(vs[6]), v(TV_TAG))))
                off = j * 3072 + gi * 1024
                out.append(("m", "buffer_store_dwordx4 %s, %s, %s, %s offen offset:%d%s ;#xst%d" % (v(pb + 4 * gi, 4), v(TV_L4K if off >= 4096 else V_L16), s(T_XS, 4), s(S_TMP + 2), off % 4096, STFL, m)))
    return out
def own_write(m):
    l = []
    if L_OWN[m]: l.append("v_add_u32 %s, %d, %s" % (v(52), L_OWN[m], v(TV_OW)))
    ar = v(52) if L_OWN[m] else v(TV_OW)
    for ch in range(2):
        l.append("s_cmp_lg_u32 %s, 0x1000000\ns_cbranch_scc1 NOOWN%d%d" % (s(T_XO + ch), m, ch))
        for j in range(2):
            for nb in range(5): l.append("ds_write_b128 %s, %s offset:%d" % (ar, v(t8_acc(m, 5 * ch + nb, j), 4), (j * 5 + nb) * 1024))
        l.append("NOOWN%d%d:" % (m, ch))
    return l
XR = [128, 64]; OWR = [164, 184]
def xloads(m):
    l = []
    for i in range(3):
        l.append(("s", "s_add_u32 %s, %s, %d" % (s(S_TMP + 3), s(T_XO + 2), m * 12 * XPB + i * XPB)))
        for k in range(3): l.append(("m", "buffer_load_dwordx4 %s, %s, %s, %s offen offset:%d%s ;#xr%d" % (v(XR[m] + (i * 3 + k) * 4, 4), v(V_L16), s(T_XS, 4), s(S_TMP + 3), k * 1024, LDFL, m)))
    return l
def xcheck(e, m, first_wait):
    t = S_TMP
    e("s_mov_b32 %s, 0" % s(t + 7))
    e(first_wait)
    e("XCHK%d:" % m)
    for i in range(9): e("v_xor_b32 %s, %s, %s" % (v(20 + i), s(T_TAG), v(XR[m] + 4 * i + 3)))
    for i in range(4): e("v_or3_b32 %s, %s, %s, %s" % (v(20), v(20), v(21 + 2 * i), v(22 + 2 * i)))
    e("v_cmp_lt_u32 vcc, 0xffff, %s" % v(20))
    e("s_add_u32 %s, %s, 1" % (s(t + 7), s(t + 7)))
    e("s_cmp_eq_u64 vcc, 0\ns_cbranch_scc1 XOK%d" % m)
    e("s_cmp_ge_u32 %s, 0x40000\ns_cbranch_scc1 XOK%d" % (s(t + 7), m))
    e("s_sleep %d" % opt("xslp", 4))
    for x in cond_lines([x for _, x in xloads(m)]): e(x)
    e("s_waitcnt vmcnt(0)\ns_branch XCHK%d" % m)
    e("XOK%d:" % m)
def xsum(e, m, nb):
    o = OWR[m] + 4 * nb
    for i in range(3):
        for k in range(4):
            idx = nb * 4 + k; gi, pos = idx // 7, idx % 7
            src = XR[m] + (i * 3 + gi) * 4 + pos // 2
            e(("v_and_b32 %s, 0xffff0000, %s" if pos & 1 else "v_lshlrev_b32 %s, 16, %s") % (v(20 + 4 * i + k), v(src)))
    for h in range(2):
        e("v_pk_add_f32 %s, %s, %s" % (v(o + 2 * h, 2), v(o + 2 * h, 2), v(20 + 2 * h, 2)))
        e("v_pk_add_f32 %s, %s, %s" % (v(24 + 2 * h, 2), v(24 + 2 * h, 2), v(28 + 2 * h, 2)))
    for h in range(2): e("v_pk_add_f32 %s, %s, %s" % (v(o + 2 * h, 2), v(o + 2 * h, 2), v(24 + 2 * h, 2)))

def gen_t8(e):
    t = S_TMP
    mf = []
    NF = 20 * NSG
    for F in range(NF):
        sg, f = F // 20, F % 20
        m = 0 if sg < NSD else 1
        for j in range(2):
            d = v(t8_acc(m, f % 10, j), 4)
            mf.append("%s %s, %s, %s, %s" % (MF, d, t8_wf(F), t8_af(sg, f // 10, j), "0" if (sg in (0, NSD) and f < 10) else d))
    G = Gaps(mf)
    DA = opt("t8d", 8)
    SIGS = opt("sigs", 2); CKS = opt("cks", 6); PLS = CKS - opt("polld", 1)
    bars = {}
    cur = 0
    for F in range(DA, NF):
        sg, f = F // 20, F % 20
        lo = 2 * (F - DA)
        if f == 0:
            if sg % 3 == 0:
                d = 61440 if sg % 6 == 3 else -61440
                G.place("v", ("v_add_u32 %s, %d, %s" % (v(TV_WR), d, v(TV_WR))) if d > 0 else ("v_subrev_u32 %s, %d, %s" % (v(TV_WR), -d, v(TV_WR))), cur - 1, cur - 1)
            pre = E(); post = E()
            if sg == CKS:
                stamp(pre, 11)
                pre("s_cmp_lg_u32 %s, 0\ns_cbranch_scc1 SPUN_O\ns_waitcnt SINCE{p3}" % s(S_WAVE))
                poll_spin(pre, False, s(K_FLG), 3, "O")
                stamp(post, 12)
            if sg == SIGS:
                post("s_cmp_lg_u32 %s, 0\ns_cbranch_scc1 NOSIG3" % s(S_WAVE))
                set_flag(post, 3)
                post("s_cmp_lg_u32 s2, 0\ns_cbranch_scc1 NOSIG3")
                post("s_add_u32 %s, %s, 0x10001\ns_mov_b64 exec, 1\nv_mov_b32 %s, %s\ns_movk_i32 %s, 4096" % (s(t + 7), s(S_EPOCH), v(V_PL + 1), s(t + 7), s(t + 6)))
                post("buffer_store_dword %s, off, %s, %s sc1\ns_mov_b64 exec, -1" % (v(V_PL + 1), s(S_FL, 4), s(t + 6)))
                post("NOSIG3:")
                stamp(post, 10)
            if sg == PLS:
                post("s_cmp_lg_u32 %s, 0\ns_cbranch_scc1 NOPOLL3" % s(S_WAVE))
                post(poll_load(False, s(K_FLG)))
                post("NOPOLL3:\nMARK p3")
            b = G.place("b", "\n".join(cond_lines(pre.L) + ["s_barrier"] + cond_lines(post.L)), max(cur, lo - 1))
            lateA = NSD <= sg < NSD + opt("latea", 2)
            G.put(b, "s", "s_waitcnt WAITVM{D%d%s%s}" % (sg, "" if lateA else ",A%d" % sg, ",ost" if sg == SIGS else ""))
            if lateA: G.put(40 * sg - 1, "s", "s_waitcnt WAITVM{A%d}" % sg)
            bars[sg] = b; cur = b + 1
        cur = G.place("d", t8_read(F), max(cur, lo)) + 1
    qw = [(t8_w(sg), bars[sg - RW8 + 2] if sg >= RW8 else 0, sg) for sg in range(NPRE_G, NSG)]
    qa = [(t8_a(sg), max(40 * (sg - RA8 + 1) if sg >= RA8 else 0, bars[CKS] if sg >= NSD else 0), sg) for sg in range(NPRE_G, NSG)]
    DP = opt("dpub", 1)
    side = []
    if DP:
        side.append((publish(0), 40 * NSD + 8 + opt("dpd", 40)))
        side.append((xloads(0), 40 * opt("dld", 20)))
    side.append(([("m", "buffer_load_dwordx2 %s, %s, %s, 0 offen offset:%d ;#xx" % (v(KV_X + 2 * nb, 2), v(KV_XO), s(K_SX, 4), nb * 32)) for nb in range(5)], 40 * opt("xld", 19)))
    side.sort(key=lambda x: x[1])
    MG = opt("mg", 4)
    g = 0; lastm = -9
    while qw or qa:
        c = [x for x in (qw, qa) if x]
        c.sort(key=lambda x: (max(x[0][1], g), x[0][2]))
        seq, lo, _ = c[0].pop(0)
        g = max(g, lo)
        for k, x in seq:
            g = G.place(k, x, max(g + 1, lastm + MG if k == "m" else 0))
            if k == "m": lastm = g
    for seq, lo in side:
        g = lo; lastm = -99
        for k, x in seq:
            g = G.place(k, x, max(g + (0 if k == "v" else 1), lastm + (opt("smg", 24) if "xst" in x else 6) if k == "m" else 0))
            if k == "m": lastm = g
        if "xst0" in seq[-1][1]:
            G.va[g + 1].append("\n".join(own_write(0))); pubend = g + 1
    if DP: assert pubend < 40 * opt("dld", 20) - 40
    auto_lgkm(G, eager=opt("eag", 8))
    if VERBOSE: print("t8", G.pattern())
    for F in range(DA): e(t8_read(F))
    e("s_waitcnt lgkmcnt(0)")
    nm = 0
    for x in G.lines():
        if x.startswith("v_mfma"):
            if nm == 40 * NSD: stamp(e, 13)
            if STAMPS and opt("t8st", 0) and nm > 40 * NSD and (nm - 40 * NSD) % 160 == 0: stamp(e, 25 + (nm - 40 * NSD) // 160)
            nm += 1
        e(x)

def gen_tail(e0, head):
    e = E(); e.ext(head)
    T = V_T; t = S_TMP
    stamp(e, 8)
    Z = 240 + 8; C = 240 + 12
    for qb in range(4): e("v_rcp_f32 %s, %s" % (v(T + 2 * qb), v(V_L + 4 * qb)))
    e("v_max3_f32 %s, %s, %s, %s" % (v(T + 8), v(V_L), v(V_L + 4), v(V_L + 8)))
    e("v_max_f32 %s, %s, %s" % (v(T + 8), v(T + 8), v(V_L + 12)))
    for qb in range(4): e("v_mov_b32 %s, %s" % (v(T + 2 * qb + 1), v(T + 2 * qb)))
    e("v_mul_f32 %s, %s, %s" % (v(T + 8), f2u(2.0 ** 64), v(T + 8)))
    e("v_mul_f32 %s, 0, %s" % (v(T + 8), v(T + 8)))
    for qb in range(4): e("v_fma_f32 %s, %s, 0, %s" % (v(T + 8), v(V_L + 4 * qb), v(T + 8)))
    for r in range(4): e("v_mov_b32 %s, 0" % v(Z + r))
    e("s_lshl_b32 %s, %s, 14" % (s(t + 2), s(S_HEAD)))
    W = T + 12
    wq = [x for sg in range(NPRE_X, NPRE_G) for x in t8_w(sg) + t8_a(sg)]
    def wsome(n):
        while wq and n > 0:
            k, x = wq.pop(0); n -= (k == "m")
            e(x + ("\ns_nop 0" if k == "s" else ""))
    for i in range(16):
        sl, qb = i // 4, i % 4
        d0 = 208 + 4 * (i % 4)
        for b in range(2):
            for r in range(4): e("v_accvgpr_read_b32 %s, %s" % (v(W + 4 * b + r), a(A_O + ((2 * sl + b) * 4 + qb) * 4 + r)))
        for h in range(4): e("v_pk_mul_f32 %s, %s, %s" % (v(W + 2 * h, 2), v(W + 2 * h, 2), v(T + 2 * qb, 2)))
        for h in range(4): e("v_cvt_pk_bf16_f32 %s, %s, %s" % (v(d0 + h), v(W + 2 * h), v(W + 2 * h + 1)))
        e("buffer_store_dwordx4 %s, %s, %s, %s offen offset:%d%s ;#ost" % (v(d0, 4), v(V_L16), s(S_AF, 4), s(t + 2), 1024 * qb, STFL))
        e("s_add_u32 %s, %s, 4096" % (s(t + 2), s(t + 2)) if qb == 3 else "s_nop 0")
        e("%s %s, %s, %s, %s" % (MF, v(C, 4), v(Z, 4), v(d0, 4), "0" if i == 0 else v(C, 4)))
        wsome(opt("wpg", 1))
    wsome(99)
    e("s_nop 7")
    e("v_cmp_u_f32 vcc, %s, %s" % (v(T + 8), v(C)))
    e("s_cmp_lg_u64 vcc, 0\ns_cselect_b32 %s, 1, 0" % s(t))
    e("v_mov_b32 %s, %s" % (v(W), s(t)))
    e("s_lshl_b32 %s, %s, 2\ns_add_u32 %s, %s, %d" % (s(t + 1), s(S_WAVE), s(t + 1), s(t + 1), L_MISC))
    e("v_mov_b32 %s, %s\nv_mov_b32 %s, %d" % (v(W + 1), s(t + 1), v(W + 2), L_MISC))
    e("ds_write_b32 %s, %s" % (v(W + 1), v(W)))
    e("s_waitcnt WAITVM{D0,A0} lgkmcnt(0)\ns_barrier")
    e("ds_read_b128 %s, %s" % (v(W + 4, 4), v(W + 2)))
    t8 = E(); gen_t8(t8)
    i0 = t8.L.index("s_waitcnt lgkmcnt(0)")
    e.ext(t8.L[:i0 + 1])
    e("v_or3_b32 %s, %s, %s, %s\nv_or_b32 %s, %s, %s\ns_nop 0" % (v(W + 4), v(W + 4), v(W + 5), v(W + 6), v(W + 4), v(W + 4), v(W + 7)))
    e("v_readfirstlane_b32 %s, %s" % (s(t), v(W + 4)))
    e("s_nop 3\ns_andn2_b32 %s, %s, %s" % (s(t), s(t), s(S_RETRY)))
    e("s_cbranch_scc1 ATT_RETRY")
    stamp(e, 9)
    e.ext(t8.L[i0 + 1:])
    stamp(e, 14)
    DP = opt("dpub", 1)
    e("s_nop 6")
    for k, x in publish(1): e(x)
    if not DP:
        for k, x in publish(0): e(x)
        for x in own_write(0): e(x)
    stamp(e, 23)
    for x in own_write(1): e(x)
    e("v_add_u32 %s, %d, %s" % (v(52), L_OWN[0], v(TV_OR)))
    e("s_waitcnt lgkmcnt(0)")
    if not DP:
        for k, x in xloads(0): e(x)
    XE = opt("xe", 0)
    if XE:
        for k, x in xloads(1): e(x)
    e("s_barrier")
    for nb in range(5): e("ds_read_b128 %s, %s offset:%d" % (v(OWR[0] + 4 * nb, 4), v(52), nb * 1024))
    for nb in range(5): e("ds_read_b128 %s, %s offset:%d" % (v(OWR[1] + 4 * nb, 4), v(TV_OR), L_OWN[1] + nb * 1024))
    xcheck(e, 0, "s_waitcnt WAITVM{xr0,xx} lgkmcnt(0)")
    GG = 100; XU = 204
    for nb in range(5):
        if nb == opt("xat", 2) and not XE and not opt("probe", 1):
            for k, x in xloads(1): e(x)
        d = OWR[0] + 4 * nb; gq = GG + 4 * nb
        xsum(e, 0, nb)
        for k in range(4): e("v_mul_f32 %s, %s, %s" % (v(gq + k), f2u(-math.log2(math.e) * DSC), v(d + k)))
        for k in range(4): e("v_exp_f32 %s, %s" % (v(gq + k), v(gq + k)))
        for k in range(4): e("v_mul_f32 %s, %s, %s" % (v(d + k), f2u(DSC), v(d + k)))
        for k in range(4): e("v_add_f32 %s, 1.0, %s" % (v(gq + k), v(gq + k)))
        for k in range(4): e("v_rcp_f32 %s, %s" % (v(gq + k), v(gq + k)))
        for h in range(2):
            e("v_lshlrev_b32 %s, 16, %s" % (v(XU + 4 * nb + 2 * h), v(KV_X + 2 * nb + h)))
            e("v_and_b32 %s, 0xffff0000, %s" % (v(XU + 4 * nb + 2 * h + 1), v(KV_X + 2 * nb + h)))
        for k in range(4): e("v_mul_f32 %s, %s, %s" % (v(gq + k), v(gq + k), v(d + k)))
    stamp(e, 24)
    if opt("probe", 1):
        e("s_mov_b32 %s, 0\nv_mov_b32 %s, %d" % (s(t + 7), v(30), XPB))
        e("v_min_u32 %s, 2, %s\nv_mul_lo_u32 %s, %s, %s\ns_add_u32 %s, %s, %d" % (v(31), v(V_LANE), v(31), v(31), v(30), s(t + 3), s(T_XO + 2), 12 * XPB + 2048 + 1008 + 12))
        e("PROBE:")
        e("@buffer_load_dword %s, %s, %s, %s offen%s" % (v(30), v(31), s(T_XS, 4), s(t + 3), LDFL))
        e("s_waitcnt vmcnt(0)")
        e("v_xor_b32 %s, %s, %s\nv_cmp_lt_u32 vcc, 0xffff, %s" % (v(30), s(T_TAG), v(30), v(30)))
        e("s_add_u32 %s, %s, 1" % (s(t + 7), s(t + 7)))
        e("s_cmp_eq_u64 vcc, 0\ns_cbranch_scc1 PROBED")
        e("s_cmp_ge_u32 %s, 0x40000\ns_cbranch_scc1 PROBED" % s(t + 7))
        e("s_sleep %d\ns_branch PROBE" % opt("pslp", 2))
        e("PROBED:")
        for k, x in xloads(1): e(x)
    xcheck(e, 1, "s_waitcnt vmcnt(0)")
    stamp(e, 25)
    for nb in range(5):
        o = OWR[1] + 4 * nb; gq = GG + 4 * nb; xu = XU + 4 * nb
        xsum(e, 1, nb)
        for r in range(4): e("v_fma_f32 %s, %s, %s, %s" % (v(xu + r), v(o + r), v(gq + r), v(xu + r)))
        for h in range(2): e("v_cvt_pk_bf16_f32 %s, %s, %s" % (v(gq + h), v(xu + 2 * h), v(xu + 2 * h + 1)))
        e("buffer_store_dwordx2 %s, %s, %s, 0 offen offset:%d%s" % (v(gq, 2), v(KV_XO), s(K_SO, 4), nb * 32, opt("ofl", "_sc1").replace("_", " ")))
    e0.ext([x.lstrip("@") for x in resolve_vm(e.L)])
    e = e0
    stamp(e, 15)
    if STAMPS: e("s_waitcnt vmcnt(0)")
    stamp(e, 16)
    stamp_fin(e)

def gen_kv_addr(e):
    T = V_T + 12; L = V_LANE
    e("v_and_b32 %s, 15, %s\nv_lshrrev_b32 %s, 4, %s\nv_xor_b32 %s, %s, %s" % (v(T), v(L), v(T + 1), v(L), v(T + 1), v(T + 1), v(T)))
    e("v_lshlrev_b32 %s, 8, %s\nv_lshl_add_u32 %s, %s, 4, %s" % (v(T), v(T), v(T), v(T + 1), v(T)))
    for sl in range(4): e("v_xor_b32 %s, %d, %s" % (v(V_KA + sl), sl * 64, v(T)))
    e("v_lshrrev_b32 %s, 2, %s\nv_and_b32 %s, 7, %s\nv_lshlrev_b32 %s, 8, %s\nv_lshl_add_u32 %s, %s, 5, %s" % (v(T), v(L), v(T + 1), v(T), v(T), v(T), v(T), v(T + 1), v(T)))
    e("v_and_b32 %s, 3, %s\nv_lshl_add_u32 %s, %s, 3, %s\nv_add_u32 %s, %d, %s" % (v(T + 1), v(L), v(T), v(T + 1), v(T), v(T), L_V, v(T)))
    for db in range(8): e("v_xor_b32 %s, %d, %s" % (v(V_VA + db), db * 32, v(T)))

def gen_retry(e):
    e("ATT_RETRY:")
    e("s_waitcnt vmcnt(0)\ns_mov_b32 %s, 1" % s(S_RETRY))
    gen_kv_addr(e)
    for qb in range(4): e("v_mov_b32 %s, 0xff800000" % v(V_NEGM + 4 * qb))
    e("s_mov_b32 %s, 0" % s(S_KVOFF))
    e("RETRY_LOOP:")
    e("s_barrier")
    e("s_add_u32 m0, %s, %d\ns_nop 0" % (s(S_M0K), L_K))
    e(kv_dma("K", 0)); e(kv_dma("K", 1))
    e("s_waitcnt vmcnt(0)\ns_barrier")
    for kb in range(2):
        for sl in range(4): e(k_read(kb, sl, 0))
    e("s_waitcnt lgkmcnt(0)")
    e.ext(qk_mfmas(0, czero=True))
    e("s_nop 7")
    for qb in range(4):
        b = Sreg(0, qb, 0); m = v(V_NEGM + 4 * qb)
        for k in range(4): e("v_max3_f32 %s, %s, %s, %s" % (m, m, v(b + 2 * k), v(b + 2 * k + 1)))
    e("s_add_u32 %s, %s, 8192\ns_cmp_lt_u32 %s, %d\ns_cbranch_scc1 RETRY_LOOP" % (s(S_KVOFF), s(S_KVOFF), s(S_KVOFF), 64 * 8192))
    e("s_barrier")
    kv_preload(e)
    e("s_barrier")
    for kb in range(2):
        for sl in range(4): e(k_read(kb, sl, 0))
    e("v_mov_b32 %s, 0x3f803f80" % v(V_T))
    for r in range(4): e("v_accvgpr_write_b32 %s, %s" % (a(A_ONE + r), v(V_T)))
    for r in range(128): e("v_accvgpr_write_b32 %s, 0" % a(A_O + r))
    for r in range(16): e("v_mov_b32 %s, 0" % v(V_L + r))
    e("s_waitcnt lgkmcnt(0)")
    e.ext(qk_mfmas(0, czero=True))
    for kb in range(2):
        for sl in range(4): e(k_read(kb, sl, 8192))
    e("s_branch ATT_START")

def gen_common_setup(e):
    T = V_T + 12; L = V_LANE
    e("s_lshl2_add_u32 %s, %s, %s" % (s(S_TMP + 1), s(S_QT), s(S_WAVE)))
    e("s_mul_i32 %s, %s, %d" % (s(S_TMP), s(S_TMP + 1), NSLAB * 4096))
    srd(e, S_AF, ptr(11), s(S_TMP), NSLAB * 4096)
    e("s_mul_i32 %s, %s, %d\ns_add_u32 %s, %s, %d" % (s(S_TMP), s(S_TMP + 1), 20 * 4096, s(S_TMP), s(S_TMP), XF_OFF))
    srd(e, S_X, ptr(11), s(S_TMP), 20 * 4096)
    srd(e, S_WF, ptr(11), WF_OFF, WF_BYTES)
    e("s_cmp_lt_u32 s2, %d\ns_cselect_b32 %s, %s, 0" % (NSLAB, s(S_WF + 2), s(S_WF + 2)))
    srd(e, S_FL, ptr(11), FL_OFF, 8192)
    e("s_lshl_b32 %s, %s, 5\ns_add_u32 %s, %s, %s\ns_lshl_b32 %s, %s, 2" % (s(S_MYFL), s(S_QT), s(S_MYFL), s(S_MYFL), s(S_HEAD), s(S_MYFL), s(S_MYFL)))
    e("s_lshl_b32 %s, %s, 19" % (s(S_TMP), s(S_HEAD)))
    srd(e, S_K, ptr(1), s(S_TMP), 524288)
    srd(e, S_V, ptr(2), s(S_TMP), 524288 + 3 * 8192)
    e("s_sub_u32 %s, %s, %d\ns_subb_u32 %s, %s, 0" % (s(S_V), s(S_V), 3 * 8192, s(S_V + 1), s(S_V + 1)))
    e("v_bfe_u32 %s, %s, 2, 2\nv_lshrrev_b32 %s, 4, %s\nv_and_b32 %s, 3, %s" % (v(T), v(L), v(T + 1), v(L), v(T + 2), v(L)))
    e("v_lshlrev_b32 %s, 12, %s" % (v(T + 3), v(T + 1)))
    e("v_mul_u32_u24 %s, 320, %s\nv_add_u32 %s, %s, %s\nv_lshl_add_u32 %s, %s, 4, %s" % (v(T + 4), v(T), v(T + 4), v(T + 4), v(T + 3), v(T + 4), v(T + 2), v(T + 4)))
    for sl in range(4): e("v_xor_b32 %s, %d, %s" % (v(V_AQ + sl), sl * 64, v(T + 4)))
    e("v_lshl_add_u32 %s, %s, 7, %s\nv_lshl_add_u32 %s, %s, 3, %s" % (v(T + 4), v(T), v(T + 3), v(T + 4), v(T + 2), v(T + 4)))
    e("v_bfe_u32 %s, %s, 3, 2\nv_lshl_add_u32 %s, %s, 5, %s" % (v(T + 5), v(L), v(T + 4), v(T + 5), v(T + 4)))
    for u in range(4): e("v_xor_b32 %s, %d, %s" % (v(V_AG + u), u * 32, v(T + 4)))
    e("v_lshrrev_b32 %s, 4, %s\ns_lshl_b32 %s, %s, 3\nv_add_u32 %s, %s, %s\nv_and_b32 %s, 15, %s" % (v(T), v(L), s(S_TMP), s(S_WAVE), v(T), s(S_TMP), v(T), v(T + 1), v(L)))
    e("v_lshlrev_b32 %s, 8, %s" % (v(T + 2), v(T)))
    for i in range(2):
        e("v_add_u32 %s, %d, %s\nv_and_b32 %s, 15, %s\nv_xor_b32 %s, %s, %s\nv_lshl_add_u32 %s, %s, 4, %s" % (v(T + 3), 4 * i, v(T), v(T + 4), v(T + 3), v(T + 4), v(T + 4), v(T + 1), v(V_KD + i), v(T + 4), v(T + 2)))
        e("v_and_b32 %s, 7, %s\nv_lshlrev_b32 %s, 1, %s\nv_xor_b32 %s, %s, %s\nv_lshl_add_u32 %s, %s, 4, %s" % (v(T + 4), v(T + 3), v(T + 4), v(T + 4), v(T + 4), v(T + 4), v(T + 1), v(V_VD + i), v(T + 4), v(T + 2)))
    gen_kv_addr(e)
    e("v_lshrrev_b32 %s, 2, %s\nv_and_b32 %s, 7, %s\nv_mul_u32_u24 %s, 1280, %s\nv_and_b32 %s, 3, %s\nv_lshl_add_u32 %s, %s, 3, %s\nv_add_u32 %s, %d, %s" % (
        v(T), v(L), v(V_TRA + 1), v(T), v(T), v(T), v(T + 2), v(L), v(T), v(T + 2), v(T), v(V_TRA), L_TR, v(T)))
    e("s_mul_i32 %s, %s, 10" % (s(S_TRU), s(S_WAVE)))
    e("s_lshl_b32 %s, %s, 1\ns_mul_i32 %s, %s, %d\ns_add_u32 %s, %s, s2\ns_mul_i32 %s, %s, 5120" % (s(S_TRD), s(S_WAVE), s(S_TRD), s(S_TRD), NSLAB, s(S_TRD), s(S_TRD), s(S_TRD), s(S_TRD)))
    e("s_and_b32 %s, s2, 127\ns_mul_i32 %s, %s, 40960" % (s(S_TRS), s(S_TRS), s(S_TRS)))
    e("s_mul_i32 %s, %s, 10240\ns_add_u32 %s, %s, %s\ns_add_u32 %s, %s, %d" % (s(S_TRM), s(S_WAVE), s(S_TRS), s(S_TRS), s(S_TRM), s(S_TRM), s(S_TRM), L_TR))

def gen_w_setup(e):
    T = V_T + 12; L = V_LANE
    e("v_lshrrev_b32 %s, 4, %s\nv_lshlrev_b32 %s, 2, %s\nv_and_b32 %s, 15, %s\nv_xor_b32 %s, %s, %s" % (v(T), v(L), v(T + 1), v(T), v(T + 2), v(L), v(T + 1), v(T + 1), v(T + 2)))
    e("v_lshlrev_b32 %s, 13, %s\nv_lshl_add_u32 %s, %s, 4, %s" % (v(T), v(T), v(V_WD), v(T + 1), v(T)))
    e("v_add_u32 %s, %d, %s" % (v(V_WD + 1), 4 * 8192 - 1024, v(V_WD)))
    e("v_lshrrev_b32 %s, 3, %s\nv_bfe_u32 %s, %s, 4, 1\nv_lshlrev_b32 %s, 1, %s" % (v(T), v(L), v(T + 1), v(L), v(T + 1), v(T + 1)))
    e("s_and_b32 %s, %s, 1\ns_lshl_b32 %s, %s, 2\nv_or_b32 %s, %s, %s" % (s(S_TMP), s(S_WAVE), s(S_TMP), s(S_TMP), v(T + 1), s(S_TMP), v(T + 1)))
    e("v_and_b32 %s, 7, %s\nv_xor_b32 %s, %s, %s" % (v(T + 2), v(L), v(T + 1), v(T + 1), v(T + 2)))
    e("v_mul_u32_u24 %s, 3456, %s\nv_lshl_add_u32 %s, %s, 4, %s" % (v(T), v(T), v(V_WD + 2), v(T + 1), v(T)))
    e("s_lshl_b32 %s, %s, 8\ns_sub_u32 %s, %d, %s" % (s(S_TMP), s(S_HEAD), s(S_TMP + 1), 640 * 8192, s(S_TMP)))
    srd(e, S_WQ, ptr(3), s(S_TMP), s(S_TMP + 1))
    for (d, p, sh) in ((S_WG, 6, 2048), (S_WU, 7, 3072)):
        e("s_lshl_b32 %s, %s, 7\ns_sub_u32 %s, %d, %s" % (s(S_TMP), s(S_FS), s(S_TMP + 1), 640 * 3456 + sh, s(S_TMP)))
        e("s_cmp_lt_u32 %s, 27\ns_cselect_b32 %s, %s, 0" % (s(S_FS), s(S_TMP + 1), s(S_TMP + 1)))
        srd(e, d, ptr(p), s(S_TMP), s(S_TMP + 1))
        e("s_sub_u32 %s, %s, %d\ns_subb_u32 %s, %s, 0" % (s(d), s(d), sh, s(d + 1), s(d + 1)))

def gen_kernel(e, name):
    T = V_T; L = V_LANE
    e(".text\n.globl %s\n.p2align 8\n.type %s,@function\n%s:" % (name, name, name))
    e("s_cmp_ge_u32 s2, 256\ns_cbranch_scc1 K_END")
    e("s_load_dwordx8 %s, s[0:1], 0\ns_load_dwordx8 %s, s[0:1], 32\ns_load_dwordx8 %s, s[0:1], 64" % (s(S_PTR, 8), s(S_PTR + 8, 8), s(S_PTR + 16, 8)))
    e("v_and_b32 %s, 63, v0\nv_lshrrev_b32 %s, 6, v0\nv_lshlrev_b32 %s, 4, %s\nv_readfirstlane_b32 %s, %s" % (v(L), v(T), v(V_L16), v(L), s(S_WAVE), v(T)))
    e("s_and_b32 %s, s2, 7\ns_lshr_b32 %s, s2, 3\ns_and_b32 %s, %s, 3\ns_lshr_b32 %s, %s, 2" % (s(S_TMP), s(S_TMP + 1), s(S_HL), s(S_TMP + 1), s(S_QT), s(S_TMP + 1)))
    e("s_lshl_b32 %s, %s, 2\ns_add_u32 %s, %s, %s" % (s(S_HEAD), s(S_TMP), s(S_HEAD), s(S_HEAD), s(S_HL)))
    e("s_lshl_b32 %s, %s, 3\ns_add_u32 %s, %s, %s" % (s(S_FS), s(S_HL), s(S_FS), s(S_FS), s(S_TMP)))
    e("s_mov_b32 %s, 0" % s(S_RETRY))
    e("s_lshl_b32 %s, %s, 12\ns_lshl_b32 %s, %s, 11" % (s(S_M0W), s(S_WAVE), s(S_M0K), s(S_WAVE)))
    if STAMPS: e("v_mov_b32 v0, -1\nv_mov_b32 v19, -1")
    stamp(e, 0)
    if opt("cpf", 1):
        e("s_getpc_b64 %s\nCODE0:" % s(S_TMP + 4, 2))
        e("s_lshr_b32 %s, s2, 3\ns_lshl2_add_u32 %s, %s, %s\ns_mul_i32 %s, %s, 640" % (s(S_TMP), s(S_TMP), s(S_TMP), s(S_WAVE), s(S_TMP), s(S_TMP)))
        e("v_min_u32 %s, 4, %s\nv_lshlrev_b32 %s, 7, %s\nv_add_u32 %s, %s, %s\nv_min_u32 %s, CODE1-CODE0-4, %s" % (v(T + 12), v(L), v(T + 12), v(T + 12), v(T + 12), s(S_TMP), v(T + 12), v(T + 12), v(T + 12)))
        e("global_load_dword %s, %s, %s" % (v(V_PL), v(T + 12), s(S_TMP + 4, 2)))
    gen_ln_loads(e)
    e("s_add_u32 %s, %s, %d\ns_addc_u32 %s, %s, 0\ns_load_dword %s, %s, 0" % (s(S_TMP + 2), s(ptr(11)), FL_OFF + 4096, s(S_TMP + 3), s(ptr(11) + 1), s(S_EPOCH), s(S_TMP + 2, 2)))
    ny = 4 * NI
    gen_w_setup(e)
    e("s_lshl_b32 %s, %s, 16\ns_mul_i32 %s, %s, %d" % (s(S_WQOFF), s(S_WAVE), s(S_WGOFF), s(S_WAVE), 8 * 3456))
    for sl in range(NI): w_slab(e, sl, True)
    WT = opt("wt", 6)
    if WT:
        X = V_TC
        e("s_lshl2_add_u32 %s, %s, %s\ns_add_u32 %s, %s, %d" % (s(S_TMP), s(S_QT), s(S_WAVE), s(S_TMP), s(S_TMP), 32 * NI))
        e("v_lshrrev_b32 %s, 1, %s\nv_min_u32 %s, %d, %s\nv_lshlrev_b32 %s, 5, %s\nv_add_u32 %s, %s, %s" % (v(X), v(L), v(X), WT - 1, v(X), v(X), v(X), v(X), s(S_TMP), v(X)))
        e("v_and_b32 %s, 1, %s\nv_lshlrev_b32 %s, 7, %s\nv_lshl_add_u32 %s, %s, 13, %s\nv_mul_u32_u24 %s, 3456, %s" % (v(X + 1), v(L), v(X + 1), v(X + 1), v(X + 1), v(X), v(X + 1), v(X), v(X)))
        e("buffer_load_dword %s, %s, %s, 0 offen" % (v(V_PL + 1), v(X + 1), s(S_WQ, 4)))
        e("buffer_load_dword %s, %s, %s, 0 offen offset:2048" % (v(V_PL + 2), v(X), s(S_WG, 4)))
        e("buffer_load_dword %s, %s, %s, 0 offen offset:3072" % (v(V_DUMP), v(X), s(S_WU, 4)))
        ny += 3
    LATE = opt("late", 1)
    if not LATE: gen_common_setup(e)
    def tlbwarm():
        e("s_cmp_lt_u32 s2, 128\ns_cselect_b32 %s, %s, %s\ns_cselect_b32 %s, %s, %s" % (s(S_TMP + 4), s(ptr(4)), s(ptr(8)), s(S_TMP + 5), s(ptr(4) + 1), s(ptr(8) + 1)))
        e("s_cmp_lt_u32 s2, %d\ns_cselect_b32 %s, %s, 0\nv_mov_b32 %s, %s" % (NSLAB, s(S_TMP), s(S_TRS), v(V_TRA + 2), s(S_TMP)))
        e("global_load_dword %s, %s, %s" % (v(V_DUMP), v(V_TRA + 2), s(S_TMP + 4, 2)))
        e("buffer_load_dword %s, off, %s, 0" % (v(V_DUMP), s(S_K, 4)))
        e("s_movk_i32 %s, %d\nbuffer_load_dword %s, off, %s, %s" % (s(S_TMP), 3 * 8192, v(V_DUMP), s(S_V, 4), s(S_TMP)))
    TW = opt("tlbw", 0)
    if TW == 1:
        tlbwarm(); ny += 3
    stamp(e, 1)
    gen_ln_compute(e, ny)
    if LATE: gen_common_setup(e)
    e("s_mul_i32 %s, %s, 0x9e3779b1\ns_add_u32 %s, %s, 0x7f4a7c15" % (s(S_TAG), s(S_EPOCH), s(S_TAG), s(S_TAG)))
    e("v_and_b32 %s, 31, %s\nv_lshlrev_b32 %s, 2, %s\ns_lshl_b32 %s, %s, 7" % (v(V_PL + 3), v(L), v(V_PL + 3), v(V_PL + 3), s(S_XOFF), s(S_QT)))
    for i in range(10):
        t0, t1 = v(V_T + 12 + i), v(V_TRA + 3)
        e("v_add_u32 %s, %d, %s\nv_mul_u32_u24 %s, 820, %s\nv_lshrrev_b32 %s, 16, %s\nv_lshlrev_b32 %s, 1, %s\nv_xor_b32 %s, %s, %s\nv_lshlrev_b32 %s, 4, %s" % (
            t0, 64 * i, v(L), t1, t0, t1, t1, t1, t1, t0, t0, t1, t0, t0))
    for i in range(8): e("v_add_u32 %s, 65536, %s" % (v(V_AHI + i), v(V_AQ + i)))
    e("s_waitcnt vmcnt(0)\ns_barrier")
    stamp(e, 18)
    if TW == 2:
        e("s_cmp_lg_u32 %s, 1\ns_cbranch_scc1 NOTLBW" % s(S_WAVE))
        tlbwarm()
        e("NOTLBW:")
    e("s_cmp_lg_u32 %s, 0\ns_cbranch_scc1 SPUN_XN" % s(S_WAVE))
    set_flag(e, 1)
    e(poll_load(False, s(S_XOFF)))
    e("s_waitcnt vmcnt(0)")
    poll_spin(e, False, s(S_XOFF), 1, "XN")
    e("s_cmp_lt_u32 s2, 128")
    e("s_cselect_b32 %s, %s, %s\ns_cselect_b32 %s, %s, %s" % (s(S_T), s(ptr(4)), s(ptr(8)), s(S_T + 1), s(ptr(4) + 1), s(ptr(8) + 1)))
    e("s_mov_b32 %s, %d\ns_cselect_b32 %s, %d, %s\ns_mov_b32 %s, 0x20000" % (s(S_T + 2), 1728 * 1280, s(S_T + 2), 4096 * 1280, s(S_T + 2), s(S_T + 3)))
    e("s_barrier")
    stamp(e, 2)
    e("s_cmp_ge_u32 %s, 27\ns_cbranch_scc1 LIGHT" % s(S_FS))
    gen_proj(e, True, "H")
    e("PROJ_DONE:")
    head = gen_attention(e)
    gen_tail(e, head)
    e("K_END:\ns_endpgm")
    gen_events(e)
    gen_retry(e)
    e("LIGHT:")
    gen_proj(e, False, "L")
    e("s_branch PROJ_DONE")
    e("CODE1:")
    e(kd(name))

def main():
    e = E()
    hdr = open("cdna_kernels/%s.s.ref" % NAME).read().split("; Override launch")[0]
    e.L += hdr.strip().split("\n")
    e("; @launch grid=(256,1,1) block=(256,1,1) lds=%d" % LDS_BYTES)
    e('.amdgcn_target "amdgcn-amd-amdhsa--gfx950"')
    gen_kernel(e, NAME + "_kernel")
    t = re.sub(r" ;#\w*", "", e.text())
    errs = [x for x in asmcheck.check(t, [NAME + "_kernel"]) if x.count("_load_dword v%d," % V_DUMP) != 2 and poll_load(True) not in x]
    if errs:
        print("\n".join(errs[:40])); print(len(errs), "problems")
    out = [x for x in sys.argv[1:] if x.endswith(".s")]
    open(out[0] if out else "cdna_kernels/%s.s" % NAME, "w").write(t)

if __name__ == "__main__":
    main()
```

```python
import sys, math, os, struct, re
from sched import Gaps, auto_lgkm
import asmcheck

NAME = "recurrent_scan__mha_block_cached__glu_gated_reglu__prompt"
MF = "v_mfma_f32_16x16x32_bf16"
OPT = dict(x.split("=") for x in sys.argv[1:] if "=" in x)
def opt(k, d): return type(d)(OPT.get(k, d))
VERBOSE = "-v" in sys.argv
STAMPS = "--stamps" in sys.argv
STFL = opt("stfl", " sc1").replace("_", " ")
LDFL = opt("ldfl", " sc1").replace("_", " ")

NSLAB = 182
QSC = math.log2(math.e) / math.sqrt(128.0)
DSC = 1.0 / (QSC * QSC)
WF_OFF = 0x1800000
WF_BYTES = 8 * NSLAB * 5120
XF_OFF = 0x2000000
XP_OFF = 0x2800000
MAXST = 3
FL_OFF = 0x2400000

class E:
    def __init__(self): self.L = []
    def __call__(self, s):
        for x in s.split("\n"):
            x = x.strip()
            if x: self.L.append(x)
    def ext(self, l): self.L += l
    def text(self): return "\n".join(self.L) + "\n"

def v(a, n=1): return "v%d" % a if n == 1 else "v[%d:%d]" % (a, a + n - 1)
def a(a_, n=1): return "a%d" % a_ if n == 1 else "a[%d:%d]" % (a_, a_ + n - 1)
def s(a_, n=1): return "s%d" % a_ if n == 1 else "s[%d:%d]" % (a_, a_ + n - 1)
def f2u(x): return "0x%08x" % struct.unpack("<I", struct.pack("<f", x))[0]

def kd(name, vgpr=512, acc=256):
    return """.section .rodata,"a"
.p2align 6
.amdhsa_kernel %s
  .amdhsa_next_free_vgpr %d
  .amdhsa_next_free_sgpr 102
  .amdhsa_accum_offset %d
  .amdhsa_group_segment_fixed_size 0
  .amdhsa_kernarg_size 96
  .amdhsa_user_sgpr_count 2
  .amdhsa_user_sgpr_kernarg_segment_ptr 1
  .amdhsa_system_sgpr_workgroup_id_x 1
.end_amdhsa_kernel
""" % (name, vgpr, acc)

def stamp(e, i):
    if not STAMPS: return
    e("s_waitcnt lgkmcnt(0)\ns_memtime s[98:99]\ns_memrealtime s[100:101]\ns_waitcnt lgkmcnt(0)")
    e("v_writelane_b32 v0, s98, %d\nv_writelane_b32 v19, s100, %d" % (i, i))
def stamp_fin(e):
    if not STAMPS: return
    if opt("echo", ""):
        i, j = [int(x) for x in opt("echo", "").split(".")]
        e("s_nop 1\nv_readlane_b32 s96, v19, %d\nv_readlane_b32 s97, v19, %d\nv_readlane_b32 s98, v19, 16\ns_nop 3\ns_sub_u32 s96, s97, s96\ns_min_u32 s96, s96, 20000" % (i, j))
        e("ECHO:\ns_sleep 1\ns_memrealtime s[100:101]\ns_waitcnt lgkmcnt(0)\ns_sub_u32 s97, s100, s98\ns_cmp_lt_u32 s97, s96\ns_cbranch_scc1 ECHO")
        return
    if opt("dbgout", -1) >= 0:
        e("s_cmp_lg_u32 s2, %d\ns_cbranch_scc1 NODBG\ns_cmp_lg_u32 %s, 0\ns_cbranch_scc1 NODBG" % (opt("dbgout", -1), s(S_WAVE)))
        e("v_readlane_b32 s98, v19, 0\ns_nop 3\nv_subrev_u32 v18, s98, v19\nv_lshlrev_b32 v20, 2, v1\nv_subrev_u32 v20, 4, v20")
        e("s_mov_b32 s96, %s\ns_mov_b32 s97, %s\ns_mov_b32 s98, 64\ns_mov_b32 s99, 0x20000" % (s(ptr(10)), s(ptr(10) + 1)))
        e("buffer_store_dword v18, v20, s[96:99], 0 offen\ns_waitcnt vmcnt(0)\nNODBG:")
        return
    e("s_lshl_b32 s98, s2, 2\ns_add_u32 s98, s98, %s\ns_lshl_b32 s98, s98, 9\ns_add_u32 s98, s98, %d" % (s(S_WAVE), 0x4000000))
    e("s_add_u32 s96, %s, s98\ns_addc_u32 s97, %s, 0\ns_mov_b32 s98, 512\ns_mov_b32 s99, 0x20000" % (s(ptr(11)), s(ptr(11) + 1)))
    e("v_mov_b32 v18, v0\nv_lshlrev_b32 v20, 3, v1\nbuffer_store_dwordx2 v[18:19], v20, s[96:99], 0 offen\ns_waitcnt vmcnt(0)")

def srd(e, d, base, off_lo, nbytes):
    e("s_add_u32 %s, %s, %s" % (s(d), s(base), off_lo))
    e("s_addc_u32 %s, %s, 0" % (s(d + 1), s(base + 1)))
    e("s_mov_b32 %s, %s" % (s(d + 2), nbytes))
    e("s_mov_b32 %s, 0x20000" % s(d + 3))

def uncond(x): return False
def resolve_vm(lines):
    out = []; ops = []; waited = set(); lastm0 = None; done = 0; marks = {}
    for x in lines:
        mm = re.search(r"vmcnt\((\d+)\)", x)
        if mm and not x.startswith("@") and uncond(x): done = max(done, len(ops) - int(mm.group(1)))
        if x.startswith(("buffer_", "global_")) and len(ops) - done >= 58:
            out.append("s_waitcnt vmcnt(52)"); done = len(ops) - 52
        if x.startswith("s_add_u32 m0,"): lastm0 = x.split(",")[1].strip()
        if " lds" in x and ";#" in x:
            tg = x.split(";#")[1].strip()
            exp = s(S_M0W) if tg.startswith("w") else (s(S_TRM) if tg == "trs" else s(S_M0K))
            if tg.startswith("D"): exp = s(T_M0W)
            assert lastm0 == exp, "M0 collision at %s" % x
        if x.startswith("MARK"):
            marks[x.split()[1]] = len(ops); continue
        m = re.search(r"SINCE\{(\w+)\}", x)
        if m: x = x.replace(m.group(0), "vmcnt(%d)" % min(63, len(ops) - marks[m.group(1)]))
        m = re.search(r"WAITVM\{([^}]*)\}", x)
        if m:
            need = set(m.group(1).split(","))
            waited |= need
            idx = [i for i, t in enumerate(ops) if t in need]
            n = len(ops) - 1 - max(idx) if idx else 63
            done = max(done, len(ops) - min(n, 63))
            x = x.replace(m.group(0), "vmcnt(%d)" % min(n, 63))
        elif x.startswith(("buffer_", "global_")):
            t = x.split(";#")[1].strip() if ";#" in x else ""
            assert t not in waited, "op %s issued after its wait" % t
            ops.append(t)
        out.append(x)
    return out

S_FL = 4
S_X, S_WQ, S_WG, S_WU, S_K, S_V, S_AF, S_T, S_WF = 8, 12, 16, 20, 24, 28, 32, 36, 40
S_PTR = 44
S_WAVE, S_HEAD, S_QT, S_FS = 68, 69, 70, 71
S_XOFF, S_WQOFF, S_WGOFF, S_M0W = 72, 73, 74, 75
S_KVOFF, S_M0K, S_TOG, S_RETRY = 76, 77, 78, 79
S_TMP = 80
S_TRS, S_TRM, S_TRD, S_TRU = 88, 89, 90, 91
S_EPOCH, S_TAG, S_MYFL = 92, 93, 94
S_HL = 3
S_EVT = 85
EVTS = (32 + 9) * 8192
EVTL = (50 + 9) * 8192
EVT1 = (56 + 9) * 8192
EVTE = (62 + 9) * 8192
NWH = opt("nwh", 0)
S_LN = 84
def ptr(i): return S_PTR + 2 * i

L_K = 0
L_V = 65536
RW = 7
L_TR = 114688
L_MISC = 155648
LDS_BYTES = 163840

V_LANE = 1
V_L16 = 2
V_WD = 3
V_TRA = 6
V_AQ = 10
V_AG = 14
V_KA = 20
V_VA = 24
V_KD = 32
V_VD = 34
V_DUMP = 18
V_TC = 62
V_PL = 36
V_T = 40
V_ACCQ = 64
V_ACCG = 192
V_Q = 64
V_S = 128
V_P = 192
V_NEGM = 224
V_L = 240
A_ACCU = 0
XD = 7
A_X = 64
A_W = 176
A_TR = 208
A_ONE = 248
A_O = 64
A_KF = 208
A_VF = 0
V_AHI = 44

def qacc(blk, qb): return (V_S if blk & 1 else V_Q) + ((blk >> 1) * 4 + qb) * 4
def accreg(blk, qb):
    if blk < 8: return v(qacc(blk, qb), 4)
    if blk < 12: return v(V_ACCG + ((blk - 8) * 4 + qb) * 4, 4)
    return a(A_ACCU + ((blk - 12) * 4 + qb) * 4, 4)

def w_read(dst, blk, j, rel):
    if blk < 8:
        ar = V_AQ + (blk >> 1); off = rel + j * 1024 + (blk & 1) * 8
    else:
        ar = V_AG + ((blk - 8) & 3); off = rel + 2048 + (1024 if blk >= 12 else 0) + j * 512
    if rel >= 65536: ar += V_AHI - V_AQ; off -= 65536
    assert 0 <= off < 65536
    return "ds_read_b64_tr_b16 %s, %s offset:%d" % (a(dst + 2 * j, 2), v(ar), off)

def w_dma(heavy, tag):
    l = ["buffer_load_dwordx4 %s, %s, %s offen lds ;#%s" % (v(V_WD), s(S_WQ, 4), s(S_WQOFF), tag),
         "buffer_load_dwordx4 %s, %s, %s offen offset:1024 lds ;#%s" % (v(V_WD + 1), s(S_WQ, 4), s(S_WQOFF), tag)]
    if heavy:
        l += ["buffer_load_dwordx4 %s, %s, %s offen offset:2048 lds ;#%s" % (v(V_WD + 2), s(S_WG, 4), s(S_WGOFF), tag),
              "buffer_load_dwordx4 %s, %s, %s offen offset:3072 lds ;#%s" % (v(V_WD + 2), s(S_WU, 4), s(S_WGOFF), tag)]
    return l

def x_load(sl, qb):
    return "buffer_load_dwordx4 %s, %s, %s, %s offen offset:%d%s ;#x%d" % (a(A_X + ((sl % XD) * 4 + qb) * 4, 4), v(V_L16), s(S_X, 4), s(S_XOFF), qb * 1024, LDFL, sl)

def kv_dma(which, i, tag=""):
    vo = (V_KD if which == "K" else V_VD) + i
    return "buffer_load_dwordx4 %s, %s, %s offen offset:%d lds ;#%s" % (v(vo), s(S_K if which == "K" else S_V, 4), s(S_KVOFF), 1024 * i, tag)

def set_flag(e, stage):
    e("s_add_u32 %s, %s, %d\ns_mov_b64 exec, 1\nv_mov_b32 %s, %s" % (s(S_TMP + 7), s(S_TAG), stage, v(V_PL), s(S_TMP + 7)))
    e("buffer_store_dword %s, off, %s, %s sc1" % (v(V_PL), s(S_FL, 4), s(S_MYFL)))
    e("s_mov_b64 exec, -1")

def poll_load(allq, qoff=None):
    if allq: return "buffer_load_dwordx4 %s, %s, %s, 0 offen sc1" % (v(V_PL, 4), v(V_L16), s(S_FL, 4))
    return "buffer_load_dword %s, %s, %s, %s offen sc1" % (v(V_PL), v(V_PL + 3), s(S_FL, 4), qoff)

def poll_spin(e, allq, qoff, stage, tag):
    e("s_mov_b32 %s, 0\ns_add_u32 %s, %s, %d" % (s(S_TMP + 7), s(S_TMP + 6), s(S_TAG), stage))
    e("SPIN_%s:" % tag)
    n = 4 if allq else 1
    for i in range(n): e("v_subrev_u32 %s, %s, %s" % (v(V_PL + i), s(S_TMP + 6), v(V_PL + i)))
    if allq: e("v_max3_u32 %s, %s, %s, %s\nv_max_u32 %s, %s, %s" % (v(V_PL), v(V_PL), v(V_PL + 1), v(V_PL + 2), v(V_PL), v(V_PL), v(V_PL + 3)))
    e("v_cmp_lt_u32 vcc, %d, %s" % (MAXST - stage, v(V_PL)))
    e("s_add_u32 %s, %s, 1" % (s(S_TMP + 7), s(S_TMP + 7)))
    e("s_cmp_eq_u64 vcc, 0\ns_cbranch_scc1 SPUN_%s" % tag)
    e("s_cmp_ge_u32 %s, 0x40000\ns_cbranch_scc1 SPUN_%s" % (s(S_TMP + 7), tag))
    e("s_sleep %d" % opt("slp", 2))
    e(poll_load(allq, qoff))
    e("s_waitcnt vmcnt(0)\ns_branch SPIN_%s" % tag)
    e("SPUN_%s:" % tag)

def zero_acc(e, heavy=True):
    for r in range(V_ACCQ, 256): e("v_mov_b32 %s, 0" % v(r))
    for r in range(A_ACCU, A_ACCU + 64): e("v_accvgpr_write_b32 %s, 0" % a(r))

NI = opt("ni", 1)

def gen_ln_loads(e):
    T = V_T; L = V_LANE
    R = V_ACCQ
    e("v_bfe_u32 %s, %s, 1, 3\nv_lshrrev_b32 %s, 4, %s\nv_and_b32 %s, 1, %s" % (v(T), v(L), v(T + 1), v(L), v(T + 2), v(L)))
    e("v_mul_u32_u24 %s, 1280, %s\nv_lshl_add_u32 %s, %s, 4, %s\nv_lshl_add_u32 %s, %s, 3, %s" % (v(T + 3), v(T), v(T + 3), v(T + 1), v(T + 3), v(T + 3), v(T + 2), v(T + 3)))
    e("s_lshl_b32 %s, %s, 5\ns_add_u32 %s, %s, %s\ns_mul_i32 %s, %s, %d\ns_mul_i32 %s, %s, 320" % (s(S_TMP), s(S_QT), s(S_TMP), s(S_TMP), s(S_HEAD), s(S_TMP), s(S_TMP), 8 * 1280, s(S_TMP + 1), s(S_WAVE)))
    e("s_waitcnt lgkmcnt(0)")
    srd(e, S_T, ptr(0), s(S_TMP), 8 * 1280)
    for i in range(5): e("buffer_load_dwordx2 %s, %s, %s, %s offen offset:%d" % (v(R + 2 * i, 2), v(T + 3), s(S_T, 4), s(S_TMP + 1), 64 * i))

def gen_ln_compute(e, nyounger, mid=()):
    T = V_T; L = V_LANE
    R = V_ACCQ; U = R + 10
    e("v_and_b32 %s, 15, %s\nv_lshlrev_b32 %s, 3, %s\nv_lshl_add_u32 %s, %s, 8, %s" % (v(T + 3), v(L), v(T + 3), v(T + 3), v(T + 3), v(T + 1), v(T + 3)))
    e("s_lshr_b32 %s, %s, 3\ns_lshl2_add_u32 %s, %s, %s\ns_mul_i32 %s, %s, %d" % (s(S_TMP), s(S_HEAD), s(S_TMP), s(S_QT), s(S_TMP), s(S_TMP), s(S_TMP), 20 * 4096))
    e("s_bfe_u32 %s, %s, 0x20001\ns_lshl_b32 %s, %s, 10\ns_add_u32 %s, %s, %s" % (s(S_TMP + 1), s(S_HEAD), s(S_TMP + 1), s(S_TMP + 1), s(S_TMP), s(S_TMP), s(S_TMP + 1)))
    e("s_and_b32 %s, %s, 1\ns_lshl_b32 %s, %s, 7\ns_add_u32 %s, %s, %s\ns_add_u32 %s, %s, %d" % (s(S_TMP + 1), s(S_HEAD), s(S_TMP + 1), s(S_TMP + 1), s(S_TMP), s(S_TMP), s(S_TMP + 1), s(S_TMP), s(S_TMP), XF_OFF))
    srd(e, S_LN, ptr(11), s(S_TMP), 20 * 4096)
    e("s_mul_i32 %s, %s, %d" % (s(S_TMP), s(S_WAVE), 5 * 4096))
    e("v_lshlrev_b32 %s, 5, %s\nv_add_u32 %s, %d, %s\ns_lshl_b32 %s, %s, 3\nv_add_u32 %s, %s, %s" % (v(T + 4), v(T), v(T + 4), L_MISC, v(T + 4), s(S_TMP + 1), s(S_WAVE), v(T + 5), s(S_TMP + 1), v(T + 4)))
    A0 = T + 6; M = T + 8
    e("s_waitcnt vmcnt(%d)" % nyounger)
    stamp(e, 17)
    e.ext(list(mid))
    for d in range(10): e("v_lshlrev_b32 %s, 16, %s\nv_and_b32 %s, 0xffff0000, %s" % (v(U + 2 * d), v(R + d), v(U + 2 * d + 1), v(R + d)))
    e("v_pk_add_f32 %s, %s, %s\nv_pk_add_f32 %s, %s, %s" % (v(A0, 2), v(U, 2), v(U + 2, 2), v(M, 2), v(U + 4, 2), v(U + 6, 2)))
    for d in range(4, 10): e("v_pk_add_f32 %s, %s, %s" % (v((A0, M)[d & 1], 2), v((A0, M)[d & 1], 2), v(U + 2 * d, 2)))
    def reduce(dst):
        e("v_pk_add_f32 %s, %s, %s" % (v(A0, 2), v(A0, 2), v(M, 2) if dst == M else v(T + 10, 2)))
        e("v_add_f32 %s, %s, %s\ns_nop 1" % (v(A0), v(A0), v(A0 + 1)))
        e("v_add_f32_dpp %s, %s, %s quad_perm:[1,0,3,2] row_mask:0xf bank_mask:0xf" % (v(A0), v(A0), v(A0)))
        for sw in ("v_permlane32_swap_b32", "v_permlane16_swap_b32"):
            e("v_mov_b32 %s, %s\ns_nop 1\n%s %s, %s\nv_add_f32 %s, %s, %s" % (v(A0 + 1), v(A0), sw, v(A0), v(A0 + 1), v(A0), v(A0), v(A0 + 1)))
    reduce(M)
    e("v_mul_f32 %s, %s, %s\nv_mul_f32 %s, %s, %s" % (v(M), f2u(-1.0 / 160), v(A0), v(M + 1), f2u(-1.0 / 160), v(A0)))
    for d in range(10): e("v_pk_add_f32 %s, %s, %s" % (v(U + 2 * d, 2), v(U + 2 * d, 2), v(M, 2)))
    e("v_pk_mul_f32 %s, %s, %s\nv_pk_mul_f32 %s, %s, %s" % (v(A0, 2), v(U, 2), v(U, 2), v(T + 10, 2), v(U + 2, 2), v(U + 2, 2)))
    for d in range(2, 10): e("v_pk_fma_f32 %s, %s, %s, %s" % (v((A0, T + 10)[d & 1], 2), v(U + 2 * d, 2), v(U + 2 * d, 2), v((A0, T + 10)[d & 1], 2)))
    reduce(None)
    e("v_mov_b32 %s, %s" % (v(M + 1), v(A0)))
    e("ds_write_b64 %s, %s\ns_waitcnt lgkmcnt(0)\ns_barrier" % (v(T + 5), v(M, 2)))
    X = T + 12
    e("ds_read_b128 %s, %s\nds_read_b128 %s, %s offset:16\ns_waitcnt lgkmcnt(0)" % (v(X, 4), v(T + 4), v(X + 4, 4), v(T + 4)))
    e("v_pk_add_f32 %s, %s, %s\nv_pk_add_f32 %s, %s, %s\nv_pk_add_f32 %s, %s, %s" % (v(A0, 2), v(X, 2), v(X + 2, 2), v(T + 10, 2), v(X + 4, 2), v(X + 6, 2), v(A0, 2), v(A0, 2), v(T + 10, 2)))
    e("v_mul_f32 %s, 0.25, %s" % (v(A0), v(A0)) if False else "v_mul_f32 %s, %s, %s" % (v(A0), f2u(0.25), v(A0)))
    for k in range(4): e("v_sub_f32 %s, %s, %s" % (v(X + 2 * k), v(X + 2 * k), v(A0)))
    e("v_mul_f32 %s, %s, %s" % (v(X + 1), v(X), v(X)))
    for k in range(1, 4): e("v_fmac_f32 %s, %s, %s" % (v(X + 1), v(X + 2 * k), v(X + 2 * k)))
    e("v_fmac_f32 %s, %s, %s" % (v(A0 + 1), f2u(160.0), v(X + 1)))
    e("v_mov_b32 %s, %s\nv_fmac_f32 %s, %s, %s\nv_rsq_f32 %s, %s" % (v(X), f2u(1e-5 * DSC), v(X), f2u(DSC / 640), v(A0 + 1), v(X), v(X)))
    e("v_sub_f32 %s, %s, %s" % (v(M), v(A0), v(M)))
    e("v_mov_b32 %s, %s\nv_mul_f32 %s, %s, %s\nv_mul_f32 %s, %s, %s" % (v(X + 1), v(X), v(M + 1), v(M), v(X), v(M), v(M), v(X)))
    for i in range(5):
        for d in (2 * i, 2 * i + 1): e("v_pk_fma_f32 %s, %s, %s, %s" % (v(U + 2 * d, 2), v(U + 2 * d, 2), v(X, 2), v(M, 2)))
        for d in (2 * i, 2 * i + 1): e("v_cvt_pk_bf16_f32 %s, %s, %s" % (v(R + d), v(U + 2 * d), v(U + 2 * d + 1)))
        e("buffer_store_dwordx2 %s, %s, %s, %s offen%s" % (v(R + 2 * i, 2), v(T + 3), s(S_LN, 4), s(S_TMP), STFL))
        if i < 4: e("s_add_u32 %s, %s, 4096" % (s(S_TMP), s(S_TMP)))

def w_slab(e, sl, heavy):
    e("s_add_u32 m0, %s, %d\ns_nop 0" % (s(S_M0W), (sl % RW) * 16384))
    e.ext(w_dma(heavy, "w%d" % sl))
    e("s_add_u32 %s, %s, %d\ns_add_u32 %s, %s, %d" % (s(S_WQOFF), s(S_WQOFF), 32 * 8192, s(S_WGOFF), s(S_WGOFF), 32 * 3456))

def gen_proj(e0, heavy, tag):
    e = E()
    T = V_T; L = V_LANE
    NS = opt("ns", 4) if heavy else 0
    GU = [b for fb in range(4) for b in (12 + fb, 8 + fb)]
    PC0 = opt("pc0", 16) if heavy else 20
    def grp(lo, hi):
        out = []; sl = lo
        while sl < hi:
            if sl >= PC0 and sl + 1 < hi: out.append((sl, sl + 1)); sl += 2
            else: out.append((sl,)); sl += 1
        return out
    units = []
    for ss in grp(0, 20 - NS): units.append((ss, list(range(8)) + (GU if heavy else [])))
    for part in ((GU[:4], GU[4:]) if opt("split", 1) else (GU,)):
        for ss in grp(20 - NS, 20): units.append((ss, part))
    for ss in grp(20 - NS, 20): units.append((ss, list(range(8))))
    order = []; mf = []; firstuse = []
    for ss, bl in units:
        for b in bl:
            F0 = len(order)
            for sl in ss: order.append((sl, b)); firstuse.append(4 * F0)
            for qb in range(4):
                idx = list(range(len(ss)))
                if qb & 1: idx.reverse()
                for i in idx:
                    sl = ss[i]
                    c = "0" if (0 in ss and i == idx[0]) else accreg(b, qb)
                    mf.append("%s %s, %s, %s, %s" % (MF, accreg(b, qb), a(A_W + 4 * ((F0 + i) % 8), 4), a(A_X + ((sl % XD) * 4 + qb) * 4, 4), c))
    NF = len(order)
    NP = len(mf)
    for sl in range(4):
        for kb in range(2):
            for qb in range(4):
                d = v(Sreg(0, qb, kb), 4)
                mf.append("%s %s, %s, %s, %s" % (MF, d, a(A_KF + (kb * 4 + sl) * 4, 4), v(V_Q + (sl * 4 + qb) * 4, 4), d if sl else "0"))
    G = Gaps(mf)
    ustart = []; n = 0
    for ss, bl in units: ustart.append(n); n += len(bl) * len(ss)
    lastF = {}; lastblk = {}; firstF = {}
    for u, (ss, bl) in enumerate(units):
        for k, sl in enumerate(ss):
            lastF[sl] = ustart[u] + len(bl) * len(ss) - 1
            firstF.setdefault(sl, ustart[u] + k * len(bl))
        for i, b in enumerate(bl): lastblk[b] = ustart[u] + (i + 1) * len(ss) - 1
    G1 = lambda sl: 4 * firstF[sl]
    DA = opt("pda", 6)
    rd = lambda F, j: w_read(A_W + 4 * (F % 8), order[F][1], j, (order[F][0] % RW) * 16384)
    pre_reads = [rd(F, j) for F in range(DA) for j in range(2)]
    TRW = opt("trw", 15) if heavy else 14
    bars = {}; cur = 0; seen = set(units[0][0])
    def barrier(u, lo, need):
        bb = G.place("b", "s_barrier", lo)
        G.put(bb, "s", "s_waitcnt WAITVM{%s}" % ",".join(need))
        bars[u] = bb
        return bb + 1
    for F in range(DA, NF):
        lo = 4 * (F - DA)
        if F in ustart:
            u = ustart.index(F)
            need = [k + str(sl) for sl in units[u][0] if sl not in seen for k in "xw"]
            seen |= set(units[u][0])
            if need or units[u][1][0] == 0: cur = barrier(u, max(cur, lo - 1), need or ["none"])
        for j in range(2): cur = G.place("d", rd(F, j), max(cur, lo + 2 * j), firstuse[F] - 6) + 1
    NU = len(units)
    cur = barrier(NU, cur + 1, ["K0", "K1"])
    kord = [(kb, sl) for sl in range(4) for kb in range(2)]
    for kb, sl in kord: cur = G.place("d", k_read(kb, sl, 0), cur) + 1
    barrier(NU + 1, max(cur + 5, NP), ["none"])
    kpost = []
    for i, (kb, sl) in enumerate(kord):
        lo = NP + 4 * i + 3
        try: cur = G.place("d", k_read(kb, sl, 8192), max(cur, lo)) + 1
        except RuntimeError: kpost.append(k_read(kb, sl, 8192))
    freeg = lambda sl: min(x for x in bars.values() if x >= 4 * lastF[sl])
    def wseq(sl):
        return [("s", "s_add_u32 m0, %s, %d" % (s(S_M0W), (sl % RW) * 16384))] + [("m", x) for x in w_dma(heavy, "w%d" % sl)] + \
               [("s", "s_add_u32 %s, %s, %d\ns_add_u32 %s, %s, %d" % (s(S_WQOFF), s(S_WQOFF), 32 * 8192, s(S_WGOFF), s(S_WGOFF), 32 * 3456))]
    def xseq(sl): return [("m", x_load(sl, qb)) for qb in range(4)] + [("s", "s_add_u32 %s, %s, 4096" % (s(S_XOFF), s(S_XOFF)))]
    def kvseq(which, i):
        return [("s", "s_add_u32 m0, %s, %d\ns_mov_b32 %s, %d" % (s(S_M0K), (L_K if which == "K" else L_V) + i * 8192, s(S_KVOFF), (i + (3 if which == "V" else 0)) * 8192))] + \
               [("m", kv_dma(which, k, "%s%d" % (which, i))) for k in range(2)]
    NX0 = opt("nx0", 2)
    e("s_mov_b32 %s, 0" % s(S_XOFF))
    q = []
    for sl in range(20):
        for kind in "wx":
            if kind == "w" and sl < NI: continue
            seq = wseq(sl) if kind == "w" else xseq(sl)
            if sl < NX0:
                for k, x in seq: e(x + ("\ns_nop 0" if " m0," in x else ""))
            else:
                lo = 0 if sl < 7 else (freeg(sl - RW) if kind == "w" else 4 * lastF[sl - XD] + 3)
                q.append((lo, seq))
    late = {13: [("V", 4)], 14: [("K", 0), ("K", 1)], 15: [("K", 2), ("K", 3)], 16: [("K", 4), ("K", 5)], 17: [("K", 6), ("K", 7)],
            18: [("V", 0), ("V", 1)], 19: [("V", 2), ("V", 3)]}
    side = []
    for sl in range(13, 20):
        for which, i in late[sl]: side.append((freeg(sl), kvseq(which, i)))
    WT = opt("wt", 6)
    if WT:
        for k, sl in enumerate([int(x) for x in opt("wts", "0.4.8").split(".")], 1):
            seq = [("s", "s_mov_b32 %s, %d" % (s(S_TMP), k * WT * 32 * 8192)), ("m", "buffer_load_dword %s, %s, %s, %s offen" % (v(V_DUMP), v(V_TC + 1), s(S_WQ, 4), s(S_TMP)))]
            if heavy:
                seq += [("s", "s_mov_b32 %s, %d" % (s(S_TMP), k * WT * 32 * 3456)),
                        ("m", "buffer_load_dword %s, %s, %s, %s offen offset:2048" % (v(V_DUMP), v(V_TC), s(S_WG, 4), s(S_TMP))),
                        ("m", "buffer_load_dword %s, %s, %s, %s offen offset:3072" % (v(V_DUMP), v(V_TC), s(S_WU, 4), s(S_TMP)))]
            side.append((G1(sl) + opt("wtg", 30), seq))
    t0 = v(V_TRA + 3)
    if opt("kvt", 14): side.append((G1(opt("kvt", 14)), [("v", "v_min_u32 %s, 15, %s" % (t0, v(L))), ("v", "v_lshlrev_b32 %s, 7, %s" % (t0, t0)),
               ("s", "s_lshl2_add_u32 %s, %s, %s\ns_lshl_b32 %s, %s, 11" % (s(S_TMP), s(S_QT), s(S_WAVE), s(S_TMP), s(S_TMP))),
               ("m", "buffer_load_dword %s, %s, %s, %s offen" % (v(V_DUMP), t0, s(S_K, 4), s(S_TMP))),
               ("s", "s_add_u32 %s, %s, %d" % (s(S_TMP), s(S_TMP), 3 * 8192)),
               ("m", "buffer_load_dword %s, %s, %s, %s offen" % (v(V_DUMP), t0, s(S_V, 4), s(S_TMP)))]))
    side.sort(key=lambda t: t[0])
    MG = opt("pmg", 4 if heavy else 2)
    g = 0; lastm = -9; vpost = []
    trlast = 0; lastload = 0
    while q or side:
        if side and (not q or side[0][0] <= max(g, q[0][0])): lo, seq = side.pop(0)
        else: lo, seq = q.pop(0)
        g = max(g, lo)
        for k, x in seq:
            if not vpost:
                try:
                    g = G.place(k, x, max(g + 1, lastm + MG if k == "m" else 0))
                    if k == "m": lastm = g
                    if re.search(r";#[xw]\d|;#trs", x) or "v%d," % V_DUMP in x: lastload = g
                    continue
                except RuntimeError: pass
            vpost.append(x + ("\ns_nop 0" if " m0," in x else ""))
    auto_lgkm(G, eager=opt("peag", 8))
    g = lastload + 2
    for x in gen_tail_setup():
        g = G.place("v" if x.startswith("v_") else "s", x, g + 1)
    setup_end = g
    g = max(g, trlast)
    for x in gen_tail_setup2(): g = G.place("v" if x.startswith("v_") else "s", x, g + 1)
    HZ = 8
    post = []
    def lay(items):
        g = 0; out = []
        for lo, k, x, hi in items:
            if not out:
                try:
                    g = G.place(k, x, max(g + (0 if k == "v" else 1), lo), hi, force=(hi is not None)); continue
                except RuntimeError: pass
            assert hi is None
            out.append(x)
        return out
    its = []
    for sl in range(4):
        for qb in range(4):
            d0 = V_Q + (sl * 4 + qb) * 4
            lo = 4 * lastblk[2 * sl + 1] + (qb if PC0 >= 19 else 2 * qb - 3) + HZ
            hi = NP - 3 if sl < 2 else NP + 8 * sl - 3
            for b in range(2):
                g0 = qacc(2 * sl + b, qb)
                for h in range(2): its.append((min(lo, hi), "v", "v_cvt_pk_bf16_f32 %s, %s, %s" % (v(d0 + 2 * b + h), v(g0 + 2 * h), v(g0 + 2 * h + 1)), hi))
    assert not lay(its)
    its = []
    if heavy:
        U = T
        for fb in range(4):
            for qb in range(4):
                g0 = V_ACCG + (fb * 4 + qb) * 4
                lo = max(4 * lastblk[8 + fb] + (qb if PC0 >= 19 else 2 * qb - 3) + HZ, setup_end + 1)
                for r in range(4): its.append((lo, "v", "v_accvgpr_read_b32 %s, %s" % (v(U + r), a(A_ACCU + (fb * 4 + qb) * 4 + r)), None))
                for r in range(4): its.append((lo, "v", "v_max_f32 %s, 0, %s" % (v(g0 + r), v(g0 + r)), None))
                for r in range(4): its.append((lo, "v", "v_mul_f32 %s, %s, %s" % (v(g0 + r), v(g0 + r), v(U + r)), None))
                d0 = V_ACCG + ((fb & ~1) * 4 + qb) * 4 + 2 * (fb & 1)
                for h in range(2): its.append((lo, "v", "v_cvt_pk_bf16_f32 %s, %s, %s" % (v(d0 + h), v(g0 + 2 * h), v(g0 + 2 * h + 1)), None))
                if fb & 1:
                    if qb == 0: its.append((lo, "s", "s_lshl_b32 %s, %s, 13\ns_add_u32 %s, %s, %d" % (s(S_TMP + 6), s(S_FS), s(S_TMP + 6), s(S_TMP + 6), (128 + (fb >> 1)) * 4096), None))
                    its.append((lo, "m", "buffer_store_dwordx4 %s, %s, %s, %s offen offset:%d%s" % (v(d0 - 2, 4), v(V_L16), s(S_AF, 4), s(S_TMP + 6), 1024 * qb, STFL), None))
    post += lay(its)
    its = [(setup_end + 1, "v", "v_mov_b32 %s, 0x3f803f80" % v(V_TRA + 2), None)] + [(setup_end + 2, "v", "v_accvgpr_write_b32 %s, %s" % (a(A_ONE + r), v(V_TRA + 2)), None) for r in range(4)]
    zs = []
    for k in range(XD):
        sl = max(x for x in range(20) if x % XD == k)
        zs.append((4 * lastF[sl] + 4, range(A_X + 16 * k, A_X + 16 * k + 16)))
    for k in range(4):
        F = max(x for x in range(NF) if x % 8 == k)
        zs.append((4 * (F | 1) + 4, range(A_W + 4 * k, A_W + 4 * k + 4)))
    for lo, rr in sorted(zs, key=lambda t: t[0]):
        for r in rr: its.append((lo, "v", "v_accvgpr_write_b32 %s, 0" % a(r), None))
    post += lay(its)
    if VERBOSE: print("proj", tag, G.pattern(), "| post", len(post), len(vpost), len(kpost))
    e.ext(pre_reads)
    e("s_waitcnt WAITVM{x0} lgkmcnt(0)")
    stamp(e, 3)
    nm = 0
    for x in G.lines():
        if x.startswith("v_mfma"):
            if STAMPS and nm % (NP // 5) == 0 and 0 < nm < NP: stamp(e, 18 + nm // (NP // 5))
            if nm == NP: stamp(e, 4)
            nm += 1
        e(x)
    for x in kpost + vpost + post: e(x)
    e("s_mov_b32 %s, %d" % (s(S_KVOFF), 8 * 8192))
    e("s_nop 1")
    for r in range(16): e("v_mov_b32 %s, 0" % v(V_L + r))
    for qb in range(4): e("v_mov_b32 %s, 0xff800000" % v(V_NEGM + 4 * qb))
    e("s_waitcnt WAITVM{K2,K3}")
    e0.ext(resolve_vm(e.L))

def kv_preload(e):
    e("s_mov_b32 %s, 0" % s(S_KVOFF))
    for i in range(8):
        e("s_add_u32 m0, %s, %d\ns_nop 0" % (s(S_M0K), L_K + i * 8192))
        e(kv_dma("K", 0)); e(kv_dma("K", 1))
        if i >= 3:
            e("s_add_u32 m0, %s, %d\ns_nop 0" % (s(S_M0K), L_V + (i - 3) * 8192))
            e(kv_dma("V", 0)); e(kv_dma("V", 1))
        e("s_add_u32 %s, %s, 8192" % (s(S_KVOFF), s(S_KVOFF)))
    e("s_waitcnt vmcnt(0)")

def Sreg(buf, qb, kb): return V_S + buf * 32 + qb * 8 + kb * 4
def Preg(buf, qb): return V_P + buf * 16 + qb * 4

def qk_mfmas(buf, czero=False):
    out = []
    order = {"kqs": [(kb, qb, sl) for kb in range(2) for qb in range(4) for sl in range(4)],
             "ksq": [(kb, qb, sl) for kb in range(2) for sl in range(4) for qb in range(4)],
             "snake": [(kb, qb, sl) for kb in range(2) for qb in range(4) for sl in range(4)]}[opt("qko", "snake")]
    for kb, qb, sl0 in order:
                sl = sl0
                d = v(Sreg(buf, qb, kb), 4)
                if opt("qko", "snake") == "snake":
                    first = sl0 == 0
                    sl = sl0 if qb % 2 == 0 else 3 - sl0
                    c = ("0" if czero else v(V_NEGM + 4 * qb, 4)) if first else d
                    out.append("%s %s, %s, %s, %s" % (MF, d, a(A_KF + (kb * 4 + sl) * 4, 4), v(V_Q + (sl * 4 + qb) * 4, 4), c))
                    continue
                c = d if sl else ("0" if czero else v(V_NEGM + 4 * qb, 4))
                out.append("%s %s, %s, %s, %s" % (MF, d, a(A_KF + (kb * 4 + sl) * 4, 4), v(V_Q + (sl * 4 + qb) * 4, 4), c))
    return out

def pv_mfmas(buf, tailmode=False):
    out = []
    for qb in range(4):
        out.append("%s %s, %s, %s, %s" % (MF, v(V_L + 4 * qb, 4), a(A_ONE, 4), v(Preg(buf, qb), 4), v(V_L + 4 * qb, 4)))
    pvo = opt("pvo", "qd2s")
    order = {"dq": [(db, qb) for db in range(8) for qb in range(4)],
             "snake": [(db, qb if db % 2 == 0 else 3 - qb) for db in range(8) for qb in range(4)],
             "qd2s": [(2 * h + (d if (i & 1) == 0 else 1 - d), i if h % 2 == 0 else 3 - i) for h in range(4) for i in range(4) for d in range(2)],
             "qd2": [(2 * h + d, qb) for h in range(4) for qb in range(4) for d in range(2)],
             "qd4": [(4 * h + d, qb) for h in range(2) for qb in range(4) for d in range(4)]}[pvo if not tailmode else "dq"]
    for db, qb in order:
            o = a(A_O + (db * 4 + qb) * 4, 4)
            out.append("%s %s, %s, %s, %s" % (MF, o, a(A_VF + db * 4, 4), v(Preg(buf, qb), 4), o))
    return out

def k_read(kb, sl, off): return "ds_read_b128 %s, %s offset:%d" % (a(A_KF + (kb * 4 + sl) * 4, 4), v(V_KA + sl), off + kb * 4096)
def v_read(db, j, off): return "ds_read_b64_tr_b16 %s, %s offset:%d" % (a(A_VF + db * 4 + 2 * j, 2), v(V_VA + db), off + j * 4096)

def softmax_ops(buf):
    ex = []; cv = []
    for qb in range(4):
        for kb in range(2):
            for r in range(4):
                x = v(Sreg(buf, qb, kb) + r)
                ex.append("v_exp_f32 %s, %s" % (x, x))
            for h in range(2):
                b = Sreg(buf, qb, kb) + 2 * h
                cv.append("v_cvt_pk_bf16_f32 %s, %s, %s" % (v(Preg(buf, qb) + kb * 2 + h), v(b), v(b + 1)))
    return ex, cv

def gen_attention(e):
    T = V_T
    e("ATT_START:")
    stamp(e, 5)
    e("s_barrier")
    z = ["s_nop 0"] * 4
    for qb in range(4):
        b = Sreg(0, qb, 0)
        e("v_max3_f32 %s, %s, %s, %s" % (v(T + qb), v(b), v(b + 1), v(b + 2)))
        e("v_max3_f32 %s, %s, %s, %s" % (v(T + qb), v(T + qb), v(b + 3), v(b + 4)))
        e("v_max3_f32 %s, %s, %s, %s" % (v(T + qb), v(T + qb), v(b + 5), v(b + 6)))
        e("v_max3_f32 %s, %s, %s, %s" % (v(T + qb), v(T + qb), v(b + 7), v(V_NEGM + 4 * qb)))
    for sw in ("v_permlane32_swap_b32", "v_permlane16_swap_b32"):
        for qb in range(4): e("v_mov_b32 %s, %s" % (v(T + 4 + qb), v(T + qb)))
        e.ext(z[:2]); z = z[2:]
        for qb in range(4): e("%s %s, %s" % (sw, v(T + qb), v(T + 4 + qb)))
        for qb in range(4): e("v_max_f32 %s, %s, %s" % (v(T + qb), v(T + qb), v(T + 4 + qb)))
    for qb in range(4):
        for r in range(4): e("v_sub_f32 %s, 0, %s" % (v(V_NEGM + 4 * qb + r), v(T + qb)))
    for qb in range(4):
        for r in range(8): e("v_sub_f32 %s, %s, %s" % (v(Sreg(0, qb, 0) + r), v(Sreg(0, qb, 0) + r), v(T + qb)))
    e.ext(z)
    e("s_waitcnt lgkmcnt(0)")

    def build(steps, loop, pend):
        mf = []; starts = []
        for sp in steps:
            starts.append(len(mf))
            if sp["qk"]: mf += qk_mfmas(1 - sp["buf"])
            if sp["pv"]: mf += pv_mfmas(1 - sp["buf"], not sp["qk"])
        G = Gaps(mf)
        for sp, st in zip(steps, starts):
            nq = 32 if sp["qk"] else 0
            npv = 36 if sp["pv"] else 0
            end = st + nq + npv - 1
            full = sp["qk"] and sp["pv"]
            cur = st; g = st; c2 = st
            if sp.get("bar") is not None:
                b = G.place("b", "s_barrier", st)
                G.put(b, "s", "s_waitcnt vmcnt(%d) lgkmcnt(0)" % sp["bar"])
                cur = b + 1
            if sp.get("bar63"):
                G.put(st + 5, "s", "s_waitcnt vmcnt(0)\ns_barrier")
            if full:
                for i in range(16):
                    lo = st + 4 * (i // 2) + (i % 2)
                    cur = G.place("d", v_read(i // 2, i % 2, sp["voff"]), max(cur, lo)) + 1
            if sp.get("vnext") is not None:
                c2 = st + nq + 4 + 3
                for i in range(16):
                    lo = min(st + nq + 4 + 4 * (i // 2) + 3, end)
                    c2 = G.place("d", v_read(i // 2, i % 2, sp["vnext"]), min(max(c2, lo), end), end, force=True) + 1
            if sp.get("koff") is not None:
                if full:
                    c2 = st + 32
                    for i in range(8):
                        c2 = G.place("d", k_read(i // 4, i % 4, sp["koff"]), max(c2, st + 32 + 3 * i)) + 1
                else:
                    c2 = st + 16
                    for i in range(4): c2 = G.place("d", k_read(0, i, sp["koff"]), c2) + 1
                    for i in range(4): G.put(end, "d", k_read(1, i, sp["koff"]))
            if sp.get("dma"):
                g = st + (33 if full else 2)
                for wi, which in enumerate(sp["dma"]):
                    g = G.place("s", "s_add_u32 m0, %s, %s" % (s(S_M0K), sp["m0" + which]), g)
                    for i in range(2): g = G.place("m", kv_dma(which, i), g + 2)
                    g += 1
                g = G.place("s", "s_add_u32 %s, %s, 8192" % (s(S_KVOFF), s(S_KVOFF)), g)
            marks = {"dma": g, "kread": c2 if sp.get("koff") is not None else st, "vread": cur}
            for (after, chain) in sp.get("misc", []):
                gg = marks[after] if isinstance(after, str) else st + after
                for (kind, text) in chain:
                    gg = G.place(kind, text, gg + (1 if kind == "s" else 0), end)
                marks["last"] = max(marks.get("last", 0), gg)
            if sp["sm"]:
                ex, cv = softmax_ops(sp["buf"])
                n = end - st + 1
                if full:
                    eg = []; g = st
                    for i, x in enumerate(ex):
                        tgt = st + (i * (n - 3)) // 32
                        g = G.place("e", x, max(g, tgt), end); eg.append(g)
                    g = st
                    for i, x in enumerate(cv): g = G.place("v", x, max(g, eg[2 * i + 1] + 1), end)
                else:
                    for i, x in enumerate(ex): G.put(st + (i * (n - 1)) // 32, "e", x)
                    for i, x in enumerate(cv): G.put(min(st + ((2 * i + 1) * (n - 1)) // 32 + 1, end), "v", x)
        pre, out = auto_lgkm(G, pend, loop=loop)
        return G, pre, out

    G, pre, pend = build([dict(buf=0, qk=True, pv=False, sm=True, koff=16384)], False, [])
    e.ext(G.lines())
    for sl in range(4): e("v_add_u32 %s, 16384, %s" % (v(V_KA + sl), v(V_KA + sl)))
    e("s_mov_b32 %s, 16384\ns_mov_b32 %s, 49152" % (s(S_TOG), s(S_TMP + 2)))
    e("s_mov_b32 %s, %d\ns_mov_b32 %s, %d" % (s(S_TMP + 3), 1 * 8192, s(S_TMP + 4), 6 * 8192 + L_V))
    e("s_waitcnt vmcnt(0) lgkmcnt(0)\ns_barrier")
    for which, m0 in (("K", L_K), ("V", L_V + 5 * 8192)):
        e("s_add_u32 m0, %s, %d\ns_nop 0" % (s(S_M0K), m0))
        e(kv_dma(which, 0)); e(kv_dma(which, 1))
    e("s_add_u32 %s, %s, 8192" % (s(S_KVOFF), s(S_KVOFF)))
    e("s_mov_b32 %s, %d\ns_cmp_eq_u32 %s, 0\ns_cselect_b32 %s, %d, %s" % (s(S_EVT), EVTE, s(S_WAVE), s(S_EVT), EVT1, s(S_EVT)))
    stamp(e, 6)
    e("s_cmp_lg_u32 %s, 0\ns_cbranch_scc1 NOSIG2" % s(S_RETRY))
    e("s_cmp_ge_u32 %s, 27\ns_cbranch_scc1 LT_INIT" % s(S_FS))
    e("s_cmp_lg_u32 %s, 0\ns_cbranch_scc1 NOSIG2" % s(S_WAVE))
    set_flag(e, 2)
    e("NOSIG2:")
    def adv(r, base):
        return [("s", "s_add_u32 %s, %s, 8192" % (s(r), s(r))), ("s", "s_and_b32 %s, %s, 0xffff" % (s(r), s(r)))] + \
               ([("s", "s_or_b32 %s, %s, %d" % (s(r), s(r), base))] if base else [])
    miscA = [("kread", [("v", "v_xor_b32 %s, %s, %s" % (v(V_KA + i), s(S_TMP + 2), v(V_KA + i))) for i in range(4)]),
             ("dma", adv(S_TMP + 3, 0) + adv(S_TMP + 4, L_V))]
    miscB = [(34, [("v", "v_xor_b32 %s, %s, %s" % (v(V_VA + i), s(S_TOG), v(V_VA + i))) for i in range(8)] +
                  [("s", "s_xor_b32 %s, %s, 32768" % (s(S_TOG), s(S_TOG))), ("s", "s_xor_b32 %s, %s, 32768" % (s(S_TMP + 2), s(S_TMP + 2)))]),
             ("dma", adv(S_TMP + 3, 0) + adv(S_TMP + 4, L_V)),
             ("last", [("s", "s_cmp_lt_u32 %s, %s" % (s(S_KVOFF), s(S_EVT)))])]
    G, pre, pend = build([dict(buf=1, qk=True, pv=True, sm=True, koff=8192, voff=0, dma="KV", m0K=s(S_TMP + 3), m0V=s(S_TMP + 4), misc=miscA),
                          dict(buf=0, qk=True, pv=True, sm=True, koff=0, voff=8192, bar=16, dma="KV", m0K=s(S_TMP + 3), m0V=s(S_TMP + 4), misc=miscB)], True, [])
    if VERBOSE: print("loop", G.pattern())
    e(".p2align 6\nATT_LOOP:")
    for x in G.lines(): e(x)
    e("s_cbranch_scc1 ATT_LOOP")
    e("s_cmp_lt_u32 %s, %d\ns_cbranch_scc1 ATT_EVT" % (s(S_KVOFF), EVTE))
    global LIGHT_LOOP
    LIGHT_LOOP = light_loop(G)
    stamp(e, 7)
    e("s_waitcnt lgkmcnt(0)")
    vr = [v_read(i // 2, i % 2, 0) for i in range(16)]
    e.ext(vr)
    h = E()
    G, pre, pend = build([dict(buf=1, qk=False, pv=True, sm=True, vnext=8192, bar63=True)], False, [asmcheck.I(x, 0, 0).W for x in vr])
    assert pre is None
    pq = [x for sg in range(NPRE_X) for x in t8_w(sg) + t8_a(sg)]
    assert NPRE_X <= 3
    g = 6
    while pq and g < 36:
        k, x = pq.pop(0)
        if k == "s": G.sc[g].append(x); g += 1
        else: G.va[g].append(x); g += opt("x63", 3)
    for x in G.lines(): h(x)
    G = Gaps(pv_mfmas(1, True))
    G.put(opt("b64", 8), "b", "s_barrier")
    G.put(opt("b64", 8), "s", "s_waitcnt lgkmcnt(0)")
    g = 0; post = []
    for k, x in pq:
        if not post:
            try:
                g = G.place(k, x, g) + (opt("x64", 3) if k == "m" else 1); continue
            except RuntimeError: pass
        post.append(x + ("\ns_nop 0" if k == "s" else ""))
    pre, pend = auto_lgkm(G, pend)
    h("s_nop 1")
    if pre is not None: h("s_waitcnt lgkmcnt(%d)" % pre)
    for x in G.lines(): h(x)
    h("v_and_b32 %s, 7, %s\nv_lshlrev_b32 %s, 2, %s" % (v(V_PL + 3), v(V_LANE), v(V_PL + 3), v(V_PL + 3)))
    for x in post: h(x)
    return h.L

LT_SS, LT_SD = 44, (48, 56)
LT_SO, LT_DO, LT_R = 91, 96, 97
LT_VO, LT_VB, LT_VR, LT_AD = 40, 42, 44, 32
L_TRB = 131072
def light_loop(G):
    import copy
    G = copy.deepcopy(G)
    n = G.n()
    b = [g for g in range(n) if any("s_barrier" in x for x in G.va[g])][0]
    G.sc[b] = [x.replace("vmcnt(16)", "vmcnt(%d)" % opt("ltv", 24)) for x in G.sc[b]]
    lastm = max(g for g in range(b) if any(x.startswith("buffer") for x in G.va[g]))
    def lay(seq, g, hi, step=1):
        for k, x in seq:
            if k == "s":
                while not G.fits(g, "s"): g += 1
                G.put(g, "s", x)
            else:
                win = opt("ltw", 4) if k != "m" else opt("ltm", 4)
                g = min(range(g, min(g + win, hi) + 1), key=lambda y: (G.used[y] + (3 if (k == "d" and G.ds[y] and opt("ltd", 0)) else 0), y))
                (G.ds if k == "d" else G.va)[g].append(x); G.used[g] += 1 if k != "m" else 2
            g += step
            assert g <= hi + 1, (x, g, hi)
        return g
    lay([("s", "s_add_u32 m0, %s, %s" % (s(LT_R), s(S_TMP)))] +
        [("m", "buffer_load_dwordx4 %s, %s, %s offen offset:%d lds" % (v(LT_VO + i), s(LT_SS, 4), s(LT_SO), 1024 * i)) for i in range(2)] +
        [("s", "s_add_u32 %s, %s, %d\ns_add_u32 %s, %s, 2048" % (s(LT_SO), s(LT_SO), 8 * 40960, s(LT_R), s(LT_R))),
         ("s", "s_cmp_eq_u32 %s, 6144\ns_cselect_b32 %s, 0, %s" % (s(LT_R), s(LT_R), s(LT_R)))] +
        [("v", "v_add_u32 %s, %s, %s" % (v(LT_VR + f), s(LT_R), v(LT_VB + f))) for f in range(2)], lastm + 1, b - 1)
    g = lay([("d", "ds_read_b64_tr_b16 %s, %s offset:%d" % (a(LT_AD + 4 * f + 2 * j, 2), v(LT_VR + f), 1024 * j)) for f in range(2) for j in range(2)], b + 1, b + 24, 2)
    cmpg = [g for g in range(n) if any(x.startswith("s_cmp_lt_u32 %s" % s(S_KVOFF)) for x in G.sc[g])][0]
    g = lay([("m", "buffer_store_dwordx4 %s, %s, %s, %s offen%s" % (a(LT_AD, 4), v(V_L16), s(LT_SD[0], 4), s(LT_DO), opt("ltfl", STFL).replace("_", " ")))], b + 38, cmpg - 1)
    g = lay([("m", "buffer_store_dwordx4 %s, %s, %s, %s offen%s" % (a(LT_AD + 4, 4), v(V_L16), s(LT_SD[1], 4), s(LT_DO), opt("ltfl", STFL).replace("_", " ")))], g + 8, cmpg - 1)
    G.sc[cmpg].insert(0, "s_add_u32 %s, %s, %d" % (s(LT_DO), s(LT_DO), 8 * 5120))
    if VERBOSE: print("lightloop", G.pattern())
    return G.lines()

def gen_events(e):
    L = V_LANE; t = S_TMP
    e("LT_INIT:")
    e("s_sub_u32 %s, %s, 27\ns_lshl_b32 %s, %s, 3\ns_add_u32 %s, %s, %s\ns_lshl2_add_u32 %s, %s, %s" % (s(t), s(S_FS), s(t), s(t), s(t), s(t), s(S_QT), s(t), s(t), s(S_WAVE)))
    e("s_mul_i32 %s, %s, 3277\ns_lshr_b32 %s, %s, 16\ns_mul_i32 %s, %s, 20\ns_sub_u32 %s, %s, %s" % (s(t + 1), s(t), s(t + 1), s(t + 1), s(t + 6), s(t + 1), s(t), s(t), s(t + 6)))
    e("s_mul_i32 %s, %s, 40960\ns_lshl_b32 %s, %s, 6\ns_add_u32 %s, %s, %s" % (s(LT_SO), s(t + 1), s(t + 6), s(t), s(LT_SO), s(LT_SO), s(t + 6)))
    e("s_sub_u32 %s, %s, 16\ns_mul_i32 %s, %s, 5120" % (s(LT_DO), s(t + 1), s(LT_DO), s(LT_DO)))
    srd(e, LT_SS, ptr(4), 0, 4096 * 1280)
    for f in range(2):
        e("s_lshl1_add_u32 %s, %s, %d\ns_mul_i32 %s, %s, 13108\ns_lshr_b32 %s, %s, 16\ns_mul_i32 %s, %s, 5\ns_sub_u32 %s, %s, %s\ns_lshl_b32 %s, %s, 10" % (
            s(t + 1), s(t), f, s(t + 6), s(t + 1), s(t + 6), s(t + 6), s(t + 7), s(t + 6), s(t + 1), s(t + 1), s(t + 7), s(t + 1), s(t + 1)))
        e("s_mul_i32 %s, %s, %d\ns_add_u32 %s, %s, %s\ns_add_u32 %s, %s, %d" % (s(t + 6), s(t + 6), NSLAB * 5120, s(t + 6), s(t + 6), s(t + 1), s(t + 6), s(t + 6), WF_OFF))
        srd(e, LT_SD[f], ptr(11), s(t + 6), (NSLAB - 1) * 5120 + 1024)
    e("s_mul_i32 %s, %s, 6144\ns_add_u32 %s, %s, %d\ns_mov_b32 %s, 0\ns_mov_b32 %s, %d" % (s(t), s(S_WAVE), s(t), s(t), L_TRB, s(LT_R), s(S_EVT), EVTS))
    e("v_lshrrev_b32 %s, 2, %s\nv_bfe_u32 %s, %s, 4, 1\nv_and_b32 %s, 3, %s" % (v(46), v(L), v(47), v(L), v(48), v(L)))
    e("v_lshlrev_b32 %s, 1, %s\nv_xor_b32 %s, %s, %s\nv_mul_u32_u24 %s, 1280, %s\nv_lshl_add_u32 %s, %s, 4, %s\nv_add_u32 %s, %d, %s" % (
        v(49), v(47), v(49), v(49), v(48), v(LT_VO), v(46), v(LT_VO), v(49), v(LT_VO), v(LT_VO + 1), 16 * 1280 - 1024, v(LT_VO)))
    e("v_lshlrev_b32 %s, 6, %s\nv_lshl_add_u32 %s, %s, 3, %s\nv_lshl_add_u32 %s, %s, 5, %s\nv_add_u32 %s, %s, %s\nv_xor_b32 %s, 32, %s" % (
        v(LT_VB), v(46), v(LT_VB), v(48), v(LT_VB), v(LT_VB), v(47), v(LT_VB), v(LT_VB), s(t), v(LT_VB), v(LT_VB + 1), v(LT_VB)))
    e(".p2align 6\nLT_LOOP:")
    for x in LIGHT_LOOP: e(x)
    e("s_cbranch_scc1 LT_LOOP")
    e("s_cmp_lg_u32 %s, %d\ns_cbranch_scc1 LT_END" % (s(S_KVOFF), EVTS))
    srd(e, LT_SS, ptr(8), 0, 1728 * 1280)
    e("s_sub_u32 %s, %s, %d\ns_mov_b32 %s, %d\ns_branch LT_LOOP" % (s(LT_SO), s(LT_SO), 128 * 40960, s(S_EVT), EVTL))
    e("LT_END:")
    e("s_mov_b32 %s, %d\ns_cmp_eq_u32 %s, 0\ns_cselect_b32 %s, %d, %s\ns_branch ATT_LOOP" % (s(S_EVT), EVTE, s(S_WAVE), s(S_EVT), EVT1, s(S_EVT)))
    e("ATT_EVT:")
    e("s_cmp_lg_u32 %s, %d\ns_cbranch_scc1 ATT_EVT3" % (s(S_KVOFF), EVT1))
    e("s_cmp_lt_u32 %s, 27\ns_cbranch_scc1 ATT_EVT2" % s(S_FS))
    set_flag(e, 2)
    e("ATT_EVT2:")
    e(poll_load(True))
    e("s_mov_b32 %s, %d\ns_branch ATT_LOOP" % (s(S_EVT), EVT1 + 4 * 8192))
    e("ATT_EVT3:")
    e("s_waitcnt vmcnt(16)")
    poll_spin(e, True, None, 2, "EARLY")
    e("s_mov_b32 %s, %d\ns_branch ATT_LOOP" % (s(S_EVT), EVTE))
assert all((g * 3277) >> 16 == g // 20 for g in range(160)) and all((c * 13108) >> 16 == c // 5 for c in range(40))

K_SX, K_SO = S_WU, S_X
T_SA, T_SW, T_XS = S_T, S_WF, S_WQ
T_XO = S_WG
T_TAG = S_WG + 3
T_M0W, T_OA, T_OW = 88, 89, 90
T_BA, T_BW = (S_XOFF, S_WQOFF), (S_WGOFF, S_M0W)
K_FLG = 95
KV_XO = 63; KV_X = 8
TV_WR, TV_L4K, TV_TAG, TV_OW, TV_OR = 60, 61, 62, 3, 4
XPB = 12288
NSD, NSG = 7, 23
RW8, RA8, RF8 = 6, 5, 10
L_OWN = [122880, 0]

def join_scalar(lines):
    out = []
    for x in lines:
        if x.startswith(("s_addc", "s_cselect")): out[-1] += "\n" + x
        else: out.append(x)
    return out

def gen_tail_setup():
    e = E()
    L = V_LANE; t = S_TMP
    R, Cc, KQ = t + 3, t + 4, t + 5
    e("s_bfe_u32 %s, s2, 0x10002\ns_lshl_b32 %s, %s, 3\ns_lshr_b32 %s, s2, 5\ns_add_u32 %s, %s, %s" % (s(R), s(R), s(R), s(t), s(R), s(R), s(t)))
    e("s_bfe_u32 %s, s2, 0x20003\ns_and_b32 %s, s2, 3" % (s(Cc), s(KQ)))
    e("s_lshr_b32 %s, %s, 1\ns_lshl1_add_u32 %s, %s, %s\ns_lshl2_add_u32 %s, %s, %s\ns_mul_i32 %s, %s, %d" % (s(t), s(KQ), s(t), s(R), s(t), s(t), s(t), s(S_WAVE), s(t), s(t), 16 * 1280))
    e("s_and_b32 %s, %s, 1\ns_lshl1_add_u32 %s, %s, %s\ns_mul_i32 %s, %s, 160\ns_add_u32 %s, %s, %s" % (s(t + 1), s(KQ), s(t + 1), s(Cc), s(t + 1), s(t + 1), s(t + 1), s(t), s(t), s(t + 1)))
    srd(e, K_SX, ptr(0), s(t), 15 * 1280 + 160)
    srd(e, K_SO, ptr(9), s(t), 15 * 1280 + 160)
    e("v_and_b32 %s, 15, %s\nv_mul_u32_u24 %s, 1280, %s\nv_lshrrev_b32 %s, 4, %s\nv_lshl_add_u32 %s, %s, 3, %s" % (v(KV_XO), v(L), v(KV_XO), v(KV_XO), v(V_T), v(L), v(KV_XO), v(V_T), v(KV_XO)))
    e("s_lshr_b32 %s, %s, 1\ns_lshl2_add_u32 %s, %s, %s\ns_lshl_b32 %s, %s, 5" % (s(K_FLG), s(R), s(K_FLG), s(K_FLG), s(KQ), s(K_FLG), s(K_FLG)))
    e("s_mul_i32 %s, %s, 7\ns_add_u32 %s, %s, 64\ns_lshl_b32 %s, %s, 13\ns_mul_i32 %s, %s, 10240" % (s(t), s(KQ), s(t), s(t), s(T_BA[0]), s(t), s(T_BW[0]), s(t)))
    e("s_lshl_b32 %s, %s, 17\ns_mul_i32 %s, %s, %d" % (s(T_BA[1]), s(KQ), s(T_BW[1]), s(KQ), 16 * 10240))
    e("s_lshl2_add_u32 %s, %s, %s\ns_mul_i32 %s, %s, %d\ns_add_u32 %s, %s, %d" % (s(t), s(R), s(Cc), s(t), s(t), 24 * XPB, s(t), s(t), XP_OFF))
    srd(e, T_XS, ptr(11), s(t), 24 * XPB)
    for ch in range(2):
        d = T_XO + ch
        e("s_and_b32 %s, %s, 2\ns_add_u32 %s, %s, %d\ns_xor_b32 %s, %s, %s\ns_mul_i32 %s, %s, 3\ns_add_u32 %s, %s, %s\ns_sub_u32 %s, %s, 1" % (
            s(t), s(S_WAVE), s(t), s(t), ch, s(t + 1), s(t), s(KQ), s(t), s(t), s(t), s(t), s(t + 1), s(t), s(t)))
        e("s_mul_i32 %s, %s, %d\ns_and_b32 %s, %s, 1\ns_mul_i32 %s, %s, 6144\ns_add_u32 %s, %s, %s" % (s(t), s(t), XPB, s(d), s(S_WAVE), s(d), s(d), s(d), s(d), s(t)))
        e("s_cmp_eq_u32 %s, 0\ns_cselect_b32 %s, 0x1000000, %s" % (s(t + 1), s(d), s(d)))
    e("s_mul_i32 %s, %s, %d\ns_mul_i32 %s, %s, 3072\ns_add_u32 %s, %s, %s" % (s(T_XO + 2), s(KQ), 3 * XPB, s(t), s(S_WAVE), s(T_XO + 2), s(T_XO + 2), s(t)))
    e("s_add_u32 %s, %s, 0x10000\ns_and_b32 %s, %s, 0x1fff0000\ns_or_b32 %s, %s, 0x40000000\nv_mov_b32 %s, %s" % (s(t), s(S_EPOCH), s(t), s(t), s(T_TAG), s(t), v(TV_TAG), s(T_TAG)))
    e("s_and_b32 %s, %s, 1\ns_mul_i32 %s, %s, 10240\nv_add_u32 %s, %s, %s" % (s(t), s(S_WAVE), s(t), s(t), v(TV_OW), s(t), v(V_L16)))
    e("s_mul_i32 %s, %s, 5120\nv_add_u32 %s, %s, %s" % (s(t), s(S_WAVE), v(TV_OR), s(t), v(V_L16)))
    e("s_lshr_b32 %s, %s, 1\ns_lshl1_add_u32 %s, %s, %s\ns_mul_i32 %s, %s, %d" % (s(t), s(S_WAVE), s(t), s(R), s(t), s(t), s(t), NSLAB * 4096))
    e("s_and_b32 %s, %s, 1\ns_lshl_b32 %s, %s, 11\ns_add_u32 %s, %s, %s" % (s(t + 1), s(S_WAVE), s(t + 1), s(t + 1), s(t), s(t), s(t + 1)))
    srd(e, T_SA, ptr(11), s(t), NSLAB * 4096 - 2048)
    e("s_mul_i32 %s, %s, 5120" % (s(T_M0W), s(S_WAVE)))
    e("s_and_b32 %s, %s, 1\ns_lshl1_add_u32 %s, %s, %s\ns_mul_i32 %s, %s, %d" % (s(t), s(S_WAVE), s(t), s(Cc), s(t), s(t), s(t), NSLAB))
    e("s_lshr_b32 %s, %s, 1\ns_add_u32 %s, %s, %s\ns_mul_i32 %s, %s, 5120\ns_add_u32 %s, %s, %d" % (s(t + 1), s(S_WAVE), s(t), s(t), s(t + 1), s(t), s(t), s(t), s(t), WF_OFF))
    return join_scalar(e.L)

def gen_tail_setup2():
    e = E()
    srd(e, T_SW, ptr(11), s(S_TMP), (NSLAB - 1) * 5120)
    e("v_mov_b32 %s, %s\nv_add_u32 %s, 4096, %s" % (v(TV_WR), v(V_L16), v(TV_L4K), v(V_L16)))
    return join_scalar(e.L)

def t8_w(sg):
    base = (sg % RW8) * 20480; tag = "D%d" % sg
    m, i = (0, sg) if sg < NSD else (1, sg - NSD)
    W = lambda vo, off: ("m", "buffer_load_dwordx4 %s, %s, %s offen offset:%d%s lds ;#%s" % (v(vo), s(T_SW, 4), s(T_OW), off, LDFL, tag))
    return [("s", "s_add_u32 %s, %s, %d\ns_add_u32 m0, %s, %d" % (s(T_OW), s(T_BW[m]), i * 10240, s(T_M0W), base)),
            W(V_L16, 0), W(V_L16, 1024), W(V_L16, 2048), W(V_L16, 3072),
            ("s", "s_add_u32 m0, %s, %d" % (s(T_M0W), base + 4096)), W(TV_L4K, 0)]
def t8_af(sg, half, j): return a((32, 48, 192, 208, 224)[sg % RA8] + half * 8 + j * 4, 4)
def t8_a(sg):
    m, i = (0, sg) if sg < NSD else (1, sg - NSD)
    l = [("s", "s_add_u32 %s, %s, %d" % (s(T_OA), s(T_BA[m]), i * 8192))]
    for half in range(2):
        for j in range(2):
            l.append(("m", "buffer_load_dwordx4 %s, %s, %s, %s offen offset:%d%s ;#A%d" % (t8_af(sg, half, j), v(TV_L4K if half else V_L16), s(T_SA, 4), s(T_OA), j * 1024, LDFL, sg)))
    return l
def t8_wf(F):
    k = F % RF8
    return a(4 * k if k < 8 else 240 + 4 * (k - 8), 4)
def t8_read(F):
    sg, f = F // 20, F % 20
    if opt("t8c", 1): f = (f & 1) * 10 + (f >> 1)
    return "ds_read_b128 %s, %s offset:%d" % (t8_wf(F), v(TV_WR), (sg % 3) * 20480 + f * 1024)
def t8_acc(m, n10, j):
    i = n10 * 2 + j
    if m == 0: return 128 + 4 * i
    return 64 + 4 * i if i < 16 else 208 + 4 * (i - 16)
NPRE_X = opt("nprex", 2)
NPRE_G = opt("npreg", 2)

def cond_lines(lines): return [("@" + x) if x.startswith("buffer") else x for x in lines]

def publish(m):
    out = []; n = 0
    for ch in range(2):
        out.append(("s", "s_add_u32 %s, %s, %d" % (s(S_TMP + 2), s(T_XO + ch), m * 12 * XPB)))
        for j in range(2):
            vals = [t8_acc(m, 5 * ch + nb, j) + k for nb in range(5) for k in range(4)]
            pb = (40, 240)[n % 2]; n += 1
            for gi in range(3):
                vs = vals[7 * gi:7 * gi + 7]
                if len(vs) < 7: vs = vs + [TV_TAG]
                for h in range(3): out.append(("v", "v_cvt_pk_bf16_f32 %s, %s, %s" % (v(pb + 4 * gi + h), v(vs[2 * h]), v(vs[2 * h + 1]))))
                out.append(("v", "v_cvt_pk_bf16_f32 %s, %s, %s" % (v(pb + 4 * gi + 3), v(vs[6]), v(TV_TAG))))
                off = j * 3072 + gi * 1024
                out.append(("m", "buffer_store_dwordx4 %s, %s, %s, %s offen offset:%d%s ;#xst%d" % (v(pb + 4 * gi, 4), v(TV_L4K if off >= 4096 else V_L16), s(T_XS, 4), s(S_TMP + 2), off % 4096, STFL, m)))
    return out
def own_write(m):
    l = []
    if L_OWN[m]: l.append("v_add_u32 %s, %d, %s" % (v(52), L_OWN[m], v(TV_OW)))
    ar = v(52) if L_OWN[m] else v(TV_OW)
    for ch in range(2):
        l.append("s_cmp_lg_u32 %s, 0x1000000\ns_cbranch_scc1 NOOWN%d%d" % (s(T_XO + ch), m, ch))
        for j in range(2):
            for nb in range(5): l.append("ds_write_b128 %s, %s offset:%d" % (ar, v(t8_acc(m, 5 * ch + nb, j), 4), (j * 5 + nb) * 1024))
        l.append("NOOWN%d%d:" % (m, ch))
    return l
XR = [128, 64]; OWR = [164, 184]
def xloads(m):
    l = []
    for i in range(3):
        l.append(("s", "s_add_u32 %s, %s, %d" % (s(S_TMP + 3), s(T_XO + 2), m * 12 * XPB + i * XPB)))
        for k in range(3): l.append(("m", "buffer_load_dwordx4 %s, %s, %s, %s offen offset:%d%s ;#xr%d" % (v(XR[m] + (i * 3 + k) * 4, 4), v(V_L16), s(T_XS, 4), s(S_TMP + 3), k * 1024, LDFL, m)))
    return l
def xcheck(e, m, first_wait):
    t = S_TMP
    e("s_mov_b32 %s, 0" % s(t + 7))
    e(first_wait)
    e("XCHK%d:" % m)
    for i in range(9): e("v_xor_b32 %s, %s, %s" % (v(20 + i), s(T_TAG), v(XR[m] + 4 * i + 3)))
    for i in range(4): e("v_or3_b32 %s, %s, %s, %s" % (v(20), v(20), v(21 + 2 * i), v(22 + 2 * i)))
    e("v_cmp_lt_u32 vcc, 0xffff, %s" % v(20))
    e("s_add_u32 %s, %s, 1" % (s(t + 7), s(t + 7)))
    e("s_cmp_eq_u64 vcc, 0\ns_cbranch_scc1 XOK%d" % m)
    e("s_cmp_ge_u32 %s, 0x40000\ns_cbranch_scc1 XOK%d" % (s(t + 7), m))
    e("s_sleep %d" % opt("xslp", 4))
    for x in cond_lines([x for _, x in xloads(m)]): e(x)
    e("s_waitcnt vmcnt(0)\ns_branch XCHK%d" % m)
    e("XOK%d:" % m)
def xsum(e, m, nb):
    o = OWR[m] + 4 * nb
    for i in range(3):
        for k in range(4):
            idx = nb * 4 + k; gi, pos = idx // 7, idx % 7
            src = XR[m] + (i * 3 + gi) * 4 + pos // 2
            e(("v_and_b32 %s, 0xffff0000, %s" if pos & 1 else "v_lshlrev_b32 %s, 16, %s") % (v(20 + 4 * i + k), v(src)))
    for h in range(2):
        e("v_pk_add_f32 %s, %s, %s" % (v(o + 2 * h, 2), v(o + 2 * h, 2), v(20 + 2 * h, 2)))
        e("v_pk_add_f32 %s, %s, %s" % (v(24 + 2 * h, 2), v(24 + 2 * h, 2), v(28 + 2 * h, 2)))
    for h in range(2): e("v_pk_add_f32 %s, %s, %s" % (v(o + 2 * h, 2), v(o + 2 * h, 2), v(24 + 2 * h, 2)))

def gen_t8(e):
    t = S_TMP
    mf = []
    NF = 20 * NSG
    for F in range(NF):
        sg, f = F // 20, F % 20
        m = 0 if sg < NSD else 1
        if opt("t8c", 1):
            j = f & 1; F0 = F - j
            d = v(t8_acc(m, f >> 1, j), 4)
            for i, half in enumerate((0, 1) if j == 0 else (1, 0)):
                mf.append("%s %s, %s, %s, %s" % (MF, d, t8_wf(F0 + half), t8_af(sg, half, j), "0" if (sg in (0, NSD) and i == 0) else d))
            continue
        for j in range(2):
            d = v(t8_acc(m, f % 10, j), 4)
            mf.append("%s %s, %s, %s, %s" % (MF, d, t8_wf(F), t8_af(sg, f // 10, j), "0" if (sg in (0, NSD) and f < 10) else d))
    G = Gaps(mf)
    DA = opt("t8d", 8)
    SIGS = opt("sigs", 2); CKS = opt("cks", 6); PLS = CKS - opt("polld", 1)
    bars = {}
    cur = 0
    for F in range(DA, NF):
        sg, f = F // 20, F % 20
        lo = 2 * (F - DA)
        if f == 0:
            if sg % 3 == 0:
                d = 61440 if sg % 6 == 3 else -61440
                G.place("v", ("v_add_u32 %s, %d, %s" % (v(TV_WR), d, v(TV_WR))) if d > 0 else ("v_subrev_u32 %s, %d, %s" % (v(TV_WR), -d, v(TV_WR))), cur - 1, cur - 1)
            pre = E(); post = E()
            if sg == CKS:
                stamp(pre, 11)
                pre("s_cmp_lg_u32 %s, 0\ns_cbranch_scc1 SPUN_O\ns_waitcnt SINCE{p3}" % s(S_WAVE))
                poll_spin(pre, False, s(K_FLG), 3, "O")
                stamp(post, 12)
            if sg == SIGS:
                post("s_cmp_lg_u32 %s, 0\ns_cbranch_scc1 NOSIG3" % s(S_WAVE))
                set_flag(post, 3)
                post("s_cmp_lg_u32 s2, 0\ns_cbranch_scc1 NOSIG3")
                post("s_add_u32 %s, %s, 0x10001\ns_mov_b64 exec, 1\nv_mov_b32 %s, %s\ns_movk_i32 %s, 4096" % (s(t + 7), s(S_EPOCH), v(V_PL + 1), s(t + 7), s(t + 6)))
                post("buffer_store_dword %s, off, %s, %s sc1\ns_mov_b64 exec, -1" % (v(V_PL + 1), s(S_FL, 4), s(t + 6)))
                post("NOSIG3:")
                stamp(post, 10)
            if sg == PLS:
                post("s_cmp_lg_u32 %s, 0\ns_cbranch_scc1 NOPOLL3" % s(S_WAVE))
                post(poll_load(False, s(K_FLG)))
                post("NOPOLL3:\nMARK p3")
            b = G.place("b", "\n".join(cond_lines(pre.L) + ["s_barrier"] + cond_lines(post.L)), max(cur, lo - 1))
            lateA = NSD <= sg < NSD + opt("latea", 2)
            G.put(b, "s", "s_waitcnt WAITVM{D%d%s%s}" % (sg, "" if lateA else ",A%d" % sg, ",ost" if sg == SIGS else ""))
            if lateA: G.put(40 * sg - 1, "s", "s_waitcnt WAITVM{A%d}" % sg)
            bars[sg] = b; cur = b + 1
        cur = G.place("d", t8_read(F), max(cur, lo)) + 1
    qw = [(t8_w(sg), bars[sg - RW8 + 2] if sg >= RW8 else 0, sg) for sg in range(NPRE_G, NSG)]
    qa = [(t8_a(sg), max(40 * (sg - RA8 + 1) if sg >= RA8 else 0, bars[CKS] if sg >= NSD else 0), sg) for sg in range(NPRE_G, NSG)]
    DP = opt("dpub", 1)
    side = []
    if DP:
        side.append((publish(0), 40 * NSD + 8 + opt("dpd", 40)))
        side.append((xloads(0), 40 * opt("dld", 20)))
    side.append(([("m", "buffer_load_dwordx2 %s, %s, %s, 0 offen offset:%d ;#xx" % (v(KV_X + 2 * nb, 2), v(KV_XO), s(K_SX, 4), nb * 32)) for nb in range(5)], 40 * opt("xld", 19)))
    side.sort(key=lambda x: x[1])
    MG = opt("mg", 4)
    g = 0; lastm = -9
    while qw or qa:
        c = [x for x in (qw, qa) if x]
        c.sort(key=lambda x: (max(x[0][1], g), x[0][2]))
        seq, lo, _ = c[0].pop(0)
        g = max(g, lo)
        for k, x in seq:
            g = G.place(k, x, max(g + 1, lastm + MG if k == "m" else 0))
            if k == "m": lastm = g
    for seq, lo in side:
        g = lo; lastm = -99
        for k, x in seq:
            g = G.place(k, x, max(g + (0 if k == "v" else 1), lastm + (opt("smg", 24) if "xst" in x else 6) if k == "m" else 0))
            if k == "m": lastm = g
        if "xst0" in seq[-1][1]:
            G.va[g + 1].append("\n".join(own_write(0))); pubend = g + 1
    if DP: assert pubend < 40 * opt("dld", 20) - 40
    auto_lgkm(G, eager=opt("eag", 8))
    if VERBOSE: print("t8", G.pattern())
    for F in range(DA): e(t8_read(F))
    e("s_waitcnt lgkmcnt(0)")
    nm = 0
    for x in G.lines():
        if x.startswith("v_mfma"):
            if nm == 40 * NSD: stamp(e, 13)
            if STAMPS and opt("t8st", 0) and nm > 40 * NSD and (nm - 40 * NSD) % 160 == 0: stamp(e, 25 + (nm - 40 * NSD) // 160)
            nm += 1
        e(x)

def gen_tail(e0, head):
    e = E(); e.ext(head)
    T = V_T; t = S_TMP
    stamp(e, 8)
    Z = 240 + 8; C = 240 + 12
    for qb in range(4): e("v_rcp_f32 %s, %s" % (v(T + 2 * qb), v(V_L + 4 * qb)))
    e("v_max3_f32 %s, %s, %s, %s" % (v(T + 8), v(V_L), v(V_L + 4), v(V_L + 8)))
    e("v_max_f32 %s, %s, %s" % (v(T + 8), v(T + 8), v(V_L + 12)))
    for qb in range(4): e("v_mov_b32 %s, %s" % (v(T + 2 * qb + 1), v(T + 2 * qb)))
    e("v_mul_f32 %s, %s, %s" % (v(T + 8), f2u(2.0 ** 64), v(T + 8)))
    e("v_mul_f32 %s, 0, %s" % (v(T + 8), v(T + 8)))
    for qb in range(4): e("v_fma_f32 %s, %s, 0, %s" % (v(T + 8), v(V_L + 4 * qb), v(T + 8)))
    for r in range(4): e("v_mov_b32 %s, 0" % v(Z + r))
    e("s_lshl_b32 %s, %s, 14" % (s(t + 2), s(S_HEAD)))
    W = T + 12
    wq = [x for sg in range(NPRE_X, NPRE_G) for x in t8_w(sg) + t8_a(sg)]
    def wsome(n):
        while wq and n > 0:
            k, x = wq.pop(0); n -= (k == "m")
            e(x + ("\ns_nop 0" if k == "s" else ""))
    for i in range(16):
        sl, qb = i // 4, i % 4
        d0 = 208 + 4 * (i % 4)
        for b in range(2):
            for r in range(4): e("v_accvgpr_read_b32 %s, %s" % (v(W + 4 * b + r), a(A_O + ((2 * sl + b) * 4 + qb) * 4 + r)))
        for h in range(4): e("v_pk_mul_f32 %s, %s, %s" % (v(W + 2 * h, 2), v(W + 2 * h, 2), v(T + 2 * qb, 2)))
        for h in range(4): e("v_cvt_pk_bf16_f32 %s, %s, %s" % (v(d0 + h), v(W + 2 * h), v(W + 2 * h + 1)))
        e("buffer_store_dwordx4 %s, %s, %s, %s offen offset:%d%s ;#ost" % (v(d0, 4), v(V_L16), s(S_AF, 4), s(t + 2), 1024 * qb, STFL))
        e("s_add_u32 %s, %s, 4096" % (s(t + 2), s(t + 2)) if qb == 3 else "s_nop 0")
        e("%s %s, %s, %s, %s" % (MF, v(C, 4), v(Z, 4), v(d0, 4), "0" if i == 0 else v(C, 4)))
        wsome(opt("wpg", 1))
    wsome(99)
    e("s_nop 7")
    e("v_cmp_u_f32 vcc, %s, %s" % (v(T + 8), v(C)))
    e("s_cmp_lg_u64 vcc, 0\ns_cselect_b32 %s, 1, 0" % s(t))
    e("v_mov_b32 %s, %s" % (v(W), s(t)))
    e("s_lshl_b32 %s, %s, 2\ns_add_u32 %s, %s, %d" % (s(t + 1), s(S_WAVE), s(t + 1), s(t + 1), L_MISC))
    e("v_mov_b32 %s, %s\nv_mov_b32 %s, %d" % (v(W + 1), s(t + 1), v(W + 2), L_MISC))
    e("ds_write_b32 %s, %s" % (v(W + 1), v(W)))
    e("s_waitcnt WAITVM{D0,A0} lgkmcnt(0)\ns_barrier")
    e("ds_read_b128 %s, %s" % (v(W + 4, 4), v(W + 2)))
    t8 = E(); gen_t8(t8)
    i0 = t8.L.index("s_waitcnt lgkmcnt(0)")
    e.ext(t8.L[:i0 + 1])
    e("v_or3_b32 %s, %s, %s, %s\nv_or_b32 %s, %s, %s\ns_nop 0" % (v(W + 4), v(W + 4), v(W + 5), v(W + 6), v(W + 4), v(W + 4), v(W + 7)))
    e("v_readfirstlane_b32 %s, %s" % (s(t), v(W + 4)))
    e("s_nop 3\ns_andn2_b32 %s, %s, %s" % (s(t), s(t), s(S_RETRY)))
    e("s_cbranch_scc1 ATT_RETRY")
    stamp(e, 9)
    e.ext(t8.L[i0 + 1:])
    stamp(e, 14)
    DP = opt("dpub", 1)
    e("s_nop 6")
    for k, x in publish(1): e(x)
    if not DP:
        for k, x in publish(0): e(x)
        for x in own_write(0): e(x)
    stamp(e, 23)
    for x in own_write(1): e(x)
    e("v_add_u32 %s, %d, %s" % (v(52), L_OWN[0], v(TV_OR)))
    e("s_waitcnt lgkmcnt(0)")
    if not DP:
        for k, x in xloads(0): e(x)
    XE = opt("xe", 0)
    if XE:
        for k, x in xloads(1): e(x)
    e("s_barrier")
    for nb in range(5): e("ds_read_b128 %s, %s offset:%d" % (v(OWR[0] + 4 * nb, 4), v(52), nb * 1024))
    for nb in range(5): e("ds_read_b128 %s, %s offset:%d" % (v(OWR[1] + 4 * nb, 4), v(TV_OR), L_OWN[1] + nb * 1024))
    xcheck(e, 0, "s_waitcnt WAITVM{xr0,xx} lgkmcnt(0)")
    GG = 100; XU = 204
    for nb in range(5):
        if nb == opt("xat", 2) and not XE and not opt("probe", 1):
            for k, x in xloads(1): e(x)
        d = OWR[0] + 4 * nb; gq = GG + 4 * nb
        xsum(e, 0, nb)
        for k in range(4): e("v_mul_f32 %s, %s, %s" % (v(gq + k), f2u(-math.log2(math.e) * DSC), v(d + k)))
        for k in range(4): e("v_exp_f32 %s, %s" % (v(gq + k), v(gq + k)))
        for k in range(4): e("v_mul_f32 %s, %s, %s" % (v(d + k), f2u(DSC), v(d + k)))
        for k in range(4): e("v_add_f32 %s, 1.0, %s" % (v(gq + k), v(gq + k)))
        for k in range(4): e("v_rcp_f32 %s, %s" % (v(gq + k), v(gq + k)))
        for h in range(2):
            e("v_lshlrev_b32 %s, 16, %s" % (v(XU + 4 * nb + 2 * h), v(KV_X + 2 * nb + h)))
            e("v_and_b32 %s, 0xffff0000, %s" % (v(XU + 4 * nb + 2 * h + 1), v(KV_X + 2 * nb + h)))
        for k in range(4): e("v_mul_f32 %s, %s, %s" % (v(gq + k), v(gq + k), v(d + k)))
    stamp(e, 24)
    if opt("probe", 1):
        e("s_mov_b32 %s, 0\nv_mov_b32 %s, %d" % (s(t + 7), v(30), XPB))
        e("v_min_u32 %s, 2, %s\nv_mul_lo_u32 %s, %s, %s\ns_add_u32 %s, %s, %d" % (v(31), v(V_LANE), v(31), v(31), v(30), s(t + 3), s(T_XO + 2), 12 * XPB + 2048 + 1008 + 12))
        e("PROBE:")
        e("@buffer_load_dword %s, %s, %s, %s offen%s" % (v(30), v(31), s(T_XS, 4), s(t + 3), LDFL))
        e("s_waitcnt vmcnt(0)")
        e("v_xor_b32 %s, %s, %s\nv_cmp_lt_u32 vcc, 0xffff, %s" % (v(30), s(T_TAG), v(30), v(30)))
        e("s_add_u32 %s, %s, 1" % (s(t + 7), s(t + 7)))
        e("s_cmp_eq_u64 vcc, 0\ns_cbranch_scc1 PROBED")
        e("s_cmp_ge_u32 %s, 0x40000\ns_cbranch_scc1 PROBED" % s(t + 7))
        e("s_sleep %d\ns_branch PROBE" % opt("pslp", 2))
        e("PROBED:")
        for k, x in xloads(1): e(x)
    xcheck(e, 1, "s_waitcnt vmcnt(0)")
    stamp(e, 25)
    for nb in range(5):
        o = OWR[1] + 4 * nb; gq = GG + 4 * nb; xu = XU + 4 * nb
        xsum(e, 1, nb)
        for r in range(4): e("v_fma_f32 %s, %s, %s, %s" % (v(xu + r), v(o + r), v(gq + r), v(xu + r)))
        for h in range(2): e("v_cvt_pk_bf16_f32 %s, %s, %s" % (v(gq + h), v(xu + 2 * h), v(xu + 2 * h + 1)))
        e("buffer_store_dwordx2 %s, %s, %s, 0 offen offset:%d%s" % (v(gq, 2), v(KV_XO), s(K_SO, 4), nb * 32, opt("ofl", "_sc1").replace("_", " ")))
    e0.ext([x.lstrip("@") for x in resolve_vm(e.L)])
    e = e0
    stamp(e, 15)
    if STAMPS: e("s_waitcnt vmcnt(0)")
    stamp(e, 16)
    stamp_fin(e)

def gen_kv_addr(e):
    T = V_T + 12; L = V_LANE
    e("v_and_b32 %s, 15, %s\nv_lshrrev_b32 %s, 4, %s\nv_xor_b32 %s, %s, %s" % (v(T), v(L), v(T + 1), v(L), v(T + 1), v(T + 1), v(T)))
    e("v_lshlrev_b32 %s, 8, %s\nv_lshl_add_u32 %s, %s, 4, %s" % (v(T), v(T), v(T), v(T + 1), v(T)))
    for sl in range(4): e("v_xor_b32 %s, %d, %s" % (v(V_KA + sl), sl * 64, v(T)))
    e("v_lshrrev_b32 %s, 2, %s\nv_and_b32 %s, 7, %s\nv_lshlrev_b32 %s, 8, %s\nv_lshl_add_u32 %s, %s, 5, %s" % (v(T), v(L), v(T + 1), v(T), v(T), v(T), v(T), v(T + 1), v(T)))
    e("v_and_b32 %s, 3, %s\nv_lshl_add_u32 %s, %s, 3, %s\nv_add_u32 %s, %d, %s" % (v(T + 1), v(L), v(T), v(T + 1), v(T), v(T), L_V, v(T)))
    for db in range(8): e("v_xor_b32 %s, %d, %s" % (v(V_VA + db), db * 32, v(T)))

def gen_retry(e):
    e("ATT_RETRY:")
    e("s_waitcnt vmcnt(0)\ns_mov_b32 %s, 1" % s(S_RETRY))
    gen_kv_addr(e)
    for qb in range(4): e("v_mov_b32 %s, 0xff800000" % v(V_NEGM + 4 * qb))
    e("s_mov_b32 %s, 0" % s(S_KVOFF))
    e("RETRY_LOOP:")
    e("s_barrier")
    e("s_add_u32 m0, %s, %d\ns_nop 0" % (s(S_M0K), L_K))
    e(kv_dma("K", 0)); e(kv_dma("K", 1))
    e("s_waitcnt vmcnt(0)\ns_barrier")
    for kb in range(2):
        for sl in range(4): e(k_read(kb, sl, 0))
    e("s_waitcnt lgkmcnt(0)")
    e.ext(qk_mfmas(0, czero=True))
    e("s_nop 7")
    for qb in range(4):
        b = Sreg(0, qb, 0); m = v(V_NEGM + 4 * qb)
        for k in range(4): e("v_max3_f32 %s, %s, %s, %s" % (m, m, v(b + 2 * k), v(b + 2 * k + 1)))
    e("s_add_u32 %s, %s, 8192\ns_cmp_lt_u32 %s, %d\ns_cbranch_scc1 RETRY_LOOP" % (s(S_KVOFF), s(S_KVOFF), s(S_KVOFF), 64 * 8192))
    e("s_barrier")
    kv_preload(e)
    e("s_barrier")
    for kb in range(2):
        for sl in range(4): e(k_read(kb, sl, 0))
    e("v_mov_b32 %s, 0x3f803f80" % v(V_T))
    for r in range(4): e("v_accvgpr_write_b32 %s, %s" % (a(A_ONE + r), v(V_T)))
    for r in range(128): e("v_accvgpr_write_b32 %s, 0" % a(A_O + r))
    for r in range(16): e("v_mov_b32 %s, 0" % v(V_L + r))
    e("s_waitcnt lgkmcnt(0)")
    e.ext(qk_mfmas(0, czero=True))
    for kb in range(2):
        for sl in range(4): e(k_read(kb, sl, 8192))
    e("s_branch ATT_START")

def gen_common_setup(e):
    T = V_T + 12; L = V_LANE
    e("s_lshl2_add_u32 %s, %s, %s" % (s(S_TMP + 1), s(S_QT), s(S_WAVE)))
    e("s_mul_i32 %s, %s, %d" % (s(S_TMP), s(S_TMP + 1), NSLAB * 4096))
    srd(e, S_AF, ptr(11), s(S_TMP), NSLAB * 4096)
    e("s_mul_i32 %s, %s, %d\ns_add_u32 %s, %s, %d" % (s(S_TMP), s(S_TMP + 1), 20 * 4096, s(S_TMP), s(S_TMP), XF_OFF))
    srd(e, S_X, ptr(11), s(S_TMP), 20 * 4096)
    srd(e, S_FL, ptr(11), FL_OFF, 8192)
    e("s_lshl_b32 %s, %s, 5\ns_add_u32 %s, %s, %s\ns_lshl_b32 %s, %s, 2" % (s(S_MYFL), s(S_QT), s(S_MYFL), s(S_MYFL), s(S_HEAD), s(S_MYFL), s(S_MYFL)))
    e("s_lshl_b32 %s, %s, 19" % (s(S_TMP), s(S_HEAD)))
    srd(e, S_K, ptr(1), s(S_TMP), 524288)
    srd(e, S_V, ptr(2), s(S_TMP), 524288 + 3 * 8192)
    e("s_sub_u32 %s, %s, %d\ns_subb_u32 %s, %s, 0" % (s(S_V), s(S_V), 3 * 8192, s(S_V + 1), s(S_V + 1)))
    e("v_bfe_u32 %s, %s, 2, 2\nv_lshrrev_b32 %s, 4, %s\nv_and_b32 %s, 3, %s" % (v(T), v(L), v(T + 1), v(L), v(T + 2), v(L)))
    e("v_lshlrev_b32 %s, 12, %s" % (v(T + 3), v(T + 1)))
    e("v_mul_u32_u24 %s, 320, %s\nv_add_u32 %s, %s, %s\nv_lshl_add_u32 %s, %s, 4, %s" % (v(T + 4), v(T), v(T + 4), v(T + 4), v(T + 3), v(T + 4), v(T + 2), v(T + 4)))
    for sl in range(4): e("v_xor_b32 %s, %d, %s" % (v(V_AQ + sl), sl * 64, v(T + 4)))
    e("v_lshl_add_u32 %s, %s, 7, %s\nv_lshl_add_u32 %s, %s, 3, %s" % (v(T + 4), v(T), v(T + 3), v(T + 4), v(T + 2), v(T + 4)))
    e("v_bfe_u32 %s, %s, 3, 2\nv_lshl_add_u32 %s, %s, 5, %s" % (v(T + 5), v(L), v(T + 4), v(T + 5), v(T + 4)))
    for u in range(4): e("v_xor_b32 %s, %d, %s" % (v(V_AG + u), u * 32, v(T + 4)))
    e("v_lshrrev_b32 %s, 4, %s\ns_lshl_b32 %s, %s, 3\nv_add_u32 %s, %s, %s\nv_and_b32 %s, 15, %s" % (v(T), v(L), s(S_TMP), s(S_WAVE), v(T), s(S_TMP), v(T), v(T + 1), v(L)))
    e("v_lshlrev_b32 %s, 8, %s" % (v(T + 2), v(T)))
    for i in range(2):
        e("v_add_u32 %s, %d, %s\nv_and_b32 %s, 15, %s\nv_xor_b32 %s, %s, %s\nv_lshl_add_u32 %s, %s, 4, %s" % (v(T + 3), 4 * i, v(T), v(T + 4), v(T + 3), v(T + 4), v(T + 4), v(T + 1), v(V_KD + i), v(T + 4), v(T + 2)))
        e("v_and_b32 %s, 7, %s\nv_lshlrev_b32 %s, 1, %s\nv_xor_b32 %s, %s, %s\nv_lshl_add_u32 %s, %s, 4, %s" % (v(T + 4), v(T + 3), v(T + 4), v(T + 4), v(T + 4), v(T + 4), v(T + 1), v(V_VD + i), v(T + 4), v(T + 2)))
    gen_kv_addr(e)

def gen_w_setup(e):
    T = V_T + 12; L = V_LANE
    e("v_lshrrev_b32 %s, 4, %s\nv_lshlrev_b32 %s, 2, %s\nv_and_b32 %s, 15, %s\nv_xor_b32 %s, %s, %s" % (v(T), v(L), v(T + 1), v(T), v(T + 2), v(L), v(T + 1), v(T + 1), v(T + 2)))
    e("v_lshlrev_b32 %s, 13, %s\nv_lshl_add_u32 %s, %s, 4, %s" % (v(T), v(T), v(V_WD), v(T + 1), v(T)))
    e("v_add_u32 %s, %d, %s" % (v(V_WD + 1), 4 * 8192 - 1024, v(V_WD)))
    e("v_lshrrev_b32 %s, 3, %s\nv_bfe_u32 %s, %s, 4, 1\nv_lshlrev_b32 %s, 1, %s" % (v(T), v(L), v(T + 1), v(L), v(T + 1), v(T + 1)))
    e("s_and_b32 %s, %s, 1\ns_lshl_b32 %s, %s, 2\nv_or_b32 %s, %s, %s" % (s(S_TMP), s(S_WAVE), s(S_TMP), s(S_TMP), v(T + 1), s(S_TMP), v(T + 1)))
    e("v_and_b32 %s, 7, %s\nv_xor_b32 %s, %s, %s" % (v(T + 2), v(L), v(T + 1), v(T + 1), v(T + 2)))
    e("v_mul_u32_u24 %s, 3456, %s\nv_lshl_add_u32 %s, %s, 4, %s" % (v(T), v(T), v(V_WD + 2), v(T + 1), v(T)))
    e("s_lshl_b32 %s, %s, 8\ns_sub_u32 %s, %d, %s" % (s(S_TMP), s(S_HEAD), s(S_TMP + 1), 640 * 8192, s(S_TMP)))
    srd(e, S_WQ, ptr(3), s(S_TMP), s(S_TMP + 1))
    for (d, p, sh) in ((S_WG, 6, 2048), (S_WU, 7, 3072)):
        e("s_lshl_b32 %s, %s, 7\ns_sub_u32 %s, %d, %s" % (s(S_TMP), s(S_FS), s(S_TMP + 1), 640 * 3456 + sh, s(S_TMP)))
        e("s_cmp_lt_u32 %s, 27\ns_cselect_b32 %s, %s, 0" % (s(S_FS), s(S_TMP + 1), s(S_TMP + 1)))
        srd(e, d, ptr(p), s(S_TMP), s(S_TMP + 1))
        e("s_sub_u32 %s, %s, %d\ns_subb_u32 %s, %s, 0" % (s(d), s(d), sh, s(d + 1), s(d + 1)))

def gen_kernel(e, name):
    T = V_T; L = V_LANE
    e(".text\n.globl %s\n.p2align 8\n.type %s,@function\n%s:" % (name, name, name))
    e("s_cmp_ge_u32 s2, 256\ns_cbranch_scc1 K_END")
    e("s_load_dwordx8 %s, s[0:1], 0\ns_load_dwordx8 %s, s[0:1], 32\ns_load_dwordx8 %s, s[0:1], 64" % (s(S_PTR, 8), s(S_PTR + 8, 8), s(S_PTR + 16, 8)))
    e("v_and_b32 %s, 63, v0\nv_lshrrev_b32 %s, 6, v0\nv_lshlrev_b32 %s, 4, %s\nv_readfirstlane_b32 %s, %s" % (v(L), v(T), v(V_L16), v(L), s(S_WAVE), v(T)))
    e("s_and_b32 %s, s2, 7\ns_lshr_b32 %s, s2, 3\ns_and_b32 %s, %s, 3\ns_lshr_b32 %s, %s, 2" % (s(S_TMP), s(S_TMP + 1), s(S_HL), s(S_TMP + 1), s(S_QT), s(S_TMP + 1)))
    e("s_lshl_b32 %s, %s, 2\ns_add_u32 %s, %s, %s" % (s(S_HEAD), s(S_TMP), s(S_HEAD), s(S_HEAD), s(S_HL)))
    e("s_lshl_b32 %s, %s, 3\ns_add_u32 %s, %s, %s" % (s(S_FS), s(S_HL), s(S_FS), s(S_FS), s(S_TMP)))
    e("s_mov_b32 %s, 0" % s(S_RETRY))
    e("s_lshl_b32 %s, %s, 12\ns_lshl_b32 %s, %s, 11" % (s(S_M0W), s(S_WAVE), s(S_M0K), s(S_WAVE)))
    if STAMPS: e("v_mov_b32 v0, -1\nv_mov_b32 v19, -1")
    stamp(e, 0)
    def codetouch(e):
        e("s_getpc_b64 %s\nCODE0:" % s(S_TMP + 4, 2))
        e("s_lshr_b32 %s, s2, 3\ns_lshl2_add_u32 %s, %s, %s\ns_mul_i32 %s, %s, 640" % (s(S_EVT + 6), s(S_EVT + 6), s(S_EVT + 6), s(S_WAVE), s(S_EVT + 6), s(S_EVT + 6)))
        e("v_min_u32 %s, 4, %s\nv_lshlrev_b32 %s, 7, %s\nv_add_u32 %s, %s, %s\nv_min_u32 %s, CODE1-CODE0-4, %s" % (v(8), v(L), v(8), v(8), v(8), s(S_EVT + 6), v(8), v(8), v(8)))
        e("global_load_dword %s, %s, %s" % (v(V_PL), v(8), s(S_TMP + 4, 2)))
    CPOS = opt("cpos", 1); WPOS = opt("wpos", 0)
    if CPOS == 0: codetouch(e)
    gen_ln_loads(e)
    e("s_add_u32 %s, %s, %d\ns_addc_u32 %s, %s, 0\ns_load_dword %s, %s, 0" % (s(S_TMP + 2), s(ptr(11)), FL_OFF + 4096, s(S_TMP + 3), s(ptr(11) + 1), s(S_EPOCH), s(S_TMP + 2, 2)))
    ny = 0
    if CPOS == 1: codetouch(e); ny += 1
    gen_w_setup(e)
    e("s_lshl_b32 %s, %s, 16\ns_mul_i32 %s, %s, %d" % (s(S_WQOFF), s(S_WAVE), s(S_WGOFF), s(S_WAVE), 8 * 3456))
    WT = opt("wt", 6)
    X = V_TC
    e("s_lshl2_add_u32 %s, %s, %s\ns_add_u32 %s, %s, %d" % (s(S_TMP), s(S_QT), s(S_WAVE), s(S_TMP), s(S_TMP), 32 * NI))
    e("v_lshrrev_b32 %s, 1, %s\nv_min_u32 %s, %d, %s\nv_lshlrev_b32 %s, 5, %s\nv_add_u32 %s, %s, %s" % (v(X), v(L), v(X), WT - 1, v(X), v(X), v(X), v(X), s(S_TMP), v(X)))
    e("v_and_b32 %s, 1, %s\nv_lshlrev_b32 %s, 7, %s\nv_lshl_add_u32 %s, %s, 13, %s\nv_mul_u32_u24 %s, 3456, %s" % (v(X + 1), v(L), v(X + 1), v(X + 1), v(X + 1), v(X), v(X + 1), v(X), v(X)))
    w0 = E(); wt = E()
    for sl in range(NI): w_slab(w0, sl, True)
    wt("buffer_load_dword %s, %s, %s, 0 offen" % (v(V_PL + 1), v(X + 1), s(S_WQ, 4)))
    wt("buffer_load_dword %s, %s, %s, 0 offen offset:2048" % (v(V_PL + 2), v(X), s(S_WG, 4)))
    wt("buffer_load_dword %s, %s, %s, 0 offen offset:3072" % (v(V_DUMP), v(X), s(S_WU, 4)))
    early = {0: w0.L + wt.L, 1: [], 2: w0.L, 3: w0.L}[WPOS]
    mid = {0: [], 1: w0.L + wt.L, 2: wt.L, 3: []}[WPOS]
    after = wt.L if WPOS == 3 else []
    e.ext(early); ny += sum(x.startswith("buffer") for x in early)
    LATE = opt("late", 1)
    if not LATE: gen_common_setup(e)
    stamp(e, 1)
    gen_ln_compute(e, ny, mid)
    e.ext(after)
    if LATE: gen_common_setup(e)
    e("s_mul_i32 %s, %s, 0x9e3779b1\ns_add_u32 %s, %s, 0x7f4a7c15" % (s(S_TAG), s(S_EPOCH), s(S_TAG), s(S_TAG)))
    e("v_and_b32 %s, 31, %s\nv_lshlrev_b32 %s, 2, %s\ns_lshl_b32 %s, %s, 7" % (v(V_PL + 3), v(L), v(V_PL + 3), v(V_PL + 3), s(S_XOFF), s(S_QT)))
    for i in range(8): e("v_add_u32 %s, 65536, %s" % (v(V_AHI + i), v(V_AQ + i)))
    e("s_waitcnt vmcnt(%d)\ns_barrier" % len(after))
    stamp(e, 18)
    e("s_cmp_lg_u32 %s, 0\ns_cbranch_scc1 SPUN_XN" % s(S_WAVE))
    set_flag(e, 1)
    e(poll_load(False, s(S_XOFF)))
    e("s_waitcnt vmcnt(0)")
    poll_spin(e, False, s(S_XOFF), 1, "XN")
    e("s_barrier")
    stamp(e, 2)
    e("s_cmp_ge_u32 %s, 27\ns_cbranch_scc1 LIGHT" % s(S_FS))
    gen_proj(e, True, "H")
    e("PROJ_DONE:")
    head = gen_attention(e)
    gen_tail(e, head)
    e("K_END:\ns_endpgm")
    gen_events(e)
    gen_retry(e)
    e("LIGHT:")
    gen_proj(e, False, "L")
    e("s_branch PROJ_DONE")
    e("CODE1:")
    e(kd(name))

def main():
    e = E()
    hdr = open("cdna_kernels/%s.s.ref" % NAME).read().split("; Override launch")[0]
    e.L += hdr.strip().split("\n")
    e("; @launch grid=(256,1,1) block=(256,1,1) lds=%d" % LDS_BYTES)
    e('.amdgcn_target "amdgcn-amd-amdhsa--gfx950"')
    gen_kernel(e, NAME + "_kernel")
    t = re.sub(r" ;#\w*", "", e.text())
    errs = [x for x in asmcheck.check(t, [NAME + "_kernel"]) if x.count("_load_dword v%d," % V_DUMP) != 2 and poll_load(True) not in x]
    if errs:
        print("\n".join(errs[:40])); print(len(errs), "problems")
    out = [x for x in sys.argv[1:] if x.endswith(".s")]
    open(out[0] if out else "cdna_kernels/%s.s" % NAME, "w").write(t)

if __name__ == "__main__":
    main()
```

```python
import sys, math, os, struct, re
from sched import Gaps, auto_lgkm
import asmcheck

NAME = "recurrent_scan__mha_block_cached__glu_gated_reglu__prompt"
MF = "v_mfma_f32_16x16x32_bf16"
OPT = dict(x.split("=") for x in sys.argv[1:] if "=" in x)
def opt(k, d): return type(d)(OPT.get(k, d))
VERBOSE = "-v" in sys.argv
STAMPS = "--stamps" in sys.argv
STFL = opt("stfl", " sc1").replace("_", " ")
LDFL = opt("ldfl", " sc1").replace("_", " ")

NSLAB = 182
QSC = math.log2(math.e) / math.sqrt(128.0)
DSC = 1.0 / (QSC * QSC)
WF_OFF = 0x1800000
WF_BYTES = 8 * NSLAB * 5120
XF_OFF = 0x2000000
XP_OFF = 0x2800000
MAXST = 3
FL_OFF = 0x2400000

class E:
    def __init__(self): self.L = []
    def __call__(self, s):
        for x in s.split("\n"):
            x = x.strip()
            if x: self.L.append(x)
    def ext(self, l): self.L += l
    def text(self): return "\n".join(self.L) + "\n"

def v(a, n=1): return "v%d" % a if n == 1 else "v[%d:%d]" % (a, a + n - 1)
def a(a_, n=1): return "a%d" % a_ if n == 1 else "a[%d:%d]" % (a_, a_ + n - 1)
def s(a_, n=1): return "s%d" % a_ if n == 1 else "s[%d:%d]" % (a_, a_ + n - 1)
def f2u(x): return "0x%08x" % struct.unpack("<I", struct.pack("<f", x))[0]

def kd(name, vgpr=512, acc=256):
    return """.section .rodata,"a"
.p2align 6
.amdhsa_kernel %s
  .amdhsa_next_free_vgpr %d
  .amdhsa_next_free_sgpr 102
  .amdhsa_accum_offset %d
  .amdhsa_group_segment_fixed_size 0
  .amdhsa_kernarg_size 96
  .amdhsa_user_sgpr_count 2
  .amdhsa_user_sgpr_kernarg_segment_ptr 1
  .amdhsa_system_sgpr_workgroup_id_x 1
.end_amdhsa_kernel
""" % (name, vgpr, acc)

def stamp(e, i):
    if not STAMPS: return
    e("s_waitcnt lgkmcnt(0)\ns_memtime s[98:99]\ns_memrealtime s[100:101]\ns_waitcnt lgkmcnt(0)")
    e("v_writelane_b32 v0, s98, %d\nv_writelane_b32 v19, s100, %d" % (i, i))
def stamp_fin(e):
    if not STAMPS: return
    if opt("echo", ""):
        i, j = [int(x) for x in opt("echo", "").split(".")]
        e("s_nop 1\nv_readlane_b32 s96, v19, %d\nv_readlane_b32 s97, v19, %d\nv_readlane_b32 s98, v19, 16\ns_nop 3\ns_sub_u32 s96, s97, s96\ns_min_u32 s96, s96, 20000\ns_cmp_lt_u32 %s, 27\ns_cselect_b32 s96, s96, 0" % (i, j, s(S_FS)))
        e("ECHO:\ns_sleep 1\ns_memrealtime s[100:101]\ns_waitcnt lgkmcnt(0)\ns_sub_u32 s97, s100, s98\ns_cmp_lt_u32 s97, s96\ns_cbranch_scc1 ECHO")
        return
    if opt("dbgout", -1) >= 0:
        e("s_cmp_lg_u32 s2, %d\ns_cbranch_scc1 NODBG\ns_cmp_lg_u32 %s, 0\ns_cbranch_scc1 NODBG" % (opt("dbgout", -1), s(S_WAVE)))
        e("v_readlane_b32 s98, v19, 0\ns_nop 3\nv_subrev_u32 v18, s98, v19\nv_lshlrev_b32 v20, 2, v1\nv_subrev_u32 v20, 4, v20")
        e("s_mov_b32 s96, %s\ns_mov_b32 s97, %s\ns_mov_b32 s98, 64\ns_mov_b32 s99, 0x20000" % (s(ptr(10)), s(ptr(10) + 1)))
        e("buffer_store_dword v18, v20, s[96:99], 0 offen\ns_waitcnt vmcnt(0)\nNODBG:")
        return
    if opt("wsb", 0): e("s_sub_u32 %s, %s, %d\ns_subb_u32 %s, %s, 0" % (s(ptr(11)), s(ptr(11)), opt("wsb", 0) << 20, s(ptr(11) + 1), s(ptr(11) + 1)))
    e("s_lshl_b32 s98, s2, 2\ns_add_u32 s98, s98, %s\ns_lshl_b32 s98, s98, 9\ns_add_u32 s98, s98, %d" % (s(S_WAVE), 0x4000000))
    e("s_add_u32 s96, %s, s98\ns_addc_u32 s97, %s, 0\ns_mov_b32 s98, 512\ns_mov_b32 s99, 0x20000" % (s(ptr(11)), s(ptr(11) + 1)))
    e("v_mov_b32 v18, v0\nv_lshlrev_b32 v20, 3, v1\nbuffer_store_dwordx2 v[18:19], v20, s[96:99], 0 offen\ns_waitcnt vmcnt(0)")

def srd(e, d, base, off_lo, nbytes):
    e("s_add_u32 %s, %s, %s" % (s(d), s(base), off_lo))
    e("s_addc_u32 %s, %s, 0" % (s(d + 1), s(base + 1)))
    e("s_mov_b32 %s, %s" % (s(d + 2), nbytes))
    e("s_mov_b32 %s, 0x20000" % s(d + 3))

def uncond(x): return False
def resolve_vm(lines):
    out = []; ops = []; waited = set(); lastm0 = None; done = 0; marks = {}
    for x in lines:
        mm = re.search(r"vmcnt\((\d+)\)", x)
        if mm and not x.startswith("@") and uncond(x): done = max(done, len(ops) - int(mm.group(1)))
        if x.startswith(("buffer_", "global_")) and len(ops) - done >= 58:
            out.append("s_waitcnt vmcnt(52)"); done = len(ops) - 52
        if x.startswith("s_add_u32 m0,"): lastm0 = x.split(",")[1].strip()
        if " lds" in x and ";#" in x:
            tg = x.split(";#")[1].strip()
            exp = s(S_M0W) if tg.startswith("w") else (s(S_TRM) if tg == "trs" else s(S_M0K))
            if tg.startswith("D"): exp = s(T_M0W)
            assert lastm0 == exp, "M0 collision at %s" % x
        if x.startswith("MARK"):
            marks[x.split()[1]] = len(ops); continue
        m = re.search(r"SINCE\{(\w+)\}", x)
        if m: x = x.replace(m.group(0), "vmcnt(%d)" % min(63, len(ops) - marks[m.group(1)]))
        m = re.search(r"WAITVM\{([^}]*)\}", x)
        if m:
            need = set(m.group(1).split(","))
            waited |= need
            idx = [i for i, t in enumerate(ops) if t in need]
            n = len(ops) - 1 - max(idx) if idx else 63
            done = max(done, len(ops) - min(n, 63))
            x = x.replace(m.group(0), "vmcnt(%d)" % min(n, 63))
        elif x.startswith(("buffer_", "global_")):
            t = x.split(";#")[1].strip() if ";#" in x else ""
            assert t not in waited, "op %s issued after its wait" % t
            ops.append(t)
        out.append(x)
    return out

S_FL = 4
S_X, S_WQ, S_WG, S_WU, S_K, S_V, S_AF, S_T, S_WF = 8, 12, 16, 20, 24, 28, 32, 36, 40
S_PTR = 44
S_WAVE, S_HEAD, S_QT, S_FS = 68, 69, 70, 71
S_XOFF, S_WQOFF, S_WGOFF, S_M0W = 72, 73, 74, 75
S_KVOFF, S_M0K, S_TOG, S_RETRY = 76, 77, 78, 79
S_TMP = 80
S_TRS, S_TRM, S_TRD, S_TRU = 88, 89, 90, 91
S_EPOCH, S_TAG, S_MYFL = 92, 93, 94
S_HL = 3
S_EVT = 85
EVTS = (32 + 9) * 8192
EVTL = (50 + 9) * 8192
EVT1 = (56 + 9) * 8192
EVTE = (62 + 9) * 8192
NWH = opt("nwh", 0)
S_LN = 84
def ptr(i): return S_PTR + 2 * i

L_K = 0
L_V = 65536
RW = 7
L_TR = 114688
L_MISC = 155648
LDS_BYTES = 163840

V_LANE = 1
V_L16 = 2
V_WD = 3
V_TRA = 6
V_AQ = 10
V_AG = 14
V_KA = 20
V_VA = 24
V_KD = 32
V_VD = 34
V_DUMP = 18
V_TC = 62
V_PL = 36
V_T = 40
V_ACCQ = 64
V_ACCG = 192
V_Q = 64
V_S = 128
V_P = 192
V_NEGM = 224
V_L = 240
A_ACCU = 0
XD = 7
A_X = 64
A_W = 176
A_TR = 208
A_ONE = 248
A_O = 64
A_KF = 208
A_VF = 0
V_AHI = 44

def qacc(blk, qb): return (V_S if blk & 1 else V_Q) + ((blk >> 1) * 4 + qb) * 4
def accreg(blk, qb):
    if blk < 8: return v(qacc(blk, qb), 4)
    if blk < 12: return v(V_ACCG + ((blk - 8) * 4 + qb) * 4, 4)
    return a(A_ACCU + ((blk - 12) * 4 + qb) * 4, 4)

def w_read(dst, blk, j, rel):
    if blk < 8:
        ar = V_AQ + (blk >> 1); off = rel + j * 1024 + (blk & 1) * 8
    else:
        ar = V_AG + ((blk - 8) & 3); off = rel + 2048 + (1024 if blk >= 12 else 0) + j * 512
    if rel >= 65536: ar += V_AHI - V_AQ; off -= 65536
    assert 0 <= off < 65536
    return "ds_read_b64_tr_b16 %s, %s offset:%d" % (a(dst + 2 * j, 2), v(ar), off)

def w_dma(heavy, tag):
    l = ["buffer_load_dwordx4 %s, %s, %s offen lds ;#%s" % (v(V_WD), s(S_WQ, 4), s(S_WQOFF), tag),
         "buffer_load_dwordx4 %s, %s, %s offen offset:1024 lds ;#%s" % (v(V_WD + 1), s(S_WQ, 4), s(S_WQOFF), tag)]
    if heavy:
        l += ["buffer_load_dwordx4 %s, %s, %s offen offset:2048 lds ;#%s" % (v(V_WD + 2), s(S_WG, 4), s(S_WGOFF), tag),
              "buffer_load_dwordx4 %s, %s, %s offen offset:3072 lds ;#%s" % (v(V_WD + 2), s(S_WU, 4), s(S_WGOFF), tag)]
    return l

def x_load(sl, qb):
    return "buffer_load_dwordx4 %s, %s, %s, %s offen offset:%d%s ;#x%d" % (a(A_X + ((sl % XD) * 4 + qb) * 4, 4), v(V_L16), s(S_X, 4), s(S_XOFF), qb * 1024, LDFL, sl)

def kv_dma(which, i, tag=""):
    vo = (V_KD if which == "K" else V_VD) + i
    return "buffer_load_dwordx4 %s, %s, %s offen offset:%d lds ;#%s" % (v(vo), s(S_K if which == "K" else S_V, 4), s(S_KVOFF), 1024 * i, tag)

FSH = opt("fsh", 2)
EP_OFF = 65536
def set_flag(e, stage):
    if opt("fwide", 0):
        n = (1 << FSH) // 8
        e("s_add_u32 %s, %s, %d\ns_mov_b64 exec, 0x%x\nv_mov_b32 %s, %s\nv_mov_b32 %s, %s\nv_lshlrev_b32 %s, 3, %s" % (s(S_TMP + 7), s(S_TAG), stage, (1 << n) - 1, v(V_PL), s(S_TMP + 7), v(V_PL + 1), s(S_TMP + 7), v(V_PL + 2), v(V_LANE)))
        e("buffer_store_dwordx2 %s, %s, %s, %s offen sc1" % (v(V_PL, 2), v(V_PL + 2), s(S_FL, 4), s(S_MYFL)))
    else:
        e("s_add_u32 %s, %s, %d\ns_mov_b64 exec, 1\nv_mov_b32 %s, %s" % (s(S_TMP + 7), s(S_TAG), stage, v(V_PL), s(S_TMP + 7)))
        e("buffer_store_dword %s, off, %s, %s sc1" % (v(V_PL), s(S_FL, 4), s(S_MYFL)))
    e("s_mov_b64 exec, -1")

def poll_load(allq, qoff=None):
    if allq and FSH > 2:
        return "v_lshlrev_b32 %s, %d, %s\n" % (v(V_DUMP), FSH + 2, v(V_LANE)) + "\n".join("buffer_load_dword %s, %s, %s, 0 offen offset:%d sc1" % (v(V_PL + i), v(V_DUMP), s(S_FL, 4), i << FSH) for i in range(4))
    if allq: return "buffer_load_dwordx4 %s, %s, %s, 0 offen sc1" % (v(V_PL, 4), v(V_L16), s(S_FL, 4))
    return "buffer_load_dword %s, %s, %s, %s offen sc1" % (v(V_PL), v(V_PL + 3), s(S_FL, 4), qoff)

def poll_spin(e, allq, qoff, stage, tag):
    e("s_mov_b32 %s, 0\ns_add_u32 %s, %s, %d" % (s(S_TMP + 7), s(S_TMP + 6), s(S_TAG), stage))
    e("SPIN_%s:" % tag)
    n = 4 if allq else 1
    for i in range(n): e("v_subrev_u32 %s, %s, %s" % (v(V_PL + i), s(S_TMP + 6), v(V_PL + i)))
    if allq: e("v_max3_u32 %s, %s, %s, %s\nv_max_u32 %s, %s, %s" % (v(V_PL), v(V_PL), v(V_PL + 1), v(V_PL + 2), v(V_PL), v(V_PL), v(V_PL + 3)))
    e("v_cmp_lt_u32 vcc, %d, %s" % (MAXST - stage, v(V_PL)))
    e("s_add_u32 %s, %s, 1" % (s(S_TMP + 7), s(S_TMP + 7)))
    e("s_cmp_eq_u64 vcc, 0\ns_cbranch_scc1 SPUN_%s" % tag)
    e("s_cmp_ge_u32 %s, 0x40000\ns_cbranch_scc1 SPUN_%s" % (s(S_TMP + 7), tag))
    e("s_sleep %d" % opt("slp", 2))
    e(poll_load(allq, qoff))
    e("s_waitcnt vmcnt(0)\ns_branch SPIN_%s" % tag)
    e("SPUN_%s:" % tag)

def zero_acc(e, heavy=True):
    for r in range(V_ACCQ, 256): e("v_mov_b32 %s, 0" % v(r))
    for r in range(A_ACCU, A_ACCU + 64): e("v_accvgpr_write_b32 %s, 0" % a(r))

NI = opt("ni", 1)

def gen_ln_loads(e):
    T = V_T; L = V_LANE
    R = V_ACCQ
    e("v_bfe_u32 %s, %s, 1, 3\nv_lshrrev_b32 %s, 4, %s\nv_and_b32 %s, 1, %s" % (v(T), v(L), v(T + 1), v(L), v(T + 2), v(L)))
    e("v_mul_u32_u24 %s, 1280, %s\nv_lshl_add_u32 %s, %s, 4, %s\nv_lshl_add_u32 %s, %s, 3, %s" % (v(T + 3), v(T), v(T + 3), v(T + 1), v(T + 3), v(T + 3), v(T + 2), v(T + 3)))
    e("s_lshl_b32 %s, %s, 5\ns_add_u32 %s, %s, %s\ns_mul_i32 %s, %s, %d\ns_mul_i32 %s, %s, 320" % (s(S_TMP), s(S_QT), s(S_TMP), s(S_TMP), s(S_HEAD), s(S_TMP), s(S_TMP), 8 * 1280, s(S_TMP + 1), s(S_WAVE)))
    e("s_waitcnt lgkmcnt(0)")
    if opt("wsb", 0): e("s_add_u32 %s, %s, %d\ns_addc_u32 %s, %s, 0" % (s(ptr(11)), s(ptr(11)), opt("wsb", 0) << 20, s(ptr(11) + 1), s(ptr(11) + 1)))
    srd(e, S_T, ptr(0), s(S_TMP), 8 * 1280)
    for i in range(5): e("buffer_load_dwordx2 %s, %s, %s, %s offen offset:%d" % (v(R + 2 * i, 2), v(T + 3), s(S_T, 4), s(S_TMP + 1), 64 * i))

def gen_ln_compute(e, nyounger, mid=()):
    T = V_T; L = V_LANE
    R = V_ACCQ; U = R + 10
    e("v_and_b32 %s, 15, %s\nv_lshlrev_b32 %s, 3, %s\nv_lshl_add_u32 %s, %s, 8, %s" % (v(T + 3), v(L), v(T + 3), v(T + 3), v(T + 3), v(T + 1), v(T + 3)))
    e("s_lshr_b32 %s, %s, 3\ns_lshl2_add_u32 %s, %s, %s\ns_mul_i32 %s, %s, %d" % (s(S_TMP), s(S_HEAD), s(S_TMP), s(S_QT), s(S_TMP), s(S_TMP), s(S_TMP), 20 * 4096))
    e("s_bfe_u32 %s, %s, 0x20001\ns_lshl_b32 %s, %s, 10\ns_add_u32 %s, %s, %s" % (s(S_TMP + 1), s(S_HEAD), s(S_TMP + 1), s(S_TMP + 1), s(S_TMP), s(S_TMP), s(S_TMP + 1)))
    e("s_and_b32 %s, %s, 1\ns_lshl_b32 %s, %s, 7\ns_add_u32 %s, %s, %s\ns_add_u32 %s, %s, %d" % (s(S_TMP + 1), s(S_HEAD), s(S_TMP + 1), s(S_TMP + 1), s(S_TMP), s(S_TMP), s(S_TMP + 1), s(S_TMP), s(S_TMP), XF_OFF))
    srd(e, S_LN, ptr(11), s(S_TMP), 20 * 4096)
    e("s_mul_i32 %s, %s, %d" % (s(S_TMP), s(S_WAVE), 5 * 4096))
    e("v_lshlrev_b32 %s, 5, %s\nv_add_u32 %s, %d, %s\ns_lshl_b32 %s, %s, 3\nv_add_u32 %s, %s, %s" % (v(T + 4), v(T), v(T + 4), L_MISC, v(T + 4), s(S_TMP + 1), s(S_WAVE), v(T + 5), s(S_TMP + 1), v(T + 4)))
    A0 = T + 6; M = T + 8
    e("s_waitcnt vmcnt(%d)" % nyounger)
    stamp(e, 17)
    e.ext(list(mid))
    for d in range(10): e("v_lshlrev_b32 %s, 16, %s\nv_and_b32 %s, 0xffff0000, %s" % (v(U + 2 * d), v(R + d), v(U + 2 * d + 1), v(R + d)))
    e("v_pk_add_f32 %s, %s, %s\nv_pk_add_f32 %s, %s, %s" % (v(A0, 2), v(U, 2), v(U + 2, 2), v(M, 2), v(U + 4, 2), v(U + 6, 2)))
    for d in range(4, 10): e("v_pk_add_f32 %s, %s, %s" % (v((A0, M)[d & 1], 2), v((A0, M)[d & 1], 2), v(U + 2 * d, 2)))
    def reduce(dst):
        e("v_pk_add_f32 %s, %s, %s" % (v(A0, 2), v(A0, 2), v(M, 2) if dst == M else v(T + 10, 2)))
        e("v_add_f32 %s, %s, %s\ns_nop 1" % (v(A0), v(A0), v(A0 + 1)))
        e("v_add_f32_dpp %s, %s, %s quad_perm:[1,0,3,2] row_mask:0xf bank_mask:0xf" % (v(A0), v(A0), v(A0)))
        for sw in ("v_permlane32_swap_b32", "v_permlane16_swap_b32"):
            e("v_mov_b32 %s, %s\ns_nop 1\n%s %s, %s\nv_add_f32 %s, %s, %s" % (v(A0 + 1), v(A0), sw, v(A0), v(A0 + 1), v(A0), v(A0), v(A0 + 1)))
    reduce(M)
    e("v_mul_f32 %s, %s, %s\nv_mul_f32 %s, %s, %s" % (v(M), f2u(-1.0 / 160), v(A0), v(M + 1), f2u(-1.0 / 160), v(A0)))
    for d in range(10): e("v_pk_add_f32 %s, %s, %s" % (v(U + 2 * d, 2), v(U + 2 * d, 2), v(M, 2)))
    e("v_pk_mul_f32 %s, %s, %s\nv_pk_mul_f32 %s, %s, %s" % (v(A0, 2), v(U, 2), v(U, 2), v(T + 10, 2), v(U + 2, 2), v(U + 2, 2)))
    for d in range(2, 10): e("v_pk_fma_f32 %s, %s, %s, %s" % (v((A0, T + 10)[d & 1], 2), v(U + 2 * d, 2), v(U + 2 * d, 2), v((A0, T + 10)[d & 1], 2)))
    reduce(None)
    e("v_mov_b32 %s, %s" % (v(M + 1), v(A0)))
    e("ds_write_b64 %s, %s\ns_waitcnt lgkmcnt(0)\ns_barrier" % (v(T + 5), v(M, 2)))
    X = T + 12
    e("ds_read_b128 %s, %s\nds_read_b128 %s, %s offset:16\ns_waitcnt lgkmcnt(0)" % (v(X, 4), v(T + 4), v(X + 4, 4), v(T + 4)))
    e("v_pk_add_f32 %s, %s, %s\nv_pk_add_f32 %s, %s, %s\nv_pk_add_f32 %s, %s, %s" % (v(A0, 2), v(X, 2), v(X + 2, 2), v(T + 10, 2), v(X + 4, 2), v(X + 6, 2), v(A0, 2), v(A0, 2), v(T + 10, 2)))
    e("v_mul_f32 %s, 0.25, %s" % (v(A0), v(A0)) if False else "v_mul_f32 %s, %s, %s" % (v(A0), f2u(0.25), v(A0)))
    for k in range(4): e("v_sub_f32 %s, %s, %s" % (v(X + 2 * k), v(X + 2 * k), v(A0)))
    e("v_mul_f32 %s, %s, %s" % (v(X + 1), v(X), v(X)))
    for k in range(1, 4): e("v_fmac_f32 %s, %s, %s" % (v(X + 1), v(X + 2 * k), v(X + 2 * k)))
    e("v_fmac_f32 %s, %s, %s" % (v(A0 + 1), f2u(160.0), v(X + 1)))
    e("v_mov_b32 %s, %s\nv_fmac_f32 %s, %s, %s\nv_rsq_f32 %s, %s" % (v(X), f2u(1e-5 * DSC), v(X), f2u(DSC / 640), v(A0 + 1), v(X), v(X)))
    e("v_sub_f32 %s, %s, %s" % (v(M), v(A0), v(M)))
    e("v_mov_b32 %s, %s\nv_mul_f32 %s, %s, %s\nv_mul_f32 %s, %s, %s" % (v(X + 1), v(X), v(M + 1), v(M), v(X), v(M), v(M), v(X)))
    for i in range(5):
        for d in (2 * i, 2 * i + 1): e("v_pk_fma_f32 %s, %s, %s, %s" % (v(U + 2 * d, 2), v(U + 2 * d, 2), v(X, 2), v(M, 2)))
        for d in (2 * i, 2 * i + 1): e("v_cvt_pk_bf16_f32 %s, %s, %s" % (v(R + d), v(U + 2 * d), v(U + 2 * d + 1)))
        e("buffer_store_dwordx2 %s, %s, %s, %s offen%s" % (v(R + 2 * i, 2), v(T + 3), s(S_LN, 4), s(S_TMP), STFL))
        if i < 4: e("s_add_u32 %s, %s, 4096" % (s(S_TMP), s(S_TMP)))

def w_slab(e, sl, heavy):
    e("s_add_u32 m0, %s, %d\ns_nop 0" % (s(S_M0W), (sl % RW) * 16384))
    e.ext(w_dma(heavy, "w%d" % sl))
    e("s_add_u32 %s, %s, %d\ns_add_u32 %s, %s, %d" % (s(S_WQOFF), s(S_WQOFF), 32 * 8192, s(S_WGOFF), s(S_WGOFF), 32 * 3456))

def gen_proj(e0, heavy, tag):
    e = E()
    T = V_T; L = V_LANE
    NS = opt("ns", 4) if heavy else 0
    GU = [b for fb in range(4) for b in (12 + fb, 8 + fb)]
    PC0 = opt("pc0", 16) if heavy else 20
    def grp(lo, hi):
        out = []; sl = lo
        while sl < hi:
            if sl >= PC0 and sl + 1 < hi: out.append((sl, sl + 1)); sl += 2
            else: out.append((sl,)); sl += 1
        return out
    units = []
    for ss in grp(0, 20 - NS): units.append((ss, list(range(8)) + (GU if heavy else [])))
    for part in ((GU[:4], GU[4:]) if opt("split", 1) else (GU,)):
        for ss in grp(20 - NS, 20): units.append((ss, part))
    for ss in grp(20 - NS, 20): units.append((ss, list(range(8))))
    order = []; mf = []; firstuse = []
    for ss, bl in units:
        for b in bl:
            F0 = len(order)
            for sl in ss: order.append((sl, b)); firstuse.append(4 * F0)
            for qb in range(4):
                idx = list(range(len(ss)))
                if qb & 1: idx.reverse()
                for i in idx:
                    sl = ss[i]
                    c = "0" if (0 in ss and i == idx[0]) else accreg(b, qb)
                    mf.append("%s %s, %s, %s, %s" % (MF, accreg(b, qb), a(A_W + 4 * ((F0 + i) % 8), 4), a(A_X + ((sl % XD) * 4 + qb) * 4, 4), c))
    NF = len(order)
    NP = len(mf)
    for sl in range(4):
        for kb in range(2):
            for qb in range(4):
                d = v(Sreg(0, qb, kb), 4)
                mf.append("%s %s, %s, %s, %s" % (MF, d, a(A_KF + (kb * 4 + sl) * 4, 4), v(V_Q + (sl * 4 + qb) * 4, 4), d if sl else "0"))
    G = Gaps(mf)
    ustart = []; n = 0
    for ss, bl in units: ustart.append(n); n += len(bl) * len(ss)
    lastF = {}; lastblk = {}; firstF = {}
    for u, (ss, bl) in enumerate(units):
        for k, sl in enumerate(ss):
            lastF[sl] = ustart[u] + len(bl) * len(ss) - 1
            firstF.setdefault(sl, ustart[u] + k * len(bl))
        for i, b in enumerate(bl): lastblk[b] = ustart[u] + (i + 1) * len(ss) - 1
    G1 = lambda sl: 4 * firstF[sl]
    DA = opt("pda", 6)
    rd = lambda F, j: w_read(A_W + 4 * (F % 8), order[F][1], j, (order[F][0] % RW) * 16384)
    pre_reads = [rd(F, j) for F in range(DA) for j in range(2)]
    TRW = opt("trw", 15) if heavy else 14
    bars = {}; cur = 0; seen = set(units[0][0])
    def barrier(u, lo, need):
        bb = G.place("b", "s_barrier", lo)
        G.put(bb, "s", "s_waitcnt WAITVM{%s}" % ",".join(need))
        bars[u] = bb
        return bb + 1
    for F in range(DA, NF):
        lo = 4 * (F - DA)
        if F in ustart:
            u = ustart.index(F)
            need = [k + str(sl) for sl in units[u][0] if sl not in seen for k in "xw"]
            seen |= set(units[u][0])
            if need or units[u][1][0] == 0: cur = barrier(u, max(cur, lo - 1), need or ["none"])
        for j in range(2): cur = G.place("d", rd(F, j), max(cur, lo + 2 * j), firstuse[F] - 6) + 1
    NU = len(units)
    cur = barrier(NU, cur + 1, ["K0", "K1"])
    kord = [(kb, sl) for sl in range(4) for kb in range(2)]
    for kb, sl in kord: cur = G.place("d", k_read(kb, sl, 0), cur) + 1
    barrier(NU + 1, max(cur + 5, NP), ["none"])
    kpost = []
    for i, (kb, sl) in enumerate(kord):
        lo = NP + 4 * i + 3
        try: cur = G.place("d", k_read(kb, sl, 8192), max(cur, lo)) + 1
        except RuntimeError: kpost.append(k_read(kb, sl, 8192))
    freeg = lambda sl: min(x for x in bars.values() if x >= 4 * lastF[sl])
    def wseq(sl):
        return [("s", "s_add_u32 m0, %s, %d" % (s(S_M0W), (sl % RW) * 16384))] + [("m", x) for x in w_dma(heavy, "w%d" % sl)] + \
               [("s", "s_add_u32 %s, %s, %d\ns_add_u32 %s, %s, %d" % (s(S_WQOFF), s(S_WQOFF), 32 * 8192, s(S_WGOFF), s(S_WGOFF), 32 * 3456))]
    def xseq(sl): return [("m", x_load(sl, qb)) for qb in range(4)] + [("s", "s_add_u32 %s, %s, 4096" % (s(S_XOFF), s(S_XOFF)))]
    def kvseq(which, i):
        return [("s", "s_add_u32 m0, %s, %d\ns_mov_b32 %s, %d" % (s(S_M0K), (L_K if which == "K" else L_V) + i * 8192, s(S_KVOFF), (i + (3 if which == "V" else 0)) * 8192))] + \
               [("m", kv_dma(which, k, "%s%d" % (which, i))) for k in range(2)]
    NX0 = opt("nx0", 2)
    e("s_mov_b32 %s, 0" % s(S_XOFF))
    q = []
    for sl in range(20):
        for kind in "wx":
            if kind == "w" and sl < NI: continue
            seq = wseq(sl) if kind == "w" else xseq(sl)
            if sl < NX0:
                for k, x in seq: e(x + ("\ns_nop 0" if " m0," in x else ""))
            else:
                lo = 0 if sl < 7 else (freeg(sl - RW) if kind == "w" else 4 * lastF[sl - XD] + 3)
                q.append((lo, seq))
    late = {13: [("V", 4)], 14: [("K", 0), ("K", 1)], 15: [("K", 2), ("K", 3)], 16: [("K", 4), ("K", 5)], 17: [("K", 6), ("K", 7)],
            18: [("V", 0), ("V", 1)], 19: [("V", 2), ("V", 3)]}
    side = []
    for sl in range(13, 20):
        for which, i in late[sl]: side.append((freeg(sl), kvseq(which, i)))
    WT = opt("wt", 6)
    if WT:
        for k, sl in enumerate([int(x) for x in opt("wts", "0.4.8").split(".")], 1):
            seq = [("s", "s_mov_b32 %s, %d" % (s(S_TMP), k * WT * 32 * 8192)), ("m", "buffer_load_dword %s, %s, %s, %s offen" % (v(V_DUMP), v(V_TC + 1), s(S_WQ, 4), s(S_TMP)))]
            if heavy:
                seq += [("s", "s_mov_b32 %s, %d" % (s(S_TMP), k * WT * 32 * 3456)),
                        ("m", "buffer_load_dword %s, %s, %s, %s offen offset:2048" % (v(V_DUMP), v(V_TC), s(S_WG, 4), s(S_TMP))),
                        ("m", "buffer_load_dword %s, %s, %s, %s offen offset:3072" % (v(V_DUMP), v(V_TC), s(S_WU, 4), s(S_TMP)))]
            side.append((G1(sl) + opt("wtg", 30), seq))
    t0 = v(V_TRA + 3)
    if opt("kvt", 14): side.append((G1(opt("kvt", 14)), [("v", "v_min_u32 %s, 15, %s" % (t0, v(L))), ("v", "v_lshlrev_b32 %s, 7, %s" % (t0, t0)),
               ("s", "s_lshl2_add_u32 %s, %s, %s\ns_lshl_b32 %s, %s, 11" % (s(S_TMP), s(S_QT), s(S_WAVE), s(S_TMP), s(S_TMP))),
               ("m", "buffer_load_dword %s, %s, %s, %s offen" % (v(V_DUMP), t0, s(S_K, 4), s(S_TMP))),
               ("s", "s_add_u32 %s, %s, %d" % (s(S_TMP), s(S_TMP), 3 * 8192)),
               ("m", "buffer_load_dword %s, %s, %s, %s offen" % (v(V_DUMP), t0, s(S_V, 4), s(S_TMP)))]))
    side.sort(key=lambda t: t[0])
    MG = opt("pmg", 4 if heavy else 2)
    g = 0; lastm = -9; vpost = []
    trlast = 0; lastload = 0
    while q or side:
        if side and (not q or side[0][0] <= max(g, q[0][0])): lo, seq = side.pop(0)
        else: lo, seq = q.pop(0)
        g = max(g, lo)
        for k, x in seq:
            if not vpost:
                try:
                    g = G.place(k, x, max(g + 1, lastm + MG if k == "m" else 0))
                    if k == "m": lastm = g
                    if re.search(r";#[xw]\d|;#trs", x) or "v%d," % V_DUMP in x: lastload = g
                    continue
                except RuntimeError: pass
            vpost.append(x + ("\ns_nop 0" if " m0," in x else ""))
    auto_lgkm(G, eager=opt("peag", 8))
    g = lastload + 2
    for x in gen_tail_setup():
        g = G.place("v" if x.startswith("v_") else "s", x, g + 1)
    setup_end = g
    g = max(g, trlast)
    for x in gen_tail_setup2(): g = G.place("v" if x.startswith("v_") else "s", x, g + 1)
    HZ = 8
    post = []
    def lay(items):
        g = 0; out = []
        for lo, k, x, hi in items:
            if not out:
                try:
                    g = G.place(k, x, max(g + (0 if k == "v" else 1), lo), hi, force=(hi is not None)); continue
                except RuntimeError: pass
            assert hi is None
            out.append(x)
        return out
    its = []
    for sl in range(4):
        for qb in range(4):
            d0 = V_Q + (sl * 4 + qb) * 4
            lo = 4 * lastblk[2 * sl + 1] + (qb if PC0 >= 19 else 2 * qb - 3) + HZ
            hi = NP - 3 if sl < 2 else NP + 8 * sl - 3
            for b in range(2):
                g0 = qacc(2 * sl + b, qb)
                for h in range(2): its.append((min(lo, hi), "v", "v_cvt_pk_bf16_f32 %s, %s, %s" % (v(d0 + 2 * b + h), v(g0 + 2 * h), v(g0 + 2 * h + 1)), hi))
    assert not lay(its)
    its = []
    if heavy:
        U = T
        for fb in range(4):
            for qb in range(4):
                g0 = V_ACCG + (fb * 4 + qb) * 4
                lo = max(4 * lastblk[8 + fb] + (qb if PC0 >= 19 else 2 * qb - 3) + HZ, setup_end + 1)
                for r in range(4): its.append((lo, "v", "v_accvgpr_read_b32 %s, %s" % (v(U + r), a(A_ACCU + (fb * 4 + qb) * 4 + r)), None))
                for r in range(4): its.append((lo, "v", "v_max_f32 %s, 0, %s" % (v(g0 + r), v(g0 + r)), None))
                for r in range(4): its.append((lo, "v", "v_mul_f32 %s, %s, %s" % (v(g0 + r), v(g0 + r), v(U + r)), None))
                d0 = V_ACCG + ((fb & ~1) * 4 + qb) * 4 + 2 * (fb & 1)
                for h in range(2): its.append((lo, "v", "v_cvt_pk_bf16_f32 %s, %s, %s" % (v(d0 + h), v(g0 + 2 * h), v(g0 + 2 * h + 1)), None))
                if fb & 1:
                    if qb == 0: its.append((lo, "s", "s_lshl_b32 %s, %s, 13\ns_add_u32 %s, %s, %d" % (s(S_TMP + 6), s(S_FS), s(S_TMP + 6), s(S_TMP + 6), (128 + (fb >> 1)) * 4096), None))
                    its.append((lo, "m", "buffer_store_dwordx4 %s, %s, %s, %s offen offset:%d%s" % (v(d0 - 2, 4), v(V_L16), s(S_AF, 4), s(S_TMP + 6), 1024 * qb, STFL), None))
    post += lay(its)
    its = [(setup_end + 1, "v", "v_mov_b32 %s, 0x3f803f80" % v(V_TRA + 2), None)] + [(setup_end + 2, "v", "v_accvgpr_write_b32 %s, %s" % (a(A_ONE + r), v(V_TRA + 2)), None) for r in range(4)]
    zs = []
    for k in range(XD):
        sl = max(x for x in range(20) if x % XD == k)
        zs.append((4 * lastF[sl] + 4, range(A_X + 16 * k, A_X + 16 * k + 16)))
    for k in range(4):
        F = max(x for x in range(NF) if x % 8 == k)
        zs.append((4 * (F | 1) + 4, range(A_W + 4 * k, A_W + 4 * k + 4)))
    for lo, rr in sorted(zs, key=lambda t: t[0]):
        for r in rr: its.append((lo, "v", "v_accvgpr_write_b32 %s, 0" % a(r), None))
    post += lay(its)
    if VERBOSE: print("proj", tag, G.pattern(), "| post", len(post), len(vpost), len(kpost))
    e.ext(pre_reads)
    e("s_waitcnt WAITVM{x0} lgkmcnt(0)")
    stamp(e, 3)
    nm = 0
    for x in G.lines():
        if x.startswith("v_mfma"):
            if STAMPS and nm % (NP // 5) == 0 and 0 < nm < NP: stamp(e, 18 + nm // (NP // 5))
            if nm == NP: stamp(e, 4)
            nm += 1
        e(x)
    for x in kpost + vpost + post: e(x)
    e("s_mov_b32 %s, %d" % (s(S_KVOFF), 8 * 8192))
    e("s_nop 1")
    for r in range(16): e("v_mov_b32 %s, 0" % v(V_L + r))
    for qb in range(4): e("v_mov_b32 %s, 0xff800000" % v(V_NEGM + 4 * qb))
    e("s_waitcnt WAITVM{K2,K3}")
    e0.ext(resolve_vm(e.L))

def kv_preload(e):
    e("s_mov_b32 %s, 0" % s(S_KVOFF))
    for i in range(8):
        e("s_add_u32 m0, %s, %d\ns_nop 0" % (s(S_M0K), L_K + i * 8192))
        e(kv_dma("K", 0)); e(kv_dma("K", 1))
        if i >= 3:
            e("s_add_u32 m0, %s, %d\ns_nop 0" % (s(S_M0K), L_V + (i - 3) * 8192))
            e(kv_dma("V", 0)); e(kv_dma("V", 1))
        e("s_add_u32 %s, %s, 8192" % (s(S_KVOFF), s(S_KVOFF)))
    e("s_waitcnt vmcnt(0)")

def Sreg(buf, qb, kb): return V_S + buf * 32 + qb * 8 + kb * 4
def Preg(buf, qb): return V_P + buf * 16 + qb * 4

def qk_mfmas(buf, czero=False):
    out = []
    order = {"kqs": [(kb, qb, sl) for kb in range(2) for qb in range(4) for sl in range(4)],
             "ksq": [(kb, qb, sl) for kb in range(2) for sl in range(4) for qb in range(4)],
             "snake": [(kb, qb, sl) for kb in range(2) for qb in range(4) for sl in range(4)]}[opt("qko", "snake")]
    for kb, qb, sl0 in order:
                sl = sl0
                d = v(Sreg(buf, qb, kb), 4)
                if opt("qko", "snake") == "snake":
                    first = sl0 == 0
                    sl = sl0 if qb % 2 == 0 else 3 - sl0
                    c = ("0" if czero else v(V_NEGM + 4 * qb, 4)) if first else d
                    out.append("%s %s, %s, %s, %s" % (MF, d, a(A_KF + (kb * 4 + sl) * 4, 4), v(V_Q + (sl * 4 + qb) * 4, 4), c))
                    continue
                c = d if sl else ("0" if czero else v(V_NEGM + 4 * qb, 4))
                out.append("%s %s, %s, %s, %s" % (MF, d, a(A_KF + (kb * 4 + sl) * 4, 4), v(V_Q + (sl * 4 + qb) * 4, 4), c))
    return out

def pv_mfmas(buf, tailmode=False):
    out = []
    for qb in range(4):
        out.append("%s %s, %s, %s, %s" % (MF, v(V_L + 4 * qb, 4), a(A_ONE, 4), v(Preg(buf, qb), 4), v(V_L + 4 * qb, 4)))
    pvo = opt("pvo", "qd2s")
    order = {"dq": [(db, qb) for db in range(8) for qb in range(4)],
             "snake": [(db, qb if db % 2 == 0 else 3 - qb) for db in range(8) for qb in range(4)],
             "qd2s": [(2 * h + (d if (i & 1) == 0 else 1 - d), i if h % 2 == 0 else 3 - i) for h in range(4) for i in range(4) for d in range(2)],
             "qd2": [(2 * h + d, qb) for h in range(4) for qb in range(4) for d in range(2)],
             "qd4": [(4 * h + d, qb) for h in range(2) for qb in range(4) for d in range(4)]}[pvo if not tailmode else "dq"]
    for db, qb in order:
            o = a(A_O + (db * 4 + qb) * 4, 4)
            out.append("%s %s, %s, %s, %s" % (MF, o, a(A_VF + db * 4, 4), v(Preg(buf, qb), 4), o))
    return out

def k_read(kb, sl, off): return "ds_read_b128 %s, %s offset:%d" % (a(A_KF + (kb * 4 + sl) * 4, 4), v(V_KA + sl), off + kb * 4096)
def v_read(db, j, off): return "ds_read_b64_tr_b16 %s, %s offset:%d" % (a(A_VF + db * 4 + 2 * j, 2), v(V_VA + db), off + j * 4096)

def softmax_ops(buf):
    ex = []; cv = []
    for qb in range(4):
        for kb in range(2):
            for r in range(4):
                x = v(Sreg(buf, qb, kb) + r)
                ex.append("v_exp_f32 %s, %s" % (x, x))
            for h in range(2):
                b = Sreg(buf, qb, kb) + 2 * h
                cv.append("v_cvt_pk_bf16_f32 %s, %s, %s" % (v(Preg(buf, qb) + kb * 2 + h), v(b), v(b + 1)))
    return ex, cv

def gen_attention(e):
    T = V_T
    e("ATT_START:")
    stamp(e, 5)
    e("s_barrier")
    z = ["s_nop 0"] * 4
    for qb in range(4):
        b = Sreg(0, qb, 0)
        e("v_max3_f32 %s, %s, %s, %s" % (v(T + qb), v(b), v(b + 1), v(b + 2)))
        e("v_max3_f32 %s, %s, %s, %s" % (v(T + qb), v(T + qb), v(b + 3), v(b + 4)))
        e("v_max3_f32 %s, %s, %s, %s" % (v(T + qb), v(T + qb), v(b + 5), v(b + 6)))
        e("v_max3_f32 %s, %s, %s, %s" % (v(T + qb), v(T + qb), v(b + 7), v(V_NEGM + 4 * qb)))
    for sw in ("v_permlane32_swap_b32", "v_permlane16_swap_b32"):
        for qb in range(4): e("v_mov_b32 %s, %s" % (v(T + 4 + qb), v(T + qb)))
        e.ext(z[:2]); z = z[2:]
        for qb in range(4): e("%s %s, %s" % (sw, v(T + qb), v(T + 4 + qb)))
        for qb in range(4): e("v_max_f32 %s, %s, %s" % (v(T + qb), v(T + qb), v(T + 4 + qb)))
    for qb in range(4):
        for r in range(4): e("v_sub_f32 %s, 0, %s" % (v(V_NEGM + 4 * qb + r), v(T + qb)))
    for qb in range(4):
        for r in range(8): e("v_sub_f32 %s, %s, %s" % (v(Sreg(0, qb, 0) + r), v(Sreg(0, qb, 0) + r), v(T + qb)))
    e.ext(z)
    e("s_waitcnt lgkmcnt(0)")

    def build(steps, loop, pend):
        mf = []; starts = []
        for sp in steps:
            starts.append(len(mf))
            if sp["qk"]: mf += qk_mfmas(1 - sp["buf"])
            if sp["pv"]: mf += pv_mfmas(1 - sp["buf"], not sp["qk"])
        G = Gaps(mf)
        for sp, st in zip(steps, starts):
            nq = 32 if sp["qk"] else 0
            npv = 36 if sp["pv"] else 0
            end = st + nq + npv - 1
            full = sp["qk"] and sp["pv"]
            cur = st; g = st; c2 = st
            if sp.get("bar") is not None:
                b = G.place("b", "s_barrier", st)
                G.put(b, "s", "s_waitcnt vmcnt(%d) lgkmcnt(0)" % sp["bar"])
                cur = b + 1
            if sp.get("bar63"):
                G.put(st + 5, "s", "s_waitcnt vmcnt(0)\ns_barrier")
            if full:
                for i in range(16):
                    lo = st + 4 * (i // 2) + (i % 2)
                    cur = G.place("d", v_read(i // 2, i % 2, sp["voff"]), max(cur, lo)) + 1
            if sp.get("vnext") is not None:
                c2 = st + nq + 4 + 3
                for i in range(16):
                    lo = min(st + nq + 4 + 4 * (i // 2) + 3, end)
                    c2 = G.place("d", v_read(i // 2, i % 2, sp["vnext"]), min(max(c2, lo), end), end, force=True) + 1
            if sp.get("koff") is not None:
                if full:
                    c2 = st + 32
                    for i in range(8):
                        c2 = G.place("d", k_read(i // 4, i % 4, sp["koff"]), max(c2, st + 32 + 3 * i)) + 1
                else:
                    c2 = st + 16
                    for i in range(4): c2 = G.place("d", k_read(0, i, sp["koff"]), c2) + 1
                    for i in range(4): G.put(end, "d", k_read(1, i, sp["koff"]))
            if sp.get("dma"):
                g = st + (33 if full else 2)
                for wi, which in enumerate(sp["dma"]):
                    g = G.place("s", "s_add_u32 m0, %s, %s" % (s(S_M0K), sp["m0" + which]), g)
                    for i in range(2): g = G.place("m", kv_dma(which, i), g + 2)
                    g += 1
                g = G.place("s", "s_add_u32 %s, %s, 8192" % (s(S_KVOFF), s(S_KVOFF)), g)
            marks = {"dma": g, "kread": c2 if sp.get("koff") is not None else st, "vread": cur}
            for (after, chain) in sp.get("misc", []):
                gg = marks[after] if isinstance(after, str) else st + after
                for (kind, text) in chain:
                    gg = G.place(kind, text, gg + (1 if kind == "s" else 0), end)
                marks["last"] = max(marks.get("last", 0), gg)
            if sp["sm"]:
                ex, cv = softmax_ops(sp["buf"])
                n = end - st + 1
                if full:
                    eg = []; g = st
                    for i, x in enumerate(ex):
                        tgt = st + (i * (n - 3)) // 32
                        g = G.place("e", x, max(g, tgt), end); eg.append(g)
                    g = st
                    for i, x in enumerate(cv): g = G.place("v", x, max(g, eg[2 * i + 1] + 1), end)
                else:
                    for i, x in enumerate(ex): G.put(st + (i * (n - 1)) // 32, "e", x)
                    for i, x in enumerate(cv): G.put(min(st + ((2 * i + 1) * (n - 1)) // 32 + 1, end), "v", x)
        pre, out = auto_lgkm(G, pend, loop=loop)
        return G, pre, out

    G, pre, pend = build([dict(buf=0, qk=True, pv=False, sm=True, koff=16384)], False, [])
    e.ext(G.lines())
    for sl in range(4): e("v_add_u32 %s, 16384, %s" % (v(V_KA + sl), v(V_KA + sl)))
    e("s_mov_b32 %s, 16384\ns_mov_b32 %s, 49152" % (s(S_TOG), s(S_TMP + 2)))
    e("s_mov_b32 %s, %d\ns_mov_b32 %s, %d" % (s(S_TMP + 3), 1 * 8192, s(S_TMP + 4), 6 * 8192 + L_V))
    e("s_waitcnt vmcnt(0) lgkmcnt(0)\ns_barrier")
    for which, m0 in (("K", L_K), ("V", L_V + 5 * 8192)):
        e("s_add_u32 m0, %s, %d\ns_nop 0" % (s(S_M0K), m0))
        e(kv_dma(which, 0)); e(kv_dma(which, 1))
    e("s_add_u32 %s, %s, 8192" % (s(S_KVOFF), s(S_KVOFF)))
    e("s_mov_b32 %s, %d\ns_cmp_eq_u32 %s, 0\ns_cselect_b32 %s, %d, %s" % (s(S_EVT), EVTE, s(S_WAVE), s(S_EVT), EVT1, s(S_EVT)))
    stamp(e, 6)
    e("s_cmp_lg_u32 %s, 0\ns_cbranch_scc1 NOSIG2" % s(S_RETRY))
    e("s_cmp_ge_u32 %s, 27\ns_cbranch_scc1 LT_INIT" % s(S_FS))
    e("s_cmp_lg_u32 %s, 0\ns_cbranch_scc1 NOSIG2" % s(S_WAVE))
    set_flag(e, 2)
    e("NOSIG2:")
    def adv(r, base):
        return [("s", "s_add_u32 %s, %s, 8192" % (s(r), s(r))), ("s", "s_and_b32 %s, %s, 0xffff" % (s(r), s(r)))] + \
               ([("s", "s_or_b32 %s, %s, %d" % (s(r), s(r), base))] if base else [])
    miscA = [("kread", [("v", "v_xor_b32 %s, %s, %s" % (v(V_KA + i), s(S_TMP + 2), v(V_KA + i))) for i in range(4)]),
             ("dma", adv(S_TMP + 3, 0) + adv(S_TMP + 4, L_V))]
    miscB = [(34, [("v", "v_xor_b32 %s, %s, %s" % (v(V_VA + i), s(S_TOG), v(V_VA + i))) for i in range(8)] +
                  [("s", "s_xor_b32 %s, %s, 32768" % (s(S_TOG), s(S_TOG))), ("s", "s_xor_b32 %s, %s, 32768" % (s(S_TMP + 2), s(S_TMP + 2)))]),
             ("dma", adv(S_TMP + 3, 0) + adv(S_TMP + 4, L_V)),
             ("last", [("s", "s_cmp_lt_u32 %s, %s" % (s(S_KVOFF), s(S_EVT)))])]
    G, pre, pend = build([dict(buf=1, qk=True, pv=True, sm=True, koff=8192, voff=0, dma="KV", m0K=s(S_TMP + 3), m0V=s(S_TMP + 4), misc=miscA),
                          dict(buf=0, qk=True, pv=True, sm=True, koff=0, voff=8192, bar=16, dma="KV", m0K=s(S_TMP + 3), m0V=s(S_TMP + 4), misc=miscB)], True, [])
    if VERBOSE: print("loop", G.pattern())
    e(".p2align 6\nATT_LOOP:")
    for x in G.lines(): e(x)
    e("s_cbranch_scc1 ATT_LOOP")
    e("s_cmp_lt_u32 %s, %d\ns_cbranch_scc1 ATT_EVT" % (s(S_KVOFF), EVTE))
    e("TAILC0:")
    global LIGHT_LOOP
    LIGHT_LOOP = light_loop(G)
    stamp(e, 7)
    e("s_waitcnt lgkmcnt(0)")
    vr = [v_read(i // 2, i % 2, 0) for i in range(16)]
    e.ext(vr)
    h = E()
    G, pre, pend = build([dict(buf=1, qk=False, pv=True, sm=True, vnext=8192, bar63=True)], False, [asmcheck.I(x, 0, 0).W for x in vr])
    assert pre is None
    pq = [x for sg in range(NPRE_X) for x in t8_w(sg) + t8_a(sg)]
    assert NPRE_X <= 3
    g = 6
    while pq and g < 36:
        k, x = pq.pop(0)
        if k == "s": G.sc[g].append(x); g += 1
        else: G.va[g].append(x); g += opt("x63", 3)
    for x in G.lines(): h(x)
    G = Gaps(pv_mfmas(1, True))
    G.put(opt("b64", 8), "b", "s_barrier")
    G.put(opt("b64", 8), "s", "s_waitcnt lgkmcnt(0)")
    g = 0; post = []
    for k, x in pq:
        if not post:
            try:
                g = G.place(k, x, g) + (opt("x64", 3) if k == "m" else 1); continue
            except RuntimeError: pass
        post.append(x + ("\ns_nop 0" if k == "s" else ""))
    pre, pend = auto_lgkm(G, pend)
    h("s_nop 1")
    if pre is not None: h("s_waitcnt lgkmcnt(%d)" % pre)
    for x in G.lines(): h(x)
    h("v_min_u32 %s, 7, %s\nv_lshlrev_b32 %s, %d, %s" % (v(V_PL + 3), v(V_LANE), v(V_PL + 3), FSH, v(V_PL + 3)))
    for x in post: h(x)
    return h.L

LT_SS, LT_SD = 44, (48, 56)
LT_SO, LT_DO, LT_R = 91, 96, 97
LT_VO, LT_VB, LT_VR, LT_AD = 40, 42, 44, 32
L_TRB = 131072
def light_loop(G):
    import copy
    G = copy.deepcopy(G)
    n = G.n()
    b = [g for g in range(n) if any("s_barrier" in x for x in G.va[g])][0]
    G.sc[b] = [x.replace("vmcnt(16)", "vmcnt(%d)" % opt("ltv", 24)) for x in G.sc[b]]
    lastm = max(g for g in range(b) if any(x.startswith("buffer") for x in G.va[g]))
    def lay(seq, g, hi, step=1):
        for k, x in seq:
            if k == "s":
                while not G.fits(g, "s"): g += 1
                G.put(g, "s", x)
            else:
                win = opt("ltw", 4) if k != "m" else opt("ltm", 4)
                g = min(range(g, min(g + win, hi) + 1), key=lambda y: (G.used[y] + (3 if (k == "d" and G.ds[y] and opt("ltd", 0)) else 0), y))
                (G.ds if k == "d" else G.va)[g].append(x); G.used[g] += 1 if k != "m" else 2
            g += step
            assert g <= hi + 1, (x, g, hi)
        return g
    lay([("s", "s_add_u32 m0, %s, %s" % (s(LT_R), s(S_TMP)))] +
        [("m", "buffer_load_dwordx4 %s, %s, %s offen offset:%d lds" % (v(LT_VO + i), s(LT_SS, 4), s(LT_SO), 1024 * i)) for i in range(2)] +
        [("s", "s_add_u32 %s, %s, %d\ns_add_u32 %s, %s, 2048" % (s(LT_SO), s(LT_SO), 8 * 40960, s(LT_R), s(LT_R))),
         ("s", "s_cmp_eq_u32 %s, 6144\ns_cselect_b32 %s, 0, %s" % (s(LT_R), s(LT_R), s(LT_R)))] +
        [("v", "v_add_u32 %s, %s, %s" % (v(LT_VR + f), s(LT_R), v(LT_VB + f))) for f in range(2)], lastm + 1, b - 1)
    g = lay([("d", "ds_read_b64_tr_b16 %s, %s offset:%d" % (a(LT_AD + 4 * f + 2 * j, 2), v(LT_VR + f), 1024 * j)) for f in range(2) for j in range(2)], b + 1, b + 24, 2)
    cmpg = [g for g in range(n) if any(x.startswith("s_cmp_lt_u32 %s" % s(S_KVOFF)) for x in G.sc[g])][0]
    g = lay([("m", "buffer_store_dwordx4 %s, %s, %s, %s offen%s" % (a(LT_AD, 4), v(V_L16), s(LT_SD[0], 4), s(LT_DO), opt("ltfl", STFL).replace("_", " ")))], b + 38, cmpg - 1)
    g = lay([("m", "buffer_store_dwordx4 %s, %s, %s, %s offen%s" % (a(LT_AD + 4, 4), v(V_L16), s(LT_SD[1], 4), s(LT_DO), opt("ltfl", STFL).replace("_", " ")))], g + 8, cmpg - 1)
    G.sc[cmpg].insert(0, "s_add_u32 %s, %s, %d" % (s(LT_DO), s(LT_DO), 8 * 5120))
    if VERBOSE: print("lightloop", G.pattern())
    return G.lines()

def gen_events(e):
    L = V_LANE; t = S_TMP
    e("LT_INIT:")
    e("s_sub_u32 %s, %s, 27\ns_lshl_b32 %s, %s, 3\ns_add_u32 %s, %s, %s\ns_lshl2_add_u32 %s, %s, %s" % (s(t), s(S_FS), s(t), s(t), s(t), s(t), s(S_QT), s(t), s(t), s(S_WAVE)))
    e("s_mul_i32 %s, %s, 3277\ns_lshr_b32 %s, %s, 16\ns_mul_i32 %s, %s, 20\ns_sub_u32 %s, %s, %s" % (s(t + 1), s(t), s(t + 1), s(t + 1), s(t + 6), s(t + 1), s(t), s(t), s(t + 6)))
    e("s_mul_i32 %s, %s, 40960\ns_lshl_b32 %s, %s, 6\ns_add_u32 %s, %s, %s" % (s(LT_SO), s(t + 1), s(t + 6), s(t), s(LT_SO), s(LT_SO), s(t + 6)))
    e("s_sub_u32 %s, %s, 16\ns_mul_i32 %s, %s, 5120" % (s(LT_DO), s(t + 1), s(LT_DO), s(LT_DO)))
    srd(e, LT_SS, ptr(4), 0, 4096 * 1280)
    for f in range(2):
        e("s_lshl1_add_u32 %s, %s, %d\ns_mul_i32 %s, %s, 13108\ns_lshr_b32 %s, %s, 16\ns_mul_i32 %s, %s, 5\ns_sub_u32 %s, %s, %s\ns_lshl_b32 %s, %s, 10" % (
            s(t + 1), s(t), f, s(t + 6), s(t + 1), s(t + 6), s(t + 6), s(t + 7), s(t + 6), s(t + 1), s(t + 1), s(t + 7), s(t + 1), s(t + 1)))
        e("s_mul_i32 %s, %s, %d\ns_add_u32 %s, %s, %s\ns_add_u32 %s, %s, %d" % (s(t + 6), s(t + 6), NSLAB * 5120, s(t + 6), s(t + 6), s(t + 1), s(t + 6), s(t + 6), WF_OFF))
        srd(e, LT_SD[f], ptr(11), s(t + 6), (NSLAB - 1) * 5120 + 1024)
    e("s_mul_i32 %s, %s, 6144\ns_add_u32 %s, %s, %d\ns_mov_b32 %s, 0\ns_mov_b32 %s, %d" % (s(t), s(S_WAVE), s(t), s(t), L_TRB, s(LT_R), s(S_EVT), EVTS))
    e("v_lshrrev_b32 %s, 2, %s\nv_bfe_u32 %s, %s, 4, 1\nv_and_b32 %s, 3, %s" % (v(46), v(L), v(47), v(L), v(48), v(L)))
    e("v_lshlrev_b32 %s, 1, %s\nv_xor_b32 %s, %s, %s\nv_mul_u32_u24 %s, 1280, %s\nv_lshl_add_u32 %s, %s, 4, %s\nv_add_u32 %s, %d, %s" % (
        v(49), v(47), v(49), v(49), v(48), v(LT_VO), v(46), v(LT_VO), v(49), v(LT_VO), v(LT_VO + 1), 16 * 1280 - 1024, v(LT_VO)))
    e("v_lshlrev_b32 %s, 6, %s\nv_lshl_add_u32 %s, %s, 3, %s\nv_lshl_add_u32 %s, %s, 5, %s\nv_add_u32 %s, %s, %s\nv_xor_b32 %s, 32, %s" % (
        v(LT_VB), v(46), v(LT_VB), v(48), v(LT_VB), v(LT_VB), v(47), v(LT_VB), v(LT_VB), s(t), v(LT_VB), v(LT_VB + 1), v(LT_VB)))
    e(".p2align 6\nLT_LOOP:")
    for x in LIGHT_LOOP: e(x)
    e("s_cbranch_scc1 LT_LOOP")
    e("s_cmp_lg_u32 %s, %d\ns_cbranch_scc1 LT_END" % (s(S_KVOFF), EVTS))
    srd(e, LT_SS, ptr(8), 0, 1728 * 1280)
    e("s_sub_u32 %s, %s, %d\ns_mov_b32 %s, %d\ns_branch LT_LOOP" % (s(LT_SO), s(LT_SO), 128 * 40960, s(S_EVT), EVTL))
    e("LT_END:")
    e("s_waitcnt vmcnt(0)\ns_barrier")
    e("s_mov_b32 %s, %d\ns_cmp_lg_u32 %s, 0\ns_cbranch_scc1 ATT_LOOP" % (s(S_EVT), EVTE, s(S_WAVE)))
    set_flag(e, 2)
    e("s_mov_b32 %s, %d\ns_branch ATT_LOOP" % (s(S_EVT), EVT1))
    e("ATT_EVT:")
    e("s_cmp_lg_u32 %s, %d\ns_cbranch_scc1 ATT_EVT3" % (s(S_KVOFF), EVT1))
    if opt("ctt", 1):
        e("s_getpc_b64 %s\nCODE2:\ns_sub_u32 %s, %s, CODE2-TAILC0\ns_subb_u32 %s, %s, 0" % (s(t + 6, 2), s(t + 6), s(t + 6), s(t + 7), s(t + 7)))
        e("s_lshr_b32 %s, s2, 3\ns_lshl_b32 %s, %s, 10" % (s(t + 1), s(t + 1), s(t + 1)))
        e("v_min_u32 %s, 7, %s\nv_lshlrev_b32 %s, 7, %s\nv_add_u32 %s, %s, %s\nv_min_u32 %s, K_END-TAILC0, %s" % (v(V_PL), v(L), v(V_PL), v(V_PL), v(V_PL), s(t + 1), v(V_PL), v(V_PL), v(V_PL)))
        e("global_load_dword %s, %s, %s" % (v(V_DUMP), v(V_PL), s(t + 6, 2)))
    e(poll_load(True))
    e("s_mov_b32 %s, %d\ns_branch ATT_LOOP" % (s(S_EVT), EVT1 + 4 * 8192))
    e("ATT_EVT3:")
    e("s_waitcnt vmcnt(16)")
    poll_spin(e, True, None, 2, "EARLY")
    e("s_mov_b32 %s, %d\ns_branch ATT_LOOP" % (s(S_EVT), EVTE))
assert all((g * 3277) >> 16 == g // 20 for g in range(160)) and all((c * 13108) >> 16 == c // 5 for c in range(40))

K_SX, K_SO = S_WU, S_X
T_SA, T_SW, T_XS = S_T, S_WF, S_WQ
T_XO = S_WG
T_TAG = S_WG + 3
T_M0W, T_OA, T_OW = 88, 89, 90
T_BA, T_BW = (S_XOFF, S_WQOFF), (S_WGOFF, S_M0W)
K_FLG = 95
KV_XO = 63; KV_X = 8
TV_WR, TV_L4K, TV_TAG, TV_OW, TV_OR = 60, 61, 62, 3, 4
XPB = 12288
NSD, NSG = 7, 23
RW8, RA8, RF8 = 6, 5, 10
L_OWN = [122880, 0]

def join_scalar(lines):
    out = []
    for x in lines:
        if x.startswith(("s_addc", "s_cselect")): out[-1] += "\n" + x
        else: out.append(x)
    return out

def gen_tail_setup():
    e = E()
    L = V_LANE; t = S_TMP
    R, Cc, KQ = t + 3, t + 4, t + 5
    e("s_bfe_u32 %s, s2, 0x10002\ns_lshl_b32 %s, %s, 3\ns_lshr_b32 %s, s2, 5\ns_add_u32 %s, %s, %s" % (s(R), s(R), s(R), s(t), s(R), s(R), s(t)))
    e("s_bfe_u32 %s, s2, 0x20003\ns_and_b32 %s, s2, 3" % (s(Cc), s(KQ)))
    e("s_lshr_b32 %s, %s, 1\ns_lshl1_add_u32 %s, %s, %s\ns_lshl2_add_u32 %s, %s, %s\ns_mul_i32 %s, %s, %d" % (s(t), s(KQ), s(t), s(R), s(t), s(t), s(t), s(S_WAVE), s(t), s(t), 16 * 1280))
    e("s_and_b32 %s, %s, 1\ns_lshl1_add_u32 %s, %s, %s\ns_mul_i32 %s, %s, 160\ns_add_u32 %s, %s, %s" % (s(t + 1), s(KQ), s(t + 1), s(Cc), s(t + 1), s(t + 1), s(t + 1), s(t), s(t), s(t + 1)))
    srd(e, K_SX, ptr(0), s(t), 15 * 1280 + 160)
    srd(e, K_SO, ptr(9), s(t), 15 * 1280 + 160)
    e("v_and_b32 %s, 15, %s\nv_mul_u32_u24 %s, 1280, %s\nv_lshrrev_b32 %s, 4, %s\nv_lshl_add_u32 %s, %s, 3, %s" % (v(KV_XO), v(L), v(KV_XO), v(KV_XO), v(V_T), v(L), v(KV_XO), v(V_T), v(KV_XO)))
    e("s_lshr_b32 %s, %s, 1\ns_lshl2_add_u32 %s, %s, %s\ns_lshl_b32 %s, %s, %d" % (s(K_FLG), s(R), s(K_FLG), s(K_FLG), s(KQ), s(K_FLG), s(K_FLG), FSH + 3))
    e("s_mul_i32 %s, %s, 7\ns_add_u32 %s, %s, 64\ns_lshl_b32 %s, %s, 13\ns_mul_i32 %s, %s, 10240" % (s(t), s(KQ), s(t), s(t), s(T_BA[0]), s(t), s(T_BW[0]), s(t)))
    e("s_lshl_b32 %s, %s, 17\ns_mul_i32 %s, %s, %d" % (s(T_BA[1]), s(KQ), s(T_BW[1]), s(KQ), 16 * 10240))
    e("s_lshl2_add_u32 %s, %s, %s\ns_mul_i32 %s, %s, %d\ns_add_u32 %s, %s, %d" % (s(t), s(R), s(Cc), s(t), s(t), 24 * XPB, s(t), s(t), XP_OFF))
    srd(e, T_XS, ptr(11), s(t), 24 * XPB)
    for ch in range(2):
        d = T_XO + ch
        e("s_and_b32 %s, %s, 2\ns_add_u32 %s, %s, %d\ns_xor_b32 %s, %s, %s\ns_mul_i32 %s, %s, 3\ns_add_u32 %s, %s, %s\ns_sub_u32 %s, %s, 1" % (
            s(t), s(S_WAVE), s(t), s(t), ch, s(t + 1), s(t), s(KQ), s(t), s(t), s(t), s(t), s(t + 1), s(t), s(t)))
        e("s_mul_i32 %s, %s, %d\ns_and_b32 %s, %s, 1\ns_mul_i32 %s, %s, 6144\ns_add_u32 %s, %s, %s" % (s(t), s(t), XPB, s(d), s(S_WAVE), s(d), s(d), s(d), s(d), s(t)))
        e("s_cmp_eq_u32 %s, 0\ns_cselect_b32 %s, 0x1000000, %s" % (s(t + 1), s(d), s(d)))
    e("s_mul_i32 %s, %s, %d\ns_mul_i32 %s, %s, 3072\ns_add_u32 %s, %s, %s" % (s(T_XO + 2), s(KQ), 3 * XPB, s(t), s(S_WAVE), s(T_XO + 2), s(T_XO + 2), s(t)))
    e("s_add_u32 %s, %s, 0x10000\ns_and_b32 %s, %s, 0x1fff0000\ns_or_b32 %s, %s, 0x40000000\nv_mov_b32 %s, %s" % (s(t), s(S_EPOCH), s(t), s(t), s(T_TAG), s(t), v(TV_TAG), s(T_TAG)))
    e("s_and_b32 %s, %s, 1\ns_mul_i32 %s, %s, 10240\nv_add_u32 %s, %s, %s" % (s(t), s(S_WAVE), s(t), s(t), v(TV_OW), s(t), v(V_L16)))
    e("s_mul_i32 %s, %s, 5120\nv_add_u32 %s, %s, %s" % (s(t), s(S_WAVE), v(TV_OR), s(t), v(V_L16)))
    e("s_lshr_b32 %s, %s, 1\ns_lshl1_add_u32 %s, %s, %s\ns_mul_i32 %s, %s, %d" % (s(t), s(S_WAVE), s(t), s(R), s(t), s(t), s(t), NSLAB * 4096))
    e("s_and_b32 %s, %s, 1\ns_lshl_b32 %s, %s, 11\ns_add_u32 %s, %s, %s" % (s(t + 1), s(S_WAVE), s(t + 1), s(t + 1), s(t), s(t), s(t + 1)))
    srd(e, T_SA, ptr(11), s(t), NSLAB * 4096 - 2048)
    e("s_mul_i32 %s, %s, 5120" % (s(T_M0W), s(S_WAVE)))
    e("s_and_b32 %s, %s, 1\ns_lshl1_add_u32 %s, %s, %s\ns_mul_i32 %s, %s, %d" % (s(t), s(S_WAVE), s(t), s(Cc), s(t), s(t), s(t), NSLAB))
    e("s_lshr_b32 %s, %s, 1\ns_add_u32 %s, %s, %s\ns_mul_i32 %s, %s, 5120\ns_add_u32 %s, %s, %d" % (s(t + 1), s(S_WAVE), s(t), s(t), s(t + 1), s(t), s(t), s(t), s(t), WF_OFF))
    return join_scalar(e.L)

def gen_tail_setup2():
    e = E()
    srd(e, T_SW, ptr(11), s(S_TMP), (NSLAB - 1) * 5120)
    e("v_mov_b32 %s, %s\nv_add_u32 %s, 4096, %s" % (v(TV_WR), v(V_L16), v(TV_L4K), v(V_L16)))
    return join_scalar(e.L)

def t8_w(sg):
    base = (sg % RW8) * 20480; tag = "D%d" % sg
    m, i = (0, sg) if sg < NSD else (1, sg - NSD)
    W = lambda vo, off: ("m", "buffer_load_dwordx4 %s, %s, %s offen offset:%d%s lds ;#%s" % (v(vo), s(T_SW, 4), s(T_OW), off, LDFL, tag))
    return [("s", "s_add_u32 %s, %s, %d\ns_add_u32 m0, %s, %d" % (s(T_OW), s(T_BW[m]), i * 10240, s(T_M0W), base)),
            W(V_L16, 0), W(V_L16, 1024), W(V_L16, 2048), W(V_L16, 3072),
            ("s", "s_add_u32 m0, %s, %d" % (s(T_M0W), base + 4096)), W(TV_L4K, 0)]
def t8_af(sg, half, j): return a((32, 48, 192, 208, 224)[sg % RA8] + half * 8 + j * 4, 4)
def t8_a(sg):
    m, i = (0, sg) if sg < NSD else (1, sg - NSD)
    l = [("s", "s_add_u32 %s, %s, %d" % (s(T_OA), s(T_BA[m]), i * 8192))]
    for half in range(2):
        for j in range(2):
            l.append(("m", "buffer_load_dwordx4 %s, %s, %s, %s offen offset:%d%s ;#A%d" % (t8_af(sg, half, j), v(TV_L4K if half else V_L16), s(T_SA, 4), s(T_OA), j * 1024, LDFL, sg)))
    return l
def t8_wf(F):
    k = F % RF8
    return a(4 * k if k < 8 else 240 + 4 * (k - 8), 4)
def t8_read(F):
    sg, f = F // 20, F % 20
    if opt("t8c", 1): f = (f & 1) * 10 + (f >> 1)
    return "ds_read_b128 %s, %s offset:%d" % (t8_wf(F), v(TV_WR), (sg % 3) * 20480 + f * 1024)
def t8_acc(m, n10, j):
    i = n10 * 2 + j
    if m == 0: return 128 + 4 * i
    return 64 + 4 * i if i < 16 else 208 + 4 * (i - 16)
NPRE_X = opt("nprex", 2)
NPRE_G = opt("npreg", 2)

def cond_lines(lines): return [("@" + x) if x.startswith("buffer") else x for x in lines]

def publish(m):
    out = []; n = 0
    for ch in range(2):
        out.append(("s", "s_add_u32 %s, %s, %d" % (s(S_TMP + 2), s(T_XO + ch), m * 12 * XPB)))
        for j in range(2):
            vals = [t8_acc(m, 5 * ch + nb, j) + k for nb in range(5) for k in range(4)]
            pb = (40, 240)[n % 2]; n += 1
            for gi in range(3):
                vs = vals[7 * gi:7 * gi + 7]
                if len(vs) < 7: vs = vs + [TV_TAG]
                for h in range(3): out.append(("v", "v_cvt_pk_bf16_f32 %s, %s, %s" % (v(pb + 4 * gi + h), v(vs[2 * h]), v(vs[2 * h + 1]))))
                out.append(("v", "v_cvt_pk_bf16_f32 %s, %s, %s" % (v(pb + 4 * gi + 3), v(vs[6]), v(TV_TAG))))
                off = j * 3072 + gi * 1024
                out.append(("m", "buffer_store_dwordx4 %s, %s, %s, %s offen offset:%d%s ;#xst%d" % (v(pb + 4 * gi, 4), v(TV_L4K if off >= 4096 else V_L16), s(T_XS, 4), s(S_TMP + 2), off % 4096, STFL, m)))
    return out
def own_write(m):
    l = []
    if L_OWN[m]: l.append("v_add_u32 %s, %d, %s" % (v(52), L_OWN[m], v(TV_OW)))
    ar = v(52) if L_OWN[m] else v(TV_OW)
    for ch in range(2):
        l.append("s_cmp_lg_u32 %s, 0x1000000\ns_cbranch_scc1 NOOWN%d%d" % (s(T_XO + ch), m, ch))
        for j in range(2):
            for nb in range(5): l.append("ds_write_b128 %s, %s offset:%d" % (ar, v(t8_acc(m, 5 * ch + nb, j), 4), (j * 5 + nb) * 1024))
        l.append("NOOWN%d%d:" % (m, ch))
    return l
XR = [128, 64]; OWR = [164, 184]
def xloads(m):
    l = []
    for i in range(3):
        l.append(("s", "s_add_u32 %s, %s, %d" % (s(S_TMP + 3), s(T_XO + 2), m * 12 * XPB + i * XPB)))
        for k in range(3): l.append(("m", "buffer_load_dwordx4 %s, %s, %s, %s offen offset:%d%s ;#xr%d" % (v(XR[m] + (i * 3 + k) * 4, 4), v(V_L16), s(T_XS, 4), s(S_TMP + 3), k * 1024, LDFL, m)))
    return l
def xcheck(e, m, first_wait):
    t = S_TMP
    e("s_mov_b32 %s, 0" % s(t + 7))
    e(first_wait)
    e("XCHK%d:" % m)
    for i in range(9): e("v_xor_b32 %s, %s, %s" % (v(20 + i), s(T_TAG), v(XR[m] + 4 * i + 3)))
    for i in range(4): e("v_or3_b32 %s, %s, %s, %s" % (v(20), v(20), v(21 + 2 * i), v(22 + 2 * i)))
    e("v_cmp_lt_u32 vcc, 0xffff, %s" % v(20))
    e("s_add_u32 %s, %s, 1" % (s(t + 7), s(t + 7)))
    e("s_cmp_eq_u64 vcc, 0\ns_cbranch_scc1 XOK%d" % m)
    e("s_cmp_ge_u32 %s, 0x40000\ns_cbranch_scc1 XOK%d" % (s(t + 7), m))
    e("s_sleep %d" % opt("xslp", 4))
    for x in cond_lines([x for _, x in xloads(m)]): e(x)
    e("s_waitcnt vmcnt(0)\ns_branch XCHK%d" % m)
    e("XOK%d:" % m)
def xsum(e, m, nb):
    o = OWR[m] + 4 * nb
    for i in range(3):
        for k in range(4):
            idx = nb * 4 + k; gi, pos = idx // 7, idx % 7
            src = XR[m] + (i * 3 + gi) * 4 + pos // 2
            e(("v_and_b32 %s, 0xffff0000, %s" if pos & 1 else "v_lshlrev_b32 %s, 16, %s") % (v(20 + 4 * i + k), v(src)))
    for h in range(2):
        e("v_pk_add_f32 %s, %s, %s" % (v(o + 2 * h, 2), v(o + 2 * h, 2), v(20 + 2 * h, 2)))
        e("v_pk_add_f32 %s, %s, %s" % (v(24 + 2 * h, 2), v(24 + 2 * h, 2), v(28 + 2 * h, 2)))
    for h in range(2): e("v_pk_add_f32 %s, %s, %s" % (v(o + 2 * h, 2), v(o + 2 * h, 2), v(24 + 2 * h, 2)))

def gen_t8(e):
    t = S_TMP
    mf = []
    NF = 20 * NSG
    for F in range(NF):
        sg, f = F // 20, F % 20
        m = 0 if sg < NSD else 1
        if opt("t8c", 1):
            j = f & 1; F0 = F - j
            d = v(t8_acc(m, f >> 1, j), 4)
            for i, half in enumerate((0, 1) if j == 0 else (1, 0)):
                mf.append("%s %s, %s, %s, %s" % (MF, d, t8_wf(F0 + half), t8_af(sg, half, j), "0" if (sg in (0, NSD) and i == 0) else d))
            continue
        for j in range(2):
            d = v(t8_acc(m, f % 10, j), 4)
            mf.append("%s %s, %s, %s, %s" % (MF, d, t8_wf(F), t8_af(sg, f // 10, j), "0" if (sg in (0, NSD) and f < 10) else d))
    G = Gaps(mf)
    DA = opt("t8d", 8)
    SIGS = opt("sigs", 2); CKS = opt("cks", 6); PLS = CKS - opt("polld", 1)
    bars = {}
    cur = 0
    for F in range(DA, NF):
        sg, f = F // 20, F % 20
        lo = 2 * (F - DA)
        if f == 0:
            if sg % 3 == 0:
                d = 61440 if sg % 6 == 3 else -61440
                G.place("v", ("v_add_u32 %s, %d, %s" % (v(TV_WR), d, v(TV_WR))) if d > 0 else ("v_subrev_u32 %s, %d, %s" % (v(TV_WR), -d, v(TV_WR))), cur - 1, cur - 1)
            pre = E(); post = E()
            if sg == CKS:
                stamp(pre, 11)
                pre("s_cmp_lg_u32 %s, 0\ns_cbranch_scc1 SPUN_O\ns_waitcnt SINCE{p3}" % s(S_WAVE))
                poll_spin(pre, False, s(K_FLG), 3, "O")
                stamp(post, 12)
            if sg == SIGS:
                post("s_cmp_lg_u32 %s, 0\ns_cbranch_scc1 NOSIG3" % s(S_WAVE))
                set_flag(post, 3)
                post("s_cmp_lg_u32 s2, 0\ns_cbranch_scc1 NOSIG3")
                post("s_add_u32 %s, %s, 0x10001\ns_mov_b64 exec, 1\nv_mov_b32 %s, %s\ns_mov_b32 %s, %d" % (s(t + 7), s(S_EPOCH), v(V_PL + 1), s(t + 7), s(t + 6), EP_OFF))
                post("buffer_store_dword %s, off, %s, %s sc1\ns_mov_b64 exec, -1" % (v(V_PL + 1), s(S_FL, 4), s(t + 6)))
                post("NOSIG3:")
                stamp(post, 10)
            if sg == PLS:
                post("s_cmp_lg_u32 %s, 0\ns_cbranch_scc1 NOPOLL3" % s(S_WAVE))
                post(poll_load(False, s(K_FLG)))
                post("NOPOLL3:\nMARK p3")
            b = G.place("b", "\n".join(cond_lines(pre.L) + ["s_barrier"] + cond_lines(post.L)), max(cur, lo - 1))
            lateA = NSD <= sg < NSD + opt("latea", 2)
            G.put(b, "s", "s_waitcnt WAITVM{D%d%s%s}" % (sg, "" if lateA else ",A%d" % sg, ",ost" if sg == SIGS else ""))
            if lateA: G.put(40 * sg - 1, "s", "s_waitcnt WAITVM{A%d}" % sg)
            bars[sg] = b; cur = b + 1
        cur = G.place("d", t8_read(F), max(cur, lo)) + 1
    qw = [(t8_w(sg), bars[sg - RW8 + 2] if sg >= RW8 else 0, sg) for sg in range(NPRE_G, NSG)]
    qa = [(t8_a(sg), max(40 * (sg - RA8 + 1) if sg >= RA8 else 0, bars[CKS] if sg >= NSD else 0), sg) for sg in range(NPRE_G, NSG)]
    DP = opt("dpub", 1)
    side = []
    if DP:
        side.append((publish(0), 40 * NSD + 8 + opt("dpd", 20)))
        side.append((xloads(0), 40 * opt("dld", 20)))
    side.append(([("m", "buffer_load_dwordx2 %s, %s, %s, 0 offen offset:%d ;#xx" % (v(KV_X + 2 * nb, 2), v(KV_XO), s(K_SX, 4), nb * 32)) for nb in range(5)], 40 * opt("xld", 19)))
    side.sort(key=lambda x: x[1])
    MG = opt("mg", 4)
    g = 0; lastm = -9
    while qw or qa:
        c = [x for x in (qw, qa) if x]
        c.sort(key=lambda x: (max(x[0][1], g), x[0][2]))
        seq, lo, _ = c[0].pop(0)
        g = max(g, lo)
        for k, x in seq:
            g = G.place(k, x, max(g + 1, lastm + MG if k == "m" else 0))
            if k == "m": lastm = g
    for seq, lo in side:
        g = lo; lastm = -99
        for k, x in seq:
            g = G.place(k, x, max(g + (0 if k == "v" else 1), lastm + (opt("smg", 32) if "xst" in x else 6) if k == "m" else 0))
            if k == "m": lastm = g
        if "xst0" in seq[-1][1]:
            G.va[g + 1].append("\n".join(own_write(0))); pubend = g + 1
    if DP: assert pubend < 40 * opt("dld", 20) - 40
    auto_lgkm(G, eager=opt("eag", 8))
    if VERBOSE: print("t8", G.pattern())
    for F in range(DA): e(t8_read(F))
    e("s_waitcnt lgkmcnt(0)")
    nm = 0
    for x in G.lines():
        if x.startswith("v_mfma"):
            if nm == 40 * NSD: stamp(e, 13)
            if STAMPS and opt("t8st", 0) and nm > 40 * NSD and (nm - 40 * NSD) % 160 == 0: stamp(e, 25 + (nm - 40 * NSD) // 160)
            nm += 1
        e(x)

def gen_tail(e0, head):
    e = E(); e.ext(head)
    T = V_T; t = S_TMP
    stamp(e, 8)
    Z = 240 + 8; C = 240 + 12
    for qb in range(4): e("v_rcp_f32 %s, %s" % (v(T + 2 * qb), v(V_L + 4 * qb)))
    e("v_max3_f32 %s, %s, %s, %s" % (v(T + 8), v(V_L), v(V_L + 4), v(V_L + 8)))
    e("v_max_f32 %s, %s, %s" % (v(T + 8), v(T + 8), v(V_L + 12)))
    for qb in range(4): e("v_mov_b32 %s, %s" % (v(T + 2 * qb + 1), v(T + 2 * qb)))
    e("v_mul_f32 %s, %s, %s" % (v(T + 8), f2u(2.0 ** 64), v(T + 8)))
    e("v_mul_f32 %s, 0, %s" % (v(T + 8), v(T + 8)))
    for qb in range(4): e("v_fma_f32 %s, %s, 0, %s" % (v(T + 8), v(V_L + 4 * qb), v(T + 8)))
    for r in range(4): e("v_mov_b32 %s, 0" % v(Z + r))
    e("s_lshl_b32 %s, %s, 14" % (s(t + 2), s(S_HEAD)))
    W = T + 12
    wq = [x for sg in range(NPRE_X, NPRE_G) for x in t8_w(sg) + t8_a(sg)]
    def wsome(n):
        while wq and n > 0:
            k, x = wq.pop(0); n -= (k == "m")
            e(x + ("\ns_nop 0" if k == "s" else ""))
    for i in range(16):
        sl, qb = i // 4, i % 4
        d0 = 208 + 4 * (i % 4)
        for b in range(2):
            for r in range(4): e("v_accvgpr_read_b32 %s, %s" % (v(W + 4 * b + r), a(A_O + ((2 * sl + b) * 4 + qb) * 4 + r)))
        for h in range(4): e("v_pk_mul_f32 %s, %s, %s" % (v(W + 2 * h, 2), v(W + 2 * h, 2), v(T + 2 * qb, 2)))
        for h in range(4): e("v_cvt_pk_bf16_f32 %s, %s, %s" % (v(d0 + h), v(W + 2 * h), v(W + 2 * h + 1)))
        e("buffer_store_dwordx4 %s, %s, %s, %s offen offset:%d%s ;#ost" % (v(d0, 4), v(V_L16), s(S_AF, 4), s(t + 2), 1024 * qb, STFL))
        e("s_add_u32 %s, %s, 4096" % (s(t + 2), s(t + 2)) if qb == 3 else "s_nop 0")
        e("%s %s, %s, %s, %s" % (MF, v(C, 4), v(Z, 4), v(d0, 4), "0" if i == 0 else v(C, 4)))
        wsome(opt("wpg", 1))
    wsome(99)
    e("s_nop 7")
    e("v_cmp_u_f32 vcc, %s, %s" % (v(T + 8), v(C)))
    e("s_cmp_lg_u64 vcc, 0\ns_cselect_b32 %s, 1, 0" % s(t))
    e("v_mov_b32 %s, %s" % (v(W), s(t)))
    e("s_lshl_b32 %s, %s, 2\ns_add_u32 %s, %s, %d" % (s(t + 1), s(S_WAVE), s(t + 1), s(t + 1), L_MISC))
    e("v_mov_b32 %s, %s\nv_mov_b32 %s, %d" % (v(W + 1), s(t + 1), v(W + 2), L_MISC))
    e("ds_write_b32 %s, %s" % (v(W + 1), v(W)))
    e("s_waitcnt WAITVM{D0,A0} lgkmcnt(0)\ns_barrier")
    e("ds_read_b128 %s, %s" % (v(W + 4, 4), v(W + 2)))
    t8 = E(); gen_t8(t8)
    i0 = t8.L.index("s_waitcnt lgkmcnt(0)")
    e.ext(t8.L[:i0 + 1])
    e("v_or3_b32 %s, %s, %s, %s\nv_or_b32 %s, %s, %s\ns_nop 0" % (v(W + 4), v(W + 4), v(W + 5), v(W + 6), v(W + 4), v(W + 4), v(W + 7)))
    e("v_readfirstlane_b32 %s, %s" % (s(t), v(W + 4)))
    e("s_nop 3\ns_andn2_b32 %s, %s, %s" % (s(t), s(t), s(S_RETRY)))
    e("s_cbranch_scc1 ATT_RETRY")
    stamp(e, 9)
    e.ext(t8.L[i0 + 1:])
    stamp(e, 14)
    DP = opt("dpub", 1)
    e("s_nop 6")
    for k, x in publish(1): e(x)
    if not DP:
        for k, x in publish(0): e(x)
        for x in own_write(0): e(x)
    stamp(e, 23)
    for x in own_write(1): e(x)
    e("v_add_u32 %s, %d, %s" % (v(52), L_OWN[0], v(TV_OR)))
    e("s_waitcnt lgkmcnt(0)")
    if not DP:
        for k, x in xloads(0): e(x)
    XE = opt("xe", 0)
    if XE:
        for k, x in xloads(1): e(x)
    e("s_barrier")
    for nb in range(5): e("ds_read_b128 %s, %s offset:%d" % (v(OWR[0] + 4 * nb, 4), v(52), nb * 1024))
    for nb in range(5): e("ds_read_b128 %s, %s offset:%d" % (v(OWR[1] + 4 * nb, 4), v(TV_OR), L_OWN[1] + nb * 1024))
    xcheck(e, 0, "s_waitcnt WAITVM{xr0,xx} lgkmcnt(0)")
    GG = 100; XU = 204
    for nb in range(5):
        if nb == opt("xat", 2) and not XE and not opt("probe", 1):
            for k, x in xloads(1): e(x)
        d = OWR[0] + 4 * nb; gq = GG + 4 * nb
        xsum(e, 0, nb)
        for k in range(4): e("v_mul_f32 %s, %s, %s" % (v(gq + k), f2u(-math.log2(math.e) * DSC), v(d + k)))
        for k in range(4): e("v_exp_f32 %s, %s" % (v(gq + k), v(gq + k)))
        for k in range(4): e("v_mul_f32 %s, %s, %s" % (v(d + k), f2u(DSC), v(d + k)))
        for k in range(4): e("v_add_f32 %s, 1.0, %s" % (v(gq + k), v(gq + k)))
        for k in range(4): e("v_rcp_f32 %s, %s" % (v(gq + k), v(gq + k)))
        for h in range(2):
            e("v_lshlrev_b32 %s, 16, %s" % (v(XU + 4 * nb + 2 * h), v(KV_X + 2 * nb + h)))
            e("v_and_b32 %s, 0xffff0000, %s" % (v(XU + 4 * nb + 2 * h + 1), v(KV_X + 2 * nb + h)))
        for k in range(4): e("v_mul_f32 %s, %s, %s" % (v(gq + k), v(gq + k), v(d + k)))
    stamp(e, 24)
    if opt("probe", 1):
        e("s_mov_b32 %s, 0\nv_mov_b32 %s, %d" % (s(t + 7), v(30), XPB))
        e("v_min_u32 %s, 2, %s\nv_mul_lo_u32 %s, %s, %s\ns_add_u32 %s, %s, %d" % (v(31), v(V_LANE), v(31), v(31), v(30), s(t + 3), s(T_XO + 2), 12 * XPB + 2048 + 1008 + 12))
        e("PROBE:")
        e("@buffer_load_dword %s, %s, %s, %s offen%s" % (v(30), v(31), s(T_XS, 4), s(t + 3), LDFL))
        e("s_waitcnt vmcnt(0)")
        e("v_xor_b32 %s, %s, %s\nv_cmp_lt_u32 vcc, 0xffff, %s" % (v(30), s(T_TAG), v(30), v(30)))
        e("s_add_u32 %s, %s, 1" % (s(t + 7), s(t + 7)))
        e("s_cmp_eq_u64 vcc, 0\ns_cbranch_scc1 PROBED")
        e("s_cmp_ge_u32 %s, 0x40000\ns_cbranch_scc1 PROBED" % s(t + 7))
        e("s_sleep %d\ns_branch PROBE" % opt("pslp", 12))
        e("PROBED:")
        for k, x in xloads(1): e(x)
    xcheck(e, 1, "s_waitcnt vmcnt(0)")
    stamp(e, 25)
    for nb in range(5):
        o = OWR[1] + 4 * nb; gq = GG + 4 * nb; xu = XU + 4 * nb
        xsum(e, 1, nb)
        for r in range(4): e("v_fma_f32 %s, %s, %s, %s" % (v(xu + r), v(o + r), v(gq + r), v(xu + r)))
        for h in range(2): e("v_cvt_pk_bf16_f32 %s, %s, %s" % (v(gq + h), v(xu + 2 * h), v(xu + 2 * h + 1)))
        e("buffer_store_dwordx2 %s, %s, %s, 0 offen offset:%d%s" % (v(gq, 2), v(KV_XO), s(K_SO, 4), nb * 32, opt("ofl", "_sc1").replace("_", " ")))
    e0.ext([x.lstrip("@") for x in resolve_vm(e.L)])
    e = e0
    stamp(e, 15)
    if STAMPS: e("s_waitcnt vmcnt(0)")
    stamp(e, 16)
    stamp_fin(e)

def gen_kv_addr(e):
    T = V_T + 12; L = V_LANE
    e("v_and_b32 %s, 15, %s\nv_lshrrev_b32 %s, 4, %s\nv_xor_b32 %s, %s, %s" % (v(T), v(L), v(T + 1), v(L), v(T + 1), v(T + 1), v(T)))
    e("v_lshlrev_b32 %s, 8, %s\nv_lshl_add_u32 %s, %s, 4, %s" % (v(T), v(T), v(T), v(T + 1), v(T)))
    for sl in range(4): e("v_xor_b32 %s, %d, %s" % (v(V_KA + sl), sl * 64, v(T)))
    e("v_lshrrev_b32 %s, 2, %s\nv_and_b32 %s, 7, %s\nv_lshlrev_b32 %s, 8, %s\nv_lshl_add_u32 %s, %s, 5, %s" % (v(T), v(L), v(T + 1), v(T), v(T), v(T), v(T), v(T + 1), v(T)))
    e("v_and_b32 %s, 3, %s\nv_lshl_add_u32 %s, %s, 3, %s\nv_add_u32 %s, %d, %s" % (v(T + 1), v(L), v(T), v(T + 1), v(T), v(T), L_V, v(T)))
    for db in range(8): e("v_xor_b32 %s, %d, %s" % (v(V_VA + db), db * 32, v(T)))

def gen_retry(e):
    e("ATT_RETRY:")
    e("s_waitcnt vmcnt(0)\ns_mov_b32 %s, 1" % s(S_RETRY))
    gen_kv_addr(e)
    for qb in range(4): e("v_mov_b32 %s, 0xff800000" % v(V_NEGM + 4 * qb))
    e("s_mov_b32 %s, 0" % s(S_KVOFF))
    e("RETRY_LOOP:")
    e("s_barrier")
    e("s_add_u32 m0, %s, %d\ns_nop 0" % (s(S_M0K), L_K))
    e(kv_dma("K", 0)); e(kv_dma("K", 1))
    e("s_waitcnt vmcnt(0)\ns_barrier")
    for kb in range(2):
        for sl in range(4): e(k_read(kb, sl, 0))
    e("s_waitcnt lgkmcnt(0)")
    e.ext(qk_mfmas(0, czero=True))
    e("s_nop 7")
    for qb in range(4):
        b = Sreg(0, qb, 0); m = v(V_NEGM + 4 * qb)
        for k in range(4): e("v_max3_f32 %s, %s, %s, %s" % (m, m, v(b + 2 * k), v(b + 2 * k + 1)))
    e("s_add_u32 %s, %s, 8192\ns_cmp_lt_u32 %s, %d\ns_cbranch_scc1 RETRY_LOOP" % (s(S_KVOFF), s(S_KVOFF), s(S_KVOFF), 64 * 8192))
    e("s_barrier")
    kv_preload(e)
    e("s_barrier")
    for kb in range(2):
        for sl in range(4): e(k_read(kb, sl, 0))
    e("v_mov_b32 %s, 0x3f803f80" % v(V_T))
    for r in range(4): e("v_accvgpr_write_b32 %s, %s" % (a(A_ONE + r), v(V_T)))
    for r in range(128): e("v_accvgpr_write_b32 %s, 0" % a(A_O + r))
    for r in range(16): e("v_mov_b32 %s, 0" % v(V_L + r))
    e("s_waitcnt lgkmcnt(0)")
    e.ext(qk_mfmas(0, czero=True))
    for kb in range(2):
        for sl in range(4): e(k_read(kb, sl, 8192))
    e("s_branch ATT_START")

def gen_common_setup(e):
    T = V_T + 12; L = V_LANE
    e("s_lshl2_add_u32 %s, %s, %s" % (s(S_TMP + 1), s(S_QT), s(S_WAVE)))
    e("s_mul_i32 %s, %s, %d" % (s(S_TMP), s(S_TMP + 1), NSLAB * 4096))
    srd(e, S_AF, ptr(11), s(S_TMP), NSLAB * 4096)
    e("s_mul_i32 %s, %s, %d\ns_add_u32 %s, %s, %d" % (s(S_TMP), s(S_TMP + 1), 20 * 4096, s(S_TMP), s(S_TMP), XF_OFF))
    srd(e, S_X, ptr(11), s(S_TMP), 20 * 4096)
    e("s_lshl_b32 %s, %s, 19" % (s(S_TMP), s(S_HEAD)))
    srd(e, S_K, ptr(1), s(S_TMP), 524288)
    srd(e, S_V, ptr(2), s(S_TMP), 524288 + 3 * 8192)
    e("s_sub_u32 %s, %s, %d\ns_subb_u32 %s, %s, 0" % (s(S_V), s(S_V), 3 * 8192, s(S_V + 1), s(S_V + 1)))
    e("v_bfe_u32 %s, %s, 2, 2\nv_lshrrev_b32 %s, 4, %s\nv_and_b32 %s, 3, %s" % (v(T), v(L), v(T + 1), v(L), v(T + 2), v(L)))
    e("v_lshlrev_b32 %s, 12, %s" % (v(T + 3), v(T + 1)))
    e("v_mul_u32_u24 %s, 320, %s\nv_add_u32 %s, %s, %s\nv_lshl_add_u32 %s, %s, 4, %s" % (v(T + 4), v(T), v(T + 4), v(T + 4), v(T + 3), v(T + 4), v(T + 2), v(T + 4)))
    for sl in range(4): e("v_xor_b32 %s, %d, %s" % (v(V_AQ + sl), sl * 64, v(T + 4)))
    e("v_lshl_add_u32 %s, %s, 7, %s\nv_lshl_add_u32 %s, %s, 3, %s" % (v(T + 4), v(T), v(T + 3), v(T + 4), v(T + 2), v(T + 4)))
    e("v_bfe_u32 %s, %s, 3, 2\nv_lshl_add_u32 %s, %s, 5, %s" % (v(T + 5), v(L), v(T + 4), v(T + 5), v(T + 4)))
    for u in range(4): e("v_xor_b32 %s, %d, %s" % (v(V_AG + u), u * 32, v(T + 4)))
    e("v_lshrrev_b32 %s, 4, %s\ns_lshl_b32 %s, %s, 3\nv_add_u32 %s, %s, %s\nv_and_b32 %s, 15, %s" % (v(T), v(L), s(S_TMP), s(S_WAVE), v(T), s(S_TMP), v(T), v(T + 1), v(L)))
    e("v_lshlrev_b32 %s, 8, %s" % (v(T + 2), v(T)))
    for i in range(2):
        e("v_add_u32 %s, %d, %s\nv_and_b32 %s, 15, %s\nv_xor_b32 %s, %s, %s\nv_lshl_add_u32 %s, %s, 4, %s" % (v(T + 3), 4 * i, v(T), v(T + 4), v(T + 3), v(T + 4), v(T + 4), v(T + 1), v(V_KD + i), v(T + 4), v(T + 2)))
        e("v_and_b32 %s, 7, %s\nv_lshlrev_b32 %s, 1, %s\nv_xor_b32 %s, %s, %s\nv_lshl_add_u32 %s, %s, 4, %s" % (v(T + 4), v(T + 3), v(T + 4), v(T + 4), v(T + 4), v(T + 4), v(T + 1), v(V_VD + i), v(T + 4), v(T + 2)))
    gen_kv_addr(e)

def gen_w_setup(e):
    T = V_T + 12; L = V_LANE
    e("v_lshrrev_b32 %s, 4, %s\nv_lshlrev_b32 %s, 2, %s\nv_and_b32 %s, 15, %s\nv_xor_b32 %s, %s, %s" % (v(T), v(L), v(T + 1), v(T), v(T + 2), v(L), v(T + 1), v(T + 1), v(T + 2)))
    e("v_lshlrev_b32 %s, 13, %s\nv_lshl_add_u32 %s, %s, 4, %s" % (v(T), v(T), v(V_WD), v(T + 1), v(T)))
    e("v_add_u32 %s, %d, %s" % (v(V_WD + 1), 4 * 8192 - 1024, v(V_WD)))
    e("v_lshrrev_b32 %s, 3, %s\nv_bfe_u32 %s, %s, 4, 1\nv_lshlrev_b32 %s, 1, %s" % (v(T), v(L), v(T + 1), v(L), v(T + 1), v(T + 1)))
    e("s_and_b32 %s, %s, 1\ns_lshl_b32 %s, %s, 2\nv_or_b32 %s, %s, %s" % (s(S_TMP), s(S_WAVE), s(S_TMP), s(S_TMP), v(T + 1), s(S_TMP), v(T + 1)))
    e("v_and_b32 %s, 7, %s\nv_xor_b32 %s, %s, %s" % (v(T + 2), v(L), v(T + 1), v(T + 1), v(T + 2)))
    e("v_mul_u32_u24 %s, 3456, %s\nv_lshl_add_u32 %s, %s, 4, %s" % (v(T), v(T), v(V_WD + 2), v(T + 1), v(T)))
    e("s_lshl_b32 %s, %s, 8\ns_sub_u32 %s, %d, %s" % (s(S_TMP), s(S_HEAD), s(S_TMP + 1), 640 * 8192, s(S_TMP)))
    srd(e, S_WQ, ptr(3), s(S_TMP), s(S_TMP + 1))
    for (d, p, sh) in ((S_WG, 6, 2048), (S_WU, 7, 3072)):
        e("s_lshl_b32 %s, %s, 7\ns_sub_u32 %s, %d, %s" % (s(S_TMP), s(S_FS), s(S_TMP + 1), 640 * 3456 + sh, s(S_TMP)))
        e("s_cmp_lt_u32 %s, 27\ns_cselect_b32 %s, %s, 0" % (s(S_FS), s(S_TMP + 1), s(S_TMP + 1)))
        srd(e, d, ptr(p), s(S_TMP), s(S_TMP + 1))
        e("s_sub_u32 %s, %s, %d\ns_subb_u32 %s, %s, 0" % (s(d), s(d), sh, s(d + 1), s(d + 1)))

def gen_kernel(e, name):
    T = V_T; L = V_LANE
    e(".text\n.globl %s\n.p2align 8\n.type %s,@function\n%s:" % (name, name, name))
    e("s_cmp_ge_u32 s2, 256\ns_cbranch_scc1 K_END")
    e("s_load_dwordx8 %s, s[0:1], 0\ns_load_dwordx8 %s, s[0:1], 32\ns_load_dwordx8 %s, s[0:1], 64" % (s(S_PTR, 8), s(S_PTR + 8, 8), s(S_PTR + 16, 8)))
    e("v_and_b32 %s, 63, v0\nv_lshrrev_b32 %s, 6, v0\nv_lshlrev_b32 %s, 4, %s\nv_readfirstlane_b32 %s, %s" % (v(L), v(T), v(V_L16), v(L), s(S_WAVE), v(T)))
    e("s_and_b32 %s, s2, 7\ns_lshr_b32 %s, s2, 3\ns_and_b32 %s, %s, 3\ns_lshr_b32 %s, %s, 2" % (s(S_TMP), s(S_TMP + 1), s(S_HL), s(S_TMP + 1), s(S_QT), s(S_TMP + 1)))
    e("s_lshl_b32 %s, %s, 2\ns_add_u32 %s, %s, %s" % (s(S_HEAD), s(S_TMP), s(S_HEAD), s(S_HEAD), s(S_HL)))
    e("s_lshl_b32 %s, %s, 3\ns_add_u32 %s, %s, %s" % (s(S_FS), s(S_HL), s(S_FS), s(S_FS), s(S_TMP)))
    e("s_mov_b32 %s, 0" % s(S_RETRY))
    e("s_lshl_b32 %s, %s, 12\ns_lshl_b32 %s, %s, 11" % (s(S_M0W), s(S_WAVE), s(S_M0K), s(S_WAVE)))
    if STAMPS: e("v_mov_b32 v0, -1\nv_mov_b32 v19, -1")
    stamp(e, 0)
    def codetouch(e):
        e("s_getpc_b64 %s\nCODE0:" % s(S_TMP + 4, 2))
        e("s_lshr_b32 %s, s2, 3\ns_lshl2_add_u32 %s, %s, %s\ns_mul_i32 %s, %s, 640" % (s(S_EVT + 6), s(S_EVT + 6), s(S_EVT + 6), s(S_WAVE), s(S_EVT + 6), s(S_EVT + 6)))
        e("v_min_u32 %s, 4, %s\nv_lshlrev_b32 %s, 7, %s\nv_add_u32 %s, %s, %s\nv_min_u32 %s, CODE1-CODE0-4, %s" % (v(8), v(L), v(8), v(8), v(8), s(S_EVT + 6), v(8), v(8), v(8)))
        e("global_load_dword %s, %s, %s" % (v(V_PL), v(8), s(S_TMP + 4, 2)))
    CPOS = opt("cpos", 0); WPOS = opt("wpos", 0)
    if CPOS == 0: codetouch(e)
    gen_ln_loads(e)
    e("s_add_u32 %s, %s, %d\ns_addc_u32 %s, %s, 0\ns_load_dword %s, %s, 0" % (s(S_TMP + 2), s(ptr(11)), FL_OFF + EP_OFF, s(S_TMP + 3), s(ptr(11) + 1), s(S_EPOCH), s(S_TMP + 2, 2)))
    ny = 0
    if CPOS == 1: codetouch(e); ny += 1
    gen_w_setup(e)
    e("s_lshl_b32 %s, %s, 16\ns_mul_i32 %s, %s, %d" % (s(S_WQOFF), s(S_WAVE), s(S_WGOFF), s(S_WAVE), 8 * 3456))
    WT = max(opt("wt", 6), 1)
    X = V_TC
    e("s_lshl2_add_u32 %s, %s, %s\ns_add_u32 %s, %s, %d" % (s(S_TMP), s(S_QT), s(S_WAVE), s(S_TMP), s(S_TMP), 32 * NI))
    e("v_lshrrev_b32 %s, 1, %s\nv_min_u32 %s, %d, %s\nv_lshlrev_b32 %s, 5, %s\nv_add_u32 %s, %s, %s" % (v(X), v(L), v(X), WT - 1, v(X), v(X), v(X), v(X), s(S_TMP), v(X)))
    e("v_and_b32 %s, 1, %s\nv_lshlrev_b32 %s, 7, %s\nv_lshl_add_u32 %s, %s, 13, %s\nv_mul_u32_u24 %s, 3456, %s" % (v(X + 1), v(L), v(X + 1), v(X + 1), v(X + 1), v(X), v(X + 1), v(X), v(X)))
    w0 = E(); wt = E()
    for sl in range(NI): w_slab(w0, sl, True)
    wt("buffer_load_dword %s, %s, %s, 0 offen" % (v(V_PL + 1), v(X + 1), s(S_WQ, 4)))
    wt("buffer_load_dword %s, %s, %s, 0 offen offset:2048" % (v(V_PL + 2), v(X), s(S_WG, 4)))
    wt("buffer_load_dword %s, %s, %s, 0 offen offset:3072" % (v(V_DUMP), v(X), s(S_WU, 4)))
    if opt("wt", 6) == 0: wt.L = []
    early = {0: w0.L + wt.L, 1: [], 2: w0.L, 3: w0.L}[WPOS]
    mid = {0: [], 1: w0.L + wt.L, 2: wt.L, 3: []}[WPOS]
    after = wt.L if WPOS == 3 else []
    e.ext(early); ny += sum(x.startswith("buffer") for x in early)
    LATE = opt("late", 2)
    srd(e, S_FL, ptr(11), FL_OFF, EP_OFF + 4096)
    e("s_lshl_b32 %s, %s, 5\ns_add_u32 %s, %s, %s\ns_lshl_b32 %s, %s, %d" % (s(S_MYFL), s(S_QT), s(S_MYFL), s(S_MYFL), s(S_HEAD), s(S_MYFL), s(S_MYFL), FSH))
    e("v_min_u32 %s, 31, %s\nv_lshlrev_b32 %s, %d, %s\ns_lshl_b32 %s, %s, %d" % (v(V_PL + 3), v(L), v(V_PL + 3), FSH, v(V_PL + 3), s(S_XOFF), s(S_QT), FSH + 5))
    def rest():
        gen_common_setup(e)
        for i in range(8): e("v_add_u32 %s, 65536, %s" % (v(V_AHI + i), v(V_AQ + i)))
    stamp(e, 1)
    gen_ln_compute(e, ny, mid)
    e.ext(after)
    stamp(e, 29)
    if LATE == 1: rest()
    e("s_mul_i32 %s, %s, 0x9e3779b1\ns_add_u32 %s, %s, 0x7f4a7c15" % (s(S_TAG), s(S_EPOCH), s(S_TAG), s(S_TAG)))
    e("s_waitcnt vmcnt(%d)\ns_barrier" % len(after))
    stamp(e, 18)
    e("s_cmp_lg_u32 %s, 0\ns_cbranch_scc1 NOFL1" % s(S_WAVE))
    set_flag(e, 1)
    e("NOFL1:")
    if LATE == 2: rest()
    e("s_cmp_lg_u32 %s, 0\ns_cbranch_scc1 SPUN_XN" % s(S_WAVE))
    e(poll_load(False, s(S_XOFF)))
    e("s_waitcnt vmcnt(0)")
    poll_spin(e, False, s(S_XOFF), 1, "XN")
    e("s_barrier")
    stamp(e, 2)
    e("s_cmp_ge_u32 %s, 27\ns_cbranch_scc1 LIGHT" % s(S_FS))
    gen_proj(e, True, "H")
    e("PROJ_DONE:")
    head = gen_attention(e)
    gen_tail(e, head)
    e("K_END:\ns_endpgm")
    gen_events(e)
    gen_retry(e)
    e("LIGHT:")
    gen_proj(e, False, "L")
    e("s_branch PROJ_DONE")
    e("CODE1:")
    e(kd(name))

def main():
    e = E()
    hdr = open("cdna_kernels/%s.s.ref" % NAME).read().split("; Override launch")[0]
    e.L += hdr.strip().split("\n")
    e("; @launch grid=(256,1,1) block=(256,1,1) lds=%d" % LDS_BYTES)
    e('.amdgcn_target "amdgcn-amd-amdhsa--gfx950"')
    gen_kernel(e, NAME + "_kernel")
    t = re.sub(r" ;#\w*", "", e.text())
    errs = [x for x in asmcheck.check(t, [NAME + "_kernel"]) if x.count("_load_dword v%d," % V_DUMP) != 2 and not any(y in x for y in poll_load(True).split("\n")[-4:])]
    if errs:
        print("\n".join(errs[:40])); print(len(errs), "problems")
    out = [x for x in sys.argv[1:] if x.endswith(".s")]
    open(out[0] if out else "cdna_kernels/%s.s" % NAME, "w").write(t)

if __name__ == "__main__":
    main()
```

```python
import sys, math, os, struct, re
from sched import Gaps, auto_lgkm
import asmcheck

NAME = "recurrent_scan__mha_block_cached__glu_gated_reglu__prompt"
MF = "v_mfma_f32_16x16x32_bf16"
OPT = dict(x.split("=") for x in sys.argv[1:] if "=" in x)
def opt(k, d): return type(d)(OPT.get(k, d))
VERBOSE = "-v" in sys.argv
STAMPS = "--stamps" in sys.argv
STFL = opt("stfl", " sc1").replace("_", " ")
LDFL = opt("ldfl", " sc1").replace("_", " ")

NSLAB = 182
QSC = math.log2(math.e) / math.sqrt(128.0)
DSC = 1.0 / (QSC * QSC)
WF_OFF = 0x1800000
WF_BYTES = 8 * NSLAB * 5120
XF_OFF = 0x2000000
XP_OFF = 0x2800000
MAXST = 3
FL_OFF = 0x2400000

class E:
    def __init__(self): self.L = []
    def __call__(self, s):
        for x in s.split("\n"):
            x = x.strip()
            if x: self.L.append(x)
    def ext(self, l): self.L += l
    def text(self): return "\n".join(self.L) + "\n"

def v(a, n=1): return "v%d" % a if n == 1 else "v[%d:%d]" % (a, a + n - 1)
def a(a_, n=1): return "a%d" % a_ if n == 1 else "a[%d:%d]" % (a_, a_ + n - 1)
def s(a_, n=1): return "s%d" % a_ if n == 1 else "s[%d:%d]" % (a_, a_ + n - 1)
def f2u(x): return "0x%08x" % struct.unpack("<I", struct.pack("<f", x))[0]

def kd(name, vgpr=512, acc=256):
    return """.section .rodata,"a"
.p2align 6
.amdhsa_kernel %s
  .amdhsa_next_free_vgpr %d
  .amdhsa_next_free_sgpr 102
  .amdhsa_accum_offset %d
  .amdhsa_group_segment_fixed_size 0
  .amdhsa_kernarg_size 96
  .amdhsa_user_sgpr_count 2
  .amdhsa_user_sgpr_kernarg_segment_ptr 1
  .amdhsa_system_sgpr_workgroup_id_x 1
.end_amdhsa_kernel
""" % (name, vgpr, acc)

def stamp(e, i):
    if not STAMPS: return
    e("s_waitcnt lgkmcnt(0)\ns_memtime s[98:99]\ns_memrealtime s[100:101]\ns_waitcnt lgkmcnt(0)")
    e("v_writelane_b32 v0, s98, %d\nv_writelane_b32 v19, s100, %d" % (i, i))
def stamp_fin(e):
    if not STAMPS: return
    if opt("echo", ""):
        i, j = [int(x) for x in opt("echo", "").split(".")]
        e("s_nop 1\nv_readlane_b32 s96, v19, %d\nv_readlane_b32 s97, v19, %d\nv_readlane_b32 s98, v19, 16\ns_nop 3\ns_sub_u32 s96, s97, s96\ns_min_u32 s96, s96, 20000\ns_cmp_%s_u32 %s, 27\ns_cselect_b32 s96, s96, 0" % (i, j, "ge" if opt("el", 0) else "lt", s(S_FS)))
        e("ECHO:\ns_sleep 1\ns_memrealtime s[100:101]\ns_waitcnt lgkmcnt(0)\ns_sub_u32 s97, s100, s98\ns_cmp_lt_u32 s97, s96\ns_cbranch_scc1 ECHO")
        return
    if opt("dbgout", -1) >= 0:
        e("s_cmp_lg_u32 s2, %d\ns_cbranch_scc1 NODBG\ns_cmp_lg_u32 %s, 0\ns_cbranch_scc1 NODBG" % (opt("dbgout", -1), s(S_WAVE)))
        e("v_readlane_b32 s98, v19, 0\ns_nop 3\nv_subrev_u32 v18, s98, v19\nv_lshlrev_b32 v20, 2, v1\nv_subrev_u32 v20, 4, v20")
        e("s_mov_b32 s96, %s\ns_mov_b32 s97, %s\ns_mov_b32 s98, 64\ns_mov_b32 s99, 0x20000" % (s(ptr(10)), s(ptr(10) + 1)))
        e("buffer_store_dword v18, v20, s[96:99], 0 offen\ns_waitcnt vmcnt(0)\nNODBG:")
        return
    if opt("wsb", 0): e("s_sub_u32 %s, %s, %d\ns_subb_u32 %s, %s, 0" % (s(ptr(11)), s(ptr(11)), opt("wsb", 0) << 20, s(ptr(11) + 1), s(ptr(11) + 1)))
    e("s_lshl_b32 s98, s2, 2\ns_add_u32 s98, s98, %s\ns_lshl_b32 s98, s98, 9\ns_add_u32 s98, s98, %d" % (s(S_WAVE), 0x4000000))
    e("s_add_u32 s96, %s, s98\ns_addc_u32 s97, %s, 0\ns_mov_b32 s98, 512\ns_mov_b32 s99, 0x20000" % (s(ptr(11)), s(ptr(11) + 1)))
    e("v_mov_b32 v18, v0\nv_lshlrev_b32 v20, 3, v1\nbuffer_store_dwordx2 v[18:19], v20, s[96:99], 0 offen\ns_waitcnt vmcnt(0)")

def srd(e, d, base, off_lo, nbytes):
    e("s_add_u32 %s, %s, %s" % (s(d), s(base), off_lo))
    e("s_addc_u32 %s, %s, 0" % (s(d + 1), s(base + 1)))
    e("s_mov_b32 %s, %s" % (s(d + 2), nbytes))
    e("s_mov_b32 %s, 0x20000" % s(d + 3))

def uncond(x): return False
def resolve_vm(lines):
    out = []; ops = []; waited = set(); lastm0 = None; done = 0; marks = {}
    for x in lines:
        mm = re.search(r"vmcnt\((\d+)\)", x)
        if mm and not x.startswith("@") and uncond(x): done = max(done, len(ops) - int(mm.group(1)))
        if x.startswith(("buffer_", "global_")) and len(ops) - done >= 58:
            out.append("s_waitcnt vmcnt(52)"); done = len(ops) - 52
        if x.startswith("s_add_u32 m0,"): lastm0 = x.split(",")[1].strip()
        if " lds" in x and ";#" in x:
            tg = x.split(";#")[1].strip()
            exp = s(S_M0W) if tg.startswith("w") else (s(S_TRM) if tg == "trs" else s(S_M0K))
            if tg.startswith("D"): exp = s(T_M0W)
            assert lastm0 == exp, "M0 collision at %s" % x
        if x.startswith("MARK"):
            marks[x.split()[1]] = len(ops); continue
        m = re.search(r"SINCE\{(\w+)\}", x)
        if m: x = x.replace(m.group(0), "vmcnt(%d)" % min(63, len(ops) - marks[m.group(1)]))
        m = re.search(r"WAITVM\{([^}]*)\}", x)
        if m:
            need = set(m.group(1).split(","))
            waited |= need
            idx = [i for i, t in enumerate(ops) if t in need]
            n = len(ops) - 1 - max(idx) if idx else 63
            done = max(done, len(ops) - min(n, 63))
            x = x.replace(m.group(0), "vmcnt(%d)" % min(n, 63))
        elif x.startswith(("buffer_", "global_")):
            t = x.split(";#")[1].strip() if ";#" in x else ""
            assert t not in waited, "op %s issued after its wait" % t
            ops.append(t)
        out.append(x)
    return out

S_FL = 4
S_X, S_WQ, S_WG, S_WU, S_K, S_V, S_AF, S_T, S_WF = 8, 12, 16, 20, 24, 28, 32, 36, 40
S_PTR = 44
S_WAVE, S_HEAD, S_QT, S_FS = 68, 69, 70, 71
S_XOFF, S_WQOFF, S_WGOFF, S_M0W = 72, 73, 74, 75
S_KVOFF, S_M0K, S_TOG, S_RETRY = 76, 77, 78, 79
S_TMP = 80
S_TRS, S_TRM, S_TRD, S_TRU = 88, 89, 90, 91
S_EPOCH, S_TAG, S_MYFL = 92, 93, 94
S_HL = 3
S_EVT = 85
EVTS = (32 + 9) * 8192
EVTL = (50 + 9) * 8192
EVT1 = (56 + 9) * 8192
EVTE = (62 + 9) * 8192
NWH = opt("nwh", 0)
S_LN = 84
def ptr(i): return S_PTR + 2 * i

L_K = 0
L_V = 65536
RW = 7
L_TR = 114688
L_MISC = 155648
LDS_BYTES = 163840

V_LANE = 1
V_L16 = 2
V_WD = 3
V_TRA = 6
V_AQ = 10
V_AG = 14
V_KA = 20
V_VA = 24
V_KD = 32
V_VD = 34
V_DUMP = 18
V_PW = 5
PWARM = opt("pw", 0)
V_TC = 62
V_PL = 36
V_T = 40
V_ACCQ = 64
V_ACCG = 192
V_Q = 64
V_S = 128
V_P = 192
V_NEGM = 224
V_L = 240
A_ACCU = 0
XD = 7
A_X = 64
A_W = 176
A_TR = 208
A_ONE = 248
A_O = 64
A_KF = 208
A_VF = 0
V_AHI = 44

def qacc(blk, qb): return (V_S if blk & 1 else V_Q) + ((blk >> 1) * 4 + qb) * 4
def accreg(blk, qb):
    if blk < 8: return v(qacc(blk, qb), 4)
    if blk < 12: return v(V_ACCG + ((blk - 8) * 4 + qb) * 4, 4)
    return a(A_ACCU + ((blk - 12) * 4 + qb) * 4, 4)

def w_read(dst, blk, j, rel):
    if blk < 8:
        ar = V_AQ + (blk >> 1); off = rel + j * 1024 + (blk & 1) * 8
    else:
        ar = V_AG + ((blk - 8) & 3); off = rel + 2048 + (1024 if blk >= 12 else 0) + j * 512
    if rel >= 65536: ar += V_AHI - V_AQ; off -= 65536
    assert 0 <= off < 65536
    return "ds_read_b64_tr_b16 %s, %s offset:%d" % (a(dst + 2 * j, 2), v(ar), off)

def w_dma(heavy, tag):
    l = ["buffer_load_dwordx4 %s, %s, %s offen lds ;#%s" % (v(V_WD), s(S_WQ, 4), s(S_WQOFF), tag),
         "buffer_load_dwordx4 %s, %s, %s offen offset:1024 lds ;#%s" % (v(V_WD + 1), s(S_WQ, 4), s(S_WQOFF), tag)]
    if heavy:
        l += ["buffer_load_dwordx4 %s, %s, %s offen offset:2048 lds ;#%s" % (v(V_WD + 2), s(S_WG, 4), s(S_WGOFF), tag),
              "buffer_load_dwordx4 %s, %s, %s offen offset:3072 lds ;#%s" % (v(V_WD + 2), s(S_WU, 4), s(S_WGOFF), tag)]
    return l

def x_load(sl, qb):
    return "buffer_load_dwordx4 %s, %s, %s, %s offen offset:%d%s ;#x%d" % (a(A_X + ((sl % XD) * 4 + qb) * 4, 4), v(V_L16), s(S_X, 4), s(S_XOFF), qb * 1024, LDFL, sl)

def kv_dma(which, i, tag=""):
    vo = (V_KD if which == "K" else V_VD) + i
    return "buffer_load_dwordx4 %s, %s, %s offen offset:%d lds ;#%s" % (v(vo), s(S_K if which == "K" else S_V, 4), s(S_KVOFF), 1024 * i, tag)

FSH = opt("fsh", 2)
EP_OFF = 65536
def set_flag(e, stage):
    if opt("fwide", 0):
        n = (1 << FSH) // 8
        e("s_add_u32 %s, %s, %d\ns_mov_b64 exec, 0x%x\nv_mov_b32 %s, %s\nv_mov_b32 %s, %s\nv_lshlrev_b32 %s, 3, %s" % (s(S_TMP + 7), s(S_TAG), stage, (1 << n) - 1, v(V_PL), s(S_TMP + 7), v(V_PL + 1), s(S_TMP + 7), v(V_PL + 2), v(V_LANE)))
        e("buffer_store_dwordx2 %s, %s, %s, %s offen sc1" % (v(V_PL, 2), v(V_PL + 2), s(S_FL, 4), s(S_MYFL)))
    else:
        e("s_add_u32 %s, %s, %d\ns_mov_b64 exec, 1\nv_mov_b32 %s, %s" % (s(S_TMP + 7), s(S_TAG), stage, v(V_PL), s(S_TMP + 7)))
        e("buffer_store_dword %s, off, %s, %s sc1" % (v(V_PL), s(S_FL, 4), s(S_MYFL)))
    e("s_mov_b64 exec, -1")

def poll_load(allq, qoff=None):
    if allq and FSH > 2:
        return "v_lshlrev_b32 %s, %d, %s\n" % (v(V_DUMP), FSH + 2, v(V_LANE)) + "\n".join("buffer_load_dword %s, %s, %s, 0 offen offset:%d sc1" % (v(V_PL + i), v(V_DUMP), s(S_FL, 4), i << FSH) for i in range(4))
    if allq: return "buffer_load_dwordx4 %s, %s, %s, 0 offen sc1" % (v(V_PL, 4), v(V_L16), s(S_FL, 4))
    return "buffer_load_dword %s, %s, %s, %s offen sc1" % (v(V_PL), v(V_PL + 3), s(S_FL, 4), qoff)

def poll_spin(e, allq, qoff, stage, tag):
    e("s_mov_b32 %s, 0\ns_add_u32 %s, %s, %d" % (s(S_TMP + 7), s(S_TMP + 6), s(S_TAG), stage))
    e("SPIN_%s:" % tag)
    n = 4 if allq else 1
    for i in range(n): e("v_subrev_u32 %s, %s, %s" % (v(V_PL + i), s(S_TMP + 6), v(V_PL + i)))
    if allq: e("v_max3_u32 %s, %s, %s, %s\nv_max_u32 %s, %s, %s" % (v(V_PL), v(V_PL), v(V_PL + 1), v(V_PL + 2), v(V_PL), v(V_PL), v(V_PL + 3)))
    e("v_cmp_lt_u32 vcc, %d, %s" % (MAXST - stage, v(V_PL)))
    e("s_add_u32 %s, %s, 1" % (s(S_TMP + 7), s(S_TMP + 7)))
    e("s_cmp_eq_u64 vcc, 0\ns_cbranch_scc1 SPUN_%s" % tag)
    e("s_cmp_ge_u32 %s, 0x40000\ns_cbranch_scc1 SPUN_%s" % (s(S_TMP + 7), tag))
    e("s_sleep %d" % opt("slp", 2))
    e(poll_load(allq, qoff))
    e("s_waitcnt vmcnt(0)\ns_branch SPIN_%s" % tag)
    e("SPUN_%s:" % tag)

def zero_acc(e, heavy=True):
    for r in range(V_ACCQ, 256): e("v_mov_b32 %s, 0" % v(r))
    for r in range(A_ACCU, A_ACCU + 64): e("v_accvgpr_write_b32 %s, 0" % a(r))

NI = opt("ni", 1)

def gen_ln_loads(e):
    T = V_T; L = V_LANE
    R = V_ACCQ
    e("v_bfe_u32 %s, %s, 1, 3\nv_lshrrev_b32 %s, 4, %s\nv_and_b32 %s, 1, %s" % (v(T), v(L), v(T + 1), v(L), v(T + 2), v(L)))
    e("v_mul_u32_u24 %s, 1280, %s\nv_lshl_add_u32 %s, %s, 4, %s\nv_lshl_add_u32 %s, %s, 3, %s" % (v(T + 3), v(T), v(T + 3), v(T + 1), v(T + 3), v(T + 3), v(T + 2), v(T + 3)))
    e("s_lshl_b32 %s, %s, 5\ns_add_u32 %s, %s, %s\ns_mul_i32 %s, %s, %d\ns_mul_i32 %s, %s, 320" % (s(S_TMP), s(S_QT), s(S_TMP), s(S_TMP), s(S_HEAD), s(S_TMP), s(S_TMP), 8 * 1280, s(S_TMP + 1), s(S_WAVE)))
    e("s_waitcnt lgkmcnt(0)")
    if opt("wsb", 0): e("s_add_u32 %s, %s, %d\ns_addc_u32 %s, %s, 0" % (s(ptr(11)), s(ptr(11)), opt("wsb", 0) << 20, s(ptr(11) + 1), s(ptr(11) + 1)))
    srd(e, S_T, ptr(0), s(S_TMP), 8 * 1280)
    for i in range(5): e("buffer_load_dwordx2 %s, %s, %s, %s offen offset:%d" % (v(R + 2 * i, 2), v(T + 3), s(S_T, 4), s(S_TMP + 1), 64 * i))

def gen_ln_compute(e, nyounger, mid=()):
    T = V_T; L = V_LANE
    R = V_ACCQ; U = R + 10
    e("v_and_b32 %s, 15, %s\nv_lshlrev_b32 %s, 3, %s\nv_lshl_add_u32 %s, %s, 8, %s" % (v(T + 3), v(L), v(T + 3), v(T + 3), v(T + 3), v(T + 1), v(T + 3)))
    e("s_lshr_b32 %s, %s, 3\ns_lshl2_add_u32 %s, %s, %s\ns_mul_i32 %s, %s, %d" % (s(S_TMP), s(S_HEAD), s(S_TMP), s(S_QT), s(S_TMP), s(S_TMP), s(S_TMP), 20 * 4096))
    e("s_bfe_u32 %s, %s, 0x20001\ns_lshl_b32 %s, %s, 10\ns_add_u32 %s, %s, %s" % (s(S_TMP + 1), s(S_HEAD), s(S_TMP + 1), s(S_TMP + 1), s(S_TMP), s(S_TMP), s(S_TMP + 1)))
    e("s_and_b32 %s, %s, 1\ns_lshl_b32 %s, %s, 7\ns_add_u32 %s, %s, %s\ns_add_u32 %s, %s, %d" % (s(S_TMP + 1), s(S_HEAD), s(S_TMP + 1), s(S_TMP + 1), s(S_TMP), s(S_TMP), s(S_TMP + 1), s(S_TMP), s(S_TMP), XF_OFF))
    srd(e, S_LN, ptr(11), s(S_TMP), 20 * 4096)
    e("s_mul_i32 %s, %s, %d" % (s(S_TMP), s(S_WAVE), 5 * 4096))
    e("v_lshlrev_b32 %s, 5, %s\nv_add_u32 %s, %d, %s\ns_lshl_b32 %s, %s, 3\nv_add_u32 %s, %s, %s" % (v(T + 4), v(T), v(T + 4), L_MISC, v(T + 4), s(S_TMP + 1), s(S_WAVE), v(T + 5), s(S_TMP + 1), v(T + 4)))
    A0 = T + 6; M = T + 8
    e("s_waitcnt vmcnt(%d)" % nyounger)
    stamp(e, 17)
    e.ext(list(mid))
    for d in range(10): e("v_lshlrev_b32 %s, 16, %s\nv_and_b32 %s, 0xffff0000, %s" % (v(U + 2 * d), v(R + d), v(U + 2 * d + 1), v(R + d)))
    e("v_pk_add_f32 %s, %s, %s\nv_pk_add_f32 %s, %s, %s" % (v(A0, 2), v(U, 2), v(U + 2, 2), v(M, 2), v(U + 4, 2), v(U + 6, 2)))
    for d in range(4, 10): e("v_pk_add_f32 %s, %s, %s" % (v((A0, M)[d & 1], 2), v((A0, M)[d & 1], 2), v(U + 2 * d, 2)))
    def reduce(dst):
        e("v_pk_add_f32 %s, %s, %s" % (v(A0, 2), v(A0, 2), v(M, 2) if dst == M else v(T + 10, 2)))
        e("v_add_f32 %s, %s, %s\ns_nop 1" % (v(A0), v(A0), v(A0 + 1)))
        e("v_add_f32_dpp %s, %s, %s quad_perm:[1,0,3,2] row_mask:0xf bank_mask:0xf" % (v(A0), v(A0), v(A0)))
        for sw in ("v_permlane32_swap_b32", "v_permlane16_swap_b32"):
            e("v_mov_b32 %s, %s\ns_nop 1\n%s %s, %s\nv_add_f32 %s, %s, %s" % (v(A0 + 1), v(A0), sw, v(A0), v(A0 + 1), v(A0), v(A0), v(A0 + 1)))
    reduce(M)
    e("v_mul_f32 %s, %s, %s\nv_mul_f32 %s, %s, %s" % (v(M), f2u(-1.0 / 160), v(A0), v(M + 1), f2u(-1.0 / 160), v(A0)))
    for d in range(10): e("v_pk_add_f32 %s, %s, %s" % (v(U + 2 * d, 2), v(U + 2 * d, 2), v(M, 2)))
    e("v_pk_mul_f32 %s, %s, %s\nv_pk_mul_f32 %s, %s, %s" % (v(A0, 2), v(U, 2), v(U, 2), v(T + 10, 2), v(U + 2, 2), v(U + 2, 2)))
    for d in range(2, 10): e("v_pk_fma_f32 %s, %s, %s, %s" % (v((A0, T + 10)[d & 1], 2), v(U + 2 * d, 2), v(U + 2 * d, 2), v((A0, T + 10)[d & 1], 2)))
    reduce(None)
    e("v_mov_b32 %s, %s" % (v(M + 1), v(A0)))
    e("ds_write_b64 %s, %s\ns_waitcnt lgkmcnt(0)\ns_barrier" % (v(T + 5), v(M, 2)))
    X = T + 12
    e("ds_read_b128 %s, %s\nds_read_b128 %s, %s offset:16\ns_waitcnt lgkmcnt(0)" % (v(X, 4), v(T + 4), v(X + 4, 4), v(T + 4)))
    e("v_pk_add_f32 %s, %s, %s\nv_pk_add_f32 %s, %s, %s\nv_pk_add_f32 %s, %s, %s" % (v(A0, 2), v(X, 2), v(X + 2, 2), v(T + 10, 2), v(X + 4, 2), v(X + 6, 2), v(A0, 2), v(A0, 2), v(T + 10, 2)))
    e("v_mul_f32 %s, 0.25, %s" % (v(A0), v(A0)) if False else "v_mul_f32 %s, %s, %s" % (v(A0), f2u(0.25), v(A0)))
    for k in range(4): e("v_sub_f32 %s, %s, %s" % (v(X + 2 * k), v(X + 2 * k), v(A0)))
    e("v_mul_f32 %s, %s, %s" % (v(X + 1), v(X), v(X)))
    for k in range(1, 4): e("v_fmac_f32 %s, %s, %s" % (v(X + 1), v(X + 2 * k), v(X + 2 * k)))
    e("v_fmac_f32 %s, %s, %s" % (v(A0 + 1), f2u(160.0), v(X + 1)))
    e("v_mov_b32 %s, %s\nv_fmac_f32 %s, %s, %s\nv_rsq_f32 %s, %s" % (v(X), f2u(1e-5 * DSC), v(X), f2u(DSC / 640), v(A0 + 1), v(X), v(X)))
    e("v_sub_f32 %s, %s, %s" % (v(M), v(A0), v(M)))
    e("v_mov_b32 %s, %s\nv_mul_f32 %s, %s, %s\nv_mul_f32 %s, %s, %s" % (v(X + 1), v(X), v(M + 1), v(M), v(X), v(M), v(M), v(X)))
    for i in range(5):
        for d in (2 * i, 2 * i + 1): e("v_pk_fma_f32 %s, %s, %s, %s" % (v(U + 2 * d, 2), v(U + 2 * d, 2), v(X, 2), v(M, 2)))
        for d in (2 * i, 2 * i + 1): e("v_cvt_pk_bf16_f32 %s, %s, %s" % (v(R + d), v(U + 2 * d), v(U + 2 * d + 1)))
        e("buffer_store_dwordx2 %s, %s, %s, %s offen%s" % (v(R + 2 * i, 2), v(T + 3), s(S_LN, 4), s(S_TMP), STFL))
        if i < 4: e("s_add_u32 %s, %s, 4096" % (s(S_TMP), s(S_TMP)))

def w_slab(e, sl, heavy):
    e("s_add_u32 m0, %s, %d\ns_nop 0" % (s(S_M0W), (sl % RW) * 16384))
    e.ext(w_dma(heavy, "w%d" % sl))
    e("s_add_u32 %s, %s, %d\ns_add_u32 %s, %s, %d" % (s(S_WQOFF), s(S_WQOFF), 32 * 8192, s(S_WGOFF), s(S_WGOFF), 32 * 3456))

def gen_proj(e0, heavy, tag):
    e = E()
    T = V_T; L = V_LANE
    NS = opt("ns", 4) if heavy else 0
    GU = [b for fb in range(4) for b in (12 + fb, 8 + fb)]
    PC0 = opt("pc0", 16) if heavy else 20
    def grp(lo, hi):
        out = []; sl = lo
        while sl < hi:
            if sl >= PC0 and sl + 1 < hi: out.append((sl, sl + 1)); sl += 2
            else: out.append((sl,)); sl += 1
        return out
    units = []
    for ss in grp(0, 20 - NS): units.append((ss, list(range(8)) + (GU if heavy else [])))
    for part in ((GU[:4], GU[4:]) if opt("split", 1) else (GU,)):
        for ss in grp(20 - NS, 20): units.append((ss, part))
    for ss in grp(20 - NS, 20): units.append((ss, list(range(8))))
    order = []; mf = []; firstuse = []
    for ss, bl in units:
        for b in bl:
            F0 = len(order)
            for sl in ss: order.append((sl, b)); firstuse.append(4 * F0)
            for qb in range(4):
                idx = list(range(len(ss)))
                if qb & 1: idx.reverse()
                for i in idx:
                    sl = ss[i]
                    c = "0" if (0 in ss and i == idx[0]) else accreg(b, qb)
                    mf.append("%s %s, %s, %s, %s" % (MF, accreg(b, qb), a(A_W + 4 * ((F0 + i) % 8), 4), a(A_X + ((sl % XD) * 4 + qb) * 4, 4), c))
    NF = len(order)
    NP = len(mf)
    for sl in range(4):
        for kb in range(2):
            for qb in range(4):
                d = v(Sreg(0, qb, kb), 4)
                mf.append("%s %s, %s, %s, %s" % (MF, d, a(A_KF + (kb * 4 + sl) * 4, 4), v(V_Q + (sl * 4 + qb) * 4, 4), d if sl else "0"))
    G = Gaps(mf)
    ustart = []; n = 0
    for ss, bl in units: ustart.append(n); n += len(bl) * len(ss)
    lastF = {}; lastblk = {}; firstF = {}
    for u, (ss, bl) in enumerate(units):
        for k, sl in enumerate(ss):
            lastF[sl] = ustart[u] + len(bl) * len(ss) - 1
            firstF.setdefault(sl, ustart[u] + k * len(bl))
        for i, b in enumerate(bl): lastblk[b] = ustart[u] + (i + 1) * len(ss) - 1
    G1 = lambda sl: 4 * firstF[sl]
    DA = opt("pda", 6)
    rd = lambda F, j: w_read(A_W + 4 * (F % 8), order[F][1], j, (order[F][0] % RW) * 16384)
    pre_reads = [rd(F, j) for F in range(DA) for j in range(2)]
    TRW = opt("trw", 15) if heavy else 14
    bars = {}; cur = 0; seen = set(units[0][0])
    def barrier(u, lo, need):
        bb = G.place("b", "s_barrier", lo)
        G.put(bb, "s", "s_waitcnt WAITVM{%s}" % ",".join(need))
        bars[u] = bb
        return bb + 1
    for F in range(DA, NF):
        lo = 4 * (F - DA)
        if F in ustart:
            u = ustart.index(F)
            need = [k + str(sl) for sl in units[u][0] if sl not in seen for k in "xw"]
            seen |= set(units[u][0])
            if need or units[u][1][0] == 0: cur = barrier(u, max(cur, lo - 1), need or ["none"])
        for j in range(2): cur = G.place("d", rd(F, j), max(cur, lo + 2 * j), firstuse[F] - 6) + 1
    NU = len(units)
    cur = barrier(NU, cur + 1, ["K0", "K1"])
    kord = [(kb, sl) for sl in range(4) for kb in range(2)]
    for kb, sl in kord: cur = G.place("d", k_read(kb, sl, 0), cur) + 1
    barrier(NU + 1, max(cur + 5, NP), ["none"])
    kpost = []
    for i, (kb, sl) in enumerate(kord):
        lo = NP + 4 * i + 3
        try: cur = G.place("d", k_read(kb, sl, 8192), max(cur, lo)) + 1
        except RuntimeError: kpost.append(k_read(kb, sl, 8192))
    freeg = lambda sl: min(x for x in bars.values() if x >= 4 * lastF[sl])
    def wseq(sl):
        return [("s", "s_add_u32 m0, %s, %d" % (s(S_M0W), (sl % RW) * 16384))] + [("m", x) for x in w_dma(heavy, "w%d" % sl)] + \
               [("s", "s_add_u32 %s, %s, %d\ns_add_u32 %s, %s, %d" % (s(S_WQOFF), s(S_WQOFF), 32 * 8192, s(S_WGOFF), s(S_WGOFF), 32 * 3456))]
    def xseq(sl): return [("m", x_load(sl, qb)) for qb in range(4)] + [("s", "s_add_u32 %s, %s, 4096" % (s(S_XOFF), s(S_XOFF)))]
    def kvseq(which, i):
        return [("s", "s_add_u32 m0, %s, %d\ns_mov_b32 %s, %d" % (s(S_M0K), (L_K if which == "K" else L_V) + i * 8192, s(S_KVOFF), (i + (3 if which == "V" else 0)) * 8192))] + \
               [("m", kv_dma(which, k, "%s%d" % (which, i))) for k in range(2)]
    NX0 = opt("nx0", 2)
    e("s_mov_b32 %s, 0" % s(S_XOFF))
    q = []
    for sl in range(20):
        for kind in "wx":
            if kind == "w" and sl < NI: continue
            seq = wseq(sl) if kind == "w" else xseq(sl)
            if sl < NX0:
                for k, x in seq: e(x + ("\ns_nop 0" if " m0," in x else ""))
            else:
                lo = 0 if sl < 7 else (freeg(sl - RW) if kind == "w" else 4 * lastF[sl - XD] + 3)
                q.append((lo, seq))
    late = {13: [("V", 4)], 14: [("K", 0), ("K", 1)], 15: [("K", 2), ("K", 3)], 16: [("K", 4), ("K", 5)], 17: [("K", 6), ("K", 7)],
            18: [("V", 0), ("V", 1)], 19: [("V", 2), ("V", 3)]}
    side = []
    for sl in range(13, 20):
        for which, i in late[sl]: side.append((freeg(sl), kvseq(which, i)))
    WT = opt("wt", 6)
    if WT:
        for k, sl in enumerate([int(x) for x in opt("wts", "0.4.8").split(".")], 1):
            seq = [("s", "s_mov_b32 %s, %d" % (s(S_TMP), k * WT * 32 * 8192)), ("m", "buffer_load_dword %s, %s, %s, %s offen" % (v(V_DUMP), v(V_TC + 1), s(S_WQ, 4), s(S_TMP)))]
            if heavy:
                seq += [("s", "s_mov_b32 %s, %d" % (s(S_TMP), k * WT * 32 * 3456)),
                        ("m", "buffer_load_dword %s, %s, %s, %s offen offset:2048" % (v(V_DUMP), v(V_TC), s(S_WG, 4), s(S_TMP))),
                        ("m", "buffer_load_dword %s, %s, %s, %s offen offset:3072" % (v(V_DUMP), v(V_TC), s(S_WU, 4), s(S_TMP)))]
            side.append((G1(sl) + opt("wtg", 30), seq))
    t0 = v(V_TRA + 3)
    if opt("kvt", 14): side.append((G1(opt("kvt", 14)), [("v", "v_min_u32 %s, 15, %s" % (t0, v(L))), ("v", "v_lshlrev_b32 %s, 7, %s" % (t0, t0)),
               ("s", "s_lshl2_add_u32 %s, %s, %s\ns_lshl_b32 %s, %s, 11" % (s(S_TMP), s(S_QT), s(S_WAVE), s(S_TMP), s(S_TMP))),
               ("m", "buffer_load_dword %s, %s, %s, %s offen" % (v(V_DUMP), t0, s(S_K, 4), s(S_TMP))),
               ("s", "s_add_u32 %s, %s, %d" % (s(S_TMP), s(S_TMP), 3 * 8192)),
               ("m", "buffer_load_dword %s, %s, %s, %s offen" % (v(V_DUMP), t0, s(S_V, 4), s(S_TMP)))]))
    side.sort(key=lambda t: t[0])
    MG = opt("pmg", 4 if heavy else 2)
    g = 0; lastm = -9; vpost = []
    trlast = 0; lastload = 0
    while q or side:
        if side and (not q or side[0][0] <= max(g, q[0][0])): lo, seq = side.pop(0)
        else: lo, seq = q.pop(0)
        g = max(g, lo)
        for k, x in seq:
            if not vpost:
                try:
                    g = G.place(k, x, max(g + 1, lastm + MG if k == "m" else 0))
                    if k == "m": lastm = g
                    if re.search(r";#[xw]\d|;#trs", x) or "v%d," % V_DUMP in x: lastload = g
                    continue
                except RuntimeError: pass
            vpost.append(x + ("\ns_nop 0" if " m0," in x else ""))
    auto_lgkm(G, eager=opt("peag", 8))
    g = lastload + 2
    for x in gen_tail_setup():
        g = G.place("v" if x.startswith("v_") else "s", x, g + 1)
    setup_end = g
    g = max(g, trlast)
    for x in gen_tail_setup2(): g = G.place("v" if x.startswith("v_") else "s", x, g + 1)
    HZ = 8
    post = []
    def lay(items):
        g = 0; out = []
        for lo, k, x, hi in items:
            if not out:
                try:
                    g = G.place(k, x, max(g + (0 if k == "v" else 1), lo), hi, force=(hi is not None)); continue
                except RuntimeError: pass
            assert hi is None
            out.append(x)
        return out
    its = []
    for sl in range(4):
        for qb in range(4):
            d0 = V_Q + (sl * 4 + qb) * 4
            lo = 4 * lastblk[2 * sl + 1] + (qb if PC0 >= 19 else 2 * qb - 3) + HZ
            hi = NP - 3 if sl < 2 else NP + 8 * sl - 3
            for b in range(2):
                g0 = qacc(2 * sl + b, qb)
                for h in range(2): its.append((min(lo, hi), "v", "v_cvt_pk_bf16_f32 %s, %s, %s" % (v(d0 + 2 * b + h), v(g0 + 2 * h), v(g0 + 2 * h + 1)), hi))
    assert not lay(its)
    its = []
    if heavy:
        U = T
        for fb in range(4):
            for qb in range(4):
                g0 = V_ACCG + (fb * 4 + qb) * 4
                lo = max(4 * lastblk[8 + fb] + (qb if PC0 >= 19 else 2 * qb - 3) + HZ, setup_end + 1)
                for r in range(4): its.append((lo, "v", "v_accvgpr_read_b32 %s, %s" % (v(U + r), a(A_ACCU + (fb * 4 + qb) * 4 + r)), None))
                for r in range(4): its.append((lo, "v", "v_max_f32 %s, 0, %s" % (v(g0 + r), v(g0 + r)), None))
                for r in range(4): its.append((lo, "v", "v_mul_f32 %s, %s, %s" % (v(g0 + r), v(g0 + r), v(U + r)), None))
                d0 = V_ACCG + ((fb & ~1) * 4 + qb) * 4 + 2 * (fb & 1)
                for h in range(2): its.append((lo, "v", "v_cvt_pk_bf16_f32 %s, %s, %s" % (v(d0 + h), v(g0 + 2 * h), v(g0 + 2 * h + 1)), None))
                if fb & 1:
                    if qb == 0: its.append((lo, "s", "s_lshl_b32 %s, %s, 13\ns_add_u32 %s, %s, %d" % (s(S_TMP + 6), s(S_FS), s(S_TMP + 6), s(S_TMP + 6), (128 + (fb >> 1)) * 4096), None))
                    its.append((lo, "m", "buffer_store_dwordx4 %s, %s, %s, %s offen offset:%d%s" % (v(d0 - 2, 4), v(V_L16), s(S_AF, 4), s(S_TMP + 6), 1024 * qb, STFL), None))
    post += lay(its)
    its = [(setup_end + 1, "v", "v_mov_b32 %s, 0x3f803f80" % v(V_TRA + 2), None)] + [(setup_end + 2, "v", "v_accvgpr_write_b32 %s, %s" % (a(A_ONE + r), v(V_TRA + 2)), None) for r in range(4)]
    zs = []
    for k in range(XD):
        sl = max(x for x in range(20) if x % XD == k)
        zs.append((4 * lastF[sl] + 4, range(A_X + 16 * k, A_X + 16 * k + 16)))
    for k in range(4):
        F = max(x for x in range(NF) if x % 8 == k)
        zs.append((4 * (F | 1) + 4, range(A_W + 4 * k, A_W + 4 * k + 4)))
    for lo, rr in sorted(zs, key=lambda t: t[0]):
        for r in rr: its.append((lo, "v", "v_accvgpr_write_b32 %s, 0" % a(r), None))
    post += lay(its)
    if VERBOSE: print("proj", tag, G.pattern(), "| post", len(post), len(vpost), len(kpost))
    e.ext(pre_reads)
    e("s_waitcnt WAITVM{x0} lgkmcnt(0)")
    stamp(e, 3)
    nm = 0
    for x in G.lines():
        if x.startswith("v_mfma"):
            if STAMPS and nm % (NP // 5) == 0 and 0 < nm < NP: stamp(e, 18 + nm // (NP // 5))
            if nm == NP: stamp(e, 4)
            nm += 1
        e(x)
    for x in kpost + vpost + post: e(x)
    e("s_mov_b32 %s, %d" % (s(S_KVOFF), 8 * 8192))
    e("s_nop 1")
    for r in range(16): e("v_mov_b32 %s, 0" % v(V_L + r))
    for qb in range(4): e("v_mov_b32 %s, 0xff800000" % v(V_NEGM + 4 * qb))
    e("s_waitcnt WAITVM{K2,K3}")
    e0.ext(resolve_vm(e.L))

def kv_preload(e):
    e("s_mov_b32 %s, 0" % s(S_KVOFF))
    for i in range(8):
        e("s_add_u32 m0, %s, %d\ns_nop 0" % (s(S_M0K), L_K + i * 8192))
        e(kv_dma("K", 0)); e(kv_dma("K", 1))
        if i >= 3:
            e("s_add_u32 m0, %s, %d\ns_nop 0" % (s(S_M0K), L_V + (i - 3) * 8192))
            e(kv_dma("V", 0)); e(kv_dma("V", 1))
        e("s_add_u32 %s, %s, 8192" % (s(S_KVOFF), s(S_KVOFF)))
    e("s_waitcnt vmcnt(0)")

def Sreg(buf, qb, kb): return V_S + buf * 32 + qb * 8 + kb * 4
def Preg(buf, qb): return V_P + buf * 16 + qb * 4

def qk_mfmas(buf, czero=False):
    out = []
    order = {"kqs": [(kb, qb, sl) for kb in range(2) for qb in range(4) for sl in range(4)],
             "ksq": [(kb, qb, sl) for kb in range(2) for sl in range(4) for qb in range(4)],
             "snake": [(kb, qb, sl) for kb in range(2) for qb in range(4) for sl in range(4)]}[opt("qko", "snake")]
    for kb, qb, sl0 in order:
                sl = sl0
                d = v(Sreg(buf, qb, kb), 4)
                if opt("qko", "snake") == "snake":
                    first = sl0 == 0
                    sl = sl0 if qb % 2 == 0 else 3 - sl0
                    c = ("0" if czero else v(V_NEGM + 4 * qb, 4)) if first else d
                    out.append("%s %s, %s, %s, %s" % (MF, d, a(A_KF + (kb * 4 + sl) * 4, 4), v(V_Q + (sl * 4 + qb) * 4, 4), c))
                    continue
                c = d if sl else ("0" if czero else v(V_NEGM + 4 * qb, 4))
                out.append("%s %s, %s, %s, %s" % (MF, d, a(A_KF + (kb * 4 + sl) * 4, 4), v(V_Q + (sl * 4 + qb) * 4, 4), c))
    return out

def pv_mfmas(buf, tailmode=False):
    out = []
    for qb in range(4):
        out.append("%s %s, %s, %s, %s" % (MF, v(V_L + 4 * qb, 4), a(A_ONE, 4), v(Preg(buf, qb), 4), v(V_L + 4 * qb, 4)))
    pvo = opt("pvo", "qd2s")
    order = {"dq": [(db, qb) for db in range(8) for qb in range(4)],
             "snake": [(db, qb if db % 2 == 0 else 3 - qb) for db in range(8) for qb in range(4)],
             "qd2s": [(2 * h + (d if (i & 1) == 0 else 1 - d), i if h % 2 == 0 else 3 - i) for h in range(4) for i in range(4) for d in range(2)],
             "qd2": [(2 * h + d, qb) for h in range(4) for qb in range(4) for d in range(2)],
             "qd4": [(4 * h + d, qb) for h in range(2) for qb in range(4) for d in range(4)]}[pvo if not tailmode else "dq"]
    for db, qb in order:
            o = a(A_O + (db * 4 + qb) * 4, 4)
            out.append("%s %s, %s, %s, %s" % (MF, o, a(A_VF + db * 4, 4), v(Preg(buf, qb), 4), o))
    return out

def k_read(kb, sl, off): return "ds_read_b128 %s, %s offset:%d" % (a(A_KF + (kb * 4 + sl) * 4, 4), v(V_KA + sl), off + kb * 4096)
def v_read(db, j, off): return "ds_read_b64_tr_b16 %s, %s offset:%d" % (a(A_VF + db * 4 + 2 * j, 2), v(V_VA + db), off + j * 4096)

def softmax_ops(buf):
    ex = []; cv = []
    for qb in range(4):
        for kb in range(2):
            for r in range(4):
                x = v(Sreg(buf, qb, kb) + r)
                ex.append("v_exp_f32 %s, %s" % (x, x))
            for h in range(2):
                b = Sreg(buf, qb, kb) + 2 * h
                cv.append("v_cvt_pk_bf16_f32 %s, %s, %s" % (v(Preg(buf, qb) + kb * 2 + h), v(b), v(b + 1)))
    return ex, cv

def gen_attention(e):
    T = V_T
    e("ATT_START:")
    stamp(e, 5)
    e("s_barrier")
    z = ["s_nop 0"] * 4
    for qb in range(4):
        b = Sreg(0, qb, 0)
        e("v_max3_f32 %s, %s, %s, %s" % (v(T + qb), v(b), v(b + 1), v(b + 2)))
        e("v_max3_f32 %s, %s, %s, %s" % (v(T + qb), v(T + qb), v(b + 3), v(b + 4)))
        e("v_max3_f32 %s, %s, %s, %s" % (v(T + qb), v(T + qb), v(b + 5), v(b + 6)))
        e("v_max3_f32 %s, %s, %s, %s" % (v(T + qb), v(T + qb), v(b + 7), v(V_NEGM + 4 * qb)))
    for sw in ("v_permlane32_swap_b32", "v_permlane16_swap_b32"):
        for qb in range(4): e("v_mov_b32 %s, %s" % (v(T + 4 + qb), v(T + qb)))
        e.ext(z[:2]); z = z[2:]
        for qb in range(4): e("%s %s, %s" % (sw, v(T + qb), v(T + 4 + qb)))
        for qb in range(4): e("v_max_f32 %s, %s, %s" % (v(T + qb), v(T + qb), v(T + 4 + qb)))
    for qb in range(4):
        for r in range(4): e("v_sub_f32 %s, 0, %s" % (v(V_NEGM + 4 * qb + r), v(T + qb)))
    for qb in range(4):
        for r in range(8): e("v_sub_f32 %s, %s, %s" % (v(Sreg(0, qb, 0) + r), v(Sreg(0, qb, 0) + r), v(T + qb)))
    e.ext(z)
    e("s_waitcnt lgkmcnt(0)")

    def build(steps, loop, pend):
        mf = []; starts = []
        for sp in steps:
            starts.append(len(mf))
            if sp["qk"]: mf += qk_mfmas(1 - sp["buf"])
            if sp["pv"]: mf += pv_mfmas(1 - sp["buf"], not sp["qk"])
        G = Gaps(mf)
        for sp, st in zip(steps, starts):
            nq = 32 if sp["qk"] else 0
            npv = 36 if sp["pv"] else 0
            end = st + nq + npv - 1
            full = sp["qk"] and sp["pv"]
            cur = st; g = st; c2 = st
            if sp.get("bar") is not None:
                b = G.place("b", "s_barrier", st)
                G.put(b, "s", "s_waitcnt vmcnt(%d) lgkmcnt(0)" % sp["bar"])
                cur = b + 1
            if sp.get("bar63"):
                G.put(st + 5, "s", "s_waitcnt vmcnt(0)\ns_barrier")
            if full:
                for i in range(16):
                    lo = st + 4 * (i // 2) + (i % 2)
                    cur = G.place("d", v_read(i // 2, i % 2, sp["voff"]), max(cur, lo)) + 1
            if sp.get("vnext") is not None:
                c2 = st + nq + 4 + 3
                for i in range(16):
                    lo = min(st + nq + 4 + 4 * (i // 2) + 3, end)
                    c2 = G.place("d", v_read(i // 2, i % 2, sp["vnext"]), min(max(c2, lo), end), end, force=True) + 1
            if sp.get("koff") is not None:
                if full:
                    c2 = st + 32
                    for i in range(8):
                        c2 = G.place("d", k_read(i // 4, i % 4, sp["koff"]), max(c2, st + 32 + 3 * i)) + 1
                else:
                    c2 = st + 16
                    for i in range(4): c2 = G.place("d", k_read(0, i, sp["koff"]), c2) + 1
                    for i in range(4): G.put(end, "d", k_read(1, i, sp["koff"]))
            if sp.get("dma"):
                g = st + (33 if full else 2)
                for wi, which in enumerate(sp["dma"]):
                    g = G.place("s", "s_add_u32 m0, %s, %s" % (s(S_M0K), sp["m0" + which]), g)
                    for i in range(2): g = G.place("m", kv_dma(which, i), g + 2)
                    g += 1
                g = G.place("s", "s_add_u32 %s, %s, 8192" % (s(S_KVOFF), s(S_KVOFF)), g)
            marks = {"dma": g, "kread": c2 if sp.get("koff") is not None else st, "vread": cur}
            for (after, chain) in sp.get("misc", []):
                gg = marks[after] if isinstance(after, str) else st + after
                for (kind, text) in chain:
                    gg = G.place(kind, text, gg + (1 if kind == "s" else 0), end)
                marks["last"] = max(marks.get("last", 0), gg)
            if sp["sm"]:
                ex, cv = softmax_ops(sp["buf"])
                n = end - st + 1
                if full:
                    eg = []; g = st
                    for i, x in enumerate(ex):
                        tgt = st + (i * (n - 3)) // 32
                        g = G.place("e", x, max(g, tgt), end); eg.append(g)
                    g = st
                    for i, x in enumerate(cv): g = G.place("v", x, max(g, eg[2 * i + 1] + 1), end)
                else:
                    for i, x in enumerate(ex): G.put(st + (i * (n - 1)) // 32, "e", x)
                    for i, x in enumerate(cv): G.put(min(st + ((2 * i + 1) * (n - 1)) // 32 + 1, end), "v", x)
        pre, out = auto_lgkm(G, pend, loop=loop)
        return G, pre, out

    G, pre, pend = build([dict(buf=0, qk=True, pv=False, sm=True, koff=16384)], False, [])
    e.ext(G.lines())
    for sl in range(4): e("v_add_u32 %s, 16384, %s" % (v(V_KA + sl), v(V_KA + sl)))
    e("s_mov_b32 %s, 16384\ns_mov_b32 %s, 49152" % (s(S_TOG), s(S_TMP + 2)))
    e("s_mov_b32 %s, %d\ns_mov_b32 %s, %d" % (s(S_TMP + 3), 1 * 8192, s(S_TMP + 4), 6 * 8192 + L_V))
    e("s_waitcnt vmcnt(0) lgkmcnt(0)\ns_barrier")
    for which, m0 in (("K", L_K), ("V", L_V + 5 * 8192)):
        e("s_add_u32 m0, %s, %d\ns_nop 0" % (s(S_M0K), m0))
        e(kv_dma(which, 0)); e(kv_dma(which, 1))
    e("s_add_u32 %s, %s, 8192" % (s(S_KVOFF), s(S_KVOFF)))
    e("s_mov_b32 %s, %d\ns_cmp_eq_u32 %s, 0\ns_cselect_b32 %s, %d, %s" % (s(S_EVT), EVTE, s(S_WAVE), s(S_EVT), EVT1, s(S_EVT)))
    stamp(e, 6)
    e("s_cmp_lg_u32 %s, 0\ns_cbranch_scc1 NOSIG2" % s(S_RETRY))
    e("s_cmp_ge_u32 %s, 27\ns_cbranch_scc1 LT_INIT" % s(S_FS))
    e("s_cmp_lg_u32 %s, 0\ns_cbranch_scc1 NOSIG2" % s(S_WAVE))
    set_flag(e, 2)
    e("NOSIG2:")
    def adv(r, base):
        return [("s", "s_add_u32 %s, %s, 8192" % (s(r), s(r))), ("s", "s_and_b32 %s, %s, 0xffff" % (s(r), s(r)))] + \
               ([("s", "s_or_b32 %s, %s, %d" % (s(r), s(r), base))] if base else [])
    miscA = [("kread", [("v", "v_xor_b32 %s, %s, %s" % (v(V_KA + i), s(S_TMP + 2), v(V_KA + i))) for i in range(4)]),
             ("dma", adv(S_TMP + 3, 0) + adv(S_TMP + 4, L_V))]
    if PWARM:
        miscA.append(("dma", [("s", "s_lshr_b32 %s, %s, 6" % (s(S_TMP + 1), s(S_KVOFF))), ("s", "s_min_u32 %s, %s, %d" % (s(S_TMP + 1), s(S_TMP + 1), 1280 + 23 * 256)),
                              ("v", "v_add_u32 %s, %s, %s" % (v(V_PW + 1), s(S_TMP + 1), v(V_PW))),
                              ("m", "global_load_dword %s, %s, %s%s" % (v(V_DUMP), v(V_PW + 1), s(ptr(11), 2), opt("pwfl", "_sc1").replace("_", " ")))]))
    miscB = [(34, [("v", "v_xor_b32 %s, %s, %s" % (v(V_VA + i), s(S_TOG), v(V_VA + i))) for i in range(8)] +
                  [("s", "s_xor_b32 %s, %s, 32768" % (s(S_TOG), s(S_TOG))), ("s", "s_xor_b32 %s, %s, 32768" % (s(S_TMP + 2), s(S_TMP + 2)))]),
             ("dma", adv(S_TMP + 3, 0) + adv(S_TMP + 4, L_V)),
             ("last", [("s", "s_cmp_lt_u32 %s, %s" % (s(S_KVOFF), s(S_EVT)))])]
    G, pre, pend = build([dict(buf=1, qk=True, pv=True, sm=True, koff=8192, voff=0, dma="KV", m0K=s(S_TMP + 3), m0V=s(S_TMP + 4), misc=miscA),
                          dict(buf=0, qk=True, pv=True, sm=True, koff=0, voff=8192, bar=16 + 2 * PWARM, dma="KV", m0K=s(S_TMP + 3), m0V=s(S_TMP + 4), misc=miscB)], True, [])
    if VERBOSE: print("loop", G.pattern())
    e(".p2align 6\nATT_LOOP:")
    for x in G.lines(): e(x)
    e("s_cbranch_scc1 ATT_LOOP")
    e("s_cmp_lt_u32 %s, %d\ns_cbranch_scc1 ATT_EVT" % (s(S_KVOFF), EVTE))
    e("TAILC0:")
    global LIGHT_LOOP
    LIGHT_LOOP = light_loop(G)
    stamp(e, 7)
    e("s_waitcnt lgkmcnt(0)")
    vr = [v_read(i // 2, i % 2, 0) for i in range(16)]
    e.ext(vr)
    h = E()
    G, pre, pend = build([dict(buf=1, qk=False, pv=True, sm=True, vnext=8192, bar63=True)], False, [asmcheck.I(x, 0, 0).W for x in vr])
    assert pre is None
    pq = [x for sg in range(NPRE_X) for x in t8_w(sg) + t8_a(sg)]
    assert NPRE_X <= 3
    g = 6
    while pq and g < 36:
        k, x = pq.pop(0)
        if k == "s": G.sc[g].append(x); g += 1
        else: G.va[g].append(x); g += opt("x63", 3)
    for x in G.lines(): h(x)
    G = Gaps(pv_mfmas(1, True))
    G.put(opt("b64", 8), "b", "s_barrier")
    G.put(opt("b64", 8), "s", "s_waitcnt lgkmcnt(0)")
    g = 0; post = []
    for k, x in pq:
        if not post:
            try:
                g = G.place(k, x, g) + (opt("x64", 3) if k == "m" else 1); continue
            except RuntimeError: pass
        post.append(x + ("\ns_nop 0" if k == "s" else ""))
    pre, pend = auto_lgkm(G, pend)
    h("s_nop 1")
    if pre is not None: h("s_waitcnt lgkmcnt(%d)" % pre)
    for x in G.lines(): h(x)
    h("v_min_u32 %s, 7, %s\nv_lshlrev_b32 %s, %d, %s" % (v(V_PL + 3), v(V_LANE), v(V_PL + 3), FSH, v(V_PL + 3)))
    for x in post: h(x)
    return h.L

LT_SS, LT_SD = 44, (48, 56)
LT_SO, LT_DO, LT_R = 91, 96, 97
LT_VO, LT_VB, LT_VR, LT_AD = 40, 42, 44, 32
L_TRB = 131072
def light_loop(G):
    import copy
    G = copy.deepcopy(G)
    n = G.n()
    b = [g for g in range(n) if any("s_barrier" in x for x in G.va[g])][0]
    G.sc[b] = [x.replace("vmcnt(%d)" % (16 + 2 * PWARM), "vmcnt(%d)" % (24 + 2 * PWARM)) for x in G.sc[b]]
    lastm = max(g for g in range(b) if any(x.startswith("buffer") for x in G.va[g]))
    def lay(seq, g, hi, step=1):
        for k, x in seq:
            if k == "s":
                while not G.fits(g, "s"): g += 1
                G.put(g, "s", x)
            else:
                win = opt("ltw", 4) if k != "m" else opt("ltm", 4)
                g = min(range(g, min(g + win, hi) + 1), key=lambda y: (G.used[y] + (3 if (k == "d" and G.ds[y] and opt("ltd", 0)) else 0), y))
                (G.ds if k == "d" else G.va)[g].append(x); G.used[g] += 1 if k != "m" else 2
            g += step
            assert g <= hi + 1, (x, g, hi)
        return g
    lay([("s", "s_add_u32 m0, %s, %s" % (s(LT_R), s(S_TMP)))] +
        [("m", "buffer_load_dwordx4 %s, %s, %s offen offset:%d lds" % (v(LT_VO + i), s(LT_SS, 4), s(LT_SO), 1024 * i)) for i in range(2)] +
        [("s", "s_add_u32 %s, %s, %d\ns_add_u32 %s, %s, 2048" % (s(LT_SO), s(LT_SO), 8 * 40960, s(LT_R), s(LT_R))),
         ("s", "s_cmp_eq_u32 %s, 6144\ns_cselect_b32 %s, 0, %s" % (s(LT_R), s(LT_R), s(LT_R)))] +
        [("v", "v_add_u32 %s, %s, %s" % (v(LT_VR + f), s(LT_R), v(LT_VB + f))) for f in range(2)], lastm + 1, b - 1)
    g = lay([("d", "ds_read_b64_tr_b16 %s, %s offset:%d" % (a(LT_AD + 4 * f + 2 * j, 2), v(LT_VR + f), 1024 * j)) for f in range(2) for j in range(2)], b + 1, b + 24, 2)
    cmpg = [g for g in range(n) if any(x.startswith("s_cmp_lt_u32 %s" % s(S_KVOFF)) for x in G.sc[g])][0]
    g = lay([("m", "buffer_store_dwordx4 %s, %s, %s, %s offen%s" % (a(LT_AD, 4), v(V_L16), s(LT_SD[0], 4), s(LT_DO), opt("ltfl", STFL).replace("_", " ")))], b + 38, cmpg - 1)
    g = lay([("m", "buffer_store_dwordx4 %s, %s, %s, %s offen%s" % (a(LT_AD + 4, 4), v(V_L16), s(LT_SD[1], 4), s(LT_DO), opt("ltfl", STFL).replace("_", " ")))], g + 8, cmpg - 1)
    G.sc[cmpg].insert(0, "s_add_u32 %s, %s, %d" % (s(LT_DO), s(LT_DO), 8 * 5120))
    if VERBOSE: print("lightloop", G.pattern())
    return G.lines()

def gen_events(e):
    L = V_LANE; t = S_TMP
    e("LT_INIT:")
    e("s_sub_u32 %s, %s, 27\ns_lshl_b32 %s, %s, 3\ns_add_u32 %s, %s, %s\ns_lshl2_add_u32 %s, %s, %s" % (s(t), s(S_FS), s(t), s(t), s(t), s(t), s(S_QT), s(t), s(t), s(S_WAVE)))
    e("s_mul_i32 %s, %s, 3277\ns_lshr_b32 %s, %s, 16\ns_mul_i32 %s, %s, 20\ns_sub_u32 %s, %s, %s" % (s(t + 1), s(t), s(t + 1), s(t + 1), s(t + 6), s(t + 1), s(t), s(t), s(t + 6)))
    e("s_mul_i32 %s, %s, 40960\ns_lshl_b32 %s, %s, 6\ns_add_u32 %s, %s, %s" % (s(LT_SO), s(t + 1), s(t + 6), s(t), s(LT_SO), s(LT_SO), s(t + 6)))
    e("s_sub_u32 %s, %s, 16\ns_mul_i32 %s, %s, 5120" % (s(LT_DO), s(t + 1), s(LT_DO), s(LT_DO)))
    srd(e, LT_SS, ptr(4), 0, 4096 * 1280)
    for f in range(2):
        e("s_lshl1_add_u32 %s, %s, %d\ns_mul_i32 %s, %s, 13108\ns_lshr_b32 %s, %s, 16\ns_mul_i32 %s, %s, 5\ns_sub_u32 %s, %s, %s\ns_lshl_b32 %s, %s, 10" % (
            s(t + 1), s(t), f, s(t + 6), s(t + 1), s(t + 6), s(t + 6), s(t + 7), s(t + 6), s(t + 1), s(t + 1), s(t + 7), s(t + 1), s(t + 1)))
        e("s_mul_i32 %s, %s, %d\ns_add_u32 %s, %s, %s\ns_add_u32 %s, %s, %d" % (s(t + 6), s(t + 6), NSLAB * 5120, s(t + 6), s(t + 6), s(t + 1), s(t + 6), s(t + 6), WF_OFF))
        srd(e, LT_SD[f], ptr(11), s(t + 6), (NSLAB - 1) * 5120 + 1024)
    e("s_mul_i32 %s, %s, 6144\ns_add_u32 %s, %s, %d\ns_mov_b32 %s, 0\ns_mov_b32 %s, %d" % (s(t), s(S_WAVE), s(t), s(t), L_TRB, s(LT_R), s(S_EVT), EVTS))
    e("v_lshrrev_b32 %s, 2, %s\nv_bfe_u32 %s, %s, 4, 1\nv_and_b32 %s, 3, %s" % (v(46), v(L), v(47), v(L), v(48), v(L)))
    e("v_lshlrev_b32 %s, 1, %s\nv_xor_b32 %s, %s, %s\nv_mul_u32_u24 %s, 1280, %s\nv_lshl_add_u32 %s, %s, 4, %s\nv_add_u32 %s, %d, %s" % (
        v(49), v(47), v(49), v(49), v(48), v(LT_VO), v(46), v(LT_VO), v(49), v(LT_VO), v(LT_VO + 1), 16 * 1280 - 1024, v(LT_VO)))
    e("v_lshlrev_b32 %s, 6, %s\nv_lshl_add_u32 %s, %s, 3, %s\nv_lshl_add_u32 %s, %s, 5, %s\nv_add_u32 %s, %s, %s\nv_xor_b32 %s, 32, %s" % (
        v(LT_VB), v(46), v(LT_VB), v(48), v(LT_VB), v(LT_VB), v(47), v(LT_VB), v(LT_VB), s(t), v(LT_VB), v(LT_VB + 1), v(LT_VB)))
    e(".p2align 6\nLT_LOOP:")
    for x in LIGHT_LOOP: e(x)
    e("s_cbranch_scc1 LT_LOOP")
    e("s_cmp_lg_u32 %s, %d\ns_cbranch_scc1 LT_END" % (s(S_KVOFF), EVTS))
    srd(e, LT_SS, ptr(8), 0, 1728 * 1280)
    e("s_sub_u32 %s, %s, %d\ns_mov_b32 %s, %d\ns_branch LT_LOOP" % (s(LT_SO), s(LT_SO), 128 * 40960, s(S_EVT), EVTL))
    e("LT_END:")
    e("s_waitcnt vmcnt(0)\ns_barrier")
    e("s_mov_b32 %s, %d\ns_cmp_lg_u32 %s, 0\ns_cbranch_scc1 ATT_LOOP" % (s(S_EVT), EVTE, s(S_WAVE)))
    set_flag(e, 2)
    e("s_mov_b32 %s, %d\ns_branch ATT_LOOP" % (s(S_EVT), EVT1))
    e("ATT_EVT:")
    e("s_cmp_lg_u32 %s, %d\ns_cbranch_scc1 ATT_EVT3" % (s(S_KVOFF), EVT1))
    if opt("ctt", 1):
        e("s_getpc_b64 %s\nCODE2:\ns_sub_u32 %s, %s, CODE2-TAILC0\ns_subb_u32 %s, %s, 0" % (s(t + 6, 2), s(t + 6), s(t + 6), s(t + 7), s(t + 7)))
        e("s_lshr_b32 %s, s2, 3\ns_lshl_b32 %s, %s, 10" % (s(t + 1), s(t + 1), s(t + 1)))
        e("v_min_u32 %s, 7, %s\nv_lshlrev_b32 %s, 7, %s\nv_add_u32 %s, %s, %s\nv_min_u32 %s, K_END-TAILC0, %s" % (v(V_PL), v(L), v(V_PL), v(V_PL), v(V_PL), s(t + 1), v(V_PL), v(V_PL), v(V_PL)))
        e("global_load_dword %s, %s, %s" % (v(V_DUMP), v(V_PL), s(t + 6, 2)))
    e(poll_load(True))
    e("s_mov_b32 %s, %d\ns_branch ATT_LOOP" % (s(S_EVT), EVT1 + 4 * 8192))
    e("ATT_EVT3:")
    e("s_waitcnt vmcnt(16)")
    poll_spin(e, True, None, 2, "EARLY")
    e("s_mov_b32 %s, %d\ns_branch ATT_LOOP" % (s(S_EVT), EVTE))
assert all((g * 3277) >> 16 == g // 20 for g in range(160)) and all((c * 13108) >> 16 == c // 5 for c in range(40))

K_SX, K_SO = S_WU, S_X
T_SA, T_SW, T_XS = S_T, S_WF, S_WQ
T_XO = S_WG
T_TAG = S_WG + 3
T_M0W, T_OA, T_OW = 88, 89, 90
T_BA, T_BW = (S_XOFF, S_WQOFF), (S_WGOFF, S_M0W)
K_FLG = 95
KV_XO = 63; KV_X = 8
TV_WR, TV_L4K, TV_TAG, TV_OW, TV_OR = 60, 61, 62, 3, 4
XPB = 12288
NSD, NSG = 7, 23
RW8, RA8, RF8 = 6, 5, 10
L_OWN = [122880, 0]

def join_scalar(lines):
    out = []
    for x in lines:
        if x.startswith(("s_addc", "s_cselect")): out[-1] += "\n" + x
        else: out.append(x)
    return out

def gen_tail_setup():
    e = E()
    L = V_LANE; t = S_TMP
    R, Cc, KQ = t + 3, t + 4, t + 5
    e("s_bfe_u32 %s, s2, 0x10002\ns_lshl_b32 %s, %s, 3\ns_lshr_b32 %s, s2, 5\ns_add_u32 %s, %s, %s" % (s(R), s(R), s(R), s(t), s(R), s(R), s(t)))
    e("s_bfe_u32 %s, s2, 0x20003\ns_and_b32 %s, s2, 3" % (s(Cc), s(KQ)))
    e("s_lshr_b32 %s, %s, 1\ns_lshl1_add_u32 %s, %s, %s\ns_lshl2_add_u32 %s, %s, %s\ns_mul_i32 %s, %s, %d" % (s(t), s(KQ), s(t), s(R), s(t), s(t), s(t), s(S_WAVE), s(t), s(t), 16 * 1280))
    e("s_and_b32 %s, %s, 1\ns_lshl1_add_u32 %s, %s, %s\ns_mul_i32 %s, %s, 160\ns_add_u32 %s, %s, %s" % (s(t + 1), s(KQ), s(t + 1), s(Cc), s(t + 1), s(t + 1), s(t + 1), s(t), s(t), s(t + 1)))
    srd(e, K_SX, ptr(0), s(t), 15 * 1280 + 160)
    srd(e, K_SO, ptr(9), s(t), 15 * 1280 + 160)
    e("v_and_b32 %s, 15, %s\nv_mul_u32_u24 %s, 1280, %s\nv_lshrrev_b32 %s, 4, %s\nv_lshl_add_u32 %s, %s, 3, %s" % (v(KV_XO), v(L), v(KV_XO), v(KV_XO), v(V_T), v(L), v(KV_XO), v(V_T), v(KV_XO)))
    e("s_lshr_b32 %s, %s, 1\ns_lshl2_add_u32 %s, %s, %s\ns_lshl_b32 %s, %s, %d" % (s(K_FLG), s(R), s(K_FLG), s(K_FLG), s(KQ), s(K_FLG), s(K_FLG), FSH + 3))
    e("s_mul_i32 %s, %s, 7\ns_add_u32 %s, %s, 64\ns_lshl_b32 %s, %s, 13\ns_mul_i32 %s, %s, 10240" % (s(t), s(KQ), s(t), s(t), s(T_BA[0]), s(t), s(T_BW[0]), s(t)))
    e("s_lshl_b32 %s, %s, 17\ns_mul_i32 %s, %s, %d" % (s(T_BA[1]), s(KQ), s(T_BW[1]), s(KQ), 16 * 10240))
    e("s_lshl2_add_u32 %s, %s, %s\ns_mul_i32 %s, %s, %d\ns_add_u32 %s, %s, %d" % (s(t), s(R), s(Cc), s(t), s(t), 24 * XPB, s(t), s(t), XP_OFF))
    srd(e, T_XS, ptr(11), s(t), 24 * XPB)
    for ch in range(2):
        d = T_XO + ch
        e("s_and_b32 %s, %s, 2\ns_add_u32 %s, %s, %d\ns_xor_b32 %s, %s, %s\ns_mul_i32 %s, %s, 3\ns_add_u32 %s, %s, %s\ns_sub_u32 %s, %s, 1" % (
            s(t), s(S_WAVE), s(t), s(t), ch, s(t + 1), s(t), s(KQ), s(t), s(t), s(t), s(t), s(t + 1), s(t), s(t)))
        e("s_mul_i32 %s, %s, %d\ns_and_b32 %s, %s, 1\ns_mul_i32 %s, %s, 6144\ns_add_u32 %s, %s, %s" % (s(t), s(t), XPB, s(d), s(S_WAVE), s(d), s(d), s(d), s(d), s(t)))
        e("s_cmp_eq_u32 %s, 0\ns_cselect_b32 %s, 0x1000000, %s" % (s(t + 1), s(d), s(d)))
    if PWARM:
        e("s_lshl2_add_u32 %s, %s, %s\ns_mul_i32 %s, %s, %d\ns_lshl_b32 %s, %s, 14\ns_add_u32 %s, %s, %s" % (s(t), s(S_QT), s(S_WAVE), s(t), s(t), NSLAB * 4096, s(t + 1), s(S_HEAD), s(t), s(t), s(t + 1)))
        e("v_mov_b32 %s, %s" % (v(V_PW), s(t)))
        for i, o in ((1, 6144), (2, 10240)):
            e("s_add_u32 %s, %s, %d\nv_writelane_b32 %s, %s, %d\nv_writelane_b32 %s, %s, %d" % (s(t + 1), s(t), o, v(V_PW), s(t + 1), 2 * i, v(V_PW), s(t + 1), 2 * i + 1))
        e("s_lshl2_add_u32 %s, %s, %s\ns_mul_i32 %s, %s, %d\ns_add_u32 %s, %s, %d" % (s(t + 2), s(R), s(Cc), s(t + 2), s(t + 2), 24 * XPB, s(t + 2), s(t + 2), XP_OFF))
        for m in range(2):
            for ch in range(2):
                i = 3 + 2 * m + ch
                e("s_add_u32 %s, %s, %s\ns_add_u32 %s, %s, %d" % (s(t + 1), s(t + 2), s(T_XO + ch), s(t + 1), s(t + 1), m * 12 * XPB))
                e("s_cmp_eq_u32 %s, 0x1000000\ns_cselect_b32 %s, %s, %s" % (s(T_XO + ch), s(t + 1), s(t), s(t + 1)))
                e("v_writelane_b32 %s, %s, %d\nv_writelane_b32 %s, %s, %d" % (v(V_PW), s(t + 1), 2 * i, v(V_PW), s(t + 1), 2 * i + 1))
        e("v_min_u32 %s, 14, %s" % (v(V_T), v(L)))
        L = V_T
        e("v_and_b32 %s, 1, %s\nv_lshl_add_u32 %s, %s, 7, %s\nv_subrev_u32 %s, 1280, %s" % (v(V_T), v(L), v(V_PW), v(V_T), v(V_PW), v(V_PW), v(V_PW)))
        L = V_LANE
    e("s_mul_i32 %s, %s, %d\ns_mul_i32 %s, %s, 3072\ns_add_u32 %s, %s, %s" % (s(T_XO + 2), s(KQ), 3 * XPB, s(t), s(S_WAVE), s(T_XO + 2), s(T_XO + 2), s(t)))
    e("s_add_u32 %s, %s, 0x10000\ns_and_b32 %s, %s, 0x1fff0000\ns_or_b32 %s, %s, 0x40000000\nv_mov_b32 %s, %s" % (s(t), s(S_EPOCH), s(t), s(t), s(T_TAG), s(t), v(TV_TAG), s(T_TAG)))
    e("s_and_b32 %s, %s, 1\ns_mul_i32 %s, %s, 10240\nv_add_u32 %s, %s, %s" % (s(t), s(S_WAVE), s(t), s(t), v(TV_OW), s(t), v(V_L16)))
    e("s_mul_i32 %s, %s, 5120\nv_add_u32 %s, %s, %s" % (s(t), s(S_WAVE), v(TV_OR), s(t), v(V_L16)))
    e("s_lshr_b32 %s, %s, 1\ns_lshl1_add_u32 %s, %s, %s\ns_mul_i32 %s, %s, %d" % (s(t), s(S_WAVE), s(t), s(R), s(t), s(t), s(t), NSLAB * 4096))
    e("s_and_b32 %s, %s, 1\ns_lshl_b32 %s, %s, 11\ns_add_u32 %s, %s, %s" % (s(t + 1), s(S_WAVE), s(t + 1), s(t + 1), s(t), s(t), s(t + 1)))
    srd(e, T_SA, ptr(11), s(t), NSLAB * 4096 - 2048)
    e("s_mul_i32 %s, %s, 5120" % (s(T_M0W), s(S_WAVE)))
    e("s_and_b32 %s, %s, 1\ns_lshl1_add_u32 %s, %s, %s\ns_mul_i32 %s, %s, %d" % (s(t), s(S_WAVE), s(t), s(Cc), s(t), s(t), s(t), NSLAB))
    e("s_lshr_b32 %s, %s, 1\ns_add_u32 %s, %s, %s\ns_mul_i32 %s, %s, 5120\ns_add_u32 %s, %s, %d" % (s(t + 1), s(S_WAVE), s(t), s(t), s(t + 1), s(t), s(t), s(t), s(t), WF_OFF))
    return join_scalar(e.L)

def gen_tail_setup2():
    e = E()
    srd(e, T_SW, ptr(11), s(S_TMP), (NSLAB - 1) * 5120)
    e("v_mov_b32 %s, %s\nv_add_u32 %s, 4096, %s" % (v(TV_WR), v(V_L16), v(TV_L4K), v(V_L16)))
    return join_scalar(e.L)

def t8_w(sg):
    base = (sg % RW8) * 20480; tag = "D%d" % sg
    m, i = (0, sg) if sg < NSD else (1, sg - NSD)
    W = lambda vo, off: ("m", "buffer_load_dwordx4 %s, %s, %s offen offset:%d%s lds ;#%s" % (v(vo), s(T_SW, 4), s(T_OW), off, LDFL, tag))
    return [("s", "s_add_u32 %s, %s, %d\ns_add_u32 m0, %s, %d" % (s(T_OW), s(T_BW[m]), i * 10240, s(T_M0W), base)),
            W(V_L16, 0), W(V_L16, 1024), W(V_L16, 2048), W(V_L16, 3072),
            ("s", "s_add_u32 m0, %s, %d" % (s(T_M0W), base + 4096)), W(TV_L4K, 0)]
def t8_af(sg, half, j): return a((32, 48, 192, 208, 224)[sg % RA8] + half * 8 + j * 4, 4)
def t8_a(sg):
    m, i = (0, sg) if sg < NSD else (1, sg - NSD)
    l = [("s", "s_add_u32 %s, %s, %d" % (s(T_OA), s(T_BA[m]), i * 8192))]
    for half in range(2):
        for j in range(2):
            l.append(("m", "buffer_load_dwordx4 %s, %s, %s, %s offen offset:%d%s ;#A%d" % (t8_af(sg, half, j), v(TV_L4K if half else V_L16), s(T_SA, 4), s(T_OA), j * 1024, LDFL, sg)))
    return l
def t8_wf(F):
    k = F % RF8
    return a(4 * k if k < 8 else 240 + 4 * (k - 8), 4)
def t8_read(F):
    sg, f = F // 20, F % 20
    if opt("t8c", 1): f = (f & 1) * 10 + (f >> 1)
    return "ds_read_b128 %s, %s offset:%d" % (t8_wf(F), v(TV_WR), (sg % 3) * 20480 + f * 1024)
def t8_acc(m, n10, j):
    i = n10 * 2 + j
    if m == 0: return 128 + 4 * i
    return 64 + 4 * i if i < 16 else 208 + 4 * (i - 16)
NPRE_X = opt("nprex", 2)
NPRE_G = opt("npreg", 2)

def cond_lines(lines): return [("@" + x) if x.startswith("buffer") else x for x in lines]

def publish(m):
    out = []; n = 0
    for ch in range(2):
        out.append(("s", "s_add_u32 %s, %s, %d" % (s(S_TMP + 2), s(T_XO + ch), m * 12 * XPB)))
        for j in range(2):
            vals = [t8_acc(m, 5 * ch + nb, j) + k for nb in range(5) for k in range(4)]
            pb = (40, 240)[n % 2]; n += 1
            for gi in range(3):
                vs = vals[7 * gi:7 * gi + 7]
                if len(vs) < 7: vs = vs + [TV_TAG]
                for h in range(3): out.append(("v", "v_cvt_pk_bf16_f32 %s, %s, %s" % (v(pb + 4 * gi + h), v(vs[2 * h]), v(vs[2 * h + 1]))))
                out.append(("v", "v_cvt_pk_bf16_f32 %s, %s, %s" % (v(pb + 4 * gi + 3), v(vs[6]), v(TV_TAG))))
                off = j * 3072 + gi * 1024
                out.append(("m", "buffer_store_dwordx4 %s, %s, %s, %s offen offset:%d%s ;#xst%d" % (v(pb + 4 * gi, 4), v(TV_L4K if off >= 4096 else V_L16), s(T_XS, 4), s(S_TMP + 2), off % 4096, STFL, m)))
    return out
def own_write(m):
    l = []
    if L_OWN[m]: l.append("v_add_u32 %s, %d, %s" % (v(52), L_OWN[m], v(TV_OW)))
    ar = v(52) if L_OWN[m] else v(TV_OW)
    for ch in range(2):
        l.append("s_cmp_lg_u32 %s, 0x1000000\ns_cbranch_scc1 NOOWN%d%d" % (s(T_XO + ch), m, ch))
        for j in range(2):
            for nb in range(5): l.append("ds_write_b128 %s, %s offset:%d" % (ar, v(t8_acc(m, 5 * ch + nb, j), 4), (j * 5 + nb) * 1024))
        l.append("NOOWN%d%d:" % (m, ch))
    return l
XR = [128, 64]; OWR = [164, 184]
def xloads(m):
    l = []
    for i in range(3):
        l.append(("s", "s_add_u32 %s, %s, %d" % (s(S_TMP + 3), s(T_XO + 2), m * 12 * XPB + i * XPB)))
        for k in range(3): l.append(("m", "buffer_load_dwordx4 %s, %s, %s, %s offen offset:%d%s ;#xr%d" % (v(XR[m] + (i * 3 + k) * 4, 4), v(V_L16), s(T_XS, 4), s(S_TMP + 3), k * 1024, LDFL, m)))
    return l
def xcheck(e, m, first_wait):
    t = S_TMP
    e("s_mov_b32 %s, 0" % s(t + 7))
    e(first_wait)
    e("XCHK%d:" % m)
    for i in range(9): e("v_xor_b32 %s, %s, %s" % (v(20 + i), s(T_TAG), v(XR[m] + 4 * i + 3)))
    for i in range(4): e("v_or3_b32 %s, %s, %s, %s" % (v(20), v(20), v(21 + 2 * i), v(22 + 2 * i)))
    e("v_cmp_lt_u32 vcc, 0xffff, %s" % v(20))
    e("s_add_u32 %s, %s, 1" % (s(t + 7), s(t + 7)))
    e("s_cmp_eq_u64 vcc, 0\ns_cbranch_scc1 XOK%d" % m)
    e("s_cmp_ge_u32 %s, 0x40000\ns_cbranch_scc1 XOK%d" % (s(t + 7), m))
    e("s_sleep %d" % opt("xslp", 4))
    for x in cond_lines([x for _, x in xloads(m)]): e(x)
    e("s_waitcnt vmcnt(0)\ns_branch XCHK%d" % m)
    e("XOK%d:" % m)
def xsum(e, m, nb):
    o = OWR[m] + 4 * nb
    for i in range(3):
        for k in range(4):
            idx = nb * 4 + k; gi, pos = idx // 7, idx % 7
            src = XR[m] + (i * 3 + gi) * 4 + pos // 2
            e(("v_and_b32 %s, 0xffff0000, %s" if pos & 1 else "v_lshlrev_b32 %s, 16, %s") % (v(20 + 4 * i + k), v(src)))
    for h in range(2):
        e("v_pk_add_f32 %s, %s, %s" % (v(o + 2 * h, 2), v(o + 2 * h, 2), v(20 + 2 * h, 2)))
        e("v_pk_add_f32 %s, %s, %s" % (v(24 + 2 * h, 2), v(24 + 2 * h, 2), v(28 + 2 * h, 2)))
    for h in range(2): e("v_pk_add_f32 %s, %s, %s" % (v(o + 2 * h, 2), v(o + 2 * h, 2), v(24 + 2 * h, 2)))

def gen_t8(e):
    t = S_TMP
    mf = []
    NF = 20 * NSG
    for F in range(NF):
        sg, f = F // 20, F % 20
        m = 0 if sg < NSD else 1
        if opt("t8c", 1):
            j = f & 1; F0 = F - j
            d = v(t8_acc(m, f >> 1, j), 4)
            for i, half in enumerate((0, 1) if j == 0 else (1, 0)):
                mf.append("%s %s, %s, %s, %s" % (MF, d, t8_wf(F0 + half), t8_af(sg, half, j), "0" if (sg in (0, NSD) and i == 0) else d))
            continue
        for j in range(2):
            d = v(t8_acc(m, f % 10, j), 4)
            mf.append("%s %s, %s, %s, %s" % (MF, d, t8_wf(F), t8_af(sg, f // 10, j), "0" if (sg in (0, NSD) and f < 10) else d))
    G = Gaps(mf)
    DA = opt("t8d", 8)
    SIGS = opt("sigs", 2); CKS = opt("cks", 6); PLS = CKS - opt("polld", 1)
    bars = {}
    cur = 0
    for F in range(DA, NF):
        sg, f = F // 20, F % 20
        lo = 2 * (F - DA)
        if f == 0:
            if sg % 3 == 0:
                d = 61440 if sg % 6 == 3 else -61440
                G.place("v", ("v_add_u32 %s, %d, %s" % (v(TV_WR), d, v(TV_WR))) if d > 0 else ("v_subrev_u32 %s, %d, %s" % (v(TV_WR), -d, v(TV_WR))), cur - 1, cur - 1)
            pre = E(); post = E()
            if sg == CKS:
                stamp(pre, 11)
                pre("s_cmp_lg_u32 %s, 0\ns_cbranch_scc1 SPUN_O\ns_waitcnt SINCE{p3}" % s(S_WAVE))
                poll_spin(pre, False, s(K_FLG), 3, "O")
                stamp(post, 12)
            if sg == SIGS:
                post("s_cmp_lg_u32 %s, 0\ns_cbranch_scc1 NOSIG3" % s(S_WAVE))
                set_flag(post, 3)
                post("s_cmp_lg_u32 s2, 0\ns_cbranch_scc1 NOSIG3")
                post("s_add_u32 %s, %s, 0x10001\ns_mov_b64 exec, 1\nv_mov_b32 %s, %s\ns_mov_b32 %s, %d" % (s(t + 7), s(S_EPOCH), v(V_PL + 1), s(t + 7), s(t + 6), EP_OFF))
                post("buffer_store_dword %s, off, %s, %s sc1\ns_mov_b64 exec, -1" % (v(V_PL + 1), s(S_FL, 4), s(t + 6)))
                post("NOSIG3:")
                stamp(post, 10)
            if sg == PLS:
                post("s_cmp_lg_u32 %s, 0\ns_cbranch_scc1 NOPOLL3" % s(S_WAVE))
                post(poll_load(False, s(K_FLG)))
                post("NOPOLL3:\nMARK p3")
            b = G.place("b", "\n".join(cond_lines(pre.L) + ["s_barrier"] + cond_lines(post.L)), max(cur, lo - 1))
            lateA = NSD <= sg < NSD + opt("latea", 2)
            G.put(b, "s", "s_waitcnt WAITVM{D%d%s%s}" % (sg, "" if lateA else ",A%d" % sg, ",ost" if sg == SIGS else ""))
            if lateA: G.put(40 * sg - 1, "s", "s_waitcnt WAITVM{A%d}" % sg)
            bars[sg] = b; cur = b + 1
        cur = G.place("d", t8_read(F), max(cur, lo)) + 1
    qw = [(t8_w(sg), bars[sg - RW8 + 2] if sg >= RW8 else 0, sg) for sg in range(NPRE_G, NSG)]
    qa = [(t8_a(sg), max(40 * (sg - RA8 + 1) if sg >= RA8 else 0, bars[CKS] if sg >= NSD else 0), sg) for sg in range(NPRE_G, NSG)]
    DP = opt("dpub", 1)
    side = []
    if DP:
        side.append((publish(0), 40 * NSD + 8 + opt("dpd", 20)))
        side.append((xloads(0), 40 * opt("dld", 20)))
    side.append(([("m", "buffer_load_dwordx2 %s, %s, %s, 0 offen offset:%d ;#xx" % (v(KV_X + 2 * nb, 2), v(KV_XO), s(K_SX, 4), nb * 32)) for nb in range(5)], 40 * opt("xld", 19)))
    side.sort(key=lambda x: x[1])
    MG = opt("mg", 4)
    g = 0; lastm = -9
    while qw or qa:
        c = [x for x in (qw, qa) if x]
        c.sort(key=lambda x: (max(x[0][1], g), x[0][2]))
        seq, lo, _ = c[0].pop(0)
        g = max(g, lo)
        for k, x in seq:
            g = G.place(k, x, max(g + 1, lastm + MG if k == "m" else 0))
            if k == "m": lastm = g
    for seq, lo in side:
        g = lo; lastm = -99
        for k, x in seq:
            g = G.place(k, x, max(g + (0 if k == "v" else 1), lastm + (opt("smg", 32) if "xst" in x else 6) if k == "m" else 0))
            if k == "m": lastm = g
        if "xst0" in seq[-1][1]:
            G.va[g + 1].append("\n".join(own_write(0))); pubend = g + 1
    if DP: assert pubend < 40 * opt("dld", 20) - 40
    auto_lgkm(G, eager=opt("eag", 8))
    if VERBOSE: print("t8", G.pattern())
    for F in range(DA): e(t8_read(F))
    e("s_waitcnt lgkmcnt(0)")
    nm = 0
    for x in G.lines():
        if x.startswith("v_mfma"):
            if nm == 40 * NSD: stamp(e, 13)
            if STAMPS and opt("t8st", 0) and nm > 40 * NSD and (nm - 40 * NSD) % 160 == 0: stamp(e, 25 + (nm - 40 * NSD) // 160)
            nm += 1
        e(x)

def gen_tail(e0, head):
    e = E(); e.ext(head)
    T = V_T; t = S_TMP
    stamp(e, 8)
    Z = 240 + 8; C = 240 + 12
    for qb in range(4): e("v_rcp_f32 %s, %s" % (v(T + 2 * qb), v(V_L + 4 * qb)))
    e("v_max3_f32 %s, %s, %s, %s" % (v(T + 8), v(V_L), v(V_L + 4), v(V_L + 8)))
    e("v_max_f32 %s, %s, %s" % (v(T + 8), v(T + 8), v(V_L + 12)))
    for qb in range(4): e("v_mov_b32 %s, %s" % (v(T + 2 * qb + 1), v(T + 2 * qb)))
    e("v_mul_f32 %s, %s, %s" % (v(T + 8), f2u(2.0 ** 64), v(T + 8)))
    e("v_mul_f32 %s, 0, %s" % (v(T + 8), v(T + 8)))
    for qb in range(4): e("v_fma_f32 %s, %s, 0, %s" % (v(T + 8), v(V_L + 4 * qb), v(T + 8)))
    for r in range(4): e("v_mov_b32 %s, 0" % v(Z + r))
    e("s_lshl_b32 %s, %s, 14" % (s(t + 2), s(S_HEAD)))
    W = T + 12
    wq = [x for sg in range(NPRE_X, NPRE_G) for x in t8_w(sg) + t8_a(sg)]
    def wsome(n):
        while wq and n > 0:
            k, x = wq.pop(0); n -= (k == "m")
            e(x + ("\ns_nop 0" if k == "s" else ""))
    for i in range(16):
        sl, qb = i // 4, i % 4
        d0 = 208 + 4 * (i % 4)
        for b in range(2):
            for r in range(4): e("v_accvgpr_read_b32 %s, %s" % (v(W + 4 * b + r), a(A_O + ((2 * sl + b) * 4 + qb) * 4 + r)))
        for h in range(4): e("v_pk_mul_f32 %s, %s, %s" % (v(W + 2 * h, 2), v(W + 2 * h, 2), v(T + 2 * qb, 2)))
        for h in range(4): e("v_cvt_pk_bf16_f32 %s, %s, %s" % (v(d0 + h), v(W + 2 * h), v(W + 2 * h + 1)))
        e("buffer_store_dwordx4 %s, %s, %s, %s offen offset:%d%s ;#ost" % (v(d0, 4), v(V_L16), s(S_AF, 4), s(t + 2), 1024 * qb, STFL))
        e("s_add_u32 %s, %s, 4096" % (s(t + 2), s(t + 2)) if qb == 3 else "s_nop 0")
        e("%s %s, %s, %s, %s" % (MF, v(C, 4), v(Z, 4), v(d0, 4), "0" if i == 0 else v(C, 4)))
        wsome(opt("wpg", 1))
    wsome(99)
    e("s_nop 7")
    e("v_cmp_u_f32 vcc, %s, %s" % (v(T + 8), v(C)))
    e("s_cmp_lg_u64 vcc, 0\ns_cselect_b32 %s, 1, 0" % s(t))
    e("v_mov_b32 %s, %s" % (v(W), s(t)))
    e("s_lshl_b32 %s, %s, 2\ns_add_u32 %s, %s, %d" % (s(t + 1), s(S_WAVE), s(t + 1), s(t + 1), L_MISC))
    e("v_mov_b32 %s, %s\nv_mov_b32 %s, %d" % (v(W + 1), s(t + 1), v(W + 2), L_MISC))
    e("ds_write_b32 %s, %s" % (v(W + 1), v(W)))
    e("s_waitcnt WAITVM{D0,A0} lgkmcnt(0)\ns_barrier")
    e("ds_read_b128 %s, %s" % (v(W + 4, 4), v(W + 2)))
    t8 = E(); gen_t8(t8)
    i0 = t8.L.index("s_waitcnt lgkmcnt(0)")
    e.ext(t8.L[:i0 + 1])
    e("v_or3_b32 %s, %s, %s, %s\nv_or_b32 %s, %s, %s\ns_nop 0" % (v(W + 4), v(W + 4), v(W + 5), v(W + 6), v(W + 4), v(W + 4), v(W + 7)))
    e("v_readfirstlane_b32 %s, %s" % (s(t), v(W + 4)))
    e("s_nop 3\ns_andn2_b32 %s, %s, %s" % (s(t), s(t), s(S_RETRY)))
    e("s_cbranch_scc1 ATT_RETRY")
    stamp(e, 9)
    e.ext(t8.L[i0 + 1:])
    stamp(e, 14)
    DP = opt("dpub", 1)
    e("s_nop 6")
    for k, x in publish(1): e(x)
    if not DP:
        for k, x in publish(0): e(x)
        for x in own_write(0): e(x)
    stamp(e, 23)
    for x in own_write(1): e(x)
    e("v_add_u32 %s, %d, %s" % (v(52), L_OWN[0], v(TV_OR)))
    e("s_waitcnt lgkmcnt(0)")
    if not DP:
        for k, x in xloads(0): e(x)
    XE = opt("xe", 0)
    if XE:
        for k, x in xloads(1): e(x)
    e("s_barrier")
    for nb in range(5): e("ds_read_b128 %s, %s offset:%d" % (v(OWR[0] + 4 * nb, 4), v(52), nb * 1024))
    for nb in range(5): e("ds_read_b128 %s, %s offset:%d" % (v(OWR[1] + 4 * nb, 4), v(TV_OR), L_OWN[1] + nb * 1024))
    xcheck(e, 0, "s_waitcnt WAITVM{xr0,xx} lgkmcnt(0)")
    GG = 100; XU = 204
    for nb in range(5):
        if nb == opt("xat", 2) and not XE and not opt("probe", 1):
            for k, x in xloads(1): e(x)
        d = OWR[0] + 4 * nb; gq = GG + 4 * nb
        xsum(e, 0, nb)
        for k in range(4): e("v_mul_f32 %s, %s, %s" % (v(gq + k), f2u(-math.log2(math.e) * DSC), v(d + k)))
        for k in range(4): e("v_exp_f32 %s, %s" % (v(gq + k), v(gq + k)))
        for k in range(4): e("v_mul_f32 %s, %s, %s" % (v(d + k), f2u(DSC), v(d + k)))
        for k in range(4): e("v_add_f32 %s, 1.0, %s" % (v(gq + k), v(gq + k)))
        for k in range(4): e("v_rcp_f32 %s, %s" % (v(gq + k), v(gq + k)))
        for h in range(2):
            e("v_lshlrev_b32 %s, 16, %s" % (v(XU + 4 * nb + 2 * h), v(KV_X + 2 * nb + h)))
            e("v_and_b32 %s, 0xffff0000, %s" % (v(XU + 4 * nb + 2 * h + 1), v(KV_X + 2 * nb + h)))
        for k in range(4): e("v_mul_f32 %s, %s, %s" % (v(gq + k), v(gq + k), v(d + k)))
    stamp(e, 24)
    if opt("probe", 1):
        e("s_mov_b32 %s, 0\nv_mov_b32 %s, %d" % (s(t + 7), v(30), XPB))
        e("v_min_u32 %s, 2, %s\nv_mul_lo_u32 %s, %s, %s\ns_add_u32 %s, %s, %d" % (v(31), v(V_LANE), v(31), v(31), v(30), s(t + 3), s(T_XO + 2), 12 * XPB + 2048 + 1008 + 12))
        e("PROBE:")
        e("@buffer_load_dword %s, %s, %s, %s offen%s" % (v(30), v(31), s(T_XS, 4), s(t + 3), LDFL))
        e("s_waitcnt vmcnt(0)")
        e("v_xor_b32 %s, %s, %s\nv_cmp_lt_u32 vcc, 0xffff, %s" % (v(30), s(T_TAG), v(30), v(30)))
        e("s_add_u32 %s, %s, 1" % (s(t + 7), s(t + 7)))
        e("s_cmp_eq_u64 vcc, 0\ns_cbranch_scc1 PROBED")
        e("s_cmp_ge_u32 %s, 0x40000\ns_cbranch_scc1 PROBED" % s(t + 7))
        e("s_sleep %d\ns_branch PROBE" % opt("pslp", 12))
        e("PROBED:")
        for k, x in xloads(1): e(x)
    xcheck(e, 1, "s_waitcnt vmcnt(0)")
    stamp(e, 25)
    for nb in range(5):
        o = OWR[1] + 4 * nb; gq = GG + 4 * nb; xu = XU + 4 * nb
        xsum(e, 1, nb)
        for r in range(4): e("v_fma_f32 %s, %s, %s, %s" % (v(xu + r), v(o + r), v(gq + r), v(xu + r)))
        for h in range(2): e("v_cvt_pk_bf16_f32 %s, %s, %s" % (v(gq + h), v(xu + 2 * h), v(xu + 2 * h + 1)))
        e("buffer_store_dwordx2 %s, %s, %s, 0 offen offset:%d%s" % (v(gq, 2), v(KV_XO), s(K_SO, 4), nb * 32, opt("ofl", "_sc1").replace("_", " ")))
    e0.ext([x.lstrip("@") for x in resolve_vm(e.L)])
    e = e0
    stamp(e, 15)
    if STAMPS: e("s_waitcnt vmcnt(0)")
    stamp(e, 16)
    stamp_fin(e)

def gen_kv_addr(e):
    T = V_T + 12; L = V_LANE
    e("v_and_b32 %s, 15, %s\nv_lshrrev_b32 %s, 4, %s\nv_xor_b32 %s, %s, %s" % (v(T), v(L), v(T + 1), v(L), v(T + 1), v(T + 1), v(T)))
    e("v_lshlrev_b32 %s, 8, %s\nv_lshl_add_u32 %s, %s, 4, %s" % (v(T), v(T), v(T), v(T + 1), v(T)))
    for sl in range(4): e("v_xor_b32 %s, %d, %s" % (v(V_KA + sl), sl * 64, v(T)))
    e("v_lshrrev_b32 %s, 2, %s\nv_and_b32 %s, 7, %s\nv_lshlrev_b32 %s, 8, %s\nv_lshl_add_u32 %s, %s, 5, %s" % (v(T), v(L), v(T + 1), v(T), v(T), v(T), v(T), v(T + 1), v(T)))
    e("v_and_b32 %s, 3, %s\nv_lshl_add_u32 %s, %s, 3, %s\nv_add_u32 %s, %d, %s" % (v(T + 1), v(L), v(T), v(T + 1), v(T), v(T), L_V, v(T)))
    for db in range(8): e("v_xor_b32 %s, %d, %s" % (v(V_VA + db), db * 32, v(T)))

def gen_retry(e):
    e("ATT_RETRY:")
    e("s_waitcnt vmcnt(0)\ns_mov_b32 %s, 1" % s(S_RETRY))
    gen_kv_addr(e)
    for qb in range(4): e("v_mov_b32 %s, 0xff800000" % v(V_NEGM + 4 * qb))
    e("s_mov_b32 %s, 0" % s(S_KVOFF))
    e("RETRY_LOOP:")
    e("s_barrier")
    e("s_add_u32 m0, %s, %d\ns_nop 0" % (s(S_M0K), L_K))
    e(kv_dma("K", 0)); e(kv_dma("K", 1))
    e("s_waitcnt vmcnt(0)\ns_barrier")
    for kb in range(2):
        for sl in range(4): e(k_read(kb, sl, 0))
    e("s_waitcnt lgkmcnt(0)")
    e.ext(qk_mfmas(0, czero=True))
    e("s_nop 7")
    for qb in range(4):
        b = Sreg(0, qb, 0); m = v(V_NEGM + 4 * qb)
        for k in range(4): e("v_max3_f32 %s, %s, %s, %s" % (m, m, v(b + 2 * k), v(b + 2 * k + 1)))
    e("s_add_u32 %s, %s, 8192\ns_cmp_lt_u32 %s, %d\ns_cbranch_scc1 RETRY_LOOP" % (s(S_KVOFF), s(S_KVOFF), s(S_KVOFF), 64 * 8192))
    e("s_barrier")
    kv_preload(e)
    e("s_barrier")
    for kb in range(2):
        for sl in range(4): e(k_read(kb, sl, 0))
    e("v_mov_b32 %s, 0x3f803f80" % v(V_T))
    for r in range(4): e("v_accvgpr_write_b32 %s, %s" % (a(A_ONE + r), v(V_T)))
    for r in range(128): e("v_accvgpr_write_b32 %s, 0" % a(A_O + r))
    for r in range(16): e("v_mov_b32 %s, 0" % v(V_L + r))
    e("s_waitcnt lgkmcnt(0)")
    e.ext(qk_mfmas(0, czero=True))
    for kb in range(2):
        for sl in range(4): e(k_read(kb, sl, 8192))
    e("s_branch ATT_START")

def gen_common_setup(e):
    T = V_T + 12; L = V_LANE
    e("s_lshl2_add_u32 %s, %s, %s" % (s(S_TMP + 1), s(S_QT), s(S_WAVE)))
    e("s_mul_i32 %s, %s, %d" % (s(S_TMP), s(S_TMP + 1), NSLAB * 4096))
    srd(e, S_AF, ptr(11), s(S_TMP), NSLAB * 4096)
    e("s_mul_i32 %s, %s, %d\ns_add_u32 %s, %s, %d" % (s(S_TMP), s(S_TMP + 1), 20 * 4096, s(S_TMP), s(S_TMP), XF_OFF))
    srd(e, S_X, ptr(11), s(S_TMP), 20 * 4096)
    e("s_lshl_b32 %s, %s, 19" % (s(S_TMP), s(S_HEAD)))
    srd(e, S_K, ptr(1), s(S_TMP), 524288)
    srd(e, S_V, ptr(2), s(S_TMP), 524288 + 3 * 8192)
    e("s_sub_u32 %s, %s, %d\ns_subb_u32 %s, %s, 0" % (s(S_V), s(S_V), 3 * 8192, s(S_V + 1), s(S_V + 1)))
    e("v_bfe_u32 %s, %s, 2, 2\nv_lshrrev_b32 %s, 4, %s\nv_and_b32 %s, 3, %s" % (v(T), v(L), v(T + 1), v(L), v(T + 2), v(L)))
    e("v_lshlrev_b32 %s, 12, %s" % (v(T + 3), v(T + 1)))
    e("v_mul_u32_u24 %s, 320, %s\nv_add_u32 %s, %s, %s\nv_lshl_add_u32 %s, %s, 4, %s" % (v(T + 4), v(T), v(T + 4), v(T + 4), v(T + 3), v(T + 4), v(T + 2), v(T + 4)))
    for sl in range(4): e("v_xor_b32 %s, %d, %s" % (v(V_AQ + sl), sl * 64, v(T + 4)))
    e("v_lshl_add_u32 %s, %s, 7, %s\nv_lshl_add_u32 %s, %s, 3, %s" % (v(T + 4), v(T), v(T + 3), v(T + 4), v(T + 2), v(T + 4)))
    e("v_bfe_u32 %s, %s, 3, 2\nv_lshl_add_u32 %s, %s, 5, %s" % (v(T + 5), v(L), v(T + 4), v(T + 5), v(T + 4)))
    for u in range(4): e("v_xor_b32 %s, %d, %s" % (v(V_AG + u), u * 32, v(T + 4)))
    e("v_lshrrev_b32 %s, 4, %s\ns_lshl_b32 %s, %s, 3\nv_add_u32 %s, %s, %s\nv_and_b32 %s, 15, %s" % (v(T), v(L), s(S_TMP), s(S_WAVE), v(T), s(S_TMP), v(T), v(T + 1), v(L)))
    e("v_lshlrev_b32 %s, 8, %s" % (v(T + 2), v(T)))
    for i in range(2):
        e("v_add_u32 %s, %d, %s\nv_and_b32 %s, 15, %s\nv_xor_b32 %s, %s, %s\nv_lshl_add_u32 %s, %s, 4, %s" % (v(T + 3), 4 * i, v(T), v(T + 4), v(T + 3), v(T + 4), v(T + 4), v(T + 1), v(V_KD + i), v(T + 4), v(T + 2)))
        e("v_and_b32 %s, 7, %s\nv_lshlrev_b32 %s, 1, %s\nv_xor_b32 %s, %s, %s\nv_lshl_add_u32 %s, %s, 4, %s" % (v(T + 4), v(T + 3), v(T + 4), v(T + 4), v(T + 4), v(T + 4), v(T + 1), v(V_VD + i), v(T + 4), v(T + 2)))
    gen_kv_addr(e)

def gen_w_setup(e):
    T = V_T + 12; L = V_LANE
    e("v_lshrrev_b32 %s, 4, %s\nv_lshlrev_b32 %s, 2, %s\nv_and_b32 %s, 15, %s\nv_xor_b32 %s, %s, %s" % (v(T), v(L), v(T + 1), v(T), v(T + 2), v(L), v(T + 1), v(T + 1), v(T + 2)))
    e("v_lshlrev_b32 %s, 13, %s\nv_lshl_add_u32 %s, %s, 4, %s" % (v(T), v(T), v(V_WD), v(T + 1), v(T)))
    e("v_add_u32 %s, %d, %s" % (v(V_WD + 1), 4 * 8192 - 1024, v(V_WD)))
    e("v_lshrrev_b32 %s, 3, %s\nv_bfe_u32 %s, %s, 4, 1\nv_lshlrev_b32 %s, 1, %s" % (v(T), v(L), v(T + 1), v(L), v(T + 1), v(T + 1)))
    e("s_and_b32 %s, %s, 1\ns_lshl_b32 %s, %s, 2\nv_or_b32 %s, %s, %s" % (s(S_TMP), s(S_WAVE), s(S_TMP), s(S_TMP), v(T + 1), s(S_TMP), v(T + 1)))
    e("v_and_b32 %s, 7, %s\nv_xor_b32 %s, %s, %s" % (v(T + 2), v(L), v(T + 1), v(T + 1), v(T + 2)))
    e("v_mul_u32_u24 %s, 3456, %s\nv_lshl_add_u32 %s, %s, 4, %s" % (v(T), v(T), v(V_WD + 2), v(T + 1), v(T)))
    e("s_lshl_b32 %s, %s, 8\ns_sub_u32 %s, %d, %s" % (s(S_TMP), s(S_HEAD), s(S_TMP + 1), 640 * 8192, s(S_TMP)))
    srd(e, S_WQ, ptr(3), s(S_TMP), s(S_TMP + 1))
    for (d, p, sh) in ((S_WG, 6, 2048), (S_WU, 7, 3072)):
        e("s_lshl_b32 %s, %s, 7\ns_sub_u32 %s, %d, %s" % (s(S_TMP), s(S_FS), s(S_TMP + 1), 640 * 3456 + sh, s(S_TMP)))
        e("s_cmp_lt_u32 %s, 27\ns_cselect_b32 %s, %s, 0" % (s(S_FS), s(S_TMP + 1), s(S_TMP + 1)))
        srd(e, d, ptr(p), s(S_TMP), s(S_TMP + 1))
        e("s_sub_u32 %s, %s, %d\ns_subb_u32 %s, %s, 0" % (s(d), s(d), sh, s(d + 1), s(d + 1)))

def gen_kernel(e, name):
    T = V_T; L = V_LANE
    e(".text\n.globl %s\n.p2align 8\n.type %s,@function\n%s:" % (name, name, name))
    e("s_cmp_ge_u32 s2, 256\ns_cbranch_scc1 K_END")
    e("s_load_dwordx8 %s, s[0:1], 0\ns_load_dwordx8 %s, s[0:1], 32\ns_load_dwordx8 %s, s[0:1], 64" % (s(S_PTR, 8), s(S_PTR + 8, 8), s(S_PTR + 16, 8)))
    e("v_and_b32 %s, 63, v0\nv_lshrrev_b32 %s, 6, v0\nv_lshlrev_b32 %s, 4, %s\nv_readfirstlane_b32 %s, %s" % (v(L), v(T), v(V_L16), v(L), s(S_WAVE), v(T)))
    e("s_and_b32 %s, s2, 7\ns_lshr_b32 %s, s2, 3\ns_and_b32 %s, %s, 3\ns_lshr_b32 %s, %s, 2" % (s(S_TMP), s(S_TMP + 1), s(S_HL), s(S_TMP + 1), s(S_QT), s(S_TMP + 1)))
    e("s_lshl_b32 %s, %s, 2\ns_add_u32 %s, %s, %s" % (s(S_HEAD), s(S_TMP), s(S_HEAD), s(S_HEAD), s(S_HL)))
    e("s_lshl_b32 %s, %s, 3\ns_add_u32 %s, %s, %s" % (s(S_FS), s(S_HL), s(S_FS), s(S_FS), s(S_TMP)))
    e("s_mov_b32 %s, 0" % s(S_RETRY))
    e("s_lshl_b32 %s, %s, 12\ns_lshl_b32 %s, %s, 11" % (s(S_M0W), s(S_WAVE), s(S_M0K), s(S_WAVE)))
    if STAMPS: e("v_mov_b32 v0, -1\nv_mov_b32 v19, -1")
    stamp(e, 0)
    def codetouch(e):
        e("s_getpc_b64 %s\nCODE0:" % s(S_TMP + 4, 2))
        e("s_lshr_b32 %s, s2, 3\ns_lshl2_add_u32 %s, %s, %s\ns_mul_i32 %s, %s, 640" % (s(S_EVT + 6), s(S_EVT + 6), s(S_EVT + 6), s(S_WAVE), s(S_EVT + 6), s(S_EVT + 6)))
        e("v_min_u32 %s, 4, %s\nv_lshlrev_b32 %s, 7, %s\nv_add_u32 %s, %s, %s\nv_min_u32 %s, CODE1-CODE0-4, %s" % (v(8), v(L), v(8), v(8), v(8), s(S_EVT + 6), v(8), v(8), v(8)))
        e("global_load_dword %s, %s, %s" % (v(V_PL), v(8), s(S_TMP + 4, 2)))
    CPOS = opt("cpos", 0); WPOS = opt("wpos", 0)
    if CPOS == 0: codetouch(e)
    gen_ln_loads(e)
    e("s_add_u32 %s, %s, %d\ns_addc_u32 %s, %s, 0\ns_load_dword %s, %s, 0" % (s(S_TMP + 2), s(ptr(11)), FL_OFF + EP_OFF, s(S_TMP + 3), s(ptr(11) + 1), s(S_EPOCH), s(S_TMP + 2, 2)))
    ny = 0
    if CPOS == 1: codetouch(e); ny += 1
    gen_w_setup(e)
    e("s_lshl_b32 %s, %s, 16\ns_mul_i32 %s, %s, %d" % (s(S_WQOFF), s(S_WAVE), s(S_WGOFF), s(S_WAVE), 8 * 3456))
    WT = max(opt("wt", 6), 1)
    X = V_TC
    e("s_lshl2_add_u32 %s, %s, %s\ns_add_u32 %s, %s, %d" % (s(S_TMP), s(S_QT), s(S_WAVE), s(S_TMP), s(S_TMP), 32 * NI))
    e("v_lshrrev_b32 %s, 1, %s\nv_min_u32 %s, %d, %s\nv_lshlrev_b32 %s, 5, %s\nv_add_u32 %s, %s, %s" % (v(X), v(L), v(X), WT - 1, v(X), v(X), v(X), v(X), s(S_TMP), v(X)))
    e("v_and_b32 %s, 1, %s\nv_lshlrev_b32 %s, 7, %s\nv_lshl_add_u32 %s, %s, 13, %s\nv_mul_u32_u24 %s, 3456, %s" % (v(X + 1), v(L), v(X + 1), v(X + 1), v(X + 1), v(X), v(X + 1), v(X), v(X)))
    w0 = E(); wt = E()
    for sl in range(NI): w_slab(w0, sl, True)
    wt("buffer_load_dword %s, %s, %s, 0 offen" % (v(V_PL + 1), v(X + 1), s(S_WQ, 4)))
    wt("buffer_load_dword %s, %s, %s, 0 offen offset:2048" % (v(V_PL + 2), v(X), s(S_WG, 4)))
    wt("buffer_load_dword %s, %s, %s, 0 offen offset:3072" % (v(V_DUMP), v(X), s(S_WU, 4)))
    if opt("wt", 6) == 0: wt.L = []
    early = {0: w0.L + wt.L, 1: [], 2: w0.L, 3: w0.L}[WPOS]
    mid = {0: [], 1: w0.L + wt.L, 2: wt.L, 3: []}[WPOS]
    after = wt.L if WPOS == 3 else []
    e.ext(early); ny += sum(x.startswith("buffer") for x in early)
    LATE = opt("late", 2)
    srd(e, S_FL, ptr(11), FL_OFF, EP_OFF + 4096)
    e("s_lshl_b32 %s, %s, 5\ns_add_u32 %s, %s, %s\ns_lshl_b32 %s, %s, %d" % (s(S_MYFL), s(S_QT), s(S_MYFL), s(S_MYFL), s(S_HEAD), s(S_MYFL), s(S_MYFL), FSH))
    e("v_min_u32 %s, 31, %s\nv_lshlrev_b32 %s, %d, %s\ns_lshl_b32 %s, %s, %d" % (v(V_PL + 3), v(L), v(V_PL + 3), FSH, v(V_PL + 3), s(S_XOFF), s(S_QT), FSH + 5))
    def rest():
        gen_common_setup(e)
        for i in range(8): e("v_add_u32 %s, 65536, %s" % (v(V_AHI + i), v(V_AQ + i)))
    stamp(e, 1)
    gen_ln_compute(e, ny, mid)
    e.ext(after)
    stamp(e, 29)
    if LATE == 1: rest()
    e("s_mul_i32 %s, %s, 0x9e3779b1\ns_add_u32 %s, %s, 0x7f4a7c15" % (s(S_TAG), s(S_EPOCH), s(S_TAG), s(S_TAG)))
    e("s_waitcnt vmcnt(%d)\ns_barrier" % len(after))
    stamp(e, 18)
    e("s_cmp_lg_u32 %s, 0\ns_cbranch_scc1 NOFL1" % s(S_WAVE))
    set_flag(e, 1)
    e("NOFL1:")
    if LATE == 2: rest()
    e("s_cmp_lg_u32 %s, 0\ns_cbranch_scc1 SPUN_XN" % s(S_WAVE))
    e(poll_load(False, s(S_XOFF)))
    e("s_waitcnt vmcnt(0)")
    poll_spin(e, False, s(S_XOFF), 1, "XN")
    e("s_barrier")
    stamp(e, 2)
    e("s_cmp_ge_u32 %s, 27\ns_cbranch_scc1 LIGHT" % s(S_FS))
    gen_proj(e, True, "H")
    e("PROJ_DONE:")
    head = gen_attention(e)
    gen_tail(e, head)
    e("K_END:\ns_endpgm")
    gen_events(e)
    gen_retry(e)
    e("LIGHT:")
    gen_proj(e, False, "L")
    e("s_branch PROJ_DONE")
    e("CODE1:")
    e(kd(name))

def main():
    e = E()
    hdr = open("cdna_kernels/%s.s.ref" % NAME).read().split("; Override launch")[0]
    e.L += hdr.strip().split("\n")
    e("; @launch grid=(256,1,1) block=(256,1,1) lds=%d" % LDS_BYTES)
    e('.amdgcn_target "amdgcn-amd-amdhsa--gfx950"')
    gen_kernel(e, NAME + "_kernel")
    t = re.sub(r" ;#\w*", "", e.text())
    errs = [x for x in asmcheck.check(t, [NAME + "_kernel"]) if x.count("_load_dword v%d," % V_DUMP) != 2 and not any(y in x for y in poll_load(True).split("\n")[-4:])]
    if errs:
        print("\n".join(errs[:40])); print(len(errs), "problems")
    out = [x for x in sys.argv[1:] if x.endswith(".s")]
    open(out[0] if out else "cdna_kernels/%s.s" % NAME, "w").write(t)

if __name__ == "__main__":
    main()
```

```python
import sys, math, os, struct, re
from sched import Gaps, auto_lgkm
import asmcheck

NAME = "recurrent_scan__mha_block_cached__glu_gated_reglu__prompt"
MF = "v_mfma_f32_16x16x32_bf16"
OPT = dict(x.split("=") for x in sys.argv[1:] if "=" in x)
def opt(k, d): return type(d)(OPT.get(k, d))
VERBOSE = "-v" in sys.argv
STAMPS = "--stamps" in sys.argv
STFL = opt("stfl", " sc1").replace("_", " ")
LDFL = opt("ldfl", " sc1").replace("_", " ")

NSLAB = 182
QSC = math.log2(math.e) / math.sqrt(128.0)
DSC = 1.0 / (QSC * QSC)
WF_OFF = 0x1800000
WF_BYTES = 8 * NSLAB * 5120
XF_OFF = 0x2000000
XP_OFF = 0x2800000
MAXST = 3
FL_OFF = 0x2400000

class E:
    def __init__(self): self.L = []
    def __call__(self, s):
        for x in s.split("\n"):
            x = x.strip()
            if x: self.L.append(x)
    def ext(self, l): self.L += l
    def text(self): return "\n".join(self.L) + "\n"

def v(a, n=1): return "v%d" % a if n == 1 else "v[%d:%d]" % (a, a + n - 1)
def a(a_, n=1): return "a%d" % a_ if n == 1 else "a[%d:%d]" % (a_, a_ + n - 1)
def s(a_, n=1): return "s%d" % a_ if n == 1 else "s[%d:%d]" % (a_, a_ + n - 1)
def f2u(x): return "0x%08x" % struct.unpack("<I", struct.pack("<f", x))[0]

def kd(name, vgpr=512, acc=256):
    return """.section .rodata,"a"
.p2align 6
.amdhsa_kernel %s
  .amdhsa_next_free_vgpr %d
  .amdhsa_next_free_sgpr 102
  .amdhsa_accum_offset %d
  .amdhsa_group_segment_fixed_size 0
  .amdhsa_kernarg_size 96
  .amdhsa_user_sgpr_count 2
  .amdhsa_user_sgpr_kernarg_segment_ptr 1
  .amdhsa_system_sgpr_workgroup_id_x 1
.end_amdhsa_kernel
""" % (name, vgpr, acc)

def stamp(e, i):
    if not STAMPS: return
    e("s_waitcnt lgkmcnt(0)\ns_memtime s[98:99]\ns_memrealtime s[100:101]\ns_waitcnt lgkmcnt(0)")
    e("v_writelane_b32 v0, s98, %d\nv_writelane_b32 v19, s100, %d" % (i, i))
def stamp_fin(e):
    if not STAMPS: return
    if opt("echo", ""):
        i, j = [int(x) for x in opt("echo", "").split(".")]
        e("s_nop 1\nv_readlane_b32 s96, v19, %d\nv_readlane_b32 s97, v19, %d\nv_readlane_b32 s98, v19, 16\ns_nop 3\ns_sub_u32 s96, s97, s96\ns_min_u32 s96, s96, 20000\ns_cmp_%s_u32 %s, 27\ns_cselect_b32 s96, s96, 0" % (i, j, "ge" if opt("el", 0) else "lt", s(S_FS)))
        e("ECHO:\ns_sleep 1\ns_memrealtime s[100:101]\ns_waitcnt lgkmcnt(0)\ns_sub_u32 s97, s100, s98\ns_cmp_lt_u32 s97, s96\ns_cbranch_scc1 ECHO")
        return
    if opt("dbgout", -1) >= 0:
        e("s_cmp_lg_u32 s2, %d\ns_cbranch_scc1 NODBG\ns_cmp_lg_u32 %s, 0\ns_cbranch_scc1 NODBG" % (opt("dbgout", -1), s(S_WAVE)))
        e("v_readlane_b32 s98, v19, 0\ns_nop 3\nv_subrev_u32 v18, s98, v19\nv_lshlrev_b32 v20, 2, v1\nv_subrev_u32 v20, 4, v20")
        e("s_mov_b32 s96, %s\ns_mov_b32 s97, %s\ns_mov_b32 s98, 64\ns_mov_b32 s99, 0x20000" % (s(ptr(10)), s(ptr(10) + 1)))
        e("buffer_store_dword v18, v20, s[96:99], 0 offen\ns_waitcnt vmcnt(0)\nNODBG:")
        return
    if opt("wsb", 0): e("s_sub_u32 %s, %s, %d\ns_subb_u32 %s, %s, 0" % (s(ptr(11)), s(ptr(11)), opt("wsb", 0) << 20, s(ptr(11) + 1), s(ptr(11) + 1)))
    e("s_lshl_b32 s98, s2, 2\ns_add_u32 s98, s98, %s\ns_lshl_b32 s98, s98, 9\ns_add_u32 s98, s98, %d" % (s(S_WAVE), 0x4000000))
    e("s_add_u32 s96, %s, s98\ns_addc_u32 s97, %s, 0\ns_mov_b32 s98, 512\ns_mov_b32 s99, 0x20000" % (s(ptr(11)), s(ptr(11) + 1)))
    e("v_mov_b32 v18, v0\nv_lshlrev_b32 v20, 3, v1\nbuffer_store_dwordx2 v[18:19], v20, s[96:99], 0 offen\ns_waitcnt vmcnt(0)")

def srd(e, d, base, off_lo, nbytes):
    e("s_add_u32 %s, %s, %s" % (s(d), s(base), off_lo))
    e("s_addc_u32 %s, %s, 0" % (s(d + 1), s(base + 1)))
    e("s_mov_b32 %s, %s" % (s(d + 2), nbytes))
    e("s_mov_b32 %s, 0x20000" % s(d + 3))

def uncond(x): return False
def resolve_vm(lines):
    out = []; ops = []; waited = set(); lastm0 = None; done = 0; marks = {}
    for x in lines:
        mm = re.search(r"vmcnt\((\d+)\)", x)
        if mm and not x.startswith("@") and uncond(x): done = max(done, len(ops) - int(mm.group(1)))
        if x.startswith(("buffer_", "global_")) and len(ops) - done >= 58:
            out.append("s_waitcnt vmcnt(52)"); done = len(ops) - 52
        if x.startswith("s_add_u32 m0,"): lastm0 = x.split(",")[1].strip()
        if " lds" in x and ";#" in x:
            tg = x.split(";#")[1].strip()
            exp = s(S_M0W) if tg.startswith("w") else (s(S_TRM) if tg == "trs" else s(S_M0K))
            if tg.startswith("D"): exp = s(T_M0W)
            assert lastm0 == exp, "M0 collision at %s" % x
        if x.startswith("MARK"):
            marks[x.split()[1]] = len(ops); continue
        m = re.search(r"SINCE\{(\w+)\}", x)
        if m: x = x.replace(m.group(0), "vmcnt(%d)" % min(63, len(ops) - marks[m.group(1)]))
        m = re.search(r"WAITVM\{([^}]*)\}", x)
        if m:
            need = set(m.group(1).split(","))
            waited |= need
            idx = [i for i, t in enumerate(ops) if t in need]
            n = len(ops) - 1 - max(idx) if idx else 63
            done = max(done, len(ops) - min(n, 63))
            x = x.replace(m.group(0), "vmcnt(%d)" % min(n, 63))
        elif x.startswith(("buffer_", "global_")):
            t = x.split(";#")[1].strip() if ";#" in x else ""
            assert t not in waited, "op %s issued after its wait" % t
            ops.append(t)
        out.append(x)
    return out

S_FL = 4
S_X, S_WQ, S_WG, S_WU, S_K, S_V, S_AF, S_T, S_WF = 8, 12, 16, 20, 24, 28, 32, 36, 40
S_PTR = 44
S_WAVE, S_HEAD, S_QT, S_FS = 68, 69, 70, 71
S_XOFF, S_WQOFF, S_WGOFF, S_M0W = 72, 73, 74, 75
S_KVOFF, S_M0K, S_TOG, S_RETRY = 76, 77, 78, 79
S_TMP = 80
S_TRS, S_TRM, S_TRD, S_TRU = 88, 89, 90, 91
S_EPOCH, S_TAG, S_MYFL = 92, 93, 94
S_HL = 3
S_EVT = 85
EVTS = (32 + 9) * 8192
EVTL = (50 + 9) * 8192
EVT1 = (56 + 9) * 8192
EVTE = (62 + 9) * 8192
NWH = opt("nwh", 0)
S_LN = 84
def ptr(i): return S_PTR + 2 * i

L_K = 0
L_V = 65536
RW = 7
L_TR = 114688
L_MISC = 155648
LDS_BYTES = 163840

V_LANE = 1
V_L16 = 2
V_WD = 3
V_TRA = 6
V_AQ = 10
V_AG = 14
V_KA = 20
V_VA = 24
V_KD = 32
V_VD = 34
V_DUMP = 18
V_PW = 5
PWARM = opt("pw", 0)
V_TC = 62
V_PL = 36
V_T = 40
V_ACCQ = 64
V_ACCG = 192
V_Q = 64
V_S = 128
V_P = 192
V_NEGM = 224
V_L = 240
A_ACCU = 0
XD = 7
A_X = 64
A_W = 176
A_TR = 208
A_ONE = 248
A_O = 64
A_KF = 208
A_VF = 0
V_AHI = 44

def qacc(blk, qb): return (V_S if blk & 1 else V_Q) + ((blk >> 1) * 4 + qb) * 4
def accreg(blk, qb):
    if blk < 8: return v(qacc(blk, qb), 4)
    if blk < 12: return v(V_ACCG + ((blk - 8) * 4 + qb) * 4, 4)
    return a(A_ACCU + ((blk - 12) * 4 + qb) * 4, 4)

def w_read(dst, blk, j, rel):
    if blk < 8:
        ar = V_AQ + (blk >> 1); off = rel + j * 1024 + (blk & 1) * 8
    else:
        ar = V_AG + ((blk - 8) & 3); off = rel + 2048 + (1024 if blk >= 12 else 0) + j * 512
    if rel >= 65536: ar += V_AHI - V_AQ; off -= 65536
    assert 0 <= off < 65536
    return "ds_read_b64_tr_b16 %s, %s offset:%d" % (a(dst + 2 * j, 2), v(ar), off)

def w_dma(heavy, tag):
    l = ["buffer_load_dwordx4 %s, %s, %s offen lds ;#%s" % (v(V_WD), s(S_WQ, 4), s(S_WQOFF), tag),
         "buffer_load_dwordx4 %s, %s, %s offen offset:1024 lds ;#%s" % (v(V_WD + 1), s(S_WQ, 4), s(S_WQOFF), tag)]
    if heavy:
        l += ["buffer_load_dwordx4 %s, %s, %s offen offset:2048 lds ;#%s" % (v(V_WD + 2), s(S_WG, 4), s(S_WGOFF), tag),
              "buffer_load_dwordx4 %s, %s, %s offen offset:3072 lds ;#%s" % (v(V_WD + 2), s(S_WU, 4), s(S_WGOFF), tag)]
    return l

def x_load(sl, qb):
    return "buffer_load_dwordx4 %s, %s, %s, %s offen offset:%d%s ;#x%d" % (a(A_X + ((sl % XD) * 4 + qb) * 4, 4), v(V_L16), s(S_X, 4), s(S_XOFF), qb * 1024, LDFL, sl)

def kv_dma(which, i, tag=""):
    vo = (V_KD if which == "K" else V_VD) + i
    return "buffer_load_dwordx4 %s, %s, %s offen offset:%d lds ;#%s" % (v(vo), s(S_K if which == "K" else S_V, 4), s(S_KVOFF), 1024 * i, tag)

FSH = opt("fsh", 2)
EP_OFF = 65536
def set_flag(e, stage):
    if opt("fwide", 0):
        n = (1 << FSH) // 8
        e("s_add_u32 %s, %s, %d\ns_mov_b64 exec, 0x%x\nv_mov_b32 %s, %s\nv_mov_b32 %s, %s\nv_lshlrev_b32 %s, 3, %s" % (s(S_TMP + 7), s(S_TAG), stage, (1 << n) - 1, v(V_PL), s(S_TMP + 7), v(V_PL + 1), s(S_TMP + 7), v(V_PL + 2), v(V_LANE)))
        e("buffer_store_dwordx2 %s, %s, %s, %s offen sc1" % (v(V_PL, 2), v(V_PL + 2), s(S_FL, 4), s(S_MYFL)))
    else:
        e("s_add_u32 %s, %s, %d\ns_mov_b64 exec, 1\nv_mov_b32 %s, %s" % (s(S_TMP + 7), s(S_TAG), stage, v(V_PL), s(S_TMP + 7)))
        e("buffer_store_dword %s, off, %s, %s sc1" % (v(V_PL), s(S_FL, 4), s(S_MYFL)))
    e("s_mov_b64 exec, -1")

def poll_load(allq, qoff=None):
    if allq and FSH > 2:
        return "v_lshlrev_b32 %s, %d, %s\n" % (v(V_DUMP), FSH + 2, v(V_LANE)) + "\n".join("buffer_load_dword %s, %s, %s, 0 offen offset:%d sc1" % (v(V_PL + i), v(V_DUMP), s(S_FL, 4), i << FSH) for i in range(4))
    if allq: return "buffer_load_dwordx4 %s, %s, %s, 0 offen sc1" % (v(V_PL, 4), v(V_L16), s(S_FL, 4))
    return "buffer_load_dword %s, %s, %s, %s offen sc1" % (v(V_PL), v(V_PL + 3), s(S_FL, 4), qoff)

def poll_spin(e, allq, qoff, stage, tag):
    e("s_mov_b32 %s, 0\ns_add_u32 %s, %s, %d" % (s(S_TMP + 7), s(S_TMP + 6), s(S_TAG), stage))
    e("SPIN_%s:" % tag)
    n = 4 if allq else 1
    for i in range(n): e("v_subrev_u32 %s, %s, %s" % (v(V_PL + i), s(S_TMP + 6), v(V_PL + i)))
    if allq: e("v_max3_u32 %s, %s, %s, %s\nv_max_u32 %s, %s, %s" % (v(V_PL), v(V_PL), v(V_PL + 1), v(V_PL + 2), v(V_PL), v(V_PL), v(V_PL + 3)))
    e("v_cmp_lt_u32 vcc, %d, %s" % (MAXST - stage, v(V_PL)))
    e("s_add_u32 %s, %s, 1" % (s(S_TMP + 7), s(S_TMP + 7)))
    e("s_cmp_eq_u64 vcc, 0\ns_cbranch_scc1 SPUN_%s" % tag)
    e("s_cmp_ge_u32 %s, 0x40000\ns_cbranch_scc1 SPUN_%s" % (s(S_TMP + 7), tag))
    e("s_sleep %d" % opt("slp", 2))
    e(poll_load(allq, qoff))
    e("s_waitcnt vmcnt(0)\ns_branch SPIN_%s" % tag)
    e("SPUN_%s:" % tag)

def zero_acc(e, heavy=True):
    for r in range(V_ACCQ, 256): e("v_mov_b32 %s, 0" % v(r))
    for r in range(A_ACCU, A_ACCU + 64): e("v_accvgpr_write_b32 %s, 0" % a(r))

NI = opt("ni", 1)

def gen_ln_loads(e):
    T = V_T; L = V_LANE
    R = V_ACCQ
    e("v_bfe_u32 %s, %s, 1, 3\nv_lshrrev_b32 %s, 4, %s\nv_and_b32 %s, 1, %s" % (v(T), v(L), v(T + 1), v(L), v(T + 2), v(L)))
    e("v_mul_u32_u24 %s, 1280, %s\nv_lshl_add_u32 %s, %s, 4, %s\nv_lshl_add_u32 %s, %s, 3, %s" % (v(T + 3), v(T), v(T + 3), v(T + 1), v(T + 3), v(T + 3), v(T + 2), v(T + 3)))
    e("s_lshl_b32 %s, %s, 5\ns_add_u32 %s, %s, %s\ns_mul_i32 %s, %s, %d\ns_mul_i32 %s, %s, 320" % (s(S_TMP), s(S_QT), s(S_TMP), s(S_TMP), s(S_HEAD), s(S_TMP), s(S_TMP), 8 * 1280, s(S_TMP + 1), s(S_WAVE)))
    e("s_waitcnt lgkmcnt(0)")
    if opt("wsb", 0): e("s_add_u32 %s, %s, %d\ns_addc_u32 %s, %s, 0" % (s(ptr(11)), s(ptr(11)), opt("wsb", 0) << 20, s(ptr(11) + 1), s(ptr(11) + 1)))
    srd(e, S_T, ptr(0), s(S_TMP), 8 * 1280)
    for i in range(5): e("buffer_load_dwordx2 %s, %s, %s, %s offen offset:%d" % (v(R + 2 * i, 2), v(T + 3), s(S_T, 4), s(S_TMP + 1), 64 * i))

def gen_ln_compute(e, nyounger, mid=()):
    T = V_T; L = V_LANE
    R = V_ACCQ; U = R + 10
    e("v_and_b32 %s, 15, %s\nv_lshlrev_b32 %s, 3, %s\nv_lshl_add_u32 %s, %s, 8, %s" % (v(T + 3), v(L), v(T + 3), v(T + 3), v(T + 3), v(T + 1), v(T + 3)))
    e("s_lshr_b32 %s, %s, 3\ns_lshl2_add_u32 %s, %s, %s\ns_mul_i32 %s, %s, %d" % (s(S_TMP), s(S_HEAD), s(S_TMP), s(S_QT), s(S_TMP), s(S_TMP), s(S_TMP), 20 * 4096))
    e("s_bfe_u32 %s, %s, 0x20001\ns_lshl_b32 %s, %s, 10\ns_add_u32 %s, %s, %s" % (s(S_TMP + 1), s(S_HEAD), s(S_TMP + 1), s(S_TMP + 1), s(S_TMP), s(S_TMP), s(S_TMP + 1)))
    e("s_and_b32 %s, %s, 1\ns_lshl_b32 %s, %s, 7\ns_add_u32 %s, %s, %s\ns_add_u32 %s, %s, %d" % (s(S_TMP + 1), s(S_HEAD), s(S_TMP + 1), s(S_TMP + 1), s(S_TMP), s(S_TMP), s(S_TMP + 1), s(S_TMP), s(S_TMP), XF_OFF))
    srd(e, S_LN, ptr(11), s(S_TMP), 20 * 4096)
    e("s_mul_i32 %s, %s, %d" % (s(S_TMP), s(S_WAVE), 5 * 4096))
    e("v_lshlrev_b32 %s, 5, %s\nv_add_u32 %s, %d, %s\ns_lshl_b32 %s, %s, 3\nv_add_u32 %s, %s, %s" % (v(T + 4), v(T), v(T + 4), L_MISC, v(T + 4), s(S_TMP + 1), s(S_WAVE), v(T + 5), s(S_TMP + 1), v(T + 4)))
    A0 = T + 6; M = T + 8
    e("s_waitcnt vmcnt(%d)" % nyounger)
    stamp(e, 17)
    e.ext(list(mid))
    for d in range(10): e("v_lshlrev_b32 %s, 16, %s\nv_and_b32 %s, 0xffff0000, %s" % (v(U + 2 * d), v(R + d), v(U + 2 * d + 1), v(R + d)))
    e("v_pk_add_f32 %s, %s, %s\nv_pk_add_f32 %s, %s, %s" % (v(A0, 2), v(U, 2), v(U + 2, 2), v(M, 2), v(U + 4, 2), v(U + 6, 2)))
    for d in range(4, 10): e("v_pk_add_f32 %s, %s, %s" % (v((A0, M)[d & 1], 2), v((A0, M)[d & 1], 2), v(U + 2 * d, 2)))
    def reduce(dst):
        e("v_pk_add_f32 %s, %s, %s" % (v(A0, 2), v(A0, 2), v(M, 2) if dst == M else v(T + 10, 2)))
        e("v_add_f32 %s, %s, %s\ns_nop 1" % (v(A0), v(A0), v(A0 + 1)))
        e("v_add_f32_dpp %s, %s, %s quad_perm:[1,0,3,2] row_mask:0xf bank_mask:0xf" % (v(A0), v(A0), v(A0)))
        for sw in ("v_permlane32_swap_b32", "v_permlane16_swap_b32"):
            e("v_mov_b32 %s, %s\ns_nop 1\n%s %s, %s\nv_add_f32 %s, %s, %s" % (v(A0 + 1), v(A0), sw, v(A0), v(A0 + 1), v(A0), v(A0), v(A0 + 1)))
    reduce(M)
    e("v_mul_f32 %s, %s, %s\nv_mul_f32 %s, %s, %s" % (v(M), f2u(-1.0 / 160), v(A0), v(M + 1), f2u(-1.0 / 160), v(A0)))
    for d in range(10): e("v_pk_add_f32 %s, %s, %s" % (v(U + 2 * d, 2), v(U + 2 * d, 2), v(M, 2)))
    e("v_pk_mul_f32 %s, %s, %s\nv_pk_mul_f32 %s, %s, %s" % (v(A0, 2), v(U, 2), v(U, 2), v(T + 10, 2), v(U + 2, 2), v(U + 2, 2)))
    for d in range(2, 10): e("v_pk_fma_f32 %s, %s, %s, %s" % (v((A0, T + 10)[d & 1], 2), v(U + 2 * d, 2), v(U + 2 * d, 2), v((A0, T + 10)[d & 1], 2)))
    reduce(None)
    e("v_mov_b32 %s, %s" % (v(M + 1), v(A0)))
    e("ds_write_b64 %s, %s\ns_waitcnt lgkmcnt(0)\ns_barrier" % (v(T + 5), v(M, 2)))
    X = T + 12
    e("ds_read_b128 %s, %s\nds_read_b128 %s, %s offset:16\ns_waitcnt lgkmcnt(0)" % (v(X, 4), v(T + 4), v(X + 4, 4), v(T + 4)))
    e("v_pk_add_f32 %s, %s, %s\nv_pk_add_f32 %s, %s, %s\nv_pk_add_f32 %s, %s, %s" % (v(A0, 2), v(X, 2), v(X + 2, 2), v(T + 10, 2), v(X + 4, 2), v(X + 6, 2), v(A0, 2), v(A0, 2), v(T + 10, 2)))
    e("v_mul_f32 %s, 0.25, %s" % (v(A0), v(A0)) if False else "v_mul_f32 %s, %s, %s" % (v(A0), f2u(0.25), v(A0)))
    for k in range(4): e("v_sub_f32 %s, %s, %s" % (v(X + 2 * k), v(X + 2 * k), v(A0)))
    e("v_mul_f32 %s, %s, %s" % (v(X + 1), v(X), v(X)))
    for k in range(1, 4): e("v_fmac_f32 %s, %s, %s" % (v(X + 1), v(X + 2 * k), v(X + 2 * k)))
    e("v_fmac_f32 %s, %s, %s" % (v(A0 + 1), f2u(160.0), v(X + 1)))
    e("v_mov_b32 %s, %s\nv_fmac_f32 %s, %s, %s\nv_rsq_f32 %s, %s" % (v(X), f2u(1e-5 * DSC), v(X), f2u(DSC / 640), v(A0 + 1), v(X), v(X)))
    e("v_sub_f32 %s, %s, %s" % (v(M), v(A0), v(M)))
    e("v_mov_b32 %s, %s\nv_mul_f32 %s, %s, %s\nv_mul_f32 %s, %s, %s" % (v(X + 1), v(X), v(M + 1), v(M), v(X), v(M), v(M), v(X)))
    for i in range(5):
        for d in (2 * i, 2 * i + 1): e("v_pk_fma_f32 %s, %s, %s, %s" % (v(U + 2 * d, 2), v(U + 2 * d, 2), v(X, 2), v(M, 2)))
        for d in (2 * i, 2 * i + 1): e("v_cvt_pk_bf16_f32 %s, %s, %s" % (v(R + d), v(U + 2 * d), v(U + 2 * d + 1)))
        e("buffer_store_dwordx2 %s, %s, %s, %s offen%s" % (v(R + 2 * i, 2), v(T + 3), s(S_LN, 4), s(S_TMP), STFL))
        if i < 4: e("s_add_u32 %s, %s, 4096" % (s(S_TMP), s(S_TMP)))

def w_slab(e, sl, heavy):
    e("s_add_u32 m0, %s, %d\ns_nop 0" % (s(S_M0W), (sl % RW) * 16384))
    e.ext(w_dma(heavy, "w%d" % sl))
    e("s_add_u32 %s, %s, %d\ns_add_u32 %s, %s, %d" % (s(S_WQOFF), s(S_WQOFF), 32 * 8192, s(S_WGOFF), s(S_WGOFF), 32 * 3456))

def gen_proj(e0, heavy, tag):
    e = E()
    T = V_T; L = V_LANE
    NS = opt("ns", 4) if heavy else 0
    GU = [b for fb in range(4) for b in (12 + fb, 8 + fb)]
    PC0 = opt("pc0", 16) if heavy else 20
    def grp(lo, hi):
        out = []; sl = lo
        while sl < hi:
            if sl >= PC0 and sl + 1 < hi: out.append((sl, sl + 1)); sl += 2
            else: out.append((sl,)); sl += 1
        return out
    units = []
    for ss in grp(0, 20 - NS): units.append((ss, list(range(8)) + (GU if heavy else [])))
    for part in ((GU[:4], GU[4:]) if opt("split", 1) else (GU,)):
        for ss in grp(20 - NS, 20): units.append((ss, part))
    for ss in grp(20 - NS, 20): units.append((ss, list(range(8))))
    order = []; mf = []; firstuse = []
    for ss, bl in units:
        for b in bl:
            F0 = len(order)
            for sl in ss: order.append((sl, b)); firstuse.append(4 * F0)
            for qb in range(4):
                idx = list(range(len(ss)))
                if qb & 1: idx.reverse()
                for i in idx:
                    sl = ss[i]
                    c = "0" if (0 in ss and i == idx[0]) else accreg(b, qb)
                    mf.append("%s %s, %s, %s, %s" % (MF, accreg(b, qb), a(A_W + 4 * ((F0 + i) % 8), 4), a(A_X + ((sl % XD) * 4 + qb) * 4, 4), c))
    NF = len(order)
    NP = len(mf)
    for sl in range(4):
        for kb in range(2):
            for qb in range(4):
                d = v(Sreg(0, qb, kb), 4)
                mf.append("%s %s, %s, %s, %s" % (MF, d, a(A_KF + (kb * 4 + sl) * 4, 4), v(V_Q + (sl * 4 + qb) * 4, 4), d if sl else "0"))
    G = Gaps(mf)
    ustart = []; n = 0
    for ss, bl in units: ustart.append(n); n += len(bl) * len(ss)
    lastF = {}; lastblk = {}; firstF = {}
    for u, (ss, bl) in enumerate(units):
        for k, sl in enumerate(ss):
            lastF[sl] = ustart[u] + len(bl) * len(ss) - 1
            firstF.setdefault(sl, ustart[u] + k * len(bl))
        for i, b in enumerate(bl): lastblk[b] = ustart[u] + (i + 1) * len(ss) - 1
    G1 = lambda sl: 4 * firstF[sl]
    DA = opt("pda", 6)
    rd = lambda F, j: w_read(A_W + 4 * (F % 8), order[F][1], j, (order[F][0] % RW) * 16384)
    pre_reads = [rd(F, j) for F in range(DA) for j in range(2)]
    TRW = opt("trw", 15) if heavy else 14
    bars = {}; cur = 0; seen = set(units[0][0])
    def barrier(u, lo, need):
        bb = G.place("b", "s_barrier", lo)
        G.put(bb, "s", "s_waitcnt WAITVM{%s}" % ",".join(need))
        bars[u] = bb
        return bb + 1
    for F in range(DA, NF):
        lo = 4 * (F - DA)
        if F in ustart:
            u = ustart.index(F)
            need = [k + str(sl) for sl in units[u][0] if sl not in seen for k in "xw"]
            seen |= set(units[u][0])
            if need or units[u][1][0] == 0: cur = barrier(u, max(cur, lo - 1), need or ["none"])
        for j in range(2): cur = G.place("d", rd(F, j), max(cur, lo + 2 * j), firstuse[F] - 6) + 1
    NU = len(units)
    cur = barrier(NU, cur + 1, ["K0", "K1"])
    kord = [(kb, sl) for sl in range(4) for kb in range(2)]
    for kb, sl in kord: cur = G.place("d", k_read(kb, sl, 0), cur) + 1
    barrier(NU + 1, max(cur + 5, NP), ["none"])
    kpost = []
    for i, (kb, sl) in enumerate(kord):
        lo = NP + 4 * i + 3
        try: cur = G.place("d", k_read(kb, sl, 8192), max(cur, lo)) + 1
        except RuntimeError: kpost.append(k_read(kb, sl, 8192))
    freeg = lambda sl: min(x for x in bars.values() if x >= 4 * lastF[sl])
    def wseq(sl):
        return [("s", "s_add_u32 m0, %s, %d" % (s(S_M0W), (sl % RW) * 16384))] + [("m", x) for x in w_dma(heavy, "w%d" % sl)] + \
               [("s", "s_add_u32 %s, %s, %d\ns_add_u32 %s, %s, %d" % (s(S_WQOFF), s(S_WQOFF), 32 * 8192, s(S_WGOFF), s(S_WGOFF), 32 * 3456))]
    def xseq(sl): return [("m", x_load(sl, qb)) for qb in range(4)] + [("s", "s_add_u32 %s, %s, 4096" % (s(S_XOFF), s(S_XOFF)))]
    def kvseq(which, i):
        return [("s", "s_add_u32 m0, %s, %d\ns_mov_b32 %s, %d" % (s(S_M0K), (L_K if which == "K" else L_V) + i * 8192, s(S_KVOFF), (i + (3 if which == "V" else 0)) * 8192))] + \
               [("m", kv_dma(which, k, "%s%d" % (which, i))) for k in range(2)]
    NX0 = opt("nx0", 2)
    e("s_mov_b32 %s, 0" % s(S_XOFF))
    q = []
    for sl in range(20):
        for kind in "wx":
            if kind == "w" and sl < NI: continue
            seq = wseq(sl) if kind == "w" else xseq(sl)
            if sl < NX0:
                for k, x in seq: e(x + ("\ns_nop 0" if " m0," in x else ""))
            else:
                lo = 0 if sl < 7 else (freeg(sl - RW) if kind == "w" else 4 * lastF[sl - XD] + 3)
                q.append((lo, seq))
    late = {13: [("V", 4)], 14: [("K", 0), ("K", 1)], 15: [("K", 2), ("K", 3)], 16: [("K", 4), ("K", 5)], 17: [("K", 6), ("K", 7)],
            18: [("V", 0), ("V", 1)], 19: [("V", 2), ("V", 3)]}
    side = []
    for sl in range(13, 20):
        for which, i in late[sl]: side.append((freeg(sl), kvseq(which, i)))
    WT = opt("wt", 6)
    if WT:
        for k, sl in enumerate([int(x) for x in opt("wts", "0.4.8").split(".")], 1):
            seq = [("s", "s_mov_b32 %s, %d" % (s(S_TMP), k * WT * 32 * 8192)), ("m", "buffer_load_dword %s, %s, %s, %s offen" % (v(V_DUMP), v(V_TC + 1), s(S_WQ, 4), s(S_TMP)))]
            if heavy:
                seq += [("s", "s_mov_b32 %s, %d" % (s(S_TMP), k * WT * 32 * 3456)),
                        ("m", "buffer_load_dword %s, %s, %s, %s offen offset:2048" % (v(V_DUMP), v(V_TC), s(S_WG, 4), s(S_TMP))),
                        ("m", "buffer_load_dword %s, %s, %s, %s offen offset:3072" % (v(V_DUMP), v(V_TC), s(S_WU, 4), s(S_TMP)))]
            side.append((G1(sl) + opt("wtg", 30), seq))
    t0 = v(V_TRA + 3)
    if opt("kvt", 14): side.append((G1(opt("kvt", 14)), [("v", "v_min_u32 %s, 15, %s" % (t0, v(L))), ("v", "v_lshlrev_b32 %s, 7, %s" % (t0, t0)),
               ("s", "s_lshl2_add_u32 %s, %s, %s\ns_lshl_b32 %s, %s, 11" % (s(S_TMP), s(S_QT), s(S_WAVE), s(S_TMP), s(S_TMP))),
               ("m", "buffer_load_dword %s, %s, %s, %s offen" % (v(V_DUMP), t0, s(S_K, 4), s(S_TMP))),
               ("s", "s_add_u32 %s, %s, %d" % (s(S_TMP), s(S_TMP), 3 * 8192)),
               ("m", "buffer_load_dword %s, %s, %s, %s offen" % (v(V_DUMP), t0, s(S_V, 4), s(S_TMP)))]))
    side.sort(key=lambda t: t[0])
    MG = opt("pmg", 4 if heavy else 2)
    g = 0; lastm = -9; vpost = []
    trlast = 0; lastload = 0
    while q or side:
        if side and (not q or side[0][0] <= max(g, q[0][0])): lo, seq = side.pop(0)
        else: lo, seq = q.pop(0)
        g = max(g, lo)
        for k, x in seq:
            if not vpost:
                try:
                    g = G.place(k, x, max(g + 1, lastm + MG if k == "m" else 0))
                    if k == "m": lastm = g
                    if re.search(r";#[xw]\d|;#trs", x) or "v%d," % V_DUMP in x: lastload = g
                    continue
                except RuntimeError: pass
            vpost.append(x + ("\ns_nop 0" if " m0," in x else ""))
    auto_lgkm(G, eager=opt("peag", 8))
    g = lastload + 2
    for x in gen_tail_setup():
        g = G.place("v" if x.startswith("v_") else "s", x, g + 1)
    setup_end = g
    g = max(g, trlast)
    for x in gen_tail_setup2(): g = G.place("v" if x.startswith("v_") else "s", x, g + 1)
    HZ = 8
    post = []
    def lay(items):
        g = 0; out = []
        for lo, k, x, hi in items:
            if not out:
                try:
                    g = G.place(k, x, max(g + (0 if k == "v" else 1), lo), hi, force=(hi is not None)); continue
                except RuntimeError: pass
            assert hi is None
            out.append(x)
        return out
    its = []
    for sl in range(4):
        for qb in range(4):
            d0 = V_Q + (sl * 4 + qb) * 4
            lo = 4 * lastblk[2 * sl + 1] + (qb if PC0 >= 19 else 2 * qb - 3) + HZ
            hi = NP - 3 if sl < 2 else NP + 8 * sl - 3
            for b in range(2):
                g0 = qacc(2 * sl + b, qb)
                for h in range(2): its.append((min(lo, hi), "v", "v_cvt_pk_bf16_f32 %s, %s, %s" % (v(d0 + 2 * b + h), v(g0 + 2 * h), v(g0 + 2 * h + 1)), hi))
    assert not lay(its)
    its = []
    if heavy:
        U = T
        for fb in range(4):
            for qb in range(4):
                g0 = V_ACCG + (fb * 4 + qb) * 4
                lo = max(4 * lastblk[8 + fb] + (qb if PC0 >= 19 else 2 * qb - 3) + HZ, setup_end + 1)
                for r in range(4): its.append((lo, "v", "v_accvgpr_read_b32 %s, %s" % (v(U + r), a(A_ACCU + (fb * 4 + qb) * 4 + r)), None))
                for r in range(4): its.append((lo, "v", "v_max_f32 %s, 0, %s" % (v(g0 + r), v(g0 + r)), None))
                for r in range(4): its.append((lo, "v", "v_mul_f32 %s, %s, %s" % (v(g0 + r), v(g0 + r), v(U + r)), None))
                d0 = V_ACCG + ((fb & ~1) * 4 + qb) * 4 + 2 * (fb & 1)
                for h in range(2): its.append((lo, "v", "v_cvt_pk_bf16_f32 %s, %s, %s" % (v(d0 + h), v(g0 + 2 * h), v(g0 + 2 * h + 1)), None))
                if fb & 1:
                    if qb == 0: its.append((lo, "s", "s_lshl_b32 %s, %s, 13\ns_add_u32 %s, %s, %d" % (s(S_TMP + 6), s(S_FS), s(S_TMP + 6), s(S_TMP + 6), (128 + (fb >> 1)) * 4096), None))
                    its.append((lo, "m", "buffer_store_dwordx4 %s, %s, %s, %s offen offset:%d%s" % (v(d0 - 2, 4), v(V_L16), s(S_AF, 4), s(S_TMP + 6), 1024 * qb, STFL), None))
    post += lay(its)
    its = [(setup_end + 1, "v", "v_mov_b32 %s, 0x3f803f80" % v(V_TRA + 2), None)] + [(setup_end + 2, "v", "v_accvgpr_write_b32 %s, %s" % (a(A_ONE + r), v(V_TRA + 2)), None) for r in range(4)]
    zs = []
    for k in range(XD):
        sl = max(x for x in range(20) if x % XD == k)
        zs.append((4 * lastF[sl] + 4, range(A_X + 16 * k, A_X + 16 * k + 16)))
    for k in range(4):
        F = max(x for x in range(NF) if x % 8 == k)
        zs.append((4 * (F | 1) + 4, range(A_W + 4 * k, A_W + 4 * k + 4)))
    for lo, rr in sorted(zs, key=lambda t: t[0]):
        for r in rr: its.append((lo, "v", "v_accvgpr_write_b32 %s, 0" % a(r), None))
    post += lay(its)
    if VERBOSE: print("proj", tag, G.pattern(), "| post", len(post), len(vpost), len(kpost))
    e.ext(pre_reads)
    e("s_waitcnt WAITVM{x0} lgkmcnt(0)")
    stamp(e, 3)
    nm = 0
    for x in G.lines():
        if x.startswith("v_mfma"):
            if STAMPS and nm % (NP // 5) == 0 and 0 < nm < NP: stamp(e, 18 + nm // (NP // 5))
            if nm == NP: stamp(e, 4)
            nm += 1
        e(x)
    for x in kpost + vpost + post: e(x)
    e("s_mov_b32 %s, %d" % (s(S_KVOFF), 8 * 8192))
    e("s_nop 1")
    for r in range(16): e("v_mov_b32 %s, 0" % v(V_L + r))
    for qb in range(4): e("v_mov_b32 %s, 0xff800000" % v(V_NEGM + 4 * qb))
    e("s_waitcnt WAITVM{K2,K3}")
    e0.ext(resolve_vm(e.L))

def kv_preload(e):
    e("s_mov_b32 %s, 0" % s(S_KVOFF))
    for i in range(8):
        e("s_add_u32 m0, %s, %d\ns_nop 0" % (s(S_M0K), L_K + i * 8192))
        e(kv_dma("K", 0)); e(kv_dma("K", 1))
        if i >= 3:
            e("s_add_u32 m0, %s, %d\ns_nop 0" % (s(S_M0K), L_V + (i - 3) * 8192))
            e(kv_dma("V", 0)); e(kv_dma("V", 1))
        e("s_add_u32 %s, %s, 8192" % (s(S_KVOFF), s(S_KVOFF)))
    e("s_waitcnt vmcnt(0)")

def Sreg(buf, qb, kb): return V_S + buf * 32 + qb * 8 + kb * 4
def Preg(buf, qb): return V_P + buf * 16 + qb * 4

def qk_mfmas(buf, czero=False):
    out = []
    order = {"kqs": [(kb, qb, sl) for kb in range(2) for qb in range(4) for sl in range(4)],
             "ksq": [(kb, qb, sl) for kb in range(2) for sl in range(4) for qb in range(4)],
             "snake": [(kb, qb, sl) for kb in range(2) for qb in range(4) for sl in range(4)]}[opt("qko", "snake")]
    for kb, qb, sl0 in order:
                sl = sl0
                d = v(Sreg(buf, qb, kb), 4)
                if opt("qko", "snake") == "snake":
                    first = sl0 == 0
                    sl = sl0 if qb % 2 == 0 else 3 - sl0
                    c = ("0" if czero else v(V_NEGM + 4 * qb, 4)) if first else d
                    out.append("%s %s, %s, %s, %s" % (MF, d, a(A_KF + (kb * 4 + sl) * 4, 4), v(V_Q + (sl * 4 + qb) * 4, 4), c))
                    continue
                c = d if sl else ("0" if czero else v(V_NEGM + 4 * qb, 4))
                out.append("%s %s, %s, %s, %s" % (MF, d, a(A_KF + (kb * 4 + sl) * 4, 4), v(V_Q + (sl * 4 + qb) * 4, 4), c))
    return out

def pv_mfmas(buf, tailmode=False):
    out = []
    for qb in range(4):
        out.append("%s %s, %s, %s, %s" % (MF, v(V_L + 4 * qb, 4), a(A_ONE, 4), v(Preg(buf, qb), 4), v(V_L + 4 * qb, 4)))
    pvo = opt("pvo", "qd2s")
    order = {"dq": [(db, qb) for db in range(8) for qb in range(4)],
             "snake": [(db, qb if db % 2 == 0 else 3 - qb) for db in range(8) for qb in range(4)],
             "qd2s": [(2 * h + (d if (i & 1) == 0 else 1 - d), i if h % 2 == 0 else 3 - i) for h in range(4) for i in range(4) for d in range(2)],
             "qd2": [(2 * h + d, qb) for h in range(4) for qb in range(4) for d in range(2)],
             "qd4": [(4 * h + d, qb) for h in range(2) for qb in range(4) for d in range(4)]}[pvo if not tailmode else "dq"]
    for db, qb in order:
            o = a(A_O + (db * 4 + qb) * 4, 4)
            out.append("%s %s, %s, %s, %s" % (MF, o, a(A_VF + db * 4, 4), v(Preg(buf, qb), 4), o))
    return out

def k_read(kb, sl, off): return "ds_read_b128 %s, %s offset:%d" % (a(A_KF + (kb * 4 + sl) * 4, 4), v(V_KA + sl), off + kb * 4096)
def v_read(db, j, off): return "ds_read_b64_tr_b16 %s, %s offset:%d" % (a(A_VF + db * 4 + 2 * j, 2), v(V_VA + db), off + j * 4096)

def softmax_ops(buf):
    ex = []; cv = []
    for qb in range(4):
        for kb in range(2):
            for r in range(4):
                x = v(Sreg(buf, qb, kb) + r)
                ex.append("v_exp_f32 %s, %s" % (x, x))
            for h in range(2):
                b = Sreg(buf, qb, kb) + 2 * h
                cv.append("v_cvt_pk_bf16_f32 %s, %s, %s" % (v(Preg(buf, qb) + kb * 2 + h), v(b), v(b + 1)))
    return ex, cv

def gen_attention(e):
    T = V_T
    e("ATT_START:")
    stamp(e, 5)
    e("s_barrier")
    z = ["s_nop 0"] * 4
    for qb in range(4):
        b = Sreg(0, qb, 0)
        e("v_max3_f32 %s, %s, %s, %s" % (v(T + qb), v(b), v(b + 1), v(b + 2)))
        e("v_max3_f32 %s, %s, %s, %s" % (v(T + qb), v(T + qb), v(b + 3), v(b + 4)))
        e("v_max3_f32 %s, %s, %s, %s" % (v(T + qb), v(T + qb), v(b + 5), v(b + 6)))
        e("v_max3_f32 %s, %s, %s, %s" % (v(T + qb), v(T + qb), v(b + 7), v(V_NEGM + 4 * qb)))
    for sw in ("v_permlane32_swap_b32", "v_permlane16_swap_b32"):
        for qb in range(4): e("v_mov_b32 %s, %s" % (v(T + 4 + qb), v(T + qb)))
        e.ext(z[:2]); z = z[2:]
        for qb in range(4): e("%s %s, %s" % (sw, v(T + qb), v(T + 4 + qb)))
        for qb in range(4): e("v_max_f32 %s, %s, %s" % (v(T + qb), v(T + qb), v(T + 4 + qb)))
    for qb in range(4):
        for r in range(4): e("v_sub_f32 %s, 0, %s" % (v(V_NEGM + 4 * qb + r), v(T + qb)))
    for qb in range(4):
        for r in range(8): e("v_sub_f32 %s, %s, %s" % (v(Sreg(0, qb, 0) + r), v(Sreg(0, qb, 0) + r), v(T + qb)))
    e.ext(z)
    e("s_waitcnt lgkmcnt(0)")

    def build(steps, loop, pend):
        mf = []; starts = []
        for sp in steps:
            starts.append(len(mf))
            if sp["qk"]: mf += qk_mfmas(1 - sp["buf"])
            if sp["pv"]: mf += pv_mfmas(1 - sp["buf"], not sp["qk"])
        G = Gaps(mf)
        for sp, st in zip(steps, starts):
            nq = 32 if sp["qk"] else 0
            npv = 36 if sp["pv"] else 0
            end = st + nq + npv - 1
            full = sp["qk"] and sp["pv"]
            cur = st; g = st; c2 = st
            if sp.get("bar") is not None:
                b = G.place("b", "s_barrier", st)
                G.put(b, "s", "s_waitcnt vmcnt(%d) lgkmcnt(0)" % sp["bar"])
                cur = b + 1
            if sp.get("bar63"):
                G.put(st + 5, "s", "s_waitcnt vmcnt(0)\ns_barrier")
            if full:
                for i in range(16):
                    lo = st + 4 * (i // 2) + (i % 2)
                    cur = G.place("d", v_read(i // 2, i % 2, sp["voff"]), max(cur, lo)) + 1
            if sp.get("vnext") is not None:
                c2 = st + nq + 4 + 3
                for i in range(16):
                    lo = min(st + nq + 4 + 4 * (i // 2) + 3, end)
                    c2 = G.place("d", v_read(i // 2, i % 2, sp["vnext"]), min(max(c2, lo), end), end, force=True) + 1
            if sp.get("koff") is not None:
                if full:
                    c2 = st + 32
                    for i in range(8):
                        c2 = G.place("d", k_read(i // 4, i % 4, sp["koff"]), max(c2, st + 32 + 3 * i)) + 1
                else:
                    c2 = st + 16
                    for i in range(4): c2 = G.place("d", k_read(0, i, sp["koff"]), c2) + 1
                    for i in range(4): G.put(end, "d", k_read(1, i, sp["koff"]))
            if sp.get("dma"):
                g = st + (33 if full else 2)
                for wi, which in enumerate(sp["dma"]):
                    g = G.place("s", "s_add_u32 m0, %s, %s" % (s(S_M0K), sp["m0" + which]), g)
                    for i in range(2): g = G.place("m", kv_dma(which, i), g + 2)
                    g += 1
                g = G.place("s", "s_add_u32 %s, %s, 8192" % (s(S_KVOFF), s(S_KVOFF)), g)
            marks = {"dma": g, "kread": c2 if sp.get("koff") is not None else st, "vread": cur}
            for (after, chain) in sp.get("misc", []):
                gg = marks[after] if isinstance(after, str) else st + after
                for (kind, text) in chain:
                    gg = G.place(kind, text, gg + (1 if kind == "s" else 0), end)
                marks["last"] = max(marks.get("last", 0), gg)
            if sp["sm"]:
                ex, cv = softmax_ops(sp["buf"])
                n = end - st + 1
                if full:
                    eg = []; g = st
                    for i, x in enumerate(ex):
                        tgt = st + (i * (n - 3)) // 32
                        g = G.place("e", x, max(g, tgt), end); eg.append(g)
                    g = st
                    for i, x in enumerate(cv): g = G.place("v", x, max(g, eg[2 * i + 1] + 1), end)
                else:
                    for i, x in enumerate(ex): G.put(st + (i * (n - 1)) // 32, "e", x)
                    for i, x in enumerate(cv): G.put(min(st + ((2 * i + 1) * (n - 1)) // 32 + 1, end), "v", x)
        pre, out = auto_lgkm(G, pend, loop=loop)
        return G, pre, out

    G, pre, pend = build([dict(buf=0, qk=True, pv=False, sm=True, koff=16384)], False, [])
    e.ext(G.lines())
    for sl in range(4): e("v_add_u32 %s, 16384, %s" % (v(V_KA + sl), v(V_KA + sl)))
    e("s_mov_b32 %s, 16384\ns_mov_b32 %s, 49152" % (s(S_TOG), s(S_TMP + 2)))
    e("s_mov_b32 %s, %d\ns_mov_b32 %s, %d" % (s(S_TMP + 3), 1 * 8192, s(S_TMP + 4), 6 * 8192 + L_V))
    e("s_waitcnt vmcnt(0) lgkmcnt(0)\ns_barrier")
    for which, m0 in (("K", L_K), ("V", L_V + 5 * 8192)):
        e("s_add_u32 m0, %s, %d\ns_nop 0" % (s(S_M0K), m0))
        e(kv_dma(which, 0)); e(kv_dma(which, 1))
    e("s_add_u32 %s, %s, 8192" % (s(S_KVOFF), s(S_KVOFF)))
    e("s_mov_b32 %s, %d\ns_cmp_eq_u32 %s, 0\ns_cselect_b32 %s, %d, %s" % (s(S_EVT), EVTE, s(S_WAVE), s(S_EVT), EVT1, s(S_EVT)))
    stamp(e, 6)
    e("s_cmp_lg_u32 %s, 0\ns_cbranch_scc1 NOSIG2" % s(S_RETRY))
    e("s_cmp_ge_u32 %s, 27\ns_cbranch_scc1 LT_INIT" % s(S_FS))
    e("s_cmp_lg_u32 %s, 0\ns_cbranch_scc1 NOSIG2" % s(S_WAVE))
    set_flag(e, 2)
    e("NOSIG2:")
    def adv(r, base):
        return [("s", "s_add_u32 %s, %s, 8192" % (s(r), s(r))), ("s", "s_and_b32 %s, %s, 0xffff" % (s(r), s(r)))] + \
               ([("s", "s_or_b32 %s, %s, %d" % (s(r), s(r), base))] if base else [])
    miscA = [("kread", [("v", "v_xor_b32 %s, %s, %s" % (v(V_KA + i), s(S_TMP + 2), v(V_KA + i))) for i in range(4)]),
             ("dma", adv(S_TMP + 3, 0) + adv(S_TMP + 4, L_V))]
    if PWARM:
        miscA.append(("dma", [("s", "s_lshr_b32 %s, %s, 6" % (s(S_TMP + 1), s(S_KVOFF))), ("s", "s_min_u32 %s, %s, %d" % (s(S_TMP + 1), s(S_TMP + 1), 1280 + 23 * 256)),
                              ("v", "v_add_u32 %s, %s, %s" % (v(V_PW + 1), s(S_TMP + 1), v(V_PW))),
                              ("m", "global_load_dword %s, %s, %s%s" % (v(V_DUMP), v(V_PW + 1), s(ptr(11), 2), opt("pwfl", "_sc1").replace("_", " ")))]))
    miscB = [(34, [("v", "v_xor_b32 %s, %s, %s" % (v(V_VA + i), s(S_TOG), v(V_VA + i))) for i in range(8)] +
                  [("s", "s_xor_b32 %s, %s, 32768" % (s(S_TOG), s(S_TOG))), ("s", "s_xor_b32 %s, %s, 32768" % (s(S_TMP + 2), s(S_TMP + 2)))]),
             ("dma", adv(S_TMP + 3, 0) + adv(S_TMP + 4, L_V)),
             ("last", [("s", "s_cmp_lt_u32 %s, %s" % (s(S_KVOFF), s(S_EVT)))])]
    G, pre, pend = build([dict(buf=1, qk=True, pv=True, sm=True, koff=8192, voff=0, dma="KV", m0K=s(S_TMP + 3), m0V=s(S_TMP + 4), misc=miscA),
                          dict(buf=0, qk=True, pv=True, sm=True, koff=0, voff=8192, bar=16 + 2 * PWARM, dma="KV", m0K=s(S_TMP + 3), m0V=s(S_TMP + 4), misc=miscB)], True, [])
    if VERBOSE: print("loop", G.pattern())
    e(".p2align 6\nATT_LOOP:")
    for x in G.lines(): e(x)
    e("s_cbranch_scc1 ATT_LOOP")
    e("s_cmp_lt_u32 %s, %d\ns_cbranch_scc1 ATT_EVT" % (s(S_KVOFF), EVTE))
    e("TAILC0:")
    global LIGHT_LOOP
    LIGHT_LOOP = light_loop(G)
    stamp(e, 7)
    e("s_waitcnt lgkmcnt(0)")
    vr = [v_read(i // 2, i % 2, 0) for i in range(16)]
    e.ext(vr)
    h = E()
    G, pre, pend = build([dict(buf=1, qk=False, pv=True, sm=True, vnext=8192, bar63=True)], False, [asmcheck.I(x, 0, 0).W for x in vr])
    assert pre is None
    pq = [x for sg in range(NPRE_X) for x in t8_w(sg) + t8_a(sg)]
    assert NPRE_X <= 3
    g = 6
    while pq and g < 36:
        k, x = pq.pop(0)
        if k == "s": G.sc[g].append(x); g += 1
        else: G.va[g].append(x); g += opt("x63", 3)
    for x in G.lines(): h(x)
    G = Gaps(pv_mfmas(1, True))
    G.put(opt("b64", 8), "b", "s_barrier")
    G.put(opt("b64", 8), "s", "s_waitcnt lgkmcnt(0)")
    g = 0; post = []
    for k, x in pq:
        if not post:
            try:
                g = G.place(k, x, g) + (opt("x64", 3) if k == "m" else 1); continue
            except RuntimeError: pass
        post.append(x + ("\ns_nop 0" if k == "s" else ""))
    pre, pend = auto_lgkm(G, pend)
    h("s_nop 1")
    if pre is not None: h("s_waitcnt lgkmcnt(%d)" % pre)
    for x in G.lines(): h(x)
    h("v_min_u32 %s, 7, %s\nv_lshlrev_b32 %s, %d, %s" % (v(V_PL + 3), v(V_LANE), v(V_PL + 3), FSH, v(V_PL + 3)))
    for x in post: h(x)
    return h.L

LT_SS, LT_SD = 44, (48, 56)
LT_SO, LT_DO, LT_R = 91, 96, 97
LT_VO, LT_VB, LT_VR, LT_AD = 40, 42, 44, 32
L_TRB = 131072
def light_loop(G):
    import copy
    G = copy.deepcopy(G)
    n = G.n()
    b = [g for g in range(n) if any("s_barrier" in x for x in G.va[g])][0]
    G.sc[b] = [x.replace("vmcnt(%d)" % (16 + 2 * PWARM), "vmcnt(%d)" % (24 + 2 * PWARM)) for x in G.sc[b]]
    lastm = max(g for g in range(b) if any(x.startswith("buffer") for x in G.va[g]))
    def lay(seq, g, hi, step=1):
        for k, x in seq:
            if k == "s":
                while not G.fits(g, "s"): g += 1
                G.put(g, "s", x)
            else:
                win = opt("ltw", 4) if k != "m" else opt("ltm", 4)
                g = min(range(g, min(g + win, hi) + 1), key=lambda y: (G.used[y] + (3 if (k == "d" and G.ds[y] and opt("ltd", 0)) else 0), y))
                (G.ds if k == "d" else G.va)[g].append(x); G.used[g] += 1 if k != "m" else 2
            g += step
            assert g <= hi + 1, (x, g, hi)
        return g
    lay([("s", "s_add_u32 m0, %s, %s" % (s(LT_R), s(S_TMP)))] +
        [("m", "buffer_load_dwordx4 %s, %s, %s offen offset:%d lds" % (v(LT_VO + i), s(LT_SS, 4), s(LT_SO), 1024 * i)) for i in range(2)] +
        [("s", "s_add_u32 %s, %s, %d\ns_add_u32 %s, %s, 2048" % (s(LT_SO), s(LT_SO), 8 * 40960, s(LT_R), s(LT_R))),
         ("s", "s_cmp_eq_u32 %s, 6144\ns_cselect_b32 %s, 0, %s" % (s(LT_R), s(LT_R), s(LT_R)))] +
        [("v", "v_add_u32 %s, %s, %s" % (v(LT_VR + f), s(LT_R), v(LT_VB + f))) for f in range(2)], lastm + 1, b - 1)
    g = lay([("d", "ds_read_b64_tr_b16 %s, %s offset:%d" % (a(LT_AD + 4 * f + 2 * j, 2), v(LT_VR + f), 1024 * j)) for f in range(2) for j in range(2)], b + 1, b + 24, 2)
    cmpg = [g for g in range(n) if any(x.startswith("s_cmp_lt_u32 %s" % s(S_KVOFF)) for x in G.sc[g])][0]
    g = lay([("m", "buffer_store_dwordx4 %s, %s, %s, %s offen%s" % (a(LT_AD, 4), v(V_L16), s(LT_SD[0], 4), s(LT_DO), opt("ltfl", STFL).replace("_", " ")))], b + 38, cmpg - 1)
    g = lay([("m", "buffer_store_dwordx4 %s, %s, %s, %s offen%s" % (a(LT_AD + 4, 4), v(V_L16), s(LT_SD[1], 4), s(LT_DO), opt("ltfl", STFL).replace("_", " ")))], g + 8, cmpg - 1)
    G.sc[cmpg].insert(0, "s_add_u32 %s, %s, %d" % (s(LT_DO), s(LT_DO), 8 * 5120))
    if VERBOSE: print("lightloop", G.pattern())
    return G.lines()

def gen_events(e):
    L = V_LANE; t = S_TMP
    e("LT_INIT:")
    e("s_sub_u32 %s, %s, 27\ns_lshl_b32 %s, %s, 3\ns_add_u32 %s, %s, %s\ns_lshl2_add_u32 %s, %s, %s" % (s(t), s(S_FS), s(t), s(t), s(t), s(t), s(S_QT), s(t), s(t), s(S_WAVE)))
    e("s_mul_i32 %s, %s, 3277\ns_lshr_b32 %s, %s, 16\ns_mul_i32 %s, %s, 20\ns_sub_u32 %s, %s, %s" % (s(t + 1), s(t), s(t + 1), s(t + 1), s(t + 6), s(t + 1), s(t), s(t), s(t + 6)))
    e("s_mul_i32 %s, %s, 40960\ns_lshl_b32 %s, %s, 6\ns_add_u32 %s, %s, %s" % (s(LT_SO), s(t + 1), s(t + 6), s(t), s(LT_SO), s(LT_SO), s(t + 6)))
    e("s_sub_u32 %s, %s, 16\ns_mul_i32 %s, %s, 5120" % (s(LT_DO), s(t + 1), s(LT_DO), s(LT_DO)))
    srd(e, LT_SS, ptr(4), 0, 4096 * 1280)
    for f in range(2):
        e("s_lshl1_add_u32 %s, %s, %d\ns_mul_i32 %s, %s, 13108\ns_lshr_b32 %s, %s, 16\ns_mul_i32 %s, %s, 5\ns_sub_u32 %s, %s, %s\ns_lshl_b32 %s, %s, 10" % (
            s(t + 1), s(t), f, s(t + 6), s(t + 1), s(t + 6), s(t + 6), s(t + 7), s(t + 6), s(t + 1), s(t + 1), s(t + 7), s(t + 1), s(t + 1)))
        e("s_mul_i32 %s, %s, %d\ns_add_u32 %s, %s, %s\ns_add_u32 %s, %s, %d" % (s(t + 6), s(t + 6), NSLAB * 5120, s(t + 6), s(t + 6), s(t + 1), s(t + 6), s(t + 6), WF_OFF))
        srd(e, LT_SD[f], ptr(11), s(t + 6), (NSLAB - 1) * 5120 + 1024)
    e("s_mul_i32 %s, %s, 6144\ns_add_u32 %s, %s, %d\ns_mov_b32 %s, 0\ns_mov_b32 %s, %d" % (s(t), s(S_WAVE), s(t), s(t), L_TRB, s(LT_R), s(S_EVT), EVTS))
    e("v_lshrrev_b32 %s, 2, %s\nv_bfe_u32 %s, %s, 4, 1\nv_and_b32 %s, 3, %s" % (v(46), v(L), v(47), v(L), v(48), v(L)))
    e("v_lshlrev_b32 %s, 1, %s\nv_xor_b32 %s, %s, %s\nv_mul_u32_u24 %s, 1280, %s\nv_lshl_add_u32 %s, %s, 4, %s\nv_add_u32 %s, %d, %s" % (
        v(49), v(47), v(49), v(49), v(48), v(LT_VO), v(46), v(LT_VO), v(49), v(LT_VO), v(LT_VO + 1), 16 * 1280 - 1024, v(LT_VO)))
    e("v_lshlrev_b32 %s, 6, %s\nv_lshl_add_u32 %s, %s, 3, %s\nv_lshl_add_u32 %s, %s, 5, %s\nv_add_u32 %s, %s, %s\nv_xor_b32 %s, 32, %s" % (
        v(LT_VB), v(46), v(LT_VB), v(48), v(LT_VB), v(LT_VB), v(47), v(LT_VB), v(LT_VB), s(t), v(LT_VB), v(LT_VB + 1), v(LT_VB)))
    e(".p2align 6\nLT_LOOP:")
    for x in LIGHT_LOOP: e(x)
    e("s_cbranch_scc1 LT_LOOP")
    e("s_cmp_lg_u32 %s, %d\ns_cbranch_scc1 LT_END" % (s(S_KVOFF), EVTS))
    srd(e, LT_SS, ptr(8), 0, 1728 * 1280)
    e("s_sub_u32 %s, %s, %d\ns_mov_b32 %s, %d\ns_branch LT_LOOP" % (s(LT_SO), s(LT_SO), 128 * 40960, s(S_EVT), EVTL))
    e("LT_END:")
    e("s_waitcnt vmcnt(0)\ns_barrier")
    e("s_mov_b32 %s, %d\ns_cmp_lg_u32 %s, 0\ns_cbranch_scc1 ATT_LOOP" % (s(S_EVT), EVTE, s(S_WAVE)))
    set_flag(e, 2)
    e("s_mov_b32 %s, %d\ns_branch ATT_LOOP" % (s(S_EVT), EVT1))
    e("ATT_EVT:")
    e("s_cmp_lg_u32 %s, %d\ns_cbranch_scc1 ATT_EVT3" % (s(S_KVOFF), EVT1))
    if opt("ctt", 1):
        e("s_getpc_b64 %s\nCODE2:\ns_sub_u32 %s, %s, CODE2-TAILC0\ns_subb_u32 %s, %s, 0" % (s(t + 6, 2), s(t + 6), s(t + 6), s(t + 7), s(t + 7)))
        e("s_lshr_b32 %s, s2, 3\ns_lshl_b32 %s, %s, 10" % (s(t + 1), s(t + 1), s(t + 1)))
        e("v_min_u32 %s, 7, %s\nv_lshlrev_b32 %s, 7, %s\nv_add_u32 %s, %s, %s\nv_min_u32 %s, K_END-TAILC0, %s" % (v(V_PL), v(L), v(V_PL), v(V_PL), v(V_PL), s(t + 1), v(V_PL), v(V_PL), v(V_PL)))
        e("global_load_dword %s, %s, %s" % (v(V_DUMP), v(V_PL), s(t + 6, 2)))
    e(poll_load(True))
    e("s_mov_b32 %s, %d\ns_branch ATT_LOOP" % (s(S_EVT), EVT1 + 4 * 8192))
    e("ATT_EVT3:")
    e("s_waitcnt vmcnt(16)")
    poll_spin(e, True, None, 2, "EARLY")
    e("s_mov_b32 %s, %d\ns_branch ATT_LOOP" % (s(S_EVT), EVTE))
assert all((g * 3277) >> 16 == g // 20 for g in range(160)) and all((c * 13108) >> 16 == c // 5 for c in range(40))

K_SX, K_SO = S_WU, S_X
T_SA, T_SW, T_XS = S_T, S_WF, S_WQ
T_XO = S_WG
T_TAG = S_WG + 3
T_M0W, T_OA, T_OW = 88, 89, 90
T_BA, T_BW = (S_XOFF, S_WQOFF), (S_WGOFF, S_M0W)
K_FLG = 95
KV_XO = 63; KV_X = 8
TV_WR, TV_L4K, TV_TAG, TV_OW, TV_OR = 60, 61, 62, 3, 4
XPB = 12288
REUSE = opt("reuse", 1)
COAL = opt("coal", 1)
NSD, NSG = 7, 23
RW8, RA8, RF8 = 6, 5, 10
L_OWN = [122880, 0]

def join_scalar(lines):
    out = []
    for x in lines:
        if x.startswith(("s_addc", "s_cselect")): out[-1] += "\n" + x
        else: out.append(x)
    return out

def gen_tail_setup():
    e = E()
    L = V_LANE; t = S_TMP
    R, Cc, KQ = t + 3, t + 4, t + 5
    e("s_bfe_u32 %s, s2, 0x10002\ns_lshl_b32 %s, %s, 3\ns_lshr_b32 %s, s2, 5\ns_add_u32 %s, %s, %s" % (s(R), s(R), s(R), s(t), s(R), s(R), s(t)))
    e("s_bfe_u32 %s, s2, 0x20003\ns_and_b32 %s, s2, 3" % (s(Cc), s(KQ)))
    e("s_lshr_b32 %s, %s, 1\ns_lshl1_add_u32 %s, %s, %s\ns_lshl2_add_u32 %s, %s, %s\ns_mul_i32 %s, %s, %d" % (s(t), s(KQ), s(t), s(R), s(t), s(t), s(t), s(S_WAVE), s(t), s(t), 16 * 1280))
    e("s_and_b32 %s, %s, 1\ns_lshl1_add_u32 %s, %s, %s\ns_mul_i32 %s, %s, 160\ns_add_u32 %s, %s, %s" % (s(t + 1), s(KQ), s(t + 1), s(Cc), s(t + 1), s(t + 1), s(t + 1), s(t), s(t), s(t + 1)))
    srd(e, K_SX, ptr(0), s(t), 15 * 1280 + 160)
    srd(e, K_SO, ptr(9), s(t), 15 * 1280 + 160)
    e("v_and_b32 %s, 15, %s\nv_mul_u32_u24 %s, 1280, %s\nv_lshrrev_b32 %s, 4, %s\nv_lshl_add_u32 %s, %s, 3, %s" % (v(KV_XO), v(L), v(KV_XO), v(KV_XO), v(V_T), v(L), v(KV_XO), v(V_T), v(KV_XO)))
    e("s_lshr_b32 %s, %s, 1\ns_lshl2_add_u32 %s, %s, %s\ns_lshl_b32 %s, %s, %d" % (s(K_FLG), s(R), s(K_FLG), s(K_FLG), s(KQ), s(K_FLG), s(K_FLG), FSH + 3))
    e("s_mul_i32 %s, %s, 7\ns_add_u32 %s, %s, 64\ns_lshl_b32 %s, %s, 13\ns_mul_i32 %s, %s, 10240" % (s(t), s(KQ), s(t), s(t), s(T_BA[0]), s(t), s(T_BW[0]), s(t)))
    e("s_lshl_b32 %s, %s, 17\ns_mul_i32 %s, %s, %d" % (s(T_BA[1]), s(KQ), s(T_BW[1]), s(KQ), 16 * 10240))
    e("s_lshl2_add_u32 %s, %s, %s\ns_mul_i32 %s, %s, %d\ns_add_u32 %s, %s, %d" % (s(t), s(R), s(Cc), s(t), s(t), 24 * XPB, s(t), s(t), XP_OFF))
    srd(e, T_XS, ptr(11), s(t), 24 * XPB)
    for ch in range(2):
        d = T_XO + ch
        e("s_and_b32 %s, %s, 2\ns_add_u32 %s, %s, %d\ns_xor_b32 %s, %s, %s\ns_mul_i32 %s, %s, 3\ns_add_u32 %s, %s, %s\ns_sub_u32 %s, %s, 1" % (
            s(t), s(S_WAVE), s(t), s(t), ch, s(t + 1), s(t), s(KQ), s(t), s(t), s(t), s(t), s(t + 1), s(t), s(t)))
        e("s_mul_i32 %s, %s, %d\ns_and_b32 %s, %s, 1\ns_mul_i32 %s, %s, 6144\ns_add_u32 %s, %s, %s" % (s(t), s(t), XPB, s(d), s(S_WAVE), s(d), s(d), s(d), s(d), s(t)))
        e("s_cmp_eq_u32 %s, 0\ns_cselect_b32 %s, 0x1000000, %s" % (s(t + 1), s(d), s(d)))
    if PWARM:
        e("s_lshl2_add_u32 %s, %s, %s\ns_mul_i32 %s, %s, %d\ns_lshl_b32 %s, %s, 14\ns_add_u32 %s, %s, %s" % (s(t), s(S_QT), s(S_WAVE), s(t), s(t), NSLAB * 4096, s(t + 1), s(S_HEAD), s(t), s(t), s(t + 1)))
        e("v_mov_b32 %s, %s" % (v(V_PW), s(t)))
        for i, o in ((1, 6144), (2, 10240)):
            e("s_add_u32 %s, %s, %d\nv_writelane_b32 %s, %s, %d\nv_writelane_b32 %s, %s, %d" % (s(t + 1), s(t), o, v(V_PW), s(t + 1), 2 * i, v(V_PW), s(t + 1), 2 * i + 1))
        e("s_lshl2_add_u32 %s, %s, %s\ns_mul_i32 %s, %s, %d\ns_add_u32 %s, %s, %d" % (s(t + 2), s(R), s(Cc), s(t + 2), s(t + 2), 24 * XPB, s(t + 2), s(t + 2), XP_OFF))
        for m in range(2):
            for ch in range(2):
                i = 3 + 2 * m + ch
                e("s_add_u32 %s, %s, %s\ns_add_u32 %s, %s, %d" % (s(t + 1), s(t + 2), s(T_XO + ch), s(t + 1), s(t + 1), m * 12 * XPB))
                e("s_cmp_eq_u32 %s, 0x1000000\ns_cselect_b32 %s, %s, %s" % (s(T_XO + ch), s(t + 1), s(t), s(t + 1)))
                e("v_writelane_b32 %s, %s, %d\nv_writelane_b32 %s, %s, %d" % (v(V_PW), s(t + 1), 2 * i, v(V_PW), s(t + 1), 2 * i + 1))
        e("v_min_u32 %s, 14, %s" % (v(V_T), v(L)))
        L = V_T
        e("v_and_b32 %s, 1, %s\nv_lshl_add_u32 %s, %s, 7, %s\nv_subrev_u32 %s, 1280, %s" % (v(V_T), v(L), v(V_PW), v(V_T), v(V_PW), v(V_PW), v(V_PW)))
        L = V_LANE
    e("s_mul_i32 %s, %s, %d\ns_mul_i32 %s, %s, 3072\ns_add_u32 %s, %s, %s" % (s(T_XO + 2), s(KQ), 3 * XPB, s(t), s(S_WAVE), s(T_XO + 2), s(T_XO + 2), s(t)))
    e("s_add_u32 %s, %s, 0x10000\ns_and_b32 %s, %s, 0x1fff0000\ns_or_b32 %s, %s, 0x40000000\nv_mov_b32 %s, %s" % (s(t), s(S_EPOCH), s(t), s(t), s(T_TAG), s(t), v(TV_TAG), s(T_TAG)))
    e("s_and_b32 %s, %s, 1\ns_mul_i32 %s, %s, 10240\nv_add_u32 %s, %s, %s" % (s(t), s(S_WAVE), s(t), s(t), v(TV_OW), s(t), v(V_L16)))
    e("s_mul_i32 %s, %s, 5120\nv_add_u32 %s, %s, %s" % (s(t), s(S_WAVE), v(TV_OR), s(t), v(V_L16)))
    e("s_lshr_b32 %s, %s, 1\ns_lshl1_add_u32 %s, %s, %s\ns_mul_i32 %s, %s, %d" % (s(t), s(S_WAVE), s(t), s(R), s(t), s(t), s(t), NSLAB * 4096))
    e("s_and_b32 %s, %s, 1\ns_lshl_b32 %s, %s, 11\ns_add_u32 %s, %s, %s" % (s(t + 1), s(S_WAVE), s(t + 1), s(t + 1), s(t), s(t), s(t + 1)))
    srd(e, T_SA, ptr(11), s(t), NSLAB * 4096 - 2048)
    e("s_mul_i32 %s, %s, 5120" % (s(T_M0W), s(S_WAVE)))
    e("s_and_b32 %s, %s, 1\ns_lshl1_add_u32 %s, %s, %s\ns_mul_i32 %s, %s, %d" % (s(t), s(S_WAVE), s(t), s(Cc), s(t), s(t), s(t), NSLAB))
    e("s_lshr_b32 %s, %s, 1\ns_add_u32 %s, %s, %s\ns_mul_i32 %s, %s, 5120\ns_add_u32 %s, %s, %d" % (s(t + 1), s(S_WAVE), s(t), s(t), s(t + 1), s(t), s(t), s(t), s(t), WF_OFF))
    return join_scalar(e.L)

def gen_tail_setup2():
    e = E()
    srd(e, T_SW, ptr(11), s(S_TMP), (NSLAB - 1) * 5120)
    e("v_mov_b32 %s, %s\nv_add_u32 %s, 4096, %s" % (v(TV_WR), v(V_L16), v(TV_L4K), v(V_L16)))
    return join_scalar(e.L)

def t8_w(sg):
    base = (sg % RW8) * 20480; tag = "D%d" % sg
    m, i = (0, sg) if sg < NSD else (1, sg - NSD)
    W = lambda vo, off: ("m", "buffer_load_dwordx4 %s, %s, %s offen offset:%d%s lds ;#%s" % (v(vo), s(T_SW, 4), s(T_OW), off, LDFL, tag))
    return [("s", "s_add_u32 %s, %s, %d\ns_add_u32 m0, %s, %d" % (s(T_OW), s(T_BW[m]), i * 10240, s(T_M0W), base)),
            W(V_L16, 0), W(V_L16, 1024), W(V_L16, 2048), W(V_L16, 3072),
            ("s", "s_add_u32 m0, %s, %d" % (s(T_M0W), base + 4096)), W(TV_L4K, 0)]
def t8_af(sg, half, j): return a((32, 48, 192, 208, 224)[sg % RA8] + half * 8 + j * 4, 4)
def t8_a(sg):
    m, i = (0, sg) if sg < NSD else (1, sg - NSD)
    l = [("s", "s_add_u32 %s, %s, %d" % (s(T_OA), s(T_BA[m]), i * 8192))]
    for half in range(2):
        for j in range(2):
            l.append(("m", "buffer_load_dwordx4 %s, %s, %s, %s offen offset:%d%s ;#A%d" % (t8_af(sg, half, j), v(TV_L4K if half else V_L16), s(T_SA, 4), s(T_OA), j * 1024, LDFL, sg)))
    return l
def t8_wf(F):
    k = F % RF8
    return a(4 * k if k < 8 else 240 + 4 * (k - 8), 4)
def t8_read(F):
    sg, f = F // 20, F % 20
    if opt("t8c", 1): f = (f & 1) * 10 + (f >> 1)
    return "ds_read_b128 %s, %s offset:%d" % (t8_wf(F), v(TV_WR), (sg % 3) * 20480 + f * 1024)
def t8_acc(m, n10, j):
    i = n10 * 2 + j
    if m == 0: return 128 + 4 * i
    return 64 + 4 * i if i < 16 else 208 + 4 * (i - 16)
NPRE_X = opt("nprex", 2)
NPRE_G = opt("npreg", 2)

def cond_lines(lines): return [("@" + x) if x.startswith("buffer") else x for x in lines]

def publish(m):
    out = []; n = 0
    for ch in range(2):
        if m == 1 and REUSE:
            t = S_TMP
            out.append(("s", "s_and_b32 %s, s2, 3\ns_and_b32 %s, %s, 2\ns_sub_u32 %s, %s, %s\ns_sub_u32 %s, %s, %d\ns_mul_i32 %s, %s, %d\ns_add_u32 %s, %s, %s" % (
                s(t), s(t + 1), s(S_WAVE), s(t), s(t), s(t + 1), s(t), s(t), ch, s(t), s(t), 3 * XPB, s(t + 2), s(T_XO + ch), s(t))))
        else:
            out.append(("s", "s_add_u32 %s, %s, %d" % (s(S_TMP + 2), s(T_XO + ch), m * 12 * XPB)))
        for j in range(2):
            vals = [t8_acc(m, 5 * ch + nb, j) + k for nb in range(5) for k in range(4)]
            pb = (40, 240)[n % 2]; n += 1
            for gi in range(3):
                vs = vals[7 * gi:7 * gi + 7]
                if len(vs) < 7: vs = vs + [TV_TAG]
                for h in range(3): out.append(("v", "v_cvt_pk_bf16_f32 %s, %s, %s" % (v(pb + 4 * gi + h), v(vs[2 * h]), v(vs[2 * h + 1]))))
                out.append(("v", "v_cvt_pk_bf16_f32 %s, %s, %s" % (v(pb + 4 * gi + 3), v(vs[6]), v(TV_TAG))))
                off = j * 3072 + gi * 1024
                out.append(("m", "buffer_store_dwordx4 %s, %s, %s, %s offen offset:%d%s ;#xst%d" % (v(pb + 4 * gi, 4), v(TV_L4K if off >= 4096 else V_L16), s(T_XS, 4), s(S_TMP + 2), off % 4096, STFL, m)))
    return out
def own_write(m):
    l = []
    if L_OWN[m]: l.append("v_add_u32 %s, %d, %s" % (v(52), L_OWN[m], v(TV_OW)))
    ar = v(52) if L_OWN[m] else v(TV_OW)
    for ch in range(2):
        l.append("s_cmp_lg_u32 %s, 0x1000000\ns_cbranch_scc1 NOOWN%d%d" % (s(T_XO + ch), m, ch))
        for j in range(2):
            for nb in range(5): l.append("ds_write_b128 %s, %s offset:%d" % (ar, v(t8_acc(m, 5 * ch + nb, j), 4), (j * 5 + nb) * 1024))
        l.append("NOOWN%d%d:" % (m, ch))
    return l
XR = [128, 64]; OWR = [164, 184]
T_SL = 72
def xloads(m):
    l = []
    for i in range(3):
        if m == 1 and REUSE: l.append(("s", "s_mov_b32 %s, %s" % (s(S_TMP + 3), s(T_SL + i))))
        else: l.append(("s", "s_add_u32 %s, %s, %d" % (s(S_TMP + 3), s(T_XO + 2), m * 12 * XPB + i * XPB)))
        for k in range(3): l.append(("m", "buffer_load_dwordx4 %s, %s, %s, %s offen offset:%d%s ;#xr%d" % (v(XR[m] + (i * 3 + k) * 4, 4), v(V_L16), s(T_XS, 4), s(S_TMP + 3), k * 1024, LDFL, m)))
    return l
def xcheck(e, m, first_wait):
    t = S_TMP
    e("s_mov_b32 %s, 0" % s(t + 7))
    e(first_wait)
    e("XCHK%d:" % m)
    for i in range(9): e("v_xor_b32 %s, %s, %s" % (v(20 + i), s(T_TAG), v(XR[m] + 4 * i + 3)))
    for i in range(4): e("v_or3_b32 %s, %s, %s, %s" % (v(20), v(20), v(21 + 2 * i), v(22 + 2 * i)))
    e("v_cmp_lt_u32 vcc, 0xffff, %s" % v(20))
    e("s_add_u32 %s, %s, 1" % (s(t + 7), s(t + 7)))
    e("s_cmp_eq_u64 vcc, 0\ns_cbranch_scc1 XOK%d" % m)
    e("s_cmp_ge_u32 %s, 0x40000\ns_cbranch_scc1 XOK%d" % (s(t + 7), m))
    e("s_sleep %d" % opt("xslp", 4))
    for x in cond_lines([x for _, x in xloads(m)]): e(x)
    e("s_waitcnt vmcnt(0)\ns_branch XCHK%d" % m)
    e("XOK%d:" % m)
def xsum(e, m, nb):
    o = OWR[m] + 4 * nb
    for i in range(3):
        for k in range(4):
            idx = nb * 4 + k; gi, pos = idx // 7, idx % 7
            src = XR[m] + (i * 3 + gi) * 4 + pos // 2
            e(("v_and_b32 %s, 0xffff0000, %s" if pos & 1 else "v_lshlrev_b32 %s, 16, %s") % (v(20 + 4 * i + k), v(src)))
    for h in range(2):
        e("v_pk_add_f32 %s, %s, %s" % (v(o + 2 * h, 2), v(o + 2 * h, 2), v(20 + 2 * h, 2)))
        e("v_pk_add_f32 %s, %s, %s" % (v(24 + 2 * h, 2), v(24 + 2 * h, 2), v(28 + 2 * h, 2)))
    for h in range(2): e("v_pk_add_f32 %s, %s, %s" % (v(o + 2 * h, 2), v(o + 2 * h, 2), v(24 + 2 * h, 2)))

CV_G, CV_L, CV_X, LROW, L_FIN = 8, 11, 224, 336, 20480
def gen_t8(e):
    t = S_TMP
    mf = []
    NF = 20 * NSG
    for F in range(NF):
        sg, f = F // 20, F % 20
        m = 0 if sg < NSD else 1
        if opt("t8c", 1):
            j = f & 1; F0 = F - j
            d = v(t8_acc(m, f >> 1, j), 4)
            for i, half in enumerate((0, 1) if j == 0 else (1, 0)):
                mf.append("%s %s, %s, %s, %s" % (MF, d, t8_wf(F0 + half), t8_af(sg, half, j), "0" if (sg in (0, NSD) and i == 0) else d))
            continue
        for j in range(2):
            d = v(t8_acc(m, f % 10, j), 4)
            mf.append("%s %s, %s, %s, %s" % (MF, d, t8_wf(F), t8_af(sg, f // 10, j), "0" if (sg in (0, NSD) and f < 10) else d))
    G = Gaps(mf)
    DA = opt("t8d", 8)
    SIGS = opt("sigs", 2); CKS = opt("cks", 6); PLS = CKS - opt("polld", 1)
    bars = {}
    cur = 0
    for F in range(DA, NF):
        sg, f = F // 20, F % 20
        lo = 2 * (F - DA)
        if f == 0:
            if sg % 3 == 0:
                d = 61440 if sg % 6 == 3 else -61440
                G.place("v", ("v_add_u32 %s, %d, %s" % (v(TV_WR), d, v(TV_WR))) if d > 0 else ("v_subrev_u32 %s, %d, %s" % (v(TV_WR), -d, v(TV_WR))), cur - 1, cur - 1)
            pre = E(); post = E()
            if sg == CKS:
                stamp(pre, 11)
                pre("s_cmp_lg_u32 %s, 0\ns_cbranch_scc1 SPUN_O\ns_waitcnt SINCE{p3}" % s(S_WAVE))
                poll_spin(pre, False, s(K_FLG), 3, "O")
                stamp(post, 12)
            if sg == SIGS:
                post("s_cmp_lg_u32 %s, 0\ns_cbranch_scc1 NOSIG3" % s(S_WAVE))
                set_flag(post, 3)
                post("s_cmp_lg_u32 s2, 0\ns_cbranch_scc1 NOSIG3")
                post("s_add_u32 %s, %s, 0x10001\ns_mov_b64 exec, 1\nv_mov_b32 %s, %s\ns_mov_b32 %s, %d" % (s(t + 7), s(S_EPOCH), v(V_PL + 1), s(t + 7), s(t + 6), EP_OFF))
                post("buffer_store_dword %s, off, %s, %s sc1\ns_mov_b64 exec, -1" % (v(V_PL + 1), s(S_FL, 4), s(t + 6)))
                post("NOSIG3:")
                stamp(post, 10)
            if sg == PLS:
                post("s_cmp_lg_u32 %s, 0\ns_cbranch_scc1 NOPOLL3" % s(S_WAVE))
                post(poll_load(False, s(K_FLG)))
                post("NOPOLL3:\nMARK p3")
            b = G.place("b", "\n".join(cond_lines(pre.L) + ["s_barrier"] + cond_lines(post.L)), max(cur, lo - 1))
            lateA = NSD <= sg < NSD + opt("latea", 2)
            G.put(b, "s", "s_waitcnt WAITVM{D%d%s%s}" % (sg, "" if lateA else ",A%d" % sg, ",ost" if sg == SIGS else ""))
            if lateA: G.put(40 * sg - 1, "s", "s_waitcnt WAITVM{A%d}" % sg)
            bars[sg] = b; cur = b + 1
        cur = G.place("d", t8_read(F), max(cur, lo)) + 1
    qw = [(t8_w(sg), bars[sg - RW8 + 2] if sg >= RW8 else 0, sg) for sg in range(NPRE_G, NSG)]
    qa = [(t8_a(sg), max(40 * (sg - RA8 + 1) if sg >= RA8 else 0, bars[CKS] if sg >= NSD else 0), sg) for sg in range(NPRE_G, NSG)]
    DP = opt("dpub", 1)
    side = []
    if DP:
        side.append((publish(0), 40 * NSD + 8 + opt("dpd", 8)))
        side.append((xloads(0), 40 * opt("dld", 20)))
    if COAL:
        seq = []
        for i in range(3):
            seq += [("v", "v_add_u32 %s, %d, %s" % (v(CV_G + i), 64 * i, v(V_LANE))), ("v", "v_mul_u32_u24 %s, 6554, %s" % (v(36), v(CV_G + i))), ("v", "v_lshrrev_b32 %s, 16, %s" % (v(36), v(36))),
                    ("v", "v_lshlrev_b32 %s, 5, %s" % (v(CV_L + i), v(CV_G + i))), ("v", "v_mad_u32_u24 %s, %s, %d, %s" % (v(CV_L + i), v(36), LROW - 320, v(CV_L + i))),
                    ("v", "v_mul_u32_u24 %s, 1120, %s" % (v(36), v(36))), ("v", "v_lshl_add_u32 %s, %s, 4, %s" % (v(CV_G + i), v(CV_G + i), v(36))),
                    ("m", "buffer_load_dwordx4 %s, %s, %s, 0 offen ;#xx" % (v(CV_X + 4 * i, 4), v(CV_G + i), s(K_SX, 4)))]
        side.append((seq, 40 * opt("xld", 19)))
    else:
        side.append(([("m", "buffer_load_dwordx2 %s, %s, %s, 0 offen offset:%d ;#xx" % (v(KV_X + 2 * nb, 2), v(KV_XO), s(K_SX, 4), nb * 32)) for nb in range(5)], 40 * opt("xld", 19)))
    side.sort(key=lambda x: x[1])
    MG = opt("mg", 4)
    g = 0; lastm = -9
    while qw or qa:
        c = [x for x in (qw, qa) if x]
        c.sort(key=lambda x: (max(x[0][1], g), x[0][2]))
        seq, lo, _ = c[0].pop(0)
        g = max(g, lo)
        for k, x in seq:
            g = G.place(k, x, max(g + 1, lastm + MG if k == "m" else 0))
            if k == "m": lastm = g
    for seq, lo in side:
        g = lo; lastm = -99
        for k, x in seq:
            g = G.place(k, x, max(g + (0 if k == "v" else 1), lastm + (opt("smg", 24) if "xst" in x else 6) if k == "m" else 0))
            if k == "m": lastm = g
        if "xst0" in seq[-1][1]:
            G.va[g + 1].append("\n".join(own_write(0))); pubend = g + 1
    if DP: assert pubend < 40 * opt("dld", 20) - 40
    auto_lgkm(G, eager=opt("eag", 8))
    if VERBOSE: print("t8", G.pattern())
    for F in range(DA): e(t8_read(F))
    e("s_waitcnt lgkmcnt(0)")
    nm = 0
    for x in G.lines():
        if x.startswith("v_mfma"):
            if nm == 40 * NSD: stamp(e, 13)
            if STAMPS and opt("t8st", 0) and nm > 40 * NSD and (nm - 40 * NSD) % 160 == 0: stamp(e, 25 + (nm - 40 * NSD) // 160)
            nm += 1
        e(x)

def gen_tail(e0, head):
    e = E(); e.ext(head)
    T = V_T; t = S_TMP
    stamp(e, 8)
    Z = 240 + 8; C = 240 + 12
    for qb in range(4): e("v_rcp_f32 %s, %s" % (v(T + 2 * qb), v(V_L + 4 * qb)))
    e("v_max3_f32 %s, %s, %s, %s" % (v(T + 8), v(V_L), v(V_L + 4), v(V_L + 8)))
    e("v_max_f32 %s, %s, %s" % (v(T + 8), v(T + 8), v(V_L + 12)))
    for qb in range(4): e("v_mov_b32 %s, %s" % (v(T + 2 * qb + 1), v(T + 2 * qb)))
    e("v_mul_f32 %s, %s, %s" % (v(T + 8), f2u(2.0 ** 64), v(T + 8)))
    e("v_mul_f32 %s, 0, %s" % (v(T + 8), v(T + 8)))
    for qb in range(4): e("v_fma_f32 %s, %s, 0, %s" % (v(T + 8), v(V_L + 4 * qb), v(T + 8)))
    for r in range(4): e("v_mov_b32 %s, 0" % v(Z + r))
    e("s_lshl_b32 %s, %s, 14" % (s(t + 2), s(S_HEAD)))
    W = T + 12
    wq = [x for sg in range(NPRE_X, NPRE_G) for x in t8_w(sg) + t8_a(sg)]
    def wsome(n):
        while wq and n > 0:
            k, x = wq.pop(0); n -= (k == "m")
            e(x + ("\ns_nop 0" if k == "s" else ""))
    wsome(opt("wpre", 0))
    for i in range(16):
        sl, qb = i // 4, i % 4
        d0 = 208 + 4 * (i % 4)
        for b in range(2):
            for r in range(4): e("v_accvgpr_read_b32 %s, %s" % (v(W + 4 * b + r), a(A_O + ((2 * sl + b) * 4 + qb) * 4 + r)))
        for h in range(4): e("v_pk_mul_f32 %s, %s, %s" % (v(W + 2 * h, 2), v(W + 2 * h, 2), v(T + 2 * qb, 2)))
        for h in range(4): e("v_cvt_pk_bf16_f32 %s, %s, %s" % (v(d0 + h), v(W + 2 * h), v(W + 2 * h + 1)))
        e("buffer_store_dwordx4 %s, %s, %s, %s offen offset:%d%s ;#ost" % (v(d0, 4), v(V_L16), s(S_AF, 4), s(t + 2), 1024 * qb, STFL))
        e("s_add_u32 %s, %s, 4096" % (s(t + 2), s(t + 2)) if qb == 3 else "s_nop 0")
        e("%s %s, %s, %s, %s" % (MF, v(C, 4), v(Z, 4), v(d0, 4), "0" if i == 0 else v(C, 4)))
        wsome(opt("wpg", 1))
    wsome(99)
    e("s_nop 7")
    e("v_cmp_u_f32 vcc, %s, %s" % (v(T + 8), v(C)))
    e("s_cmp_lg_u64 vcc, 0\ns_cselect_b32 %s, 1, 0" % s(t))
    e("v_mov_b32 %s, %s" % (v(W), s(t)))
    e("s_lshl_b32 %s, %s, 2\ns_add_u32 %s, %s, %d" % (s(t + 1), s(S_WAVE), s(t + 1), s(t + 1), L_MISC))
    e("v_mov_b32 %s, %s\nv_mov_b32 %s, %d" % (v(W + 1), s(t + 1), v(W + 2), L_MISC))
    e("ds_write_b32 %s, %s" % (v(W + 1), v(W)))
    e("s_waitcnt WAITVM{D0,A0} lgkmcnt(0)\ns_barrier")
    e("ds_read_b128 %s, %s" % (v(W + 4, 4), v(W + 2)))
    t8 = E(); gen_t8(t8)
    i0 = t8.L.index("s_waitcnt lgkmcnt(0)")
    e.ext(t8.L[:i0 + 1])
    e("v_or3_b32 %s, %s, %s, %s\nv_or_b32 %s, %s, %s\ns_nop 0" % (v(W + 4), v(W + 4), v(W + 5), v(W + 6), v(W + 4), v(W + 4), v(W + 7)))
    e("v_readfirstlane_b32 %s, %s" % (s(t), v(W + 4)))
    e("s_nop 3\ns_andn2_b32 %s, %s, %s" % (s(t), s(t), s(S_RETRY)))
    e("s_cbranch_scc1 ATT_RETRY")
    stamp(e, 9)
    e.ext(t8.L[i0 + 1:])
    stamp(e, 14)
    if REUSE:
        xcheck(e, 0, "s_waitcnt WAITVM{xr0,xx}")
        e("s_barrier")
        e("s_xor_b32 %s, %s, 0x80000000\nv_mov_b32 %s, %s" % (s(T_TAG), s(T_TAG), v(TV_TAG), s(T_TAG)))
    else:
        e("s_nop 6")
    for k, x in publish(1): e(x)
    stamp(e, 23)
    for x in own_write(1): e(x)
    e("v_add_u32 %s, %d, %s" % (v(52), L_OWN[0], v(TV_OR)))
    if REUSE:
        for i in range(3):
            e("s_and_b32 %s, s2, 3\ns_xor_b32 %s, %s, %d\ns_sub_u32 %s, %s, %s\ns_mul_i32 %s, %s, %d\ns_add_u32 %s, %s, %s\ns_add_u32 %s, %s, %d" % (
                s(t), s(t + 1), s(t), i + 1, s(t), s(t + 1), s(t), s(t), s(t), 3 * XPB, s(t), s(t), s(T_XO + 2), s(T_SL + i), s(t), i * XPB))
    e("s_waitcnt lgkmcnt(0)")
    e("s_barrier")
    for nb in range(5): e("ds_read_b128 %s, %s offset:%d" % (v(OWR[0] + 4 * nb, 4), v(52), nb * 1024))
    for nb in range(5): e("ds_read_b128 %s, %s offset:%d" % (v(OWR[1] + 4 * nb, 4), v(TV_OR), L_OWN[1] + nb * 1024))
    if REUSE: e("s_waitcnt lgkmcnt(0)")
    else: xcheck(e, 0, "s_waitcnt WAITVM{xr0,xx} lgkmcnt(0)")
    GG = 100; XU = 204
    e("v_mov_b32 %s, %s" % (v(36), f2u(1.0 / DSC)))
    for nb in range(5):
        d = OWR[0] + 4 * nb; gq = GG + 4 * nb
        xsum(e, 0, nb)
        for k in range(4): e("v_mul_f32 %s, %s, %s" % (v(gq + k), f2u(-math.log2(math.e) * DSC), v(d + k)))
        for k in range(4): e("v_exp_f32 %s, %s" % (v(gq + k), v(gq + k)))
        e("s_nop 0")
        for k in range(4): e("v_fma_f32 %s, %s, %s, %s" % (v(gq + k), v(gq + k), v(36), v(36)))
        for k in range(4): e("v_rcp_f32 %s, %s" % (v(gq + k), v(gq + k)))
        if not COAL:
            for h in range(2):
                e("v_lshlrev_b32 %s, 16, %s" % (v(XU + 4 * nb + 2 * h), v(KV_X + 2 * nb + h)))
                e("v_and_b32 %s, 0xffff0000, %s" % (v(XU + 4 * nb + 2 * h + 1), v(KV_X + 2 * nb + h)))
        else: e("s_nop 0")
        for k in range(4): e("v_mul_f32 %s, %s, %s" % (v(gq + k), v(gq + k), v(d + k)))
    if COAL:
        XU = 128
        for i in range(12):
            e("v_lshlrev_b32 %s, 16, %s\nv_and_b32 %s, 0xffff0000, %s" % (v(XU + 2 * i), v(CV_X + i), v(XU + 2 * i + 1), v(CV_X + i)))
        e("s_mul_i32 %s, %s, %d\ns_add_u32 %s, %s, %d" % (s(t), s(S_WAVE), 20 * LROW, s(t), s(t), L_FIN))
        e("v_and_b32 %s, 15, %s\nv_mul_u32_u24 %s, %d, %s\nv_lshrrev_b32 %s, 4, %s\nv_lshl_add_u32 %s, %s, 4, %s\nv_add_u32 %s, %s, %s" % (v(14), v(V_LANE), v(14), LROW, v(14), v(15), v(V_LANE), v(14), v(15), v(14), v(14), s(t), v(14)))
        for i in range(3): e("v_add_u32 %s, %s, %s" % (v(CV_L + i), s(t), v(CV_L + i)))
    stamp(e, 24)
    e("s_mov_b32 %s, 0" % s(t + 7))
    if REUSE:
        e("v_mov_b32 %s, %s\nv_writelane_b32 %s, %s, 0\nv_writelane_b32 %s, %s, 1\ns_movk_i32 %s, %d" % (v(31), s(T_SL + 2), v(31), s(T_SL), v(31), s(T_SL + 1), s(t + 3), 2048 + 1008 + 12))
    else:
        e("v_min_u32 %s, 2, %s\nv_mul_u32_u24 %s, %d, %s\ns_add_u32 %s, %s, %d" % (v(31), v(V_LANE), v(31), XPB, v(31), s(t + 3), s(T_XO + 2), 12 * XPB + 2048 + 1008 + 12))
    e("PROBE:")
    e("@buffer_load_dword %s, %s, %s, %s offen%s" % (v(30), v(31), s(T_XS, 4), s(t + 3), LDFL))
    e("s_waitcnt vmcnt(0)")
    e("v_xor_b32 %s, %s, %s\nv_cmp_lt_u32 vcc, 0xffff, %s" % (v(30), s(T_TAG), v(30), v(30)))
    e("s_add_u32 %s, %s, 1" % (s(t + 7), s(t + 7)))
    e("s_cmp_eq_u64 vcc, 0\ns_cbranch_scc1 PROBED")
    e("s_cmp_ge_u32 %s, 0x40000\ns_cbranch_scc1 PROBED" % s(t + 7))
    e("s_sleep %d\ns_branch PROBE" % opt("pslp", 12))
    e("PROBED:")
    for k, x in xloads(1): e(x)
    xcheck(e, 1, "s_waitcnt vmcnt(0)")
    stamp(e, 25)
    OFL = opt("ofl", "_sc1").replace("_", " ")
    for nb in range(5):
        o = OWR[1] + 4 * nb; gq = GG + 4 * nb; xu = XU + 4 * nb
        xsum(e, 1, nb)
        if COAL:
            for h in range(2): e("v_pk_mul_f32 %s, %s, %s" % (v(o + 2 * h, 2), v(o + 2 * h, 2), v(gq + 2 * h, 2)))
            e("ds_write_b128 %s, %s offset:%d" % (v(14), v(o, 4), nb * 64))
            continue
        for r in range(4): e("v_fma_f32 %s, %s, %s, %s" % (v(xu + r), v(o + r), v(gq + r), v(xu + r)))
        for h in range(2): e("v_cvt_pk_bf16_f32 %s, %s, %s" % (v(gq + h), v(xu + 2 * h), v(xu + 2 * h + 1)))
        e("buffer_store_dwordx2 %s, %s, %s, 0 offen offset:%d%s" % (v(gq, 2), v(KV_XO), s(K_SO, 4), nb * 32, OFL))
    if COAL:
        for i in range(3):
            for h in range(2): e("ds_read_b128 %s, %s offset:%d" % (v(64 + 8 * i + 4 * h, 4), v(CV_L + i), 16 * h))
        for i in range(3):
            e("s_waitcnt lgkmcnt(%d)" % (4 - 2 * i))
            for h in range(4): e("v_pk_add_f32 %s, %s, %s" % (v(64 + 8 * i + 2 * h, 2), v(64 + 8 * i + 2 * h, 2), v(XU + 8 * i + 2 * h, 2)))
            for h in range(4): e("v_cvt_pk_bf16_f32 %s, %s, %s" % (v(100 + 4 * i + h), v(64 + 8 * i + 2 * h), v(65 + 8 * i + 2 * h)))
            e("buffer_store_dwordx4 %s, %s, %s, 0 offen%s" % (v(100 + 4 * i, 4), v(CV_G + i), s(K_SO, 4), OFL))
    e0.ext([x.lstrip("@") for x in resolve_vm(e.L)])
    e = e0
    stamp(e, 15)
    if STAMPS: e("s_waitcnt vmcnt(0)")
    stamp(e, 16)
    stamp_fin(e)

def gen_kv_addr(e):
    T = V_T + 12; L = V_LANE
    e("v_and_b32 %s, 15, %s\nv_lshrrev_b32 %s, 4, %s\nv_xor_b32 %s, %s, %s" % (v(T), v(L), v(T + 1), v(L), v(T + 1), v(T + 1), v(T)))
    e("v_lshlrev_b32 %s, 8, %s\nv_lshl_add_u32 %s, %s, 4, %s" % (v(T), v(T), v(T), v(T + 1), v(T)))
    for sl in range(4): e("v_xor_b32 %s, %d, %s" % (v(V_KA + sl), sl * 64, v(T)))
    e("v_lshrrev_b32 %s, 2, %s\nv_and_b32 %s, 7, %s\nv_lshlrev_b32 %s, 8, %s\nv_lshl_add_u32 %s, %s, 5, %s" % (v(T), v(L), v(T + 1), v(T), v(T), v(T), v(T), v(T + 1), v(T)))
    e("v_and_b32 %s, 3, %s\nv_lshl_add_u32 %s, %s, 3, %s\nv_add_u32 %s, %d, %s" % (v(T + 1), v(L), v(T), v(T + 1), v(T), v(T), L_V, v(T)))
    for db in range(8): e("v_xor_b32 %s, %d, %s" % (v(V_VA + db), db * 32, v(T)))

def gen_retry(e):
    e("ATT_RETRY:")
    e("s_waitcnt vmcnt(0)\ns_mov_b32 %s, 1" % s(S_RETRY))
    gen_kv_addr(e)
    for qb in range(4): e("v_mov_b32 %s, 0xff800000" % v(V_NEGM + 4 * qb))
    e("s_mov_b32 %s, 0" % s(S_KVOFF))
    e("RETRY_LOOP:")
    e("s_barrier")
    e("s_add_u32 m0, %s, %d\ns_nop 0" % (s(S_M0K), L_K))
    e(kv_dma("K", 0)); e(kv_dma("K", 1))
    e("s_waitcnt vmcnt(0)\ns_barrier")
    for kb in range(2):
        for sl in range(4): e(k_read(kb, sl, 0))
    e("s_waitcnt lgkmcnt(0)")
    e.ext(qk_mfmas(0, czero=True))
    e("s_nop 7")
    for qb in range(4):
        b = Sreg(0, qb, 0); m = v(V_NEGM + 4 * qb)
        for k in range(4): e("v_max3_f32 %s, %s, %s, %s" % (m, m, v(b + 2 * k), v(b + 2 * k + 1)))
    e("s_add_u32 %s, %s, 8192\ns_cmp_lt_u32 %s, %d\ns_cbranch_scc1 RETRY_LOOP" % (s(S_KVOFF), s(S_KVOFF), s(S_KVOFF), 64 * 8192))
    e("s_barrier")
    kv_preload(e)
    e("s_barrier")
    for kb in range(2):
        for sl in range(4): e(k_read(kb, sl, 0))
    e("v_mov_b32 %s, 0x3f803f80" % v(V_T))
    for r in range(4): e("v_accvgpr_write_b32 %s, %s" % (a(A_ONE + r), v(V_T)))
    for r in range(128): e("v_accvgpr_write_b32 %s, 0" % a(A_O + r))
    for r in range(16): e("v_mov_b32 %s, 0" % v(V_L + r))
    e("s_waitcnt lgkmcnt(0)")
    e.ext(qk_mfmas(0, czero=True))
    for kb in range(2):
        for sl in range(4): e(k_read(kb, sl, 8192))
    e("s_branch ATT_START")

def gen_common_setup(e):
    T = V_T + 12; L = V_LANE
    e("s_lshl2_add_u32 %s, %s, %s" % (s(S_TMP + 1), s(S_QT), s(S_WAVE)))
    e("s_mul_i32 %s, %s, %d" % (s(S_TMP), s(S_TMP + 1), NSLAB * 4096))
    srd(e, S_AF, ptr(11), s(S_TMP), NSLAB * 4096)
    e("s_mul_i32 %s, %s, %d\ns_add_u32 %s, %s, %d" % (s(S_TMP), s(S_TMP + 1), 20 * 4096, s(S_TMP), s(S_TMP), XF_OFF))
    srd(e, S_X, ptr(11), s(S_TMP), 20 * 4096)
    e("s_lshl_b32 %s, %s, 19" % (s(S_TMP), s(S_HEAD)))
    srd(e, S_K, ptr(1), s(S_TMP), 524288)
    srd(e, S_V, ptr(2), s(S_TMP), 524288 + 3 * 8192)
    e("s_sub_u32 %s, %s, %d\ns_subb_u32 %s, %s, 0" % (s(S_V), s(S_V), 3 * 8192, s(S_V + 1), s(S_V + 1)))
    e("v_bfe_u32 %s, %s, 2, 2\nv_lshrrev_b32 %s, 4, %s\nv_and_b32 %s, 3, %s" % (v(T), v(L), v(T + 1), v(L), v(T + 2), v(L)))
    e("v_lshlrev_b32 %s, 12, %s" % (v(T + 3), v(T + 1)))
    e("v_mul_u32_u24 %s, 320, %s\nv_add_u32 %s, %s, %s\nv_lshl_add_u32 %s, %s, 4, %s" % (v(T + 4), v(T), v(T + 4), v(T + 4), v(T + 3), v(T + 4), v(T + 2), v(T + 4)))
    for sl in range(4): e("v_xor_b32 %s, %d, %s" % (v(V_AQ + sl), sl * 64, v(T + 4)))
    e("v_lshl_add_u32 %s, %s, 7, %s\nv_lshl_add_u32 %s, %s, 3, %s" % (v(T + 4), v(T), v(T + 3), v(T + 4), v(T + 2), v(T + 4)))
    e("v_bfe_u32 %s, %s, 3, 2\nv_lshl_add_u32 %s, %s, 5, %s" % (v(T + 5), v(L), v(T + 4), v(T + 5), v(T + 4)))
    for u in range(4): e("v_xor_b32 %s, %d, %s" % (v(V_AG + u), u * 32, v(T + 4)))
    e("v_lshrrev_b32 %s, 4, %s\ns_lshl_b32 %s, %s, 3\nv_add_u32 %s, %s, %s\nv_and_b32 %s, 15, %s" % (v(T), v(L), s(S_TMP), s(S_WAVE), v(T), s(S_TMP), v(T), v(T + 1), v(L)))
    e("v_lshlrev_b32 %s, 8, %s" % (v(T + 2), v(T)))
    for i in range(2):
        e("v_add_u32 %s, %d, %s\nv_and_b32 %s, 15, %s\nv_xor_b32 %s, %s, %s\nv_lshl_add_u32 %s, %s, 4, %s" % (v(T + 3), 4 * i, v(T), v(T + 4), v(T + 3), v(T + 4), v(T + 4), v(T + 1), v(V_KD + i), v(T + 4), v(T + 2)))
        e("v_and_b32 %s, 7, %s\nv_lshlrev_b32 %s, 1, %s\nv_xor_b32 %s, %s, %s\nv_lshl_add_u32 %s, %s, 4, %s" % (v(T + 4), v(T + 3), v(T + 4), v(T + 4), v(T + 4), v(T + 4), v(T + 1), v(V_VD + i), v(T + 4), v(T + 2)))
    gen_kv_addr(e)

def gen_w_setup(e):
    T = V_T + 12; L = V_LANE
    e("v_lshrrev_b32 %s, 4, %s\nv_lshlrev_b32 %s, 2, %s\nv_and_b32 %s, 15, %s\nv_xor_b32 %s, %s, %s" % (v(T), v(L), v(T + 1), v(T), v(T + 2), v(L), v(T + 1), v(T + 1), v(T + 2)))
    e("v_lshlrev_b32 %s, 13, %s\nv_lshl_add_u32 %s, %s, 4, %s" % (v(T), v(T), v(V_WD), v(T + 1), v(T)))
    e("v_add_u32 %s, %d, %s" % (v(V_WD + 1), 4 * 8192 - 1024, v(V_WD)))
    e("v_lshrrev_b32 %s, 3, %s\nv_bfe_u32 %s, %s, 4, 1\nv_lshlrev_b32 %s, 1, %s" % (v(T), v(L), v(T + 1), v(L), v(T + 1), v(T + 1)))
    e("s_and_b32 %s, %s, 1\ns_lshl_b32 %s, %s, 2\nv_or_b32 %s, %s, %s" % (s(S_TMP), s(S_WAVE), s(S_TMP), s(S_TMP), v(T + 1), s(S_TMP), v(T + 1)))
    e("v_and_b32 %s, 7, %s\nv_xor_b32 %s, %s, %s" % (v(T + 2), v(L), v(T + 1), v(T + 1), v(T + 2)))
    e("v_mul_u32_u24 %s, 3456, %s\nv_lshl_add_u32 %s, %s, 4, %s" % (v(T), v(T), v(V_WD + 2), v(T + 1), v(T)))
    e("s_lshl_b32 %s, %s, 8\ns_sub_u32 %s, %d, %s" % (s(S_TMP), s(S_HEAD), s(S_TMP + 1), 640 * 8192, s(S_TMP)))
    srd(e, S_WQ, ptr(3), s(S_TMP), s(S_TMP + 1))
    for (d, p, sh) in ((S_WG, 6, 2048), (S_WU, 7, 3072)):
        e("s_lshl_b32 %s, %s, 7\ns_sub_u32 %s, %d, %s" % (s(S_TMP), s(S_FS), s(S_TMP + 1), 640 * 3456 + sh, s(S_TMP)))
        e("s_cmp_lt_u32 %s, 27\ns_cselect_b32 %s, %s, 0" % (s(S_FS), s(S_TMP + 1), s(S_TMP + 1)))
        srd(e, d, ptr(p), s(S_TMP), s(S_TMP + 1))
        e("s_sub_u32 %s, %s, %d\ns_subb_u32 %s, %s, 0" % (s(d), s(d), sh, s(d + 1), s(d + 1)))

def gen_kernel(e, name):
    T = V_T; L = V_LANE
    e(".text\n.globl %s\n.p2align 8\n.type %s,@function\n%s:" % (name, name, name))
    e("s_cmp_ge_u32 s2, 256\ns_cbranch_scc1 K_END")
    e("s_load_dwordx8 %s, s[0:1], 0\ns_load_dwordx8 %s, s[0:1], 32\ns_load_dwordx8 %s, s[0:1], 64" % (s(S_PTR, 8), s(S_PTR + 8, 8), s(S_PTR + 16, 8)))
    e("v_and_b32 %s, 63, v0\nv_lshrrev_b32 %s, 6, v0\nv_lshlrev_b32 %s, 4, %s\nv_readfirstlane_b32 %s, %s" % (v(L), v(T), v(V_L16), v(L), s(S_WAVE), v(T)))
    e("s_and_b32 %s, s2, 7\ns_lshr_b32 %s, s2, 3\ns_and_b32 %s, %s, 3\ns_lshr_b32 %s, %s, 2" % (s(S_TMP), s(S_TMP + 1), s(S_HL), s(S_TMP + 1), s(S_QT), s(S_TMP + 1)))
    e("s_lshl_b32 %s, %s, 2\ns_add_u32 %s, %s, %s" % (s(S_HEAD), s(S_TMP), s(S_HEAD), s(S_HEAD), s(S_HL)))
    e("s_lshl_b32 %s, %s, 3\ns_add_u32 %s, %s, %s" % (s(S_FS), s(S_HL), s(S_FS), s(S_FS), s(S_TMP)))
    e("s_mov_b32 %s, 0" % s(S_RETRY))
    e("s_lshl_b32 %s, %s, 12\ns_lshl_b32 %s, %s, 11" % (s(S_M0W), s(S_WAVE), s(S_M0K), s(S_WAVE)))
    if STAMPS: e("v_mov_b32 v0, -1\nv_mov_b32 v19, -1")
    stamp(e, 0)
    def codetouch(e):
        e("s_getpc_b64 %s\nCODE0:" % s(S_TMP + 4, 2))
        e("s_lshr_b32 %s, s2, 3\ns_lshl2_add_u32 %s, %s, %s\ns_mul_i32 %s, %s, 640" % (s(S_EVT + 6), s(S_EVT + 6), s(S_EVT + 6), s(S_WAVE), s(S_EVT + 6), s(S_EVT + 6)))
        e("v_min_u32 %s, 4, %s\nv_lshlrev_b32 %s, 7, %s\nv_add_u32 %s, %s, %s\nv_min_u32 %s, CODE1-CODE0-4, %s" % (v(8), v(L), v(8), v(8), v(8), s(S_EVT + 6), v(8), v(8), v(8)))
        e("global_load_dword %s, %s, %s" % (v(V_PL), v(8), s(S_TMP + 4, 2)))
    CPOS = opt("cpos", 0); WPOS = opt("wpos", 0)
    if CPOS == 0: codetouch(e)
    gen_ln_loads(e)
    e("s_add_u32 %s, %s, %d\ns_addc_u32 %s, %s, 0\ns_load_dword %s, %s, 0" % (s(S_TMP + 2), s(ptr(11)), FL_OFF + EP_OFF, s(S_TMP + 3), s(ptr(11) + 1), s(S_EPOCH), s(S_TMP + 2, 2)))
    ny = 0
    if CPOS == 1: codetouch(e); ny += 1
    gen_w_setup(e)
    e("s_lshl_b32 %s, %s, 16\ns_mul_i32 %s, %s, %d" % (s(S_WQOFF), s(S_WAVE), s(S_WGOFF), s(S_WAVE), 8 * 3456))
    WT = max(opt("wt", 6), 1)
    X = V_TC
    e("s_lshl2_add_u32 %s, %s, %s\ns_add_u32 %s, %s, %d" % (s(S_TMP), s(S_QT), s(S_WAVE), s(S_TMP), s(S_TMP), 32 * NI))
    e("v_lshrrev_b32 %s, 1, %s\nv_min_u32 %s, %d, %s\nv_lshlrev_b32 %s, 5, %s\nv_add_u32 %s, %s, %s" % (v(X), v(L), v(X), WT - 1, v(X), v(X), v(X), v(X), s(S_TMP), v(X)))
    e("v_and_b32 %s, 1, %s\nv_lshlrev_b32 %s, 7, %s\nv_lshl_add_u32 %s, %s, 13, %s\nv_mul_u32_u24 %s, 3456, %s" % (v(X + 1), v(L), v(X + 1), v(X + 1), v(X + 1), v(X), v(X + 1), v(X), v(X)))
    w0 = E(); wt = E()
    for sl in range(NI): w_slab(w0, sl, True)
    wt("buffer_load_dword %s, %s, %s, 0 offen" % (v(V_PL + 1), v(X + 1), s(S_WQ, 4)))
    wt("buffer_load_dword %s, %s, %s, 0 offen offset:2048" % (v(V_PL + 2), v(X), s(S_WG, 4)))
    wt("buffer_load_dword %s, %s, %s, 0 offen offset:3072" % (v(V_DUMP), v(X), s(S_WU, 4)))
    if opt("wt", 6) == 0: wt.L = []
    early = {0: w0.L + wt.L, 1: [], 2: w0.L, 3: w0.L}[WPOS]
    mid = {0: [], 1: w0.L + wt.L, 2: wt.L, 3: []}[WPOS]
    after = wt.L if WPOS == 3 else []
    e.ext(early); ny += sum(x.startswith("buffer") for x in early)
    LATE = opt("late", 2)
    srd(e, S_FL, ptr(11), FL_OFF, EP_OFF + 4096)
    e("s_lshl_b32 %s, %s, 5\ns_add_u32 %s, %s, %s\ns_lshl_b32 %s, %s, %d" % (s(S_MYFL), s(S_QT), s(S_MYFL), s(S_MYFL), s(S_HEAD), s(S_MYFL), s(S_MYFL), FSH))
    e("v_min_u32 %s, 31, %s\nv_lshlrev_b32 %s, %d, %s\ns_lshl_b32 %s, %s, %d" % (v(V_PL + 3), v(L), v(V_PL + 3), FSH, v(V_PL + 3), s(S_XOFF), s(S_QT), FSH + 5))
    def rest():
        gen_common_setup(e)
        for i in range(8): e("v_add_u32 %s, 65536, %s" % (v(V_AHI + i), v(V_AQ + i)))
    stamp(e, 1)
    gen_ln_compute(e, ny, mid)
    e.ext(after)
    stamp(e, 29)
    if LATE == 1: rest()
    e("s_mul_i32 %s, %s, 0x9e3779b1\ns_add_u32 %s, %s, 0x7f4a7c15" % (s(S_TAG), s(S_EPOCH), s(S_TAG), s(S_TAG)))
    e("s_waitcnt vmcnt(%d)\ns_barrier" % len(after))
    stamp(e, 18)
    e("s_cmp_lg_u32 %s, 0\ns_cbranch_scc1 NOFL1" % s(S_WAVE))
    set_flag(e, 1)
    e("NOFL1:")
    if LATE == 2: rest()
    e("s_cmp_lg_u32 %s, 0\ns_cbranch_scc1 SPUN_XN" % s(S_WAVE))
    e(poll_load(False, s(S_XOFF)))
    e("s_waitcnt vmcnt(0)")
    poll_spin(e, False, s(S_XOFF), 1, "XN")
    e("s_barrier")
    stamp(e, 2)
    e("s_cmp_ge_u32 %s, 27\ns_cbranch_scc1 LIGHT" % s(S_FS))
    gen_proj(e, True, "H")
    e("PROJ_DONE:")
    head = gen_attention(e)
    gen_tail(e, head)
    e("K_END:\ns_endpgm")
    gen_events(e)
    gen_retry(e)
    e("LIGHT:")
    gen_proj(e, False, "L")
    e("s_branch PROJ_DONE")
    e("CODE1:")
    e(kd(name))

def main():
    e = E()
    hdr = open("cdna_kernels/%s.s.ref" % NAME).read().split("; Override launch")[0]
    e.L += hdr.strip().split("\n")
    e("; @launch grid=(256,1,1) block=(256,1,1) lds=%d" % LDS_BYTES)
    e('.amdgcn_target "amdgcn-amd-amdhsa--gfx950"')
    gen_kernel(e, NAME + "_kernel")
    t = re.sub(r" ;#\w*", "", e.text())
    errs = [x for x in asmcheck.check(t, [NAME + "_kernel"]) if x.count("_load_dword v%d," % V_DUMP) != 2 and not any(y in x for y in poll_load(True).split("\n")[-4:])]
    if errs:
        print("\n".join(errs[:40])); print(len(errs), "problems")
    out = [x for x in sys.argv[1:] if x.endswith(".s")]
    open(out[0] if out else "cdna_kernels/%s.s" % NAME, "w").write(t)

if __name__ == "__main__":
    main()
```

```python
import re, sys
sys.setrecursionlimit(100000)

TRANS = ("v_exp_f32", "v_log_f32", "v_rcp_f32", "v_rsq_f32", "v_sqrt_f32", "v_sin_f32", "v_cos_f32", "v_rcp_iflag_f32")

def regs_of(tok):
    tok = tok.strip()
    neg = tok.lstrip("-")
    m = re.fullmatch(r"\|?(?:abs\()?([vas])(\d+)\)?\|?", neg)
    if m: return {(m.group(1), int(m.group(2)))}
    m = re.fullmatch(r"([vas])\[(\d+):(\d+)\]", neg)
    if m: return {(m.group(1), i) for i in range(int(m.group(2)), int(m.group(3)) + 1)}
    if neg in ("vcc", "vcc_lo", "vcc_hi"): return {("s", "vcc")}
    if neg == "m0": return {("s", "m0")}
    if neg in ("exec", "exec_lo", "exec_hi"): return {("s", "exec")}
    return set()

class I:
    def __init__(self, text, idx, lineno):
        self.text = text; self.idx = idx; self.lineno = lineno
        parts = text.split(None, 1)
        self.op = re.sub(r"_(e32|e64|sdwa|dpp)$", "", parts[0])
        rest = parts[1] if len(parts) > 1 else ""
        ops = [x.strip() for x in re.split(r",(?![^\[]*\])", rest)] if rest else []
        self.mods = ""
        if ops:
            sp = ops[-1].split(None, 1)
            if len(sp) > 1:
                ops[-1] = sp[0]; self.mods = sp[1]
        self.ops = ops
        op = self.op
        self.mfma = op.startswith(("v_mfma", "v_smfmac"))
        self.valu = op.startswith("v_") and not self.mfma
        self.salu = op.startswith("s_") and not op.startswith(("s_load", "s_waitcnt", "s_nop", "s_barrier", "s_branch", "s_cbranch", "s_endpgm", "s_memtime", "s_memrealtime", "s_sleep", "s_setprio", "s_buffer_load"))
        self.smem = op.startswith(("s_load", "s_memtime", "s_memrealtime", "s_buffer_load"))
        self.ds = op.startswith("ds_")
        self.vmem = op.startswith(("buffer_", "global_"))
        self.trans = op in TRANS
        self.dma = self.vmem and (" lds" in (" " + self.mods) or "load_lds" in op)
        self.W = set(); self.R = set(); self.srcC = set(); self.AB = set(); self.stdata = set()
        R = lambda toks: set().union(*[regs_of(t) for t in toks]) if toks else set()
        if op.startswith("v_smfmac"):
            self.W = regs_of(ops[0]); self.AB = R(ops[1:4]); self.srcC = set(self.W); self.R = self.AB | self.srcC
            self.passes = 8
        elif self.mfma:
            self.W = regs_of(ops[0]); self.AB = R(ops[1:3]); self.srcC = regs_of(ops[3]); self.R = self.AB | self.srcC
            self.passes = 4 if "16x16x32" in op else (8 if "32x32x16" in op else None)
            assert self.passes, op
        elif self.valu:
            if op.startswith("v_cmp"):
                self.W = regs_of(ops[0]); self.R = R(ops[1:])
                if op.startswith("v_cmpx"): self.W |= {("s", "exec")}
            elif op.startswith("v_permlane") and "swap" in op:
                self.W = R(ops[:2]); self.R = R(ops[:2])
            elif op in ("v_add_co_u32", "v_sub_co_u32", "v_addc_co_u32", "v_subb_co_u32", "v_subrev_co_u32", "v_mad_u64_u32", "v_div_scale_f32"):
                self.W = R(ops[:2]); self.R = R(ops[2:])
            elif op == "v_nop":
                pass
            else:
                self.W = regs_of(ops[0]); self.R = R(ops[1:])
                if op in ("v_fmac_f32", "v_dot2c_f32_bf16", "v_writelane_b32") or "fmac" in op: self.R |= self.W
                if op == "v_cndmask_b32" and len(ops) == 3: self.R |= {("s", "vcc")}
                if op == "v_div_fmas_f32": self.R |= {("s", "vcc")}
        elif self.ds:
            if op.startswith(("ds_read", "ds_bpermute", "ds_permute", "ds_swizzle")) or "_rtn" in op:
                self.W = regs_of(ops[0]); self.R = R(ops[1:])
            else:
                self.R = R(ops)
        elif self.vmem:
            if op.startswith(("buffer_wbl2", "buffer_inv")):
                pass
            elif self.dma:
                self.R = R(ops) | {("s", "m0")}
            elif "load" in op:
                self.W = regs_of(ops[0]); self.R = R(ops[1:])
            elif "atomic" in op:
                self.R = R(ops)
                if "sc0" in self.mods.split():
                    self.W = regs_of(ops[0])
            else:
                self.R = R(ops)
                d = regs_of(ops[0]) if op.startswith("buffer") else regs_of(ops[1])
                if "x3" in op or "x4" in op: self.stdata = d
        elif self.smem:
            self.W = regs_of(ops[0]); self.R = R(ops[1:])
        elif self.salu:
            if op.startswith(("s_cmp", "s_bitcmp")):
                self.R = R(ops)
            else:
                self.W = regs_of(ops[0]) if ops else set(); self.R = R(ops[1:])
                if "saveexec" in op: self.W |= {("s", "exec")}; self.R |= {("s", "exec")}
                if op in ("s_addk_i32", "s_mulk_i32"): self.R |= self.W
        elif op.startswith("s_cbranch_vcc"):
            self.R = {("s", "vcc")}
        self.states = 1
        if op == "s_nop": self.states = int(ops[0], 0) + 1

def parse(text):
    ins = []; labels = {}
    in_text = True
    for ln, line in enumerate(text.splitlines(), 1):
        s = re.split(r";|//", line)[0].strip()
        if not s: continue
        if s.startswith(".section") : in_text = False; continue
        if s.startswith(".text"): in_text = True; continue
        if not in_text: continue
        if s.startswith("."):
            if not s.endswith(":"): continue
        m = re.fullmatch(r"([\w.$]+):", s)
        if m:
            labels[m.group(1)] = len(ins); continue
        ins.append(I(s, len(ins), ln))
    return ins, labels

def succs(ins, labels, i):
    x = ins[i]
    if x.op == "s_endpgm": return []
    if x.op == "s_branch": return [labels[x.ops[0]]]
    out = [i + 1] if i + 1 < len(ins) else []
    if x.op.startswith("s_cbranch"): out.append(labels[x.ops[0]])
    return out

def vregs(S): return {r for r in S if r[0] in "va"}
def sregs(S): return {r for r in S if r[0] == "s"}

def need(p, c):
    res = []
    if p.valu:
        pw = vregs(p.W); ps = sregs(p.W)
        if c.mfma and pw & c.R: res.append((2, "VALU->MFMA operand"))
        if p.trans and c.valu and not c.trans and pw & c.R: res.append((1, "trans->VALU"))
        if c.op in ("v_readfirstlane_b32", "v_readlane_b32") and pw & c.R: res.append((1, "VALU->readlane"))
        if c.op.startswith("v_permlane") and pw & c.R: res.append((2, "VALU->permlane"))
        if c.valu and ("row_" in c.mods or "quad_perm" in c.mods or "wave_" in c.mods) and pw & c.R: res.append((2, "VALU->DPP"))
        if ps:
            if c.valu and (ps - {("s", "exec")}) & c.R: res.append((4 if c.op in ("v_readlane_b32", "v_writelane_b32", "v_div_fmas_f32") else 2, "VALU sgpr->VALU"))
            if c.vmem and ps & c.R: res.append((5, "VALU sgpr->VMEM"))
            if (c.salu or c.op.startswith("s_cbranch") or c.smem) and ps & c.R and not c.op.startswith("s_cbranch_vcc"): res.append((0, ""))
            if ("s", "exec") in ps and (c.mfma or c.op.startswith(("v_permlane", "v_readlane", "v_readfirstlane"))): res.append((4, "VALU exec->MFMA/lane"))
    if p.mfma:
        a = {4: 8, 8: 12}[p.passes]
        if c.mfma:
            if p.W & c.AB: res.append((a, "MFMA D->MFMA A/B"))
            if p.W & c.srcC and not (p.W == c.srcC and p.passes == c.passes): res.append((a - 2, "MFMA D->overlap C"))
        elif (c.valu or c.vmem or c.ds) and p.W & (c.R | c.W): res.append((a, "MFMA D->VALU/mem"))
        if c.valu and p.srcC & c.W: res.append(({4: 3, 8: 7}[p.passes], "MFMA srcC WAR"))
    if p.salu and ("s", "m0") in p.W and (c.dma or c.op in ("v_writelane_b32", "v_readlane_b32") and ("s", "m0") in c.R): res.append((1, "m0->DMA"))
    if p.stdata and p.stdata & c.W: res.append((2 if c.valu else 1, "store data WAR"))
    res = [r for r in res if r[0] > 0]
    return max(res) if res else None

def check_hazards(ins, labels):
    preds = [[] for _ in ins]
    for i in range(len(ins)):
        for s in succs(ins, labels, i):
            if s < len(ins): preds[s].append(i)
    errs = []
    MAXW = 13
    for c in ins:
        stack = [(p, 0) for p in preds[c.idx]]
        seen = set()
        while stack:
            pi, d = stack.pop()
            if (pi, d) in seen: continue
            seen.add((pi, d))
            p = ins[pi]
            n = need(p, c)
            if n and d < n[0]:
                errs.append("HAZARD line %d -> %d: need %d have %d (%s)\n    %s\n    %s" % (p.lineno, c.lineno, n[0], d, n[1], p.text, c.text))
            nd = d + p.states
            if nd < MAXW:
                for q in preds[pi]: stack.append((q, nd))
    return errs

def check_waits(ins, labels, entries):
    errs = set()
    seen = set()
    stack = [(e, (), ()) for e in entries]
    steps = 0
    while stack:
        i, lg, vm = stack.pop()
        while True:
            steps += 1
            if steps > 5000000:
                errs.add("wait checker: too many steps"); return sorted(errs)
            x = ins[i]
            if x.op.startswith("s_cbranch") or x.op == "s_branch" or i in labels.values():
                key = (i, lg, vm)
                if key in seen: break
                seen.add(key)
            touched = x.R | x.W
            for q, nm in ((lg, "lgkm"), (vm, "vm")):
                for (pi) in q:
                    p = ins[pi]
                    if p.W & touched and not (x.op == "s_waitcnt"):
                        errs.add("WAIT line %d uses pending %s result of line %d\n    %s\n    %s" % (x.lineno, nm, p.lineno, p.text, x.text))
            if x.op == "s_waitcnt":
                t = x.text
                m = re.search(r"lgkmcnt\((\d+)\)", t)
                if m:
                    n = int(m.group(1))
                    if any(ins[p].smem for p in lg):
                        if n == 0: lg = ()
                    else:
                        lg = lg[len(lg) - n:] if n < len(lg) else lg
                        if n == 0: lg = ()
                m = re.search(r"vmcnt\((\d+)\)", t)
                if m:
                    n = int(m.group(1))
                    vm = vm[len(vm) - n:] if 0 < n < len(vm) else (() if n == 0 else vm)
            elif x.ds or x.smem:
                lg = lg + (i,)
                if len(lg) > 40: lg = lg[-40:]
            elif x.vmem:
                vm = vm + (i,)
                if len(vm) > 63:
                    errs.add("vmcnt overflow (>63 outstanding) at line %d" % x.lineno); vm = vm[-63:]
            ss = succs(ins, labels, i)
            if not ss: break
            for s in ss[1:]: stack.append((s, lg, vm))
            i = ss[0]
    return sorted(errs)

def check(text, entries):
    ins, labels = parse(text)
    errs = check_hazards(ins, labels) + check_waits(ins, labels, [labels[e] for e in entries])
    return errs

if __name__ == "__main__":
    t = open(sys.argv[1]).read()
    ins, labels = parse(t)
    ents = [l for l in labels if l.endswith("_kernel")]
    e = check(t, ents)
    print("\n".join(e) if e else "clean (%d instrs)" % len(ins))
```

```python
import sys, math, os, struct, re
from sched import Gaps, auto_lgkm
import asmcheck

NAME = "recurrent_scan__mha_block_cached__glu_gated_reglu__prompt"
MF = "v_mfma_f32_16x16x32_bf16"
OPT = dict(x.split("=") for x in sys.argv[1:] if "=" in x)
def opt(k, d): return type(d)(OPT.get(k, d))
VERBOSE = "-v" in sys.argv
STAMPS = "--stamps" in sys.argv
STFL = opt("stfl", " sc1").replace("_", " ")
LDFL = opt("ldfl", " sc1").replace("_", " ")

NSLAB = 182
QSC = math.log2(math.e) / math.sqrt(128.0)
DSC = 1.0 / (QSC * QSC)
WF_OFF = 0x1800000
WF_BYTES = 8 * NSLAB * 5120
XF_OFF = 0x2000000
XP_OFF = 0x2800000
MAXST = 3
FL_OFF = 0x2400000

class E:
    def __init__(self): self.L = []
    def __call__(self, s):
        for x in s.split("\n"):
            x = x.strip()
            if x: self.L.append(x)
    def ext(self, l): self.L += l
    def text(self): return "\n".join(self.L) + "\n"

def v(a, n=1): return "v%d" % a if n == 1 else "v[%d:%d]" % (a, a + n - 1)
def a(a_, n=1): return "a%d" % a_ if n == 1 else "a[%d:%d]" % (a_, a_ + n - 1)
def s(a_, n=1): return "s%d" % a_ if n == 1 else "s[%d:%d]" % (a_, a_ + n - 1)
def f2u(x): return "0x%08x" % struct.unpack("<I", struct.pack("<f", x))[0]

def kd(name, vgpr=512, acc=256):
    return """.section .rodata,"a"
.p2align 6
.amdhsa_kernel %s
  .amdhsa_next_free_vgpr %d
  .amdhsa_next_free_sgpr 102
  .amdhsa_accum_offset %d
  .amdhsa_group_segment_fixed_size 0
  .amdhsa_kernarg_size 96
  .amdhsa_user_sgpr_count 2
  .amdhsa_user_sgpr_kernarg_segment_ptr 1
  .amdhsa_system_sgpr_workgroup_id_x 1
.end_amdhsa_kernel
""" % (name, vgpr, acc)

def stamp(e, i):
    if not STAMPS: return
    e("s_waitcnt lgkmcnt(0)\ns_memtime s[98:99]\ns_memrealtime s[100:101]\ns_waitcnt lgkmcnt(0)")
    e("v_writelane_b32 v0, s98, %d\nv_writelane_b32 v19, s100, %d" % (i, i))
def stamp_fin(e):
    if not STAMPS: return
    if opt("echo", ""):
        i, j = [int(x) for x in opt("echo", "").split(".")]
        e("s_nop 1\nv_readlane_b32 s96, v19, %d\nv_readlane_b32 s97, v19, %d\nv_readlane_b32 s98, v19, 16\ns_nop 3\ns_sub_u32 s96, s97, s96\ns_min_u32 s96, s96, 20000\ns_cmp_%s_u32 %s, 27\ns_cselect_b32 s96, s96, 0" % (i, j, "ge" if opt("el", 0) else "lt", s(S_FS)))
        e("ECHO:\ns_sleep 1\ns_memrealtime s[100:101]\ns_waitcnt lgkmcnt(0)\ns_sub_u32 s97, s100, s98\ns_cmp_lt_u32 s97, s96\ns_cbranch_scc1 ECHO")
        return
    if opt("dbgout", -1) >= 0:
        e("s_cmp_lg_u32 s2, %d\ns_cbranch_scc1 NODBG\ns_cmp_lg_u32 %s, 0\ns_cbranch_scc1 NODBG" % (opt("dbgout", -1), s(S_WAVE)))
        e("v_readlane_b32 s98, v19, 0\ns_nop 3\nv_subrev_u32 v18, s98, v19\nv_lshlrev_b32 v20, 2, v1\nv_subrev_u32 v20, 4, v20")
        e("s_mov_b32 s96, %s\ns_mov_b32 s97, %s\ns_mov_b32 s98, 64\ns_mov_b32 s99, 0x20000" % (s(ptr(10)), s(ptr(10) + 1)))
        e("buffer_store_dword v18, v20, s[96:99], 0 offen\ns_waitcnt vmcnt(0)\nNODBG:")
        return
    if opt("wsb", 0): e("s_sub_u32 %s, %s, %d\ns_subb_u32 %s, %s, 0" % (s(ptr(11)), s(ptr(11)), opt("wsb", 0) << 20, s(ptr(11) + 1), s(ptr(11) + 1)))
    e("s_lshl_b32 s98, s2, 2\ns_add_u32 s98, s98, %s\ns_lshl_b32 s98, s98, 9\ns_add_u32 s98, s98, %d" % (s(S_WAVE), 0x4000000))
    e("s_add_u32 s96, %s, s98\ns_addc_u32 s97, %s, 0\ns_mov_b32 s98, 512\ns_mov_b32 s99, 0x20000" % (s(ptr(11)), s(ptr(11) + 1)))
    e("v_mov_b32 v18, v0\nv_lshlrev_b32 v20, 3, v1\nbuffer_store_dwordx2 v[18:19], v20, s[96:99], 0 offen\ns_waitcnt vmcnt(0)")

def srd(e, d, base, off_lo, nbytes):
    e("s_add_u32 %s, %s, %s" % (s(d), s(base), off_lo))
    e("s_addc_u32 %s, %s, 0" % (s(d + 1), s(base + 1)))
    e("s_mov_b32 %s, %s" % (s(d + 2), nbytes))
    e("s_mov_b32 %s, 0x20000" % s(d + 3))

def uncond(x): return False
def resolve_vm(lines):
    out = []; ops = []; waited = set(); lastm0 = None; done = 0; marks = {}
    for x in lines:
        mm = re.search(r"vmcnt\((\d+)\)", x)
        if mm and not x.startswith("@") and uncond(x): done = max(done, len(ops) - int(mm.group(1)))
        if x.startswith(("buffer_", "global_")) and len(ops) - done >= 58:
            out.append("s_waitcnt vmcnt(52)"); done = len(ops) - 52
        if x.startswith("s_add_u32 m0,"): lastm0 = x.split(",")[1].strip()
        if " lds" in x and ";#" in x:
            tg = x.split(";#")[1].strip()
            exp = s(S_M0W) if tg.startswith("w") else (s(S_TRM) if tg == "trs" else s(S_M0K))
            if tg.startswith("D"): exp = s(T_M0W)
            assert lastm0 == exp, "M0 collision at %s" % x
        if x.startswith("MARK"):
            marks[x.split()[1]] = len(ops); continue
        m = re.search(r"SINCE\{(\w+)\}", x)
        if m: x = x.replace(m.group(0), "vmcnt(%d)" % min(63, len(ops) - marks[m.group(1)]))
        m = re.search(r"WAITVM\{([^}]*)\}", x)
        if m:
            need = set(m.group(1).split(","))
            waited |= need
            idx = [i for i, t in enumerate(ops) if t in need]
            n = len(ops) - 1 - max(idx) if idx else 63
            done = max(done, len(ops) - min(n, 63))
            x = x.replace(m.group(0), "vmcnt(%d)" % min(n, 63))
        elif x.startswith(("buffer_", "global_")):
            t = x.split(";#")[1].strip() if ";#" in x else ""
            assert t not in waited, "op %s issued after its wait" % t
            ops.append(t)
        out.append(x)
    return out

S_FL = 4
S_X, S_WQ, S_WG, S_WU, S_K, S_V, S_AF, S_T, S_WF = 8, 12, 16, 20, 24, 28, 32, 36, 40
S_PTR = 44
S_WAVE, S_HEAD, S_QT, S_FS = 68, 69, 70, 71
S_XOFF, S_WQOFF, S_WGOFF, S_M0W = 72, 73, 74, 75
S_KVOFF, S_M0K, S_TOG, S_RETRY = 76, 77, 78, 79
S_TMP = 80
S_TRS, S_TRM, S_TRD, S_TRU = 88, 89, 90, 91
S_EPOCH, S_TAG, S_MYFL = 92, 93, 94
S_HL = 3
S_EVT = 85
EVTS = (32 + 9) * 8192
EVTL = (50 + 9) * 8192
EVT1 = (56 + 9) * 8192
EVTE = (62 + 9) * 8192
NWH = opt("nwh", 0)
S_LN = 84
def ptr(i): return S_PTR + 2 * i

L_K = 0
L_V = 65536
RW = 8
L_TR = 114688
L_MISC = 155648
LDS_BYTES = 163840

V_LANE = 1
V_L16 = 2
V_WD = 3
V_TRA = 6
V_AQ = 10
V_AG = 14
V_KA = 20
V_VA = 24
V_KD = 32
V_VD = 34
V_DUMP = 18
V_SIDX = 7
NL = 2
V_PW = 5
PWARM = opt("pw", 0)
V_TC = 62
V_PL = 36
V_T = 40
V_ACCQ = 64
V_ACCG = 192
V_Q = 64
V_S = 128
V_P = 192
V_NEGM = 224
V_L = 240
A_ACCU = 0
XD = 8
A_X = 64
A_W = 192
A_TR = 208
V_ONE = 56
A_O = 64
A_KF = 224
A_VF = 0
V_AHI = 44

def qacc(blk, qb): return (V_S if blk & 1 else V_Q) + ((blk >> 1) * 4 + qb) * 4
def wslot(sl): return (sl + 4) % RW
def accreg(blk, qb):
    if blk < 8: return v(qacc(blk, qb), 4)
    if blk < 12: return v(V_ACCG + ((blk - 8) * 4 + qb) * 4, 4)
    return a(A_ACCU + ((blk - 12) * 4 + qb) * 4, 4)

def w_read(dst, blk, j, rel):
    if blk < 8:
        ar = V_AQ + (blk >> 1); off = rel + j * 1024 + (blk & 1) * 8
    else:
        ar = V_AG + ((blk - 8) & 3); off = rel + 2048 + (1024 if blk >= 12 else 0) + j * 512
    if rel >= 65536: ar += V_AHI - V_AQ; off -= 65536
    assert 0 <= off < 65536
    return "ds_read_b64_tr_b16 %s, %s offset:%d" % (a(dst + 2 * j, 2), v(ar), off)

def w_dma(heavy, tag):
    l = ["buffer_load_dwordx4 %s, %s, %s offen lds ;#%s" % (v(V_WD), s(S_WQ, 4), s(S_WQOFF), tag),
         "buffer_load_dwordx4 %s, %s, %s offen offset:1024 lds ;#%s" % (v(V_WD + 1), s(S_WQ, 4), s(S_WQOFF), tag)]
    if heavy:
        l += ["buffer_load_dwordx4 %s, %s, %s offen offset:2048 lds ;#%s" % (v(V_WD + 2), s(S_WG, 4), s(S_WGOFF), tag),
              "buffer_load_dwordx4 %s, %s, %s offen offset:3072 lds ;#%s" % (v(V_WD + 2), s(S_WU, 4), s(S_WGOFF), tag)]
    return l

def x_load(sl, qb):
    return "buffer_load_dwordx4 %s, %s, %s, %s offen offset:%d%s ;#x%d" % (a(A_X + ((sl % XD) * 4 + qb) * 4, 4), v(V_L16), s(S_X, 4), s(S_XOFF), qb * 1024, LDFL, sl)

def kv_dma(which, i, tag=""):
    vo = (V_KD if which == "K" else V_VD) + i
    return "buffer_load_dwordx4 %s, %s, %s offen offset:%d%s lds ;#%s" % (v(vo), s(S_K if which == "K" else S_V, 4), s(S_KVOFF), 1024 * i, opt("kvfl", "").replace("_", " "), tag)

FSH = opt("fsh", 2)
EP_OFF = 65536
def set_flag(e, stage):
    if opt("fwide", 0):
        n = (1 << FSH) // 8
        e("s_add_u32 %s, %s, %d\ns_mov_b64 exec, 0x%x\nv_mov_b32 %s, %s\nv_mov_b32 %s, %s\nv_lshlrev_b32 %s, 3, %s" % (s(S_TMP + 7), s(S_TAG), stage, (1 << n) - 1, v(V_PL), s(S_TMP + 7), v(V_PL + 1), s(S_TMP + 7), v(V_PL + 2), v(V_LANE)))
        e("buffer_store_dwordx2 %s, %s, %s, %s offen sc1" % (v(V_PL, 2), v(V_PL + 2), s(S_FL, 4), s(S_MYFL)))
    else:
        e("s_add_u32 %s, %s, %d\ns_mov_b64 exec, 1\nv_mov_b32 %s, %s" % (s(S_TMP + 7), s(S_TAG), stage, v(V_PL), s(S_TMP + 7)))
        e("buffer_store_dword %s, off, %s, %s sc1" % (v(V_PL), s(S_FL, 4), s(S_MYFL)))
    e("s_mov_b64 exec, -1")

def poll_load(allq, qoff=None):
    if allq and FSH > 2:
        return "v_lshlrev_b32 %s, %d, %s\n" % (v(V_DUMP), FSH + 2, v(V_LANE)) + "\n".join("buffer_load_dword %s, %s, %s, 0 offen offset:%d sc1" % (v(V_PL + i), v(V_DUMP), s(S_FL, 4), i << FSH) for i in range(4))
    if allq: return "buffer_load_dwordx4 %s, %s, %s, 0 offen sc1" % (v(V_PL, 4), v(V_L16), s(S_FL, 4))
    return "buffer_load_dword %s, %s, %s, %s offen sc1" % (v(V_PL), v(V_PL + 3), s(S_FL, 4), qoff)

def poll_spin(e, allq, qoff, stage, tag):
    e("s_mov_b32 %s, 0\ns_add_u32 %s, %s, %d" % (s(S_TMP + 7), s(S_TMP + 6), s(S_TAG), stage))
    e("SPIN_%s:" % tag)
    n = 4 if allq else 1
    for i in range(n): e("v_subrev_u32 %s, %s, %s" % (v(V_PL + i), s(S_TMP + 6), v(V_PL + i)))
    if allq: e("v_max3_u32 %s, %s, %s, %s\nv_max_u32 %s, %s, %s" % (v(V_PL), v(V_PL), v(V_PL + 1), v(V_PL + 2), v(V_PL), v(V_PL), v(V_PL + 3)))
    e("v_cmp_lt_u32 vcc, %d, %s" % (MAXST - stage, v(V_PL)))
    e("s_add_u32 %s, %s, 1" % (s(S_TMP + 7), s(S_TMP + 7)))
    e("s_cmp_eq_u64 vcc, 0\ns_cbranch_scc1 SPUN_%s" % tag)
    e("s_cmp_ge_u32 %s, 0x40000\ns_cbranch_scc1 SPUN_%s" % (s(S_TMP + 7), tag))
    e("s_sleep %d" % opt("slp", 2))
    e(poll_load(allq, qoff))
    e("s_waitcnt vmcnt(0)\ns_branch SPIN_%s" % tag)
    e("SPUN_%s:" % tag)

def zero_acc(e, heavy=True):
    for r in range(V_ACCQ, 256): e("v_mov_b32 %s, 0" % v(r))
    for r in range(A_ACCU, A_ACCU + 64): e("v_accvgpr_write_b32 %s, 0" % a(r))

NI = opt("ni", 1)

def gen_ln_loads(e):
    T = V_T; L = V_LANE
    R = V_ACCQ
    e("v_bfe_u32 %s, %s, 1, 3\nv_lshrrev_b32 %s, 4, %s\nv_and_b32 %s, 1, %s" % (v(T), v(L), v(T + 1), v(L), v(T + 2), v(L)))
    e("v_mul_u32_u24 %s, 1280, %s\nv_lshl_add_u32 %s, %s, 4, %s\nv_lshl_add_u32 %s, %s, 3, %s" % (v(T + 3), v(T), v(T + 3), v(T + 1), v(T + 3), v(T + 3), v(T + 2), v(T + 3)))
    e("s_lshl_b32 %s, %s, 5\ns_add_u32 %s, %s, %s\ns_mul_i32 %s, %s, %d\ns_mul_i32 %s, %s, 320" % (s(S_TMP), s(S_QT), s(S_TMP), s(S_TMP), s(S_HEAD), s(S_TMP), s(S_TMP), 8 * 1280, s(S_TMP + 1), s(S_WAVE)))
    e("s_waitcnt lgkmcnt(0)")
    if opt("wsb", 0): e("s_add_u32 %s, %s, %d\ns_addc_u32 %s, %s, 0" % (s(ptr(11)), s(ptr(11)), opt("wsb", 0) << 20, s(ptr(11) + 1), s(ptr(11) + 1)))
    srd(e, S_T, ptr(0), s(S_TMP), 8 * 1280)
    for i in range(5): e("buffer_load_dwordx2 %s, %s, %s, %s offen offset:%d" % (v(R + 2 * i, 2), v(T + 3), s(S_T, 4), s(S_TMP + 1), 64 * i))

def gen_ln_compute(e, nyounger, mid=()):
    T = V_T; L = V_LANE
    R = V_ACCQ; U = R + 10
    e("v_and_b32 %s, 15, %s\nv_lshlrev_b32 %s, 3, %s\nv_lshl_add_u32 %s, %s, 8, %s" % (v(T + 3), v(L), v(T + 3), v(T + 3), v(T + 3), v(T + 1), v(T + 3)))
    e("s_lshr_b32 %s, %s, 3\ns_lshl2_add_u32 %s, %s, %s\ns_mul_i32 %s, %s, %d" % (s(S_TMP), s(S_HEAD), s(S_TMP), s(S_QT), s(S_TMP), s(S_TMP), s(S_TMP), 20 * 4096))
    e("s_bfe_u32 %s, %s, 0x20001\ns_lshl_b32 %s, %s, 10\ns_add_u32 %s, %s, %s" % (s(S_TMP + 1), s(S_HEAD), s(S_TMP + 1), s(S_TMP + 1), s(S_TMP), s(S_TMP), s(S_TMP + 1)))
    e("s_and_b32 %s, %s, 1\ns_lshl_b32 %s, %s, 7\ns_add_u32 %s, %s, %s\ns_add_u32 %s, %s, %d" % (s(S_TMP + 1), s(S_HEAD), s(S_TMP + 1), s(S_TMP + 1), s(S_TMP), s(S_TMP), s(S_TMP + 1), s(S_TMP), s(S_TMP), XF_OFF))
    srd(e, S_LN, ptr(11), s(S_TMP), 20 * 4096)
    e("s_mul_i32 %s, %s, %d" % (s(S_TMP), s(S_WAVE), 5 * 4096))
    e("v_lshlrev_b32 %s, 5, %s\nv_add_u32 %s, %d, %s\ns_lshl_b32 %s, %s, 3\nv_add_u32 %s, %s, %s" % (v(T + 4), v(T), v(T + 4), L_MISC, v(T + 4), s(S_TMP + 1), s(S_WAVE), v(T + 5), s(S_TMP + 1), v(T + 4)))
    A0 = T + 6; M = T + 8
    e("s_waitcnt vmcnt(%d)" % nyounger)
    stamp(e, 17)
    e.ext(list(mid))
    for d in range(10): e("v_lshlrev_b32 %s, 16, %s\nv_and_b32 %s, 0xffff0000, %s" % (v(U + 2 * d), v(R + d), v(U + 2 * d + 1), v(R + d)))
    e("v_pk_add_f32 %s, %s, %s\nv_pk_add_f32 %s, %s, %s" % (v(A0, 2), v(U, 2), v(U + 2, 2), v(M, 2), v(U + 4, 2), v(U + 6, 2)))
    for d in range(4, 10): e("v_pk_add_f32 %s, %s, %s" % (v((A0, M)[d & 1], 2), v((A0, M)[d & 1], 2), v(U + 2 * d, 2)))
    def reduce(dst):
        e("v_pk_add_f32 %s, %s, %s" % (v(A0, 2), v(A0, 2), v(M, 2) if dst == M else v(T + 10, 2)))
        e("v_add_f32 %s, %s, %s\ns_nop 1" % (v(A0), v(A0), v(A0 + 1)))
        e("v_add_f32_dpp %s, %s, %s quad_perm:[1,0,3,2] row_mask:0xf bank_mask:0xf" % (v(A0), v(A0), v(A0)))
        for sw in ("v_permlane32_swap_b32", "v_permlane16_swap_b32"):
            e("v_mov_b32 %s, %s\ns_nop 1\n%s %s, %s\nv_add_f32 %s, %s, %s" % (v(A0 + 1), v(A0), sw, v(A0), v(A0 + 1), v(A0), v(A0), v(A0 + 1)))
    reduce(M)
    e("v_mul_f32 %s, %s, %s\nv_mul_f32 %s, %s, %s" % (v(M), f2u(-1.0 / 160), v(A0), v(M + 1), f2u(-1.0 / 160), v(A0)))
    for d in range(10): e("v_pk_add_f32 %s, %s, %s" % (v(U + 2 * d, 2), v(U + 2 * d, 2), v(M, 2)))
    e("v_pk_mul_f32 %s, %s, %s\nv_pk_mul_f32 %s, %s, %s" % (v(A0, 2), v(U, 2), v(U, 2), v(T + 10, 2), v(U + 2, 2), v(U + 2, 2)))
    for d in range(2, 10): e("v_pk_fma_f32 %s, %s, %s, %s" % (v((A0, T + 10)[d & 1], 2), v(U + 2 * d, 2), v(U + 2 * d, 2), v((A0, T + 10)[d & 1], 2)))
    reduce(None)
    e("v_mov_b32 %s, %s" % (v(M + 1), v(A0)))
    e("ds_write_b64 %s, %s\ns_waitcnt lgkmcnt(0)\ns_barrier" % (v(T + 5), v(M, 2)))
    X = T + 12
    e("ds_read_b128 %s, %s\nds_read_b128 %s, %s offset:16\ns_waitcnt lgkmcnt(0)" % (v(X, 4), v(T + 4), v(X + 4, 4), v(T + 4)))
    e("v_pk_add_f32 %s, %s, %s\nv_pk_add_f32 %s, %s, %s\nv_pk_add_f32 %s, %s, %s" % (v(A0, 2), v(X, 2), v(X + 2, 2), v(T + 10, 2), v(X + 4, 2), v(X + 6, 2), v(A0, 2), v(A0, 2), v(T + 10, 2)))
    e("v_mul_f32 %s, 0.25, %s" % (v(A0), v(A0)) if False else "v_mul_f32 %s, %s, %s" % (v(A0), f2u(0.25), v(A0)))
    for k in range(4): e("v_sub_f32 %s, %s, %s" % (v(X + 2 * k), v(X + 2 * k), v(A0)))
    e("v_mul_f32 %s, %s, %s" % (v(X + 1), v(X), v(X)))
    for k in range(1, 4): e("v_fmac_f32 %s, %s, %s" % (v(X + 1), v(X + 2 * k), v(X + 2 * k)))
    e("v_fmac_f32 %s, %s, %s" % (v(A0 + 1), f2u(160.0), v(X + 1)))
    e("v_mov_b32 %s, %s\nv_fmac_f32 %s, %s, %s\nv_rsq_f32 %s, %s" % (v(X), f2u(1e-5 * DSC), v(X), f2u(DSC / 640), v(A0 + 1), v(X), v(X)))
    e("v_sub_f32 %s, %s, %s" % (v(M), v(A0), v(M)))
    e("v_mov_b32 %s, %s\nv_mul_f32 %s, %s, %s\nv_mul_f32 %s, %s, %s" % (v(X + 1), v(X), v(M + 1), v(M), v(X), v(M), v(M), v(X)))
    for i in range(5):
        for d in (2 * i, 2 * i + 1): e("v_pk_fma_f32 %s, %s, %s, %s" % (v(U + 2 * d, 2), v(U + 2 * d, 2), v(X, 2), v(M, 2)))
        for d in (2 * i, 2 * i + 1): e("v_cvt_pk_bf16_f32 %s, %s, %s" % (v(R + d), v(U + 2 * d), v(U + 2 * d + 1)))
        e("buffer_store_dwordx2 %s, %s, %s, %s offen%s" % (v(R + 2 * i, 2), v(T + 3), s(S_LN, 4), s(S_TMP), STFL))
        if i < 4: e("s_add_u32 %s, %s, 4096" % (s(S_TMP), s(S_TMP)))

def w_slab(e, sl, heavy):
    e("s_add_u32 m0, %s, %d\ns_nop 0" % (s(S_M0W), wslot(sl) * 16384))
    e.ext(w_dma(heavy, "w%d" % sl))
    e("s_add_u32 %s, %s, %d\ns_add_u32 %s, %s, %d" % (s(S_WQOFF), s(S_WQOFF), 32 * 8192, s(S_WGOFF), s(S_WGOFF), 32 * 3456))

def ones_ops(tmp):
    L = V_LANE
    return ["v_lshrrev_b32 %s, 4, %s" % (v(tmp), v(L)), "v_xor_b32 %s, %s, %s" % (v(tmp), v(tmp), v(L)), "v_bfe_u32 %s, %s, 1, 1" % (v(tmp), v(tmp)),
            "v_subrev_u32 %s, 1, %s" % (v(tmp), v(tmp)), "v_and_b32 %s, 0x3f803f80, %s" % (v(tmp), v(tmp))] + \
           ["v_mov_b32 %s, %s" % (v(V_ONE + r), v(tmp)) for r in range(4)] + \
           ["v_and_b32 %s, 1, %s" % (v(V_SIDX), v(L)), "v_mul_u32_u24 %s, 0xaaaa, %s" % (v(V_SIDX), v(V_SIDX)), "v_or_b32 %s, 0x4444, %s" % (v(V_SIDX), v(V_SIDX))]

def gen_proj(e0, heavy, tag):
    e = E()
    T = V_T; L = V_LANE
    NS = opt("ns", 4) if heavy else 0
    GU = [b for fb in range(4) for b in (12 + fb, 8 + fb)]
    PC0 = opt("pc0", 2) if heavy else 20
    def grp(lo, hi):
        out = []; sl = lo
        while sl < hi:
            if sl >= PC0 and sl + 1 < hi: out.append((sl, sl + 1)); sl += 2
            else: out.append((sl,)); sl += 1
        return out
    units = []
    for ss in grp(0, 20 - NS): units.append((ss, list(range(8)) + (GU if heavy else [])))
    for part in ((GU[:4], GU[4:]) if opt("split", 1) else (GU,)):
        for ss in grp(20 - NS, 20): units.append((ss, part))
    for ss in grp(20 - NS, 20): units.append((ss, list(range(8))))
    order = []; mf = []; firstuse = []
    for ss, bl in units:
        for b in bl:
            F0 = len(order)
            for sl in ss: order.append((sl, b)); firstuse.append(4 * F0)
            for qb in (range(4) if (not opt("psn", 1) or (F0 // len(ss)) % 2 == 0) else range(3, -1, -1)):
                idx = list(range(len(ss)))
                if qb & 1: idx.reverse()
                for i in idx:
                    sl = ss[i]
                    c = "0" if (0 in ss and i == idx[0]) else accreg(b, qb)
                    mf.append("%s %s, %s, %s, %s" % (MF, accreg(b, qb), a(A_W + 4 * ((F0 + i) % 8), 4), a(A_X + ((sl % XD) * 4 + qb) * 4, 4), c))
    NF = len(order)
    NP = len(mf)
    for sl in range(4):
        for kb in range(2):
            for qb in range(4):
                d = v(Sreg(0, qb, kb), 4)
                mf.append("%s %s, %s, %s, %s" % (MF, d, a(A_KF + (kb * 4 + sl) * 4, 4), v(V_Q + (sl * 4 + qb) * 4, 4), d if sl else "0"))
    G = Gaps(mf)
    ustart = []; n = 0
    for ss, bl in units: ustart.append(n); n += len(bl) * len(ss)
    lastF = {}; lastblk = {}; firstF = {}
    for u, (ss, bl) in enumerate(units):
        for k, sl in enumerate(ss):
            lastF[sl] = ustart[u] + len(bl) * len(ss) - 1
            firstF.setdefault(sl, ustart[u] + k * len(bl))
        for i, b in enumerate(bl): lastblk[b] = ustart[u] + (i + 1) * len(ss) - 1
    G1 = lambda sl: 4 * firstF[sl]
    DA = opt("pda", 6)
    rd = lambda F, j: w_read(A_W + 4 * (F % 8), order[F][1], j, wslot(order[F][0]) * 16384)
    pre_reads = [rd(F, j) for F in range(DA) for j in range(2)]
    TRW = opt("trw", 15) if heavy else 14
    bars = {}; cur = 0; seen = set(units[0][0])
    def barrier(u, lo, need):
        bb = G.place("b", "s_barrier", lo)
        G.put(bb, "s", "s_waitcnt WAITVM{%s}" % ",".join(need))
        bars[u] = bb
        return bb + 1
    for F in range(DA, NF):
        lo = 4 * (F - DA)
        if F in ustart:
            u = ustart.index(F)
            need = [k + str(sl) for sl in units[u][0] if sl not in seen for k in "xw"]
            seen |= set(units[u][0])
            if need or units[u][1][0] == 0: cur = barrier(u, max(cur, lo - 1), need or ["none"])
        if opt("midb", 0) and (F - DA - 1) in ustart and len(units[ustart.index(F - DA - 1)][0]) == 2 and units[ustart.index(F - DA - 1)][1][0] == 0:
            cur = barrier(1000 + F, max(cur, lo - 1), ["none"])
        for j in range(2): cur = G.place("d", rd(F, j), max(cur, lo + 2 * j), firstuse[F] - 6) + 1
    NU = len(units)
    cur = barrier(NU, cur + 1, ["K0", "K1"])
    kord = [(kb, sl) for sl in range(4) for kb in range(2)]
    for kb, sl in kord: cur = G.place("d", k_read(kb, sl, 0), cur) + 1
    barrier(NU + 1, max(cur + 5, NP), ["none"])
    kpost = []
    for i, (kb, sl) in enumerate(kord):
        lo = NP + 4 * i + 3
        try: cur = G.place("d", k_read(kb, sl, 8192), max(cur, lo)) + 1
        except RuntimeError: kpost.append(k_read(kb, sl, 8192))
    freeg = lambda sl: min(x for x in bars.values() if x >= 4 * lastF[sl])
    def wseq(sl):
        return [("s", "s_add_u32 m0, %s, %d" % (s(S_M0W), wslot(sl) * 16384))] + [("m", x) for x in w_dma(heavy, "w%d" % sl)] + \
               [("s", "s_add_u32 %s, %s, %d\ns_add_u32 %s, %s, %d" % (s(S_WQOFF), s(S_WQOFF), 32 * 8192, s(S_WGOFF), s(S_WGOFF), 32 * 3456))]
    def xseq(sl): return [("m", x_load(sl, qb)) for qb in range(4)] + [("s", "s_add_u32 %s, %s, 4096" % (s(S_XOFF), s(S_XOFF)))]
    def kvseq(which, i):
        return [("s", "s_add_u32 m0, %s, %d\ns_mov_b32 %s, %d" % (s(S_M0K), (L_K if which == "K" else L_V) + i * 8192, s(S_KVOFF), (i + (3 if which == "V" else 0)) * 8192))] + \
               [("m", kv_dma(which, k, "%s%d" % (which, i))) for k in range(2)]
    NX0 = opt("nx0", 2)
    e("s_mov_b32 %s, 0" % s(S_XOFF))
    q = []
    for sl in range(20):
        for kind in "wx":
            if kind == "w" and sl < NI: continue
            seq = wseq(sl) if kind == "w" else xseq(sl)
            if sl < NX0:
                for k, x in seq: e(x + ("\ns_nop 0" if " m0," in x else ""))
            else:
                lo = 0 if sl < RW else (freeg(sl - RW) if kind == "w" else 4 * lastF[sl - XD] + 3)
                q.append((lo, seq))
    late = {12: [("K", 0), ("K", 1)], 13: [("K", 2), ("K", 3)], 14: [("K", 4), ("K", 5)], 15: [("K", 6), ("K", 7)],
            16: [("V", 0), ("V", 1)], 17: [("V", 2), ("V", 3)], 18: [("V", 4)]}
    side = []
    for sl in range(12, 19):
        for which, i in late[sl]: side.append((freeg(sl), kvseq(which, i)))
    WT = opt("wt", 6)
    if WT:
        for k, sl in enumerate([int(x) for x in opt("wts", "0.4.8").split(".")], 1):
            seq = [("s", "s_mov_b32 %s, %d" % (s(S_TMP), k * WT * 32 * 8192)), ("m", "buffer_load_dword %s, %s, %s, %s offen" % (v(V_DUMP), v(V_TC + 1), s(S_WQ, 4), s(S_TMP)))]
            if heavy:
                seq += [("s", "s_mov_b32 %s, %d" % (s(S_TMP), k * WT * 32 * 3456)),
                        ("m", "buffer_load_dword %s, %s, %s, %s offen offset:2048" % (v(V_DUMP), v(V_TC), s(S_WG, 4), s(S_TMP))),
                        ("m", "buffer_load_dword %s, %s, %s, %s offen offset:3072" % (v(V_DUMP), v(V_TC), s(S_WU, 4), s(S_TMP)))]
            side.append((G1(sl) + opt("wtg", 30), seq))
    t0 = v(V_TRA + 3)
    if opt("kvt", 12): side.append((G1(opt("kvt", 12)), [("v", "v_min_u32 %s, 15, %s" % (t0, v(L))), ("v", "v_lshlrev_b32 %s, 7, %s" % (t0, t0)),
               ("s", "s_lshl2_add_u32 %s, %s, %s\ns_lshl_b32 %s, %s, 11" % (s(S_TMP), s(S_QT), s(S_WAVE), s(S_TMP), s(S_TMP))),
               ("m", "buffer_load_dword %s, %s, %s, %s offen" % (v(V_DUMP), t0, s(S_K, 4), s(S_TMP))),
               ("s", "s_add_u32 %s, %s, %d" % (s(S_TMP), s(S_TMP), 3 * 8192)),
               ("m", "buffer_load_dword %s, %s, %s, %s offen" % (v(V_DUMP), t0, s(S_V, 4), s(S_TMP)))]))
    side.sort(key=lambda t: t[0])
    MG = opt("pmg", 5) if heavy else 2
    g = 0; lastm = -9; vpost = []
    trlast = 0; lastload = 0
    while q or side:
        if side and (not q or side[0][0] <= max(g, q[0][0])): lo, seq = side.pop(0)
        else: lo, seq = q.pop(0)
        g = max(g, lo)
        for k, x in seq:
            if not vpost:
                try:
                    g = G.place(k, x, max(g + 1, lastm + (MG if g > opt("pmg0", 150) or not heavy else 4) if k == "m" else 0))
                    if k == "m": lastm = g
                    if re.search(r";#[xw]\d|;#trs", x) or "v%d," % V_DUMP in x: lastload = g
                    continue
                except RuntimeError: pass
            vpost.append(x + ("\ns_nop 0" if " m0," in x else ""))
    auto_lgkm(G, eager=opt("peag", 8))
    g = lastload + 2
    for x in gen_tail_setup():
        g = G.place("v" if x.startswith("v_") else "s", x, g + 1)
    setup_end = g
    g = max(g, trlast)
    for x in gen_tail_setup2(): g = G.place("v" if x.startswith("v_") else "s", x, g + 1)
    HZ = 8
    post = []
    def lay(items):
        g = 0; out = []
        for lo, k, x, hi in items:
            if not out:
                try:
                    g = G.place(k, x, max(g + (0 if k == "v" else 1), lo), hi, force=(hi is not None)); continue
                except RuntimeError: pass
            assert hi is None
            out.append(x)
        return out
    its = []
    for sl in range(4):
        for qb in range(4):
            d0 = V_Q + (sl * 4 + qb) * 4
            lo = 4 * lastblk[2 * sl + 1] + 3 + HZ
            hi = NP - 3 if sl < 2 else NP + 8 * sl - 3
            for b in range(2):
                g0 = qacc(2 * sl + b, qb)
                for h in range(2): its.append((min(lo, hi), "v", "v_cvt_pk_bf16_f32 %s, %s, %s" % (v(d0 + 2 * b + h), v(g0 + 2 * h), v(g0 + 2 * h + 1)), hi))
    assert not lay(its)
    its = []
    if heavy:
        U = T
        for fb in range(4):
            for qb in range(4):
                g0 = V_ACCG + (fb * 4 + qb) * 4
                lo = max(4 * lastblk[8 + fb] + 3 + HZ, setup_end + 1)
                for r in range(4): its.append((lo, "v", "v_accvgpr_read_b32 %s, %s" % (v(U + r), a(A_ACCU + (fb * 4 + qb) * 4 + r)), None))
                for r in range(4): its.append((lo, "v", "v_max_f32 %s, 0, %s" % (v(g0 + r), v(g0 + r)), None))
                for r in range(4): its.append((lo, "v", "v_mul_f32 %s, %s, %s" % (v(g0 + r), v(g0 + r), v(U + r)), None))
                d0 = V_ACCG + ((fb & ~1) * 4 + qb) * 4 + 2 * (fb & 1)
                for h in range(2): its.append((lo, "v", "v_cvt_pk_bf16_f32 %s, %s, %s" % (v(d0 + h), v(g0 + 2 * h), v(g0 + 2 * h + 1)), None))
                if fb & 1:
                    if qb == 0: its.append((lo, "s", "s_lshl_b32 %s, %s, 13\ns_add_u32 %s, %s, %d" % (s(S_TMP + 6), s(S_FS), s(S_TMP + 6), s(S_TMP + 6), (128 + (fb >> 1)) * 4096), None))
                    its.append((lo, "m", "buffer_store_dwordx4 %s, %s, %s, %s offen offset:%d%s" % (v(d0 - 2, 4), v(V_L16), s(S_AF, 4), s(S_TMP + 6), 1024 * qb, STFL), None))
    post += lay(its)
    its = [(300, "v", x, None) for x in ones_ops(V_TRA + 2)]
    zs = []
    for k in range(XD):
        sl = max(x for x in range(20) if x % XD == k)
        zs.append((4 * lastF[sl] + 4, range(A_X + 16 * k, A_X + 16 * k + 16)))
    for lo, rr in sorted(zs, key=lambda t: t[0]):
        for r in rr: its.append((lo, "v", "v_accvgpr_write_b32 %s, 0" % a(r), None))
    post += lay(its)
    if VERBOSE: print("proj", tag, G.pattern(), "| post", len(post), len(vpost), len(kpost))
    e.ext(pre_reads)
    e("s_waitcnt WAITVM{x%d} lgkmcnt(0)" % max(units[0][0]))
    stamp(e, 3)
    nm = 0
    for x in G.lines():
        if x.startswith("v_mfma"):
            if STAMPS and nm % (NP // 5) == 0 and 0 < nm < NP: stamp(e, 18 + nm // (NP // 5))
            if nm == NP: stamp(e, 4)
            nm += 1
        e(x)
    for x in kpost + vpost + post: e(x)
    e("s_mov_b32 %s, %d" % (s(S_KVOFF), 8 * 8192))
    e("s_nop 1")
    for r in range(8): e("v_mov_b32 %s, 0" % v(V_L + r))
    for qb in range(4): e("v_mov_b32 %s, 0xff800000" % v(V_NEGM + 4 * qb))
    e("s_waitcnt WAITVM{K2,K3}")
    e0.ext(resolve_vm(e.L))

def kv_preload(e):
    e("s_mov_b32 %s, 0" % s(S_KVOFF))
    for i in range(8):
        e("s_add_u32 m0, %s, %d\ns_nop 0" % (s(S_M0K), L_K + i * 8192))
        e(kv_dma("K", 0)); e(kv_dma("K", 1))
        if i >= 3:
            e("s_add_u32 m0, %s, %d\ns_nop 0" % (s(S_M0K), L_V + (i - 3) * 8192))
            e(kv_dma("V", 0)); e(kv_dma("V", 1))
        e("s_add_u32 %s, %s, 8192" % (s(S_KVOFF), s(S_KVOFF)))
    e("s_waitcnt vmcnt(0)")

def Sreg(buf, qb, kb): return V_S + buf * 32 + qb * 8 + kb * 4
def Preg(buf, qb): return V_P + buf * 16 + qb * 4

def qk_mfmas(buf, czero=False, full=False):
    out = []
    if opt("qko", "snake") == "qks" and not czero and full:
        for qb in range(4):
            for i in range(2):
                kb = i if qb % 2 == 0 else 1 - i
                d = v(Sreg(buf, qb, kb), 4)
                for n, sl in enumerate(range(4) if i == 0 else range(3, -1, -1)):
                    out.append("%s %s, %s, %s, %s" % (MF, d, a(A_KF + (kb * 4 + sl) * 4, 4), v(V_Q + (sl * 4 + qb) * 4, 4), d if n else v(V_NEGM + 4 * qb, 4)))
        return out
    order = {"qks": [(kb, qb, sl) for kb in range(2) for qb in range(4) for sl in range(4)], "kqs": [(kb, qb, sl) for kb in range(2) for qb in range(4) for sl in range(4)],
             "ksq": [(kb, qb, sl) for kb in range(2) for sl in range(4) for qb in range(4)],
             "snake": [(kb, qb, sl) for kb in range(2) for qb in range(4) for sl in range(4)]}[opt("qko", "snake")]
    for kb, qb, sl0 in order:
                sl = sl0
                d = v(Sreg(buf, qb, kb), 4)
                if opt("qko", "snake") == "snake":
                    first = sl0 == 0
                    sl = sl0 if qb % 2 == 0 else 3 - sl0
                    c = ("0" if czero else v(V_NEGM + 4 * qb, 4)) if first else d
                    out.append("%s %s, %s, %s, %s" % (MF, d, a(A_KF + (kb * 4 + sl) * 4, 4), v(V_Q + (sl * 4 + qb) * 4, 4), c))
                    continue
                c = d if sl else ("0" if czero else v(V_NEGM + 4 * qb, 4))
                out.append("%s %s, %s, %s, %s" % (MF, d, a(A_KF + (kb * 4 + sl) * 4, 4), v(V_Q + (sl * 4 + qb) * 4, 4), c))
    return out

def pv_mfmas(buf, tailmode=False):
    out = []
    for h in range(2):
        out.append("v_smfmac_f32_16x16x64_bf16 %s, %s, %s, %s" % (v(V_L + 4 * h, 4), v(V_ONE, 4), v(Preg(buf, 2 * h), 8), v(V_SIDX)))
    pvo = opt("pvo", "qd2s")
    if pvo == "fake" and not tailmode:
        for h in range(4):
            for i in range(4):
                qb = i if h % 2 == 0 else 3 - i
                o = a(A_O + ((2 * h + buf) * 4 + qb) * 4, 4)
                for d in ((0, 1) if i % 2 == 0 else (1, 0)):
                    out.append("%s %s, %s, %s, %s" % (MF, o, a(A_VF + (2 * h + d) * 4, 4), v(Preg(buf, (qb + 2 * d) % 4), 4), o))
        return out
    if pvo == "fake": pvo = "dq"
    order = {"dq": [(db, qb) for db in range(8) for qb in range(4)],
             "snake": [(db, qb if db % 2 == 0 else 3 - qb) for db in range(8) for qb in range(4)],
             "qd2s": [(2 * h + (d if (i & 1) == 0 else 1 - d), i if h % 2 == 0 else 3 - i) for h in range(4) for i in range(4) for d in range(2)],
             "qd2": [(2 * h + d, qb) for h in range(4) for qb in range(4) for d in range(2)],
             "qd4": [(4 * h + d, qb) for h in range(2) for qb in range(4) for d in range(4)]}[pvo if not tailmode else "dq"]
    for db, qb in order:
            o = a(A_O + (db * 4 + qb) * 4, 4)
            out.append("%s %s, %s, %s, %s" % (MF, o, a(A_VF + db * 4, 4), v(Preg(buf, qb), 4), o))
    return out

def k_read(kb, sl, off): return "ds_read_b128 %s, %s offset:%d" % (a(A_KF + (kb * 4 + sl) * 4, 4), v(V_KA + sl), off + kb * 4096)
def v_read(db, j, off): return "ds_read_b64_tr_b16 %s, %s offset:%d" % (a(A_VF + db * 4 + 2 * j, 2), v(V_VA + db), off + j * 4096)

def softmax_ops(buf):
    ex = []; cv = []
    for qb in range(4):
        for kb in range(2):
            for r in range(4):
                x = v(Sreg(buf, qb, kb) + r)
                ex.append("v_exp_f32 %s, %s" % (x, x))
            for h in range(2):
                b = Sreg(buf, qb, kb) + 2 * h
                cv.append("v_cvt_pk_bf16_f32 %s, %s, %s" % (v(Preg(buf, qb) + kb * 2 + h), v(b), v(b + 1)))
    return ex, cv

def gen_attention(e):
    T = V_T
    e("ATT_START:")
    stamp(e, 5)
    e("s_barrier")
    z = ["s_nop 0"] * 4
    for qb in range(4):
        b = Sreg(0, qb, 0)
        e("v_max3_f32 %s, %s, %s, %s" % (v(T + qb), v(b), v(b + 1), v(b + 2)))
        e("v_max3_f32 %s, %s, %s, %s" % (v(T + qb), v(T + qb), v(b + 3), v(b + 4)))
        e("v_max3_f32 %s, %s, %s, %s" % (v(T + qb), v(T + qb), v(b + 5), v(b + 6)))
        e("v_max3_f32 %s, %s, %s, %s" % (v(T + qb), v(T + qb), v(b + 7), v(V_NEGM + 4 * qb)))
    for sw in ("v_permlane32_swap_b32", "v_permlane16_swap_b32"):
        for qb in range(4): e("v_mov_b32 %s, %s" % (v(T + 4 + qb), v(T + qb)))
        e.ext(z[:2]); z = z[2:]
        for qb in range(4): e("%s %s, %s" % (sw, v(T + qb), v(T + 4 + qb)))
        for qb in range(4): e("v_max_f32 %s, %s, %s" % (v(T + qb), v(T + qb), v(T + 4 + qb)))
    for qb in range(4):
        for r in range(4): e("v_sub_f32 %s, 0, %s" % (v(V_NEGM + 4 * qb + r), v(T + qb)))
    for qb in range(4):
        for r in range(8): e("v_sub_f32 %s, %s, %s" % (v(Sreg(0, qb, 0) + r), v(Sreg(0, qb, 0) + r), v(T + qb)))
    e.ext(z)
    e("s_waitcnt lgkmcnt(0)")

    def build(steps, loop, pend):
        mf = []; starts = []
        for sp in steps:
            starts.append(len(mf))
            if sp["qk"]: mf += qk_mfmas(1 - sp["buf"], full=sp["pv"])
            if sp["pv"]: mf += pv_mfmas(1 - sp["buf"], not sp["qk"])
        G = Gaps(mf)
        for sp, st in zip(steps, starts):
            nq = 32 if sp["qk"] else 0
            npv = 32 + NL if sp["pv"] else 0
            end = st + nq + npv - 1
            full = sp["qk"] and sp["pv"]
            cur = st; g = st; c2 = st
            if sp.get("bar") is not None:
                b = G.place("b", "s_barrier", st)
                if opt("wsep", 1): G.put(b - 1, "s", "s_waitcnt vmcnt(%d) lgkmcnt(0)" % sp["bar"])
                else: G.put(b, "s", "s_waitcnt vmcnt(%d) lgkmcnt(0)" % sp["bar"])
                cur = b + 1
            if sp.get("bar63"):
                G.put(st + 3, "s", "s_waitcnt vmcnt(0)\ns_barrier")
            if full:
                for i in range(16):
                    lo = st + 4 * (i // 2) + (i % 2)
                    cur = G.place("d", v_read(i // 2, i % 2, sp["voff"]), max(cur, lo)) + 1
                    if sp.get("vx") and i % 2 == 1: G.put(cur - 1, "v", sp["vx"][i // 2])
            if sp.get("vnext") is not None:
                c2 = st + nq + NL + 3
                for i in range(16):
                    lo = min(st + nq + NL + 4 * (i // 2) + 3, end)
                    c2 = G.place("d", v_read(i // 2, i % 2, sp["vnext"]), min(max(c2, lo), end), end, force=True) + 1
            if sp.get("koff") is not None:
                if full:
                    c2 = st + 32
                    for i in range(8):
                        c2 = G.place("d", k_read(i // 4, i % 4, sp["koff"]), max(c2, st + 32 + (i if i < 2 else opt("ksp", 4) * (i - 1) + 1))) + 1
                else:
                    c2 = st + 16
                    for i in range(4): c2 = G.place("d", k_read(0, i, sp["koff"]), c2) + 1
                    for i in range(4): G.put(end, "d", k_read(1, i, sp["koff"]))
            if sp.get("dma"):
                g = st + (opt("dst", 33) if full else 2)
                for wi, which in enumerate(sp["dma"]):
                    g = G.place("s", "s_add_u32 m0, %s, %s" % (s(S_M0K), sp["m0" + which]), g)
                    for i in range(2): g = G.place("m", kv_dma(which, i), g + opt("dsp", 2))
                    g += 1
                g = G.place("s", "s_add_u32 %s, %s, 8192" % (s(S_KVOFF), s(S_KVOFF)), g)
            marks = {"dma": g, "kread": c2 if sp.get("koff") is not None else st, "vread": cur}
            for (after, chain) in sp.get("misc", []):
                gg = marks[after] if isinstance(after, str) else st + after
                for (kind, text) in chain:
                    gg = G.place(kind, text, gg + (1 if kind == "s" else 0), end)
                marks["last"] = max(marks.get("last", 0), gg)
            if sp["sm"]:
                ex, cv = softmax_ops(sp["buf"])
                n = end - st + 1
                if full:
                    eg = []; g = st
                    for i, x in enumerate(ex):
                        tgt = st + (i * (n - opt("etl", 5))) // 32
                        g = G.place("e", x, max(g, tgt), end); eg.append(g)
                    g = st
                    for i, x in enumerate(cv): g = G.place("v", x, max(g, eg[2 * i + 1] + 1), end)
                else:
                    for i, x in enumerate(ex): G.put(st + (i * (n - 1)) // 32, "e", x)
                    for i, x in enumerate(cv): G.put(min(st + ((2 * i + 1) * (n - 1)) // 32 + 1, end), "v", x)
        pre, out = auto_lgkm(G, pend, loop=loop, eager=(opt("leag", 8) or None))
        return G, pre, out

    G, pre, pend = build([dict(buf=0, qk=True, pv=False, sm=True, koff=16384)], False, [])
    e.ext(G.lines())
    for sl in range(4): e("v_add_u32 %s, 16384, %s" % (v(V_KA + sl), v(V_KA + sl)))
    e("s_mov_b32 %s, 16384\ns_mov_b32 %s, 49152" % (s(S_TOG), s(S_TMP + 2)))
    e("s_mov_b32 %s, %d\ns_mov_b32 %s, %d" % (s(S_TMP + 3), 1 * 8192, s(S_TMP + 4), 6 * 8192 + L_V))
    e("s_waitcnt vmcnt(0) lgkmcnt(0)\ns_barrier")
    for which, m0 in (("K", L_K), ("V", L_V + 5 * 8192)):
        e("s_add_u32 m0, %s, %d\ns_nop 0" % (s(S_M0K), m0))
        e(kv_dma(which, 0)); e(kv_dma(which, 1))
    e("s_add_u32 %s, %s, 8192" % (s(S_KVOFF), s(S_KVOFF)))
    e("s_mov_b32 %s, %d\ns_cmp_eq_u32 %s, 0\ns_cselect_b32 %s, %d, %s" % (s(S_EVT), EVTE, s(S_WAVE), s(S_EVT), EVT1, s(S_EVT)))
    stamp(e, 6)
    e("s_cmp_lg_u32 %s, 0\ns_cbranch_scc1 NOSIG2" % s(S_RETRY))
    e("s_cmp_ge_u32 %s, 27\ns_cbranch_scc1 LT_INIT" % s(S_FS))
    e("s_cmp_lg_u32 %s, 0\ns_cbranch_scc1 NOSIG2" % s(S_WAVE))
    set_flag(e, 2)
    e("NOSIG2:")
    def adv(r, base):
        return [("s", "s_add_u32 %s, %s, 8192" % (s(r), s(r))), ("s", "s_and_b32 %s, %s, 0xffff" % (s(r), s(r)))] + \
               ([("s", "s_or_b32 %s, %s, %d" % (s(r), s(r), base))] if base else [])
    kx = ["v_xor_b32 %s, %s, %s" % (v(V_KA + i), s(S_TMP + 2), v(V_KA + i)) for i in range(4)]
    vx = ["v_xor_b32 %s, %s, %s" % (v(V_VA + i), s(S_TOG), v(V_VA + i)) for i in range(8)]
    miscA = [("kread", [("v", x) for x in kx]),
             ("dma", adv(S_TMP + 3, 0) + adv(S_TMP + 4, L_V))]
    if PWARM:
        miscA.append(("dma", [("s", "s_lshr_b32 %s, %s, 6" % (s(S_TMP + 1), s(S_KVOFF))), ("s", "s_min_u32 %s, %s, %d" % (s(S_TMP + 1), s(S_TMP + 1), 1280 + 23 * 256)),
                              ("v", "v_add_u32 %s, %s, %s" % (v(V_PW + 1), s(S_TMP + 1), v(V_PW))),
                              ("m", "global_load_dword %s, %s, %s%s" % (v(V_DUMP), v(V_PW + 1), s(ptr(11), 2), opt("pwfl", "_sc1").replace("_", " ")))]))
    miscB = [(34, [("s", "s_xor_b32 %s, %s, 32768" % (s(S_TOG), s(S_TOG))), ("s", "s_xor_b32 %s, %s, 32768" % (s(S_TMP + 2), s(S_TMP + 2)))]),
             ("dma", adv(S_TMP + 3, 0) + adv(S_TMP + 4, L_V)),
             ("last", [("s", "s_cmp_lt_u32 %s, %s" % (s(S_KVOFF), s(S_EVT)))])]
    G, pre, pend = build([dict(buf=1, qk=True, pv=True, sm=True, koff=8192, voff=0, dma="KV", m0K=s(S_TMP + 3), m0V=s(S_TMP + 4), misc=miscA),
                          dict(buf=0, qk=True, pv=True, sm=True, koff=0, voff=8192, bar=16 + 2 * PWARM, dma="KV", m0K=s(S_TMP + 3), m0V=s(S_TMP + 4), misc=miscB, vx=vx)], True, [])
    if VERBOSE: print("loop", G.pattern())
    e(".p2align 6\nATT_LOOP:")
    for x in G.lines(): e(x)
    e("s_cbranch_scc1 ATT_LOOP")
    e("s_cmp_lt_u32 %s, %d\ns_cbranch_scc1 ATT_EVT" % (s(S_KVOFF), EVTE))
    e("TAILC0:")
    global LIGHT_LOOP
    LIGHT_LOOP = light_loop(G)
    stamp(e, 7)
    e("s_waitcnt lgkmcnt(0)")
    vr = [v_read(i // 2, i % 2, 0) for i in range(16)]
    e.ext(vr)
    h = E()
    G, pre, pend = build([dict(buf=1, qk=False, pv=True, sm=True, vnext=8192, bar63=True)], False, [asmcheck.I(x, 0, 0).W for x in vr])
    assert pre is None
    pq = [x for sg in range(NPRE_X) for x in t8_w(sg) + t8_a(sg)]
    assert NPRE_X <= 3
    g = 6
    while pq and g < 32 + NL:
        k, x = pq.pop(0)
        if k == "s": G.sc[g].append(x); g += 1
        else: G.va[g].append(x); g += opt("x63", 3)
    for x in G.lines(): h(x)
    G = Gaps(pv_mfmas(1, True))
    G.put(opt("b64", 8), "b", "s_barrier")
    G.put(opt("b64", 8), "s", "s_waitcnt lgkmcnt(0)")
    g = 0; post = []
    for k, x in pq:
        if not post:
            try:
                g = G.place(k, x, g) + (opt("x64", 3) if k == "m" else 1); continue
            except RuntimeError: pass
        post.append(x + ("\ns_nop 0" if k == "s" else ""))
    pre, pend = auto_lgkm(G, pend)
    h("s_nop 1")
    if pre is not None: h("s_waitcnt lgkmcnt(%d)" % pre)
    for x in G.lines(): h(x)
    h("v_min_u32 %s, 7, %s\nv_lshlrev_b32 %s, %d, %s" % (v(V_PL + 3), v(V_LANE), v(V_PL + 3), FSH, v(V_PL + 3)))
    for x in post: h(x)
    return h.L

LT_SS, LT_SD = 44, (48, 56)
LT_SO, LT_DO, LT_R = 91, 96, 97
LT_VO, LT_VB, LT_VR, LT_AD = 40, 42, 44, 32
L_TRB = 131072
def light_loop(G):
    import copy
    G = copy.deepcopy(G)
    n = G.n()
    b = [g for g in range(n) if any("s_barrier" in x for x in G.va[g])][0]
    for bb in (b - 1, b): G.sc[bb] = [x.replace("vmcnt(%d)" % (16 + 2 * PWARM), "vmcnt(%d)" % (24 + 2 * PWARM)) for x in G.sc[bb]]
    firstm0 = min(g for g in range(b) if any(" m0," in x for x in G.sc[g]))
    def lay(seq, g, hi, step=1):
        for k, x in seq:
            if k == "s":
                while not G.fits(g, "s"): g += 1
                G.put(g, "s", x)
            else:
                win = opt("ltw", 4) if k != "m" else opt("ltm", 4)
                g = min(range(g, min(g + win, hi) + 1), key=lambda y: (G.used[y] + (3 if (k == "d" and G.ds[y] and opt("ltd", 0)) else 0), y))
                (G.ds if k == "d" else G.va)[g].append(x); G.used[g] += 1 if k != "m" else 2
            g += step
            assert g <= hi + 1, (x, g, hi)
        return g
    lay([("s", "s_add_u32 m0, %s, %s" % (s(LT_R), s(S_TMP)))] +
        [("m", "buffer_load_dwordx4 %s, %s, %s offen offset:%d lds" % (v(LT_VO + i), s(LT_SS, 4), s(LT_SO), 1024 * i)) for i in range(2)] +
        [("s", "s_add_u32 %s, %s, %d\ns_add_u32 %s, %s, 2048" % (s(LT_SO), s(LT_SO), 8 * 40960, s(LT_R), s(LT_R))),
         ("s", "s_cmp_eq_u32 %s, 6144\ns_cselect_b32 %s, 0, %s" % (s(LT_R), s(LT_R), s(LT_R)))] +
        [("v", "v_add_u32 %s, %s, %s" % (v(LT_VR + f), s(LT_R), v(LT_VB + f))) for f in range(2)], 3, firstm0 - 1)
    g = lay([("d", "ds_read_b64_tr_b16 %s, %s offset:%d" % (a(LT_AD + 4 * f + 2 * j, 2), v(LT_VR + f), 1024 * j)) for f in range(2) for j in range(2)], b + 1, b + 24, 2)
    cmpg = [g for g in range(n) if any(x.startswith("s_cmp_lt_u32 %s" % s(S_KVOFF)) for x in G.sc[g])][0]
    g = lay([("m", "buffer_store_dwordx4 %s, %s, %s, %s offen%s" % (a(LT_AD, 4), v(V_L16), s(LT_SD[0], 4), s(LT_DO), opt("ltfl", STFL).replace("_", " ")))], b + 38, cmpg - 1)
    g = lay([("m", "buffer_store_dwordx4 %s, %s, %s, %s offen%s" % (a(LT_AD + 4, 4), v(V_L16), s(LT_SD[1], 4), s(LT_DO), opt("ltfl", STFL).replace("_", " ")))], g + 8, cmpg - 1)
    G.sc[cmpg].insert(0, "s_add_u32 %s, %s, %d" % (s(LT_DO), s(LT_DO), 8 * 5120))
    if VERBOSE: print("lightloop", G.pattern())
    return G.lines()

def gen_events(e):
    L = V_LANE; t = S_TMP
    e("LT_INIT:")
    e("s_sub_u32 %s, %s, 27\ns_lshl_b32 %s, %s, 3\ns_add_u32 %s, %s, %s\ns_lshl2_add_u32 %s, %s, %s" % (s(t), s(S_FS), s(t), s(t), s(t), s(t), s(S_QT), s(t), s(t), s(S_WAVE)))
    e("s_mul_i32 %s, %s, 3277\ns_lshr_b32 %s, %s, 16\ns_mul_i32 %s, %s, 20\ns_sub_u32 %s, %s, %s" % (s(t + 1), s(t), s(t + 1), s(t + 1), s(t + 6), s(t + 1), s(t), s(t), s(t + 6)))
    e("s_mul_i32 %s, %s, 40960\ns_lshl_b32 %s, %s, 6\ns_add_u32 %s, %s, %s" % (s(LT_SO), s(t + 1), s(t + 6), s(t), s(LT_SO), s(LT_SO), s(t + 6)))
    e("s_sub_u32 %s, %s, 16\ns_mul_i32 %s, %s, 5120" % (s(LT_DO), s(t + 1), s(LT_DO), s(LT_DO)))
    srd(e, LT_SS, ptr(4), 0, 4096 * 1280)
    for f in range(2):
        e("s_lshl1_add_u32 %s, %s, %d\ns_mul_i32 %s, %s, 13108\ns_lshr_b32 %s, %s, 16\ns_mul_i32 %s, %s, 5\ns_sub_u32 %s, %s, %s\ns_lshl_b32 %s, %s, 10" % (
            s(t + 1), s(t), f, s(t + 6), s(t + 1), s(t + 6), s(t + 6), s(t + 7), s(t + 6), s(t + 1), s(t + 1), s(t + 7), s(t + 1), s(t + 1)))
        e("s_mul_i32 %s, %s, %d\ns_add_u32 %s, %s, %s\ns_add_u32 %s, %s, %d" % (s(t + 6), s(t + 6), NSLAB * 5120, s(t + 6), s(t + 6), s(t + 1), s(t + 6), s(t + 6), WF_OFF))
        srd(e, LT_SD[f], ptr(11), s(t + 6), (NSLAB - 1) * 5120 + 1024)
    e("s_mul_i32 %s, %s, 6144\ns_add_u32 %s, %s, %d\ns_mov_b32 %s, 0\ns_mov_b32 %s, %d" % (s(t), s(S_WAVE), s(t), s(t), L_TRB, s(LT_R), s(S_EVT), EVTS))
    e("v_lshrrev_b32 %s, 2, %s\nv_bfe_u32 %s, %s, 4, 1\nv_and_b32 %s, 3, %s" % (v(46), v(L), v(47), v(L), v(48), v(L)))
    e("v_lshlrev_b32 %s, 1, %s\nv_xor_b32 %s, %s, %s\nv_mul_u32_u24 %s, 1280, %s\nv_lshl_add_u32 %s, %s, 4, %s\nv_add_u32 %s, %d, %s" % (
        v(49), v(47), v(49), v(49), v(48), v(LT_VO), v(46), v(LT_VO), v(49), v(LT_VO), v(LT_VO + 1), 16 * 1280 - 1024, v(LT_VO)))
    e("v_lshlrev_b32 %s, 6, %s\nv_lshl_add_u32 %s, %s, 3, %s\nv_lshl_add_u32 %s, %s, 5, %s\nv_add_u32 %s, %s, %s\nv_xor_b32 %s, 32, %s" % (
        v(LT_VB), v(46), v(LT_VB), v(48), v(LT_VB), v(LT_VB), v(47), v(LT_VB), v(LT_VB), s(t), v(LT_VB), v(LT_VB + 1), v(LT_VB)))
    e(".p2align 6\nLT_LOOP:")
    for x in LIGHT_LOOP: e(x)
    e("s_cbranch_scc1 LT_LOOP")
    e("s_cmp_lg_u32 %s, %d\ns_cbranch_scc1 LT_END" % (s(S_KVOFF), EVTS))
    srd(e, LT_SS, ptr(8), 0, 1728 * 1280)
    e("s_sub_u32 %s, %s, %d\ns_mov_b32 %s, %d\ns_branch LT_LOOP" % (s(LT_SO), s(LT_SO), 128 * 40960, s(S_EVT), EVTL))
    e("LT_END:")
    e("s_waitcnt vmcnt(0)\ns_barrier")
    e("s_mov_b32 %s, %d\ns_cmp_lg_u32 %s, 0\ns_cbranch_scc1 ATT_LOOP" % (s(S_EVT), EVTE, s(S_WAVE)))
    set_flag(e, 2)
    e("s_mov_b32 %s, %d\ns_branch ATT_LOOP" % (s(S_EVT), EVT1))
    e("ATT_EVT:")
    e("s_cmp_lg_u32 %s, %d\ns_cbranch_scc1 ATT_EVT3" % (s(S_KVOFF), EVT1))
    if opt("ctt", 1):
        e("s_getpc_b64 %s\nCODE2:\ns_sub_u32 %s, %s, CODE2-TAILC0\ns_subb_u32 %s, %s, 0" % (s(t + 6, 2), s(t + 6), s(t + 6), s(t + 7), s(t + 7)))
        e("s_lshr_b32 %s, s2, 3\ns_lshl_b32 %s, %s, 10" % (s(t + 1), s(t + 1), s(t + 1)))
        e("v_min_u32 %s, 7, %s\nv_lshlrev_b32 %s, 7, %s\nv_add_u32 %s, %s, %s\nv_min_u32 %s, K_END-TAILC0, %s" % (v(V_PL), v(L), v(V_PL), v(V_PL), v(V_PL), s(t + 1), v(V_PL), v(V_PL), v(V_PL)))
        e("global_load_dword %s, %s, %s" % (v(V_DUMP), v(V_PL), s(t + 6, 2)))
    e(poll_load(True))
    e("s_mov_b32 %s, %d\ns_branch ATT_LOOP" % (s(S_EVT), EVT1 + 4 * 8192))
    e("ATT_EVT3:")
    e("s_waitcnt vmcnt(16)")
    poll_spin(e, True, None, 2, "EARLY")
    e("s_mov_b32 %s, %d\ns_branch ATT_LOOP" % (s(S_EVT), EVTE))
assert all((g * 3277) >> 16 == g // 20 for g in range(160)) and all((c * 13108) >> 16 == c // 5 for c in range(40))

K_SX, K_SO = S_WU, S_X
T_SA, T_SW, T_XS = S_T, S_WF, S_WQ
T_XO = S_WG
T_TAG = S_WG + 3
T_M0W, T_OA, T_OW = 88, 89, 90
T_BA, T_BW = (S_XOFF, S_WQOFF), (S_WGOFF, S_M0W)
K_FLG = 95
KV_XO = 63; KV_X = 8
TV_WR, TV_L4K, TV_TAG, TV_OW, TV_OR = 60, 61, 62, 3, 4
XPB = 12288
REUSE = opt("reuse", 1)
COAL = opt("coal", 1)
NSD, NSG = 7, 23
RW8, RA8, RF8 = 6, 5, 10
L_OWN = [122880, 0]

def join_scalar(lines):
    out = []
    for x in lines:
        if x.startswith(("s_addc", "s_cselect")): out[-1] += "\n" + x
        else: out.append(x)
    return out

def gen_tail_setup():
    e = E()
    L = V_LANE; t = S_TMP
    R, Cc, KQ = t + 3, t + 4, t + 5
    e("s_bfe_u32 %s, s2, 0x10002\ns_lshl_b32 %s, %s, 3\ns_lshr_b32 %s, s2, 5\ns_add_u32 %s, %s, %s" % (s(R), s(R), s(R), s(t), s(R), s(R), s(t)))
    e("s_bfe_u32 %s, s2, 0x20003\ns_and_b32 %s, s2, 3" % (s(Cc), s(KQ)))
    e("s_lshr_b32 %s, %s, 1\ns_lshl1_add_u32 %s, %s, %s\ns_lshl2_add_u32 %s, %s, %s\ns_mul_i32 %s, %s, %d" % (s(t), s(KQ), s(t), s(R), s(t), s(t), s(t), s(S_WAVE), s(t), s(t), 16 * 1280))
    e("s_and_b32 %s, %s, 1\ns_lshl1_add_u32 %s, %s, %s\ns_mul_i32 %s, %s, 160\ns_add_u32 %s, %s, %s" % (s(t + 1), s(KQ), s(t + 1), s(Cc), s(t + 1), s(t + 1), s(t + 1), s(t), s(t), s(t + 1)))
    srd(e, K_SX, ptr(0), s(t), 15 * 1280 + 160)
    srd(e, K_SO, ptr(9), s(t), 15 * 1280 + 160)
    e("v_and_b32 %s, 15, %s\nv_mul_u32_u24 %s, 1280, %s\nv_lshrrev_b32 %s, 4, %s\nv_lshl_add_u32 %s, %s, 3, %s" % (v(KV_XO), v(L), v(KV_XO), v(KV_XO), v(V_T), v(L), v(KV_XO), v(V_T), v(KV_XO)))
    e("s_lshr_b32 %s, %s, 1\ns_lshl2_add_u32 %s, %s, %s\ns_lshl_b32 %s, %s, %d" % (s(K_FLG), s(R), s(K_FLG), s(K_FLG), s(KQ), s(K_FLG), s(K_FLG), FSH + 3))
    e("s_mul_i32 %s, %s, 7\ns_add_u32 %s, %s, 64\ns_lshl_b32 %s, %s, 13\ns_mul_i32 %s, %s, 10240" % (s(t), s(KQ), s(t), s(t), s(T_BA[0]), s(t), s(T_BW[0]), s(t)))
    e("s_lshl_b32 %s, %s, 17\ns_mul_i32 %s, %s, %d" % (s(T_BA[1]), s(KQ), s(T_BW[1]), s(KQ), 16 * 10240))
    e("s_lshl2_add_u32 %s, %s, %s\ns_mul_i32 %s, %s, %d\ns_add_u32 %s, %s, %d" % (s(t), s(R), s(Cc), s(t), s(t), 24 * XPB, s(t), s(t), XP_OFF))
    srd(e, T_XS, ptr(11), s(t), 24 * XPB)
    for ch in range(2):
        d = T_XO + ch
        e("s_and_b32 %s, %s, 2\ns_add_u32 %s, %s, %d\ns_xor_b32 %s, %s, %s\ns_mul_i32 %s, %s, 3\ns_add_u32 %s, %s, %s\ns_sub_u32 %s, %s, 1" % (
            s(t), s(S_WAVE), s(t), s(t), ch, s(t + 1), s(t), s(KQ), s(t), s(t), s(t), s(t), s(t + 1), s(t), s(t)))
        e("s_mul_i32 %s, %s, %d\ns_and_b32 %s, %s, 1\ns_mul_i32 %s, %s, 6144\ns_add_u32 %s, %s, %s" % (s(t), s(t), XPB, s(d), s(S_WAVE), s(d), s(d), s(d), s(d), s(t)))
        e("s_cmp_eq_u32 %s, 0\ns_cselect_b32 %s, 0x1000000, %s" % (s(t + 1), s(d), s(d)))
    if PWARM:
        e("s_lshl2_add_u32 %s, %s, %s\ns_mul_i32 %s, %s, %d\ns_lshl_b32 %s, %s, 14\ns_add_u32 %s, %s, %s" % (s(t), s(S_QT), s(S_WAVE), s(t), s(t), NSLAB * 4096, s(t + 1), s(S_HEAD), s(t), s(t), s(t + 1)))
        e("v_mov_b32 %s, %s" % (v(V_PW), s(t)))
        for i, o in ((1, 6144), (2, 10240)):
            e("s_add_u32 %s, %s, %d\nv_writelane_b32 %s, %s, %d\nv_writelane_b32 %s, %s, %d" % (s(t + 1), s(t), o, v(V_PW), s(t + 1), 2 * i, v(V_PW), s(t + 1), 2 * i + 1))
        e("s_lshl2_add_u32 %s, %s, %s\ns_mul_i32 %s, %s, %d\ns_add_u32 %s, %s, %d" % (s(t + 2), s(R), s(Cc), s(t + 2), s(t + 2), 24 * XPB, s(t + 2), s(t + 2), XP_OFF))
        for m in range(2):
            for ch in range(2):
                i = 3 + 2 * m + ch
                e("s_add_u32 %s, %s, %s\ns_add_u32 %s, %s, %d" % (s(t + 1), s(t + 2), s(T_XO + ch), s(t + 1), s(t + 1), m * 12 * XPB))
                e("s_cmp_eq_u32 %s, 0x1000000\ns_cselect_b32 %s, %s, %s" % (s(T_XO + ch), s(t + 1), s(t), s(t + 1)))
                e("v_writelane_b32 %s, %s, %d\nv_writelane_b32 %s, %s, %d" % (v(V_PW), s(t + 1), 2 * i, v(V_PW), s(t + 1), 2 * i + 1))
        e("v_min_u32 %s, 14, %s" % (v(V_T), v(L)))
        L = V_T
        e("v_and_b32 %s, 1, %s\nv_lshl_add_u32 %s, %s, 7, %s\nv_subrev_u32 %s, 1280, %s" % (v(V_T), v(L), v(V_PW), v(V_T), v(V_PW), v(V_PW), v(V_PW)))
        L = V_LANE
    e("s_mul_i32 %s, %s, %d\ns_mul_i32 %s, %s, 3072\ns_add_u32 %s, %s, %s" % (s(T_XO + 2), s(KQ), 3 * XPB, s(t), s(S_WAVE), s(T_XO + 2), s(T_XO + 2), s(t)))
    e("s_add_u32 %s, %s, 0x10000\ns_and_b32 %s, %s, 0x1fff0000\ns_or_b32 %s, %s, 0x40000000\nv_mov_b32 %s, %s" % (s(t), s(S_EPOCH), s(t), s(t), s(T_TAG), s(t), v(TV_TAG), s(T_TAG)))
    e("s_and_b32 %s, %s, 1\ns_mul_i32 %s, %s, 10240\nv_add_u32 %s, %s, %s" % (s(t), s(S_WAVE), s(t), s(t), v(TV_OW), s(t), v(V_L16)))
    e("s_mul_i32 %s, %s, 5120\nv_add_u32 %s, %s, %s" % (s(t), s(S_WAVE), v(TV_OR), s(t), v(V_L16)))
    e("s_lshr_b32 %s, %s, 1\ns_lshl1_add_u32 %s, %s, %s\ns_mul_i32 %s, %s, %d" % (s(t), s(S_WAVE), s(t), s(R), s(t), s(t), s(t), NSLAB * 4096))
    e("s_and_b32 %s, %s, 1\ns_lshl_b32 %s, %s, 11\ns_add_u32 %s, %s, %s" % (s(t + 1), s(S_WAVE), s(t + 1), s(t + 1), s(t), s(t), s(t + 1)))
    srd(e, T_SA, ptr(11), s(t), NSLAB * 4096 - 2048)
    e("s_mul_i32 %s, %s, 5120" % (s(T_M0W), s(S_WAVE)))
    e("s_and_b32 %s, %s, 1\ns_lshl1_add_u32 %s, %s, %s\ns_mul_i32 %s, %s, %d" % (s(t), s(S_WAVE), s(t), s(Cc), s(t), s(t), s(t), NSLAB))
    e("s_lshr_b32 %s, %s, 1\ns_add_u32 %s, %s, %s\ns_mul_i32 %s, %s, 5120\ns_add_u32 %s, %s, %d" % (s(t + 1), s(S_WAVE), s(t), s(t), s(t + 1), s(t), s(t), s(t), s(t), WF_OFF))
    return join_scalar(e.L)

def gen_tail_setup2():
    e = E()
    srd(e, T_SW, ptr(11), s(S_TMP), (NSLAB - 1) * 5120)
    e("v_mov_b32 %s, %s\nv_add_u32 %s, 4096, %s" % (v(TV_WR), v(V_L16), v(TV_L4K), v(V_L16)))
    return join_scalar(e.L)

def t8_w(sg):
    base = (sg % RW8) * 20480; tag = "D%d" % sg
    m, i = (0, sg) if sg < NSD else (1, sg - NSD)
    W = lambda vo, off: ("m", "buffer_load_dwordx4 %s, %s, %s offen offset:%d%s lds ;#%s" % (v(vo), s(T_SW, 4), s(T_OW), off, LDFL, tag))
    return [("s", "s_add_u32 %s, %s, %d\ns_add_u32 m0, %s, %d" % (s(T_OW), s(T_BW[m]), i * 10240, s(T_M0W), base)),
            W(V_L16, 0), W(V_L16, 1024), W(V_L16, 2048), W(V_L16, 3072),
            ("s", "s_add_u32 m0, %s, %d" % (s(T_M0W), base + 4096)), W(TV_L4K, 0)]
def t8_af(sg, half, j): return a((32, 48, 192, 208, 224)[sg % RA8] + half * 8 + j * 4, 4)
def t8_a(sg):
    m, i = (0, sg) if sg < NSD else (1, sg - NSD)
    l = [("s", "s_add_u32 %s, %s, %d" % (s(T_OA), s(T_BA[m]), i * 8192))]
    for half in range(2):
        for j in range(2):
            l.append(("m", "buffer_load_dwordx4 %s, %s, %s, %s offen offset:%d%s ;#A%d" % (t8_af(sg, half, j), v(TV_L4K if half else V_L16), s(T_SA, 4), s(T_OA), j * 1024, LDFL, sg)))
    return l
def t8_wf(F):
    k = F % RF8
    return a(4 * k if k < 8 else 240 + 4 * (k - 8), 4)
def t8_read(F):
    sg, f = F // 20, F % 20
    if opt("t8c", 1): f = (f & 1) * 10 + (f >> 1)
    return "ds_read_b128 %s, %s offset:%d" % (t8_wf(F), v(TV_WR), (sg % 3) * 20480 + f * 1024)
def t8_acc(m, n10, j):
    i = n10 * 2 + j
    if m == 0: return 128 + 4 * i
    return 64 + 4 * i if i < 16 else 208 + 4 * (i - 16)
NPRE_X = opt("nprex", 2)
NPRE_G = opt("npreg", 2)

def cond_lines(lines): return [("@" + x) if x.startswith("buffer") else x for x in lines]

def publish(m):
    out = []; n = 0
    for ch in range(2):
        if m == 1 and REUSE:
            t = S_TMP
            out.append(("s", "s_and_b32 %s, s2, 3\ns_and_b32 %s, %s, 2\ns_sub_u32 %s, %s, %s\ns_sub_u32 %s, %s, %d\ns_mul_i32 %s, %s, %d\ns_add_u32 %s, %s, %s" % (
                s(t), s(t + 1), s(S_WAVE), s(t), s(t), s(t + 1), s(t), s(t), ch, s(t), s(t), 3 * XPB, s(t + 2), s(T_XO + ch), s(t))))
        else:
            out.append(("s", "s_add_u32 %s, %s, %d" % (s(S_TMP + 2), s(T_XO + ch), m * 12 * XPB)))
        for j in range(2):
            vals = [t8_acc(m, 5 * ch + nb, j) + k for nb in range(5) for k in range(4)]
            pb = (40, 240)[n % 2]; n += 1
            for gi in range(3):
                vs = vals[7 * gi:7 * gi + 7]
                if len(vs) < 7: vs = vs + [TV_TAG]
                for h in range(3): out.append(("v", "v_cvt_pk_bf16_f32 %s, %s, %s" % (v(pb + 4 * gi + h), v(vs[2 * h]), v(vs[2 * h + 1]))))
                out.append(("v", "v_cvt_pk_bf16_f32 %s, %s, %s" % (v(pb + 4 * gi + 3), v(vs[6]), v(TV_TAG))))
                off = j * 3072 + gi * 1024
                out.append(("m", "buffer_store_dwordx4 %s, %s, %s, %s offen offset:%d%s ;#xst%d" % (v(pb + 4 * gi, 4), v(TV_L4K if off >= 4096 else V_L16), s(T_XS, 4), s(S_TMP + 2), off % 4096, STFL, m)))
    return out
def own_write(m):
    l = []
    if L_OWN[m]: l.append("v_add_u32 %s, %d, %s" % (v(52), L_OWN[m], v(TV_OW)))
    ar = v(52) if L_OWN[m] else v(TV_OW)
    for ch in range(2):
        l.append("s_cmp_lg_u32 %s, 0x1000000\ns_cbranch_scc1 NOOWN%d%d" % (s(T_XO + ch), m, ch))
        for j in range(2):
            for nb in range(5): l.append("ds_write_b128 %s, %s offset:%d" % (ar, v(t8_acc(m, 5 * ch + nb, j), 4), (j * 5 + nb) * 1024))
        l.append("NOOWN%d%d:" % (m, ch))
    return l
XR = [128, 64]; OWR = [164, 184]
T_SL = 72
def xloads(m):
    l = []
    for i in range(3):
        if m == 1 and REUSE: l.append(("s", "s_mov_b32 %s, %s" % (s(S_TMP + 3), s(T_SL + i))))
        else: l.append(("s", "s_add_u32 %s, %s, %d" % (s(S_TMP + 3), s(T_XO + 2), m * 12 * XPB + i * XPB)))
        for k in range(3): l.append(("m", "buffer_load_dwordx4 %s, %s, %s, %s offen offset:%d%s ;#xr%d" % (v(XR[m] + (i * 3 + k) * 4, 4), v(V_L16), s(T_XS, 4), s(S_TMP + 3), k * 1024, LDFL, m)))
    return l
def xcheck(e, m, first_wait):
    t = S_TMP
    e("s_mov_b32 %s, 0" % s(t + 7))
    e(first_wait)
    e("XCHK%d:" % m)
    for i in range(9): e("v_xor_b32 %s, %s, %s" % (v(20 + i), s(T_TAG), v(XR[m] + 4 * i + 3)))
    for i in range(4): e("v_or3_b32 %s, %s, %s, %s" % (v(20), v(20), v(21 + 2 * i), v(22 + 2 * i)))
    e("v_cmp_lt_u32 vcc, 0xffff, %s" % v(20))
    e("s_add_u32 %s, %s, 1" % (s(t + 7), s(t + 7)))
    e("s_cmp_eq_u64 vcc, 0\ns_cbranch_scc1 XOK%d" % m)
    e("s_cmp_ge_u32 %s, 0x40000\ns_cbranch_scc1 XOK%d" % (s(t + 7), m))
    e("s_sleep %d" % opt("xslp", 4))
    for x in cond_lines([x for _, x in xloads(m)]): e(x)
    e("s_waitcnt vmcnt(0)\ns_branch XCHK%d" % m)
    e("XOK%d:" % m)
def xsum(e, m, nb):
    o = OWR[m] + 4 * nb
    for i in range(3):
        for k in range(4):
            idx = nb * 4 + k; gi, pos = idx // 7, idx % 7
            src = XR[m] + (i * 3 + gi) * 4 + pos // 2
            e(("v_and_b32 %s, 0xffff0000, %s" if pos & 1 else "v_lshlrev_b32 %s, 16, %s") % (v(20 + 4 * i + k), v(src)))
    for h in range(2):
        e("v_pk_add_f32 %s, %s, %s" % (v(o + 2 * h, 2), v(o + 2 * h, 2), v(20 + 2 * h, 2)))
        e("v_pk_add_f32 %s, %s, %s" % (v(24 + 2 * h, 2), v(24 + 2 * h, 2), v(28 + 2 * h, 2)))
    for h in range(2): e("v_pk_add_f32 %s, %s, %s" % (v(o + 2 * h, 2), v(o + 2 * h, 2), v(24 + 2 * h, 2)))

CV_G, CV_L, CV_X, LROW, L_FIN = 8, 11, 224, 336, 20480
def gen_t8(e):
    t = S_TMP
    mf = []
    NF = 20 * NSG
    for F in range(NF):
        sg, f = F // 20, F % 20
        m = 0 if sg < NSD else 1
        if opt("t8c", 1):
            j = f & 1; F0 = F - j
            d = v(t8_acc(m, f >> 1, j), 4)
            for i, half in enumerate((0, 1) if j == 0 else (1, 0)):
                mf.append("%s %s, %s, %s, %s" % (MF, d, t8_wf(F0 + half), t8_af(sg, half, j), "0" if (sg in (0, NSD) and i == 0) else d))
            continue
        for j in range(2):
            d = v(t8_acc(m, f % 10, j), 4)
            mf.append("%s %s, %s, %s, %s" % (MF, d, t8_wf(F), t8_af(sg, f // 10, j), "0" if (sg in (0, NSD) and f < 10) else d))
    G = Gaps(mf)
    DA = opt("t8d", 8)
    SIGS = opt("sigs", 2); CKS = opt("cks", 6); PLS = CKS - opt("polld", 1)
    bars = {}
    cur = 0
    for F in range(DA, NF):
        sg, f = F // 20, F % 20
        lo = 2 * (F - DA)
        if f == 0:
            if sg % 3 == 0:
                d = 61440 if sg % 6 == 3 else -61440
                G.place("v", ("v_add_u32 %s, %d, %s" % (v(TV_WR), d, v(TV_WR))) if d > 0 else ("v_subrev_u32 %s, %d, %s" % (v(TV_WR), -d, v(TV_WR))), cur - 1, cur - 1)
            pre = E(); post = E()
            if sg == CKS:
                stamp(pre, 11)
                pre("s_cmp_lg_u32 %s, 0\ns_cbranch_scc1 SPUN_O\ns_waitcnt SINCE{p3}" % s(S_WAVE))
                poll_spin(pre, False, s(K_FLG), 3, "O")
                stamp(post, 12)
            if sg == SIGS:
                post("s_cmp_lg_u32 %s, 0\ns_cbranch_scc1 NOSIG3" % s(S_WAVE))
                set_flag(post, 3)
                post("s_cmp_lg_u32 s2, 0\ns_cbranch_scc1 NOSIG3")
                post("s_add_u32 %s, %s, 0x10001\ns_mov_b64 exec, 1\nv_mov_b32 %s, %s\ns_mov_b32 %s, %d" % (s(t + 7), s(S_EPOCH), v(V_PL + 1), s(t + 7), s(t + 6), EP_OFF))
                post("buffer_store_dword %s, off, %s, %s sc1\ns_mov_b64 exec, -1" % (v(V_PL + 1), s(S_FL, 4), s(t + 6)))
                post("NOSIG3:")
                stamp(post, 10)
            if sg == PLS:
                post("s_cmp_lg_u32 %s, 0\ns_cbranch_scc1 NOPOLL3" % s(S_WAVE))
                post(poll_load(False, s(K_FLG)))
                post("NOPOLL3:\nMARK p3")
            b = G.place("b", "\n".join(cond_lines(pre.L) + ["s_barrier"] + cond_lines(post.L)), max(cur, lo - 1))
            lateA = NSD <= sg < NSD + opt("latea", 2)
            G.put(b, "s", "s_waitcnt WAITVM{D%d%s%s}" % (sg, "" if lateA else ",A%d" % sg, ",ost" if sg == SIGS else ""))
            if lateA: G.put(40 * sg - 1, "s", "s_waitcnt WAITVM{A%d}" % sg)
            bars[sg] = b; cur = b + 1
        cur = G.place("d", t8_read(F), max(cur, lo)) + 1
    qw = [(t8_w(sg), bars[sg - RW8 + 2] if sg >= RW8 else 0, sg) for sg in range(NPRE_G, NSG)]
    qa = [(t8_a(sg), max(40 * (sg - RA8 + 1) if sg >= RA8 else 0, bars[CKS] if sg >= NSD else 0), sg) for sg in range(NPRE_G, NSG)]
    DP = opt("dpub", 1)
    side = []
    if DP:
        side.append((publish(0), 40 * NSD + 8 + opt("dpd", 8)))
        side.append((xloads(0), 40 * opt("dld", 20)))
    if COAL:
        seq = []
        for i in range(3):
            seq += [("v", "v_add_u32 %s, %d, %s" % (v(CV_G + i), 64 * i, v(V_LANE))), ("v", "v_mul_u32_u24 %s, 6554, %s" % (v(36), v(CV_G + i))), ("v", "v_lshrrev_b32 %s, 16, %s" % (v(36), v(36))),
                    ("v", "v_lshlrev_b32 %s, 5, %s" % (v(CV_L + i), v(CV_G + i))), ("v", "v_mad_u32_u24 %s, %s, %d, %s" % (v(CV_L + i), v(36), LROW - 320, v(CV_L + i))),
                    ("v", "v_mul_u32_u24 %s, 1120, %s" % (v(36), v(36))), ("v", "v_lshl_add_u32 %s, %s, 4, %s" % (v(CV_G + i), v(CV_G + i), v(36))),
                    ("m", "buffer_load_dwordx4 %s, %s, %s, 0 offen ;#xx" % (v(CV_X + 4 * i, 4), v(CV_G + i), s(K_SX, 4)))]
        side.append((seq, 40 * opt("xld", 19)))
    else:
        side.append(([("m", "buffer_load_dwordx2 %s, %s, %s, 0 offen offset:%d ;#xx" % (v(KV_X + 2 * nb, 2), v(KV_XO), s(K_SX, 4), nb * 32)) for nb in range(5)], 40 * opt("xld", 19)))
    side.sort(key=lambda x: x[1])
    MG = opt("mg", 4)
    g = 0; lastm = -9
    while qw or qa:
        c = [x for x in (qw, qa) if x]
        c.sort(key=lambda x: (max(x[0][1], g), x[0][2]))
        seq, lo, _ = c[0].pop(0)
        g = max(g, lo)
        for k, x in seq:
            g = G.place(k, x, max(g + 1, lastm + MG if k == "m" else 0))
            if k == "m": lastm = g
    for seq, lo in side:
        g = lo; lastm = -99
        for k, x in seq:
            g = G.place(k, x, max(g + (0 if k == "v" else 1), lastm + (opt("smg", 24) if "xst" in x else 6) if k == "m" else 0))
            if k == "m": lastm = g
        if "xst0" in seq[-1][1]:
            G.va[g + 1].append("\n".join(own_write(0))); pubend = g + 1
    if DP: assert pubend < 40 * opt("dld", 20) - 40
    auto_lgkm(G, eager=opt("eag", 8))
    if VERBOSE: print("t8", G.pattern())
    for F in range(DA): e(t8_read(F))
    e("s_waitcnt lgkmcnt(0)")
    nm = 0
    for x in G.lines():
        if x.startswith("v_mfma"):
            if nm == 40 * NSD: stamp(e, 13)
            if STAMPS and opt("t8st", 0) and nm > 40 * NSD and (nm - 40 * NSD) % 160 == 0: stamp(e, 25 + (nm - 40 * NSD) // 160)
            nm += 1
        e(x)

def gen_tail(e0, head):
    e = E(); e.ext(head)
    T = V_T; t = S_TMP
    stamp(e, 8)
    Z = 240 + 8; C = 240 + 12
    for qb in range(4): e("v_add_f32 %s, %s, %s" % (v(V_L + 2 * qb), v(V_L + 2 * qb), v(V_L + 2 * qb + 1)))
    for qb in range(4): e("v_rcp_f32 %s, %s" % (v(T + 2 * qb), v(V_L + 2 * qb)))
    e("v_max3_f32 %s, %s, %s, %s" % (v(T + 8), v(V_L), v(V_L + 2), v(V_L + 4)))
    e("v_max_f32 %s, %s, %s" % (v(T + 8), v(T + 8), v(V_L + 6)))
    for qb in range(4): e("v_mov_b32 %s, %s" % (v(T + 2 * qb + 1), v(T + 2 * qb)))
    e("v_mul_f32 %s, %s, %s" % (v(T + 8), f2u(2.0 ** 64), v(T + 8)))
    e("v_mul_f32 %s, 0, %s" % (v(T + 8), v(T + 8)))
    for qb in range(4): e("v_fma_f32 %s, %s, 0, %s" % (v(T + 8), v(V_L + 2 * qb), v(T + 8)))
    for r in range(4): e("v_mov_b32 %s, 0" % v(Z + r))
    e("s_lshl_b32 %s, %s, 14" % (s(t + 2), s(S_HEAD)))
    W = T + 12
    wq = [x for sg in range(NPRE_X, NPRE_G) for x in t8_w(sg) + t8_a(sg)]
    def wsome(n):
        while wq and n > 0:
            k, x = wq.pop(0); n -= (k == "m")
            e(x + ("\ns_nop 0" if k == "s" else ""))
    wsome(opt("wpre", 0))
    for i in range(16):
        sl, qb = i // 4, i % 4
        d0 = 208 + 4 * (i % 4)
        for b in range(2):
            for r in range(4): e("v_accvgpr_read_b32 %s, %s" % (v(W + 4 * b + r), a(A_O + ((2 * sl + b) * 4 + qb) * 4 + r)))
        for h in range(4): e("v_pk_mul_f32 %s, %s, %s" % (v(W + 2 * h, 2), v(W + 2 * h, 2), v(T + 2 * qb, 2)))
        for h in range(4): e("v_cvt_pk_bf16_f32 %s, %s, %s" % (v(d0 + h), v(W + 2 * h), v(W + 2 * h + 1)))
        e("buffer_store_dwordx4 %s, %s, %s, %s offen offset:%d%s ;#ost" % (v(d0, 4), v(V_L16), s(S_AF, 4), s(t + 2), 1024 * qb, STFL))
        e("s_add_u32 %s, %s, 4096" % (s(t + 2), s(t + 2)) if qb == 3 else "s_nop 0")
        e("%s %s, %s, %s, %s" % (MF, v(C, 4), v(Z, 4), v(d0, 4), "0" if i == 0 else v(C, 4)))
        wsome(opt("wpg", 1))
    wsome(99)
    e("s_nop 7")
    e("v_cmp_u_f32 vcc, %s, %s" % (v(T + 8), v(C)))
    e("s_cmp_lg_u64 vcc, 0\ns_cselect_b32 %s, 1, 0" % s(t))
    e("v_mov_b32 %s, %s" % (v(W), s(t)))
    e("s_lshl_b32 %s, %s, 2\ns_add_u32 %s, %s, %d" % (s(t + 1), s(S_WAVE), s(t + 1), s(t + 1), L_MISC))
    e("v_mov_b32 %s, %s\nv_mov_b32 %s, %d" % (v(W + 1), s(t + 1), v(W + 2), L_MISC))
    e("ds_write_b32 %s, %s" % (v(W + 1), v(W)))
    e("s_waitcnt WAITVM{D0,A0} lgkmcnt(0)\ns_barrier")
    e("ds_read_b128 %s, %s" % (v(W + 4, 4), v(W + 2)))
    t8 = E(); gen_t8(t8)
    i0 = t8.L.index("s_waitcnt lgkmcnt(0)")
    e.ext(t8.L[:i0 + 1])
    e("v_or3_b32 %s, %s, %s, %s\nv_or_b32 %s, %s, %s\ns_nop 0" % (v(W + 4), v(W + 4), v(W + 5), v(W + 6), v(W + 4), v(W + 4), v(W + 7)))
    e("v_readfirstlane_b32 %s, %s" % (s(t), v(W + 4)))
    e("s_nop 3\ns_andn2_b32 %s, %s, %s" % (s(t), s(t), s(S_RETRY)))
    e("s_cbranch_scc1 ATT_RETRY")
    stamp(e, 9)
    e.ext(t8.L[i0 + 1:])
    stamp(e, 14)
    if REUSE:
        xcheck(e, 0, "s_waitcnt WAITVM{xr0,xx}")
        e("s_barrier")
        e("s_xor_b32 %s, %s, 0x80000000\nv_mov_b32 %s, %s" % (s(T_TAG), s(T_TAG), v(TV_TAG), s(T_TAG)))
    else:
        e("s_nop 6")
    for k, x in publish(1): e(x)
    stamp(e, 23)
    for x in own_write(1): e(x)
    e("v_add_u32 %s, %d, %s" % (v(52), L_OWN[0], v(TV_OR)))
    if REUSE:
        for i in range(3):
            e("s_and_b32 %s, s2, 3\ns_xor_b32 %s, %s, %d\ns_sub_u32 %s, %s, %s\ns_mul_i32 %s, %s, %d\ns_add_u32 %s, %s, %s\ns_add_u32 %s, %s, %d" % (
                s(t), s(t + 1), s(t), i + 1, s(t), s(t + 1), s(t), s(t), s(t), 3 * XPB, s(t), s(t), s(T_XO + 2), s(T_SL + i), s(t), i * XPB))
    e("s_waitcnt lgkmcnt(0)")
    e("s_barrier")
    for nb in range(5): e("ds_read_b128 %s, %s offset:%d" % (v(OWR[0] + 4 * nb, 4), v(52), nb * 1024))
    for nb in range(5): e("ds_read_b128 %s, %s offset:%d" % (v(OWR[1] + 4 * nb, 4), v(TV_OR), L_OWN[1] + nb * 1024))
    if REUSE: e("s_waitcnt lgkmcnt(0)")
    else: xcheck(e, 0, "s_waitcnt WAITVM{xr0,xx} lgkmcnt(0)")
    GG = 100; XU = 204
    e("v_mov_b32 %s, %s" % (v(36), f2u(1.0 / DSC)))
    for nb in range(5):
        d = OWR[0] + 4 * nb; gq = GG + 4 * nb
        xsum(e, 0, nb)
        for k in range(4): e("v_mul_f32 %s, %s, %s" % (v(gq + k), f2u(-math.log2(math.e) * DSC), v(d + k)))
        for k in range(4): e("v_exp_f32 %s, %s" % (v(gq + k), v(gq + k)))
        e("s_nop 0")
        for k in range(4): e("v_fma_f32 %s, %s, %s, %s" % (v(gq + k), v(gq + k), v(36), v(36)))
        for k in range(4): e("v_rcp_f32 %s, %s" % (v(gq + k), v(gq + k)))
        if not COAL:
            for h in range(2):
                e("v_lshlrev_b32 %s, 16, %s" % (v(XU + 4 * nb + 2 * h), v(KV_X + 2 * nb + h)))
                e("v_and_b32 %s, 0xffff0000, %s" % (v(XU + 4 * nb + 2 * h + 1), v(KV_X + 2 * nb + h)))
        else: e("s_nop 0")
        for k in range(4): e("v_mul_f32 %s, %s, %s" % (v(gq + k), v(gq + k), v(d + k)))
    if COAL:
        XU = 128
        for i in range(12):
            e("v_lshlrev_b32 %s, 16, %s\nv_and_b32 %s, 0xffff0000, %s" % (v(XU + 2 * i), v(CV_X + i), v(XU + 2 * i + 1), v(CV_X + i)))
        e("s_mul_i32 %s, %s, %d\ns_add_u32 %s, %s, %d" % (s(t), s(S_WAVE), 20 * LROW, s(t), s(t), L_FIN))
        e("v_and_b32 %s, 15, %s\nv_mul_u32_u24 %s, %d, %s\nv_lshrrev_b32 %s, 4, %s\nv_lshl_add_u32 %s, %s, 4, %s\nv_add_u32 %s, %s, %s" % (v(14), v(V_LANE), v(14), LROW, v(14), v(15), v(V_LANE), v(14), v(15), v(14), v(14), s(t), v(14)))
        for i in range(3): e("v_add_u32 %s, %s, %s" % (v(CV_L + i), s(t), v(CV_L + i)))
    stamp(e, 24)
    e("s_mov_b32 %s, 0" % s(t + 7))
    if REUSE:
        e("v_mov_b32 %s, %s\nv_writelane_b32 %s, %s, 0\nv_writelane_b32 %s, %s, 1\ns_movk_i32 %s, %d" % (v(31), s(T_SL + 2), v(31), s(T_SL), v(31), s(T_SL + 1), s(t + 3), 2048 + 1008 + 12))
    else:
        e("v_min_u32 %s, 2, %s\nv_mul_u32_u24 %s, %d, %s\ns_add_u32 %s, %s, %d" % (v(31), v(V_LANE), v(31), XPB, v(31), s(t + 3), s(T_XO + 2), 12 * XPB + 2048 + 1008 + 12))
    e("PROBE:")
    e("@buffer_load_dword %s, %s, %s, %s offen%s" % (v(30), v(31), s(T_XS, 4), s(t + 3), LDFL))
    e("s_waitcnt vmcnt(0)")
    e("v_xor_b32 %s, %s, %s\nv_cmp_lt_u32 vcc, 0xffff, %s" % (v(30), s(T_TAG), v(30), v(30)))
    e("s_add_u32 %s, %s, 1" % (s(t + 7), s(t + 7)))
    e("s_cmp_eq_u64 vcc, 0\ns_cbranch_scc1 PROBED")
    e("s_cmp_ge_u32 %s, 0x40000\ns_cbranch_scc1 PROBED" % s(t + 7))
    e("s_sleep %d\ns_branch PROBE" % opt("pslp", 12))
    e("PROBED:")
    for k, x in xloads(1): e(x)
    xcheck(e, 1, "s_waitcnt vmcnt(0)")
    stamp(e, 25)
    OFL = opt("ofl", "_sc1").replace("_", " ")
    for nb in range(5):
        o = OWR[1] + 4 * nb; gq = GG + 4 * nb; xu = XU + 4 * nb
        xsum(e, 1, nb)
        if COAL:
            for h in range(2): e("v_pk_mul_f32 %s, %s, %s" % (v(o + 2 * h, 2), v(o + 2 * h, 2), v(gq + 2 * h, 2)))
            e("ds_write_b128 %s, %s offset:%d" % (v(14), v(o, 4), nb * 64))
            continue
        for r in range(4): e("v_fma_f32 %s, %s, %s, %s" % (v(xu + r), v(o + r), v(gq + r), v(xu + r)))
        for h in range(2): e("v_cvt_pk_bf16_f32 %s, %s, %s" % (v(gq + h), v(xu + 2 * h), v(xu + 2 * h + 1)))
        e("buffer_store_dwordx2 %s, %s, %s, 0 offen offset:%d%s" % (v(gq, 2), v(KV_XO), s(K_SO, 4), nb * 32, OFL))
    if COAL:
        for i in range(3):
            for h in range(2): e("ds_read_b128 %s, %s offset:%d" % (v(64 + 8 * i + 4 * h, 4), v(CV_L + i), 16 * h))
        for i in range(3):
            e("s_waitcnt lgkmcnt(%d)" % (4 - 2 * i))
            for h in range(4): e("v_pk_add_f32 %s, %s, %s" % (v(64 + 8 * i + 2 * h, 2), v(64 + 8 * i + 2 * h, 2), v(XU + 8 * i + 2 * h, 2)))
            for h in range(4): e("v_cvt_pk_bf16_f32 %s, %s, %s" % (v(100 + 4 * i + h), v(64 + 8 * i + 2 * h), v(65 + 8 * i + 2 * h)))
            e("buffer_store_dwordx4 %s, %s, %s, 0 offen%s" % (v(100 + 4 * i, 4), v(CV_G + i), s(K_SO, 4), OFL))
    e0.ext([x.lstrip("@") for x in resolve_vm(e.L)])
    e = e0
    stamp(e, 15)
    if STAMPS: e("s_waitcnt vmcnt(0)")
    stamp(e, 16)
    stamp_fin(e)

def gen_kv_addr(e):
    T = V_T + 12; L = V_LANE
    e("v_and_b32 %s, 15, %s\nv_lshrrev_b32 %s, 4, %s\nv_xor_b32 %s, %s, %s" % (v(T), v(L), v(T + 1), v(L), v(T + 1), v(T + 1), v(T)))
    e("v_lshlrev_b32 %s, 8, %s\nv_lshl_add_u32 %s, %s, 4, %s" % (v(T), v(T), v(T), v(T + 1), v(T)))
    for sl in range(4): e("v_xor_b32 %s, %d, %s" % (v(V_KA + sl), sl * 64, v(T)))
    e("v_lshrrev_b32 %s, 2, %s\nv_and_b32 %s, 7, %s\nv_lshlrev_b32 %s, 8, %s\nv_lshl_add_u32 %s, %s, 5, %s" % (v(T), v(L), v(T + 1), v(T), v(T), v(T), v(T), v(T + 1), v(T)))
    e("v_and_b32 %s, 3, %s\nv_lshl_add_u32 %s, %s, 3, %s\nv_add_u32 %s, %d, %s" % (v(T + 1), v(L), v(T), v(T + 1), v(T), v(T), L_V, v(T)))
    for db in range(8): e("v_xor_b32 %s, %d, %s" % (v(V_VA + db), db * 32, v(T)))

def gen_retry(e):
    e("ATT_RETRY:")
    e("s_waitcnt vmcnt(0)\ns_mov_b32 %s, 1" % s(S_RETRY))
    gen_kv_addr(e)
    for qb in range(4): e("v_mov_b32 %s, 0xff800000" % v(V_NEGM + 4 * qb))
    e("s_mov_b32 %s, 0" % s(S_KVOFF))
    e("RETRY_LOOP:")
    e("s_barrier")
    e("s_add_u32 m0, %s, %d\ns_nop 0" % (s(S_M0K), L_K))
    e(kv_dma("K", 0)); e(kv_dma("K", 1))
    e("s_waitcnt vmcnt(0)\ns_barrier")
    for kb in range(2):
        for sl in range(4): e(k_read(kb, sl, 0))
    e("s_waitcnt lgkmcnt(0)")
    e.ext(qk_mfmas(0, czero=True))
    e("s_nop 7")
    for qb in range(4):
        b = Sreg(0, qb, 0); m = v(V_NEGM + 4 * qb)
        for k in range(4): e("v_max3_f32 %s, %s, %s, %s" % (m, m, v(b + 2 * k), v(b + 2 * k + 1)))
    e("s_add_u32 %s, %s, 8192\ns_cmp_lt_u32 %s, %d\ns_cbranch_scc1 RETRY_LOOP" % (s(S_KVOFF), s(S_KVOFF), s(S_KVOFF), 64 * 8192))
    e("s_barrier")
    kv_preload(e)
    e("s_barrier")
    for kb in range(2):
        for sl in range(4): e(k_read(kb, sl, 0))
    e.ext(ones_ops(V_T))
    for r in range(128): e("v_accvgpr_write_b32 %s, 0" % a(A_O + r))
    for r in range(8): e("v_mov_b32 %s, 0" % v(V_L + r))
    e("s_waitcnt lgkmcnt(0)")
    e.ext(qk_mfmas(0, czero=True))
    for kb in range(2):
        for sl in range(4): e(k_read(kb, sl, 8192))
    e("s_branch ATT_START")

def gen_common_setup(e):
    T = V_T + 12; L = V_LANE
    e("s_lshl2_add_u32 %s, %s, %s" % (s(S_TMP + 1), s(S_QT), s(S_WAVE)))
    e("s_mul_i32 %s, %s, %d" % (s(S_TMP), s(S_TMP + 1), NSLAB * 4096))
    srd(e, S_AF, ptr(11), s(S_TMP), NSLAB * 4096)
    e("s_mul_i32 %s, %s, %d\ns_add_u32 %s, %s, %d" % (s(S_TMP), s(S_TMP + 1), 20 * 4096, s(S_TMP), s(S_TMP), XF_OFF))
    srd(e, S_X, ptr(11), s(S_TMP), 20 * 4096)
    e("s_lshl_b32 %s, %s, 19" % (s(S_TMP), s(S_HEAD)))
    srd(e, S_K, ptr(1), s(S_TMP), 524288)
    srd(e, S_V, ptr(2), s(S_TMP), 524288 + 3 * 8192)
    e("s_sub_u32 %s, %s, %d\ns_subb_u32 %s, %s, 0" % (s(S_V), s(S_V), 3 * 8192, s(S_V + 1), s(S_V + 1)))
    e("v_bfe_u32 %s, %s, 2, 2\nv_lshrrev_b32 %s, 4, %s\nv_and_b32 %s, 3, %s" % (v(T), v(L), v(T + 1), v(L), v(T + 2), v(L)))
    e("v_lshlrev_b32 %s, 12, %s" % (v(T + 3), v(T + 1)))
    e("v_mul_u32_u24 %s, 320, %s\nv_add_u32 %s, %s, %s\nv_lshl_add_u32 %s, %s, 4, %s" % (v(T + 4), v(T), v(T + 4), v(T + 4), v(T + 3), v(T + 4), v(T + 2), v(T + 4)))
    for sl in range(4): e("v_xor_b32 %s, %d, %s" % (v(V_AQ + sl), sl * 64, v(T + 4)))
    e("v_lshl_add_u32 %s, %s, 7, %s\nv_lshl_add_u32 %s, %s, 3, %s" % (v(T + 4), v(T), v(T + 3), v(T + 4), v(T + 2), v(T + 4)))
    e("v_bfe_u32 %s, %s, 3, 2\nv_lshl_add_u32 %s, %s, 5, %s" % (v(T + 5), v(L), v(T + 4), v(T + 5), v(T + 4)))
    for u in range(4): e("v_xor_b32 %s, %d, %s" % (v(V_AG + u), u * 32, v(T + 4)))
    e("v_lshrrev_b32 %s, 4, %s\ns_lshl_b32 %s, %s, 3\nv_add_u32 %s, %s, %s\nv_and_b32 %s, 15, %s" % (v(T), v(L), s(S_TMP), s(S_WAVE), v(T), s(S_TMP), v(T), v(T + 1), v(L)))
    e("v_lshlrev_b32 %s, 8, %s" % (v(T + 2), v(T)))
    for i in range(2):
        e("v_add_u32 %s, %d, %s\nv_and_b32 %s, 15, %s\nv_xor_b32 %s, %s, %s\nv_lshl_add_u32 %s, %s, 4, %s" % (v(T + 3), 4 * i, v(T), v(T + 4), v(T + 3), v(T + 4), v(T + 4), v(T + 1), v(V_KD + i), v(T + 4), v(T + 2)))
        e("v_and_b32 %s, 7, %s\nv_lshlrev_b32 %s, 1, %s\nv_xor_b32 %s, %s, %s\nv_lshl_add_u32 %s, %s, 4, %s" % (v(T + 4), v(T + 3), v(T + 4), v(T + 4), v(T + 4), v(T + 4), v(T + 1), v(V_VD + i), v(T + 4), v(T + 2)))
    gen_kv_addr(e)

def gen_w_setup(e):
    T = V_T + 12; L = V_LANE
    e("v_lshrrev_b32 %s, 4, %s\nv_lshlrev_b32 %s, 2, %s\nv_and_b32 %s, 15, %s\nv_xor_b32 %s, %s, %s" % (v(T), v(L), v(T + 1), v(T), v(T + 2), v(L), v(T + 1), v(T + 1), v(T + 2)))
    e("v_lshlrev_b32 %s, 13, %s\nv_lshl_add_u32 %s, %s, 4, %s" % (v(T), v(T), v(V_WD), v(T + 1), v(T)))
    e("v_add_u32 %s, %d, %s" % (v(V_WD + 1), 4 * 8192 - 1024, v(V_WD)))
    e("v_lshrrev_b32 %s, 3, %s\nv_bfe_u32 %s, %s, 4, 1\nv_lshlrev_b32 %s, 1, %s" % (v(T), v(L), v(T + 1), v(L), v(T + 1), v(T + 1)))
    e("s_and_b32 %s, %s, 1\ns_lshl_b32 %s, %s, 2\nv_or_b32 %s, %s, %s" % (s(S_TMP), s(S_WAVE), s(S_TMP), s(S_TMP), v(T + 1), s(S_TMP), v(T + 1)))
    e("v_and_b32 %s, 7, %s\nv_xor_b32 %s, %s, %s" % (v(T + 2), v(L), v(T + 1), v(T + 1), v(T + 2)))
    e("v_mul_u32_u24 %s, 3456, %s\nv_lshl_add_u32 %s, %s, 4, %s" % (v(T), v(T), v(V_WD + 2), v(T + 1), v(T)))
    e("s_lshl_b32 %s, %s, 8\ns_sub_u32 %s, %d, %s" % (s(S_TMP), s(S_HEAD), s(S_TMP + 1), 640 * 8192, s(S_TMP)))
    srd(e, S_WQ, ptr(3), s(S_TMP), s(S_TMP + 1))
    for (d, p, sh) in ((S_WG, 6, 2048), (S_WU, 7, 3072)):
        e("s_lshl_b32 %s, %s, 7\ns_sub_u32 %s, %d, %s" % (s(S_TMP), s(S_FS), s(S_TMP + 1), 640 * 3456 + sh, s(S_TMP)))
        e("s_cmp_lt_u32 %s, 27\ns_cselect_b32 %s, %s, 0" % (s(S_FS), s(S_TMP + 1), s(S_TMP + 1)))
        srd(e, d, ptr(p), s(S_TMP), s(S_TMP + 1))
        e("s_sub_u32 %s, %s, %d\ns_subb_u32 %s, %s, 0" % (s(d), s(d), sh, s(d + 1), s(d + 1)))

def gen_kernel(e, name):
    T = V_T; L = V_LANE
    e(".text\n.globl %s\n.p2align 8\n.type %s,@function\n%s:" % (name, name, name))
    e("s_cmp_ge_u32 s2, 256\ns_cbranch_scc1 K_END")
    e("s_load_dwordx8 %s, s[0:1], 0\ns_load_dwordx8 %s, s[0:1], 32\ns_load_dwordx8 %s, s[0:1], 64" % (s(S_PTR, 8), s(S_PTR + 8, 8), s(S_PTR + 16, 8)))
    e("v_and_b32 %s, 63, v0\nv_lshrrev_b32 %s, 6, v0\nv_lshlrev_b32 %s, 4, %s\nv_readfirstlane_b32 %s, %s" % (v(L), v(T), v(V_L16), v(L), s(S_WAVE), v(T)))
    e("s_and_b32 %s, s2, 7\ns_lshr_b32 %s, s2, 3\ns_and_b32 %s, %s, 3\ns_lshr_b32 %s, %s, 2" % (s(S_TMP), s(S_TMP + 1), s(S_HL), s(S_TMP + 1), s(S_QT), s(S_TMP + 1)))
    e("s_lshl_b32 %s, %s, 2\ns_add_u32 %s, %s, %s" % (s(S_HEAD), s(S_TMP), s(S_HEAD), s(S_HEAD), s(S_HL)))
    e("s_lshl_b32 %s, %s, 3\ns_add_u32 %s, %s, %s" % (s(S_FS), s(S_HL), s(S_FS), s(S_FS), s(S_TMP)))
    e("s_mov_b32 %s, 0" % s(S_RETRY))
    e("s_lshl_b32 %s, %s, 12\ns_lshl_b32 %s, %s, 11" % (s(S_M0W), s(S_WAVE), s(S_M0K), s(S_WAVE)))
    if STAMPS: e("v_mov_b32 v0, -1\nv_mov_b32 v19, -1")
    stamp(e, 0)
    def codetouch(e):
        e("s_getpc_b64 %s\nCODE0:" % s(S_TMP + 4, 2))
        e("s_lshr_b32 %s, s2, 3\ns_lshl2_add_u32 %s, %s, %s\ns_mul_i32 %s, %s, 640" % (s(S_EVT + 6), s(S_EVT + 6), s(S_EVT + 6), s(S_WAVE), s(S_EVT + 6), s(S_EVT + 6)))
        e("v_min_u32 %s, 4, %s\nv_lshlrev_b32 %s, 7, %s\nv_add_u32 %s, %s, %s\nv_min_u32 %s, CODE1-CODE0-4, %s" % (v(8), v(L), v(8), v(8), v(8), s(S_EVT + 6), v(8), v(8), v(8)))
        e("global_load_dword %s, %s, %s" % (v(V_PL), v(8), s(S_TMP + 4, 2)))
    CPOS = opt("cpos", 0); WPOS = opt("wpos", 0)
    if CPOS == 0: codetouch(e)
    gen_ln_loads(e)
    e("s_add_u32 %s, %s, %d\ns_addc_u32 %s, %s, 0\ns_load_dword %s, %s, 0" % (s(S_TMP + 2), s(ptr(11)), FL_OFF + EP_OFF, s(S_TMP + 3), s(ptr(11) + 1), s(S_EPOCH), s(S_TMP + 2, 2)))
    ny = 0
    if CPOS == 1: codetouch(e); ny += 1
    gen_w_setup(e)
    e("s_lshl_b32 %s, %s, 16\ns_mul_i32 %s, %s, %d" % (s(S_WQOFF), s(S_WAVE), s(S_WGOFF), s(S_WAVE), 8 * 3456))
    WT = max(opt("wt", 6), 1)
    X = V_TC
    e("s_lshl2_add_u32 %s, %s, %s\ns_add_u32 %s, %s, %d" % (s(S_TMP), s(S_QT), s(S_WAVE), s(S_TMP), s(S_TMP), 32 * NI))
    e("v_lshrrev_b32 %s, 1, %s\nv_min_u32 %s, %d, %s\nv_lshlrev_b32 %s, 5, %s\nv_add_u32 %s, %s, %s" % (v(X), v(L), v(X), WT - 1, v(X), v(X), v(X), v(X), s(S_TMP), v(X)))
    e("v_and_b32 %s, 1, %s\nv_lshlrev_b32 %s, 7, %s\nv_lshl_add_u32 %s, %s, 13, %s\nv_mul_u32_u24 %s, 3456, %s" % (v(X + 1), v(L), v(X + 1), v(X + 1), v(X + 1), v(X), v(X + 1), v(X), v(X)))
    w0 = E(); wt = E()
    for sl in range(NI): w_slab(w0, sl, True)
    wt("buffer_load_dword %s, %s, %s, 0 offen" % (v(V_PL + 1), v(X + 1), s(S_WQ, 4)))
    wt("buffer_load_dword %s, %s, %s, 0 offen offset:2048" % (v(V_PL + 2), v(X), s(S_WG, 4)))
    wt("buffer_load_dword %s, %s, %s, 0 offen offset:3072" % (v(V_DUMP), v(X), s(S_WU, 4)))
    if opt("wt", 6) == 0: wt.L = []
    early = {0: w0.L + wt.L, 1: [], 2: w0.L, 3: w0.L}[WPOS]
    mid = {0: [], 1: w0.L + wt.L, 2: wt.L, 3: []}[WPOS]
    after = wt.L if WPOS == 3 else []
    e.ext(early); ny += sum(x.startswith("buffer") for x in early)
    LATE = opt("late", 2)
    srd(e, S_FL, ptr(11), FL_OFF, EP_OFF + 4096)
    e("s_lshl_b32 %s, %s, 5\ns_add_u32 %s, %s, %s\ns_lshl_b32 %s, %s, %d" % (s(S_MYFL), s(S_QT), s(S_MYFL), s(S_MYFL), s(S_HEAD), s(S_MYFL), s(S_MYFL), FSH))
    e("v_min_u32 %s, 31, %s\nv_lshlrev_b32 %s, %d, %s\ns_lshl_b32 %s, %s, %d" % (v(V_PL + 3), v(L), v(V_PL + 3), FSH, v(V_PL + 3), s(S_XOFF), s(S_QT), FSH + 5))
    def rest():
        gen_common_setup(e)
        for i in range(8): e("v_add_u32 %s, 65536, %s" % (v(V_AHI + i), v(V_AQ + i)))
    stamp(e, 1)
    gen_ln_compute(e, ny, mid)
    e.ext(after)
    stamp(e, 29)
    if LATE == 1: rest()
    e("s_mul_i32 %s, %s, 0x9e3779b1\ns_add_u32 %s, %s, 0x7f4a7c15" % (s(S_TAG), s(S_EPOCH), s(S_TAG), s(S_TAG)))
    e("s_waitcnt vmcnt(%d)\ns_barrier" % len(after))
    stamp(e, 18)
    e("s_cmp_lg_u32 %s, 0\ns_cbranch_scc1 NOFL1" % s(S_WAVE))
    set_flag(e, 1)
    e("NOFL1:")
    if LATE == 2: rest()
    e("s_cmp_lg_u32 %s, 0\ns_cbranch_scc1 SPUN_XN" % s(S_WAVE))
    e(poll_load(False, s(S_XOFF)))
    e("s_waitcnt vmcnt(0)")
    poll_spin(e, False, s(S_XOFF), 1, "XN")
    e("s_barrier")
    stamp(e, 2)
    e("s_cmp_ge_u32 %s, 27\ns_cbranch_scc1 LIGHT" % s(S_FS))
    gen_proj(e, True, "H")
    e("PROJ_DONE:")
    head = gen_attention(e)
    gen_tail(e, head)
    e("K_END:\ns_endpgm")
    gen_events(e)
    gen_retry(e)
    e("LIGHT:")
    gen_proj(e, False, "L")
    e("s_branch PROJ_DONE")
    e("CODE1:")
    e(kd(name))

def main():
    e = E()
    hdr = open("cdna_kernels/%s.s.ref" % NAME).read().split("; Override launch")[0]
    e.L += hdr.strip().split("\n")
    e("; @launch grid=(256,1,1) block=(256,1,1) lds=%d" % LDS_BYTES)
    e('.amdgcn_target "amdgcn-amd-amdhsa--gfx950"')
    gen_kernel(e, NAME + "_kernel")
    t = re.sub(r" ;#\w*", "", e.text())
    errs = [x for x in asmcheck.check(t, [NAME + "_kernel"]) if x.count("_load_dword v%d," % V_DUMP) != 2 and not any(y in x for y in poll_load(True).split("\n")[-4:])]
    if errs:
        print("\n".join(errs[:40])); print(len(errs), "problems")
    out = [x for x in sys.argv[1:] if x.endswith(".s")]
    open(out[0] if out else "cdna_kernels/%s.s" % NAME, "w").write(t)

if __name__ == "__main__":
    main()
```

```python
import sys, math, os, struct, re
from sched import Gaps, auto_lgkm
import asmcheck

NAME = "recurrent_scan__mha_block_cached__glu_gated_reglu__prompt"
MF = "v_mfma_f32_16x16x32_bf16"
OPT = dict(x.split("=") for x in sys.argv[1:] if "=" in x)
def opt(k, d): return type(d)(OPT.get(k, d))
VERBOSE = "-v" in sys.argv
STAMPS = "--stamps" in sys.argv
STFL = opt("stfl", " sc1").replace("_", " ")
LDFL = opt("ldfl", " sc1").replace("_", " ")

NSLAB = 182
QSC = math.log2(math.e) / math.sqrt(128.0)
DSC = 1.0 / (QSC * QSC)
WF_OFF = 0x1800000
WF_BYTES = 8 * NSLAB * 5120
XF_OFF = 0x2000000
XP_OFF = 0x2800000
MAXST = 3
FL_OFF = 0x2400000

class E:
    def __init__(self): self.L = []
    def __call__(self, s):
        for x in s.split("\n"):
            x = x.strip()
            if x: self.L.append(x)
    def ext(self, l): self.L += l
    def text(self): return "\n".join(self.L) + "\n"

def v(a, n=1): return "v%d" % a if n == 1 else "v[%d:%d]" % (a, a + n - 1)
def a(a_, n=1): return "a%d" % a_ if n == 1 else "a[%d:%d]" % (a_, a_ + n - 1)
def s(a_, n=1): return "s%d" % a_ if n == 1 else "s[%d:%d]" % (a_, a_ + n - 1)
def f2u(x): return "0x%08x" % struct.unpack("<I", struct.pack("<f", x))[0]

def kd(name, vgpr=512, acc=256):
    return """.section .rodata,"a"
.p2align 6
.amdhsa_kernel %s
  .amdhsa_next_free_vgpr %d
  .amdhsa_next_free_sgpr 102
  .amdhsa_accum_offset %d
  .amdhsa_group_segment_fixed_size 0
  .amdhsa_kernarg_size 96
  .amdhsa_user_sgpr_count 2
  .amdhsa_user_sgpr_kernarg_segment_ptr 1
  .amdhsa_system_sgpr_workgroup_id_x 1
.end_amdhsa_kernel
""" % (name, vgpr, acc)

def stamp(e, i):
    if not STAMPS: return
    e("s_waitcnt lgkmcnt(0)\ns_memtime s[98:99]\ns_memrealtime s[100:101]\ns_waitcnt lgkmcnt(0)")
    e("v_writelane_b32 v0, s98, %d\nv_writelane_b32 v19, s100, %d" % (i, i))
def stamp_fin(e):
    if not STAMPS: return
    if opt("echo", ""):
        i, j = [int(x) for x in opt("echo", "").split(".")]
        e("s_nop 1\nv_readlane_b32 s96, v19, %d\nv_readlane_b32 s97, v19, %d\nv_readlane_b32 s98, v19, 16\ns_nop 3\ns_sub_u32 s96, s97, s96\ns_min_u32 s96, s96, 20000\ns_cmp_%s_u32 %s, 27\ns_cselect_b32 s96, s96, 0" % (i, j, "ge" if opt("el", 0) else "lt", s(S_FS)))
        e("ECHO:\ns_sleep 1\ns_memrealtime s[100:101]\ns_waitcnt lgkmcnt(0)\ns_sub_u32 s97, s100, s98\ns_cmp_lt_u32 s97, s96\ns_cbranch_scc1 ECHO")
        return
    if opt("dbgout", -1) >= 0:
        e("s_cmp_lg_u32 s2, %d\ns_cbranch_scc1 NODBG\ns_cmp_lg_u32 %s, 0\ns_cbranch_scc1 NODBG" % (opt("dbgout", -1), s(S_WAVE)))
        e("v_readlane_b32 s98, v19, 0\ns_nop 3\nv_subrev_u32 v18, s98, v19\nv_lshlrev_b32 v20, 2, v1\nv_subrev_u32 v20, 4, v20")
        e("s_mov_b32 s96, %s\ns_mov_b32 s97, %s\ns_mov_b32 s98, 64\ns_mov_b32 s99, 0x20000" % (s(ptr(10)), s(ptr(10) + 1)))
        e("buffer_store_dword v18, v20, s[96:99], 0 offen\ns_waitcnt vmcnt(0)\nNODBG:")
        return
    if opt("wsb", 0): e("s_sub_u32 %s, %s, %d\ns_subb_u32 %s, %s, 0" % (s(ptr(11)), s(ptr(11)), opt("wsb", 0) << 20, s(ptr(11) + 1), s(ptr(11) + 1)))
    e("s_lshl_b32 s98, s2, 2\ns_add_u32 s98, s98, %s\ns_lshl_b32 s98, s98, 9\ns_add_u32 s98, s98, %d" % (s(S_WAVE), 0x4000000))
    e("s_add_u32 s96, %s, s98\ns_addc_u32 s97, %s, 0\ns_mov_b32 s98, 512\ns_mov_b32 s99, 0x20000" % (s(ptr(11)), s(ptr(11) + 1)))
    e("v_mov_b32 v18, v0\nv_lshlrev_b32 v20, 3, v1\nbuffer_store_dwordx2 v[18:19], v20, s[96:99], 0 offen\ns_waitcnt vmcnt(0)")

def srd(e, d, base, off_lo, nbytes):
    e("s_add_u32 %s, %s, %s" % (s(d), s(base), off_lo))
    e("s_addc_u32 %s, %s, 0" % (s(d + 1), s(base + 1)))
    e("s_mov_b32 %s, %s" % (s(d + 2), nbytes))
    e("s_mov_b32 %s, 0x20000" % s(d + 3))

def uncond(x): return False
def resolve_vm(lines):
    out = []; ops = []; waited = set(); lastm0 = None; done = 0; marks = {}
    for x in lines:
        mm = re.search(r"vmcnt\((\d+)\)", x)
        if mm and not x.startswith("@") and uncond(x): done = max(done, len(ops) - int(mm.group(1)))
        if x.startswith(("buffer_", "global_")) and len(ops) - done >= 58:
            out.append("s_waitcnt vmcnt(52)"); done = len(ops) - 52
        if x.startswith("s_add_u32 m0,"): lastm0 = x.split(",")[1].strip()
        if " lds" in x and ";#" in x:
            tg = x.split(";#")[1].strip()
            exp = s(S_M0W) if tg.startswith("w") else (s(S_TRM) if tg == "trs" else s(S_M0K))
            if tg.startswith("D"): exp = s(T_M0W)
            assert lastm0 == exp, "M0 collision at %s" % x
        if x.startswith("MARK"):
            marks[x.split()[1]] = len(ops); continue
        m = re.search(r"SINCE\{(\w+)\}", x)
        if m: x = x.replace(m.group(0), "vmcnt(%d)" % min(63, len(ops) - marks[m.group(1)]))
        m = re.search(r"WAITVM\{([^}]*)\}", x)
        if m:
            need = set(m.group(1).split(","))
            waited |= need
            idx = [i for i, t in enumerate(ops) if t in need]
            n = len(ops) - 1 - max(idx) if idx else 63
            done = max(done, len(ops) - min(n, 63))
            x = x.replace(m.group(0), "vmcnt(%d)" % min(n, 63))
        elif x.startswith(("buffer_", "global_")):
            t = x.split(";#")[1].strip() if ";#" in x else ""
            assert t not in waited, "op %s issued after its wait" % t
            ops.append(t)
        out.append(x)
    return out

S_FL = 4
S_X, S_WQ, S_WG, S_WU, S_K, S_V, S_AF, S_T, S_WF = 8, 12, 16, 20, 24, 28, 32, 36, 40
S_PTR = 44
S_WAVE, S_HEAD, S_QT, S_FS = 68, 69, 70, 71
S_XOFF, S_WQOFF, S_WGOFF, S_M0W = 72, 73, 74, 75
S_KVOFF, S_M0K, S_TOG, S_RETRY = 76, 77, 78, 79
S_TMP = 80
S_TRS, S_TRM, S_TRD, S_TRU = 88, 89, 90, 91
S_EPOCH, S_TAG, S_MYFL = 92, 93, 94
S_HL = 3
S_EVT = 85
EVTS = (32 + 10) * 8192
EVTL = (52 + 10) * 8192
EVT1 = (56 + 10) * 8192
EVTE = (62 + 10) * 8192
NWH = opt("nwh", 0)
S_LN = 84
def ptr(i): return S_PTR + 2 * i

L_K = 0
L_V = 65536
RW = 8
L_TR = 114688
L_MISC = 155648
LDS_BYTES = 163840

V_LANE = 1
V_L16 = 2
V_WD = 3
V_TRA = 6
V_AQ = 10
V_AG = 14
V_KA = 20
V_VA = 24
V_KD = 32
V_VD = 34
V_DUMP = 18
V_SIDX = 7
NL = 2
VSH = 4
NOE = 4
V_PW = 5
PWARM = opt("pw", 0)
V_TC = 62
V_PL = 36
V_T = 40
V_ACCQ = 64
V_ACCG = 192
V_Q = 64
V_S = 128
V_P = 192
V_NEGM = 224
V_L = 240
A_ACCU = 0
XD = 8
A_X = 64
A_W = 192
A_TR = 208
V_ONE = 56
A_O = 64
A_KF = 224
A_KF1 = 192
A_VF = 0
V_AHI = 44

def qacc(blk, qb): return (V_S if blk & 1 else V_Q) + ((blk >> 1) * 4 + qb) * 4
def wslot(sl): return (sl + 4) % RW
def accreg(blk, qb):
    if blk < 8: return v(qacc(blk, qb), 4)
    if blk < 12: return v(V_ACCG + ((blk - 8) * 4 + qb) * 4, 4)
    return a(A_ACCU + ((blk - 12) * 4 + qb) * 4, 4)

def w_read(dst, blk, j, rel):
    if blk < 8:
        ar = V_AQ + (blk >> 1); off = rel + j * 1024 + (blk & 1) * 8
    else:
        ar = V_AG + ((blk - 8) & 3); off = rel + 2048 + (1024 if blk >= 12 else 0) + j * 512
    if rel >= 65536: ar += V_AHI - V_AQ; off -= 65536
    assert 0 <= off < 65536
    return "ds_read_b64_tr_b16 %s, %s offset:%d" % (a(dst + 2 * j, 2), v(ar), off)

def w_dma(heavy, tag):
    l = ["buffer_load_dwordx4 %s, %s, %s offen lds ;#%s" % (v(V_WD), s(S_WQ, 4), s(S_WQOFF), tag),
         "buffer_load_dwordx4 %s, %s, %s offen offset:1024 lds ;#%s" % (v(V_WD + 1), s(S_WQ, 4), s(S_WQOFF), tag)]
    if heavy:
        l += ["buffer_load_dwordx4 %s, %s, %s offen offset:2048 lds ;#%s" % (v(V_WD + 2), s(S_WG, 4), s(S_WGOFF), tag),
              "buffer_load_dwordx4 %s, %s, %s offen offset:3072 lds ;#%s" % (v(V_WD + 2), s(S_WU, 4), s(S_WGOFF), tag)]
    return l

def x_load(sl, qb):
    return "buffer_load_dwordx4 %s, %s, %s, %s offen offset:%d%s ;#x%d" % (a(A_X + ((sl % XD) * 4 + qb) * 4, 4), v(V_L16), s(S_X, 4), s(S_XOFF), qb * 1024, LDFL, sl)

def kv_dma(which, i, tag=""):
    vo = (V_KD if which == "K" else V_VD) + i
    return "buffer_load_dwordx4 %s, %s, %s offen offset:%d%s lds ;#%s" % (v(vo), s(S_K if which == "K" else S_V, 4), s(S_KVOFF), 1024 * i, opt("kvfl", "").replace("_", " "), tag)

FSH = opt("fsh", 2)
EP_OFF = 65536
def set_flag(e, stage):
    if opt("fwide", 0):
        n = (1 << FSH) // 8
        e("s_add_u32 %s, %s, %d\ns_mov_b64 exec, 0x%x\nv_mov_b32 %s, %s\nv_mov_b32 %s, %s\nv_lshlrev_b32 %s, 3, %s" % (s(S_TMP + 7), s(S_TAG), stage, (1 << n) - 1, v(V_PL), s(S_TMP + 7), v(V_PL + 1), s(S_TMP + 7), v(V_PL + 2), v(V_LANE)))
        e("buffer_store_dwordx2 %s, %s, %s, %s offen sc1" % (v(V_PL, 2), v(V_PL + 2), s(S_FL, 4), s(S_MYFL)))
    else:
        e("s_add_u32 %s, %s, %d\ns_mov_b64 exec, 1\nv_mov_b32 %s, %s" % (s(S_TMP + 7), s(S_TAG), stage, v(V_PL), s(S_TMP + 7)))
        e("buffer_store_dword %s, off, %s, %s sc1" % (v(V_PL), s(S_FL, 4), s(S_MYFL)))
    e("s_mov_b64 exec, -1")

def poll_load(allq, qoff=None):
    if allq and FSH > 2:
        return "v_lshlrev_b32 %s, %d, %s\n" % (v(V_DUMP), FSH + 2, v(V_LANE)) + "\n".join("buffer_load_dword %s, %s, %s, 0 offen offset:%d sc1" % (v(V_PL + i), v(V_DUMP), s(S_FL, 4), i << FSH) for i in range(4))
    if allq: return "buffer_load_dwordx4 %s, %s, %s, 0 offen sc1" % (v(V_PL, 4), v(V_L16), s(S_FL, 4))
    return "buffer_load_dword %s, %s, %s, %s offen sc1" % (v(V_PL), v(V_PL + 3), s(S_FL, 4), qoff)

def poll_spin(e, allq, qoff, stage, tag):
    e("s_mov_b32 %s, 0\ns_add_u32 %s, %s, %d" % (s(S_TMP + 7), s(S_TMP + 6), s(S_TAG), stage))
    e("SPIN_%s:" % tag)
    n = 4 if allq else 1
    for i in range(n): e("v_subrev_u32 %s, %s, %s" % (v(V_PL + i), s(S_TMP + 6), v(V_PL + i)))
    if allq: e("v_max3_u32 %s, %s, %s, %s\nv_max_u32 %s, %s, %s" % (v(V_PL), v(V_PL), v(V_PL + 1), v(V_PL + 2), v(V_PL), v(V_PL), v(V_PL + 3)))
    e("v_cmp_lt_u32 vcc, %d, %s" % (MAXST - stage, v(V_PL)))
    e("s_add_u32 %s, %s, 1" % (s(S_TMP + 7), s(S_TMP + 7)))
    e("s_cmp_eq_u64 vcc, 0\ns_cbranch_scc1 SPUN_%s" % tag)
    e("s_cmp_ge_u32 %s, 0x40000\ns_cbranch_scc1 SPUN_%s" % (s(S_TMP + 7), tag))
    e("s_sleep %d" % opt("slp", 2))
    e(poll_load(allq, qoff))
    e("s_waitcnt vmcnt(0)\ns_branch SPIN_%s" % tag)
    e("SPUN_%s:" % tag)

def zero_acc(e, heavy=True):
    for r in range(V_ACCQ, 256): e("v_mov_b32 %s, 0" % v(r))
    for r in range(A_ACCU, A_ACCU + 64): e("v_accvgpr_write_b32 %s, 0" % a(r))

NI = opt("ni", 1)

def gen_ln_loads(e):
    T = V_T; L = V_LANE
    R = V_ACCQ
    e("v_bfe_u32 %s, %s, 1, 3\nv_lshrrev_b32 %s, 4, %s\nv_and_b32 %s, 1, %s" % (v(T), v(L), v(T + 1), v(L), v(T + 2), v(L)))
    e("v_mul_u32_u24 %s, 1280, %s\nv_lshl_add_u32 %s, %s, 4, %s\nv_lshl_add_u32 %s, %s, 3, %s" % (v(T + 3), v(T), v(T + 3), v(T + 1), v(T + 3), v(T + 3), v(T + 2), v(T + 3)))
    e("s_lshl_b32 %s, %s, 5\ns_add_u32 %s, %s, %s\ns_mul_i32 %s, %s, %d\ns_mul_i32 %s, %s, 320" % (s(S_TMP), s(S_QT), s(S_TMP), s(S_TMP), s(S_HEAD), s(S_TMP), s(S_TMP), 8 * 1280, s(S_TMP + 1), s(S_WAVE)))
    e("s_waitcnt lgkmcnt(0)")
    if opt("wsb", 0): e("s_add_u32 %s, %s, %d\ns_addc_u32 %s, %s, 0" % (s(ptr(11)), s(ptr(11)), opt("wsb", 0) << 20, s(ptr(11) + 1), s(ptr(11) + 1)))
    srd(e, S_T, ptr(0), s(S_TMP), 8 * 1280)
    for i in range(5): e("buffer_load_dwordx2 %s, %s, %s, %s offen offset:%d" % (v(R + 2 * i, 2), v(T + 3), s(S_T, 4), s(S_TMP + 1), 64 * i))

def gen_ln_compute(e, nyounger, mid=()):
    T = V_T; L = V_LANE
    R = V_ACCQ; U = R + 10
    e("v_and_b32 %s, 15, %s\nv_lshlrev_b32 %s, 3, %s\nv_lshl_add_u32 %s, %s, 8, %s" % (v(T + 3), v(L), v(T + 3), v(T + 3), v(T + 3), v(T + 1), v(T + 3)))
    e("s_lshr_b32 %s, %s, 3\ns_lshl2_add_u32 %s, %s, %s\ns_mul_i32 %s, %s, %d" % (s(S_TMP), s(S_HEAD), s(S_TMP), s(S_QT), s(S_TMP), s(S_TMP), s(S_TMP), 20 * 4096))
    e("s_bfe_u32 %s, %s, 0x20001\ns_lshl_b32 %s, %s, 10\ns_add_u32 %s, %s, %s" % (s(S_TMP + 1), s(S_HEAD), s(S_TMP + 1), s(S_TMP + 1), s(S_TMP), s(S_TMP), s(S_TMP + 1)))
    e("s_and_b32 %s, %s, 1\ns_lshl_b32 %s, %s, 7\ns_add_u32 %s, %s, %s\ns_add_u32 %s, %s, %d" % (s(S_TMP + 1), s(S_HEAD), s(S_TMP + 1), s(S_TMP + 1), s(S_TMP), s(S_TMP), s(S_TMP + 1), s(S_TMP), s(S_TMP), XF_OFF))
    srd(e, S_LN, ptr(11), s(S_TMP), 20 * 4096)
    e("s_mul_i32 %s, %s, %d" % (s(S_TMP), s(S_WAVE), 5 * 4096))
    e("v_lshlrev_b32 %s, 5, %s\nv_add_u32 %s, %d, %s\ns_lshl_b32 %s, %s, 3\nv_add_u32 %s, %s, %s" % (v(T + 4), v(T), v(T + 4), L_MISC, v(T + 4), s(S_TMP + 1), s(S_WAVE), v(T + 5), s(S_TMP + 1), v(T + 4)))
    A0 = T + 6; M = T + 8
    e("s_waitcnt vmcnt(%d)" % nyounger)
    stamp(e, 17)
    e.ext(list(mid))
    for d in range(10): e("v_lshlrev_b32 %s, 16, %s\nv_and_b32 %s, 0xffff0000, %s" % (v(U + 2 * d), v(R + d), v(U + 2 * d + 1), v(R + d)))
    e("v_pk_add_f32 %s, %s, %s\nv_pk_add_f32 %s, %s, %s" % (v(A0, 2), v(U, 2), v(U + 2, 2), v(M, 2), v(U + 4, 2), v(U + 6, 2)))
    for d in range(4, 10): e("v_pk_add_f32 %s, %s, %s" % (v((A0, M)[d & 1], 2), v((A0, M)[d & 1], 2), v(U + 2 * d, 2)))
    def reduce(dst):
        e("v_pk_add_f32 %s, %s, %s" % (v(A0, 2), v(A0, 2), v(M, 2) if dst == M else v(T + 10, 2)))
        e("v_add_f32 %s, %s, %s\ns_nop 1" % (v(A0), v(A0), v(A0 + 1)))
        e("v_add_f32_dpp %s, %s, %s quad_perm:[1,0,3,2] row_mask:0xf bank_mask:0xf" % (v(A0), v(A0), v(A0)))
        for sw in ("v_permlane32_swap_b32", "v_permlane16_swap_b32"):
            e("v_mov_b32 %s, %s\ns_nop 1\n%s %s, %s\nv_add_f32 %s, %s, %s" % (v(A0 + 1), v(A0), sw, v(A0), v(A0 + 1), v(A0), v(A0), v(A0 + 1)))
    reduce(M)
    e("v_mul_f32 %s, %s, %s\nv_mul_f32 %s, %s, %s" % (v(M), f2u(-1.0 / 160), v(A0), v(M + 1), f2u(-1.0 / 160), v(A0)))
    for d in range(10): e("v_pk_add_f32 %s, %s, %s" % (v(U + 2 * d, 2), v(U + 2 * d, 2), v(M, 2)))
    e("v_pk_mul_f32 %s, %s, %s\nv_pk_mul_f32 %s, %s, %s" % (v(A0, 2), v(U, 2), v(U, 2), v(T + 10, 2), v(U + 2, 2), v(U + 2, 2)))
    for d in range(2, 10): e("v_pk_fma_f32 %s, %s, %s, %s" % (v((A0, T + 10)[d & 1], 2), v(U + 2 * d, 2), v(U + 2 * d, 2), v((A0, T + 10)[d & 1], 2)))
    reduce(None)
    e("v_mov_b32 %s, %s" % (v(M + 1), v(A0)))
    e("ds_write_b64 %s, %s\ns_waitcnt lgkmcnt(0)\ns_barrier" % (v(T + 5), v(M, 2)))
    X = T + 12
    e("ds_read_b128 %s, %s\nds_read_b128 %s, %s offset:16\ns_waitcnt lgkmcnt(0)" % (v(X, 4), v(T + 4), v(X + 4, 4), v(T + 4)))
    e("v_pk_add_f32 %s, %s, %s\nv_pk_add_f32 %s, %s, %s\nv_pk_add_f32 %s, %s, %s" % (v(A0, 2), v(X, 2), v(X + 2, 2), v(T + 10, 2), v(X + 4, 2), v(X + 6, 2), v(A0, 2), v(A0, 2), v(T + 10, 2)))
    e("v_mul_f32 %s, 0.25, %s" % (v(A0), v(A0)) if False else "v_mul_f32 %s, %s, %s" % (v(A0), f2u(0.25), v(A0)))
    for k in range(4): e("v_sub_f32 %s, %s, %s" % (v(X + 2 * k), v(X + 2 * k), v(A0)))
    e("v_mul_f32 %s, %s, %s" % (v(X + 1), v(X), v(X)))
    for k in range(1, 4): e("v_fmac_f32 %s, %s, %s" % (v(X + 1), v(X + 2 * k), v(X + 2 * k)))
    e("v_fmac_f32 %s, %s, %s" % (v(A0 + 1), f2u(160.0), v(X + 1)))
    e("v_mov_b32 %s, %s\nv_fmac_f32 %s, %s, %s\nv_rsq_f32 %s, %s" % (v(X), f2u(1e-5 * DSC), v(X), f2u(DSC / 640), v(A0 + 1), v(X), v(X)))
    e("v_sub_f32 %s, %s, %s" % (v(M), v(A0), v(M)))
    e("v_mov_b32 %s, %s\nv_mul_f32 %s, %s, %s\nv_mul_f32 %s, %s, %s" % (v(X + 1), v(X), v(M + 1), v(M), v(X), v(M), v(M), v(X)))
    for i in range(5):
        for d in (2 * i, 2 * i + 1): e("v_pk_fma_f32 %s, %s, %s, %s" % (v(U + 2 * d, 2), v(U + 2 * d, 2), v(X, 2), v(M, 2)))
        for d in (2 * i, 2 * i + 1): e("v_cvt_pk_bf16_f32 %s, %s, %s" % (v(R + d), v(U + 2 * d), v(U + 2 * d + 1)))
        e("buffer_store_dwordx2 %s, %s, %s, %s offen%s" % (v(R + 2 * i, 2), v(T + 3), s(S_LN, 4), s(S_TMP), STFL))
        if i < 4: e("s_add_u32 %s, %s, 4096" % (s(S_TMP), s(S_TMP)))

def w_slab(e, sl, heavy):
    e("s_add_u32 m0, %s, %d\ns_nop 0" % (s(S_M0W), wslot(sl) * 16384))
    e.ext(w_dma(heavy, "w%d" % sl))
    e("s_add_u32 %s, %s, %d\ns_add_u32 %s, %s, %d" % (s(S_WQOFF), s(S_WQOFF), 32 * 8192, s(S_WGOFF), s(S_WGOFF), 32 * 3456))

def ones_ops(tmp):
    L = V_LANE
    return ["v_lshrrev_b32 %s, 4, %s" % (v(tmp), v(L)), "v_xor_b32 %s, %s, %s" % (v(tmp), v(tmp), v(L)), "v_bfe_u32 %s, %s, 1, 1" % (v(tmp), v(tmp)),
            "v_subrev_u32 %s, 1, %s" % (v(tmp), v(tmp)), "v_and_b32 %s, 0x3f803f80, %s" % (v(tmp), v(tmp))] + \
           ["v_mov_b32 %s, %s" % (v(V_ONE + r), v(tmp)) for r in range(4)] + \
           ["v_and_b32 %s, 1, %s" % (v(V_SIDX), v(L)), "v_mul_u32_u24 %s, 0xaaaa, %s" % (v(V_SIDX), v(V_SIDX)), "v_or_b32 %s, 0x4444, %s" % (v(V_SIDX), v(V_SIDX))]

def gen_proj(e0, heavy, tag):
    e = E()
    T = V_T; L = V_LANE
    NS = opt("ns", 4) if heavy else 0
    GU = [b for fb in range(4) for b in (12 + fb, 8 + fb)]
    PC0 = opt("pc0", 2) if heavy else 20
    def grp(lo, hi):
        out = []; sl = lo
        while sl < hi:
            if sl >= PC0 and sl + 1 < hi: out.append((sl, sl + 1)); sl += 2
            else: out.append((sl,)); sl += 1
        return out
    units = []
    for ss in grp(0, 20 - NS): units.append((ss, list(range(8)) + (GU if heavy else [])))
    for part in ((GU[:4], GU[4:]) if opt("split", 1) else (GU,)):
        for ss in grp(20 - NS, 20): units.append((ss, part))
    for ss in grp(20 - NS, 20): units.append((ss, list(range(8))))
    order = []; mf = []; firstuse = []
    for ss, bl in units:
        for b in bl:
            F0 = len(order)
            for sl in ss: order.append((sl, b)); firstuse.append(4 * F0)
            for qb in (range(4) if (not opt("psn", 1) or (F0 // len(ss)) % 2 == 0) else range(3, -1, -1)):
                idx = list(range(len(ss)))
                if qb & 1: idx.reverse()
                for i in idx:
                    sl = ss[i]
                    c = "0" if (0 in ss and i == idx[0]) else accreg(b, qb)
                    mf.append("%s %s, %s, %s, %s" % (MF, accreg(b, qb), a(A_W + 4 * ((F0 + i) % 8), 4), a(A_X + ((sl % XD) * 4 + qb) * 4, 4), c))
    NF = len(order)
    NP = len(mf)
    for sl in range(4):
        for kb in range(2):
            for qb in range(4):
                d = v(Sreg(0, qb, kb), 4)
                mf.append("%s %s, %s, %s, %s" % (MF, d, a(A_KF + (kb * 4 + sl) * 4, 4), v(V_Q + (sl * 4 + qb) * 4, 4), d if sl else "0"))
    G = Gaps(mf)
    ustart = []; n = 0
    for ss, bl in units: ustart.append(n); n += len(bl) * len(ss)
    lastF = {}; lastblk = {}; firstF = {}
    for u, (ss, bl) in enumerate(units):
        for k, sl in enumerate(ss):
            lastF[sl] = ustart[u] + len(bl) * len(ss) - 1
            firstF.setdefault(sl, ustart[u] + k * len(bl))
        for i, b in enumerate(bl): lastblk[b] = ustart[u] + (i + 1) * len(ss) - 1
    G1 = lambda sl: 4 * firstF[sl]
    DA = opt("pda", 6)
    rd = lambda F, j: w_read(A_W + 4 * (F % 8), order[F][1], j, wslot(order[F][0]) * 16384)
    pre_reads = [rd(F, j) for F in range(DA) for j in range(2)]
    TRW = opt("trw", 15) if heavy else 14
    bars = {}; cur = 0; seen = set(units[0][0])
    def barrier(u, lo, need):
        bb = G.place("b", "s_barrier", lo)
        G.put(bb, "s", "s_waitcnt WAITVM{%s}" % ",".join(need))
        bars[u] = bb
        return bb + 1
    for F in range(DA, NF):
        lo = 4 * (F - DA)
        if F in ustart:
            u = ustart.index(F)
            need = [k + str(sl) for sl in units[u][0] if sl not in seen for k in "xw"]
            seen |= set(units[u][0])
            if need or units[u][1][0] == 0: cur = barrier(u, max(cur, lo - 1), need or ["none"])
        if opt("midb", 0) and (F - DA - 1) in ustart and len(units[ustart.index(F - DA - 1)][0]) == 2 and units[ustart.index(F - DA - 1)][1][0] == 0:
            cur = barrier(1000 + F, max(cur, lo - 1), ["none"])
        for j in range(2): cur = G.place("d", rd(F, j), max(cur, lo + 2 * j), firstuse[F] - 6) + 1
    NU = len(units)
    cur = barrier(NU, cur + 1, ["K0", "K1"])
    kord = [(kb, sl) for sl in range(4) for kb in range(2)]
    for kb, sl in kord: cur = G.place("d", k_read(kb, sl, 0), cur) + 1
    barrier(NU + 1, max(cur + 5, NP), ["none"])
    kpost = []
    for i, (kb, sl) in enumerate(kord):
        lo = NP + 4 * i + 3
        try: cur = G.place("d", k_read(kb, sl, 8192), max(cur, lo)) + 1
        except RuntimeError: kpost.append(k_read(kb, sl, 8192))
    freeg = lambda sl: min(x for x in bars.values() if x >= 4 * lastF[sl])
    def wseq(sl):
        return [("s", "s_add_u32 m0, %s, %d" % (s(S_M0W), wslot(sl) * 16384))] + [("m", x) for x in w_dma(heavy, "w%d" % sl)] + \
               [("s", "s_add_u32 %s, %s, %d\ns_add_u32 %s, %s, %d" % (s(S_WQOFF), s(S_WQOFF), 32 * 8192, s(S_WGOFF), s(S_WGOFF), 32 * 3456))]
    def xseq(sl): return [("m", x_load(sl, qb)) for qb in range(4)] + [("s", "s_add_u32 %s, %s, 4096" % (s(S_XOFF), s(S_XOFF)))]
    def kvseq(which, i):
        return [("s", "s_add_u32 m0, %s, %d\ns_mov_b32 %s, %d" % (s(S_M0K), (L_K if which == "K" else L_V) + i * 8192, s(S_KVOFF), (i + (VSH if which == "V" else 0)) * 8192))] + \
               [("m", kv_dma(which, k, "%s%d" % (which, i))) for k in range(2)]
    NX0 = opt("nx0", 2)
    e("s_mov_b32 %s, 0" % s(S_XOFF))
    q = []
    for sl in range(20):
        for kind in "wx":
            if kind == "w" and sl < NI: continue
            seq = wseq(sl) if kind == "w" else xseq(sl)
            if sl < NX0:
                for k, x in seq: e(x + ("\ns_nop 0" if " m0," in x else ""))
            else:
                lo = 0 if sl < RW else (freeg(sl - RW) if kind == "w" else 4 * lastF[sl - XD] + 3)
                q.append((lo, seq))
    late = {12: [("K", 0), ("K", 1)], 13: [("K", 2), ("K", 3)], 14: [("K", 4), ("K", 5)], 15: [("K", 6), ("K", 7)],
            16: [("V", 0), ("V", 1)], 17: [("V", 2), ("V", 3)], 18: [("V", 4)]}
    side = []
    for sl in range(12, 19):
        for which, i in late[sl]: side.append((freeg(sl), kvseq(which, i)))
    WT = opt("wt", 6)
    if WT:
        for k, sl in enumerate([int(x) for x in opt("wts", "0.4.8").split(".")], 1):
            seq = [("s", "s_mov_b32 %s, %d" % (s(S_TMP), k * WT * 32 * 8192)), ("m", "buffer_load_dword %s, %s, %s, %s offen" % (v(V_DUMP), v(V_TC + 1), s(S_WQ, 4), s(S_TMP)))]
            if heavy:
                seq += [("s", "s_mov_b32 %s, %d" % (s(S_TMP), k * WT * 32 * 3456)),
                        ("m", "buffer_load_dword %s, %s, %s, %s offen offset:2048" % (v(V_DUMP), v(V_TC), s(S_WG, 4), s(S_TMP))),
                        ("m", "buffer_load_dword %s, %s, %s, %s offen offset:3072" % (v(V_DUMP), v(V_TC), s(S_WU, 4), s(S_TMP)))]
            side.append((G1(sl) + opt("wtg", 30), seq))
    t0 = v(V_TRA + 3)
    if opt("kvt", 12): side.append((G1(opt("kvt", 12)), [("v", "v_min_u32 %s, 15, %s" % (t0, v(L))), ("v", "v_lshlrev_b32 %s, 7, %s" % (t0, t0)),
               ("s", "s_lshl2_add_u32 %s, %s, %s\ns_lshl_b32 %s, %s, 11" % (s(S_TMP), s(S_QT), s(S_WAVE), s(S_TMP), s(S_TMP))),
               ("m", "buffer_load_dword %s, %s, %s, %s offen" % (v(V_DUMP), t0, s(S_K, 4), s(S_TMP))),
               ("s", "s_add_u32 %s, %s, %d" % (s(S_TMP), s(S_TMP), VSH * 8192)),
               ("m", "buffer_load_dword %s, %s, %s, %s offen" % (v(V_DUMP), t0, s(S_V, 4), s(S_TMP)))]))
    side.sort(key=lambda t: t[0])
    MG = opt("pmg", 5) if heavy else 2
    g = 0; lastm = -9; vpost = []
    trlast = 0; lastload = 0
    while q or side:
        if side and (not q or side[0][0] <= max(g, q[0][0])): lo, seq = side.pop(0)
        else: lo, seq = q.pop(0)
        g = max(g, lo)
        for k, x in seq:
            if not vpost:
                try:
                    g = G.place(k, x, max(g + 1, lastm + (MG if g > opt("pmg0", 150) or not heavy else 4) if k == "m" else 0))
                    if k == "m": lastm = g
                    if re.search(r";#[xw]\d|;#trs", x) or "v%d," % V_DUMP in x: lastload = g
                    continue
                except RuntimeError: pass
            vpost.append(x + ("\ns_nop 0" if " m0," in x else ""))
    auto_lgkm(G, eager=opt("peag", 8))
    g = lastload + 2
    for x in gen_tail_setup():
        g = G.place("v" if x.startswith("v_") else "s", x, g + 1)
    setup_end = g
    g = max(g, trlast)
    for x in gen_tail_setup2(): g = G.place("v" if x.startswith("v_") else "s", x, g + 1)
    HZ = 8
    post = []
    def lay(items):
        g = 0; out = []
        for lo, k, x, hi in items:
            if not out:
                try:
                    g = G.place(k, x, max(g + (0 if k == "v" else 1), lo), hi, force=(hi is not None)); continue
                except RuntimeError: pass
            assert hi is None
            out.append(x)
        return out
    its = []
    for sl in range(4):
        for qb in range(4):
            d0 = V_Q + (sl * 4 + qb) * 4
            lo = 4 * lastblk[2 * sl + 1] + 3 + HZ
            hi = NP - 3 if sl < 2 else NP + 8 * sl - 3
            for b in range(2):
                g0 = qacc(2 * sl + b, qb)
                for h in range(2): its.append((min(lo, hi), "v", "v_cvt_pk_bf16_f32 %s, %s, %s" % (v(d0 + 2 * b + h), v(g0 + 2 * h), v(g0 + 2 * h + 1)), hi))
    assert not lay(its)
    its = []
    if heavy:
        U = T
        for fb in range(4):
            for qb in range(4):
                g0 = V_ACCG + (fb * 4 + qb) * 4
                lo = max(4 * lastblk[8 + fb] + 3 + HZ, setup_end + 1)
                for r in range(4): its.append((lo, "v", "v_accvgpr_read_b32 %s, %s" % (v(U + r), a(A_ACCU + (fb * 4 + qb) * 4 + r)), None))
                for r in range(4): its.append((lo, "v", "v_max_f32 %s, 0, %s" % (v(g0 + r), v(g0 + r)), None))
                for r in range(4): its.append((lo, "v", "v_mul_f32 %s, %s, %s" % (v(g0 + r), v(g0 + r), v(U + r)), None))
                d0 = V_ACCG + ((fb & ~1) * 4 + qb) * 4 + 2 * (fb & 1)
                for h in range(2): its.append((lo, "v", "v_cvt_pk_bf16_f32 %s, %s, %s" % (v(d0 + h), v(g0 + 2 * h), v(g0 + 2 * h + 1)), None))
                if fb & 1:
                    if qb == 0: its.append((lo, "s", "s_lshl_b32 %s, %s, 13\ns_add_u32 %s, %s, %d" % (s(S_TMP + 6), s(S_FS), s(S_TMP + 6), s(S_TMP + 6), (128 + (fb >> 1)) * 4096), None))
                    its.append((lo, "m", "buffer_store_dwordx4 %s, %s, %s, %s offen offset:%d%s" % (v(d0 - 2, 4), v(V_L16), s(S_AF, 4), s(S_TMP + 6), 1024 * qb, STFL), None))
    post += lay(its)
    its = [(300, "v", x, None) for x in ones_ops(V_TRA + 2)]
    zs = []
    for k in range(XD):
        sl = max(x for x in range(20) if x % XD == k)
        zs.append((4 * lastF[sl] + 4, range(A_X + 16 * k, A_X + 16 * k + 16)))
    for lo, rr in sorted(zs, key=lambda t: t[0]):
        for r in rr: its.append((lo, "v", "v_accvgpr_write_b32 %s, 0" % a(r), None))
    post += lay(its)
    if VERBOSE: print("proj", tag, G.pattern(), "| post", len(post), len(vpost), len(kpost))
    e.ext(pre_reads)
    e("s_waitcnt WAITVM{x%d} lgkmcnt(0)" % max(units[0][0]))
    stamp(e, 3)
    nm = 0
    for x in G.lines():
        if x.startswith("v_mfma"):
            if STAMPS and nm % (NP // 5) == 0 and 0 < nm < NP: stamp(e, 18 + nm // (NP // 5))
            if nm == NP: stamp(e, 4)
            nm += 1
        e(x)
    for x in kpost + vpost + post: e(x)
    e("s_mov_b32 %s, %d" % (s(S_KVOFF), 8 * 8192))
    e("s_nop 1")
    for r in range(8): e("v_mov_b32 %s, 0" % v(V_L + r))
    for qb in range(4): e("v_mov_b32 %s, 0xff800000" % v(V_NEGM + 4 * qb))
    e("s_waitcnt WAITVM{K2,K3}")
    e0.ext(resolve_vm(e.L))

def kv_preload(e):
    e("s_mov_b32 %s, 0" % s(S_KVOFF))
    for i in range(9):
        if i < 8:
            e("s_add_u32 m0, %s, %d\ns_nop 0" % (s(S_M0K), L_K + i * 8192))
            e(kv_dma("K", 0)); e(kv_dma("K", 1))
        if i >= VSH:
            e("s_add_u32 m0, %s, %d\ns_nop 0" % (s(S_M0K), L_V + (i - VSH) * 8192))
            e(kv_dma("V", 0)); e(kv_dma("V", 1))
        if i < 8: e("s_add_u32 %s, %s, 8192" % (s(S_KVOFF), s(S_KVOFF)))
    e("s_waitcnt vmcnt(0)")

def Sreg(buf, qb, kb): return V_S + buf * 32 + qb * 8 + kb * 4
def Preg(buf, qb): return V_P + buf * 16 + qb * 4

def qk_mfmas(buf, czero=False, full=False):
    out = []
    if opt("qko", "snake") == "qks" and not czero and full:
        for qb in range(4):
            for i in range(2):
                kb = i if qb % 2 == 0 else 1 - i
                d = v(Sreg(buf, qb, kb), 4)
                for n, sl in enumerate(range(4) if i == 0 else range(3, -1, -1)):
                    out.append("%s %s, %s, %s, %s" % (MF, d, a(A_KF + (kb * 4 + sl) * 4, 4), v(V_Q + (sl * 4 + qb) * 4, 4), d if n else v(V_NEGM + 4 * qb, 4)))
        return out
    order = {"qks": [(kb, qb, sl) for kb in range(2) for qb in range(4) for sl in range(4)], "kqs": [(kb, qb, sl) for kb in range(2) for qb in range(4) for sl in range(4)],
             "ksq": [(kb, qb, sl) for kb in range(2) for sl in range(4) for qb in range(4)],
             "snake": [(kb, qb, sl) for kb in range(2) for qb in range(4) for sl in range(4)]}[opt("qko", "snake")]
    for kb, qb, sl0 in order:
                sl = sl0
                d = v(Sreg(buf, qb, kb), 4)
                if opt("qko", "snake") == "snake":
                    first = sl0 == 0
                    sl = sl0 if qb % 2 == 0 else 3 - sl0
                    c = ("0" if czero else v(V_NEGM + 4 * qb, 4)) if first else d
                    out.append("%s %s, %s, %s, %s" % (MF, d, a(A_KF + (kb * 4 + sl) * 4, 4), v(V_Q + (sl * 4 + qb) * 4, 4), c))
                    continue
                c = d if sl else ("0" if czero else v(V_NEGM + 4 * qb, 4))
                out.append("%s %s, %s, %s, %s" % (MF, d, a(A_KF + (kb * 4 + sl) * 4, 4), v(V_Q + (sl * 4 + qb) * 4, 4), c))
    return out

def pv_mfmas(buf, tailmode=False):
    out = []
    for h in range(2):
        out.append("v_smfmac_f32_16x16x64_bf16 %s, %s, %s, %s" % (v(V_L + 4 * h, 4), v(V_ONE, 4), v(Preg(buf, 2 * h), 8), v(V_SIDX)))
    pvo = opt("pvo", "qd2s")
    if pvo == "fake" and not tailmode:
        for h in range(4):
            for i in range(4):
                qb = i if h % 2 == 0 else 3 - i
                o = a(A_O + ((2 * h + buf) * 4 + qb) * 4, 4)
                for d in ((0, 1) if i % 2 == 0 else (1, 0)):
                    out.append("%s %s, %s, %s, %s" % (MF, o, a(A_VF + (2 * h + d) * 4, 4), v(Preg(buf, (qb + 2 * d) % 4), 4), o))
        return out
    if pvo == "fake": pvo = "dq"
    order = {"dq": [(db, qb) for db in range(8) for qb in range(4)],
             "snake": [(db, qb if db % 2 == 0 else 3 - qb) for db in range(8) for qb in range(4)],
             "qd2s": [(2 * h + (d if (i & 1) == 0 else 1 - d), i if h % 2 == 0 else 3 - i) for h in range(4) for i in range(4) for d in range(2)],
             "qd2": [(2 * h + d, qb) for h in range(4) for qb in range(4) for d in range(2)],
             "qd4": [(4 * h + d, qb) for h in range(2) for qb in range(4) for d in range(4)]}[pvo if not tailmode else "dq"]
    for db, qb in order:
            o = a(A_O + (db * 4 + qb) * 4, 4)
            out.append("%s %s, %s, %s, %s" % (MF, o, a(A_VF + db * 4, 4), v(Preg(buf, qb), 4), o))
    return out

def k_read(kb, sl, off, t=0): return "ds_read_b128 %s, %s offset:%d" % (a((A_KF, A_KF1)[t] + (kb * 4 + sl) * 4, 4), v(V_KA + sl), off + kb * 4096)
def v_read(db, j, t): return "ds_read_b64_tr_b16 %s, %s offset:%d" % (a(A_VF + 32 * t + db * 4 + 2 * j, 2), v(V_VA + db), 8192 * t + j * 4096)

def softmax_ops(buf):
    ex = []; cv = []
    for qb in range(4):
        for kb in range(2):
            for r in range(4):
                x = v(Sreg(buf, qb, kb) + r)
                ex.append("v_exp_f32 %s, %s" % (x, x))
            for h in range(2):
                b = Sreg(buf, qb, kb) + 2 * h
                cv.append("v_cvt_pk_bf16_f32 %s, %s, %s" % (v(Preg(buf, qb) + kb * 2 + h), v(b), v(b + 1)))
    return ex, cv

def gen_attention(e):
    T = V_T
    e("ATT_START:")
    stamp(e, 5)
    e("s_barrier")
    z = ["s_nop 0"] * 4
    for qb in range(4):
        b = Sreg(0, qb, 0)
        e("v_max3_f32 %s, %s, %s, %s" % (v(T + qb), v(b), v(b + 1), v(b + 2)))
        e("v_max3_f32 %s, %s, %s, %s" % (v(T + qb), v(T + qb), v(b + 3), v(b + 4)))
        e("v_max3_f32 %s, %s, %s, %s" % (v(T + qb), v(T + qb), v(b + 5), v(b + 6)))
        e("v_max3_f32 %s, %s, %s, %s" % (v(T + qb), v(T + qb), v(b + 7), v(V_NEGM + 4 * qb)))
    for sw in ("v_permlane32_swap_b32", "v_permlane16_swap_b32"):
        for qb in range(4): e("v_mov_b32 %s, %s" % (v(T + 4 + qb), v(T + qb)))
        e.ext(z[:2]); z = z[2:]
        for qb in range(4): e("%s %s, %s" % (sw, v(T + qb), v(T + 4 + qb)))
        for qb in range(4): e("v_max_f32 %s, %s, %s" % (v(T + qb), v(T + qb), v(T + 4 + qb)))
    for qb in range(4):
        for r in range(4): e("v_sub_f32 %s, 0, %s" % (v(V_NEGM + 4 * qb + r), v(T + qb)))
    for qb in range(4):
        for r in range(8): e("v_sub_f32 %s, %s, %s" % (v(Sreg(0, qb, 0) + r), v(Sreg(0, qb, 0) + r), v(T + qb)))
    e.ext(z)
    e("s_waitcnt lgkmcnt(0)")

    exE, cvE = softmax_ops(0); exO, cvO = softmax_ops(1)
    smf = lambda t, h: "v_smfmac_f32_16x16x64_bf16 %s, %s, %s, %s" % (v(V_L + 4 * h, 4), v(V_ONE, 4), v(Preg(t, 2 * h), 8), v(V_SIDX))
    def pvm(db, qb, t):
        o = a(A_O + (db * 4 + qb) * 4, 4)
        return "%s %s, %s, %s, %s" % (MF, o, a(A_VF + 32 * t + db * 4, 4), v(Preg(t, qb), 4), o)
    G = Gaps(qk_mfmas(1))
    for i in range(8): G.put(1 + 2 * i, "d", k_read(i // 4, i % 4, 24576, 1))
    for i in range(4): G.put(17 + 2 * i, "d", k_read(0, i, 16384))
    for i in range(4): G.put(31, "d", k_read(1, i, 16384))
    for i, x in enumerate(exE): G.put(i, "e", x)
    for i, x in enumerate(cvE[:4]): G.put(24 + 2 * i, "v", x)
    e.ext(G.lines())
    e.ext(exO[:NOE])
    for sl in range(4): e("v_add_u32 %s, 32768, %s" % (v(V_KA + sl), v(V_KA + sl)))
    e("s_mov_b32 %s, 16384" % s(S_TOG))
    e("s_mov_b32 %s, %d\ns_mov_b32 %s, %d" % (s(S_TMP + 3), 2 * 8192, s(S_TMP + 4), 6 * 8192 + L_V))
    e("s_waitcnt vmcnt(0) lgkmcnt(0)\ns_barrier")
    for which, m0, inc in (("K", L_K, 1), ("K", L_K + 8192, 0), ("V", L_V + 5 * 8192, 1)):
        e("s_add_u32 m0, %s, %d\ns_nop 0" % (s(S_M0K), m0))
        e(kv_dma(which, 0)); e(kv_dma(which, 1))
        if inc: e("s_add_u32 %s, %s, 8192" % (s(S_KVOFF), s(S_KVOFF)))
    e("s_mov_b32 %s, %d\ns_cmp_eq_u32 %s, 0\ns_cselect_b32 %s, %d, %s" % (s(S_EVT), EVTE, s(S_WAVE), s(S_EVT), EVT1, s(S_EVT)))
    stamp(e, 6)
    e("s_cmp_lg_u32 %s, 0\ns_cbranch_scc1 NOSIG2" % s(S_RETRY))
    e("s_cmp_ge_u32 %s, 27\ns_cbranch_scc1 LT_INIT" % s(S_FS))
    e("s_cmp_lg_u32 %s, 0\ns_cbranch_scc1 NOSIG2" % s(S_WAVE))
    set_flag(e, 2)
    e("NOSIG2:")
    mf = []
    for t in range(2):
        for qb in range(4):
            for i in range(2):
                kb = i if qb % 2 == 0 else 1 - i
                d = v(Sreg(t, qb, kb), 4)
                for n, sl in enumerate(range(4) if i == 0 else range(3, -1, -1)):
                    mf.append("%s %s, %s, %s, %s" % (MF, d, a((A_KF, A_KF1)[t] + (kb * 4 + sl) * 4, 4), v(V_Q + (sl * 4 + qb) * 4, 4), d if n else v(V_NEGM + 4 * qb, 4)))
    mf += [smf(0, 0), smf(1, 0), smf(1, 1), smf(0, 1)]
    H2 = 68
    for db in range(8):
        for i in range(4):
            qb = 3 - i if db % 2 == 0 else i
            for t in ((0, 1) if i % 2 == 0 else (1, 0)): mf.append(pvm(db, qb, t))
    G = Gaps(mf); end = G.n() - 1
    G.put(1, "b", "s_barrier"); G.put(0, "s", "s_waitcnt vmcnt(16) lgkmcnt(0)")
    NV1 = opt("nv1", 22)
    vrd = [(db, j, t) for db in range(8) for t in range(2) for j in range(2)]
    vg = {}
    eg = {}
    for i in range(NOE, 32): eg[i] = G.put(2 * (i - NOE), "e", exO[i])
    vvg = [int(x) for x in opt("vvg", "3.7.11.15.55").split(".")]
    dgs = [g for g in range(3, 64, 2) if g not in vvg]
    for i in range(NV1):
        db, j, t = vrd[i]; vg[db] = G.put(dgs[i], "d", v_read(db, j, t))
    rd2 = [("v",) + x for x in vrd[NV1:]] + [("k", kb, sl, 0) for kb in range(2) for sl in range(4)] + [("k", kb, sl, 1) for kb in range(2) for sl in range(4)]
    g = 64; kg = {}
    for i, x in enumerate(rd2):
        if x[0] == "v": g = G.place("d", v_read(*x[1:]), g, H2 + 8 * x[1] - 6); vg[x[1]] = g
        else: g = G.place("d", k_read(x[1], x[2], 8192 * x[3], x[3]), g); kg[x[2]] = g
        g += 1 if i < 4 else 2
    def adv(r, base):
        return ["s_add_u32 %s, %s, 8192" % (s(r), s(r)), "s_and_b32 %s, %s, 0xffff" % (s(r), s(r))] + (["s_or_b32 %s, %s, %d" % (s(r), s(r), base)] if base else [])
    last = 0
    for g in (opt("dg1", 54), opt("dg2", 76)):
        for which, r in (("K", S_TMP + 3), ("V", S_TMP + 4)):
            g = G.place("s", "s_add_u32 m0, %s, %s" % (s(S_M0K), s(r)), g)
            for i in range(2): g = G.place("m", kv_dma(which, i), g + opt("dsp", 2))
            g += 1
        for x in ["s_add_u32 %s, %s, 8192" % (s(S_KVOFF), s(S_KVOFF))] + adv(S_TMP + 3, 0) + adv(S_TMP + 4, L_V): g = G.place("s", x, g) + 1
        last = g
    items = [(0, 8 * (i // 4) - 1, cvE[i]) for i in range(4, 16)] + [(eg.get(2 * i + 1, -1) + 1, 32 + 8 * (i // 4) - 1, cvO[i]) for i in range(16)]
    for lo, hi, x in sorted(items, key=lambda t: t[1]): G.place("v", x, lo, hi)
    for i in range(4): G.place("v", cvE[i], end - 5 + opt("c0g", 2))
    g = 56
    xg = 0
    for db in range(8):
        y = max(vg[db], 64)
        while not (G.ds[y] and G.fits(y, "v")): y += 1
        xg = max(xg, G.put(y, "v", "v_xor_b32 %s, %s, %s" % (v(V_VA + db), s(S_TOG), v(V_VA + db))))
    for sl in range(4): xg = max(xg, G.place("v", "v_xor_b32 %s, %s, %s" % (v(V_KA + sl), s(S_TOG), v(V_KA + sl)), kg[sl]))
    for i, x in enumerate(exE + exO[:NOE]): g = G.place("e", x, g, end - 6 if i < 8 else end)
    g = G.place("s", "s_xor_b32 %s, %s, 32768" % (s(S_TOG), s(S_TOG)), xg + 1)
    G.place("s", "s_cmp_lt_u32 %s, %s" % (s(S_KVOFF), s(S_EVT)), max(g, last) + 1)
    auto_lgkm(G, [], loop=True, eager=opt("leag", 8))
    if VERBOSE: print("loop", G.pattern())
    e(".p2align 6\nATT_LOOP:")
    for x in G.lines(): e(x)
    e("s_cbranch_scc1 ATT_LOOP")
    e("s_cmp_lt_u32 %s, %d\ns_cbranch_scc1 ATT_EVT" % (s(S_KVOFF), EVTE))
    e("TAILC0:")
    global LIGHT_LOOP
    LIGHT_LOOP = light_loop(G)
    stamp(e, 7)
    e("s_waitcnt vmcnt(0) lgkmcnt(0)\ns_barrier")
    vr = [v_read(db, j, 0) for db in range(8) for j in range(2)]
    e.ext(vr)
    e.ext(cvE[4:])
    e("s_nop 0")
    h = E()
    snake = [(db, i if db % 2 == 0 else 3 - i) for db in range(8) for i in range(4)]
    G = Gaps([smf(0, 0), smf(0, 1)] + [pvm(db, qb, 0) for db, qb in snake])
    for i in range(16): G.put(2 * i, "d", v_read(i // 2, i % 2, 1))
    for i, x in enumerate(exO[NOE:]): G.put(i + NOE, "e", x)
    for i, x in enumerate(cvO): G.put(2 * i + 3, "v", x)
    pre, pend = auto_lgkm(G, [asmcheck.I(x, 0, 0).W for x in vr])
    assert pre is None
    pq = [x for sg in range(NPRE_X) for x in t8_w(sg) + t8_a(sg)]
    assert NPRE_X <= 3
    g = 2
    while pq and g < 32 + NL:
        k, x = pq.pop(0)
        if k == "s": G.sc[g].append(x); g += 1
        else: G.va[g].append(x); g += opt("x63", 3)
    for x in G.lines(): h(x)
    G = Gaps([smf(1, 0), smf(1, 1)] + [pvm(db, qb, 1) for db, qb in snake])
    G.put(opt("b64", 8), "b", "s_barrier")
    G.put(opt("b64", 8), "s", "s_waitcnt lgkmcnt(0)")
    g = 0; post = []
    for k, x in pq:
        if not post:
            try:
                g = G.place(k, x, g) + (opt("x64", 3) if k == "m" else 1); continue
            except RuntimeError: pass
        post.append(x + ("\ns_nop 0" if k == "s" else ""))
    pre, pend = auto_lgkm(G, pend)
    h("s_nop 1")
    if pre is not None: h("s_waitcnt lgkmcnt(%d)" % pre)
    for x in G.lines(): h(x)
    h("v_min_u32 %s, 7, %s\nv_lshlrev_b32 %s, %d, %s" % (v(V_PL + 3), v(V_LANE), v(V_PL + 3), FSH, v(V_PL + 3)))
    for x in post: h(x)
    return h.L

LT_SS, LT_SD = 44, (48, 56)
LT_SO, LT_DO, LT_R = 91, 96, 97
LT_VO, LT_VB, LT_VR, LT_AD = 40, 42, 44, 48
L_TRB = 131072
def light_loop(G):
    import copy
    G = copy.deepcopy(G)
    n = G.n()
    b = [g for g in range(n) if any("s_barrier" in x for x in G.va[g])][0]
    for bb in (b - 1, b): G.sc[bb] = [x.replace("vmcnt(%d)" % (16 + 2 * PWARM), "vmcnt(%d)" % (24 + 2 * PWARM)) for x in G.sc[bb]]
    lastm = max(g for g in range(n) if any(x.startswith("buffer") for x in G.va[g]))
    cmpg = [g for g in range(n) if any(x.startswith("s_cmp_lt_u32 %s" % s(S_KVOFF)) for x in G.sc[g])][-1]
    def lay(seq, g, hi, step=1):
        for k, x in seq:
            if k == "s":
                while not G.fits(g, "s"): g += 1
                G.put(g, "s", x)
            else:
                win = opt("ltw", 4) if k != "m" else opt("ltm", 4)
                g = min(range(g, min(g + win, hi) + 1), key=lambda y: (G.used[y] + (3 if (k == "d" and G.ds[y] and opt("ltd", 0)) else 0), y))
                (G.ds if k == "d" else G.va)[g].append(x); G.used[g] += 1 if k != "m" else 2
            g += step
            assert g <= hi + 1, (x, g, hi)
        return g
    g = lay([("d", "ds_read_b64_tr_b16 %s, %s offset:%d" % (v(LT_AD + 4 * f + 2 * j, 2), v(LT_VR + f), 1024 * j)) for f in range(2) for j in range(2)], b + 1, b + 30, 2)
    g = lay([("m", "buffer_store_dwordx4 %s, %s, %s, %s offen%s" % (v(LT_AD, 4), v(V_L16), s(LT_SD[0], 4), s(LT_DO), STFL))], 70, cmpg - 1)
    g = lay([("m", "buffer_store_dwordx4 %s, %s, %s, %s offen%s" % (v(LT_AD + 4, 4), v(V_L16), s(LT_SD[1], 4), s(LT_DO), STFL))], lastm + 2, cmpg - 1)
    lay([("s", "s_add_u32 m0, %s, %s" % (s(LT_R), s(S_TMP)))] +
        [("m", "buffer_load_dwordx4 %s, %s, %s offen offset:%d lds" % (v(LT_VO + i), s(LT_SS, 4), s(LT_SO), 1024 * i)) for i in range(2)] +
        [("s", "s_add_u32 %s, %s, %d\ns_add_u32 %s, %s, 2048" % (s(LT_SO), s(LT_SO), 8 * 40960, s(LT_R), s(LT_R))),
         ("s", "s_cmp_eq_u32 %s, 6144\ns_cselect_b32 %s, 0, %s" % (s(LT_R), s(LT_R), s(LT_R)))] +
        [("v", "v_add_u32 %s, %s, %s" % (v(LT_VR + f), s(LT_R), v(LT_VB + f))) for f in range(2)], g, cmpg - 1)
    G.sc[cmpg].insert(0, "s_add_u32 %s, %s, %d" % (s(LT_DO), s(LT_DO), 8 * 5120))
    if VERBOSE: print("lightloop", G.pattern())
    return G.lines()

def gen_events(e):
    L = V_LANE; t = S_TMP
    e("LT_INIT:")
    e("s_sub_u32 %s, %s, 27\ns_lshl_b32 %s, %s, 3\ns_add_u32 %s, %s, %s\ns_lshl2_add_u32 %s, %s, %s" % (s(t), s(S_FS), s(t), s(t), s(t), s(t), s(S_QT), s(t), s(t), s(S_WAVE)))
    e("s_mul_i32 %s, %s, 3277\ns_lshr_b32 %s, %s, 16\ns_mul_i32 %s, %s, 20\ns_sub_u32 %s, %s, %s" % (s(t + 1), s(t), s(t + 1), s(t + 1), s(t + 6), s(t + 1), s(t), s(t), s(t + 6)))
    e("s_mul_i32 %s, %s, 40960\ns_lshl_b32 %s, %s, 6\ns_add_u32 %s, %s, %s" % (s(LT_SO), s(t + 1), s(t + 6), s(t), s(LT_SO), s(LT_SO), s(t + 6)))
    e("s_sub_u32 %s, %s, 24\ns_mul_i32 %s, %s, 5120" % (s(LT_DO), s(t + 1), s(LT_DO), s(LT_DO)))
    srd(e, LT_SS, ptr(4), 0, 4096 * 1280)
    for f in range(2):
        e("s_lshl1_add_u32 %s, %s, %d\ns_mul_i32 %s, %s, 13108\ns_lshr_b32 %s, %s, 16\ns_mul_i32 %s, %s, 5\ns_sub_u32 %s, %s, %s\ns_lshl_b32 %s, %s, 10" % (
            s(t + 1), s(t), f, s(t + 6), s(t + 1), s(t + 6), s(t + 6), s(t + 7), s(t + 6), s(t + 1), s(t + 1), s(t + 7), s(t + 1), s(t + 1)))
        e("s_mul_i32 %s, %s, %d\ns_add_u32 %s, %s, %s\ns_add_u32 %s, %s, %d" % (s(t + 6), s(t + 6), NSLAB * 5120, s(t + 6), s(t + 6), s(t + 1), s(t + 6), s(t + 6), WF_OFF))
        srd(e, LT_SD[f], ptr(11), s(t + 6), (NSLAB - 1) * 5120 + 1024)
    e("s_mul_i32 %s, %s, 6144\ns_add_u32 %s, %s, %d\ns_mov_b32 %s, 0\ns_mov_b32 %s, %d" % (s(t), s(S_WAVE), s(t), s(t), L_TRB, s(LT_R), s(S_EVT), EVTS))
    e("v_lshrrev_b32 %s, 2, %s\nv_bfe_u32 %s, %s, 4, 1\nv_and_b32 %s, 3, %s" % (v(46), v(L), v(47), v(L), v(48), v(L)))
    e("v_lshlrev_b32 %s, 1, %s\nv_xor_b32 %s, %s, %s\nv_mul_u32_u24 %s, 1280, %s\nv_lshl_add_u32 %s, %s, 4, %s\nv_add_u32 %s, %d, %s" % (
        v(49), v(47), v(49), v(49), v(48), v(LT_VO), v(46), v(LT_VO), v(49), v(LT_VO), v(LT_VO + 1), 16 * 1280 - 1024, v(LT_VO)))
    e("v_lshlrev_b32 %s, 6, %s\nv_lshl_add_u32 %s, %s, 3, %s\nv_lshl_add_u32 %s, %s, 5, %s\nv_add_u32 %s, %s, %s\nv_xor_b32 %s, 32, %s" % (
        v(LT_VB), v(46), v(LT_VB), v(48), v(LT_VB), v(LT_VB), v(47), v(LT_VB), v(LT_VB), s(t), v(LT_VB), v(LT_VB + 1), v(LT_VB)))
    e("v_mov_b32 %s, %s\nv_mov_b32 %s, %s" % (v(LT_VR), v(LT_VB), v(LT_VR + 1), v(LT_VB + 1)))
    e(".p2align 6\nLT_LOOP:")
    for x in LIGHT_LOOP: e(x)
    e("s_cbranch_scc1 LT_LOOP")
    e("s_cmp_lg_u32 %s, %d\ns_cbranch_scc1 LT_END" % (s(S_KVOFF), EVTS))
    srd(e, LT_SS, ptr(8), 0, 1728 * 1280)
    e("s_sub_u32 %s, %s, %d\ns_mov_b32 %s, %d\ns_branch LT_LOOP" % (s(LT_SO), s(LT_SO), 128 * 40960, s(S_EVT), EVTL))
    e("LT_END:")
    e("s_waitcnt vmcnt(0)\ns_barrier")
    e("s_mov_b32 %s, %d\ns_cmp_lg_u32 %s, 0\ns_cbranch_scc1 ATT_LOOP" % (s(S_EVT), EVTE, s(S_WAVE)))
    set_flag(e, 2)
    e("s_mov_b32 %s, %d\ns_branch ATT_LOOP" % (s(S_EVT), EVT1))
    e("ATT_EVT:")
    e("s_cmp_lg_u32 %s, %d\ns_cbranch_scc1 ATT_EVT3" % (s(S_KVOFF), EVT1))
    if opt("ctt", 1):
        e("s_getpc_b64 %s\nCODE2:\ns_sub_u32 %s, %s, CODE2-TAILC0\ns_subb_u32 %s, %s, 0" % (s(t + 6, 2), s(t + 6), s(t + 6), s(t + 7), s(t + 7)))
        e("s_lshr_b32 %s, s2, 3\ns_lshl_b32 %s, %s, 10" % (s(t + 1), s(t + 1), s(t + 1)))
        e("v_min_u32 %s, 7, %s\nv_lshlrev_b32 %s, 7, %s\nv_add_u32 %s, %s, %s\nv_min_u32 %s, K_END-TAILC0, %s" % (v(V_PL), v(L), v(V_PL), v(V_PL), v(V_PL), s(t + 1), v(V_PL), v(V_PL), v(V_PL)))
        e("global_load_dword %s, %s, %s" % (v(V_DUMP), v(V_PL), s(t + 6, 2)))
    e(poll_load(True))
    e("s_mov_b32 %s, %d\ns_branch ATT_LOOP" % (s(S_EVT), EVT1 + 4 * 8192))
    e("ATT_EVT3:")
    e("s_waitcnt vmcnt(16)")
    poll_spin(e, True, None, 2, "EARLY")
    e("s_mov_b32 %s, %d\ns_branch ATT_LOOP" % (s(S_EVT), EVTE))
assert all((g * 3277) >> 16 == g // 20 for g in range(160)) and all((c * 13108) >> 16 == c // 5 for c in range(40))

K_SX, K_SO = S_WU, S_X
T_SA, T_SW, T_XS = S_T, S_WF, S_WQ
T_XO = S_WG
T_TAG = S_WG + 3
T_M0W, T_OA, T_OW = 88, 89, 90
T_BA, T_BW = (S_XOFF, S_WQOFF), (S_WGOFF, S_M0W)
K_FLG = 95
KV_XO = 63; KV_X = 8
TV_WR, TV_L4K, TV_TAG, TV_OW, TV_OR = 60, 61, 62, 3, 4
XPB = 12288
REUSE = opt("reuse", 1)
COAL = opt("coal", 1)
NSD, NSG = 7, 23
RW8, RA8, RF8 = 6, 5, 10
L_OWN = [122880, 0]

def join_scalar(lines):
    out = []
    for x in lines:
        if x.startswith(("s_addc", "s_cselect")): out[-1] += "\n" + x
        else: out.append(x)
    return out

def gen_tail_setup():
    e = E()
    L = V_LANE; t = S_TMP
    R, Cc, KQ = t + 3, t + 4, t + 5
    e("s_bfe_u32 %s, s2, 0x10002\ns_lshl_b32 %s, %s, 3\ns_lshr_b32 %s, s2, 5\ns_add_u32 %s, %s, %s" % (s(R), s(R), s(R), s(t), s(R), s(R), s(t)))
    e("s_bfe_u32 %s, s2, 0x20003\ns_and_b32 %s, s2, 3" % (s(Cc), s(KQ)))
    e("s_lshr_b32 %s, %s, 1\ns_lshl1_add_u32 %s, %s, %s\ns_lshl2_add_u32 %s, %s, %s\ns_mul_i32 %s, %s, %d" % (s(t), s(KQ), s(t), s(R), s(t), s(t), s(t), s(S_WAVE), s(t), s(t), 16 * 1280))
    e("s_and_b32 %s, %s, 1\ns_lshl1_add_u32 %s, %s, %s\ns_mul_i32 %s, %s, 160\ns_add_u32 %s, %s, %s" % (s(t + 1), s(KQ), s(t + 1), s(Cc), s(t + 1), s(t + 1), s(t + 1), s(t), s(t), s(t + 1)))
    srd(e, K_SX, ptr(0), s(t), 15 * 1280 + 160)
    srd(e, K_SO, ptr(9), s(t), 15 * 1280 + 160)
    e("v_and_b32 %s, 15, %s\nv_mul_u32_u24 %s, 1280, %s\nv_lshrrev_b32 %s, 4, %s\nv_lshl_add_u32 %s, %s, 3, %s" % (v(KV_XO), v(L), v(KV_XO), v(KV_XO), v(V_T), v(L), v(KV_XO), v(V_T), v(KV_XO)))
    e("s_lshr_b32 %s, %s, 1\ns_lshl2_add_u32 %s, %s, %s\ns_lshl_b32 %s, %s, %d" % (s(K_FLG), s(R), s(K_FLG), s(K_FLG), s(KQ), s(K_FLG), s(K_FLG), FSH + 3))
    e("s_mul_i32 %s, %s, 7\ns_add_u32 %s, %s, 64\ns_lshl_b32 %s, %s, 13\ns_mul_i32 %s, %s, 10240" % (s(t), s(KQ), s(t), s(t), s(T_BA[0]), s(t), s(T_BW[0]), s(t)))
    e("s_lshl_b32 %s, %s, 17\ns_mul_i32 %s, %s, %d" % (s(T_BA[1]), s(KQ), s(T_BW[1]), s(KQ), 16 * 10240))
    e("s_lshl2_add_u32 %s, %s, %s\ns_mul_i32 %s, %s, %d\ns_add_u32 %s, %s, %d" % (s(t), s(R), s(Cc), s(t), s(t), 24 * XPB, s(t), s(t), XP_OFF))
    srd(e, T_XS, ptr(11), s(t), 24 * XPB)
    for ch in range(2):
        d = T_XO + ch
        e("s_and_b32 %s, %s, 2\ns_add_u32 %s, %s, %d\ns_xor_b32 %s, %s, %s\ns_mul_i32 %s, %s, 3\ns_add_u32 %s, %s, %s\ns_sub_u32 %s, %s, 1" % (
            s(t), s(S_WAVE), s(t), s(t), ch, s(t + 1), s(t), s(KQ), s(t), s(t), s(t), s(t), s(t + 1), s(t), s(t)))
        e("s_mul_i32 %s, %s, %d\ns_and_b32 %s, %s, 1\ns_mul_i32 %s, %s, 6144\ns_add_u32 %s, %s, %s" % (s(t), s(t), XPB, s(d), s(S_WAVE), s(d), s(d), s(d), s(d), s(t)))
        e("s_cmp_eq_u32 %s, 0\ns_cselect_b32 %s, 0x1000000, %s" % (s(t + 1), s(d), s(d)))
    if PWARM:
        e("s_lshl2_add_u32 %s, %s, %s\ns_mul_i32 %s, %s, %d\ns_lshl_b32 %s, %s, 14\ns_add_u32 %s, %s, %s" % (s(t), s(S_QT), s(S_WAVE), s(t), s(t), NSLAB * 4096, s(t + 1), s(S_HEAD), s(t), s(t), s(t + 1)))
        e("v_mov_b32 %s, %s" % (v(V_PW), s(t)))
        for i, o in ((1, 6144), (2, 10240)):
            e("s_add_u32 %s, %s, %d\nv_writelane_b32 %s, %s, %d\nv_writelane_b32 %s, %s, %d" % (s(t + 1), s(t), o, v(V_PW), s(t + 1), 2 * i, v(V_PW), s(t + 1), 2 * i + 1))
        e("s_lshl2_add_u32 %s, %s, %s\ns_mul_i32 %s, %s, %d\ns_add_u32 %s, %s, %d" % (s(t + 2), s(R), s(Cc), s(t + 2), s(t + 2), 24 * XPB, s(t + 2), s(t + 2), XP_OFF))
        for m in range(2):
            for ch in range(2):
                i = 3 + 2 * m + ch
                e("s_add_u32 %s, %s, %s\ns_add_u32 %s, %s, %d" % (s(t + 1), s(t + 2), s(T_XO + ch), s(t + 1), s(t + 1), m * 12 * XPB))
                e("s_cmp_eq_u32 %s, 0x1000000\ns_cselect_b32 %s, %s, %s" % (s(T_XO + ch), s(t + 1), s(t), s(t + 1)))
                e("v_writelane_b32 %s, %s, %d\nv_writelane_b32 %s, %s, %d" % (v(V_PW), s(t + 1), 2 * i, v(V_PW), s(t + 1), 2 * i + 1))
        e("v_min_u32 %s, 14, %s" % (v(V_T), v(L)))
        L = V_T
        e("v_and_b32 %s, 1, %s\nv_lshl_add_u32 %s, %s, 7, %s\nv_subrev_u32 %s, 1280, %s" % (v(V_T), v(L), v(V_PW), v(V_T), v(V_PW), v(V_PW), v(V_PW)))
        L = V_LANE
    e("s_mul_i32 %s, %s, %d\ns_mul_i32 %s, %s, 3072\ns_add_u32 %s, %s, %s" % (s(T_XO + 2), s(KQ), 3 * XPB, s(t), s(S_WAVE), s(T_XO + 2), s(T_XO + 2), s(t)))
    e("s_add_u32 %s, %s, 0x10000\ns_and_b32 %s, %s, 0x1fff0000\ns_or_b32 %s, %s, 0x40000000\nv_mov_b32 %s, %s" % (s(t), s(S_EPOCH), s(t), s(t), s(T_TAG), s(t), v(TV_TAG), s(T_TAG)))
    e("s_and_b32 %s, %s, 1\ns_mul_i32 %s, %s, 10240\nv_add_u32 %s, %s, %s" % (s(t), s(S_WAVE), s(t), s(t), v(TV_OW), s(t), v(V_L16)))
    e("s_mul_i32 %s, %s, 5120\nv_add_u32 %s, %s, %s" % (s(t), s(S_WAVE), v(TV_OR), s(t), v(V_L16)))
    e("s_lshr_b32 %s, %s, 1\ns_lshl1_add_u32 %s, %s, %s\ns_mul_i32 %s, %s, %d" % (s(t), s(S_WAVE), s(t), s(R), s(t), s(t), s(t), NSLAB * 4096))
    e("s_and_b32 %s, %s, 1\ns_lshl_b32 %s, %s, 11\ns_add_u32 %s, %s, %s" % (s(t + 1), s(S_WAVE), s(t + 1), s(t + 1), s(t), s(t), s(t + 1)))
    srd(e, T_SA, ptr(11), s(t), NSLAB * 4096 - 2048)
    e("s_mul_i32 %s, %s, 5120" % (s(T_M0W), s(S_WAVE)))
    e("s_and_b32 %s, %s, 1\ns_lshl1_add_u32 %s, %s, %s\ns_mul_i32 %s, %s, %d" % (s(t), s(S_WAVE), s(t), s(Cc), s(t), s(t), s(t), NSLAB))
    e("s_lshr_b32 %s, %s, 1\ns_add_u32 %s, %s, %s\ns_mul_i32 %s, %s, 5120\ns_add_u32 %s, %s, %d" % (s(t + 1), s(S_WAVE), s(t), s(t), s(t + 1), s(t), s(t), s(t), s(t), WF_OFF))
    return join_scalar(e.L)

def gen_tail_setup2():
    e = E()
    srd(e, T_SW, ptr(11), s(S_TMP), (NSLAB - 1) * 5120)
    e("v_mov_b32 %s, %s\nv_add_u32 %s, 4096, %s" % (v(TV_WR), v(V_L16), v(TV_L4K), v(V_L16)))
    return join_scalar(e.L)

def t8_w(sg):
    base = (sg % RW8) * 20480; tag = "D%d" % sg
    m, i = (0, sg) if sg < NSD else (1, sg - NSD)
    W = lambda vo, off: ("m", "buffer_load_dwordx4 %s, %s, %s offen offset:%d%s lds ;#%s" % (v(vo), s(T_SW, 4), s(T_OW), off, LDFL, tag))
    return [("s", "s_add_u32 %s, %s, %d\ns_add_u32 m0, %s, %d" % (s(T_OW), s(T_BW[m]), i * 10240, s(T_M0W), base)),
            W(V_L16, 0), W(V_L16, 1024), W(V_L16, 2048), W(V_L16, 3072),
            ("s", "s_add_u32 m0, %s, %d" % (s(T_M0W), base + 4096)), W(TV_L4K, 0)]
def t8_af(sg, half, j): return a((192, 208, 224, 32, 48)[sg % RA8] + half * 8 + j * 4, 4)
def t8_a(sg):
    m, i = (0, sg) if sg < NSD else (1, sg - NSD)
    l = [("s", "s_add_u32 %s, %s, %d" % (s(T_OA), s(T_BA[m]), i * 8192))]
    for half in range(2):
        for j in range(2):
            l.append(("m", "buffer_load_dwordx4 %s, %s, %s, %s offen offset:%d%s ;#A%d" % (t8_af(sg, half, j), v(TV_L4K if half else V_L16), s(T_SA, 4), s(T_OA), j * 1024, LDFL, sg)))
    return l
def t8_wf(F):
    k = F % RF8
    return a(4 * k if k < 8 else 240 + 4 * (k - 8), 4)
def t8_read(F):
    sg, f = F // 20, F % 20
    if opt("t8c", 1): f = (f & 1) * 10 + (f >> 1)
    return "ds_read_b128 %s, %s offset:%d" % (t8_wf(F), v(TV_WR), (sg % 3) * 20480 + f * 1024)
def t8_acc(m, n10, j):
    i = n10 * 2 + j
    if m == 0: return 128 + 4 * i
    return 64 + 4 * i if i < 16 else 208 + 4 * (i - 16)
NPRE_X = opt("nprex", 2)
NPRE_G = opt("npreg", 2)

def cond_lines(lines): return [("@" + x) if x.startswith("buffer") else x for x in lines]

def publish(m):
    out = []; n = 0
    for ch in range(2):
        if m == 1 and REUSE:
            t = S_TMP
            out.append(("s", "s_and_b32 %s, s2, 3\ns_and_b32 %s, %s, 2\ns_sub_u32 %s, %s, %s\ns_sub_u32 %s, %s, %d\ns_mul_i32 %s, %s, %d\ns_add_u32 %s, %s, %s" % (
                s(t), s(t + 1), s(S_WAVE), s(t), s(t), s(t + 1), s(t), s(t), ch, s(t), s(t), 3 * XPB, s(t + 2), s(T_XO + ch), s(t))))
        else:
            out.append(("s", "s_add_u32 %s, %s, %d" % (s(S_TMP + 2), s(T_XO + ch), m * 12 * XPB)))
        for j in range(2):
            vals = [t8_acc(m, 5 * ch + nb, j) + k for nb in range(5) for k in range(4)]
            pb = (40, 240)[n % 2]; n += 1
            for gi in range(3):
                vs = vals[7 * gi:7 * gi + 7]
                if len(vs) < 7: vs = vs + [TV_TAG]
                for h in range(3): out.append(("v", "v_cvt_pk_bf16_f32 %s, %s, %s" % (v(pb + 4 * gi + h), v(vs[2 * h]), v(vs[2 * h + 1]))))
                out.append(("v", "v_cvt_pk_bf16_f32 %s, %s, %s" % (v(pb + 4 * gi + 3), v(vs[6]), v(TV_TAG))))
                off = j * 3072 + gi * 1024
                out.append(("m", "buffer_store_dwordx4 %s, %s, %s, %s offen offset:%d%s ;#xst%d" % (v(pb + 4 * gi, 4), v(TV_L4K if off >= 4096 else V_L16), s(T_XS, 4), s(S_TMP + 2), off % 4096, STFL, m)))
    return out
def own_write(m):
    l = []
    if L_OWN[m]: l.append("v_add_u32 %s, %d, %s" % (v(52), L_OWN[m], v(TV_OW)))
    ar = v(52) if L_OWN[m] else v(TV_OW)
    for ch in range(2):
        l.append("s_cmp_lg_u32 %s, 0x1000000\ns_cbranch_scc1 NOOWN%d%d" % (s(T_XO + ch), m, ch))
        for j in range(2):
            for nb in range(5): l.append("ds_write_b128 %s, %s offset:%d" % (ar, v(t8_acc(m, 5 * ch + nb, j), 4), (j * 5 + nb) * 1024))
        l.append("NOOWN%d%d:" % (m, ch))
    return l
XR = [128, 64]; OWR = [164, 184]
T_SL = 72
def xloads(m):
    l = []
    for i in range(3):
        if m == 1 and REUSE: l.append(("s", "s_mov_b32 %s, %s" % (s(S_TMP + 3), s(T_SL + i))))
        else: l.append(("s", "s_add_u32 %s, %s, %d" % (s(S_TMP + 3), s(T_XO + 2), m * 12 * XPB + i * XPB)))
        for k in range(3): l.append(("m", "buffer_load_dwordx4 %s, %s, %s, %s offen offset:%d%s ;#xr%d" % (v(XR[m] + (i * 3 + k) * 4, 4), v(V_L16), s(T_XS, 4), s(S_TMP + 3), k * 1024, LDFL, m)))
    return l
def xcheck(e, m, first_wait):
    t = S_TMP
    e("s_mov_b32 %s, 0" % s(t + 7))
    e(first_wait)
    e("XCHK%d:" % m)
    for i in range(9): e("v_xor_b32 %s, %s, %s" % (v(20 + i), s(T_TAG), v(XR[m] + 4 * i + 3)))
    for i in range(4): e("v_or3_b32 %s, %s, %s, %s" % (v(20), v(20), v(21 + 2 * i), v(22 + 2 * i)))
    e("v_cmp_lt_u32 vcc, 0xffff, %s" % v(20))
    e("s_add_u32 %s, %s, 1" % (s(t + 7), s(t + 7)))
    e("s_cmp_eq_u64 vcc, 0\ns_cbranch_scc1 XOK%d" % m)
    e("s_cmp_ge_u32 %s, 0x40000\ns_cbranch_scc1 XOK%d" % (s(t + 7), m))
    e("s_sleep %d" % opt("xslp", 4))
    for x in cond_lines([x for _, x in xloads(m)]): e(x)
    e("s_waitcnt vmcnt(0)\ns_branch XCHK%d" % m)
    e("XOK%d:" % m)
def xsum(e, m, nb):
    o = OWR[m] + 4 * nb
    for i in range(3):
        for k in range(4):
            idx = nb * 4 + k; gi, pos = idx // 7, idx % 7
            src = XR[m] + (i * 3 + gi) * 4 + pos // 2
            e(("v_and_b32 %s, 0xffff0000, %s" if pos & 1 else "v_lshlrev_b32 %s, 16, %s") % (v(20 + 4 * i + k), v(src)))
    for h in range(2):
        e("v_pk_add_f32 %s, %s, %s" % (v(o + 2 * h, 2), v(o + 2 * h, 2), v(20 + 2 * h, 2)))
        e("v_pk_add_f32 %s, %s, %s" % (v(24 + 2 * h, 2), v(24 + 2 * h, 2), v(28 + 2 * h, 2)))
    for h in range(2): e("v_pk_add_f32 %s, %s, %s" % (v(o + 2 * h, 2), v(o + 2 * h, 2), v(24 + 2 * h, 2)))

CV_G, CV_L, CV_X, LROW, L_FIN = 8, 11, 224, 336, 20480
def gen_t8(e):
    t = S_TMP
    mf = []
    NF = 20 * NSG
    for F in range(NF):
        sg, f = F // 20, F % 20
        m = 0 if sg < NSD else 1
        if opt("t8c", 1):
            j = f & 1; F0 = F - j
            d = v(t8_acc(m, f >> 1, j), 4)
            for i, half in enumerate((0, 1) if j == 0 else (1, 0)):
                mf.append("%s %s, %s, %s, %s" % (MF, d, t8_wf(F0 + half), t8_af(sg, half, j), "0" if (sg in (0, NSD) and i == 0) else d))
            continue
        for j in range(2):
            d = v(t8_acc(m, f % 10, j), 4)
            mf.append("%s %s, %s, %s, %s" % (MF, d, t8_wf(F), t8_af(sg, f // 10, j), "0" if (sg in (0, NSD) and f < 10) else d))
    G = Gaps(mf)
    DA = opt("t8d", 8)
    SIGS = opt("sigs", 2); CKS = opt("cks", 6); PLS = CKS - opt("polld", 1)
    bars = {}
    cur = 0
    for F in range(DA, NF):
        sg, f = F // 20, F % 20
        lo = 2 * (F - DA)
        if f == 0:
            if sg % 3 == 0:
                d = 61440 if sg % 6 == 3 else -61440
                G.place("v", ("v_add_u32 %s, %d, %s" % (v(TV_WR), d, v(TV_WR))) if d > 0 else ("v_subrev_u32 %s, %d, %s" % (v(TV_WR), -d, v(TV_WR))), cur - 1, cur - 1)
            pre = E(); post = E()
            if sg == CKS:
                stamp(pre, 11)
                pre("s_cmp_lg_u32 %s, 0\ns_cbranch_scc1 SPUN_O\ns_waitcnt SINCE{p3}" % s(S_WAVE))
                poll_spin(pre, False, s(K_FLG), 3, "O")
                stamp(post, 12)
            if sg == SIGS:
                post("s_cmp_lg_u32 %s, 0\ns_cbranch_scc1 NOSIG3" % s(S_WAVE))
                set_flag(post, 3)
                post("s_cmp_lg_u32 s2, 0\ns_cbranch_scc1 NOSIG3")
                post("s_add_u32 %s, %s, 0x10001\ns_mov_b64 exec, 1\nv_mov_b32 %s, %s\ns_mov_b32 %s, %d" % (s(t + 7), s(S_EPOCH), v(V_PL + 1), s(t + 7), s(t + 6), EP_OFF))
                post("buffer_store_dword %s, off, %s, %s sc1\ns_mov_b64 exec, -1" % (v(V_PL + 1), s(S_FL, 4), s(t + 6)))
                post("NOSIG3:")
                stamp(post, 10)
            if sg == PLS:
                post("s_cmp_lg_u32 %s, 0\ns_cbranch_scc1 NOPOLL3" % s(S_WAVE))
                post(poll_load(False, s(K_FLG)))
                post("NOPOLL3:\nMARK p3")
            b = G.place("b", "\n".join(cond_lines(pre.L) + ["s_barrier"] + cond_lines(post.L)), max(cur, lo - 1))
            lateA = NSD <= sg < NSD + opt("latea", 2)
            G.put(b, "s", "s_waitcnt WAITVM{D%d%s%s}" % (sg, "" if lateA else ",A%d" % sg, ",ost" if sg == SIGS else ""))
            if lateA: G.put(40 * sg - 1, "s", "s_waitcnt WAITVM{A%d}" % sg)
            bars[sg] = b; cur = b + 1
        cur = G.place("d", t8_read(F), max(cur, lo)) + 1
    qw = [(t8_w(sg), bars[sg - RW8 + 2] if sg >= RW8 else 0, sg) for sg in range(NPRE_G, NSG)]
    qa = [(t8_a(sg), max(40 * (sg - RA8 + 1) if sg >= RA8 else 0, bars[CKS] if sg >= NSD else 0), sg) for sg in range(NPRE_G, NSG)]
    DP = opt("dpub", 1)
    side = []
    if DP:
        side.append((publish(0), 40 * NSD + 8 + opt("dpd", 8)))
        side.append((xloads(0), 40 * opt("dld", 20)))
    if COAL:
        seq = []
        for i in range(3):
            seq += [("v", "v_add_u32 %s, %d, %s" % (v(CV_G + i), 64 * i, v(V_LANE))), ("v", "v_mul_u32_u24 %s, 6554, %s" % (v(36), v(CV_G + i))), ("v", "v_lshrrev_b32 %s, 16, %s" % (v(36), v(36))),
                    ("v", "v_lshlrev_b32 %s, 5, %s" % (v(CV_L + i), v(CV_G + i))), ("v", "v_mad_u32_u24 %s, %s, %d, %s" % (v(CV_L + i), v(36), LROW - 320, v(CV_L + i))),
                    ("v", "v_mul_u32_u24 %s, 1120, %s" % (v(36), v(36))), ("v", "v_lshl_add_u32 %s, %s, 4, %s" % (v(CV_G + i), v(CV_G + i), v(36))),
                    ("m", "buffer_load_dwordx4 %s, %s, %s, 0 offen ;#xx" % (v(CV_X + 4 * i, 4), v(CV_G + i), s(K_SX, 4)))]
        side.append((seq, 40 * opt("xld", 19)))
    else:
        side.append(([("m", "buffer_load_dwordx2 %s, %s, %s, 0 offen offset:%d ;#xx" % (v(KV_X + 2 * nb, 2), v(KV_XO), s(K_SX, 4), nb * 32)) for nb in range(5)], 40 * opt("xld", 19)))
    side.sort(key=lambda x: x[1])
    MG = opt("mg", 4)
    g = 0; lastm = -9
    while qw or qa:
        c = [x for x in (qw, qa) if x]
        c.sort(key=lambda x: (max(x[0][1], g), x[0][2]))
        seq, lo, _ = c[0].pop(0)
        g = max(g, lo)
        for k, x in seq:
            g = G.place(k, x, max(g + 1, lastm + MG if k == "m" else 0))
            if k == "m": lastm = g
    for seq, lo in side:
        g = lo; lastm = -99
        for k, x in seq:
            g = G.place(k, x, max(g + (0 if k == "v" else 1), lastm + (opt("smg", 24) if "xst" in x else 6) if k == "m" else 0))
            if k == "m": lastm = g
        if "xst0" in seq[-1][1]:
            G.va[g + 1].append("\n".join(own_write(0))); pubend = g + 1
    if DP: assert pubend < 40 * opt("dld", 20) - 40
    auto_lgkm(G, eager=opt("eag", 8))
    if VERBOSE: print("t8", G.pattern())
    for F in range(DA): e(t8_read(F))
    e("s_waitcnt lgkmcnt(0)")
    nm = 0
    for x in G.lines():
        if x.startswith("v_mfma"):
            if nm == 40 * NSD: stamp(e, 13)
            if STAMPS and opt("t8st", 0) and nm > 40 * NSD and (nm - 40 * NSD) % 160 == 0: stamp(e, 25 + (nm - 40 * NSD) // 160)
            nm += 1
        e(x)

def gen_tail(e0, head):
    e = E(); e.ext(head)
    T = V_T; t = S_TMP
    stamp(e, 8)
    Z = 240 + 8; C = 240 + 12
    for qb in range(4): e("v_add_f32 %s, %s, %s" % (v(V_L + 2 * qb), v(V_L + 2 * qb), v(V_L + 2 * qb + 1)))
    for qb in range(4): e("v_rcp_f32 %s, %s" % (v(T + 2 * qb), v(V_L + 2 * qb)))
    e("v_max3_f32 %s, %s, %s, %s" % (v(T + 8), v(V_L), v(V_L + 2), v(V_L + 4)))
    e("v_max_f32 %s, %s, %s" % (v(T + 8), v(T + 8), v(V_L + 6)))
    for qb in range(4): e("v_mov_b32 %s, %s" % (v(T + 2 * qb + 1), v(T + 2 * qb)))
    e("v_mul_f32 %s, %s, %s" % (v(T + 8), f2u(2.0 ** 64), v(T + 8)))
    e("v_mul_f32 %s, 0, %s" % (v(T + 8), v(T + 8)))
    for qb in range(4): e("v_fma_f32 %s, %s, 0, %s" % (v(T + 8), v(V_L + 2 * qb), v(T + 8)))
    for r in range(4): e("v_mov_b32 %s, 0" % v(Z + r))
    e("s_lshl_b32 %s, %s, 14" % (s(t + 2), s(S_HEAD)))
    W = T + 12
    wq = [x for sg in range(NPRE_X, NPRE_G) for x in t8_w(sg) + t8_a(sg)]
    def wsome(n):
        while wq and n > 0:
            k, x = wq.pop(0); n -= (k == "m")
            e(x + ("\ns_nop 0" if k == "s" else ""))
    wsome(opt("wpre", 0))
    for i in range(16):
        sl, qb = i // 4, i % 4
        d0 = 208 + 4 * (i % 4)
        for b in range(2):
            for r in range(4): e("v_accvgpr_read_b32 %s, %s" % (v(W + 4 * b + r), a(A_O + ((2 * sl + b) * 4 + qb) * 4 + r)))
        for h in range(4): e("v_pk_mul_f32 %s, %s, %s" % (v(W + 2 * h, 2), v(W + 2 * h, 2), v(T + 2 * qb, 2)))
        for h in range(4): e("v_cvt_pk_bf16_f32 %s, %s, %s" % (v(d0 + h), v(W + 2 * h), v(W + 2 * h + 1)))
        e("buffer_store_dwordx4 %s, %s, %s, %s offen offset:%d%s ;#ost" % (v(d0, 4), v(V_L16), s(S_AF, 4), s(t + 2), 1024 * qb, STFL))
        e("s_add_u32 %s, %s, 4096" % (s(t + 2), s(t + 2)) if qb == 3 else "s_nop 0")
        e("%s %s, %s, %s, %s" % (MF, v(C, 4), v(Z, 4), v(d0, 4), "0" if i == 0 else v(C, 4)))
        wsome(opt("wpg", 1))
    wsome(99)
    e("s_nop 7")
    e("v_cmp_u_f32 vcc, %s, %s" % (v(T + 8), v(C)))
    e("s_cmp_lg_u64 vcc, 0\ns_cselect_b32 %s, 1, 0" % s(t))
    e("v_mov_b32 %s, %s" % (v(W), s(t)))
    e("s_lshl_b32 %s, %s, 2\ns_add_u32 %s, %s, %d" % (s(t + 1), s(S_WAVE), s(t + 1), s(t + 1), L_MISC))
    e("v_mov_b32 %s, %s\nv_mov_b32 %s, %d" % (v(W + 1), s(t + 1), v(W + 2), L_MISC))
    e("ds_write_b32 %s, %s" % (v(W + 1), v(W)))
    e("s_waitcnt WAITVM{D0,A0} lgkmcnt(0)\ns_barrier")
    e("ds_read_b128 %s, %s" % (v(W + 4, 4), v(W + 2)))
    t8 = E(); gen_t8(t8)
    i0 = t8.L.index("s_waitcnt lgkmcnt(0)")
    e.ext(t8.L[:i0 + 1])
    e("v_or3_b32 %s, %s, %s, %s\nv_or_b32 %s, %s, %s\ns_nop 0" % (v(W + 4), v(W + 4), v(W + 5), v(W + 6), v(W + 4), v(W + 4), v(W + 7)))
    e("v_readfirstlane_b32 %s, %s" % (s(t), v(W + 4)))
    e("s_nop 3\ns_andn2_b32 %s, %s, %s" % (s(t), s(t), s(S_RETRY)))
    e("s_cbranch_scc1 ATT_RETRY")
    stamp(e, 9)
    e.ext(t8.L[i0 + 1:])
    stamp(e, 14)
    if REUSE:
        xcheck(e, 0, "s_waitcnt WAITVM{xr0,xx}")
        e("s_barrier")
        e("s_xor_b32 %s, %s, 0x80000000\nv_mov_b32 %s, %s" % (s(T_TAG), s(T_TAG), v(TV_TAG), s(T_TAG)))
    else:
        e("s_nop 6")
    for k, x in publish(1): e(x)
    stamp(e, 23)
    for x in own_write(1): e(x)
    e("v_add_u32 %s, %d, %s" % (v(52), L_OWN[0], v(TV_OR)))
    if REUSE:
        for i in range(3):
            e("s_and_b32 %s, s2, 3\ns_xor_b32 %s, %s, %d\ns_sub_u32 %s, %s, %s\ns_mul_i32 %s, %s, %d\ns_add_u32 %s, %s, %s\ns_add_u32 %s, %s, %d" % (
                s(t), s(t + 1), s(t), i + 1, s(t), s(t + 1), s(t), s(t), s(t), 3 * XPB, s(t), s(t), s(T_XO + 2), s(T_SL + i), s(t), i * XPB))
    e("s_waitcnt lgkmcnt(0)")
    e("s_barrier")
    for nb in range(5): e("ds_read_b128 %s, %s offset:%d" % (v(OWR[0] + 4 * nb, 4), v(52), nb * 1024))
    for nb in range(5): e("ds_read_b128 %s, %s offset:%d" % (v(OWR[1] + 4 * nb, 4), v(TV_OR), L_OWN[1] + nb * 1024))
    if REUSE: e("s_waitcnt lgkmcnt(0)")
    else: xcheck(e, 0, "s_waitcnt WAITVM{xr0,xx} lgkmcnt(0)")
    GG = 100; XU = 204
    e("v_mov_b32 %s, %s" % (v(36), f2u(1.0 / DSC)))
    for nb in range(5):
        d = OWR[0] + 4 * nb; gq = GG + 4 * nb
        xsum(e, 0, nb)
        for k in range(4): e("v_mul_f32 %s, %s, %s" % (v(gq + k), f2u(-math.log2(math.e) * DSC), v(d + k)))
        for k in range(4): e("v_exp_f32 %s, %s" % (v(gq + k), v(gq + k)))
        e("s_nop 0")
        for k in range(4): e("v_fma_f32 %s, %s, %s, %s" % (v(gq + k), v(gq + k), v(36), v(36)))
        for k in range(4): e("v_rcp_f32 %s, %s" % (v(gq + k), v(gq + k)))
        if not COAL:
            for h in range(2):
                e("v_lshlrev_b32 %s, 16, %s" % (v(XU + 4 * nb + 2 * h), v(KV_X + 2 * nb + h)))
                e("v_and_b32 %s, 0xffff0000, %s" % (v(XU + 4 * nb + 2 * h + 1), v(KV_X + 2 * nb + h)))
        else: e("s_nop 0")
        for k in range(4): e("v_mul_f32 %s, %s, %s" % (v(gq + k), v(gq + k), v(d + k)))
    if COAL:
        XU = 128
        for i in range(12):
            e("v_lshlrev_b32 %s, 16, %s\nv_and_b32 %s, 0xffff0000, %s" % (v(XU + 2 * i), v(CV_X + i), v(XU + 2 * i + 1), v(CV_X + i)))
        e("s_mul_i32 %s, %s, %d\ns_add_u32 %s, %s, %d" % (s(t), s(S_WAVE), 20 * LROW, s(t), s(t), L_FIN))
        e("v_and_b32 %s, 15, %s\nv_mul_u32_u24 %s, %d, %s\nv_lshrrev_b32 %s, 4, %s\nv_lshl_add_u32 %s, %s, 4, %s\nv_add_u32 %s, %s, %s" % (v(14), v(V_LANE), v(14), LROW, v(14), v(15), v(V_LANE), v(14), v(15), v(14), v(14), s(t), v(14)))
        for i in range(3): e("v_add_u32 %s, %s, %s" % (v(CV_L + i), s(t), v(CV_L + i)))
    stamp(e, 24)
    e("s_mov_b32 %s, 0" % s(t + 7))
    if REUSE:
        e("v_mov_b32 %s, %s\nv_writelane_b32 %s, %s, 0\nv_writelane_b32 %s, %s, 1\ns_movk_i32 %s, %d" % (v(31), s(T_SL + 2), v(31), s(T_SL), v(31), s(T_SL + 1), s(t + 3), 2048 + 1008 + 12))
    else:
        e("v_min_u32 %s, 2, %s\nv_mul_u32_u24 %s, %d, %s\ns_add_u32 %s, %s, %d" % (v(31), v(V_LANE), v(31), XPB, v(31), s(t + 3), s(T_XO + 2), 12 * XPB + 2048 + 1008 + 12))
    e("PROBE:")
    e("@buffer_load_dword %s, %s, %s, %s offen%s" % (v(30), v(31), s(T_XS, 4), s(t + 3), LDFL))
    e("s_waitcnt vmcnt(0)")
    e("v_xor_b32 %s, %s, %s\nv_cmp_lt_u32 vcc, 0xffff, %s" % (v(30), s(T_TAG), v(30), v(30)))
    e("s_add_u32 %s, %s, 1" % (s(t + 7), s(t + 7)))
    e("s_cmp_eq_u64 vcc, 0\ns_cbranch_scc1 PROBED")
    e("s_cmp_ge_u32 %s, 0x40000\ns_cbranch_scc1 PROBED" % s(t + 7))
    e("s_sleep %d\ns_branch PROBE" % opt("pslp", 12))
    e("PROBED:")
    for k, x in xloads(1): e(x)
    xcheck(e, 1, "s_waitcnt vmcnt(0)")
    stamp(e, 25)
    OFL = opt("ofl", "_sc1").replace("_", " ")
    for nb in range(5):
        o = OWR[1] + 4 * nb; gq = GG + 4 * nb; xu = XU + 4 * nb
        xsum(e, 1, nb)
        if COAL:
            for h in range(2): e("v_pk_mul_f32 %s, %s, %s" % (v(o + 2 * h, 2), v(o + 2 * h, 2), v(gq + 2 * h, 2)))
            e("ds_write_b128 %s, %s offset:%d" % (v(14), v(o, 4), nb * 64))
            continue
        for r in range(4): e("v_fma_f32 %s, %s, %s, %s" % (v(xu + r), v(o + r), v(gq + r), v(xu + r)))
        for h in range(2): e("v_cvt_pk_bf16_f32 %s, %s, %s" % (v(gq + h), v(xu + 2 * h), v(xu + 2 * h + 1)))
        e("buffer_store_dwordx2 %s, %s, %s, 0 offen offset:%d%s" % (v(gq, 2), v(KV_XO), s(K_SO, 4), nb * 32, OFL))
    if COAL:
        for i in range(3):
            for h in range(2): e("ds_read_b128 %s, %s offset:%d" % (v(64 + 8 * i + 4 * h, 4), v(CV_L + i), 16 * h))
        for i in range(3):
            e("s_waitcnt lgkmcnt(%d)" % (4 - 2 * i))
            for h in range(4): e("v_pk_add_f32 %s, %s, %s" % (v(64 + 8 * i + 2 * h, 2), v(64 + 8 * i + 2 * h, 2), v(XU + 8 * i + 2 * h, 2)))
            for h in range(4): e("v_cvt_pk_bf16_f32 %s, %s, %s" % (v(100 + 4 * i + h), v(64 + 8 * i + 2 * h), v(65 + 8 * i + 2 * h)))
            e("buffer_store_dwordx4 %s, %s, %s, 0 offen%s" % (v(100 + 4 * i, 4), v(CV_G + i), s(K_SO, 4), OFL))
    e0.ext([x.lstrip("@") for x in resolve_vm(e.L)])
    e = e0
    stamp(e, 15)
    if STAMPS: e("s_waitcnt vmcnt(0)")
    stamp(e, 16)
    stamp_fin(e)

def gen_kv_addr(e):
    T = V_T + 12; L = V_LANE
    e("v_and_b32 %s, 15, %s\nv_lshrrev_b32 %s, 4, %s\nv_xor_b32 %s, %s, %s" % (v(T), v(L), v(T + 1), v(L), v(T + 1), v(T + 1), v(T)))
    e("v_lshlrev_b32 %s, 8, %s\nv_lshl_add_u32 %s, %s, 4, %s" % (v(T), v(T), v(T), v(T + 1), v(T)))
    for sl in range(4): e("v_xor_b32 %s, %d, %s" % (v(V_KA + sl), sl * 64, v(T)))
    e("v_lshrrev_b32 %s, 2, %s\nv_and_b32 %s, 7, %s\nv_lshlrev_b32 %s, 8, %s\nv_lshl_add_u32 %s, %s, 5, %s" % (v(T), v(L), v(T + 1), v(T), v(T), v(T), v(T), v(T + 1), v(T)))
    e("v_and_b32 %s, 3, %s\nv_lshl_add_u32 %s, %s, 3, %s\nv_add_u32 %s, %d, %s" % (v(T + 1), v(L), v(T), v(T + 1), v(T), v(T), L_V, v(T)))
    for db in range(8): e("v_xor_b32 %s, %d, %s" % (v(V_VA + db), db * 32, v(T)))

def gen_retry(e):
    e("ATT_RETRY:")
    e("s_waitcnt vmcnt(0)\ns_mov_b32 %s, 1" % s(S_RETRY))
    gen_kv_addr(e)
    for qb in range(4): e("v_mov_b32 %s, 0xff800000" % v(V_NEGM + 4 * qb))
    e("s_mov_b32 %s, 0" % s(S_KVOFF))
    e("RETRY_LOOP:")
    e("s_barrier")
    e("s_add_u32 m0, %s, %d\ns_nop 0" % (s(S_M0K), L_K))
    e(kv_dma("K", 0)); e(kv_dma("K", 1))
    e("s_waitcnt vmcnt(0)\ns_barrier")
    for kb in range(2):
        for sl in range(4): e(k_read(kb, sl, 0))
    e("s_waitcnt lgkmcnt(0)")
    e.ext(qk_mfmas(0, czero=True))
    e("s_nop 7")
    for qb in range(4):
        b = Sreg(0, qb, 0); m = v(V_NEGM + 4 * qb)
        for k in range(4): e("v_max3_f32 %s, %s, %s, %s" % (m, m, v(b + 2 * k), v(b + 2 * k + 1)))
    e("s_add_u32 %s, %s, 8192\ns_cmp_lt_u32 %s, %d\ns_cbranch_scc1 RETRY_LOOP" % (s(S_KVOFF), s(S_KVOFF), s(S_KVOFF), 64 * 8192))
    e("s_barrier")
    kv_preload(e)
    e("s_barrier")
    for kb in range(2):
        for sl in range(4): e(k_read(kb, sl, 0))
    e.ext(ones_ops(V_T))
    for r in range(128): e("v_accvgpr_write_b32 %s, 0" % a(A_O + r))
    for r in range(8): e("v_mov_b32 %s, 0" % v(V_L + r))
    e("s_waitcnt lgkmcnt(0)")
    e.ext(qk_mfmas(0, czero=True))
    for kb in range(2):
        for sl in range(4): e(k_read(kb, sl, 8192))
    e("s_branch ATT_START")

def gen_common_setup(e):
    T = V_T + 12; L = V_LANE
    e("s_lshl2_add_u32 %s, %s, %s" % (s(S_TMP + 1), s(S_QT), s(S_WAVE)))
    e("s_mul_i32 %s, %s, %d" % (s(S_TMP), s(S_TMP + 1), NSLAB * 4096))
    srd(e, S_AF, ptr(11), s(S_TMP), NSLAB * 4096)
    e("s_mul_i32 %s, %s, %d\ns_add_u32 %s, %s, %d" % (s(S_TMP), s(S_TMP + 1), 20 * 4096, s(S_TMP), s(S_TMP), XF_OFF))
    srd(e, S_X, ptr(11), s(S_TMP), 20 * 4096)
    e("s_lshl_b32 %s, %s, 19" % (s(S_TMP), s(S_HEAD)))
    srd(e, S_K, ptr(1), s(S_TMP), 524288)
    srd(e, S_V, ptr(2), s(S_TMP), 524288 + VSH * 8192)
    e("s_sub_u32 %s, %s, %d\ns_subb_u32 %s, %s, 0" % (s(S_V), s(S_V), VSH * 8192, s(S_V + 1), s(S_V + 1)))
    e("v_bfe_u32 %s, %s, 2, 2\nv_lshrrev_b32 %s, 4, %s\nv_and_b32 %s, 3, %s" % (v(T), v(L), v(T + 1), v(L), v(T + 2), v(L)))
    e("v_lshlrev_b32 %s, 12, %s" % (v(T + 3), v(T + 1)))
    e("v_mul_u32_u24 %s, 320, %s\nv_add_u32 %s, %s, %s\nv_lshl_add_u32 %s, %s, 4, %s" % (v(T + 4), v(T), v(T + 4), v(T + 4), v(T + 3), v(T + 4), v(T + 2), v(T + 4)))
    for sl in range(4): e("v_xor_b32 %s, %d, %s" % (v(V_AQ + sl), sl * 64, v(T + 4)))
    e("v_lshl_add_u32 %s, %s, 7, %s\nv_lshl_add_u32 %s, %s, 3, %s" % (v(T + 4), v(T), v(T + 3), v(T + 4), v(T + 2), v(T + 4)))
    e("v_bfe_u32 %s, %s, 3, 2\nv_lshl_add_u32 %s, %s, 5, %s" % (v(T + 5), v(L), v(T + 4), v(T + 5), v(T + 4)))
    for u in range(4): e("v_xor_b32 %s, %d, %s" % (v(V_AG + u), u * 32, v(T + 4)))
    e("v_lshrrev_b32 %s, 4, %s\ns_lshl_b32 %s, %s, 3\nv_add_u32 %s, %s, %s\nv_and_b32 %s, 15, %s" % (v(T), v(L), s(S_TMP), s(S_WAVE), v(T), s(S_TMP), v(T), v(T + 1), v(L)))
    e("v_lshlrev_b32 %s, 8, %s" % (v(T + 2), v(T)))
    for i in range(2):
        e("v_add_u32 %s, %d, %s\nv_and_b32 %s, 15, %s\nv_xor_b32 %s, %s, %s\nv_lshl_add_u32 %s, %s, 4, %s" % (v(T + 3), 4 * i, v(T), v(T + 4), v(T + 3), v(T + 4), v(T + 4), v(T + 1), v(V_KD + i), v(T + 4), v(T + 2)))
        e("v_and_b32 %s, 7, %s\nv_lshlrev_b32 %s, 1, %s\nv_xor_b32 %s, %s, %s\nv_lshl_add_u32 %s, %s, 4, %s" % (v(T + 4), v(T + 3), v(T + 4), v(T + 4), v(T + 4), v(T + 4), v(T + 1), v(V_VD + i), v(T + 4), v(T + 2)))
    gen_kv_addr(e)

def gen_w_setup(e):
    T = V_T + 12; L = V_LANE
    e("v_lshrrev_b32 %s, 4, %s\nv_lshlrev_b32 %s, 2, %s\nv_and_b32 %s, 15, %s\nv_xor_b32 %s, %s, %s" % (v(T), v(L), v(T + 1), v(T), v(T + 2), v(L), v(T + 1), v(T + 1), v(T + 2)))
    e("v_lshlrev_b32 %s, 13, %s\nv_lshl_add_u32 %s, %s, 4, %s" % (v(T), v(T), v(V_WD), v(T + 1), v(T)))
    e("v_add_u32 %s, %d, %s" % (v(V_WD + 1), 4 * 8192 - 1024, v(V_WD)))
    e("v_lshrrev_b32 %s, 3, %s\nv_bfe_u32 %s, %s, 4, 1\nv_lshlrev_b32 %s, 1, %s" % (v(T), v(L), v(T + 1), v(L), v(T + 1), v(T + 1)))
    e("s_and_b32 %s, %s, 1\ns_lshl_b32 %s, %s, 2\nv_or_b32 %s, %s, %s" % (s(S_TMP), s(S_WAVE), s(S_TMP), s(S_TMP), v(T + 1), s(S_TMP), v(T + 1)))
    e("v_and_b32 %s, 7, %s\nv_xor_b32 %s, %s, %s" % (v(T + 2), v(L), v(T + 1), v(T + 1), v(T + 2)))
    e("v_mul_u32_u24 %s, 3456, %s\nv_lshl_add_u32 %s, %s, 4, %s" % (v(T), v(T), v(V_WD + 2), v(T + 1), v(T)))
    e("s_lshl_b32 %s, %s, 8\ns_sub_u32 %s, %d, %s" % (s(S_TMP), s(S_HEAD), s(S_TMP + 1), 640 * 8192, s(S_TMP)))
    srd(e, S_WQ, ptr(3), s(S_TMP), s(S_TMP + 1))
    for (d, p, sh) in ((S_WG, 6, 2048), (S_WU, 7, 3072)):
        e("s_lshl_b32 %s, %s, 7\ns_sub_u32 %s, %d, %s" % (s(S_TMP), s(S_FS), s(S_TMP + 1), 640 * 3456 + sh, s(S_TMP)))
        e("s_cmp_lt_u32 %s, 27\ns_cselect_b32 %s, %s, 0" % (s(S_FS), s(S_TMP + 1), s(S_TMP + 1)))
        srd(e, d, ptr(p), s(S_TMP), s(S_TMP + 1))
        e("s_sub_u32 %s, %s, %d\ns_subb_u32 %s, %s, 0" % (s(d), s(d), sh, s(d + 1), s(d + 1)))

def gen_kernel(e, name):
    T = V_T; L = V_LANE
    e(".text\n.globl %s\n.p2align 8\n.type %s,@function\n%s:" % (name, name, name))
    e("s_cmp_ge_u32 s2, 256\ns_cbranch_scc1 K_END")
    e("s_load_dwordx8 %s, s[0:1], 0\ns_load_dwordx8 %s, s[0:1], 32\ns_load_dwordx8 %s, s[0:1], 64" % (s(S_PTR, 8), s(S_PTR + 8, 8), s(S_PTR + 16, 8)))
    e("v_and_b32 %s, 63, v0\nv_lshrrev_b32 %s, 6, v0\nv_lshlrev_b32 %s, 4, %s\nv_readfirstlane_b32 %s, %s" % (v(L), v(T), v(V_L16), v(L), s(S_WAVE), v(T)))
    e("s_and_b32 %s, s2, 7\ns_lshr_b32 %s, s2, 3\ns_and_b32 %s, %s, 3\ns_lshr_b32 %s, %s, 2" % (s(S_TMP), s(S_TMP + 1), s(S_HL), s(S_TMP + 1), s(S_QT), s(S_TMP + 1)))
    e("s_lshl_b32 %s, %s, 2\ns_add_u32 %s, %s, %s" % (s(S_HEAD), s(S_TMP), s(S_HEAD), s(S_HEAD), s(S_HL)))
    e("s_lshl_b32 %s, %s, 3\ns_add_u32 %s, %s, %s" % (s(S_FS), s(S_HL), s(S_FS), s(S_FS), s(S_TMP)))
    e("s_mov_b32 %s, 0" % s(S_RETRY))
    e("s_lshl_b32 %s, %s, 12\ns_lshl_b32 %s, %s, 11" % (s(S_M0W), s(S_WAVE), s(S_M0K), s(S_WAVE)))
    if STAMPS: e("v_mov_b32 v0, -1\nv_mov_b32 v19, -1")
    stamp(e, 0)
    def codetouch(e):
        e("s_getpc_b64 %s\nCODE0:" % s(S_TMP + 4, 2))
        e("s_lshr_b32 %s, s2, 3\ns_lshl2_add_u32 %s, %s, %s\ns_mul_i32 %s, %s, 640" % (s(S_EVT + 6), s(S_EVT + 6), s(S_EVT + 6), s(S_WAVE), s(S_EVT + 6), s(S_EVT + 6)))
        e("v_min_u32 %s, 4, %s\nv_lshlrev_b32 %s, 7, %s\nv_add_u32 %s, %s, %s\nv_min_u32 %s, CODE1-CODE0-4, %s" % (v(8), v(L), v(8), v(8), v(8), s(S_EVT + 6), v(8), v(8), v(8)))
        e("global_load_dword %s, %s, %s" % (v(V_PL), v(8), s(S_TMP + 4, 2)))
    CPOS = opt("cpos", 0); WPOS = opt("wpos", 0)
    if CPOS == 0: codetouch(e)
    gen_ln_loads(e)
    e("s_add_u32 %s, %s, %d\ns_addc_u32 %s, %s, 0\ns_load_dword %s, %s, 0" % (s(S_TMP + 2), s(ptr(11)), FL_OFF + EP_OFF, s(S_TMP + 3), s(ptr(11) + 1), s(S_EPOCH), s(S_TMP + 2, 2)))
    ny = 0
    if CPOS == 1: codetouch(e); ny += 1
    gen_w_setup(e)
    e("s_lshl_b32 %s, %s, 16\ns_mul_i32 %s, %s, %d" % (s(S_WQOFF), s(S_WAVE), s(S_WGOFF), s(S_WAVE), 8 * 3456))
    WT = max(opt("wt", 6), 1)
    X = V_TC
    e("s_lshl2_add_u32 %s, %s, %s\ns_add_u32 %s, %s, %d" % (s(S_TMP), s(S_QT), s(S_WAVE), s(S_TMP), s(S_TMP), 32 * NI))
    e("v_lshrrev_b32 %s, 1, %s\nv_min_u32 %s, %d, %s\nv_lshlrev_b32 %s, 5, %s\nv_add_u32 %s, %s, %s" % (v(X), v(L), v(X), WT - 1, v(X), v(X), v(X), v(X), s(S_TMP), v(X)))
    e("v_and_b32 %s, 1, %s\nv_lshlrev_b32 %s, 7, %s\nv_lshl_add_u32 %s, %s, 13, %s\nv_mul_u32_u24 %s, 3456, %s" % (v(X + 1), v(L), v(X + 1), v(X + 1), v(X + 1), v(X), v(X + 1), v(X), v(X)))
    w0 = E(); wt = E()
    for sl in range(NI): w_slab(w0, sl, True)
    wt("buffer_load_dword %s, %s, %s, 0 offen" % (v(V_PL + 1), v(X + 1), s(S_WQ, 4)))
    wt("buffer_load_dword %s, %s, %s, 0 offen offset:2048" % (v(V_PL + 2), v(X), s(S_WG, 4)))
    wt("buffer_load_dword %s, %s, %s, 0 offen offset:3072" % (v(V_DUMP), v(X), s(S_WU, 4)))
    if opt("wt", 6) == 0: wt.L = []
    early = {0: w0.L + wt.L, 1: [], 2: w0.L, 3: w0.L}[WPOS]
    mid = {0: [], 1: w0.L + wt.L, 2: wt.L, 3: []}[WPOS]
    after = wt.L if WPOS == 3 else []
    e.ext(early); ny += sum(x.startswith("buffer") for x in early)
    LATE = opt("late", 2)
    srd(e, S_FL, ptr(11), FL_OFF, EP_OFF + 4096)
    e("s_lshl_b32 %s, %s, 5\ns_add_u32 %s, %s, %s\ns_lshl_b32 %s, %s, %d" % (s(S_MYFL), s(S_QT), s(S_MYFL), s(S_MYFL), s(S_HEAD), s(S_MYFL), s(S_MYFL), FSH))
    e("v_min_u32 %s, 31, %s\nv_lshlrev_b32 %s, %d, %s\ns_lshl_b32 %s, %s, %d" % (v(V_PL + 3), v(L), v(V_PL + 3), FSH, v(V_PL + 3), s(S_XOFF), s(S_QT), FSH + 5))
    def rest():
        gen_common_setup(e)
        for i in range(8): e("v_add_u32 %s, 65536, %s" % (v(V_AHI + i), v(V_AQ + i)))
    stamp(e, 1)
    gen_ln_compute(e, ny, mid)
    e.ext(after)
    stamp(e, 29)
    if LATE == 1: rest()
    e("s_mul_i32 %s, %s, 0x9e3779b1\ns_add_u32 %s, %s, 0x7f4a7c15" % (s(S_TAG), s(S_EPOCH), s(S_TAG), s(S_TAG)))
    e("s_waitcnt vmcnt(%d)\ns_barrier" % len(after))
    stamp(e, 18)
    e("s_cmp_lg_u32 %s, 0\ns_cbranch_scc1 NOFL1" % s(S_WAVE))
    set_flag(e, 1)
    e("NOFL1:")
    if LATE == 2: rest()
    e("s_cmp_lg_u32 %s, 0\ns_cbranch_scc1 SPUN_XN" % s(S_WAVE))
    e(poll_load(False, s(S_XOFF)))
    e("s_waitcnt vmcnt(0)")
    poll_spin(e, False, s(S_XOFF), 1, "XN")
    e("s_barrier")
    stamp(e, 2)
    e("s_cmp_ge_u32 %s, 27\ns_cbranch_scc1 LIGHT" % s(S_FS))
    gen_proj(e, True, "H")
    e("PROJ_DONE:")
    head = gen_attention(e)
    gen_tail(e, head)
    e("K_END:\ns_endpgm")
    gen_events(e)
    gen_retry(e)
    e("LIGHT:")
    gen_proj(e, False, "L")
    e("s_branch PROJ_DONE")
    e("CODE1:")
    e(kd(name))

def main():
    e = E()
    hdr = open("cdna_kernels/%s.s.ref" % NAME).read().split("; Override launch")[0]
    e.L += hdr.strip().split("\n")
    e("; @launch grid=(256,1,1) block=(256,1,1) lds=%d" % LDS_BYTES)
    e('.amdgcn_target "amdgcn-amd-amdhsa--gfx950"')
    gen_kernel(e, NAME + "_kernel")
    t = re.sub(r" ;#\w*", "", e.text())
    errs = [x for x in asmcheck.check(t, [NAME + "_kernel"]) if x.count("_load_dword v%d," % V_DUMP) != 2 and not any(y in x for y in poll_load(True).split("\n")[-4:])]
    if errs:
        print("\n".join(errs[:40])); print(len(errs), "problems")
    out = [x for x in sys.argv[1:] if x.endswith(".s")]
    open(out[0] if out else "cdna_kernels/%s.s" % NAME, "w").write(t)

if __name__ == "__main__":
    main()
```

```python
import sys, math, os, struct, re
from sched import Gaps, auto_lgkm
import asmcheck

NAME = "recurrent_scan__mha_block_cached__glu_gated_reglu__prompt"
MF = "v_mfma_f32_16x16x32_bf16"
OPT = dict(x.split("=") for x in sys.argv[1:] if "=" in x)
def opt(k, d): return type(d)(OPT.get(k, d))
VERBOSE = "-v" in sys.argv
STAMPS = "--stamps" in sys.argv
STFL = opt("stfl", " sc1").replace("_", " ")
LDFL = opt("ldfl", " sc1").replace("_", " ")

NSLAB = 182
QSC = math.log2(math.e) / math.sqrt(128.0)
DSC = 1.0 / (QSC * QSC)
WF_OFF = 0x1800000
WF_BYTES = 8 * NSLAB * 5120
XF_OFF = 0x2000000
XP_OFF = 0x2800000
MAXST = 4
FL_OFF = 0x2400000

class E:
    def __init__(self): self.L = []
    def __call__(self, s):
        for x in s.split("\n"):
            x = x.strip()
            if x: self.L.append(x)
    def ext(self, l): self.L += l
    def text(self): return "\n".join(self.L) + "\n"

def v(a, n=1): return "v%d" % a if n == 1 else "v[%d:%d]" % (a, a + n - 1)
def a(a_, n=1): return "a%d" % a_ if n == 1 else "a[%d:%d]" % (a_, a_ + n - 1)
def s(a_, n=1): return "s%d" % a_ if n == 1 else "s[%d:%d]" % (a_, a_ + n - 1)
def f2u(x): return "0x%08x" % struct.unpack("<I", struct.pack("<f", x))[0]

def kd(name, vgpr=512, acc=256):
    return """.section .rodata,"a"
.p2align 6
.amdhsa_kernel %s
  .amdhsa_next_free_vgpr %d
  .amdhsa_next_free_sgpr 102
  .amdhsa_accum_offset %d
  .amdhsa_group_segment_fixed_size 0
  .amdhsa_kernarg_size 96
  .amdhsa_user_sgpr_count 2
  .amdhsa_user_sgpr_kernarg_segment_ptr 1
  .amdhsa_system_sgpr_workgroup_id_x 1
.end_amdhsa_kernel
""" % (name, vgpr, acc)

def stamp(e, i):
    if not STAMPS: return
    e("s_waitcnt lgkmcnt(0)\ns_memtime s[98:99]\ns_memrealtime s[100:101]\ns_waitcnt lgkmcnt(0)")
    e("v_writelane_b32 v0, s98, %d\nv_writelane_b32 v19, s100, %d" % (i, i))
def stamp_fin(e):
    if not STAMPS: return
    if opt("echo", ""):
        i, j = [int(x) for x in opt("echo", "").split(".")]
        e("s_nop 1\nv_readlane_b32 s96, v19, %d\nv_readlane_b32 s97, v19, %d\nv_readlane_b32 s98, v19, 16\ns_nop 3\ns_sub_u32 s96, s97, s96\ns_min_u32 s96, s96, 20000\ns_cmp_%s_u32 %s, 27\ns_cselect_b32 s96, s96, 0" % (i, j, "ge" if opt("el", 0) else "lt", s(S_FS)))
        if opt("eabs", 0): e("v_readlane_b32 s98, v19, %d\ns_add_u32 s96, s96, 10000\ns_nop 3" % i)
        e("ECHO:\ns_sleep 1\ns_memrealtime s[100:101]\ns_waitcnt lgkmcnt(0)\ns_sub_u32 s97, s100, s98\ns_cmp_lt_u32 s97, s96\ns_cbranch_scc1 ECHO")
        return
    if opt("dbgout", -1) >= 0:
        e("s_cmp_lg_u32 s2, %d\ns_cbranch_scc1 NODBG\ns_cmp_lg_u32 %s, 0\ns_cbranch_scc1 NODBG" % (opt("dbgout", -1), s(S_WAVE)))
        e("v_readlane_b32 s98, v19, 0\ns_nop 3\nv_subrev_u32 v18, s98, v19\nv_lshlrev_b32 v20, 2, v1\nv_subrev_u32 v20, 4, v20")
        e("s_mov_b32 s96, %s\ns_mov_b32 s97, %s\ns_mov_b32 s98, 64\ns_mov_b32 s99, 0x20000" % (s(ptr(10)), s(ptr(10) + 1)))
        e("buffer_store_dword v18, v20, s[96:99], 0 offen\ns_waitcnt vmcnt(0)\nNODBG:")
        return
    if opt("wsb", 0): e("s_sub_u32 %s, %s, %d\ns_subb_u32 %s, %s, 0" % (s(ptr(11)), s(ptr(11)), opt("wsb", 0) << 20, s(ptr(11) + 1), s(ptr(11) + 1)))
    e("s_lshl_b32 s98, s2, 2\ns_add_u32 s98, s98, %s\ns_lshl_b32 s98, s98, 9\ns_add_u32 s98, s98, %d" % (s(S_WAVE), 0x4000000))
    e("s_add_u32 s96, %s, s98\ns_addc_u32 s97, %s, 0\ns_mov_b32 s98, 512\ns_mov_b32 s99, 0x20000" % (s(ptr(11)), s(ptr(11) + 1)))
    e("v_mov_b32 v18, v0\nv_lshlrev_b32 v20, 3, v1\nbuffer_store_dwordx2 v[18:19], v20, s[96:99], 0 offen\ns_waitcnt vmcnt(0)")

def srd(e, d, base, off_lo, nbytes):
    e("s_add_u32 %s, %s, %s" % (s(d), s(base), off_lo))
    e("s_addc_u32 %s, %s, 0" % (s(d + 1), s(base + 1)))
    e("s_mov_b32 %s, %s" % (s(d + 2), nbytes))
    e("s_mov_b32 %s, 0x20000" % s(d + 3))

def uncond(x): return False
def resolve_vm(lines):
    out = []; ops = []; waited = set(); lastm0 = None; done = 0; marks = {}
    for x in lines:
        mm = re.search(r"vmcnt\((\d+)\)", x)
        if mm and not x.startswith("@") and uncond(x): done = max(done, len(ops) - int(mm.group(1)))
        if x.startswith(("buffer_", "global_")) and len(ops) - done >= 58:
            out.append("s_waitcnt vmcnt(52)"); done = len(ops) - 52
        if x.startswith("s_add_u32 m0,"): lastm0 = x.split(",")[1].strip()
        if " lds" in x and ";#" in x:
            tg = x.split(";#")[1].strip()
            exp = s(S_M0W) if tg.startswith("w") else (s(S_TRM) if tg == "trs" else s(S_M0K))
            if tg.startswith("D"): exp = s(T_M0W)
            assert lastm0 == exp, "M0 collision at %s" % x
        if x.startswith("MARK"):
            marks[x.split()[1]] = len(ops); continue
        m = re.search(r"SINCE\{(\w+)\}", x)
        if m: x = x.replace(m.group(0), "vmcnt(%d)" % min(63, len(ops) - marks[m.group(1)]))
        m = re.search(r"WAITVM\{([^}]*)\}", x)
        if m:
            need = set(m.group(1).split(","))
            waited |= need
            idx = [i for i, t in enumerate(ops) if t in need]
            n = len(ops) - 1 - max(idx) if idx else 63
            done = max(done, len(ops) - min(n, 63))
            x = x.replace(m.group(0), "vmcnt(%d)" % min(n, 63))
        elif x.startswith(("buffer_", "global_")):
            t = x.split(";#")[1].strip() if ";#" in x else ""
            assert t not in waited, "op %s issued after its wait" % t
            ops.append(t)
        out.append(x)
    return out

S_FL = 4
S_X, S_WQ, S_WG, S_WU, S_K, S_V, S_AF, S_T, S_WF = 8, 12, 16, 20, 24, 28, 32, 36, 40
S_PTR = 44
S_WAVE, S_HEAD, S_QT, S_FS = 68, 69, 70, 71
S_XOFF, S_WQOFF, S_WGOFF, S_M0W = 72, 73, 74, 75
S_KVOFF, S_M0K, S_TOG, S_RETRY = 76, 77, 78, 79
S_TMP = 80
S_TRS, S_TRM, S_TRD, S_TRU = 88, 89, 90, 91
S_EPOCH, S_TAG, S_MYFL = 92, 93, 94
S_HL = 3
S_EVT = 85
def EV(n): return (10 + 2 * n) * 8192
EVT0 = EV(3)
EVTE = (62 + 10) * 8192
NWH = opt("nwh", 0)
S_LN = 84
def ptr(i): return S_PTR + 2 * i

L_K = 0
L_V = 65536
RW = 8
L_TR = 114688
L_MISC = 155648
LDS_BYTES = 163840

V_LANE = 1
V_L16 = 2
V_WD = 3
V_TRA = 6
V_AQ = 10
V_AG = 14
V_KA = 20
V_VA = 24
V_KD = 32
V_VD = 34
V_DUMP = 18
V_SIDX = 7
V_ZA = 6
NL = 2
VSH = 4
NOE = 4
V_PW = 5
PWARM = opt("pw", 0)
V_TC = 62
V_PL = 36
V_T = 40
V_ACCQ = 64
V_ACCG = 192
V_Q = 64
V_S = 128
V_P = 192
V_NEGM = 224
V_L = 240
A_ACCU = 0
XD = 8
A_X = 64
A_W = 192
A_TR = 208
V_ONE = 56
A_O = 64
A_KF = 224
A_KF1 = 192
A_VF = 0
V_AHI = 44

def qacc(blk, qb): return (V_S if blk & 1 else V_Q) + ((blk >> 1) * 4 + qb) * 4
def wslot(sl): return (sl + 4) % RW
def accreg(blk, qb):
    if blk < 8: return v(qacc(blk, qb), 4)
    if blk < 12: return v(V_ACCG + ((blk - 8) * 4 + qb) * 4, 4)
    return a(A_ACCU + ((blk - 12) * 4 + qb) * 4, 4)

def w_read(dst, blk, j, rel):
    if blk < 8:
        ar = V_AQ + (blk >> 1); off = rel + j * 1024 + (blk & 1) * 8
    else:
        ar = V_AG + ((blk - 8) & 3); off = rel + 2048 + (1024 if blk >= 12 else 0) + j * 512
    if rel >= 65536: ar += V_AHI - V_AQ; off -= 65536
    assert 0 <= off < 65536
    return "ds_read_b64_tr_b16 %s, %s offset:%d" % (a(dst + 2 * j, 2), v(ar), off)

def w_dma(heavy, tag):
    l = ["buffer_load_dwordx4 %s, %s, %s offen lds ;#%s" % (v(V_WD), s(S_WQ, 4), s(S_WQOFF), tag),
         "buffer_load_dwordx4 %s, %s, %s offen offset:1024 lds ;#%s" % (v(V_WD + 1), s(S_WQ, 4), s(S_WQOFF), tag)]
    if heavy:
        l += ["buffer_load_dwordx4 %s, %s, %s offen offset:2048 lds ;#%s" % (v(V_WD + 2), s(S_WG, 4), s(S_WGOFF), tag),
              "buffer_load_dwordx4 %s, %s, %s offen offset:3072 lds ;#%s" % (v(V_WD + 2), s(S_WU, 4), s(S_WGOFF), tag)]
    return l

def x_load(sl, qb):
    return "buffer_load_dwordx4 %s, %s, %s, %s offen offset:%d%s ;#x%d" % (a(A_X + ((sl % XD) * 4 + qb) * 4, 4), v(V_L16), s(S_X, 4), s(S_XOFF), qb * 1024, LDFL, sl)

def kv_dma(which, i, tag=""):
    vo = (V_KD if which == "K" else V_VD) + i
    return "buffer_load_dwordx4 %s, %s, %s offen offset:%d%s lds ;#%s" % (v(vo), s(S_K if which == "K" else S_V, 4), s(S_KVOFF), 1024 * i, opt("kvfl", "_sc1").replace("_", " "), tag)

FSH = opt("fsh", 2)
EP_OFF = 65536
def set_flag(e, stage):
    if opt("fwide", 0):
        n = (1 << FSH) // 8
        e("s_add_u32 %s, %s, %d\ns_mov_b64 exec, 0x%x\nv_mov_b32 %s, %s\nv_mov_b32 %s, %s\nv_lshlrev_b32 %s, 3, %s" % (s(S_TMP + 7), s(S_TAG), stage, (1 << n) - 1, v(V_PL), s(S_TMP + 7), v(V_PL + 1), s(S_TMP + 7), v(V_PL + 2), v(V_LANE)))
        e("buffer_store_dwordx2 %s, %s, %s, %s offen sc1" % (v(V_PL, 2), v(V_PL + 2), s(S_FL, 4), s(S_MYFL)))
    else:
        e("s_add_u32 %s, %s, %d\ns_mov_b64 exec, 1\nv_mov_b32 %s, %s" % (s(S_TMP + 7), s(S_TAG), stage, v(V_PL), s(S_TMP + 7)))
        e("buffer_store_dword %s, off, %s, %s sc1" % (v(V_PL), s(S_FL, 4), s(S_MYFL)))
    e("s_mov_b64 exec, -1")

def poll_load(allq, qoff=None):
    if allq and FSH > 2:
        return "v_lshlrev_b32 %s, %d, %s\n" % (v(V_DUMP), FSH + 2, v(V_LANE)) + "\n".join("buffer_load_dword %s, %s, %s, 0 offen offset:%d sc1" % (v(V_PL + i), v(V_DUMP), s(S_FL, 4), i << FSH) for i in range(4))
    if allq: return "buffer_load_dwordx4 %s, %s, %s, 0 offen sc1" % (v(V_PL, 4), v(V_L16), s(S_FL, 4))
    return "buffer_load_dword %s, %s, %s, %s offen sc1" % (v(V_PL), v(V_PL + 3), s(S_FL, 4), qoff)

def poll_spin(e, allq, qoff, stage, tag):
    e("s_mov_b32 %s, 0\ns_add_u32 %s, %s, %d" % (s(S_TMP + 7), s(S_TMP + 6), s(S_TAG), stage))
    e("SPIN_%s:" % tag)
    n = 4 if allq else 1
    for i in range(n): e("v_subrev_u32 %s, %s, %s" % (v(V_PL + i), s(S_TMP + 6), v(V_PL + i)))
    if allq: e("v_max3_u32 %s, %s, %s, %s\nv_max_u32 %s, %s, %s" % (v(V_PL), v(V_PL), v(V_PL + 1), v(V_PL + 2), v(V_PL), v(V_PL), v(V_PL + 3)))
    e("v_cmp_lt_u32 vcc, %d, %s" % (MAXST - stage, v(V_PL)))
    e("s_add_u32 %s, %s, 1" % (s(S_TMP + 7), s(S_TMP + 7)))
    e("s_cmp_eq_u64 vcc, 0\ns_cbranch_scc1 SPUN_%s" % tag)
    e("s_cmp_ge_u32 %s, 0x40000\ns_cbranch_scc1 SPUN_%s" % (s(S_TMP + 7), tag))
    e("s_sleep %d" % opt("slp", 2))
    e(poll_load(allq, qoff))
    e("s_waitcnt vmcnt(0)\ns_branch SPIN_%s" % tag)
    e("SPUN_%s:" % tag)

def zero_acc(e, heavy=True):
    for r in range(V_ACCQ, 256): e("v_mov_b32 %s, 0" % v(r))
    for r in range(A_ACCU, A_ACCU + 64): e("v_accvgpr_write_b32 %s, 0" % a(r))

NI = opt("ni", 1)

def gen_ln_loads(e):
    T = V_T; L = V_LANE
    R = V_ACCQ
    e("v_bfe_u32 %s, %s, 1, 3\nv_lshrrev_b32 %s, 4, %s\nv_and_b32 %s, 1, %s" % (v(T), v(L), v(T + 1), v(L), v(T + 2), v(L)))
    e("v_mul_u32_u24 %s, 1280, %s\nv_lshl_add_u32 %s, %s, 4, %s\nv_lshl_add_u32 %s, %s, 3, %s" % (v(T + 3), v(T), v(T + 3), v(T + 1), v(T + 3), v(T + 3), v(T + 2), v(T + 3)))
    e("s_lshl_b32 %s, %s, 5\ns_add_u32 %s, %s, %s\ns_mul_i32 %s, %s, %d\ns_mul_i32 %s, %s, 320" % (s(S_TMP), s(S_QT), s(S_TMP), s(S_TMP), s(S_HEAD), s(S_TMP), s(S_TMP), 8 * 1280, s(S_TMP + 1), s(S_WAVE)))
    e("s_waitcnt lgkmcnt(0)")
    if opt("wsb", 0): e("s_add_u32 %s, %s, %d\ns_addc_u32 %s, %s, 0" % (s(ptr(11)), s(ptr(11)), opt("wsb", 0) << 20, s(ptr(11) + 1), s(ptr(11) + 1)))
    srd(e, S_T, ptr(0), s(S_TMP), 8 * 1280)
    for i in range(5): e("buffer_load_dwordx2 %s, %s, %s, %s offen offset:%d" % (v(R + 2 * i, 2), v(T + 3), s(S_T, 4), s(S_TMP + 1), 64 * i))

def gen_ln_compute(e, nyounger, mid=()):
    T = V_T; L = V_LANE
    R = V_ACCQ; U = R + 10
    e("v_and_b32 %s, 15, %s\nv_lshlrev_b32 %s, 3, %s\nv_lshl_add_u32 %s, %s, 8, %s" % (v(T + 3), v(L), v(T + 3), v(T + 3), v(T + 3), v(T + 1), v(T + 3)))
    e("s_lshr_b32 %s, %s, 3\ns_lshl2_add_u32 %s, %s, %s\ns_mul_i32 %s, %s, %d" % (s(S_TMP), s(S_HEAD), s(S_TMP), s(S_QT), s(S_TMP), s(S_TMP), s(S_TMP), 20 * 4096))
    e("s_bfe_u32 %s, %s, 0x20001\ns_lshl_b32 %s, %s, 10\ns_add_u32 %s, %s, %s" % (s(S_TMP + 1), s(S_HEAD), s(S_TMP + 1), s(S_TMP + 1), s(S_TMP), s(S_TMP), s(S_TMP + 1)))
    e("s_and_b32 %s, %s, 1\ns_lshl_b32 %s, %s, 7\ns_add_u32 %s, %s, %s\ns_add_u32 %s, %s, %d" % (s(S_TMP + 1), s(S_HEAD), s(S_TMP + 1), s(S_TMP + 1), s(S_TMP), s(S_TMP), s(S_TMP + 1), s(S_TMP), s(S_TMP), XF_OFF))
    srd(e, S_LN, ptr(11), s(S_TMP), 20 * 4096)
    e("s_mul_i32 %s, %s, %d" % (s(S_TMP), s(S_WAVE), 5 * 4096))
    e("v_lshlrev_b32 %s, 5, %s\nv_add_u32 %s, %d, %s\ns_lshl_b32 %s, %s, 3\nv_add_u32 %s, %s, %s" % (v(T + 4), v(T), v(T + 4), L_MISC, v(T + 4), s(S_TMP + 1), s(S_WAVE), v(T + 5), s(S_TMP + 1), v(T + 4)))
    A0 = T + 6; M = T + 8
    e("s_waitcnt vmcnt(%d)" % nyounger)
    stamp(e, 17)
    e.ext(list(mid))
    for d in range(10): e("v_lshlrev_b32 %s, 16, %s\nv_and_b32 %s, 0xffff0000, %s" % (v(U + 2 * d), v(R + d), v(U + 2 * d + 1), v(R + d)))
    e("v_pk_add_f32 %s, %s, %s\nv_pk_add_f32 %s, %s, %s" % (v(A0, 2), v(U, 2), v(U + 2, 2), v(M, 2), v(U + 4, 2), v(U + 6, 2)))
    for d in range(4, 10): e("v_pk_add_f32 %s, %s, %s" % (v((A0, M)[d & 1], 2), v((A0, M)[d & 1], 2), v(U + 2 * d, 2)))
    def reduce(dst):
        e("v_pk_add_f32 %s, %s, %s" % (v(A0, 2), v(A0, 2), v(M, 2) if dst == M else v(T + 10, 2)))
        e("v_add_f32 %s, %s, %s\ns_nop 1" % (v(A0), v(A0), v(A0 + 1)))
        e("v_add_f32_dpp %s, %s, %s quad_perm:[1,0,3,2] row_mask:0xf bank_mask:0xf" % (v(A0), v(A0), v(A0)))
        for sw in ("v_permlane32_swap_b32", "v_permlane16_swap_b32"):
            e("v_mov_b32 %s, %s\ns_nop 1\n%s %s, %s\nv_add_f32 %s, %s, %s" % (v(A0 + 1), v(A0), sw, v(A0), v(A0 + 1), v(A0), v(A0), v(A0 + 1)))
    reduce(M)
    e("v_mul_f32 %s, %s, %s\nv_mul_f32 %s, %s, %s" % (v(M), f2u(-1.0 / 160), v(A0), v(M + 1), f2u(-1.0 / 160), v(A0)))
    for d in range(10): e("v_pk_add_f32 %s, %s, %s" % (v(U + 2 * d, 2), v(U + 2 * d, 2), v(M, 2)))
    e("v_pk_mul_f32 %s, %s, %s\nv_pk_mul_f32 %s, %s, %s" % (v(A0, 2), v(U, 2), v(U, 2), v(T + 10, 2), v(U + 2, 2), v(U + 2, 2)))
    for d in range(2, 10): e("v_pk_fma_f32 %s, %s, %s, %s" % (v((A0, T + 10)[d & 1], 2), v(U + 2 * d, 2), v(U + 2 * d, 2), v((A0, T + 10)[d & 1], 2)))
    reduce(None)
    e("v_mov_b32 %s, %s" % (v(M + 1), v(A0)))
    e("ds_write_b64 %s, %s\ns_waitcnt lgkmcnt(0)\ns_barrier" % (v(T + 5), v(M, 2)))
    X = T + 12
    e("ds_read_b128 %s, %s\nds_read_b128 %s, %s offset:16\ns_waitcnt lgkmcnt(0)" % (v(X, 4), v(T + 4), v(X + 4, 4), v(T + 4)))
    e("v_pk_add_f32 %s, %s, %s\nv_pk_add_f32 %s, %s, %s\nv_pk_add_f32 %s, %s, %s" % (v(A0, 2), v(X, 2), v(X + 2, 2), v(T + 10, 2), v(X + 4, 2), v(X + 6, 2), v(A0, 2), v(A0, 2), v(T + 10, 2)))
    e("v_mul_f32 %s, 0.25, %s" % (v(A0), v(A0)) if False else "v_mul_f32 %s, %s, %s" % (v(A0), f2u(0.25), v(A0)))
    for k in range(4): e("v_sub_f32 %s, %s, %s" % (v(X + 2 * k), v(X + 2 * k), v(A0)))
    e("v_mul_f32 %s, %s, %s" % (v(X + 1), v(X), v(X)))
    for k in range(1, 4): e("v_fmac_f32 %s, %s, %s" % (v(X + 1), v(X + 2 * k), v(X + 2 * k)))
    e("v_fmac_f32 %s, %s, %s" % (v(A0 + 1), f2u(160.0), v(X + 1)))
    e("v_mov_b32 %s, %s\nv_fmac_f32 %s, %s, %s\nv_rsq_f32 %s, %s" % (v(X), f2u(1e-5 * DSC), v(X), f2u(DSC / 640), v(A0 + 1), v(X), v(X)))
    e("v_sub_f32 %s, %s, %s" % (v(M), v(A0), v(M)))
    e("v_mov_b32 %s, %s\nv_mul_f32 %s, %s, %s\nv_mul_f32 %s, %s, %s" % (v(X + 1), v(X), v(M + 1), v(M), v(X), v(M), v(M), v(X)))
    for i in range(5):
        for d in (2 * i, 2 * i + 1): e("v_pk_fma_f32 %s, %s, %s, %s" % (v(U + 2 * d, 2), v(U + 2 * d, 2), v(X, 2), v(M, 2)))
        for d in (2 * i, 2 * i + 1): e("v_cvt_pk_bf16_f32 %s, %s, %s" % (v(R + d), v(U + 2 * d), v(U + 2 * d + 1)))
        e("buffer_store_dwordx2 %s, %s, %s, %s offen%s" % (v(R + 2 * i, 2), v(T + 3), s(S_LN, 4), s(S_TMP), STFL))
        if i < 4: e("s_add_u32 %s, %s, 4096" % (s(S_TMP), s(S_TMP)))

def w_slab(e, sl, heavy):
    e("s_add_u32 m0, %s, %d\ns_nop 0" % (s(S_M0W), wslot(sl) * 16384))
    e.ext(w_dma(heavy, "w%d" % sl))
    e("s_add_u32 %s, %s, %d\ns_add_u32 %s, %s, %d" % (s(S_WQOFF), s(S_WQOFF), 32 * 8192, s(S_WGOFF), s(S_WGOFF), 32 * 3456))

def ones_ops(tmp):
    L = V_LANE
    return ["v_lshrrev_b32 %s, 4, %s" % (v(tmp), v(L)), "v_xor_b32 %s, %s, %s" % (v(tmp), v(tmp), v(L)), "v_bfe_u32 %s, %s, 1, 1" % (v(tmp), v(tmp)),
            "v_subrev_u32 %s, 1, %s" % (v(tmp), v(tmp)), "v_and_b32 %s, 0x3f803f80, %s" % (v(tmp), v(tmp))] + \
           ["v_mov_b32 %s, %s" % (v(V_ONE + r), v(tmp)) for r in range(4)] + \
           ["v_and_b32 %s, 1, %s" % (v(V_SIDX), v(L)), "v_mul_u32_u24 %s, 0xaaaa, %s" % (v(V_SIDX), v(V_SIDX)), "v_or_b32 %s, 0x4444, %s" % (v(V_SIDX), v(V_SIDX))]

NV01 = []
def gen_proj(e0, heavy, tag):
    e = E()
    T = V_T; L = V_LANE
    NS = opt("ns", 4) if heavy else 0
    GU = [b for fb in range(4) for b in (12 + fb, 8 + fb)]
    PC0 = opt("pc0", 2) if heavy else opt("lpc0", 20)
    def grp(lo, hi):
        out = []; sl = lo
        while sl < hi:
            if sl >= PC0 and sl + 1 < hi: out.append((sl, sl + 1)); sl += 2
            else: out.append((sl,)); sl += 1
        return out
    units = []
    for ss in grp(0, 20 - NS): units.append((ss, list(range(8)) + (GU if heavy else [])))
    for part in {0: (GU,), 1: (GU[:4], GU[4:]), 2: (GU[:2], GU[2:4], GU[4:6], GU[6:])}[opt("split", 2)]:
        for ss in grp(20 - NS, 20): units.append((ss, part))
    for ss in grp(20 - NS, 20): units.append((ss, list(range(8))))
    order = []; mf = []; firstuse = []
    for ss, bl in units:
        for b in bl:
            F0 = len(order)
            for sl in ss: order.append((sl, b)); firstuse.append(4 * F0)
            for qb in (range(4) if (not opt("psn", 1) or (F0 // len(ss)) % 2 == 0) else range(3, -1, -1)):
                idx = list(range(len(ss)))
                if qb & 1: idx.reverse()
                for i in idx:
                    sl = ss[i]
                    c = "0" if (0 in ss and i == idx[0]) else accreg(b, qb)
                    mf.append("%s %s, %s, %s, %s" % (MF, accreg(b, qb), a(A_W + 4 * ((F0 + i) % 8), 4), a(A_X + ((sl % XD) * 4 + qb) * 4, 4), c))
    NF = len(order)
    NP = len(mf)
    for sl in range(4):
        for kb in range(2):
            for qb in range(4):
                d = v(Sreg(0, qb, kb), 4)
                mf.append("%s %s, %s, %s, %s" % (MF, d, a(A_KF + (kb * 4 + sl) * 4, 4), v(V_Q + (sl * 4 + qb) * 4, 4), d if sl else "0"))
    G = Gaps(mf)
    ustart = []; n = 0
    for ss, bl in units: ustart.append(n); n += len(bl) * len(ss)
    lastF = {}; lastblk = {}; firstF = {}
    for u, (ss, bl) in enumerate(units):
        for k, sl in enumerate(ss):
            lastF[sl] = ustart[u] + len(bl) * len(ss) - 1
            firstF.setdefault(sl, ustart[u] + k * len(bl))
        for i, b in enumerate(bl): lastblk[b] = ustart[u] + (i + 1) * len(ss) - 1
    G1 = lambda sl: 4 * firstF[sl]
    DA = opt("pda", 6)
    rd = lambda F, j: w_read(A_W + 4 * (F % 8), order[F][1], j, wslot(order[F][0]) * 16384)
    pre_reads = [rd(F, j) for F in range(DA) for j in range(2)]
    TRW = opt("trw", 15) if heavy else 14
    bars = {}; cur = 0; seen = set(units[0][0])
    def barrier(u, lo, need):
        bb = G.place("b", "s_barrier", lo)
        G.put(bb, "s", "s_waitcnt WAITVM{%s}" % ",".join(need))
        bars[u] = bb
        return bb + 1
    for F in range(DA, NF):
        lo = 4 * (F - DA)
        if F in ustart:
            u = ustart.index(F)
            need = [k + str(sl) for sl in units[u][0] if sl not in seen for k in "xw"]
            seen |= set(units[u][0])
            if need or units[u][1][0] == 0: cur = barrier(u, max(cur, lo - 1), need or ["none"])
        if (opt("midb", 0) or F - DA - 1 == ustart[-1]) and (F - DA - 1) in ustart and len(units[ustart.index(F - DA - 1)][0]) == 2 and units[ustart.index(F - DA - 1)][1][0] == 0:
            cur = barrier(1000 + F, max(cur, lo - 1), ["none"])
        for j in range(2): cur = G.place("d", rd(F, j), max(cur, lo + 2 * j), firstuse[F] - 6) + 1
    NU = len(units)
    cur = barrier(NU, cur + 1, ["K0", "K1"])
    kord = [(kb, sl) for sl in range(4) for kb in range(2)]
    for kb, sl in kord: cur = G.place("d", k_read(kb, sl, 0), cur) + 1
    barrier(NU + 1, max(cur + 5, NP), ["none"])
    kpost = []
    for i, (kb, sl) in enumerate(kord):
        lo = NP + 4 * i + 3
        try: cur = G.place("d", k_read(kb, sl, 8192), max(cur, lo)) + 1
        except RuntimeError: kpost.append(k_read(kb, sl, 8192))
    freeg = lambda sl: min(x for x in bars.values() if x >= 4 * lastF[sl])
    def wseq(sl):
        return [("s", "s_add_u32 m0, %s, %d" % (s(S_M0W), wslot(sl) * 16384))] + [("m", x) for x in w_dma(heavy, "w%d" % sl)] + \
               [("s", "s_add_u32 %s, %s, %d\ns_add_u32 %s, %s, %d" % (s(S_WQOFF), s(S_WQOFF), 32 * 8192, s(S_WGOFF), s(S_WGOFF), 32 * 3456))]
    def xseq(sl): return [("m", x_load(sl, qb)) for qb in range(4)] + [("s", "s_add_u32 %s, %s, 4096" % (s(S_XOFF), s(S_XOFF)))]
    def kvseq(which, i):
        return [("s", "s_add_u32 m0, %s, %d\ns_mov_b32 %s, %d" % (s(S_M0K), (L_K if which == "K" else L_V) + i * 8192, s(S_KVOFF), (i + (VSH if which == "V" else 0)) * 8192))] + \
               [("m", kv_dma(which, k, "%s%d" % (which, i))) for k in range(2)]
    NX0 = opt("nx0", 2)
    e("s_mov_b32 %s, 0" % s(S_XOFF))
    q = []
    for sl in range(20):
        for kind in "wx":
            if kind == "w" and sl < NI: continue
            seq = wseq(sl) if kind == "w" else xseq(sl)
            if sl < NX0:
                for k, x in seq: e(x + ("\ns_nop 0" if " m0," in x else ""))
            else:
                lo = 0 if sl < RW else (freeg(sl - RW) if kind == "w" else 4 * lastF[sl - XD] + 3)
                q.append((lo, seq))
    late = {12: [("K", 0), ("K", 1)], 13: [("K", 2), ("K", 3)], 14: [("K", 4), ("K", 5)], 15: [("K", 6), ("K", 7)],
            16: [("V", 0), ("V", 1)], 17: [("V", 2), ("V", 3)], 18: [("V", 4)]}
    side = []
    for sl in range(12, 19):
        for which, i in late[sl]: side.append((freeg(sl), kvseq(which, i)))
    WT = opt("wt", 6)
    if WT:
        for k, sl in enumerate([int(x) for x in opt("wts", "0.4.8").split(".")], 1):
            seq = [("s", "s_mov_b32 %s, %d" % (s(S_TMP), k * WT * 32 * 8192)), ("m", "buffer_load_dword %s, %s, %s, %s offen" % (v(V_DUMP), v(V_TC + 1), s(S_WQ, 4), s(S_TMP)))]
            if heavy:
                seq += [("s", "s_mov_b32 %s, %d" % (s(S_TMP), k * WT * 32 * 3456)),
                        ("m", "buffer_load_dword %s, %s, %s, %s offen offset:2048" % (v(V_DUMP), v(V_TC), s(S_WG, 4), s(S_TMP))),
                        ("m", "buffer_load_dword %s, %s, %s, %s offen offset:3072" % (v(V_DUMP), v(V_TC), s(S_WU, 4), s(S_TMP)))]
            side.append((G1(sl) + opt("wtg", 30), seq))
    t0 = v(V_TRA + 3)
    if opt("kvt", 12): side.append((G1(opt("kvt", 12)), [("v", "v_min_u32 %s, 15, %s" % (t0, v(L))), ("v", "v_lshlrev_b32 %s, 7, %s" % (t0, t0)),
               ("s", "s_lshl2_add_u32 %s, %s, %s\ns_lshl_b32 %s, %s, 11" % (s(S_TMP), s(S_QT), s(S_WAVE), s(S_TMP), s(S_TMP))),
               ("m", "buffer_load_dword %s, %s, %s, %s offen" % (v(V_DUMP), t0, s(S_K, 4), s(S_TMP))),
               ("s", "s_add_u32 %s, %s, %d" % (s(S_TMP), s(S_TMP), VSH * 8192)),
               ("m", "buffer_load_dword %s, %s, %s, %s offen" % (v(V_DUMP), t0, s(S_V, 4), s(S_TMP)))]))
    side.sort(key=lambda t: t[0])
    MG = opt("pmg", 5) if heavy else opt("lmg", 2)
    g = 0; lastm = -9; vpost = []
    trlast = 0; lastload = 0
    while q or side:
        if side and (not q or side[0][0] <= max(g, q[0][0])): lo, seq = side.pop(0)
        else: lo, seq = q.pop(0)
        g = max(g, lo)
        for k, x in seq:
            if not vpost:
                try:
                    g = G.place(k, x, max(g + 1, lastm + (MG if g > opt("pmg0", 150) or not heavy else 4) if k == "m" else 0))
                    if k == "m": lastm = g
                    if re.search(r";#[xw]\d|;#trs", x) or "v%d," % V_DUMP in x: lastload = g
                    continue
                except RuntimeError: pass
            vpost.append(x + ("\ns_nop 0" if " m0," in x else ""))
    zlim = 4 * lastF[19 - max(NS, 1)] + 4 if opt("zds", 1) else 10 ** 9
    g = 0
    for sl in range(20 - XD, 20):
        lo = 4 * lastF[sl] + 4
        if lo <= zlim: continue
        for i in range(4):
            x = "ds_read_b128 %s, %s" % (a(A_X + 16 * (sl % XD) + 4 * i, 4), v(V_ZA))
            try: g = G.place("d", x, max(g, lo)) + 2
            except RuntimeError: kpost.append(x)
    auto_lgkm(G, eager=opt("peag", 8))
    g = lastload + 2
    for x in gen_tail_setup():
        g = G.place("v" if x.startswith("v_") else "s", x, g + 1)
    setup_end = g
    g = max(g, trlast)
    for x in gen_tail_setup2(): g = G.place("v" if x.startswith("v_") else "s", x, g + 1)
    HZ = 8
    post = []
    def lay(items):
        g = 0; out = []
        for lo, k, x, hi in items:
            if not out:
                try:
                    g = G.place(k, x, max(g + (0 if k == "v" else 1), lo), hi, force=(hi is not None)); continue
                except RuntimeError: pass
            assert hi is None
            out.append(x)
        return out
    its = []
    for sl in range(4):
        for qb in range(4):
            d0 = V_Q + (sl * 4 + qb) * 4
            lo = 4 * lastblk[2 * sl + 1] + 3 + HZ
            hi = NP - 3 if sl < 2 else NP + 8 * sl - 3
            for b in range(2):
                g0 = qacc(2 * sl + b, qb)
                for h in range(2): its.append((min(lo, hi), "v", "v_cvt_pk_bf16_f32 %s, %s, %s" % (v(d0 + 2 * b + h), v(g0 + 2 * h), v(g0 + 2 * h + 1)), hi))
    assert not lay(its)
    its = []
    if heavy:
        U = T
        for fb in range(4):
            for qb in range(4):
                g0 = V_ACCG + (fb * 4 + qb) * 4
                lo = 4 * lastblk[8 + fb] + 3 + HZ
                for r in range(4): its.append((lo, "v", "v_accvgpr_read_b32 %s, %s" % (v(U + r), a(A_ACCU + (fb * 4 + qb) * 4 + r)), None))
                for r in range(4): its.append((lo, "v", "v_max_f32 %s, 0, %s" % (v(g0 + r), v(g0 + r)), None))
                for r in range(4): its.append((lo, "v", "v_mul_f32 %s, %s, %s" % (v(g0 + r), v(g0 + r), v(U + r)), None))
                d0 = V_ACCG + ((fb & ~1) * 4 + qb) * 4 + 2 * (fb & 1)
                for h in range(2): its.append((lo, "v", "v_cvt_pk_bf16_f32 %s, %s, %s" % (v(d0 + h), v(g0 + 2 * h), v(g0 + 2 * h + 1)), None))
                if fb & 1:
                    if qb == 0: its.append((lo, "s", "s_lshl_b32 %s, %s, 13\ns_add_u32 %s, %s, %d" % (s(S_TMP + 6), s(S_FS), s(S_TMP + 6), s(S_TMP + 6), (128 + (fb >> 1)) * 4096), None))
                    its.append((lo, "m", "buffer_store_dwordx4 %s, %s, %s, %s offen offset:%d%s" % (v(d0 - 2, 4), v(V_L16), s(S_AF, 4), s(S_TMP + 6), 1024 * qb, STFL), None))
    post += lay(its)
    its = [(300, "v", x, None) for x in ones_ops(V_TRA + 2)]
    zs = []
    for k in range(XD):
        sl = max(x for x in range(20) if x % XD == k)
        zs.append((4 * lastF[sl] + 4, range(A_X + 16 * k, A_X + 16 * k + 16)))
    for lo, rr in sorted(zs, key=lambda t: t[0]):
        if lo > zlim: break
        for r in rr: its.append((lo, "v", "v_accvgpr_write_b32 %s, 0" % a(r), None))
    post += lay(its)
    if VERBOSE: print("proj", tag, G.pattern(), "| post", len(post), len(vpost), len(kpost))
    e.ext(pre_reads)
    e("s_waitcnt WAITVM{x%d} lgkmcnt(0)" % max(units[0][0]))
    stamp(e, 3)
    nm = 0
    for x in G.lines():
        if x.startswith("v_mfma"):
            if STAMPS and nm % (NP // 5) == 0 and 0 < nm < NP: stamp(e, 18 + nm // (NP // 5))
            if nm == NP: stamp(e, 4)
            nm += 1
        e(x)
    for x in kpost + vpost + post: e(x)
    e("s_mov_b32 %s, %d" % (s(S_KVOFF), 8 * 8192))
    e("s_nop 1")
    for r in range(8): e("v_mov_b32 %s, 0" % v(V_L + r))
    for qb in range(4): e("v_mov_b32 %s, 0xff800000" % v(V_NEGM + 4 * qb))
    e("s_waitcnt WAITVM{K2,K3}")
    e("s_waitcnt WAITVM{V0,V1,K4,K5}")
    r = resolve_vm(e.L)
    NV01.append(int(re.search(r"vmcnt\((\d+)\)", r.pop()).group(1)))
    e0.ext(r)

def kv_preload(e):
    e("s_mov_b32 %s, 0" % s(S_KVOFF))
    for i in range(9):
        if i < 8:
            e("s_add_u32 m0, %s, %d\ns_nop 0" % (s(S_M0K), L_K + i * 8192))
            e(kv_dma("K", 0)); e(kv_dma("K", 1))
        if i >= VSH:
            e("s_add_u32 m0, %s, %d\ns_nop 0" % (s(S_M0K), L_V + (i - VSH) * 8192))
            e(kv_dma("V", 0)); e(kv_dma("V", 1))
        if i < 8: e("s_add_u32 %s, %s, 8192" % (s(S_KVOFF), s(S_KVOFF)))
    e("s_waitcnt vmcnt(0)")

def Sreg(buf, qb, kb): return V_S + buf * 32 + qb * 8 + kb * 4
def Preg(buf, qb): return V_P + buf * 16 + qb * 4

def qk_mfmas(buf, czero=False, full=False):
    out = []
    if opt("qko", "snake") == "qks" and not czero and full:
        for qb in range(4):
            for i in range(2):
                kb = i if qb % 2 == 0 else 1 - i
                d = v(Sreg(buf, qb, kb), 4)
                for n, sl in enumerate(range(4) if i == 0 else range(3, -1, -1)):
                    out.append("%s %s, %s, %s, %s" % (MF, d, a(A_KF + (kb * 4 + sl) * 4, 4), v(V_Q + (sl * 4 + qb) * 4, 4), d if n else v(V_NEGM + 4 * qb, 4)))
        return out
    order = {"qks": [(kb, qb, sl) for kb in range(2) for qb in range(4) for sl in range(4)], "kqs": [(kb, qb, sl) for kb in range(2) for qb in range(4) for sl in range(4)],
             "ksq": [(kb, qb, sl) for kb in range(2) for sl in range(4) for qb in range(4)],
             "snake": [(kb, qb, sl) for kb in range(2) for qb in range(4) for sl in range(4)]}[opt("qko", "snake")]
    for kb, qb, sl0 in order:
                sl = sl0
                d = v(Sreg(buf, qb, kb), 4)
                if opt("qko", "snake") == "snake":
                    first = sl0 == 0
                    sl = sl0 if qb % 2 == 0 else 3 - sl0
                    c = ("0" if czero else v(V_NEGM + 4 * qb, 4)) if first else d
                    out.append("%s %s, %s, %s, %s" % (MF, d, a(A_KF + (kb * 4 + sl) * 4, 4), v(V_Q + (sl * 4 + qb) * 4, 4), c))
                    continue
                c = d if sl else ("0" if czero else v(V_NEGM + 4 * qb, 4))
                out.append("%s %s, %s, %s, %s" % (MF, d, a(A_KF + (kb * 4 + sl) * 4, 4), v(V_Q + (sl * 4 + qb) * 4, 4), c))
    return out

def pv_mfmas(buf, tailmode=False):
    out = []
    for h in range(2):
        out.append("v_smfmac_f32_16x16x64_bf16 %s, %s, %s, %s" % (v(V_L + 4 * h, 4), v(V_ONE, 4), v(Preg(buf, 2 * h), 8), v(V_SIDX)))
    pvo = opt("pvo", "qd2s")
    if pvo == "fake" and not tailmode:
        for h in range(4):
            for i in range(4):
                qb = i if h % 2 == 0 else 3 - i
                o = a(A_O + ((2 * h + buf) * 4 + qb) * 4, 4)
                for d in ((0, 1) if i % 2 == 0 else (1, 0)):
                    out.append("%s %s, %s, %s, %s" % (MF, o, a(A_VF + (2 * h + d) * 4, 4), v(Preg(buf, (qb + 2 * d) % 4), 4), o))
        return out
    if pvo == "fake": pvo = "dq"
    order = {"dq": [(db, qb) for db in range(8) for qb in range(4)],
             "snake": [(db, qb if db % 2 == 0 else 3 - qb) for db in range(8) for qb in range(4)],
             "qd2s": [(2 * h + (d if (i & 1) == 0 else 1 - d), i if h % 2 == 0 else 3 - i) for h in range(4) for i in range(4) for d in range(2)],
             "qd2": [(2 * h + d, qb) for h in range(4) for qb in range(4) for d in range(2)],
             "qd4": [(4 * h + d, qb) for h in range(2) for qb in range(4) for d in range(4)]}[pvo if not tailmode else "dq"]
    for db, qb in order:
            o = a(A_O + (db * 4 + qb) * 4, 4)
            out.append("%s %s, %s, %s, %s" % (MF, o, a(A_VF + db * 4, 4), v(Preg(buf, qb), 4), o))
    return out

def k_read(kb, sl, off, t=0): return "ds_read_b128 %s, %s offset:%d" % (a((A_KF, A_KF1)[t] + (kb * 4 + sl) * 4, 4), v(V_KA + sl), off + kb * 4096)
def v_read(db, j, t): return "ds_read_b64_tr_b16 %s, %s offset:%d" % (a(A_VF + 32 * t + db * 4 + 2 * j, 2), v(V_VA + db), 8192 * t + j * 4096)

def softmax_ops(buf):
    ex = []; cv = []
    for qb in range(4):
        for kb in range(2):
            for r in range(4):
                x = v(Sreg(buf, qb, kb) + r)
                ex.append("v_exp_f32 %s, %s" % (x, x))
            for h in range(2):
                b = Sreg(buf, qb, kb) + 2 * h
                cv.append("v_cvt_pk_bf16_f32 %s, %s, %s" % (v(Preg(buf, qb) + kb * 2 + h), v(b), v(b + 1)))
    return ex, cv

def gen_attention(e):
    T = V_T
    e("ATT_START:")
    stamp(e, 5)
    e("s_barrier")
    for qb in range(4):
        b = Sreg(0, qb, 0)
        e("v_max3_f32 %s, %s, %s, %s" % (v(T + 2 * qb), v(b), v(b + 1), v(b + 2)))
    for qb in range(4):
        b = Sreg(0, qb, 0)
        e("v_max3_f32 %s, %s, %s, %s" % (v(T + 2 * qb), v(T + 2 * qb), v(b + 3), v(V_NEGM + 4 * qb)))
    for n, sw in enumerate(("v_permlane32_swap_b32", "v_permlane16_swap_b32")):
        for qb in range(4): e("v_mov_b32 %s, %s" % (v(T + 2 * qb + 1), v(T + 2 * qb)))
        e("s_nop 0")
        for qb in range(4): e("%s %s, %s" % (sw, v(T + 2 * qb), v(T + 2 * qb + 1)))
        for qb in range(4):
            if n == 0: e("v_max_f32 %s, %s, %s" % (v(T + 2 * qb), v(T + 2 * qb), v(T + 2 * qb + 1)))
            else:
                for r in range(4): e("v_min_f32 %s, -%s, -%s" % (v(V_NEGM + 4 * qb + r), v(T + 2 * qb), v(T + 2 * qb + 1)))
    for qb in range(4):
        for r in range(0, 8, 2): e("v_pk_add_f32 %s, %s, %s" % (v(Sreg(0, qb, 0) + r, 2), v(Sreg(0, qb, 0) + r, 2), v(V_NEGM + 4 * qb, 2)))
    e("s_waitcnt lgkmcnt(0)")

    exE, cvE = softmax_ops(0); exO, cvO = softmax_ops(1)
    smf = lambda t, h: "v_smfmac_f32_16x16x64_bf16 %s, %s, %s, %s" % (v(V_L + 4 * h, 4), v(V_ONE, 4), v(Preg(t, 2 * h), 8), v(V_SIDX))
    def pvm(db, qb, t):
        o = a(A_O + (db * 4 + qb) * 4, 4)
        return "%s %s, %s, %s, %s" % (MF, o, a(A_VF + 32 * t + db * 4, 4), v(Preg(t, qb), 4), o)
    G = Gaps(qk_mfmas(1))
    for i in range(8): G.put(1 + 2 * i, "d", k_read(i // 4, i % 4, 24576, 1))
    for i in range(4): G.put(17 + 2 * i, "d", k_read(0, i, 16384))
    for i in range(4): G.put(31, "d", k_read(1, i, 16384))
    for i, x in enumerate(exE): G.put(i, "e", x)
    for i, x in enumerate(cvE[:4]): G.put(24 + 2 * i, "v", x)
    e.ext(G.lines())
    e.ext(exO[:NOE])
    for sl in range(4): e("v_add_u32 %s, 32768, %s" % (v(V_KA + sl), v(V_KA + sl)))
    e("s_mov_b32 %s, 16384" % s(S_TOG))
    e("s_mov_b32 %s, %d\ns_mov_b32 %s, %d" % (s(S_TMP + 3), 2 * 8192, s(S_TMP + 4), 6 * 8192 + L_V))
    e("s_waitcnt vmcnt(NVWAIT) lgkmcnt(0)\ns_barrier")
    for which, m0, inc in (("K", L_K, 1), ("K", L_K + 8192, 0), ("V", L_V + 5 * 8192, 1)):
        e("s_add_u32 m0, %s, %d\ns_nop 0" % (s(S_M0K), m0))
        e(kv_dma(which, 0)); e(kv_dma(which, 1))
        if inc: e("s_add_u32 %s, %s, 8192" % (s(S_KVOFF), s(S_KVOFF)))
    e("s_mov_b32 %s, %d\ns_cmp_eq_u32 %s, 0\ns_cselect_b32 %s, %d, %s" % (s(S_EVT), EV(27), s(S_WAVE), s(S_EVT), EVT0, s(S_EVT)))
    stamp(e, 6)
    e("s_cmp_lg_u32 %s, 0\ns_cbranch_scc1 NOSIG2" % s(S_RETRY))
    e("s_cmp_ge_u32 %s, 27\ns_cbranch_scc1 LT_INIT" % s(S_FS))
    e("NOSIG2:")
    mf = []
    for t in range(2):
        for qb in range(4):
            for i in range(2):
                kb = i if qb % 2 == 0 else 1 - i
                d = v(Sreg(t, qb, kb), 4)
                for n, sl in enumerate(range(4) if i == 0 else range(3, -1, -1)):
                    mf.append("%s %s, %s, %s, %s" % (MF, d, a((A_KF, A_KF1)[t] + (kb * 4 + sl) * 4, 4), v(V_Q + (sl * 4 + qb) * 4, 4), d if n else v(V_NEGM + 4 * qb, 4)))
    mf += [smf(0, 0), smf(1, 0), smf(1, 1), smf(0, 1)]
    H2 = 68
    for db in range(8):
        for i in range(4):
            qb = 3 - i if db % 2 == 0 else i
            for t in ((0, 1) if i % 2 == 0 else (1, 0)): mf.append(pvm(db, qb, t))
    G = Gaps(mf); end = G.n() - 1
    G.put(1, "b", "s_barrier"); G.put(0, "s", "s_waitcnt vmcnt(16) lgkmcnt(0)")
    NV1 = opt("nv1", 22)
    vrd = [(db, j, t) for db in range(8) for t in range(2) for j in range(2)]
    vg = {}
    eg = {}
    for i in range(NOE, 32): eg[i] = G.put(2 * (i - NOE), "e", exO[i])
    vvg = [int(x) for x in opt("vvg", "3.7.11.15.55").split(".")]
    dgs = [g for g in range(3, 64, 2) if g not in vvg]
    for i in range(NV1):
        db, j, t = vrd[i]; vg[db] = G.put(dgs[i], "d", v_read(db, j, t))
    rd2 = [("v",) + x for x in vrd[NV1:]] + [("k", kb, sl, 0) for kb in range(2) for sl in range(4)] + [("k", kb, sl, 1) for kb in range(2) for sl in range(4)]
    g = 64; kg = {}
    for i, x in enumerate(rd2):
        if x[0] == "v": g = G.place("d", v_read(*x[1:]), g, H2 + 8 * x[1] - 6); vg[x[1]] = g
        else: g = G.place("d", k_read(x[1], x[2], 8192 * x[3], x[3]), g); kg[x[2]] = g
        g += 1 if i < 4 else 2
    def adv(r, base):
        return ["s_add_u32 %s, %s, 8192" % (s(r), s(r)), "s_and_b32 %s, %s, 0xffff" % (s(r), s(r))] + (["s_or_b32 %s, %s, %d" % (s(r), s(r), base)] if base else [])
    last = 0
    for g in (opt("dg1", 54), opt("dg2", 76)):
        for which, r in (("K", S_TMP + 3), ("V", S_TMP + 4)):
            g = G.place("s", "s_add_u32 m0, %s, %s" % (s(S_M0K), s(r)), g)
            for i in range(2): g = G.place("m", kv_dma(which, i), g + opt("dsp", 2))
            g += 1
        for x in ["s_add_u32 %s, %s, 8192" % (s(S_KVOFF), s(S_KVOFF))] + adv(S_TMP + 3, 0) + adv(S_TMP + 4, L_V): g = G.place("s", x, g) + 1
        last = g
    items = [(0, 8 * (i // 4) - 1, cvE[i]) for i in range(4, 16)] + [(eg.get(2 * i + 1, -1) + 1, 32 + 8 * (i // 4) - 1, cvO[i]) for i in range(16)]
    for lo, hi, x in sorted(items, key=lambda t: t[1]): G.place("v", x, lo, hi)
    for i in range(4): G.place("v", cvE[i], end - 5 + opt("c0g", 2))
    g = 56
    xg = 0
    for db in range(8):
        y = max(vg[db], 64)
        while not (G.ds[y] and G.fits(y, "v")): y += 1
        xg = max(xg, G.put(y, "v", "v_xor_b32 %s, %s, %s" % (v(V_VA + db), s(S_TOG), v(V_VA + db))))
    for sl in range(4): xg = max(xg, G.place("v", "v_xor_b32 %s, %s, %s" % (v(V_KA + sl), s(S_TOG), v(V_KA + sl)), kg[sl]))
    for i, x in enumerate(exE + exO[:NOE]): g = G.place("e", x, g, end - 6 if i < 8 else end)
    g = G.place("s", "s_xor_b32 %s, %s, 32768" % (s(S_TOG), s(S_TOG)), xg + 1)
    G.place("s", "s_cmp_lt_u32 %s, %s" % (s(S_KVOFF), s(S_EVT)), max(g, last) + 1)
    auto_lgkm(G, [], loop=True, eager=opt("leag", 8))
    if VERBOSE: print("loop", G.pattern())
    e(".p2align 6\nATT_LOOP:")
    for x in G.lines(): e(x)
    e("s_cbranch_scc1 ATT_LOOP")
    e("s_cmp_lt_u32 %s, %d\ns_cbranch_scc1 ATT_EVT" % (s(S_KVOFF), EVTE))
    e("TAILC0:")
    global LIGHT_LOOP
    LIGHT_LOOP = light_loop(G)
    stamp(e, 7)
    e("s_waitcnt vmcnt(16) lgkmcnt(0)\ns_barrier")
    e("s_cmp_lg_u32 %s, 0\ns_cbranch_scc1 NOPOLLW" % s(S_WAVE))
    e(poll_load(True))
    e("NOPOLLW:")
    vr = [v_read(db, j, 0) for db in range(8) for j in range(2)]
    e.ext(vr)
    e.ext(cvE[4:])
    e("s_nop 0")
    h = E()
    sn2 = lambda q0: [(db, q0 + (i if db % 2 == 0 else 1 - i)) for db in range(8) for i in range(2)]
    mf = [smf(0, 0)] + [pvm(db, qb, 0) for db, qb in sn2(0)] + [smf(0, 1), smf(1, 0)] + [pvm(db, qb, 1) for db, qb in sn2(0)]
    P3 = len(mf)
    mf += [smf(1, 1)]
    for n, (db, qb) in enumerate(sn2(2)):
        for t in ((0, 1) if n % 2 == 0 else (1, 0)): mf.append(pvm(db, qb, t))
    G = Gaps(mf)
    for i in range(16): G.put(i, "d", v_read(i // 2, i % 2, 1))
    for i in range(NOE, 16): G.put(i - NOE + 1, "e", exO[i])
    for i in range(8): G.put(max(2 * i + 3 - NOE, 0) + 1, "v", cvO[i])
    for i in range(16, 32): G.put(i, "e", exO[i])
    for i in range(8, 16): G.put(min(2 * i + 2, P3 - 3), "v", cvO[i])
    pq = [x for sg in range(NPRE_X) for x in t8_a(sg)]
    assert NPRE_X <= 3
    G.put(P3 - 8, "s", "s_waitcnt lgkmcnt(0)\ns_barrier")
    pre, pend = auto_lgkm(G, [asmcheck.I(x, 0, 0).W for x in vr])
    g = 1
    while pq:
        k, x = pq.pop(0)
        if k == "s": G.sc[g].append(x); g += 1
        else: G.va[g].append(x); g += opt("x63", 2) if len(pq) % 3 else 1
    assert g < P3 + 8, g
    pro, grp = o_ops()
    NEG = opt("neg", 5)
    fill = pro[0] + [x for i in range(NEG) for x in grp(i, False)]
    g0 = max(P3 + 1, g); n = G.n() - g0
    for i, x in enumerate(fill): G.va[g0 + (i * n) // len(fill)].append(x)
    if pre is not None: h("s_waitcnt lgkmcnt(%d)" % pre)
    for x in G.lines(): h(x)
    return h.L, NEG

def o_ops():
    T = V_T; t = S_TMP
    Z = 248; C = 252; W = 128
    pro = []
    for hh in range(2):
        e = E()
        for qb in (2 * hh, 2 * hh + 1): e("v_add_f32 %s, %s, %s" % (v(V_L + 2 * qb), v(V_L + 2 * qb), v(V_L + 2 * qb + 1)))
        for qb in (2 * hh, 2 * hh + 1): e("v_rcp_f32 %s, %s" % (v(T + 2 * qb), v(V_L + 2 * qb)))
        if hh == 0:
            for r in range(4): e("v_mov_b32 %s, 0" % v(Z + r))
            for sl in range(4): e("s_lshl_b32 %s, %s, 14" % (s(44), s(S_HEAD)) if sl == 0 else "s_add_u32 %s, %s, %d" % (s(44 + sl), s(44), 4096 * sl))
        else:
            e("v_max3_f32 %s, %s, %s, %s" % (v(T + 8), v(V_L), v(V_L + 2), v(V_L + 4)))
            e("v_max_f32 %s, %s, %s" % (v(T + 8), v(T + 8), v(V_L + 6)))
            e("v_mul_f32 %s, %s, %s" % (v(T + 8), f2u(2.0 ** 64), v(T + 8)))
            e("v_mul_f32 %s, 0, %s" % (v(T + 8), v(T + 8)))
            for qb in range(4): e("v_fma_f32 %s, %s, 0, %s" % (v(T + 8), v(V_L + 2 * qb), v(T + 8)))
        for qb in (2 * hh, 2 * hh + 1): e("v_mov_b32 %s, %s" % (v(T + 2 * qb + 1), v(T + 2 * qb)))
        pro.append(e.L)
    def grp(i, pk):
        e = E()
        sl, qb = (i % 8) // 2, 2 * (i // 8) + i % 2
        d0 = 136 + 4 * (i % 4)
        for b in range(2):
            for r in range(4): e("v_accvgpr_read_b32 %s, %s" % (v(W + 4 * b + r), a(A_O + ((2 * sl + b) * 4 + qb) * 4 + r)))
        if pk:
            for h in range(4): e("v_pk_mul_f32 %s, %s, %s" % (v(W + 2 * h, 2), v(W + 2 * h, 2), v(T + 2 * qb, 2)))
        else:
            for r in range(8): e("v_mul_f32 %s, %s, %s" % (v(W + r), v(W + r), v(T + 2 * qb)))
        for h in range(4): e("v_cvt_pk_bf16_f32 %s, %s, %s" % (v(d0 + h), v(W + 2 * h), v(W + 2 * h + 1)))
        e("buffer_store_dwordx4 %s, %s, %s, %s offen offset:%d%s ;#ost" % (v(d0, 4), v(V_L16), s(S_AF, 4), s(44 + sl), 1024 * qb, STFL))
        e.L.append("s_nop 0\n%s %s, %s, %s, %s" % (MF, v(C, 4), v(Z, 4), v(d0, 4), "0" if i == 0 else v(C, 4)))
        return e.L
    return pro, grp

LT_SS, LT_SD = 44, 48
LT_SO, LT_DO, LT_R = 91, 96, 97
LT_VO, LT_VB, LT_VR, LT_AD = 40, 42, 44, 48
L_TRB = 131072
def light_loop(G):
    import copy
    G = copy.deepcopy(G)
    n = G.n()
    b = [g for g in range(n) if any("s_barrier" in x for x in G.va[g])][0]
    for bb in (b - 1, b): G.sc[bb] = [x.replace("vmcnt(%d)" % (16 + 2 * PWARM), "vmcnt(%d)" % (24 + 2 * PWARM)) for x in G.sc[bb]]
    lastm = max(g for g in range(n) if any(x.startswith("buffer") for x in G.va[g]))
    cmpg = [g for g in range(n) if any(x.startswith("s_cmp_lt_u32 %s" % s(S_KVOFF)) for x in G.sc[g])][-1]
    def lay(seq, g, hi, step=1):
        for k, x in seq:
            if k == "s":
                while not G.fits(g, "s"): g += 1
                G.put(g, "s", x)
            else:
                win = opt("ltw", 4) if k != "m" else opt("ltm", 4)
                g = min(range(g, min(g + win, hi) + 1), key=lambda y: (G.used[y] + (3 if (k == "d" and G.ds[y] and opt("ltd", 0)) else 0), y))
                (G.ds if k == "d" else G.va)[g].append(x); G.used[g] += 1 if k != "m" else 2
            g += step
            assert g <= hi + 1, (x, g, hi)
        return g
    g = lay([("d", "ds_read_b64_tr_b16 %s, %s offset:%d" % (v(LT_AD + 4 * f + 2 * j, 2), v(LT_VR + f), 1024 * j)) for f in range(2) for j in range(2)], b + 1, b + 30, 2)
    g1, g2 = opt("lts1", 44), opt("lts2", 50)
    lay(([("s", "s_waitcnt lgkmcnt(2)")] if g1 < 68 else []) + [("m", "buffer_store_dwordx4 %s, %s, %s, %s offen%s" % (v(LT_AD, 4), v(V_L16), s(LT_SD, 4), s(LT_DO), STFL))], g1, cmpg - 1)
    lay([("m", "buffer_store_dwordx4 %s, %s, %s, %s offen offset:1024%s" % (v(LT_AD + 4, 4), v(V_L16), s(LT_SD, 4), s(LT_DO), STFL)),
         ("s", "s_add_u32 %s, %s, %d" % (s(LT_DO), s(LT_DO), 8 * 10240)),
         ("s", "s_sub_u32 %s, %s, %d\ns_cselect_b32 %s, %s, %s" % (s(S_TMP + 1), s(LT_DO), 184 * 10240, s(LT_DO), s(LT_DO), s(S_TMP + 1)))], g2, cmpg - 1)
    g = lastm + 1
    lay([("s", "s_add_u32 m0, %s, %s" % (s(LT_R), s(S_TMP)))] +
        [("m", "buffer_load_dwordx4 %s, %s, %s offen offset:%d lds" % (v(LT_VO + i), s(LT_SS, 4), s(LT_SO), 1024 * i)) for i in range(2)] +
        [("s", "s_add_u32 %s, %s, %d\ns_add_u32 %s, %s, 2048" % (s(LT_SO), s(LT_SO), 8 * 40960, s(LT_R), s(LT_R))),
         ("s", "s_cmp_eq_u32 %s, 6144\ns_cselect_b32 %s, 0, %s" % (s(LT_R), s(LT_R), s(LT_R)))] +
        [("v", "v_add_u32 %s, %s, %s" % (v(LT_VR + f), s(LT_R), v(LT_VB + f))) for f in range(2)], g, cmpg - 1)
    if VERBOSE: print("lightloop", G.pattern())
    return G.lines()

def gen_events(e):
    L = V_LANE; t = S_TMP
    e("LT_INIT:")
    e("s_sub_u32 %s, %s, 27\ns_lshl_b32 %s, %s, 3\ns_add_u32 %s, %s, %s\ns_lshl2_add_u32 %s, %s, %s" % (s(t), s(S_FS), s(t), s(t), s(t), s(t), s(S_QT), s(t), s(t), s(S_WAVE)))
    e("s_mul_i32 %s, %s, 3277\ns_lshr_b32 %s, %s, 16\ns_mul_i32 %s, %s, 20\ns_sub_u32 %s, %s, %s" % (s(t + 1), s(t), s(t + 1), s(t + 1), s(t + 6), s(t + 1), s(t), s(t), s(t + 6)))
    e("s_mul_i32 %s, %s, 40960\ns_lshl_b32 %s, %s, 6\ns_add_u32 %s, %s, %s" % (s(LT_SO), s(t + 1), s(t + 6), s(t), s(LT_SO), s(LT_SO), s(t + 6)))
    e("s_add_u32 %s, %s, 104\ns_mul_i32 %s, %s, 10240" % (s(LT_DO), s(t + 1), s(LT_DO), s(LT_DO)))
    srd(e, LT_SS, ptr(8), 0, 1728 * 1280)
    e("s_mul_i32 %s, %s, 13108\ns_lshr_b32 %s, %s, 16\ns_mul_i32 %s, %s, %d\ns_lshl_b32 %s, %s, 11\ns_add_u32 %s, %s, %s\ns_add_u32 %s, %s, %d" % (
        s(t + 6), s(t), s(t + 6), s(t + 6), s(t + 6), s(t + 6), NSLAB * 10240 - 10240, s(t + 1), s(t), s(t + 6), s(t + 6), s(t + 1), s(t + 6), s(t + 6), WF_OFF))
    srd(e, LT_SD, ptr(11), s(t + 6), (NSLAB - 1) * 10240 + 2048)
    e("s_mul_i32 %s, %s, 6144\ns_add_u32 %s, %s, %d\ns_mov_b32 %s, 0\ns_mov_b32 %s, %d" % (s(t), s(S_WAVE), s(t), s(t), L_TRB, s(LT_R), s(S_EVT), EV(7)))
    e("v_lshrrev_b32 %s, 2, %s\nv_bfe_u32 %s, %s, 4, 1\nv_and_b32 %s, 3, %s" % (v(46), v(L), v(47), v(L), v(48), v(L)))
    e("v_lshlrev_b32 %s, 1, %s\nv_xor_b32 %s, %s, %s\nv_mul_u32_u24 %s, 1280, %s\nv_lshl_add_u32 %s, %s, 4, %s\nv_add_u32 %s, %d, %s" % (
        v(49), v(47), v(49), v(49), v(48), v(LT_VO), v(46), v(LT_VO), v(49), v(LT_VO), v(LT_VO + 1), 16 * 1280 - 1024, v(LT_VO)))
    e("v_lshlrev_b32 %s, 6, %s\nv_lshl_add_u32 %s, %s, 3, %s\nv_lshl_add_u32 %s, %s, 5, %s\nv_add_u32 %s, %s, %s\nv_xor_b32 %s, 32, %s" % (
        v(LT_VB), v(46), v(LT_VB), v(48), v(LT_VB), v(LT_VB), v(47), v(LT_VB), v(LT_VB), s(t), v(LT_VB), v(LT_VB + 1), v(LT_VB)))
    e("v_mov_b32 %s, %s\nv_mov_b32 %s, %s" % (v(LT_VR), v(LT_VB), v(LT_VR + 1), v(LT_VB + 1)))
    e(".p2align 6\nLT_LOOP:")
    for x in LIGHT_LOOP: e(x)
    e("s_cbranch_scc1 LT_LOOP")
    e("s_cmp_lg_u32 %s, %d\ns_cbranch_scc1 LT_E2" % (s(S_KVOFF), EV(7)))
    srd(e, LT_SS, ptr(4), 0, 4096 * 1280)
    e("s_sub_u32 %s, %s, %d\ns_mov_b32 %s, %d\ns_branch LT_LOOP" % (s(LT_SO), s(LT_SO), 56 * 40960, s(S_EVT), EV(13)))
    e("LT_E2:")
    e("s_cmp_lg_u32 %s, %d\ns_cbranch_scc1 LT_E3" % (s(S_KVOFF), EV(13)))
    e("s_mov_b32 %s, %d\ns_cmp_lg_u32 %s, 0\ns_cbranch_scc1 LT_LOOP" % (s(S_EVT), EV(26), s(S_WAVE)))
    set_flag(e, 2)
    e("s_mov_b32 %s, %d\ns_branch LT_LOOP" % (s(S_EVT), EV(23)))
    e("LT_E3:")
    e("s_cmp_lg_u32 %s, %d\ns_cbranch_scc1 LT_END" % (s(S_KVOFF), EV(23)))
    e(poll_load(True))
    e("s_mov_b32 %s, %d\ns_branch LT_LOOP" % (s(S_EVT), EV(26)))
    e("LT_END:")
    e("s_mov_b32 %s, %d\ns_branch ATT_LOOP" % (s(S_EVT), EV(27)))
    def redirect(d, vd, shift, size):
        e("s_sub_u32 %s, %s, %s\ns_add_u32 %s, %s, %s\ns_addc_u32 %s, %s, 0" % (s(t + 6), s(T_BW[0]), s(T_M0W), s(d), s(T_SW), s(t + 6), s(d + 1), s(T_SW + 1)))
        e("s_sub_u32 %s, %s, %d\ns_subb_u32 %s, %s, 0\ns_mov_b32 %s, %d" % (s(d), s(d), shift, s(d + 1), s(d + 1), s(d + 2), size))
        e("v_add_u32 %s, %s, %s\nv_add_u32 %s, %s, %s" % (v(vd), s(S_M0K), v(V_L16), v(vd + 1), s(S_M0K), v(V_L16)))
    e("ATT_EVT:")
    e("s_cmp_lg_u32 %s, %d\ns_cbranch_scc1 ATT_EVT1" % (s(S_KVOFF), EV(27)))
    redirect(S_K, V_KD, 64 * 8192, 72 * 8192)
    e("s_mov_b32 %s, %d\ns_cmp_lg_u32 %s, 0\ns_cbranch_scc1 ATT_LOOP" % (s(S_EVT), EV(29) if NWP == 4 else EVTE, s(S_WAVE)))
    if NWP < 4: e("s_cmp_ge_u32 %s, 27\ns_cselect_b32 %s, %d, %s" % (s(S_FS), s(S_EVT), EV(29), s(S_EVT)))
    e("s_waitcnt vmcnt(16)")
    poll_spin(e, True, None, 2, "EARLY")
    e("s_branch ATT_LOOP")
    e("ATT_EVT1:")
    e("s_cmp_lg_u32 %s, %d\ns_cbranch_scc1 ATT_EVT2" % (s(S_KVOFF), EV(29)))
    if NWP == 4: redirect(S_V, V_VD, 68 * 8192 - 65536, 68 * 8192 + NWP * 20480 - 65536)
    e("s_mov_b32 %s, %d\ns_cmp_lg_u32 %s, 0\ns_cbranch_scc1 ATT_LOOP" % (s(S_EVT), EVTE, s(S_WAVE)))
    e("s_cmp_lt_u32 %s, 27\ns_cbranch_scc1 ATT_LOOP" % s(S_FS))
    set_flag(e, 3)
    e("s_branch ATT_LOOP")
    e("ATT_EVT2:")
    e("s_cmp_lg_u32 %s, %d\ns_cbranch_scc1 ATT_EVT3" % (s(S_KVOFF), EV(3)))
    set_flag(e, 3)
    e("s_mov_b32 %s, %d\ns_branch ATT_LOOP" % (s(S_EVT), EV(25)))
    e("ATT_EVT3:")
    if opt("ctt", 0):
        e("s_getpc_b64 %s\nCODE2:\ns_sub_u32 %s, %s, CODE2-TAILC0\ns_subb_u32 %s, %s, 0" % (s(t + 6, 2), s(t + 6), s(t + 6), s(t + 7), s(t + 7)))
        e("s_lshr_b32 %s, s2, 3\ns_lshl_b32 %s, %s, 10" % (s(t + 1), s(t + 1), s(t + 1)))
        e("v_min_u32 %s, 7, %s\nv_lshlrev_b32 %s, 7, %s\nv_add_u32 %s, %s, %s\nv_min_u32 %s, K_END-TAILC0, %s" % (v(V_PL), v(L), v(V_PL), v(V_PL), v(V_PL), s(t + 1), v(V_PL), v(V_PL), v(V_PL)))
        e("global_load_dword %s, %s, %s" % (v(V_DUMP), v(V_PL), s(t + 6, 2)))
    e(poll_load(True))
    e("s_mov_b32 %s, %d\ns_branch ATT_LOOP" % (s(S_EVT), EV(27)))
assert all((g * 3277) >> 16 == g // 20 for g in range(160)) and all((c * 13108) >> 16 == c // 5 for c in range(40))

K_SX, K_SO = S_WU, S_X
T_SA, T_SW, T_XS = S_T, S_WF, S_WQ
T_XO = S_WG
T_TAG = S_WG + 3
T_M0W, T_OA, T_OW = 88, 89, 90
T_BA, T_BW = (S_XOFF, S_WQOFF), (S_WGOFF, S_M0W)
K_FLG = 95
KV_XO = 63; KV_X = 8
TV_WR, TV_L4K, TV_TAG, TV_OW, TV_OR = 60, 61, 62, 3, 4
XPB = 12288
REUSE = opt("reuse", 1)
COAL = opt("coal", 1)
NSD, NSG = 7, 23
RW8, RA8, RF8 = 6, 5, 10
L_OWN = [122880, 0]

def join_scalar(lines):
    out = []
    for x in lines:
        if x.startswith(("s_addc", "s_cselect")): out[-1] += "\n" + x
        else: out.append(x)
    return out

def gen_tail_setup():
    e = E()
    L = V_LANE; t = S_TMP
    R, Cc, KQ = t + 3, t + 4, t + 5
    e("s_bfe_u32 %s, s2, 0x10002\ns_lshl_b32 %s, %s, 3\ns_lshr_b32 %s, s2, 5\ns_add_u32 %s, %s, %s" % (s(R), s(R), s(R), s(t), s(R), s(R), s(t)))
    e("s_bfe_u32 %s, s2, 0x20003\ns_and_b32 %s, s2, 3" % (s(Cc), s(KQ)))
    e("s_lshr_b32 %s, %s, 1\ns_lshl1_add_u32 %s, %s, %s\ns_lshl2_add_u32 %s, %s, %s\ns_mul_i32 %s, %s, %d" % (s(t), s(KQ), s(t), s(R), s(t), s(t), s(t), s(S_WAVE), s(t), s(t), 16 * 1280))
    e("s_and_b32 %s, %s, 1\ns_lshl1_add_u32 %s, %s, %s\ns_mul_i32 %s, %s, 160\ns_add_u32 %s, %s, %s" % (s(t + 1), s(KQ), s(t + 1), s(Cc), s(t + 1), s(t + 1), s(t + 1), s(t), s(t), s(t + 1)))
    srd(e, K_SX, ptr(0), s(t), 15 * 1280 + 160)
    srd(e, K_SO, ptr(9), s(t), 15 * 1280 + 160)
    e("v_and_b32 %s, 15, %s\nv_mul_u32_u24 %s, 1280, %s\nv_lshrrev_b32 %s, 4, %s\nv_lshl_add_u32 %s, %s, 3, %s" % (v(KV_XO), v(L), v(KV_XO), v(KV_XO), v(52), v(L), v(KV_XO), v(52), v(KV_XO)))
    e("s_lshr_b32 %s, %s, 1\ns_lshl2_add_u32 %s, %s, %s\ns_lshl_b32 %s, %s, %d" % (s(K_FLG), s(R), s(K_FLG), s(K_FLG), s(KQ), s(K_FLG), s(K_FLG), FSH + 3))
    e("s_mul_i32 %s, %s, 7\ns_add_u32 %s, %s, 64\ns_lshl_b32 %s, %s, 13\ns_mul_i32 %s, %s, 20480" % (s(t), s(KQ), s(t), s(t), s(T_BA[0]), s(t), s(T_BW[0]), s(t)))
    e("s_lshl_b32 %s, %s, 17\ns_mul_i32 %s, %s, %d" % (s(T_BA[1]), s(KQ), s(T_BW[1]), s(KQ), 16 * 20480))
    e("s_lshl2_add_u32 %s, %s, %s\ns_mul_i32 %s, %s, %d\ns_add_u32 %s, %s, %d" % (s(t), s(R), s(Cc), s(t), s(t), 24 * XPB, s(t), s(t), XP_OFF))
    srd(e, T_XS, ptr(11), s(t), 24 * XPB)
    for ch in range(2):
        d = T_XO + ch
        e("s_and_b32 %s, %s, 2\ns_add_u32 %s, %s, %d\ns_xor_b32 %s, %s, %s\ns_mul_i32 %s, %s, 3\ns_add_u32 %s, %s, %s\ns_sub_u32 %s, %s, 1" % (
            s(t), s(S_WAVE), s(t), s(t), ch, s(t + 1), s(t), s(KQ), s(t), s(t), s(t), s(t), s(t + 1), s(t), s(t)))
        e("s_mul_i32 %s, %s, %d\ns_and_b32 %s, %s, 1\ns_mul_i32 %s, %s, 6144\ns_add_u32 %s, %s, %s" % (s(t), s(t), XPB, s(d), s(S_WAVE), s(d), s(d), s(d), s(d), s(t)))
        e("s_cmp_eq_u32 %s, 0\ns_cselect_b32 %s, 0x1000000, %s" % (s(t + 1), s(d), s(d)))
    if PWARM:
        e("s_lshl2_add_u32 %s, %s, %s\ns_mul_i32 %s, %s, %d\ns_lshl_b32 %s, %s, 14\ns_add_u32 %s, %s, %s" % (s(t), s(S_QT), s(S_WAVE), s(t), s(t), NSLAB * 4096, s(t + 1), s(S_HEAD), s(t), s(t), s(t + 1)))
        e("v_mov_b32 %s, %s" % (v(V_PW), s(t)))
        for i, o in ((1, 6144), (2, 10240)):
            e("s_add_u32 %s, %s, %d\nv_writelane_b32 %s, %s, %d\nv_writelane_b32 %s, %s, %d" % (s(t + 1), s(t), o, v(V_PW), s(t + 1), 2 * i, v(V_PW), s(t + 1), 2 * i + 1))
        e("s_lshl2_add_u32 %s, %s, %s\ns_mul_i32 %s, %s, %d\ns_add_u32 %s, %s, %d" % (s(t + 2), s(R), s(Cc), s(t + 2), s(t + 2), 24 * XPB, s(t + 2), s(t + 2), XP_OFF))
        for m in range(2):
            for ch in range(2):
                i = 3 + 2 * m + ch
                e("s_add_u32 %s, %s, %s\ns_add_u32 %s, %s, %d" % (s(t + 1), s(t + 2), s(T_XO + ch), s(t + 1), s(t + 1), m * 12 * XPB))
                e("s_cmp_eq_u32 %s, 0x1000000\ns_cselect_b32 %s, %s, %s" % (s(T_XO + ch), s(t + 1), s(t), s(t + 1)))
                e("v_writelane_b32 %s, %s, %d\nv_writelane_b32 %s, %s, %d" % (v(V_PW), s(t + 1), 2 * i, v(V_PW), s(t + 1), 2 * i + 1))
        e("v_min_u32 %s, 14, %s" % (v(V_T), v(L)))
        L = V_T
        e("v_and_b32 %s, 1, %s\nv_lshl_add_u32 %s, %s, 7, %s\nv_subrev_u32 %s, 1280, %s" % (v(V_T), v(L), v(V_PW), v(V_T), v(V_PW), v(V_PW), v(V_PW)))
        L = V_LANE
    e("s_mul_i32 %s, %s, %d\ns_mul_i32 %s, %s, 3072\ns_add_u32 %s, %s, %s" % (s(T_XO + 2), s(KQ), 3 * XPB, s(t), s(S_WAVE), s(T_XO + 2), s(T_XO + 2), s(t)))
    e("s_add_u32 %s, %s, 0x10000\ns_and_b32 %s, %s, 0x1fff0000\ns_or_b32 %s, %s, 0x40000000\nv_mov_b32 %s, %s" % (s(t), s(S_EPOCH), s(t), s(t), s(T_TAG), s(t), v(TV_TAG), s(T_TAG)))
    e("s_and_b32 %s, %s, 1\ns_mul_i32 %s, %s, 10240\nv_add_u32 %s, %s, %s" % (s(t), s(S_WAVE), s(t), s(t), v(TV_OW), s(t), v(V_L16)))
    e("s_mul_i32 %s, %s, 5120\nv_add_u32 %s, %s, %s" % (s(t), s(S_WAVE), v(TV_OR), s(t), v(V_L16)))
    e("s_lshr_b32 %s, %s, 1\ns_lshl1_add_u32 %s, %s, %s\ns_mul_i32 %s, %s, %d" % (s(t), s(S_WAVE), s(t), s(R), s(t), s(t), s(t), NSLAB * 4096))
    e("s_and_b32 %s, %s, 1\ns_lshl_b32 %s, %s, 11\ns_add_u32 %s, %s, %s" % (s(t + 1), s(S_WAVE), s(t + 1), s(t + 1), s(t), s(t), s(t + 1)))
    srd(e, T_SA, ptr(11), s(t), NSLAB * 4096 - 2048)
    e("s_mul_i32 %s, %s, 5120" % (s(T_M0W), s(S_WAVE)))
    e("s_mul_i32 %s, %s, %d\ns_add_u32 %s, %s, %s\ns_add_u32 %s, %s, %d" % (s(t), s(Cc), NSLAB * 10240, s(t), s(t), s(T_M0W), s(t), s(t), WF_OFF))
    return join_scalar(e.L)

def gen_tail_setup2():
    e = E()
    srd(e, T_SW, ptr(11), s(S_TMP), 90 * 20480 + 5120)
    e("v_mov_b32 %s, %s\nv_add_u32 %s, 4096, %s" % (v(TV_WR), v(V_L16), v(TV_L4K), v(V_L16)))
    return join_scalar(e.L)

def t8_w(sg):
    base = (sg % RW8) * 20480; tag = "D%d" % sg
    m, i = (0, sg) if sg < NSD else (1, sg - NSD)
    W = lambda vo, off: ("m", "buffer_load_dwordx4 %s, %s, %s offen offset:%d%s lds ;#%s" % (v(vo), s(T_SW, 4), s(T_OW), off, LDFL, tag))
    return [("s", "s_add_u32 %s, %s, %d\ns_add_u32 m0, %s, %d" % (s(T_OW), s(T_BW[m]), i * 20480, s(T_M0W), base)),
            W(V_L16, 0), W(V_L16, 1024), W(V_L16, 2048), W(V_L16, 3072),
            ("s", "s_add_u32 m0, %s, %d" % (s(T_M0W), base + 4096)), W(TV_L4K, 0)]
def t8_af(sg, half, j): return a((192, 208, 224, 32, 48)[sg % RA8] + half * 8 + j * 4, 4)
def t8_a(sg):
    m, i = (0, sg) if sg < NSD else (1, sg - NSD)
    l = [("s", "s_add_u32 %s, %s, %d" % (s(T_OA), s(T_BA[m]), i * 8192))]
    for half in range(2):
        for j in range(2):
            l.append(("m", "buffer_load_dwordx4 %s, %s, %s, %s offen offset:%d%s ;#A%d" % (t8_af(sg, half, j), v(TV_L4K if half else V_L16), s(T_SA, 4), s(T_OA), j * 1024, LDFL, sg)))
    return l
def t8_wf(F):
    k = F % RF8
    return a(4 * k if k < 8 else 240 + 4 * (k - 8), 4)
def t8_read(F):
    sg, f = F // 20, F % 20
    if opt("t8c", 1): f = (f & 1) * 10 + (f >> 1)
    return "ds_read_b128 %s, %s offset:%d" % (t8_wf(F), v(TV_WR), (sg % 3) * 20480 + f * 1024)
def t8_acc(m, n10, j):
    i = n10 * 2 + j
    if m == 0: return 128 + 4 * i
    return 64 + 4 * i if i < 16 else 208 + 4 * (i - 16)
NWP = opt("nwp", 4)
NPRE_X = opt("nprex", 2)
NPRE_G = opt("npreg", 2)

def cond_lines(lines): return [("@" + x) if x.startswith("buffer") else x for x in lines]

def publish(m):
    out = []; n = 0
    for ch in range(2):
        if m == 1 and REUSE:
            t = S_TMP
            out.append(("s", "s_and_b32 %s, s2, 3\ns_and_b32 %s, %s, 2\ns_sub_u32 %s, %s, %s\ns_sub_u32 %s, %s, %d\ns_mul_i32 %s, %s, %d\ns_add_u32 %s, %s, %s" % (
                s(t), s(t + 1), s(S_WAVE), s(t), s(t), s(t + 1), s(t), s(t), ch, s(t), s(t), 3 * XPB, s(t + 2), s(T_XO + ch), s(t))))
        else:
            out.append(("s", "s_add_u32 %s, %s, %d" % (s(S_TMP + 2), s(T_XO + ch), m * 12 * XPB)))
        for j in range(2):
            vals = [t8_acc(m, 5 * ch + nb, j) + k for nb in range(5) for k in range(4)]
            pb = (40, 240)[n % 2]; n += 1
            for gi in range(3):
                vs = vals[7 * gi:7 * gi + 7]
                if len(vs) < 7: vs = vs + [TV_TAG]
                for h in range(3): out.append(("v", "v_cvt_pk_bf16_f32 %s, %s, %s" % (v(pb + 4 * gi + h), v(vs[2 * h]), v(vs[2 * h + 1]))))
                out.append(("v", "v_cvt_pk_bf16_f32 %s, %s, %s" % (v(pb + 4 * gi + 3), v(vs[6]), v(TV_TAG))))
                off = j * 3072 + gi * 1024
                out.append(("m", "buffer_store_dwordx4 %s, %s, %s, %s offen offset:%d%s ;#xst%d" % (v(pb + 4 * gi, 4), v(TV_L4K if off >= 4096 else V_L16), s(T_XS, 4), s(S_TMP + 2), off % 4096, STFL, m)))
    return out
def own_write(m):
    l = []
    if L_OWN[m]: l.append("v_add_u32 %s, %d, %s" % (v(52), L_OWN[m], v(TV_OW)))
    ar = v(52) if L_OWN[m] else v(TV_OW)
    for ch in range(2):
        l.append("s_cmp_lg_u32 %s, 0x1000000\ns_cbranch_scc1 NOOWN%d%d" % (s(T_XO + ch), m, ch))
        for j in range(2):
            for nb in range(5): l.append("ds_write_b128 %s, %s offset:%d" % (ar, v(t8_acc(m, 5 * ch + nb, j), 4), (j * 5 + nb) * 1024))
        l.append("NOOWN%d%d:" % (m, ch))
    return l
XR = [128, 64]; OWR = [164, 184]
T_SL = 72
def xloads(m):
    l = []
    for i in range(3):
        if m == 1 and REUSE: l.append(("s", "s_mov_b32 %s, %s" % (s(S_TMP + 3), s(T_SL + i))))
        else: l.append(("s", "s_add_u32 %s, %s, %d" % (s(S_TMP + 3), s(T_XO + 2), m * 12 * XPB + i * XPB)))
        for k in range(3): l.append(("m", "buffer_load_dwordx4 %s, %s, %s, %s offen offset:%d%s ;#xr%d" % (v(XR[m] + (i * 3 + k) * 4, 4), v(V_L16), s(T_XS, 4), s(S_TMP + 3), k * 1024, LDFL, m)))
    return l
def xcheck(e, m, first_wait):
    t = S_TMP
    e("s_mov_b32 %s, 0" % s(t + 7))
    e(first_wait)
    e("XCHK%d:" % m)
    for i in range(9): e("v_xor_b32 %s, %s, %s" % (v(20 + i), s(T_TAG), v(XR[m] + 4 * i + 3)))
    for i in range(4): e("v_or3_b32 %s, %s, %s, %s" % (v(20), v(20), v(21 + 2 * i), v(22 + 2 * i)))
    e("v_cmp_lt_u32 vcc, 0xffff, %s" % v(20))
    e("s_add_u32 %s, %s, 1" % (s(t + 7), s(t + 7)))
    e("s_cmp_eq_u64 vcc, 0\ns_cbranch_scc1 XOK%d" % m)
    e("s_cmp_ge_u32 %s, 0x40000\ns_cbranch_scc1 XOK%d" % (s(t + 7), m))
    e("s_sleep %d" % opt("xslp", 4))
    for x in cond_lines([x for _, x in xloads(m)]): e(x)
    e("s_waitcnt vmcnt(0)\ns_branch XCHK%d" % m)
    e("XOK%d:" % m)
def xsum(e, m, nb):
    o = OWR[m] + 4 * nb
    for i in range(3):
        for k in range(4):
            idx = nb * 4 + k; gi, pos = idx // 7, idx % 7
            src = XR[m] + (i * 3 + gi) * 4 + pos // 2
            e(("v_and_b32 %s, 0xffff0000, %s" if pos & 1 else "v_lshlrev_b32 %s, 16, %s") % (v(20 + 4 * i + k), v(src)))
    for h in range(2):
        e("v_pk_add_f32 %s, %s, %s" % (v(o + 2 * h, 2), v(o + 2 * h, 2), v(20 + 2 * h, 2)))
        e("v_pk_add_f32 %s, %s, %s" % (v(24 + 2 * h, 2), v(24 + 2 * h, 2), v(28 + 2 * h, 2)))
    for h in range(2): e("v_pk_add_f32 %s, %s, %s" % (v(o + 2 * h, 2), v(o + 2 * h, 2), v(24 + 2 * h, 2)))

CV_G, CV_L, CV_X, LROW, L_FIN = 8, 11, 224, 336, 20480
def gen_t8(e):
    t = S_TMP
    mf = []
    NF = 20 * NSG
    for F in range(NF):
        sg, f = F // 20, F % 20
        m = 0 if sg < NSD else 1
        if opt("t8c", 1):
            j = f & 1; F0 = F - j
            d = v(t8_acc(m, f >> 1, j), 4)
            for i, half in enumerate((0, 1) if j == 0 else (1, 0)):
                mf.append("%s %s, %s, %s, %s" % (MF, d, t8_wf(F0 + half), t8_af(sg, half, j), "0" if (sg in (0, NSD) and i == 0) else d))
            continue
        for j in range(2):
            d = v(t8_acc(m, f % 10, j), 4)
            mf.append("%s %s, %s, %s, %s" % (MF, d, t8_wf(F), t8_af(sg, f // 10, j), "0" if (sg in (0, NSD) and f < 10) else d))
    G = Gaps(mf)
    DA = opt("t8d", 8)
    SIGS = opt("sigs", 2); CKS = opt("cks", 6); PLS = CKS - opt("polld", 1)
    bars = {}
    cur = 0
    for F in range(DA, NF):
        sg, f = F // 20, F % 20
        lo = 2 * (F - DA)
        if f == 0:
            if sg % 3 == 0:
                d = 61440 if sg % 6 == 3 else -61440
                G.place("v", ("v_add_u32 %s, %d, %s" % (v(TV_WR), d, v(TV_WR))) if d > 0 else ("v_subrev_u32 %s, %d, %s" % (v(TV_WR), -d, v(TV_WR))), cur - 1, cur - 1)
            pre = E(); post = E()
            if sg == CKS:
                stamp(pre, 11)
                pre("s_cmp_lg_u32 %s, 0\ns_cbranch_scc1 SPUN_O\ns_waitcnt SINCE{p3}" % s(S_WAVE))
                poll_spin(pre, False, s(K_FLG), 4, "O")
                stamp(post, 12)
            if sg == SIGS:
                post("s_cmp_lg_u32 %s, 0\ns_cbranch_scc1 NOSIG3" % s(S_WAVE))
                set_flag(post, 4)
                post("s_cmp_lg_u32 s2, 0\ns_cbranch_scc1 NOSIG3")
                post("s_add_u32 %s, %s, 0x10001\ns_mov_b64 exec, 1\nv_mov_b32 %s, %s\ns_mov_b32 %s, %d" % (s(t + 7), s(S_EPOCH), v(V_PL + 1), s(t + 7), s(t + 6), EP_OFF))
                post("buffer_store_dword %s, off, %s, %s sc1\ns_mov_b64 exec, -1" % (v(V_PL + 1), s(S_FL, 4), s(t + 6)))
                post("NOSIG3:")
                stamp(post, 10)
            if sg == PLS:
                post("s_cmp_lg_u32 %s, 0\ns_cbranch_scc1 NOPOLL3" % s(S_WAVE))
                post(poll_load(False, s(K_FLG)))
                post("NOPOLL3:\nMARK p3")
            b = G.place("b", "\n".join(cond_lines(pre.L) + ["s_barrier"] + cond_lines(post.L)), max(cur, lo - 1))
            lateA = NSD <= sg < NSD + opt("latea", 2)
            G.put(b, "s", "s_waitcnt WAITVM{D%d%s%s}" % (sg, "" if lateA else ",A%d" % sg, ",ost" if sg == SIGS else ""))
            if lateA: G.put(40 * sg - 1, "s", "s_waitcnt WAITVM{A%d}" % sg)
            bars[sg] = b; cur = b + 1
        cur = G.place("d", t8_read(F), max(cur, lo)) + 1
    qw = [(t8_w(sg), bars[sg - RW8 + 2] if sg >= RW8 else 0, sg) for sg in range(max(NPRE_G, NWP), NSG)]
    qa = [(t8_a(sg), max(40 * (sg - RA8 + 1) if sg >= RA8 else 0, bars[CKS] if sg >= NSD else 0), sg) for sg in range(NPRE_G, NSG)]
    DP = opt("dpub", 1)
    side = []
    if DP:
        side.append((publish(0), 40 * NSD + 8 + opt("dpd", 8)))
        side.append((xloads(0), 40 * opt("dld", 20)))
    if COAL:
        seq = []
        for i in range(3):
            seq += [("v", "v_add_u32 %s, %d, %s" % (v(CV_G + i), 64 * i, v(V_LANE))), ("v", "v_mul_u32_u24 %s, 6554, %s" % (v(36), v(CV_G + i))), ("v", "v_lshrrev_b32 %s, 16, %s" % (v(36), v(36))),
                    ("v", "v_lshlrev_b32 %s, 5, %s" % (v(CV_L + i), v(CV_G + i))), ("v", "v_mad_u32_u24 %s, %s, %d, %s" % (v(CV_L + i), v(36), LROW - 320, v(CV_L + i))),
                    ("v", "v_mul_u32_u24 %s, 1120, %s" % (v(36), v(36))), ("v", "v_lshl_add_u32 %s, %s, 4, %s" % (v(CV_G + i), v(CV_G + i), v(36))),
                    ("m", "buffer_load_dwordx4 %s, %s, %s, 0 offen ;#xx" % (v(CV_X + 4 * i, 4), v(CV_G + i), s(K_SX, 4)))]
        side.append((seq, 40 * opt("xld", 19)))
    else:
        side.append(([("m", "buffer_load_dwordx2 %s, %s, %s, 0 offen offset:%d ;#xx" % (v(KV_X + 2 * nb, 2), v(KV_XO), s(K_SX, 4), nb * 32)) for nb in range(5)], 40 * opt("xld", 19)))
    side.sort(key=lambda x: x[1])
    MG = opt("mg", 4)
    g = 0; lastm = -9
    while qw or qa:
        c = [x for x in (qw, qa) if x]
        c.sort(key=lambda x: (max(x[0][1], g), x[0][2]))
        seq, lo, _ = c[0].pop(0)
        g = max(g, lo)
        for k, x in seq:
            g = G.place(k, x, max(g + 1, lastm + MG if k == "m" else 0))
            if k == "m": lastm = g
    for seq, lo in side:
        g = lo; lastm = -99
        for k, x in seq:
            g = G.place(k, x, max(g + (0 if k == "v" else 1), lastm + (opt("smg", 24) if "xst" in x else 6) if k == "m" else 0))
            if k == "m": lastm = g
        if "xst0" in seq[-1][1]:
            G.va[g + 1].append("\n".join(own_write(0))); pubend = g + 1
    if DP: assert pubend < 40 * opt("dld", 20) - 40
    auto_lgkm(G, eager=opt("eag", 8))
    if VERBOSE: print("t8", G.pattern())
    for F in range(DA): e(t8_read(F))
    e("s_waitcnt lgkmcnt(0)")
    nm = 0
    for x in G.lines():
        if x.startswith("v_mfma"):
            if nm == 40 * NSD: stamp(e, 13)
            if STAMPS and opt("t8st", 0) and nm > 40 * NSD and (nm - 40 * NSD) % 160 == 0: stamp(e, 25 + (nm - 40 * NSD) // 160)
            nm += 1
        e(x)

def gen_tail(e0, head):
    head, neg = head
    e = E(); e.ext(head)
    T = V_T; t = S_TMP
    stamp(e, 8)
    C = 252
    W = T + 12
    wq = [x for sg in range(NPRE_X, NPRE_G) for x in (t8_w(sg) if sg >= NWP else []) + t8_a(sg)]
    def wsome(n):
        while wq and n > 0:
            k, x = wq.pop(0); n -= (k == "m")
            e(x + ("\ns_nop 0" if k == "s" else ""))
    wsome(opt("wpre", 0))
    pro, grp = o_ops()
    for i in range(neg, 16):
        if i == 8: e.ext(pro[1])
        for x in grp(i, True): e(x)
        wsome(opt("wpg", 1))
    wsome(99)
    e("s_nop 7")
    e("v_cmp_u_f32 vcc, %s, %s" % (v(T + 8), v(C)))
    e("s_cmp_lg_u64 vcc, 0\ns_cselect_b32 %s, 1, 0" % s(t))
    e("v_mov_b32 %s, %s" % (v(W), s(t)))
    e("s_lshl_b32 %s, %s, 2\ns_add_u32 %s, %s, %d" % (s(t + 1), s(S_WAVE), s(t + 1), s(t + 1), L_MISC))
    e("v_mov_b32 %s, %s\nv_mov_b32 %s, %d" % (v(W + 1), s(t + 1), v(W + 2), L_MISC))
    e("ds_write_b32 %s, %s" % (v(W + 1), v(W)))
    e("s_waitcnt WAITVM{D0,A0} lgkmcnt(0)")
    e("s_cmp_lg_u32 %s, 0\ns_cbranch_scc1 SPUN_EARLY3" % s(S_WAVE))
    w0 = E(); poll_spin(w0, True, None, 3, "EARLY3")
    for x in cond_lines(w0.L): e(x)
    e("v_min_u32 %s, 7, %s\nv_lshlrev_b32 %s, %d, %s" % (v(V_PL + 3), v(V_LANE), v(V_PL + 3), FSH, v(V_PL + 3)))
    e("s_barrier")
    e("ds_read_b128 %s, %s" % (v(W + 4, 4), v(W + 2)))
    t8 = E(); gen_t8(t8)
    i0 = t8.L.index("s_waitcnt lgkmcnt(0)")
    e.ext(t8.L[:i0 + 1])
    e("v_or3_b32 %s, %s, %s, %s\nv_or_b32 %s, %s, %s\ns_nop 0" % (v(W + 4), v(W + 4), v(W + 5), v(W + 6), v(W + 4), v(W + 4), v(W + 7)))
    e("v_readfirstlane_b32 %s, %s" % (s(t), v(W + 4)))
    e("s_nop 3\ns_andn2_b32 %s, %s, %s" % (s(t), s(t), s(S_RETRY)))
    e("s_cbranch_scc1 ATT_RETRY")
    stamp(e, 9)
    e.ext(t8.L[i0 + 1:])
    stamp(e, 14)
    if REUSE:
        xcheck(e, 0, "s_waitcnt WAITVM{xr0,xx}")
        e("s_barrier")
        e("s_xor_b32 %s, %s, 0x80000000\nv_mov_b32 %s, %s" % (s(T_TAG), s(T_TAG), v(TV_TAG), s(T_TAG)))
    else:
        e("s_nop 6")
    for k, x in publish(1): e(x)
    stamp(e, 23)
    for x in own_write(1): e(x)
    e("v_add_u32 %s, %d, %s" % (v(52), L_OWN[0], v(TV_OR)))
    if REUSE:
        for i in range(3):
            e("s_and_b32 %s, s2, 3\ns_xor_b32 %s, %s, %d\ns_sub_u32 %s, %s, %s\ns_mul_i32 %s, %s, %d\ns_add_u32 %s, %s, %s\ns_add_u32 %s, %s, %d" % (
                s(t), s(t + 1), s(t), i + 1, s(t), s(t + 1), s(t), s(t), s(t), 3 * XPB, s(t), s(t), s(T_XO + 2), s(T_SL + i), s(t), i * XPB))
    e("s_waitcnt lgkmcnt(0)")
    e("s_barrier")
    for nb in range(5): e("ds_read_b128 %s, %s offset:%d" % (v(OWR[0] + 4 * nb, 4), v(52), nb * 1024))
    for nb in range(5): e("ds_read_b128 %s, %s offset:%d" % (v(OWR[1] + 4 * nb, 4), v(TV_OR), L_OWN[1] + nb * 1024))
    if REUSE: e("s_waitcnt lgkmcnt(0)")
    else: xcheck(e, 0, "s_waitcnt WAITVM{xr0,xx} lgkmcnt(0)")
    GG = 100; XU = 204
    e("v_mov_b32 %s, %s" % (v(36), f2u(1.0 / DSC)))
    MP0, MP1 = opt("mp0", 2), opt("mp1", 4)
    e("v_mov_b32 %s, %s\nv_writelane_b32 %s, %s, 0\nv_writelane_b32 %s, %s, 1\ns_movk_i32 %s, %d\ns_mov_b32 %s, 0" % (v(38), s(T_SL + 2), v(38), s(T_SL), v(38), s(T_SL + 1), s(t + 4), 2048 + 1008 + 12, s(t + 5)))
    PLD = "@buffer_load_dword %s, %s, %s, %s offen%s" % (v(37), v(38), s(T_XS, 4), s(t + 4), LDFL)
    for nb in range(5):
        if nb == MP0 and MP1 < 9: e(PLD)
        if nb == MP1:
            e("s_waitcnt vmcnt(0)")
            e("v_xor_b32 %s, %s, %s\nv_cmp_lt_u32 vcc, 0xffff, %s" % (v(37), s(T_TAG), v(37), v(37)))
            e("s_cmp_lg_u64 vcc, 0\ns_cbranch_scc1 NOEARLY")
            for x in cond_lines([x for _, x in xloads(1)]): e(x)
            e("s_mov_b32 %s, 1\nNOEARLY:" % s(t + 5))
        d = OWR[0] + 4 * nb; gq = GG + 4 * nb
        xsum(e, 0, nb)
        for k in range(4): e("v_mul_f32 %s, %s, %s" % (v(gq + k), f2u(-math.log2(math.e) * DSC), v(d + k)))
        for k in range(4): e("v_exp_f32 %s, %s" % (v(gq + k), v(gq + k)))
        e("s_nop 0")
        for k in range(4): e("v_fma_f32 %s, %s, %s, %s" % (v(gq + k), v(gq + k), v(36), v(36)))
        for k in range(4): e("v_rcp_f32 %s, %s" % (v(gq + k), v(gq + k)))
        if not COAL:
            for h in range(2):
                e("v_lshlrev_b32 %s, 16, %s" % (v(XU + 4 * nb + 2 * h), v(KV_X + 2 * nb + h)))
                e("v_and_b32 %s, 0xffff0000, %s" % (v(XU + 4 * nb + 2 * h + 1), v(KV_X + 2 * nb + h)))
        else: e("s_nop 0")
        for k in range(4): e("v_mul_f32 %s, %s, %s" % (v(gq + k), v(gq + k), v(d + k)))
    if COAL:
        XU = 128
        for i in range(12):
            e("v_lshlrev_b32 %s, 16, %s\nv_and_b32 %s, 0xffff0000, %s" % (v(XU + 2 * i), v(CV_X + i), v(XU + 2 * i + 1), v(CV_X + i)))
        e("s_mul_i32 %s, %s, %d\ns_add_u32 %s, %s, %d" % (s(t), s(S_WAVE), 20 * LROW, s(t), s(t), L_FIN))
        e("v_and_b32 %s, 15, %s\nv_mul_u32_u24 %s, %d, %s\nv_lshrrev_b32 %s, 4, %s\nv_lshl_add_u32 %s, %s, 4, %s\nv_add_u32 %s, %s, %s" % (v(14), v(V_LANE), v(14), LROW, v(14), v(15), v(V_LANE), v(14), v(15), v(14), v(14), s(t), v(14)))
        for i in range(3): e("v_add_u32 %s, %s, %s" % (v(CV_L + i), s(t), v(CV_L + i)))
    stamp(e, 24)
    e("s_mov_b32 %s, 0" % s(t + 7))
    e("s_cmp_lg_u32 %s, 0\ns_cbranch_scc1 LOADED" % s(t + 5))
    e("PROBE:")
    e(PLD)
    e("s_waitcnt vmcnt(0)")
    e("v_xor_b32 %s, %s, %s\nv_cmp_lt_u32 vcc, 0xffff, %s" % (v(37), s(T_TAG), v(37), v(37)))
    e("s_add_u32 %s, %s, 1" % (s(t + 7), s(t + 7)))
    e("s_cmp_eq_u64 vcc, 0\ns_cbranch_scc1 PROBED")
    e("s_cmp_ge_u32 %s, 0x40000\ns_cbranch_scc1 PROBED" % s(t + 7))
    e("s_sleep %d\ns_branch PROBE" % opt("pslp", 4))
    e("PROBED:")
    for k, x in xloads(1): e(x)
    e("LOADED:")
    xcheck(e, 1, "s_waitcnt vmcnt(0)")
    stamp(e, 25)
    OFL = opt("ofl", "_sc1").replace("_", " ")
    for nb in range(5):
        o = OWR[1] + 4 * nb; gq = GG + 4 * nb; xu = XU + 4 * nb
        xsum(e, 1, nb)
        if COAL:
            for h in range(2): e("v_pk_mul_f32 %s, %s, %s" % (v(o + 2 * h, 2), v(o + 2 * h, 2), v(gq + 2 * h, 2)))
            e("ds_write_b128 %s, %s offset:%d" % (v(14), v(o, 4), nb * 64))
            continue
        for r in range(4): e("v_fma_f32 %s, %s, %s, %s" % (v(xu + r), v(o + r), v(gq + r), v(xu + r)))
        for h in range(2): e("v_cvt_pk_bf16_f32 %s, %s, %s" % (v(gq + h), v(xu + 2 * h), v(xu + 2 * h + 1)))
        e("buffer_store_dwordx2 %s, %s, %s, 0 offen offset:%d%s" % (v(gq, 2), v(KV_XO), s(K_SO, 4), nb * 32, OFL))
    if COAL:
        for i in range(3):
            for h in range(2): e("ds_read_b128 %s, %s offset:%d" % (v(64 + 8 * i + 4 * h, 4), v(CV_L + i), 16 * h))
        for i in range(3):
            e("s_waitcnt lgkmcnt(%d)" % (4 - 2 * i))
            for h in range(4): e("v_pk_add_f32 %s, %s, %s" % (v(64 + 8 * i + 2 * h, 2), v(64 + 8 * i + 2 * h, 2), v(XU + 8 * i + 2 * h, 2)))
            for h in range(4): e("v_cvt_pk_bf16_f32 %s, %s, %s" % (v(100 + 4 * i + h), v(64 + 8 * i + 2 * h), v(65 + 8 * i + 2 * h)))
            e("buffer_store_dwordx4 %s, %s, %s, 0 offen%s" % (v(100 + 4 * i, 4), v(CV_G + i), s(K_SO, 4), OFL))
    e0.ext([x.lstrip("@") for x in resolve_vm(e.L)])
    e = e0
    stamp(e, 15)
    if STAMPS: e("s_waitcnt vmcnt(0)")
    stamp(e, 16)
    stamp_fin(e)

def gen_kv_addr(e):
    T = V_T + 12; L = V_LANE
    e("s_lshl_b32 %s, %s, 19" % (s(S_TMP), s(S_HEAD)))
    srd(e, S_K, 54, s(S_TMP), 524288)
    srd(e, S_V, 56, s(S_TMP), 524288 + VSH * 8192)
    e("s_sub_u32 %s, %s, %d\ns_subb_u32 %s, %s, 0" % (s(S_V), s(S_V), VSH * 8192, s(S_V + 1), s(S_V + 1)))
    e("v_lshrrev_b32 %s, 4, %s\ns_lshl_b32 %s, %s, 3\nv_add_u32 %s, %s, %s\nv_and_b32 %s, 15, %s" % (v(T), v(L), s(S_TMP), s(S_WAVE), v(T), s(S_TMP), v(T), v(T + 1), v(L)))
    e("v_lshlrev_b32 %s, 8, %s" % (v(T + 2), v(T)))
    for i in range(2):
        e("v_add_u32 %s, %d, %s\nv_and_b32 %s, 15, %s\nv_xor_b32 %s, %s, %s\nv_lshl_add_u32 %s, %s, 4, %s" % (v(T + 3), 4 * i, v(T), v(T + 4), v(T + 3), v(T + 4), v(T + 4), v(T + 1), v(V_KD + i), v(T + 4), v(T + 2)))
        e("v_and_b32 %s, 7, %s\nv_lshlrev_b32 %s, 1, %s\nv_xor_b32 %s, %s, %s\nv_lshl_add_u32 %s, %s, 4, %s" % (v(T + 4), v(T + 3), v(T + 4), v(T + 4), v(T + 4), v(T + 4), v(T + 1), v(V_VD + i), v(T + 4), v(T + 2)))
    e("v_and_b32 %s, 15, %s\nv_lshrrev_b32 %s, 4, %s\nv_xor_b32 %s, %s, %s" % (v(T), v(L), v(T + 1), v(L), v(T + 1), v(T + 1), v(T)))
    e("v_lshlrev_b32 %s, 8, %s\nv_lshl_add_u32 %s, %s, 4, %s" % (v(T), v(T), v(T), v(T + 1), v(T)))
    for sl in range(4): e("v_xor_b32 %s, %d, %s" % (v(V_KA + sl), sl * 64, v(T)))
    e("v_lshrrev_b32 %s, 2, %s\nv_and_b32 %s, 7, %s\nv_lshlrev_b32 %s, 8, %s\nv_lshl_add_u32 %s, %s, 5, %s" % (v(T), v(L), v(T + 1), v(T), v(T), v(T), v(T), v(T + 1), v(T)))
    e("v_and_b32 %s, 3, %s\nv_lshl_add_u32 %s, %s, 3, %s\nv_add_u32 %s, %d, %s" % (v(T + 1), v(L), v(T), v(T + 1), v(T), v(T), L_V, v(T)))
    for db in range(8): e("v_xor_b32 %s, %d, %s" % (v(V_VA + db), db * 32, v(T)))

def gen_retry(e):
    e("ATT_RETRY:")
    e("s_waitcnt vmcnt(0)\ns_mov_b32 %s, 1" % s(S_RETRY))
    gen_kv_addr(e)
    for qb in range(4): e("v_mov_b32 %s, 0xff800000" % v(V_NEGM + 4 * qb))
    e("s_mov_b32 %s, 0" % s(S_KVOFF))
    e("RETRY_LOOP:")
    e("s_barrier")
    e("s_add_u32 m0, %s, %d\ns_nop 0" % (s(S_M0K), L_K))
    e(kv_dma("K", 0)); e(kv_dma("K", 1))
    e("s_waitcnt vmcnt(0)\ns_barrier")
    for kb in range(2):
        for sl in range(4): e(k_read(kb, sl, 0))
    e("s_waitcnt lgkmcnt(0)")
    e.ext(qk_mfmas(0, czero=True))
    e("s_nop 7")
    for qb in range(4):
        b = Sreg(0, qb, 0); m = v(V_NEGM + 4 * qb)
        for k in range(4): e("v_max3_f32 %s, %s, %s, %s" % (m, m, v(b + 2 * k), v(b + 2 * k + 1)))
    e("s_add_u32 %s, %s, 8192\ns_cmp_lt_u32 %s, %d\ns_cbranch_scc1 RETRY_LOOP" % (s(S_KVOFF), s(S_KVOFF), s(S_KVOFF), 64 * 8192))
    e("s_barrier")
    kv_preload(e)
    e("s_barrier")
    for kb in range(2):
        for sl in range(4): e(k_read(kb, sl, 0))
    e.ext(ones_ops(V_T))
    for r in range(128): e("v_accvgpr_write_b32 %s, 0" % a(A_O + r))
    for r in range(8): e("v_mov_b32 %s, 0" % v(V_L + r))
    e("s_waitcnt lgkmcnt(0)")
    e.ext(qk_mfmas(0, czero=True))
    for kb in range(2):
        for sl in range(4): e(k_read(kb, sl, 8192))
    e("s_branch ATT_START")

def gen_common_setup(e):
    T = V_T + 12; L = V_LANE
    e("s_lshl2_add_u32 %s, %s, %s" % (s(S_TMP + 1), s(S_QT), s(S_WAVE)))
    e("s_mul_i32 %s, %s, %d" % (s(S_TMP), s(S_TMP + 1), NSLAB * 4096))
    srd(e, S_AF, ptr(11), s(S_TMP), NSLAB * 4096)
    e("s_mul_i32 %s, %s, %d\ns_add_u32 %s, %s, %d" % (s(S_TMP), s(S_TMP + 1), 20 * 4096, s(S_TMP), s(S_TMP), XF_OFF))
    srd(e, S_X, ptr(11), s(S_TMP), 20 * 4096)
    e("s_mov_b64 %s, %s\ns_mov_b64 %s, %s" % (s(54, 2), s(ptr(1), 2), s(56, 2), s(ptr(2), 2)))
    e("v_bfe_u32 %s, %s, 2, 2\nv_lshrrev_b32 %s, 4, %s\nv_and_b32 %s, 3, %s" % (v(T), v(L), v(T + 1), v(L), v(T + 2), v(L)))
    e("v_lshlrev_b32 %s, 12, %s" % (v(T + 3), v(T + 1)))
    e("v_mul_u32_u24 %s, 320, %s\nv_add_u32 %s, %s, %s\nv_lshl_add_u32 %s, %s, 4, %s" % (v(T + 4), v(T), v(T + 4), v(T + 4), v(T + 3), v(T + 4), v(T + 2), v(T + 4)))
    for sl in range(4): e("v_xor_b32 %s, %d, %s" % (v(V_AQ + sl), sl * 64, v(T + 4)))
    e("v_lshl_add_u32 %s, %s, 7, %s\nv_lshl_add_u32 %s, %s, 3, %s" % (v(T + 4), v(T), v(T + 3), v(T + 4), v(T + 2), v(T + 4)))
    e("v_bfe_u32 %s, %s, 3, 2\nv_lshl_add_u32 %s, %s, 5, %s" % (v(T + 5), v(L), v(T + 4), v(T + 5), v(T + 4)))
    for u in range(4): e("v_xor_b32 %s, %d, %s" % (v(V_AG + u), u * 32, v(T + 4)))
    gen_kv_addr(e)

def gen_w_setup(e):
    T = V_T + 12; L = V_LANE
    e("v_lshrrev_b32 %s, 4, %s\nv_lshlrev_b32 %s, 2, %s\nv_and_b32 %s, 15, %s\nv_xor_b32 %s, %s, %s" % (v(T), v(L), v(T + 1), v(T), v(T + 2), v(L), v(T + 1), v(T + 1), v(T + 2)))
    e("v_lshlrev_b32 %s, 13, %s\nv_lshl_add_u32 %s, %s, 4, %s" % (v(T), v(T), v(V_WD), v(T + 1), v(T)))
    e("v_add_u32 %s, %d, %s" % (v(V_WD + 1), 4 * 8192 - 1024, v(V_WD)))
    e("v_lshrrev_b32 %s, 3, %s\nv_bfe_u32 %s, %s, 4, 1\nv_lshlrev_b32 %s, 1, %s" % (v(T), v(L), v(T + 1), v(L), v(T + 1), v(T + 1)))
    e("s_and_b32 %s, %s, 1\ns_lshl_b32 %s, %s, 2\nv_or_b32 %s, %s, %s" % (s(S_TMP), s(S_WAVE), s(S_TMP), s(S_TMP), v(T + 1), s(S_TMP), v(T + 1)))
    e("v_and_b32 %s, 7, %s\nv_xor_b32 %s, %s, %s" % (v(T + 2), v(L), v(T + 1), v(T + 1), v(T + 2)))
    e("v_mul_u32_u24 %s, 3456, %s\nv_lshl_add_u32 %s, %s, 4, %s" % (v(T), v(T), v(V_WD + 2), v(T + 1), v(T)))
    e("s_lshl_b32 %s, %s, 8\ns_sub_u32 %s, %d, %s" % (s(S_TMP), s(S_HEAD), s(S_TMP + 1), 640 * 8192, s(S_TMP)))
    srd(e, S_WQ, ptr(3), s(S_TMP), s(S_TMP + 1))
    for (d, p, sh) in ((S_WG, 6, 2048), (S_WU, 7, 3072)):
        e("s_lshl_b32 %s, %s, 7\ns_sub_u32 %s, %d, %s" % (s(S_TMP), s(S_FS), s(S_TMP + 1), 640 * 3456 + sh, s(S_TMP)))
        e("s_cmp_lt_u32 %s, 27\ns_cselect_b32 %s, %s, 0" % (s(S_FS), s(S_TMP + 1), s(S_TMP + 1)))
        srd(e, d, ptr(p), s(S_TMP), s(S_TMP + 1))
        e("s_sub_u32 %s, %s, %d\ns_subb_u32 %s, %s, 0" % (s(d), s(d), sh, s(d + 1), s(d + 1)))

def gen_kernel(e, name):
    T = V_T; L = V_LANE
    e(".text\n.globl %s\n.p2align 8\n.type %s,@function\n%s:" % (name, name, name))
    if STAMPS: e("s_memrealtime s[96:97]")
    e("s_cmp_ge_u32 s2, 256\ns_cbranch_scc1 K_END")
    e("s_load_dwordx8 %s, s[0:1], 0\ns_load_dwordx8 %s, s[0:1], 32\ns_load_dwordx8 %s, s[0:1], 64" % (s(S_PTR, 8), s(S_PTR + 8, 8), s(S_PTR + 16, 8)))
    e("v_and_b32 %s, 63, v0\nv_lshrrev_b32 %s, 6, v0\nv_lshlrev_b32 %s, 4, %s\nv_readfirstlane_b32 %s, %s" % (v(L), v(T), v(V_L16), v(L), s(S_WAVE), v(T)))
    e("s_and_b32 %s, s2, 7\ns_lshr_b32 %s, s2, 3\ns_and_b32 %s, %s, 3\ns_lshr_b32 %s, %s, 2" % (s(S_TMP), s(S_TMP + 1), s(S_HL), s(S_TMP + 1), s(S_QT), s(S_TMP + 1)))
    e("s_lshl_b32 %s, %s, 2\ns_add_u32 %s, %s, %s" % (s(S_HEAD), s(S_TMP), s(S_HEAD), s(S_HEAD), s(S_HL)))
    e("s_lshl_b32 %s, %s, 3\ns_add_u32 %s, %s, %s" % (s(S_FS), s(S_HL), s(S_FS), s(S_FS), s(S_TMP)))
    e("s_mov_b32 %s, 0" % s(S_RETRY))
    e("s_lshl_b32 %s, %s, 12\ns_lshl_b32 %s, %s, 11" % (s(S_M0W), s(S_WAVE), s(S_M0K), s(S_WAVE)))
    if STAMPS: e("v_mov_b32 v0, -1\nv_mov_b32 v19, -1")
    stamp(e, 0)
    if STAMPS: e("v_writelane_b32 v19, s96, 40\nv_writelane_b32 v0, s96, 40")
    def codetouch(e):
        e("s_getpc_b64 %s\nCODE0:" % s(S_TMP + 4, 2))
        e("s_lshr_b32 %s, s2, 3\ns_lshl2_add_u32 %s, %s, %s\ns_mul_i32 %s, %s, 640" % (s(S_EVT + 6), s(S_EVT + 6), s(S_EVT + 6), s(S_WAVE), s(S_EVT + 6), s(S_EVT + 6)))
        e("v_min_u32 %s, 4, %s\nv_lshlrev_b32 %s, 7, %s\nv_add_u32 %s, %s, %s\nv_min_u32 %s, CODE1-CODE0-4, %s" % (v(8), v(L), v(8), v(8), v(8), s(S_EVT + 6), v(8), v(8), v(8)))
        e("global_load_dword %s, %s, %s" % (v(V_PL), v(8), s(S_TMP + 4, 2)))
    CPOS = opt("cpos", 0); WPOS = opt("wpos", 0)
    if CPOS == 0: codetouch(e)
    gen_ln_loads(e)
    e("s_add_u32 %s, %s, %d\ns_addc_u32 %s, %s, 0\ns_load_dword %s, %s, 0" % (s(S_TMP + 2), s(ptr(11)), FL_OFF + EP_OFF, s(S_TMP + 3), s(ptr(11) + 1), s(S_EPOCH), s(S_TMP + 2, 2)))
    ny = 0
    if CPOS == 1: codetouch(e); ny += 1
    gen_w_setup(e)
    e("s_lshl_b32 %s, %s, 16\ns_mul_i32 %s, %s, %d" % (s(S_WQOFF), s(S_WAVE), s(S_WGOFF), s(S_WAVE), 8 * 3456))
    WT = max(opt("wt", 6), 1)
    X = V_TC
    e("s_lshl2_add_u32 %s, %s, %s\ns_add_u32 %s, %s, %d" % (s(S_TMP), s(S_QT), s(S_WAVE), s(S_TMP), s(S_TMP), 32 * NI))
    e("v_lshrrev_b32 %s, 1, %s\nv_min_u32 %s, %d, %s\nv_lshlrev_b32 %s, 5, %s\nv_add_u32 %s, %s, %s" % (v(X), v(L), v(X), WT - 1, v(X), v(X), v(X), v(X), s(S_TMP), v(X)))
    e("v_and_b32 %s, 1, %s\nv_lshlrev_b32 %s, 7, %s\nv_lshl_add_u32 %s, %s, 13, %s\nv_mul_u32_u24 %s, 3456, %s" % (v(X + 1), v(L), v(X + 1), v(X + 1), v(X + 1), v(X), v(X + 1), v(X), v(X)))
    w0 = E(); wt = E()
    for sl in range(NI): w_slab(w0, sl, True)
    wt("buffer_load_dword %s, %s, %s, 0 offen" % (v(V_PL + 1), v(X + 1), s(S_WQ, 4)))
    wt("buffer_load_dword %s, %s, %s, 0 offen offset:2048" % (v(V_PL + 2), v(X), s(S_WG, 4)))
    wt("buffer_load_dword %s, %s, %s, 0 offen offset:3072" % (v(V_DUMP), v(X), s(S_WU, 4)))
    if opt("wt", 6) == 0: wt.L = []
    early = {0: w0.L + wt.L, 1: [], 2: w0.L, 3: w0.L}[WPOS]
    mid = {0: [], 1: w0.L + wt.L, 2: wt.L, 3: []}[WPOS]
    after = wt.L if WPOS == 3 else []
    e.ext(early); ny += sum(x.startswith("buffer") for x in early)
    LATE = opt("late", 2)
    srd(e, S_FL, ptr(11), FL_OFF, EP_OFF + 4096)
    e("s_lshl_b32 %s, %s, 5\ns_add_u32 %s, %s, %s\ns_lshl_b32 %s, %s, %d" % (s(S_MYFL), s(S_QT), s(S_MYFL), s(S_MYFL), s(S_HEAD), s(S_MYFL), s(S_MYFL), FSH))
    e("v_min_u32 %s, 31, %s\nv_lshlrev_b32 %s, %d, %s\ns_lshl_b32 %s, %s, %d" % (v(V_PL + 3), v(L), v(V_PL + 3), FSH, v(V_PL + 3), s(S_XOFF), s(S_QT), FSH + 5))
    def rest():
        gen_common_setup(e)
        for i in range(8): e("v_add_u32 %s, 65536, %s" % (v(V_AHI + i), v(V_AQ + i)))
        e("v_mov_b32 %s, %d" % (v(V_ZA), L_MISC + 512))
        for i in range(4): e("v_mov_b32 %s, 0" % v(52 + i))
        e("ds_write_b128 %s, %s" % (v(V_ZA), v(52, 4)))
    stamp(e, 1)
    gen_ln_compute(e, ny, mid)
    e.ext(after)
    stamp(e, 29)
    if LATE == 1: rest()
    e("s_mul_i32 %s, %s, 0x9e3779b1\ns_add_u32 %s, %s, 0x7f4a7c15" % (s(S_TAG), s(S_EPOCH), s(S_TAG), s(S_TAG)))
    e("s_waitcnt vmcnt(%d)\ns_barrier" % len(after))
    stamp(e, 18)
    e("s_cmp_lg_u32 %s, 0\ns_cbranch_scc1 NOFL1" % s(S_WAVE))
    set_flag(e, 1)
    e("NOFL1:")
    if LATE == 2: rest()
    e("s_cmp_lg_u32 %s, 0\ns_cbranch_scc1 SPUN_XN" % s(S_WAVE))
    e(poll_load(False, s(S_XOFF)))
    e("s_waitcnt vmcnt(0)")
    poll_spin(e, False, s(S_XOFF), 1, "XN")
    e("s_barrier")
    stamp(e, 2)
    e("s_cmp_ge_u32 %s, 27\ns_cbranch_scc1 LIGHT" % s(S_FS))
    gen_proj(e, True, "H")
    e("PROJ_DONE:")
    head = gen_attention(e)
    gen_tail(e, head)
    e("K_END:\ns_endpgm")
    gen_events(e)
    gen_retry(e)
    e("LIGHT:")
    gen_proj(e, False, "L")
    e("s_branch PROJ_DONE")
    e("CODE1:")
    e(kd(name))

def main():
    e = E()
    hdr = open("cdna_kernels/%s.s.ref" % NAME).read().split("; Override launch")[0]
    e.L += hdr.strip().split("\n")
    e("; @launch grid=(256,1,1) block=(256,1,1) lds=%d" % LDS_BYTES)
    e('.amdgcn_target "amdgcn-amd-amdhsa--gfx950"')
    gen_kernel(e, NAME + "_kernel")
    t = re.sub(r" ;#\w*", "", e.text()).replace("NVWAIT", str(min(NV01)))
    if VERBOSE: print("NV01", NV01)
    errs = [x for x in asmcheck.check(t, [NAME + "_kernel"]) if x.count("_load_dword v%d," % V_DUMP) != 2 and not any(y in x for y in poll_load(True).split("\n")[-4:])]
    if errs:
        print("\n".join(errs[:40])); print(len(errs), "problems")
    out = [x for x in sys.argv[1:] if x.endswith(".s")]
    open(out[0] if out else "cdna_kernels/%s.s" % NAME, "w").write(t)

if __name__ == "__main__":
    main()
```

```python
import sys, math, os, struct, re
from sched import Gaps, auto_lgkm
import asmcheck

NAME = "recurrent_scan__mha_block_cached__glu_gated_reglu__prompt"
MF = "v_mfma_f32_16x16x32_bf16"
OPT = dict(x.split("=") for x in sys.argv[1:] if "=" in x)
def opt(k, d): return type(d)(OPT.get(k, d))
VERBOSE = "-v" in sys.argv
STAMPS = "--stamps" in sys.argv
STFL = opt("stfl", " sc1").replace("_", " ")
LDFL = opt("ldfl", " sc1").replace("_", " ")

NSLAB = 182
QSC = math.log2(math.e) / math.sqrt(128.0)
DSC = 1.0 / (QSC * QSC)
WF_OFF = 0x1800000
WF_BYTES = 8 * NSLAB * 5120
XF_OFF = 0x2000000
XP_OFF = 0x2800000
MAXST = 4
FL_OFF = 0x2400000

class E:
    def __init__(self): self.L = []
    def __call__(self, s):
        for x in s.split("\n"):
            x = x.strip()
            if x: self.L.append(x)
    def ext(self, l): self.L += l
    def text(self): return "\n".join(self.L) + "\n"

def v(a, n=1): return "v%d" % a if n == 1 else "v[%d:%d]" % (a, a + n - 1)
def a(a_, n=1): return "a%d" % a_ if n == 1 else "a[%d:%d]" % (a_, a_ + n - 1)
def s(a_, n=1): return "s%d" % a_ if n == 1 else "s[%d:%d]" % (a_, a_ + n - 1)
def f2u(x): return "0x%08x" % struct.unpack("<I", struct.pack("<f", x))[0]

def kd(name, vgpr=512, acc=256):
    return """.section .rodata,"a"
.p2align 6
.amdhsa_kernel %s
  .amdhsa_next_free_vgpr %d
  .amdhsa_next_free_sgpr 102
  .amdhsa_accum_offset %d
  .amdhsa_group_segment_fixed_size 0
  .amdhsa_kernarg_size 96
  .amdhsa_user_sgpr_count 2
  .amdhsa_user_sgpr_kernarg_segment_ptr 1
  .amdhsa_system_sgpr_workgroup_id_x 1
.end_amdhsa_kernel
""" % (name, vgpr, acc)

def stamp(e, i):
    if not STAMPS: return
    e("s_waitcnt lgkmcnt(0)\ns_memtime s[98:99]\ns_memrealtime s[100:101]\ns_waitcnt lgkmcnt(0)")
    e("v_writelane_b32 v0, s98, %d\nv_writelane_b32 v19, s100, %d" % (i, i))
def stamp_fin(e):
    if not STAMPS: return
    if opt("echo", ""):
        i, j = [int(x) for x in opt("echo", "").split(".")]
        e("s_nop 1\nv_readlane_b32 s96, v19, %d\nv_readlane_b32 s97, v19, %d\nv_readlane_b32 s98, v19, 16\ns_nop 3\ns_sub_u32 s96, s97, s96\ns_min_u32 s96, s96, 20000\ns_cmp_%s_u32 %s, 27\ns_cselect_b32 s96, s96, 0" % (i, j, "ge" if opt("el", 0) else "lt", s(S_FS)))
        if opt("ecyc", 0):
            e("v_readlane_b32 s96, v0, %d\nv_readlane_b32 s97, v0, %d\ns_nop 3\ns_sub_u32 s96, s97, s96\ns_lshr_b32 s96, s96, 3\ns_min_u32 s96, s96, 20000\ns_cmp_lt_u32 %s, 27\ns_cselect_b32 s96, s96, 0" % (i, j, s(S_FS)))
            i = 40
        if opt("eabs", 0): e("v_readlane_b32 s98, v19, %d\ns_add_u32 s96, s96, 10000\ns_nop 3" % i)
        e("ECHO:\ns_sleep 1\ns_memrealtime s[100:101]\ns_waitcnt lgkmcnt(0)\ns_sub_u32 s97, s100, s98\ns_cmp_lt_u32 s97, s96\ns_cbranch_scc1 ECHO")
        return
    if opt("dbgout", -1) >= 0:
        e("s_cmp_lg_u32 s2, %d\ns_cbranch_scc1 NODBG\ns_cmp_lg_u32 %s, 0\ns_cbranch_scc1 NODBG" % (opt("dbgout", -1), s(S_WAVE)))
        e("v_readlane_b32 s98, v19, 0\ns_nop 3\nv_subrev_u32 v18, s98, v19\nv_lshlrev_b32 v20, 2, v1\nv_subrev_u32 v20, 4, v20")
        e("s_mov_b32 s96, %s\ns_mov_b32 s97, %s\ns_mov_b32 s98, 64\ns_mov_b32 s99, 0x20000" % (s(ptr(10)), s(ptr(10) + 1)))
        e("buffer_store_dword v18, v20, s[96:99], 0 offen\ns_waitcnt vmcnt(0)\nNODBG:")
        return
    if opt("wsb", 0): e("s_sub_u32 %s, %s, %d\ns_subb_u32 %s, %s, 0" % (s(ptr(11)), s(ptr(11)), opt("wsb", 0) << 20, s(ptr(11) + 1), s(ptr(11) + 1)))
    e("s_lshl_b32 s98, s2, 2\ns_add_u32 s98, s98, %s\ns_lshl_b32 s98, s98, 9\ns_add_u32 s98, s98, %d" % (s(S_WAVE), 0x4000000))
    e("s_add_u32 s96, %s, s98\ns_addc_u32 s97, %s, 0\ns_mov_b32 s98, 512\ns_mov_b32 s99, 0x20000" % (s(ptr(11)), s(ptr(11) + 1)))
    e("v_mov_b32 v18, v0\nv_lshlrev_b32 v20, 3, v1\nbuffer_store_dwordx2 v[18:19], v20, s[96:99], 0 offen\ns_waitcnt vmcnt(0)")

def srd(e, d, base, off_lo, nbytes):
    e("s_add_u32 %s, %s, %s" % (s(d), s(base), off_lo))
    e("s_addc_u32 %s, %s, 0" % (s(d + 1), s(base + 1)))
    e("s_mov_b32 %s, %s" % (s(d + 2), nbytes))
    e("s_mov_b32 %s, 0x20000" % s(d + 3))

def uncond(x): return False
def resolve_vm(lines):
    out = []; ops = []; waited = set(); lastm0 = None; done = 0; marks = {}
    for x in lines:
        mm = re.search(r"vmcnt\((\d+)\)", x)
        if mm and not x.startswith("@") and uncond(x): done = max(done, len(ops) - int(mm.group(1)))
        if x.startswith(("buffer_", "global_")) and len(ops) - done >= 58:
            out.append("s_waitcnt vmcnt(52)"); done = len(ops) - 52
        if x.startswith("s_add_u32 m0,"): lastm0 = x.split(",")[1].strip()
        if " lds" in x and ";#" in x:
            tg = x.split(";#")[1].strip()
            exp = s(S_M0W) if tg.startswith("w") else (s(S_TRM) if tg == "trs" else s(S_M0K))
            if tg.startswith("D"): exp = s(T_M0W)
            assert lastm0 == exp, "M0 collision at %s" % x
        if x.startswith("MARK"):
            marks[x.split()[1]] = len(ops); continue
        m = re.search(r"SINCE\{(\w+)\}", x)
        if m: x = x.replace(m.group(0), "vmcnt(%d)" % min(63, len(ops) - marks[m.group(1)]))
        m = re.search(r"WAITVM\{([^}]*)\}", x)
        if m:
            need = set(m.group(1).split(","))
            waited |= need
            idx = [i for i, t in enumerate(ops) if t in need]
            n = len(ops) - 1 - max(idx) if idx else 63
            done = max(done, len(ops) - min(n, 63))
            x = x.replace(m.group(0), "vmcnt(%d)" % min(n, 63))
        elif x.startswith(("buffer_", "global_")):
            t = x.split(";#")[1].strip() if ";#" in x else ""
            assert t not in waited, "op %s issued after its wait" % t
            ops.append(t)
        out.append(x)
    return out

S_FL = 4
S_X, S_WQ, S_WG, S_WU, S_K, S_V, S_AF, S_T, S_WF = 8, 12, 16, 20, 24, 28, 32, 36, 40
S_PTR = 44
S_WAVE, S_HEAD, S_QT, S_FS = 68, 69, 70, 71
S_XOFF, S_WQOFF, S_WGOFF, S_M0W = 72, 73, 74, 75
S_KVOFF, S_M0K, S_TOG, S_RETRY = 76, 77, 78, 79
S_TMP = 80
S_TRS, S_TRM, S_TRD, S_TRU = 88, 89, 90, 91
S_EPOCH, S_TAG, S_MYFL = 92, 93, 94
S_HL = 3
S_EVT = 85
def EV(n): return (10 + 2 * n) * 8192
EVT0 = EV(3)
EVTE = (62 + 10) * 8192
NWH = opt("nwh", 0)
S_LN = 84
def ptr(i): return S_PTR + 2 * i

L_K = 0
L_V = 65536
RW = 8
L_TR = 114688
L_MISC = 155648
LDS_BYTES = 163840

V_LANE = 1
V_L16 = 2
V_WD = 3
V_TRA = 6
V_AQ = 10
V_AG = 14
V_KA = 20
V_VA = 24
V_KD = 32
V_VD = 34
V_DUMP = 18
V_SIDX = 7
V_ZA = 6
NL = 2
VSH = 4
NOE = 4
V_PW = 5
PWARM = opt("pw", 0)
V_TC = 62
V_PL = 36
V_T = 40
V_ACCQ = 64
V_ACCG = 192
V_Q = 64
V_S = 128
V_P = 192
V_NEGM = 224
V_L = 240
A_ACCU = 0
XD = 8
A_X = 64
A_W = 192
A_TR = 208
V_ONE = 56
A_O = 64
A_KF = 224
A_KF1 = 192
A_VF = 0
V_AHI = 44

def qacc(blk, qb): return (V_S if blk & 1 else V_Q) + ((blk >> 1) * 4 + qb) * 4
def wslot(sl): return (sl + 4) % RW
def accreg(blk, qb):
    if blk < 8: return v(qacc(blk, qb), 4)
    if blk < 12: return v(V_ACCG + ((blk - 8) * 4 + qb) * 4, 4)
    return a(A_ACCU + ((blk - 12) * 4 + qb) * 4, 4)

def w_read(dst, blk, j, rel):
    if blk < 8:
        ar = V_AQ + (blk >> 1); off = rel + j * 1024 + (blk & 1) * 8
    else:
        ar = V_AG + ((blk - 8) & 3); off = rel + 2048 + (1024 if blk >= 12 else 0) + j * 512
    if rel >= 65536: ar += V_AHI - V_AQ; off -= 65536
    assert 0 <= off < 65536
    return "ds_read_b64_tr_b16 %s, %s offset:%d" % (a(dst + 2 * j, 2), v(ar), off)

def w_dma(heavy, tag):
    l = ["buffer_load_dwordx4 %s, %s, %s offen lds ;#%s" % (v(V_WD), s(S_WQ, 4), s(S_WQOFF), tag),
         "buffer_load_dwordx4 %s, %s, %s offen offset:1024 lds ;#%s" % (v(V_WD + 1), s(S_WQ, 4), s(S_WQOFF), tag)]
    if heavy:
        l += ["buffer_load_dwordx4 %s, %s, %s offen offset:2048 lds ;#%s" % (v(V_WD + 2), s(S_WG, 4), s(S_WGOFF), tag),
              "buffer_load_dwordx4 %s, %s, %s offen offset:3072 lds ;#%s" % (v(V_WD + 2), s(S_WU, 4), s(S_WGOFF), tag)]
    return l

def x_load(sl, qb):
    return "buffer_load_dwordx4 %s, %s, %s, %s offen offset:%d%s ;#x%d" % (a(A_X + ((sl % XD) * 4 + qb) * 4, 4), v(V_L16), s(S_X, 4), s(S_XOFF), qb * 1024, LDFL, sl)

def kv_dma(which, i, tag=""):
    vo = (V_KD if which == "K" else V_VD) + i
    return "buffer_load_dwordx4 %s, %s, %s offen offset:%d%s lds ;#%s" % (v(vo), s(S_K if which == "K" else S_V, 4), s(S_KVOFF), 1024 * i, opt("kvfl", "_sc1").replace("_", " "), tag)

FSH = opt("fsh", 2)
EP_OFF = 65536
def set_flag(e, stage):
    if opt("fwide", 0):
        n = (1 << FSH) // 8
        e("s_add_u32 %s, %s, %d\ns_mov_b64 exec, 0x%x\nv_mov_b32 %s, %s\nv_mov_b32 %s, %s\nv_lshlrev_b32 %s, 3, %s" % (s(S_TMP + 7), s(S_TAG), stage, (1 << n) - 1, v(V_PL), s(S_TMP + 7), v(V_PL + 1), s(S_TMP + 7), v(V_PL + 2), v(V_LANE)))
        e("buffer_store_dwordx2 %s, %s, %s, %s offen sc1" % (v(V_PL, 2), v(V_PL + 2), s(S_FL, 4), s(S_MYFL)))
    else:
        e("s_add_u32 %s, %s, %d\ns_mov_b64 exec, 1\nv_mov_b32 %s, %s" % (s(S_TMP + 7), s(S_TAG), stage, v(V_PL), s(S_TMP + 7)))
        e("buffer_store_dword %s, off, %s, %s sc1" % (v(V_PL), s(S_FL, 4), s(S_MYFL)))
    e("s_mov_b64 exec, -1")

def poll_load(allq, qoff=None):
    if allq and FSH > 2:
        return "v_lshlrev_b32 %s, %d, %s\n" % (v(V_DUMP), FSH + 2, v(V_LANE)) + "\n".join("buffer_load_dword %s, %s, %s, 0 offen offset:%d sc1" % (v(V_PL + i), v(V_DUMP), s(S_FL, 4), i << FSH) for i in range(4))
    if allq: return "buffer_load_dwordx4 %s, %s, %s, 0 offen sc1" % (v(V_PL, 4), v(V_L16), s(S_FL, 4))
    return "buffer_load_dword %s, %s, %s, %s offen sc1" % (v(V_PL), v(V_PL + 3), s(S_FL, 4), qoff)

def poll_spin(e, allq, qoff, stage, tag):
    e("s_mov_b32 %s, 0\ns_add_u32 %s, %s, %d" % (s(S_TMP + 7), s(S_TMP + 6), s(S_TAG), stage))
    e("SPIN_%s:" % tag)
    n = 4 if allq else 1
    for i in range(n): e("v_subrev_u32 %s, %s, %s" % (v(V_PL + i), s(S_TMP + 6), v(V_PL + i)))
    if allq: e("v_max3_u32 %s, %s, %s, %s\nv_max_u32 %s, %s, %s" % (v(V_PL), v(V_PL), v(V_PL + 1), v(V_PL + 2), v(V_PL), v(V_PL), v(V_PL + 3)))
    e("v_cmp_lt_u32 vcc, %d, %s" % (MAXST - stage, v(V_PL)))
    e("s_add_u32 %s, %s, 1" % (s(S_TMP + 7), s(S_TMP + 7)))
    e("s_cmp_eq_u64 vcc, 0\ns_cbranch_scc1 SPUN_%s" % tag)
    e("s_cmp_ge_u32 %s, 0x40000\ns_cbranch_scc1 SPUN_%s" % (s(S_TMP + 7), tag))
    e("s_sleep %d" % opt("slp", 2))
    e(poll_load(allq, qoff))
    e("s_waitcnt vmcnt(0)\ns_branch SPIN_%s" % tag)
    e("SPUN_%s:" % tag)

def zero_acc(e, heavy=True):
    for r in range(V_ACCQ, 256): e("v_mov_b32 %s, 0" % v(r))
    for r in range(A_ACCU, A_ACCU + 64): e("v_accvgpr_write_b32 %s, 0" % a(r))

NI = opt("ni", 1)

def gen_ln_loads(e):
    T = V_T; L = V_LANE
    R = V_ACCQ
    e("v_bfe_u32 %s, %s, 1, 3\nv_lshrrev_b32 %s, 4, %s\nv_and_b32 %s, 1, %s" % (v(T), v(L), v(T + 1), v(L), v(T + 2), v(L)))
    e("v_mul_u32_u24 %s, 1280, %s\nv_lshl_add_u32 %s, %s, 4, %s\nv_lshl_add_u32 %s, %s, 3, %s" % (v(T + 3), v(T), v(T + 3), v(T + 1), v(T + 3), v(T + 3), v(T + 2), v(T + 3)))
    e("s_lshl_b32 %s, %s, 5\ns_add_u32 %s, %s, %s\ns_mul_i32 %s, %s, %d\ns_mul_i32 %s, %s, 320" % (s(S_TMP), s(S_QT), s(S_TMP), s(S_TMP), s(S_HEAD), s(S_TMP), s(S_TMP), 8 * 1280, s(S_TMP + 1), s(S_WAVE)))
    e("s_waitcnt lgkmcnt(0)")
    if opt("wsb", 0): e("s_add_u32 %s, %s, %d\ns_addc_u32 %s, %s, 0" % (s(ptr(11)), s(ptr(11)), opt("wsb", 0) << 20, s(ptr(11) + 1), s(ptr(11) + 1)))
    srd(e, S_T, ptr(0), s(S_TMP), 8 * 1280)
    for i in range(5): e("buffer_load_dwordx2 %s, %s, %s, %s offen offset:%d" % (v(R + 2 * i, 2), v(T + 3), s(S_T, 4), s(S_TMP + 1), 64 * i))

def gen_ln_compute(e, nyounger, mid=()):
    T = V_T; L = V_LANE
    R = V_ACCQ; U = R + 10
    e("v_and_b32 %s, 15, %s\nv_lshlrev_b32 %s, 3, %s\nv_lshl_add_u32 %s, %s, 8, %s" % (v(T + 3), v(L), v(T + 3), v(T + 3), v(T + 3), v(T + 1), v(T + 3)))
    e("s_lshr_b32 %s, %s, 3\ns_lshl2_add_u32 %s, %s, %s\ns_mul_i32 %s, %s, %d" % (s(S_TMP), s(S_HEAD), s(S_TMP), s(S_QT), s(S_TMP), s(S_TMP), s(S_TMP), 20 * 4096))
    e("s_bfe_u32 %s, %s, 0x20001\ns_lshl_b32 %s, %s, 10\ns_add_u32 %s, %s, %s" % (s(S_TMP + 1), s(S_HEAD), s(S_TMP + 1), s(S_TMP + 1), s(S_TMP), s(S_TMP), s(S_TMP + 1)))
    e("s_and_b32 %s, %s, 1\ns_lshl_b32 %s, %s, 7\ns_add_u32 %s, %s, %s\ns_add_u32 %s, %s, %d" % (s(S_TMP + 1), s(S_HEAD), s(S_TMP + 1), s(S_TMP + 1), s(S_TMP), s(S_TMP), s(S_TMP + 1), s(S_TMP), s(S_TMP), XF_OFF))
    srd(e, S_LN, ptr(11), s(S_TMP), 20 * 4096)
    e("s_mul_i32 %s, %s, %d" % (s(S_TMP), s(S_WAVE), 5 * 4096))
    e("v_lshlrev_b32 %s, 5, %s\nv_add_u32 %s, %d, %s\ns_lshl_b32 %s, %s, 3\nv_add_u32 %s, %s, %s" % (v(T + 4), v(T), v(T + 4), L_MISC, v(T + 4), s(S_TMP + 1), s(S_WAVE), v(T + 5), s(S_TMP + 1), v(T + 4)))
    A0 = T + 6; M = T + 8
    e("s_waitcnt vmcnt(%d)" % nyounger)
    stamp(e, 17)
    e.ext(list(mid))
    for d in range(10): e("v_lshlrev_b32 %s, 16, %s\nv_and_b32 %s, 0xffff0000, %s" % (v(U + 2 * d), v(R + d), v(U + 2 * d + 1), v(R + d)))
    e("v_pk_add_f32 %s, %s, %s\nv_pk_add_f32 %s, %s, %s" % (v(A0, 2), v(U, 2), v(U + 2, 2), v(M, 2), v(U + 4, 2), v(U + 6, 2)))
    for d in range(4, 10): e("v_pk_add_f32 %s, %s, %s" % (v((A0, M)[d & 1], 2), v((A0, M)[d & 1], 2), v(U + 2 * d, 2)))
    def reduce(dst):
        e("v_pk_add_f32 %s, %s, %s" % (v(A0, 2), v(A0, 2), v(M, 2) if dst == M else v(T + 10, 2)))
        e("v_add_f32 %s, %s, %s\ns_nop 1" % (v(A0), v(A0), v(A0 + 1)))
        e("v_add_f32_dpp %s, %s, %s quad_perm:[1,0,3,2] row_mask:0xf bank_mask:0xf" % (v(A0), v(A0), v(A0)))
        for sw in ("v_permlane32_swap_b32", "v_permlane16_swap_b32"):
            e("v_mov_b32 %s, %s\ns_nop 1\n%s %s, %s\nv_add_f32 %s, %s, %s" % (v(A0 + 1), v(A0), sw, v(A0), v(A0 + 1), v(A0), v(A0), v(A0 + 1)))
    reduce(M)
    e("v_mul_f32 %s, %s, %s\nv_mul_f32 %s, %s, %s" % (v(M), f2u(-1.0 / 160), v(A0), v(M + 1), f2u(-1.0 / 160), v(A0)))
    for d in range(10): e("v_pk_add_f32 %s, %s, %s" % (v(U + 2 * d, 2), v(U + 2 * d, 2), v(M, 2)))
    e("v_pk_mul_f32 %s, %s, %s\nv_pk_mul_f32 %s, %s, %s" % (v(A0, 2), v(U, 2), v(U, 2), v(T + 10, 2), v(U + 2, 2), v(U + 2, 2)))
    for d in range(2, 10): e("v_pk_fma_f32 %s, %s, %s, %s" % (v((A0, T + 10)[d & 1], 2), v(U + 2 * d, 2), v(U + 2 * d, 2), v((A0, T + 10)[d & 1], 2)))
    reduce(None)
    e("v_mov_b32 %s, %s" % (v(M + 1), v(A0)))
    e("ds_write_b64 %s, %s\ns_waitcnt lgkmcnt(0)\ns_barrier" % (v(T + 5), v(M, 2)))
    X = T + 12
    e("ds_read_b128 %s, %s\nds_read_b128 %s, %s offset:16\ns_waitcnt lgkmcnt(0)" % (v(X, 4), v(T + 4), v(X + 4, 4), v(T + 4)))
    e("v_pk_add_f32 %s, %s, %s\nv_pk_add_f32 %s, %s, %s\nv_pk_add_f32 %s, %s, %s" % (v(A0, 2), v(X, 2), v(X + 2, 2), v(T + 10, 2), v(X + 4, 2), v(X + 6, 2), v(A0, 2), v(A0, 2), v(T + 10, 2)))
    e("v_mul_f32 %s, 0.25, %s" % (v(A0), v(A0)) if False else "v_mul_f32 %s, %s, %s" % (v(A0), f2u(0.25), v(A0)))
    for k in range(4): e("v_sub_f32 %s, %s, %s" % (v(X + 2 * k), v(X + 2 * k), v(A0)))
    e("v_mul_f32 %s, %s, %s" % (v(X + 1), v(X), v(X)))
    for k in range(1, 4): e("v_fmac_f32 %s, %s, %s" % (v(X + 1), v(X + 2 * k), v(X + 2 * k)))
    e("v_fmac_f32 %s, %s, %s" % (v(A0 + 1), f2u(160.0), v(X + 1)))
    e("v_mov_b32 %s, %s\nv_fmac_f32 %s, %s, %s\nv_rsq_f32 %s, %s" % (v(X), f2u(1e-5 * DSC), v(X), f2u(DSC / 640), v(A0 + 1), v(X), v(X)))
    e("v_sub_f32 %s, %s, %s" % (v(M), v(A0), v(M)))
    e("v_mov_b32 %s, %s\nv_mul_f32 %s, %s, %s\nv_mul_f32 %s, %s, %s" % (v(X + 1), v(X), v(M + 1), v(M), v(X), v(M), v(M), v(X)))
    for i in range(5):
        for d in (2 * i, 2 * i + 1): e("v_pk_fma_f32 %s, %s, %s, %s" % (v(U + 2 * d, 2), v(U + 2 * d, 2), v(X, 2), v(M, 2)))
        for d in (2 * i, 2 * i + 1): e("v_cvt_pk_bf16_f32 %s, %s, %s" % (v(R + d), v(U + 2 * d), v(U + 2 * d + 1)))
        e("buffer_store_dwordx2 %s, %s, %s, %s offen%s" % (v(R + 2 * i, 2), v(T + 3), s(S_LN, 4), s(S_TMP), STFL))
        if i < 4: e("s_add_u32 %s, %s, 4096" % (s(S_TMP), s(S_TMP)))

def w_slab(e, sl, heavy):
    e("s_add_u32 m0, %s, %d\ns_nop 0" % (s(S_M0W), wslot(sl) * 16384))
    e.ext(w_dma(heavy, "w%d" % sl))
    e("s_add_u32 %s, %s, %d\ns_add_u32 %s, %s, %d" % (s(S_WQOFF), s(S_WQOFF), 32 * 8192, s(S_WGOFF), s(S_WGOFF), 32 * 3456))

def ones_ops(tmp):
    L = V_LANE
    return ["v_lshrrev_b32 %s, 4, %s" % (v(tmp), v(L)), "v_xor_b32 %s, %s, %s" % (v(tmp), v(tmp), v(L)), "v_bfe_u32 %s, %s, 1, 1" % (v(tmp), v(tmp)),
            "v_subrev_u32 %s, 1, %s" % (v(tmp), v(tmp)), "v_and_b32 %s, 0x3f803f80, %s" % (v(tmp), v(tmp))] + \
           ["v_mov_b32 %s, %s" % (v(V_ONE + r), v(tmp)) for r in range(4)] + \
           ["v_and_b32 %s, 1, %s" % (v(V_SIDX), v(L)), "v_mul_u32_u24 %s, 0xaaaa, %s" % (v(V_SIDX), v(V_SIDX)), "v_or_b32 %s, 0x4444, %s" % (v(V_SIDX), v(V_SIDX))]

NV01 = []
def gen_proj(e0, heavy, tag):
    e = E()
    T = V_T; L = V_LANE
    NS = opt("ns", 4) if heavy else 0
    GU = [b for fb in range(4) for b in (12 + fb, 8 + fb)]
    PC0 = opt("pc0", 2) if heavy else opt("lpc0", 20)
    def grp(lo, hi):
        out = []; sl = lo
        while sl < hi:
            if sl >= PC0 and sl + 1 < hi: out.append((sl, sl + 1)); sl += 2
            else: out.append((sl,)); sl += 1
        return out
    units = []
    for ss in grp(0, 20 - NS): units.append((ss, list(range(8)) + (GU if heavy else [])))
    for part in {0: (GU,), 1: (GU[:4], GU[4:]), 2: (GU[:2], GU[2:4], GU[4:6], GU[6:])}[opt("split", 2)]:
        for ss in grp(20 - NS, 20): units.append((ss, part))
    for ss in grp(20 - NS, 20): units.append((ss, list(range(8))))
    order = []; mf = []; firstuse = []
    for ss, bl in units:
        for b in bl:
            F0 = len(order)
            for sl in ss: order.append((sl, b)); firstuse.append(4 * F0)
            for qb in (range(4) if (not opt("psn", 1) or (F0 // len(ss)) % 2 == 0) else range(3, -1, -1)):
                idx = list(range(len(ss)))
                if qb & 1: idx.reverse()
                for i in idx:
                    sl = ss[i]
                    c = "0" if (0 in ss and i == idx[0]) else accreg(b, qb)
                    mf.append("%s %s, %s, %s, %s" % (MF, accreg(b, qb), a(A_W + 4 * ((F0 + i) % 8), 4), a(A_X + ((sl % XD) * 4 + qb) * 4, 4), c))
    NF = len(order)
    NP = len(mf)
    for sl in range(4):
        for kb in range(2):
            for qb in range(4):
                d = v(Sreg(0, qb, kb), 4)
                mf.append("%s %s, %s, %s, %s" % (MF, d, a(A_KF + (kb * 4 + sl) * 4, 4), v(V_Q + (sl * 4 + qb) * 4, 4), d if sl else "0"))
    G = Gaps(mf)
    ustart = []; n = 0
    for ss, bl in units: ustart.append(n); n += len(bl) * len(ss)
    lastF = {}; lastblk = {}; firstF = {}
    for u, (ss, bl) in enumerate(units):
        for k, sl in enumerate(ss):
            lastF[sl] = ustart[u] + len(bl) * len(ss) - 1
            firstF.setdefault(sl, ustart[u] + k * len(bl))
        for i, b in enumerate(bl): lastblk[b] = ustart[u] + (i + 1) * len(ss) - 1
    G1 = lambda sl: 4 * firstF[sl]
    DA = opt("pda", 6)
    rd = lambda F, j: w_read(A_W + 4 * (F % 8), order[F][1], j, wslot(order[F][0]) * 16384)
    pre_reads = [rd(F, j) for F in range(DA) for j in range(2)]
    TRW = opt("trw", 15) if heavy else 14
    bars = {}; cur = 0; seen = set(units[0][0])
    def barrier(u, lo, need):
        bb = G.place("b", "s_barrier", lo)
        G.put(bb, "s", "s_waitcnt WAITVM{%s}" % ",".join(need))
        bars[u] = bb
        return bb + 1
    for F in range(DA, NF):
        lo = 4 * (F - DA)
        if F in ustart:
            u = ustart.index(F)
            need = [k + str(sl) for sl in units[u][0] if sl not in seen for k in "xw"]
            seen |= set(units[u][0])
            if need or units[u][1][0] == 0: cur = barrier(u, max(cur, lo - 1), need or ["none"])
        if (opt("midb", 0) or F - DA - 1 == ustart[-1]) and (F - DA - 1) in ustart and len(units[ustart.index(F - DA - 1)][0]) == 2 and units[ustart.index(F - DA - 1)][1][0] == 0:
            cur = barrier(1000 + F, max(cur, lo - 1), ["none"])
        for j in range(2): cur = G.place("d", rd(F, j), max(cur, lo + 2 * j), firstuse[F] - 6) + 1
    NU = len(units)
    cur = barrier(NU, cur + 1, ["K0", "K1"])
    kord = [(kb, sl) for sl in range(4) for kb in range(2)]
    for kb, sl in kord: cur = G.place("d", k_read(kb, sl, 0), cur) + 1
    barrier(NU + 1, max(cur + 5, NP), ["none"])
    kpost = []
    for i, (kb, sl) in enumerate(kord):
        lo = NP + 4 * i + 3
        try: cur = G.place("d", k_read(kb, sl, 8192), max(cur, lo)) + 1
        except RuntimeError: kpost.append(k_read(kb, sl, 8192))
    freeg = lambda sl: min(x for x in bars.values() if x >= 4 * lastF[sl])
    def wseq(sl):
        return [("s", "s_add_u32 m0, %s, %d" % (s(S_M0W), wslot(sl) * 16384))] + [("m", x) for x in w_dma(heavy, "w%d" % sl)] + \
               [("s", "s_add_u32 %s, %s, %d\ns_add_u32 %s, %s, %d" % (s(S_WQOFF), s(S_WQOFF), 32 * 8192, s(S_WGOFF), s(S_WGOFF), 32 * 3456))]
    def xseq(sl): return [("m", x_load(sl, qb)) for qb in range(4)] + [("s", "s_add_u32 %s, %s, 4096" % (s(S_XOFF), s(S_XOFF)))]
    def kvseq(which, i):
        return [("s", "s_add_u32 m0, %s, %d\ns_mov_b32 %s, %d" % (s(S_M0K), (L_K if which == "K" else L_V) + i * 8192, s(S_KVOFF), (i + (VSH if which == "V" else 0)) * 8192))] + \
               [("m", kv_dma(which, k, "%s%d" % (which, i))) for k in range(2)]
    NX0 = opt("nx0", 2)
    e("s_mov_b32 %s, 0" % s(S_XOFF))
    q = []
    for sl in range(20):
        for kind in "wx":
            if kind == "w" and sl < NI: continue
            seq = wseq(sl) if kind == "w" else xseq(sl)
            if sl < NX0:
                for k, x in seq: e(x + ("\ns_nop 0" if " m0," in x else ""))
            else:
                lo = 0 if sl < RW else (freeg(sl - RW) if kind == "w" else 4 * lastF[sl - XD] + 3)
                q.append((lo, seq))
    late = {12: [("K", 0), ("K", 1)], 13: [("K", 2), ("K", 3)], 14: [("K", 4), ("K", 5)], 15: [("K", 6), ("K", 7)],
            16: [("V", 0), ("V", 1)], 17: [("V", 2), ("V", 3)], 18: [("V", 4)]}
    side = []
    for sl in range(12, 19):
        for which, i in late[sl]: side.append((freeg(sl), kvseq(which, i)))
    WT = opt("wt", 6)
    if WT:
        for k, sl in enumerate([int(x) for x in opt("wts", "0.4.8").split(".")], 1):
            seq = [("s", "s_mov_b32 %s, %d" % (s(S_TMP), k * WT * 32 * 8192)), ("m", "buffer_load_dword %s, %s, %s, %s offen" % (v(V_DUMP), v(V_TC + 1), s(S_WQ, 4), s(S_TMP)))]
            if heavy:
                seq += [("s", "s_mov_b32 %s, %d" % (s(S_TMP), k * WT * 32 * 3456)),
                        ("m", "buffer_load_dword %s, %s, %s, %s offen offset:2048" % (v(V_DUMP), v(V_TC), s(S_WG, 4), s(S_TMP))),
                        ("m", "buffer_load_dword %s, %s, %s, %s offen offset:3072" % (v(V_DUMP), v(V_TC), s(S_WU, 4), s(S_TMP)))]
            side.append((G1(sl) + opt("wtg", 30), seq))
    t0 = v(V_TRA + 3)
    if opt("kvt", 12): side.append((G1(opt("kvt", 12)), [("v", "v_min_u32 %s, 15, %s" % (t0, v(L))), ("v", "v_lshlrev_b32 %s, 7, %s" % (t0, t0)),
               ("s", "s_lshl2_add_u32 %s, %s, %s\ns_lshl_b32 %s, %s, 11" % (s(S_TMP), s(S_QT), s(S_WAVE), s(S_TMP), s(S_TMP))),
               ("m", "buffer_load_dword %s, %s, %s, %s offen" % (v(V_DUMP), t0, s(S_K, 4), s(S_TMP))),
               ("s", "s_add_u32 %s, %s, %d" % (s(S_TMP), s(S_TMP), VSH * 8192)),
               ("m", "buffer_load_dword %s, %s, %s, %s offen" % (v(V_DUMP), t0, s(S_V, 4), s(S_TMP)))]))
    side.sort(key=lambda t: t[0])
    MG = opt("pmg", 5) if heavy else opt("lmg", 2)
    g = 0; lastm = -9; vpost = []
    trlast = 0; lastload = 0
    while q or side:
        if side and (not q or side[0][0] <= max(g, q[0][0])): lo, seq = side.pop(0)
        else: lo, seq = q.pop(0)
        g = max(g, lo)
        for k, x in seq:
            if not vpost:
                try:
                    g = G.place(k, x, max(g + 1, lastm + (MG if g > opt("pmg0", 150) or not heavy else 4) if k == "m" else 0))
                    if k == "m": lastm = g
                    if re.search(r";#[xw]\d|;#trs", x) or "v%d," % V_DUMP in x: lastload = g
                    continue
                except RuntimeError: pass
            vpost.append(x + ("\ns_nop 0" if " m0," in x else ""))
    zlim = 4 * lastF[19 - max(NS, 1)] + 4 if opt("zds", 1) else 10 ** 9
    g = 0
    for sl in range(20 - XD, 20):
        lo = 4 * lastF[sl] + 4
        if lo <= zlim: continue
        for i in range(4):
            x = "ds_read_b128 %s, %s" % (a(A_X + 16 * (sl % XD) + 4 * i, 4), v(V_ZA))
            try: g = G.place("d", x, max(g, lo)) + 2
            except RuntimeError: kpost.append(x)
    auto_lgkm(G, eager=opt("peag", 8))
    g = lastload + 2
    for x in gen_tail_setup():
        g = G.place("v" if x.startswith("v_") else "s", x, g + 1)
    setup_end = g
    g = max(g, trlast)
    for x in gen_tail_setup2(): g = G.place("v" if x.startswith("v_") else "s", x, g + 1)
    HZ = 8
    post = []
    def lay(items):
        g = 0; out = []
        for lo, k, x, hi in items:
            if not out:
                try:
                    g = G.place(k, x, max(g + (0 if k == "v" else 1), lo), hi, force=(hi is not None)); continue
                except RuntimeError: pass
            assert hi is None
            out.append(x)
        return out
    its = []
    for sl in range(4):
        for qb in range(4):
            d0 = V_Q + (sl * 4 + qb) * 4
            lo = 4 * lastblk[2 * sl + 1] + 3 + HZ
            hi = NP - 3 if sl < 2 else NP + 8 * sl - 3
            for b in range(2):
                g0 = qacc(2 * sl + b, qb)
                for h in range(2): its.append((min(lo, hi), "v", "v_cvt_pk_bf16_f32 %s, %s, %s" % (v(d0 + 2 * b + h), v(g0 + 2 * h), v(g0 + 2 * h + 1)), hi))
    assert not lay(its)
    its = []
    if heavy:
        U = T
        for fb in range(4):
            for qb in range(4):
                g0 = V_ACCG + (fb * 4 + qb) * 4
                lo = 4 * lastblk[8 + fb] + 3 + HZ
                for r in range(4): its.append((lo, "v", "v_accvgpr_read_b32 %s, %s" % (v(U + r), a(A_ACCU + (fb * 4 + qb) * 4 + r)), None))
                for r in range(4): its.append((lo, "v", "v_max_f32 %s, 0, %s" % (v(g0 + r), v(g0 + r)), None))
                for r in range(4): its.append((lo, "v", "v_mul_f32 %s, %s, %s" % (v(g0 + r), v(g0 + r), v(U + r)), None))
                d0 = V_ACCG + ((fb & ~1) * 4 + qb) * 4 + 2 * (fb & 1)
                for h in range(2): its.append((lo, "v", "v_cvt_pk_bf16_f32 %s, %s, %s" % (v(d0 + h), v(g0 + 2 * h), v(g0 + 2 * h + 1)), None))
                if fb & 1:
                    if qb == 0: its.append((lo, "s", "s_lshl_b32 %s, %s, 13\ns_add_u32 %s, %s, %d" % (s(S_TMP + 6), s(S_FS), s(S_TMP + 6), s(S_TMP + 6), (128 + (fb >> 1)) * 4096), None))
                    its.append((lo, "m", "buffer_store_dwordx4 %s, %s, %s, %s offen offset:%d%s" % (v(d0 - 2, 4), v(V_L16), s(S_AF, 4), s(S_TMP + 6), 1024 * qb, STFL), None))
    post += lay(its)
    its = [(300, "v", x, None) for x in ones_ops(V_TRA + 2)]
    zs = []
    for k in range(XD):
        sl = max(x for x in range(20) if x % XD == k)
        zs.append((4 * lastF[sl] + 4, range(A_X + 16 * k, A_X + 16 * k + 16)))
    for lo, rr in sorted(zs, key=lambda t: t[0]):
        if lo > zlim: break
        for r in rr: its.append((lo, "v", "v_accvgpr_write_b32 %s, 0" % a(r), None))
    post += lay(its)
    if VERBOSE: print("proj", tag, G.pattern(), "| post", len(post), len(vpost), len(kpost))
    e.ext(pre_reads)
    e("s_waitcnt WAITVM{x%d} lgkmcnt(0)" % max(units[0][0]))
    stamp(e, 3)
    nm = 0
    for x in G.lines():
        if x.startswith("v_mfma"):
            if STAMPS and nm % (NP // 5) == 0 and 0 < nm < NP: stamp(e, 18 + nm // (NP // 5))
            if nm == NP: stamp(e, 4)
            nm += 1
        e(x)
    for x in kpost + vpost + post: e(x)
    e("s_mov_b32 %s, %d" % (s(S_KVOFF), 8 * 8192))
    e("s_nop 1")
    for r in range(8): e("v_mov_b32 %s, 0" % v(V_L + r))
    for qb in range(4): e("v_mov_b32 %s, 0xff800000" % v(V_NEGM + 4 * qb))
    e("s_waitcnt WAITVM{K2,K3}")
    e("s_waitcnt WAITVM{V0,V1,K4,K5}")
    r = resolve_vm(e.L)
    NV01.append(int(re.search(r"vmcnt\((\d+)\)", r.pop()).group(1)))
    e0.ext(r)

def kv_preload(e):
    e("s_mov_b32 %s, 0" % s(S_KVOFF))
    for i in range(9):
        if i < 8:
            e("s_add_u32 m0, %s, %d\ns_nop 0" % (s(S_M0K), L_K + i * 8192))
            e(kv_dma("K", 0)); e(kv_dma("K", 1))
        if i >= VSH:
            e("s_add_u32 m0, %s, %d\ns_nop 0" % (s(S_M0K), L_V + (i - VSH) * 8192))
            e(kv_dma("V", 0)); e(kv_dma("V", 1))
        if i < 8: e("s_add_u32 %s, %s, 8192" % (s(S_KVOFF), s(S_KVOFF)))
    e("s_waitcnt vmcnt(0)")

def Sreg(buf, qb, kb): return V_S + buf * 32 + qb * 8 + kb * 4
def Preg(buf, qb): return V_P + buf * 16 + qb * 4

def qk_mfmas(buf, czero=False, full=False):
    out = []
    if opt("qko", "snake") == "qks" and not czero and full:
        for qb in range(4):
            for i in range(2):
                kb = i if qb % 2 == 0 else 1 - i
                d = v(Sreg(buf, qb, kb), 4)
                for n, sl in enumerate(range(4) if i == 0 else range(3, -1, -1)):
                    out.append("%s %s, %s, %s, %s" % (MF, d, a(A_KF + (kb * 4 + sl) * 4, 4), v(V_Q + (sl * 4 + qb) * 4, 4), d if n else v(V_NEGM + 4 * qb, 4)))
        return out
    order = {"qks": [(kb, qb, sl) for kb in range(2) for qb in range(4) for sl in range(4)], "kqs": [(kb, qb, sl) for kb in range(2) for qb in range(4) for sl in range(4)],
             "ksq": [(kb, qb, sl) for kb in range(2) for sl in range(4) for qb in range(4)],
             "snake": [(kb, qb, sl) for kb in range(2) for qb in range(4) for sl in range(4)]}[opt("qko", "snake")]
    for kb, qb, sl0 in order:
                sl = sl0
                d = v(Sreg(buf, qb, kb), 4)
                if opt("qko", "snake") == "snake":
                    first = sl0 == 0
                    sl = sl0 if qb % 2 == 0 else 3 - sl0
                    c = ("0" if czero else v(V_NEGM + 4 * qb, 4)) if first else d
                    out.append("%s %s, %s, %s, %s" % (MF, d, a(A_KF + (kb * 4 + sl) * 4, 4), v(V_Q + (sl * 4 + qb) * 4, 4), c))
                    continue
                c = d if sl else ("0" if czero else v(V_NEGM + 4 * qb, 4))
                out.append("%s %s, %s, %s, %s" % (MF, d, a(A_KF + (kb * 4 + sl) * 4, 4), v(V_Q + (sl * 4 + qb) * 4, 4), c))
    return out

def pv_mfmas(buf, tailmode=False):
    out = []
    for h in range(2):
        out.append("v_smfmac_f32_16x16x64_bf16 %s, %s, %s, %s" % (v(V_L + 4 * h, 4), v(V_ONE, 4), v(Preg(buf, 2 * h), 8), v(V_SIDX)))
    pvo = opt("pvo", "qd2s")
    if pvo == "fake" and not tailmode:
        for h in range(4):
            for i in range(4):
                qb = i if h % 2 == 0 else 3 - i
                o = a(A_O + ((2 * h + buf) * 4 + qb) * 4, 4)
                for d in ((0, 1) if i % 2 == 0 else (1, 0)):
                    out.append("%s %s, %s, %s, %s" % (MF, o, a(A_VF + (2 * h + d) * 4, 4), v(Preg(buf, (qb + 2 * d) % 4), 4), o))
        return out
    if pvo == "fake": pvo = "dq"
    order = {"dq": [(db, qb) for db in range(8) for qb in range(4)],
             "snake": [(db, qb if db % 2 == 0 else 3 - qb) for db in range(8) for qb in range(4)],
             "qd2s": [(2 * h + (d if (i & 1) == 0 else 1 - d), i if h % 2 == 0 else 3 - i) for h in range(4) for i in range(4) for d in range(2)],
             "qd2": [(2 * h + d, qb) for h in range(4) for qb in range(4) for d in range(2)],
             "qd4": [(4 * h + d, qb) for h in range(2) for qb in range(4) for d in range(4)]}[pvo if not tailmode else "dq"]
    for db, qb in order:
            o = a(A_O + (db * 4 + qb) * 4, 4)
            out.append("%s %s, %s, %s, %s" % (MF, o, a(A_VF + db * 4, 4), v(Preg(buf, qb), 4), o))
    return out

def k_read(kb, sl, off, t=0): return "ds_read_b128 %s, %s offset:%d" % (a((A_KF, A_KF1)[t] + (kb * 4 + sl) * 4, 4), v(V_KA + sl), off + kb * 4096)
def v_read(db, j, t): return "ds_read_b64_tr_b16 %s, %s offset:%d" % (a(A_VF + 32 * t + db * 4 + 2 * j, 2), v(V_VA + db), 8192 * t + j * 4096)

def softmax_ops(buf):
    ex = []; cv = []
    for qb in range(4):
        for kb in range(2):
            for r in range(4):
                x = v(Sreg(buf, qb, kb) + r)
                ex.append("v_exp_f32 %s, %s" % (x, x))
            for h in range(2):
                b = Sreg(buf, qb, kb) + 2 * h
                cv.append("v_cvt_pk_bf16_f32 %s, %s, %s" % (v(Preg(buf, qb) + kb * 2 + h), v(b), v(b + 1)))
    return ex, cv

def gen_attention(e):
    T = V_T
    e("ATT_START:")
    stamp(e, 5)
    e("s_barrier")
    for qb in range(4):
        b = Sreg(0, qb, 0)
        e("v_max3_f32 %s, %s, %s, %s" % (v(T + 2 * qb), v(b), v(b + 1), v(b + 2)))
    for qb in range(4):
        b = Sreg(0, qb, 0)
        e("v_max3_f32 %s, %s, %s, %s" % (v(T + 2 * qb), v(T + 2 * qb), v(b + 3), v(V_NEGM + 4 * qb)))
    for n, sw in enumerate(("v_permlane32_swap_b32", "v_permlane16_swap_b32")):
        for qb in range(4): e("v_mov_b32 %s, %s" % (v(T + 2 * qb + 1), v(T + 2 * qb)))
        e("s_nop 0")
        for qb in range(4): e("%s %s, %s" % (sw, v(T + 2 * qb), v(T + 2 * qb + 1)))
        for qb in range(4):
            if n == 0: e("v_max_f32 %s, %s, %s" % (v(T + 2 * qb), v(T + 2 * qb), v(T + 2 * qb + 1)))
            else:
                for r in range(4): e("v_min_f32 %s, -%s, -%s" % (v(V_NEGM + 4 * qb + r), v(T + 2 * qb), v(T + 2 * qb + 1)))
    for qb in range(4):
        for r in range(0, 8, 2): e("v_pk_add_f32 %s, %s, %s" % (v(Sreg(0, qb, 0) + r, 2), v(Sreg(0, qb, 0) + r, 2), v(V_NEGM + 4 * qb, 2)))
    e("s_waitcnt lgkmcnt(0)")

    exE, cvE = softmax_ops(0); exO, cvO = softmax_ops(1)
    smf = lambda t, h: "v_smfmac_f32_16x16x64_bf16 %s, %s, %s, %s" % (v(V_L + 4 * h, 4), v(V_ONE, 4), v(Preg(t, 2 * h), 8), v(V_SIDX))
    def pvm(db, qb, t):
        o = a(A_O + (db * 4 + qb) * 4, 4)
        return "%s %s, %s, %s, %s" % (MF, o, a(A_VF + 32 * t + db * 4, 4), v(Preg(t, qb), 4), o)
    G = Gaps(qk_mfmas(1))
    for i in range(8): G.put(1 + 2 * i, "d", k_read(i // 4, i % 4, 24576, 1))
    for i in range(4): G.put(17 + 2 * i, "d", k_read(0, i, 16384))
    for i in range(4): G.put(31, "d", k_read(1, i, 16384))
    for i, x in enumerate(exE): G.put(i, "e", x)
    for i, x in enumerate(cvE[:4]): G.put(24 + 2 * i, "v", x)
    e.ext(G.lines())
    e.ext(exO[:NOE])
    for sl in range(4): e("v_add_u32 %s, 32768, %s" % (v(V_KA + sl), v(V_KA + sl)))
    e("s_mov_b32 %s, 16384" % s(S_TOG))
    e("s_mov_b32 %s, %d\ns_mov_b32 %s, %d" % (s(S_TMP + 3), 2 * 8192, s(S_TMP + 4), 6 * 8192 + L_V))
    e("s_waitcnt vmcnt(NVWAIT) lgkmcnt(0)\ns_barrier")
    for which, m0, inc in (("K", L_K, 1), ("K", L_K + 8192, 0), ("V", L_V + 5 * 8192, 1)):
        e("s_add_u32 m0, %s, %d\ns_nop 0" % (s(S_M0K), m0))
        e(kv_dma(which, 0)); e(kv_dma(which, 1))
        if inc: e("s_add_u32 %s, %s, 8192" % (s(S_KVOFF), s(S_KVOFF)))
    e("s_mov_b32 %s, %d\ns_cmp_eq_u32 %s, 0\ns_cselect_b32 %s, %d, %s" % (s(S_EVT), EV(27), s(S_WAVE), s(S_EVT), EVT0, s(S_EVT)))
    stamp(e, 6)
    e("s_cmp_lg_u32 %s, 0\ns_cbranch_scc1 NOSIG2" % s(S_RETRY))
    e("s_cmp_ge_u32 %s, 27\ns_cbranch_scc1 LT_INIT" % s(S_FS))
    e("NOSIG2:")
    mf = []
    for t in range(2):
        for qb in range(4):
            for i in range(2):
                kb = i if qb % 2 == 0 else 1 - i
                d = v(Sreg(t, qb, kb), 4)
                for n, sl in enumerate(range(4) if i == 0 else range(3, -1, -1)):
                    mf.append("%s %s, %s, %s, %s" % (MF, d, a((A_KF, A_KF1)[t] + (kb * 4 + sl) * 4, 4), v(V_Q + (sl * 4 + qb) * 4, 4), d if n else v(V_NEGM + 4 * qb, 4)))
    mf += [smf(0, 0), smf(1, 0), smf(1, 1), smf(0, 1)]
    H2 = 68
    for db in range(8):
        for i in range(4):
            qb = 3 - i if db % 2 == 0 else i
            for t in ((0, 1) if i % 2 == 0 else (1, 0)): mf.append(pvm(db, qb, t))
    G = Gaps(mf); end = G.n() - 1
    G.put(1, "b", "s_barrier"); G.put(0, "s", "s_waitcnt vmcnt(16) lgkmcnt(0)")
    NV1 = opt("nv1", 22)
    vrd = [(db, j, t) for db in range(8) for t in range(2) for j in range(2)]
    vg = {}
    eg = {}
    for i in range(NOE, 32): eg[i] = G.put(2 * (i - NOE), "e", exO[i])
    vvg = [int(x) for x in opt("vvg", "3.7.11.15.55").split(".")]
    dgs = [g for g in range(3, 64, 2) if g not in vvg]
    for i in range(NV1):
        db, j, t = vrd[i]; vg[db] = G.put(dgs[i], "d", v_read(db, j, t))
    rd2 = [("v",) + x for x in vrd[NV1:]] + [("k", kb, sl, 0) for kb in range(2) for sl in range(4)] + [("k", kb, sl, 1) for kb in range(2) for sl in range(4)]
    g = 64; kg = {}
    for i, x in enumerate(rd2):
        if x[0] == "v": g = G.place("d", v_read(*x[1:]), g, H2 + 8 * x[1] - 6); vg[x[1]] = g
        else: g = G.place("d", k_read(x[1], x[2], 8192 * x[3], x[3]), g); kg[x[2]] = g
        g += 1 if i < 4 else 2
    def adv(r, base):
        return ["s_add_u32 %s, %s, 8192" % (s(r), s(r)), "s_and_b32 %s, %s, 0xffff" % (s(r), s(r))] + (["s_or_b32 %s, %s, %d" % (s(r), s(r), base)] if base else [])
    last = 0
    for g in (opt("dg1", 54), opt("dg2", 76)):
        for which, r in (("K", S_TMP + 3), ("V", S_TMP + 4)):
            g = G.place("s", "s_add_u32 m0, %s, %s" % (s(S_M0K), s(r)), g)
            for i in range(2): g = G.place("m", kv_dma(which, i), g + opt("dsp", 2))
            g += 1
        for x in ["s_add_u32 %s, %s, 8192" % (s(S_KVOFF), s(S_KVOFF))] + adv(S_TMP + 3, 0) + adv(S_TMP + 4, L_V): g = G.place("s", x, g) + 1
        last = g
    items = [(0, 8 * (i // 4) - 1, cvE[i]) for i in range(4, 16)] + [(eg.get(2 * i + 1, -1) + 1, 32 + 8 * (i // 4) - 1, cvO[i]) for i in range(16)]
    for lo, hi, x in sorted(items, key=lambda t: t[1]): G.place("v", x, lo, hi)
    for i in range(4): G.place("v", cvE[i], end - 5 + opt("c0g", 2))
    g = 56
    xg = 0
    for db in range(8):
        y = max(vg[db], 64)
        while not (G.ds[y] and G.fits(y, "v")): y += 1
        xg = max(xg, G.put(y, "v", "v_xor_b32 %s, %s, %s" % (v(V_VA + db), s(S_TOG), v(V_VA + db))))
    for sl in range(4): xg = max(xg, G.place("v", "v_xor_b32 %s, %s, %s" % (v(V_KA + sl), s(S_TOG), v(V_KA + sl)), kg[sl]))
    for i, x in enumerate(exE + exO[:NOE]): g = G.place("e", x, g, end - 6 if i < 8 else end)
    g = G.place("s", "s_xor_b32 %s, %s, 32768" % (s(S_TOG), s(S_TOG)), xg + 1)
    G.place("s", "s_cmp_lt_u32 %s, %s" % (s(S_KVOFF), s(S_EVT)), max(g, last) + 1)
    auto_lgkm(G, [], loop=True, eager=opt("leag", 8))
    if VERBOSE: print("loop", G.pattern())
    e(".p2align 6\nATT_LOOP:")
    for x in G.lines(): e(x)
    e("s_cbranch_scc1 ATT_LOOP")
    e("s_cmp_lt_u32 %s, %d\ns_cbranch_scc1 ATT_EVT" % (s(S_KVOFF), EVTE))
    e("TAILC0:")
    global LIGHT_LOOP
    LIGHT_LOOP = light_loop(G)
    stamp(e, 7)
    e("s_waitcnt vmcnt(16) lgkmcnt(0)\ns_barrier")
    e("s_cmp_lg_u32 %s, 0\ns_cbranch_scc1 NOPOLLW" % s(S_WAVE))
    e(poll_load(True))
    e("NOPOLLW:")
    vr = [v_read(db, j, 0) for db in range(8) for j in range(2)]
    e.ext(vr)
    e.ext(cvE[4:])
    e("s_nop 0")
    h = E()
    sn2 = lambda q0: [(db, q0 + (i if db % 2 == 0 else 1 - i)) for db in range(8) for i in range(2)]
    mf = [smf(0, 0)] + [pvm(db, qb, 0) for db, qb in sn2(0)] + [smf(0, 1), smf(1, 0)] + [pvm(db, qb, 1) for db, qb in sn2(0)]
    P3 = len(mf)
    mf += [smf(1, 1)]
    for n, (db, qb) in enumerate(sn2(2)):
        for t in ((0, 1) if n % 2 == 0 else (1, 0)): mf.append(pvm(db, qb, t))
    G = Gaps(mf)
    for i in range(16): G.put(i, "d", v_read(i // 2, i % 2, 1))
    for i in range(NOE, 16): G.put(i - NOE + 1, "e", exO[i])
    for i in range(8): G.put(max(2 * i + 3 - NOE, 0) + 1, "v", cvO[i])
    for i in range(16, 32): G.put(i, "e", exO[i])
    for i in range(8, 16): G.put(min(2 * i + 2, P3 - 3), "v", cvO[i])
    pq = [x for sg in range(NPRE_X) for x in t8_a(sg)]
    assert NPRE_X <= 3
    G.put(P3 - 8, "s", "s_waitcnt lgkmcnt(0)\ns_barrier")
    pre, pend = auto_lgkm(G, [asmcheck.I(x, 0, 0).W for x in vr])
    g = 1
    while pq:
        k, x = pq.pop(0)
        if k == "s": G.sc[g].append(x); g += 1
        else: G.va[g].append(x); g += opt("x63", 2) if len(pq) % 3 else 1
    assert g < P3 + 8, g
    pro, grp = o_ops()
    NEG = opt("neg", 5)
    fill = pro[0] + [x for i in range(NEG) for x in grp(i, False)]
    g0 = max(P3 + 1, g); n = G.n() - g0
    for i, x in enumerate(fill): G.va[g0 + (i * n) // len(fill)].append(x)
    if pre is not None: h("s_waitcnt lgkmcnt(%d)" % pre)
    for x in G.lines(): h(x)
    return h.L, NEG

def o_ops():
    T = V_T; t = S_TMP
    Z = 248; C = 252; W = 128
    pro = []
    for hh in range(2):
        e = E()
        for qb in (2 * hh, 2 * hh + 1): e("v_add_f32 %s, %s, %s" % (v(V_L + 2 * qb), v(V_L + 2 * qb), v(V_L + 2 * qb + 1)))
        for qb in (2 * hh, 2 * hh + 1): e("v_rcp_f32 %s, %s" % (v(T + 2 * qb), v(V_L + 2 * qb)))
        if hh == 0:
            for r in range(4): e("v_mov_b32 %s, 0" % v(Z + r))
            for sl in range(4): e("s_lshl_b32 %s, %s, 14" % (s(44), s(S_HEAD)) if sl == 0 else "s_add_u32 %s, %s, %d" % (s(44 + sl), s(44), 4096 * sl))
        else:
            e("v_max3_f32 %s, %s, %s, %s" % (v(T + 8), v(V_L), v(V_L + 2), v(V_L + 4)))
            e("v_max_f32 %s, %s, %s" % (v(T + 8), v(T + 8), v(V_L + 6)))
            e("v_mul_f32 %s, %s, %s" % (v(T + 8), f2u(2.0 ** 64), v(T + 8)))
            e("v_mul_f32 %s, 0, %s" % (v(T + 8), v(T + 8)))
            for qb in range(4): e("v_fma_f32 %s, %s, 0, %s" % (v(T + 8), v(V_L + 2 * qb), v(T + 8)))
        for qb in (2 * hh, 2 * hh + 1): e("v_mov_b32 %s, %s" % (v(T + 2 * qb + 1), v(T + 2 * qb)))
        pro.append(e.L)
    def grp(i, pk):
        e = E()
        sl, qb = (i % 8) // 2, 2 * (i // 8) + i % 2
        d0 = 136 + 4 * (i % 4)
        for b in range(2):
            for r in range(4): e("v_accvgpr_read_b32 %s, %s" % (v(W + 4 * b + r), a(A_O + ((2 * sl + b) * 4 + qb) * 4 + r)))
        if pk:
            for h in range(4): e("v_pk_mul_f32 %s, %s, %s" % (v(W + 2 * h, 2), v(W + 2 * h, 2), v(T + 2 * qb, 2)))
        else:
            for r in range(8): e("v_mul_f32 %s, %s, %s" % (v(W + r), v(W + r), v(T + 2 * qb)))
        for h in range(4): e("v_cvt_pk_bf16_f32 %s, %s, %s" % (v(d0 + h), v(W + 2 * h), v(W + 2 * h + 1)))
        e("buffer_store_dwordx4 %s, %s, %s, %s offen offset:%d%s ;#ost" % (v(d0, 4), v(V_L16), s(S_AF, 4), s(44 + sl), 1024 * qb, STFL))
        e.L.append("s_nop 0\n%s %s, %s, %s, %s" % (MF, v(C, 4), v(Z, 4), v(d0, 4), "0" if i == 0 else v(C, 4)))
        return e.L
    return pro, grp

LT_SS, LT_SD = 44, 48
LT_SO, LT_DO, LT_R = 91, 96, 97
LT_VO, LT_VB, LT_VR, LT_AD = 40, 42, 44, 48
L_TRB = 131072
def light_loop(G):
    import copy
    G = copy.deepcopy(G)
    n = G.n()
    b = [g for g in range(n) if any("s_barrier" in x for x in G.va[g])][0]
    for bb in (b - 1, b): G.sc[bb] = [x.replace("vmcnt(%d)" % (16 + 2 * PWARM), "vmcnt(%d)" % (24 + 2 * PWARM)) for x in G.sc[bb]]
    lastm = max(g for g in range(n) if any(x.startswith("buffer") for x in G.va[g]))
    cmpg = [g for g in range(n) if any(x.startswith("s_cmp_lt_u32 %s" % s(S_KVOFF)) for x in G.sc[g])][-1]
    def lay(seq, g, hi, step=1):
        for k, x in seq:
            if k == "s":
                while not G.fits(g, "s"): g += 1
                G.put(g, "s", x)
            else:
                win = opt("ltw", 4) if k != "m" else opt("ltm", 4)
                g = min(range(g, min(g + win, hi) + 1), key=lambda y: (G.used[y] + (3 if (k == "d" and G.ds[y] and opt("ltd", 0)) else 0), y))
                (G.ds if k == "d" else G.va)[g].append(x); G.used[g] += 1 if k != "m" else 2
            g += step
            assert g <= hi + 1, (x, g, hi)
        return g
    g = lay([("d", "ds_read_b64_tr_b16 %s, %s offset:%d" % (v(LT_AD + 4 * f + 2 * j, 2), v(LT_VR + f), 1024 * j)) for f in range(2) for j in range(2)], b + 1, b + 30, 2)
    g1, g2 = opt("lts1", 44), opt("lts2", 50)
    lay(([("s", "s_waitcnt lgkmcnt(2)")] if g1 < 68 else []) + [("m", "buffer_store_dwordx4 %s, %s, %s, %s offen%s" % (v(LT_AD, 4), v(V_L16), s(LT_SD, 4), s(LT_DO), STFL))], g1, cmpg - 1)
    lay([("m", "buffer_store_dwordx4 %s, %s, %s, %s offen offset:1024%s" % (v(LT_AD + 4, 4), v(V_L16), s(LT_SD, 4), s(LT_DO), STFL)),
         ("s", "s_add_u32 %s, %s, %d" % (s(LT_DO), s(LT_DO), 8 * 10240)),
         ("s", "s_sub_u32 %s, %s, %d\ns_cselect_b32 %s, %s, %s" % (s(S_TMP + 1), s(LT_DO), 184 * 10240, s(LT_DO), s(LT_DO), s(S_TMP + 1)))], g2, cmpg - 1)
    g = lastm + 1
    lay([("s", "s_add_u32 m0, %s, %s" % (s(LT_R), s(S_TMP)))] +
        [("m", "buffer_load_dwordx4 %s, %s, %s offen offset:%d lds" % (v(LT_VO + i), s(LT_SS, 4), s(LT_SO), 1024 * i)) for i in range(2)] +
        [("s", "s_add_u32 %s, %s, %d\ns_add_u32 %s, %s, 2048" % (s(LT_SO), s(LT_SO), 8 * 40960, s(LT_R), s(LT_R))),
         ("s", "s_cmp_eq_u32 %s, 6144\ns_cselect_b32 %s, 0, %s" % (s(LT_R), s(LT_R), s(LT_R)))] +
        [("v", "v_add_u32 %s, %s, %s" % (v(LT_VR + f), s(LT_R), v(LT_VB + f))) for f in range(2)], g, cmpg - 1)
    if VERBOSE: print("lightloop", G.pattern())
    return G.lines()

def gen_events(e):
    L = V_LANE; t = S_TMP
    e("LT_INIT:")
    e("s_sub_u32 %s, %s, 27\ns_lshl_b32 %s, %s, 3\ns_add_u32 %s, %s, %s\ns_lshl2_add_u32 %s, %s, %s" % (s(t), s(S_FS), s(t), s(t), s(t), s(t), s(S_QT), s(t), s(t), s(S_WAVE)))
    e("s_mul_i32 %s, %s, 3277\ns_lshr_b32 %s, %s, 16\ns_mul_i32 %s, %s, 20\ns_sub_u32 %s, %s, %s" % (s(t + 1), s(t), s(t + 1), s(t + 1), s(t + 6), s(t + 1), s(t), s(t), s(t + 6)))
    e("s_mul_i32 %s, %s, 40960\ns_lshl_b32 %s, %s, 6\ns_add_u32 %s, %s, %s" % (s(LT_SO), s(t + 1), s(t + 6), s(t), s(LT_SO), s(LT_SO), s(t + 6)))
    e("s_add_u32 %s, %s, 104\ns_mul_i32 %s, %s, 10240" % (s(LT_DO), s(t + 1), s(LT_DO), s(LT_DO)))
    srd(e, LT_SS, ptr(8), 0, 1728 * 1280)
    e("s_mul_i32 %s, %s, 13108\ns_lshr_b32 %s, %s, 16\ns_mul_i32 %s, %s, %d\ns_lshl_b32 %s, %s, 11\ns_add_u32 %s, %s, %s\ns_add_u32 %s, %s, %d" % (
        s(t + 6), s(t), s(t + 6), s(t + 6), s(t + 6), s(t + 6), NSLAB * 10240 - 10240, s(t + 1), s(t), s(t + 6), s(t + 6), s(t + 1), s(t + 6), s(t + 6), WF_OFF))
    srd(e, LT_SD, ptr(11), s(t + 6), (NSLAB - 1) * 10240 + 2048)
    e("s_mul_i32 %s, %s, 6144\ns_add_u32 %s, %s, %d\ns_mov_b32 %s, 0\ns_mov_b32 %s, %d" % (s(t), s(S_WAVE), s(t), s(t), L_TRB, s(LT_R), s(S_EVT), EV(7)))
    e("v_lshrrev_b32 %s, 2, %s\nv_bfe_u32 %s, %s, 4, 1\nv_and_b32 %s, 3, %s" % (v(46), v(L), v(47), v(L), v(48), v(L)))
    e("v_lshlrev_b32 %s, 1, %s\nv_xor_b32 %s, %s, %s\nv_mul_u32_u24 %s, 1280, %s\nv_lshl_add_u32 %s, %s, 4, %s\nv_add_u32 %s, %d, %s" % (
        v(49), v(47), v(49), v(49), v(48), v(LT_VO), v(46), v(LT_VO), v(49), v(LT_VO), v(LT_VO + 1), 16 * 1280 - 1024, v(LT_VO)))
    e("v_lshlrev_b32 %s, 6, %s\nv_lshl_add_u32 %s, %s, 3, %s\nv_lshl_add_u32 %s, %s, 5, %s\nv_add_u32 %s, %s, %s\nv_xor_b32 %s, 32, %s" % (
        v(LT_VB), v(46), v(LT_VB), v(48), v(LT_VB), v(LT_VB), v(47), v(LT_VB), v(LT_VB), s(t), v(LT_VB), v(LT_VB + 1), v(LT_VB)))
    e("v_mov_b32 %s, %s\nv_mov_b32 %s, %s" % (v(LT_VR), v(LT_VB), v(LT_VR + 1), v(LT_VB + 1)))
    e(".p2align 6\nLT_LOOP:")
    for x in LIGHT_LOOP: e(x)
    e("s_cbranch_scc1 LT_LOOP")
    e("s_cmp_lg_u32 %s, %d\ns_cbranch_scc1 LT_E2" % (s(S_KVOFF), EV(7)))
    srd(e, LT_SS, ptr(4), 0, 4096 * 1280)
    e("s_sub_u32 %s, %s, %d\ns_mov_b32 %s, %d\ns_branch LT_LOOP" % (s(LT_SO), s(LT_SO), 56 * 40960, s(S_EVT), EV(13)))
    e("LT_E2:")
    e("s_cmp_lg_u32 %s, %d\ns_cbranch_scc1 LT_E3" % (s(S_KVOFF), EV(13)))
    e("s_mov_b32 %s, %d\ns_cmp_lg_u32 %s, 0\ns_cbranch_scc1 LT_LOOP" % (s(S_EVT), EV(26), s(S_WAVE)))
    set_flag(e, 2)
    e("s_mov_b32 %s, %d\ns_branch LT_LOOP" % (s(S_EVT), EV(23)))
    e("LT_E3:")
    e("s_cmp_lg_u32 %s, %d\ns_cbranch_scc1 LT_END" % (s(S_KVOFF), EV(23)))
    e(poll_load(True))
    e("s_mov_b32 %s, %d\ns_branch LT_LOOP" % (s(S_EVT), EV(26)))
    e("LT_END:")
    e("s_mov_b32 %s, %d\ns_branch ATT_LOOP" % (s(S_EVT), EV(27)))
    def redirect(d, vd, shift, size):
        e("s_sub_u32 %s, %s, %s\ns_add_u32 %s, %s, %s\ns_addc_u32 %s, %s, 0" % (s(t + 6), s(T_BW[0]), s(T_M0W), s(d), s(T_SW), s(t + 6), s(d + 1), s(T_SW + 1)))
        e("s_sub_u32 %s, %s, %d\ns_subb_u32 %s, %s, 0\ns_mov_b32 %s, %d" % (s(d), s(d), shift, s(d + 1), s(d + 1), s(d + 2), size))
        e("v_add_u32 %s, %s, %s\nv_add_u32 %s, %s, %s" % (v(vd), s(S_M0K), v(V_L16), v(vd + 1), s(S_M0K), v(V_L16)))
    e("ATT_EVT:")
    e("s_cmp_lg_u32 %s, %d\ns_cbranch_scc1 ATT_EVT1" % (s(S_KVOFF), EV(27)))
    redirect(S_K, V_KD, 64 * 8192, 72 * 8192)
    e("s_mov_b32 %s, %d\ns_cmp_lg_u32 %s, 0\ns_cbranch_scc1 ATT_LOOP" % (s(S_EVT), EV(29) if NWP == 4 else EVTE, s(S_WAVE)))
    if NWP < 4: e("s_cmp_ge_u32 %s, 27\ns_cselect_b32 %s, %d, %s" % (s(S_FS), s(S_EVT), EV(29), s(S_EVT)))
    e("s_waitcnt vmcnt(16)")
    poll_spin(e, True, None, 2, "EARLY")
    e("s_branch ATT_LOOP")
    e("ATT_EVT1:")
    e("s_cmp_lg_u32 %s, %d\ns_cbranch_scc1 ATT_EVT2" % (s(S_KVOFF), EV(29)))
    if NWP == 4: redirect(S_V, V_VD, 68 * 8192 - 65536, 68 * 8192 + NWP * 20480 - 65536)
    e("s_mov_b32 %s, %d\ns_cmp_lg_u32 %s, 0\ns_cbranch_scc1 ATT_LOOP" % (s(S_EVT), EVTE, s(S_WAVE)))
    e("s_cmp_lt_u32 %s, 27\ns_cbranch_scc1 ATT_LOOP" % s(S_FS))
    set_flag(e, 3)
    e("s_branch ATT_LOOP")
    e("ATT_EVT2:")
    e("s_cmp_lg_u32 %s, %d\ns_cbranch_scc1 ATT_EVT3" % (s(S_KVOFF), EV(3)))
    set_flag(e, 3)
    e("s_mov_b32 %s, %d\ns_branch ATT_LOOP" % (s(S_EVT), EV(25)))
    e("ATT_EVT3:")
    if opt("ctt", 0):
        e("s_getpc_b64 %s\nCODE2:\ns_sub_u32 %s, %s, CODE2-TAILC0\ns_subb_u32 %s, %s, 0" % (s(t + 6, 2), s(t + 6), s(t + 6), s(t + 7), s(t + 7)))
        e("s_lshr_b32 %s, s2, 3\ns_lshl_b32 %s, %s, 10" % (s(t + 1), s(t + 1), s(t + 1)))
        e("v_min_u32 %s, 7, %s\nv_lshlrev_b32 %s, 7, %s\nv_add_u32 %s, %s, %s\nv_min_u32 %s, K_END-TAILC0, %s" % (v(V_PL), v(L), v(V_PL), v(V_PL), v(V_PL), s(t + 1), v(V_PL), v(V_PL), v(V_PL)))
        e("global_load_dword %s, %s, %s" % (v(V_DUMP), v(V_PL), s(t + 6, 2)))
    e(poll_load(True))
    e("s_mov_b32 %s, %d\ns_branch ATT_LOOP" % (s(S_EVT), EV(27)))
assert all((g * 3277) >> 16 == g // 20 for g in range(160)) and all((c * 13108) >> 16 == c // 5 for c in range(40))

K_SX, K_SO = S_WU, S_X
T_SA, T_SW, T_XS = S_T, S_WF, S_WQ
T_XO = S_WG
T_TAG = S_WG + 3
T_M0W, T_OA, T_OW = 88, 89, 90
T_BA, T_BW = (S_XOFF, S_WQOFF), (S_WGOFF, S_M0W)
K_FLG = 95
KV_XO = 63; KV_X = 8
TV_WR, TV_L4K, TV_TAG, TV_OW, TV_OR = 60, 61, 62, 3, 4
XPB = 12288
REUSE = opt("reuse", 1)
COAL = opt("coal", 1)
NSD, NSG = 7, 23
RW8, RA8, RF8 = 6, 5, 10
L_OWN = [122880, 0]

def join_scalar(lines):
    out = []
    for x in lines:
        if x.startswith(("s_addc", "s_cselect")): out[-1] += "\n" + x
        else: out.append(x)
    return out

def gen_tail_setup():
    e = E()
    L = V_LANE; t = S_TMP
    R, Cc, KQ = t + 3, t + 4, t + 5
    e("s_bfe_u32 %s, s2, 0x10002\ns_lshl_b32 %s, %s, 3\ns_lshr_b32 %s, s2, 5\ns_add_u32 %s, %s, %s" % (s(R), s(R), s(R), s(t), s(R), s(R), s(t)))
    e("s_bfe_u32 %s, s2, 0x20003\ns_and_b32 %s, s2, 3" % (s(Cc), s(KQ)))
    e("s_lshr_b32 %s, %s, 1\ns_lshl1_add_u32 %s, %s, %s\ns_lshl2_add_u32 %s, %s, %s\ns_mul_i32 %s, %s, %d" % (s(t), s(KQ), s(t), s(R), s(t), s(t), s(t), s(S_WAVE), s(t), s(t), 16 * 1280))
    e("s_and_b32 %s, %s, 1\ns_lshl1_add_u32 %s, %s, %s\ns_mul_i32 %s, %s, 160\ns_add_u32 %s, %s, %s" % (s(t + 1), s(KQ), s(t + 1), s(Cc), s(t + 1), s(t + 1), s(t + 1), s(t), s(t), s(t + 1)))
    srd(e, K_SX, ptr(0), s(t), 15 * 1280 + 160)
    srd(e, K_SO, ptr(9), s(t), 15 * 1280 + 160)
    e("v_and_b32 %s, 15, %s\nv_mul_u32_u24 %s, 1280, %s\nv_lshrrev_b32 %s, 4, %s\nv_lshl_add_u32 %s, %s, 3, %s" % (v(KV_XO), v(L), v(KV_XO), v(KV_XO), v(52), v(L), v(KV_XO), v(52), v(KV_XO)))
    e("s_lshr_b32 %s, %s, 1\ns_lshl2_add_u32 %s, %s, %s\ns_lshl_b32 %s, %s, %d" % (s(K_FLG), s(R), s(K_FLG), s(K_FLG), s(KQ), s(K_FLG), s(K_FLG), FSH + 3))
    e("s_mul_i32 %s, %s, 7\ns_add_u32 %s, %s, 64\ns_lshl_b32 %s, %s, 13\ns_mul_i32 %s, %s, 20480" % (s(t), s(KQ), s(t), s(t), s(T_BA[0]), s(t), s(T_BW[0]), s(t)))
    e("s_lshl_b32 %s, %s, 17\ns_mul_i32 %s, %s, %d" % (s(T_BA[1]), s(KQ), s(T_BW[1]), s(KQ), 16 * 20480))
    e("s_lshl2_add_u32 %s, %s, %s\ns_mul_i32 %s, %s, %d\ns_add_u32 %s, %s, %d" % (s(t), s(R), s(Cc), s(t), s(t), 24 * XPB, s(t), s(t), XP_OFF))
    srd(e, T_XS, ptr(11), s(t), 24 * XPB)
    for ch in range(2):
        d = T_XO + ch
        e("s_and_b32 %s, %s, 2\ns_add_u32 %s, %s, %d\ns_xor_b32 %s, %s, %s\ns_mul_i32 %s, %s, 3\ns_add_u32 %s, %s, %s\ns_sub_u32 %s, %s, 1" % (
            s(t), s(S_WAVE), s(t), s(t), ch, s(t + 1), s(t), s(KQ), s(t), s(t), s(t), s(t), s(t + 1), s(t), s(t)))
        e("s_mul_i32 %s, %s, %d\ns_and_b32 %s, %s, 1\ns_mul_i32 %s, %s, 6144\ns_add_u32 %s, %s, %s" % (s(t), s(t), XPB, s(d), s(S_WAVE), s(d), s(d), s(d), s(d), s(t)))
        e("s_cmp_eq_u32 %s, 0\ns_cselect_b32 %s, 0x1000000, %s" % (s(t + 1), s(d), s(d)))
    if PWARM:
        e("s_lshl2_add_u32 %s, %s, %s\ns_mul_i32 %s, %s, %d\ns_lshl_b32 %s, %s, 14\ns_add_u32 %s, %s, %s" % (s(t), s(S_QT), s(S_WAVE), s(t), s(t), NSLAB * 4096, s(t + 1), s(S_HEAD), s(t), s(t), s(t + 1)))
        e("v_mov_b32 %s, %s" % (v(V_PW), s(t)))
        for i, o in ((1, 6144), (2, 10240)):
            e("s_add_u32 %s, %s, %d\nv_writelane_b32 %s, %s, %d\nv_writelane_b32 %s, %s, %d" % (s(t + 1), s(t), o, v(V_PW), s(t + 1), 2 * i, v(V_PW), s(t + 1), 2 * i + 1))
        e("s_lshl2_add_u32 %s, %s, %s\ns_mul_i32 %s, %s, %d\ns_add_u32 %s, %s, %d" % (s(t + 2), s(R), s(Cc), s(t + 2), s(t + 2), 24 * XPB, s(t + 2), s(t + 2), XP_OFF))
        for m in range(2):
            for ch in range(2):
                i = 3 + 2 * m + ch
                e("s_add_u32 %s, %s, %s\ns_add_u32 %s, %s, %d" % (s(t + 1), s(t + 2), s(T_XO + ch), s(t + 1), s(t + 1), m * 12 * XPB))
                e("s_cmp_eq_u32 %s, 0x1000000\ns_cselect_b32 %s, %s, %s" % (s(T_XO + ch), s(t + 1), s(t), s(t + 1)))
                e("v_writelane_b32 %s, %s, %d\nv_writelane_b32 %s, %s, %d" % (v(V_PW), s(t + 1), 2 * i, v(V_PW), s(t + 1), 2 * i + 1))
        e("v_min_u32 %s, 14, %s" % (v(V_T), v(L)))
        L = V_T
        e("v_and_b32 %s, 1, %s\nv_lshl_add_u32 %s, %s, 7, %s\nv_subrev_u32 %s, 1280, %s" % (v(V_T), v(L), v(V_PW), v(V_T), v(V_PW), v(V_PW), v(V_PW)))
        L = V_LANE
    e("s_mul_i32 %s, %s, %d\ns_mul_i32 %s, %s, 3072\ns_add_u32 %s, %s, %s" % (s(T_XO + 2), s(KQ), 3 * XPB, s(t), s(S_WAVE), s(T_XO + 2), s(T_XO + 2), s(t)))
    e("s_add_u32 %s, %s, 0x10000\ns_and_b32 %s, %s, 0x1fff0000\ns_or_b32 %s, %s, 0x40000000\nv_mov_b32 %s, %s" % (s(t), s(S_EPOCH), s(t), s(t), s(T_TAG), s(t), v(TV_TAG), s(T_TAG)))
    e("s_and_b32 %s, %s, 1\ns_mul_i32 %s, %s, 10240\nv_add_u32 %s, %s, %s" % (s(t), s(S_WAVE), s(t), s(t), v(TV_OW), s(t), v(V_L16)))
    e("s_mul_i32 %s, %s, 5120\nv_add_u32 %s, %s, %s" % (s(t), s(S_WAVE), v(TV_OR), s(t), v(V_L16)))
    e("s_lshr_b32 %s, %s, 1\ns_lshl1_add_u32 %s, %s, %s\ns_mul_i32 %s, %s, %d" % (s(t), s(S_WAVE), s(t), s(R), s(t), s(t), s(t), NSLAB * 4096))
    e("s_and_b32 %s, %s, 1\ns_lshl_b32 %s, %s, 11\ns_add_u32 %s, %s, %s" % (s(t + 1), s(S_WAVE), s(t + 1), s(t + 1), s(t), s(t), s(t + 1)))
    srd(e, T_SA, ptr(11), s(t), NSLAB * 4096 - 2048)
    e("s_mul_i32 %s, %s, 5120" % (s(T_M0W), s(S_WAVE)))
    e("s_mul_i32 %s, %s, %d\ns_add_u32 %s, %s, %s\ns_add_u32 %s, %s, %d" % (s(t), s(Cc), NSLAB * 10240, s(t), s(t), s(T_M0W), s(t), s(t), WF_OFF))
    return join_scalar(e.L)

def gen_tail_setup2():
    e = E()
    srd(e, T_SW, ptr(11), s(S_TMP), 90 * 20480 + 5120)
    e("v_mov_b32 %s, %s\nv_add_u32 %s, 4096, %s" % (v(TV_WR), v(V_L16), v(TV_L4K), v(V_L16)))
    return join_scalar(e.L)

def t8_w(sg):
    base = (sg % RW8) * 20480; tag = "D%d" % sg
    m, i = (0, sg) if sg < NSD else (1, sg - NSD)
    W = lambda vo, off: ("m", "buffer_load_dwordx4 %s, %s, %s offen offset:%d%s lds ;#%s" % (v(vo), s(T_SW, 4), s(T_OW), off, LDFL, tag))
    return [("s", "s_add_u32 %s, %s, %d\ns_add_u32 m0, %s, %d" % (s(T_OW), s(T_BW[m]), i * 20480, s(T_M0W), base)),
            W(V_L16, 0), W(V_L16, 1024), W(V_L16, 2048), W(V_L16, 3072),
            ("s", "s_add_u32 m0, %s, %d" % (s(T_M0W), base + 4096)), W(TV_L4K, 0)]
def t8_af(sg, half, j): return a((192, 208, 224, 32, 48)[sg % RA8] + half * 8 + j * 4, 4)
def t8_a(sg):
    m, i = (0, sg) if sg < NSD else (1, sg - NSD)
    l = [("s", "s_add_u32 %s, %s, %d" % (s(T_OA), s(T_BA[m]), i * 8192))]
    for half in range(2):
        for j in range(2):
            l.append(("m", "buffer_load_dwordx4 %s, %s, %s, %s offen offset:%d%s ;#A%d" % (t8_af(sg, half, j), v(TV_L4K if half else V_L16), s(T_SA, 4), s(T_OA), j * 1024, LDFL, sg)))
    return l
def t8_wf(F):
    k = F % RF8
    return a(4 * k if k < 8 else 240 + 4 * (k - 8), 4)
def t8_read(F):
    sg, f = F // 20, F % 20
    if opt("t8c", 1): f = (f & 1) * 10 + (f >> 1)
    return "ds_read_b128 %s, %s offset:%d" % (t8_wf(F), v(TV_WR), (sg % 3) * 20480 + f * 1024)
def t8_acc(m, n10, j):
    i = n10 * 2 + j
    if m == 0: return 128 + 4 * i
    return 64 + 4 * i if i < 16 else 208 + 4 * (i - 16)
NWP = opt("nwp", 4)
NPRE_X = opt("nprex", 2)
NPRE_G = opt("npreg", 2)

def cond_lines(lines): return [("@" + x) if x.startswith("buffer") else x for x in lines]

def publish(m):
    out = []; n = 0
    for ch in range(2):
        if m == 1 and REUSE:
            t = S_TMP
            out.append(("s", "s_and_b32 %s, s2, 3\ns_and_b32 %s, %s, 2\ns_sub_u32 %s, %s, %s\ns_sub_u32 %s, %s, %d\ns_mul_i32 %s, %s, %d\ns_add_u32 %s, %s, %s" % (
                s(t), s(t + 1), s(S_WAVE), s(t), s(t), s(t + 1), s(t), s(t), ch, s(t), s(t), 3 * XPB, s(t + 2), s(T_XO + ch), s(t))))
        else:
            out.append(("s", "s_add_u32 %s, %s, %d" % (s(S_TMP + 2), s(T_XO + ch), m * 12 * XPB)))
        for j in range(2):
            vals = [t8_acc(m, 5 * ch + nb, j) + k for nb in range(5) for k in range(4)]
            pb = (40, 240)[n % 2]; n += 1
            for gi in range(3):
                vs = vals[7 * gi:7 * gi + 7]
                if len(vs) < 7: vs = vs + [TV_TAG]
                for h in range(3): out.append(("v", "v_cvt_pk_bf16_f32 %s, %s, %s" % (v(pb + 4 * gi + h), v(vs[2 * h]), v(vs[2 * h + 1]))))
                out.append(("v", "v_cvt_pk_bf16_f32 %s, %s, %s" % (v(pb + 4 * gi + 3), v(vs[6]), v(TV_TAG))))
                off = j * 3072 + gi * 1024
                out.append(("m", "buffer_store_dwordx4 %s, %s, %s, %s offen offset:%d%s ;#xst%d" % (v(pb + 4 * gi, 4), v(TV_L4K if off >= 4096 else V_L16), s(T_XS, 4), s(S_TMP + 2), off % 4096, STFL, m)))
    return out
def own_write(m):
    l = []
    if L_OWN[m]: l.append("v_add_u32 %s, %d, %s" % (v(52), L_OWN[m], v(TV_OW)))
    ar = v(52) if L_OWN[m] else v(TV_OW)
    for ch in range(2):
        l.append("s_cmp_lg_u32 %s, 0x1000000\ns_cbranch_scc1 NOOWN%d%d" % (s(T_XO + ch), m, ch))
        for j in range(2):
            for nb in range(5): l.append("ds_write_b128 %s, %s offset:%d" % (ar, v(t8_acc(m, 5 * ch + nb, j), 4), (j * 5 + nb) * 1024))
        l.append("NOOWN%d%d:" % (m, ch))
    return l
XR = [128, 64]; OWR = [164, 184]
T_SL = 72
def xloads(m):
    l = []
    for i in range(3):
        if m == 1 and REUSE: l.append(("s", "s_mov_b32 %s, %s" % (s(S_TMP + 3), s(T_SL + i))))
        else: l.append(("s", "s_add_u32 %s, %s, %d" % (s(S_TMP + 3), s(T_XO + 2), m * 12 * XPB + i * XPB)))
        for k in range(3): l.append(("m", "buffer_load_dwordx4 %s, %s, %s, %s offen offset:%d%s ;#xr%d" % (v(XR[m] + (i * 3 + k) * 4, 4), v(V_L16), s(T_XS, 4), s(S_TMP + 3), k * 1024, LDFL, m)))
    return l
def xcheck(e, m, first_wait):
    t = S_TMP
    e("s_mov_b32 %s, 0" % s(t + 7))
    e(first_wait)
    e("XCHK%d:" % m)
    for i in range(9): e("v_xor_b32 %s, %s, %s" % (v(20 + i), s(T_TAG), v(XR[m] + 4 * i + 3)))
    for i in range(4): e("v_or3_b32 %s, %s, %s, %s" % (v(20), v(20), v(21 + 2 * i), v(22 + 2 * i)))
    e("v_cmp_lt_u32 vcc, 0xffff, %s" % v(20))
    e("s_add_u32 %s, %s, 1" % (s(t + 7), s(t + 7)))
    e("s_cmp_eq_u64 vcc, 0\ns_cbranch_scc1 XOK%d" % m)
    e("s_cmp_ge_u32 %s, 0x40000\ns_cbranch_scc1 XOK%d" % (s(t + 7), m))
    e("s_sleep %d" % opt("xslp", 4))
    for x in cond_lines([x for _, x in xloads(m)]): e(x)
    e("s_waitcnt vmcnt(0)\ns_branch XCHK%d" % m)
    e("XOK%d:" % m)
def xsum(e, m, nb):
    o = OWR[m] + 4 * nb
    for i in range(3):
        for k in range(4):
            idx = nb * 4 + k; gi, pos = idx // 7, idx % 7
            src = XR[m] + (i * 3 + gi) * 4 + pos // 2
            e(("v_and_b32 %s, 0xffff0000, %s" if pos & 1 else "v_lshlrev_b32 %s, 16, %s") % (v(20 + 4 * i + k), v(src)))
    for h in range(2):
        e("v_pk_add_f32 %s, %s, %s" % (v(o + 2 * h, 2), v(o + 2 * h, 2), v(20 + 2 * h, 2)))
        e("v_pk_add_f32 %s, %s, %s" % (v(24 + 2 * h, 2), v(24 + 2 * h, 2), v(28 + 2 * h, 2)))
    for h in range(2): e("v_pk_add_f32 %s, %s, %s" % (v(o + 2 * h, 2), v(o + 2 * h, 2), v(24 + 2 * h, 2)))

CV_G, CV_L, CV_X, LROW, L_FIN = 8, 11, 224, 336, 20480
def gen_t8(e):
    t = S_TMP
    mf = []
    NF = 20 * NSG
    for F in range(NF):
        sg, f = F // 20, F % 20
        m = 0 if sg < NSD else 1
        if opt("t8c", 1):
            j = f & 1; F0 = F - j
            d = v(t8_acc(m, f >> 1, j), 4)
            for i, half in enumerate((0, 1) if j == 0 else (1, 0)):
                mf.append("%s %s, %s, %s, %s" % (MF, d, t8_wf(F0 + half), t8_af(sg, half, j), "0" if (sg in (0, NSD) and i == 0) else d))
            continue
        for j in range(2):
            d = v(t8_acc(m, f % 10, j), 4)
            mf.append("%s %s, %s, %s, %s" % (MF, d, t8_wf(F), t8_af(sg, f // 10, j), "0" if (sg in (0, NSD) and f < 10) else d))
    G = Gaps(mf)
    DA = opt("t8d", 8)
    SIGS = opt("sigs", 2); CKS = opt("cks", 6); PLS = CKS - opt("polld", 1)
    bars = {}
    cur = 0
    for F in range(DA, NF):
        sg, f = F // 20, F % 20
        lo = 2 * (F - DA)
        if f == 0:
            if sg % 3 == 0:
                d = 61440 if sg % 6 == 3 else -61440
                G.place("v", ("v_add_u32 %s, %d, %s" % (v(TV_WR), d, v(TV_WR))) if d > 0 else ("v_subrev_u32 %s, %d, %s" % (v(TV_WR), -d, v(TV_WR))), cur - 1, cur - 1)
            pre = E(); post = E()
            if sg == CKS:
                stamp(pre, 11)
                pre("s_cmp_lg_u32 %s, 0\ns_cbranch_scc1 SPUN_O\ns_waitcnt SINCE{p3}" % s(S_WAVE))
                poll_spin(pre, False, s(K_FLG), 4, "O")
                stamp(post, 12)
            if sg == SIGS:
                post("s_cmp_lg_u32 %s, 0\ns_cbranch_scc1 NOSIG3" % s(S_WAVE))
                set_flag(post, 4)
                post("s_cmp_lg_u32 s2, 0\ns_cbranch_scc1 NOSIG3")
                post("s_add_u32 %s, %s, 0x10001\ns_mov_b64 exec, 1\nv_mov_b32 %s, %s\ns_mov_b32 %s, %d" % (s(t + 7), s(S_EPOCH), v(V_PL + 1), s(t + 7), s(t + 6), EP_OFF))
                post("buffer_store_dword %s, off, %s, %s sc1\ns_mov_b64 exec, -1" % (v(V_PL + 1), s(S_FL, 4), s(t + 6)))
                post("NOSIG3:")
                stamp(post, 10)
            if sg == PLS:
                post("s_cmp_lg_u32 %s, 0\ns_cbranch_scc1 NOPOLL3" % s(S_WAVE))
                post(poll_load(False, s(K_FLG)))
                post("NOPOLL3:\nMARK p3")
            b = G.place("b", "\n".join(cond_lines(pre.L) + ["s_barrier"] + cond_lines(post.L)), max(cur, lo - 1))
            lateA = NSD <= sg < NSD + opt("latea", 2)
            G.put(b, "s", "s_waitcnt WAITVM{D%d%s%s}" % (sg, "" if lateA else ",A%d" % sg, ",ost" if sg == SIGS else ""))
            if lateA: G.put(40 * sg - 1, "s", "s_waitcnt WAITVM{A%d}" % sg)
            bars[sg] = b; cur = b + 1
        cur = G.place("d", t8_read(F), max(cur, lo)) + 1
    qw = [(t8_w(sg), bars[sg - RW8 + 2] if sg >= RW8 else 0, sg) for sg in range(max(NPRE_G, NWP), NSG)]
    qa = [(t8_a(sg), max(40 * (sg - RA8 + 1) if sg >= RA8 else 0, bars[CKS] if sg >= NSD else 0), sg) for sg in range(NPRE_G, NSG)]
    DP = opt("dpub", 1)
    side = []
    if DP:
        side.append((publish(0), 40 * NSD + 8 + opt("dpd", 8)))
        side.append((xloads(0), 40 * opt("dld", 20)))
    if COAL:
        seq = []
        for i in range(3):
            seq += [("v", "v_add_u32 %s, %d, %s" % (v(CV_G + i), 64 * i, v(V_LANE))), ("v", "v_mul_u32_u24 %s, 6554, %s" % (v(36), v(CV_G + i))), ("v", "v_lshrrev_b32 %s, 16, %s" % (v(36), v(36))),
                    ("v", "v_lshlrev_b32 %s, 5, %s" % (v(CV_L + i), v(CV_G + i))), ("v", "v_mad_u32_u24 %s, %s, %d, %s" % (v(CV_L + i), v(36), LROW - 320, v(CV_L + i))),
                    ("v", "v_mul_u32_u24 %s, 1120, %s" % (v(36), v(36))), ("v", "v_lshl_add_u32 %s, %s, 4, %s" % (v(CV_G + i), v(CV_G + i), v(36))),
                    ("m", "buffer_load_dwordx4 %s, %s, %s, 0 offen ;#xx" % (v(CV_X + 4 * i, 4), v(CV_G + i), s(K_SX, 4)))]
        side.append((seq, 40 * opt("xld", 19)))
    else:
        side.append(([("m", "buffer_load_dwordx2 %s, %s, %s, 0 offen offset:%d ;#xx" % (v(KV_X + 2 * nb, 2), v(KV_XO), s(K_SX, 4), nb * 32)) for nb in range(5)], 40 * opt("xld", 19)))
    side.sort(key=lambda x: x[1])
    MG = opt("mg", 4)
    g = 0; lastm = -9
    while qw or qa:
        c = [x for x in (qw, qa) if x]
        c.sort(key=lambda x: (max(x[0][1], g), x[0][2]))
        seq, lo, _ = c[0].pop(0)
        g = max(g, lo)
        for k, x in seq:
            g = G.place(k, x, max(g + 1, lastm + MG if k == "m" else 0))
            if k == "m": lastm = g
    for seq, lo in side:
        g = lo; lastm = -99
        for k, x in seq:
            g = G.place(k, x, max(g + (0 if k == "v" else 1), lastm + (opt("smg", 24) if "xst" in x else 6) if k == "m" else 0))
            if k == "m": lastm = g
        if "xst0" in seq[-1][1]:
            G.va[g + 1].append("\n".join(own_write(0))); pubend = g + 1
    if DP: assert pubend < 40 * opt("dld", 20) - 40
    auto_lgkm(G, eager=opt("eag", 8))
    if VERBOSE: print("t8", G.pattern())
    for F in range(DA): e(t8_read(F))
    e("s_waitcnt lgkmcnt(0)")
    nm = 0
    for x in G.lines():
        if x.startswith("v_mfma"):
            if nm == 40 * NSD: stamp(e, 13)
            if STAMPS and opt("t8st", 0) and nm > 40 * NSD and (nm - 40 * NSD) % 160 == 0: stamp(e, 25 + (nm - 40 * NSD) // 160)
            nm += 1
        e(x)

def gen_tail(e0, head):
    head, neg = head
    e = E(); e.ext(head)
    T = V_T; t = S_TMP
    stamp(e, 8)
    C = 252
    W = T + 12
    wq = [x for sg in range(NPRE_X, NPRE_G) for x in (t8_w(sg) if sg >= NWP else []) + t8_a(sg)]
    def wsome(n):
        while wq and n > 0:
            k, x = wq.pop(0); n -= (k == "m")
            e(x + ("\ns_nop 0" if k == "s" else ""))
    wsome(opt("wpre", 0))
    pro, grp = o_ops()
    for i in range(neg, 16):
        if i == 8: e.ext(pro[1])
        for x in grp(i, True): e(x)
        wsome(opt("wpg", 1))
    wsome(99)
    e("s_nop 7")
    e("v_cmp_u_f32 vcc, %s, %s" % (v(T + 8), v(C)))
    e("s_cmp_lg_u64 vcc, 0\ns_cselect_b32 %s, 1, 0" % s(t))
    e("v_mov_b32 %s, %s" % (v(W), s(t)))
    e("s_lshl_b32 %s, %s, 2\ns_add_u32 %s, %s, %d" % (s(t + 1), s(S_WAVE), s(t + 1), s(t + 1), L_MISC))
    e("v_mov_b32 %s, %s\nv_mov_b32 %s, %d" % (v(W + 1), s(t + 1), v(W + 2), L_MISC))
    e("ds_write_b32 %s, %s" % (v(W + 1), v(W)))
    e("s_waitcnt WAITVM{D0,A0} lgkmcnt(0)")
    e("s_cmp_lg_u32 %s, 0\ns_cbranch_scc1 SPUN_EARLY3" % s(S_WAVE))
    w0 = E(); poll_spin(w0, True, None, 3, "EARLY3")
    for x in cond_lines(w0.L): e(x)
    e("v_min_u32 %s, 7, %s\nv_lshlrev_b32 %s, %d, %s" % (v(V_PL + 3), v(V_LANE), v(V_PL + 3), FSH, v(V_PL + 3)))
    e("s_barrier")
    e("ds_read_b128 %s, %s" % (v(W + 4, 4), v(W + 2)))
    t8 = E(); gen_t8(t8)
    i0 = t8.L.index("s_waitcnt lgkmcnt(0)")
    e.ext(t8.L[:i0 + 1])
    e("v_or3_b32 %s, %s, %s, %s\nv_or_b32 %s, %s, %s\ns_nop 0" % (v(W + 4), v(W + 4), v(W + 5), v(W + 6), v(W + 4), v(W + 4), v(W + 7)))
    e("v_readfirstlane_b32 %s, %s" % (s(t), v(W + 4)))
    e("s_nop 3\ns_andn2_b32 %s, %s, %s" % (s(t), s(t), s(S_RETRY)))
    e("s_cbranch_scc1 ATT_RETRY")
    stamp(e, 9)
    e.ext(t8.L[i0 + 1:])
    stamp(e, 14)
    if REUSE:
        xcheck(e, 0, "s_waitcnt WAITVM{xr0,xx}")
        e("s_barrier")
        e("s_xor_b32 %s, %s, 0x80000000\nv_mov_b32 %s, %s" % (s(T_TAG), s(T_TAG), v(TV_TAG), s(T_TAG)))
    else:
        e("s_nop 6")
    for k, x in publish(1): e(x)
    stamp(e, 23)
    for x in own_write(1): e(x)
    e("v_add_u32 %s, %d, %s" % (v(52), L_OWN[0], v(TV_OR)))
    if REUSE:
        for i in range(3):
            e("s_and_b32 %s, s2, 3\ns_xor_b32 %s, %s, %d\ns_sub_u32 %s, %s, %s\ns_mul_i32 %s, %s, %d\ns_add_u32 %s, %s, %s\ns_add_u32 %s, %s, %d" % (
                s(t), s(t + 1), s(t), i + 1, s(t), s(t + 1), s(t), s(t), s(t), 3 * XPB, s(t), s(t), s(T_XO + 2), s(T_SL + i), s(t), i * XPB))
    e("s_waitcnt lgkmcnt(0)")
    e("s_barrier")
    for nb in range(5): e("ds_read_b128 %s, %s offset:%d" % (v(OWR[0] + 4 * nb, 4), v(52), nb * 1024))
    for nb in range(5): e("ds_read_b128 %s, %s offset:%d" % (v(OWR[1] + 4 * nb, 4), v(TV_OR), L_OWN[1] + nb * 1024))
    if REUSE: e("s_waitcnt lgkmcnt(0)")
    else: xcheck(e, 0, "s_waitcnt WAITVM{xr0,xx} lgkmcnt(0)")
    GG = 100; XU = 204
    e("v_mov_b32 %s, %s" % (v(36), f2u(1.0 / DSC)))
    MP0, MP1 = opt("mp0", 2), opt("mp1", 4)
    e("v_mov_b32 %s, %s\nv_writelane_b32 %s, %s, 0\nv_writelane_b32 %s, %s, 1\ns_movk_i32 %s, %d\ns_mov_b32 %s, 0" % (v(38), s(T_SL + 2), v(38), s(T_SL), v(38), s(T_SL + 1), s(t + 4), 2048 + 1008 + 12, s(t + 5)))
    PLD = "@buffer_load_dword %s, %s, %s, %s offen%s" % (v(37), v(38), s(T_XS, 4), s(t + 4), LDFL)
    for nb in range(5):
        if nb == MP0 and MP1 < 9: e(PLD)
        if nb == MP1:
            e("s_waitcnt vmcnt(0)")
            e("v_xor_b32 %s, %s, %s\nv_cmp_lt_u32 vcc, 0xffff, %s" % (v(37), s(T_TAG), v(37), v(37)))
            e("s_cmp_lg_u64 vcc, 0\ns_cbranch_scc1 NOEARLY")
            for x in cond_lines([x for _, x in xloads(1)]): e(x)
            e("s_mov_b32 %s, 1\nNOEARLY:" % s(t + 5))
        d = OWR[0] + 4 * nb; gq = GG + 4 * nb
        xsum(e, 0, nb)
        for k in range(4): e("v_mul_f32 %s, %s, %s" % (v(gq + k), f2u(-math.log2(math.e) * DSC), v(d + k)))
        for k in range(4): e("v_exp_f32 %s, %s" % (v(gq + k), v(gq + k)))
        e("s_nop 0")
        for k in range(4): e("v_fma_f32 %s, %s, %s, %s" % (v(gq + k), v(gq + k), v(36), v(36)))
        for k in range(4): e("v_rcp_f32 %s, %s" % (v(gq + k), v(gq + k)))
        if not COAL:
            for h in range(2):
                e("v_lshlrev_b32 %s, 16, %s" % (v(XU + 4 * nb + 2 * h), v(KV_X + 2 * nb + h)))
                e("v_and_b32 %s, 0xffff0000, %s" % (v(XU + 4 * nb + 2 * h + 1), v(KV_X + 2 * nb + h)))
        else: e("s_nop 0")
        for k in range(4): e("v_mul_f32 %s, %s, %s" % (v(gq + k), v(gq + k), v(d + k)))
    if COAL:
        XU = 128
        for i in range(12):
            e("v_lshlrev_b32 %s, 16, %s\nv_and_b32 %s, 0xffff0000, %s" % (v(XU + 2 * i), v(CV_X + i), v(XU + 2 * i + 1), v(CV_X + i)))
        e("s_mul_i32 %s, %s, %d\ns_add_u32 %s, %s, %d" % (s(t), s(S_WAVE), 20 * LROW, s(t), s(t), L_FIN))
        e("v_and_b32 %s, 15, %s\nv_mul_u32_u24 %s, %d, %s\nv_lshrrev_b32 %s, 4, %s\nv_lshl_add_u32 %s, %s, 4, %s\nv_add_u32 %s, %s, %s" % (v(14), v(V_LANE), v(14), LROW, v(14), v(15), v(V_LANE), v(14), v(15), v(14), v(14), s(t), v(14)))
        for i in range(3): e("v_add_u32 %s, %s, %s" % (v(CV_L + i), s(t), v(CV_L + i)))
    stamp(e, 24)
    e("s_mov_b32 %s, 0" % s(t + 7))
    e("s_cmp_lg_u32 %s, 0\ns_cbranch_scc1 LOADED" % s(t + 5))
    e("PROBE:")
    e(PLD)
    e("s_waitcnt vmcnt(0)")
    e("v_xor_b32 %s, %s, %s\nv_cmp_lt_u32 vcc, 0xffff, %s" % (v(37), s(T_TAG), v(37), v(37)))
    e("s_add_u32 %s, %s, 1" % (s(t + 7), s(t + 7)))
    e("s_cmp_eq_u64 vcc, 0\ns_cbranch_scc1 PROBED")
    e("s_cmp_ge_u32 %s, 0x40000\ns_cbranch_scc1 PROBED" % s(t + 7))
    e("s_sleep %d\ns_branch PROBE" % opt("pslp", 4))
    e("PROBED:")
    for k, x in xloads(1): e(x)
    e("LOADED:")
    xcheck(e, 1, "s_waitcnt vmcnt(0)")
    stamp(e, 25)
    OFL = opt("ofl", "_sc1").replace("_", " ")
    for nb in range(5):
        o = OWR[1] + 4 * nb; gq = GG + 4 * nb; xu = XU + 4 * nb
        xsum(e, 1, nb)
        if COAL:
            for h in range(2): e("v_pk_mul_f32 %s, %s, %s" % (v(o + 2 * h, 2), v(o + 2 * h, 2), v(gq + 2 * h, 2)))
            e("ds_write_b128 %s, %s offset:%d" % (v(14), v(o, 4), nb * 64))
            continue
        for r in range(4): e("v_fma_f32 %s, %s, %s, %s" % (v(xu + r), v(o + r), v(gq + r), v(xu + r)))
        for h in range(2): e("v_cvt_pk_bf16_f32 %s, %s, %s" % (v(gq + h), v(xu + 2 * h), v(xu + 2 * h + 1)))
        e("buffer_store_dwordx2 %s, %s, %s, 0 offen offset:%d%s" % (v(gq, 2), v(KV_XO), s(K_SO, 4), nb * 32, OFL))
    if COAL:
        for i in range(3):
            for h in range(2): e("ds_read_b128 %s, %s offset:%d" % (v(64 + 8 * i + 4 * h, 4), v(CV_L + i), 16 * h))
        for i in range(3):
            e("s_waitcnt lgkmcnt(%d)" % (4 - 2 * i))
            for h in range(4): e("v_pk_add_f32 %s, %s, %s" % (v(64 + 8 * i + 2 * h, 2), v(64 + 8 * i + 2 * h, 2), v(XU + 8 * i + 2 * h, 2)))
            for h in range(4): e("v_cvt_pk_bf16_f32 %s, %s, %s" % (v(100 + 4 * i + h), v(64 + 8 * i + 2 * h), v(65 + 8 * i + 2 * h)))
            e("buffer_store_dwordx4 %s, %s, %s, 0 offen%s" % (v(100 + 4 * i, 4), v(CV_G + i), s(K_SO, 4), OFL))
    e0.ext([x.lstrip("@") for x in resolve_vm(e.L)])
    e = e0
    stamp(e, 15)
    if STAMPS: e("s_waitcnt vmcnt(0)")
    stamp(e, 16)
    stamp_fin(e)

def gen_kv_addr(e):
    T = V_T + 12; L = V_LANE
    e("s_lshl_b32 %s, %s, 19" % (s(S_TMP), s(S_HEAD)))
    srd(e, S_K, 54, s(S_TMP), 524288)
    srd(e, S_V, 56, s(S_TMP), 524288 + VSH * 8192)
    e("s_sub_u32 %s, %s, %d\ns_subb_u32 %s, %s, 0" % (s(S_V), s(S_V), VSH * 8192, s(S_V + 1), s(S_V + 1)))
    e("v_lshrrev_b32 %s, 4, %s\ns_lshl_b32 %s, %s, 3\nv_add_u32 %s, %s, %s\nv_and_b32 %s, 15, %s" % (v(T), v(L), s(S_TMP), s(S_WAVE), v(T), s(S_TMP), v(T), v(T + 1), v(L)))
    e("v_lshlrev_b32 %s, 8, %s" % (v(T + 2), v(T)))
    for i in range(2):
        e("v_add_u32 %s, %d, %s\nv_and_b32 %s, 15, %s\nv_xor_b32 %s, %s, %s\nv_lshl_add_u32 %s, %s, 4, %s" % (v(T + 3), 4 * i, v(T), v(T + 4), v(T + 3), v(T + 4), v(T + 4), v(T + 1), v(V_KD + i), v(T + 4), v(T + 2)))
        e("v_and_b32 %s, 7, %s\nv_lshlrev_b32 %s, 1, %s\nv_xor_b32 %s, %s, %s\nv_lshl_add_u32 %s, %s, 4, %s" % (v(T + 4), v(T + 3), v(T + 4), v(T + 4), v(T + 4), v(T + 4), v(T + 1), v(V_VD + i), v(T + 4), v(T + 2)))
    e("v_and_b32 %s, 15, %s\nv_lshrrev_b32 %s, 4, %s\nv_xor_b32 %s, %s, %s" % (v(T), v(L), v(T + 1), v(L), v(T + 1), v(T + 1), v(T)))
    e("v_lshlrev_b32 %s, 8, %s\nv_lshl_add_u32 %s, %s, 4, %s" % (v(T), v(T), v(T), v(T + 1), v(T)))
    for sl in range(4): e("v_xor_b32 %s, %d, %s" % (v(V_KA + sl), sl * 64, v(T)))
    e("v_lshrrev_b32 %s, 2, %s\nv_and_b32 %s, 7, %s\nv_lshlrev_b32 %s, 8, %s\nv_lshl_add_u32 %s, %s, 5, %s" % (v(T), v(L), v(T + 1), v(T), v(T), v(T), v(T), v(T + 1), v(T)))
    e("v_and_b32 %s, 3, %s\nv_lshl_add_u32 %s, %s, 3, %s\nv_add_u32 %s, %d, %s" % (v(T + 1), v(L), v(T), v(T + 1), v(T), v(T), L_V, v(T)))
    for db in range(8): e("v_xor_b32 %s, %d, %s" % (v(V_VA + db), db * 32, v(T)))

def gen_retry(e):
    e("ATT_RETRY:")
    e("s_waitcnt vmcnt(0)\ns_mov_b32 %s, 1" % s(S_RETRY))
    gen_kv_addr(e)
    for qb in range(4): e("v_mov_b32 %s, 0xff800000" % v(V_NEGM + 4 * qb))
    e("s_mov_b32 %s, 0" % s(S_KVOFF))
    e("RETRY_LOOP:")
    e("s_barrier")
    e("s_add_u32 m0, %s, %d\ns_nop 0" % (s(S_M0K), L_K))
    e(kv_dma("K", 0)); e(kv_dma("K", 1))
    e("s_waitcnt vmcnt(0)\ns_barrier")
    for kb in range(2):
        for sl in range(4): e(k_read(kb, sl, 0))
    e("s_waitcnt lgkmcnt(0)")
    e.ext(qk_mfmas(0, czero=True))
    e("s_nop 7")
    for qb in range(4):
        b = Sreg(0, qb, 0); m = v(V_NEGM + 4 * qb)
        for k in range(4): e("v_max3_f32 %s, %s, %s, %s" % (m, m, v(b + 2 * k), v(b + 2 * k + 1)))
    e("s_add_u32 %s, %s, 8192\ns_cmp_lt_u32 %s, %d\ns_cbranch_scc1 RETRY_LOOP" % (s(S_KVOFF), s(S_KVOFF), s(S_KVOFF), 64 * 8192))
    e("s_barrier")
    kv_preload(e)
    e("s_barrier")
    for kb in range(2):
        for sl in range(4): e(k_read(kb, sl, 0))
    e.ext(ones_ops(V_T))
    for r in range(128): e("v_accvgpr_write_b32 %s, 0" % a(A_O + r))
    for r in range(8): e("v_mov_b32 %s, 0" % v(V_L + r))
    e("s_waitcnt lgkmcnt(0)")
    e.ext(qk_mfmas(0, czero=True))
    for kb in range(2):
        for sl in range(4): e(k_read(kb, sl, 8192))
    e("s_branch ATT_START")

def gen_common_setup(e):
    T = V_T + 12; L = V_LANE
    e("s_lshl2_add_u32 %s, %s, %s" % (s(S_TMP + 1), s(S_QT), s(S_WAVE)))
    e("s_mul_i32 %s, %s, %d" % (s(S_TMP), s(S_TMP + 1), NSLAB * 4096))
    srd(e, S_AF, ptr(11), s(S_TMP), NSLAB * 4096)
    e("s_mul_i32 %s, %s, %d\ns_add_u32 %s, %s, %d" % (s(S_TMP), s(S_TMP + 1), 20 * 4096, s(S_TMP), s(S_TMP), XF_OFF))
    srd(e, S_X, ptr(11), s(S_TMP), 20 * 4096)
    e("s_mov_b64 %s, %s\ns_mov_b64 %s, %s" % (s(54, 2), s(ptr(1), 2), s(56, 2), s(ptr(2), 2)))
    e("v_bfe_u32 %s, %s, 2, 2\nv_lshrrev_b32 %s, 4, %s\nv_and_b32 %s, 3, %s" % (v(T), v(L), v(T + 1), v(L), v(T + 2), v(L)))
    e("v_lshlrev_b32 %s, 12, %s" % (v(T + 3), v(T + 1)))
    e("v_mul_u32_u24 %s, 320, %s\nv_add_u32 %s, %s, %s\nv_lshl_add_u32 %s, %s, 4, %s" % (v(T + 4), v(T), v(T + 4), v(T + 4), v(T + 3), v(T + 4), v(T + 2), v(T + 4)))
    for sl in range(4): e("v_xor_b32 %s, %d, %s" % (v(V_AQ + sl), sl * 64, v(T + 4)))
    e("v_lshl_add_u32 %s, %s, 7, %s\nv_lshl_add_u32 %s, %s, 3, %s" % (v(T + 4), v(T), v(T + 3), v(T + 4), v(T + 2), v(T + 4)))
    e("v_bfe_u32 %s, %s, 3, 2\nv_lshl_add_u32 %s, %s, 5, %s" % (v(T + 5), v(L), v(T + 4), v(T + 5), v(T + 4)))
    for u in range(4): e("v_xor_b32 %s, %d, %s" % (v(V_AG + u), u * 32, v(T + 4)))
    gen_kv_addr(e)

def gen_w_setup(e):
    T = V_T + 12; L = V_LANE
    e("v_lshrrev_b32 %s, 4, %s\nv_lshlrev_b32 %s, 2, %s\nv_and_b32 %s, 15, %s\nv_xor_b32 %s, %s, %s" % (v(T), v(L), v(T + 1), v(T), v(T + 2), v(L), v(T + 1), v(T + 1), v(T + 2)))
    e("v_lshlrev_b32 %s, 13, %s\nv_lshl_add_u32 %s, %s, 4, %s" % (v(T), v(T), v(V_WD), v(T + 1), v(T)))
    e("v_add_u32 %s, %d, %s" % (v(V_WD + 1), 4 * 8192 - 1024, v(V_WD)))
    e("v_lshrrev_b32 %s, 3, %s\nv_bfe_u32 %s, %s, 4, 1\nv_lshlrev_b32 %s, 1, %s" % (v(T), v(L), v(T + 1), v(L), v(T + 1), v(T + 1)))
    e("s_and_b32 %s, %s, 1\ns_lshl_b32 %s, %s, 2\nv_or_b32 %s, %s, %s" % (s(S_TMP), s(S_WAVE), s(S_TMP), s(S_TMP), v(T + 1), s(S_TMP), v(T + 1)))
    e("v_and_b32 %s, 7, %s\nv_xor_b32 %s, %s, %s" % (v(T + 2), v(L), v(T + 1), v(T + 1), v(T + 2)))
    e("v_mul_u32_u24 %s, 3456, %s\nv_lshl_add_u32 %s, %s, 4, %s" % (v(T), v(T), v(V_WD + 2), v(T + 1), v(T)))
    e("s_lshl_b32 %s, %s, 8\ns_sub_u32 %s, %d, %s" % (s(S_TMP), s(S_HEAD), s(S_TMP + 1), 640 * 8192, s(S_TMP)))
    srd(e, S_WQ, ptr(3), s(S_TMP), s(S_TMP + 1))
    for (d, p, sh) in ((S_WG, 6, 2048), (S_WU, 7, 3072)):
        e("s_lshl_b32 %s, %s, 7\ns_sub_u32 %s, %d, %s" % (s(S_TMP), s(S_FS), s(S_TMP + 1), 640 * 3456 + sh, s(S_TMP)))
        e("s_cmp_lt_u32 %s, 27\ns_cselect_b32 %s, %s, 0" % (s(S_FS), s(S_TMP + 1), s(S_TMP + 1)))
        srd(e, d, ptr(p), s(S_TMP), s(S_TMP + 1))
        e("s_sub_u32 %s, %s, %d\ns_subb_u32 %s, %s, 0" % (s(d), s(d), sh, s(d + 1), s(d + 1)))

def gen_kernel(e, name):
    T = V_T; L = V_LANE
    e(".text\n.globl %s\n.p2align 8\n.type %s,@function\n%s:" % (name, name, name))
    if STAMPS: e("s_memrealtime s[96:97]")
    e("s_cmp_ge_u32 s2, 256\ns_cbranch_scc1 K_END")
    e("s_load_dwordx8 %s, s[0:1], 0\ns_load_dwordx8 %s, s[0:1], 32\ns_load_dwordx8 %s, s[0:1], 64" % (s(S_PTR, 8), s(S_PTR + 8, 8), s(S_PTR + 16, 8)))
    e("v_and_b32 %s, 63, v0\nv_lshrrev_b32 %s, 6, v0\nv_lshlrev_b32 %s, 4, %s\nv_readfirstlane_b32 %s, %s" % (v(L), v(T), v(V_L16), v(L), s(S_WAVE), v(T)))
    e("s_and_b32 %s, s2, 7\ns_lshr_b32 %s, s2, 3\ns_and_b32 %s, %s, 3\ns_lshr_b32 %s, %s, 2" % (s(S_TMP), s(S_TMP + 1), s(S_HL), s(S_TMP + 1), s(S_QT), s(S_TMP + 1)))
    e("s_lshl_b32 %s, %s, 2\ns_add_u32 %s, %s, %s" % (s(S_HEAD), s(S_TMP), s(S_HEAD), s(S_HEAD), s(S_HL)))
    e("s_lshl_b32 %s, %s, 3\ns_add_u32 %s, %s, %s" % (s(S_FS), s(S_HL), s(S_FS), s(S_FS), s(S_TMP)))
    e("s_mov_b32 %s, 0" % s(S_RETRY))
    e("s_lshl_b32 %s, %s, 12\ns_lshl_b32 %s, %s, 11" % (s(S_M0W), s(S_WAVE), s(S_M0K), s(S_WAVE)))
    if STAMPS: e("v_mov_b32 v0, -1\nv_mov_b32 v19, -1")
    stamp(e, 0)
    if STAMPS: e("v_writelane_b32 v19, s96, 40\nv_writelane_b32 v0, s96, 40")
    def codetouch(e):
        e("s_getpc_b64 %s\nCODE0:" % s(S_TMP + 4, 2))
        e("s_lshr_b32 %s, s2, 3\ns_lshl2_add_u32 %s, %s, %s\ns_mul_i32 %s, %s, 640" % (s(S_EVT + 6), s(S_EVT + 6), s(S_EVT + 6), s(S_WAVE), s(S_EVT + 6), s(S_EVT + 6)))
        e("v_min_u32 %s, 4, %s\nv_lshlrev_b32 %s, 7, %s\nv_add_u32 %s, %s, %s\nv_min_u32 %s, CODE1-CODE0-4, %s" % (v(8), v(L), v(8), v(8), v(8), s(S_EVT + 6), v(8), v(8), v(8)))
        e("global_load_dword %s, %s, %s" % (v(V_PL), v(8), s(S_TMP + 4, 2)))
    CPOS = opt("cpos", 0); WPOS = opt("wpos", 0)
    if CPOS == 0: codetouch(e)
    if CPOS == 9: e("CODE0:")
    gen_ln_loads(e)
    e("s_add_u32 %s, %s, %d\ns_addc_u32 %s, %s, 0\ns_load_dword %s, %s, 0" % (s(S_TMP + 2), s(ptr(11)), FL_OFF + EP_OFF, s(S_TMP + 3), s(ptr(11) + 1), s(S_EPOCH), s(S_TMP + 2, 2)))
    ny = 0
    if CPOS == 1: codetouch(e); ny += 1
    gen_w_setup(e)
    e("s_lshl_b32 %s, %s, 16\ns_mul_i32 %s, %s, %d" % (s(S_WQOFF), s(S_WAVE), s(S_WGOFF), s(S_WAVE), 8 * 3456))
    WT = max(opt("wt", 6), 1)
    X = V_TC
    e("s_lshl2_add_u32 %s, %s, %s\ns_add_u32 %s, %s, %d" % (s(S_TMP), s(S_QT), s(S_WAVE), s(S_TMP), s(S_TMP), 32 * NI))
    e("v_lshrrev_b32 %s, 1, %s\nv_min_u32 %s, %d, %s\nv_lshlrev_b32 %s, 5, %s\nv_add_u32 %s, %s, %s" % (v(X), v(L), v(X), WT - 1, v(X), v(X), v(X), v(X), s(S_TMP), v(X)))
    e("v_and_b32 %s, 1, %s\nv_lshlrev_b32 %s, 7, %s\nv_lshl_add_u32 %s, %s, 13, %s\nv_mul_u32_u24 %s, 3456, %s" % (v(X + 1), v(L), v(X + 1), v(X + 1), v(X + 1), v(X), v(X + 1), v(X), v(X)))
    w0 = E(); wt = E()
    for sl in range(NI): w_slab(w0, sl, True)
    wt("buffer_load_dword %s, %s, %s, 0 offen" % (v(V_PL + 1), v(X + 1), s(S_WQ, 4)))
    wt("buffer_load_dword %s, %s, %s, 0 offen offset:2048" % (v(V_PL + 2), v(X), s(S_WG, 4)))
    wt("buffer_load_dword %s, %s, %s, 0 offen offset:3072" % (v(V_DUMP), v(X), s(S_WU, 4)))
    if opt("wt", 6) == 0: wt.L = []
    early = {0: w0.L + wt.L, 1: [], 2: w0.L, 3: w0.L}[WPOS]
    mid = {0: [], 1: w0.L + wt.L, 2: wt.L, 3: []}[WPOS]
    after = wt.L if WPOS == 3 else []
    e.ext(early); ny += sum(x.startswith("buffer") for x in early)
    LATE = opt("late", 2)
    srd(e, S_FL, ptr(11), FL_OFF, EP_OFF + 4096)
    e("s_lshl_b32 %s, %s, 5\ns_add_u32 %s, %s, %s\ns_lshl_b32 %s, %s, %d" % (s(S_MYFL), s(S_QT), s(S_MYFL), s(S_MYFL), s(S_HEAD), s(S_MYFL), s(S_MYFL), FSH))
    e("v_min_u32 %s, 31, %s\nv_lshlrev_b32 %s, %d, %s\ns_lshl_b32 %s, %s, %d" % (v(V_PL + 3), v(L), v(V_PL + 3), FSH, v(V_PL + 3), s(S_XOFF), s(S_QT), FSH + 5))
    def rest():
        gen_common_setup(e)
        for i in range(8): e("v_add_u32 %s, 65536, %s" % (v(V_AHI + i), v(V_AQ + i)))
        e("v_mov_b32 %s, %d" % (v(V_ZA), L_MISC + 512))
        for i in range(4): e("v_mov_b32 %s, 0" % v(52 + i))
        e("ds_write_b128 %s, %s" % (v(V_ZA), v(52, 4)))
    stamp(e, 1)
    gen_ln_compute(e, ny, mid)
    e.ext(after)
    stamp(e, 29)
    if LATE == 1: rest()
    e("s_mul_i32 %s, %s, 0x9e3779b1\ns_add_u32 %s, %s, 0x7f4a7c15" % (s(S_TAG), s(S_EPOCH), s(S_TAG), s(S_TAG)))
    e("s_waitcnt vmcnt(%d)\ns_barrier" % len(after))
    stamp(e, 18)
    e("s_cmp_lg_u32 %s, 0\ns_cbranch_scc1 NOFL1" % s(S_WAVE))
    set_flag(e, 1)
    e("NOFL1:")
    if LATE == 2: rest()
    e("s_cmp_lg_u32 %s, 0\ns_cbranch_scc1 SPUN_XN" % s(S_WAVE))
    e(poll_load(False, s(S_XOFF)))
    e("s_waitcnt vmcnt(0)")
    poll_spin(e, False, s(S_XOFF), 1, "XN")
    e("s_barrier")
    stamp(e, 2)
    e("s_cmp_ge_u32 %s, 27\ns_cbranch_scc1 LIGHT" % s(S_FS))
    gen_proj(e, True, "H")
    e("PROJ_DONE:")
    head = gen_attention(e)
    gen_tail(e, head)
    e("K_END:\ns_endpgm")
    gen_events(e)
    gen_retry(e)
    e("LIGHT:")
    gen_proj(e, False, "L")
    e("s_branch PROJ_DONE")
    e("CODE1:")
    e(kd(name))

def main():
    e = E()
    hdr = open("cdna_kernels/%s.s.ref" % NAME).read().split("; Override launch")[0]
    e.L += hdr.strip().split("\n")
    e("; @launch grid=(256,1,1) block=(256,1,1) lds=%d" % LDS_BYTES)
    e('.amdgcn_target "amdgcn-amd-amdhsa--gfx950"')
    gen_kernel(e, NAME + "_kernel")
    t = re.sub(r" ;#\w*", "", e.text()).replace("NVWAIT", str(min(NV01)))
    if VERBOSE: print("NV01", NV01)
    errs = [x for x in asmcheck.check(t, [NAME + "_kernel"]) if x.count("_load_dword v%d," % V_DUMP) != 2 and not any(y in x for y in poll_load(True).split("\n")[-4:])]
    if errs:
        print("\n".join(errs[:40])); print(len(errs), "problems")
    out = [x for x in sys.argv[1:] if x.endswith(".s")]
    open(out[0] if out else "cdna_kernels/%s.s" % NAME, "w").write(t)

if __name__ == "__main__":
    main()
```

```python
import sys, math, os, struct, re
from sched import Gaps, auto_lgkm
import asmcheck

NAME = "recurrent_scan__mha_block_cached__glu_gated_reglu__prompt"
MF = "v_mfma_f32_16x16x32_bf16"
OPT = dict(x.split("=") for x in sys.argv[1:] if "=" in x)
def opt(k, d): return type(d)(OPT.get(k, d))
VERBOSE = "-v" in sys.argv
STAMPS = "--stamps" in sys.argv
STFL = opt("stfl", " sc1").replace("_", " ")
LDFL = opt("ldfl", " sc1").replace("_", " ")

NSLAB = 182
QSC = math.log2(math.e) / math.sqrt(128.0)
DSC = 1.0 / (QSC * QSC)
WF_OFF = 0x1800000
WF_BYTES = 8 * NSLAB * 5120
XF_OFF = 0x2000000
XP_OFF = 0x2800000
MAXST = 4
FL_OFF = 0x2400000

class E:
    def __init__(self): self.L = []
    def __call__(self, s):
        for x in s.split("\n"):
            x = x.strip()
            if x: self.L.append(x)
    def ext(self, l): self.L += l
    def text(self): return "\n".join(self.L) + "\n"

def v(a, n=1): return "v%d" % a if n == 1 else "v[%d:%d]" % (a, a + n - 1)
def a(a_, n=1): return "a%d" % a_ if n == 1 else "a[%d:%d]" % (a_, a_ + n - 1)
def s(a_, n=1): return "s%d" % a_ if n == 1 else "s[%d:%d]" % (a_, a_ + n - 1)
def f2u(x): return "0x%08x" % struct.unpack("<I", struct.pack("<f", x))[0]

def kd(name, vgpr=512, acc=256):
    return """.section .rodata,"a"
.p2align 6
.amdhsa_kernel %s
  .amdhsa_next_free_vgpr %d
  .amdhsa_next_free_sgpr 102
  .amdhsa_accum_offset %d
  .amdhsa_group_segment_fixed_size 0
  .amdhsa_kernarg_size 96
  .amdhsa_user_sgpr_count 2
  .amdhsa_user_sgpr_kernarg_segment_ptr 1
  .amdhsa_system_sgpr_workgroup_id_x 1
.end_amdhsa_kernel
""" % (name, vgpr, acc)

def stamp(e, i):
    if not STAMPS: return
    e("s_waitcnt lgkmcnt(0)\ns_memtime s[98:99]\ns_memrealtime s[100:101]\ns_waitcnt lgkmcnt(0)")
    e("v_writelane_b32 v0, s98, %d\nv_writelane_b32 v19, s100, %d" % (i, i))
def stamp_fin(e):
    if not STAMPS: return
    if opt("echo", ""):
        i, j = [int(x) for x in opt("echo", "").split(".")]
        e("s_nop 1\nv_readlane_b32 s96, v19, %d\nv_readlane_b32 s97, v19, %d\nv_readlane_b32 s98, v19, 16\ns_nop 3\ns_sub_u32 s96, s97, s96\ns_min_u32 s96, s96, 20000\ns_cmp_%s_u32 %s, 27\ns_cselect_b32 s96, s96, 0" % (i, j, "ge" if opt("el", 0) else "lt", s(S_FS)))
        if opt("ecyc", 0):
            e("v_readlane_b32 s96, v0, %d\nv_readlane_b32 s97, v0, %d\ns_nop 3\ns_sub_u32 s96, s97, s96\ns_lshr_b32 s96, s96, 3\ns_min_u32 s96, s96, 20000\ns_cmp_lt_u32 %s, 27\ns_cselect_b32 s96, s96, 0" % (i, j, s(S_FS)))
            i = 40
        if opt("eabs", 0): e("v_readlane_b32 s98, v19, %d\ns_add_u32 s96, s96, 10000\ns_nop 3" % i)
        e("ECHO:\ns_sleep 1\ns_memrealtime s[100:101]\ns_waitcnt lgkmcnt(0)\ns_sub_u32 s97, s100, s98\ns_cmp_lt_u32 s97, s96\ns_cbranch_scc1 ECHO")
        return
    if opt("dbgout", -1) >= 0:
        e("s_cmp_lg_u32 s2, %d\ns_cbranch_scc1 NODBG\ns_cmp_lg_u32 %s, 0\ns_cbranch_scc1 NODBG" % (opt("dbgout", -1), s(S_WAVE)))
        e("v_readlane_b32 s98, v19, 0\ns_nop 3\nv_subrev_u32 v18, s98, v19\nv_lshlrev_b32 v20, 2, v1\nv_subrev_u32 v20, 4, v20")
        e("s_mov_b32 s96, %s\ns_mov_b32 s97, %s\ns_mov_b32 s98, 64\ns_mov_b32 s99, 0x20000" % (s(ptr(10)), s(ptr(10) + 1)))
        e("buffer_store_dword v18, v20, s[96:99], 0 offen\ns_waitcnt vmcnt(0)\nNODBG:")
        return
    if opt("wsb", 0): e("s_sub_u32 %s, %s, %d\ns_subb_u32 %s, %s, 0" % (s(ptr(11)), s(ptr(11)), opt("wsb", 0) << 20, s(ptr(11) + 1), s(ptr(11) + 1)))
    e("s_lshl_b32 s98, s2, 2\ns_add_u32 s98, s98, %s\ns_lshl_b32 s98, s98, 9\ns_add_u32 s98, s98, %d" % (s(S_WAVE), 0x4000000))
    e("s_add_u32 s96, %s, s98\ns_addc_u32 s97, %s, 0\ns_mov_b32 s98, 512\ns_mov_b32 s99, 0x20000" % (s(ptr(11)), s(ptr(11) + 1)))
    e("v_mov_b32 v18, v0\nv_lshlrev_b32 v20, 3, v1\nbuffer_store_dwordx2 v[18:19], v20, s[96:99], 0 offen\ns_waitcnt vmcnt(0)")

def srd(e, d, base, off_lo, nbytes):
    e("s_add_u32 %s, %s, %s" % (s(d), s(base), off_lo))
    e("s_addc_u32 %s, %s, 0" % (s(d + 1), s(base + 1)))
    e("s_mov_b32 %s, %s" % (s(d + 2), nbytes))
    e("s_mov_b32 %s, 0x20000" % s(d + 3))

def uncond(x): return False
def resolve_vm(lines):
    out = []; ops = []; waited = set(); lastm0 = None; done = 0; marks = {}
    for x in lines:
        mm = re.search(r"vmcnt\((\d+)\)", x)
        if mm and not x.startswith("@") and uncond(x): done = max(done, len(ops) - int(mm.group(1)))
        if x.startswith(("buffer_", "global_")) and len(ops) - done >= 58:
            out.append("s_waitcnt vmcnt(52)"); done = len(ops) - 52
        if x.startswith("s_add_u32 m0,"): lastm0 = x.split(",")[1].strip()
        if " lds" in x and ";#" in x:
            tg = x.split(";#")[1].strip()
            exp = s(S_M0W) if tg.startswith("w") else (s(S_TRM) if tg == "trs" else s(S_M0K))
            if tg.startswith("D"): exp = s(T_M0W)
            assert lastm0 == exp, "M0 collision at %s" % x
        if x.startswith("MARK"):
            marks[x.split()[1]] = len(ops); continue
        m = re.search(r"SINCE\{(\w+)\}", x)
        if m: x = x.replace(m.group(0), "vmcnt(%d)" % min(63, len(ops) - marks[m.group(1)]))
        m = re.search(r"WAITVM\{([^}]*)\}", x)
        if m:
            need = set(m.group(1).split(","))
            waited |= need
            idx = [i for i, t in enumerate(ops) if t in need]
            n = len(ops) - 1 - max(idx) if idx else 63
            done = max(done, len(ops) - min(n, 63))
            x = x.replace(m.group(0), "vmcnt(%d)" % min(n, 63))
        elif x.startswith(("buffer_", "global_")):
            t = x.split(";#")[1].strip() if ";#" in x else ""
            assert t not in waited, "op %s issued after its wait" % t
            ops.append(t)
        out.append(x)
    return out

S_FL = 4
S_X, S_WQ, S_WG, S_WU, S_K, S_V, S_AF, S_T, S_WF = 8, 12, 16, 20, 24, 28, 32, 36, 40
S_PTR = 44
S_WAVE, S_HEAD, S_QT, S_FS = 68, 69, 70, 71
S_XOFF, S_WQOFF, S_WGOFF, S_M0W = 72, 73, 74, 75
S_KVOFF, S_M0K, S_TOG, S_RETRY = 76, 77, 78, 79
S_TMP = 80
S_TRS, S_TRM, S_TRD, S_TRU = 88, 89, 90, 91
S_EPOCH, S_TAG, S_MYFL = 92, 93, 94
S_HL = 3
S_EVT = 85
def EV(n): return (10 + 2 * n) * 8192
EVT0 = EV(3)
EVTE = (62 + 10) * 8192
NWH = opt("nwh", 0)
S_LN = 84
def ptr(i): return S_PTR + 2 * i

L_K = 0
L_V = 65536
RW = 8
L_TR = 114688
L_MISC = 155648
LDS_BYTES = 163840

V_LANE = 1
V_L16 = 2
V_WD = 3
V_TRA = 6
V_AQ = 10
V_AG = 14
V_KA = 20
V_VA = 24
V_KD = 32
V_VD = 34
V_DUMP = 18
V_SIDX = 7
V_ZA = 6
NL = 2
VSH = 4
NOE = 4
V_PW = 5
PWARM = opt("pw", 0)
V_TC = 62
V_PL = 36
V_T = 40
V_ACCQ = 64
V_ACCG = 192
V_Q = 64
V_S = 128
V_P = 192
V_NEGM = 224
V_L = 240
A_ACCU = 0
XD = 8
A_X = 64
A_W = 192
A_TR = 208
V_ONE = 56
A_O = 64
A_KF = 224
A_KF1 = 192
A_VF = 0
V_AHI = 44

def qacc(blk, qb): return (V_S if blk & 1 else V_Q) + ((blk >> 1) * 4 + qb) * 4
def wslot(sl): return (sl + 4) % RW
def accreg(blk, qb):
    if blk < 8: return v(qacc(blk, qb), 4)
    if blk < 12: return v(V_ACCG + ((blk - 8) * 4 + qb) * 4, 4)
    return a(A_ACCU + ((blk - 12) * 4 + qb) * 4, 4)

def w_read(dst, blk, j, rel):
    if blk < 8:
        ar = V_AQ + (blk >> 1); off = rel + j * 1024 + (blk & 1) * 8
    else:
        ar = V_AG + ((blk - 8) & 3); off = rel + 2048 + (1024 if blk >= 12 else 0) + j * 512
    if rel >= 65536: ar += V_AHI - V_AQ; off -= 65536
    assert 0 <= off < 65536
    return "ds_read_b64_tr_b16 %s, %s offset:%d" % (a(dst + 2 * j, 2), v(ar), off)

def w_dma(heavy, tag):
    l = ["buffer_load_dwordx4 %s, %s, %s offen lds ;#%s" % (v(V_WD), s(S_WQ, 4), s(S_WQOFF), tag),
         "buffer_load_dwordx4 %s, %s, %s offen offset:1024 lds ;#%s" % (v(V_WD + 1), s(S_WQ, 4), s(S_WQOFF), tag)]
    if heavy:
        l += ["buffer_load_dwordx4 %s, %s, %s offen offset:2048 lds ;#%s" % (v(V_WD + 2), s(S_WG, 4), s(S_WGOFF), tag),
              "buffer_load_dwordx4 %s, %s, %s offen offset:3072 lds ;#%s" % (v(V_WD + 2), s(S_WU, 4), s(S_WGOFF), tag)]
    return l

def x_load(sl, qb):
    return "buffer_load_dwordx4 %s, %s, %s, %s offen offset:%d%s ;#x%d" % (a(A_X + ((sl % XD) * 4 + qb) * 4, 4), v(V_L16), s(S_X, 4), s(S_XOFF), qb * 1024, LDFL, sl)

def kv_dma(which, i, tag=""):
    vo = (V_KD if which == "K" else V_VD) + i
    return "buffer_load_dwordx4 %s, %s, %s offen offset:%d%s lds ;#%s" % (v(vo), s(S_K if which == "K" else S_V, 4), s(S_KVOFF), 1024 * i, opt("kvfl", "_sc1").replace("_", " "), tag)

FSH = opt("fsh", 2)
EP_OFF = 65536
def set_flag(e, stage):
    if opt("fwide", 0):
        n = (1 << FSH) // 8
        e("s_add_u32 %s, %s, %d\ns_mov_b64 exec, 0x%x\nv_mov_b32 %s, %s\nv_mov_b32 %s, %s\nv_lshlrev_b32 %s, 3, %s" % (s(S_TMP + 7), s(S_TAG), stage, (1 << n) - 1, v(V_PL), s(S_TMP + 7), v(V_PL + 1), s(S_TMP + 7), v(V_PL + 2), v(V_LANE)))
        e("buffer_store_dwordx2 %s, %s, %s, %s offen sc1" % (v(V_PL, 2), v(V_PL + 2), s(S_FL, 4), s(S_MYFL)))
    else:
        e("s_add_u32 %s, %s, %d\ns_mov_b64 exec, 1\nv_mov_b32 %s, %s" % (s(S_TMP + 7), s(S_TAG), stage, v(V_PL), s(S_TMP + 7)))
        e("buffer_store_dword %s, off, %s, %s sc1" % (v(V_PL), s(S_FL, 4), s(S_MYFL)))
    e("s_mov_b64 exec, -1")

def poll_load(allq, qoff=None):
    if allq and FSH > 2:
        return "v_lshlrev_b32 %s, %d, %s\n" % (v(V_DUMP), FSH + 2, v(V_LANE)) + "\n".join("buffer_load_dword %s, %s, %s, 0 offen offset:%d sc1" % (v(V_PL + i), v(V_DUMP), s(S_FL, 4), i << FSH) for i in range(4))
    if allq: return "buffer_load_dwordx4 %s, %s, %s, 0 offen sc1" % (v(V_PL, 4), v(V_L16), s(S_FL, 4))
    return "buffer_load_dword %s, %s, %s, %s offen sc1" % (v(V_PL), v(V_PL + 3), s(S_FL, 4), qoff)

def poll_spin(e, allq, qoff, stage, tag):
    e("s_mov_b32 %s, 0\ns_add_u32 %s, %s, %d" % (s(S_TMP + 7), s(S_TMP + 6), s(S_TAG), stage))
    e("SPIN_%s:" % tag)
    n = 4 if allq else 1
    for i in range(n): e("v_subrev_u32 %s, %s, %s" % (v(V_PL + i), s(S_TMP + 6), v(V_PL + i)))
    if allq: e("v_max3_u32 %s, %s, %s, %s\nv_max_u32 %s, %s, %s" % (v(V_PL), v(V_PL), v(V_PL + 1), v(V_PL + 2), v(V_PL), v(V_PL), v(V_PL + 3)))
    e("v_cmp_lt_u32 vcc, %d, %s" % (MAXST - stage, v(V_PL)))
    e("s_add_u32 %s, %s, 1" % (s(S_TMP + 7), s(S_TMP + 7)))
    e("s_cmp_eq_u64 vcc, 0\ns_cbranch_scc1 SPUN_%s" % tag)
    e("s_cmp_ge_u32 %s, 0x40000\ns_cbranch_scc1 SPUN_%s" % (s(S_TMP + 7), tag))
    e("s_sleep %d" % opt("slp", 2))
    e(poll_load(allq, qoff))
    e("s_waitcnt vmcnt(0)\ns_branch SPIN_%s" % tag)
    e("SPUN_%s:" % tag)

def zero_acc(e, heavy=True):
    for r in range(V_ACCQ, 256): e("v_mov_b32 %s, 0" % v(r))
    for r in range(A_ACCU, A_ACCU + 64): e("v_accvgpr_write_b32 %s, 0" % a(r))

NI = opt("ni", 1)

def gen_ln_loads(e):
    T = V_T; L = V_LANE
    R = V_ACCQ
    e("v_bfe_u32 %s, %s, 1, 3\nv_lshrrev_b32 %s, 4, %s\nv_and_b32 %s, 1, %s" % (v(T), v(L), v(T + 1), v(L), v(T + 2), v(L)))
    e("v_mul_u32_u24 %s, 1280, %s\nv_lshl_add_u32 %s, %s, 4, %s\nv_lshl_add_u32 %s, %s, 3, %s" % (v(T + 3), v(T), v(T + 3), v(T + 1), v(T + 3), v(T + 3), v(T + 2), v(T + 3)))
    e("s_lshl_b32 %s, %s, 5\ns_add_u32 %s, %s, %s\ns_mul_i32 %s, %s, %d\ns_mul_i32 %s, %s, 320" % (s(S_TMP), s(S_QT), s(S_TMP), s(S_TMP), s(S_HEAD), s(S_TMP), s(S_TMP), 8 * 1280, s(S_TMP + 1), s(S_WAVE)))
    e("s_waitcnt lgkmcnt(0)")
    if opt("wsb", 0): e("s_add_u32 %s, %s, %d\ns_addc_u32 %s, %s, 0" % (s(ptr(11)), s(ptr(11)), opt("wsb", 0) << 20, s(ptr(11) + 1), s(ptr(11) + 1)))
    srd(e, S_T, ptr(0), s(S_TMP), 8 * 1280)
    for i in range(5): e("buffer_load_dwordx2 %s, %s, %s, %s offen offset:%d" % (v(R + 2 * i, 2), v(T + 3), s(S_T, 4), s(S_TMP + 1), 64 * i))

def gen_ln_compute(e, nyounger, mid=()):
    T = V_T; L = V_LANE
    R = V_ACCQ; U = R + 10
    e("v_and_b32 %s, 15, %s\nv_lshlrev_b32 %s, 3, %s\nv_lshl_add_u32 %s, %s, 8, %s" % (v(T + 3), v(L), v(T + 3), v(T + 3), v(T + 3), v(T + 1), v(T + 3)))
    e("s_lshr_b32 %s, %s, 3\ns_lshl2_add_u32 %s, %s, %s\ns_mul_i32 %s, %s, %d" % (s(S_TMP), s(S_HEAD), s(S_TMP), s(S_QT), s(S_TMP), s(S_TMP), s(S_TMP), 20 * 4096))
    e("s_bfe_u32 %s, %s, 0x20001\ns_lshl_b32 %s, %s, 10\ns_add_u32 %s, %s, %s" % (s(S_TMP + 1), s(S_HEAD), s(S_TMP + 1), s(S_TMP + 1), s(S_TMP), s(S_TMP), s(S_TMP + 1)))
    e("s_and_b32 %s, %s, 1\ns_lshl_b32 %s, %s, 7\ns_add_u32 %s, %s, %s\ns_add_u32 %s, %s, %d" % (s(S_TMP + 1), s(S_HEAD), s(S_TMP + 1), s(S_TMP + 1), s(S_TMP), s(S_TMP), s(S_TMP + 1), s(S_TMP), s(S_TMP), XF_OFF))
    srd(e, S_LN, ptr(11), s(S_TMP), 20 * 4096)
    e("s_mul_i32 %s, %s, %d" % (s(S_TMP), s(S_WAVE), 5 * 4096))
    e("v_lshlrev_b32 %s, 5, %s\nv_add_u32 %s, %d, %s\ns_lshl_b32 %s, %s, 3\nv_add_u32 %s, %s, %s" % (v(T + 4), v(T), v(T + 4), L_MISC, v(T + 4), s(S_TMP + 1), s(S_WAVE), v(T + 5), s(S_TMP + 1), v(T + 4)))
    A0 = T + 6; M = T + 8
    e("s_waitcnt vmcnt(%d)" % nyounger)
    stamp(e, 17)
    e.ext(list(mid))
    for d in range(10): e("v_lshlrev_b32 %s, 16, %s\nv_and_b32 %s, 0xffff0000, %s" % (v(U + 2 * d), v(R + d), v(U + 2 * d + 1), v(R + d)))
    e("v_pk_add_f32 %s, %s, %s\nv_pk_add_f32 %s, %s, %s" % (v(A0, 2), v(U, 2), v(U + 2, 2), v(M, 2), v(U + 4, 2), v(U + 6, 2)))
    for d in range(4, 10): e("v_pk_add_f32 %s, %s, %s" % (v((A0, M)[d & 1], 2), v((A0, M)[d & 1], 2), v(U + 2 * d, 2)))
    def reduce(dst):
        e("v_pk_add_f32 %s, %s, %s" % (v(A0, 2), v(A0, 2), v(M, 2) if dst == M else v(T + 10, 2)))
        e("v_add_f32 %s, %s, %s\ns_nop 1" % (v(A0), v(A0), v(A0 + 1)))
        e("v_add_f32_dpp %s, %s, %s quad_perm:[1,0,3,2] row_mask:0xf bank_mask:0xf" % (v(A0), v(A0), v(A0)))
        for sw in ("v_permlane32_swap_b32", "v_permlane16_swap_b32"):
            e("v_mov_b32 %s, %s\ns_nop 1\n%s %s, %s\nv_add_f32 %s, %s, %s" % (v(A0 + 1), v(A0), sw, v(A0), v(A0 + 1), v(A0), v(A0), v(A0 + 1)))
    reduce(M)
    e("v_mul_f32 %s, %s, %s\nv_mul_f32 %s, %s, %s" % (v(M), f2u(-1.0 / 160), v(A0), v(M + 1), f2u(-1.0 / 160), v(A0)))
    for d in range(10): e("v_pk_add_f32 %s, %s, %s" % (v(U + 2 * d, 2), v(U + 2 * d, 2), v(M, 2)))
    e("v_pk_mul_f32 %s, %s, %s\nv_pk_mul_f32 %s, %s, %s" % (v(A0, 2), v(U, 2), v(U, 2), v(T + 10, 2), v(U + 2, 2), v(U + 2, 2)))
    for d in range(2, 10): e("v_pk_fma_f32 %s, %s, %s, %s" % (v((A0, T + 10)[d & 1], 2), v(U + 2 * d, 2), v(U + 2 * d, 2), v((A0, T + 10)[d & 1], 2)))
    reduce(None)
    e("v_mov_b32 %s, %s" % (v(M + 1), v(A0)))
    e("ds_write_b64 %s, %s\ns_waitcnt lgkmcnt(0)\ns_barrier" % (v(T + 5), v(M, 2)))
    X = T + 12
    e("ds_read_b128 %s, %s\nds_read_b128 %s, %s offset:16\ns_waitcnt lgkmcnt(0)" % (v(X, 4), v(T + 4), v(X + 4, 4), v(T + 4)))
    e("v_pk_add_f32 %s, %s, %s\nv_pk_add_f32 %s, %s, %s\nv_pk_add_f32 %s, %s, %s" % (v(A0, 2), v(X, 2), v(X + 2, 2), v(T + 10, 2), v(X + 4, 2), v(X + 6, 2), v(A0, 2), v(A0, 2), v(T + 10, 2)))
    e("v_mul_f32 %s, 0.25, %s" % (v(A0), v(A0)) if False else "v_mul_f32 %s, %s, %s" % (v(A0), f2u(0.25), v(A0)))
    for k in range(4): e("v_sub_f32 %s, %s, %s" % (v(X + 2 * k), v(X + 2 * k), v(A0)))
    e("v_mul_f32 %s, %s, %s" % (v(X + 1), v(X), v(X)))
    for k in range(1, 4): e("v_fmac_f32 %s, %s, %s" % (v(X + 1), v(X + 2 * k), v(X + 2 * k)))
    e("v_fmac_f32 %s, %s, %s" % (v(A0 + 1), f2u(160.0), v(X + 1)))
    e("v_mov_b32 %s, %s\nv_fmac_f32 %s, %s, %s\nv_rsq_f32 %s, %s" % (v(X), f2u(1e-5 * DSC), v(X), f2u(DSC / 640), v(A0 + 1), v(X), v(X)))
    e("v_sub_f32 %s, %s, %s" % (v(M), v(A0), v(M)))
    e("v_mov_b32 %s, %s\nv_mul_f32 %s, %s, %s\nv_mul_f32 %s, %s, %s" % (v(X + 1), v(X), v(M + 1), v(M), v(X), v(M), v(M), v(X)))
    for i in range(5):
        for d in (2 * i, 2 * i + 1): e("v_pk_fma_f32 %s, %s, %s, %s" % (v(U + 2 * d, 2), v(U + 2 * d, 2), v(X, 2), v(M, 2)))
        for d in (2 * i, 2 * i + 1): e("v_cvt_pk_bf16_f32 %s, %s, %s" % (v(R + d), v(U + 2 * d), v(U + 2 * d + 1)))
        e("buffer_store_dwordx2 %s, %s, %s, %s offen%s" % (v(R + 2 * i, 2), v(T + 3), s(S_LN, 4), s(S_TMP), STFL))
        if i < 4: e("s_add_u32 %s, %s, 4096" % (s(S_TMP), s(S_TMP)))

def w_slab(e, sl, heavy):
    e("s_add_u32 m0, %s, %d\ns_nop 0" % (s(S_M0W), wslot(sl) * 16384))
    e.ext(w_dma(heavy, "w%d" % sl))
    e("s_add_u32 %s, %s, %d\ns_add_u32 %s, %s, %d" % (s(S_WQOFF), s(S_WQOFF), 32 * 8192, s(S_WGOFF), s(S_WGOFF), 32 * 3456))

def ones_ops(tmp):
    L = V_LANE
    return ["v_lshrrev_b32 %s, 4, %s" % (v(tmp), v(L)), "v_xor_b32 %s, %s, %s" % (v(tmp), v(tmp), v(L)), "v_bfe_u32 %s, %s, 1, 1" % (v(tmp), v(tmp)),
            "v_subrev_u32 %s, 1, %s" % (v(tmp), v(tmp)), "v_and_b32 %s, 0x3f803f80, %s" % (v(tmp), v(tmp))] + \
           ["v_mov_b32 %s, %s" % (v(V_ONE + r), v(tmp)) for r in range(4)] + \
           ["v_and_b32 %s, 1, %s" % (v(V_SIDX), v(L)), "v_mul_u32_u24 %s, 0xaaaa, %s" % (v(V_SIDX), v(V_SIDX)), "v_or_b32 %s, 0x4444, %s" % (v(V_SIDX), v(V_SIDX))]

NV01 = []
def gen_proj(e0, heavy, tag):
    e = E()
    T = V_T; L = V_LANE
    NS = opt("ns", 4) if heavy else 0
    GU = [b for fb in range(4) for b in (12 + fb, 8 + fb)]
    PC0 = opt("pc0", 2) if heavy else opt("lpc0", 20)
    def grp(lo, hi):
        out = []; sl = lo
        while sl < hi:
            if sl >= PC0 and sl + 1 < hi: out.append((sl, sl + 1)); sl += 2
            else: out.append((sl,)); sl += 1
        return out
    units = []
    for ss in grp(0, 20 - NS): units.append((ss, list(range(8)) + (GU if heavy else [])))
    for part in {0: (GU,), 1: (GU[:4], GU[4:]), 2: (GU[:2], GU[2:4], GU[4:6], GU[6:])}[opt("split", 2)]:
        for ss in grp(20 - NS, 20): units.append((ss, part))
    for ss in grp(20 - NS, 20): units.append((ss, list(range(8))))
    order = []; mf = []; firstuse = []
    for ss, bl in units:
        for b in bl:
            F0 = len(order)
            for sl in ss: order.append((sl, b)); firstuse.append(4 * F0)
            for qb in (range(4) if (not opt("psn", 1) or (F0 // len(ss)) % 2 == 0) else range(3, -1, -1)):
                idx = list(range(len(ss)))
                if qb & 1: idx.reverse()
                for i in idx:
                    sl = ss[i]
                    c = "0" if (0 in ss and i == idx[0]) else accreg(b, qb)
                    mf.append("%s %s, %s, %s, %s" % (MF, accreg(b, qb), a(A_W + 4 * ((F0 + i) % 8), 4), a(A_X + ((sl % XD) * 4 + qb) * 4, 4), c))
    NF = len(order)
    NP = len(mf)
    for sl in range(4):
        for kb in range(2):
            for qb in range(4):
                d = v(Sreg(0, qb, kb), 4)
                mf.append("%s %s, %s, %s, %s" % (MF, d, a(A_KF + (kb * 4 + sl) * 4, 4), v(V_Q + (sl * 4 + qb) * 4, 4), d if sl else "0"))
    G = Gaps(mf)
    ustart = []; n = 0
    for ss, bl in units: ustart.append(n); n += len(bl) * len(ss)
    lastF = {}; lastblk = {}; firstF = {}
    for u, (ss, bl) in enumerate(units):
        for k, sl in enumerate(ss):
            lastF[sl] = ustart[u] + len(bl) * len(ss) - 1
            firstF.setdefault(sl, ustart[u] + k * len(bl))
        for i, b in enumerate(bl): lastblk[b] = ustart[u] + (i + 1) * len(ss) - 1
    G1 = lambda sl: 4 * firstF[sl]
    DA = opt("pda", 6)
    rd = lambda F, j: w_read(A_W + 4 * (F % 8), order[F][1], j, wslot(order[F][0]) * 16384)
    pre_reads = [rd(F, j) for F in range(DA) for j in range(2)]
    TRW = opt("trw", 15) if heavy else 14
    bars = {}; cur = 0; seen = set(units[0][0])
    def barrier(u, lo, need):
        bb = G.place("b", "s_barrier", lo)
        G.put(bb, "s", "s_waitcnt WAITVM{%s}" % ",".join(need))
        bars[u] = bb
        return bb + 1
    for F in range(DA, NF):
        lo = 4 * (F - DA)
        if F in ustart:
            u = ustart.index(F)
            need = [k + str(sl) for sl in units[u][0] if sl not in seen for k in "xw"]
            seen |= set(units[u][0])
            if need or units[u][1][0] == 0: cur = barrier(u, max(cur, lo - 1), need or ["none"])
        if (opt("midb", 0) or F - DA - 1 == ustart[-1]) and (F - DA - 1) in ustart and len(units[ustart.index(F - DA - 1)][0]) == 2 and units[ustart.index(F - DA - 1)][1][0] == 0:
            cur = barrier(1000 + F, max(cur, lo - 1), ["none"])
        for j in range(2): cur = G.place("d", rd(F, j), max(cur, lo + 2 * j), firstuse[F] - 6) + 1
    NU = len(units)
    cur = barrier(NU, cur + 1, ["K0", "K1"])
    kord = [(kb, sl) for sl in range(4) for kb in range(2)]
    for kb, sl in kord: cur = G.place("d", k_read(kb, sl, 0), cur) + 1
    barrier(NU + 1, max(cur + 5, NP), ["none"])
    kpost = []
    for i, (kb, sl) in enumerate(kord):
        lo = NP + 4 * i + 3
        try: cur = G.place("d", k_read(kb, sl, 8192), max(cur, lo)) + 1
        except RuntimeError: kpost.append(k_read(kb, sl, 8192))
    freeg = lambda sl: min(x for x in bars.values() if x >= 4 * lastF[sl])
    def wseq(sl):
        return [("s", "s_add_u32 m0, %s, %d" % (s(S_M0W), wslot(sl) * 16384))] + [("m", x) for x in w_dma(heavy, "w%d" % sl)] + \
               [("s", "s_add_u32 %s, %s, %d\ns_add_u32 %s, %s, %d" % (s(S_WQOFF), s(S_WQOFF), 32 * 8192, s(S_WGOFF), s(S_WGOFF), 32 * 3456))]
    def xseq(sl): return [("m", x_load(sl, qb)) for qb in range(4)] + [("s", "s_add_u32 %s, %s, 4096" % (s(S_XOFF), s(S_XOFF)))]
    def kvseq(which, i):
        return [("s", "s_add_u32 m0, %s, %d\ns_mov_b32 %s, %d" % (s(S_M0K), (L_K if which == "K" else L_V) + i * 8192, s(S_KVOFF), (i + (VSH if which == "V" else 0)) * 8192))] + \
               [("m", kv_dma(which, k, "%s%d" % (which, i))) for k in range(2)]
    NX0 = opt("nx0", 2)
    e("s_mov_b32 %s, 0" % s(S_XOFF))
    q = []
    for sl in range(20):
        for kind in "wx":
            if kind == "w" and sl < NI: continue
            seq = wseq(sl) if kind == "w" else xseq(sl)
            if sl < NX0:
                for k, x in seq: e(x + ("\ns_nop 0" if " m0," in x else ""))
            else:
                lo = 0 if sl < RW else (freeg(sl - RW) if kind == "w" else 4 * lastF[sl - XD] + 3)
                q.append((lo, seq))
    late = {12: [("K", 0), ("K", 1)], 13: [("K", 2), ("K", 3)], 14: [("K", 4), ("K", 5)], 15: [("K", 6), ("K", 7)],
            16: [("V", 0), ("V", 1)], 17: [("V", 2), ("V", 3)], 18: [("V", 4)]}
    side = []
    for sl in range(12, 19):
        for which, i in late[sl]: side.append((freeg(sl), kvseq(which, i)))
    WT = opt("wt", 6)
    if WT:
        for k, sl in enumerate([int(x) for x in opt("wts", "0.4.8").split(".")], 1):
            seq = [("s", "s_mov_b32 %s, %d" % (s(S_TMP), k * WT * 32 * 8192)), ("m", "buffer_load_dword %s, %s, %s, %s offen" % (v(V_DUMP), v(V_TC + 1), s(S_WQ, 4), s(S_TMP)))]
            if heavy:
                seq += [("s", "s_mov_b32 %s, %d" % (s(S_TMP), k * WT * 32 * 3456)),
                        ("m", "buffer_load_dword %s, %s, %s, %s offen offset:2048" % (v(V_DUMP), v(V_TC), s(S_WG, 4), s(S_TMP))),
                        ("m", "buffer_load_dword %s, %s, %s, %s offen offset:3072" % (v(V_DUMP), v(V_TC), s(S_WU, 4), s(S_TMP)))]
            side.append((G1(sl) + opt("wtg", 30), seq))
    t0 = v(V_TRA + 3)
    if opt("kvt", 12): side.append((G1(opt("kvt", 12)), [("v", "v_min_u32 %s, 15, %s" % (t0, v(L))), ("v", "v_lshlrev_b32 %s, 7, %s" % (t0, t0)),
               ("s", "s_lshl2_add_u32 %s, %s, %s\ns_lshl_b32 %s, %s, 11" % (s(S_TMP), s(S_QT), s(S_WAVE), s(S_TMP), s(S_TMP))),
               ("m", "buffer_load_dword %s, %s, %s, %s offen" % (v(V_DUMP), t0, s(S_K, 4), s(S_TMP))),
               ("s", "s_add_u32 %s, %s, %d" % (s(S_TMP), s(S_TMP), VSH * 8192)),
               ("m", "buffer_load_dword %s, %s, %s, %s offen" % (v(V_DUMP), t0, s(S_V, 4), s(S_TMP)))]))
    side.sort(key=lambda t: t[0])
    MG = opt("pmg", 5) if heavy else opt("lmg", 2)
    g = 0; lastm = -9; vpost = []
    trlast = 0; lastload = 0
    while q or side:
        if side and (not q or side[0][0] <= max(g, q[0][0])): lo, seq = side.pop(0)
        else: lo, seq = q.pop(0)
        g = max(g, lo)
        for k, x in seq:
            if not vpost:
                try:
                    g = G.place(k, x, max(g + 1, lastm + (MG if g > opt("pmg0", 150) or not heavy else 4) if k == "m" else 0))
                    if k == "m": lastm = g
                    if re.search(r";#[xw]\d|;#trs", x) or "v%d," % V_DUMP in x: lastload = g
                    continue
                except RuntimeError: pass
            vpost.append(x + ("\ns_nop 0" if " m0," in x else ""))
    zlim = 4 * lastF[19 - max(NS, 1)] + 4 if opt("zds", 1) else 10 ** 9
    g = 0
    for sl in range(20 - XD, 20):
        lo = 4 * lastF[sl] + 4
        if lo <= zlim: continue
        for i in range(4):
            x = "ds_read_b128 %s, %s" % (a(A_X + 16 * (sl % XD) + 4 * i, 4), v(V_ZA))
            try: g = G.place("d", x, max(g, lo)) + 2
            except RuntimeError: kpost.append(x)
    auto_lgkm(G, eager=opt("peag", 8))
    g = lastload + 2
    for x in gen_tail_setup():
        g = G.place("v" if x.startswith("v_") else "s", x, g + 1)
    setup_end = g
    g = max(g, trlast)
    for x in gen_tail_setup2(): g = G.place("v" if x.startswith("v_") else "s", x, g + 1)
    HZ = 8
    post = []
    def lay(items):
        g = 0; out = []
        for lo, k, x, hi in items:
            if not out:
                try:
                    g = G.place(k, x, max(g + (0 if k == "v" else 1), lo), hi, force=(hi is not None)); continue
                except RuntimeError: pass
            assert hi is None
            out.append(x)
        return out
    its = []
    for sl in range(4):
        for qb in range(4):
            d0 = V_Q + (sl * 4 + qb) * 4
            lo = 4 * lastblk[2 * sl + 1] + 3 + HZ
            hi = NP - 3 if sl < 2 else NP + 8 * sl - 3
            for b in range(2):
                g0 = qacc(2 * sl + b, qb)
                for h in range(2): its.append((min(lo, hi), "v", "v_cvt_pk_bf16_f32 %s, %s, %s" % (v(d0 + 2 * b + h), v(g0 + 2 * h), v(g0 + 2 * h + 1)), hi))
    assert not lay(its)
    its = []
    if heavy:
        U = T
        for fb in range(4):
            for qb in range(4):
                g0 = V_ACCG + (fb * 4 + qb) * 4
                lo = 4 * lastblk[8 + fb] + 3 + HZ
                for r in range(4): its.append((lo, "v", "v_accvgpr_read_b32 %s, %s" % (v(U + r), a(A_ACCU + (fb * 4 + qb) * 4 + r)), None))
                for r in range(4): its.append((lo, "v", "v_max_f32 %s, 0, %s" % (v(g0 + r), v(g0 + r)), None))
                for r in range(4): its.append((lo, "v", "v_mul_f32 %s, %s, %s" % (v(g0 + r), v(g0 + r), v(U + r)), None))
                d0 = V_ACCG + ((fb & ~1) * 4 + qb) * 4 + 2 * (fb & 1)
                for h in range(2): its.append((lo, "v", "v_cvt_pk_bf16_f32 %s, %s, %s" % (v(d0 + h), v(g0 + 2 * h), v(g0 + 2 * h + 1)), None))
                if fb & 1:
                    if qb == 0: its.append((lo, "s", "s_lshl_b32 %s, %s, 13\ns_add_u32 %s, %s, %d" % (s(S_TMP + 6), s(S_FS), s(S_TMP + 6), s(S_TMP + 6), (128 + (fb >> 1)) * 4096), None))
                    its.append((lo, "m", "buffer_store_dwordx4 %s, %s, %s, %s offen offset:%d%s" % (v(d0 - 2, 4), v(V_L16), s(S_AF, 4), s(S_TMP + 6), 1024 * qb, STFL), None))
    post += lay(its)
    its = [(300, "v", x, None) for x in ones_ops(V_TRA + 2)]
    zs = []
    for k in range(XD):
        sl = max(x for x in range(20) if x % XD == k)
        zs.append((4 * lastF[sl] + 4, range(A_X + 16 * k, A_X + 16 * k + 16)))
    for lo, rr in sorted(zs, key=lambda t: t[0]):
        if lo > zlim: break
        for r in rr: its.append((lo, "v", "v_accvgpr_write_b32 %s, 0" % a(r), None))
    post += lay(its)
    if VERBOSE: print("proj", tag, G.pattern(), "| post", len(post), len(vpost), len(kpost))
    e.ext(pre_reads)
    e("s_waitcnt WAITVM{x%d} lgkmcnt(0)" % max(units[0][0]))
    stamp(e, 3)
    nm = 0
    for x in G.lines():
        if x.startswith("v_mfma"):
            if STAMPS and nm % (NP // 5) == 0 and 0 < nm < NP: stamp(e, 18 + nm // (NP // 5))
            if nm == NP: stamp(e, 4)
            nm += 1
        e(x)
    for x in kpost + vpost + post: e(x)
    e("s_mov_b32 %s, %d" % (s(S_KVOFF), 8 * 8192))
    e("s_nop 1")
    for r in range(8): e("v_mov_b32 %s, 0" % v(V_L + r))
    for qb in range(4): e("v_mov_b32 %s, 0xff800000" % v(V_NEGM + 4 * qb))
    e("s_waitcnt WAITVM{K2,K3}")
    e("s_waitcnt WAITVM{V0,V1,K4,K5}")
    r = resolve_vm(e.L)
    NV01.append(int(re.search(r"vmcnt\((\d+)\)", r.pop()).group(1)))
    e0.ext(r)

def kv_preload(e):
    e("s_mov_b32 %s, 0" % s(S_KVOFF))
    for i in range(9):
        if i < 8:
            e("s_add_u32 m0, %s, %d\ns_nop 0" % (s(S_M0K), L_K + i * 8192))
            e(kv_dma("K", 0)); e(kv_dma("K", 1))
        if i >= VSH:
            e("s_add_u32 m0, %s, %d\ns_nop 0" % (s(S_M0K), L_V + (i - VSH) * 8192))
            e(kv_dma("V", 0)); e(kv_dma("V", 1))
        if i < 8: e("s_add_u32 %s, %s, 8192" % (s(S_KVOFF), s(S_KVOFF)))
    e("s_waitcnt vmcnt(0)")

def Sreg(buf, qb, kb): return V_S + buf * 32 + qb * 8 + kb * 4
def Preg(buf, qb): return V_P + buf * 16 + qb * 4

def qk_mfmas(buf, czero=False, full=False):
    out = []
    if opt("qko", "snake") == "qks" and not czero and full:
        for qb in range(4):
            for i in range(2):
                kb = i if qb % 2 == 0 else 1 - i
                d = v(Sreg(buf, qb, kb), 4)
                for n, sl in enumerate(range(4) if i == 0 else range(3, -1, -1)):
                    out.append("%s %s, %s, %s, %s" % (MF, d, a(A_KF + (kb * 4 + sl) * 4, 4), v(V_Q + (sl * 4 + qb) * 4, 4), d if n else v(V_NEGM + 4 * qb, 4)))
        return out
    order = {"qks": [(kb, qb, sl) for kb in range(2) for qb in range(4) for sl in range(4)], "kqs": [(kb, qb, sl) for kb in range(2) for qb in range(4) for sl in range(4)],
             "ksq": [(kb, qb, sl) for kb in range(2) for sl in range(4) for qb in range(4)],
             "snake": [(kb, qb, sl) for kb in range(2) for qb in range(4) for sl in range(4)]}[opt("qko", "snake")]
    for kb, qb, sl0 in order:
                sl = sl0
                d = v(Sreg(buf, qb, kb), 4)
                if opt("qko", "snake") == "snake":
                    first = sl0 == 0
                    sl = sl0 if qb % 2 == 0 else 3 - sl0
                    c = ("0" if czero else v(V_NEGM + 4 * qb, 4)) if first else d
                    out.append("%s %s, %s, %s, %s" % (MF, d, a(A_KF + (kb * 4 + sl) * 4, 4), v(V_Q + (sl * 4 + qb) * 4, 4), c))
                    continue
                c = d if sl else ("0" if czero else v(V_NEGM + 4 * qb, 4))
                out.append("%s %s, %s, %s, %s" % (MF, d, a(A_KF + (kb * 4 + sl) * 4, 4), v(V_Q + (sl * 4 + qb) * 4, 4), c))
    return out

def pv_mfmas(buf, tailmode=False):
    out = []
    for h in range(2):
        out.append("v_smfmac_f32_16x16x64_bf16 %s, %s, %s, %s" % (v(V_L + 4 * h, 4), v(V_ONE, 4), v(Preg(buf, 2 * h), 8), v(V_SIDX)))
    pvo = opt("pvo", "qd2s")
    if pvo == "fake" and not tailmode:
        for h in range(4):
            for i in range(4):
                qb = i if h % 2 == 0 else 3 - i
                o = a(A_O + ((2 * h + buf) * 4 + qb) * 4, 4)
                for d in ((0, 1) if i % 2 == 0 else (1, 0)):
                    out.append("%s %s, %s, %s, %s" % (MF, o, a(A_VF + (2 * h + d) * 4, 4), v(Preg(buf, (qb + 2 * d) % 4), 4), o))
        return out
    if pvo == "fake": pvo = "dq"
    order = {"dq": [(db, qb) for db in range(8) for qb in range(4)],
             "snake": [(db, qb if db % 2 == 0 else 3 - qb) for db in range(8) for qb in range(4)],
             "qd2s": [(2 * h + (d if (i & 1) == 0 else 1 - d), i if h % 2 == 0 else 3 - i) for h in range(4) for i in range(4) for d in range(2)],
             "qd2": [(2 * h + d, qb) for h in range(4) for qb in range(4) for d in range(2)],
             "qd4": [(4 * h + d, qb) for h in range(2) for qb in range(4) for d in range(4)]}[pvo if not tailmode else "dq"]
    for db, qb in order:
            o = a(A_O + (db * 4 + qb) * 4, 4)
            out.append("%s %s, %s, %s, %s" % (MF, o, a(A_VF + db * 4, 4), v(Preg(buf, qb), 4), o))
    return out

def k_read(kb, sl, off, t=0): return "ds_read_b128 %s, %s offset:%d" % (a((A_KF, A_KF1)[t] + (kb * 4 + sl) * 4, 4), v(V_KA + sl), off + kb * 4096)
def v_read(db, j, t): return "ds_read_b64_tr_b16 %s, %s offset:%d" % (a(A_VF + 32 * t + db * 4 + 2 * j, 2), v(V_VA + db), 8192 * t + j * 4096)

def softmax_ops(buf):
    ex = []; cv = []
    for qb in range(4):
        for kb in range(2):
            for r in range(4):
                x = v(Sreg(buf, qb, kb) + r)
                ex.append("v_exp_f32 %s, %s" % (x, x))
            for h in range(2):
                b = Sreg(buf, qb, kb) + 2 * h
                cv.append("v_cvt_pk_bf16_f32 %s, %s, %s" % (v(Preg(buf, qb) + kb * 2 + h), v(b), v(b + 1)))
    return ex, cv

def gen_attention(e):
    T = V_T
    e("ATT_START:")
    stamp(e, 5)
    e("s_barrier")
    for qb in range(4):
        b = Sreg(0, qb, 0)
        e("v_max3_f32 %s, %s, %s, %s" % (v(T + 2 * qb), v(b), v(b + 1), v(b + 2)))
    for qb in range(4):
        b = Sreg(0, qb, 0)
        e("v_max3_f32 %s, %s, %s, %s" % (v(T + 2 * qb), v(T + 2 * qb), v(b + 3), v(V_NEGM + 4 * qb)))
    for n, sw in enumerate(("v_permlane32_swap_b32", "v_permlane16_swap_b32")):
        for qb in range(4): e("v_mov_b32 %s, %s" % (v(T + 2 * qb + 1), v(T + 2 * qb)))
        e("s_nop 0")
        for qb in range(4): e("%s %s, %s" % (sw, v(T + 2 * qb), v(T + 2 * qb + 1)))
        for qb in range(4):
            if n == 0: e("v_max_f32 %s, %s, %s" % (v(T + 2 * qb), v(T + 2 * qb), v(T + 2 * qb + 1)))
            else:
                for r in range(4): e("v_min_f32 %s, -%s, -%s" % (v(V_NEGM + 4 * qb + r), v(T + 2 * qb), v(T + 2 * qb + 1)))
    for qb in range(4):
        for r in range(0, 8, 2): e("v_pk_add_f32 %s, %s, %s" % (v(Sreg(0, qb, 0) + r, 2), v(Sreg(0, qb, 0) + r, 2), v(V_NEGM + 4 * qb, 2)))
    e("s_waitcnt lgkmcnt(0)")

    exE, cvE = softmax_ops(0); exO, cvO = softmax_ops(1)
    smf = lambda t, h: "v_smfmac_f32_16x16x64_bf16 %s, %s, %s, %s" % (v(V_L + 4 * h, 4), v(V_ONE, 4), v(Preg(t, 2 * h), 8), v(V_SIDX))
    def pvm(db, qb, t):
        o = a(A_O + (db * 4 + qb) * 4, 4)
        return "%s %s, %s, %s, %s" % (MF, o, a(A_VF + 32 * t + db * 4, 4), v(Preg(t, qb), 4), o)
    G = Gaps(qk_mfmas(1))
    for i in range(8): G.put(1 + 2 * i, "d", k_read(i // 4, i % 4, 24576, 1))
    for i in range(4): G.put(17 + 2 * i, "d", k_read(0, i, 16384))
    for i in range(4): G.put(31, "d", k_read(1, i, 16384))
    for i, x in enumerate(exE): G.put(i, "e", x)
    for i, x in enumerate(cvE[:4]): G.put(24 + 2 * i, "v", x)
    e.ext(G.lines())
    e.ext(exO[:NOE])
    for sl in range(4): e("v_add_u32 %s, 32768, %s" % (v(V_KA + sl), v(V_KA + sl)))
    e("s_mov_b32 %s, 16384" % s(S_TOG))
    e("s_mov_b32 %s, %d\ns_mov_b32 %s, %d" % (s(S_TMP + 3), 2 * 8192, s(S_TMP + 4), 6 * 8192 + L_V))
    e("s_waitcnt vmcnt(NVWAIT) lgkmcnt(0)\ns_barrier")
    for which, m0, inc in (("K", L_K, 1), ("K", L_K + 8192, 0), ("V", L_V + 5 * 8192, 1)):
        e("s_add_u32 m0, %s, %d\ns_nop 0" % (s(S_M0K), m0))
        e(kv_dma(which, 0)); e(kv_dma(which, 1))
        if inc: e("s_add_u32 %s, %s, 8192" % (s(S_KVOFF), s(S_KVOFF)))
    e("s_mov_b32 %s, %d\ns_cmp_eq_u32 %s, 0\ns_cselect_b32 %s, %d, %s" % (s(S_EVT), EV(27), s(S_WAVE), s(S_EVT), EVT0, s(S_EVT)))
    stamp(e, 6)
    e("s_cmp_lg_u32 %s, 0\ns_cbranch_scc1 NOSIG2" % s(S_RETRY))
    e("s_cmp_ge_u32 %s, 27\ns_cbranch_scc1 LT_INIT" % s(S_FS))
    e("NOSIG2:")
    mf = []
    for t in range(2):
        for qb in range(4):
            for i in range(2):
                kb = i if qb % 2 == 0 else 1 - i
                d = v(Sreg(t, qb, kb), 4)
                for n, sl in enumerate(range(4) if i == 0 else range(3, -1, -1)):
                    mf.append("%s %s, %s, %s, %s" % (MF, d, a((A_KF, A_KF1)[t] + (kb * 4 + sl) * 4, 4), v(V_Q + (sl * 4 + qb) * 4, 4), d if n else v(V_NEGM + 4 * qb, 4)))
    mf += [smf(0, 0), smf(1, 0), smf(1, 1), smf(0, 1)]
    H2 = 68
    for db in range(8):
        for i in range(4):
            qb = 3 - i if db % 2 == 0 else i
            for t in ((0, 1) if i % 2 == 0 else (1, 0)): mf.append(pvm(db, qb, t))
    G = Gaps(mf); end = G.n() - 1
    G.put(1, "b", "s_barrier"); G.put(0, "s", "s_waitcnt vmcnt(16) lgkmcnt(0)")
    NV1 = opt("nv1", 22)
    vrd = [(db, j, t) for db in range(8) for t in range(2) for j in range(2)]
    vg = {}
    eg = {}
    for i in range(NOE, 32): eg[i] = G.put(2 * (i - NOE), "e", exO[i])
    vvg = [int(x) for x in opt("vvg", "3.7.11.15.55").split(".")]
    dgs = [g for g in range(3, 64, 2) if g not in vvg]
    for i in range(NV1):
        db, j, t = vrd[i]; vg[db] = G.put(dgs[i], "d", v_read(db, j, t))
    rd2 = [("v",) + x for x in vrd[NV1:]] + [("k", kb, sl, 0) for kb in range(2) for sl in range(4)] + [("k", kb, sl, 1) for kb in range(2) for sl in range(4)]
    g = 64; kg = {}
    for i, x in enumerate(rd2):
        if x[0] == "v": g = G.place("d", v_read(*x[1:]), g, H2 + 8 * x[1] - 6); vg[x[1]] = g
        else: g = G.place("d", k_read(x[1], x[2], 8192 * x[3], x[3]), g); kg[x[2]] = g
        g += 1 if i < 4 else 2
    def adv(r, base):
        return ["s_add_u32 %s, %s, 8192" % (s(r), s(r)), "s_and_b32 %s, %s, 0xffff" % (s(r), s(r))] + (["s_or_b32 %s, %s, %d" % (s(r), s(r), base)] if base else [])
    last = 0
    for g in (opt("dg1", 54), opt("dg2", 76)):
        for which, r in (("K", S_TMP + 3), ("V", S_TMP + 4)):
            g = G.place("s", "s_add_u32 m0, %s, %s" % (s(S_M0K), s(r)), g)
            for i in range(2): g = G.place("m", kv_dma(which, i), g + opt("dsp", 2))
            g += 1
        for x in ["s_add_u32 %s, %s, 8192" % (s(S_KVOFF), s(S_KVOFF))] + adv(S_TMP + 3, 0) + adv(S_TMP + 4, L_V): g = G.place("s", x, g) + 1
        last = g
    items = [(0, 8 * (i // 4) - 1, cvE[i]) for i in range(4, 16)] + [(eg.get(2 * i + 1, -1) + 1, 32 + 8 * (i // 4) - 1, cvO[i]) for i in range(16)]
    for lo, hi, x in sorted(items, key=lambda t: t[1]): G.place("v", x, lo, hi)
    for i in range(4): G.place("v", cvE[i], end - 5 + opt("c0g", 2))
    g = 56
    xg = 0
    for db in range(8):
        y = max(vg[db], 64)
        while not (G.ds[y] and G.fits(y, "v")): y += 1
        xg = max(xg, G.put(y, "v", "v_xor_b32 %s, %s, %s" % (v(V_VA + db), s(S_TOG), v(V_VA + db))))
    for sl in range(4): xg = max(xg, G.place("v", "v_xor_b32 %s, %s, %s" % (v(V_KA + sl), s(S_TOG), v(V_KA + sl)), kg[sl]))
    for i, x in enumerate(exE + exO[:NOE]): g = G.place("e", x, g, end - 6 if i < 8 else end)
    g = G.place("s", "s_xor_b32 %s, %s, 32768" % (s(S_TOG), s(S_TOG)), xg + 1)
    G.place("s", "s_cmp_lt_u32 %s, %s" % (s(S_KVOFF), s(S_EVT)), max(g, last) + 1)
    auto_lgkm(G, [], loop=True, eager=opt("leag", 8))
    if VERBOSE: print("loop", G.pattern())
    e(".p2align 6\nATT_LOOP:")
    for x in G.lines(): e(x)
    e("s_cbranch_scc1 ATT_LOOP")
    e("s_cmp_lt_u32 %s, %d\ns_cbranch_scc1 ATT_EVT" % (s(S_KVOFF), EVTE))
    e("TAILC0:")
    global LIGHT_LOOP
    LIGHT_LOOP = light_loop(G)
    stamp(e, 7)
    e("s_waitcnt vmcnt(16) lgkmcnt(0)\ns_barrier")
    e("s_cmp_lg_u32 %s, 0\ns_cbranch_scc1 NOPOLLW" % s(S_WAVE))
    e(poll_load(True))
    e("NOPOLLW:")
    vr = [v_read(db, j, 0) for db in range(8) for j in range(2)]
    e.ext(vr)
    e.ext(cvE[4:])
    e("s_nop 0")
    h = E()
    sn2 = lambda q0: [(db, q0 + (i if db % 2 == 0 else 1 - i)) for db in range(8) for i in range(2)]
    mf = [smf(0, 0)] + [pvm(db, qb, 0) for db, qb in sn2(0)] + [smf(0, 1), smf(1, 0)] + [pvm(db, qb, 1) for db, qb in sn2(0)]
    P3 = len(mf)
    mf += [smf(1, 1)]
    for n, (db, qb) in enumerate(sn2(2)):
        for t in ((0, 1) if n % 2 == 0 else (1, 0)): mf.append(pvm(db, qb, t))
    G = Gaps(mf)
    for i in range(16): G.put(i, "d", v_read(i // 2, i % 2, 1))
    for i in range(NOE, 16): G.put(i - NOE + 1, "e", exO[i])
    for i in range(8): G.put(max(2 * i + 3 - NOE, 0) + 1, "v", cvO[i])
    for i in range(16, 32): G.put(i, "e", exO[i])
    for i in range(8, 16): G.put(min(2 * i + 2, P3 - 3), "v", cvO[i])
    pq = [x for sg in range(NPRE_X) for x in t8_a(sg)]
    assert NPRE_X <= 3
    G.put(P3 - 8, "s", "s_waitcnt lgkmcnt(0)\ns_barrier")
    pre, pend = auto_lgkm(G, [asmcheck.I(x, 0, 0).W for x in vr])
    g = 1
    while pq:
        k, x = pq.pop(0)
        if k == "s": G.sc[g].append(x); g += 1
        else: G.va[g].append(x); g += opt("x63", 2) if len(pq) % 3 else 1
    assert g < P3 + 8, g
    pro, grp = o_ops()
    NEG = opt("neg", 5)
    fill = pro[0] + [x for i in range(NEG) for x in grp(i, False)]
    g0 = max(P3 + 1, g); n = G.n() - g0
    for i, x in enumerate(fill): G.va[g0 + (i * n) // len(fill)].append(x)
    if pre is not None: h("s_waitcnt lgkmcnt(%d)" % pre)
    for x in G.lines(): h(x)
    return h.L, NEG

def o_ops():
    T = V_T; t = S_TMP
    Z = 248; C = 252; W = 128
    pro = []
    for hh in range(2):
        e = E()
        for qb in (2 * hh, 2 * hh + 1): e("v_add_f32 %s, %s, %s" % (v(V_L + 2 * qb), v(V_L + 2 * qb), v(V_L + 2 * qb + 1)))
        for qb in (2 * hh, 2 * hh + 1): e("v_rcp_f32 %s, %s" % (v(T + 2 * qb), v(V_L + 2 * qb)))
        if hh == 0:
            for r in range(4): e("v_mov_b32 %s, 0" % v(Z + r))
            for sl in range(4): e("s_lshl_b32 %s, %s, 14" % (s(44), s(S_HEAD)) if sl == 0 else "s_add_u32 %s, %s, %d" % (s(44 + sl), s(44), 4096 * sl))
        else:
            e("v_max3_f32 %s, %s, %s, %s" % (v(T + 8), v(V_L), v(V_L + 2), v(V_L + 4)))
            e("v_max_f32 %s, %s, %s" % (v(T + 8), v(T + 8), v(V_L + 6)))
            e("v_mul_f32 %s, %s, %s" % (v(T + 8), f2u(2.0 ** 64), v(T + 8)))
            e("v_mul_f32 %s, 0, %s" % (v(T + 8), v(T + 8)))
            for qb in range(4): e("v_fma_f32 %s, %s, 0, %s" % (v(T + 8), v(V_L + 2 * qb), v(T + 8)))
        for qb in (2 * hh, 2 * hh + 1): e("v_mov_b32 %s, %s" % (v(T + 2 * qb + 1), v(T + 2 * qb)))
        pro.append(e.L)
    def grp(i, pk):
        e = E()
        sl, qb = (i % 8) // 2, 2 * (i // 8) + i % 2
        d0 = 136 + 4 * (i % 4)
        for b in range(2):
            for r in range(4): e("v_accvgpr_read_b32 %s, %s" % (v(W + 4 * b + r), a(A_O + ((2 * sl + b) * 4 + qb) * 4 + r)))
        if pk:
            for h in range(4): e("v_pk_mul_f32 %s, %s, %s" % (v(W + 2 * h, 2), v(W + 2 * h, 2), v(T + 2 * qb, 2)))
        else:
            for r in range(8): e("v_mul_f32 %s, %s, %s" % (v(W + r), v(W + r), v(T + 2 * qb)))
        for h in range(4): e("v_cvt_pk_bf16_f32 %s, %s, %s" % (v(d0 + h), v(W + 2 * h), v(W + 2 * h + 1)))
        e("buffer_store_dwordx4 %s, %s, %s, %s offen offset:%d%s ;#ost" % (v(d0, 4), v(V_L16), s(S_AF, 4), s(44 + sl), 1024 * qb, STFL))
        e.L.append("s_nop 0\n%s %s, %s, %s, %s" % (MF, v(C, 4), v(Z, 4), v(d0, 4), "0" if i == 0 else v(C, 4)))
        return e.L
    return pro, grp

LT_SS, LT_SD = 44, 48
LT_SO, LT_DO, LT_R = 91, 96, 97
LT_VO, LT_VB, LT_VR, LT_AD = 40, 42, 44, 48
L_TRB = 131072
def light_loop(G):
    import copy
    G = copy.deepcopy(G)
    n = G.n()
    b = [g for g in range(n) if any("s_barrier" in x for x in G.va[g])][0]
    for bb in (b - 1, b): G.sc[bb] = [x.replace("vmcnt(%d)" % (16 + 2 * PWARM), "vmcnt(%d)" % (24 + 2 * PWARM)) for x in G.sc[bb]]
    lastm = max(g for g in range(n) if any(x.startswith("buffer") for x in G.va[g]))
    cmpg = [g for g in range(n) if any(x.startswith("s_cmp_lt_u32 %s" % s(S_KVOFF)) for x in G.sc[g])][-1]
    def lay(seq, g, hi, step=1):
        for k, x in seq:
            if k == "s":
                while not G.fits(g, "s"): g += 1
                G.put(g, "s", x)
            else:
                win = opt("ltw", 4) if k != "m" else opt("ltm", 4)
                g = min(range(g, min(g + win, hi) + 1), key=lambda y: (G.used[y] + (3 if (k == "d" and G.ds[y] and opt("ltd", 0)) else 0), y))
                (G.ds if k == "d" else G.va)[g].append(x); G.used[g] += 1 if k != "m" else 2
            g += step
            assert g <= hi + 1, (x, g, hi)
        return g
    g = lay([("d", "ds_read_b64_tr_b16 %s, %s offset:%d" % (v(LT_AD + 4 * f + 2 * j, 2), v(LT_VR + f), 1024 * j)) for f in range(2) for j in range(2)], b + 1, b + 30, 2)
    g1, g2 = opt("lts1", 44), opt("lts2", 50)
    lay(([("s", "s_waitcnt lgkmcnt(2)")] if g1 < 68 else []) + [("m", "buffer_store_dwordx4 %s, %s, %s, %s offen%s" % (v(LT_AD, 4), v(V_L16), s(LT_SD, 4), s(LT_DO), STFL))], g1, cmpg - 1)
    lay([("m", "buffer_store_dwordx4 %s, %s, %s, %s offen offset:1024%s" % (v(LT_AD + 4, 4), v(V_L16), s(LT_SD, 4), s(LT_DO), STFL)),
         ("s", "s_add_u32 %s, %s, %d" % (s(LT_DO), s(LT_DO), 8 * 10240)),
         ("s", "s_sub_u32 %s, %s, %d\ns_cselect_b32 %s, %s, %s" % (s(S_TMP + 1), s(LT_DO), 184 * 10240, s(LT_DO), s(LT_DO), s(S_TMP + 1)))], g2, cmpg - 1)
    g = lastm + 1
    lay([("s", "s_add_u32 m0, %s, %s" % (s(LT_R), s(S_TMP)))] +
        [("m", "buffer_load_dwordx4 %s, %s, %s offen offset:%d lds" % (v(LT_VO + i), s(LT_SS, 4), s(LT_SO), 1024 * i)) for i in range(2)] +
        [("s", "s_add_u32 %s, %s, %d\ns_add_u32 %s, %s, 2048" % (s(LT_SO), s(LT_SO), 8 * 40960, s(LT_R), s(LT_R))),
         ("s", "s_cmp_eq_u32 %s, 6144\ns_cselect_b32 %s, 0, %s" % (s(LT_R), s(LT_R), s(LT_R)))] +
        [("v", "v_add_u32 %s, %s, %s" % (v(LT_VR + f), s(LT_R), v(LT_VB + f))) for f in range(2)], g, cmpg - 1)
    if VERBOSE: print("lightloop", G.pattern())
    return G.lines()

def gen_events(e):
    L = V_LANE; t = S_TMP
    e("LT_INIT:")
    e("s_sub_u32 %s, %s, 27\ns_lshl_b32 %s, %s, 3\ns_add_u32 %s, %s, %s\ns_lshl2_add_u32 %s, %s, %s" % (s(t), s(S_FS), s(t), s(t), s(t), s(t), s(S_QT), s(t), s(t), s(S_WAVE)))
    e("s_mul_i32 %s, %s, 3277\ns_lshr_b32 %s, %s, 16\ns_mul_i32 %s, %s, 20\ns_sub_u32 %s, %s, %s" % (s(t + 1), s(t), s(t + 1), s(t + 1), s(t + 6), s(t + 1), s(t), s(t), s(t + 6)))
    e("s_mul_i32 %s, %s, 40960\ns_lshl_b32 %s, %s, 6\ns_add_u32 %s, %s, %s" % (s(LT_SO), s(t + 1), s(t + 6), s(t), s(LT_SO), s(LT_SO), s(t + 6)))
    e("s_add_u32 %s, %s, 104\ns_mul_i32 %s, %s, 10240" % (s(LT_DO), s(t + 1), s(LT_DO), s(LT_DO)))
    srd(e, LT_SS, ptr(8), 0, 1728 * 1280)
    e("s_mul_i32 %s, %s, 13108\ns_lshr_b32 %s, %s, 16\ns_mul_i32 %s, %s, %d\ns_lshl_b32 %s, %s, 11\ns_add_u32 %s, %s, %s\ns_add_u32 %s, %s, %d" % (
        s(t + 6), s(t), s(t + 6), s(t + 6), s(t + 6), s(t + 6), NSLAB * 10240 - 10240, s(t + 1), s(t), s(t + 6), s(t + 6), s(t + 1), s(t + 6), s(t + 6), WF_OFF))
    srd(e, LT_SD, ptr(11), s(t + 6), (NSLAB - 1) * 10240 + 2048)
    e("s_mul_i32 %s, %s, 6144\ns_add_u32 %s, %s, %d\ns_mov_b32 %s, 0\ns_mov_b32 %s, %d" % (s(t), s(S_WAVE), s(t), s(t), L_TRB, s(LT_R), s(S_EVT), EV(7)))
    e("v_lshrrev_b32 %s, 2, %s\nv_bfe_u32 %s, %s, 4, 1\nv_and_b32 %s, 3, %s" % (v(46), v(L), v(47), v(L), v(48), v(L)))
    e("v_lshlrev_b32 %s, 1, %s\nv_xor_b32 %s, %s, %s\nv_mul_u32_u24 %s, 1280, %s\nv_lshl_add_u32 %s, %s, 4, %s\nv_add_u32 %s, %d, %s" % (
        v(49), v(47), v(49), v(49), v(48), v(LT_VO), v(46), v(LT_VO), v(49), v(LT_VO), v(LT_VO + 1), 16 * 1280 - 1024, v(LT_VO)))
    e("v_lshlrev_b32 %s, 6, %s\nv_lshl_add_u32 %s, %s, 3, %s\nv_lshl_add_u32 %s, %s, 5, %s\nv_add_u32 %s, %s, %s\nv_xor_b32 %s, 32, %s" % (
        v(LT_VB), v(46), v(LT_VB), v(48), v(LT_VB), v(LT_VB), v(47), v(LT_VB), v(LT_VB), s(t), v(LT_VB), v(LT_VB + 1), v(LT_VB)))
    e("v_mov_b32 %s, %s\nv_mov_b32 %s, %s" % (v(LT_VR), v(LT_VB), v(LT_VR + 1), v(LT_VB + 1)))
    e(".p2align 6\nLT_LOOP:")
    for x in LIGHT_LOOP: e(x)
    e("s_cbranch_scc1 LT_LOOP")
    e("s_cmp_lg_u32 %s, %d\ns_cbranch_scc1 LT_E2" % (s(S_KVOFF), EV(7)))
    srd(e, LT_SS, ptr(4), 0, 4096 * 1280)
    e("s_sub_u32 %s, %s, %d\ns_mov_b32 %s, %d\ns_branch LT_LOOP" % (s(LT_SO), s(LT_SO), 56 * 40960, s(S_EVT), EV(13)))
    e("LT_E2:")
    e("s_cmp_lg_u32 %s, %d\ns_cbranch_scc1 LT_E3" % (s(S_KVOFF), EV(13)))
    e("s_mov_b32 %s, %d\ns_cmp_lg_u32 %s, 0\ns_cbranch_scc1 LT_LOOP" % (s(S_EVT), EV(26), s(S_WAVE)))
    set_flag(e, 2)
    e("s_mov_b32 %s, %d\ns_branch LT_LOOP" % (s(S_EVT), EV(23)))
    e("LT_E3:")
    e("s_cmp_lg_u32 %s, %d\ns_cbranch_scc1 LT_END" % (s(S_KVOFF), EV(23)))
    e(poll_load(True))
    e("s_mov_b32 %s, %d\ns_branch LT_LOOP" % (s(S_EVT), EV(26)))
    e("LT_END:")
    e("s_mov_b32 %s, %d\ns_branch ATT_LOOP" % (s(S_EVT), EV(27)))
    def redirect(d, vd, shift, size):
        e("s_sub_u32 %s, %s, %s\ns_add_u32 %s, %s, %s\ns_addc_u32 %s, %s, 0" % (s(t + 6), s(T_BW[0]), s(T_M0W), s(d), s(T_SW), s(t + 6), s(d + 1), s(T_SW + 1)))
        e("s_sub_u32 %s, %s, %d\ns_subb_u32 %s, %s, 0\ns_mov_b32 %s, %d" % (s(d), s(d), shift, s(d + 1), s(d + 1), s(d + 2), size))
        e("v_add_u32 %s, %s, %s\nv_add_u32 %s, %s, %s" % (v(vd), s(S_M0K), v(V_L16), v(vd + 1), s(S_M0K), v(V_L16)))
    e("ATT_EVT:")
    e("s_cmp_lg_u32 %s, %d\ns_cbranch_scc1 ATT_EVT1" % (s(S_KVOFF), EV(27)))
    redirect(S_K, V_KD, 64 * 8192, 72 * 8192)
    e("s_mov_b32 %s, %d\ns_cmp_lg_u32 %s, 0\ns_cbranch_scc1 ATT_LOOP" % (s(S_EVT), EV(29) if NWP == 4 else EVTE, s(S_WAVE)))
    if NWP < 4: e("s_cmp_ge_u32 %s, 27\ns_cselect_b32 %s, %d, %s" % (s(S_FS), s(S_EVT), EV(29), s(S_EVT)))
    e("s_waitcnt vmcnt(16)")
    poll_spin(e, True, None, 2, "EARLY")
    e("s_branch ATT_LOOP")
    e("ATT_EVT1:")
    e("s_cmp_lg_u32 %s, %d\ns_cbranch_scc1 ATT_EVT2" % (s(S_KVOFF), EV(29)))
    if NWP == 4: redirect(S_V, V_VD, 68 * 8192 - 65536, 68 * 8192 + NWP * 20480 - 65536)
    e("s_mov_b32 %s, %d\ns_cmp_lg_u32 %s, 0\ns_cbranch_scc1 ATT_LOOP" % (s(S_EVT), EVTE, s(S_WAVE)))
    e("s_cmp_lt_u32 %s, 27\ns_cbranch_scc1 ATT_LOOP" % s(S_FS))
    set_flag(e, 3)
    e("s_branch ATT_LOOP")
    e("ATT_EVT2:")
    e("s_cmp_lg_u32 %s, %d\ns_cbranch_scc1 ATT_EVT3" % (s(S_KVOFF), EV(3)))
    set_flag(e, 3)
    e("s_mov_b32 %s, %d\ns_branch ATT_LOOP" % (s(S_EVT), EV(25)))
    e("ATT_EVT3:")
    if opt("ctt", 0):
        e("s_getpc_b64 %s\nCODE2:\ns_sub_u32 %s, %s, CODE2-TAILC0\ns_subb_u32 %s, %s, 0" % (s(t + 6, 2), s(t + 6), s(t + 6), s(t + 7), s(t + 7)))
        e("s_lshr_b32 %s, s2, 3\ns_lshl_b32 %s, %s, 10" % (s(t + 1), s(t + 1), s(t + 1)))
        e("v_min_u32 %s, 7, %s\nv_lshlrev_b32 %s, 7, %s\nv_add_u32 %s, %s, %s\nv_min_u32 %s, K_END-TAILC0, %s" % (v(V_PL), v(L), v(V_PL), v(V_PL), v(V_PL), s(t + 1), v(V_PL), v(V_PL), v(V_PL)))
        e("global_load_dword %s, %s, %s" % (v(V_DUMP), v(V_PL), s(t + 6, 2)))
    e(poll_load(True))
    e("s_mov_b32 %s, %d\ns_branch ATT_LOOP" % (s(S_EVT), EV(27)))
assert all((g * 3277) >> 16 == g // 20 for g in range(160)) and all((c * 13108) >> 16 == c // 5 for c in range(40))

K_SX, K_SO = S_WU, S_X
T_SA, T_SW, T_XS = S_T, S_WF, S_WQ
T_XO = S_WG
T_TAG = S_WG + 3
T_M0W, T_OA, T_OW = 88, 89, 90
T_BA, T_BW = (S_XOFF, S_WQOFF), (S_WGOFF, S_M0W)
K_FLG = 95
KV_XO = 63; KV_X = 8
TV_WR, TV_L4K, TV_TAG, TV_OW, TV_OR = 60, 61, 62, 3, 4
XPB = 12288
REUSE = opt("reuse", 1)
COAL = opt("coal", 1)
NSD, NSG = 7, 23
RW8, RA8, RF8 = 6, 5, 10
L_OWN = [122880, 0]

def join_scalar(lines):
    out = []
    for x in lines:
        if x.startswith(("s_addc", "s_cselect")): out[-1] += "\n" + x
        else: out.append(x)
    return out

def gen_tail_setup():
    e = E()
    L = V_LANE; t = S_TMP
    R, Cc, KQ = t + 3, t + 4, t + 5
    e("s_bfe_u32 %s, s2, 0x10002\ns_lshl_b32 %s, %s, 3\ns_lshr_b32 %s, s2, 5\ns_add_u32 %s, %s, %s" % (s(R), s(R), s(R), s(t), s(R), s(R), s(t)))
    e("s_bfe_u32 %s, s2, 0x20003\ns_and_b32 %s, s2, 3" % (s(Cc), s(KQ)))
    e("s_lshr_b32 %s, %s, 1\ns_lshl1_add_u32 %s, %s, %s\ns_lshl2_add_u32 %s, %s, %s\ns_mul_i32 %s, %s, %d" % (s(t), s(KQ), s(t), s(R), s(t), s(t), s(t), s(S_WAVE), s(t), s(t), 16 * 1280))
    e("s_and_b32 %s, %s, 1\ns_lshl1_add_u32 %s, %s, %s\ns_mul_i32 %s, %s, 160\ns_add_u32 %s, %s, %s" % (s(t + 1), s(KQ), s(t + 1), s(Cc), s(t + 1), s(t + 1), s(t + 1), s(t), s(t), s(t + 1)))
    srd(e, K_SX, ptr(0), s(t), 15 * 1280 + 160)
    srd(e, K_SO, ptr(9), s(t), 15 * 1280 + 160)
    e("v_and_b32 %s, 15, %s\nv_mul_u32_u24 %s, 1280, %s\nv_lshrrev_b32 %s, 4, %s\nv_lshl_add_u32 %s, %s, 3, %s" % (v(KV_XO), v(L), v(KV_XO), v(KV_XO), v(52), v(L), v(KV_XO), v(52), v(KV_XO)))
    e("s_lshr_b32 %s, %s, 1\ns_lshl2_add_u32 %s, %s, %s\ns_lshl_b32 %s, %s, %d" % (s(K_FLG), s(R), s(K_FLG), s(K_FLG), s(KQ), s(K_FLG), s(K_FLG), FSH + 3))
    e("s_mul_i32 %s, %s, 7\ns_add_u32 %s, %s, 64\ns_lshl_b32 %s, %s, 13\ns_mul_i32 %s, %s, 20480" % (s(t), s(KQ), s(t), s(t), s(T_BA[0]), s(t), s(T_BW[0]), s(t)))
    e("s_lshl_b32 %s, %s, 17\ns_mul_i32 %s, %s, %d" % (s(T_BA[1]), s(KQ), s(T_BW[1]), s(KQ), 16 * 20480))
    e("s_lshl2_add_u32 %s, %s, %s\ns_mul_i32 %s, %s, %d\ns_add_u32 %s, %s, %d" % (s(t), s(R), s(Cc), s(t), s(t), 24 * XPB, s(t), s(t), XP_OFF))
    srd(e, T_XS, ptr(11), s(t), 24 * XPB)
    for ch in range(2):
        d = T_XO + ch
        e("s_and_b32 %s, %s, 2\ns_add_u32 %s, %s, %d\ns_xor_b32 %s, %s, %s\ns_mul_i32 %s, %s, 3\ns_add_u32 %s, %s, %s\ns_sub_u32 %s, %s, 1" % (
            s(t), s(S_WAVE), s(t), s(t), ch, s(t + 1), s(t), s(KQ), s(t), s(t), s(t), s(t), s(t + 1), s(t), s(t)))
        e("s_mul_i32 %s, %s, %d\ns_and_b32 %s, %s, 1\ns_mul_i32 %s, %s, 6144\ns_add_u32 %s, %s, %s" % (s(t), s(t), XPB, s(d), s(S_WAVE), s(d), s(d), s(d), s(d), s(t)))
        e("s_cmp_eq_u32 %s, 0\ns_cselect_b32 %s, 0x1000000, %s" % (s(t + 1), s(d), s(d)))
    if PWARM:
        e("s_lshl2_add_u32 %s, %s, %s\ns_mul_i32 %s, %s, %d\ns_lshl_b32 %s, %s, 14\ns_add_u32 %s, %s, %s" % (s(t), s(S_QT), s(S_WAVE), s(t), s(t), NSLAB * 4096, s(t + 1), s(S_HEAD), s(t), s(t), s(t + 1)))
        e("v_mov_b32 %s, %s" % (v(V_PW), s(t)))
        for i, o in ((1, 6144), (2, 10240)):
            e("s_add_u32 %s, %s, %d\nv_writelane_b32 %s, %s, %d\nv_writelane_b32 %s, %s, %d" % (s(t + 1), s(t), o, v(V_PW), s(t + 1), 2 * i, v(V_PW), s(t + 1), 2 * i + 1))
        e("s_lshl2_add_u32 %s, %s, %s\ns_mul_i32 %s, %s, %d\ns_add_u32 %s, %s, %d" % (s(t + 2), s(R), s(Cc), s(t + 2), s(t + 2), 24 * XPB, s(t + 2), s(t + 2), XP_OFF))
        for m in range(2):
            for ch in range(2):
                i = 3 + 2 * m + ch
                e("s_add_u32 %s, %s, %s\ns_add_u32 %s, %s, %d" % (s(t + 1), s(t + 2), s(T_XO + ch), s(t + 1), s(t + 1), m * 12 * XPB))
                e("s_cmp_eq_u32 %s, 0x1000000\ns_cselect_b32 %s, %s, %s" % (s(T_XO + ch), s(t + 1), s(t), s(t + 1)))
                e("v_writelane_b32 %s, %s, %d\nv_writelane_b32 %s, %s, %d" % (v(V_PW), s(t + 1), 2 * i, v(V_PW), s(t + 1), 2 * i + 1))
        e("v_min_u32 %s, 14, %s" % (v(V_T), v(L)))
        L = V_T
        e("v_and_b32 %s, 1, %s\nv_lshl_add_u32 %s, %s, 7, %s\nv_subrev_u32 %s, 1280, %s" % (v(V_T), v(L), v(V_PW), v(V_T), v(V_PW), v(V_PW), v(V_PW)))
        L = V_LANE
    e("s_mul_i32 %s, %s, %d\ns_mul_i32 %s, %s, 3072\ns_add_u32 %s, %s, %s" % (s(T_XO + 2), s(KQ), 3 * XPB, s(t), s(S_WAVE), s(T_XO + 2), s(T_XO + 2), s(t)))
    e("s_add_u32 %s, %s, 0x10000\ns_and_b32 %s, %s, 0x1fff0000\ns_or_b32 %s, %s, 0x40000000\nv_mov_b32 %s, %s" % (s(t), s(S_EPOCH), s(t), s(t), s(T_TAG), s(t), v(TV_TAG), s(T_TAG)))
    e("s_and_b32 %s, %s, 1\ns_mul_i32 %s, %s, 10240\nv_add_u32 %s, %s, %s" % (s(t), s(S_WAVE), s(t), s(t), v(TV_OW), s(t), v(V_L16)))
    e("s_mul_i32 %s, %s, 5120\nv_add_u32 %s, %s, %s" % (s(t), s(S_WAVE), v(TV_OR), s(t), v(V_L16)))
    e("s_lshr_b32 %s, %s, 1\ns_lshl1_add_u32 %s, %s, %s\ns_mul_i32 %s, %s, %d" % (s(t), s(S_WAVE), s(t), s(R), s(t), s(t), s(t), NSLAB * 4096))
    e("s_and_b32 %s, %s, 1\ns_lshl_b32 %s, %s, 11\ns_add_u32 %s, %s, %s" % (s(t + 1), s(S_WAVE), s(t + 1), s(t + 1), s(t), s(t), s(t + 1)))
    srd(e, T_SA, ptr(11), s(t), NSLAB * 4096 - 2048)
    e("s_mul_i32 %s, %s, 5120" % (s(T_M0W), s(S_WAVE)))
    e("s_mul_i32 %s, %s, %d\ns_add_u32 %s, %s, %s\ns_add_u32 %s, %s, %d" % (s(t), s(Cc), NSLAB * 10240, s(t), s(t), s(T_M0W), s(t), s(t), WF_OFF))
    return join_scalar(e.L)

def gen_tail_setup2():
    e = E()
    srd(e, T_SW, ptr(11), s(S_TMP), 90 * 20480 + 5120)
    e("v_mov_b32 %s, %s\nv_add_u32 %s, 4096, %s" % (v(TV_WR), v(V_L16), v(TV_L4K), v(V_L16)))
    return join_scalar(e.L)

def t8_w(sg):
    base = (sg % RW8) * 20480; tag = "D%d" % sg
    m, i = (0, sg) if sg < NSD else (1, sg - NSD)
    W = lambda vo, off: ("m", "buffer_load_dwordx4 %s, %s, %s offen offset:%d%s lds ;#%s" % (v(vo), s(T_SW, 4), s(T_OW), off, LDFL, tag))
    return [("s", "s_add_u32 %s, %s, %d\ns_add_u32 m0, %s, %d" % (s(T_OW), s(T_BW[m]), i * 20480, s(T_M0W), base)),
            W(V_L16, 0), W(V_L16, 1024), W(V_L16, 2048), W(V_L16, 3072),
            ("s", "s_add_u32 m0, %s, %d" % (s(T_M0W), base + 4096)), W(TV_L4K, 0)]
def t8_af(sg, half, j): return a((192, 208, 224, 32, 48)[sg % RA8] + half * 8 + j * 4, 4)
def t8_a(sg):
    m, i = (0, sg) if sg < NSD else (1, sg - NSD)
    l = [("s", "s_add_u32 %s, %s, %d" % (s(T_OA), s(T_BA[m]), i * 8192))]
    for half in range(2):
        for j in range(2):
            l.append(("m", "buffer_load_dwordx4 %s, %s, %s, %s offen offset:%d%s ;#A%d" % (t8_af(sg, half, j), v(TV_L4K if half else V_L16), s(T_SA, 4), s(T_OA), j * 1024, LDFL, sg)))
    return l
def t8_wf(F):
    k = F % RF8
    return a(4 * k if k < 8 else 240 + 4 * (k - 8), 4)
def t8_read(F):
    sg, f = F // 20, F % 20
    if opt("t8c", 1): f = (f & 1) * 10 + (f >> 1)
    return "ds_read_b128 %s, %s offset:%d" % (t8_wf(F), v(TV_WR), (sg % 3) * 20480 + f * 1024)
def t8_acc(m, n10, j):
    i = n10 * 2 + j
    if m == 0: return 128 + 4 * i
    return 64 + 4 * i if i < 16 else 208 + 4 * (i - 16)
NWP = opt("nwp", 4)
NPRE_X = opt("nprex", 2)
NPRE_G = opt("npreg", 2)

def cond_lines(lines): return [("@" + x) if x.startswith("buffer") else x for x in lines]

def publish(m):
    out = []; n = 0
    for ch in range(2):
        if m == 1 and REUSE:
            t = S_TMP
            out.append(("s", "s_and_b32 %s, s2, 3\ns_and_b32 %s, %s, 2\ns_sub_u32 %s, %s, %s\ns_sub_u32 %s, %s, %d\ns_mul_i32 %s, %s, %d\ns_add_u32 %s, %s, %s" % (
                s(t), s(t + 1), s(S_WAVE), s(t), s(t), s(t + 1), s(t), s(t), ch, s(t), s(t), 3 * XPB, s(t + 2), s(T_XO + ch), s(t))))
        else:
            out.append(("s", "s_add_u32 %s, %s, %d" % (s(S_TMP + 2), s(T_XO + ch), m * 12 * XPB)))
        for j in range(2):
            vals = [t8_acc(m, 5 * ch + nb, j) + k for nb in range(5) for k in range(4)]
            pb = (40, 240)[n % 2]; n += 1
            for gi in range(3):
                vs = vals[7 * gi:7 * gi + 7]
                if len(vs) < 7: vs = vs + [TV_TAG]
                for h in range(3): out.append(("v", "v_cvt_pk_bf16_f32 %s, %s, %s" % (v(pb + 4 * gi + h), v(vs[2 * h]), v(vs[2 * h + 1]))))
                out.append(("v", "v_cvt_pk_bf16_f32 %s, %s, %s" % (v(pb + 4 * gi + 3), v(vs[6]), v(TV_TAG))))
                off = j * 3072 + gi * 1024
                out.append(("m", "buffer_store_dwordx4 %s, %s, %s, %s offen offset:%d%s ;#xst%d" % (v(pb + 4 * gi, 4), v(TV_L4K if off >= 4096 else V_L16), s(T_XS, 4), s(S_TMP + 2), off % 4096, STFL, m)))
    return out
def own_write(m):
    l = []
    if L_OWN[m]: l.append("v_add_u32 %s, %d, %s" % (v(52), L_OWN[m], v(TV_OW)))
    ar = v(52) if L_OWN[m] else v(TV_OW)
    for ch in range(2):
        l.append("s_cmp_lg_u32 %s, 0x1000000\ns_cbranch_scc1 NOOWN%d%d" % (s(T_XO + ch), m, ch))
        for j in range(2):
            for nb in range(5): l.append("ds_write_b128 %s, %s offset:%d" % (ar, v(t8_acc(m, 5 * ch + nb, j), 4), (j * 5 + nb) * 1024))
        l.append("NOOWN%d%d:" % (m, ch))
    return l
XR = [128, 64]; OWR = [164, 184]
T_SL = 72
def xloads(m):
    l = []
    for i in range(3):
        if m == 1 and REUSE: l.append(("s", "s_mov_b32 %s, %s" % (s(S_TMP + 3), s(T_SL + i))))
        else: l.append(("s", "s_add_u32 %s, %s, %d" % (s(S_TMP + 3), s(T_XO + 2), m * 12 * XPB + i * XPB)))
        for k in range(3): l.append(("m", "buffer_load_dwordx4 %s, %s, %s, %s offen offset:%d%s ;#xr%d" % (v(XR[m] + (i * 3 + k) * 4, 4), v(V_L16), s(T_XS, 4), s(S_TMP + 3), k * 1024, LDFL, m)))
    return l
def xcheck(e, m, first_wait):
    t = S_TMP
    e("s_mov_b32 %s, 0" % s(t + 7))
    e(first_wait)
    e("XCHK%d:" % m)
    for i in range(9): e("v_xor_b32 %s, %s, %s" % (v(20 + i), s(T_TAG), v(XR[m] + 4 * i + 3)))
    for i in range(4): e("v_or3_b32 %s, %s, %s, %s" % (v(20), v(20), v(21 + 2 * i), v(22 + 2 * i)))
    e("v_cmp_lt_u32 vcc, 0xffff, %s" % v(20))
    e("s_add_u32 %s, %s, 1" % (s(t + 7), s(t + 7)))
    e("s_cmp_eq_u64 vcc, 0\ns_cbranch_scc1 XOK%d" % m)
    e("s_cmp_ge_u32 %s, 0x40000\ns_cbranch_scc1 XOK%d" % (s(t + 7), m))
    e("s_sleep %d" % opt("xslp", 4))
    for x in cond_lines([x for _, x in xloads(m)]): e(x)
    e("s_waitcnt vmcnt(0)\ns_branch XCHK%d" % m)
    e("XOK%d:" % m)
def xsum(e, m, nb):
    o = OWR[m] + 4 * nb
    for i in range(3):
        for k in range(4):
            idx = nb * 4 + k; gi, pos = idx // 7, idx % 7
            src = XR[m] + (i * 3 + gi) * 4 + pos // 2
            e(("v_and_b32 %s, 0xffff0000, %s" if pos & 1 else "v_lshlrev_b32 %s, 16, %s") % (v(20 + 4 * i + k), v(src)))
    for h in range(2):
        e("v_pk_add_f32 %s, %s, %s" % (v(o + 2 * h, 2), v(o + 2 * h, 2), v(20 + 2 * h, 2)))
        e("v_pk_add_f32 %s, %s, %s" % (v(24 + 2 * h, 2), v(24 + 2 * h, 2), v(28 + 2 * h, 2)))
    for h in range(2): e("v_pk_add_f32 %s, %s, %s" % (v(o + 2 * h, 2), v(o + 2 * h, 2), v(24 + 2 * h, 2)))

CV_G, CV_L, CV_X, LROW, L_FIN = 8, 11, 224, 336, 20480
def gen_t8(e):
    t = S_TMP
    mf = []
    NF = 20 * NSG
    for F in range(NF):
        sg, f = F // 20, F % 20
        m = 0 if sg < NSD else 1
        if opt("t8c", 1):
            j = f & 1; F0 = F - j
            d = v(t8_acc(m, f >> 1, j), 4)
            for i, half in enumerate((0, 1) if j == 0 else (1, 0)):
                mf.append("%s %s, %s, %s, %s" % (MF, d, t8_wf(F0 + half), t8_af(sg, half, j), "0" if (sg in (0, NSD) and i == 0) else d))
            continue
        for j in range(2):
            d = v(t8_acc(m, f % 10, j), 4)
            mf.append("%s %s, %s, %s, %s" % (MF, d, t8_wf(F), t8_af(sg, f // 10, j), "0" if (sg in (0, NSD) and f < 10) else d))
    G = Gaps(mf)
    DA = opt("t8d", 8)
    SIGS = opt("sigs", 2); CKS = opt("cks", 6); PLS = CKS - opt("polld", 1)
    bars = {}
    cur = 0
    for F in range(DA, NF):
        sg, f = F // 20, F % 20
        lo = 2 * (F - DA)
        if f == 0:
            if sg % 3 == 0:
                d = 61440 if sg % 6 == 3 else -61440
                G.place("v", ("v_add_u32 %s, %d, %s" % (v(TV_WR), d, v(TV_WR))) if d > 0 else ("v_subrev_u32 %s, %d, %s" % (v(TV_WR), -d, v(TV_WR))), cur - 1, cur - 1)
            pre = E(); post = E()
            if sg == CKS:
                stamp(pre, 11)
                pre("s_cmp_lg_u32 %s, 0\ns_cbranch_scc1 SPUN_O\ns_waitcnt SINCE{p3}" % s(S_WAVE))
                poll_spin(pre, False, s(K_FLG), 4, "O")
                stamp(post, 12)
            if sg == SIGS:
                post("s_cmp_lg_u32 %s, 0\ns_cbranch_scc1 NOSIG3" % s(S_WAVE))
                set_flag(post, 4)
                post("s_cmp_lg_u32 s2, 0\ns_cbranch_scc1 NOSIG3")
                post("s_add_u32 %s, %s, 0x10001\ns_mov_b64 exec, 1\nv_mov_b32 %s, %s\ns_mov_b32 %s, %d" % (s(t + 7), s(S_EPOCH), v(V_PL + 1), s(t + 7), s(t + 6), EP_OFF))
                post("buffer_store_dword %s, off, %s, %s sc1\ns_mov_b64 exec, -1" % (v(V_PL + 1), s(S_FL, 4), s(t + 6)))
                post("NOSIG3:")
                stamp(post, 10)
            if sg == PLS:
                post("s_cmp_lg_u32 %s, 0\ns_cbranch_scc1 NOPOLL3" % s(S_WAVE))
                post(poll_load(False, s(K_FLG)))
                post("NOPOLL3:\nMARK p3")
            b = G.place("b", "\n".join(cond_lines(pre.L) + ["s_barrier"] + cond_lines(post.L)), max(cur, lo - 1))
            lateA = NSD <= sg < NSD + opt("latea", 2)
            G.put(b, "s", "s_waitcnt WAITVM{D%d%s%s}" % (sg, "" if lateA else ",A%d" % sg, ",ost" if sg == SIGS else ""))
            if lateA: G.put(40 * sg - 1, "s", "s_waitcnt WAITVM{A%d}" % sg)
            bars[sg] = b; cur = b + 1
        cur = G.place("d", t8_read(F), max(cur, lo)) + 1
    qw = [(t8_w(sg), bars[sg - RW8 + 2] if sg >= RW8 else 0, sg) for sg in range(max(NPRE_G, NWP), NSG)]
    qa = [(t8_a(sg), max(40 * (sg - RA8 + 1) if sg >= RA8 else 0, bars[CKS] if sg >= NSD else 0), sg) for sg in range(NPRE_G, NSG)]
    DP = opt("dpub", 1)
    side = []
    if DP:
        side.append((publish(0), 40 * NSD + 8 + opt("dpd", 8)))
        side.append((xloads(0), 40 * opt("dld", 20)))
    if COAL:
        seq = []
        for i in range(3):
            seq += [("v", "v_add_u32 %s, %d, %s" % (v(CV_G + i), 64 * i, v(V_LANE))), ("v", "v_mul_u32_u24 %s, 6554, %s" % (v(36), v(CV_G + i))), ("v", "v_lshrrev_b32 %s, 16, %s" % (v(36), v(36))),
                    ("v", "v_lshlrev_b32 %s, 5, %s" % (v(CV_L + i), v(CV_G + i))), ("v", "v_mad_u32_u24 %s, %s, %d, %s" % (v(CV_L + i), v(36), LROW - 320, v(CV_L + i))),
                    ("v", "v_mul_u32_u24 %s, 1120, %s" % (v(36), v(36))), ("v", "v_lshl_add_u32 %s, %s, 4, %s" % (v(CV_G + i), v(CV_G + i), v(36))),
                    ("m", "buffer_load_dwordx4 %s, %s, %s, 0 offen ;#xx" % (v(CV_X + 4 * i, 4), v(CV_G + i), s(K_SX, 4)))]
        side.append((seq, 40 * opt("xld", 19)))
    else:
        side.append(([("m", "buffer_load_dwordx2 %s, %s, %s, 0 offen offset:%d ;#xx" % (v(KV_X + 2 * nb, 2), v(KV_XO), s(K_SX, 4), nb * 32)) for nb in range(5)], 40 * opt("xld", 19)))
    side.sort(key=lambda x: x[1])
    MG = opt("mg", 4)
    g = 0; lastm = -9
    while qw or qa:
        c = [x for x in (qw, qa) if x]
        c.sort(key=lambda x: (max(x[0][1], g), x[0][2]))
        seq, lo, _ = c[0].pop(0)
        g = max(g, lo)
        for k, x in seq:
            g = G.place(k, x, max(g + 1, lastm + MG if k == "m" else 0))
            if k == "m": lastm = g
    for seq, lo in side:
        g = lo; lastm = -99
        for k, x in seq:
            g = G.place(k, x, max(g + (0 if k == "v" else 1), lastm + (opt("smg", 24) if "xst" in x else 6) if k == "m" else 0))
            if k == "m": lastm = g
        if "xst0" in seq[-1][1]:
            G.va[g + 1].append("\n".join(own_write(0))); pubend = g + 1
    if DP: assert pubend < 40 * opt("dld", 20) - 40
    auto_lgkm(G, eager=opt("eag", 8))
    if VERBOSE: print("t8", G.pattern())
    for F in range(DA): e(t8_read(F))
    e("s_waitcnt lgkmcnt(0)")
    nm = 0
    for x in G.lines():
        if x.startswith("v_mfma"):
            if nm == 40 * NSD: stamp(e, 13)
            if STAMPS and opt("t8st", 0) and nm > 40 * NSD and (nm - 40 * NSD) % 160 == 0: stamp(e, 25 + (nm - 40 * NSD) // 160)
            nm += 1
        e(x)

def gen_tail(e0, head):
    head, neg = head
    e = E(); e.ext(head)
    T = V_T; t = S_TMP
    stamp(e, 8)
    C = 252
    W = T + 12
    wq = [x for sg in range(NPRE_X, NPRE_G) for x in (t8_w(sg) if sg >= NWP else []) + t8_a(sg)]
    def wsome(n):
        while wq and n > 0:
            k, x = wq.pop(0); n -= (k == "m")
            e(x + ("\ns_nop 0" if k == "s" else ""))
    wsome(opt("wpre", 0))
    pro, grp = o_ops()
    for i in range(neg, 16):
        if i == 8: e.ext(pro[1])
        for x in grp(i, True): e(x)
        wsome(opt("wpg", 1))
    wsome(99)
    e("s_nop 7")
    e("v_cmp_u_f32 vcc, %s, %s" % (v(T + 8), v(C)))
    e("s_cmp_lg_u64 vcc, 0\ns_cselect_b32 %s, 1, 0" % s(t))
    e("v_mov_b32 %s, %s" % (v(W), s(t)))
    e("s_lshl_b32 %s, %s, 2\ns_add_u32 %s, %s, %d" % (s(t + 1), s(S_WAVE), s(t + 1), s(t + 1), L_MISC))
    e("v_mov_b32 %s, %s\nv_mov_b32 %s, %d" % (v(W + 1), s(t + 1), v(W + 2), L_MISC))
    e("ds_write_b32 %s, %s" % (v(W + 1), v(W)))
    e("s_waitcnt WAITVM{D0,A0} lgkmcnt(0)")
    e("s_cmp_lg_u32 %s, 0\ns_cbranch_scc1 SPUN_EARLY3" % s(S_WAVE))
    w0 = E(); poll_spin(w0, True, None, 3, "EARLY3")
    for x in cond_lines(w0.L): e(x)
    e("v_min_u32 %s, 7, %s\nv_lshlrev_b32 %s, %d, %s" % (v(V_PL + 3), v(V_LANE), v(V_PL + 3), FSH, v(V_PL + 3)))
    e("s_barrier")
    e("ds_read_b128 %s, %s" % (v(W + 4, 4), v(W + 2)))
    t8 = E(); gen_t8(t8)
    i0 = t8.L.index("s_waitcnt lgkmcnt(0)")
    e.ext(t8.L[:i0 + 1])
    e("v_or3_b32 %s, %s, %s, %s\nv_or_b32 %s, %s, %s\ns_nop 0" % (v(W + 4), v(W + 4), v(W + 5), v(W + 6), v(W + 4), v(W + 4), v(W + 7)))
    e("v_readfirstlane_b32 %s, %s" % (s(t), v(W + 4)))
    e("s_nop 3\ns_andn2_b32 %s, %s, %s" % (s(t), s(t), s(S_RETRY)))
    e("s_cbranch_scc1 ATT_RETRY")
    stamp(e, 9)
    e.ext(t8.L[i0 + 1:])
    stamp(e, 14)
    if REUSE:
        xcheck(e, 0, "s_waitcnt WAITVM{xr0,xx}")
        e("s_barrier")
        e("s_xor_b32 %s, %s, 0x80000000\nv_mov_b32 %s, %s" % (s(T_TAG), s(T_TAG), v(TV_TAG), s(T_TAG)))
    else:
        e("s_nop 6")
    for k, x in publish(1): e(x)
    stamp(e, 23)
    for x in own_write(1): e(x)
    e("v_add_u32 %s, %d, %s" % (v(52), L_OWN[0], v(TV_OR)))
    if REUSE:
        for i in range(3):
            e("s_and_b32 %s, s2, 3\ns_xor_b32 %s, %s, %d\ns_sub_u32 %s, %s, %s\ns_mul_i32 %s, %s, %d\ns_add_u32 %s, %s, %s\ns_add_u32 %s, %s, %d" % (
                s(t), s(t + 1), s(t), i + 1, s(t), s(t + 1), s(t), s(t), s(t), 3 * XPB, s(t), s(t), s(T_XO + 2), s(T_SL + i), s(t), i * XPB))
    e("s_waitcnt lgkmcnt(0)")
    e("s_barrier")
    for nb in range(5): e("ds_read_b128 %s, %s offset:%d" % (v(OWR[0] + 4 * nb, 4), v(52), nb * 1024))
    for nb in range(5): e("ds_read_b128 %s, %s offset:%d" % (v(OWR[1] + 4 * nb, 4), v(TV_OR), L_OWN[1] + nb * 1024))
    if REUSE: e("s_waitcnt lgkmcnt(0)")
    else: xcheck(e, 0, "s_waitcnt WAITVM{xr0,xx} lgkmcnt(0)")
    GG = 100; XU = 204
    e("v_mov_b32 %s, %s" % (v(36), f2u(1.0 / DSC)))
    MP0, MP1 = opt("mp0", 2), opt("mp1", 4)
    e("v_mov_b32 %s, %s\nv_writelane_b32 %s, %s, 0\nv_writelane_b32 %s, %s, 1\ns_movk_i32 %s, %d\ns_mov_b32 %s, 0" % (v(38), s(T_SL + 2), v(38), s(T_SL), v(38), s(T_SL + 1), s(t + 4), 2048 + 1008 + 12, s(t + 5)))
    PLD = "@buffer_load_dword %s, %s, %s, %s offen%s" % (v(37), v(38), s(T_XS, 4), s(t + 4), LDFL)
    for nb in range(5):
        if nb == MP0 and MP1 < 9: e(PLD)
        if nb == MP1:
            e("s_waitcnt vmcnt(0)")
            e("v_xor_b32 %s, %s, %s\nv_cmp_lt_u32 vcc, 0xffff, %s" % (v(37), s(T_TAG), v(37), v(37)))
            e("s_cmp_lg_u64 vcc, 0\ns_cbranch_scc1 NOEARLY")
            for x in cond_lines([x for _, x in xloads(1)]): e(x)
            e("s_mov_b32 %s, 1\nNOEARLY:" % s(t + 5))
        d = OWR[0] + 4 * nb; gq = GG + 4 * nb
        xsum(e, 0, nb)
        for k in range(4): e("v_mul_f32 %s, %s, %s" % (v(gq + k), f2u(-math.log2(math.e) * DSC), v(d + k)))
        for k in range(4): e("v_exp_f32 %s, %s" % (v(gq + k), v(gq + k)))
        e("s_nop 0")
        for k in range(4): e("v_fma_f32 %s, %s, %s, %s" % (v(gq + k), v(gq + k), v(36), v(36)))
        for k in range(4): e("v_rcp_f32 %s, %s" % (v(gq + k), v(gq + k)))
        if not COAL:
            for h in range(2):
                e("v_lshlrev_b32 %s, 16, %s" % (v(XU + 4 * nb + 2 * h), v(KV_X + 2 * nb + h)))
                e("v_and_b32 %s, 0xffff0000, %s" % (v(XU + 4 * nb + 2 * h + 1), v(KV_X + 2 * nb + h)))
        else: e("s_nop 0")
        for k in range(4): e("v_mul_f32 %s, %s, %s" % (v(gq + k), v(gq + k), v(d + k)))
    if COAL:
        XU = 128
        for i in range(12):
            e("v_lshlrev_b32 %s, 16, %s\nv_and_b32 %s, 0xffff0000, %s" % (v(XU + 2 * i), v(CV_X + i), v(XU + 2 * i + 1), v(CV_X + i)))
        e("s_mul_i32 %s, %s, %d\ns_add_u32 %s, %s, %d" % (s(t), s(S_WAVE), 20 * LROW, s(t), s(t), L_FIN))
        e("v_and_b32 %s, 15, %s\nv_mul_u32_u24 %s, %d, %s\nv_lshrrev_b32 %s, 4, %s\nv_lshl_add_u32 %s, %s, 4, %s\nv_add_u32 %s, %s, %s" % (v(14), v(V_LANE), v(14), LROW, v(14), v(15), v(V_LANE), v(14), v(15), v(14), v(14), s(t), v(14)))
        for i in range(3): e("v_add_u32 %s, %s, %s" % (v(CV_L + i), s(t), v(CV_L + i)))
    stamp(e, 24)
    e("s_mov_b32 %s, 0" % s(t + 7))
    e("s_cmp_lg_u32 %s, 0\ns_cbranch_scc1 LOADED" % s(t + 5))
    e("PROBE:")
    e(PLD)
    e("s_waitcnt vmcnt(0)")
    e("v_xor_b32 %s, %s, %s\nv_cmp_lt_u32 vcc, 0xffff, %s" % (v(37), s(T_TAG), v(37), v(37)))
    e("s_add_u32 %s, %s, 1" % (s(t + 7), s(t + 7)))
    e("s_cmp_eq_u64 vcc, 0\ns_cbranch_scc1 PROBED")
    e("s_cmp_ge_u32 %s, 0x40000\ns_cbranch_scc1 PROBED" % s(t + 7))
    e("s_sleep %d\ns_branch PROBE" % opt("pslp", 4))
    e("PROBED:")
    for k, x in xloads(1): e(x)
    e("LOADED:")
    xcheck(e, 1, "s_waitcnt vmcnt(0)")
    stamp(e, 25)
    OFL = opt("ofl", "_sc1").replace("_", " ")
    for nb in range(5):
        o = OWR[1] + 4 * nb; gq = GG + 4 * nb; xu = XU + 4 * nb
        xsum(e, 1, nb)
        if COAL:
            for h in range(2): e("v_pk_mul_f32 %s, %s, %s" % (v(o + 2 * h, 2), v(o + 2 * h, 2), v(gq + 2 * h, 2)))
            e("ds_write_b128 %s, %s offset:%d" % (v(14), v(o, 4), nb * 64))
            continue
        for r in range(4): e("v_fma_f32 %s, %s, %s, %s" % (v(xu + r), v(o + r), v(gq + r), v(xu + r)))
        for h in range(2): e("v_cvt_pk_bf16_f32 %s, %s, %s" % (v(gq + h), v(xu + 2 * h), v(xu + 2 * h + 1)))
        e("buffer_store_dwordx2 %s, %s, %s, 0 offen offset:%d%s" % (v(gq, 2), v(KV_XO), s(K_SO, 4), nb * 32, OFL))
    if COAL:
        for i in range(3):
            for h in range(2): e("ds_read_b128 %s, %s offset:%d" % (v(64 + 8 * i + 4 * h, 4), v(CV_L + i), 16 * h))
        for i in range(3):
            e("s_waitcnt lgkmcnt(%d)" % (4 - 2 * i))
            for h in range(4): e("v_pk_add_f32 %s, %s, %s" % (v(64 + 8 * i + 2 * h, 2), v(64 + 8 * i + 2 * h, 2), v(XU + 8 * i + 2 * h, 2)))
            for h in range(4): e("v_cvt_pk_bf16_f32 %s, %s, %s" % (v(100 + 4 * i + h), v(64 + 8 * i + 2 * h), v(65 + 8 * i + 2 * h)))
            e("buffer_store_dwordx4 %s, %s, %s, 0 offen%s" % (v(100 + 4 * i, 4), v(CV_G + i), s(K_SO, 4), OFL))
    e0.ext([x.lstrip("@") for x in resolve_vm(e.L)])
    e = e0
    stamp(e, 15)
    if STAMPS: e("s_waitcnt vmcnt(0)")
    stamp(e, 16)
    stamp_fin(e)

def gen_kv_addr(e):
    T = V_T + 12; L = V_LANE
    e("s_lshl_b32 %s, %s, 19" % (s(S_TMP), s(S_HEAD)))
    srd(e, S_K, 54, s(S_TMP), 524288)
    srd(e, S_V, 56, s(S_TMP), 524288 + VSH * 8192)
    e("s_sub_u32 %s, %s, %d\ns_subb_u32 %s, %s, 0" % (s(S_V), s(S_V), VSH * 8192, s(S_V + 1), s(S_V + 1)))
    e("v_lshrrev_b32 %s, 4, %s\ns_lshl_b32 %s, %s, 3\nv_add_u32 %s, %s, %s\nv_and_b32 %s, 15, %s" % (v(T), v(L), s(S_TMP), s(S_WAVE), v(T), s(S_TMP), v(T), v(T + 1), v(L)))
    e("v_lshlrev_b32 %s, 8, %s" % (v(T + 2), v(T)))
    for i in range(2):
        e("v_add_u32 %s, %d, %s\nv_and_b32 %s, 15, %s\nv_xor_b32 %s, %s, %s\nv_lshl_add_u32 %s, %s, 4, %s" % (v(T + 3), 4 * i, v(T), v(T + 4), v(T + 3), v(T + 4), v(T + 4), v(T + 1), v(V_KD + i), v(T + 4), v(T + 2)))
        e("v_and_b32 %s, 7, %s\nv_lshlrev_b32 %s, 1, %s\nv_xor_b32 %s, %s, %s\nv_lshl_add_u32 %s, %s, 4, %s" % (v(T + 4), v(T + 3), v(T + 4), v(T + 4), v(T + 4), v(T + 4), v(T + 1), v(V_VD + i), v(T + 4), v(T + 2)))
    e("v_and_b32 %s, 15, %s\nv_lshrrev_b32 %s, 4, %s\nv_xor_b32 %s, %s, %s" % (v(T), v(L), v(T + 1), v(L), v(T + 1), v(T + 1), v(T)))
    e("v_lshlrev_b32 %s, 8, %s\nv_lshl_add_u32 %s, %s, 4, %s" % (v(T), v(T), v(T), v(T + 1), v(T)))
    for sl in range(4): e("v_xor_b32 %s, %d, %s" % (v(V_KA + sl), sl * 64, v(T)))
    e("v_lshrrev_b32 %s, 2, %s\nv_and_b32 %s, 7, %s\nv_lshlrev_b32 %s, 8, %s\nv_lshl_add_u32 %s, %s, 5, %s" % (v(T), v(L), v(T + 1), v(T), v(T), v(T), v(T), v(T + 1), v(T)))
    e("v_and_b32 %s, 3, %s\nv_lshl_add_u32 %s, %s, 3, %s\nv_add_u32 %s, %d, %s" % (v(T + 1), v(L), v(T), v(T + 1), v(T), v(T), L_V, v(T)))
    for db in range(8): e("v_xor_b32 %s, %d, %s" % (v(V_VA + db), db * 32, v(T)))

def gen_retry(e):
    e("ATT_RETRY:")
    e("s_waitcnt vmcnt(0)\ns_mov_b32 %s, 1" % s(S_RETRY))
    gen_kv_addr(e)
    for qb in range(4): e("v_mov_b32 %s, 0xff800000" % v(V_NEGM + 4 * qb))
    e("s_mov_b32 %s, 0" % s(S_KVOFF))
    e("RETRY_LOOP:")
    e("s_barrier")
    e("s_add_u32 m0, %s, %d\ns_nop 0" % (s(S_M0K), L_K))
    e(kv_dma("K", 0)); e(kv_dma("K", 1))
    e("s_waitcnt vmcnt(0)\ns_barrier")
    for kb in range(2):
        for sl in range(4): e(k_read(kb, sl, 0))
    e("s_waitcnt lgkmcnt(0)")
    e.ext(qk_mfmas(0, czero=True))
    e("s_nop 7")
    for qb in range(4):
        b = Sreg(0, qb, 0); m = v(V_NEGM + 4 * qb)
        for k in range(4): e("v_max3_f32 %s, %s, %s, %s" % (m, m, v(b + 2 * k), v(b + 2 * k + 1)))
    e("s_add_u32 %s, %s, 8192\ns_cmp_lt_u32 %s, %d\ns_cbranch_scc1 RETRY_LOOP" % (s(S_KVOFF), s(S_KVOFF), s(S_KVOFF), 64 * 8192))
    e("s_barrier")
    kv_preload(e)
    e("s_barrier")
    for kb in range(2):
        for sl in range(4): e(k_read(kb, sl, 0))
    e.ext(ones_ops(V_T))
    for r in range(128): e("v_accvgpr_write_b32 %s, 0" % a(A_O + r))
    for r in range(8): e("v_mov_b32 %s, 0" % v(V_L + r))
    e("s_waitcnt lgkmcnt(0)")
    e.ext(qk_mfmas(0, czero=True))
    for kb in range(2):
        for sl in range(4): e(k_read(kb, sl, 8192))
    e("s_branch ATT_START")

def gen_common_setup(e):
    T = V_T + 12; L = V_LANE
    e("s_lshl2_add_u32 %s, %s, %s" % (s(S_TMP + 1), s(S_QT), s(S_WAVE)))
    e("s_mul_i32 %s, %s, %d" % (s(S_TMP), s(S_TMP + 1), NSLAB * 4096))
    srd(e, S_AF, ptr(11), s(S_TMP), NSLAB * 4096)
    e("s_mul_i32 %s, %s, %d\ns_add_u32 %s, %s, %d" % (s(S_TMP), s(S_TMP + 1), 20 * 4096, s(S_TMP), s(S_TMP), XF_OFF))
    srd(e, S_X, ptr(11), s(S_TMP), 20 * 4096)
    e("s_mov_b64 %s, %s\ns_mov_b64 %s, %s" % (s(54, 2), s(ptr(1), 2), s(56, 2), s(ptr(2), 2)))
    e("v_bfe_u32 %s, %s, 2, 2\nv_lshrrev_b32 %s, 4, %s\nv_and_b32 %s, 3, %s" % (v(T), v(L), v(T + 1), v(L), v(T + 2), v(L)))
    e("v_lshlrev_b32 %s, 12, %s" % (v(T + 3), v(T + 1)))
    e("v_mul_u32_u24 %s, 320, %s\nv_add_u32 %s, %s, %s\nv_lshl_add_u32 %s, %s, 4, %s" % (v(T + 4), v(T), v(T + 4), v(T + 4), v(T + 3), v(T + 4), v(T + 2), v(T + 4)))
    for sl in range(4): e("v_xor_b32 %s, %d, %s" % (v(V_AQ + sl), sl * 64, v(T + 4)))
    e("v_lshl_add_u32 %s, %s, 7, %s\nv_lshl_add_u32 %s, %s, 3, %s" % (v(T + 4), v(T), v(T + 3), v(T + 4), v(T + 2), v(T + 4)))
    e("v_bfe_u32 %s, %s, 3, 2\nv_lshl_add_u32 %s, %s, 5, %s" % (v(T + 5), v(L), v(T + 4), v(T + 5), v(T + 4)))
    for u in range(4): e("v_xor_b32 %s, %d, %s" % (v(V_AG + u), u * 32, v(T + 4)))
    gen_kv_addr(e)

def gen_w_setup(e):
    T = V_T + 12; L = V_LANE
    e("v_lshrrev_b32 %s, 4, %s\nv_lshlrev_b32 %s, 2, %s\nv_and_b32 %s, 15, %s\nv_xor_b32 %s, %s, %s" % (v(T), v(L), v(T + 1), v(T), v(T + 2), v(L), v(T + 1), v(T + 1), v(T + 2)))
    e("v_lshlrev_b32 %s, 13, %s\nv_lshl_add_u32 %s, %s, 4, %s" % (v(T), v(T), v(V_WD), v(T + 1), v(T)))
    e("v_add_u32 %s, %d, %s" % (v(V_WD + 1), 4 * 8192 - 1024, v(V_WD)))
    e("v_lshrrev_b32 %s, 3, %s\nv_bfe_u32 %s, %s, 4, 1\nv_lshlrev_b32 %s, 1, %s" % (v(T), v(L), v(T + 1), v(L), v(T + 1), v(T + 1)))
    e("s_and_b32 %s, %s, 1\ns_lshl_b32 %s, %s, 2\nv_or_b32 %s, %s, %s" % (s(S_TMP), s(S_WAVE), s(S_TMP), s(S_TMP), v(T + 1), s(S_TMP), v(T + 1)))
    e("v_and_b32 %s, 7, %s\nv_xor_b32 %s, %s, %s" % (v(T + 2), v(L), v(T + 1), v(T + 1), v(T + 2)))
    e("v_mul_u32_u24 %s, 3456, %s\nv_lshl_add_u32 %s, %s, 4, %s" % (v(T), v(T), v(V_WD + 2), v(T + 1), v(T)))
    e("s_lshl_b32 %s, %s, 8\ns_sub_u32 %s, %d, %s" % (s(S_TMP), s(S_HEAD), s(S_TMP + 1), 640 * 8192, s(S_TMP)))
    srd(e, S_WQ, ptr(3), s(S_TMP), s(S_TMP + 1))
    for (d, p, sh) in ((S_WG, 6, 2048), (S_WU, 7, 3072)):
        e("s_lshl_b32 %s, %s, 7\ns_sub_u32 %s, %d, %s" % (s(S_TMP), s(S_FS), s(S_TMP + 1), 640 * 3456 + sh, s(S_TMP)))
        e("s_cmp_lt_u32 %s, 27\ns_cselect_b32 %s, %s, 0" % (s(S_FS), s(S_TMP + 1), s(S_TMP + 1)))
        srd(e, d, ptr(p), s(S_TMP), s(S_TMP + 1))
        e("s_sub_u32 %s, %s, %d\ns_subb_u32 %s, %s, 0" % (s(d), s(d), sh, s(d + 1), s(d + 1)))

def gen_kernel(e, name):
    T = V_T; L = V_LANE
    e(".text\n.globl %s\n.p2align 8\n.type %s,@function\n%s:" % (name, name, name))
    if STAMPS: e("s_memrealtime s[96:97]")
    e("s_cmp_ge_u32 s2, 256\ns_cbranch_scc1 K_END")
    e("s_load_dwordx8 %s, s[0:1], 0\ns_load_dwordx8 %s, s[0:1], 32\ns_load_dwordx8 %s, s[0:1], 64" % (s(S_PTR, 8), s(S_PTR + 8, 8), s(S_PTR + 16, 8)))
    e("v_and_b32 %s, 63, v0\nv_lshrrev_b32 %s, 6, v0\nv_lshlrev_b32 %s, 4, %s\nv_readfirstlane_b32 %s, %s" % (v(L), v(T), v(V_L16), v(L), s(S_WAVE), v(T)))
    e("s_and_b32 %s, s2, 7\ns_lshr_b32 %s, s2, 3\ns_and_b32 %s, %s, 3\ns_lshr_b32 %s, %s, 2" % (s(S_TMP), s(S_TMP + 1), s(S_HL), s(S_TMP + 1), s(S_QT), s(S_TMP + 1)))
    e("s_lshl_b32 %s, %s, 2\ns_add_u32 %s, %s, %s" % (s(S_HEAD), s(S_TMP), s(S_HEAD), s(S_HEAD), s(S_HL)))
    e("s_lshl_b32 %s, %s, 3\ns_add_u32 %s, %s, %s" % (s(S_FS), s(S_HL), s(S_FS), s(S_FS), s(S_TMP)))
    e("s_mov_b32 %s, 0" % s(S_RETRY))
    e("s_lshl_b32 %s, %s, 12\ns_lshl_b32 %s, %s, 11" % (s(S_M0W), s(S_WAVE), s(S_M0K), s(S_WAVE)))
    if STAMPS: e("v_mov_b32 v0, -1\nv_mov_b32 v19, -1")
    stamp(e, 0)
    if STAMPS: e("v_writelane_b32 v19, s96, 40\nv_writelane_b32 v0, s96, 40")
    def codetouch(e):
        e("s_getpc_b64 %s\nCODE0:" % s(S_TMP + 4, 2))
        e("s_lshr_b32 %s, s2, 3\ns_lshl2_add_u32 %s, %s, %s\ns_mul_i32 %s, %s, 640" % (s(S_EVT + 6), s(S_EVT + 6), s(S_EVT + 6), s(S_WAVE), s(S_EVT + 6), s(S_EVT + 6)))
        if opt("cpm", "v") == "s":
            e("s_min_u32 %s, %s, CODE1-CODE0-644\ns_add_u32 %s, %s, %s\ns_addc_u32 %s, %s, 0" % (s(S_EVT + 6), s(S_EVT + 6), s(S_TMP + 4), s(S_TMP + 4), s(S_EVT + 6), s(S_TMP + 5), s(S_TMP + 5)))
            for i in range(10): e("s_load_dword %s, %s, %d" % (s(4 + i), s(S_TMP + 4, 2), 64 * i))
            return
        if opt("cpm", "v") == "h":
            e("v_min_u32 %s, 9, %s\nv_lshlrev_b32 %s, 6, %s\nv_add_u32 %s, %s, %s\nv_min_u32 %s, CODE1-CODE0-4, %s" % (v(8), v(L), v(8), v(8), v(8), s(S_EVT + 6), v(8), v(8), v(8)))
        else:
            e("v_min_u32 %s, 4, %s\nv_lshlrev_b32 %s, 7, %s\nv_add_u32 %s, %s, %s\nv_min_u32 %s, CODE1-CODE0-4, %s" % (v(8), v(L), v(8), v(8), v(8), s(S_EVT + 6), v(8), v(8), v(8)))
        e("global_load_dword %s, %s, %s" % (v(V_PL), v(8), s(S_TMP + 4, 2)))
    CPOS = opt("cpos", 0); WPOS = opt("wpos", 0)
    if CPOS == 0: codetouch(e)
    if CPOS == 9: e("CODE0:")
    gen_ln_loads(e)
    e("s_add_u32 %s, %s, %d\ns_addc_u32 %s, %s, 0\ns_load_dword %s, %s, 0" % (s(S_TMP + 2), s(ptr(11)), FL_OFF + EP_OFF, s(S_TMP + 3), s(ptr(11) + 1), s(S_EPOCH), s(S_TMP + 2, 2)))
    ny = 0
    if CPOS == 1: codetouch(e); ny += 1
    gen_w_setup(e)
    e("s_lshl_b32 %s, %s, 16\ns_mul_i32 %s, %s, %d" % (s(S_WQOFF), s(S_WAVE), s(S_WGOFF), s(S_WAVE), 8 * 3456))
    WT = max(opt("wt", 6), 1)
    X = V_TC
    e("s_lshl2_add_u32 %s, %s, %s\ns_add_u32 %s, %s, %d" % (s(S_TMP), s(S_QT), s(S_WAVE), s(S_TMP), s(S_TMP), 32 * NI))
    e("v_lshrrev_b32 %s, 1, %s\nv_min_u32 %s, %d, %s\nv_lshlrev_b32 %s, 5, %s\nv_add_u32 %s, %s, %s" % (v(X), v(L), v(X), WT - 1, v(X), v(X), v(X), v(X), s(S_TMP), v(X)))
    e("v_and_b32 %s, 1, %s\nv_lshlrev_b32 %s, 7, %s\nv_lshl_add_u32 %s, %s, 13, %s\nv_mul_u32_u24 %s, 3456, %s" % (v(X + 1), v(L), v(X + 1), v(X + 1), v(X + 1), v(X), v(X + 1), v(X), v(X)))
    w0 = E(); wt = E()
    for sl in range(NI): w_slab(w0, sl, True)
    wt("buffer_load_dword %s, %s, %s, 0 offen" % (v(V_PL + 1), v(X + 1), s(S_WQ, 4)))
    wt("buffer_load_dword %s, %s, %s, 0 offen offset:2048" % (v(V_PL + 2), v(X), s(S_WG, 4)))
    wt("buffer_load_dword %s, %s, %s, 0 offen offset:3072" % (v(V_DUMP), v(X), s(S_WU, 4)))
    if opt("wt", 6) == 0: wt.L = []
    early = {0: w0.L + wt.L, 1: [], 2: w0.L, 3: w0.L}[WPOS]
    mid = {0: [], 1: w0.L + wt.L, 2: wt.L, 3: []}[WPOS]
    after = wt.L if WPOS == 3 else []
    e.ext(early); ny += sum(x.startswith("buffer") for x in early)
    LATE = opt("late", 2)
    srd(e, S_FL, ptr(11), FL_OFF, EP_OFF + 4096)
    e("s_lshl_b32 %s, %s, 5\ns_add_u32 %s, %s, %s\ns_lshl_b32 %s, %s, %d" % (s(S_MYFL), s(S_QT), s(S_MYFL), s(S_MYFL), s(S_HEAD), s(S_MYFL), s(S_MYFL), FSH))
    e("v_min_u32 %s, 31, %s\nv_lshlrev_b32 %s, %d, %s\ns_lshl_b32 %s, %s, %d" % (v(V_PL + 3), v(L), v(V_PL + 3), FSH, v(V_PL + 3), s(S_XOFF), s(S_QT), FSH + 5))
    def rest():
        gen_common_setup(e)
        for i in range(8): e("v_add_u32 %s, 65536, %s" % (v(V_AHI + i), v(V_AQ + i)))
        e("v_mov_b32 %s, %d" % (v(V_ZA), L_MISC + 512))
        for i in range(4): e("v_mov_b32 %s, 0" % v(52 + i))
        e("ds_write_b128 %s, %s" % (v(V_ZA), v(52, 4)))
    stamp(e, 1)
    gen_ln_compute(e, ny, mid)
    e.ext(after)
    stamp(e, 29)
    if LATE == 1: rest()
    e("s_mul_i32 %s, %s, 0x9e3779b1\ns_add_u32 %s, %s, 0x7f4a7c15" % (s(S_TAG), s(S_EPOCH), s(S_TAG), s(S_TAG)))
    e("s_waitcnt vmcnt(%d)\ns_barrier" % len(after))
    stamp(e, 18)
    e("s_cmp_lg_u32 %s, 0\ns_cbranch_scc1 NOFL1" % s(S_WAVE))
    set_flag(e, 1)
    e("NOFL1:")
    if LATE == 2: rest()
    e("s_cmp_lg_u32 %s, 0\ns_cbranch_scc1 SPUN_XN" % s(S_WAVE))
    e(poll_load(False, s(S_XOFF)))
    e("s_waitcnt vmcnt(0)")
    poll_spin(e, False, s(S_XOFF), 1, "XN")
    e("s_barrier")
    stamp(e, 2)
    e("s_cmp_ge_u32 %s, 27\ns_cbranch_scc1 LIGHT" % s(S_FS))
    gen_proj(e, True, "H")
    e("PROJ_DONE:")
    head = gen_attention(e)
    gen_tail(e, head)
    e("K_END:\ns_endpgm")
    gen_events(e)
    gen_retry(e)
    e("LIGHT:")
    gen_proj(e, False, "L")
    e("s_branch PROJ_DONE")
    e("CODE1:")
    e(kd(name))

def main():
    e = E()
    hdr = open("cdna_kernels/%s.s.ref" % NAME).read().split("; Override launch")[0]
    e.L += hdr.strip().split("\n")
    e("; @launch grid=(256,1,1) block=(256,1,1) lds=%d" % LDS_BYTES)
    e('.amdgcn_target "amdgcn-amd-amdhsa--gfx950"')
    gen_kernel(e, NAME + "_kernel")
    t = re.sub(r" ;#\w*", "", e.text()).replace("NVWAIT", str(min(NV01)))
    if VERBOSE: print("NV01", NV01)
    errs = [x for x in asmcheck.check(t, [NAME + "_kernel"]) if x.count("_load_dword v%d," % V_DUMP) != 2 and not any(y in x for y in poll_load(True).split("\n")[-4:])]
    if errs:
        print("\n".join(errs[:40])); print(len(errs), "problems")
    out = [x for x in sys.argv[1:] if x.endswith(".s")]
    open(out[0] if out else "cdna_kernels/%s.s" % NAME, "w").write(t)

if __name__ == "__main__":
    main()
```

```python
import sys, math, os, struct, re
from sched import Gaps, auto_lgkm
import asmcheck

NAME = "recurrent_scan__mha_block_cached__glu_gated_reglu__prompt"
MF = "v_mfma_f32_16x16x32_bf16"
OPT = dict(x.split("=") for x in sys.argv[1:] if "=" in x)
def opt(k, d): return type(d)(OPT.get(k, d))
VERBOSE = "-v" in sys.argv
STAMPS = "--stamps" in sys.argv
STFL = opt("stfl", " sc1").replace("_", " ")
LDFL = opt("ldfl", " sc1").replace("_", " ")

NSLAB = 182
QSC = math.log2(math.e) / math.sqrt(128.0)
DSC = 1.0 / (QSC * QSC)
WF_OFF = 0x1800000
WF_BYTES = 8 * NSLAB * 5120
XF_OFF = 0x2001000
XP_OFF = 0x2800000
MAXST = 4
FL_OFF = 0x2300000

class E:
    def __init__(self): self.L = []
    def __call__(self, s):
        for x in s.split("\n"):
            x = x.strip()
            if x: self.L.append(x)
    def ext(self, l): self.L += l
    def text(self): return "\n".join(self.L) + "\n"

def v(a, n=1): return "v%d" % a if n == 1 else "v[%d:%d]" % (a, a + n - 1)
def a(a_, n=1): return "a%d" % a_ if n == 1 else "a[%d:%d]" % (a_, a_ + n - 1)
def s(a_, n=1): return "s%d" % a_ if n == 1 else "s[%d:%d]" % (a_, a_ + n - 1)
def f2u(x): return "0x%08x" % struct.unpack("<I", struct.pack("<f", x))[0]

def kd(name, vgpr=512, acc=256):
    return """.section .rodata,"a"
.p2align 6
.amdhsa_kernel %s
  .amdhsa_next_free_vgpr %d
  .amdhsa_next_free_sgpr 102
  .amdhsa_accum_offset %d
  .amdhsa_group_segment_fixed_size 0
  .amdhsa_kernarg_size 96
  .amdhsa_user_sgpr_count 2
  .amdhsa_user_sgpr_kernarg_segment_ptr 1
  .amdhsa_system_sgpr_workgroup_id_x 1
.end_amdhsa_kernel
""" % (name, vgpr, acc)

def stamp(e, i):
    if not STAMPS: return
    e("s_waitcnt lgkmcnt(0)\ns_memtime s[98:99]\ns_memrealtime s[100:101]\ns_waitcnt lgkmcnt(0)")
    e("v_writelane_b32 v0, s98, %d\nv_writelane_b32 v19, s100, %d" % (i, i))
def stamp_fin(e):
    if not STAMPS: return
    if opt("echo", ""):
        i, j = [int(x) for x in opt("echo", "").split(".")]
        e("s_nop 1\nv_readlane_b32 s96, v19, %d\nv_readlane_b32 s97, v19, %d\nv_readlane_b32 s98, v19, 16\ns_nop 3\ns_sub_u32 s96, s97, s96\ns_min_u32 s96, s96, 20000\ns_cmp_%s_u32 %s, 27\ns_cselect_b32 s96, s96, 0" % (i, j, "ge" if opt("el", 0) else "lt", s(S_FS)))
        if opt("ecyc", 0):
            e("v_readlane_b32 s96, v0, %d\nv_readlane_b32 s97, v0, %d\ns_nop 3\ns_sub_u32 s96, s97, s96\ns_lshr_b32 s96, s96, 3\ns_min_u32 s96, s96, 20000\ns_cmp_lt_u32 %s, 27\ns_cselect_b32 s96, s96, 0" % (i, j, s(S_FS)))
            i = 40
        if opt("eabs", 0): e("v_readlane_b32 s98, v19, %d\ns_add_u32 s96, s96, 10000\ns_nop 3" % i)
        e("ECHO:\ns_sleep 1\ns_memrealtime s[100:101]\ns_waitcnt lgkmcnt(0)\ns_sub_u32 s97, s100, s98\ns_cmp_lt_u32 s97, s96\ns_cbranch_scc1 ECHO")
        return
    if opt("dbgout", -1) >= 0:
        e("s_cmp_lg_u32 s2, %d\ns_cbranch_scc1 NODBG\ns_cmp_lg_u32 %s, 0\ns_cbranch_scc1 NODBG" % (opt("dbgout", -1), s(S_WAVE)))
        e("v_readlane_b32 s98, v19, 0\ns_nop 3\nv_subrev_u32 v18, s98, v19\nv_lshlrev_b32 v20, 2, v1\nv_subrev_u32 v20, 4, v20")
        e("s_mov_b32 s96, %s\ns_mov_b32 s97, %s\ns_mov_b32 s98, 64\ns_mov_b32 s99, 0x20000" % (s(ptr(10)), s(ptr(10) + 1)))
        e("buffer_store_dword v18, v20, s[96:99], 0 offen\ns_waitcnt vmcnt(0)\nNODBG:")
        return
    if opt("wsb", 0): e("s_sub_u32 %s, %s, %d\ns_subb_u32 %s, %s, 0" % (s(ptr(11)), s(ptr(11)), opt("wsb", 0) << 20, s(ptr(11) + 1), s(ptr(11) + 1)))
    e("s_lshl_b32 s98, s2, 2\ns_add_u32 s98, s98, %s\ns_lshl_b32 s98, s98, 9\ns_add_u32 s98, s98, %d" % (s(S_WAVE), 0x4000000))
    e("s_add_u32 s96, %s, s98\ns_addc_u32 s97, %s, 0\ns_mov_b32 s98, 512\ns_mov_b32 s99, 0x20000" % (s(ptr(11)), s(ptr(11) + 1)))
    e("v_mov_b32 v18, v0\nv_lshlrev_b32 v20, 3, v1\nbuffer_store_dwordx2 v[18:19], v20, s[96:99], 0 offen\ns_waitcnt vmcnt(0)")

def srd(e, d, base, off_lo, nbytes):
    e("s_add_u32 %s, %s, %s" % (s(d), s(base), off_lo))
    e("s_addc_u32 %s, %s, 0" % (s(d + 1), s(base + 1)))
    e("s_mov_b32 %s, %s" % (s(d + 2), nbytes))
    e("s_mov_b32 %s, 0x20000" % s(d + 3))

def uncond(x): return False
def resolve_vm(lines):
    out = []; ops = []; waited = set(); lastm0 = None; done = 0; marks = {}
    for x in lines:
        mm = re.search(r"vmcnt\((\d+)\)", x)
        if mm and not x.startswith("@") and uncond(x): done = max(done, len(ops) - int(mm.group(1)))
        if x.startswith(("buffer_", "global_")) and len(ops) - done >= 58:
            out.append("s_waitcnt vmcnt(52)"); done = len(ops) - 52
        if x.startswith("s_add_u32 m0,"): lastm0 = x.split(",")[1].strip()
        if " lds" in x and ";#" in x:
            tg = x.split(";#")[1].strip()
            exp = s(S_M0W) if tg.startswith("w") else (s(S_TRM) if tg == "trs" else s(S_M0K))
            if tg.startswith("D"): exp = s(T_M0W)
            assert lastm0 == exp, "M0 collision at %s" % x
        if x.startswith("MARK"):
            marks[x.split()[1]] = len(ops); continue
        m = re.search(r"SINCE\{(\w+)\}", x)
        if m: x = x.replace(m.group(0), "vmcnt(%d)" % min(63, len(ops) - marks[m.group(1)]))
        m = re.search(r"WAITVM\{([^}]*)\}", x)
        if m:
            need = set(m.group(1).split(","))
            waited |= need
            idx = [i for i, t in enumerate(ops) if t in need]
            n = len(ops) - 1 - max(idx) if idx else 63
            done = max(done, len(ops) - min(n, 63))
            x = x.replace(m.group(0), "vmcnt(%d)" % min(n, 63))
        elif x.startswith(("buffer_", "global_")):
            t = x.split(";#")[1].strip() if ";#" in x else ""
            assert t not in waited, "op %s issued after its wait" % t
            ops.append(t)
        out.append(x)
    return out

S_FL = 4
S_X, S_WQ, S_WG, S_WU, S_K, S_V, S_AF, S_T, S_WF = 8, 12, 16, 20, 24, 28, 32, 36, 40
S_PTR = 44
S_WAVE, S_HEAD, S_QT, S_FS = 68, 69, 70, 71
S_XOFF, S_WQOFF, S_WGOFF, S_M0W = 72, 73, 74, 75
S_KVOFF, S_M0K, S_TOG, S_RETRY = 76, 77, 78, 79
S_TMP = 80
S_TRS, S_TRM, S_TRD, S_TRU = 88, 89, 90, 91
S_EPOCH, S_TAG, S_MYFL = 92, 93, 94
S_HL = 3
S_EVT = 85
def EV(n): return (10 + 2 * n) * 8192
EVT0 = EV(3)
EVTE = (62 + 10) * 8192
NWH = opt("nwh", 0)
S_LN = 84
def ptr(i): return S_PTR + 2 * i

L_K = 0
L_V = 65536
RW = 8
L_TR = 114688
L_MISC = 155648
LDS_BYTES = 163840

V_LANE = 1
V_L16 = 2
V_WD = 3
V_TRA = 6
V_AQ = 10
V_AG = 14
V_KA = 20
V_VA = 24
V_KD = 32
V_VD = 34
V_DUMP = 18
V_SIDX = 7
V_ZA = 6
NL = 2
VSH = 4
NOE = 4
V_PW = 5
PWARM = opt("pw", 0)
V_TC = 62
V_PL = 36
V_T = 40
V_ACCQ = 64
V_ACCG = 192
V_Q = 64
V_S = 128
V_P = 192
V_NEGM = 224
V_L = 240
A_ACCU = 0
XD = 8
A_X = 64
A_W = 192
A_TR = 208
V_ONE = 56
A_O = 64
A_KF = 224
A_KF1 = 192
A_VF = 0
V_AHI = 44

def qacc(blk, qb): return (V_S if blk & 1 else V_Q) + ((blk >> 1) * 4 + qb) * 4
def wslot(sl): return (sl + 4) % RW
def accreg(blk, qb):
    if blk < 8: return v(qacc(blk, qb), 4)
    if blk < 12: return v(V_ACCG + ((blk - 8) * 4 + qb) * 4, 4)
    return a(A_ACCU + ((blk - 12) * 4 + qb) * 4, 4)

def w_read(dst, blk, j, rel):
    if blk < 8:
        ar = V_AQ + (blk >> 1); off = rel + j * 1024 + (blk & 1) * 8
    else:
        ar = V_AG + ((blk - 8) & 3); off = rel + 2048 + (1024 if blk >= 12 else 0) + j * 512
    if rel >= 65536: ar += V_AHI - V_AQ; off -= 65536
    assert 0 <= off < 65536
    return "ds_read_b64_tr_b16 %s, %s offset:%d" % (a(dst + 2 * j, 2), v(ar), off)

def w_dma(heavy, tag):
    l = ["buffer_load_dwordx4 %s, %s, %s offen lds ;#%s" % (v(V_WD), s(S_WQ, 4), s(S_WQOFF), tag),
         "buffer_load_dwordx4 %s, %s, %s offen offset:1024 lds ;#%s" % (v(V_WD + 1), s(S_WQ, 4), s(S_WQOFF), tag)]
    if heavy:
        l += ["buffer_load_dwordx4 %s, %s, %s offen offset:2048 lds ;#%s" % (v(V_WD + 2), s(S_WG, 4), s(S_WGOFF), tag),
              "buffer_load_dwordx4 %s, %s, %s offen offset:3072 lds ;#%s" % (v(V_WD + 2), s(S_WU, 4), s(S_WGOFF), tag)]
    return l

def x_load(sl, qb):
    return "buffer_load_dwordx4 %s, %s, %s, %s offen offset:%d%s ;#x%d" % (a(A_X + ((sl % XD) * 4 + qb) * 4, 4), v(V_L16), s(S_X, 4), s(S_XOFF), qb * 1024, LDFL, sl)

def kv_dma(which, i, tag=""):
    vo = (V_KD if which == "K" else V_VD) + i
    return "buffer_load_dwordx4 %s, %s, %s offen offset:%d%s lds ;#%s" % (v(vo), s(S_K if which == "K" else S_V, 4), s(S_KVOFF), 1024 * i, opt("kvfl", "_sc1").replace("_", " "), tag)

FSH = opt("fsh", 2)
EP_OFF = 65536
def set_flag(e, stage):
    if opt("fwide", 0):
        n = (1 << FSH) // 8
        e("s_add_u32 %s, %s, %d\ns_mov_b64 exec, 0x%x\nv_mov_b32 %s, %s\nv_mov_b32 %s, %s\nv_lshlrev_b32 %s, 3, %s" % (s(S_TMP + 7), s(S_TAG), stage, (1 << n) - 1, v(V_PL), s(S_TMP + 7), v(V_PL + 1), s(S_TMP + 7), v(V_PL + 2), v(V_LANE)))
        e("buffer_store_dwordx2 %s, %s, %s, %s offen sc1" % (v(V_PL, 2), v(V_PL + 2), s(S_FL, 4), s(S_MYFL)))
    else:
        e("s_add_u32 %s, %s, %d\ns_mov_b64 exec, 1\nv_mov_b32 %s, %s" % (s(S_TMP + 7), s(S_TAG), stage, v(V_PL), s(S_TMP + 7)))
        e("buffer_store_dword %s, off, %s, %s sc1" % (v(V_PL), s(S_FL, 4), s(S_MYFL)))
    e("s_mov_b64 exec, -1")

def poll_load(allq, qoff=None):
    if allq and FSH > 2:
        return "v_lshlrev_b32 %s, %d, %s\n" % (v(V_DUMP), FSH + 2, v(V_LANE)) + "\n".join("buffer_load_dword %s, %s, %s, 0 offen offset:%d sc1" % (v(V_PL + i), v(V_DUMP), s(S_FL, 4), i << FSH) for i in range(4))
    if allq: return "buffer_load_dwordx4 %s, %s, %s, 0 offen sc1" % (v(V_PL, 4), v(V_L16), s(S_FL, 4))
    return "buffer_load_dword %s, %s, %s, %s offen sc1" % (v(V_PL), v(V_PL + 3), s(S_FL, 4), qoff)

def poll_spin(e, allq, qoff, stage, tag):
    e("s_mov_b32 %s, 0\ns_add_u32 %s, %s, %d" % (s(S_TMP + 7), s(S_TMP + 6), s(S_TAG), stage))
    e("SPIN_%s:" % tag)
    n = 4 if allq else 1
    for i in range(n): e("v_subrev_u32 %s, %s, %s" % (v(V_PL + i), s(S_TMP + 6), v(V_PL + i)))
    if allq: e("v_max3_u32 %s, %s, %s, %s\nv_max_u32 %s, %s, %s" % (v(V_PL), v(V_PL), v(V_PL + 1), v(V_PL + 2), v(V_PL), v(V_PL), v(V_PL + 3)))
    e("v_cmp_lt_u32 vcc, %d, %s" % (MAXST - stage, v(V_PL)))
    e("s_add_u32 %s, %s, 1" % (s(S_TMP + 7), s(S_TMP + 7)))
    e("s_cmp_eq_u64 vcc, 0\ns_cbranch_scc1 SPUN_%s" % tag)
    e("s_cmp_ge_u32 %s, 0x40000\ns_cbranch_scc1 SPUN_%s" % (s(S_TMP + 7), tag))
    e("s_sleep %d" % opt("slp", 2))
    e(poll_load(allq, qoff))
    e("s_waitcnt vmcnt(0)\ns_branch SPIN_%s" % tag)
    e("SPUN_%s:" % tag)

def zero_acc(e, heavy=True):
    for r in range(V_ACCQ, 256): e("v_mov_b32 %s, 0" % v(r))
    for r in range(A_ACCU, A_ACCU + 64): e("v_accvgpr_write_b32 %s, 0" % a(r))

NI = opt("ni", 1)

def gen_ln_loads(e):
    T = V_T; L = V_LANE
    R = V_ACCQ
    e("v_bfe_u32 %s, %s, 1, 3\nv_lshrrev_b32 %s, 4, %s\nv_and_b32 %s, 1, %s" % (v(T), v(L), v(T + 1), v(L), v(T + 2), v(L)))
    e("v_mul_u32_u24 %s, 1280, %s\nv_lshl_add_u32 %s, %s, 4, %s\nv_lshl_add_u32 %s, %s, 3, %s" % (v(T + 3), v(T), v(T + 3), v(T + 1), v(T + 3), v(T + 3), v(T + 2), v(T + 3)))
    e("s_lshl_b32 %s, %s, 5\ns_add_u32 %s, %s, %s\ns_mul_i32 %s, %s, %d\ns_mul_i32 %s, %s, 320" % (s(S_TMP), s(S_QT), s(S_TMP), s(S_TMP), s(S_HEAD), s(S_TMP), s(S_TMP), 8 * 1280, s(S_TMP + 1), s(S_WAVE)))
    e("s_waitcnt lgkmcnt(0)")
    if opt("wsb", 0): e("s_add_u32 %s, %s, %d\ns_addc_u32 %s, %s, 0" % (s(ptr(11)), s(ptr(11)), opt("wsb", 0) << 20, s(ptr(11) + 1), s(ptr(11) + 1)))
    if opt("tlb", 1) == 1: e("global_load_dword %s, v9, s[8:9]" % v(V_TRA))
    srd(e, S_T, ptr(0), s(S_TMP), 8 * 1280)
    for i in range(5): e("buffer_load_dwordx2 %s, %s, %s, %s offen offset:%d" % (v(R + 2 * i, 2), v(T + 3), s(S_T, 4), s(S_TMP + 1), 64 * i))

def gen_ln_compute(e, nyounger, mid=()):
    T = V_T; L = V_LANE
    R = V_ACCQ; U = R + 10
    e("v_and_b32 %s, 15, %s\nv_lshlrev_b32 %s, 3, %s\nv_lshl_add_u32 %s, %s, 8, %s" % (v(T + 3), v(L), v(T + 3), v(T + 3), v(T + 3), v(T + 1), v(T + 3)))
    e("s_lshr_b32 %s, %s, 3\ns_lshl2_add_u32 %s, %s, %s\ns_mul_i32 %s, %s, %d" % (s(S_TMP), s(S_HEAD), s(S_TMP), s(S_QT), s(S_TMP), s(S_TMP), s(S_TMP), 20 * 4096))
    e("s_bfe_u32 %s, %s, 0x20001\ns_lshl_b32 %s, %s, 10\ns_add_u32 %s, %s, %s" % (s(S_TMP + 1), s(S_HEAD), s(S_TMP + 1), s(S_TMP + 1), s(S_TMP), s(S_TMP), s(S_TMP + 1)))
    e("s_and_b32 %s, %s, 1\ns_lshl_b32 %s, %s, 7\ns_add_u32 %s, %s, %s\ns_add_u32 %s, %s, %d" % (s(S_TMP + 1), s(S_HEAD), s(S_TMP + 1), s(S_TMP + 1), s(S_TMP), s(S_TMP), s(S_TMP + 1), s(S_TMP), s(S_TMP), XF_OFF))
    srd(e, S_LN, ptr(11), s(S_TMP), 20 * 4096)
    e("s_mul_i32 %s, %s, %d" % (s(S_TMP), s(S_WAVE), 5 * 4096))
    e("v_lshlrev_b32 %s, 5, %s\nv_add_u32 %s, %d, %s\ns_lshl_b32 %s, %s, 3\nv_add_u32 %s, %s, %s" % (v(T + 4), v(T), v(T + 4), L_MISC, v(T + 4), s(S_TMP + 1), s(S_WAVE), v(T + 5), s(S_TMP + 1), v(T + 4)))
    A0 = T + 6; M = T + 8
    e("s_waitcnt vmcnt(%d)" % nyounger)
    stamp(e, 17)
    e.ext(list(mid))
    for d in range(10): e("v_lshlrev_b32 %s, 16, %s\nv_and_b32 %s, 0xffff0000, %s" % (v(U + 2 * d), v(R + d), v(U + 2 * d + 1), v(R + d)))
    e("v_pk_add_f32 %s, %s, %s\nv_pk_add_f32 %s, %s, %s" % (v(A0, 2), v(U, 2), v(U + 2, 2), v(M, 2), v(U + 4, 2), v(U + 6, 2)))
    for d in range(4, 10): e("v_pk_add_f32 %s, %s, %s" % (v((A0, M)[d & 1], 2), v((A0, M)[d & 1], 2), v(U + 2 * d, 2)))
    def reduce(dst):
        e("v_pk_add_f32 %s, %s, %s" % (v(A0, 2), v(A0, 2), v(M, 2) if dst == M else v(T + 10, 2)))
        e("v_add_f32 %s, %s, %s\ns_nop 1" % (v(A0), v(A0), v(A0 + 1)))
        e("v_add_f32_dpp %s, %s, %s quad_perm:[1,0,3,2] row_mask:0xf bank_mask:0xf" % (v(A0), v(A0), v(A0)))
        for sw in ("v_permlane32_swap_b32", "v_permlane16_swap_b32"):
            e("v_mov_b32 %s, %s\ns_nop 1\n%s %s, %s\nv_add_f32 %s, %s, %s" % (v(A0 + 1), v(A0), sw, v(A0), v(A0 + 1), v(A0), v(A0), v(A0 + 1)))
    reduce(M)
    e("v_mul_f32 %s, %s, %s\nv_mul_f32 %s, %s, %s" % (v(M), f2u(-1.0 / 160), v(A0), v(M + 1), f2u(-1.0 / 160), v(A0)))
    for d in range(10): e("v_pk_add_f32 %s, %s, %s" % (v(U + 2 * d, 2), v(U + 2 * d, 2), v(M, 2)))
    e("v_pk_mul_f32 %s, %s, %s\nv_pk_mul_f32 %s, %s, %s" % (v(A0, 2), v(U, 2), v(U, 2), v(T + 10, 2), v(U + 2, 2), v(U + 2, 2)))
    for d in range(2, 10): e("v_pk_fma_f32 %s, %s, %s, %s" % (v((A0, T + 10)[d & 1], 2), v(U + 2 * d, 2), v(U + 2 * d, 2), v((A0, T + 10)[d & 1], 2)))
    reduce(None)
    e("v_mov_b32 %s, %s" % (v(M + 1), v(A0)))
    e("ds_write_b64 %s, %s\ns_waitcnt lgkmcnt(0)\ns_barrier" % (v(T + 5), v(M, 2)))
    X = T + 12
    e("ds_read_b128 %s, %s\nds_read_b128 %s, %s offset:16\ns_waitcnt lgkmcnt(0)" % (v(X, 4), v(T + 4), v(X + 4, 4), v(T + 4)))
    e("v_pk_add_f32 %s, %s, %s\nv_pk_add_f32 %s, %s, %s\nv_pk_add_f32 %s, %s, %s" % (v(A0, 2), v(X, 2), v(X + 2, 2), v(T + 10, 2), v(X + 4, 2), v(X + 6, 2), v(A0, 2), v(A0, 2), v(T + 10, 2)))
    e("v_mul_f32 %s, 0.25, %s" % (v(A0), v(A0)) if False else "v_mul_f32 %s, %s, %s" % (v(A0), f2u(0.25), v(A0)))
    for k in range(4): e("v_sub_f32 %s, %s, %s" % (v(X + 2 * k), v(X + 2 * k), v(A0)))
    e("v_mul_f32 %s, %s, %s" % (v(X + 1), v(X), v(X)))
    for k in range(1, 4): e("v_fmac_f32 %s, %s, %s" % (v(X + 1), v(X + 2 * k), v(X + 2 * k)))
    e("v_fmac_f32 %s, %s, %s" % (v(A0 + 1), f2u(160.0), v(X + 1)))
    e("v_mov_b32 %s, %s\nv_fmac_f32 %s, %s, %s\nv_rsq_f32 %s, %s" % (v(X), f2u(1e-5 * DSC), v(X), f2u(DSC / 640), v(A0 + 1), v(X), v(X)))
    e("v_sub_f32 %s, %s, %s" % (v(M), v(A0), v(M)))
    e("v_mov_b32 %s, %s\nv_mul_f32 %s, %s, %s\nv_mul_f32 %s, %s, %s" % (v(X + 1), v(X), v(M + 1), v(M), v(X), v(M), v(M), v(X)))
    for i in range(5):
        for d in (2 * i, 2 * i + 1): e("v_pk_fma_f32 %s, %s, %s, %s" % (v(U + 2 * d, 2), v(U + 2 * d, 2), v(X, 2), v(M, 2)))
        for d in (2 * i, 2 * i + 1): e("v_cvt_pk_bf16_f32 %s, %s, %s" % (v(R + d), v(U + 2 * d), v(U + 2 * d + 1)))
        e("buffer_store_dwordx2 %s, %s, %s, %s offen%s" % (v(R + 2 * i, 2), v(T + 3), s(S_LN, 4), s(S_TMP), STFL))
        if i < 4: e("s_add_u32 %s, %s, 4096" % (s(S_TMP), s(S_TMP)))

def w_slab(e, sl, heavy):
    e("s_add_u32 m0, %s, %d\ns_nop 0" % (s(S_M0W), wslot(sl) * 16384))
    e.ext(w_dma(heavy, "w%d" % sl))
    e("s_add_u32 %s, %s, %d\ns_add_u32 %s, %s, %d" % (s(S_WQOFF), s(S_WQOFF), 32 * 8192, s(S_WGOFF), s(S_WGOFF), 32 * 3456))

def ones_ops(tmp):
    L = V_LANE
    return ["v_lshrrev_b32 %s, 4, %s" % (v(tmp), v(L)), "v_xor_b32 %s, %s, %s" % (v(tmp), v(tmp), v(L)), "v_bfe_u32 %s, %s, 1, 1" % (v(tmp), v(tmp)),
            "v_subrev_u32 %s, 1, %s" % (v(tmp), v(tmp)), "v_and_b32 %s, 0x3f803f80, %s" % (v(tmp), v(tmp))] + \
           ["v_mov_b32 %s, %s" % (v(V_ONE + r), v(tmp)) for r in range(4)] + \
           ["v_and_b32 %s, 1, %s" % (v(V_SIDX), v(L)), "v_mul_u32_u24 %s, 0xaaaa, %s" % (v(V_SIDX), v(V_SIDX)), "v_or_b32 %s, 0x4444, %s" % (v(V_SIDX), v(V_SIDX))]

NV01 = []
def gen_proj(e0, heavy, tag):
    e = E()
    T = V_T; L = V_LANE
    NS = opt("ns", 4) if heavy else 0
    GU = [b for fb in range(4) for b in (12 + fb, 8 + fb)]
    PC0 = opt("pc0", 2) if heavy else opt("lpc0", 20)
    def grp(lo, hi):
        out = []; sl = lo
        while sl < hi:
            if sl >= PC0 and sl + 1 < hi: out.append((sl, sl + 1)); sl += 2
            else: out.append((sl,)); sl += 1
        return out
    units = []
    for ss in grp(0, 20 - NS): units.append((ss, list(range(8)) + (GU if heavy else [])))
    for part in {0: (GU,), 1: (GU[:4], GU[4:]), 2: (GU[:2], GU[2:4], GU[4:6], GU[6:])}[opt("split", 2)]:
        for ss in grp(20 - NS, 20): units.append((ss, part))
    for ss in grp(20 - NS, 20): units.append((ss, list(range(8))))
    order = []; mf = []; firstuse = []
    for ss, bl in units:
        for b in bl:
            F0 = len(order)
            for sl in ss: order.append((sl, b)); firstuse.append(4 * F0)
            for qb in (range(4) if (not opt("psn", 1) or (F0 // len(ss)) % 2 == 0) else range(3, -1, -1)):
                idx = list(range(len(ss)))
                if qb & 1: idx.reverse()
                for i in idx:
                    sl = ss[i]
                    c = "0" if (0 in ss and i == idx[0]) else accreg(b, qb)
                    mf.append("%s %s, %s, %s, %s" % (MF, accreg(b, qb), a(A_W + 4 * ((F0 + i) % 8), 4), a(A_X + ((sl % XD) * 4 + qb) * 4, 4), c))
    NF = len(order)
    NP = len(mf)
    for sl in range(4):
        for kb in range(2):
            for qb in range(4):
                d = v(Sreg(0, qb, kb), 4)
                mf.append("%s %s, %s, %s, %s" % (MF, d, a(A_KF + (kb * 4 + sl) * 4, 4), v(V_Q + (sl * 4 + qb) * 4, 4), d if sl else "0"))
    G = Gaps(mf)
    ustart = []; n = 0
    for ss, bl in units: ustart.append(n); n += len(bl) * len(ss)
    lastF = {}; lastblk = {}; firstF = {}
    for u, (ss, bl) in enumerate(units):
        for k, sl in enumerate(ss):
            lastF[sl] = ustart[u] + len(bl) * len(ss) - 1
            firstF.setdefault(sl, ustart[u] + k * len(bl))
        for i, b in enumerate(bl): lastblk[b] = ustart[u] + (i + 1) * len(ss) - 1
    G1 = lambda sl: 4 * firstF[sl]
    DA = opt("pda", 6)
    rd = lambda F, j: w_read(A_W + 4 * (F % 8), order[F][1], j, wslot(order[F][0]) * 16384)
    pre_reads = [rd(F, j) for F in range(DA) for j in range(2)]
    TRW = opt("trw", 15) if heavy else 14
    bars = {}; cur = 0; seen = set(units[0][0])
    def barrier(u, lo, need):
        bb = G.place("b", "s_barrier", lo)
        G.put(bb, "s", "s_waitcnt WAITVM{%s}" % ",".join(need))
        bars[u] = bb
        return bb + 1
    for F in range(DA, NF):
        lo = 4 * (F - DA)
        if F in ustart:
            u = ustart.index(F)
            need = [k + str(sl) for sl in units[u][0] if sl not in seen for k in "xw"]
            seen |= set(units[u][0])
            if need or units[u][1][0] == 0: cur = barrier(u, max(cur, lo - 1), need or ["none"])
        if (opt("midb", 0) or F - DA - 1 == ustart[-1]) and (F - DA - 1) in ustart and len(units[ustart.index(F - DA - 1)][0]) == 2 and units[ustart.index(F - DA - 1)][1][0] == 0:
            cur = barrier(1000 + F, max(cur, lo - 1), ["none"])
        for j in range(2): cur = G.place("d", rd(F, j), max(cur, lo + 2 * j), firstuse[F] - 6) + 1
    NU = len(units)
    cur = barrier(NU, cur + 1, ["K0", "K1"])
    kord = [(kb, sl) for sl in range(4) for kb in range(2)]
    for kb, sl in kord: cur = G.place("d", k_read(kb, sl, 0), cur) + 1
    barrier(NU + 1, max(cur + 5, NP), ["none"])
    kpost = []
    for i, (kb, sl) in enumerate(kord):
        lo = NP + 4 * i + 3
        try: cur = G.place("d", k_read(kb, sl, 8192), max(cur, lo)) + 1
        except RuntimeError: kpost.append(k_read(kb, sl, 8192))
    freeg = lambda sl: min(x for x in bars.values() if x >= 4 * lastF[sl])
    def wseq(sl):
        return [("s", "s_add_u32 m0, %s, %d" % (s(S_M0W), wslot(sl) * 16384))] + [("m", x) for x in w_dma(heavy, "w%d" % sl)] + \
               [("s", "s_add_u32 %s, %s, %d\ns_add_u32 %s, %s, %d" % (s(S_WQOFF), s(S_WQOFF), 32 * 8192, s(S_WGOFF), s(S_WGOFF), 32 * 3456))]
    def xseq(sl): return [("m", x_load(sl, qb)) for qb in range(4)] + [("s", "s_add_u32 %s, %s, 4096" % (s(S_XOFF), s(S_XOFF)))]
    def kvseq(which, i):
        return [("s", "s_add_u32 m0, %s, %d\ns_mov_b32 %s, %d" % (s(S_M0K), (L_K if which == "K" else L_V) + i * 8192, s(S_KVOFF), (i + (VSH if which == "V" else 0)) * 8192))] + \
               [("m", kv_dma(which, k, "%s%d" % (which, i))) for k in range(2)]
    NX0 = opt("nx0", 2)
    e("s_mov_b32 %s, 0" % s(S_XOFF))
    q = []
    for sl in range(20):
        for kind in "wx":
            if kind == "w" and sl < NI: continue
            seq = wseq(sl) if kind == "w" else xseq(sl)
            if sl < NX0:
                for k, x in seq: e(x + ("\ns_nop 0" if " m0," in x else ""))
            else:
                lo = 0 if sl < RW else (freeg(sl - RW) if kind == "w" else 4 * lastF[sl - XD] + 3)
                q.append((lo, seq))
    late = {12: [("K", 0), ("K", 1)], 13: [("K", 2), ("K", 3)], 14: [("K", 4), ("K", 5)], 15: [("K", 6), ("K", 7)],
            16: [("V", 0), ("V", 1)], 17: [("V", 2), ("V", 3)], 18: [("V", 4)]}
    side = []
    for sl in range(12, 19):
        for which, i in late[sl]: side.append((freeg(sl), kvseq(which, i)))
    WT = opt("wt", 4)
    if WT:
        for k, sl in enumerate([int(x) for x in opt("wts", "0.1.4.7").split(".")], 1):
            seq = [("s", "s_mov_b32 %s, %d" % (s(S_TMP), k * WT * 32 * 8192)), ("m", "buffer_load_dword %s, %s, %s, %s offen" % (v(V_DUMP), v(V_TC + 1), s(S_WQ, 4), s(S_TMP)))]
            if heavy:
                seq += [("s", "s_mov_b32 %s, %d" % (s(S_TMP), k * WT * 32 * 3456)),
                        ("m", "buffer_load_dword %s, %s, %s, %s offen offset:2048" % (v(V_DUMP), v(V_TC), s(S_WG, 4), s(S_TMP))),
                        ("m", "buffer_load_dword %s, %s, %s, %s offen offset:3072" % (v(V_DUMP), v(V_TC), s(S_WU, 4), s(S_TMP)))]
            side.append((G1(sl) + opt("wtg", 30), seq))
    t0 = v(V_TRA + 3)
    if opt("kvt", 12): side.append((G1(opt("kvt", 12)), [("v", "v_min_u32 %s, 15, %s" % (t0, v(L))), ("v", "v_lshlrev_b32 %s, 7, %s" % (t0, t0)),
               ("s", "s_lshl2_add_u32 %s, %s, %s\ns_lshl_b32 %s, %s, 11" % (s(S_TMP), s(S_QT), s(S_WAVE), s(S_TMP), s(S_TMP))),
               ("m", "buffer_load_dword %s, %s, %s, %s offen" % (v(V_DUMP), t0, s(S_K, 4), s(S_TMP))),
               ("s", "s_add_u32 %s, %s, %d" % (s(S_TMP), s(S_TMP), VSH * 8192)),
               ("m", "buffer_load_dword %s, %s, %s, %s offen" % (v(V_DUMP), t0, s(S_V, 4), s(S_TMP)))]))
    side.sort(key=lambda t: t[0])
    MG = opt("pmg", 5) if heavy else opt("lmg", 2)
    g = 0; lastm = -9; vpost = []
    trlast = 0; lastload = 0
    while q or side:
        if side and (not q or side[0][0] <= max(g, q[0][0])): lo, seq = side.pop(0)
        else: lo, seq = q.pop(0)
        g = max(g, lo)
        for k, x in seq:
            if not vpost:
                try:
                    g = G.place(k, x, max(g + 1, lastm + (MG if g > opt("pmg0", 150) or not heavy else 4) if k == "m" else 0))
                    if k == "m": lastm = g
                    if re.search(r";#[xw]\d|;#trs", x) or "v%d," % V_DUMP in x: lastload = g
                    continue
                except RuntimeError: pass
            vpost.append(x + ("\ns_nop 0" if " m0," in x else ""))
    zlim = 4 * lastF[19 - max(NS, 1)] + 4 if opt("zds", 1) else 10 ** 9
    g = 0
    for sl in range(20 - XD, 20):
        lo = 4 * lastF[sl] + 4
        if lo <= zlim: continue
        for i in range(4):
            x = "ds_read_b128 %s, %s" % (a(A_X + 16 * (sl % XD) + 4 * i, 4), v(V_ZA))
            try: g = G.place("d", x, max(g, lo)) + 2
            except RuntimeError: kpost.append(x)
    auto_lgkm(G, eager=opt("peag", 8))
    g = lastload + 2
    for x in gen_tail_setup():
        g = G.place("v" if x.startswith("v_") else "s", x, g + 1)
    setup_end = g
    g = max(g, trlast)
    for x in gen_tail_setup2(): g = G.place("v" if x.startswith("v_") else "s", x, g + 1)
    HZ = 8
    post = []
    def lay(items):
        g = 0; out = []
        for lo, k, x, hi in items:
            if not out:
                try:
                    g = G.place(k, x, max(g + (0 if k == "v" else 1), lo), hi, force=(hi is not None)); continue
                except RuntimeError: pass
            assert hi is None
            out.append(x)
        return out
    its = []
    for sl in range(4):
        for qb in range(4):
            d0 = V_Q + (sl * 4 + qb) * 4
            lo = 4 * lastblk[2 * sl + 1] + 3 + HZ
            hi = NP - 3 if sl < 2 else NP + 8 * sl - 3
            for b in range(2):
                g0 = qacc(2 * sl + b, qb)
                for h in range(2): its.append((min(lo, hi), "v", "v_cvt_pk_bf16_f32 %s, %s, %s" % (v(d0 + 2 * b + h), v(g0 + 2 * h), v(g0 + 2 * h + 1)), hi))
    assert not lay(its)
    its = []
    if heavy:
        U = T
        for fb in range(4):
            for qb in range(4):
                g0 = V_ACCG + (fb * 4 + qb) * 4
                lo = 4 * lastblk[8 + fb] + 3 + HZ
                for r in range(4): its.append((lo, "v", "v_accvgpr_read_b32 %s, %s" % (v(U + r), a(A_ACCU + (fb * 4 + qb) * 4 + r)), None))
                for r in range(4): its.append((lo, "v", "v_max_f32 %s, 0, %s" % (v(g0 + r), v(g0 + r)), None))
                for r in range(4): its.append((lo, "v", "v_mul_f32 %s, %s, %s" % (v(g0 + r), v(g0 + r), v(U + r)), None))
                d0 = V_ACCG + ((fb & ~1) * 4 + qb) * 4 + 2 * (fb & 1)
                for h in range(2): its.append((lo, "v", "v_cvt_pk_bf16_f32 %s, %s, %s" % (v(d0 + h), v(g0 + 2 * h), v(g0 + 2 * h + 1)), None))
                if fb & 1:
                    if qb == 0: its.append((lo, "s", "s_lshl_b32 %s, %s, 13\ns_add_u32 %s, %s, %d" % (s(S_TMP + 6), s(S_FS), s(S_TMP + 6), s(S_TMP + 6), (128 + (fb >> 1)) * 4096), None))
                    its.append((lo, "m", "buffer_store_dwordx4 %s, %s, %s, %s offen offset:%d%s" % (v(d0 - 2, 4), v(V_L16), s(S_AF, 4), s(S_TMP + 6), 1024 * qb, STFL), None))
    post += lay(its)
    its = [(300, "v", x, None) for x in ones_ops(V_TRA + 2)]
    zs = []
    for k in range(XD):
        sl = max(x for x in range(20) if x % XD == k)
        zs.append((4 * lastF[sl] + 4, range(A_X + 16 * k, A_X + 16 * k + 16)))
    for lo, rr in sorted(zs, key=lambda t: t[0]):
        if lo > zlim: break
        for r in rr: its.append((lo, "v", "v_accvgpr_write_b32 %s, 0" % a(r), None))
    post += lay(its)
    if VERBOSE: print("proj", tag, G.pattern(), "| post", len(post), len(vpost), len(kpost))
    e.ext(pre_reads)
    e("s_waitcnt WAITVM{x%d} lgkmcnt(0)" % max(units[0][0]))
    stamp(e, 3)
    nm = 0
    for x in G.lines():
        if x.startswith("v_mfma"):
            if STAMPS and nm % (NP // 5) == 0 and 0 < nm < NP: stamp(e, 18 + nm // (NP // 5))
            if nm == NP: stamp(e, 4)
            nm += 1
        e(x)
    for x in kpost + vpost + post: e(x)
    e("s_mov_b32 %s, %d" % (s(S_KVOFF), 8 * 8192))
    e("s_nop 1")
    for r in range(8): e("v_mov_b32 %s, 0" % v(V_L + r))
    for qb in range(4): e("v_mov_b32 %s, 0xff800000" % v(V_NEGM + 4 * qb))
    e("s_waitcnt WAITVM{K2,K3}")
    e("s_waitcnt WAITVM{V0,V1,K4,K5}")
    r = resolve_vm(e.L)
    NV01.append(int(re.search(r"vmcnt\((\d+)\)", r.pop()).group(1)))
    e0.ext(r)

def kv_preload(e):
    e("s_mov_b32 %s, 0" % s(S_KVOFF))
    for i in range(9):
        if i < 8:
            e("s_add_u32 m0, %s, %d\ns_nop 0" % (s(S_M0K), L_K + i * 8192))
            e(kv_dma("K", 0)); e(kv_dma("K", 1))
        if i >= VSH:
            e("s_add_u32 m0, %s, %d\ns_nop 0" % (s(S_M0K), L_V + (i - VSH) * 8192))
            e(kv_dma("V", 0)); e(kv_dma("V", 1))
        if i < 8: e("s_add_u32 %s, %s, 8192" % (s(S_KVOFF), s(S_KVOFF)))
    e("s_waitcnt vmcnt(0)")

def Sreg(buf, qb, kb): return V_S + buf * 32 + qb * 8 + kb * 4
def Preg(buf, qb): return V_P + buf * 16 + qb * 4

def qk_mfmas(buf, czero=False, full=False):
    out = []
    if opt("qko", "snake") == "qks" and not czero and full:
        for qb in range(4):
            for i in range(2):
                kb = i if qb % 2 == 0 else 1 - i
                d = v(Sreg(buf, qb, kb), 4)
                for n, sl in enumerate(range(4) if i == 0 else range(3, -1, -1)):
                    out.append("%s %s, %s, %s, %s" % (MF, d, a(A_KF + (kb * 4 + sl) * 4, 4), v(V_Q + (sl * 4 + qb) * 4, 4), d if n else v(V_NEGM + 4 * qb, 4)))
        return out
    order = {"qks": [(kb, qb, sl) for kb in range(2) for qb in range(4) for sl in range(4)], "kqs": [(kb, qb, sl) for kb in range(2) for qb in range(4) for sl in range(4)],
             "ksq": [(kb, qb, sl) for kb in range(2) for sl in range(4) for qb in range(4)],
             "snake": [(kb, qb, sl) for kb in range(2) for qb in range(4) for sl in range(4)]}[opt("qko", "snake")]
    for kb, qb, sl0 in order:
                sl = sl0
                d = v(Sreg(buf, qb, kb), 4)
                if opt("qko", "snake") == "snake":
                    first = sl0 == 0
                    sl = sl0 if qb % 2 == 0 else 3 - sl0
                    c = ("0" if czero else v(V_NEGM + 4 * qb, 4)) if first else d
                    out.append("%s %s, %s, %s, %s" % (MF, d, a(A_KF + (kb * 4 + sl) * 4, 4), v(V_Q + (sl * 4 + qb) * 4, 4), c))
                    continue
                c = d if sl else ("0" if czero else v(V_NEGM + 4 * qb, 4))
                out.append("%s %s, %s, %s, %s" % (MF, d, a(A_KF + (kb * 4 + sl) * 4, 4), v(V_Q + (sl * 4 + qb) * 4, 4), c))
    return out

def pv_mfmas(buf, tailmode=False):
    out = []
    for h in range(2):
        out.append("v_smfmac_f32_16x16x64_bf16 %s, %s, %s, %s" % (v(V_L + 4 * h, 4), v(V_ONE, 4), v(Preg(buf, 2 * h), 8), v(V_SIDX)))
    pvo = opt("pvo", "qd2s")
    if pvo == "fake" and not tailmode:
        for h in range(4):
            for i in range(4):
                qb = i if h % 2 == 0 else 3 - i
                o = a(A_O + ((2 * h + buf) * 4 + qb) * 4, 4)
                for d in ((0, 1) if i % 2 == 0 else (1, 0)):
                    out.append("%s %s, %s, %s, %s" % (MF, o, a(A_VF + (2 * h + d) * 4, 4), v(Preg(buf, (qb + 2 * d) % 4), 4), o))
        return out
    if pvo == "fake": pvo = "dq"
    order = {"dq": [(db, qb) for db in range(8) for qb in range(4)],
             "snake": [(db, qb if db % 2 == 0 else 3 - qb) for db in range(8) for qb in range(4)],
             "qd2s": [(2 * h + (d if (i & 1) == 0 else 1 - d), i if h % 2 == 0 else 3 - i) for h in range(4) for i in range(4) for d in range(2)],
             "qd2": [(2 * h + d, qb) for h in range(4) for qb in range(4) for d in range(2)],
             "qd4": [(4 * h + d, qb) for h in range(2) for qb in range(4) for d in range(4)]}[pvo if not tailmode else "dq"]
    for db, qb in order:
            o = a(A_O + (db * 4 + qb) * 4, 4)
            out.append("%s %s, %s, %s, %s" % (MF, o, a(A_VF + db * 4, 4), v(Preg(buf, qb), 4), o))
    return out

def k_read(kb, sl, off, t=0): return "ds_read_b128 %s, %s offset:%d" % (a((A_KF, A_KF1)[t] + (kb * 4 + sl) * 4, 4), v(V_KA + sl), off + kb * 4096)
def v_read(db, j, t): return "ds_read_b64_tr_b16 %s, %s offset:%d" % (a(A_VF + 32 * t + db * 4 + 2 * j, 2), v(V_VA + db), 8192 * t + j * 4096)

def softmax_ops(buf):
    ex = []; cv = []
    for qb in range(4):
        for kb in range(2):
            for r in range(4):
                x = v(Sreg(buf, qb, kb) + r)
                ex.append("v_exp_f32 %s, %s" % (x, x))
            for h in range(2):
                b = Sreg(buf, qb, kb) + 2 * h
                cv.append("v_cvt_pk_bf16_f32 %s, %s, %s" % (v(Preg(buf, qb) + kb * 2 + h), v(b), v(b + 1)))
    return ex, cv

def gen_attention(e):
    T = V_T
    e("ATT_START:")
    stamp(e, 5)
    e("s_barrier")
    for qb in range(4):
        b = Sreg(0, qb, 0)
        e("v_max3_f32 %s, %s, %s, %s" % (v(T + 2 * qb), v(b), v(b + 1), v(b + 2)))
    for qb in range(4):
        b = Sreg(0, qb, 0)
        e("v_max3_f32 %s, %s, %s, %s" % (v(T + 2 * qb), v(T + 2 * qb), v(b + 3), v(V_NEGM + 4 * qb)))
    for n, sw in enumerate(("v_permlane32_swap_b32", "v_permlane16_swap_b32")):
        for qb in range(4): e("v_mov_b32 %s, %s" % (v(T + 2 * qb + 1), v(T + 2 * qb)))
        e("s_nop 0")
        for qb in range(4): e("%s %s, %s" % (sw, v(T + 2 * qb), v(T + 2 * qb + 1)))
        for qb in range(4):
            if n == 0: e("v_max_f32 %s, %s, %s" % (v(T + 2 * qb), v(T + 2 * qb), v(T + 2 * qb + 1)))
            else:
                for r in range(4): e("v_min_f32 %s, -%s, -%s" % (v(V_NEGM + 4 * qb + r), v(T + 2 * qb), v(T + 2 * qb + 1)))
    for qb in range(4):
        for r in range(0, 8, 2): e("v_pk_add_f32 %s, %s, %s" % (v(Sreg(0, qb, 0) + r, 2), v(Sreg(0, qb, 0) + r, 2), v(V_NEGM + 4 * qb, 2)))
    e("s_waitcnt lgkmcnt(0)")

    exE, cvE = softmax_ops(0); exO, cvO = softmax_ops(1)
    smf = lambda t, h: "v_smfmac_f32_16x16x64_bf16 %s, %s, %s, %s" % (v(V_L + 4 * h, 4), v(V_ONE, 4), v(Preg(t, 2 * h), 8), v(V_SIDX))
    def pvm(db, qb, t):
        o = a(A_O + (db * 4 + qb) * 4, 4)
        return "%s %s, %s, %s, %s" % (MF, o, a(A_VF + 32 * t + db * 4, 4), v(Preg(t, qb), 4), o)
    G = Gaps(qk_mfmas(1))
    for i in range(8): G.put(1 + 2 * i, "d", k_read(i // 4, i % 4, 24576, 1))
    for i in range(4): G.put(17 + 2 * i, "d", k_read(0, i, 16384))
    for i in range(4): G.put(31, "d", k_read(1, i, 16384))
    for i, x in enumerate(exE): G.put(i, "e", x)
    for i, x in enumerate(cvE[:4]): G.put(24 + 2 * i, "v", x)
    e.ext(G.lines())
    e.ext(exO[:NOE])
    for sl in range(4): e("v_add_u32 %s, 32768, %s" % (v(V_KA + sl), v(V_KA + sl)))
    e("s_mov_b32 %s, 16384" % s(S_TOG))
    e("s_mov_b32 %s, %d\ns_mov_b32 %s, %d" % (s(S_TMP + 3), 2 * 8192, s(S_TMP + 4), 6 * 8192 + L_V))
    e("s_waitcnt vmcnt(NVWAIT) lgkmcnt(0)\ns_barrier")
    for which, m0, inc in (("K", L_K, 1), ("K", L_K + 8192, 0), ("V", L_V + 5 * 8192, 1)):
        e("s_add_u32 m0, %s, %d\ns_nop 0" % (s(S_M0K), m0))
        e(kv_dma(which, 0)); e(kv_dma(which, 1))
        if inc: e("s_add_u32 %s, %s, 8192" % (s(S_KVOFF), s(S_KVOFF)))
    e("s_mov_b32 %s, %d\ns_cmp_eq_u32 %s, 0\ns_cselect_b32 %s, %d, %s" % (s(S_EVT), EV(27), s(S_WAVE), s(S_EVT), EVT0, s(S_EVT)))
    stamp(e, 6)
    e("s_cmp_lg_u32 %s, 0\ns_cbranch_scc1 NOSIG2" % s(S_RETRY))
    e("s_cmp_ge_u32 %s, 27\ns_cbranch_scc1 LT_INIT" % s(S_FS))
    e("NOSIG2:")
    mf = []
    for t in range(2):
        for qb in range(4):
            for i in range(2):
                kb = i if qb % 2 == 0 else 1 - i
                d = v(Sreg(t, qb, kb), 4)
                for n, sl in enumerate(range(4) if i == 0 else range(3, -1, -1)):
                    mf.append("%s %s, %s, %s, %s" % (MF, d, a((A_KF, A_KF1)[t] + (kb * 4 + sl) * 4, 4), v(V_Q + (sl * 4 + qb) * 4, 4), d if n else v(V_NEGM + 4 * qb, 4)))
    mf += [smf(0, 0), smf(1, 0), smf(1, 1), smf(0, 1)]
    H2 = 68
    for db in range(8):
        for i in range(4):
            qb = 3 - i if db % 2 == 0 else i
            for t in ((0, 1) if i % 2 == 0 else (1, 0)): mf.append(pvm(db, qb, t))
    G = Gaps(mf); end = G.n() - 1
    G.put(1, "b", "s_barrier"); G.put(0, "s", "s_waitcnt vmcnt(16) lgkmcnt(0)")
    NV1 = opt("nv1", 22)
    vrd = [(db, j, t) for db in range(8) for t in range(2) for j in range(2)]
    vg = {}
    eg = {}
    for i in range(NOE, 32): eg[i] = G.put(2 * (i - NOE), "e", exO[i])
    vvg = [int(x) for x in opt("vvg", "3.7.11.15.55").split(".")]
    dgs = [g for g in range(3, 64, 2) if g not in vvg]
    for i in range(NV1):
        db, j, t = vrd[i]; vg[db] = G.put(dgs[i], "d", v_read(db, j, t))
    rd2 = [("v",) + x for x in vrd[NV1:]] + [("k", kb, sl, 0) for kb in range(2) for sl in range(4)] + [("k", kb, sl, 1) for kb in range(2) for sl in range(4)]
    g = 64; kg = {}
    for i, x in enumerate(rd2):
        if x[0] == "v": g = G.place("d", v_read(*x[1:]), g, H2 + 8 * x[1] - 6); vg[x[1]] = g
        else: g = G.place("d", k_read(x[1], x[2], 8192 * x[3], x[3]), g); kg[x[2]] = g
        g += 1 if i < 4 else 2
    def adv(r, base):
        return ["s_add_u32 %s, %s, 8192" % (s(r), s(r)), "s_and_b32 %s, %s, 0xffff" % (s(r), s(r))] + (["s_or_b32 %s, %s, %d" % (s(r), s(r), base)] if base else [])
    last = 0
    for g in (opt("dg1", 54), opt("dg2", 76)):
        for which, r in (("K", S_TMP + 3), ("V", S_TMP + 4)):
            g = G.place("s", "s_add_u32 m0, %s, %s" % (s(S_M0K), s(r)), g)
            for i in range(2): g = G.place("m", kv_dma(which, i), g + opt("dsp", 2))
            g += 1
        for x in ["s_add_u32 %s, %s, 8192" % (s(S_KVOFF), s(S_KVOFF))] + adv(S_TMP + 3, 0) + adv(S_TMP + 4, L_V): g = G.place("s", x, g) + 1
        last = g
    items = [(0, 8 * (i // 4) - 1, cvE[i]) for i in range(4, 16)] + [(eg.get(2 * i + 1, -1) + 1, 32 + 8 * (i // 4) - 1, cvO[i]) for i in range(16)]
    for lo, hi, x in sorted(items, key=lambda t: t[1]): G.place("v", x, lo, hi)
    for i in range(4): G.place("v", cvE[i], end - 5 + opt("c0g", 2))
    g = 56
    xg = 0
    for db in range(8):
        y = max(vg[db], 64)
        while not (G.ds[y] and G.fits(y, "v")): y += 1
        xg = max(xg, G.put(y, "v", "v_xor_b32 %s, %s, %s" % (v(V_VA + db), s(S_TOG), v(V_VA + db))))
    for sl in range(4): xg = max(xg, G.place("v", "v_xor_b32 %s, %s, %s" % (v(V_KA + sl), s(S_TOG), v(V_KA + sl)), kg[sl]))
    for i, x in enumerate(exE + exO[:NOE]): g = G.place("e", x, g, end - 6 if i < 8 else end)
    g = G.place("s", "s_xor_b32 %s, %s, 32768" % (s(S_TOG), s(S_TOG)), xg + 1)
    G.place("s", "s_cmp_lt_u32 %s, %s" % (s(S_KVOFF), s(S_EVT)), max(g, last) + 1)
    auto_lgkm(G, [], loop=True, eager=opt("leag", 8))
    if VERBOSE: print("loop", G.pattern())
    e(".p2align 6\nATT_LOOP:")
    for x in G.lines(): e(x)
    e("s_cbranch_scc1 ATT_LOOP")
    e("s_cmp_lt_u32 %s, %d\ns_cbranch_scc1 ATT_EVT" % (s(S_KVOFF), EVTE))
    e("TAILC0:")
    global LIGHT_LOOP
    LIGHT_LOOP = light_loop(G)
    stamp(e, 7)
    e("s_waitcnt vmcnt(16) lgkmcnt(0)\ns_barrier")
    e("s_cmp_lg_u32 %s, 0\ns_cbranch_scc1 NOPOLLW" % s(S_WAVE))
    e(poll_load(True))
    e("NOPOLLW:")
    vr = [v_read(db, j, 0) for db in range(8) for j in range(2)]
    e.ext(vr)
    e.ext(cvE[4:])
    e("s_nop 0")
    h = E()
    sn2 = lambda q0: [(db, q0 + (i if db % 2 == 0 else 1 - i)) for db in range(8) for i in range(2)]
    mf = [smf(0, 0)] + [pvm(db, qb, 0) for db, qb in sn2(0)] + [smf(0, 1), smf(1, 0)] + [pvm(db, qb, 1) for db, qb in sn2(0)]
    P3 = len(mf)
    mf += [smf(1, 1)]
    for n, (db, qb) in enumerate(sn2(2)):
        for t in ((0, 1) if n % 2 == 0 else (1, 0)): mf.append(pvm(db, qb, t))
    G = Gaps(mf)
    for i in range(16): G.put(i, "d", v_read(i // 2, i % 2, 1))
    for i in range(NOE, 16): G.put(i - NOE + 1, "e", exO[i])
    for i in range(8): G.put(max(2 * i + 3 - NOE, 0) + 1, "v", cvO[i])
    for i in range(16, 32): G.put(i, "e", exO[i])
    for i in range(8, 16): G.put(min(2 * i + 2, P3 - 3), "v", cvO[i])
    pq = [x for sg in range(NPRE_X) for x in t8_a(sg)]
    assert NPRE_X <= 3
    G.put(P3 - 8, "s", "s_waitcnt lgkmcnt(0)\ns_barrier")
    pre, pend = auto_lgkm(G, [asmcheck.I(x, 0, 0).W for x in vr])
    g = 1
    while pq:
        k, x = pq.pop(0)
        if k == "s": G.sc[g].append(x); g += 1
        else: G.va[g].append(x); g += opt("x63", 2) if len(pq) % 3 else 1
    assert g < P3 + 8, g
    pro, grp = o_ops()
    NEG = opt("neg", 5)
    fill = pro[0] + [x for i in range(NEG) for x in grp(i, False)]
    g0 = max(P3 + 1, g); n = G.n() - g0
    for i, x in enumerate(fill): G.va[g0 + (i * n) // len(fill)].append(x)
    if pre is not None: h("s_waitcnt lgkmcnt(%d)" % pre)
    for x in G.lines(): h(x)
    return h.L, NEG

def o_ops():
    T = V_T; t = S_TMP
    Z = 248; C = 252; W = 128
    pro = []
    for hh in range(2):
        e = E()
        for qb in (2 * hh, 2 * hh + 1): e("v_add_f32 %s, %s, %s" % (v(V_L + 2 * qb), v(V_L + 2 * qb), v(V_L + 2 * qb + 1)))
        for qb in (2 * hh, 2 * hh + 1): e("v_rcp_f32 %s, %s" % (v(T + 2 * qb), v(V_L + 2 * qb)))
        if hh == 0:
            for r in range(4): e("v_mov_b32 %s, 0" % v(Z + r))
            for sl in range(4): e("s_lshl_b32 %s, %s, 14" % (s(44), s(S_HEAD)) if sl == 0 else "s_add_u32 %s, %s, %d" % (s(44 + sl), s(44), 4096 * sl))
        else:
            e("v_max3_f32 %s, %s, %s, %s" % (v(T + 8), v(V_L), v(V_L + 2), v(V_L + 4)))
            e("v_max_f32 %s, %s, %s" % (v(T + 8), v(T + 8), v(V_L + 6)))
            e("v_mul_f32 %s, %s, %s" % (v(T + 8), f2u(2.0 ** 64), v(T + 8)))
            e("v_mul_f32 %s, 0, %s" % (v(T + 8), v(T + 8)))
            for qb in range(4): e("v_fma_f32 %s, %s, 0, %s" % (v(T + 8), v(V_L + 2 * qb), v(T + 8)))
        for qb in (2 * hh, 2 * hh + 1): e("v_mov_b32 %s, %s" % (v(T + 2 * qb + 1), v(T + 2 * qb)))
        pro.append(e.L)
    def grp(i, pk):
        e = E()
        sl, qb = (i % 8) // 2, 2 * (i // 8) + i % 2
        d0 = 136 + 4 * (i % 4)
        for b in range(2):
            for r in range(4): e("v_accvgpr_read_b32 %s, %s" % (v(W + 4 * b + r), a(A_O + ((2 * sl + b) * 4 + qb) * 4 + r)))
        if pk:
            for h in range(4): e("v_pk_mul_f32 %s, %s, %s" % (v(W + 2 * h, 2), v(W + 2 * h, 2), v(T + 2 * qb, 2)))
        else:
            for r in range(8): e("v_mul_f32 %s, %s, %s" % (v(W + r), v(W + r), v(T + 2 * qb)))
        for h in range(4): e("v_cvt_pk_bf16_f32 %s, %s, %s" % (v(d0 + h), v(W + 2 * h), v(W + 2 * h + 1)))
        e("buffer_store_dwordx4 %s, %s, %s, %s offen offset:%d%s ;#ost" % (v(d0, 4), v(V_L16), s(S_AF, 4), s(44 + sl), 1024 * qb, STFL))
        e.L.append("s_nop 0\n%s %s, %s, %s, %s" % (MF, v(C, 4), v(Z, 4), v(d0, 4), "0" if i == 0 else v(C, 4)))
        return e.L
    return pro, grp

LT_SS, LT_SD = 44, 48
LT_SO, LT_DO, LT_R = 91, 96, 97
LT_VO, LT_VB, LT_VR, LT_AD = 40, 42, 44, 48
L_TRB = 131072
def light_loop(G):
    import copy
    G = copy.deepcopy(G)
    n = G.n()
    b = [g for g in range(n) if any("s_barrier" in x for x in G.va[g])][0]
    for bb in (b - 1, b): G.sc[bb] = [x.replace("vmcnt(%d)" % (16 + 2 * PWARM), "vmcnt(%d)" % (24 + 2 * PWARM)) for x in G.sc[bb]]
    lastm = max(g for g in range(n) if any(x.startswith("buffer") for x in G.va[g]))
    cmpg = [g for g in range(n) if any(x.startswith("s_cmp_lt_u32 %s" % s(S_KVOFF)) for x in G.sc[g])][-1]
    def lay(seq, g, hi, step=1):
        for k, x in seq:
            if k == "s":
                while not G.fits(g, "s"): g += 1
                G.put(g, "s", x)
            else:
                win = opt("ltw", 4) if k != "m" else opt("ltm", 4)
                g = min(range(g, min(g + win, hi) + 1), key=lambda y: (G.used[y] + (3 if (k == "d" and G.ds[y] and opt("ltd", 0)) else 0), y))
                (G.ds if k == "d" else G.va)[g].append(x); G.used[g] += 1 if k != "m" else 2
            g += step
            assert g <= hi + 1, (x, g, hi)
        return g
    g = lay([("d", "ds_read_b64_tr_b16 %s, %s offset:%d" % (v(LT_AD + 4 * f + 2 * j, 2), v(LT_VR + f), 1024 * j)) for f in range(2) for j in range(2)], b + 1, b + 30, 2)
    g1, g2 = opt("lts1", 44), opt("lts2", 50)
    lay(([("s", "s_waitcnt lgkmcnt(2)")] if g1 < 68 else []) + [("m", "buffer_store_dwordx4 %s, %s, %s, %s offen%s" % (v(LT_AD, 4), v(V_L16), s(LT_SD, 4), s(LT_DO), STFL))], g1, cmpg - 1)
    lay([("m", "buffer_store_dwordx4 %s, %s, %s, %s offen offset:1024%s" % (v(LT_AD + 4, 4), v(V_L16), s(LT_SD, 4), s(LT_DO), STFL)),
         ("s", "s_add_u32 %s, %s, %d" % (s(LT_DO), s(LT_DO), 8 * 10240)),
         ("s", "s_sub_u32 %s, %s, %d\ns_cselect_b32 %s, %s, %s" % (s(S_TMP + 1), s(LT_DO), 184 * 10240, s(LT_DO), s(LT_DO), s(S_TMP + 1)))], g2, cmpg - 1)
    g = lastm + 1
    lay([("s", "s_add_u32 m0, %s, %s" % (s(LT_R), s(S_TMP)))] +
        [("m", "buffer_load_dwordx4 %s, %s, %s offen offset:%d lds" % (v(LT_VO + i), s(LT_SS, 4), s(LT_SO), 1024 * i)) for i in range(2)] +
        [("s", "s_add_u32 %s, %s, %d\ns_add_u32 %s, %s, 2048" % (s(LT_SO), s(LT_SO), 8 * 40960, s(LT_R), s(LT_R))),
         ("s", "s_cmp_eq_u32 %s, 6144\ns_cselect_b32 %s, 0, %s" % (s(LT_R), s(LT_R), s(LT_R)))] +
        [("v", "v_add_u32 %s, %s, %s" % (v(LT_VR + f), s(LT_R), v(LT_VB + f))) for f in range(2)], g, cmpg - 1)
    if VERBOSE: print("lightloop", G.pattern())
    return G.lines()

def gen_events(e):
    L = V_LANE; t = S_TMP
    e("LT_INIT:")
    e("s_sub_u32 %s, %s, 27\ns_lshl_b32 %s, %s, 3\ns_add_u32 %s, %s, %s\ns_lshl2_add_u32 %s, %s, %s" % (s(t), s(S_FS), s(t), s(t), s(t), s(t), s(S_QT), s(t), s(t), s(S_WAVE)))
    e("s_mul_i32 %s, %s, 3277\ns_lshr_b32 %s, %s, 16\ns_mul_i32 %s, %s, 20\ns_sub_u32 %s, %s, %s" % (s(t + 1), s(t), s(t + 1), s(t + 1), s(t + 6), s(t + 1), s(t), s(t), s(t + 6)))
    e("s_mul_i32 %s, %s, 40960\ns_lshl_b32 %s, %s, 6\ns_add_u32 %s, %s, %s" % (s(LT_SO), s(t + 1), s(t + 6), s(t), s(LT_SO), s(LT_SO), s(t + 6)))
    e("s_add_u32 %s, %s, 104\ns_mul_i32 %s, %s, 10240" % (s(LT_DO), s(t + 1), s(LT_DO), s(LT_DO)))
    srd(e, LT_SS, ptr(8), 0, 1728 * 1280)
    e("s_mul_i32 %s, %s, 13108\ns_lshr_b32 %s, %s, 16\ns_mul_i32 %s, %s, %d\ns_lshl_b32 %s, %s, 11\ns_add_u32 %s, %s, %s\ns_add_u32 %s, %s, %d" % (
        s(t + 6), s(t), s(t + 6), s(t + 6), s(t + 6), s(t + 6), NSLAB * 10240 - 10240, s(t + 1), s(t), s(t + 6), s(t + 6), s(t + 1), s(t + 6), s(t + 6), WF_OFF))
    srd(e, LT_SD, ptr(11), s(t + 6), (NSLAB - 1) * 10240 + 2048)
    e("s_mul_i32 %s, %s, 6144\ns_add_u32 %s, %s, %d\ns_mov_b32 %s, 0\ns_mov_b32 %s, %d" % (s(t), s(S_WAVE), s(t), s(t), L_TRB, s(LT_R), s(S_EVT), EV(7)))
    e("v_lshrrev_b32 %s, 2, %s\nv_bfe_u32 %s, %s, 4, 1\nv_and_b32 %s, 3, %s" % (v(46), v(L), v(47), v(L), v(48), v(L)))
    e("v_lshlrev_b32 %s, 1, %s\nv_xor_b32 %s, %s, %s\nv_mul_u32_u24 %s, 1280, %s\nv_lshl_add_u32 %s, %s, 4, %s\nv_add_u32 %s, %d, %s" % (
        v(49), v(47), v(49), v(49), v(48), v(LT_VO), v(46), v(LT_VO), v(49), v(LT_VO), v(LT_VO + 1), 16 * 1280 - 1024, v(LT_VO)))
    e("v_lshlrev_b32 %s, 6, %s\nv_lshl_add_u32 %s, %s, 3, %s\nv_lshl_add_u32 %s, %s, 5, %s\nv_add_u32 %s, %s, %s\nv_xor_b32 %s, 32, %s" % (
        v(LT_VB), v(46), v(LT_VB), v(48), v(LT_VB), v(LT_VB), v(47), v(LT_VB), v(LT_VB), s(t), v(LT_VB), v(LT_VB + 1), v(LT_VB)))
    e("v_mov_b32 %s, %s\nv_mov_b32 %s, %s" % (v(LT_VR), v(LT_VB), v(LT_VR + 1), v(LT_VB + 1)))
    e(".p2align 6\nLT_LOOP:")
    for x in LIGHT_LOOP: e(x)
    e("s_cbranch_scc1 LT_LOOP")
    e("s_cmp_lg_u32 %s, %d\ns_cbranch_scc1 LT_E2" % (s(S_KVOFF), EV(7)))
    srd(e, LT_SS, ptr(4), 0, 4096 * 1280)
    e("s_sub_u32 %s, %s, %d\ns_mov_b32 %s, %d\ns_branch LT_LOOP" % (s(LT_SO), s(LT_SO), 56 * 40960, s(S_EVT), EV(13)))
    e("LT_E2:")
    e("s_cmp_lg_u32 %s, %d\ns_cbranch_scc1 LT_E3" % (s(S_KVOFF), EV(13)))
    e("s_mov_b32 %s, %d\ns_cmp_lg_u32 %s, 0\ns_cbranch_scc1 LT_LOOP" % (s(S_EVT), EV(26), s(S_WAVE)))
    set_flag(e, 2)
    e("s_mov_b32 %s, %d\ns_branch LT_LOOP" % (s(S_EVT), EV(23)))
    e("LT_E3:")
    e("s_cmp_lg_u32 %s, %d\ns_cbranch_scc1 LT_END" % (s(S_KVOFF), EV(23)))
    e(poll_load(True))
    e("s_mov_b32 %s, %d\ns_branch LT_LOOP" % (s(S_EVT), EV(26)))
    e("LT_END:")
    e("s_mov_b32 %s, %d\ns_branch ATT_LOOP" % (s(S_EVT), EV(27)))
    def redirect(d, vd, shift, size):
        e("s_sub_u32 %s, %s, %s\ns_add_u32 %s, %s, %s\ns_addc_u32 %s, %s, 0" % (s(t + 6), s(T_BW[0]), s(T_M0W), s(d), s(T_SW), s(t + 6), s(d + 1), s(T_SW + 1)))
        e("s_sub_u32 %s, %s, %d\ns_subb_u32 %s, %s, 0\ns_mov_b32 %s, %d" % (s(d), s(d), shift, s(d + 1), s(d + 1), s(d + 2), size))
        e("v_add_u32 %s, %s, %s\nv_add_u32 %s, %s, %s" % (v(vd), s(S_M0K), v(V_L16), v(vd + 1), s(S_M0K), v(V_L16)))
    e("ATT_EVT:")
    e("s_cmp_lg_u32 %s, %d\ns_cbranch_scc1 ATT_EVT1" % (s(S_KVOFF), EV(27)))
    redirect(S_K, V_KD, 64 * 8192, 72 * 8192)
    e("s_mov_b32 %s, %d\ns_cmp_lg_u32 %s, 0\ns_cbranch_scc1 ATT_LOOP" % (s(S_EVT), EV(29) if NWP == 4 else EVTE, s(S_WAVE)))
    if NWP < 4: e("s_cmp_ge_u32 %s, 27\ns_cselect_b32 %s, %d, %s" % (s(S_FS), s(S_EVT), EV(29), s(S_EVT)))
    e("s_waitcnt vmcnt(16)")
    poll_spin(e, True, None, 2, "EARLY")
    e("s_branch ATT_LOOP")
    e("ATT_EVT1:")
    e("s_cmp_lg_u32 %s, %d\ns_cbranch_scc1 ATT_EVT2" % (s(S_KVOFF), EV(29)))
    if NWP == 4: redirect(S_V, V_VD, 68 * 8192 - 65536, 68 * 8192 + NWP * 20480 - 65536)
    e("s_mov_b32 %s, %d\ns_cmp_lg_u32 %s, 0\ns_cbranch_scc1 ATT_LOOP" % (s(S_EVT), EVTE, s(S_WAVE)))
    e("s_cmp_lt_u32 %s, 27\ns_cbranch_scc1 ATT_LOOP" % s(S_FS))
    set_flag(e, 3)
    e("s_branch ATT_LOOP")
    e("ATT_EVT2:")
    e("s_cmp_lg_u32 %s, %d\ns_cbranch_scc1 ATT_EVT3" % (s(S_KVOFF), EV(3)))
    set_flag(e, 3)
    e("s_mov_b32 %s, %d\ns_branch ATT_LOOP" % (s(S_EVT), EV(25)))
    e("ATT_EVT3:")
    if opt("ctt", 0):
        e("s_getpc_b64 %s\nCODE2:\ns_sub_u32 %s, %s, CODE2-TAILC0\ns_subb_u32 %s, %s, 0" % (s(t + 6, 2), s(t + 6), s(t + 6), s(t + 7), s(t + 7)))
        e("s_lshr_b32 %s, s2, 3\ns_lshl_b32 %s, %s, 10" % (s(t + 1), s(t + 1), s(t + 1)))
        e("v_min_u32 %s, 7, %s\nv_lshlrev_b32 %s, 7, %s\nv_add_u32 %s, %s, %s\nv_min_u32 %s, K_END-TAILC0, %s" % (v(V_PL), v(L), v(V_PL), v(V_PL), v(V_PL), s(t + 1), v(V_PL), v(V_PL), v(V_PL)))
        e("global_load_dword %s, %s, %s" % (v(V_DUMP), v(V_PL), s(t + 6, 2)))
    e(poll_load(True))
    e("s_mov_b32 %s, %d\ns_branch ATT_LOOP" % (s(S_EVT), EV(27)))
assert all((g * 3277) >> 16 == g // 20 for g in range(160)) and all((c * 13108) >> 16 == c // 5 for c in range(40))

K_SX, K_SO = S_WU, S_X
T_SA, T_SW, T_XS = S_T, S_WF, S_WQ
T_XO = S_WG
T_TAG = S_WG + 3
T_M0W, T_OA, T_OW = 88, 89, 90
T_BA, T_BW = (S_XOFF, S_WQOFF), (S_WGOFF, S_M0W)
K_FLG = 95
KV_XO = 63; KV_X = 8
TV_WR, TV_L4K, TV_TAG, TV_OW, TV_OR = 60, 61, 62, 3, 4
XPB = 12288
REUSE = opt("reuse", 1)
COAL = opt("coal", 1)
NSD, NSG = 7, 23
RW8, RA8, RF8 = 6, 5, 10
L_OWN = [122880, 0]

def join_scalar(lines):
    out = []
    for x in lines:
        if x.startswith(("s_addc", "s_cselect")): out[-1] += "\n" + x
        else: out.append(x)
    return out

def gen_tail_setup():
    e = E()
    L = V_LANE; t = S_TMP
    R, Cc, KQ = t + 3, t + 4, t + 5
    e("s_bfe_u32 %s, s2, 0x10002\ns_lshl_b32 %s, %s, 3\ns_lshr_b32 %s, s2, 5\ns_add_u32 %s, %s, %s" % (s(R), s(R), s(R), s(t), s(R), s(R), s(t)))
    e("s_bfe_u32 %s, s2, 0x20003\ns_and_b32 %s, s2, 3" % (s(Cc), s(KQ)))
    e("s_lshr_b32 %s, %s, 1\ns_lshl1_add_u32 %s, %s, %s\ns_lshl2_add_u32 %s, %s, %s\ns_mul_i32 %s, %s, %d" % (s(t), s(KQ), s(t), s(R), s(t), s(t), s(t), s(S_WAVE), s(t), s(t), 16 * 1280))
    e("s_and_b32 %s, %s, 1\ns_lshl1_add_u32 %s, %s, %s\ns_mul_i32 %s, %s, 160\ns_add_u32 %s, %s, %s" % (s(t + 1), s(KQ), s(t + 1), s(Cc), s(t + 1), s(t + 1), s(t + 1), s(t), s(t), s(t + 1)))
    srd(e, K_SX, ptr(0), s(t), 15 * 1280 + 160)
    srd(e, K_SO, ptr(9), s(t), 15 * 1280 + 160)
    e("v_and_b32 %s, 15, %s\nv_mul_u32_u24 %s, 1280, %s\nv_lshrrev_b32 %s, 4, %s\nv_lshl_add_u32 %s, %s, 3, %s" % (v(KV_XO), v(L), v(KV_XO), v(KV_XO), v(52), v(L), v(KV_XO), v(52), v(KV_XO)))
    e("s_lshr_b32 %s, %s, 1\ns_lshl2_add_u32 %s, %s, %s\ns_lshl_b32 %s, %s, %d" % (s(K_FLG), s(R), s(K_FLG), s(K_FLG), s(KQ), s(K_FLG), s(K_FLG), FSH + 3))
    e("s_mul_i32 %s, %s, 7\ns_add_u32 %s, %s, 64\ns_lshl_b32 %s, %s, 13\ns_mul_i32 %s, %s, 20480" % (s(t), s(KQ), s(t), s(t), s(T_BA[0]), s(t), s(T_BW[0]), s(t)))
    e("s_lshl_b32 %s, %s, 17\ns_mul_i32 %s, %s, %d" % (s(T_BA[1]), s(KQ), s(T_BW[1]), s(KQ), 16 * 20480))
    e("s_lshl2_add_u32 %s, %s, %s\ns_mul_i32 %s, %s, %d\ns_add_u32 %s, %s, %d" % (s(t), s(R), s(Cc), s(t), s(t), 24 * XPB, s(t), s(t), XP_OFF))
    srd(e, T_XS, ptr(11), s(t), 24 * XPB)
    for ch in range(2):
        d = T_XO + ch
        e("s_and_b32 %s, %s, 2\ns_add_u32 %s, %s, %d\ns_xor_b32 %s, %s, %s\ns_mul_i32 %s, %s, 3\ns_add_u32 %s, %s, %s\ns_sub_u32 %s, %s, 1" % (
            s(t), s(S_WAVE), s(t), s(t), ch, s(t + 1), s(t), s(KQ), s(t), s(t), s(t), s(t), s(t + 1), s(t), s(t)))
        e("s_mul_i32 %s, %s, %d\ns_and_b32 %s, %s, 1\ns_mul_i32 %s, %s, 6144\ns_add_u32 %s, %s, %s" % (s(t), s(t), XPB, s(d), s(S_WAVE), s(d), s(d), s(d), s(d), s(t)))
        e("s_cmp_eq_u32 %s, 0\ns_cselect_b32 %s, 0x1000000, %s" % (s(t + 1), s(d), s(d)))
    if PWARM:
        e("s_lshl2_add_u32 %s, %s, %s\ns_mul_i32 %s, %s, %d\ns_lshl_b32 %s, %s, 14\ns_add_u32 %s, %s, %s" % (s(t), s(S_QT), s(S_WAVE), s(t), s(t), NSLAB * 4096, s(t + 1), s(S_HEAD), s(t), s(t), s(t + 1)))
        e("v_mov_b32 %s, %s" % (v(V_PW), s(t)))
        for i, o in ((1, 6144), (2, 10240)):
            e("s_add_u32 %s, %s, %d\nv_writelane_b32 %s, %s, %d\nv_writelane_b32 %s, %s, %d" % (s(t + 1), s(t), o, v(V_PW), s(t + 1), 2 * i, v(V_PW), s(t + 1), 2 * i + 1))
        e("s_lshl2_add_u32 %s, %s, %s\ns_mul_i32 %s, %s, %d\ns_add_u32 %s, %s, %d" % (s(t + 2), s(R), s(Cc), s(t + 2), s(t + 2), 24 * XPB, s(t + 2), s(t + 2), XP_OFF))
        for m in range(2):
            for ch in range(2):
                i = 3 + 2 * m + ch
                e("s_add_u32 %s, %s, %s\ns_add_u32 %s, %s, %d" % (s(t + 1), s(t + 2), s(T_XO + ch), s(t + 1), s(t + 1), m * 12 * XPB))
                e("s_cmp_eq_u32 %s, 0x1000000\ns_cselect_b32 %s, %s, %s" % (s(T_XO + ch), s(t + 1), s(t), s(t + 1)))
                e("v_writelane_b32 %s, %s, %d\nv_writelane_b32 %s, %s, %d" % (v(V_PW), s(t + 1), 2 * i, v(V_PW), s(t + 1), 2 * i + 1))
        e("v_min_u32 %s, 14, %s" % (v(V_T), v(L)))
        L = V_T
        e("v_and_b32 %s, 1, %s\nv_lshl_add_u32 %s, %s, 7, %s\nv_subrev_u32 %s, 1280, %s" % (v(V_T), v(L), v(V_PW), v(V_T), v(V_PW), v(V_PW), v(V_PW)))
        L = V_LANE
    e("s_mul_i32 %s, %s, %d\ns_mul_i32 %s, %s, 3072\ns_add_u32 %s, %s, %s" % (s(T_XO + 2), s(KQ), 3 * XPB, s(t), s(S_WAVE), s(T_XO + 2), s(T_XO + 2), s(t)))
    e("s_add_u32 %s, %s, 0x10000\ns_and_b32 %s, %s, 0x1fff0000\ns_or_b32 %s, %s, 0x40000000\nv_mov_b32 %s, %s" % (s(t), s(S_EPOCH), s(t), s(t), s(T_TAG), s(t), v(TV_TAG), s(T_TAG)))
    e("s_and_b32 %s, %s, 1\ns_mul_i32 %s, %s, 10240\nv_add_u32 %s, %s, %s" % (s(t), s(S_WAVE), s(t), s(t), v(TV_OW), s(t), v(V_L16)))
    e("s_mul_i32 %s, %s, 5120\nv_add_u32 %s, %s, %s" % (s(t), s(S_WAVE), v(TV_OR), s(t), v(V_L16)))
    e("s_lshr_b32 %s, %s, 1\ns_lshl1_add_u32 %s, %s, %s\ns_mul_i32 %s, %s, %d" % (s(t), s(S_WAVE), s(t), s(R), s(t), s(t), s(t), NSLAB * 4096))
    e("s_and_b32 %s, %s, 1\ns_lshl_b32 %s, %s, 11\ns_add_u32 %s, %s, %s" % (s(t + 1), s(S_WAVE), s(t + 1), s(t + 1), s(t), s(t), s(t + 1)))
    srd(e, T_SA, ptr(11), s(t), NSLAB * 4096 - 2048)
    e("s_mul_i32 %s, %s, 5120" % (s(T_M0W), s(S_WAVE)))
    e("s_mul_i32 %s, %s, %d\ns_add_u32 %s, %s, %s\ns_add_u32 %s, %s, %d" % (s(t), s(Cc), NSLAB * 10240, s(t), s(t), s(T_M0W), s(t), s(t), WF_OFF))
    return join_scalar(e.L)

def gen_tail_setup2():
    e = E()
    srd(e, T_SW, ptr(11), s(S_TMP), 90 * 20480 + 5120)
    e("v_mov_b32 %s, %s\nv_add_u32 %s, 4096, %s" % (v(TV_WR), v(V_L16), v(TV_L4K), v(V_L16)))
    return join_scalar(e.L)

def t8_w(sg):
    base = (sg % RW8) * 20480; tag = "D%d" % sg
    m, i = (0, sg) if sg < NSD else (1, sg - NSD)
    W = lambda vo, off: ("m", "buffer_load_dwordx4 %s, %s, %s offen offset:%d%s lds ;#%s" % (v(vo), s(T_SW, 4), s(T_OW), off, LDFL, tag))
    return [("s", "s_add_u32 %s, %s, %d\ns_add_u32 m0, %s, %d" % (s(T_OW), s(T_BW[m]), i * 20480, s(T_M0W), base)),
            W(V_L16, 0), W(V_L16, 1024), W(V_L16, 2048), W(V_L16, 3072),
            ("s", "s_add_u32 m0, %s, %d" % (s(T_M0W), base + 4096)), W(TV_L4K, 0)]
def t8_af(sg, half, j): return a((192, 208, 224, 32, 48)[sg % RA8] + half * 8 + j * 4, 4)
def t8_a(sg):
    m, i = (0, sg) if sg < NSD else (1, sg - NSD)
    l = [("s", "s_add_u32 %s, %s, %d" % (s(T_OA), s(T_BA[m]), i * 8192))]
    for half in range(2):
        for j in range(2):
            l.append(("m", "buffer_load_dwordx4 %s, %s, %s, %s offen offset:%d%s ;#A%d" % (t8_af(sg, half, j), v(TV_L4K if half else V_L16), s(T_SA, 4), s(T_OA), j * 1024, LDFL, sg)))
    return l
def t8_wf(F):
    k = F % RF8
    return a(4 * k if k < 8 else 240 + 4 * (k - 8), 4)
def t8_read(F):
    sg, f = F // 20, F % 20
    if opt("t8c", 1): f = (f & 1) * 10 + (f >> 1)
    return "ds_read_b128 %s, %s offset:%d" % (t8_wf(F), v(TV_WR), (sg % 3) * 20480 + f * 1024)
def t8_acc(m, n10, j):
    i = n10 * 2 + j
    if m == 0: return 128 + 4 * i
    return 64 + 4 * i if i < 16 else 208 + 4 * (i - 16)
NWP = opt("nwp", 4)
NPRE_X = opt("nprex", 2)
NPRE_G = opt("npreg", 2)

def cond_lines(lines): return [("@" + x) if x.startswith("buffer") else x for x in lines]

def publish(m):
    out = []; n = 0
    for ch in range(2):
        if m == 1 and REUSE:
            t = S_TMP
            out.append(("s", "s_and_b32 %s, s2, 3\ns_and_b32 %s, %s, 2\ns_sub_u32 %s, %s, %s\ns_sub_u32 %s, %s, %d\ns_mul_i32 %s, %s, %d\ns_add_u32 %s, %s, %s" % (
                s(t), s(t + 1), s(S_WAVE), s(t), s(t), s(t + 1), s(t), s(t), ch, s(t), s(t), 3 * XPB, s(t + 2), s(T_XO + ch), s(t))))
        else:
            out.append(("s", "s_add_u32 %s, %s, %d" % (s(S_TMP + 2), s(T_XO + ch), m * 12 * XPB)))
        for j in range(2):
            vals = [t8_acc(m, 5 * ch + nb, j) + k for nb in range(5) for k in range(4)]
            pb = (40, 240)[n % 2]; n += 1
            for gi in range(3):
                vs = vals[7 * gi:7 * gi + 7]
                if len(vs) < 7: vs = vs + [TV_TAG]
                for h in range(3): out.append(("v", "v_cvt_pk_bf16_f32 %s, %s, %s" % (v(pb + 4 * gi + h), v(vs[2 * h]), v(vs[2 * h + 1]))))
                out.append(("v", "v_cvt_pk_bf16_f32 %s, %s, %s" % (v(pb + 4 * gi + 3), v(vs[6]), v(TV_TAG))))
                off = j * 3072 + gi * 1024
                out.append(("m", "buffer_store_dwordx4 %s, %s, %s, %s offen offset:%d%s ;#xst%d" % (v(pb + 4 * gi, 4), v(TV_L4K if off >= 4096 else V_L16), s(T_XS, 4), s(S_TMP + 2), off % 4096, STFL, m)))
    return out
def own_write(m):
    l = []
    if L_OWN[m]: l.append("v_add_u32 %s, %d, %s" % (v(52), L_OWN[m], v(TV_OW)))
    ar = v(52) if L_OWN[m] else v(TV_OW)
    for ch in range(2):
        l.append("s_cmp_lg_u32 %s, 0x1000000\ns_cbranch_scc1 NOOWN%d%d" % (s(T_XO + ch), m, ch))
        for j in range(2):
            for nb in range(5): l.append("ds_write_b128 %s, %s offset:%d" % (ar, v(t8_acc(m, 5 * ch + nb, j), 4), (j * 5 + nb) * 1024))
        l.append("NOOWN%d%d:" % (m, ch))
    return l
XR = [128, 64]; OWR = [164, 184]
T_SL = 72
def xloads(m):
    l = []
    for i in range(3):
        if m == 1 and REUSE: l.append(("s", "s_mov_b32 %s, %s" % (s(S_TMP + 3), s(T_SL + i))))
        else: l.append(("s", "s_add_u32 %s, %s, %d" % (s(S_TMP + 3), s(T_XO + 2), m * 12 * XPB + i * XPB)))
        for k in range(3): l.append(("m", "buffer_load_dwordx4 %s, %s, %s, %s offen offset:%d%s ;#xr%d" % (v(XR[m] + (i * 3 + k) * 4, 4), v(V_L16), s(T_XS, 4), s(S_TMP + 3), k * 1024, LDFL, m)))
    return l
def xcheck(e, m, first_wait):
    t = S_TMP
    e("s_mov_b32 %s, 0" % s(t + 7))
    e(first_wait)
    e("XCHK%d:" % m)
    for i in range(9): e("v_xor_b32 %s, %s, %s" % (v(20 + i), s(T_TAG), v(XR[m] + 4 * i + 3)))
    for i in range(4): e("v_or3_b32 %s, %s, %s, %s" % (v(20), v(20), v(21 + 2 * i), v(22 + 2 * i)))
    e("v_cmp_lt_u32 vcc, 0xffff, %s" % v(20))
    e("s_add_u32 %s, %s, 1" % (s(t + 7), s(t + 7)))
    e("s_cmp_eq_u64 vcc, 0\ns_cbranch_scc1 XOK%d" % m)
    e("s_cmp_ge_u32 %s, 0x40000\ns_cbranch_scc1 XOK%d" % (s(t + 7), m))
    e("s_sleep %d" % opt("xslp", 4))
    for x in cond_lines([x for _, x in xloads(m)]): e(x)
    e("s_waitcnt vmcnt(0)\ns_branch XCHK%d" % m)
    e("XOK%d:" % m)
def xsum(e, m, nb):
    o = OWR[m] + 4 * nb
    for i in range(3):
        for k in range(4):
            idx = nb * 4 + k; gi, pos = idx // 7, idx % 7
            src = XR[m] + (i * 3 + gi) * 4 + pos // 2
            e(("v_and_b32 %s, 0xffff0000, %s" if pos & 1 else "v_lshlrev_b32 %s, 16, %s") % (v(20 + 4 * i + k), v(src)))
    for h in range(2):
        e("v_pk_add_f32 %s, %s, %s" % (v(o + 2 * h, 2), v(o + 2 * h, 2), v(20 + 2 * h, 2)))
        e("v_pk_add_f32 %s, %s, %s" % (v(24 + 2 * h, 2), v(24 + 2 * h, 2), v(28 + 2 * h, 2)))
    for h in range(2): e("v_pk_add_f32 %s, %s, %s" % (v(o + 2 * h, 2), v(o + 2 * h, 2), v(24 + 2 * h, 2)))

CV_G, CV_L, CV_X, LROW, L_FIN = 8, 11, 224, 336, 20480
def gen_t8(e):
    t = S_TMP
    mf = []
    NF = 20 * NSG
    for F in range(NF):
        sg, f = F // 20, F % 20
        m = 0 if sg < NSD else 1
        if opt("t8c", 1):
            j = f & 1; F0 = F - j
            d = v(t8_acc(m, f >> 1, j), 4)
            for i, half in enumerate((0, 1) if j == 0 else (1, 0)):
                mf.append("%s %s, %s, %s, %s" % (MF, d, t8_wf(F0 + half), t8_af(sg, half, j), "0" if (sg in (0, NSD) and i == 0) else d))
            continue
        for j in range(2):
            d = v(t8_acc(m, f % 10, j), 4)
            mf.append("%s %s, %s, %s, %s" % (MF, d, t8_wf(F), t8_af(sg, f // 10, j), "0" if (sg in (0, NSD) and f < 10) else d))
    G = Gaps(mf)
    DA = opt("t8d", 8)
    SIGS = opt("sigs", 2); CKS = opt("cks", 6); PLS = CKS - opt("polld", 1)
    bars = {}
    cur = 0
    for F in range(DA, NF):
        sg, f = F // 20, F % 20
        lo = 2 * (F - DA)
        if f == 0:
            if sg % 3 == 0:
                d = 61440 if sg % 6 == 3 else -61440
                G.place("v", ("v_add_u32 %s, %d, %s" % (v(TV_WR), d, v(TV_WR))) if d > 0 else ("v_subrev_u32 %s, %d, %s" % (v(TV_WR), -d, v(TV_WR))), cur - 1, cur - 1)
            pre = E(); post = E()
            if sg == CKS:
                stamp(pre, 11)
                pre("s_cmp_lg_u32 %s, 0\ns_cbranch_scc1 SPUN_O\ns_waitcnt SINCE{p3}" % s(S_WAVE))
                poll_spin(pre, False, s(K_FLG), 4, "O")
                stamp(post, 12)
            if sg == SIGS:
                post("s_cmp_lg_u32 %s, 0\ns_cbranch_scc1 NOSIG3" % s(S_WAVE))
                set_flag(post, 4)
                post("s_cmp_lg_u32 s2, 0\ns_cbranch_scc1 NOSIG3")
                post("s_add_u32 %s, %s, 0x10001\ns_mov_b64 exec, 1\nv_mov_b32 %s, %s\ns_mov_b32 %s, %d" % (s(t + 7), s(S_EPOCH), v(V_PL + 1), s(t + 7), s(t + 6), EP_OFF))
                post("buffer_store_dword %s, off, %s, %s sc1\ns_mov_b64 exec, -1" % (v(V_PL + 1), s(S_FL, 4), s(t + 6)))
                post("NOSIG3:")
                stamp(post, 10)
            if sg == PLS:
                post("s_cmp_lg_u32 %s, 0\ns_cbranch_scc1 NOPOLL3" % s(S_WAVE))
                post(poll_load(False, s(K_FLG)))
                post("NOPOLL3:\nMARK p3")
            b = G.place("b", "\n".join(cond_lines(pre.L) + ["s_barrier"] + cond_lines(post.L)), max(cur, lo - 1))
            lateA = NSD <= sg < NSD + opt("latea", 2)
            G.put(b, "s", "s_waitcnt WAITVM{D%d%s%s}" % (sg, "" if lateA else ",A%d" % sg, ",ost" if sg == SIGS else ""))
            if lateA: G.put(40 * sg - 1, "s", "s_waitcnt WAITVM{A%d}" % sg)
            bars[sg] = b; cur = b + 1
        cur = G.place("d", t8_read(F), max(cur, lo)) + 1
    qw = [(t8_w(sg), bars[sg - RW8 + 2] if sg >= RW8 else 0, sg) for sg in range(max(NPRE_G, NWP), NSG)]
    qa = [(t8_a(sg), max(40 * (sg - RA8 + 1) if sg >= RA8 else 0, bars[CKS] if sg >= NSD else 0), sg) for sg in range(NPRE_G, NSG)]
    DP = opt("dpub", 1)
    side = []
    if DP:
        side.append((publish(0), 40 * NSD + 8 + opt("dpd", 8)))
        side.append((xloads(0), 40 * opt("dld", 20)))
    if COAL:
        seq = []
        for i in range(3):
            seq += [("v", "v_add_u32 %s, %d, %s" % (v(CV_G + i), 64 * i, v(V_LANE))), ("v", "v_mul_u32_u24 %s, 6554, %s" % (v(36), v(CV_G + i))), ("v", "v_lshrrev_b32 %s, 16, %s" % (v(36), v(36))),
                    ("v", "v_lshlrev_b32 %s, 5, %s" % (v(CV_L + i), v(CV_G + i))), ("v", "v_mad_u32_u24 %s, %s, %d, %s" % (v(CV_L + i), v(36), LROW - 320, v(CV_L + i))),
                    ("v", "v_mul_u32_u24 %s, 1120, %s" % (v(36), v(36))), ("v", "v_lshl_add_u32 %s, %s, 4, %s" % (v(CV_G + i), v(CV_G + i), v(36))),
                    ("m", "buffer_load_dwordx4 %s, %s, %s, 0 offen ;#xx" % (v(CV_X + 4 * i, 4), v(CV_G + i), s(K_SX, 4)))]
        side.append((seq, 40 * opt("xld", 19)))
    else:
        side.append(([("m", "buffer_load_dwordx2 %s, %s, %s, 0 offen offset:%d ;#xx" % (v(KV_X + 2 * nb, 2), v(KV_XO), s(K_SX, 4), nb * 32)) for nb in range(5)], 40 * opt("xld", 19)))
    side.sort(key=lambda x: x[1])
    MG = opt("mg", 4)
    g = 0; lastm = -9
    while qw or qa:
        c = [x for x in (qw, qa) if x]
        c.sort(key=lambda x: (max(x[0][1], g), x[0][2]))
        seq, lo, _ = c[0].pop(0)
        g = max(g, lo)
        for k, x in seq:
            g = G.place(k, x, max(g + 1, lastm + MG if k == "m" else 0))
            if k == "m": lastm = g
    for seq, lo in side:
        g = lo; lastm = -99
        for k, x in seq:
            g = G.place(k, x, max(g + (0 if k == "v" else 1), lastm + (opt("smg", 24) if "xst" in x else 6) if k == "m" else 0))
            if k == "m": lastm = g
        if "xst0" in seq[-1][1]:
            G.va[g + 1].append("\n".join(own_write(0))); pubend = g + 1
    if DP: assert pubend < 40 * opt("dld", 20) - 40
    auto_lgkm(G, eager=opt("eag", 8))
    if VERBOSE: print("t8", G.pattern())
    for F in range(DA): e(t8_read(F))
    e("s_waitcnt lgkmcnt(0)")
    nm = 0
    for x in G.lines():
        if x.startswith("v_mfma"):
            if nm == 40 * NSD: stamp(e, 13)
            if STAMPS and opt("t8st", 0) and nm > 40 * NSD and (nm - 40 * NSD) % 160 == 0: stamp(e, 25 + (nm - 40 * NSD) // 160)
            nm += 1
        e(x)

def gen_tail(e0, head):
    head, neg = head
    e = E(); e.ext(head)
    T = V_T; t = S_TMP
    stamp(e, 8)
    C = 252
    W = T + 12
    wq = [x for sg in range(NPRE_X, NPRE_G) for x in (t8_w(sg) if sg >= NWP else []) + t8_a(sg)]
    def wsome(n):
        while wq and n > 0:
            k, x = wq.pop(0); n -= (k == "m")
            e(x + ("\ns_nop 0" if k == "s" else ""))
    wsome(opt("wpre", 0))
    pro, grp = o_ops()
    for i in range(neg, 16):
        if i == 8: e.ext(pro[1])
        for x in grp(i, True): e(x)
        wsome(opt("wpg", 1))
    wsome(99)
    e("s_nop 7")
    e("v_cmp_u_f32 vcc, %s, %s" % (v(T + 8), v(C)))
    e("s_cmp_lg_u64 vcc, 0\ns_cselect_b32 %s, 1, 0" % s(t))
    e("v_mov_b32 %s, %s" % (v(W), s(t)))
    e("s_lshl_b32 %s, %s, 2\ns_add_u32 %s, %s, %d" % (s(t + 1), s(S_WAVE), s(t + 1), s(t + 1), L_MISC))
    e("v_mov_b32 %s, %s\nv_mov_b32 %s, %d" % (v(W + 1), s(t + 1), v(W + 2), L_MISC))
    e("ds_write_b32 %s, %s" % (v(W + 1), v(W)))
    e("s_waitcnt WAITVM{D0,A0} lgkmcnt(0)")
    e("s_cmp_lg_u32 %s, 0\ns_cbranch_scc1 SPUN_EARLY3" % s(S_WAVE))
    w0 = E(); poll_spin(w0, True, None, 3, "EARLY3")
    for x in cond_lines(w0.L): e(x)
    e("v_min_u32 %s, 7, %s\nv_lshlrev_b32 %s, %d, %s" % (v(V_PL + 3), v(V_LANE), v(V_PL + 3), FSH, v(V_PL + 3)))
    e("s_barrier")
    e("ds_read_b128 %s, %s" % (v(W + 4, 4), v(W + 2)))
    t8 = E(); gen_t8(t8)
    i0 = t8.L.index("s_waitcnt lgkmcnt(0)")
    e.ext(t8.L[:i0 + 1])
    e("v_or3_b32 %s, %s, %s, %s\nv_or_b32 %s, %s, %s\ns_nop 0" % (v(W + 4), v(W + 4), v(W + 5), v(W + 6), v(W + 4), v(W + 4), v(W + 7)))
    e("v_readfirstlane_b32 %s, %s" % (s(t), v(W + 4)))
    e("s_nop 3\ns_andn2_b32 %s, %s, %s" % (s(t), s(t), s(S_RETRY)))
    e("s_cbranch_scc1 ATT_RETRY")
    stamp(e, 9)
    e.ext(t8.L[i0 + 1:])
    stamp(e, 14)
    if REUSE:
        xcheck(e, 0, "s_waitcnt WAITVM{xr0,xx}")
        e("s_barrier")
        e("s_xor_b32 %s, %s, 0x80000000\nv_mov_b32 %s, %s" % (s(T_TAG), s(T_TAG), v(TV_TAG), s(T_TAG)))
    else:
        e("s_nop 6")
    for k, x in publish(1): e(x)
    stamp(e, 23)
    for x in own_write(1): e(x)
    e("v_add_u32 %s, %d, %s" % (v(52), L_OWN[0], v(TV_OR)))
    if REUSE:
        for i in range(3):
            e("s_and_b32 %s, s2, 3\ns_xor_b32 %s, %s, %d\ns_sub_u32 %s, %s, %s\ns_mul_i32 %s, %s, %d\ns_add_u32 %s, %s, %s\ns_add_u32 %s, %s, %d" % (
                s(t), s(t + 1), s(t), i + 1, s(t), s(t + 1), s(t), s(t), s(t), 3 * XPB, s(t), s(t), s(T_XO + 2), s(T_SL + i), s(t), i * XPB))
    e("s_waitcnt lgkmcnt(0)")
    e("s_barrier")
    for nb in range(5): e("ds_read_b128 %s, %s offset:%d" % (v(OWR[0] + 4 * nb, 4), v(52), nb * 1024))
    for nb in range(5): e("ds_read_b128 %s, %s offset:%d" % (v(OWR[1] + 4 * nb, 4), v(TV_OR), L_OWN[1] + nb * 1024))
    if REUSE: e("s_waitcnt lgkmcnt(0)")
    else: xcheck(e, 0, "s_waitcnt WAITVM{xr0,xx} lgkmcnt(0)")
    GG = 100; XU = 204
    e("v_mov_b32 %s, %s" % (v(36), f2u(1.0 / DSC)))
    MP0, MP1 = opt("mp0", 2), opt("mp1", 4)
    e("v_mov_b32 %s, %s\nv_writelane_b32 %s, %s, 0\nv_writelane_b32 %s, %s, 1\ns_movk_i32 %s, %d\ns_mov_b32 %s, 0" % (v(38), s(T_SL + 2), v(38), s(T_SL), v(38), s(T_SL + 1), s(t + 4), 2048 + 1008 + 12, s(t + 5)))
    PLD = "@buffer_load_dword %s, %s, %s, %s offen%s" % (v(37), v(38), s(T_XS, 4), s(t + 4), LDFL)
    for nb in range(5):
        if nb == MP0 and MP1 < 9: e(PLD)
        if nb == MP1:
            e("s_waitcnt vmcnt(0)")
            e("v_xor_b32 %s, %s, %s\nv_cmp_lt_u32 vcc, 0xffff, %s" % (v(37), s(T_TAG), v(37), v(37)))
            e("s_cmp_lg_u64 vcc, 0\ns_cbranch_scc1 NOEARLY")
            for x in cond_lines([x for _, x in xloads(1)]): e(x)
            e("s_mov_b32 %s, 1\nNOEARLY:" % s(t + 5))
        d = OWR[0] + 4 * nb; gq = GG + 4 * nb
        xsum(e, 0, nb)
        for k in range(4): e("v_mul_f32 %s, %s, %s" % (v(gq + k), f2u(-math.log2(math.e) * DSC), v(d + k)))
        for k in range(4): e("v_exp_f32 %s, %s" % (v(gq + k), v(gq + k)))
        e("s_nop 0")
        for k in range(4): e("v_fma_f32 %s, %s, %s, %s" % (v(gq + k), v(gq + k), v(36), v(36)))
        for k in range(4): e("v_rcp_f32 %s, %s" % (v(gq + k), v(gq + k)))
        if not COAL:
            for h in range(2):
                e("v_lshlrev_b32 %s, 16, %s" % (v(XU + 4 * nb + 2 * h), v(KV_X + 2 * nb + h)))
                e("v_and_b32 %s, 0xffff0000, %s" % (v(XU + 4 * nb + 2 * h + 1), v(KV_X + 2 * nb + h)))
        else: e("s_nop 0")
        for k in range(4): e("v_mul_f32 %s, %s, %s" % (v(gq + k), v(gq + k), v(d + k)))
    if COAL:
        XU = 128
        for i in range(12):
            e("v_lshlrev_b32 %s, 16, %s\nv_and_b32 %s, 0xffff0000, %s" % (v(XU + 2 * i), v(CV_X + i), v(XU + 2 * i + 1), v(CV_X + i)))
        e("s_mul_i32 %s, %s, %d\ns_add_u32 %s, %s, %d" % (s(t), s(S_WAVE), 20 * LROW, s(t), s(t), L_FIN))
        e("v_and_b32 %s, 15, %s\nv_mul_u32_u24 %s, %d, %s\nv_lshrrev_b32 %s, 4, %s\nv_lshl_add_u32 %s, %s, 4, %s\nv_add_u32 %s, %s, %s" % (v(14), v(V_LANE), v(14), LROW, v(14), v(15), v(V_LANE), v(14), v(15), v(14), v(14), s(t), v(14)))
        for i in range(3): e("v_add_u32 %s, %s, %s" % (v(CV_L + i), s(t), v(CV_L + i)))
    stamp(e, 24)
    e("s_mov_b32 %s, 0" % s(t + 7))
    e("s_cmp_lg_u32 %s, 0\ns_cbranch_scc1 LOADED" % s(t + 5))
    e("PROBE:")
    e(PLD)
    e("s_waitcnt vmcnt(0)")
    e("v_xor_b32 %s, %s, %s\nv_cmp_lt_u32 vcc, 0xffff, %s" % (v(37), s(T_TAG), v(37), v(37)))
    e("s_add_u32 %s, %s, 1" % (s(t + 7), s(t + 7)))
    e("s_cmp_eq_u64 vcc, 0\ns_cbranch_scc1 PROBED")
    e("s_cmp_ge_u32 %s, 0x40000\ns_cbranch_scc1 PROBED" % s(t + 7))
    e("s_sleep %d\ns_branch PROBE" % opt("pslp", 4))
    e("PROBED:")
    for k, x in xloads(1): e(x)
    e("LOADED:")
    xcheck(e, 1, "s_waitcnt vmcnt(0)")
    stamp(e, 25)
    OFL = opt("ofl", "_sc1").replace("_", " ")
    for nb in range(5):
        o = OWR[1] + 4 * nb; gq = GG + 4 * nb; xu = XU + 4 * nb
        xsum(e, 1, nb)
        if COAL:
            for h in range(2): e("v_pk_mul_f32 %s, %s, %s" % (v(o + 2 * h, 2), v(o + 2 * h, 2), v(gq + 2 * h, 2)))
            e("ds_write_b128 %s, %s offset:%d" % (v(14), v(o, 4), nb * 64))
            continue
        for r in range(4): e("v_fma_f32 %s, %s, %s, %s" % (v(xu + r), v(o + r), v(gq + r), v(xu + r)))
        for h in range(2): e("v_cvt_pk_bf16_f32 %s, %s, %s" % (v(gq + h), v(xu + 2 * h), v(xu + 2 * h + 1)))
        e("buffer_store_dwordx2 %s, %s, %s, 0 offen offset:%d%s" % (v(gq, 2), v(KV_XO), s(K_SO, 4), nb * 32, OFL))
    if COAL:
        for i in range(3):
            for h in range(2): e("ds_read_b128 %s, %s offset:%d" % (v(64 + 8 * i + 4 * h, 4), v(CV_L + i), 16 * h))
        for i in range(3):
            e("s_waitcnt lgkmcnt(%d)" % (4 - 2 * i))
            for h in range(4): e("v_pk_add_f32 %s, %s, %s" % (v(64 + 8 * i + 2 * h, 2), v(64 + 8 * i + 2 * h, 2), v(XU + 8 * i + 2 * h, 2)))
            for h in range(4): e("v_cvt_pk_bf16_f32 %s, %s, %s" % (v(100 + 4 * i + h), v(64 + 8 * i + 2 * h), v(65 + 8 * i + 2 * h)))
            e("buffer_store_dwordx4 %s, %s, %s, 0 offen%s" % (v(100 + 4 * i, 4), v(CV_G + i), s(K_SO, 4), OFL))
    e0.ext([x.lstrip("@") for x in resolve_vm(e.L)])
    e = e0
    stamp(e, 15)
    if STAMPS: e("s_waitcnt vmcnt(0)")
    stamp(e, 16)
    stamp_fin(e)

def gen_kv_addr(e):
    T = V_T + 12; L = V_LANE
    e("s_lshl_b32 %s, %s, 19" % (s(S_TMP), s(S_HEAD)))
    srd(e, S_K, 54, s(S_TMP), 524288)
    srd(e, S_V, 56, s(S_TMP), 524288 + VSH * 8192)
    e("s_sub_u32 %s, %s, %d\ns_subb_u32 %s, %s, 0" % (s(S_V), s(S_V), VSH * 8192, s(S_V + 1), s(S_V + 1)))
    e("v_lshrrev_b32 %s, 4, %s\ns_lshl_b32 %s, %s, 3\nv_add_u32 %s, %s, %s\nv_and_b32 %s, 15, %s" % (v(T), v(L), s(S_TMP), s(S_WAVE), v(T), s(S_TMP), v(T), v(T + 1), v(L)))
    e("v_lshlrev_b32 %s, 8, %s" % (v(T + 2), v(T)))
    for i in range(2):
        e("v_add_u32 %s, %d, %s\nv_and_b32 %s, 15, %s\nv_xor_b32 %s, %s, %s\nv_lshl_add_u32 %s, %s, 4, %s" % (v(T + 3), 4 * i, v(T), v(T + 4), v(T + 3), v(T + 4), v(T + 4), v(T + 1), v(V_KD + i), v(T + 4), v(T + 2)))
        e("v_and_b32 %s, 7, %s\nv_lshlrev_b32 %s, 1, %s\nv_xor_b32 %s, %s, %s\nv_lshl_add_u32 %s, %s, 4, %s" % (v(T + 4), v(T + 3), v(T + 4), v(T + 4), v(T + 4), v(T + 4), v(T + 1), v(V_VD + i), v(T + 4), v(T + 2)))
    e("v_and_b32 %s, 15, %s\nv_lshrrev_b32 %s, 4, %s\nv_xor_b32 %s, %s, %s" % (v(T), v(L), v(T + 1), v(L), v(T + 1), v(T + 1), v(T)))
    e("v_lshlrev_b32 %s, 8, %s\nv_lshl_add_u32 %s, %s, 4, %s" % (v(T), v(T), v(T), v(T + 1), v(T)))
    for sl in range(4): e("v_xor_b32 %s, %d, %s" % (v(V_KA + sl), sl * 64, v(T)))
    e("v_lshrrev_b32 %s, 2, %s\nv_and_b32 %s, 7, %s\nv_lshlrev_b32 %s, 8, %s\nv_lshl_add_u32 %s, %s, 5, %s" % (v(T), v(L), v(T + 1), v(T), v(T), v(T), v(T), v(T + 1), v(T)))
    e("v_and_b32 %s, 3, %s\nv_lshl_add_u32 %s, %s, 3, %s\nv_add_u32 %s, %d, %s" % (v(T + 1), v(L), v(T), v(T + 1), v(T), v(T), L_V, v(T)))
    for db in range(8): e("v_xor_b32 %s, %d, %s" % (v(V_VA + db), db * 32, v(T)))

def gen_retry(e):
    e("ATT_RETRY:")
    e("s_waitcnt vmcnt(0)\ns_mov_b32 %s, 1" % s(S_RETRY))
    gen_kv_addr(e)
    for qb in range(4): e("v_mov_b32 %s, 0xff800000" % v(V_NEGM + 4 * qb))
    e("s_mov_b32 %s, 0" % s(S_KVOFF))
    e("RETRY_LOOP:")
    e("s_barrier")
    e("s_add_u32 m0, %s, %d\ns_nop 0" % (s(S_M0K), L_K))
    e(kv_dma("K", 0)); e(kv_dma("K", 1))
    e("s_waitcnt vmcnt(0)\ns_barrier")
    for kb in range(2):
        for sl in range(4): e(k_read(kb, sl, 0))
    e("s_waitcnt lgkmcnt(0)")
    e.ext(qk_mfmas(0, czero=True))
    e("s_nop 7")
    for qb in range(4):
        b = Sreg(0, qb, 0); m = v(V_NEGM + 4 * qb)
        for k in range(4): e("v_max3_f32 %s, %s, %s, %s" % (m, m, v(b + 2 * k), v(b + 2 * k + 1)))
    e("s_add_u32 %s, %s, 8192\ns_cmp_lt_u32 %s, %d\ns_cbranch_scc1 RETRY_LOOP" % (s(S_KVOFF), s(S_KVOFF), s(S_KVOFF), 64 * 8192))
    e("s_barrier")
    kv_preload(e)
    e("s_barrier")
    for kb in range(2):
        for sl in range(4): e(k_read(kb, sl, 0))
    e.ext(ones_ops(V_T))
    for r in range(128): e("v_accvgpr_write_b32 %s, 0" % a(A_O + r))
    for r in range(8): e("v_mov_b32 %s, 0" % v(V_L + r))
    e("s_waitcnt lgkmcnt(0)")
    e.ext(qk_mfmas(0, czero=True))
    for kb in range(2):
        for sl in range(4): e(k_read(kb, sl, 8192))
    e("s_branch ATT_START")

def gen_common_setup(e):
    T = V_T + 12; L = V_LANE
    e("s_lshl2_add_u32 %s, %s, %s" % (s(S_TMP + 1), s(S_QT), s(S_WAVE)))
    e("s_mul_i32 %s, %s, %d" % (s(S_TMP), s(S_TMP + 1), NSLAB * 4096))
    srd(e, S_AF, ptr(11), s(S_TMP), NSLAB * 4096)
    e("s_mul_i32 %s, %s, %d\ns_add_u32 %s, %s, %d" % (s(S_TMP), s(S_TMP + 1), 20 * 4096, s(S_TMP), s(S_TMP), XF_OFF))
    srd(e, S_X, ptr(11), s(S_TMP), 20 * 4096)
    e("s_mov_b64 %s, %s\ns_mov_b64 %s, %s" % (s(54, 2), s(ptr(1), 2), s(56, 2), s(ptr(2), 2)))
    e("v_bfe_u32 %s, %s, 2, 2\nv_lshrrev_b32 %s, 4, %s\nv_and_b32 %s, 3, %s" % (v(T), v(L), v(T + 1), v(L), v(T + 2), v(L)))
    e("v_lshlrev_b32 %s, 12, %s" % (v(T + 3), v(T + 1)))
    e("v_mul_u32_u24 %s, 320, %s\nv_add_u32 %s, %s, %s\nv_lshl_add_u32 %s, %s, 4, %s" % (v(T + 4), v(T), v(T + 4), v(T + 4), v(T + 3), v(T + 4), v(T + 2), v(T + 4)))
    for sl in range(4): e("v_xor_b32 %s, %d, %s" % (v(V_AQ + sl), sl * 64, v(T + 4)))
    e("v_lshl_add_u32 %s, %s, 7, %s\nv_lshl_add_u32 %s, %s, 3, %s" % (v(T + 4), v(T), v(T + 3), v(T + 4), v(T + 2), v(T + 4)))
    e("v_bfe_u32 %s, %s, 3, 2\nv_lshl_add_u32 %s, %s, 5, %s" % (v(T + 5), v(L), v(T + 4), v(T + 5), v(T + 4)))
    for u in range(4): e("v_xor_b32 %s, %d, %s" % (v(V_AG + u), u * 32, v(T + 4)))
    gen_kv_addr(e)

def gen_w_setup(e):
    T = V_T + 12; L = V_LANE
    e("v_lshrrev_b32 %s, 4, %s\nv_lshlrev_b32 %s, 2, %s\nv_and_b32 %s, 15, %s\nv_xor_b32 %s, %s, %s" % (v(T), v(L), v(T + 1), v(T), v(T + 2), v(L), v(T + 1), v(T + 1), v(T + 2)))
    e("v_lshlrev_b32 %s, 13, %s\nv_lshl_add_u32 %s, %s, 4, %s" % (v(T), v(T), v(V_WD), v(T + 1), v(T)))
    e("v_add_u32 %s, %d, %s" % (v(V_WD + 1), 4 * 8192 - 1024, v(V_WD)))
    e("v_lshrrev_b32 %s, 3, %s\nv_bfe_u32 %s, %s, 4, 1\nv_lshlrev_b32 %s, 1, %s" % (v(T), v(L), v(T + 1), v(L), v(T + 1), v(T + 1)))
    e("s_and_b32 %s, %s, 1\ns_lshl_b32 %s, %s, 2\nv_or_b32 %s, %s, %s" % (s(S_TMP), s(S_WAVE), s(S_TMP), s(S_TMP), v(T + 1), s(S_TMP), v(T + 1)))
    e("v_and_b32 %s, 7, %s\nv_xor_b32 %s, %s, %s" % (v(T + 2), v(L), v(T + 1), v(T + 1), v(T + 2)))
    e("v_mul_u32_u24 %s, 3456, %s\nv_lshl_add_u32 %s, %s, 4, %s" % (v(T), v(T), v(V_WD + 2), v(T + 1), v(T)))
    e("s_lshl_b32 %s, %s, 8\ns_sub_u32 %s, %d, %s" % (s(S_TMP), s(S_HEAD), s(S_TMP + 1), 640 * 8192, s(S_TMP)))
    srd(e, S_WQ, ptr(3), s(S_TMP), s(S_TMP + 1))
    for (d, p, sh) in ((S_WG, 6, 2048), (S_WU, 7, 3072)):
        e("s_lshl_b32 %s, %s, 7\ns_sub_u32 %s, %d, %s" % (s(S_TMP), s(S_FS), s(S_TMP + 1), 640 * 3456 + sh, s(S_TMP)))
        e("s_cmp_lt_u32 %s, 27\ns_cselect_b32 %s, %s, 0" % (s(S_FS), s(S_TMP + 1), s(S_TMP + 1)))
        srd(e, d, ptr(p), s(S_TMP), s(S_TMP + 1))
        e("s_sub_u32 %s, %s, %d\ns_subb_u32 %s, %s, 0" % (s(d), s(d), sh, s(d + 1), s(d + 1)))

def gen_kernel(e, name):
    T = V_T; L = V_LANE
    e(".text\n.globl %s\n.p2align 8\n.type %s,@function\n%s:" % (name, name, name))
    if STAMPS: e("s_memrealtime s[96:97]")
    e("s_cmp_ge_u32 s2, 256\ns_cbranch_scc1 K_END")
    e("s_load_dwordx8 %s, s[0:1], 0\ns_load_dwordx8 %s, s[0:1], 32\ns_load_dwordx8 %s, s[0:1], 64" % (s(S_PTR, 8), s(S_PTR + 8, 8), s(S_PTR + 16, 8)))
    TLB = opt("tlb", 1)
    if TLB:
        e("s_bfe_u32 s4, s2, 0x30003\ns_lshl_b32 s5, s4, 2\ns_lshr_b32 s6, 0x021bb763, s5\ns_and_b32 s6, s6, 15\ns_lshl_b32 s6, s6, 3\ns_load_dwordx2 s[8:9], s[0:1], s6")
        e("s_lshr_b32 s6, 0x10000112, s5\ns_and_b32 s6, s6, 15\ns_lshr_b32 s7, s2, 6\ns_min_u32 s6, s6, s7\ns_lshl_b32 s6, s6, 21")
        e("s_cmp_eq_u32 s4, 3\ns_cselect_b32 s6, 0x2000000, s6\ns_cmp_eq_u32 s4, 4\ns_cselect_b32 s6, 0x23f0000, s6")
        e("s_and_b32 s7, s2, 7\ns_lshl_b32 s7, s7, 21\ns_sub_u32 s5, s4, 5\ns_cmp_lt_u32 s5, 2\ns_cselect_b32 s6, s7, s6\nv_mov_b32 v9, s6")
    e("v_and_b32 %s, 63, v0\nv_lshrrev_b32 %s, 6, v0\nv_lshlrev_b32 %s, 4, %s\nv_readfirstlane_b32 %s, %s" % (v(L), v(T), v(V_L16), v(L), s(S_WAVE), v(T)))
    e("s_and_b32 %s, s2, 7\ns_lshr_b32 %s, s2, 3\ns_and_b32 %s, %s, 3\ns_lshr_b32 %s, %s, 2" % (s(S_TMP), s(S_TMP + 1), s(S_HL), s(S_TMP + 1), s(S_QT), s(S_TMP + 1)))
    e("s_lshl_b32 %s, %s, 2\ns_add_u32 %s, %s, %s" % (s(S_HEAD), s(S_TMP), s(S_HEAD), s(S_HEAD), s(S_HL)))
    e("s_lshl_b32 %s, %s, 3\ns_add_u32 %s, %s, %s" % (s(S_FS), s(S_HL), s(S_FS), s(S_FS), s(S_TMP)))
    e("s_mov_b32 %s, 0" % s(S_RETRY))
    e("s_lshl_b32 %s, %s, 12\ns_lshl_b32 %s, %s, 11" % (s(S_M0W), s(S_WAVE), s(S_M0K), s(S_WAVE)))
    if STAMPS: e("v_mov_b32 v0, -1\nv_mov_b32 v19, -1")
    stamp(e, 0)
    if STAMPS: e("v_writelane_b32 v19, s96, 40\nv_writelane_b32 v0, s96, 40")
    def codetouch(e):
        e("s_getpc_b64 %s\nCODE0:" % s(S_TMP + 4, 2))
        e("s_lshr_b32 %s, s2, 3\ns_lshl2_add_u32 %s, %s, %s\ns_mul_i32 %s, %s, 640" % (s(S_EVT + 6), s(S_EVT + 6), s(S_EVT + 6), s(S_WAVE), s(S_EVT + 6), s(S_EVT + 6)))
        if opt("cpm", "v") == "s":
            e("s_min_u32 %s, %s, CODE1-CODE0-644\ns_add_u32 %s, %s, %s\ns_addc_u32 %s, %s, 0" % (s(S_EVT + 6), s(S_EVT + 6), s(S_TMP + 4), s(S_TMP + 4), s(S_EVT + 6), s(S_TMP + 5), s(S_TMP + 5)))
            for i in range(10): e("s_load_dword %s, %s, %d" % (s(4 + i), s(S_TMP + 4, 2), 64 * i))
            return
        if opt("cpm", "v") == "h":
            e("v_min_u32 %s, 9, %s\nv_lshlrev_b32 %s, 6, %s\nv_add_u32 %s, %s, %s\nv_min_u32 %s, CODE1-CODE0-4, %s" % (v(8), v(L), v(8), v(8), v(8), s(S_EVT + 6), v(8), v(8), v(8)))
        else:
            e("v_min_u32 %s, 4, %s\nv_lshlrev_b32 %s, 7, %s\nv_add_u32 %s, %s, %s\nv_min_u32 %s, CODE1-CODE0-4, %s" % (v(8), v(L), v(8), v(8), v(8), s(S_EVT + 6), v(8), v(8), v(8)))
        e("global_load_dword %s, %s, %s" % (v(V_PL), v(8), s(S_TMP + 4, 2)))
    CPOS = opt("cpos", 1); WPOS = opt("wpos", 0)
    if CPOS == 0: codetouch(e)
    if CPOS == 9: e("CODE0:")
    gen_ln_loads(e)
    e("s_add_u32 %s, %s, %d\ns_addc_u32 %s, %s, 0\ns_load_dword %s, %s, 0" % (s(S_TMP + 2), s(ptr(11)), FL_OFF + EP_OFF, s(S_TMP + 3), s(ptr(11) + 1), s(S_EPOCH), s(S_TMP + 2, 2)))
    ny = 0
    if opt("tlb", 1) == 2: e("global_load_dword %s, v9, s[8:9]" % v(V_TRA)); ny += 1
    if CPOS == 1: codetouch(e); ny += 1
    gen_w_setup(e)
    e("s_lshl_b32 %s, %s, 16\ns_mul_i32 %s, %s, %d" % (s(S_WQOFF), s(S_WAVE), s(S_WGOFF), s(S_WAVE), 8 * 3456))
    WT = max(opt("wt", 4), 1)
    X = V_TC
    e("s_lshl2_add_u32 %s, %s, %s\ns_add_u32 %s, %s, %d" % (s(S_TMP), s(S_QT), s(S_WAVE), s(S_TMP), s(S_TMP), 32 * NI))
    e("v_lshrrev_b32 %s, 1, %s\nv_min_u32 %s, %d, %s\nv_lshlrev_b32 %s, 5, %s\nv_add_u32 %s, %s, %s" % (v(X), v(L), v(X), WT - 1, v(X), v(X), v(X), v(X), s(S_TMP), v(X)))
    e("v_and_b32 %s, 1, %s\nv_lshlrev_b32 %s, 7, %s\nv_lshl_add_u32 %s, %s, 13, %s\nv_mul_u32_u24 %s, 3456, %s" % (v(X + 1), v(L), v(X + 1), v(X + 1), v(X + 1), v(X), v(X + 1), v(X), v(X)))
    w0 = E(); wt = E()
    for sl in range(NI): w_slab(w0, sl, True)
    wt("buffer_load_dword %s, %s, %s, 0 offen" % (v(V_PL + 1), v(X + 1), s(S_WQ, 4)))
    wt("buffer_load_dword %s, %s, %s, 0 offen offset:2048" % (v(V_PL + 2), v(X), s(S_WG, 4)))
    wt("buffer_load_dword %s, %s, %s, 0 offen offset:3072" % (v(V_DUMP), v(X), s(S_WU, 4)))
    if opt("wt", 4) == 0: wt.L = []
    early = {0: w0.L + wt.L, 1: [], 2: w0.L, 3: w0.L}[WPOS]
    mid = {0: [], 1: w0.L + wt.L, 2: wt.L, 3: []}[WPOS]
    after = wt.L if WPOS == 3 else []
    e.ext(early); ny += sum(x.startswith("buffer") for x in early)
    LATE = opt("late", 2)
    srd(e, S_FL, ptr(11), FL_OFF, EP_OFF + 4096)
    e("s_lshl_b32 %s, %s, 5\ns_add_u32 %s, %s, %s\ns_lshl_b32 %s, %s, %d" % (s(S_MYFL), s(S_QT), s(S_MYFL), s(S_MYFL), s(S_HEAD), s(S_MYFL), s(S_MYFL), FSH))
    e("v_min_u32 %s, 31, %s\nv_lshlrev_b32 %s, %d, %s\ns_lshl_b32 %s, %s, %d" % (v(V_PL + 3), v(L), v(V_PL + 3), FSH, v(V_PL + 3), s(S_XOFF), s(S_QT), FSH + 5))
    def rest():
        gen_common_setup(e)
        for i in range(8): e("v_add_u32 %s, 65536, %s" % (v(V_AHI + i), v(V_AQ + i)))
        e("v_mov_b32 %s, %d" % (v(V_ZA), L_MISC + 512))
        for i in range(4): e("v_mov_b32 %s, 0" % v(52 + i))
        e("ds_write_b128 %s, %s" % (v(V_ZA), v(52, 4)))
    stamp(e, 1)
    gen_ln_compute(e, ny, mid)
    e.ext(after)
    stamp(e, 29)
    if LATE == 1: rest()
    e("s_mul_i32 %s, %s, 0x9e3779b1\ns_add_u32 %s, %s, 0x7f4a7c15" % (s(S_TAG), s(S_EPOCH), s(S_TAG), s(S_TAG)))
    e("s_waitcnt vmcnt(%d)\ns_barrier" % len(after))
    stamp(e, 18)
    e("s_cmp_lg_u32 %s, 0\ns_cbranch_scc1 NOFL1" % s(S_WAVE))
    set_flag(e, 1)
    e("NOFL1:")
    if LATE == 2: rest()
    e("s_cmp_lg_u32 %s, 0\ns_cbranch_scc1 SPUN_XN" % s(S_WAVE))
    e(poll_load(False, s(S_XOFF)))
    e("s_waitcnt vmcnt(0)")
    poll_spin(e, False, s(S_XOFF), 1, "XN")
    e("s_barrier")
    stamp(e, 2)
    e("s_cmp_ge_u32 %s, 27\ns_cbranch_scc1 LIGHT" % s(S_FS))
    gen_proj(e, True, "H")
    e("PROJ_DONE:")
    head = gen_attention(e)
    gen_tail(e, head)
    e("K_END:\ns_endpgm")
    gen_events(e)
    gen_retry(e)
    e("LIGHT:")
    gen_proj(e, False, "L")
    e("s_branch PROJ_DONE")
    e("CODE1:")
    e(kd(name))

def main():
    e = E()
    hdr = open("cdna_kernels/%s.s.ref" % NAME).read().split("; Override launch")[0]
    e.L += hdr.strip().split("\n")
    e("; @launch grid=(256,1,1) block=(256,1,1) lds=%d" % LDS_BYTES)
    e('.amdgcn_target "amdgcn-amd-amdhsa--gfx950"')
    gen_kernel(e, NAME + "_kernel")
    t = re.sub(r" ;#\w*", "", e.text()).replace("NVWAIT", str(min(NV01)))
    if VERBOSE: print("NV01", NV01)
    errs = [x for x in asmcheck.check(t, [NAME + "_kernel"]) if x.count("_load_dword v%d," % V_DUMP) != 2 and not any(y in x for y in poll_load(True).split("\n")[-4:])]
    if errs:
        print("\n".join(errs[:40])); print(len(errs), "problems")
    out = [x for x in sys.argv[1:] if x.endswith(".s")]
    open(out[0] if out else "cdna_kernels/%s.s" % NAME, "w").write(t)

if __name__ == "__main__":
    main()
```

```python
import sys, math, os, struct, re
from sched import Gaps, auto_lgkm
import asmcheck

NAME = "recurrent_scan__mha_block_cached__glu_gated_reglu__prompt"
MF = "v_mfma_f32_16x16x32_bf16"
OPT = dict(x.split("=") for x in sys.argv[1:] if "=" in x)
def opt(k, d): return type(d)(OPT.get(k, d))
VERBOSE = "-v" in sys.argv
STAMPS = "--stamps" in sys.argv
STFL = opt("stfl", " sc1").replace("_", " ")
LDFL = opt("ldfl", " sc1").replace("_", " ")

NSLAB = 182
QSC = math.log2(math.e) / math.sqrt(128.0)
DSC = 1.0 / (QSC * QSC)
WF_OFF = 0x1800000
AFS = (NSLAB + 1) * 4096
WFS = NSLAB * 10240 + 4096
XGS = 13 * 12288
XF_OFF = 0x2001000
XP_OFF = 0x2400000
MAXST = 4
FL_OFF = 0x2300000

class E:
    def __init__(self): self.L = []
    def __call__(self, s):
        for x in s.split("\n"):
            x = x.strip()
            if x: self.L.append(x)
    def ext(self, l): self.L += l
    def text(self): return "\n".join(self.L) + "\n"

def v(a, n=1): return "v%d" % a if n == 1 else "v[%d:%d]" % (a, a + n - 1)
def a(a_, n=1): return "a%d" % a_ if n == 1 else "a[%d:%d]" % (a_, a_ + n - 1)
def s(a_, n=1): return "s%d" % a_ if n == 1 else "s[%d:%d]" % (a_, a_ + n - 1)
def f2u(x): return "0x%08x" % struct.unpack("<I", struct.pack("<f", x))[0]

def kd(name, vgpr=512, acc=256):
    return """.section .rodata,"a"
.p2align 6
.amdhsa_kernel %s
  .amdhsa_next_free_vgpr %d
  .amdhsa_next_free_sgpr 102
  .amdhsa_accum_offset %d
  .amdhsa_group_segment_fixed_size 0
  .amdhsa_kernarg_size 96
  .amdhsa_user_sgpr_count 2
  .amdhsa_user_sgpr_kernarg_segment_ptr 1
  .amdhsa_system_sgpr_workgroup_id_x 1
.end_amdhsa_kernel
""" % (name, vgpr, acc)

def stamp(e, i):
    if not STAMPS: return
    e("s_waitcnt lgkmcnt(0)\ns_memtime s[98:99]\ns_memrealtime s[100:101]\ns_waitcnt lgkmcnt(0)")
    e("v_writelane_b32 v0, s98, %d\nv_writelane_b32 v19, s100, %d" % (i, i))
def stamp_fin(e):
    if not STAMPS: return
    if opt("echo", ""):
        i, j = [int(x) for x in opt("echo", "").split(".")]
        e("s_nop 1\nv_readlane_b32 s96, v19, %d\nv_readlane_b32 s97, v19, %d\nv_readlane_b32 s98, v19, 16\ns_nop 3\ns_sub_u32 s96, s97, s96\ns_min_u32 s96, s96, 20000\ns_cmp_%s_u32 %s, 27\ns_cselect_b32 s96, s96, 0" % (i, j, "ge" if opt("el", 0) else "lt", s(S_FS)))
        if opt("ecyc", 0):
            e("v_readlane_b32 s96, v0, %d\nv_readlane_b32 s97, v0, %d\ns_nop 3\ns_sub_u32 s96, s97, s96\ns_lshr_b32 s96, s96, 3\ns_min_u32 s96, s96, 20000\ns_cmp_lt_u32 %s, 27\ns_cselect_b32 s96, s96, 0" % (i, j, s(S_FS)))
            i = 40
        if opt("emul", 0): e("s_mul_i32 s96, s96, %d" % opt("emul", 0))
        if opt("eabs", 0): e("v_readlane_b32 s98, v19, %d\ns_add_u32 s96, s96, 10000\ns_nop 3" % i)
        e("ECHO:\ns_sleep 1\ns_memrealtime s[100:101]\ns_waitcnt lgkmcnt(0)\ns_sub_u32 s97, s100, s98\ns_cmp_lt_u32 s97, s96\ns_cbranch_scc1 ECHO")
        return
    if opt("dbgout", -1) >= 0:
        e("s_cmp_lg_u32 s2, %d\ns_cbranch_scc1 NODBG\ns_cmp_lg_u32 %s, 0\ns_cbranch_scc1 NODBG" % (opt("dbgout", -1), s(S_WAVE)))
        e("v_readlane_b32 s98, v19, 0\ns_nop 3\nv_subrev_u32 v18, s98, v19\nv_lshlrev_b32 v20, 2, v1\nv_subrev_u32 v20, 4, v20")
        e("s_mov_b32 s96, %s\ns_mov_b32 s97, %s\ns_mov_b32 s98, 64\ns_mov_b32 s99, 0x20000" % (s(ptr(10)), s(ptr(10) + 1)))
        e("buffer_store_dword v18, v20, s[96:99], 0 offen\ns_waitcnt vmcnt(0)\nNODBG:")
        return
    if opt("wsb", 0): e("s_sub_u32 %s, %s, %d\ns_subb_u32 %s, %s, 0" % (s(ptr(11)), s(ptr(11)), opt("wsb", 0) << 20, s(ptr(11) + 1), s(ptr(11) + 1)))
    e("s_lshl_b32 s98, s2, 2\ns_add_u32 s98, s98, %s\ns_lshl_b32 s98, s98, 9\ns_add_u32 s98, s98, %d" % (s(S_WAVE), 0x4000000))
    e("s_add_u32 s96, %s, s98\ns_addc_u32 s97, %s, 0\ns_mov_b32 s98, 512\ns_mov_b32 s99, 0x20000" % (s(ptr(11)), s(ptr(11) + 1)))
    e("v_mov_b32 v18, v0\nv_lshlrev_b32 v20, 3, v1\nbuffer_store_dwordx2 v[18:19], v20, s[96:99], 0 offen\ns_waitcnt vmcnt(0)")

def srd(e, d, base, off_lo, nbytes):
    e("s_add_u32 %s, %s, %s" % (s(d), s(base), off_lo))
    e("s_addc_u32 %s, %s, 0" % (s(d + 1), s(base + 1)))
    e("s_mov_b32 %s, %s" % (s(d + 2), nbytes))
    e("s_mov_b32 %s, 0x20000" % s(d + 3))

def uncond(x): return False
def resolve_vm(lines):
    out = []; ops = []; waited = set(); lastm0 = None; done = 0; marks = {}
    for x in lines:
        mm = re.search(r"vmcnt\((\d+)\)", x)
        if mm and not x.startswith("@") and uncond(x): done = max(done, len(ops) - int(mm.group(1)))
        if x.startswith(("buffer_", "global_")) and len(ops) - done >= 58:
            out.append("s_waitcnt vmcnt(52)"); done = len(ops) - 52
        if x.startswith("s_add_u32 m0,"): lastm0 = x.split(",")[1].strip()
        if " lds" in x and ";#" in x:
            tg = x.split(";#")[1].strip()
            exp = s(S_M0W) if tg.startswith("w") else (s(S_TRM) if tg == "trs" else s(S_M0K))
            if tg.startswith("D"): exp = s(T_M0W)
            assert lastm0 == exp, "M0 collision at %s" % x
        if x.startswith("MARK"):
            marks[x.split()[1]] = len(ops); continue
        m = re.search(r"SINCE\{(\w+)\}", x)
        if m: x = x.replace(m.group(0), "vmcnt(%d)" % min(63, len(ops) - marks[m.group(1)]))
        m = re.search(r"WAITVM\{([^}]*)\}", x)
        if m:
            need = set(m.group(1).split(","))
            waited |= need
            idx = [i for i, t in enumerate(ops) if t in need]
            n = len(ops) - 1 - max(idx) if idx else 63
            done = max(done, len(ops) - min(n, 63))
            x = x.replace(m.group(0), "vmcnt(%d)" % min(n, 63))
        elif x.startswith(("buffer_", "global_")):
            t = x.split(";#")[1].strip() if ";#" in x else ""
            assert t not in waited, "op %s issued after its wait" % t
            ops.append(t)
        out.append(x)
    return out

S_FL = 4
S_X, S_WQ, S_WG, S_WU, S_K, S_V, S_AF, S_T, S_WF = 8, 12, 16, 20, 24, 28, 32, 36, 40
S_PTR = 44
S_WAVE, S_HEAD, S_QT, S_FS = 68, 69, 70, 71
S_XOFF, S_WQOFF, S_WGOFF, S_M0W = 72, 73, 74, 75
S_KVOFF, S_M0K, S_TOG, S_RETRY = 76, 77, 78, 79
S_TMP = 80
S_TRS, S_TRM, S_TRD, S_TRU = 88, 89, 90, 91
S_EPOCH, S_TAG, S_MYFL = 92, 93, 94
S_HL = 3
S_EVT = 85
def EV(n): return (10 + 2 * n) * 8192
EVT0 = EV(3)
EVTE = (62 + 10) * 8192
NWH = opt("nwh", 0)
S_LN = 84
def ptr(i): return S_PTR + 2 * i

L_K = 0
L_V = 65536
RW = 8
L_TR = 114688
L_MISC = 155648
LDS_BYTES = 163840

V_LANE = 1
V_L16 = 2
V_WD = 3
V_TRA = 6
V_AQ = 10
V_AG = 14
V_KA = 20
V_VA = 24
V_KD = 32
V_VD = 34
V_DUMP = 18
V_SIDX = 7
V_ZA = 6
V_T2 = 40
NL = 2
VSH = 4
NOE = 4
V_PW = 5
PWARM = opt("pw", 0)
V_TC = 62
V_PL = 36
V_T = 40
V_ACCQ = 64
V_ACCG = 192
V_Q = 64
V_S = 128
V_P = 192
V_NEGM = 224
V_L = 240
A_ACCU = 0
XD = 8
A_X = 64
A_W = 192
A_TR = 208
V_ONE = 56
A_O = 64
A_KF = 224
A_KF1 = 192
A_VF = 0
V_AHI = 44

def qacc(blk, qb): return (V_S if blk & 1 else V_Q) + ((blk >> 1) * 4 + qb) * 4
def wslot(sl): return (sl + 4) % RW
def accreg(blk, qb):
    if blk < 8: return v(qacc(blk, qb), 4)
    if blk < 12: return v(V_ACCG + ((blk - 8) * 4 + qb) * 4, 4)
    return a(A_ACCU + ((blk - 12) * 4 + qb) * 4, 4)

def w_read(dst, blk, j, rel):
    if blk < 8:
        ar = V_AQ + (blk >> 1); off = rel + j * 1024 + (blk & 1) * 8
    else:
        ar = V_AG + ((blk - 8) & 3); off = rel + 2048 + (1024 if blk >= 12 else 0) + j * 512
    if rel >= 65536: ar += V_AHI - V_AQ; off -= 65536
    assert 0 <= off < 65536
    return "ds_read_b64_tr_b16 %s, %s offset:%d" % (a(dst + 2 * j, 2), v(ar), off)

def w_dma(heavy, tag):
    l = ["buffer_load_dwordx4 %s, %s, %s offen lds ;#%s" % (v(V_WD), s(S_WQ, 4), s(S_WQOFF), tag),
         "buffer_load_dwordx4 %s, %s, %s offen offset:1024 lds ;#%s" % (v(V_WD + 1), s(S_WQ, 4), s(S_WQOFF), tag)]
    if heavy:
        l += ["buffer_load_dwordx4 %s, %s, %s offen offset:2048 lds ;#%s" % (v(V_WD + 2), s(S_WG, 4), s(S_WGOFF), tag),
              "buffer_load_dwordx4 %s, %s, %s offen offset:3072 lds ;#%s" % (v(V_WD + 2), s(S_WU, 4), s(S_WGOFF), tag)]
    return l

def x_load(sl, qb):
    return "buffer_load_dwordx4 %s, %s, %s, %s offen offset:%d%s ;#x%d" % (a(A_X + ((sl % XD) * 4 + qb) * 4, 4), v(V_L16), s(S_X, 4), s(S_XOFF), qb * 1024, LDFL, sl)

def kv_dma(which, i, tag=""):
    vo = (V_KD if which == "K" else V_VD) + i
    return "buffer_load_dwordx4 %s, %s, %s offen offset:%d%s lds ;#%s" % (v(vo), s(S_K if which == "K" else S_V, 4), s(S_KVOFF), 1024 * i, opt("kvfl", "_sc1").replace("_", " "), tag)

FSH = opt("fsh", 2)
EP_OFF = 65536
def set_flag(e, stage):
    if opt("fwide", 0):
        n = (1 << FSH) // 8
        e("s_add_u32 %s, %s, %d\ns_mov_b64 exec, 0x%x\nv_mov_b32 %s, %s\nv_mov_b32 %s, %s\nv_lshlrev_b32 %s, 3, %s" % (s(S_TMP + 7), s(S_TAG), stage, (1 << n) - 1, v(V_PL), s(S_TMP + 7), v(V_PL + 1), s(S_TMP + 7), v(V_PL + 2), v(V_LANE)))
        e("buffer_store_dwordx2 %s, %s, %s, %s offen sc1" % (v(V_PL, 2), v(V_PL + 2), s(S_FL, 4), s(S_MYFL)))
    else:
        e("s_add_u32 %s, %s, %d\ns_mov_b64 exec, 1\nv_mov_b32 %s, %s" % (s(S_TMP + 7), s(S_TAG), stage, v(V_PL), s(S_TMP + 7)))
        e("buffer_store_dword %s, off, %s, %s sc1" % (v(V_PL), s(S_FL, 4), s(S_MYFL)))
    e("s_mov_b64 exec, -1")

def poll_load(allq, qoff=None):
    if allq and FSH > 2:
        return "v_lshlrev_b32 %s, %d, %s\n" % (v(V_DUMP), FSH + 2, v(V_LANE)) + "\n".join("buffer_load_dword %s, %s, %s, 0 offen offset:%d sc1" % (v(V_PL + i), v(V_DUMP), s(S_FL, 4), i << FSH) for i in range(4))
    if allq: return "buffer_load_dwordx4 %s, %s, %s, 0 offen sc1" % (v(V_PL, 4), v(V_L16), s(S_FL, 4))
    return "buffer_load_dword %s, %s, %s, %s offen sc1" % (v(V_PL), v(V_PL + 3), s(S_FL, 4), qoff)

def poll_spin(e, allq, qoff, stage, tag):
    e("s_mov_b32 %s, 0\ns_add_u32 %s, %s, %d" % (s(S_TMP + 7), s(S_TMP + 6), s(S_TAG), stage))
    e("SPIN_%s:" % tag)
    n = 4 if allq else 1
    for i in range(n): e("v_subrev_u32 %s, %s, %s" % (v(V_PL + i), s(S_TMP + 6), v(V_PL + i)))
    if allq: e("v_max3_u32 %s, %s, %s, %s\nv_max_u32 %s, %s, %s" % (v(V_PL), v(V_PL), v(V_PL + 1), v(V_PL + 2), v(V_PL), v(V_PL), v(V_PL + 3)))
    e("v_cmp_lt_u32 vcc, %d, %s" % (MAXST - stage, v(V_PL)))
    e("s_add_u32 %s, %s, 1" % (s(S_TMP + 7), s(S_TMP + 7)))
    e("s_cmp_eq_u64 vcc, 0\ns_cbranch_scc1 SPUN_%s" % tag)
    e("s_cmp_ge_u32 %s, 0x40000\ns_cbranch_scc1 SPUN_%s" % (s(S_TMP + 7), tag))
    e("s_sleep %d" % opt("slp", 2))
    e(poll_load(allq, qoff))
    e("s_waitcnt vmcnt(0)\ns_branch SPIN_%s" % tag)
    e("SPUN_%s:" % tag)

def zero_acc(e, heavy=True):
    for r in range(V_ACCQ, 256): e("v_mov_b32 %s, 0" % v(r))
    for r in range(A_ACCU, A_ACCU + 64): e("v_accvgpr_write_b32 %s, 0" % a(r))

NI = opt("ni", 1)

def gen_ln_loads(e):
    T = V_T; L = V_LANE
    R = V_ACCQ
    e("v_bfe_u32 %s, %s, 1, 3\nv_lshrrev_b32 %s, 4, %s\nv_and_b32 %s, 1, %s" % (v(T), v(L), v(T + 1), v(L), v(T + 2), v(L)))
    e("v_mul_u32_u24 %s, 1280, %s\nv_lshl_add_u32 %s, %s, 4, %s\nv_lshl_add_u32 %s, %s, 3, %s" % (v(T + 3), v(T), v(T + 3), v(T + 1), v(T + 3), v(T + 3), v(T + 2), v(T + 3)))
    e("s_lshl_b32 %s, %s, 5\ns_add_u32 %s, %s, %s\ns_mul_i32 %s, %s, %d\ns_mul_i32 %s, %s, 320" % (s(S_TMP), s(S_QT), s(S_TMP), s(S_TMP), s(S_HEAD), s(S_TMP), s(S_TMP), 8 * 1280, s(S_TMP + 1), s(S_WAVE)))
    e("s_waitcnt lgkmcnt(0)")
    if opt("wsb", 0): e("s_add_u32 %s, %s, %d\ns_addc_u32 %s, %s, 0" % (s(ptr(11)), s(ptr(11)), opt("wsb", 0) << 20, s(ptr(11) + 1), s(ptr(11) + 1)))
    if opt("tlb", 1) == 1: e("global_load_dword %s, v9, s[8:9]" % v(V_TRA))
    srd(e, S_T, ptr(0), s(S_TMP), 8 * 1280)
    for i in range(5): e("buffer_load_dwordx2 %s, %s, %s, %s offen offset:%d" % (v(R + 2 * i, 2), v(T + 3), s(S_T, 4), s(S_TMP + 1), 64 * i))

def gen_ln_compute(e, nyounger, mid=()):
    T = V_T; L = V_LANE
    R = V_ACCQ; U = R + 10
    e("v_and_b32 %s, 15, %s\nv_lshlrev_b32 %s, 3, %s\nv_lshl_add_u32 %s, %s, 8, %s" % (v(T + 3), v(L), v(T + 3), v(T + 3), v(T + 3), v(T + 1), v(T + 3)))
    e("s_lshr_b32 %s, %s, 3\ns_lshl2_add_u32 %s, %s, %s\ns_mul_i32 %s, %s, %d" % (s(S_TMP), s(S_HEAD), s(S_TMP), s(S_QT), s(S_TMP), s(S_TMP), s(S_TMP), 20 * 4096))
    e("s_bfe_u32 %s, %s, 0x20001\ns_lshl_b32 %s, %s, 10\ns_add_u32 %s, %s, %s" % (s(S_TMP + 1), s(S_HEAD), s(S_TMP + 1), s(S_TMP + 1), s(S_TMP), s(S_TMP), s(S_TMP + 1)))
    e("s_and_b32 %s, %s, 1\ns_lshl_b32 %s, %s, 7\ns_add_u32 %s, %s, %s\ns_add_u32 %s, %s, %d" % (s(S_TMP + 1), s(S_HEAD), s(S_TMP + 1), s(S_TMP + 1), s(S_TMP), s(S_TMP), s(S_TMP + 1), s(S_TMP), s(S_TMP), XF_OFF))
    srd(e, S_LN, ptr(11), s(S_TMP), 20 * 4096)
    e("s_mul_i32 %s, %s, %d" % (s(S_TMP), s(S_WAVE), 5 * 4096))
    e("v_lshlrev_b32 %s, 5, %s\nv_add_u32 %s, %d, %s\ns_lshl_b32 %s, %s, 3\nv_add_u32 %s, %s, %s" % (v(T + 4), v(T), v(T + 4), L_MISC, v(T + 4), s(S_TMP + 1), s(S_WAVE), v(T + 5), s(S_TMP + 1), v(T + 4)))
    A0 = T + 6; M = T + 8
    e("s_waitcnt vmcnt(%d)" % nyounger)
    stamp(e, 17)
    e.ext(list(mid))
    for d in range(10): e("v_lshlrev_b32 %s, 16, %s\nv_and_b32 %s, 0xffff0000, %s" % (v(U + 2 * d), v(R + d), v(U + 2 * d + 1), v(R + d)))
    e("v_pk_add_f32 %s, %s, %s\nv_pk_add_f32 %s, %s, %s" % (v(A0, 2), v(U, 2), v(U + 2, 2), v(M, 2), v(U + 4, 2), v(U + 6, 2)))
    for d in range(4, 10): e("v_pk_add_f32 %s, %s, %s" % (v((A0, M)[d & 1], 2), v((A0, M)[d & 1], 2), v(U + 2 * d, 2)))
    def reduce(dst):
        e("v_pk_add_f32 %s, %s, %s" % (v(A0, 2), v(A0, 2), v(M, 2) if dst == M else v(T + 10, 2)))
        e("v_add_f32 %s, %s, %s\ns_nop 1" % (v(A0), v(A0), v(A0 + 1)))
        e("v_add_f32_dpp %s, %s, %s quad_perm:[1,0,3,2] row_mask:0xf bank_mask:0xf" % (v(A0), v(A0), v(A0)))
        for sw in ("v_permlane32_swap_b32", "v_permlane16_swap_b32"):
            e("v_mov_b32 %s, %s\ns_nop 1\n%s %s, %s\nv_add_f32 %s, %s, %s" % (v(A0 + 1), v(A0), sw, v(A0), v(A0 + 1), v(A0), v(A0), v(A0 + 1)))
    reduce(M)
    e("v_mul_f32 %s, %s, %s\nv_mul_f32 %s, %s, %s" % (v(M), f2u(-1.0 / 160), v(A0), v(M + 1), f2u(-1.0 / 160), v(A0)))
    for d in range(10): e("v_pk_add_f32 %s, %s, %s" % (v(U + 2 * d, 2), v(U + 2 * d, 2), v(M, 2)))
    e("v_pk_mul_f32 %s, %s, %s\nv_pk_mul_f32 %s, %s, %s" % (v(A0, 2), v(U, 2), v(U, 2), v(T + 10, 2), v(U + 2, 2), v(U + 2, 2)))
    for d in range(2, 10): e("v_pk_fma_f32 %s, %s, %s, %s" % (v((A0, T + 10)[d & 1], 2), v(U + 2 * d, 2), v(U + 2 * d, 2), v((A0, T + 10)[d & 1], 2)))
    reduce(None)
    e("v_mov_b32 %s, %s" % (v(M + 1), v(A0)))
    e("ds_write_b64 %s, %s\ns_waitcnt lgkmcnt(0)\ns_barrier" % (v(T + 5), v(M, 2)))
    X = T + 12
    e("ds_read_b128 %s, %s\nds_read_b128 %s, %s offset:16\ns_waitcnt lgkmcnt(0)" % (v(X, 4), v(T + 4), v(X + 4, 4), v(T + 4)))
    e("v_pk_add_f32 %s, %s, %s\nv_pk_add_f32 %s, %s, %s\nv_pk_add_f32 %s, %s, %s" % (v(A0, 2), v(X, 2), v(X + 2, 2), v(T + 10, 2), v(X + 4, 2), v(X + 6, 2), v(A0, 2), v(A0, 2), v(T + 10, 2)))
    e("v_mul_f32 %s, 0.25, %s" % (v(A0), v(A0)) if False else "v_mul_f32 %s, %s, %s" % (v(A0), f2u(0.25), v(A0)))
    for k in range(4): e("v_sub_f32 %s, %s, %s" % (v(X + 2 * k), v(X + 2 * k), v(A0)))
    e("v_mul_f32 %s, %s, %s" % (v(X + 1), v(X), v(X)))
    for k in range(1, 4): e("v_fmac_f32 %s, %s, %s" % (v(X + 1), v(X + 2 * k), v(X + 2 * k)))
    e("v_fmac_f32 %s, %s, %s" % (v(A0 + 1), f2u(160.0), v(X + 1)))
    e("v_mov_b32 %s, %s\nv_fmac_f32 %s, %s, %s\nv_rsq_f32 %s, %s" % (v(X), f2u(1e-5 * DSC), v(X), f2u(DSC / 640), v(A0 + 1), v(X), v(X)))
    e("v_sub_f32 %s, %s, %s" % (v(M), v(A0), v(M)))
    e("v_mov_b32 %s, %s\nv_mul_f32 %s, %s, %s\nv_mul_f32 %s, %s, %s" % (v(X + 1), v(X), v(M + 1), v(M), v(X), v(M), v(M), v(X)))
    for i in range(5):
        for d in (2 * i, 2 * i + 1): e("v_pk_fma_f32 %s, %s, %s, %s" % (v(U + 2 * d, 2), v(U + 2 * d, 2), v(X, 2), v(M, 2)))
        for d in (2 * i, 2 * i + 1): e("v_cvt_pk_bf16_f32 %s, %s, %s" % (v(R + d), v(U + 2 * d), v(U + 2 * d + 1)))
        e("buffer_store_dwordx2 %s, %s, %s, %s offen%s" % (v(R + 2 * i, 2), v(T + 3), s(S_LN, 4), s(S_TMP), STFL))
        if i < 4: e("s_add_u32 %s, %s, 4096" % (s(S_TMP), s(S_TMP)))

def w_slab(e, sl, heavy):
    e("s_add_u32 m0, %s, %d\ns_nop 0" % (s(S_M0W), wslot(sl) * 16384))
    e.ext(w_dma(heavy, "w%d" % sl))
    e("s_add_u32 %s, %s, %d\ns_add_u32 %s, %s, %d" % (s(S_WQOFF), s(S_WQOFF), 32 * 8192, s(S_WGOFF), s(S_WGOFF), 32 * 3456))

def ones_ops(tmp):
    L = V_LANE
    return ["v_lshrrev_b32 %s, 4, %s" % (v(tmp), v(L)), "v_xor_b32 %s, %s, %s" % (v(tmp), v(tmp), v(L)), "v_bfe_u32 %s, %s, 1, 1" % (v(tmp), v(tmp)),
            "v_subrev_u32 %s, 1, %s" % (v(tmp), v(tmp)), "v_and_b32 %s, 0x3f803f80, %s" % (v(tmp), v(tmp))] + \
           ["v_mov_b32 %s, %s" % (v(V_ONE + r), v(tmp)) for r in range(4)] + \
           ["v_and_b32 %s, 1, %s" % (v(V_SIDX), v(L)), "v_mul_u32_u24 %s, 0xaaaa, %s" % (v(V_SIDX), v(V_SIDX)), "v_or_b32 %s, 0x4444, %s" % (v(V_SIDX), v(V_SIDX))]

NV01 = []
def gen_proj(e0, heavy, tag):
    e = E()
    T = V_T; L = V_LANE
    NS = opt("ns", 4) if heavy else 0
    GU = [b for fb in range(4) for b in (12 + fb, 8 + fb)]
    PC0 = opt("pc0", 2) if heavy else opt("lpc0", 20)
    def grp(lo, hi):
        out = []; sl = lo
        while sl < hi:
            if sl >= PC0 and sl + 1 < hi: out.append((sl, sl + 1)); sl += 2
            else: out.append((sl,)); sl += 1
        return out
    units = []
    for ss in grp(0, 20 - NS): units.append((ss, list(range(8)) + (GU if heavy else [])))
    for part in {0: (GU,), 1: (GU[:4], GU[4:]), 2: (GU[:2], GU[2:4], GU[4:6], GU[6:])}[opt("split", 2)]:
        for ss in grp(20 - NS, 20): units.append((ss, part))
    for ss in grp(20 - NS, 20): units.append((ss, list(range(8))))
    order = []; mf = []; firstuse = []
    for ss, bl in units:
        for b in bl:
            F0 = len(order)
            for sl in ss: order.append((sl, b)); firstuse.append(4 * F0)
            for qb in (range(4) if (not opt("psn", 1) or (F0 // len(ss)) % 2 == 0) else range(3, -1, -1)):
                idx = list(range(len(ss)))
                if qb & 1: idx.reverse()
                for i in idx:
                    sl = ss[i]
                    c = "0" if (0 in ss and i == idx[0]) else accreg(b, qb)
                    mf.append("%s %s, %s, %s, %s" % (MF, accreg(b, qb), a(A_W + 4 * ((F0 + i) % 8), 4), a(A_X + ((sl % XD) * 4 + qb) * 4, 4), c))
    NF = len(order)
    NP = len(mf)
    for sl in range(4):
        for kb in range(2):
            for qb in range(4):
                d = v(Sreg(0, qb, kb), 4)
                mf.append("%s %s, %s, %s, %s" % (MF, d, a(A_KF + (kb * 4 + sl) * 4, 4), v(V_Q + (sl * 4 + qb) * 4, 4), d if sl else "0"))
    G = Gaps(mf)
    ustart = []; n = 0
    for ss, bl in units: ustart.append(n); n += len(bl) * len(ss)
    lastF = {}; lastblk = {}; firstF = {}
    for u, (ss, bl) in enumerate(units):
        for k, sl in enumerate(ss):
            lastF[sl] = ustart[u] + len(bl) * len(ss) - 1
            firstF.setdefault(sl, ustart[u] + k * len(bl))
        for i, b in enumerate(bl): lastblk[b] = ustart[u] + (i + 1) * len(ss) - 1
    G1 = lambda sl: 4 * firstF[sl]
    DA = opt("pda", 6)
    rd = lambda F, j: w_read(A_W + 4 * (F % 8), order[F][1], j, wslot(order[F][0]) * 16384)
    pre_reads = [rd(F, j) for F in range(DA) for j in range(2)]
    TRW = opt("trw", 15) if heavy else 14
    bars = {}; cur = 0; seen = set(units[0][0])
    def barrier(u, lo, need):
        bb = G.place("b", "s_barrier", lo)
        G.put(bb, "s", "s_waitcnt WAITVM{%s}" % ",".join(need))
        bars[u] = bb
        return bb + 1
    for F in range(DA, NF):
        lo = 4 * (F - DA)
        if F in ustart:
            u = ustart.index(F)
            need = [k + str(sl) for sl in units[u][0] if sl not in seen for k in "xw"]
            seen |= set(units[u][0])
            if need or units[u][1][0] == 0: cur = barrier(u, max(cur, lo - 1), need or ["none"])
        if (opt("midb", 0) or F - DA - 1 == ustart[-1]) and (F - DA - 1) in ustart and len(units[ustart.index(F - DA - 1)][0]) == 2 and units[ustart.index(F - DA - 1)][1][0] == 0:
            cur = barrier(1000 + F, max(cur, lo - 1), ["none"])
        for j in range(2): cur = G.place("d", rd(F, j), max(cur, lo + 2 * j), firstuse[F] - 6) + 1
    NU = len(units)
    cur = barrier(NU, cur + 1, ["K0", "K1"])
    kord = [(kb, sl) for sl in range(4) for kb in range(2)]
    for kb, sl in kord: cur = G.place("d", k_read(kb, sl, 0), cur) + 1
    barrier(NU + 1, max(cur + 5, NP), ["none"])
    kpost = []
    for i, (kb, sl) in enumerate(kord):
        lo = NP + 4 * i + 3
        try: cur = G.place("d", k_read(kb, sl, 8192), max(cur, lo)) + 1
        except RuntimeError: kpost.append(k_read(kb, sl, 8192))
    freeg = lambda sl: min(x for x in bars.values() if x >= 4 * lastF[sl])
    def wseq(sl):
        return [("s", "s_add_u32 m0, %s, %d" % (s(S_M0W), wslot(sl) * 16384))] + [("m", x) for x in w_dma(heavy, "w%d" % sl)] + \
               [("s", "s_add_u32 %s, %s, %d\ns_add_u32 %s, %s, %d" % (s(S_WQOFF), s(S_WQOFF), 32 * 8192, s(S_WGOFF), s(S_WGOFF), 32 * 3456))]
    def xseq(sl): return [("m", x_load(sl, qb)) for qb in range(4)] + [("s", "s_add_u32 %s, %s, 4096" % (s(S_XOFF), s(S_XOFF)))]
    def kvseq(which, i):
        return [("s", "s_add_u32 m0, %s, %d\ns_mov_b32 %s, %d" % (s(S_M0K), (L_K if which == "K" else L_V) + i * 8192, s(S_KVOFF), (i + (VSH if which == "V" else 0)) * 8192))] + \
               [("m", kv_dma(which, k, "%s%d" % (which, i))) for k in range(2)]
    NX0 = opt("nx0", 2)
    e("s_mov_b32 %s, 0" % s(S_XOFF))
    q = []
    for sl in range(20):
        for kind in "wx":
            if kind == "w" and sl < NI: continue
            seq = wseq(sl) if kind == "w" else xseq(sl)
            if sl < NX0:
                for k, x in seq: e(x + ("\ns_nop 0" if " m0," in x else ""))
            else:
                lo = 0 if sl < RW else (freeg(sl - RW) if kind == "w" else 4 * lastF[sl - XD] + 3)
                q.append((lo, seq))
    late = {12: [("K", 0), ("K", 1)], 13: [("K", 2), ("K", 3)], 14: [("K", 4), ("K", 5)], 15: [("K", 6), ("K", 7)],
            16: [("V", 0), ("V", 1)], 17: [("V", 2), ("V", 3)], 18: [("V", 4)]}
    side = []
    for sl in range(12, 19):
        for which, i in late[sl]: side.append((freeg(sl), kvseq(which, i)))
    WT = opt("wt", 4)
    if WT:
        for k, sl in enumerate([int(x) for x in opt("wts", "0.1.4.7").split(".")], 1):
            seq = [("s", "s_mov_b32 %s, %d" % (s(S_TMP), k * WT * 32 * 8192)), ("m", "buffer_load_dword %s, %s, %s, %s offen" % (v(V_DUMP), v(V_TC + 1), s(S_WQ, 4), s(S_TMP)))]
            if heavy:
                seq += [("s", "s_mov_b32 %s, %d" % (s(S_TMP), k * WT * 32 * 3456)),
                        ("m", "buffer_load_dword %s, %s, %s, %s offen offset:2048" % (v(V_DUMP), v(V_TC), s(S_WG, 4), s(S_TMP))),
                        ("m", "buffer_load_dword %s, %s, %s, %s offen offset:3072" % (v(V_DUMP), v(V_TC), s(S_WU, 4), s(S_TMP)))]
            side.append((G1(sl) + opt("wtg", 30), seq))
    if opt("tw2", -1) >= 0:
        side.append((G1(opt("tw2", -1)), [("m", "global_load_dword %s, %s, %s" % (v(V_DUMP), v(V_T2), s(ptr(11), 2)))]))
        side.append((G1(opt("tw3", 8)), [("m", "global_load_dword %s, %s, %s" % (v(V_DUMP), v(V_T2 + 1), s(ptr(11), 2)))]))
        side.append((G1(opt("tw4", 10)), [("m", "global_load_dword %s, %s, %s" % (v(V_DUMP), v(V_T2 + 2), s(ptr(9), 2)))]))
    t0 = v(V_TRA + 3)
    if opt("kvt", 12): side.append((G1(opt("kvt", 12)), [("v", "v_min_u32 %s, 15, %s" % (t0, v(L))), ("v", "v_lshlrev_b32 %s, 7, %s" % (t0, t0)),
               ("s", "s_lshl2_add_u32 %s, %s, %s\ns_lshl_b32 %s, %s, 11" % (s(S_TMP), s(S_QT), s(S_WAVE), s(S_TMP), s(S_TMP))),
               ("m", "buffer_load_dword %s, %s, %s, %s offen" % (v(V_DUMP), t0, s(S_K, 4), s(S_TMP))),
               ("s", "s_add_u32 %s, %s, %d" % (s(S_TMP), s(S_TMP), VSH * 8192)),
               ("m", "buffer_load_dword %s, %s, %s, %s offen" % (v(V_DUMP), t0, s(S_V, 4), s(S_TMP)))]))
    side.sort(key=lambda t: t[0])
    MG = opt("pmg", 5) if heavy else opt("lmg", 2)
    g = 0; lastm = -9; vpost = []
    trlast = 0; lastload = 0
    while q or side:
        if side and (not q or side[0][0] <= max(g, q[0][0])): lo, seq = side.pop(0)
        else: lo, seq = q.pop(0)
        g = max(g, lo)
        for k, x in seq:
            if not vpost:
                try:
                    g = G.place(k, x, max(g + 1, lastm + (MG if g > opt("pmg0", 150) or not heavy else 4) if k == "m" else 0))
                    if k == "m": lastm = g
                    if re.search(r";#[xw]\d|;#trs", x) or "v%d," % V_DUMP in x: lastload = g
                    continue
                except RuntimeError: pass
            vpost.append(x + ("\ns_nop 0" if " m0," in x else ""))
    zlim = 4 * lastF[19 - max(NS, 1)] + 4 if opt("zds", 1) else 10 ** 9
    g = 0
    for sl in range(20 - XD, 20):
        lo = 4 * lastF[sl] + 4
        if lo <= zlim: continue
        for i in range(4):
            x = "ds_read_b128 %s, %s" % (a(A_X + 16 * (sl % XD) + 4 * i, 4), v(V_ZA))
            try: g = G.place("d", x, max(g, lo)) + 2
            except RuntimeError: kpost.append(x)
    auto_lgkm(G, eager=opt("peag", 8))
    g = lastload + 2
    for x in gen_tail_setup():
        g = G.place("v" if x.startswith("v_") else "s", x, g + 1)
    setup_end = g
    g = max(g, trlast)
    for x in gen_tail_setup2(): g = G.place("v" if x.startswith("v_") else "s", x, g + 1)
    HZ = 8
    post = []
    def lay(items):
        g = 0; out = []
        for lo, k, x, hi in items:
            if not out:
                try:
                    g = G.place(k, x, max(g + (0 if k == "v" else 1), lo), hi, force=(hi is not None)); continue
                except RuntimeError: pass
            assert hi is None
            out.append(x)
        return out
    its = []
    for sl in range(4):
        for qb in range(4):
            d0 = V_Q + (sl * 4 + qb) * 4
            lo = 4 * lastblk[2 * sl + 1] + 3 + HZ
            hi = NP - 3 if sl < 2 else NP + 8 * sl - 3
            for b in range(2):
                g0 = qacc(2 * sl + b, qb)
                for h in range(2): its.append((min(lo, hi), "v", "v_cvt_pk_bf16_f32 %s, %s, %s" % (v(d0 + 2 * b + h), v(g0 + 2 * h), v(g0 + 2 * h + 1)), hi))
    assert not lay(its)
    its = []
    if heavy:
        U = T
        for fb in range(4):
            for qb in range(4):
                g0 = V_ACCG + (fb * 4 + qb) * 4
                lo = 4 * lastblk[8 + fb] + 3 + HZ
                for r in range(4): its.append((lo, "v", "v_accvgpr_read_b32 %s, %s" % (v(U + r), a(A_ACCU + (fb * 4 + qb) * 4 + r)), None))
                for r in range(4): its.append((lo, "v", "v_max_f32 %s, 0, %s" % (v(g0 + r), v(g0 + r)), None))
                for r in range(4): its.append((lo, "v", "v_mul_f32 %s, %s, %s" % (v(g0 + r), v(g0 + r), v(U + r)), None))
                d0 = V_ACCG + ((fb & ~1) * 4 + qb) * 4 + 2 * (fb & 1)
                for h in range(2): its.append((lo, "v", "v_cvt_pk_bf16_f32 %s, %s, %s" % (v(d0 + h), v(g0 + 2 * h), v(g0 + 2 * h + 1)), None))
                if fb & 1:
                    if qb == 0: its.append((lo, "s", "s_lshl_b32 %s, %s, 13\ns_add_u32 %s, %s, %d" % (s(S_TMP + 6), s(S_FS), s(S_TMP + 6), s(S_TMP + 6), (128 + (fb >> 1)) * 4096), None))
                    its.append((lo, "m", "buffer_store_dwordx4 %s, %s, %s, %s offen offset:%d%s" % (v(d0 - 2, 4), v(V_L16), s(S_AF, 4), s(S_TMP + 6), 1024 * qb, STFL), None))
    post += lay(its)
    its = [(300, "v", x, None) for x in ones_ops(V_TRA + 2)]
    zs = []
    for k in range(XD):
        sl = max(x for x in range(20) if x % XD == k)
        zs.append((4 * lastF[sl] + 4, range(A_X + 16 * k, A_X + 16 * k + 16)))
    for lo, rr in sorted(zs, key=lambda t: t[0]):
        if lo > zlim: break
        for r in rr: its.append((lo, "v", "v_accvgpr_write_b32 %s, 0" % a(r), None))
    post += lay(its)
    if VERBOSE: print("proj", tag, G.pattern(), "| post", len(post), len(vpost), len(kpost))
    e.ext(pre_reads)
    e("s_waitcnt WAITVM{x%d} lgkmcnt(0)" % max(units[0][0]))
    stamp(e, 3)
    nm = 0
    for x in G.lines():
        if x.startswith("v_mfma"):
            if STAMPS and nm % (NP // 5) == 0 and 0 < nm < NP: stamp(e, 18 + nm // (NP // 5))
            if nm == NP: stamp(e, 4)
            nm += 1
        e(x)
    for x in kpost + vpost + post: e(x)
    e("s_mov_b32 %s, %d" % (s(S_KVOFF), 8 * 8192))
    e("s_nop 1")
    for r in range(8): e("v_mov_b32 %s, 0" % v(V_L + r))
    for qb in range(4): e("v_mov_b32 %s, 0xff800000" % v(V_NEGM + 4 * qb))
    e("s_waitcnt WAITVM{K2,K3}")
    e("s_waitcnt WAITVM{V0,V1,K4,K5}")
    r = resolve_vm(e.L)
    NV01.append(int(re.search(r"vmcnt\((\d+)\)", r.pop()).group(1)))
    e0.ext(r)

def kv_preload(e):
    e("s_mov_b32 %s, 0" % s(S_KVOFF))
    for i in range(9):
        if i < 8:
            e("s_add_u32 m0, %s, %d\ns_nop 0" % (s(S_M0K), L_K + i * 8192))
            e(kv_dma("K", 0)); e(kv_dma("K", 1))
        if i >= VSH:
            e("s_add_u32 m0, %s, %d\ns_nop 0" % (s(S_M0K), L_V + (i - VSH) * 8192))
            e(kv_dma("V", 0)); e(kv_dma("V", 1))
        if i < 8: e("s_add_u32 %s, %s, 8192" % (s(S_KVOFF), s(S_KVOFF)))
    e("s_waitcnt vmcnt(0)")

def Sreg(buf, qb, kb): return V_S + buf * 32 + qb * 8 + kb * 4
def Preg(buf, qb): return V_P + buf * 16 + qb * 4

def qk_mfmas(buf, czero=False, full=False):
    out = []
    if opt("qko", "snake") == "qks" and not czero and full:
        for qb in range(4):
            for i in range(2):
                kb = i if qb % 2 == 0 else 1 - i
                d = v(Sreg(buf, qb, kb), 4)
                for n, sl in enumerate(range(4) if i == 0 else range(3, -1, -1)):
                    out.append("%s %s, %s, %s, %s" % (MF, d, a(A_KF + (kb * 4 + sl) * 4, 4), v(V_Q + (sl * 4 + qb) * 4, 4), d if n else v(V_NEGM + 4 * qb, 4)))
        return out
    order = {"qks": [(kb, qb, sl) for kb in range(2) for qb in range(4) for sl in range(4)], "kqs": [(kb, qb, sl) for kb in range(2) for qb in range(4) for sl in range(4)],
             "ksq": [(kb, qb, sl) for kb in range(2) for sl in range(4) for qb in range(4)],
             "snake": [(kb, qb, sl) for kb in range(2) for qb in range(4) for sl in range(4)]}[opt("qko", "snake")]
    for kb, qb, sl0 in order:
                sl = sl0
                d = v(Sreg(buf, qb, kb), 4)
                if opt("qko", "snake") == "snake":
                    first = sl0 == 0
                    sl = sl0 if qb % 2 == 0 else 3 - sl0
                    c = ("0" if czero else v(V_NEGM + 4 * qb, 4)) if first else d
                    out.append("%s %s, %s, %s, %s" % (MF, d, a(A_KF + (kb * 4 + sl) * 4, 4), v(V_Q + (sl * 4 + qb) * 4, 4), c))
                    continue
                c = d if sl else ("0" if czero else v(V_NEGM + 4 * qb, 4))
                out.append("%s %s, %s, %s, %s" % (MF, d, a(A_KF + (kb * 4 + sl) * 4, 4), v(V_Q + (sl * 4 + qb) * 4, 4), c))
    return out

def pv_mfmas(buf, tailmode=False):
    out = []
    for h in range(2):
        out.append("v_smfmac_f32_16x16x64_bf16 %s, %s, %s, %s" % (v(V_L + 4 * h, 4), v(V_ONE, 4), v(Preg(buf, 2 * h), 8), v(V_SIDX)))
    pvo = opt("pvo", "qd2s")
    if pvo == "fake" and not tailmode:
        for h in range(4):
            for i in range(4):
                qb = i if h % 2 == 0 else 3 - i
                o = a(A_O + ((2 * h + buf) * 4 + qb) * 4, 4)
                for d in ((0, 1) if i % 2 == 0 else (1, 0)):
                    out.append("%s %s, %s, %s, %s" % (MF, o, a(A_VF + (2 * h + d) * 4, 4), v(Preg(buf, (qb + 2 * d) % 4), 4), o))
        return out
    if pvo == "fake": pvo = "dq"
    order = {"dq": [(db, qb) for db in range(8) for qb in range(4)],
             "snake": [(db, qb if db % 2 == 0 else 3 - qb) for db in range(8) for qb in range(4)],
             "qd2s": [(2 * h + (d if (i & 1) == 0 else 1 - d), i if h % 2 == 0 else 3 - i) for h in range(4) for i in range(4) for d in range(2)],
             "qd2": [(2 * h + d, qb) for h in range(4) for qb in range(4) for d in range(2)],
             "qd4": [(4 * h + d, qb) for h in range(2) for qb in range(4) for d in range(4)]}[pvo if not tailmode else "dq"]
    for db, qb in order:
            o = a(A_O + (db * 4 + qb) * 4, 4)
            out.append("%s %s, %s, %s, %s" % (MF, o, a(A_VF + db * 4, 4), v(Preg(buf, qb), 4), o))
    return out

def k_read(kb, sl, off, t=0): return "ds_read_b128 %s, %s offset:%d" % (a((A_KF, A_KF1)[t] + (kb * 4 + sl) * 4, 4), v(V_KA + sl), off + kb * 4096)
def v_read(db, j, t): return "ds_read_b64_tr_b16 %s, %s offset:%d" % (a(A_VF + 32 * t + db * 4 + 2 * j, 2), v(V_VA + db), 8192 * t + j * 4096)

def softmax_ops(buf):
    ex = []; cv = []
    for qb in range(4):
        for kb in range(2):
            for r in range(4):
                x = v(Sreg(buf, qb, kb) + r)
                ex.append("v_exp_f32 %s, %s" % (x, x))
            for h in range(2):
                b = Sreg(buf, qb, kb) + 2 * h
                cv.append("v_cvt_pk_bf16_f32 %s, %s, %s" % (v(Preg(buf, qb) + kb * 2 + h), v(b), v(b + 1)))
    return ex, cv

def gen_attention(e):
    T = V_T
    e("ATT_START:")
    stamp(e, 5)
    e("s_barrier")
    for qb in range(4):
        b = Sreg(0, qb, 0)
        e("v_max3_f32 %s, %s, %s, %s" % (v(T + 2 * qb), v(b), v(b + 1), v(b + 2)))
    for qb in range(4):
        b = Sreg(0, qb, 0)
        e("v_max3_f32 %s, %s, %s, %s" % (v(T + 2 * qb), v(T + 2 * qb), v(b + 3), v(V_NEGM + 4 * qb)))
    for n, sw in enumerate(("v_permlane32_swap_b32", "v_permlane16_swap_b32")):
        for qb in range(4): e("v_mov_b32 %s, %s" % (v(T + 2 * qb + 1), v(T + 2 * qb)))
        e("s_nop 0")
        for qb in range(4): e("%s %s, %s" % (sw, v(T + 2 * qb), v(T + 2 * qb + 1)))
        for qb in range(4):
            if n == 0: e("v_max_f32 %s, %s, %s" % (v(T + 2 * qb), v(T + 2 * qb), v(T + 2 * qb + 1)))
            else:
                for r in range(4): e("v_min_f32 %s, -%s, -%s" % (v(V_NEGM + 4 * qb + r), v(T + 2 * qb), v(T + 2 * qb + 1)))
    for qb in range(4):
        for r in range(0, 8, 2): e("v_pk_add_f32 %s, %s, %s" % (v(Sreg(0, qb, 0) + r, 2), v(Sreg(0, qb, 0) + r, 2), v(V_NEGM + 4 * qb, 2)))
    e("s_waitcnt lgkmcnt(0)")

    exE, cvE = softmax_ops(0); exO, cvO = softmax_ops(1)
    smf = lambda t, h: "v_smfmac_f32_16x16x64_bf16 %s, %s, %s, %s" % (v(V_L + 4 * h, 4), v(V_ONE, 4), v(Preg(t, 2 * h), 8), v(V_SIDX))
    def pvm(db, qb, t):
        o = a(A_O + (db * 4 + qb) * 4, 4)
        return "%s %s, %s, %s, %s" % (MF, o, a(A_VF + 32 * t + db * 4, 4), v(Preg(t, qb), 4), o)
    G = Gaps(qk_mfmas(1))
    for i in range(8): G.put(1 + 2 * i, "d", k_read(i // 4, i % 4, 24576, 1))
    for i in range(4): G.put(17 + 2 * i, "d", k_read(0, i, 16384))
    for i in range(4): G.put(31, "d", k_read(1, i, 16384))
    for i, x in enumerate(exE): G.put(i, "e", x)
    for i, x in enumerate(cvE[:4]): G.put(24 + 2 * i, "v", x)
    e.ext(G.lines())
    e.ext(exO[:NOE])
    for sl in range(4): e("v_add_u32 %s, 32768, %s" % (v(V_KA + sl), v(V_KA + sl)))
    e("s_mov_b32 %s, 16384" % s(S_TOG))
    e("s_mov_b32 %s, %d\ns_mov_b32 %s, %d" % (s(S_TMP + 3), 2 * 8192, s(S_TMP + 4), 6 * 8192 + L_V))
    e("s_waitcnt vmcnt(NVWAIT) lgkmcnt(0)\ns_barrier")
    for which, m0, inc in (("K", L_K, 1), ("K", L_K + 8192, 0), ("V", L_V + 5 * 8192, 1)):
        e("s_add_u32 m0, %s, %d\ns_nop 0" % (s(S_M0K), m0))
        e(kv_dma(which, 0)); e(kv_dma(which, 1))
        if inc: e("s_add_u32 %s, %s, 8192" % (s(S_KVOFF), s(S_KVOFF)))
    e("s_mov_b32 %s, %d\ns_cmp_eq_u32 %s, 0\ns_cselect_b32 %s, %d, %s" % (s(S_EVT), EV(27), s(S_WAVE), s(S_EVT), EVT0, s(S_EVT)))
    stamp(e, 6)
    e("s_cmp_lg_u32 %s, 0\ns_cbranch_scc1 NOSIG2" % s(S_RETRY))
    e("s_cmp_ge_u32 %s, 27\ns_cbranch_scc1 LT_INIT" % s(S_FS))
    e("NOSIG2:")
    mf = []
    for t in range(2):
        for qb in range(4):
            for i in range(2):
                kb = i if qb % 2 == 0 else 1 - i
                d = v(Sreg(t, qb, kb), 4)
                for n, sl in enumerate(range(4) if i == 0 else range(3, -1, -1)):
                    mf.append("%s %s, %s, %s, %s" % (MF, d, a((A_KF, A_KF1)[t] + (kb * 4 + sl) * 4, 4), v(V_Q + (sl * 4 + qb) * 4, 4), d if n else v(V_NEGM + 4 * qb, 4)))
    mf += [smf(0, 0), smf(1, 0), smf(1, 1), smf(0, 1)]
    H2 = 68
    for db in range(8):
        for i in range(4):
            qb = 3 - i if db % 2 == 0 else i
            for t in ((0, 1) if i % 2 == 0 else (1, 0)): mf.append(pvm(db, qb, t))
    G = Gaps(mf); end = G.n() - 1
    G.put(1, "b", "s_barrier"); G.put(0, "s", "s_waitcnt vmcnt(16) lgkmcnt(0)")
    NV1 = opt("nv1", 22)
    vrd = [(db, j, t) for db in range(8) for t in range(2) for j in range(2)]
    vg = {}
    eg = {}
    for i in range(NOE, 32): eg[i] = G.put(2 * (i - NOE), "e", exO[i])
    vvg = [int(x) for x in opt("vvg", "3.7.11.15.55").split(".")]
    dgs = [g for g in range(3, 64, 2) if g not in vvg]
    for i in range(NV1):
        db, j, t = vrd[i]; vg[db] = G.put(dgs[i], "d", v_read(db, j, t))
    rd2 = [("v",) + x for x in vrd[NV1:]] + [("k", kb, sl, 0) for kb in range(2) for sl in range(4)] + [("k", kb, sl, 1) for kb in range(2) for sl in range(4)]
    g = 64; kg = {}
    for i, x in enumerate(rd2):
        if x[0] == "v": g = G.place("d", v_read(*x[1:]), g, H2 + 8 * x[1] - 6); vg[x[1]] = g
        else: g = G.place("d", k_read(x[1], x[2], 8192 * x[3], x[3]), g); kg[x[2]] = g
        g += 1 if i < 4 else 2
    def adv(r, base):
        return ["s_add_u32 %s, %s, 8192" % (s(r), s(r)), "s_and_b32 %s, %s, 0xffff" % (s(r), s(r))] + (["s_or_b32 %s, %s, %d" % (s(r), s(r), base)] if base else [])
    last = 0
    for g in (opt("dg1", 54), opt("dg2", 76)):
        for which, r in (("K", S_TMP + 3), ("V", S_TMP + 4)):
            g = G.place("s", "s_add_u32 m0, %s, %s" % (s(S_M0K), s(r)), g)
            for i in range(2): g = G.place("m", kv_dma(which, i), g + opt("dsp", 2))
            g += 1
        for x in ["s_add_u32 %s, %s, 8192" % (s(S_KVOFF), s(S_KVOFF))] + adv(S_TMP + 3, 0) + adv(S_TMP + 4, L_V): g = G.place("s", x, g) + 1
        last = g
    items = [(0, 8 * (i // 4) - 1, cvE[i]) for i in range(4, 16)] + [(eg.get(2 * i + 1, -1) + 1, 32 + 8 * (i // 4) - 1, cvO[i]) for i in range(16)]
    for lo, hi, x in sorted(items, key=lambda t: t[1]): G.place("v", x, lo, hi)
    for i in range(4): G.place("v", cvE[i], end - 5 + opt("c0g", 2))
    g = 56
    xg = 0
    for db in range(8):
        y = max(vg[db], 64)
        while not (G.ds[y] and G.fits(y, "v")): y += 1
        xg = max(xg, G.put(y, "v", "v_xor_b32 %s, %s, %s" % (v(V_VA + db), s(S_TOG), v(V_VA + db))))
    for sl in range(4): xg = max(xg, G.place("v", "v_xor_b32 %s, %s, %s" % (v(V_KA + sl), s(S_TOG), v(V_KA + sl)), kg[sl]))
    for i, x in enumerate(exE + exO[:NOE]): g = G.place("e", x, g, end - 6 if i < 8 else end)
    g = G.place("s", "s_xor_b32 %s, %s, 32768" % (s(S_TOG), s(S_TOG)), xg + 1)
    G.place("s", "s_cmp_lt_u32 %s, %s" % (s(S_KVOFF), s(S_EVT)), max(g, last) + 1)
    auto_lgkm(G, [], loop=True, eager=opt("leag", 8))
    if VERBOSE: print("loop", G.pattern())
    e(".p2align 6\nATT_LOOP:")
    for x in G.lines(): e(x)
    e("s_cbranch_scc1 ATT_LOOP")
    e("s_cmp_lt_u32 %s, %d\ns_cbranch_scc1 ATT_EVT" % (s(S_KVOFF), EVTE))
    e("TAILC0:")
    global LIGHT_LOOP
    LIGHT_LOOP = light_loop(G)
    stamp(e, 7)
    e("s_waitcnt vmcnt(16) lgkmcnt(0)\ns_barrier")
    e("s_cmp_lg_u32 %s, 0\ns_cbranch_scc1 NOPOLLW" % s(S_WAVE))
    e(poll_load(True))
    e("NOPOLLW:")
    vr = [v_read(db, j, 0) for db in range(8) for j in range(2)]
    e.ext(vr)
    e.ext(cvE[4:])
    e("s_nop 0")
    h = E()
    sn2 = lambda q0: [(db, q0 + (i if db % 2 == 0 else 1 - i)) for db in range(8) for i in range(2)]
    mf = [smf(0, 0)] + [pvm(db, qb, 0) for db, qb in sn2(0)] + [smf(0, 1), smf(1, 0)] + [pvm(db, qb, 1) for db, qb in sn2(0)]
    P3 = len(mf)
    mf += [smf(1, 1)]
    for n, (db, qb) in enumerate(sn2(2)):
        for t in ((0, 1) if n % 2 == 0 else (1, 0)): mf.append(pvm(db, qb, t))
    G = Gaps(mf)
    for i in range(16): G.put(i, "d", v_read(i // 2, i % 2, 1))
    for i in range(NOE, 16): G.put(i - NOE + 1, "e", exO[i])
    for i in range(8): G.put(max(2 * i + 3 - NOE, 0) + 1, "v", cvO[i])
    for i in range(16, 32): G.put(i, "e", exO[i])
    for i in range(8, 16): G.put(min(2 * i + 2, P3 - 3), "v", cvO[i])
    pq = [x for sg in range(NPRE_X) for x in t8_a(sg)]
    assert NPRE_X <= 3
    G.put(P3 - 8, "s", "s_waitcnt lgkmcnt(0)\ns_barrier")
    pre, pend = auto_lgkm(G, [asmcheck.I(x, 0, 0).W for x in vr])
    g = 1
    while pq:
        k, x = pq.pop(0)
        if k == "s": G.sc[g].append(x); g += 1
        else: G.va[g].append(x); g += opt("x63", 2) if len(pq) % 3 else 1
    assert g < P3 + 8, g
    pro, grp = o_ops()
    NEG = opt("neg", 5)
    fill = pro[0] + [x for i in range(NEG) for x in grp(i, False)]
    g0 = max(P3 + 1, g); n = G.n() - g0
    for i, x in enumerate(fill): G.va[g0 + (i * n) // len(fill)].append(x)
    if pre is not None: h("s_waitcnt lgkmcnt(%d)" % pre)
    for x in G.lines(): h(x)
    return h.L, NEG

def o_ops():
    T = V_T; t = S_TMP
    Z = 248; C = 252; W = 128
    pro = []
    for hh in range(2):
        e = E()
        for qb in (2 * hh, 2 * hh + 1): e("v_add_f32 %s, %s, %s" % (v(V_L + 2 * qb), v(V_L + 2 * qb), v(V_L + 2 * qb + 1)))
        for qb in (2 * hh, 2 * hh + 1): e("v_rcp_f32 %s, %s" % (v(T + 2 * qb), v(V_L + 2 * qb)))
        if hh == 0:
            for r in range(4): e("v_mov_b32 %s, 0" % v(Z + r))
            for sl in range(4): e("s_lshl_b32 %s, %s, 14" % (s(44), s(S_HEAD)) if sl == 0 else "s_add_u32 %s, %s, %d" % (s(44 + sl), s(44), 4096 * sl))
        else:
            e("v_max3_f32 %s, %s, %s, %s" % (v(T + 8), v(V_L), v(V_L + 2), v(V_L + 4)))
            e("v_max_f32 %s, %s, %s" % (v(T + 8), v(T + 8), v(V_L + 6)))
            e("v_mul_f32 %s, %s, %s" % (v(T + 8), f2u(2.0 ** 64), v(T + 8)))
            e("v_mul_f32 %s, 0, %s" % (v(T + 8), v(T + 8)))
            for qb in range(4): e("v_fma_f32 %s, %s, 0, %s" % (v(T + 8), v(V_L + 2 * qb), v(T + 8)))
        for qb in (2 * hh, 2 * hh + 1): e("v_mov_b32 %s, %s" % (v(T + 2 * qb + 1), v(T + 2 * qb)))
        pro.append(e.L)
    def grp(i, pk):
        e = E()
        sl, qb = (i % 8) // 2, 2 * (i // 8) + i % 2
        d0 = 136 + 4 * (i % 4)
        for b in range(2):
            for r in range(4): e("v_accvgpr_read_b32 %s, %s" % (v(W + 4 * b + r), a(A_O + ((2 * sl + b) * 4 + qb) * 4 + r)))
        if pk:
            for h in range(4): e("v_pk_mul_f32 %s, %s, %s" % (v(W + 2 * h, 2), v(W + 2 * h, 2), v(T + 2 * qb, 2)))
        else:
            for r in range(8): e("v_mul_f32 %s, %s, %s" % (v(W + r), v(W + r), v(T + 2 * qb)))
        for h in range(4): e("v_cvt_pk_bf16_f32 %s, %s, %s" % (v(d0 + h), v(W + 2 * h), v(W + 2 * h + 1)))
        e("buffer_store_dwordx4 %s, %s, %s, %s offen offset:%d%s ;#ost" % (v(d0, 4), v(V_L16), s(S_AF, 4), s(44 + sl), 1024 * qb, STFL))
        e.L.append("s_nop 0\n%s %s, %s, %s, %s" % (MF, v(C, 4), v(Z, 4), v(d0, 4), "0" if i == 0 else v(C, 4)))
        return e.L
    return pro, grp

LT_SS, LT_SD = 44, 48
LT_SO, LT_DO, LT_R = 91, 96, 97
LT_VO, LT_VB, LT_VR, LT_AD = 40, 42, 44, 48
L_TRB = 131072
def light_loop(G):
    import copy
    G = copy.deepcopy(G)
    n = G.n()
    b = [g for g in range(n) if any("s_barrier" in x for x in G.va[g])][0]
    for bb in (b - 1, b): G.sc[bb] = [x.replace("vmcnt(%d)" % (16 + 2 * PWARM), "vmcnt(%d)" % (24 + 2 * PWARM)) for x in G.sc[bb]]
    lastm = max(g for g in range(n) if any(x.startswith("buffer") for x in G.va[g]))
    cmpg = [g for g in range(n) if any(x.startswith("s_cmp_lt_u32 %s" % s(S_KVOFF)) for x in G.sc[g])][-1]
    def lay(seq, g, hi, step=1):
        for k, x in seq:
            if k == "s":
                while not G.fits(g, "s"): g += 1
                G.put(g, "s", x)
            else:
                win = opt("ltw", 4) if k != "m" else opt("ltm", 4)
                g = min(range(g, min(g + win, hi) + 1), key=lambda y: (G.used[y] + (3 if (k == "d" and G.ds[y] and opt("ltd", 0)) else 0), y))
                (G.ds if k == "d" else G.va)[g].append(x); G.used[g] += 1 if k != "m" else 2
            g += step
            assert g <= hi + 1, (x, g, hi)
        return g
    g = lay([("d", "ds_read_b64_tr_b16 %s, %s offset:%d" % (v(LT_AD + 4 * f + 2 * j, 2), v(LT_VR + f), 1024 * j)) for f in range(2) for j in range(2)], b + 1, b + 30, 2)
    g1, g2 = opt("lts1", 44), opt("lts2", 50)
    lay(([("s", "s_waitcnt lgkmcnt(2)")] if g1 < 68 else []) + [("m", "buffer_store_dwordx4 %s, %s, %s, %s offen%s" % (v(LT_AD, 4), v(V_L16), s(LT_SD, 4), s(LT_DO), STFL))], g1, cmpg - 1)
    lay([("m", "buffer_store_dwordx4 %s, %s, %s, %s offen offset:1024%s" % (v(LT_AD + 4, 4), v(V_L16), s(LT_SD, 4), s(LT_DO), STFL)),
         ("s", "s_add_u32 %s, %s, %d" % (s(LT_DO), s(LT_DO), 8 * 10240)),
         ("s", "s_sub_u32 %s, %s, %d\ns_cselect_b32 %s, %s, %s" % (s(S_TMP + 1), s(LT_DO), 184 * 10240, s(LT_DO), s(LT_DO), s(S_TMP + 1)))], g2, cmpg - 1)
    g = lastm + 1
    lay([("s", "s_add_u32 m0, %s, %s" % (s(LT_R), s(S_TMP)))] +
        [("m", "buffer_load_dwordx4 %s, %s, %s offen offset:%d lds" % (v(LT_VO + i), s(LT_SS, 4), s(LT_SO), 1024 * i)) for i in range(2)] +
        [("s", "s_add_u32 %s, %s, %d\ns_add_u32 %s, %s, 2048" % (s(LT_SO), s(LT_SO), 8 * 40960, s(LT_R), s(LT_R))),
         ("s", "s_cmp_eq_u32 %s, 6144\ns_cselect_b32 %s, 0, %s" % (s(LT_R), s(LT_R), s(LT_R)))] +
        [("v", "v_add_u32 %s, %s, %s" % (v(LT_VR + f), s(LT_R), v(LT_VB + f))) for f in range(2)], g, cmpg - 1)
    if VERBOSE: print("lightloop", G.pattern())
    return G.lines()

def gen_events(e):
    L = V_LANE; t = S_TMP
    e("LT_INIT:")
    e("s_sub_u32 %s, %s, 27\ns_lshl_b32 %s, %s, 3\ns_add_u32 %s, %s, %s\ns_lshl2_add_u32 %s, %s, %s" % (s(t), s(S_FS), s(t), s(t), s(t), s(t), s(S_QT), s(t), s(t), s(S_WAVE)))
    e("s_mul_i32 %s, %s, 3277\ns_lshr_b32 %s, %s, 16\ns_mul_i32 %s, %s, 20\ns_sub_u32 %s, %s, %s" % (s(t + 1), s(t), s(t + 1), s(t + 1), s(t + 6), s(t + 1), s(t), s(t), s(t + 6)))
    e("s_mul_i32 %s, %s, 40960\ns_lshl_b32 %s, %s, 6\ns_add_u32 %s, %s, %s" % (s(LT_SO), s(t + 1), s(t + 6), s(t), s(LT_SO), s(LT_SO), s(t + 6)))
    e("s_add_u32 %s, %s, 104\ns_mul_i32 %s, %s, 10240" % (s(LT_DO), s(t + 1), s(LT_DO), s(LT_DO)))
    srd(e, LT_SS, ptr(8), 0, 1728 * 1280)
    e("s_mul_i32 %s, %s, 13108\ns_lshr_b32 %s, %s, 16\ns_mul_i32 %s, %s, %d\ns_lshl_b32 %s, %s, 11\ns_add_u32 %s, %s, %s\ns_add_u32 %s, %s, %d" % (
        s(t + 6), s(t), s(t + 6), s(t + 6), s(t + 6), s(t + 6), WFS - 10240, s(t + 1), s(t), s(t + 6), s(t + 6), s(t + 1), s(t + 6), s(t + 6), WF_OFF))
    srd(e, LT_SD, ptr(11), s(t + 6), (NSLAB - 1) * 10240 + 2048)
    e("s_mul_i32 %s, %s, 6144\ns_add_u32 %s, %s, %d\ns_mov_b32 %s, 0\ns_mov_b32 %s, %d" % (s(t), s(S_WAVE), s(t), s(t), L_TRB, s(LT_R), s(S_EVT), EV(7)))
    e("v_lshrrev_b32 %s, 2, %s\nv_bfe_u32 %s, %s, 4, 1\nv_and_b32 %s, 3, %s" % (v(46), v(L), v(47), v(L), v(48), v(L)))
    e("v_lshlrev_b32 %s, 1, %s\nv_xor_b32 %s, %s, %s\nv_mul_u32_u24 %s, 1280, %s\nv_lshl_add_u32 %s, %s, 4, %s\nv_add_u32 %s, %d, %s" % (
        v(49), v(47), v(49), v(49), v(48), v(LT_VO), v(46), v(LT_VO), v(49), v(LT_VO), v(LT_VO + 1), 16 * 1280 - 1024, v(LT_VO)))
    e("v_lshlrev_b32 %s, 6, %s\nv_lshl_add_u32 %s, %s, 3, %s\nv_lshl_add_u32 %s, %s, 5, %s\nv_add_u32 %s, %s, %s\nv_xor_b32 %s, 32, %s" % (
        v(LT_VB), v(46), v(LT_VB), v(48), v(LT_VB), v(LT_VB), v(47), v(LT_VB), v(LT_VB), s(t), v(LT_VB), v(LT_VB + 1), v(LT_VB)))
    e("v_mov_b32 %s, %s\nv_mov_b32 %s, %s" % (v(LT_VR), v(LT_VB), v(LT_VR + 1), v(LT_VB + 1)))
    e(".p2align 6\nLT_LOOP:")
    for x in LIGHT_LOOP: e(x)
    e("s_cbranch_scc1 LT_LOOP")
    e("s_cmp_lg_u32 %s, %d\ns_cbranch_scc1 LT_E2" % (s(S_KVOFF), EV(7)))
    srd(e, LT_SS, ptr(4), 0, 4096 * 1280)
    e("s_sub_u32 %s, %s, %d\ns_mov_b32 %s, %d\ns_branch LT_LOOP" % (s(LT_SO), s(LT_SO), 56 * 40960, s(S_EVT), EV(13)))
    e("LT_E2:")
    e("s_cmp_lg_u32 %s, %d\ns_cbranch_scc1 LT_E3" % (s(S_KVOFF), EV(13)))
    e("s_mov_b32 %s, %d\ns_cmp_lg_u32 %s, 0\ns_cbranch_scc1 LT_LOOP" % (s(S_EVT), EV(26), s(S_WAVE)))
    set_flag(e, 2)
    e("s_mov_b32 %s, %d\ns_branch LT_LOOP" % (s(S_EVT), EV(23)))
    e("LT_E3:")
    e("s_cmp_lg_u32 %s, %d\ns_cbranch_scc1 LT_END" % (s(S_KVOFF), EV(23)))
    e(poll_load(True))
    e("s_mov_b32 %s, %d\ns_branch LT_LOOP" % (s(S_EVT), EV(26)))
    e("LT_END:")
    e("s_mov_b32 %s, %d\ns_branch ATT_LOOP" % (s(S_EVT), EV(27)))
    def redirect(d, vd, shift, size):
        e("s_sub_u32 %s, %s, %s\ns_add_u32 %s, %s, %s\ns_addc_u32 %s, %s, 0" % (s(t + 6), s(T_BW[0]), s(T_M0W), s(d), s(T_SW), s(t + 6), s(d + 1), s(T_SW + 1)))
        e("s_sub_u32 %s, %s, %d\ns_subb_u32 %s, %s, 0\ns_mov_b32 %s, %d" % (s(d), s(d), shift, s(d + 1), s(d + 1), s(d + 2), size))
        e("v_add_u32 %s, %s, %s\nv_add_u32 %s, %s, %s" % (v(vd), s(S_M0K), v(V_L16), v(vd + 1), s(S_M0K), v(V_L16)))
    e("ATT_EVT:")
    e("s_cmp_lg_u32 %s, %d\ns_cbranch_scc1 ATT_EVT1" % (s(S_KVOFF), EV(27)))
    redirect(S_K, V_KD, 64 * 8192, 72 * 8192)
    e("s_mov_b32 %s, %d\ns_cmp_lg_u32 %s, 0\ns_cbranch_scc1 ATT_LOOP" % (s(S_EVT), EV(29) if NWP == 4 else EVTE, s(S_WAVE)))
    if NWP < 4: e("s_cmp_ge_u32 %s, 27\ns_cselect_b32 %s, %d, %s" % (s(S_FS), s(S_EVT), EV(29), s(S_EVT)))
    e("s_waitcnt vmcnt(16)")
    poll_spin(e, True, None, 2, "EARLY")
    e("s_branch ATT_LOOP")
    e("ATT_EVT1:")
    e("s_cmp_lg_u32 %s, %d\ns_cbranch_scc1 ATT_EVT2" % (s(S_KVOFF), EV(29)))
    if NWP == 4: redirect(S_V, V_VD, 68 * 8192 - 65536, 68 * 8192 + NWP * 20480 - 65536)
    e("s_mov_b32 %s, %d\ns_cmp_lg_u32 %s, 0\ns_cbranch_scc1 ATT_LOOP" % (s(S_EVT), EVTE, s(S_WAVE)))
    e("s_cmp_lt_u32 %s, 27\ns_cbranch_scc1 ATT_LOOP" % s(S_FS))
    set_flag(e, 3)
    e("s_branch ATT_LOOP")
    e("ATT_EVT2:")
    e("s_cmp_lg_u32 %s, %d\ns_cbranch_scc1 ATT_EVT3" % (s(S_KVOFF), EV(3)))
    set_flag(e, 3)
    e("s_mov_b32 %s, %d\ns_branch ATT_LOOP" % (s(S_EVT), EV(25)))
    e("ATT_EVT3:")
    if opt("ctt", 0):
        e("s_getpc_b64 %s\nCODE2:\ns_sub_u32 %s, %s, CODE2-TAILC0\ns_subb_u32 %s, %s, 0" % (s(t + 6, 2), s(t + 6), s(t + 6), s(t + 7), s(t + 7)))
        e("s_lshr_b32 %s, s2, 3\ns_lshl_b32 %s, %s, 10" % (s(t + 1), s(t + 1), s(t + 1)))
        e("v_min_u32 %s, 7, %s\nv_lshlrev_b32 %s, 7, %s\nv_add_u32 %s, %s, %s\nv_min_u32 %s, K_END-TAILC0, %s" % (v(V_PL), v(L), v(V_PL), v(V_PL), v(V_PL), s(t + 1), v(V_PL), v(V_PL), v(V_PL)))
        e("global_load_dword %s, %s, %s" % (v(V_DUMP), v(V_PL), s(t + 6, 2)))
    e(poll_load(True))
    e("s_mov_b32 %s, %d\ns_branch ATT_LOOP" % (s(S_EVT), EV(27)))
assert all((g * 3277) >> 16 == g // 20 for g in range(160)) and all((c * 13108) >> 16 == c // 5 for c in range(40))

K_SX, K_SO = S_WU, S_X
T_SA, T_SW, T_XS = S_T, S_WF, S_WQ
T_XO = S_WG
T_TAG = S_WG + 3
T_M0W, T_OA, T_OW = 88, 89, 90
T_BA, T_BW = (S_XOFF, S_WQOFF), (S_WGOFF, S_M0W)
K_FLG = 95
KV_XO = 63; KV_X = 8
TV_WR, TV_L4K, TV_TAG, TV_OW, TV_OR = 60, 61, 62, 3, 4
XPB = 12288
REUSE = 1
COAL = opt("coal", 1)
NSD, NSG = 7, 23
RW8, RA8, RF8 = 6, 5, 10
L_OWN = [122880, 0]

def join_scalar(lines):
    out = []
    for x in lines:
        if x.startswith(("s_addc", "s_cselect")): out[-1] += "\n" + x
        else: out.append(x)
    return out

def gen_tail_setup():
    e = E()
    L = V_LANE; t = S_TMP
    R, Cc, KQ = t + 3, t + 4, t + 5
    e("s_bfe_u32 %s, s2, 0x10002\ns_lshl_b32 %s, %s, 3\ns_lshr_b32 %s, s2, 5\ns_add_u32 %s, %s, %s" % (s(R), s(R), s(R), s(t), s(R), s(R), s(t)))
    e("s_bfe_u32 %s, s2, 0x20003\ns_and_b32 %s, s2, 3" % (s(Cc), s(KQ)))
    e("s_lshr_b32 %s, %s, 1\ns_lshl1_add_u32 %s, %s, %s\ns_lshl2_add_u32 %s, %s, %s\ns_mul_i32 %s, %s, %d" % (s(t), s(KQ), s(t), s(R), s(t), s(t), s(t), s(S_WAVE), s(t), s(t), 16 * 1280))
    e("s_and_b32 %s, %s, 1\ns_lshl1_add_u32 %s, %s, %s\ns_mul_i32 %s, %s, 160\ns_add_u32 %s, %s, %s" % (s(t + 1), s(KQ), s(t + 1), s(Cc), s(t + 1), s(t + 1), s(t + 1), s(t), s(t), s(t + 1)))
    srd(e, K_SX, ptr(0), s(t), 15 * 1280 + 160)
    srd(e, K_SO, ptr(9), s(t), 15 * 1280 + 160)
    e("v_and_b32 %s, 15, %s\nv_mul_u32_u24 %s, 1280, %s\nv_lshrrev_b32 %s, 4, %s\nv_lshl_add_u32 %s, %s, 3, %s" % (v(KV_XO), v(L), v(KV_XO), v(KV_XO), v(52), v(L), v(KV_XO), v(52), v(KV_XO)))
    e("s_lshr_b32 %s, %s, 1\ns_lshl2_add_u32 %s, %s, %s\ns_lshl_b32 %s, %s, %d" % (s(K_FLG), s(R), s(K_FLG), s(K_FLG), s(KQ), s(K_FLG), s(K_FLG), FSH + 3))
    e("s_mul_i32 %s, %s, 7\ns_add_u32 %s, %s, 64\ns_lshl_b32 %s, %s, 13\ns_mul_i32 %s, %s, 20480" % (s(t), s(KQ), s(t), s(t), s(T_BA[0]), s(t), s(T_BW[0]), s(t)))
    e("s_lshl_b32 %s, %s, 17\ns_mul_i32 %s, %s, %d" % (s(T_BA[1]), s(KQ), s(T_BW[1]), s(KQ), 16 * 20480))
    e("s_lshl2_add_u32 %s, %s, %s\ns_mul_i32 %s, %s, %d\ns_add_u32 %s, %s, %d" % (s(t), s(R), s(Cc), s(t), s(t), XGS, s(t), s(t), XP_OFF))
    srd(e, T_XS, ptr(11), s(t), 12 * XPB)
    for ch in range(2):
        d = T_XO + ch
        e("s_and_b32 %s, %s, 2\ns_add_u32 %s, %s, %d\ns_xor_b32 %s, %s, %s\ns_mul_i32 %s, %s, 3\ns_add_u32 %s, %s, %s\ns_sub_u32 %s, %s, 1" % (
            s(t), s(S_WAVE), s(t), s(t), ch, s(t + 1), s(t), s(KQ), s(t), s(t), s(t), s(t), s(t + 1), s(t), s(t)))
        e("s_mul_i32 %s, %s, %d\ns_and_b32 %s, %s, 1\ns_mul_i32 %s, %s, 6144\ns_add_u32 %s, %s, %s" % (s(t), s(t), XPB, s(d), s(S_WAVE), s(d), s(d), s(d), s(d), s(t)))
        e("s_cmp_eq_u32 %s, 0\ns_cselect_b32 %s, 0x1000000, %s" % (s(t + 1), s(d), s(d)))
    if PWARM:
        e("s_lshl2_add_u32 %s, %s, %s\ns_mul_i32 %s, %s, %d\ns_lshl_b32 %s, %s, 14\ns_add_u32 %s, %s, %s" % (s(t), s(S_QT), s(S_WAVE), s(t), s(t), NSLAB * 4096, s(t + 1), s(S_HEAD), s(t), s(t), s(t + 1)))
        e("v_mov_b32 %s, %s" % (v(V_PW), s(t)))
        for i, o in ((1, 6144), (2, 10240)):
            e("s_add_u32 %s, %s, %d\nv_writelane_b32 %s, %s, %d\nv_writelane_b32 %s, %s, %d" % (s(t + 1), s(t), o, v(V_PW), s(t + 1), 2 * i, v(V_PW), s(t + 1), 2 * i + 1))
        e("s_lshl2_add_u32 %s, %s, %s\ns_mul_i32 %s, %s, %d\ns_add_u32 %s, %s, %d" % (s(t + 2), s(R), s(Cc), s(t + 2), s(t + 2), 24 * XPB, s(t + 2), s(t + 2), XP_OFF))
        for m in range(2):
            for ch in range(2):
                i = 3 + 2 * m + ch
                e("s_add_u32 %s, %s, %s\ns_add_u32 %s, %s, %d" % (s(t + 1), s(t + 2), s(T_XO + ch), s(t + 1), s(t + 1), m * 12 * XPB))
                e("s_cmp_eq_u32 %s, 0x1000000\ns_cselect_b32 %s, %s, %s" % (s(T_XO + ch), s(t + 1), s(t), s(t + 1)))
                e("v_writelane_b32 %s, %s, %d\nv_writelane_b32 %s, %s, %d" % (v(V_PW), s(t + 1), 2 * i, v(V_PW), s(t + 1), 2 * i + 1))
        e("v_min_u32 %s, 14, %s" % (v(V_T), v(L)))
        L = V_T
        e("v_and_b32 %s, 1, %s\nv_lshl_add_u32 %s, %s, 7, %s\nv_subrev_u32 %s, 1280, %s" % (v(V_T), v(L), v(V_PW), v(V_T), v(V_PW), v(V_PW), v(V_PW)))
        L = V_LANE
    e("s_mul_i32 %s, %s, %d\ns_mul_i32 %s, %s, 3072\ns_add_u32 %s, %s, %s" % (s(T_XO + 2), s(KQ), 3 * XPB, s(t), s(S_WAVE), s(T_XO + 2), s(T_XO + 2), s(t)))
    e("s_add_u32 %s, %s, 0x10000\ns_and_b32 %s, %s, 0x1fff0000\ns_or_b32 %s, %s, 0x40000000\nv_mov_b32 %s, %s" % (s(t), s(S_EPOCH), s(t), s(t), s(T_TAG), s(t), v(TV_TAG), s(T_TAG)))
    e("s_and_b32 %s, %s, 1\ns_mul_i32 %s, %s, 10240\nv_add_u32 %s, %s, %s" % (s(t), s(S_WAVE), s(t), s(t), v(TV_OW), s(t), v(V_L16)))
    e("s_mul_i32 %s, %s, 5120\nv_add_u32 %s, %s, %s" % (s(t), s(S_WAVE), v(TV_OR), s(t), v(V_L16)))
    e("s_lshr_b32 %s, %s, 1\ns_lshl1_add_u32 %s, %s, %s\ns_mul_i32 %s, %s, %d" % (s(t), s(S_WAVE), s(t), s(R), s(t), s(t), s(t), AFS))
    e("s_and_b32 %s, %s, 1\ns_lshl_b32 %s, %s, 11\ns_add_u32 %s, %s, %s" % (s(t + 1), s(S_WAVE), s(t + 1), s(t + 1), s(t), s(t), s(t + 1)))
    srd(e, T_SA, ptr(11), s(t), NSLAB * 4096 - 2048)
    e("s_mul_i32 %s, %s, 5120" % (s(T_M0W), s(S_WAVE)))
    e("s_mul_i32 %s, %s, %d\ns_add_u32 %s, %s, %s\ns_add_u32 %s, %s, %d" % (s(t), s(Cc), WFS, s(t), s(t), s(T_M0W), s(t), s(t), WF_OFF))
    return join_scalar(e.L)

def gen_tail_setup2():
    e = E()
    srd(e, T_SW, ptr(11), s(S_TMP), 90 * 20480 + 5120)
    e("v_mov_b32 %s, %s\nv_add_u32 %s, 4096, %s" % (v(TV_WR), v(V_L16), v(TV_L4K), v(V_L16)))
    return join_scalar(e.L)

def t8_w(sg):
    base = (sg % RW8) * 20480; tag = "D%d" % sg
    m, i = (0, sg) if sg < NSD else (1, sg - NSD)
    W = lambda vo, off: ("m", "buffer_load_dwordx4 %s, %s, %s offen offset:%d%s lds ;#%s" % (v(vo), s(T_SW, 4), s(T_OW), off, LDFL, tag))
    return [("s", "s_add_u32 %s, %s, %d\ns_add_u32 m0, %s, %d" % (s(T_OW), s(T_BW[m]), i * 20480, s(T_M0W), base)),
            W(V_L16, 0), W(V_L16, 1024), W(V_L16, 2048), W(V_L16, 3072),
            ("s", "s_add_u32 m0, %s, %d" % (s(T_M0W), base + 4096)), W(TV_L4K, 0)]
def t8_af(sg, half, j): return a((192, 208, 224, 32, 48)[sg % RA8] + half * 8 + j * 4, 4)
def t8_a(sg):
    m, i = (0, sg) if sg < NSD else (1, sg - NSD)
    l = [("s", "s_add_u32 %s, %s, %d" % (s(T_OA), s(T_BA[m]), i * 8192))]
    for half in range(2):
        for j in range(2):
            l.append(("m", "buffer_load_dwordx4 %s, %s, %s, %s offen offset:%d%s ;#A%d" % (t8_af(sg, half, j), v(TV_L4K if half else V_L16), s(T_SA, 4), s(T_OA), j * 1024, LDFL, sg)))
    return l
def t8_wf(F):
    k = F % RF8
    return a(4 * k if k < 8 else 240 + 4 * (k - 8), 4)
def t8_read(F):
    sg, f = F // 20, F % 20
    if opt("t8c", 1): f = (f & 1) * 10 + (f >> 1)
    return "ds_read_b128 %s, %s offset:%d" % (t8_wf(F), v(TV_WR), (sg % 3) * 20480 + f * 1024)
def t8_acc(m, n10, j):
    i = n10 * 2 + j
    if m == 0: return 128 + 4 * i
    return 64 + 4 * i if i < 16 else 208 + 4 * (i - 16)
NWP = opt("nwp", 4)
NPRE_X = opt("nprex", 2)
NPRE_G = opt("npreg", 2)

def cond_lines(lines): return [("@" + x) if x.startswith("buffer") else x for x in lines]

def publish(m):
    out = []; n = 0
    for ch in range(2):
        if m == 1 and REUSE:
            t = S_TMP
            out.append(("s", "s_and_b32 %s, s2, 3\ns_and_b32 %s, %s, 2\ns_sub_u32 %s, %s, %s\ns_sub_u32 %s, %s, %d\ns_mul_i32 %s, %s, %d\ns_add_u32 %s, %s, %s" % (
                s(t), s(t + 1), s(S_WAVE), s(t), s(t), s(t + 1), s(t), s(t), ch, s(t), s(t), 3 * XPB, s(t + 2), s(T_XO + ch), s(t))))
        else:
            out.append(("s", "s_add_u32 %s, %s, %d" % (s(S_TMP + 2), s(T_XO + ch), m * 12 * XPB)))
        for j in range(2):
            vals = [t8_acc(m, 5 * ch + nb, j) + k for nb in range(5) for k in range(4)]
            pb = (40, 240)[n % 2]; n += 1
            for gi in range(3):
                vs = vals[7 * gi:7 * gi + 7]
                if len(vs) < 7: vs = vs + [TV_TAG]
                for h in range(3): out.append(("v", "v_cvt_pk_bf16_f32 %s, %s, %s" % (v(pb + 4 * gi + h), v(vs[2 * h]), v(vs[2 * h + 1]))))
                out.append(("v", "v_cvt_pk_bf16_f32 %s, %s, %s" % (v(pb + 4 * gi + 3), v(vs[6]), v(TV_TAG))))
                off = j * 3072 + gi * 1024
                out.append(("m", "buffer_store_dwordx4 %s, %s, %s, %s offen offset:%d%s ;#xst%d" % (v(pb + 4 * gi, 4), v(TV_L4K if off >= 4096 else V_L16), s(T_XS, 4), s(S_TMP + 2), off % 4096, STFL, m)))
    return out
def own_write(m):
    l = []
    if L_OWN[m]: l.append("v_add_u32 %s, %d, %s" % (v(52), L_OWN[m], v(TV_OW)))
    ar = v(52) if L_OWN[m] else v(TV_OW)
    for ch in range(2):
        l.append("s_cmp_lg_u32 %s, 0x1000000\ns_cbranch_scc1 NOOWN%d%d" % (s(T_XO + ch), m, ch))
        for j in range(2):
            for nb in range(5): l.append("ds_write_b128 %s, %s offset:%d" % (ar, v(t8_acc(m, 5 * ch + nb, j), 4), (j * 5 + nb) * 1024))
        l.append("NOOWN%d%d:" % (m, ch))
    return l
XR = [128, 64]; OWR = [164, 184]
T_SL = 72
def xloads(m):
    l = []
    for i in range(3):
        if m == 1 and REUSE: l.append(("s", "s_mov_b32 %s, %s" % (s(S_TMP + 3), s(T_SL + i))))
        else: l.append(("s", "s_add_u32 %s, %s, %d" % (s(S_TMP + 3), s(T_XO + 2), m * 12 * XPB + i * XPB)))
        for k in range(3): l.append(("m", "buffer_load_dwordx4 %s, %s, %s, %s offen offset:%d%s ;#xr%d" % (v(XR[m] + (i * 3 + k) * 4, 4), v(V_L16), s(T_XS, 4), s(S_TMP + 3), k * 1024, LDFL, m)))
    return l
def xcheck(e, m, first_wait):
    t = S_TMP
    e("s_mov_b32 %s, 0" % s(t + 7))
    e(first_wait)
    e("XCHK%d:" % m)
    for i in range(9): e("v_xor_b32 %s, %s, %s" % (v(20 + i), s(T_TAG), v(XR[m] + 4 * i + 3)))
    for i in range(4): e("v_or3_b32 %s, %s, %s, %s" % (v(20), v(20), v(21 + 2 * i), v(22 + 2 * i)))
    e("v_cmp_lt_u32 vcc, 0xffff, %s" % v(20))
    e("s_add_u32 %s, %s, 1" % (s(t + 7), s(t + 7)))
    e("s_cmp_eq_u64 vcc, 0\ns_cbranch_scc1 XOK%d" % m)
    e("s_cmp_ge_u32 %s, 0x40000\ns_cbranch_scc1 XOK%d" % (s(t + 7), m))
    e("s_sleep %d" % opt("xslp", 4))
    for x in cond_lines([x for _, x in xloads(m)]): e(x)
    e("s_waitcnt vmcnt(0)\ns_branch XCHK%d" % m)
    e("XOK%d:" % m)
def xsum(e, m, nb):
    o = OWR[m] + 4 * nb
    for i in range(3):
        for k in range(4):
            idx = nb * 4 + k; gi, pos = idx // 7, idx % 7
            src = XR[m] + (i * 3 + gi) * 4 + pos // 2
            e(("v_and_b32 %s, 0xffff0000, %s" if pos & 1 else "v_lshlrev_b32 %s, 16, %s") % (v(20 + 4 * i + k), v(src)))
    for h in range(2):
        e("v_pk_add_f32 %s, %s, %s" % (v(o + 2 * h, 2), v(o + 2 * h, 2), v(20 + 2 * h, 2)))
        e("v_pk_add_f32 %s, %s, %s" % (v(24 + 2 * h, 2), v(24 + 2 * h, 2), v(28 + 2 * h, 2)))
    for h in range(2): e("v_pk_add_f32 %s, %s, %s" % (v(o + 2 * h, 2), v(o + 2 * h, 2), v(24 + 2 * h, 2)))

CV_G, CV_L, CV_X, LROW, L_FIN = 8, 11, 224, 336, 20480
def gen_t8(e):
    t = S_TMP
    mf = []
    NF = 20 * NSG
    for F in range(NF):
        sg, f = F // 20, F % 20
        m = 0 if sg < NSD else 1
        if opt("t8c", 1):
            j = f & 1; F0 = F - j
            d = v(t8_acc(m, f >> 1, j), 4)
            for i, half in enumerate((0, 1) if j == 0 else (1, 0)):
                mf.append("%s %s, %s, %s, %s" % (MF, d, t8_wf(F0 + half), t8_af(sg, half, j), "0" if (sg in (0, NSD) and i == 0) else d))
            continue
        for j in range(2):
            d = v(t8_acc(m, f % 10, j), 4)
            mf.append("%s %s, %s, %s, %s" % (MF, d, t8_wf(F), t8_af(sg, f // 10, j), "0" if (sg in (0, NSD) and f < 10) else d))
    G = Gaps(mf)
    DA = opt("t8d", 8)
    SIGS = opt("sigs", 2); CKS = opt("cks", 6); PLS = CKS - opt("polld", 1)
    bars = {}
    cur = 0
    for F in range(DA, NF):
        sg, f = F // 20, F % 20
        lo = 2 * (F - DA)
        if f == 0:
            if sg % 3 == 0:
                d = 61440 if sg % 6 == 3 else -61440
                G.place("v", ("v_add_u32 %s, %d, %s" % (v(TV_WR), d, v(TV_WR))) if d > 0 else ("v_subrev_u32 %s, %d, %s" % (v(TV_WR), -d, v(TV_WR))), cur - 1, cur - 1)
            pre = E(); post = E()
            if sg == CKS:
                stamp(pre, 11)
                pre("s_cmp_lg_u32 %s, 0\ns_cbranch_scc1 SPUN_O\ns_waitcnt SINCE{p3}" % s(S_WAVE))
                poll_spin(pre, False, s(K_FLG), 4, "O")
                stamp(post, 12)
            if sg == SIGS:
                post("s_cmp_lg_u32 %s, 0\ns_cbranch_scc1 NOSIG3" % s(S_WAVE))
                set_flag(post, 4)
                post("s_cmp_lg_u32 s2, 0\ns_cbranch_scc1 NOSIG3")
                post("s_add_u32 %s, %s, 0x10001\ns_mov_b64 exec, 1\nv_mov_b32 %s, %s\ns_mov_b32 %s, %d" % (s(t + 7), s(S_EPOCH), v(V_PL + 1), s(t + 7), s(t + 6), EP_OFF))
                post("buffer_store_dword %s, off, %s, %s sc1\ns_mov_b64 exec, -1" % (v(V_PL + 1), s(S_FL, 4), s(t + 6)))
                post("NOSIG3:")
                stamp(post, 10)
            if sg == PLS:
                post("s_cmp_lg_u32 %s, 0\ns_cbranch_scc1 NOPOLL3" % s(S_WAVE))
                post(poll_load(False, s(K_FLG)))
                post("NOPOLL3:\nMARK p3")
            b = G.place("b", "\n".join(cond_lines(pre.L) + ["s_barrier"] + cond_lines(post.L)), max(cur, lo - 1))
            lateA = NSD <= sg < NSD + opt("latea", 2)
            G.put(b, "s", "s_waitcnt WAITVM{D%d%s%s}" % (sg, "" if lateA else ",A%d" % sg, ",ost" if sg == SIGS else ""))
            if lateA: G.put(40 * sg - 1, "s", "s_waitcnt WAITVM{A%d}" % sg)
            bars[sg] = b; cur = b + 1
        cur = G.place("d", t8_read(F), max(cur, lo)) + 1
    qw = [(t8_w(sg), bars[sg - RW8 + 2] if sg >= RW8 else 0, sg) for sg in range(max(NPRE_G, NWP), NSG)]
    qa = [(t8_a(sg), max(40 * (sg - RA8 + 1) if sg >= RA8 else 0, bars[CKS] if sg >= NSD else 0), sg) for sg in range(NPRE_G, NSG)]
    DP = opt("dpub", 1)
    side = []
    if DP:
        side.append((publish(0), 40 * NSD + 8 + opt("dpd", 8)))
        side.append((xloads(0), 40 * opt("dld", 20)))
    if COAL:
        seq = []
        for i in range(3):
            seq += [("v", "v_add_u32 %s, %d, %s" % (v(CV_G + i), 64 * i, v(V_LANE))), ("v", "v_mul_u32_u24 %s, 6554, %s" % (v(36), v(CV_G + i))), ("v", "v_lshrrev_b32 %s, 16, %s" % (v(36), v(36))),
                    ("v", "v_lshlrev_b32 %s, 5, %s" % (v(CV_L + i), v(CV_G + i))), ("v", "v_mad_u32_u24 %s, %s, %d, %s" % (v(CV_L + i), v(36), LROW - 320, v(CV_L + i))),
                    ("v", "v_mul_u32_u24 %s, 1120, %s" % (v(36), v(36))), ("v", "v_lshl_add_u32 %s, %s, 4, %s" % (v(CV_G + i), v(CV_G + i), v(36))),
                    ("m", "buffer_load_dwordx4 %s, %s, %s, 0 offen ;#xx" % (v(CV_X + 4 * i, 4), v(CV_G + i), s(K_SX, 4)))]
        side.append((seq, 40 * opt("xld", 19)))
    else:
        side.append(([("m", "buffer_load_dwordx2 %s, %s, %s, 0 offen offset:%d ;#xx" % (v(KV_X + 2 * nb, 2), v(KV_XO), s(K_SX, 4), nb * 32)) for nb in range(5)], 40 * opt("xld", 19)))
    side.sort(key=lambda x: x[1])
    MG = opt("mg", 4)
    g = 0; lastm = -9
    while qw or qa:
        c = [x for x in (qw, qa) if x]
        c.sort(key=lambda x: (max(x[0][1], g), x[0][2]))
        seq, lo, _ = c[0].pop(0)
        g = max(g, lo)
        for k, x in seq:
            g = G.place(k, x, max(g + 1, lastm + MG if k == "m" else 0))
            if k == "m": lastm = g
    for seq, lo in side:
        g = lo; lastm = -99
        for k, x in seq:
            g = G.place(k, x, max(g + (0 if k == "v" else 1), lastm + (opt("smg", 24) if "xst" in x else 6) if k == "m" else 0))
            if k == "m": lastm = g
        if "xst0" in seq[-1][1]:
            G.va[g + 1].append("\n".join(own_write(0))); pubend = g + 1
    if DP: assert pubend < 40 * opt("dld", 20) - 40
    auto_lgkm(G, eager=opt("eag", 8))
    if VERBOSE: print("t8", G.pattern())
    for F in range(DA): e(t8_read(F))
    e("s_waitcnt lgkmcnt(0)")
    nm = 0
    for x in G.lines():
        if x.startswith("v_mfma"):
            if nm == 40 * NSD: stamp(e, 13)
            if STAMPS and opt("t8st", 0) and nm > 40 * NSD and (nm - 40 * NSD) % 160 == 0: stamp(e, 25 + (nm - 40 * NSD) // 160)
            nm += 1
        e(x)

def gen_tail(e0, head):
    head, neg = head
    e = E(); e.ext(head)
    T = V_T; t = S_TMP
    stamp(e, 8)
    C = 252
    W = T + 12
    wq = [x for sg in range(NPRE_X, NPRE_G) for x in (t8_w(sg) if sg >= NWP else []) + t8_a(sg)]
    def wsome(n):
        while wq and n > 0:
            k, x = wq.pop(0); n -= (k == "m")
            e(x + ("\ns_nop 0" if k == "s" else ""))
    wsome(opt("wpre", 0))
    pro, grp = o_ops()
    for i in range(neg, 16):
        if i == 8: e.ext(pro[1])
        for x in grp(i, True): e(x)
        wsome(opt("wpg", 1))
    wsome(99)
    e("s_nop 7")
    e("v_cmp_u_f32 vcc, %s, %s" % (v(T + 8), v(C)))
    e("s_cmp_lg_u64 vcc, 0\ns_cselect_b32 %s, 1, 0" % s(t))
    e("v_mov_b32 %s, %s" % (v(W), s(t)))
    e("s_lshl_b32 %s, %s, 2\ns_add_u32 %s, %s, %d" % (s(t + 1), s(S_WAVE), s(t + 1), s(t + 1), L_MISC))
    e("v_mov_b32 %s, %s\nv_mov_b32 %s, %d" % (v(W + 1), s(t + 1), v(W + 2), L_MISC))
    e("ds_write_b32 %s, %s" % (v(W + 1), v(W)))
    e("s_waitcnt WAITVM{D0,A0} lgkmcnt(0)")
    e("s_cmp_lg_u32 %s, 0\ns_cbranch_scc1 SPUN_EARLY3" % s(S_WAVE))
    w0 = E(); poll_spin(w0, True, None, 3, "EARLY3")
    for x in cond_lines(w0.L): e(x)
    e("v_min_u32 %s, 7, %s\nv_lshlrev_b32 %s, %d, %s" % (v(V_PL + 3), v(V_LANE), v(V_PL + 3), FSH, v(V_PL + 3)))
    e("s_barrier")
    e("ds_read_b128 %s, %s" % (v(W + 4, 4), v(W + 2)))
    t8 = E(); gen_t8(t8)
    i0 = t8.L.index("s_waitcnt lgkmcnt(0)")
    e.ext(t8.L[:i0 + 1])
    e("v_or3_b32 %s, %s, %s, %s\nv_or_b32 %s, %s, %s\ns_nop 0" % (v(W + 4), v(W + 4), v(W + 5), v(W + 6), v(W + 4), v(W + 4), v(W + 7)))
    e("v_readfirstlane_b32 %s, %s" % (s(t), v(W + 4)))
    e("s_nop 3\ns_andn2_b32 %s, %s, %s" % (s(t), s(t), s(S_RETRY)))
    e("s_cbranch_scc1 ATT_RETRY")
    stamp(e, 9)
    e.ext(t8.L[i0 + 1:])
    stamp(e, 14)
    if REUSE:
        xcheck(e, 0, "s_waitcnt WAITVM{xr0,xx}")
        e("s_barrier")
        e("s_xor_b32 %s, %s, 0x80000000\nv_mov_b32 %s, %s" % (s(T_TAG), s(T_TAG), v(TV_TAG), s(T_TAG)))
    else:
        e("s_nop 6")
    for k, x in publish(1): e(x)
    stamp(e, 23)
    for x in own_write(1): e(x)
    e("v_add_u32 %s, %d, %s" % (v(52), L_OWN[0], v(TV_OR)))
    if REUSE:
        for i in range(3):
            e("s_and_b32 %s, s2, 3\ns_xor_b32 %s, %s, %d\ns_sub_u32 %s, %s, %s\ns_mul_i32 %s, %s, %d\ns_add_u32 %s, %s, %s\ns_add_u32 %s, %s, %d" % (
                s(t), s(t + 1), s(t), i + 1, s(t), s(t + 1), s(t), s(t), s(t), 3 * XPB, s(t), s(t), s(T_XO + 2), s(T_SL + i), s(t), i * XPB))
    e("s_waitcnt lgkmcnt(0)")
    e("s_barrier")
    for nb in range(5): e("ds_read_b128 %s, %s offset:%d" % (v(OWR[0] + 4 * nb, 4), v(52), nb * 1024))
    for nb in range(5): e("ds_read_b128 %s, %s offset:%d" % (v(OWR[1] + 4 * nb, 4), v(TV_OR), L_OWN[1] + nb * 1024))
    if REUSE: e("s_waitcnt lgkmcnt(0)")
    else: xcheck(e, 0, "s_waitcnt WAITVM{xr0,xx} lgkmcnt(0)")
    GG = 100; XU = 204
    e("v_mov_b32 %s, %s" % (v(36), f2u(1.0 / DSC)))
    MP0, MP1 = opt("mp0", 2), opt("mp1", 4)
    e("v_mov_b32 %s, %s\nv_writelane_b32 %s, %s, 0\nv_writelane_b32 %s, %s, 1\ns_movk_i32 %s, %d\ns_mov_b32 %s, 0" % (v(38), s(T_SL + 2), v(38), s(T_SL), v(38), s(T_SL + 1), s(t + 4), 2048 + 1008 + 12, s(t + 5)))
    PLD = "@buffer_load_dword %s, %s, %s, %s offen%s" % (v(37), v(38), s(T_XS, 4), s(t + 4), LDFL)
    for nb in range(5):
        if nb == MP0 and MP1 < 9: e(PLD)
        if nb == MP1:
            e("s_waitcnt vmcnt(0)")
            e("v_xor_b32 %s, %s, %s\nv_cmp_lt_u32 vcc, 0xffff, %s" % (v(37), s(T_TAG), v(37), v(37)))
            e("s_cmp_lg_u64 vcc, 0\ns_cbranch_scc1 NOEARLY")
            for x in cond_lines([x for _, x in xloads(1)]): e(x)
            e("s_mov_b32 %s, 1\nNOEARLY:" % s(t + 5))
        d = OWR[0] + 4 * nb; gq = GG + 4 * nb
        xsum(e, 0, nb)
        for k in range(4): e("v_mul_f32 %s, %s, %s" % (v(gq + k), f2u(-math.log2(math.e) * DSC), v(d + k)))
        for k in range(4): e("v_exp_f32 %s, %s" % (v(gq + k), v(gq + k)))
        e("s_nop 0")
        for k in range(4): e("v_fma_f32 %s, %s, %s, %s" % (v(gq + k), v(gq + k), v(36), v(36)))
        for k in range(4): e("v_rcp_f32 %s, %s" % (v(gq + k), v(gq + k)))
        if not COAL:
            for h in range(2):
                e("v_lshlrev_b32 %s, 16, %s" % (v(XU + 4 * nb + 2 * h), v(KV_X + 2 * nb + h)))
                e("v_and_b32 %s, 0xffff0000, %s" % (v(XU + 4 * nb + 2 * h + 1), v(KV_X + 2 * nb + h)))
        else: e("s_nop 0")
        for k in range(4): e("v_mul_f32 %s, %s, %s" % (v(gq + k), v(gq + k), v(d + k)))
    if COAL:
        XU = 128
        for i in range(12):
            e("v_lshlrev_b32 %s, 16, %s\nv_and_b32 %s, 0xffff0000, %s" % (v(XU + 2 * i), v(CV_X + i), v(XU + 2 * i + 1), v(CV_X + i)))
        e("s_mul_i32 %s, %s, %d\ns_add_u32 %s, %s, %d" % (s(t), s(S_WAVE), 20 * LROW, s(t), s(t), L_FIN))
        e("v_and_b32 %s, 15, %s\nv_mul_u32_u24 %s, %d, %s\nv_lshrrev_b32 %s, 4, %s\nv_lshl_add_u32 %s, %s, 4, %s\nv_add_u32 %s, %s, %s" % (v(14), v(V_LANE), v(14), LROW, v(14), v(15), v(V_LANE), v(14), v(15), v(14), v(14), s(t), v(14)))
        for i in range(3): e("v_add_u32 %s, %s, %s" % (v(CV_L + i), s(t), v(CV_L + i)))
    stamp(e, 24)
    e("s_mov_b32 %s, 0" % s(t + 7))
    e("s_cmp_lg_u32 %s, 0\ns_cbranch_scc1 LOADED" % s(t + 5))
    e("PROBE:")
    e(PLD)
    e("s_waitcnt vmcnt(0)")
    e("v_xor_b32 %s, %s, %s\nv_cmp_lt_u32 vcc, 0xffff, %s" % (v(37), s(T_TAG), v(37), v(37)))
    e("s_add_u32 %s, %s, 1" % (s(t + 7), s(t + 7)))
    e("s_cmp_eq_u64 vcc, 0\ns_cbranch_scc1 PROBED")
    e("s_cmp_ge_u32 %s, 0x40000\ns_cbranch_scc1 PROBED" % s(t + 7))
    e("s_sleep %d\ns_branch PROBE" % opt("pslp", 4))
    e("PROBED:")
    for k, x in xloads(1): e(x)
    e("LOADED:")
    xcheck(e, 1, "s_waitcnt vmcnt(0)")
    stamp(e, 25)
    OFL = opt("ofl", "_sc1").replace("_", " ")
    for nb in range(5):
        o = OWR[1] + 4 * nb; gq = GG + 4 * nb; xu = XU + 4 * nb
        xsum(e, 1, nb)
        if COAL:
            for h in range(2): e("v_pk_mul_f32 %s, %s, %s" % (v(o + 2 * h, 2), v(o + 2 * h, 2), v(gq + 2 * h, 2)))
            e("ds_write_b128 %s, %s offset:%d" % (v(14), v(o, 4), nb * 64))
            continue
        for r in range(4): e("v_fma_f32 %s, %s, %s, %s" % (v(xu + r), v(o + r), v(gq + r), v(xu + r)))
        for h in range(2): e("v_cvt_pk_bf16_f32 %s, %s, %s" % (v(gq + h), v(xu + 2 * h), v(xu + 2 * h + 1)))
        e("buffer_store_dwordx2 %s, %s, %s, 0 offen offset:%d%s" % (v(gq, 2), v(KV_XO), s(K_SO, 4), nb * 32, OFL))
    if COAL:
        for i in range(3):
            for h in range(2): e("ds_read_b128 %s, %s offset:%d" % (v(64 + 8 * i + 4 * h, 4), v(CV_L + i), 16 * h))
        for i in range(3):
            e("s_waitcnt lgkmcnt(%d)" % (4 - 2 * i))
            for h in range(4): e("v_pk_add_f32 %s, %s, %s" % (v(64 + 8 * i + 2 * h, 2), v(64 + 8 * i + 2 * h, 2), v(XU + 8 * i + 2 * h, 2)))
            for h in range(4): e("v_cvt_pk_bf16_f32 %s, %s, %s" % (v(100 + 4 * i + h), v(64 + 8 * i + 2 * h), v(65 + 8 * i + 2 * h)))
            e("buffer_store_dwordx4 %s, %s, %s, 0 offen%s" % (v(100 + 4 * i, 4), v(CV_G + i), s(K_SO, 4), OFL))
    e0.ext([x.lstrip("@") for x in resolve_vm(e.L)])
    e = e0
    stamp(e, 15)
    if STAMPS: e("s_waitcnt vmcnt(0)")
    stamp(e, 16)
    stamp_fin(e)

def gen_kv_addr(e):
    T = V_T + 12; L = V_LANE
    e("s_lshl_b32 %s, %s, 19" % (s(S_TMP), s(S_HEAD)))
    srd(e, S_K, 54, s(S_TMP), 524288)
    srd(e, S_V, 56, s(S_TMP), 524288 + VSH * 8192)
    e("s_sub_u32 %s, %s, %d\ns_subb_u32 %s, %s, 0" % (s(S_V), s(S_V), VSH * 8192, s(S_V + 1), s(S_V + 1)))
    e("v_lshrrev_b32 %s, 4, %s\ns_lshl_b32 %s, %s, 3\nv_add_u32 %s, %s, %s\nv_and_b32 %s, 15, %s" % (v(T), v(L), s(S_TMP), s(S_WAVE), v(T), s(S_TMP), v(T), v(T + 1), v(L)))
    e("v_lshlrev_b32 %s, 8, %s" % (v(T + 2), v(T)))
    for i in range(2):
        e("v_add_u32 %s, %d, %s\nv_and_b32 %s, 15, %s\nv_xor_b32 %s, %s, %s\nv_lshl_add_u32 %s, %s, 4, %s" % (v(T + 3), 4 * i, v(T), v(T + 4), v(T + 3), v(T + 4), v(T + 4), v(T + 1), v(V_KD + i), v(T + 4), v(T + 2)))
        e("v_and_b32 %s, 7, %s\nv_lshlrev_b32 %s, 1, %s\nv_xor_b32 %s, %s, %s\nv_lshl_add_u32 %s, %s, 4, %s" % (v(T + 4), v(T + 3), v(T + 4), v(T + 4), v(T + 4), v(T + 4), v(T + 1), v(V_VD + i), v(T + 4), v(T + 2)))
    e("v_and_b32 %s, 15, %s\nv_lshrrev_b32 %s, 4, %s\nv_xor_b32 %s, %s, %s" % (v(T), v(L), v(T + 1), v(L), v(T + 1), v(T + 1), v(T)))
    e("v_lshlrev_b32 %s, 8, %s\nv_lshl_add_u32 %s, %s, 4, %s" % (v(T), v(T), v(T), v(T + 1), v(T)))
    for sl in range(4): e("v_xor_b32 %s, %d, %s" % (v(V_KA + sl), sl * 64, v(T)))
    e("v_lshrrev_b32 %s, 2, %s\nv_and_b32 %s, 7, %s\nv_lshlrev_b32 %s, 8, %s\nv_lshl_add_u32 %s, %s, 5, %s" % (v(T), v(L), v(T + 1), v(T), v(T), v(T), v(T), v(T + 1), v(T)))
    e("v_and_b32 %s, 3, %s\nv_lshl_add_u32 %s, %s, 3, %s\nv_add_u32 %s, %d, %s" % (v(T + 1), v(L), v(T), v(T + 1), v(T), v(T), L_V, v(T)))
    for db in range(8): e("v_xor_b32 %s, %d, %s" % (v(V_VA + db), db * 32, v(T)))

def gen_retry(e):
    e("ATT_RETRY:")
    e("s_waitcnt vmcnt(0)\ns_mov_b32 %s, 1" % s(S_RETRY))
    gen_kv_addr(e)
    for qb in range(4): e("v_mov_b32 %s, 0xff800000" % v(V_NEGM + 4 * qb))
    e("s_mov_b32 %s, 0" % s(S_KVOFF))
    e("RETRY_LOOP:")
    e("s_barrier")
    e("s_add_u32 m0, %s, %d\ns_nop 0" % (s(S_M0K), L_K))
    e(kv_dma("K", 0)); e(kv_dma("K", 1))
    e("s_waitcnt vmcnt(0)\ns_barrier")
    for kb in range(2):
        for sl in range(4): e(k_read(kb, sl, 0))
    e("s_waitcnt lgkmcnt(0)")
    e.ext(qk_mfmas(0, czero=True))
    e("s_nop 7")
    for qb in range(4):
        b = Sreg(0, qb, 0); m = v(V_NEGM + 4 * qb)
        for k in range(4): e("v_max3_f32 %s, %s, %s, %s" % (m, m, v(b + 2 * k), v(b + 2 * k + 1)))
    e("s_add_u32 %s, %s, 8192\ns_cmp_lt_u32 %s, %d\ns_cbranch_scc1 RETRY_LOOP" % (s(S_KVOFF), s(S_KVOFF), s(S_KVOFF), 64 * 8192))
    e("s_barrier")
    kv_preload(e)
    e("s_barrier")
    for kb in range(2):
        for sl in range(4): e(k_read(kb, sl, 0))
    e.ext(ones_ops(V_T))
    for r in range(128): e("v_accvgpr_write_b32 %s, 0" % a(A_O + r))
    for r in range(8): e("v_mov_b32 %s, 0" % v(V_L + r))
    e("s_waitcnt lgkmcnt(0)")
    e.ext(qk_mfmas(0, czero=True))
    for kb in range(2):
        for sl in range(4): e(k_read(kb, sl, 8192))
    e("s_branch ATT_START")

def gen_common_setup(e):
    T = V_T + 12; L = V_LANE
    e("s_lshl2_add_u32 %s, %s, %s" % (s(S_TMP + 1), s(S_QT), s(S_WAVE)))
    e("s_mul_i32 %s, %s, %d" % (s(S_TMP), s(S_TMP + 1), AFS))
    srd(e, S_AF, ptr(11), s(S_TMP), NSLAB * 4096)
    e("s_mul_i32 %s, %s, %d\ns_add_u32 %s, %s, %d" % (s(S_TMP), s(S_TMP + 1), 20 * 4096, s(S_TMP), s(S_TMP), XF_OFF))
    srd(e, S_X, ptr(11), s(S_TMP), 20 * 4096)
    e("s_mov_b64 %s, %s\ns_mov_b64 %s, %s" % (s(54, 2), s(ptr(1), 2), s(56, 2), s(ptr(2), 2)))
    e("v_bfe_u32 %s, %s, 2, 2\nv_lshrrev_b32 %s, 4, %s\nv_and_b32 %s, 3, %s" % (v(T), v(L), v(T + 1), v(L), v(T + 2), v(L)))
    e("v_lshlrev_b32 %s, 12, %s" % (v(T + 3), v(T + 1)))
    e("v_mul_u32_u24 %s, 320, %s\nv_add_u32 %s, %s, %s\nv_lshl_add_u32 %s, %s, 4, %s" % (v(T + 4), v(T), v(T + 4), v(T + 4), v(T + 3), v(T + 4), v(T + 2), v(T + 4)))
    for sl in range(4): e("v_xor_b32 %s, %d, %s" % (v(V_AQ + sl), sl * 64, v(T + 4)))
    e("v_lshl_add_u32 %s, %s, 7, %s\nv_lshl_add_u32 %s, %s, 3, %s" % (v(T + 4), v(T), v(T + 3), v(T + 4), v(T + 2), v(T + 4)))
    e("v_bfe_u32 %s, %s, 3, 2\nv_lshl_add_u32 %s, %s, 5, %s" % (v(T + 5), v(L), v(T + 4), v(T + 5), v(T + 4)))
    for u in range(4): e("v_xor_b32 %s, %d, %s" % (v(V_AG + u), u * 32, v(T + 4)))
    gen_kv_addr(e)

def gen_w_setup(e):
    T = V_T + 12; L = V_LANE
    e("v_lshrrev_b32 %s, 4, %s\nv_lshlrev_b32 %s, 2, %s\nv_and_b32 %s, 15, %s\nv_xor_b32 %s, %s, %s" % (v(T), v(L), v(T + 1), v(T), v(T + 2), v(L), v(T + 1), v(T + 1), v(T + 2)))
    e("v_lshlrev_b32 %s, 13, %s\nv_lshl_add_u32 %s, %s, 4, %s" % (v(T), v(T), v(V_WD), v(T + 1), v(T)))
    e("v_add_u32 %s, %d, %s" % (v(V_WD + 1), 4 * 8192 - 1024, v(V_WD)))
    e("v_lshrrev_b32 %s, 3, %s\nv_bfe_u32 %s, %s, 4, 1\nv_lshlrev_b32 %s, 1, %s" % (v(T), v(L), v(T + 1), v(L), v(T + 1), v(T + 1)))
    e("s_and_b32 %s, %s, 1\ns_lshl_b32 %s, %s, 2\nv_or_b32 %s, %s, %s" % (s(S_TMP), s(S_WAVE), s(S_TMP), s(S_TMP), v(T + 1), s(S_TMP), v(T + 1)))
    e("v_and_b32 %s, 7, %s\nv_xor_b32 %s, %s, %s" % (v(T + 2), v(L), v(T + 1), v(T + 1), v(T + 2)))
    e("v_mul_u32_u24 %s, 3456, %s\nv_lshl_add_u32 %s, %s, 4, %s" % (v(T), v(T), v(V_WD + 2), v(T + 1), v(T)))
    e("s_lshl_b32 %s, %s, 8\ns_sub_u32 %s, %d, %s" % (s(S_TMP), s(S_HEAD), s(S_TMP + 1), 640 * 8192, s(S_TMP)))
    srd(e, S_WQ, ptr(3), s(S_TMP), s(S_TMP + 1))
    for (d, p, sh) in ((S_WG, 6, 2048), (S_WU, 7, 3072)):
        e("s_lshl_b32 %s, %s, 7\ns_sub_u32 %s, %d, %s" % (s(S_TMP), s(S_FS), s(S_TMP + 1), 640 * 3456 + sh, s(S_TMP)))
        e("s_cmp_lt_u32 %s, 27\ns_cselect_b32 %s, %s, 0" % (s(S_FS), s(S_TMP + 1), s(S_TMP + 1)))
        srd(e, d, ptr(p), s(S_TMP), s(S_TMP + 1))
        e("s_sub_u32 %s, %s, %d\ns_subb_u32 %s, %s, 0" % (s(d), s(d), sh, s(d + 1), s(d + 1)))

def gen_kernel(e, name):
    T = V_T; L = V_LANE
    e(".text\n.globl %s\n.p2align 8\n.type %s,@function\n%s:" % (name, name, name))
    if STAMPS: e("s_memrealtime s[96:97]")
    e("s_cmp_ge_u32 s2, 256\ns_cbranch_scc1 K_END")
    e("s_load_dwordx8 %s, s[0:1], 0\ns_load_dwordx8 %s, s[0:1], 32\ns_load_dwordx8 %s, s[0:1], 64" % (s(S_PTR, 8), s(S_PTR + 8, 8), s(S_PTR + 16, 8)))
    TLB = opt("tlb", 1)
    if TLB:
        e("s_bfe_u32 s4, s2, 0x30003\ns_lshl_b32 s5, s4, 2\ns_lshr_b32 s6, 0x021bb763, s5\ns_and_b32 s6, s6, 15\ns_lshl_b32 s6, s6, 3\ns_load_dwordx2 s[8:9], s[0:1], s6")
        e("s_lshr_b32 s6, 0x10000112, s5\ns_and_b32 s6, s6, 15\ns_lshr_b32 s7, s2, 6\ns_min_u32 s6, s6, s7\ns_lshl_b32 s6, s6, 21")
        e("s_cmp_eq_u32 s4, 3\ns_cselect_b32 s6, 0x2000000, s6\ns_cmp_eq_u32 s4, 4\ns_cselect_b32 s6, 0x23f0000, s6")
        e("s_and_b32 s7, s2, 7\ns_lshl_b32 s7, s7, 21\ns_sub_u32 s5, s4, 5\ns_cmp_lt_u32 s5, 2\ns_cselect_b32 s6, s7, s6\nv_mov_b32 v9, s6")
    e("v_and_b32 %s, 63, v0\nv_lshrrev_b32 %s, 6, v0\nv_lshlrev_b32 %s, 4, %s\nv_readfirstlane_b32 %s, %s" % (v(L), v(T), v(V_L16), v(L), s(S_WAVE), v(T)))
    e("s_and_b32 %s, s2, 7\ns_lshr_b32 %s, s2, 3\ns_and_b32 %s, %s, 3\ns_lshr_b32 %s, %s, 2" % (s(S_TMP), s(S_TMP + 1), s(S_HL), s(S_TMP + 1), s(S_QT), s(S_TMP + 1)))
    e("s_lshl_b32 %s, %s, 2\ns_add_u32 %s, %s, %s" % (s(S_HEAD), s(S_TMP), s(S_HEAD), s(S_HEAD), s(S_HL)))
    e("s_lshl_b32 %s, %s, 3\ns_add_u32 %s, %s, %s" % (s(S_FS), s(S_HL), s(S_FS), s(S_FS), s(S_TMP)))
    e("s_mov_b32 %s, 0" % s(S_RETRY))
    e("s_lshl_b32 %s, %s, 12\ns_lshl_b32 %s, %s, 11" % (s(S_M0W), s(S_WAVE), s(S_M0K), s(S_WAVE)))
    if STAMPS: e("v_mov_b32 v0, -1\nv_mov_b32 v19, -1")
    stamp(e, 0)
    if STAMPS: e("v_writelane_b32 v19, s96, 40\nv_writelane_b32 v0, s96, 40")
    def codetouch(e):
        e("s_getpc_b64 %s\nCODE0:" % s(S_TMP + 4, 2))
        e("s_lshr_b32 %s, s2, 3\ns_lshl2_add_u32 %s, %s, %s\ns_mul_i32 %s, %s, 640" % (s(S_EVT + 6), s(S_EVT + 6), s(S_EVT + 6), s(S_WAVE), s(S_EVT + 6), s(S_EVT + 6)))
        if opt("cpm", "v") == "s":
            e("s_min_u32 %s, %s, CODE1-CODE0-644\ns_add_u32 %s, %s, %s\ns_addc_u32 %s, %s, 0" % (s(S_EVT + 6), s(S_EVT + 6), s(S_TMP + 4), s(S_TMP + 4), s(S_EVT + 6), s(S_TMP + 5), s(S_TMP + 5)))
            for i in range(10): e("s_load_dword %s, %s, %d" % (s(4 + i), s(S_TMP + 4, 2), 64 * i))
            return
        if opt("cpm", "v") == "h":
            e("v_min_u32 %s, 9, %s\nv_lshlrev_b32 %s, 6, %s\nv_add_u32 %s, %s, %s\nv_min_u32 %s, CODE1-CODE0-4, %s" % (v(8), v(L), v(8), v(8), v(8), s(S_EVT + 6), v(8), v(8), v(8)))
        else:
            e("v_min_u32 %s, 4, %s\nv_lshlrev_b32 %s, 7, %s\nv_add_u32 %s, %s, %s\nv_min_u32 %s, CODE1-CODE0-4, %s" % (v(8), v(L), v(8), v(8), v(8), s(S_EVT + 6), v(8), v(8), v(8)))
        e("global_load_dword %s, %s, %s" % (v(V_PL), v(8), s(S_TMP + 4, 2)))
    CPOS = opt("cpos", 1); WPOS = opt("wpos", 0)
    if CPOS == 0: codetouch(e)
    if CPOS == 9: e("CODE0:")
    gen_ln_loads(e)
    e("s_add_u32 %s, %s, %d\ns_addc_u32 %s, %s, 0\ns_load_dword %s, %s, 0" % (s(S_TMP + 2), s(ptr(11)), FL_OFF + EP_OFF, s(S_TMP + 3), s(ptr(11) + 1), s(S_EPOCH), s(S_TMP + 2, 2)))
    ny = 0
    if opt("tlb", 1) == 2: e("global_load_dword %s, v9, s[8:9]" % v(V_TRA)); ny += 1
    if CPOS == 1: codetouch(e); ny += 1
    gen_w_setup(e)
    e("s_lshl_b32 %s, %s, 16\ns_mul_i32 %s, %s, %d" % (s(S_WQOFF), s(S_WAVE), s(S_WGOFF), s(S_WAVE), 8 * 3456))
    WT = max(opt("wt", 4), 1)
    X = V_TC
    e("s_lshl2_add_u32 %s, %s, %s\ns_add_u32 %s, %s, %d" % (s(S_TMP), s(S_QT), s(S_WAVE), s(S_TMP), s(S_TMP), 32 * NI))
    e("v_lshrrev_b32 %s, 1, %s\nv_min_u32 %s, %d, %s\nv_lshlrev_b32 %s, 5, %s\nv_add_u32 %s, %s, %s" % (v(X), v(L), v(X), WT - 1, v(X), v(X), v(X), v(X), s(S_TMP), v(X)))
    e("v_and_b32 %s, 1, %s\nv_lshlrev_b32 %s, 7, %s\nv_lshl_add_u32 %s, %s, 13, %s\nv_mul_u32_u24 %s, 3456, %s" % (v(X + 1), v(L), v(X + 1), v(X + 1), v(X + 1), v(X), v(X + 1), v(X), v(X)))
    w0 = E(); wt = E()
    for sl in range(NI): w_slab(w0, sl, True)
    wt("buffer_load_dword %s, %s, %s, 0 offen" % (v(V_PL + 1), v(X + 1), s(S_WQ, 4)))
    wt("buffer_load_dword %s, %s, %s, 0 offen offset:2048" % (v(V_PL + 2), v(X), s(S_WG, 4)))
    wt("buffer_load_dword %s, %s, %s, 0 offen offset:3072" % (v(V_DUMP), v(X), s(S_WU, 4)))
    if opt("wt", 4) == 0: wt.L = []
    early = {0: w0.L + wt.L, 1: [], 2: w0.L, 3: w0.L}[WPOS]
    mid = {0: [], 1: w0.L + wt.L, 2: wt.L, 3: []}[WPOS]
    after = wt.L if WPOS == 3 else []
    e.ext(early); ny += sum(x.startswith("buffer") for x in early)
    LATE = opt("late", 2)
    srd(e, S_FL, ptr(11), FL_OFF, EP_OFF + 4096)
    e("s_lshl_b32 %s, %s, 5\ns_add_u32 %s, %s, %s\ns_lshl_b32 %s, %s, %d" % (s(S_MYFL), s(S_QT), s(S_MYFL), s(S_MYFL), s(S_HEAD), s(S_MYFL), s(S_MYFL), FSH))
    e("v_min_u32 %s, 31, %s\nv_lshlrev_b32 %s, %d, %s\ns_lshl_b32 %s, %s, %d" % (v(V_PL + 3), v(L), v(V_PL + 3), FSH, v(V_PL + 3), s(S_XOFF), s(S_QT), FSH + 5))
    def rest():
        gen_common_setup(e)
        for i in range(8): e("v_add_u32 %s, 65536, %s" % (v(V_AHI + i), v(V_AQ + i)))
        if opt("tw2", -1) >= 0:
            t = S_TMP
            e("s_lshr_b32 %s, s2, 3\ns_mul_i32 %s, %s, %d\ns_add_u32 %s, %s, %d\nv_mov_b32 %s, %s" % (s(t), s(t + 1), s(t), AFS, s(t + 1), s(t + 1), NSLAB * 4096, v(V_T2), s(t + 1)))
            e("s_mul_i32 %s, %s, %d\ns_add_u32 %s, %s, %d" % (s(t + 1), s(t), 4 * XGS, s(t + 1), s(t + 1), XP_OFF + 12 * 12288))
            e("s_and_b32 %s, %s, 3\ns_mul_i32 %s, %s, %d\ns_add_u32 %s, %s, %d" % (s(t + 2), s(t), s(t + 2), s(t + 2), WFS, s(t + 2), s(t + 2), WF_OFF + NSLAB * 10240))
            e("s_cmp_lt_u32 %s, 16\ns_cselect_b32 %s, %s, %s\nv_mov_b32 %s, %s" % (s(t), s(t + 1), s(t + 1), s(t + 2), v(V_T2 + 1), s(t + 1)))
            e("s_and_b32 %s, %s, 1\ns_lshl_b32 %s, %s, 21\nv_mov_b32 %s, %s" % (s(t), s(t), s(t), s(t), v(V_T2 + 2), s(t)))
        e("v_mov_b32 %s, %d" % (v(V_ZA), L_MISC + 512))
        for i in range(4): e("v_mov_b32 %s, 0" % v(52 + i))
        e("ds_write_b128 %s, %s" % (v(V_ZA), v(52, 4)))
    stamp(e, 1)
    gen_ln_compute(e, ny, mid)
    e.ext(after)
    stamp(e, 29)
    if LATE == 1: rest()
    e("s_mul_i32 %s, %s, 0x9e3779b1\ns_add_u32 %s, %s, 0x7f4a7c15" % (s(S_TAG), s(S_EPOCH), s(S_TAG), s(S_TAG)))
    e("s_waitcnt vmcnt(%d)\ns_barrier" % len(after))
    stamp(e, 18)
    e("s_cmp_lg_u32 %s, 0\ns_cbranch_scc1 NOFL1" % s(S_WAVE))
    set_flag(e, 1)
    e("NOFL1:")
    if LATE == 2: rest()
    e("s_cmp_lg_u32 %s, 0\ns_cbranch_scc1 SPUN_XN" % s(S_WAVE))
    e(poll_load(False, s(S_XOFF)))
    e("s_waitcnt vmcnt(0)")
    poll_spin(e, False, s(S_XOFF), 1, "XN")
    e("s_barrier")
    stamp(e, 2)
    e("s_cmp_ge_u32 %s, 27\ns_cbranch_scc1 LIGHT" % s(S_FS))
    gen_proj(e, True, "H")
    e("PROJ_DONE:")
    head = gen_attention(e)
    gen_tail(e, head)
    e("K_END:\ns_endpgm")
    gen_events(e)
    gen_retry(e)
    e("LIGHT:")
    gen_proj(e, False, "L")
    e("s_branch PROJ_DONE")
    e("CODE1:")
    e(kd(name))

def main():
    e = E()
    hdr = open("cdna_kernels/%s.s.ref" % NAME).read().split("; Override launch")[0]
    e.L += hdr.strip().split("\n")
    e("; @launch grid=(256,1,1) block=(256,1,1) lds=%d" % LDS_BYTES)
    e('.amdgcn_target "amdgcn-amd-amdhsa--gfx950"')
    gen_kernel(e, NAME + "_kernel")
    t = re.sub(r" ;#\w*", "", e.text()).replace("NVWAIT", str(min(NV01)))
    if VERBOSE: print("NV01", NV01)
    errs = [x for x in asmcheck.check(t, [NAME + "_kernel"]) if x.count("_load_dword v%d," % V_DUMP) != 2 and not any(y in x for y in poll_load(True).split("\n")[-4:])]
    if errs:
        print("\n".join(errs[:40])); print(len(errs), "problems")
    out = [x for x in sys.argv[1:] if x.endswith(".s")]
    open(out[0] if out else "cdna_kernels/%s.s" % NAME, "w").write(t)

if __name__ == "__main__":
    main()
```

```python
import sys, math, os, struct, re
from sched import Gaps, auto_lgkm
import asmcheck

NAME = "recurrent_scan__mha_block_cached__glu_gated_reglu__prompt"
MF = "v_mfma_f32_16x16x32_bf16"
OPT = dict(x.split("=") for x in sys.argv[1:] if "=" in x)
def opt(k, d): return type(d)(OPT.get(k, d))
VERBOSE = "-v" in sys.argv
STAMPS = "--stamps" in sys.argv
STFL = opt("stfl", " sc1").replace("_", " ")
LDFL = opt("ldfl", " sc1").replace("_", " ")

NSLAB = 182
QSC = math.log2(math.e) / math.sqrt(128.0)
DSC = 1.0 / (QSC * QSC)
WF_OFF = 0x1800000
AFS = (NSLAB + 1) * 4096
WFS = NSLAB * 10240 + 4096
XGS = 13 * 12288
XF_OFF = 0x2001000
XP_OFF = 0x2400000
MAXST = 4
FL_OFF = 0x2300000

class E:
    def __init__(self): self.L = []
    def __call__(self, s):
        for x in s.split("\n"):
            x = x.strip()
            if x: self.L.append(x)
    def ext(self, l): self.L += l
    def text(self): return "\n".join(self.L) + "\n"

def v(a, n=1): return "v%d" % a if n == 1 else "v[%d:%d]" % (a, a + n - 1)
def a(a_, n=1): return "a%d" % a_ if n == 1 else "a[%d:%d]" % (a_, a_ + n - 1)
def s(a_, n=1): return "s%d" % a_ if n == 1 else "s[%d:%d]" % (a_, a_ + n - 1)
def f2u(x): return "0x%08x" % struct.unpack("<I", struct.pack("<f", x))[0]

def kd(name, vgpr=512, acc=256):
    return """.section .rodata,"a"
.p2align 6
.amdhsa_kernel %s
  .amdhsa_next_free_vgpr %d
  .amdhsa_next_free_sgpr 102
  .amdhsa_accum_offset %d
  .amdhsa_group_segment_fixed_size 0
  .amdhsa_kernarg_size 96
  .amdhsa_user_sgpr_count 2
  .amdhsa_user_sgpr_kernarg_segment_ptr 1
  .amdhsa_system_sgpr_workgroup_id_x 1
.end_amdhsa_kernel
""" % (name, vgpr, acc)

def stamp(e, i):
    if not STAMPS: return
    e("s_waitcnt lgkmcnt(0)\ns_memtime s[98:99]\ns_memrealtime s[100:101]\ns_waitcnt lgkmcnt(0)")
    e("v_writelane_b32 v0, s98, %d\nv_writelane_b32 v19, s100, %d" % (i, i))
def stamp_fin(e):
    if not STAMPS: return
    if opt("echo", ""):
        i, j = [int(x) for x in opt("echo", "").split(".")]
        e("s_nop 1\nv_readlane_b32 s96, v19, %d\nv_readlane_b32 s97, v19, %d\nv_readlane_b32 s98, v19, 16\ns_nop 3\ns_sub_u32 s96, s97, s96\ns_min_u32 s96, s96, 20000\ns_cmp_%s_u32 %s, 27\ns_cselect_b32 s96, s96, 0" % (i, j, "ge" if opt("el", 0) else "lt", s(S_FS)))
        if opt("ecyc", 0):
            e("v_readlane_b32 s96, v0, %d\nv_readlane_b32 s97, v0, %d\ns_nop 3\ns_sub_u32 s96, s97, s96\ns_lshr_b32 s96, s96, 3\ns_min_u32 s96, s96, 20000\ns_cmp_lt_u32 %s, 27\ns_cselect_b32 s96, s96, 0" % (i, j, s(S_FS)))
            i = 40
        if opt("eneg", 0):
            e("s_cmp_eq_u32 s96, 0\ns_cselect_b32 s96, 3000, s96\ns_min_u32 s96, s96, 3000\ns_sub_u32 s96, 3000, s96")
            i = 40
        if opt("emul", 0): e("s_mul_i32 s96, s96, %d" % opt("emul", 0))
        if opt("eabs", 0): e("v_readlane_b32 s98, v19, %d\ns_add_u32 s96, s96, 10000\ns_nop 3" % i)
        e("ECHO:\ns_sleep 1\ns_memrealtime s[100:101]\ns_waitcnt lgkmcnt(0)\ns_sub_u32 s97, s100, s98\ns_cmp_lt_u32 s97, s96\ns_cbranch_scc1 ECHO")
        return
    if opt("dbgout", -1) >= 0:
        e("s_cmp_lg_u32 s2, %d\ns_cbranch_scc1 NODBG\ns_cmp_lg_u32 %s, 0\ns_cbranch_scc1 NODBG" % (opt("dbgout", -1), s(S_WAVE)))
        e("v_readlane_b32 s98, v19, 0\ns_nop 3\nv_subrev_u32 v18, s98, v19\nv_lshlrev_b32 v20, 2, v1\nv_subrev_u32 v20, 4, v20")
        e("s_mov_b32 s96, %s\ns_mov_b32 s97, %s\ns_mov_b32 s98, 64\ns_mov_b32 s99, 0x20000" % (s(ptr(10)), s(ptr(10) + 1)))
        e("buffer_store_dword v18, v20, s[96:99], 0 offen\ns_waitcnt vmcnt(0)\nNODBG:")
        return
    if opt("wsb", 0): e("s_sub_u32 %s, %s, %d\ns_subb_u32 %s, %s, 0" % (s(ptr(11)), s(ptr(11)), opt("wsb", 0) << 20, s(ptr(11) + 1), s(ptr(11) + 1)))
    e("s_lshl_b32 s98, s2, 2\ns_add_u32 s98, s98, %s\ns_lshl_b32 s98, s98, 9\ns_add_u32 s98, s98, %d" % (s(S_WAVE), 0x4000000))
    e("s_add_u32 s96, %s, s98\ns_addc_u32 s97, %s, 0\ns_mov_b32 s98, 512\ns_mov_b32 s99, 0x20000" % (s(ptr(11)), s(ptr(11) + 1)))
    e("v_mov_b32 v18, v0\nv_lshlrev_b32 v20, 3, v1\nbuffer_store_dwordx2 v[18:19], v20, s[96:99], 0 offen\ns_waitcnt vmcnt(0)")

def srd(e, d, base, off_lo, nbytes):
    e("s_add_u32 %s, %s, %s" % (s(d), s(base), off_lo))
    e("s_addc_u32 %s, %s, 0" % (s(d + 1), s(base + 1)))
    e("s_mov_b32 %s, %s" % (s(d + 2), nbytes))
    e("s_mov_b32 %s, 0x20000" % s(d + 3))

def uncond(x): return False
def resolve_vm(lines):
    out = []; ops = []; waited = set(); lastm0 = None; done = 0; marks = {}
    for x in lines:
        mm = re.search(r"vmcnt\((\d+)\)", x)
        if mm and not x.startswith("@") and uncond(x): done = max(done, len(ops) - int(mm.group(1)))
        if x.startswith(("buffer_", "global_")) and len(ops) - done >= 58:
            out.append("s_waitcnt vmcnt(52)"); done = len(ops) - 52
        if x.startswith("s_add_u32 m0,"): lastm0 = x.split(",")[1].strip()
        if " lds" in x and ";#" in x:
            tg = x.split(";#")[1].strip()
            exp = s(S_M0W) if tg.startswith("w") else (s(S_TRM) if tg == "trs" else s(S_M0K))
            if tg.startswith("D"): exp = s(T_M0W)
            assert lastm0 == exp, "M0 collision at %s" % x
        if x.startswith("MARK"):
            marks[x.split()[1]] = len(ops); continue
        m = re.search(r"SINCE\{(\w+)\}", x)
        if m: x = x.replace(m.group(0), "vmcnt(%d)" % min(63, len(ops) - marks[m.group(1)]))
        m = re.search(r"WAITVM\{([^}]*)\}", x)
        if m:
            need = set(m.group(1).split(","))
            waited |= need
            idx = [i for i, t in enumerate(ops) if t in need]
            n = len(ops) - 1 - max(idx) if idx else 63
            done = max(done, len(ops) - min(n, 63))
            x = x.replace(m.group(0), "vmcnt(%d)" % min(n, 63))
        elif x.startswith(("buffer_", "global_")):
            t = x.split(";#")[1].strip() if ";#" in x else ""
            assert t not in waited, "op %s issued after its wait" % t
            ops.append(t)
        out.append(x)
    return out

S_FL = 4
S_X, S_WQ, S_WG, S_WU, S_K, S_V, S_AF, S_T, S_WF = 8, 12, 16, 20, 24, 28, 32, 36, 40
S_PTR = 44
S_WAVE, S_HEAD, S_QT, S_FS = 68, 69, 70, 71
S_XOFF, S_WQOFF, S_WGOFF, S_M0W = 72, 73, 74, 75
S_KVOFF, S_M0K, S_TOG, S_RETRY = 76, 77, 78, 79
S_TMP = 80
S_TRS, S_TRM, S_TRD, S_TRU = 88, 89, 90, 91
S_EPOCH, S_TAG, S_MYFL = 92, 93, 94
S_HL = 3
S_EVT = 85
def EV(n): return (10 + 2 * n) * 8192
EVT0 = EV(3)
EVTE = (62 + 10) * 8192
NWH = opt("nwh", 0)
S_LN = 84
def ptr(i): return S_PTR + 2 * i

L_K = 0
L_V = 65536
RW = 8
L_TR = 114688
L_MISC = 155648
LDS_BYTES = 163840

V_LANE = 1
V_L16 = 2
V_WD = 3
V_TRA = 6
V_AQ = 10
V_AG = 14
V_KA = 20
V_VA = 24
V_KD = 32
V_VD = 34
V_DUMP = 18
V_SIDX = 7
V_ZA = 6
V_T2 = 40
NL = 2
VSH = 4
NOE = 4
V_PW = 5
PWARM = opt("pw", 0)
V_TC = 62
V_PL = 36
V_T = 40
V_ACCQ = 64
V_ACCG = 192
V_Q = 64
V_S = 128
V_P = 192
V_NEGM = 224
V_L = 240
A_ACCU = 0
XD = 8
A_X = 64
A_W = 192
A_TR = 208
V_ONE = 56
A_O = 64
A_KF = 224
A_KF1 = 192
A_VF = 0
V_AHI = 44

def qacc(blk, qb): return (V_S if blk & 1 else V_Q) + ((blk >> 1) * 4 + qb) * 4
def wslot(sl): return (sl + 4) % RW
def accreg(blk, qb):
    if blk < 8: return v(qacc(blk, qb), 4)
    if blk < 12: return v(V_ACCG + ((blk - 8) * 4 + qb) * 4, 4)
    return a(A_ACCU + ((blk - 12) * 4 + qb) * 4, 4)

def w_read(dst, blk, j, rel):
    if blk < 8:
        ar = V_AQ + (blk >> 1); off = rel + j * 1024 + (blk & 1) * 8
    else:
        ar = V_AG + ((blk - 8) & 3); off = rel + 2048 + (1024 if blk >= 12 else 0) + j * 512
    if rel >= 65536: ar += V_AHI - V_AQ; off -= 65536
    assert 0 <= off < 65536
    return "ds_read_b64_tr_b16 %s, %s offset:%d" % (a(dst + 2 * j, 2), v(ar), off)

def w_dma(heavy, tag):
    l = ["buffer_load_dwordx4 %s, %s, %s offen lds ;#%s" % (v(V_WD), s(S_WQ, 4), s(S_WQOFF), tag),
         "buffer_load_dwordx4 %s, %s, %s offen offset:1024 lds ;#%s" % (v(V_WD + 1), s(S_WQ, 4), s(S_WQOFF), tag)]
    if heavy:
        l += ["buffer_load_dwordx4 %s, %s, %s offen offset:2048 lds ;#%s" % (v(V_WD + 2), s(S_WG, 4), s(S_WGOFF), tag),
              "buffer_load_dwordx4 %s, %s, %s offen offset:3072 lds ;#%s" % (v(V_WD + 2), s(S_WU, 4), s(S_WGOFF), tag)]
    return l

def x_load(sl, qb):
    return "buffer_load_dwordx4 %s, %s, %s, %s offen offset:%d%s ;#x%d" % (a(A_X + ((sl % XD) * 4 + qb) * 4, 4), v(V_L16), s(S_X, 4), s(S_XOFF), qb * 1024, LDFL, sl)

def kv_dma(which, i, tag=""):
    vo = (V_KD if which == "K" else V_VD) + i
    return "buffer_load_dwordx4 %s, %s, %s offen offset:%d%s lds ;#%s" % (v(vo), s(S_K if which == "K" else S_V, 4), s(S_KVOFF), 1024 * i, opt("kvfl", "_sc1").replace("_", " "), tag)

FSH = opt("fsh", 7)
REP = opt("rep", 1)
EP_OFF = 8 * 32768
CF_OFF = EP_OFF + 1024
def set_flag(e, stage):
    if stage in (2, 3) and FSH > 2:
        e("s_add_u32 %s, %s, %d\ns_mov_b64 exec, 1\nv_mov_b32 %s, %s\ns_lshr_b32 %s, %s, %d\ns_add_u32 %s, %s, %d" % (s(S_TMP + 7), s(S_TAG), stage, v(V_PL), s(S_TMP + 7), s(S_TMP + 7), s(S_MYFL), FSH - 2, s(S_TMP + 7), s(S_TMP + 7), CF_OFF))
        e("buffer_store_dword %s, off, %s, %s sc1" % (v(V_PL), s(S_FL, 4), s(S_TMP + 7)))
    elif REP:
        e("s_add_u32 %s, %s, %d\ns_mov_b64 exec, 0xff\nv_mov_b32 %s, %s\nv_lshlrev_b32 %s, 15, %s" % (s(S_TMP + 7), s(S_TAG), stage, v(V_PL), s(S_TMP + 7), v(V_PL + 2), v(V_LANE)))
        e("buffer_store_dword %s, %s, %s, %s offen sc1" % (v(V_PL), v(V_PL + 2), s(S_FL, 4), s(S_MYFL)))
    elif opt("fwide", 0):
        n = (1 << FSH) // 8
        e("s_add_u32 %s, %s, %d\ns_mov_b64 exec, 0x%x\nv_mov_b32 %s, %s\nv_mov_b32 %s, %s\nv_lshlrev_b32 %s, 3, %s" % (s(S_TMP + 7), s(S_TAG), stage, (1 << n) - 1, v(V_PL), s(S_TMP + 7), v(V_PL + 1), s(S_TMP + 7), v(V_PL + 2), v(V_LANE)))
        e("buffer_store_dwordx2 %s, %s, %s, %s offen sc1" % (v(V_PL, 2), v(V_PL + 2), s(S_FL, 4), s(S_MYFL)))
    else:
        e("s_add_u32 %s, %s, %d\ns_mov_b64 exec, 1\nv_mov_b32 %s, %s" % (s(S_TMP + 7), s(S_TAG), stage, v(V_PL), s(S_TMP + 7)))
        e("buffer_store_dword %s, off, %s, %s sc1" % (v(V_PL), s(S_FL, 4), s(S_MYFL)))
    e("s_mov_b64 exec, -1")

def poll_load(allq, qoff=None):
    if allq and FSH > 2: return "s_mov_b32 %s, %d\nbuffer_load_dwordx4 %s, %s, %s, %s offen sc1" % (s(S_TMP + 1), CF_OFF, v(V_PL, 4), v(V_L16), s(S_FL, 4), s(S_TMP + 1))
    if allq: return "buffer_load_dwordx4 %s, %s, %s, 0 offen sc1" % (v(V_PL, 4), v(V_L16), s(S_FL, 4))
    return "buffer_load_dword %s, %s, %s, %s offen sc1" % (v(V_PL), v(V_PL + 3), s(S_FL, 4), qoff)

def poll_spin(e, allq, qoff, stage, tag):
    e("s_mov_b32 %s, 0\ns_add_u32 %s, %s, %d" % (s(S_TMP + 7), s(S_TMP + 6), s(S_TAG), stage))
    e("SPIN_%s:" % tag)
    n = 4 if allq else 1
    for i in range(n): e("v_subrev_u32 %s, %s, %s" % (v(V_PL + i), s(S_TMP + 6), v(V_PL + i)))
    if allq: e("v_max3_u32 %s, %s, %s, %s\nv_max_u32 %s, %s, %s" % (v(V_PL), v(V_PL), v(V_PL + 1), v(V_PL + 2), v(V_PL), v(V_PL), v(V_PL + 3)))
    e("v_cmp_lt_u32 vcc, %d, %s" % (MAXST - stage, v(V_PL)))
    e("s_add_u32 %s, %s, 1" % (s(S_TMP + 7), s(S_TMP + 7)))
    e("s_cmp_eq_u64 vcc, 0\ns_cbranch_scc1 SPUN_%s" % tag)
    e("s_cmp_ge_u32 %s, 0x40000\ns_cbranch_scc1 SPUN_%s" % (s(S_TMP + 7), tag))
    e("s_sleep %d" % opt("slp", 2))
    e(poll_load(allq, qoff))
    e("s_waitcnt vmcnt(0)\ns_branch SPIN_%s" % tag)
    e("SPUN_%s:" % tag)

def zero_acc(e, heavy=True):
    for r in range(V_ACCQ, 256): e("v_mov_b32 %s, 0" % v(r))
    for r in range(A_ACCU, A_ACCU + 64): e("v_accvgpr_write_b32 %s, 0" % a(r))

NI = opt("ni", 1)

def gen_ln_loads(e):
    T = V_T; L = V_LANE
    R = V_ACCQ
    e("v_bfe_u32 %s, %s, 1, 3\nv_lshrrev_b32 %s, 4, %s\nv_and_b32 %s, 1, %s" % (v(T), v(L), v(T + 1), v(L), v(T + 2), v(L)))
    e("v_mul_u32_u24 %s, 1280, %s\nv_lshl_add_u32 %s, %s, 4, %s\nv_lshl_add_u32 %s, %s, 3, %s" % (v(T + 3), v(T), v(T + 3), v(T + 1), v(T + 3), v(T + 3), v(T + 2), v(T + 3)))
    e("s_lshl_b32 %s, %s, 5\ns_add_u32 %s, %s, %s\ns_mul_i32 %s, %s, %d\ns_mul_i32 %s, %s, 320" % (s(S_TMP), s(S_QT), s(S_TMP), s(S_TMP), s(S_HEAD), s(S_TMP), s(S_TMP), 8 * 1280, s(S_TMP + 1), s(S_WAVE)))
    e("s_waitcnt lgkmcnt(0)")
    if opt("wsb", 0): e("s_add_u32 %s, %s, %d\ns_addc_u32 %s, %s, 0" % (s(ptr(11)), s(ptr(11)), opt("wsb", 0) << 20, s(ptr(11) + 1), s(ptr(11) + 1)))
    if opt("tlb", 0) == 1: e("global_load_dword %s, v9, s[8:9]" % v(V_TRA))
    srd(e, S_T, ptr(0), s(S_TMP), 8 * 1280)
    for i in range(5): e("buffer_load_dwordx2 %s, %s, %s, %s offen offset:%d" % (v(R + 2 * i, 2), v(T + 3), s(S_T, 4), s(S_TMP + 1), 64 * i))

def gen_ln_compute(e, nyounger, mid=()):
    T = V_T; L = V_LANE
    R = V_ACCQ; U = R + 10
    e("v_and_b32 %s, 15, %s\nv_lshlrev_b32 %s, 3, %s\nv_lshl_add_u32 %s, %s, 8, %s" % (v(T + 3), v(L), v(T + 3), v(T + 3), v(T + 3), v(T + 1), v(T + 3)))
    e("s_lshr_b32 %s, %s, 3\ns_lshl2_add_u32 %s, %s, %s\ns_mul_i32 %s, %s, %d" % (s(S_TMP), s(S_HEAD), s(S_TMP), s(S_QT), s(S_TMP), s(S_TMP), s(S_TMP), 20 * 4096))
    e("s_bfe_u32 %s, %s, 0x20001\ns_lshl_b32 %s, %s, 10\ns_add_u32 %s, %s, %s" % (s(S_TMP + 1), s(S_HEAD), s(S_TMP + 1), s(S_TMP + 1), s(S_TMP), s(S_TMP), s(S_TMP + 1)))
    e("s_and_b32 %s, %s, 1\ns_lshl_b32 %s, %s, 7\ns_add_u32 %s, %s, %s\ns_add_u32 %s, %s, %d" % (s(S_TMP + 1), s(S_HEAD), s(S_TMP + 1), s(S_TMP + 1), s(S_TMP), s(S_TMP), s(S_TMP + 1), s(S_TMP), s(S_TMP), XF_OFF))
    srd(e, S_LN, ptr(11), s(S_TMP), 20 * 4096)
    e("s_mul_i32 %s, %s, %d" % (s(S_TMP), s(S_WAVE), 5 * 4096))
    e("v_lshlrev_b32 %s, 5, %s\nv_add_u32 %s, %d, %s\ns_lshl_b32 %s, %s, 3\nv_add_u32 %s, %s, %s" % (v(T + 4), v(T), v(T + 4), L_MISC, v(T + 4), s(S_TMP + 1), s(S_WAVE), v(T + 5), s(S_TMP + 1), v(T + 4)))
    A0 = T + 6; M = T + 8
    e("s_waitcnt vmcnt(%d)" % nyounger)
    stamp(e, 17)
    e.ext(list(mid))
    for d in range(10): e("v_lshlrev_b32 %s, 16, %s\nv_and_b32 %s, 0xffff0000, %s" % (v(U + 2 * d), v(R + d), v(U + 2 * d + 1), v(R + d)))
    e("v_pk_add_f32 %s, %s, %s\nv_pk_add_f32 %s, %s, %s" % (v(A0, 2), v(U, 2), v(U + 2, 2), v(M, 2), v(U + 4, 2), v(U + 6, 2)))
    for d in range(4, 10): e("v_pk_add_f32 %s, %s, %s" % (v((A0, M)[d & 1], 2), v((A0, M)[d & 1], 2), v(U + 2 * d, 2)))
    def reduce(dst):
        e("v_pk_add_f32 %s, %s, %s" % (v(A0, 2), v(A0, 2), v(M, 2) if dst == M else v(T + 10, 2)))
        e("v_add_f32 %s, %s, %s\ns_nop 1" % (v(A0), v(A0), v(A0 + 1)))
        e("v_add_f32_dpp %s, %s, %s quad_perm:[1,0,3,2] row_mask:0xf bank_mask:0xf" % (v(A0), v(A0), v(A0)))
        for sw in ("v_permlane32_swap_b32", "v_permlane16_swap_b32"):
            e("v_mov_b32 %s, %s\ns_nop 1\n%s %s, %s\nv_add_f32 %s, %s, %s" % (v(A0 + 1), v(A0), sw, v(A0), v(A0 + 1), v(A0), v(A0), v(A0 + 1)))
    reduce(M)
    e("v_mul_f32 %s, %s, %s\nv_mul_f32 %s, %s, %s" % (v(M), f2u(-1.0 / 160), v(A0), v(M + 1), f2u(-1.0 / 160), v(A0)))
    for d in range(10): e("v_pk_add_f32 %s, %s, %s" % (v(U + 2 * d, 2), v(U + 2 * d, 2), v(M, 2)))
    e("v_pk_mul_f32 %s, %s, %s\nv_pk_mul_f32 %s, %s, %s" % (v(A0, 2), v(U, 2), v(U, 2), v(T + 10, 2), v(U + 2, 2), v(U + 2, 2)))
    for d in range(2, 10): e("v_pk_fma_f32 %s, %s, %s, %s" % (v((A0, T + 10)[d & 1], 2), v(U + 2 * d, 2), v(U + 2 * d, 2), v((A0, T + 10)[d & 1], 2)))
    reduce(None)
    e("v_mov_b32 %s, %s" % (v(M + 1), v(A0)))
    e("ds_write_b64 %s, %s\ns_waitcnt lgkmcnt(0)\ns_barrier" % (v(T + 5), v(M, 2)))
    X = T + 12
    e("ds_read_b128 %s, %s\nds_read_b128 %s, %s offset:16\ns_waitcnt lgkmcnt(0)" % (v(X, 4), v(T + 4), v(X + 4, 4), v(T + 4)))
    e("v_pk_add_f32 %s, %s, %s\nv_pk_add_f32 %s, %s, %s\nv_pk_add_f32 %s, %s, %s" % (v(A0, 2), v(X, 2), v(X + 2, 2), v(T + 10, 2), v(X + 4, 2), v(X + 6, 2), v(A0, 2), v(A0, 2), v(T + 10, 2)))
    e("v_mul_f32 %s, 0.25, %s" % (v(A0), v(A0)) if False else "v_mul_f32 %s, %s, %s" % (v(A0), f2u(0.25), v(A0)))
    for k in range(4): e("v_sub_f32 %s, %s, %s" % (v(X + 2 * k), v(X + 2 * k), v(A0)))
    e("v_mul_f32 %s, %s, %s" % (v(X + 1), v(X), v(X)))
    for k in range(1, 4): e("v_fmac_f32 %s, %s, %s" % (v(X + 1), v(X + 2 * k), v(X + 2 * k)))
    e("v_fmac_f32 %s, %s, %s" % (v(A0 + 1), f2u(160.0), v(X + 1)))
    e("v_mov_b32 %s, %s\nv_fmac_f32 %s, %s, %s\nv_rsq_f32 %s, %s" % (v(X), f2u(1e-5 * DSC), v(X), f2u(DSC / 640), v(A0 + 1), v(X), v(X)))
    e("v_sub_f32 %s, %s, %s" % (v(M), v(A0), v(M)))
    e("v_mov_b32 %s, %s\nv_mul_f32 %s, %s, %s\nv_mul_f32 %s, %s, %s" % (v(X + 1), v(X), v(M + 1), v(M), v(X), v(M), v(M), v(X)))
    for i in range(5):
        for d in (2 * i, 2 * i + 1): e("v_pk_fma_f32 %s, %s, %s, %s" % (v(U + 2 * d, 2), v(U + 2 * d, 2), v(X, 2), v(M, 2)))
        for d in (2 * i, 2 * i + 1): e("v_cvt_pk_bf16_f32 %s, %s, %s" % (v(R + d), v(U + 2 * d), v(U + 2 * d + 1)))
        e("buffer_store_dwordx2 %s, %s, %s, %s offen%s" % (v(R + 2 * i, 2), v(T + 3), s(S_LN, 4), s(S_TMP), STFL))
        if i < 4: e("s_add_u32 %s, %s, 4096" % (s(S_TMP), s(S_TMP)))

def w_slab(e, sl, heavy):
    e("s_add_u32 m0, %s, %d\ns_nop 0" % (s(S_M0W), wslot(sl) * 16384))
    e.ext(w_dma(heavy, "w%d" % sl))
    e("s_add_u32 %s, %s, %d\ns_add_u32 %s, %s, %d" % (s(S_WQOFF), s(S_WQOFF), 32 * 8192, s(S_WGOFF), s(S_WGOFF), 32 * 3456))

def ones_ops(tmp):
    L = V_LANE
    return ["v_lshrrev_b32 %s, 4, %s" % (v(tmp), v(L)), "v_xor_b32 %s, %s, %s" % (v(tmp), v(tmp), v(L)), "v_bfe_u32 %s, %s, 1, 1" % (v(tmp), v(tmp)),
            "v_subrev_u32 %s, 1, %s" % (v(tmp), v(tmp)), "v_and_b32 %s, 0x3f803f80, %s" % (v(tmp), v(tmp))] + \
           ["v_mov_b32 %s, %s" % (v(V_ONE + r), v(tmp)) for r in range(4)] + \
           ["v_and_b32 %s, 1, %s" % (v(V_SIDX), v(L)), "v_mul_u32_u24 %s, 0xaaaa, %s" % (v(V_SIDX), v(V_SIDX)), "v_or_b32 %s, 0x4444, %s" % (v(V_SIDX), v(V_SIDX))]

NV01 = []
def gen_proj(e0, heavy, tag):
    e = E()
    T = V_T; L = V_LANE
    NS = opt("ns", 4) if heavy else 0
    GU = [b for fb in range(4) for b in (12 + fb, 8 + fb)]
    PC0 = opt("pc0", 2) if heavy else opt("lpc0", 20)
    def grp(lo, hi):
        out = []; sl = lo
        while sl < hi:
            if sl >= PC0 and sl + 1 < hi: out.append((sl, sl + 1)); sl += 2
            else: out.append((sl,)); sl += 1
        return out
    units = []
    for ss in grp(0, 20 - NS): units.append((ss, list(range(8)) + (GU if heavy else [])))
    for part in {0: (GU,), 1: (GU[:4], GU[4:]), 2: (GU[:2], GU[2:4], GU[4:6], GU[6:])}[opt("split", 2)]:
        for ss in grp(20 - NS, 20): units.append((ss, part))
    for ss in grp(20 - NS, 20): units.append((ss, list(range(8))))
    order = []; mf = []; firstuse = []
    for ss, bl in units:
        for b in bl:
            F0 = len(order)
            for sl in ss: order.append((sl, b)); firstuse.append(4 * F0)
            for qb in (range(4) if (not opt("psn", 1) or (F0 // len(ss)) % 2 == 0) else range(3, -1, -1)):
                idx = list(range(len(ss)))
                if qb & 1: idx.reverse()
                for i in idx:
                    sl = ss[i]
                    c = "0" if (0 in ss and i == idx[0]) else accreg(b, qb)
                    mf.append("%s %s, %s, %s, %s" % (MF, accreg(b, qb), a(A_W + 4 * ((F0 + i) % 8), 4), a(A_X + ((sl % XD) * 4 + qb) * 4, 4), c))
    NF = len(order)
    NP = len(mf)
    for sl in range(4):
        for kb in range(2):
            for qb in range(4):
                d = v(Sreg(0, qb, kb), 4)
                mf.append("%s %s, %s, %s, %s" % (MF, d, a(A_KF + (kb * 4 + sl) * 4, 4), v(V_Q + (sl * 4 + qb) * 4, 4), d if sl else "0"))
    G = Gaps(mf)
    ustart = []; n = 0
    for ss, bl in units: ustart.append(n); n += len(bl) * len(ss)
    lastF = {}; lastblk = {}; firstF = {}
    for u, (ss, bl) in enumerate(units):
        for k, sl in enumerate(ss):
            lastF[sl] = ustart[u] + len(bl) * len(ss) - 1
            firstF.setdefault(sl, ustart[u] + k * len(bl))
        for i, b in enumerate(bl): lastblk[b] = ustart[u] + (i + 1) * len(ss) - 1
    G1 = lambda sl: 4 * firstF[sl]
    DA = opt("pda", 6)
    rd = lambda F, j: w_read(A_W + 4 * (F % 8), order[F][1], j, wslot(order[F][0]) * 16384)
    pre_reads = [rd(F, j) for F in range(DA) for j in range(2)]
    TRW = opt("trw", 15) if heavy else 14
    bars = {}; cur = 0; seen = set(units[0][0])
    def barrier(u, lo, need):
        bb = G.place("b", "s_barrier", lo)
        G.put(bb, "s", "s_waitcnt WAITVM{%s}" % ",".join(need))
        bars[u] = bb
        return bb + 1
    for F in range(DA, NF):
        lo = 4 * (F - DA)
        if F in ustart:
            u = ustart.index(F)
            need = [k + str(sl) for sl in units[u][0] if sl not in seen for k in "xw"]
            seen |= set(units[u][0])
            if need or units[u][1][0] == 0: cur = barrier(u, max(cur, lo - 1), need or ["none"])
        if (opt("midb", 0) or F - DA - 1 == ustart[-1]) and (F - DA - 1) in ustart and len(units[ustart.index(F - DA - 1)][0]) == 2 and units[ustart.index(F - DA - 1)][1][0] == 0:
            cur = barrier(1000 + F, max(cur, lo - 1), ["none"])
        for j in range(2): cur = G.place("d", rd(F, j), max(cur, lo + 2 * j), firstuse[F] - 6) + 1
    NU = len(units)
    cur = barrier(NU, cur + 1, ["K0", "K1"])
    kord = [(kb, sl) for sl in range(4) for kb in range(2)]
    for kb, sl in kord: cur = G.place("d", k_read(kb, sl, 0), cur) + 1
    barrier(NU + 1, max(cur + 5, NP), ["none"])
    kpost = []
    for i, (kb, sl) in enumerate(kord):
        lo = NP + 4 * i + 3
        try: cur = G.place("d", k_read(kb, sl, 8192), max(cur, lo)) + 1
        except RuntimeError: kpost.append(k_read(kb, sl, 8192))
    freeg = lambda sl: min(x for x in bars.values() if x >= 4 * lastF[sl])
    def wseq(sl):
        return [("s", "s_add_u32 m0, %s, %d" % (s(S_M0W), wslot(sl) * 16384))] + [("m", x) for x in w_dma(heavy, "w%d" % sl)] + \
               [("s", "s_add_u32 %s, %s, %d\ns_add_u32 %s, %s, %d" % (s(S_WQOFF), s(S_WQOFF), 32 * 8192, s(S_WGOFF), s(S_WGOFF), 32 * 3456))]
    def xseq(sl): return [("m", x_load(sl, qb)) for qb in range(4)] + [("s", "s_add_u32 %s, %s, 4096" % (s(S_XOFF), s(S_XOFF)))]
    def kvseq(which, i):
        return [("s", "s_add_u32 m0, %s, %d\ns_mov_b32 %s, %d" % (s(S_M0K), (L_K if which == "K" else L_V) + i * 8192, s(S_KVOFF), (i + (VSH if which == "V" else 0)) * 8192))] + \
               [("m", kv_dma(which, k, "%s%d" % (which, i))) for k in range(2)]
    NX0 = opt("nx0", 2)
    e("s_mov_b32 %s, 0" % s(S_XOFF))
    q = []
    for sl in range(20):
        for kind in "wx":
            if kind == "w" and sl < NI: continue
            seq = wseq(sl) if kind == "w" else xseq(sl)
            if sl < NX0:
                for k, x in seq: e(x + ("\ns_nop 0" if " m0," in x else ""))
            else:
                lo = 0 if sl < RW else (freeg(sl - RW) if kind == "w" else 4 * lastF[sl - XD] + 3)
                q.append((lo, seq))
    late = {12: [("K", 0), ("K", 1)], 13: [("K", 2), ("K", 3)], 14: [("K", 4), ("K", 5)], 15: [("K", 6), ("K", 7)],
            16: [("V", 0), ("V", 1)], 17: [("V", 2), ("V", 3)], 18: [("V", 4)]}
    side = []
    for sl in range(12, 19):
        for which, i in late[sl]: side.append((freeg(sl), kvseq(which, i)))
    WT = opt("wt", 4)
    if WT:
        for k, sl in enumerate([int(x) for x in opt("wts", "0.1.4.7").split(".")], 1):
            seq = [("s", "s_mov_b32 %s, %d" % (s(S_TMP), k * WT * 32 * 8192)), ("m", "buffer_load_dword %s, %s, %s, %s offen" % (v(V_DUMP), v(V_TC + 1), s(S_WQ, 4), s(S_TMP)))]
            if heavy:
                seq += [("s", "s_mov_b32 %s, %d" % (s(S_TMP), k * WT * 32 * 3456)),
                        ("m", "buffer_load_dword %s, %s, %s, %s offen offset:2048" % (v(V_DUMP), v(V_TC), s(S_WG, 4), s(S_TMP))),
                        ("m", "buffer_load_dword %s, %s, %s, %s offen offset:3072" % (v(V_DUMP), v(V_TC), s(S_WU, 4), s(S_TMP)))]
            side.append((G1(sl) + opt("wtg", 30), seq))
    if opt("tw2", -1) >= 0:
        side.append((G1(opt("tw2", -1)), [("m", "global_load_dword %s, %s, %s" % (v(V_DUMP), v(V_T2), s(ptr(11), 2)))]))
        side.append((G1(opt("tw3", 8)), [("m", "global_load_dword %s, %s, %s" % (v(V_DUMP), v(V_T2 + 1), s(ptr(11), 2)))]))
        side.append((G1(opt("tw4", 10)), [("m", "global_load_dword %s, %s, %s" % (v(V_DUMP), v(V_T2 + 2), s(ptr(9), 2)))]))
    t0 = v(V_TRA + 3)
    if opt("kvt", 12): side.append((G1(opt("kvt", 12)), [("v", "v_min_u32 %s, 15, %s" % (t0, v(L))), ("v", "v_lshlrev_b32 %s, 7, %s" % (t0, t0)),
               ("s", "s_lshl2_add_u32 %s, %s, %s\ns_lshl_b32 %s, %s, 11" % (s(S_TMP), s(S_QT), s(S_WAVE), s(S_TMP), s(S_TMP))),
               ("m", "buffer_load_dword %s, %s, %s, %s offen" % (v(V_DUMP), t0, s(S_K, 4), s(S_TMP))),
               ("s", "s_add_u32 %s, %s, %d" % (s(S_TMP), s(S_TMP), VSH * 8192)),
               ("m", "buffer_load_dword %s, %s, %s, %s offen" % (v(V_DUMP), t0, s(S_V, 4), s(S_TMP)))]))
    side.sort(key=lambda t: t[0])
    MG = opt("pmg", 5) if heavy else opt("lmg", 2)
    g = 0; lastm = -9; vpost = []
    trlast = 0; lastload = 0
    while q or side:
        if side and (not q or side[0][0] <= max(g, q[0][0])): lo, seq = side.pop(0)
        else: lo, seq = q.pop(0)
        g = max(g, lo)
        for k, x in seq:
            if not vpost:
                try:
                    g = G.place(k, x, max(g + 1, lastm + (MG if g > opt("pmg0", 150) or not heavy else 4) if k == "m" else 0))
                    if k == "m": lastm = g
                    if re.search(r";#[xw]\d|;#trs", x) or "v%d," % V_DUMP in x: lastload = g
                    continue
                except RuntimeError: pass
            vpost.append(x + ("\ns_nop 0" if " m0," in x else ""))
    zlim = 4 * lastF[19 - max(NS, 1)] + 4 if opt("zds", 1) else 10 ** 9
    g = 0
    for sl in range(20 - XD, 20):
        lo = 4 * lastF[sl] + 4
        if lo <= zlim: continue
        for i in range(4):
            x = "ds_read_b128 %s, %s" % (a(A_X + 16 * (sl % XD) + 4 * i, 4), v(V_ZA))
            try: g = G.place("d", x, max(g, lo)) + 2
            except RuntimeError: kpost.append(x)
    auto_lgkm(G, eager=opt("peag", 8))
    g = lastload + 2
    for x in gen_tail_setup():
        g = G.place("v" if x.startswith("v_") else "s", x, g + 1)
    setup_end = g
    g = max(g, trlast)
    for x in gen_tail_setup2(): g = G.place("v" if x.startswith("v_") else "s", x, g + 1)
    HZ = 8
    post = []
    def lay(items):
        g = 0; out = []
        for lo, k, x, hi in items:
            if not out:
                try:
                    g = G.place(k, x, max(g + (0 if k == "v" else 1), lo), hi, force=(hi is not None)); continue
                except RuntimeError: pass
            assert hi is None
            out.append(x)
        return out
    its = []
    for sl in range(4):
        for qb in range(4):
            d0 = V_Q + (sl * 4 + qb) * 4
            lo = 4 * lastblk[2 * sl + 1] + 3 + HZ
            hi = NP - 3 if sl < 2 else NP + 8 * sl - 3
            for b in range(2):
                g0 = qacc(2 * sl + b, qb)
                for h in range(2): its.append((min(lo, hi), "v", "v_cvt_pk_bf16_f32 %s, %s, %s" % (v(d0 + 2 * b + h), v(g0 + 2 * h), v(g0 + 2 * h + 1)), hi))
    assert not lay(its)
    its = []
    if heavy:
        U = T
        for fb in range(4):
            for qb in range(4):
                g0 = V_ACCG + (fb * 4 + qb) * 4
                lo = 4 * lastblk[8 + fb] + 3 + HZ
                for r in range(4): its.append((lo, "v", "v_accvgpr_read_b32 %s, %s" % (v(U + r), a(A_ACCU + (fb * 4 + qb) * 4 + r)), None))
                for r in range(4): its.append((lo, "v", "v_max_f32 %s, 0, %s" % (v(g0 + r), v(g0 + r)), None))
                for r in range(4): its.append((lo, "v", "v_mul_f32 %s, %s, %s" % (v(g0 + r), v(g0 + r), v(U + r)), None))
                d0 = V_ACCG + ((fb & ~1) * 4 + qb) * 4 + 2 * (fb & 1)
                for h in range(2): its.append((lo, "v", "v_cvt_pk_bf16_f32 %s, %s, %s" % (v(d0 + h), v(g0 + 2 * h), v(g0 + 2 * h + 1)), None))
                if fb & 1:
                    if qb == 0: its.append((lo, "s", "s_lshl_b32 %s, %s, 13\ns_add_u32 %s, %s, %d" % (s(S_TMP + 6), s(S_FS), s(S_TMP + 6), s(S_TMP + 6), (128 + (fb >> 1)) * 4096), None))
                    its.append((lo, "m", "buffer_store_dwordx4 %s, %s, %s, %s offen offset:%d%s" % (v(d0 - 2, 4), v(V_L16), s(S_AF, 4), s(S_TMP + 6), 1024 * qb, STFL), None))
    post += lay(its)
    its = [(300, "v", x, None) for x in ones_ops(V_TRA + 2)]
    zs = []
    for k in range(XD):
        sl = max(x for x in range(20) if x % XD == k)
        zs.append((4 * lastF[sl] + 4, range(A_X + 16 * k, A_X + 16 * k + 16)))
    for lo, rr in sorted(zs, key=lambda t: t[0]):
        if lo > zlim: break
        for r in rr: its.append((lo, "v", "v_accvgpr_write_b32 %s, 0" % a(r), None))
    post += lay(its)
    if VERBOSE: print("proj", tag, G.pattern(), "| post", len(post), len(vpost), len(kpost))
    e.ext(pre_reads)
    e("s_waitcnt WAITVM{x%d} lgkmcnt(0)" % max(units[0][0]))
    stamp(e, 3)
    nm = 0
    for x in G.lines():
        if x.startswith("v_mfma"):
            if STAMPS and nm % (NP // 5) == 0 and 0 < nm < NP: stamp(e, 18 + nm // (NP // 5))
            if nm == NP: stamp(e, 4)
            nm += 1
        e(x)
    for x in kpost + vpost + post: e(x)
    e("s_mov_b32 %s, %d" % (s(S_KVOFF), 8 * 8192))
    e("s_nop 1")
    for r in range(8): e("v_mov_b32 %s, 0" % v(V_L + r))
    for qb in range(4): e("v_mov_b32 %s, 0xff800000" % v(V_NEGM + 4 * qb))
    e("s_waitcnt WAITVM{K2,K3}")
    e("s_waitcnt WAITVM{V0,V1,K4,K5}")
    r = resolve_vm(e.L)
    NV01.append(int(re.search(r"vmcnt\((\d+)\)", r.pop()).group(1)))
    e0.ext(r)

def kv_preload(e):
    e("s_mov_b32 %s, 0" % s(S_KVOFF))
    for i in range(9):
        if i < 8:
            e("s_add_u32 m0, %s, %d\ns_nop 0" % (s(S_M0K), L_K + i * 8192))
            e(kv_dma("K", 0)); e(kv_dma("K", 1))
        if i >= VSH:
            e("s_add_u32 m0, %s, %d\ns_nop 0" % (s(S_M0K), L_V + (i - VSH) * 8192))
            e(kv_dma("V", 0)); e(kv_dma("V", 1))
        if i < 8: e("s_add_u32 %s, %s, 8192" % (s(S_KVOFF), s(S_KVOFF)))
    e("s_waitcnt vmcnt(0)")

def Sreg(buf, qb, kb): return V_S + buf * 32 + qb * 8 + kb * 4
def Preg(buf, qb): return V_P + buf * 16 + qb * 4

def qk_mfmas(buf, czero=False, full=False):
    out = []
    if opt("qko", "snake") == "qks" and not czero and full:
        for qb in range(4):
            for i in range(2):
                kb = i if qb % 2 == 0 else 1 - i
                d = v(Sreg(buf, qb, kb), 4)
                for n, sl in enumerate(range(4) if i == 0 else range(3, -1, -1)):
                    out.append("%s %s, %s, %s, %s" % (MF, d, a(A_KF + (kb * 4 + sl) * 4, 4), v(V_Q + (sl * 4 + qb) * 4, 4), d if n else v(V_NEGM + 4 * qb, 4)))
        return out
    order = {"qks": [(kb, qb, sl) for kb in range(2) for qb in range(4) for sl in range(4)], "kqs": [(kb, qb, sl) for kb in range(2) for qb in range(4) for sl in range(4)],
             "ksq": [(kb, qb, sl) for kb in range(2) for sl in range(4) for qb in range(4)],
             "snake": [(kb, qb, sl) for kb in range(2) for qb in range(4) for sl in range(4)]}[opt("qko", "snake")]
    for kb, qb, sl0 in order:
                sl = sl0
                d = v(Sreg(buf, qb, kb), 4)
                if opt("qko", "snake") == "snake":
                    first = sl0 == 0
                    sl = sl0 if qb % 2 == 0 else 3 - sl0
                    c = ("0" if czero else v(V_NEGM + 4 * qb, 4)) if first else d
                    out.append("%s %s, %s, %s, %s" % (MF, d, a(A_KF + (kb * 4 + sl) * 4, 4), v(V_Q + (sl * 4 + qb) * 4, 4), c))
                    continue
                c = d if sl else ("0" if czero else v(V_NEGM + 4 * qb, 4))
                out.append("%s %s, %s, %s, %s" % (MF, d, a(A_KF + (kb * 4 + sl) * 4, 4), v(V_Q + (sl * 4 + qb) * 4, 4), c))
    return out

def pv_mfmas(buf, tailmode=False):
    out = []
    for h in range(2):
        out.append("v_smfmac_f32_16x16x64_bf16 %s, %s, %s, %s" % (v(V_L + 4 * h, 4), v(V_ONE, 4), v(Preg(buf, 2 * h), 8), v(V_SIDX)))
    pvo = opt("pvo", "qd2s")
    if pvo == "fake" and not tailmode:
        for h in range(4):
            for i in range(4):
                qb = i if h % 2 == 0 else 3 - i
                o = a(A_O + ((2 * h + buf) * 4 + qb) * 4, 4)
                for d in ((0, 1) if i % 2 == 0 else (1, 0)):
                    out.append("%s %s, %s, %s, %s" % (MF, o, a(A_VF + (2 * h + d) * 4, 4), v(Preg(buf, (qb + 2 * d) % 4), 4), o))
        return out
    if pvo == "fake": pvo = "dq"
    order = {"dq": [(db, qb) for db in range(8) for qb in range(4)],
             "snake": [(db, qb if db % 2 == 0 else 3 - qb) for db in range(8) for qb in range(4)],
             "qd2s": [(2 * h + (d if (i & 1) == 0 else 1 - d), i if h % 2 == 0 else 3 - i) for h in range(4) for i in range(4) for d in range(2)],
             "qd2": [(2 * h + d, qb) for h in range(4) for qb in range(4) for d in range(2)],
             "qd4": [(4 * h + d, qb) for h in range(2) for qb in range(4) for d in range(4)]}[pvo if not tailmode else "dq"]
    for db, qb in order:
            o = a(A_O + (db * 4 + qb) * 4, 4)
            out.append("%s %s, %s, %s, %s" % (MF, o, a(A_VF + db * 4, 4), v(Preg(buf, qb), 4), o))
    return out

def k_read(kb, sl, off, t=0): return "ds_read_b128 %s, %s offset:%d" % (a((A_KF, A_KF1)[t] + (kb * 4 + sl) * 4, 4), v(V_KA + sl), off + kb * 4096)
def v_read(db, j, t): return "ds_read_b64_tr_b16 %s, %s offset:%d" % (a(A_VF + 32 * t + db * 4 + 2 * j, 2), v(V_VA + db), 8192 * t + j * 4096)

def softmax_ops(buf):
    ex = []; cv = []
    for qb in range(4):
        for kb in range(2):
            for r in range(4):
                x = v(Sreg(buf, qb, kb) + r)
                ex.append("v_exp_f32 %s, %s" % (x, x))
            for h in range(2):
                b = Sreg(buf, qb, kb) + 2 * h
                cv.append("v_cvt_pk_bf16_f32 %s, %s, %s" % (v(Preg(buf, qb) + kb * 2 + h), v(b), v(b + 1)))
    return ex, cv

def gen_attention(e):
    T = V_T
    e("ATT_START:")
    stamp(e, 5)
    e("s_barrier")
    for qb in range(4):
        b = Sreg(0, qb, 0)
        e("v_max3_f32 %s, %s, %s, %s" % (v(T + 2 * qb), v(b), v(b + 1), v(b + 2)))
    for qb in range(4):
        b = Sreg(0, qb, 0)
        e("v_max3_f32 %s, %s, %s, %s" % (v(T + 2 * qb), v(T + 2 * qb), v(b + 3), v(V_NEGM + 4 * qb)))
    for n, sw in enumerate(("v_permlane32_swap_b32", "v_permlane16_swap_b32")):
        for qb in range(4): e("v_mov_b32 %s, %s" % (v(T + 2 * qb + 1), v(T + 2 * qb)))
        e("s_nop 0")
        for qb in range(4): e("%s %s, %s" % (sw, v(T + 2 * qb), v(T + 2 * qb + 1)))
        for qb in range(4):
            if n == 0: e("v_max_f32 %s, %s, %s" % (v(T + 2 * qb), v(T + 2 * qb), v(T + 2 * qb + 1)))
            else:
                for r in range(4): e("v_min_f32 %s, -%s, -%s" % (v(V_NEGM + 4 * qb + r), v(T + 2 * qb), v(T + 2 * qb + 1)))
    for qb in range(4):
        for r in range(0, 8, 2): e("v_pk_add_f32 %s, %s, %s" % (v(Sreg(0, qb, 0) + r, 2), v(Sreg(0, qb, 0) + r, 2), v(V_NEGM + 4 * qb, 2)))
    e("s_waitcnt lgkmcnt(0)")

    exE, cvE = softmax_ops(0); exO, cvO = softmax_ops(1)
    smf = lambda t, h: "v_smfmac_f32_16x16x64_bf16 %s, %s, %s, %s" % (v(V_L + 4 * h, 4), v(V_ONE, 4), v(Preg(t, 2 * h), 8), v(V_SIDX))
    def pvm(db, qb, t):
        o = a(A_O + (db * 4 + qb) * 4, 4)
        return "%s %s, %s, %s, %s" % (MF, o, a(A_VF + 32 * t + db * 4, 4), v(Preg(t, qb), 4), o)
    G = Gaps(qk_mfmas(1))
    for i in range(8): G.put(1 + 2 * i, "d", k_read(i // 4, i % 4, 24576, 1))
    for i in range(4): G.put(17 + 2 * i, "d", k_read(0, i, 16384))
    for i in range(4): G.put(31, "d", k_read(1, i, 16384))
    for i, x in enumerate(exE): G.put(i, "e", x)
    for i, x in enumerate(cvE[:4]): G.put(24 + 2 * i, "v", x)
    e.ext(G.lines())
    e.ext(exO[:NOE])
    for sl in range(4): e("v_add_u32 %s, 32768, %s" % (v(V_KA + sl), v(V_KA + sl)))
    e("s_mov_b32 %s, 16384" % s(S_TOG))
    e("s_mov_b32 %s, %d\ns_mov_b32 %s, %d" % (s(S_TMP + 3), 2 * 8192, s(S_TMP + 4), 6 * 8192 + L_V))
    e("s_waitcnt vmcnt(NVWAIT) lgkmcnt(0)\ns_barrier")
    for which, m0, inc in (("K", L_K, 1), ("K", L_K + 8192, 0), ("V", L_V + 5 * 8192, 1)):
        e("s_add_u32 m0, %s, %d\ns_nop 0" % (s(S_M0K), m0))
        e(kv_dma(which, 0)); e(kv_dma(which, 1))
        if inc: e("s_add_u32 %s, %s, 8192" % (s(S_KVOFF), s(S_KVOFF)))
    e("s_mov_b32 %s, %d\ns_cmp_eq_u32 %s, 0\ns_cselect_b32 %s, %d, %s" % (s(S_EVT), EV(27), s(S_WAVE), s(S_EVT), EVT0, s(S_EVT)))
    stamp(e, 6)
    e("s_cmp_lg_u32 %s, 0\ns_cbranch_scc1 NOSIG2" % s(S_RETRY))
    e("s_cmp_ge_u32 %s, 27\ns_cbranch_scc1 LT_INIT" % s(S_FS))
    e("NOSIG2:")
    mf = []
    for t in range(2):
        for qb in range(4):
            for i in range(2):
                kb = i if qb % 2 == 0 else 1 - i
                d = v(Sreg(t, qb, kb), 4)
                for n, sl in enumerate(range(4) if i == 0 else range(3, -1, -1)):
                    mf.append("%s %s, %s, %s, %s" % (MF, d, a((A_KF, A_KF1)[t] + (kb * 4 + sl) * 4, 4), v(V_Q + (sl * 4 + qb) * 4, 4), d if n else v(V_NEGM + 4 * qb, 4)))
    mf += [smf(0, 0), smf(1, 0), smf(1, 1), smf(0, 1)]
    H2 = 68
    for db in range(8):
        for i in range(4):
            qb = 3 - i if db % 2 == 0 else i
            for t in ((0, 1) if i % 2 == 0 else (1, 0)): mf.append(pvm(db, qb, t))
    G = Gaps(mf); end = G.n() - 1
    G.put(1, "b", "s_barrier"); G.put(0, "s", "s_waitcnt vmcnt(16) lgkmcnt(0)")
    NV1 = opt("nv1", 22)
    vrd = [(db, j, t) for db in range(8) for t in range(2) for j in range(2)]
    vg = {}
    eg = {}
    for i in range(NOE, 32): eg[i] = G.put(2 * (i - NOE), "e", exO[i])
    vvg = [int(x) for x in opt("vvg", "3.7.11.15.55").split(".")]
    dgs = [g for g in range(3, 64, 2) if g not in vvg]
    for i in range(NV1):
        db, j, t = vrd[i]; vg[db] = G.put(dgs[i], "d", v_read(db, j, t))
    rd2 = [("v",) + x for x in vrd[NV1:]] + [("k", kb, sl, 0) for kb in range(2) for sl in range(4)] + [("k", kb, sl, 1) for kb in range(2) for sl in range(4)]
    g = 64; kg = {}
    for i, x in enumerate(rd2):
        if x[0] == "v": g = G.place("d", v_read(*x[1:]), g, H2 + 8 * x[1] - 6); vg[x[1]] = g
        else: g = G.place("d", k_read(x[1], x[2], 8192 * x[3], x[3]), g); kg[x[2]] = g
        g += 1 if i < 4 else 2
    def adv(r, base):
        return ["s_add_u32 %s, %s, 8192" % (s(r), s(r)), "s_and_b32 %s, %s, 0xffff" % (s(r), s(r))] + (["s_or_b32 %s, %s, %d" % (s(r), s(r), base)] if base else [])
    last = 0
    for g in (opt("dg1", 54), opt("dg2", 76)):
        for which, r in (("K", S_TMP + 3), ("V", S_TMP + 4)):
            g = G.place("s", "s_add_u32 m0, %s, %s" % (s(S_M0K), s(r)), g)
            for i in range(2): g = G.place("m", kv_dma(which, i), g + opt("dsp", 2))
            g += 1
        for x in ["s_add_u32 %s, %s, 8192" % (s(S_KVOFF), s(S_KVOFF))] + adv(S_TMP + 3, 0) + adv(S_TMP + 4, L_V): g = G.place("s", x, g) + 1
        last = g
    items = [(0, 8 * (i // 4) - 1, cvE[i]) for i in range(4, 16)] + [(eg.get(2 * i + 1, -1) + 1, 32 + 8 * (i // 4) - 1, cvO[i]) for i in range(16)]
    for lo, hi, x in sorted(items, key=lambda t: t[1]): G.place("v", x, lo, hi)
    for i in range(4): G.place("v", cvE[i], end - 5 + opt("c0g", 2))
    g = 56
    xg = 0
    for db in range(8):
        y = max(vg[db], 64)
        while not (G.ds[y] and G.fits(y, "v")): y += 1
        xg = max(xg, G.put(y, "v", "v_xor_b32 %s, %s, %s" % (v(V_VA + db), s(S_TOG), v(V_VA + db))))
    for sl in range(4): xg = max(xg, G.place("v", "v_xor_b32 %s, %s, %s" % (v(V_KA + sl), s(S_TOG), v(V_KA + sl)), kg[sl]))
    for i, x in enumerate(exE + exO[:NOE]): g = G.place("e", x, g, end - 6 if i < 8 else end)
    g = G.place("s", "s_xor_b32 %s, %s, 32768" % (s(S_TOG), s(S_TOG)), xg + 1)
    G.place("s", "s_cmp_lt_u32 %s, %s" % (s(S_KVOFF), s(S_EVT)), max(g, last) + 1)
    auto_lgkm(G, [], loop=True, eager=opt("leag", 8))
    if VERBOSE: print("loop", G.pattern())
    e(".p2align 6\nATT_LOOP:")
    for x in G.lines(): e(x)
    e("s_cbranch_scc1 ATT_LOOP")
    e("s_cmp_lt_u32 %s, %d\ns_cbranch_scc1 ATT_EVT" % (s(S_KVOFF), EVTE))
    e("TAILC0:")
    global LIGHT_LOOP
    LIGHT_LOOP = light_loop(G)
    stamp(e, 7)
    e("s_waitcnt vmcnt(16) lgkmcnt(0)\ns_barrier")
    e("s_cmp_lg_u32 %s, 0\ns_cbranch_scc1 NOPOLLW" % s(S_WAVE))
    e(poll_load(True))
    e("NOPOLLW:")
    vr = [v_read(db, j, 0) for db in range(8) for j in range(2)]
    e.ext(vr)
    e.ext(cvE[4:])
    e("s_nop 0")
    h = E()
    sn2 = lambda q0: [(db, q0 + (i if db % 2 == 0 else 1 - i)) for db in range(8) for i in range(2)]
    mf = [smf(0, 0)] + [pvm(db, qb, 0) for db, qb in sn2(0)] + [smf(0, 1), smf(1, 0)] + [pvm(db, qb, 1) for db, qb in sn2(0)]
    P3 = len(mf)
    mf += [smf(1, 1)]
    for n, (db, qb) in enumerate(sn2(2)):
        for t in ((0, 1) if n % 2 == 0 else (1, 0)): mf.append(pvm(db, qb, t))
    G = Gaps(mf)
    for i in range(16): G.put(i, "d", v_read(i // 2, i % 2, 1))
    for i in range(NOE, 16): G.put(i - NOE + 1, "e", exO[i])
    for i in range(8): G.put(max(2 * i + 3 - NOE, 0) + 1, "v", cvO[i])
    for i in range(16, 32): G.put(i, "e", exO[i])
    for i in range(8, 16): G.put(min(2 * i + 2, P3 - 3), "v", cvO[i])
    pq = [x for sg in range(NPRE_X) for x in t8_a(sg)]
    assert NPRE_X <= 3
    G.put(P3 - 8, "s", "s_waitcnt lgkmcnt(0)\ns_barrier")
    pre, pend = auto_lgkm(G, [asmcheck.I(x, 0, 0).W for x in vr])
    g = 1
    while pq:
        k, x = pq.pop(0)
        if k == "s": G.sc[g].append(x); g += 1
        else: G.va[g].append(x); g += opt("x63", 2) if len(pq) % 3 else 1
    assert g < P3 + 8, g
    pro, grp = o_ops()
    NEG = opt("neg", 5)
    fill = pro[0] + [x for i in range(NEG) for x in grp(i, False)]
    g0 = max(P3 + 1, g); n = G.n() - g0
    for i, x in enumerate(fill): G.va[g0 + (i * n) // len(fill)].append(x)
    if pre is not None: h("s_waitcnt lgkmcnt(%d)" % pre)
    for x in G.lines(): h(x)
    return h.L, NEG

def o_ops():
    T = V_T; t = S_TMP
    Z = 248; C = 252; W = 128
    pro = []
    for hh in range(2):
        e = E()
        for qb in (2 * hh, 2 * hh + 1): e("v_add_f32 %s, %s, %s" % (v(V_L + 2 * qb), v(V_L + 2 * qb), v(V_L + 2 * qb + 1)))
        for qb in (2 * hh, 2 * hh + 1): e("v_rcp_f32 %s, %s" % (v(T + 2 * qb), v(V_L + 2 * qb)))
        if hh == 0:
            for r in range(4): e("v_mov_b32 %s, 0" % v(Z + r))
            for sl in range(4): e("s_lshl_b32 %s, %s, 14" % (s(44), s(S_HEAD)) if sl == 0 else "s_add_u32 %s, %s, %d" % (s(44 + sl), s(44), 4096 * sl))
        else:
            e("v_max3_f32 %s, %s, %s, %s" % (v(T + 8), v(V_L), v(V_L + 2), v(V_L + 4)))
            e("v_max_f32 %s, %s, %s" % (v(T + 8), v(T + 8), v(V_L + 6)))
            e("v_mul_f32 %s, %s, %s" % (v(T + 8), f2u(2.0 ** 64), v(T + 8)))
            e("v_mul_f32 %s, 0, %s" % (v(T + 8), v(T + 8)))
            for qb in range(4): e("v_fma_f32 %s, %s, 0, %s" % (v(T + 8), v(V_L + 2 * qb), v(T + 8)))
        for qb in (2 * hh, 2 * hh + 1): e("v_mov_b32 %s, %s" % (v(T + 2 * qb + 1), v(T + 2 * qb)))
        pro.append(e.L)
    def grp(i, pk):
        e = E()
        sl, qb = (i % 8) // 2, 2 * (i // 8) + i % 2
        d0 = 136 + 4 * (i % 4)
        for b in range(2):
            for r in range(4): e("v_accvgpr_read_b32 %s, %s" % (v(W + 4 * b + r), a(A_O + ((2 * sl + b) * 4 + qb) * 4 + r)))
        if pk:
            for h in range(4): e("v_pk_mul_f32 %s, %s, %s" % (v(W + 2 * h, 2), v(W + 2 * h, 2), v(T + 2 * qb, 2)))
        else:
            for r in range(8): e("v_mul_f32 %s, %s, %s" % (v(W + r), v(W + r), v(T + 2 * qb)))
        for h in range(4): e("v_cvt_pk_bf16_f32 %s, %s, %s" % (v(d0 + h), v(W + 2 * h), v(W + 2 * h + 1)))
        e("buffer_store_dwordx4 %s, %s, %s, %s offen offset:%d%s ;#ost" % (v(d0, 4), v(V_L16), s(S_AF, 4), s(44 + sl), 1024 * qb, STFL))
        e.L.append("s_nop 0\n%s %s, %s, %s, %s" % (MF, v(C, 4), v(Z, 4), v(d0, 4), "0" if i == 0 else v(C, 4)))
        return e.L
    return pro, grp

LT_SS, LT_SD = 44, 48
LT_SO, LT_DO, LT_R = 91, 96, 97
LT_VO, LT_VB, LT_VR, LT_AD = 40, 42, 44, 48
L_TRB = 131072
def light_loop(G):
    import copy
    G = copy.deepcopy(G)
    n = G.n()
    b = [g for g in range(n) if any("s_barrier" in x for x in G.va[g])][0]
    for bb in (b - 1, b): G.sc[bb] = [x.replace("vmcnt(%d)" % (16 + 2 * PWARM), "vmcnt(%d)" % (24 + 2 * PWARM)) for x in G.sc[bb]]
    lastm = max(g for g in range(n) if any(x.startswith("buffer") for x in G.va[g]))
    cmpg = [g for g in range(n) if any(x.startswith("s_cmp_lt_u32 %s" % s(S_KVOFF)) for x in G.sc[g])][-1]
    def lay(seq, g, hi, step=1):
        for k, x in seq:
            if k == "s":
                while not G.fits(g, "s"): g += 1
                G.put(g, "s", x)
            else:
                win = opt("ltw", 4) if k != "m" else opt("ltm", 4)
                g = min(range(g, min(g + win, hi) + 1), key=lambda y: (G.used[y] + (3 if (k == "d" and G.ds[y] and opt("ltd", 0)) else 0), y))
                (G.ds if k == "d" else G.va)[g].append(x); G.used[g] += 1 if k != "m" else 2
            g += step
            assert g <= hi + 1, (x, g, hi)
        return g
    g = lay([("d", "ds_read_b64_tr_b16 %s, %s offset:%d" % (v(LT_AD + 4 * f + 2 * j, 2), v(LT_VR + f), 1024 * j)) for f in range(2) for j in range(2)], b + 1, b + 30, 2)
    g1, g2 = opt("lts1", 44), opt("lts2", 50)
    lay(([("s", "s_waitcnt lgkmcnt(2)")] if g1 < 68 else []) + [("m", "buffer_store_dwordx4 %s, %s, %s, %s offen%s" % (v(LT_AD, 4), v(V_L16), s(LT_SD, 4), s(LT_DO), STFL))], g1, cmpg - 1)
    lay([("m", "buffer_store_dwordx4 %s, %s, %s, %s offen offset:1024%s" % (v(LT_AD + 4, 4), v(V_L16), s(LT_SD, 4), s(LT_DO), STFL)),
         ("s", "s_add_u32 %s, %s, %d" % (s(LT_DO), s(LT_DO), 8 * 10240)),
         ("s", "s_sub_u32 %s, %s, %d\ns_cselect_b32 %s, %s, %s" % (s(S_TMP + 1), s(LT_DO), 184 * 10240, s(LT_DO), s(LT_DO), s(S_TMP + 1)))], g2, cmpg - 1)
    g = lastm + 1
    lay([("s", "s_add_u32 m0, %s, %s" % (s(LT_R), s(S_TMP)))] +
        [("m", "buffer_load_dwordx4 %s, %s, %s offen offset:%d lds" % (v(LT_VO + i), s(LT_SS, 4), s(LT_SO), 1024 * i)) for i in range(2)] +
        [("s", "s_add_u32 %s, %s, %d\ns_add_u32 %s, %s, 2048" % (s(LT_SO), s(LT_SO), 8 * 40960, s(LT_R), s(LT_R))),
         ("s", "s_cmp_eq_u32 %s, 6144\ns_cselect_b32 %s, 0, %s" % (s(LT_R), s(LT_R), s(LT_R)))] +
        [("v", "v_add_u32 %s, %s, %s" % (v(LT_VR + f), s(LT_R), v(LT_VB + f))) for f in range(2)], g, cmpg - 1)
    if VERBOSE: print("lightloop", G.pattern())
    return G.lines()

def gen_events(e):
    L = V_LANE; t = S_TMP
    e("LT_INIT:")
    e("s_sub_u32 %s, %s, 27\ns_lshl_b32 %s, %s, 3\ns_add_u32 %s, %s, %s\ns_lshl2_add_u32 %s, %s, %s" % (s(t), s(S_FS), s(t), s(t), s(t), s(t), s(S_QT), s(t), s(t), s(S_WAVE)))
    e("s_mul_i32 %s, %s, 3277\ns_lshr_b32 %s, %s, 16\ns_mul_i32 %s, %s, 20\ns_sub_u32 %s, %s, %s" % (s(t + 1), s(t), s(t + 1), s(t + 1), s(t + 6), s(t + 1), s(t), s(t), s(t + 6)))
    e("s_mul_i32 %s, %s, 40960\ns_lshl_b32 %s, %s, 6\ns_add_u32 %s, %s, %s" % (s(LT_SO), s(t + 1), s(t + 6), s(t), s(LT_SO), s(LT_SO), s(t + 6)))
    e("s_add_u32 %s, %s, 104\ns_mul_i32 %s, %s, 10240" % (s(LT_DO), s(t + 1), s(LT_DO), s(LT_DO)))
    srd(e, LT_SS, ptr(8), 0, 1728 * 1280)
    e("s_mul_i32 %s, %s, 13108\ns_lshr_b32 %s, %s, 16\ns_mul_i32 %s, %s, %d\ns_lshl_b32 %s, %s, 11\ns_add_u32 %s, %s, %s\ns_add_u32 %s, %s, %d" % (
        s(t + 6), s(t), s(t + 6), s(t + 6), s(t + 6), s(t + 6), WFS - 10240, s(t + 1), s(t), s(t + 6), s(t + 6), s(t + 1), s(t + 6), s(t + 6), WF_OFF))
    srd(e, LT_SD, ptr(11), s(t + 6), (NSLAB - 1) * 10240 + 2048)
    e("s_mul_i32 %s, %s, 6144\ns_add_u32 %s, %s, %d\ns_mov_b32 %s, 0\ns_mov_b32 %s, %d" % (s(t), s(S_WAVE), s(t), s(t), L_TRB, s(LT_R), s(S_EVT), EV(7)))
    e("v_lshrrev_b32 %s, 2, %s\nv_bfe_u32 %s, %s, 4, 1\nv_and_b32 %s, 3, %s" % (v(46), v(L), v(47), v(L), v(48), v(L)))
    e("v_lshlrev_b32 %s, 1, %s\nv_xor_b32 %s, %s, %s\nv_mul_u32_u24 %s, 1280, %s\nv_lshl_add_u32 %s, %s, 4, %s\nv_add_u32 %s, %d, %s" % (
        v(49), v(47), v(49), v(49), v(48), v(LT_VO), v(46), v(LT_VO), v(49), v(LT_VO), v(LT_VO + 1), 16 * 1280 - 1024, v(LT_VO)))
    e("v_lshlrev_b32 %s, 6, %s\nv_lshl_add_u32 %s, %s, 3, %s\nv_lshl_add_u32 %s, %s, 5, %s\nv_add_u32 %s, %s, %s\nv_xor_b32 %s, 32, %s" % (
        v(LT_VB), v(46), v(LT_VB), v(48), v(LT_VB), v(LT_VB), v(47), v(LT_VB), v(LT_VB), s(t), v(LT_VB), v(LT_VB + 1), v(LT_VB)))
    e("v_mov_b32 %s, %s\nv_mov_b32 %s, %s" % (v(LT_VR), v(LT_VB), v(LT_VR + 1), v(LT_VB + 1)))
    e(".p2align 6\nLT_LOOP:")
    for x in LIGHT_LOOP: e(x)
    e("s_cbranch_scc1 LT_LOOP")
    e("s_cmp_lg_u32 %s, %d\ns_cbranch_scc1 LT_E2" % (s(S_KVOFF), EV(7)))
    srd(e, LT_SS, ptr(4), 0, 4096 * 1280)
    e("s_sub_u32 %s, %s, %d\ns_mov_b32 %s, %d\ns_branch LT_LOOP" % (s(LT_SO), s(LT_SO), 56 * 40960, s(S_EVT), EV(13)))
    e("LT_E2:")
    e("s_cmp_lg_u32 %s, %d\ns_cbranch_scc1 LT_E3" % (s(S_KVOFF), EV(13)))
    e("s_mov_b32 %s, %d\ns_cmp_lg_u32 %s, 0\ns_cbranch_scc1 LT_LOOP" % (s(S_EVT), EV(26), s(S_WAVE)))
    set_flag(e, 2)
    e("s_mov_b32 %s, %d\ns_branch LT_LOOP" % (s(S_EVT), EV(23)))
    e("LT_E3:")
    e("s_cmp_lg_u32 %s, %d\ns_cbranch_scc1 LT_END" % (s(S_KVOFF), EV(23)))
    e(poll_load(True))
    e("s_mov_b32 %s, %d\ns_branch LT_LOOP" % (s(S_EVT), EV(26)))
    e("LT_END:")
    e("s_mov_b32 %s, %d\ns_branch ATT_LOOP" % (s(S_EVT), EV(27)))
    def redirect(d, vd, shift, size):
        e("s_sub_u32 %s, %s, %s\ns_add_u32 %s, %s, %s\ns_addc_u32 %s, %s, 0" % (s(t + 6), s(T_BW[0]), s(T_M0W), s(d), s(T_SW), s(t + 6), s(d + 1), s(T_SW + 1)))
        e("s_sub_u32 %s, %s, %d\ns_subb_u32 %s, %s, 0\ns_mov_b32 %s, %d" % (s(d), s(d), shift, s(d + 1), s(d + 1), s(d + 2), size))
        e("v_add_u32 %s, %s, %s\nv_add_u32 %s, %s, %s" % (v(vd), s(S_M0K), v(V_L16), v(vd + 1), s(S_M0K), v(V_L16)))
    e("ATT_EVT:")
    e("s_cmp_lg_u32 %s, %d\ns_cbranch_scc1 ATT_EVT1" % (s(S_KVOFF), EV(27)))
    redirect(S_K, V_KD, 64 * 8192, 72 * 8192)
    e("s_mov_b32 %s, %d\ns_cmp_lg_u32 %s, 0\ns_cbranch_scc1 ATT_LOOP" % (s(S_EVT), EV(29) if NWP == 4 else EVTE, s(S_WAVE)))
    if NWP < 4: e("s_cmp_ge_u32 %s, 27\ns_cselect_b32 %s, %d, %s" % (s(S_FS), s(S_EVT), EV(29), s(S_EVT)))
    e("s_waitcnt vmcnt(16)")
    poll_spin(e, True, None, 2, "EARLY")
    e("s_branch ATT_LOOP")
    e("ATT_EVT1:")
    e("s_cmp_lg_u32 %s, %d\ns_cbranch_scc1 ATT_EVT2" % (s(S_KVOFF), EV(29)))
    if NWP == 4: redirect(S_V, V_VD, 68 * 8192 - 65536, 68 * 8192 + NWP * 20480 - 65536)
    e("s_mov_b32 %s, %d\ns_cmp_lg_u32 %s, 0\ns_cbranch_scc1 ATT_LOOP" % (s(S_EVT), EVTE, s(S_WAVE)))
    e("s_cmp_lt_u32 %s, 27\ns_cbranch_scc1 ATT_LOOP" % s(S_FS))
    set_flag(e, 3)
    e("s_branch ATT_LOOP")
    e("ATT_EVT2:")
    e("s_cmp_lg_u32 %s, %d\ns_cbranch_scc1 ATT_EVT3" % (s(S_KVOFF), EV(3)))
    set_flag(e, 3)
    e("s_mov_b32 %s, %d\ns_branch ATT_LOOP" % (s(S_EVT), EV(25)))
    e("ATT_EVT3:")
    if opt("ctt", 0):
        e("s_getpc_b64 %s\nCODE2:\ns_sub_u32 %s, %s, CODE2-TAILC0\ns_subb_u32 %s, %s, 0" % (s(t + 6, 2), s(t + 6), s(t + 6), s(t + 7), s(t + 7)))
        e("s_lshr_b32 %s, s2, 3\ns_lshl_b32 %s, %s, 10" % (s(t + 1), s(t + 1), s(t + 1)))
        e("v_min_u32 %s, 7, %s\nv_lshlrev_b32 %s, 7, %s\nv_add_u32 %s, %s, %s\nv_min_u32 %s, K_END-TAILC0, %s" % (v(V_PL), v(L), v(V_PL), v(V_PL), v(V_PL), s(t + 1), v(V_PL), v(V_PL), v(V_PL)))
        e("global_load_dword %s, %s, %s" % (v(V_DUMP), v(V_PL), s(t + 6, 2)))
    e(poll_load(True))
    e("s_mov_b32 %s, %d\ns_branch ATT_LOOP" % (s(S_EVT), EV(27)))
assert all((g * 3277) >> 16 == g // 20 for g in range(160)) and all((c * 13108) >> 16 == c // 5 for c in range(40))

K_SX, K_SO = S_WU, S_X
T_SA, T_SW, T_XS = S_T, S_WF, S_WQ
T_XO = S_WG
T_TAG = S_WG + 3
T_M0W, T_OA, T_OW = 88, 89, 90
T_BA, T_BW = (S_XOFF, S_WQOFF), (S_WGOFF, S_M0W)
K_FLG = 95
KV_XO = 63; KV_X = 8
TV_WR, TV_L4K, TV_TAG, TV_OW, TV_OR = 60, 61, 62, 3, 4
XPB = 12288
REUSE = 1
COAL = opt("coal", 1)
NSD, NSG = 7, 23
RW8, RA8, RF8 = 6, 5, 10
L_OWN = [122880, 0]

def join_scalar(lines):
    out = []
    for x in lines:
        if x.startswith(("s_addc", "s_cselect")): out[-1] += "\n" + x
        else: out.append(x)
    return out

def gen_tail_setup():
    e = E()
    L = V_LANE; t = S_TMP
    R, Cc, KQ = t + 3, t + 4, t + 5
    e("s_bfe_u32 %s, s2, 0x10002\ns_lshl_b32 %s, %s, 3\ns_lshr_b32 %s, s2, 5\ns_add_u32 %s, %s, %s" % (s(R), s(R), s(R), s(t), s(R), s(R), s(t)))
    e("s_bfe_u32 %s, s2, 0x20003\ns_and_b32 %s, s2, 3" % (s(Cc), s(KQ)))
    e("s_lshr_b32 %s, %s, 1\ns_lshl1_add_u32 %s, %s, %s\ns_lshl2_add_u32 %s, %s, %s\ns_mul_i32 %s, %s, %d" % (s(t), s(KQ), s(t), s(R), s(t), s(t), s(t), s(S_WAVE), s(t), s(t), 16 * 1280))
    e("s_and_b32 %s, %s, 1\ns_lshl1_add_u32 %s, %s, %s\ns_mul_i32 %s, %s, 160\ns_add_u32 %s, %s, %s" % (s(t + 1), s(KQ), s(t + 1), s(Cc), s(t + 1), s(t + 1), s(t + 1), s(t), s(t), s(t + 1)))
    srd(e, K_SX, ptr(0), s(t), 15 * 1280 + 160)
    srd(e, K_SO, ptr(9), s(t), 15 * 1280 + 160)
    e("v_and_b32 %s, 15, %s\nv_mul_u32_u24 %s, 1280, %s\nv_lshrrev_b32 %s, 4, %s\nv_lshl_add_u32 %s, %s, 3, %s" % (v(KV_XO), v(L), v(KV_XO), v(KV_XO), v(52), v(L), v(KV_XO), v(52), v(KV_XO)))
    e("s_lshr_b32 %s, %s, 1\ns_lshl2_add_u32 %s, %s, %s\ns_lshl_b32 %s, %s, %d" % (s(K_FLG), s(R), s(K_FLG), s(K_FLG), s(KQ), s(K_FLG), s(K_FLG), FSH + 3))
    if REP: e("s_and_b32 %s, s2, 7\ns_lshl_b32 %s, %s, 15\ns_add_u32 %s, %s, %s" % (s(t), s(t), s(t), s(K_FLG), s(K_FLG), s(t)))
    e("s_mul_i32 %s, %s, 7\ns_add_u32 %s, %s, 64\ns_lshl_b32 %s, %s, 13\ns_mul_i32 %s, %s, 20480" % (s(t), s(KQ), s(t), s(t), s(T_BA[0]), s(t), s(T_BW[0]), s(t)))
    e("s_lshl_b32 %s, %s, 17\ns_mul_i32 %s, %s, %d" % (s(T_BA[1]), s(KQ), s(T_BW[1]), s(KQ), 16 * 20480))
    e("s_lshl2_add_u32 %s, %s, %s\ns_mul_i32 %s, %s, %d\ns_add_u32 %s, %s, %d" % (s(t), s(R), s(Cc), s(t), s(t), XGS, s(t), s(t), XP_OFF))
    srd(e, T_XS, ptr(11), s(t), 12 * XPB)
    for ch in range(2):
        d = T_XO + ch
        e("s_and_b32 %s, %s, 2\ns_add_u32 %s, %s, %d\ns_xor_b32 %s, %s, %s\ns_mul_i32 %s, %s, 3\ns_add_u32 %s, %s, %s\ns_sub_u32 %s, %s, 1" % (
            s(t), s(S_WAVE), s(t), s(t), ch, s(t + 1), s(t), s(KQ), s(t), s(t), s(t), s(t), s(t + 1), s(t), s(t)))
        e("s_mul_i32 %s, %s, %d\ns_and_b32 %s, %s, 1\ns_mul_i32 %s, %s, 6144\ns_add_u32 %s, %s, %s" % (s(t), s(t), XPB, s(d), s(S_WAVE), s(d), s(d), s(d), s(d), s(t)))
        e("s_cmp_eq_u32 %s, 0\ns_cselect_b32 %s, 0x1000000, %s" % (s(t + 1), s(d), s(d)))
    if PWARM:
        e("s_lshl2_add_u32 %s, %s, %s\ns_mul_i32 %s, %s, %d\ns_lshl_b32 %s, %s, 14\ns_add_u32 %s, %s, %s" % (s(t), s(S_QT), s(S_WAVE), s(t), s(t), NSLAB * 4096, s(t + 1), s(S_HEAD), s(t), s(t), s(t + 1)))
        e("v_mov_b32 %s, %s" % (v(V_PW), s(t)))
        for i, o in ((1, 6144), (2, 10240)):
            e("s_add_u32 %s, %s, %d\nv_writelane_b32 %s, %s, %d\nv_writelane_b32 %s, %s, %d" % (s(t + 1), s(t), o, v(V_PW), s(t + 1), 2 * i, v(V_PW), s(t + 1), 2 * i + 1))
        e("s_lshl2_add_u32 %s, %s, %s\ns_mul_i32 %s, %s, %d\ns_add_u32 %s, %s, %d" % (s(t + 2), s(R), s(Cc), s(t + 2), s(t + 2), 24 * XPB, s(t + 2), s(t + 2), XP_OFF))
        for m in range(2):
            for ch in range(2):
                i = 3 + 2 * m + ch
                e("s_add_u32 %s, %s, %s\ns_add_u32 %s, %s, %d" % (s(t + 1), s(t + 2), s(T_XO + ch), s(t + 1), s(t + 1), m * 12 * XPB))
                e("s_cmp_eq_u32 %s, 0x1000000\ns_cselect_b32 %s, %s, %s" % (s(T_XO + ch), s(t + 1), s(t), s(t + 1)))
                e("v_writelane_b32 %s, %s, %d\nv_writelane_b32 %s, %s, %d" % (v(V_PW), s(t + 1), 2 * i, v(V_PW), s(t + 1), 2 * i + 1))
        e("v_min_u32 %s, 14, %s" % (v(V_T), v(L)))
        L = V_T
        e("v_and_b32 %s, 1, %s\nv_lshl_add_u32 %s, %s, 7, %s\nv_subrev_u32 %s, 1280, %s" % (v(V_T), v(L), v(V_PW), v(V_T), v(V_PW), v(V_PW), v(V_PW)))
        L = V_LANE
    e("s_mul_i32 %s, %s, %d\ns_mul_i32 %s, %s, 3072\ns_add_u32 %s, %s, %s" % (s(T_XO + 2), s(KQ), 3 * XPB, s(t), s(S_WAVE), s(T_XO + 2), s(T_XO + 2), s(t)))
    e("s_add_u32 %s, %s, 0x10000\ns_and_b32 %s, %s, 0x1fff0000\ns_or_b32 %s, %s, 0x40000000\nv_mov_b32 %s, %s" % (s(t), s(S_EPOCH), s(t), s(t), s(T_TAG), s(t), v(TV_TAG), s(T_TAG)))
    e("s_and_b32 %s, %s, 1\ns_mul_i32 %s, %s, 10240\nv_add_u32 %s, %s, %s" % (s(t), s(S_WAVE), s(t), s(t), v(TV_OW), s(t), v(V_L16)))
    e("s_mul_i32 %s, %s, 5120\nv_add_u32 %s, %s, %s" % (s(t), s(S_WAVE), v(TV_OR), s(t), v(V_L16)))
    e("s_lshr_b32 %s, %s, 1\ns_lshl1_add_u32 %s, %s, %s\ns_mul_i32 %s, %s, %d" % (s(t), s(S_WAVE), s(t), s(R), s(t), s(t), s(t), AFS))
    e("s_and_b32 %s, %s, 1\ns_lshl_b32 %s, %s, 11\ns_add_u32 %s, %s, %s" % (s(t + 1), s(S_WAVE), s(t + 1), s(t + 1), s(t), s(t), s(t + 1)))
    srd(e, T_SA, ptr(11), s(t), NSLAB * 4096 - 2048)
    e("s_mul_i32 %s, %s, 5120" % (s(T_M0W), s(S_WAVE)))
    e("s_mul_i32 %s, %s, %d\ns_add_u32 %s, %s, %s\ns_add_u32 %s, %s, %d" % (s(t), s(Cc), WFS, s(t), s(t), s(T_M0W), s(t), s(t), WF_OFF))
    return join_scalar(e.L)

def gen_tail_setup2():
    e = E()
    srd(e, T_SW, ptr(11), s(S_TMP), 90 * 20480 + 5120)
    e("v_mov_b32 %s, %s\nv_add_u32 %s, 4096, %s" % (v(TV_WR), v(V_L16), v(TV_L4K), v(V_L16)))
    return join_scalar(e.L)

def t8_w(sg):
    base = (sg % RW8) * 20480; tag = "D%d" % sg
    m, i = (0, sg) if sg < NSD else (1, sg - NSD)
    W = lambda vo, off: ("m", "buffer_load_dwordx4 %s, %s, %s offen offset:%d%s lds ;#%s" % (v(vo), s(T_SW, 4), s(T_OW), off, LDFL, tag))
    return [("s", "s_add_u32 %s, %s, %d\ns_add_u32 m0, %s, %d" % (s(T_OW), s(T_BW[m]), i * 20480, s(T_M0W), base)),
            W(V_L16, 0), W(V_L16, 1024), W(V_L16, 2048), W(V_L16, 3072),
            ("s", "s_add_u32 m0, %s, %d" % (s(T_M0W), base + 4096)), W(TV_L4K, 0)]
def t8_af(sg, half, j): return a((192, 208, 224, 32, 48)[sg % RA8] + half * 8 + j * 4, 4)
def t8_a(sg):
    m, i = (0, sg) if sg < NSD else (1, sg - NSD)
    l = [("s", "s_add_u32 %s, %s, %d" % (s(T_OA), s(T_BA[m]), i * 8192))]
    for half in range(2):
        for j in range(2):
            l.append(("m", "buffer_load_dwordx4 %s, %s, %s, %s offen offset:%d%s ;#A%d" % (t8_af(sg, half, j), v(TV_L4K if half else V_L16), s(T_SA, 4), s(T_OA), j * 1024, LDFL, sg)))
    return l
def t8_wf(F):
    k = F % RF8
    return a(4 * k if k < 8 else 240 + 4 * (k - 8), 4)
def t8_read(F):
    sg, f = F // 20, F % 20
    if opt("t8c", 1): f = (f & 1) * 10 + (f >> 1)
    return "ds_read_b128 %s, %s offset:%d" % (t8_wf(F), v(TV_WR), (sg % 3) * 20480 + f * 1024)
def t8_acc(m, n10, j):
    i = n10 * 2 + j
    if m == 0: return 128 + 4 * i
    return 64 + 4 * i if i < 16 else 208 + 4 * (i - 16)
NWP = opt("nwp", 4)
NPRE_X = opt("nprex", 2)
NPRE_G = opt("npreg", 2)

def cond_lines(lines): return [("@" + x) if x.startswith("buffer") else x for x in lines]

def publish(m):
    out = []; n = 0
    for ch in range(2):
        if m == 1 and REUSE:
            t = S_TMP
            out.append(("s", "s_and_b32 %s, s2, 3\ns_and_b32 %s, %s, 2\ns_sub_u32 %s, %s, %s\ns_sub_u32 %s, %s, %d\ns_mul_i32 %s, %s, %d\ns_add_u32 %s, %s, %s" % (
                s(t), s(t + 1), s(S_WAVE), s(t), s(t), s(t + 1), s(t), s(t), ch, s(t), s(t), 3 * XPB, s(t + 2), s(T_XO + ch), s(t))))
        else:
            out.append(("s", "s_add_u32 %s, %s, %d" % (s(S_TMP + 2), s(T_XO + ch), m * 12 * XPB)))
        for j in range(2):
            vals = [t8_acc(m, 5 * ch + nb, j) + k for nb in range(5) for k in range(4)]
            pb = (40, 240)[n % 2]; n += 1
            for gi in range(3):
                vs = vals[7 * gi:7 * gi + 7]
                if len(vs) < 7: vs = vs + [TV_TAG]
                for h in range(3): out.append(("v", "v_cvt_pk_bf16_f32 %s, %s, %s" % (v(pb + 4 * gi + h), v(vs[2 * h]), v(vs[2 * h + 1]))))
                out.append(("v", "v_cvt_pk_bf16_f32 %s, %s, %s" % (v(pb + 4 * gi + 3), v(vs[6]), v(TV_TAG))))
                off = j * 3072 + gi * 1024
                out.append(("m", "buffer_store_dwordx4 %s, %s, %s, %s offen offset:%d%s ;#xst%d" % (v(pb + 4 * gi, 4), v(TV_L4K if off >= 4096 else V_L16), s(T_XS, 4), s(S_TMP + 2), off % 4096, STFL, m)))
    return out
def own_write(m):
    l = []
    if L_OWN[m]: l.append("v_add_u32 %s, %d, %s" % (v(52), L_OWN[m], v(TV_OW)))
    ar = v(52) if L_OWN[m] else v(TV_OW)
    for ch in range(2):
        l.append("s_cmp_lg_u32 %s, 0x1000000\ns_cbranch_scc1 NOOWN%d%d" % (s(T_XO + ch), m, ch))
        for j in range(2):
            for nb in range(5): l.append("ds_write_b128 %s, %s offset:%d" % (ar, v(t8_acc(m, 5 * ch + nb, j), 4), (j * 5 + nb) * 1024))
        l.append("NOOWN%d%d:" % (m, ch))
    return l
XR = [128, 64]; OWR = [164, 184]
T_SL = 72
def xloads(m):
    l = []
    for i in range(3):
        if m == 1 and REUSE: l.append(("s", "s_mov_b32 %s, %s" % (s(S_TMP + 3), s(T_SL + i))))
        else: l.append(("s", "s_add_u32 %s, %s, %d" % (s(S_TMP + 3), s(T_XO + 2), m * 12 * XPB + i * XPB)))
        for k in range(3): l.append(("m", "buffer_load_dwordx4 %s, %s, %s, %s offen offset:%d%s ;#xr%d" % (v(XR[m] + (i * 3 + k) * 4, 4), v(V_L16), s(T_XS, 4), s(S_TMP + 3), k * 1024, LDFL, m)))
    return l
def xcheck(e, m, first_wait):
    t = S_TMP
    e("s_mov_b32 %s, 0" % s(t + 7))
    e(first_wait)
    e("XCHK%d:" % m)
    for i in range(9): e("v_xor_b32 %s, %s, %s" % (v(20 + i), s(T_TAG), v(XR[m] + 4 * i + 3)))
    for i in range(4): e("v_or3_b32 %s, %s, %s, %s" % (v(20), v(20), v(21 + 2 * i), v(22 + 2 * i)))
    e("v_cmp_lt_u32 vcc, 0xffff, %s" % v(20))
    e("s_add_u32 %s, %s, 1" % (s(t + 7), s(t + 7)))
    e("s_cmp_eq_u64 vcc, 0\ns_cbranch_scc1 XOK%d" % m)
    e("s_cmp_ge_u32 %s, 0x40000\ns_cbranch_scc1 XOK%d" % (s(t + 7), m))
    e("s_sleep %d" % opt("xslp", 4))
    for x in cond_lines([x for _, x in xloads(m)]): e(x)
    e("s_waitcnt vmcnt(0)\ns_branch XCHK%d" % m)
    e("XOK%d:" % m)
def xsum(e, m, nb):
    o = OWR[m] + 4 * nb
    for i in range(3):
        for k in range(4):
            idx = nb * 4 + k; gi, pos = idx // 7, idx % 7
            src = XR[m] + (i * 3 + gi) * 4 + pos // 2
            e(("v_and_b32 %s, 0xffff0000, %s" if pos & 1 else "v_lshlrev_b32 %s, 16, %s") % (v(20 + 4 * i + k), v(src)))
    for h in range(2):
        e("v_pk_add_f32 %s, %s, %s" % (v(o + 2 * h, 2), v(o + 2 * h, 2), v(20 + 2 * h, 2)))
        e("v_pk_add_f32 %s, %s, %s" % (v(24 + 2 * h, 2), v(24 + 2 * h, 2), v(28 + 2 * h, 2)))
    for h in range(2): e("v_pk_add_f32 %s, %s, %s" % (v(o + 2 * h, 2), v(o + 2 * h, 2), v(24 + 2 * h, 2)))

CV_G, CV_L, CV_X, LROW, L_FIN = 8, 11, 224, 336, 20480
def gen_t8(e):
    t = S_TMP
    mf = []
    NF = 20 * NSG
    for F in range(NF):
        sg, f = F // 20, F % 20
        m = 0 if sg < NSD else 1
        if opt("t8c", 1):
            j = f & 1; F0 = F - j
            d = v(t8_acc(m, f >> 1, j), 4)
            for i, half in enumerate((0, 1) if j == 0 else (1, 0)):
                mf.append("%s %s, %s, %s, %s" % (MF, d, t8_wf(F0 + half), t8_af(sg, half, j), "0" if (sg in (0, NSD) and i == 0) else d))
            continue
        for j in range(2):
            d = v(t8_acc(m, f % 10, j), 4)
            mf.append("%s %s, %s, %s, %s" % (MF, d, t8_wf(F), t8_af(sg, f // 10, j), "0" if (sg in (0, NSD) and f < 10) else d))
    G = Gaps(mf)
    DA = opt("t8d", 8)
    SIGS = opt("sigs", 2); CKS = opt("cks", 6); PLS = CKS - opt("polld", 1)
    bars = {}
    cur = 0
    for F in range(DA, NF):
        sg, f = F // 20, F % 20
        lo = 2 * (F - DA)
        if f == 0:
            if sg % 3 == 0:
                d = 61440 if sg % 6 == 3 else -61440
                G.place("v", ("v_add_u32 %s, %d, %s" % (v(TV_WR), d, v(TV_WR))) if d > 0 else ("v_subrev_u32 %s, %d, %s" % (v(TV_WR), -d, v(TV_WR))), cur - 1, cur - 1)
            pre = E(); post = E()
            if sg == CKS:
                stamp(pre, 11)
                pre("s_cmp_lg_u32 %s, 0\ns_cbranch_scc1 SPUN_O\ns_waitcnt SINCE{p3}" % s(S_WAVE))
                poll_spin(pre, False, s(K_FLG), 4, "O")
                stamp(post, 12)
            if sg == SIGS:
                post("s_cmp_lg_u32 %s, 0\ns_cbranch_scc1 NOSIG3" % s(S_WAVE))
                set_flag(post, 4)
                post("s_cmp_lg_u32 s2, 0\ns_cbranch_scc1 NOSIG3")
                post("s_add_u32 %s, %s, 0x10001\ns_mov_b64 exec, 1\nv_mov_b32 %s, %s\ns_mov_b32 %s, %d" % (s(t + 7), s(S_EPOCH), v(V_PL + 1), s(t + 7), s(t + 6), EP_OFF))
                post("buffer_store_dword %s, off, %s, %s sc1\ns_mov_b64 exec, -1" % (v(V_PL + 1), s(S_FL, 4), s(t + 6)))
                post("NOSIG3:")
                stamp(post, 10)
            if sg == PLS:
                post("s_cmp_lg_u32 %s, 0\ns_cbranch_scc1 NOPOLL3" % s(S_WAVE))
                post(poll_load(False, s(K_FLG)))
                post("NOPOLL3:\nMARK p3")
            b = G.place("b", "\n".join(cond_lines(pre.L) + ["s_barrier"] + cond_lines(post.L)), max(cur, lo - 1))
            lateA = NSD <= sg < NSD + opt("latea", 2)
            G.put(b, "s", "s_waitcnt WAITVM{D%d%s%s}" % (sg, "" if lateA else ",A%d" % sg, ",ost" if sg == SIGS else ""))
            if lateA: G.put(40 * sg - 1, "s", "s_waitcnt WAITVM{A%d}" % sg)
            bars[sg] = b; cur = b + 1
        cur = G.place("d", t8_read(F), max(cur, lo)) + 1
    qw = [(t8_w(sg), bars[sg - RW8 + 2] if sg >= RW8 else 0, sg) for sg in range(max(NPRE_G, NWP), NSG)]
    qa = [(t8_a(sg), max(40 * (sg - RA8 + 1) if sg >= RA8 else 0, bars[CKS] if sg >= NSD else 0), sg) for sg in range(NPRE_G, NSG)]
    DP = opt("dpub", 1)
    side = []
    if DP:
        side.append((publish(0), 40 * NSD + 8 + opt("dpd", 8)))
        side.append((xloads(0), 40 * opt("dld", 20)))
    if COAL:
        seq = []
        for i in range(3):
            seq += [("v", "v_add_u32 %s, %d, %s" % (v(CV_G + i), 64 * i, v(V_LANE))), ("v", "v_mul_u32_u24 %s, 6554, %s" % (v(36), v(CV_G + i))), ("v", "v_lshrrev_b32 %s, 16, %s" % (v(36), v(36))),
                    ("v", "v_lshlrev_b32 %s, 5, %s" % (v(CV_L + i), v(CV_G + i))), ("v", "v_mad_u32_u24 %s, %s, %d, %s" % (v(CV_L + i), v(36), LROW - 320, v(CV_L + i))),
                    ("v", "v_mul_u32_u24 %s, 1120, %s" % (v(36), v(36))), ("v", "v_lshl_add_u32 %s, %s, 4, %s" % (v(CV_G + i), v(CV_G + i), v(36))),
                    ("m", "buffer_load_dwordx4 %s, %s, %s, 0 offen ;#xx" % (v(CV_X + 4 * i, 4), v(CV_G + i), s(K_SX, 4)))]
        side.append((seq, 40 * opt("xld", 19)))
    else:
        side.append(([("m", "buffer_load_dwordx2 %s, %s, %s, 0 offen offset:%d ;#xx" % (v(KV_X + 2 * nb, 2), v(KV_XO), s(K_SX, 4), nb * 32)) for nb in range(5)], 40 * opt("xld", 19)))
    side.sort(key=lambda x: x[1])
    MG = opt("mg", 4)
    g = 0; lastm = -9
    while qw or qa:
        c = [x for x in (qw, qa) if x]
        c.sort(key=lambda x: (max(x[0][1], g), x[0][2]))
        seq, lo, _ = c[0].pop(0)
        g = max(g, lo)
        for k, x in seq:
            g = G.place(k, x, max(g + 1, lastm + MG if k == "m" else 0))
            if k == "m": lastm = g
    for seq, lo in side:
        g = lo; lastm = -99
        for k, x in seq:
            g = G.place(k, x, max(g + (0 if k == "v" else 1), lastm + (opt("smg", 24) if "xst" in x else 6) if k == "m" else 0))
            if k == "m": lastm = g
        if "xst0" in seq[-1][1]:
            G.va[g + 1].append("\n".join(own_write(0))); pubend = g + 1
    if DP: assert pubend < 40 * opt("dld", 20) - 40
    auto_lgkm(G, eager=opt("eag", 8))
    if VERBOSE: print("t8", G.pattern())
    for F in range(DA): e(t8_read(F))
    e("s_waitcnt lgkmcnt(0)")
    nm = 0
    for x in G.lines():
        if x.startswith("v_mfma"):
            if nm == 40 * NSD: stamp(e, 13)
            if STAMPS and opt("t8st", 0) and nm > 40 * NSD and (nm - 40 * NSD) % 160 == 0: stamp(e, 25 + (nm - 40 * NSD) // 160)
            nm += 1
        e(x)

def gen_tail(e0, head):
    head, neg = head
    e = E(); e.ext(head)
    T = V_T; t = S_TMP
    stamp(e, 8)
    C = 252
    W = T + 12
    wq = [x for sg in range(NPRE_X, NPRE_G) for x in (t8_w(sg) if sg >= NWP else []) + t8_a(sg)]
    def wsome(n):
        while wq and n > 0:
            k, x = wq.pop(0); n -= (k == "m")
            e(x + ("\ns_nop 0" if k == "s" else ""))
    wsome(opt("wpre", 0))
    pro, grp = o_ops()
    for i in range(neg, 16):
        if i == 8: e.ext(pro[1])
        for x in grp(i, True): e(x)
        wsome(opt("wpg", 1))
    wsome(99)
    e("s_nop 7")
    e("v_cmp_u_f32 vcc, %s, %s" % (v(T + 8), v(C)))
    e("s_cmp_lg_u64 vcc, 0\ns_cselect_b32 %s, 1, 0" % s(t))
    e("v_mov_b32 %s, %s" % (v(W), s(t)))
    e("s_lshl_b32 %s, %s, 2\ns_add_u32 %s, %s, %d" % (s(t + 1), s(S_WAVE), s(t + 1), s(t + 1), L_MISC))
    e("v_mov_b32 %s, %s\nv_mov_b32 %s, %d" % (v(W + 1), s(t + 1), v(W + 2), L_MISC))
    e("ds_write_b32 %s, %s" % (v(W + 1), v(W)))
    e("s_waitcnt WAITVM{D0,A0} lgkmcnt(0)")
    e("s_cmp_lg_u32 %s, 0\ns_cbranch_scc1 SPUN_EARLY3" % s(S_WAVE))
    w0 = E(); poll_spin(w0, True, None, 3, "EARLY3")
    for x in cond_lines(w0.L): e(x)
    e("v_min_u32 %s, 7, %s\nv_lshlrev_b32 %s, %d, %s" % (v(V_PL + 3), v(V_LANE), v(V_PL + 3), FSH, v(V_PL + 3)))
    e("s_barrier")
    e("ds_read_b128 %s, %s" % (v(W + 4, 4), v(W + 2)))
    t8 = E(); gen_t8(t8)
    i0 = t8.L.index("s_waitcnt lgkmcnt(0)")
    e.ext(t8.L[:i0 + 1])
    e("v_or3_b32 %s, %s, %s, %s\nv_or_b32 %s, %s, %s\ns_nop 0" % (v(W + 4), v(W + 4), v(W + 5), v(W + 6), v(W + 4), v(W + 4), v(W + 7)))
    e("v_readfirstlane_b32 %s, %s" % (s(t), v(W + 4)))
    e("s_nop 3\ns_andn2_b32 %s, %s, %s" % (s(t), s(t), s(S_RETRY)))
    e("s_cbranch_scc1 ATT_RETRY")
    stamp(e, 9)
    e.ext(t8.L[i0 + 1:])
    stamp(e, 14)
    if REUSE:
        xcheck(e, 0, "s_waitcnt WAITVM{xr0,xx}")
        e("s_barrier")
        e("s_xor_b32 %s, %s, 0x80000000\nv_mov_b32 %s, %s" % (s(T_TAG), s(T_TAG), v(TV_TAG), s(T_TAG)))
    else:
        e("s_nop 6")
    for k, x in publish(1): e(x)
    stamp(e, 23)
    for x in own_write(1): e(x)
    e("v_add_u32 %s, %d, %s" % (v(52), L_OWN[0], v(TV_OR)))
    if REUSE:
        for i in range(3):
            e("s_and_b32 %s, s2, 3\ns_xor_b32 %s, %s, %d\ns_sub_u32 %s, %s, %s\ns_mul_i32 %s, %s, %d\ns_add_u32 %s, %s, %s\ns_add_u32 %s, %s, %d" % (
                s(t), s(t + 1), s(t), i + 1, s(t), s(t + 1), s(t), s(t), s(t), 3 * XPB, s(t), s(t), s(T_XO + 2), s(T_SL + i), s(t), i * XPB))
    e("s_waitcnt lgkmcnt(0)")
    e("s_barrier")
    for nb in range(5): e("ds_read_b128 %s, %s offset:%d" % (v(OWR[0] + 4 * nb, 4), v(52), nb * 1024))
    for nb in range(5): e("ds_read_b128 %s, %s offset:%d" % (v(OWR[1] + 4 * nb, 4), v(TV_OR), L_OWN[1] + nb * 1024))
    if REUSE: e("s_waitcnt lgkmcnt(0)")
    else: xcheck(e, 0, "s_waitcnt WAITVM{xr0,xx} lgkmcnt(0)")
    GG = 100; XU = 204
    e("v_mov_b32 %s, %s" % (v(36), f2u(1.0 / DSC)))
    MP0, MP1 = opt("mp0", 2), opt("mp1", 4)
    e("v_mov_b32 %s, %s\nv_writelane_b32 %s, %s, 0\nv_writelane_b32 %s, %s, 1\ns_movk_i32 %s, %d\ns_mov_b32 %s, 0" % (v(38), s(T_SL + 2), v(38), s(T_SL), v(38), s(T_SL + 1), s(t + 4), 2048 + 1008 + 12, s(t + 5)))
    PLD = "@buffer_load_dword %s, %s, %s, %s offen%s" % (v(37), v(38), s(T_XS, 4), s(t + 4), LDFL)
    for nb in range(5):
        if nb == MP0 and MP1 < 9: e(PLD)
        if nb == MP1:
            e("s_waitcnt vmcnt(0)")
            e("v_xor_b32 %s, %s, %s\nv_cmp_lt_u32 vcc, 0xffff, %s" % (v(37), s(T_TAG), v(37), v(37)))
            e("s_cmp_lg_u64 vcc, 0\ns_cbranch_scc1 NOEARLY")
            for x in cond_lines([x for _, x in xloads(1)]): e(x)
            e("s_mov_b32 %s, 1\nNOEARLY:" % s(t + 5))
        d = OWR[0] + 4 * nb; gq = GG + 4 * nb
        xsum(e, 0, nb)
        for k in range(4): e("v_mul_f32 %s, %s, %s" % (v(gq + k), f2u(-math.log2(math.e) * DSC), v(d + k)))
        for k in range(4): e("v_exp_f32 %s, %s" % (v(gq + k), v(gq + k)))
        e("s_nop 0")
        for k in range(4): e("v_fma_f32 %s, %s, %s, %s" % (v(gq + k), v(gq + k), v(36), v(36)))
        for k in range(4): e("v_rcp_f32 %s, %s" % (v(gq + k), v(gq + k)))
        if not COAL:
            for h in range(2):
                e("v_lshlrev_b32 %s, 16, %s" % (v(XU + 4 * nb + 2 * h), v(KV_X + 2 * nb + h)))
                e("v_and_b32 %s, 0xffff0000, %s" % (v(XU + 4 * nb + 2 * h + 1), v(KV_X + 2 * nb + h)))
        else: e("s_nop 0")
        for k in range(4): e("v_mul_f32 %s, %s, %s" % (v(gq + k), v(gq + k), v(d + k)))
    if COAL:
        XU = 128
        for i in range(12):
            e("v_lshlrev_b32 %s, 16, %s\nv_and_b32 %s, 0xffff0000, %s" % (v(XU + 2 * i), v(CV_X + i), v(XU + 2 * i + 1), v(CV_X + i)))
        e("s_mul_i32 %s, %s, %d\ns_add_u32 %s, %s, %d" % (s(t), s(S_WAVE), 20 * LROW, s(t), s(t), L_FIN))
        e("v_and_b32 %s, 15, %s\nv_mul_u32_u24 %s, %d, %s\nv_lshrrev_b32 %s, 4, %s\nv_lshl_add_u32 %s, %s, 4, %s\nv_add_u32 %s, %s, %s" % (v(14), v(V_LANE), v(14), LROW, v(14), v(15), v(V_LANE), v(14), v(15), v(14), v(14), s(t), v(14)))
        for i in range(3): e("v_add_u32 %s, %s, %s" % (v(CV_L + i), s(t), v(CV_L + i)))
    stamp(e, 24)
    e("s_mov_b32 %s, 0" % s(t + 7))
    e("s_cmp_lg_u32 %s, 0\ns_cbranch_scc1 LOADED" % s(t + 5))
    e("PROBE:")
    e(PLD)
    e("s_waitcnt vmcnt(0)")
    e("v_xor_b32 %s, %s, %s\nv_cmp_lt_u32 vcc, 0xffff, %s" % (v(37), s(T_TAG), v(37), v(37)))
    e("s_add_u32 %s, %s, 1" % (s(t + 7), s(t + 7)))
    e("s_cmp_eq_u64 vcc, 0\ns_cbranch_scc1 PROBED")
    e("s_cmp_ge_u32 %s, 0x40000\ns_cbranch_scc1 PROBED" % s(t + 7))
    e("s_sleep %d\ns_branch PROBE" % opt("pslp", 4))
    e("PROBED:")
    for k, x in xloads(1): e(x)
    e("LOADED:")
    xcheck(e, 1, "s_waitcnt vmcnt(0)")
    stamp(e, 25)
    OFL = opt("ofl", "_sc1").replace("_", " ")
    for nb in range(5):
        o = OWR[1] + 4 * nb; gq = GG + 4 * nb; xu = XU + 4 * nb
        xsum(e, 1, nb)
        if COAL:
            for h in range(2): e("v_pk_mul_f32 %s, %s, %s" % (v(o + 2 * h, 2), v(o + 2 * h, 2), v(gq + 2 * h, 2)))
            e("ds_write_b128 %s, %s offset:%d" % (v(14), v(o, 4), nb * 64))
            continue
        for r in range(4): e("v_fma_f32 %s, %s, %s, %s" % (v(xu + r), v(o + r), v(gq + r), v(xu + r)))
        for h in range(2): e("v_cvt_pk_bf16_f32 %s, %s, %s" % (v(gq + h), v(xu + 2 * h), v(xu + 2 * h + 1)))
        e("buffer_store_dwordx2 %s, %s, %s, 0 offen offset:%d%s" % (v(gq, 2), v(KV_XO), s(K_SO, 4), nb * 32, OFL))
    if COAL:
        for i in range(3):
            for h in range(2): e("ds_read_b128 %s, %s offset:%d" % (v(64 + 8 * i + 4 * h, 4), v(CV_L + i), 16 * h))
        for i in range(3):
            e("s_waitcnt lgkmcnt(%d)" % (4 - 2 * i))
            for h in range(4): e("v_pk_add_f32 %s, %s, %s" % (v(64 + 8 * i + 2 * h, 2), v(64 + 8 * i + 2 * h, 2), v(XU + 8 * i + 2 * h, 2)))
            for h in range(4): e("v_cvt_pk_bf16_f32 %s, %s, %s" % (v(100 + 4 * i + h), v(64 + 8 * i + 2 * h), v(65 + 8 * i + 2 * h)))
            e("buffer_store_dwordx4 %s, %s, %s, 0 offen%s" % (v(100 + 4 * i, 4), v(CV_G + i), s(K_SO, 4), OFL))
    e0.ext([x.lstrip("@") for x in resolve_vm(e.L)])
    e = e0
    stamp(e, 15)
    if STAMPS: e("s_waitcnt vmcnt(0)")
    stamp(e, 16)
    stamp_fin(e)

def gen_kv_addr(e):
    T = V_T + 12; L = V_LANE
    e("s_lshl_b32 %s, %s, 19" % (s(S_TMP), s(S_HEAD)))
    srd(e, S_K, 54, s(S_TMP), 524288)
    srd(e, S_V, 56, s(S_TMP), 524288 + VSH * 8192)
    e("s_sub_u32 %s, %s, %d\ns_subb_u32 %s, %s, 0" % (s(S_V), s(S_V), VSH * 8192, s(S_V + 1), s(S_V + 1)))
    e("v_lshrrev_b32 %s, 4, %s\ns_lshl_b32 %s, %s, 3\nv_add_u32 %s, %s, %s\nv_and_b32 %s, 15, %s" % (v(T), v(L), s(S_TMP), s(S_WAVE), v(T), s(S_TMP), v(T), v(T + 1), v(L)))
    e("v_lshlrev_b32 %s, 8, %s" % (v(T + 2), v(T)))
    for i in range(2):
        e("v_add_u32 %s, %d, %s\nv_and_b32 %s, 15, %s\nv_xor_b32 %s, %s, %s\nv_lshl_add_u32 %s, %s, 4, %s" % (v(T + 3), 4 * i, v(T), v(T + 4), v(T + 3), v(T + 4), v(T + 4), v(T + 1), v(V_KD + i), v(T + 4), v(T + 2)))
        e("v_and_b32 %s, 7, %s\nv_lshlrev_b32 %s, 1, %s\nv_xor_b32 %s, %s, %s\nv_lshl_add_u32 %s, %s, 4, %s" % (v(T + 4), v(T + 3), v(T + 4), v(T + 4), v(T + 4), v(T + 4), v(T + 1), v(V_VD + i), v(T + 4), v(T + 2)))
    e("v_and_b32 %s, 15, %s\nv_lshrrev_b32 %s, 4, %s\nv_xor_b32 %s, %s, %s" % (v(T), v(L), v(T + 1), v(L), v(T + 1), v(T + 1), v(T)))
    e("v_lshlrev_b32 %s, 8, %s\nv_lshl_add_u32 %s, %s, 4, %s" % (v(T), v(T), v(T), v(T + 1), v(T)))
    for sl in range(4): e("v_xor_b32 %s, %d, %s" % (v(V_KA + sl), sl * 64, v(T)))
    e("v_lshrrev_b32 %s, 2, %s\nv_and_b32 %s, 7, %s\nv_lshlrev_b32 %s, 8, %s\nv_lshl_add_u32 %s, %s, 5, %s" % (v(T), v(L), v(T + 1), v(T), v(T), v(T), v(T), v(T + 1), v(T)))
    e("v_and_b32 %s, 3, %s\nv_lshl_add_u32 %s, %s, 3, %s\nv_add_u32 %s, %d, %s" % (v(T + 1), v(L), v(T), v(T + 1), v(T), v(T), L_V, v(T)))
    for db in range(8): e("v_xor_b32 %s, %d, %s" % (v(V_VA + db), db * 32, v(T)))

def gen_retry(e):
    e("ATT_RETRY:")
    e("s_waitcnt vmcnt(0)\ns_mov_b32 %s, 1" % s(S_RETRY))
    gen_kv_addr(e)
    for qb in range(4): e("v_mov_b32 %s, 0xff800000" % v(V_NEGM + 4 * qb))
    e("s_mov_b32 %s, 0" % s(S_KVOFF))
    e("RETRY_LOOP:")
    e("s_barrier")
    e("s_add_u32 m0, %s, %d\ns_nop 0" % (s(S_M0K), L_K))
    e(kv_dma("K", 0)); e(kv_dma("K", 1))
    e("s_waitcnt vmcnt(0)\ns_barrier")
    for kb in range(2):
        for sl in range(4): e(k_read(kb, sl, 0))
    e("s_waitcnt lgkmcnt(0)")
    e.ext(qk_mfmas(0, czero=True))
    e("s_nop 7")
    for qb in range(4):
        b = Sreg(0, qb, 0); m = v(V_NEGM + 4 * qb)
        for k in range(4): e("v_max3_f32 %s, %s, %s, %s" % (m, m, v(b + 2 * k), v(b + 2 * k + 1)))
    e("s_add_u32 %s, %s, 8192\ns_cmp_lt_u32 %s, %d\ns_cbranch_scc1 RETRY_LOOP" % (s(S_KVOFF), s(S_KVOFF), s(S_KVOFF), 64 * 8192))
    e("s_barrier")
    kv_preload(e)
    e("s_barrier")
    for kb in range(2):
        for sl in range(4): e(k_read(kb, sl, 0))
    e.ext(ones_ops(V_T))
    for r in range(128): e("v_accvgpr_write_b32 %s, 0" % a(A_O + r))
    for r in range(8): e("v_mov_b32 %s, 0" % v(V_L + r))
    e("s_waitcnt lgkmcnt(0)")
    e.ext(qk_mfmas(0, czero=True))
    for kb in range(2):
        for sl in range(4): e(k_read(kb, sl, 8192))
    e("s_branch ATT_START")

def gen_common_setup(e):
    T = V_T + 12; L = V_LANE
    e("s_lshl2_add_u32 %s, %s, %s" % (s(S_TMP + 1), s(S_QT), s(S_WAVE)))
    e("s_mul_i32 %s, %s, %d" % (s(S_TMP), s(S_TMP + 1), AFS))
    srd(e, S_AF, ptr(11), s(S_TMP), NSLAB * 4096)
    e("s_mul_i32 %s, %s, %d\ns_add_u32 %s, %s, %d" % (s(S_TMP), s(S_TMP + 1), 20 * 4096, s(S_TMP), s(S_TMP), XF_OFF))
    srd(e, S_X, ptr(11), s(S_TMP), 20 * 4096)
    e("s_mov_b64 %s, %s\ns_mov_b64 %s, %s" % (s(54, 2), s(ptr(1), 2), s(56, 2), s(ptr(2), 2)))
    e("v_bfe_u32 %s, %s, 2, 2\nv_lshrrev_b32 %s, 4, %s\nv_and_b32 %s, 3, %s" % (v(T), v(L), v(T + 1), v(L), v(T + 2), v(L)))
    e("v_lshlrev_b32 %s, 12, %s" % (v(T + 3), v(T + 1)))
    e("v_mul_u32_u24 %s, 320, %s\nv_add_u32 %s, %s, %s\nv_lshl_add_u32 %s, %s, 4, %s" % (v(T + 4), v(T), v(T + 4), v(T + 4), v(T + 3), v(T + 4), v(T + 2), v(T + 4)))
    for sl in range(4): e("v_xor_b32 %s, %d, %s" % (v(V_AQ + sl), sl * 64, v(T + 4)))
    e("v_lshl_add_u32 %s, %s, 7, %s\nv_lshl_add_u32 %s, %s, 3, %s" % (v(T + 4), v(T), v(T + 3), v(T + 4), v(T + 2), v(T + 4)))
    e("v_bfe_u32 %s, %s, 3, 2\nv_lshl_add_u32 %s, %s, 5, %s" % (v(T + 5), v(L), v(T + 4), v(T + 5), v(T + 4)))
    for u in range(4): e("v_xor_b32 %s, %d, %s" % (v(V_AG + u), u * 32, v(T + 4)))
    gen_kv_addr(e)

def gen_w_setup(e):
    T = V_T + 12; L = V_LANE
    e("v_lshrrev_b32 %s, 4, %s\nv_lshlrev_b32 %s, 2, %s\nv_and_b32 %s, 15, %s\nv_xor_b32 %s, %s, %s" % (v(T), v(L), v(T + 1), v(T), v(T + 2), v(L), v(T + 1), v(T + 1), v(T + 2)))
    e("v_lshlrev_b32 %s, 13, %s\nv_lshl_add_u32 %s, %s, 4, %s" % (v(T), v(T), v(V_WD), v(T + 1), v(T)))
    e("v_add_u32 %s, %d, %s" % (v(V_WD + 1), 4 * 8192 - 1024, v(V_WD)))
    e("v_lshrrev_b32 %s, 3, %s\nv_bfe_u32 %s, %s, 4, 1\nv_lshlrev_b32 %s, 1, %s" % (v(T), v(L), v(T + 1), v(L), v(T + 1), v(T + 1)))
    e("s_and_b32 %s, %s, 1\ns_lshl_b32 %s, %s, 2\nv_or_b32 %s, %s, %s" % (s(S_TMP), s(S_WAVE), s(S_TMP), s(S_TMP), v(T + 1), s(S_TMP), v(T + 1)))
    e("v_and_b32 %s, 7, %s\nv_xor_b32 %s, %s, %s" % (v(T + 2), v(L), v(T + 1), v(T + 1), v(T + 2)))
    e("v_mul_u32_u24 %s, 3456, %s\nv_lshl_add_u32 %s, %s, 4, %s" % (v(T), v(T), v(V_WD + 2), v(T + 1), v(T)))
    e("s_lshl_b32 %s, %s, 8\ns_sub_u32 %s, %d, %s" % (s(S_TMP), s(S_HEAD), s(S_TMP + 1), 640 * 8192, s(S_TMP)))
    srd(e, S_WQ, ptr(3), s(S_TMP), s(S_TMP + 1))
    for (d, p, sh) in ((S_WG, 6, 2048), (S_WU, 7, 3072)):
        e("s_lshl_b32 %s, %s, 7\ns_sub_u32 %s, %d, %s" % (s(S_TMP), s(S_FS), s(S_TMP + 1), 640 * 3456 + sh, s(S_TMP)))
        e("s_cmp_lt_u32 %s, 27\ns_cselect_b32 %s, %s, 0" % (s(S_FS), s(S_TMP + 1), s(S_TMP + 1)))
        srd(e, d, ptr(p), s(S_TMP), s(S_TMP + 1))
        e("s_sub_u32 %s, %s, %d\ns_subb_u32 %s, %s, 0" % (s(d), s(d), sh, s(d + 1), s(d + 1)))

def gen_kernel(e, name):
    T = V_T; L = V_LANE
    e(".text\n.globl %s\n.p2align 8\n.type %s,@function\n%s:" % (name, name, name))
    if STAMPS: e("s_memrealtime s[96:97]")
    e("s_cmp_ge_u32 s2, 256\ns_cbranch_scc1 K_END")
    e("s_load_dwordx8 %s, s[0:1], 0\ns_load_dwordx8 %s, s[0:1], 32\ns_load_dwordx8 %s, s[0:1], 64" % (s(S_PTR, 8), s(S_PTR + 8, 8), s(S_PTR + 16, 8)))
    TLB = opt("tlb", 0)
    if TLB:
        e("s_bfe_u32 s4, s2, 0x30003\ns_lshl_b32 s5, s4, 2\ns_lshr_b32 s6, 0x021bb763, s5\ns_and_b32 s6, s6, 15\ns_lshl_b32 s6, s6, 3\ns_load_dwordx2 s[8:9], s[0:1], s6")
        e("s_lshr_b32 s6, 0x10000112, s5\ns_and_b32 s6, s6, 15\ns_lshr_b32 s7, s2, 6\ns_min_u32 s6, s6, s7\ns_lshl_b32 s6, s6, 21")
        e("s_cmp_eq_u32 s4, 3\ns_cselect_b32 s6, 0x2000000, s6\ns_cmp_eq_u32 s4, 4\ns_cselect_b32 s6, 0x23f0000, s6")
        e("s_and_b32 s7, s2, 7\ns_lshl_b32 s7, s7, 21\ns_sub_u32 s5, s4, 5\ns_cmp_lt_u32 s5, 2\ns_cselect_b32 s6, s7, s6\nv_mov_b32 v9, s6")
    e("v_and_b32 %s, 63, v0\nv_lshrrev_b32 %s, 6, v0\nv_lshlrev_b32 %s, 4, %s\nv_readfirstlane_b32 %s, %s" % (v(L), v(T), v(V_L16), v(L), s(S_WAVE), v(T)))
    e("s_and_b32 %s, s2, 7\ns_lshr_b32 %s, s2, 3\ns_and_b32 %s, %s, 3\ns_lshr_b32 %s, %s, 2" % (s(S_TMP), s(S_TMP + 1), s(S_HL), s(S_TMP + 1), s(S_QT), s(S_TMP + 1)))
    e("s_lshl_b32 %s, %s, 2\ns_add_u32 %s, %s, %s" % (s(S_HEAD), s(S_TMP), s(S_HEAD), s(S_HEAD), s(S_HL)))
    e("s_lshl_b32 %s, %s, 3\ns_add_u32 %s, %s, %s" % (s(S_FS), s(S_HL), s(S_FS), s(S_FS), s(S_TMP)))
    e("s_mov_b32 %s, 0" % s(S_RETRY))
    e("s_lshl_b32 %s, %s, 12\ns_lshl_b32 %s, %s, 11" % (s(S_M0W), s(S_WAVE), s(S_M0K), s(S_WAVE)))
    if STAMPS: e("v_mov_b32 v0, -1\nv_mov_b32 v19, -1")
    stamp(e, 0)
    if STAMPS: e("v_writelane_b32 v19, s96, 40\nv_writelane_b32 v0, s96, 40")
    def codetouch(e):
        e("s_getpc_b64 %s\nCODE0:" % s(S_TMP + 4, 2))
        e("s_lshr_b32 %s, s2, 3\ns_lshl2_add_u32 %s, %s, %s\ns_mul_i32 %s, %s, 640" % (s(S_EVT + 6), s(S_EVT + 6), s(S_EVT + 6), s(S_WAVE), s(S_EVT + 6), s(S_EVT + 6)))
        if opt("cpm", "v") == "s":
            e("s_min_u32 %s, %s, CODE1-CODE0-644\ns_add_u32 %s, %s, %s\ns_addc_u32 %s, %s, 0" % (s(S_EVT + 6), s(S_EVT + 6), s(S_TMP + 4), s(S_TMP + 4), s(S_EVT + 6), s(S_TMP + 5), s(S_TMP + 5)))
            for i in range(10): e("s_load_dword %s, %s, %d" % (s(4 + i), s(S_TMP + 4, 2), 64 * i))
            return
        if opt("cpm", "v") == "h":
            e("v_min_u32 %s, 9, %s\nv_lshlrev_b32 %s, 6, %s\nv_add_u32 %s, %s, %s\nv_min_u32 %s, CODE1-CODE0-4, %s" % (v(8), v(L), v(8), v(8), v(8), s(S_EVT + 6), v(8), v(8), v(8)))
        else:
            e("v_min_u32 %s, 4, %s\nv_lshlrev_b32 %s, 7, %s\nv_add_u32 %s, %s, %s\nv_min_u32 %s, CODE1-CODE0-4, %s" % (v(8), v(L), v(8), v(8), v(8), s(S_EVT + 6), v(8), v(8), v(8)))
        e("global_load_dword %s, %s, %s" % (v(V_PL), v(8), s(S_TMP + 4, 2)))
    CPOS = opt("cpos", 0); WPOS = opt("wpos", 0)
    if CPOS == 0: codetouch(e)
    if CPOS == 9: e("CODE0:")
    gen_ln_loads(e)
    e("s_add_u32 %s, %s, %d\ns_addc_u32 %s, %s, 0\ns_load_dword %s, %s, 0" % (s(S_TMP + 2), s(ptr(11)), FL_OFF + EP_OFF, s(S_TMP + 3), s(ptr(11) + 1), s(S_EPOCH), s(S_TMP + 2, 2)))
    ny = 0
    if opt("tlb", 0) == 2: e("global_load_dword %s, v9, s[8:9]" % v(V_TRA)); ny += 1
    if CPOS == 1: codetouch(e); ny += 1
    gen_w_setup(e)
    e("s_lshl_b32 %s, %s, 16\ns_mul_i32 %s, %s, %d" % (s(S_WQOFF), s(S_WAVE), s(S_WGOFF), s(S_WAVE), 8 * 3456))
    WT = max(opt("wt", 4), 1)
    X = V_TC
    e("s_lshl2_add_u32 %s, %s, %s\ns_add_u32 %s, %s, %d" % (s(S_TMP), s(S_QT), s(S_WAVE), s(S_TMP), s(S_TMP), 32 * NI))
    e("v_lshrrev_b32 %s, 1, %s\nv_min_u32 %s, %d, %s\nv_lshlrev_b32 %s, 5, %s\nv_add_u32 %s, %s, %s" % (v(X), v(L), v(X), WT - 1, v(X), v(X), v(X), v(X), s(S_TMP), v(X)))
    e("v_and_b32 %s, 1, %s\nv_lshlrev_b32 %s, 7, %s\nv_lshl_add_u32 %s, %s, 13, %s\nv_mul_u32_u24 %s, 3456, %s" % (v(X + 1), v(L), v(X + 1), v(X + 1), v(X + 1), v(X), v(X + 1), v(X), v(X)))
    w0 = E(); wt = E()
    for sl in range(NI): w_slab(w0, sl, True)
    wt("buffer_load_dword %s, %s, %s, 0 offen" % (v(V_PL + 1), v(X + 1), s(S_WQ, 4)))
    wt("buffer_load_dword %s, %s, %s, 0 offen offset:2048" % (v(V_PL + 2), v(X), s(S_WG, 4)))
    wt("buffer_load_dword %s, %s, %s, 0 offen offset:3072" % (v(V_DUMP), v(X), s(S_WU, 4)))
    if opt("wt", 4) == 0: wt.L = []
    early = {0: w0.L + wt.L, 1: [], 2: w0.L, 3: w0.L}[WPOS]
    mid = {0: [], 1: w0.L + wt.L, 2: wt.L, 3: []}[WPOS]
    after = wt.L if WPOS == 3 else []
    e.ext(early); ny += sum(x.startswith("buffer") for x in early)
    LATE = opt("late", 2)
    srd(e, S_FL, ptr(11), FL_OFF, EP_OFF + 4096)
    e("s_lshl_b32 %s, %s, 5\ns_add_u32 %s, %s, %s\ns_lshl_b32 %s, %s, %d" % (s(S_MYFL), s(S_QT), s(S_MYFL), s(S_MYFL), s(S_HEAD), s(S_MYFL), s(S_MYFL), FSH))
    e("v_min_u32 %s, 31, %s\nv_lshlrev_b32 %s, %d, %s\ns_lshl_b32 %s, %s, %d" % (v(V_PL + 3), v(L), v(V_PL + 3), FSH, v(V_PL + 3), s(S_XOFF), s(S_QT), FSH + 5))
    if REP: e("s_and_b32 %s, s2, 7\ns_lshl_b32 %s, %s, 15\ns_add_u32 %s, %s, %s" % (s(S_TMP), s(S_TMP), s(S_TMP), s(S_XOFF), s(S_XOFF), s(S_TMP)))
    def rest():
        gen_common_setup(e)
        for i in range(8): e("v_add_u32 %s, 65536, %s" % (v(V_AHI + i), v(V_AQ + i)))
        if opt("tw2", -1) >= 0:
            t = S_TMP
            e("s_lshr_b32 %s, s2, 3\ns_mul_i32 %s, %s, %d\ns_add_u32 %s, %s, %d\nv_mov_b32 %s, %s" % (s(t), s(t + 1), s(t), AFS, s(t + 1), s(t + 1), NSLAB * 4096, v(V_T2), s(t + 1)))
            e("s_mul_i32 %s, %s, %d\ns_add_u32 %s, %s, %d" % (s(t + 1), s(t), 4 * XGS, s(t + 1), s(t + 1), XP_OFF + 12 * 12288))
            e("s_and_b32 %s, %s, 3\ns_mul_i32 %s, %s, %d\ns_add_u32 %s, %s, %d" % (s(t + 2), s(t), s(t + 2), s(t + 2), WFS, s(t + 2), s(t + 2), WF_OFF + NSLAB * 10240))
            e("s_cmp_lt_u32 %s, 16\ns_cselect_b32 %s, %s, %s\nv_mov_b32 %s, %s" % (s(t), s(t + 1), s(t + 1), s(t + 2), v(V_T2 + 1), s(t + 1)))
            e("s_and_b32 %s, %s, 1\ns_lshl_b32 %s, %s, 21\nv_mov_b32 %s, %s" % (s(t), s(t), s(t), s(t), v(V_T2 + 2), s(t)))
        e("v_mov_b32 %s, %d" % (v(V_ZA), L_MISC + 512))
        for i in range(4): e("v_mov_b32 %s, 0" % v(52 + i))
        e("ds_write_b128 %s, %s" % (v(V_ZA), v(52, 4)))
    stamp(e, 1)
    gen_ln_compute(e, ny, mid)
    e.ext(after)
    stamp(e, 29)
    if LATE == 1: rest()
    e("s_mul_i32 %s, %s, 0x9e3779b1\ns_add_u32 %s, %s, 0x7f4a7c15" % (s(S_TAG), s(S_EPOCH), s(S_TAG), s(S_TAG)))
    e("s_waitcnt vmcnt(%d)\ns_barrier" % len(after))
    stamp(e, 18)
    e("s_cmp_lg_u32 %s, 0\ns_cbranch_scc1 NOFL1" % s(S_WAVE))
    set_flag(e, 1)
    e("NOFL1:")
    if LATE == 2: rest()
    e("s_cmp_lg_u32 %s, 0\ns_cbranch_scc1 SPUN_XN" % s(S_WAVE))
    e(poll_load(False, s(S_XOFF)))
    e("s_waitcnt vmcnt(0)")
    poll_spin(e, False, s(S_XOFF), 1, "XN")
    e("s_barrier")
    stamp(e, 2)
    e("s_cmp_ge_u32 %s, 27\ns_cbranch_scc1 LIGHT" % s(S_FS))
    gen_proj(e, True, "H")
    e("PROJ_DONE:")
    head = gen_attention(e)
    gen_tail(e, head)
    e("K_END:\ns_endpgm")
    gen_events(e)
    gen_retry(e)
    e("LIGHT:")
    gen_proj(e, False, "L")
    e("s_branch PROJ_DONE")
    e("CODE1:")
    e(kd(name))

def main():
    e = E()
    hdr = open("cdna_kernels/%s.s.ref" % NAME).read().split("; Override launch")[0]
    e.L += hdr.strip().split("\n")
    e("; @launch grid=(256,1,1) block=(256,1,1) lds=%d" % LDS_BYTES)
    e('.amdgcn_target "amdgcn-amd-amdhsa--gfx950"')
    gen_kernel(e, NAME + "_kernel")
    t = re.sub(r" ;#\w*", "", e.text()).replace("NVWAIT", str(min(NV01)))
    if VERBOSE: print("NV01", NV01)
    errs = [x for x in asmcheck.check(t, [NAME + "_kernel"]) if x.count("_load_dword v%d," % V_DUMP) != 2 and poll_load(True).split("\n")[-1] not in x]
    if errs:
        print("\n".join(errs[:40])); print(len(errs), "problems")
    out = [x for x in sys.argv[1:] if x.endswith(".s")]
    open(out[0] if out else "cdna_kernels/%s.s" % NAME, "w").write(t)

if __name__ == "__main__":
    main()
```

```python
import sys, math, os, struct, re
from sched import Gaps, auto_lgkm
import asmcheck

NAME = "recurrent_scan__mha_block_cached__glu_gated_reglu__prompt"
MF = "v_mfma_f32_16x16x32_bf16"
OPT = dict(x.split("=") for x in sys.argv[1:] if "=" in x)
def opt(k, d): return type(d)(OPT.get(k, d))
VERBOSE = "-v" in sys.argv
STAMPS = "--stamps" in sys.argv
STFL = opt("stfl", " sc1").replace("_", " ")
LDFL = opt("ldfl", " sc1").replace("_", " ")

NSLAB = 182
QSC = math.log2(math.e) / math.sqrt(128.0)
DSC = 1.0 / (QSC * QSC)
WF_OFF = 0x1800000
AFS = (NSLAB + 1) * 4096
WFS = NSLAB * 10240 + 4096
XGS = 13 * 12288
XF_OFF = 0x2001000
XP_OFF = 0x2400000
MAXST = 4
FL_OFF = 0x2300000

class E:
    def __init__(self): self.L = []
    def __call__(self, s):
        for x in s.split("\n"):
            x = x.strip()
            if x: self.L.append(x)
    def ext(self, l): self.L += l
    def text(self): return "\n".join(self.L) + "\n"

def v(a, n=1): return "v%d" % a if n == 1 else "v[%d:%d]" % (a, a + n - 1)
def a(a_, n=1): return "a%d" % a_ if n == 1 else "a[%d:%d]" % (a_, a_ + n - 1)
def s(a_, n=1): return "s%d" % a_ if n == 1 else "s[%d:%d]" % (a_, a_ + n - 1)
def f2u(x): return "0x%08x" % struct.unpack("<I", struct.pack("<f", x))[0]

def kd(name, vgpr=512, acc=256):
    return """.section .rodata,"a"
.p2align 6
.amdhsa_kernel %s
  .amdhsa_next_free_vgpr %d
  .amdhsa_next_free_sgpr 102
  .amdhsa_accum_offset %d
  .amdhsa_group_segment_fixed_size 0
  .amdhsa_kernarg_size 96
  .amdhsa_user_sgpr_count 2
  .amdhsa_user_sgpr_kernarg_segment_ptr 1
  .amdhsa_system_sgpr_workgroup_id_x 1
.end_amdhsa_kernel
""" % (name, vgpr, acc)

def stamp(e, i):
    if not STAMPS: return
    e("s_waitcnt lgkmcnt(0)\ns_memtime s[98:99]\ns_memrealtime s[100:101]\ns_waitcnt lgkmcnt(0)")
    e("v_writelane_b32 v0, s98, %d\nv_writelane_b32 v19, s100, %d" % (i, i))
def stamp_fin(e):
    if not STAMPS: return
    if opt("echo", ""):
        i, j = [int(x) for x in opt("echo", "").split(".")]
        e("s_nop 1\nv_readlane_b32 s96, v19, %d\nv_readlane_b32 s97, v19, %d\nv_readlane_b32 s98, v19, 16\ns_nop 3\ns_sub_u32 s96, s97, s96\ns_min_u32 s96, s96, 20000\ns_cmp_%s_u32 %s, 27\ns_cselect_b32 s96, s96, 0" % (i, j, "ge" if opt("el", 0) else "lt", s(S_FS)))
        if opt("ecyc", 0):
            e("v_readlane_b32 s96, v0, %d\nv_readlane_b32 s97, v0, %d\ns_nop 3\ns_sub_u32 s96, s97, s96\ns_lshr_b32 s96, s96, 3\ns_min_u32 s96, s96, 20000\ns_cmp_lt_u32 %s, 27\ns_cselect_b32 s96, s96, 0" % (i, j, s(S_FS)))
            i = 40
        if opt("eneg", 0):
            e("s_cmp_eq_u32 s96, 0\ns_cselect_b32 s96, 3000, s96\ns_min_u32 s96, s96, 3000\ns_sub_u32 s96, 3000, s96")
            i = 40
        if opt("emul", 0): e("s_mul_i32 s96, s96, %d" % opt("emul", 0))
        if opt("eabs", 0): e("v_readlane_b32 s98, v19, %d\ns_add_u32 s96, s96, 10000\ns_nop 3" % i)
        e("ECHO:\ns_sleep 1\ns_memrealtime s[100:101]\ns_waitcnt lgkmcnt(0)\ns_sub_u32 s97, s100, s98\ns_cmp_lt_u32 s97, s96\ns_cbranch_scc1 ECHO")
        return
    if opt("dbgout", -1) >= 0:
        e("s_cmp_lg_u32 s2, %d\ns_cbranch_scc1 NODBG\ns_cmp_lg_u32 %s, 0\ns_cbranch_scc1 NODBG" % (opt("dbgout", -1), s(S_WAVE)))
        e("v_readlane_b32 s98, v19, 0\ns_nop 3\nv_subrev_u32 v18, s98, v19\nv_lshlrev_b32 v20, 2, v1\nv_subrev_u32 v20, 4, v20")
        e("s_mov_b32 s96, %s\ns_mov_b32 s97, %s\ns_mov_b32 s98, 64\ns_mov_b32 s99, 0x20000" % (s(ptr(10)), s(ptr(10) + 1)))
        e("buffer_store_dword v18, v20, s[96:99], 0 offen\ns_waitcnt vmcnt(0)\nNODBG:")
        return
    if opt("wsb", 0): e("s_sub_u32 %s, %s, %d\ns_subb_u32 %s, %s, 0" % (s(ptr(11)), s(ptr(11)), opt("wsb", 0) << 20, s(ptr(11) + 1), s(ptr(11) + 1)))
    e("s_lshl_b32 s98, s2, 2\ns_add_u32 s98, s98, %s\ns_lshl_b32 s98, s98, 9\ns_add_u32 s98, s98, %d" % (s(S_WAVE), 0x4000000))
    e("s_add_u32 s96, %s, s98\ns_addc_u32 s97, %s, 0\ns_mov_b32 s98, 512\ns_mov_b32 s99, 0x20000" % (s(ptr(11)), s(ptr(11) + 1)))
    e("v_mov_b32 v18, v0\nv_lshlrev_b32 v20, 3, v1\nbuffer_store_dwordx2 v[18:19], v20, s[96:99], 0 offen\ns_waitcnt vmcnt(0)")

def srd(e, d, base, off_lo, nbytes):
    e("s_add_u32 %s, %s, %s" % (s(d), s(base), off_lo))
    e("s_addc_u32 %s, %s, 0" % (s(d + 1), s(base + 1)))
    e("s_mov_b32 %s, %s" % (s(d + 2), nbytes))
    e("s_mov_b32 %s, 0x20000" % s(d + 3))

def uncond(x): return False
def resolve_vm(lines):
    out = []; ops = []; waited = set(); lastm0 = None; done = 0; marks = {}
    for x in lines:
        mm = re.search(r"vmcnt\((\d+)\)", x)
        if mm and not x.startswith("@") and uncond(x): done = max(done, len(ops) - int(mm.group(1)))
        if x.startswith(("buffer_", "global_")) and len(ops) - done >= 58:
            out.append("s_waitcnt vmcnt(52)"); done = len(ops) - 52
        if x.startswith("s_add_u32 m0,"): lastm0 = x.split(",")[1].strip()
        if " lds" in x and ";#" in x:
            tg = x.split(";#")[1].strip()
            exp = s(S_M0W) if tg.startswith("w") else (s(S_TRM) if tg == "trs" else s(S_M0K))
            if tg.startswith("D"): exp = s(T_M0W)
            assert lastm0 == exp, "M0 collision at %s" % x
        if x.startswith("MARK"):
            marks[x.split()[1]] = len(ops); continue
        m = re.search(r"SINCE\{(\w+)\}", x)
        if m: x = x.replace(m.group(0), "vmcnt(%d)" % min(63, len(ops) - marks[m.group(1)]))
        m = re.search(r"WAITVM\{([^}]*)\}", x)
        if m:
            need = set(m.group(1).split(","))
            waited |= need
            idx = [i for i, t in enumerate(ops) if t in need]
            n = len(ops) - 1 - max(idx) if idx else 63
            done = max(done, len(ops) - min(n, 63))
            x = x.replace(m.group(0), "vmcnt(%d)" % min(n, 63))
        elif x.startswith(("buffer_", "global_")):
            t = x.split(";#")[1].strip() if ";#" in x else ""
            assert t not in waited, "op %s issued after its wait" % t
            ops.append(t)
        out.append(x)
    return out

S_FL = 4
S_X, S_WQ, S_WG, S_WU, S_K, S_V, S_AF, S_T, S_WF = 8, 12, 16, 20, 24, 28, 32, 36, 40
S_PTR = 44
S_WAVE, S_HEAD, S_QT, S_FS = 68, 69, 70, 71
S_XOFF, S_WQOFF, S_WGOFF, S_M0W = 72, 73, 74, 75
S_KVOFF, S_M0K, S_TOG, S_RETRY = 76, 77, 78, 79
S_TMP = 80
S_TRS, S_TRM, S_TRD, S_TRU = 88, 89, 90, 91
S_EPOCH, S_TAG, S_MYFL = 92, 93, 94
S_HL = 3
S_EVT = 85
def EV(n): return (10 + 2 * n) * 8192
EVT0 = EV(3)
EVTE = (62 + 10) * 8192
NWH = opt("nwh", 0)
S_LN = 84
def ptr(i): return S_PTR + 2 * i

L_K = 0
L_V = 65536
RW = 8
L_TR = 114688
L_MISC = 155648
LDS_BYTES = 163840

V_LANE = 1
V_L16 = 2
V_WD = 3
V_TRA = 6
V_AQ = 10
V_AG = 14
V_KA = 20
V_VA = 24
V_KD = 32
V_VD = 34
V_DUMP = 18
V_SIDX = 7
V_ZA = 6
V_T2 = 40
NL = 2
VSH = 4
NOE = 4
V_PW = 5
PWARM = opt("pw", 0)
V_TC = 62
V_PL = 36
V_T = 40
V_ACCQ = 64
V_ACCG = 192
V_Q = 64
V_S = 128
V_P = 192
V_NEGM = 224
V_L = 240
A_ACCU = 0
XD = 8
A_X = 64
A_W = 192
A_TR = 208
V_ONE = 56
A_O = 64
A_KF = 224
A_KF1 = 192
A_VF = 0
V_AHI = 44

def qacc(blk, qb): return (V_S if blk & 1 else V_Q) + ((blk >> 1) * 4 + qb) * 4
def wslot(sl): return (sl + 4) % RW
def accreg(blk, qb):
    if blk < 8: return v(qacc(blk, qb), 4)
    if blk < 12: return v(V_ACCG + ((blk - 8) * 4 + qb) * 4, 4)
    return a(A_ACCU + ((blk - 12) * 4 + qb) * 4, 4)

def w_read(dst, blk, j, rel):
    if blk < 8:
        ar = V_AQ + (blk >> 1); off = rel + j * 1024 + (blk & 1) * 8
    else:
        ar = V_AG + ((blk - 8) & 3); off = rel + 2048 + (1024 if blk >= 12 else 0) + j * 512
    if rel >= 65536: ar += V_AHI - V_AQ; off -= 65536
    assert 0 <= off < 65536
    return "ds_read_b64_tr_b16 %s, %s offset:%d" % (a(dst + 2 * j, 2), v(ar), off)

def w_dma(heavy, tag):
    l = ["buffer_load_dwordx4 %s, %s, %s offen lds ;#%s" % (v(V_WD), s(S_WQ, 4), s(S_WQOFF), tag),
         "buffer_load_dwordx4 %s, %s, %s offen offset:1024 lds ;#%s" % (v(V_WD + 1), s(S_WQ, 4), s(S_WQOFF), tag)]
    if heavy:
        l += ["buffer_load_dwordx4 %s, %s, %s offen offset:2048 lds ;#%s" % (v(V_WD + 2), s(S_WG, 4), s(S_WGOFF), tag),
              "buffer_load_dwordx4 %s, %s, %s offen offset:3072 lds ;#%s" % (v(V_WD + 2), s(S_WU, 4), s(S_WGOFF), tag)]
    return l

def x_load(sl, qb):
    return "buffer_load_dwordx4 %s, %s, %s, %s offen offset:%d%s ;#x%d" % (a(A_X + ((sl % XD) * 4 + qb) * 4, 4), v(V_L16), s(S_X, 4), s(S_XOFF), qb * 1024, LDFL, sl)

def kv_dma(which, i, tag=""):
    vo = (V_KD if which == "K" else V_VD) + i
    return "buffer_load_dwordx4 %s, %s, %s offen offset:%d%s lds ;#%s" % (v(vo), s(S_K if which == "K" else S_V, 4), s(S_KVOFF), 1024 * i, opt("kvfl", "_sc1").replace("_", " "), tag)

FSH = opt("fsh", 7)
EP_OFF = 65536
CF_OFF = EP_OFF + 1024
def set_flag(e, stage):
    if stage in (2, 3) and FSH > 2:
        e("s_add_u32 %s, %s, %d\ns_mov_b64 exec, 1\nv_mov_b32 %s, %s\ns_lshr_b32 %s, %s, %d\ns_add_u32 %s, %s, %d" % (s(S_TMP + 7), s(S_TAG), stage, v(V_PL), s(S_TMP + 7), s(S_TMP + 7), s(S_MYFL), FSH - 2, s(S_TMP + 7), s(S_TMP + 7), CF_OFF))
        e("buffer_store_dword %s, off, %s, %s sc1" % (v(V_PL), s(S_FL, 4), s(S_TMP + 7)))
    elif opt("fwide", 0):
        n = (1 << FSH) // 8
        e("s_add_u32 %s, %s, %d\ns_mov_b64 exec, 0x%x\nv_mov_b32 %s, %s\nv_mov_b32 %s, %s\nv_lshlrev_b32 %s, 3, %s" % (s(S_TMP + 7), s(S_TAG), stage, (1 << n) - 1, v(V_PL), s(S_TMP + 7), v(V_PL + 1), s(S_TMP + 7), v(V_PL + 2), v(V_LANE)))
        e("buffer_store_dwordx2 %s, %s, %s, %s offen sc1" % (v(V_PL, 2), v(V_PL + 2), s(S_FL, 4), s(S_MYFL)))
    else:
        e("s_add_u32 %s, %s, %d\ns_mov_b64 exec, 1\nv_mov_b32 %s, %s" % (s(S_TMP + 7), s(S_TAG), stage, v(V_PL), s(S_TMP + 7)))
        e("buffer_store_dword %s, off, %s, %s sc1" % (v(V_PL), s(S_FL, 4), s(S_MYFL)))
    e("s_mov_b64 exec, -1")

def poll_load(allq, qoff=None):
    if allq and FSH > 2: return "s_mov_b32 %s, %d\nbuffer_load_dwordx4 %s, %s, %s, %s offen sc1" % (s(S_TMP + 1), CF_OFF, v(V_PL, 4), v(V_L16), s(S_FL, 4), s(S_TMP + 1))
    if allq: return "buffer_load_dwordx4 %s, %s, %s, 0 offen sc1" % (v(V_PL, 4), v(V_L16), s(S_FL, 4))
    return "buffer_load_dword %s, %s, %s, %s offen sc1" % (v(V_PL), v(V_PL + 3), s(S_FL, 4), qoff)

def poll_spin(e, allq, qoff, stage, tag):
    e("s_mov_b32 %s, 0\ns_add_u32 %s, %s, %d" % (s(S_TMP + 7), s(S_TMP + 6), s(S_TAG), stage))
    e("SPIN_%s:" % tag)
    n = 4 if allq else 1
    for i in range(n): e("v_subrev_u32 %s, %s, %s" % (v(V_PL + i), s(S_TMP + 6), v(V_PL + i)))
    if allq: e("v_max3_u32 %s, %s, %s, %s\nv_max_u32 %s, %s, %s" % (v(V_PL), v(V_PL), v(V_PL + 1), v(V_PL + 2), v(V_PL), v(V_PL), v(V_PL + 3)))
    e("v_cmp_lt_u32 vcc, %d, %s" % (MAXST - stage, v(V_PL)))
    e("s_add_u32 %s, %s, 1" % (s(S_TMP + 7), s(S_TMP + 7)))
    e("s_cmp_eq_u64 vcc, 0\ns_cbranch_scc1 SPUN_%s" % tag)
    e("s_cmp_ge_u32 %s, 0x40000\ns_cbranch_scc1 SPUN_%s" % (s(S_TMP + 7), tag))
    e("s_sleep %d" % opt("slp", 2))
    e(poll_load(allq, qoff))
    e("s_waitcnt vmcnt(0)\ns_branch SPIN_%s" % tag)
    e("SPUN_%s:" % tag)

def zero_acc(e, heavy=True):
    for r in range(V_ACCQ, 256): e("v_mov_b32 %s, 0" % v(r))
    for r in range(A_ACCU, A_ACCU + 64): e("v_accvgpr_write_b32 %s, 0" % a(r))

NI = opt("ni", 1)

def gen_ln_loads(e):
    T = V_T; L = V_LANE
    R = V_ACCQ
    e("v_bfe_u32 %s, %s, 1, 3\nv_lshrrev_b32 %s, 4, %s\nv_and_b32 %s, 1, %s" % (v(T), v(L), v(T + 1), v(L), v(T + 2), v(L)))
    e("v_mul_u32_u24 %s, 1280, %s\nv_lshl_add_u32 %s, %s, 4, %s\nv_lshl_add_u32 %s, %s, 3, %s" % (v(T + 3), v(T), v(T + 3), v(T + 1), v(T + 3), v(T + 3), v(T + 2), v(T + 3)))
    e("s_lshl_b32 %s, %s, 5\ns_add_u32 %s, %s, %s\ns_mul_i32 %s, %s, %d\ns_mul_i32 %s, %s, 320" % (s(S_TMP), s(S_QT), s(S_TMP), s(S_TMP), s(S_HEAD), s(S_TMP), s(S_TMP), 8 * 1280, s(S_TMP + 1), s(S_WAVE)))
    e("s_waitcnt lgkmcnt(0)")
    if opt("wsb", 0): e("s_add_u32 %s, %s, %d\ns_addc_u32 %s, %s, 0" % (s(ptr(11)), s(ptr(11)), opt("wsb", 0) << 20, s(ptr(11) + 1), s(ptr(11) + 1)))
    if opt("tlb", 0) == 1: e("global_load_dword %s, v9, s[8:9]" % v(V_TRA))
    srd(e, S_T, ptr(0), s(S_TMP), 8 * 1280)
    for i in range(5): e("buffer_load_dwordx2 %s, %s, %s, %s offen offset:%d" % (v(R + 2 * i, 2), v(T + 3), s(S_T, 4), s(S_TMP + 1), 64 * i))

def gen_ln_compute(e, nyounger, mid=()):
    T = V_T; L = V_LANE
    R = V_ACCQ; U = R + 10
    e("v_and_b32 %s, 15, %s\nv_lshlrev_b32 %s, 3, %s\nv_lshl_add_u32 %s, %s, 8, %s" % (v(T + 3), v(L), v(T + 3), v(T + 3), v(T + 3), v(T + 1), v(T + 3)))
    e("s_lshr_b32 %s, %s, 3\ns_lshl2_add_u32 %s, %s, %s\ns_mul_i32 %s, %s, %d" % (s(S_TMP), s(S_HEAD), s(S_TMP), s(S_QT), s(S_TMP), s(S_TMP), s(S_TMP), 20 * 4096))
    e("s_bfe_u32 %s, %s, 0x20001\ns_lshl_b32 %s, %s, 10\ns_add_u32 %s, %s, %s" % (s(S_TMP + 1), s(S_HEAD), s(S_TMP + 1), s(S_TMP + 1), s(S_TMP), s(S_TMP), s(S_TMP + 1)))
    e("s_and_b32 %s, %s, 1\ns_lshl_b32 %s, %s, 7\ns_add_u32 %s, %s, %s\ns_add_u32 %s, %s, %d" % (s(S_TMP + 1), s(S_HEAD), s(S_TMP + 1), s(S_TMP + 1), s(S_TMP), s(S_TMP), s(S_TMP + 1), s(S_TMP), s(S_TMP), XF_OFF))
    srd(e, S_LN, ptr(11), s(S_TMP), 20 * 4096)
    e("s_mul_i32 %s, %s, %d" % (s(S_TMP), s(S_WAVE), 5 * 4096))
    e("v_lshlrev_b32 %s, 5, %s\nv_add_u32 %s, %d, %s\ns_lshl_b32 %s, %s, 3\nv_add_u32 %s, %s, %s" % (v(T + 4), v(T), v(T + 4), L_MISC, v(T + 4), s(S_TMP + 1), s(S_WAVE), v(T + 5), s(S_TMP + 1), v(T + 4)))
    A0 = T + 6; M = T + 8
    e("s_waitcnt vmcnt(%d)" % nyounger)
    stamp(e, 17)
    e.ext(list(mid))
    for d in range(10): e("v_lshlrev_b32 %s, 16, %s\nv_and_b32 %s, 0xffff0000, %s" % (v(U + 2 * d), v(R + d), v(U + 2 * d + 1), v(R + d)))
    e("v_pk_add_f32 %s, %s, %s\nv_pk_add_f32 %s, %s, %s" % (v(A0, 2), v(U, 2), v(U + 2, 2), v(M, 2), v(U + 4, 2), v(U + 6, 2)))
    for d in range(4, 10): e("v_pk_add_f32 %s, %s, %s" % (v((A0, M)[d & 1], 2), v((A0, M)[d & 1], 2), v(U + 2 * d, 2)))
    def reduce(dst):
        e("v_pk_add_f32 %s, %s, %s" % (v(A0, 2), v(A0, 2), v(M, 2) if dst == M else v(T + 10, 2)))
        e("v_add_f32 %s, %s, %s\ns_nop 1" % (v(A0), v(A0), v(A0 + 1)))
        e("v_add_f32_dpp %s, %s, %s quad_perm:[1,0,3,2] row_mask:0xf bank_mask:0xf" % (v(A0), v(A0), v(A0)))
        for sw in ("v_permlane32_swap_b32", "v_permlane16_swap_b32"):
            e("v_mov_b32 %s, %s\ns_nop 1\n%s %s, %s\nv_add_f32 %s, %s, %s" % (v(A0 + 1), v(A0), sw, v(A0), v(A0 + 1), v(A0), v(A0), v(A0 + 1)))
    reduce(M)
    e("v_mul_f32 %s, %s, %s\nv_mul_f32 %s, %s, %s" % (v(M), f2u(-1.0 / 160), v(A0), v(M + 1), f2u(-1.0 / 160), v(A0)))
    for d in range(10): e("v_pk_add_f32 %s, %s, %s" % (v(U + 2 * d, 2), v(U + 2 * d, 2), v(M, 2)))
    e("v_pk_mul_f32 %s, %s, %s\nv_pk_mul_f32 %s, %s, %s" % (v(A0, 2), v(U, 2), v(U, 2), v(T + 10, 2), v(U + 2, 2), v(U + 2, 2)))
    for d in range(2, 10): e("v_pk_fma_f32 %s, %s, %s, %s" % (v((A0, T + 10)[d & 1], 2), v(U + 2 * d, 2), v(U + 2 * d, 2), v((A0, T + 10)[d & 1], 2)))
    reduce(None)
    e("v_mov_b32 %s, %s" % (v(M + 1), v(A0)))
    e("ds_write_b64 %s, %s\ns_waitcnt lgkmcnt(0)\ns_barrier" % (v(T + 5), v(M, 2)))
    X = T + 12
    e("ds_read_b128 %s, %s\nds_read_b128 %s, %s offset:16\ns_waitcnt lgkmcnt(0)" % (v(X, 4), v(T + 4), v(X + 4, 4), v(T + 4)))
    e("v_pk_add_f32 %s, %s, %s\nv_pk_add_f32 %s, %s, %s\nv_pk_add_f32 %s, %s, %s" % (v(A0, 2), v(X, 2), v(X + 2, 2), v(T + 10, 2), v(X + 4, 2), v(X + 6, 2), v(A0, 2), v(A0, 2), v(T + 10, 2)))
    e("v_mul_f32 %s, 0.25, %s" % (v(A0), v(A0)) if False else "v_mul_f32 %s, %s, %s" % (v(A0), f2u(0.25), v(A0)))
    for k in range(4): e("v_sub_f32 %s, %s, %s" % (v(X + 2 * k), v(X + 2 * k), v(A0)))
    e("v_mul_f32 %s, %s, %s" % (v(X + 1), v(X), v(X)))
    for k in range(1, 4): e("v_fmac_f32 %s, %s, %s" % (v(X + 1), v(X + 2 * k), v(X + 2 * k)))
    e("v_fmac_f32 %s, %s, %s" % (v(A0 + 1), f2u(160.0), v(X + 1)))
    e("v_mov_b32 %s, %s\nv_fmac_f32 %s, %s, %s\nv_rsq_f32 %s, %s" % (v(X), f2u(1e-5 * DSC), v(X), f2u(DSC / 640), v(A0 + 1), v(X), v(X)))
    e("v_sub_f32 %s, %s, %s" % (v(M), v(A0), v(M)))
    e("v_mov_b32 %s, %s\nv_mul_f32 %s, %s, %s\nv_mul_f32 %s, %s, %s" % (v(X + 1), v(X), v(M + 1), v(M), v(X), v(M), v(M), v(X)))
    for i in range(5):
        for d in (2 * i, 2 * i + 1): e("v_pk_fma_f32 %s, %s, %s, %s" % (v(U + 2 * d, 2), v(U + 2 * d, 2), v(X, 2), v(M, 2)))
        for d in (2 * i, 2 * i + 1): e("v_cvt_pk_bf16_f32 %s, %s, %s" % (v(R + d), v(U + 2 * d), v(U + 2 * d + 1)))
        e("buffer_store_dwordx2 %s, %s, %s, %s offen%s" % (v(R + 2 * i, 2), v(T + 3), s(S_LN, 4), s(S_TMP), STFL))
        if i < 4: e("s_add_u32 %s, %s, 4096" % (s(S_TMP), s(S_TMP)))

def w_slab(e, sl, heavy):
    e("s_add_u32 m0, %s, %d\ns_nop 0" % (s(S_M0W), wslot(sl) * 16384))
    e.ext(w_dma(heavy, "w%d" % sl))
    e("s_add_u32 %s, %s, %d\ns_add_u32 %s, %s, %d" % (s(S_WQOFF), s(S_WQOFF), 32 * 8192, s(S_WGOFF), s(S_WGOFF), 32 * 3456))

def ones_ops(tmp):
    L = V_LANE
    return ["v_lshrrev_b32 %s, 4, %s" % (v(tmp), v(L)), "v_xor_b32 %s, %s, %s" % (v(tmp), v(tmp), v(L)), "v_bfe_u32 %s, %s, 1, 1" % (v(tmp), v(tmp)),
            "v_subrev_u32 %s, 1, %s" % (v(tmp), v(tmp)), "v_and_b32 %s, 0x3f803f80, %s" % (v(tmp), v(tmp))] + \
           ["v_mov_b32 %s, %s" % (v(V_ONE + r), v(tmp)) for r in range(4)] + \
           ["v_and_b32 %s, 1, %s" % (v(V_SIDX), v(L)), "v_mul_u32_u24 %s, 0xaaaa, %s" % (v(V_SIDX), v(V_SIDX)), "v_or_b32 %s, 0x4444, %s" % (v(V_SIDX), v(V_SIDX))]

NV01 = []
def gen_proj(e0, heavy, tag):
    e = E()
    T = V_T; L = V_LANE
    NS = opt("ns", 4) if heavy else 0
    GU = [b for fb in range(4) for b in (12 + fb, 8 + fb)]
    PC0 = opt("pc0", 2) if heavy else opt("lpc0", 4)
    def grp(lo, hi):
        out = []; sl = lo
        while sl < hi:
            if sl >= PC0 and sl + 1 < hi: out.append((sl, sl + 1)); sl += 2
            else: out.append((sl,)); sl += 1
        return out
    units = []
    for ss in grp(0, 20 - NS): units.append((ss, list(range(8)) + (GU if heavy else [])))
    for part in {0: (GU,), 1: (GU[:4], GU[4:]), 2: (GU[:2], GU[2:4], GU[4:6], GU[6:])}[opt("split", 2)]:
        for ss in grp(20 - NS, 20): units.append((ss, part))
    for ss in grp(20 - NS, 20): units.append((ss, list(range(8))))
    order = []; mf = []; firstuse = []
    for ss, bl in units:
        for b in bl:
            F0 = len(order)
            for sl in ss: order.append((sl, b)); firstuse.append(4 * F0)
            for qb in (range(4) if (not opt("psn", 1) or (F0 // len(ss)) % 2 == 0) else range(3, -1, -1)):
                idx = list(range(len(ss)))
                if qb & 1: idx.reverse()
                for i in idx:
                    sl = ss[i]
                    c = "0" if (0 in ss and i == idx[0]) else accreg(b, qb)
                    mf.append("%s %s, %s, %s, %s" % (MF, accreg(b, qb), a(A_W + 4 * ((F0 + i) % 8), 4), a(A_X + ((sl % XD) * 4 + qb) * 4, 4), c))
    NF = len(order)
    NP = len(mf)
    for sl in range(4):
        for kb in range(2):
            for qb in range(4):
                d = v(Sreg(0, qb, kb), 4)
                mf.append("%s %s, %s, %s, %s" % (MF, d, a(A_KF + (kb * 4 + sl) * 4, 4), v(V_Q + (sl * 4 + qb) * 4, 4), d if sl else "0"))
    G = Gaps(mf)
    ustart = []; n = 0
    for ss, bl in units: ustart.append(n); n += len(bl) * len(ss)
    lastF = {}; lastblk = {}; firstF = {}
    for u, (ss, bl) in enumerate(units):
        for k, sl in enumerate(ss):
            lastF[sl] = ustart[u] + len(bl) * len(ss) - 1
            firstF.setdefault(sl, ustart[u] + k * len(bl))
        for i, b in enumerate(bl): lastblk[b] = ustart[u] + (i + 1) * len(ss) - 1
    G1 = lambda sl: 4 * firstF[sl]
    DA = opt("pda", 6)
    rd = lambda F, j: w_read(A_W + 4 * (F % 8), order[F][1], j, wslot(order[F][0]) * 16384)
    pre_reads = [rd(F, j) for F in range(DA) for j in range(2)]
    TRW = opt("trw", 15) if heavy else 14
    bars = {}; cur = 0; seen = set(units[0][0])
    def barrier(u, lo, need):
        bb = G.place("b", "s_barrier", lo)
        G.put(bb, "s", "s_waitcnt WAITVM{%s}" % ",".join(need))
        bars[u] = bb
        return bb + 1
    for F in range(DA, NF):
        lo = 4 * (F - DA)
        if F in ustart:
            u = ustart.index(F)
            need = [k + str(sl) for sl in units[u][0] if sl not in seen for k in "xw"]
            seen |= set(units[u][0])
            if need or units[u][1][0] == 0: cur = barrier(u, max(cur, lo - 1), need or ["none"])
        if (opt("midb", 0) or F - DA - 1 == ustart[-1]) and (F - DA - 1) in ustart and len(units[ustart.index(F - DA - 1)][0]) == 2 and units[ustart.index(F - DA - 1)][1][0] == 0:
            cur = barrier(1000 + F, max(cur, lo - 1), ["none"])
        for j in range(2): cur = G.place("d", rd(F, j), max(cur, lo + 2 * j), firstuse[F] - 6) + 1
    NU = len(units)
    cur = barrier(NU, cur + 1, ["K0", "K1"])
    kord = [(kb, sl) for sl in range(4) for kb in range(2)]
    for kb, sl in kord: cur = G.place("d", k_read(kb, sl, 0), cur) + 1
    barrier(NU + 1, max(cur + 5, NP), ["none"])
    kpost = []
    for i, (kb, sl) in enumerate(kord):
        lo = NP + 4 * i + 3
        try: cur = G.place("d", k_read(kb, sl, 8192), max(cur, lo)) + 1
        except RuntimeError: kpost.append(k_read(kb, sl, 8192))
    freeg = lambda sl: min(x for x in bars.values() if x >= 4 * lastF[sl])
    def wseq(sl):
        return [("s", "s_add_u32 m0, %s, %d" % (s(S_M0W), wslot(sl) * 16384))] + [("m", x) for x in w_dma(heavy, "w%d" % sl)] + \
               [("s", "s_add_u32 %s, %s, %d\ns_add_u32 %s, %s, %d" % (s(S_WQOFF), s(S_WQOFF), 32 * 8192, s(S_WGOFF), s(S_WGOFF), 32 * 3456))]
    def xseq(sl): return [("m", x_load(sl, qb)) for qb in range(4)] + [("s", "s_add_u32 %s, %s, 4096" % (s(S_XOFF), s(S_XOFF)))]
    def kvseq(which, i):
        return [("s", "s_add_u32 m0, %s, %d\ns_mov_b32 %s, %d" % (s(S_M0K), (L_K if which == "K" else L_V) + i * 8192, s(S_KVOFF), (i + (VSH if which == "V" else 0)) * 8192))] + \
               [("m", kv_dma(which, k, "%s%d" % (which, i))) for k in range(2)]
    NX0 = opt("nx0", 2) if heavy else opt("lnx0", 3)
    e("s_mov_b32 %s, 0" % s(S_XOFF))
    q = []
    for sl in range(20):
        for kind in "wx":
            if kind == "w" and sl < NI: continue
            seq = wseq(sl) if kind == "w" else xseq(sl)
            if sl < NX0:
                for k, x in seq: e(x + ("\ns_nop 0" if " m0," in x else ""))
            else:
                lo = 0 if sl < RW else (freeg(sl - RW) if kind == "w" else 4 * lastF[sl - XD] + 3)
                q.append((lo, seq))
    late = {12: [("K", 0), ("K", 1)], 13: [("K", 2), ("K", 3)], 14: [("K", 4), ("K", 5)], 15: [("K", 6), ("K", 7)],
            16: [("V", 0), ("V", 1)], 17: [("V", 2), ("V", 3)], 18: [("V", 4)]}
    side = []
    for sl in range(12, 19):
        for which, i in late[sl]: side.append((freeg(sl), kvseq(which, i)))
    WT = opt("wt", 4)
    if WT:
        for k, sl in enumerate([int(x) for x in opt("wts", "0.1.4.7").split(".")], 1):
            seq = [("s", "s_mov_b32 %s, %d" % (s(S_TMP), k * WT * 32 * 8192)), ("m", "buffer_load_dword %s, %s, %s, %s offen" % (v(V_DUMP), v(V_TC + 1), s(S_WQ, 4), s(S_TMP)))]
            if heavy:
                seq += [("s", "s_mov_b32 %s, %d" % (s(S_TMP), k * WT * 32 * 3456)),
                        ("m", "buffer_load_dword %s, %s, %s, %s offen offset:2048" % (v(V_DUMP), v(V_TC), s(S_WG, 4), s(S_TMP))),
                        ("m", "buffer_load_dword %s, %s, %s, %s offen offset:3072" % (v(V_DUMP), v(V_TC), s(S_WU, 4), s(S_TMP)))]
            side.append((G1(sl) + opt("wtg", 30), seq))
    if opt("tw2", -1) >= 0:
        side.append((G1(opt("tw2", -1)), [("m", "global_load_dword %s, %s, %s" % (v(V_DUMP), v(V_T2), s(ptr(11), 2)))]))
        side.append((G1(opt("tw3", 8)), [("m", "global_load_dword %s, %s, %s" % (v(V_DUMP), v(V_T2 + 1), s(ptr(11), 2)))]))
        side.append((G1(opt("tw4", 10)), [("m", "global_load_dword %s, %s, %s" % (v(V_DUMP), v(V_T2 + 2), s(ptr(9), 2)))]))
    t0 = v(V_TRA + 3)
    if opt("kvt", 12): side.append((G1(opt("kvt", 12)), [("v", "v_min_u32 %s, 15, %s" % (t0, v(L))), ("v", "v_lshlrev_b32 %s, 7, %s" % (t0, t0)),
               ("s", "s_lshl2_add_u32 %s, %s, %s\ns_lshl_b32 %s, %s, 11" % (s(S_TMP), s(S_QT), s(S_WAVE), s(S_TMP), s(S_TMP))),
               ("m", "buffer_load_dword %s, %s, %s, %s offen" % (v(V_DUMP), t0, s(S_K, 4), s(S_TMP))),
               ("s", "s_add_u32 %s, %s, %d" % (s(S_TMP), s(S_TMP), VSH * 8192)),
               ("m", "buffer_load_dword %s, %s, %s, %s offen" % (v(V_DUMP), t0, s(S_V, 4), s(S_TMP)))]))
    side.sort(key=lambda t: t[0])
    MG = opt("pmg", 5) if heavy else opt("lmg", 4)
    g = 0; lastm = -9; vpost = []
    trlast = 0; lastload = 0
    while q or side:
        if side and (not q or side[0][0] <= max(g, q[0][0])): lo, seq = side.pop(0)
        else: lo, seq = q.pop(0)
        g = max(g, lo)
        for k, x in seq:
            if not vpost:
                try:
                    g = G.place(k, x, max(g + 1, lastm + (MG if g > opt("pmg0", 150) or not heavy else 4) if k == "m" else 0))
                    if k == "m": lastm = g
                    if re.search(r";#[xw]\d|;#trs", x) or "v%d," % V_DUMP in x: lastload = g
                    continue
                except RuntimeError: pass
            vpost.append(x + ("\ns_nop 0" if " m0," in x else ""))
    zlim = 4 * lastF[19 - max(NS, 1)] + 4 if opt("zds", 1) else 10 ** 9
    g = 0
    for sl in range(20 - XD, 20):
        lo = 4 * lastF[sl] + 4
        if lo <= zlim: continue
        for i in range(4):
            x = "ds_read_b128 %s, %s" % (a(A_X + 16 * (sl % XD) + 4 * i, 4), v(V_ZA))
            try: g = G.place("d", x, max(g, lo)) + 2
            except RuntimeError: kpost.append(x)
    auto_lgkm(G, eager=opt("peag", 8))
    g = lastload + 2
    for x in gen_tail_setup():
        g = G.place("v" if x.startswith("v_") else "s", x, g + 1)
    setup_end = g
    g = max(g, trlast)
    for x in gen_tail_setup2(): g = G.place("v" if x.startswith("v_") else "s", x, g + 1)
    HZ = 8
    post = []
    def lay(items):
        g = 0; out = []
        for lo, k, x, hi in items:
            if not out:
                try:
                    g = G.place(k, x, max(g + (0 if k == "v" else 1), lo), hi, force=(hi is not None)); continue
                except RuntimeError: pass
            assert hi is None
            out.append(x)
        return out
    its = []
    for sl in range(4):
        for qb in range(4):
            d0 = V_Q + (sl * 4 + qb) * 4
            lo = 4 * lastblk[2 * sl + 1] + 3 + HZ
            hi = NP - 3 if sl < 2 else NP + 8 * sl - 3
            for b in range(2):
                g0 = qacc(2 * sl + b, qb)
                for h in range(2): its.append((min(lo, hi), "v", "v_cvt_pk_bf16_f32 %s, %s, %s" % (v(d0 + 2 * b + h), v(g0 + 2 * h), v(g0 + 2 * h + 1)), hi))
    assert not lay(its)
    its = []
    if heavy:
        U = T
        for fb in range(4):
            for qb in range(4):
                g0 = V_ACCG + (fb * 4 + qb) * 4
                lo = 4 * lastblk[8 + fb] + 3 + HZ
                for r in range(4): its.append((lo, "v", "v_accvgpr_read_b32 %s, %s" % (v(U + r), a(A_ACCU + (fb * 4 + qb) * 4 + r)), None))
                for r in range(4): its.append((lo, "v", "v_max_f32 %s, 0, %s" % (v(g0 + r), v(g0 + r)), None))
                for r in range(4): its.append((lo, "v", "v_mul_f32 %s, %s, %s" % (v(g0 + r), v(g0 + r), v(U + r)), None))
                d0 = V_ACCG + ((fb & ~1) * 4 + qb) * 4 + 2 * (fb & 1)
                for h in range(2): its.append((lo, "v", "v_cvt_pk_bf16_f32 %s, %s, %s" % (v(d0 + h), v(g0 + 2 * h), v(g0 + 2 * h + 1)), None))
                if fb & 1:
                    if qb == 0: its.append((lo, "s", "s_lshl_b32 %s, %s, 13\ns_add_u32 %s, %s, %d" % (s(S_TMP + 6), s(S_FS), s(S_TMP + 6), s(S_TMP + 6), (128 + (fb >> 1)) * 4096), None))
                    its.append((lo, "m", "buffer_store_dwordx4 %s, %s, %s, %s offen offset:%d%s" % (v(d0 - 2, 4), v(V_L16), s(S_AF, 4), s(S_TMP + 6), 1024 * qb, STFL), None))
    post += lay(its)
    its = [(300, "v", x, None) for x in ones_ops(V_TRA + 2)]
    zs = []
    for k in range(XD):
        sl = max(x for x in range(20) if x % XD == k)
        zs.append((4 * lastF[sl] + 4, range(A_X + 16 * k, A_X + 16 * k + 16)))
    for lo, rr in sorted(zs, key=lambda t: t[0]):
        if lo > zlim: break
        for r in rr: its.append((lo, "v", "v_accvgpr_write_b32 %s, 0" % a(r), None))
    post += lay(its)
    if VERBOSE: print("proj", tag, G.pattern(), "| post", len(post), len(vpost), len(kpost))
    e.ext(pre_reads)
    e("s_waitcnt WAITVM{x%d} lgkmcnt(0)" % max(units[0][0]))
    stamp(e, 3)
    nm = 0
    for x in G.lines():
        if x.startswith("v_mfma"):
            if STAMPS and nm % (NP // 5) == 0 and 0 < nm < NP: stamp(e, 18 + nm // (NP // 5))
            if nm == NP: stamp(e, 4)
            nm += 1
        e(x)
    for x in kpost + vpost + post: e(x)
    e("s_mov_b32 %s, %d" % (s(S_KVOFF), 8 * 8192))
    e("s_nop 1")
    for r in range(8): e("v_mov_b32 %s, 0" % v(V_L + r))
    for qb in range(4): e("v_mov_b32 %s, 0xff800000" % v(V_NEGM + 4 * qb))
    e("s_waitcnt WAITVM{K2,K3}")
    e("s_waitcnt WAITVM{V0,V1,K4,K5}")
    r = resolve_vm(e.L)
    NV01.append(int(re.search(r"vmcnt\((\d+)\)", r.pop()).group(1)))
    e0.ext(r)

def kv_preload(e):
    e("s_mov_b32 %s, 0" % s(S_KVOFF))
    for i in range(9):
        if i < 8:
            e("s_add_u32 m0, %s, %d\ns_nop 0" % (s(S_M0K), L_K + i * 8192))
            e(kv_dma("K", 0)); e(kv_dma("K", 1))
        if i >= VSH:
            e("s_add_u32 m0, %s, %d\ns_nop 0" % (s(S_M0K), L_V + (i - VSH) * 8192))
            e(kv_dma("V", 0)); e(kv_dma("V", 1))
        if i < 8: e("s_add_u32 %s, %s, 8192" % (s(S_KVOFF), s(S_KVOFF)))
    e("s_waitcnt vmcnt(0)")

def Sreg(buf, qb, kb): return V_S + buf * 32 + qb * 8 + kb * 4
def Preg(buf, qb): return V_P + buf * 16 + qb * 4

def qk_mfmas(buf, czero=False, full=False):
    out = []
    if opt("qko", "snake") == "qks" and not czero and full:
        for qb in range(4):
            for i in range(2):
                kb = i if qb % 2 == 0 else 1 - i
                d = v(Sreg(buf, qb, kb), 4)
                for n, sl in enumerate(range(4) if i == 0 else range(3, -1, -1)):
                    out.append("%s %s, %s, %s, %s" % (MF, d, a(A_KF + (kb * 4 + sl) * 4, 4), v(V_Q + (sl * 4 + qb) * 4, 4), d if n else v(V_NEGM + 4 * qb, 4)))
        return out
    order = {"qks": [(kb, qb, sl) for kb in range(2) for qb in range(4) for sl in range(4)], "kqs": [(kb, qb, sl) for kb in range(2) for qb in range(4) for sl in range(4)],
             "ksq": [(kb, qb, sl) for kb in range(2) for sl in range(4) for qb in range(4)],
             "snake": [(kb, qb, sl) for kb in range(2) for qb in range(4) for sl in range(4)]}[opt("qko", "snake")]
    for kb, qb, sl0 in order:
                sl = sl0
                d = v(Sreg(buf, qb, kb), 4)
                if opt("qko", "snake") == "snake":
                    first = sl0 == 0
                    sl = sl0 if qb % 2 == 0 else 3 - sl0
                    c = ("0" if czero else v(V_NEGM + 4 * qb, 4)) if first else d
                    out.append("%s %s, %s, %s, %s" % (MF, d, a(A_KF + (kb * 4 + sl) * 4, 4), v(V_Q + (sl * 4 + qb) * 4, 4), c))
                    continue
                c = d if sl else ("0" if czero else v(V_NEGM + 4 * qb, 4))
                out.append("%s %s, %s, %s, %s" % (MF, d, a(A_KF + (kb * 4 + sl) * 4, 4), v(V_Q + (sl * 4 + qb) * 4, 4), c))
    return out

def pv_mfmas(buf, tailmode=False):
    out = []
    for h in range(2):
        out.append("v_smfmac_f32_16x16x64_bf16 %s, %s, %s, %s" % (v(V_L + 4 * h, 4), v(V_ONE, 4), v(Preg(buf, 2 * h), 8), v(V_SIDX)))
    pvo = opt("pvo", "qd2s")
    if pvo == "fake" and not tailmode:
        for h in range(4):
            for i in range(4):
                qb = i if h % 2 == 0 else 3 - i
                o = a(A_O + ((2 * h + buf) * 4 + qb) * 4, 4)
                for d in ((0, 1) if i % 2 == 0 else (1, 0)):
                    out.append("%s %s, %s, %s, %s" % (MF, o, a(A_VF + (2 * h + d) * 4, 4), v(Preg(buf, (qb + 2 * d) % 4), 4), o))
        return out
    if pvo == "fake": pvo = "dq"
    order = {"dq": [(db, qb) for db in range(8) for qb in range(4)],
             "snake": [(db, qb if db % 2 == 0 else 3 - qb) for db in range(8) for qb in range(4)],
             "qd2s": [(2 * h + (d if (i & 1) == 0 else 1 - d), i if h % 2 == 0 else 3 - i) for h in range(4) for i in range(4) for d in range(2)],
             "qd2": [(2 * h + d, qb) for h in range(4) for qb in range(4) for d in range(2)],
             "qd4": [(4 * h + d, qb) for h in range(2) for qb in range(4) for d in range(4)]}[pvo if not tailmode else "dq"]
    for db, qb in order:
            o = a(A_O + (db * 4 + qb) * 4, 4)
            out.append("%s %s, %s, %s, %s" % (MF, o, a(A_VF + db * 4, 4), v(Preg(buf, qb), 4), o))
    return out

def k_read(kb, sl, off, t=0): return "ds_read_b128 %s, %s offset:%d" % (a((A_KF, A_KF1)[t] + (kb * 4 + sl) * 4, 4), v(V_KA + sl), off + kb * 4096)
def v_read(db, j, t): return "ds_read_b64_tr_b16 %s, %s offset:%d" % (a(A_VF + 32 * t + db * 4 + 2 * j, 2), v(V_VA + db), 8192 * t + j * 4096)

def softmax_ops(buf):
    ex = []; cv = []
    for qb in range(4):
        for kb in range(2):
            for r in range(4):
                x = v(Sreg(buf, qb, kb) + r)
                ex.append("v_exp_f32 %s, %s" % (x, x))
            for h in range(2):
                b = Sreg(buf, qb, kb) + 2 * h
                cv.append("v_cvt_pk_bf16_f32 %s, %s, %s" % (v(Preg(buf, qb) + kb * 2 + h), v(b), v(b + 1)))
    return ex, cv

def gen_attention(e):
    T = V_T
    e("ATT_START:")
    stamp(e, 5)
    e("s_barrier")
    for qb in range(4):
        b = Sreg(0, qb, 0)
        e("v_max3_f32 %s, %s, %s, %s" % (v(T + 2 * qb), v(b), v(b + 1), v(b + 2)))
    for qb in range(4):
        b = Sreg(0, qb, 0)
        e("v_max3_f32 %s, %s, %s, %s" % (v(T + 2 * qb), v(T + 2 * qb), v(b + 3), v(V_NEGM + 4 * qb)))
    for n, sw in enumerate(("v_permlane32_swap_b32", "v_permlane16_swap_b32")):
        for qb in range(4): e("v_mov_b32 %s, %s" % (v(T + 2 * qb + 1), v(T + 2 * qb)))
        e("s_nop 0")
        for qb in range(4): e("%s %s, %s" % (sw, v(T + 2 * qb), v(T + 2 * qb + 1)))
        for qb in range(4):
            if n == 0: e("v_max_f32 %s, %s, %s" % (v(T + 2 * qb), v(T + 2 * qb), v(T + 2 * qb + 1)))
            else:
                for r in range(4): e("v_min_f32 %s, -%s, -%s" % (v(V_NEGM + 4 * qb + r), v(T + 2 * qb), v(T + 2 * qb + 1)))
    for qb in range(4):
        for r in range(0, 8, 2): e("v_pk_add_f32 %s, %s, %s" % (v(Sreg(0, qb, 0) + r, 2), v(Sreg(0, qb, 0) + r, 2), v(V_NEGM + 4 * qb, 2)))
    e("s_waitcnt lgkmcnt(0)")

    exE, cvE = softmax_ops(0); exO, cvO = softmax_ops(1)
    smf = lambda t, h: "v_smfmac_f32_16x16x64_bf16 %s, %s, %s, %s" % (v(V_L + 4 * h, 4), v(V_ONE, 4), v(Preg(t, 2 * h), 8), v(V_SIDX))
    def pvm(db, qb, t):
        o = a(A_O + (db * 4 + qb) * 4, 4)
        return "%s %s, %s, %s, %s" % (MF, o, a(A_VF + 32 * t + db * 4, 4), v(Preg(t, qb), 4), o)
    G = Gaps(qk_mfmas(1))
    for i in range(8): G.put(1 + 2 * i, "d", k_read(i // 4, i % 4, 24576, 1))
    for i in range(4): G.put(17 + 2 * i, "d", k_read(0, i, 16384))
    for i in range(4): G.put(31, "d", k_read(1, i, 16384))
    for i, x in enumerate(exE): G.put(i, "e", x)
    for i, x in enumerate(cvE[:4]): G.put(24 + 2 * i, "v", x)
    e.ext(G.lines())
    e.ext(exO[:NOE])
    for sl in range(4): e("v_add_u32 %s, 32768, %s" % (v(V_KA + sl), v(V_KA + sl)))
    e("s_mov_b32 %s, 16384" % s(S_TOG))
    e("s_mov_b32 %s, %d\ns_mov_b32 %s, %d" % (s(S_TMP + 3), 2 * 8192, s(S_TMP + 4), 6 * 8192 + L_V))
    e("s_waitcnt vmcnt(NVWAIT) lgkmcnt(0)\ns_barrier")
    for which, m0, inc in (("K", L_K, 1), ("K", L_K + 8192, 0), ("V", L_V + 5 * 8192, 1)):
        e("s_add_u32 m0, %s, %d\ns_nop 0" % (s(S_M0K), m0))
        e(kv_dma(which, 0)); e(kv_dma(which, 1))
        if inc: e("s_add_u32 %s, %s, 8192" % (s(S_KVOFF), s(S_KVOFF)))
    e("s_mov_b32 %s, %d\ns_cmp_eq_u32 %s, 0\ns_cselect_b32 %s, %d, %s" % (s(S_EVT), EV(27), s(S_WAVE), s(S_EVT), EVT0, s(S_EVT)))
    stamp(e, 6)
    e("s_cmp_lg_u32 %s, 0\ns_cbranch_scc1 NOSIG2" % s(S_RETRY))
    e("s_cmp_ge_u32 %s, 27\ns_cbranch_scc1 LT_INIT" % s(S_FS))
    e("NOSIG2:")
    mf = []
    for t in range(2):
        for qb in range(4):
            for i in range(2):
                kb = i if qb % 2 == 0 else 1 - i
                d = v(Sreg(t, qb, kb), 4)
                for n, sl in enumerate(range(4) if i == 0 else range(3, -1, -1)):
                    mf.append("%s %s, %s, %s, %s" % (MF, d, a((A_KF, A_KF1)[t] + (kb * 4 + sl) * 4, 4), v(V_Q + (sl * 4 + qb) * 4, 4), d if n else v(V_NEGM + 4 * qb, 4)))
    mf += [smf(0, 0), smf(1, 0), smf(1, 1), smf(0, 1)]
    H2 = 68
    for db in range(8):
        for i in range(4):
            qb = 3 - i if db % 2 == 0 else i
            for t in ((0, 1) if i % 2 == 0 else (1, 0)): mf.append(pvm(db, qb, t))
    G = Gaps(mf); end = G.n() - 1
    G.put(1, "b", "s_barrier"); G.put(0, "s", "s_waitcnt vmcnt(16) lgkmcnt(0)")
    NV1 = opt("nv1", 22)
    vrd = [(db, j, t) for db in range(8) for t in range(2) for j in range(2)]
    vg = {}
    eg = {}
    for i in range(NOE, 32): eg[i] = G.put(2 * (i - NOE), "e", exO[i])
    vvg = [int(x) for x in opt("vvg", "3.7.11.15.55").split(".")]
    dgs = [g for g in range(3, 64, 2) if g not in vvg]
    for i in range(NV1):
        db, j, t = vrd[i]; vg[db] = G.put(dgs[i], "d", v_read(db, j, t))
    rd2 = [("v",) + x for x in vrd[NV1:]] + [("k", kb, sl, 0) for kb in range(2) for sl in range(4)] + [("k", kb, sl, 1) for kb in range(2) for sl in range(4)]
    g = 64; kg = {}
    for i, x in enumerate(rd2):
        if x[0] == "v": g = G.place("d", v_read(*x[1:]), g, H2 + 8 * x[1] - 6); vg[x[1]] = g
        else: g = G.place("d", k_read(x[1], x[2], 8192 * x[3], x[3]), g); kg[x[2]] = g
        g += 1 if i < 4 else 2
    def adv(r, base):
        return ["s_add_u32 %s, %s, 8192" % (s(r), s(r)), "s_and_b32 %s, %s, 0xffff" % (s(r), s(r))] + (["s_or_b32 %s, %s, %d" % (s(r), s(r), base)] if base else [])
    last = 0
    for g in (opt("dg1", 54), opt("dg2", 76)):
        for which, r in (("K", S_TMP + 3), ("V", S_TMP + 4)):
            g = G.place("s", "s_add_u32 m0, %s, %s" % (s(S_M0K), s(r)), g)
            for i in range(2): g = G.place("m", kv_dma(which, i), g + opt("dsp", 2))
            g += 1
        for x in ["s_add_u32 %s, %s, 8192" % (s(S_KVOFF), s(S_KVOFF))] + adv(S_TMP + 3, 0) + adv(S_TMP + 4, L_V): g = G.place("s", x, g) + 1
        last = g
    items = [(0, 8 * (i // 4) - 1, cvE[i]) for i in range(4, 16)] + [(eg.get(2 * i + 1, -1) + 1, 32 + 8 * (i // 4) - 1, cvO[i]) for i in range(16)]
    for lo, hi, x in sorted(items, key=lambda t: t[1]): G.place("v", x, lo, hi)
    for i in range(4): G.place("v", cvE[i], end - 5 + opt("c0g", 2))
    g = 56
    xg = 0
    for db in range(8):
        y = max(vg[db], 64)
        while not (G.ds[y] and G.fits(y, "v")): y += 1
        xg = max(xg, G.put(y, "v", "v_xor_b32 %s, %s, %s" % (v(V_VA + db), s(S_TOG), v(V_VA + db))))
    for sl in range(4): xg = max(xg, G.place("v", "v_xor_b32 %s, %s, %s" % (v(V_KA + sl), s(S_TOG), v(V_KA + sl)), kg[sl]))
    for i, x in enumerate(exE + exO[:NOE]): g = G.place("e", x, g, end - 6 if i < 8 else end)
    g = G.place("s", "s_xor_b32 %s, %s, 32768" % (s(S_TOG), s(S_TOG)), xg + 1)
    G.place("s", "s_cmp_lt_u32 %s, %s" % (s(S_KVOFF), s(S_EVT)), max(g, last) + 1)
    auto_lgkm(G, [], loop=True, eager=opt("leag", 8))
    if VERBOSE: print("loop", G.pattern())
    e(".p2align 6\nATT_LOOP:")
    for x in G.lines(): e(x)
    e("s_cbranch_scc1 ATT_LOOP")
    e("s_cmp_lt_u32 %s, %d\ns_cbranch_scc1 ATT_EVT" % (s(S_KVOFF), EVTE))
    e("TAILC0:")
    global LIGHT_LOOP
    LIGHT_LOOP = light_loop(G)
    if STAMPS and opt("dly", 0):
        e("s_and_b32 s98, s2, 7\ns_cmp_lg_u32 s98, 1\ns_cbranch_scc1 NODLY")
        for _ in range(opt("dly", 0)): e("s_sleep 32")
        e("NODLY:")
    stamp(e, 7)
    e("s_waitcnt vmcnt(16) lgkmcnt(0)\ns_barrier")
    e("s_cmp_lg_u32 %s, 0\ns_cbranch_scc1 NOPOLLW" % s(S_WAVE))
    e(poll_load(True))
    e("NOPOLLW:")
    vr = [v_read(db, j, 0) for db in range(8) for j in range(2)]
    e.ext(vr)
    e.ext(cvE[4:])
    e("s_nop 0")
    h = E()
    sn2 = lambda q0: [(db, q0 + (i if db % 2 == 0 else 1 - i)) for db in range(8) for i in range(2)]
    mf = [smf(0, 0)] + [pvm(db, qb, 0) for db, qb in sn2(0)] + [smf(0, 1), smf(1, 0)] + [pvm(db, qb, 1) for db, qb in sn2(0)]
    P3 = len(mf)
    mf += [smf(1, 1)]
    for n, (db, qb) in enumerate(sn2(2)):
        for t in ((0, 1) if n % 2 == 0 else (1, 0)): mf.append(pvm(db, qb, t))
    G = Gaps(mf)
    for i in range(16): G.put(i, "d", v_read(i // 2, i % 2, 1))
    for i in range(NOE, 16): G.put(i - NOE + 1, "e", exO[i])
    for i in range(8): G.put(max(2 * i + 3 - NOE, 0) + 1, "v", cvO[i])
    for i in range(16, 32): G.put(i, "e", exO[i])
    for i in range(8, 16): G.put(min(2 * i + 2, P3 - 3), "v", cvO[i])
    pq = [x for sg in range(NPRE_X) for x in t8_a(sg)]
    assert NPRE_X <= 3
    G.put(P3 - 8, "s", "s_waitcnt lgkmcnt(0)\ns_barrier")
    pre, pend = auto_lgkm(G, [asmcheck.I(x, 0, 0).W for x in vr])
    g = 1
    while pq:
        k, x = pq.pop(0)
        if k == "s": G.sc[g].append(x); g += 1
        else: G.va[g].append(x); g += opt("x63", 2) if len(pq) % 3 else 1
    assert g < P3 + 8, g
    pro, grp = o_ops()
    NEG = opt("neg", 5)
    fill = pro[0] + [x for i in range(NEG) for x in grp(i, False)]
    g0 = max(P3 + 1, g); n = G.n() - g0
    for i, x in enumerate(fill): G.va[g0 + (i * n) // len(fill)].append(x)
    if pre is not None: h("s_waitcnt lgkmcnt(%d)" % pre)
    for x in G.lines(): h(x)
    return h.L, NEG

def o_ops():
    T = V_T; t = S_TMP
    Z = 248; C = 252; W = 224
    pro = []
    for hh in range(2):
        e = E()
        for qb in (2 * hh, 2 * hh + 1): e("v_add_f32 %s, %s, %s" % (v(V_L + 2 * qb), v(V_L + 2 * qb), v(V_L + 2 * qb + 1)))
        for qb in (2 * hh, 2 * hh + 1): e("v_rcp_f32 %s, %s" % (v(T + 2 * qb), v(V_L + 2 * qb)))
        if hh == 0:
            for r in range(4): e("v_mov_b32 %s, 0" % v(Z + r))
            for sl in range(4): e("s_lshl_b32 %s, %s, 14" % (s(44), s(S_HEAD)) if sl == 0 else "s_add_u32 %s, %s, %d" % (s(44 + sl), s(44), 4096 * sl))
        else:
            e("v_max3_f32 %s, %s, %s, %s" % (v(T + 8), v(V_L), v(V_L + 2), v(V_L + 4)))
            e("v_max_f32 %s, %s, %s" % (v(T + 8), v(T + 8), v(V_L + 6)))
            e("v_mul_f32 %s, %s, %s" % (v(T + 8), f2u(2.0 ** 64), v(T + 8)))
            e("v_mul_f32 %s, 0, %s" % (v(T + 8), v(T + 8)))
            for qb in range(4): e("v_fma_f32 %s, %s, 0, %s" % (v(T + 8), v(V_L + 2 * qb), v(T + 8)))
        for qb in (2 * hh, 2 * hh + 1): e("v_mov_b32 %s, %s" % (v(T + 2 * qb + 1), v(T + 2 * qb)))
        pro.append(e.L)
    def grp(i, pk):
        e = E()
        sl, qb = (i % 8) // 2, 2 * (i // 8) + i % 2
        d0 = 232 + 4 * (i % 2)
        for b in range(2):
            for r in range(4): e("v_accvgpr_read_b32 %s, %s" % (v(W + 4 * b + r), a(A_O + ((2 * sl + b) * 4 + qb) * 4 + r)))
        if pk:
            for h in range(4): e("v_pk_mul_f32 %s, %s, %s" % (v(W + 2 * h, 2), v(W + 2 * h, 2), v(T + 2 * qb, 2)))
        else:
            for r in range(8): e("v_mul_f32 %s, %s, %s" % (v(W + r), v(W + r), v(T + 2 * qb)))
        for h in range(4): e("v_cvt_pk_bf16_f32 %s, %s, %s" % (v(d0 + h), v(W + 2 * h), v(W + 2 * h + 1)))
        e("buffer_store_dwordx4 %s, %s, %s, %s offen offset:%d%s ;#ost" % (v(d0, 4), v(V_L16), s(S_AF, 4), s(44 + sl), 1024 * qb, STFL))
        e.L.append("s_nop 0\n%s %s, %s, %s, %s" % (MF, v(C, 4), v(Z, 4), v(d0, 4), "0" if i == 0 else v(C, 4)))
        return e.L
    return pro, grp

LT_SS, LT_SD = 44, 48
LT_SO, LT_DO, LT_R = 91, 96, 97
LT_VO, LT_VB, LT_VR, LT_AD = 40, 42, 44, 48
L_TRB = 131072
def light_loop(G):
    import copy
    G = copy.deepcopy(G)
    n = G.n()
    b = [g for g in range(n) if any("s_barrier" in x for x in G.va[g])][0]
    for bb in (b - 1, b): G.sc[bb] = [x.replace("vmcnt(%d)" % (16 + 2 * PWARM), "vmcnt(%d)" % (24 + 2 * PWARM)) for x in G.sc[bb]]
    lastm = max(g for g in range(n) if any(x.startswith("buffer") for x in G.va[g]))
    cmpg = [g for g in range(n) if any(x.startswith("s_cmp_lt_u32 %s" % s(S_KVOFF)) for x in G.sc[g])][-1]
    def lay(seq, g, hi, step=1):
        for k, x in seq:
            if k == "s":
                while not G.fits(g, "s"): g += 1
                G.put(g, "s", x)
            else:
                win = opt("ltw", 4) if k != "m" else opt("ltm", 4)
                g = min(range(g, min(g + win, hi) + 1), key=lambda y: (G.used[y] + (3 if (k == "d" and G.ds[y] and opt("ltd", 0)) else 0), y))
                (G.ds if k == "d" else G.va)[g].append(x); G.used[g] += 1 if k != "m" else 2
            g += step
            assert g <= hi + 1, (x, g, hi)
        return g
    g = lay([("d", "ds_read_b64_tr_b16 %s, %s offset:%d" % (v(LT_AD + 4 * f + 2 * j, 2), v(LT_VR + f), 1024 * j)) for f in range(2) for j in range(2)], b + 1, b + 30, 2)
    g1, g2 = opt("lts1", 44), opt("lts2", 50)
    lay(([("s", "s_waitcnt lgkmcnt(2)")] if g1 < 68 else []) + [("m", "buffer_store_dwordx4 %s, %s, %s, %s offen%s" % (v(LT_AD, 4), v(V_L16), s(LT_SD, 4), s(LT_DO), STFL))], g1, cmpg - 1)
    lay([("m", "buffer_store_dwordx4 %s, %s, %s, %s offen offset:1024%s" % (v(LT_AD + 4, 4), v(V_L16), s(LT_SD, 4), s(LT_DO), STFL)),
         ("s", "s_add_u32 %s, %s, %d" % (s(LT_DO), s(LT_DO), 8 * 10240)),
         ("s", "s_sub_u32 %s, %s, %d\ns_cselect_b32 %s, %s, %s" % (s(S_TMP + 1), s(LT_DO), 184 * 10240, s(LT_DO), s(LT_DO), s(S_TMP + 1)))], g2, cmpg - 1)
    g = lastm + 1
    lay([("s", "s_add_u32 m0, %s, %s" % (s(LT_R), s(S_TMP)))] +
        [("m", "buffer_load_dwordx4 %s, %s, %s offen offset:%d lds" % (v(LT_VO + i), s(LT_SS, 4), s(LT_SO), 1024 * i)) for i in range(2)] +
        [("s", "s_add_u32 %s, %s, %d\ns_add_u32 %s, %s, 2048" % (s(LT_SO), s(LT_SO), 8 * 40960, s(LT_R), s(LT_R))),
         ("s", "s_cmp_eq_u32 %s, 6144\ns_cselect_b32 %s, 0, %s" % (s(LT_R), s(LT_R), s(LT_R)))] +
        [("v", "v_add_u32 %s, %s, %s" % (v(LT_VR + f), s(LT_R), v(LT_VB + f))) for f in range(2)], g, cmpg - 1)
    if VERBOSE: print("lightloop", G.pattern())
    return G.lines()

def gen_events(e):
    L = V_LANE; t = S_TMP
    e("LT_INIT:")
    e("s_sub_u32 %s, %s, 27\ns_lshl_b32 %s, %s, 3\ns_add_u32 %s, %s, %s\ns_lshl2_add_u32 %s, %s, %s" % (s(t), s(S_FS), s(t), s(t), s(t), s(t), s(S_QT), s(t), s(t), s(S_WAVE)))
    e("s_mul_i32 %s, %s, 3277\ns_lshr_b32 %s, %s, 16\ns_mul_i32 %s, %s, 20\ns_sub_u32 %s, %s, %s" % (s(t + 1), s(t), s(t + 1), s(t + 1), s(t + 6), s(t + 1), s(t), s(t), s(t + 6)))
    e("s_mul_i32 %s, %s, 40960\ns_lshl_b32 %s, %s, 6\ns_add_u32 %s, %s, %s" % (s(LT_SO), s(t + 1), s(t + 6), s(t), s(LT_SO), s(LT_SO), s(t + 6)))
    e("s_add_u32 %s, %s, 104\ns_mul_i32 %s, %s, 10240" % (s(LT_DO), s(t + 1), s(LT_DO), s(LT_DO)))
    srd(e, LT_SS, ptr(8), 0, 1728 * 1280)
    e("s_mul_i32 %s, %s, 13108\ns_lshr_b32 %s, %s, 16\ns_mul_i32 %s, %s, %d\ns_lshl_b32 %s, %s, 11\ns_add_u32 %s, %s, %s\ns_add_u32 %s, %s, %d" % (
        s(t + 6), s(t), s(t + 6), s(t + 6), s(t + 6), s(t + 6), WFS - 10240, s(t + 1), s(t), s(t + 6), s(t + 6), s(t + 1), s(t + 6), s(t + 6), WF_OFF))
    srd(e, LT_SD, ptr(11), s(t + 6), (NSLAB - 1) * 10240 + 2048)
    e("s_mul_i32 %s, %s, 6144\ns_add_u32 %s, %s, %d\ns_mov_b32 %s, 0\ns_mov_b32 %s, %d" % (s(t), s(S_WAVE), s(t), s(t), L_TRB, s(LT_R), s(S_EVT), EV(7)))
    e("v_lshrrev_b32 %s, 2, %s\nv_bfe_u32 %s, %s, 4, 1\nv_and_b32 %s, 3, %s" % (v(46), v(L), v(47), v(L), v(48), v(L)))
    e("v_lshlrev_b32 %s, 1, %s\nv_xor_b32 %s, %s, %s\nv_mul_u32_u24 %s, 1280, %s\nv_lshl_add_u32 %s, %s, 4, %s\nv_add_u32 %s, %d, %s" % (
        v(49), v(47), v(49), v(49), v(48), v(LT_VO), v(46), v(LT_VO), v(49), v(LT_VO), v(LT_VO + 1), 16 * 1280 - 1024, v(LT_VO)))
    e("v_lshlrev_b32 %s, 6, %s\nv_lshl_add_u32 %s, %s, 3, %s\nv_lshl_add_u32 %s, %s, 5, %s\nv_add_u32 %s, %s, %s\nv_xor_b32 %s, 32, %s" % (
        v(LT_VB), v(46), v(LT_VB), v(48), v(LT_VB), v(LT_VB), v(47), v(LT_VB), v(LT_VB), s(t), v(LT_VB), v(LT_VB + 1), v(LT_VB)))
    e("v_mov_b32 %s, %s\nv_mov_b32 %s, %s" % (v(LT_VR), v(LT_VB), v(LT_VR + 1), v(LT_VB + 1)))
    e(".p2align 6\nLT_LOOP:")
    for x in LIGHT_LOOP: e(x)
    e("s_cbranch_scc1 LT_LOOP")
    e("s_cmp_lg_u32 %s, %d\ns_cbranch_scc1 LT_E2" % (s(S_KVOFF), EV(7)))
    srd(e, LT_SS, ptr(4), 0, 4096 * 1280)
    e("s_sub_u32 %s, %s, %d\ns_mov_b32 %s, %d\ns_branch LT_LOOP" % (s(LT_SO), s(LT_SO), 56 * 40960, s(S_EVT), EV(13)))
    e("LT_E2:")
    e("s_cmp_lg_u32 %s, %d\ns_cbranch_scc1 LT_E3" % (s(S_KVOFF), EV(13)))
    e("s_mov_b32 %s, %d\ns_cmp_lg_u32 %s, 0\ns_cbranch_scc1 LT_LOOP" % (s(S_EVT), EV(26), s(S_WAVE)))
    set_flag(e, 2)
    e("s_mov_b32 %s, %d\ns_branch LT_LOOP" % (s(S_EVT), EV(23)))
    e("LT_E3:")
    e("s_cmp_lg_u32 %s, %d\ns_cbranch_scc1 LT_END" % (s(S_KVOFF), EV(23)))
    e(poll_load(True))
    e("s_mov_b32 %s, %d\ns_branch LT_LOOP" % (s(S_EVT), EV(26)))
    e("LT_END:")
    e("s_mov_b32 %s, %d\ns_branch ATT_LOOP" % (s(S_EVT), EV(27)))
    def redirect(d, vd, shift, size):
        e("s_sub_u32 %s, %s, %s\ns_add_u32 %s, %s, %s\ns_addc_u32 %s, %s, 0" % (s(t + 6), s(T_BW[0]), s(T_M0W), s(d), s(T_SW), s(t + 6), s(d + 1), s(T_SW + 1)))
        e("s_sub_u32 %s, %s, %d\ns_subb_u32 %s, %s, 0\ns_mov_b32 %s, %d" % (s(d), s(d), shift, s(d + 1), s(d + 1), s(d + 2), size))
        e("v_add_u32 %s, %s, %s\nv_add_u32 %s, %s, %s" % (v(vd), s(S_M0K), v(V_L16), v(vd + 1), s(S_M0K), v(V_L16)))
    e("ATT_EVT:")
    e("s_cmp_lg_u32 %s, %d\ns_cbranch_scc1 ATT_EVT1" % (s(S_KVOFF), EV(27)))
    redirect(S_K, V_KD, 64 * 8192, 72 * 8192)
    e("s_mov_b32 %s, %d\ns_cmp_lg_u32 %s, 0\ns_cbranch_scc1 ATT_LOOP" % (s(S_EVT), EV(29) if NWP == 4 else EVTE, s(S_WAVE)))
    if NWP < 4: e("s_cmp_ge_u32 %s, 27\ns_cselect_b32 %s, %d, %s" % (s(S_FS), s(S_EVT), EV(29), s(S_EVT)))
    e("s_waitcnt vmcnt(16)")
    poll_spin(e, True, None, 2, "EARLY")
    e("s_branch ATT_LOOP")
    e("ATT_EVT1:")
    e("s_cmp_lg_u32 %s, %d\ns_cbranch_scc1 ATT_EVT2" % (s(S_KVOFF), EV(29)))
    if NWP == 4: redirect(S_V, V_VD, 68 * 8192 - 65536, 68 * 8192 + NWP * 20480 - 65536)
    e("s_mov_b32 %s, %d\ns_cmp_lg_u32 %s, 0\ns_cbranch_scc1 ATT_LOOP" % (s(S_EVT), EVTE, s(S_WAVE)))
    e("s_cmp_lt_u32 %s, 27\ns_cbranch_scc1 ATT_LOOP" % s(S_FS))
    set_flag(e, 3)
    e("s_branch ATT_LOOP")
    e("ATT_EVT2:")
    e("s_cmp_lg_u32 %s, %d\ns_cbranch_scc1 ATT_EVT3" % (s(S_KVOFF), EV(3)))
    set_flag(e, 3)
    e("s_mov_b32 %s, %d\ns_branch ATT_LOOP" % (s(S_EVT), EV(25)))
    e("ATT_EVT3:")
    if opt("ctt", 0):
        e("s_getpc_b64 %s\nCODE2:\ns_sub_u32 %s, %s, CODE2-TAILC0\ns_subb_u32 %s, %s, 0" % (s(t + 6, 2), s(t + 6), s(t + 6), s(t + 7), s(t + 7)))
        e("s_lshr_b32 %s, s2, 3\ns_lshl_b32 %s, %s, 10" % (s(t + 1), s(t + 1), s(t + 1)))
        e("v_min_u32 %s, 7, %s\nv_lshlrev_b32 %s, 7, %s\nv_add_u32 %s, %s, %s\nv_min_u32 %s, K_END-TAILC0, %s" % (v(V_PL), v(L), v(V_PL), v(V_PL), v(V_PL), s(t + 1), v(V_PL), v(V_PL), v(V_PL)))
        e("global_load_dword %s, %s, %s" % (v(V_DUMP), v(V_PL), s(t + 6, 2)))
    e(poll_load(True))
    e("s_mov_b32 %s, %d\ns_branch ATT_LOOP" % (s(S_EVT), EV(27)))
assert all((g * 3277) >> 16 == g // 20 for g in range(160)) and all((c * 13108) >> 16 == c // 5 for c in range(40))

K_SX, K_SO = S_WU, S_X
T_SA, T_SW, T_XS = S_T, S_WF, S_WQ
T_XO = S_WG
T_TAG = S_WG + 3
T_M0W, T_OA, T_OW = 88, 89, 90
T_BA, T_BW = (S_XOFF, S_WQOFF), (S_WGOFF, S_M0W)
K_FLG = 95
KV_XO = 63; KV_X = 8
TV_WR, TV_L4K, TV_TAG, TV_OW, TV_OR = 60, 61, 62, 3, 4
XPB = 12288
REUSE = 1
COAL = opt("coal", 1)
NSD, NSG = 7, 23
RW8, RA8, RF8 = 6, 5, 10
L_OWN = [122880, 0]

def join_scalar(lines):
    out = []
    for x in lines:
        if x.startswith(("s_addc", "s_cselect")): out[-1] += "\n" + x
        else: out.append(x)
    return out

def gen_tail_setup():
    e = E()
    L = V_LANE; t = S_TMP
    R, Cc, KQ = t + 3, t + 4, t + 5
    e("s_bfe_u32 %s, s2, 0x10002\ns_lshl_b32 %s, %s, 3\ns_lshr_b32 %s, s2, 5\ns_add_u32 %s, %s, %s" % (s(R), s(R), s(R), s(t), s(R), s(R), s(t)))
    e("s_bfe_u32 %s, s2, 0x20003\ns_and_b32 %s, s2, 3" % (s(Cc), s(KQ)))
    e("s_lshr_b32 %s, %s, 1\ns_lshl1_add_u32 %s, %s, %s\ns_lshl2_add_u32 %s, %s, %s\ns_mul_i32 %s, %s, %d" % (s(t), s(KQ), s(t), s(R), s(t), s(t), s(t), s(S_WAVE), s(t), s(t), 16 * 1280))
    e("s_and_b32 %s, %s, 1\ns_lshl1_add_u32 %s, %s, %s\ns_mul_i32 %s, %s, 160\ns_add_u32 %s, %s, %s" % (s(t + 1), s(KQ), s(t + 1), s(Cc), s(t + 1), s(t + 1), s(t + 1), s(t), s(t), s(t + 1)))
    srd(e, K_SX, ptr(0), s(t), 15 * 1280 + 160)
    srd(e, K_SO, ptr(9), s(t), 15 * 1280 + 160)
    e("v_and_b32 %s, 15, %s\nv_mul_u32_u24 %s, 1280, %s\nv_lshrrev_b32 %s, 4, %s\nv_lshl_add_u32 %s, %s, 3, %s" % (v(KV_XO), v(L), v(KV_XO), v(KV_XO), v(52), v(L), v(KV_XO), v(52), v(KV_XO)))
    e("s_lshr_b32 %s, %s, 1\ns_lshl2_add_u32 %s, %s, %s\ns_lshl_b32 %s, %s, %d" % (s(K_FLG), s(R), s(K_FLG), s(K_FLG), s(KQ), s(K_FLG), s(K_FLG), FSH + 3))
    e("s_mul_i32 %s, %s, 7\ns_add_u32 %s, %s, 64\ns_lshl_b32 %s, %s, 13\ns_mul_i32 %s, %s, 20480" % (s(t), s(KQ), s(t), s(t), s(T_BA[0]), s(t), s(T_BW[0]), s(t)))
    e("s_lshl_b32 %s, %s, 17\ns_mul_i32 %s, %s, %d" % (s(T_BA[1]), s(KQ), s(T_BW[1]), s(KQ), 16 * 20480))
    e("s_lshl2_add_u32 %s, %s, %s\ns_mul_i32 %s, %s, %d\ns_add_u32 %s, %s, %d" % (s(t), s(R), s(Cc), s(t), s(t), XGS, s(t), s(t), XP_OFF))
    srd(e, T_XS, ptr(11), s(t), 12 * XPB)
    for ch in range(2):
        d = T_XO + ch
        e("s_and_b32 %s, %s, 2\ns_add_u32 %s, %s, %d\ns_xor_b32 %s, %s, %s\ns_mul_i32 %s, %s, 3\ns_add_u32 %s, %s, %s\ns_sub_u32 %s, %s, 1" % (
            s(t), s(S_WAVE), s(t), s(t), ch, s(t + 1), s(t), s(KQ), s(t), s(t), s(t), s(t), s(t + 1), s(t), s(t)))
        e("s_mul_i32 %s, %s, %d\ns_and_b32 %s, %s, 1\ns_mul_i32 %s, %s, 6144\ns_add_u32 %s, %s, %s" % (s(t), s(t), XPB, s(d), s(S_WAVE), s(d), s(d), s(d), s(d), s(t)))
        e("s_cmp_eq_u32 %s, 0\ns_cselect_b32 %s, 0x1000000, %s" % (s(t + 1), s(d), s(d)))
    if PWARM:
        e("s_lshl2_add_u32 %s, %s, %s\ns_mul_i32 %s, %s, %d\ns_lshl_b32 %s, %s, 14\ns_add_u32 %s, %s, %s" % (s(t), s(S_QT), s(S_WAVE), s(t), s(t), NSLAB * 4096, s(t + 1), s(S_HEAD), s(t), s(t), s(t + 1)))
        e("v_mov_b32 %s, %s" % (v(V_PW), s(t)))
        for i, o in ((1, 6144), (2, 10240)):
            e("s_add_u32 %s, %s, %d\nv_writelane_b32 %s, %s, %d\nv_writelane_b32 %s, %s, %d" % (s(t + 1), s(t), o, v(V_PW), s(t + 1), 2 * i, v(V_PW), s(t + 1), 2 * i + 1))
        e("s_lshl2_add_u32 %s, %s, %s\ns_mul_i32 %s, %s, %d\ns_add_u32 %s, %s, %d" % (s(t + 2), s(R), s(Cc), s(t + 2), s(t + 2), 24 * XPB, s(t + 2), s(t + 2), XP_OFF))
        for m in range(2):
            for ch in range(2):
                i = 3 + 2 * m + ch
                e("s_add_u32 %s, %s, %s\ns_add_u32 %s, %s, %d" % (s(t + 1), s(t + 2), s(T_XO + ch), s(t + 1), s(t + 1), m * 12 * XPB))
                e("s_cmp_eq_u32 %s, 0x1000000\ns_cselect_b32 %s, %s, %s" % (s(T_XO + ch), s(t + 1), s(t), s(t + 1)))
                e("v_writelane_b32 %s, %s, %d\nv_writelane_b32 %s, %s, %d" % (v(V_PW), s(t + 1), 2 * i, v(V_PW), s(t + 1), 2 * i + 1))
        e("v_min_u32 %s, 14, %s" % (v(V_T), v(L)))
        L = V_T
        e("v_and_b32 %s, 1, %s\nv_lshl_add_u32 %s, %s, 7, %s\nv_subrev_u32 %s, 1280, %s" % (v(V_T), v(L), v(V_PW), v(V_T), v(V_PW), v(V_PW), v(V_PW)))
        L = V_LANE
    e("s_mul_i32 %s, %s, %d\ns_mul_i32 %s, %s, 3072\ns_add_u32 %s, %s, %s" % (s(T_XO + 2), s(KQ), 3 * XPB, s(t), s(S_WAVE), s(T_XO + 2), s(T_XO + 2), s(t)))
    e("s_add_u32 %s, %s, 0x10000\ns_and_b32 %s, %s, 0x1fff0000\ns_or_b32 %s, %s, 0x40000000\nv_mov_b32 %s, %s" % (s(t), s(S_EPOCH), s(t), s(t), s(T_TAG), s(t), v(TV_TAG), s(T_TAG)))
    e("s_and_b32 %s, %s, 1\ns_mul_i32 %s, %s, 10240\nv_add_u32 %s, %s, %s" % (s(t), s(S_WAVE), s(t), s(t), v(TV_OW), s(t), v(V_L16)))
    e("s_mul_i32 %s, %s, 5120\nv_add_u32 %s, %s, %s" % (s(t), s(S_WAVE), v(TV_OR), s(t), v(V_L16)))
    e("s_lshr_b32 %s, %s, 1\ns_lshl1_add_u32 %s, %s, %s\ns_mul_i32 %s, %s, %d" % (s(t), s(S_WAVE), s(t), s(R), s(t), s(t), s(t), AFS))
    e("s_and_b32 %s, %s, 1\ns_lshl_b32 %s, %s, 11\ns_add_u32 %s, %s, %s" % (s(t + 1), s(S_WAVE), s(t + 1), s(t + 1), s(t), s(t), s(t + 1)))
    srd(e, T_SA, ptr(11), s(t), NSLAB * 4096 - 2048)
    e("s_mul_i32 %s, %s, 5120" % (s(T_M0W), s(S_WAVE)))
    e("s_mul_i32 %s, %s, %d\ns_add_u32 %s, %s, %s\ns_add_u32 %s, %s, %d" % (s(t), s(Cc), WFS, s(t), s(t), s(T_M0W), s(t), s(t), WF_OFF))
    return join_scalar(e.L)

def gen_tail_setup2():
    e = E()
    srd(e, T_SW, ptr(11), s(S_TMP), 90 * 20480 + 5120)
    e("v_mov_b32 %s, %s\nv_add_u32 %s, 4096, %s" % (v(TV_WR), v(V_L16), v(TV_L4K), v(V_L16)))
    return join_scalar(e.L)

def t8_w(sg):
    base = (sg % RW8) * 20480; tag = "D%d" % sg
    m, i = (0, sg) if sg < NSD else (1, sg - NSD)
    W = lambda vo, off: ("m", "buffer_load_dwordx4 %s, %s, %s offen offset:%d%s lds ;#%s" % (v(vo), s(T_SW, 4), s(T_OW), off, LDFL, tag))
    return [("s", "s_add_u32 %s, %s, %d\ns_add_u32 m0, %s, %d" % (s(T_OW), s(T_BW[m]), i * 20480, s(T_M0W), base)),
            W(V_L16, 0), W(V_L16, 1024), W(V_L16, 2048), W(V_L16, 3072),
            ("s", "s_add_u32 m0, %s, %d" % (s(T_M0W), base + 4096)), W(TV_L4K, 0)]
def t8_af(sg, half, j): return a((192, 208, 224, 32, 48)[sg % RA8] + half * 8 + j * 4, 4)
def t8_a(sg):
    m, i = (0, sg) if sg < NSD else (1, sg - NSD)
    l = [("s", "s_add_u32 %s, %s, %d" % (s(T_OA), s(T_BA[m]), i * 8192))]
    for half in range(2):
        for j in range(2):
            l.append(("m", "buffer_load_dwordx4 %s, %s, %s, %s offen offset:%d%s ;#A%d" % (t8_af(sg, half, j), v(TV_L4K if half else V_L16), s(T_SA, 4), s(T_OA), j * 1024, LDFL, sg)))
    return l
def t8_wf(F):
    k = F % RF8
    return a(4 * k if k < 8 else 240 + 4 * (k - 8), 4)
def t8_read(F):
    sg, f = F // 20, F % 20
    if opt("t8c", 1): f = (f & 1) * 10 + (f >> 1)
    return "ds_read_b128 %s, %s offset:%d" % (t8_wf(F), v(TV_WR), (sg % 3) * 20480 + f * 1024)
def t8_acc(m, n10, j):
    i = n10 * 2 + j
    if m == 0: return 128 + 4 * i
    return 64 + 4 * i if i < 16 else 208 + 4 * (i - 16)
NWP = opt("nwp", 4)
NPRE_X = opt("nprex", 3)
NPRE_G = opt("npreg", 3)

def cond_lines(lines): return [("@" + x) if x.startswith("buffer") else x for x in lines]

def publish(m):
    out = []; n = 0
    for ch in range(2):
        if m == 1 and REUSE:
            t = S_TMP
            out.append(("s", "s_and_b32 %s, s2, 3\ns_and_b32 %s, %s, 2\ns_sub_u32 %s, %s, %s\ns_sub_u32 %s, %s, %d\ns_mul_i32 %s, %s, %d\ns_add_u32 %s, %s, %s" % (
                s(t), s(t + 1), s(S_WAVE), s(t), s(t), s(t + 1), s(t), s(t), ch, s(t), s(t), 3 * XPB, s(t + 2), s(T_XO + ch), s(t))))
        else:
            out.append(("s", "s_add_u32 %s, %s, %d" % (s(S_TMP + 2), s(T_XO + ch), m * 12 * XPB)))
        for j in range(2):
            vals = [t8_acc(m, 5 * ch + nb, j) + k for nb in range(5) for k in range(4)]
            pb = (40, 240)[n % 2]; n += 1
            for gi in range(3):
                vs = vals[7 * gi:7 * gi + 7]
                if len(vs) < 7: vs = vs + [TV_TAG]
                for h in range(3): out.append(("v", "v_cvt_pk_bf16_f32 %s, %s, %s" % (v(pb + 4 * gi + h), v(vs[2 * h]), v(vs[2 * h + 1]))))
                out.append(("v", "v_cvt_pk_bf16_f32 %s, %s, %s" % (v(pb + 4 * gi + 3), v(vs[6]), v(TV_TAG))))
                off = j * 3072 + gi * 1024
                out.append(("m", "buffer_store_dwordx4 %s, %s, %s, %s offen offset:%d%s ;#xst%d" % (v(pb + 4 * gi, 4), v(TV_L4K if off >= 4096 else V_L16), s(T_XS, 4), s(S_TMP + 2), off % 4096, STFL, m)))
    return out
def own_write(m):
    l = []
    if L_OWN[m]: l.append("v_add_u32 %s, %d, %s" % (v(52), L_OWN[m], v(TV_OW)))
    ar = v(52) if L_OWN[m] else v(TV_OW)
    for ch in range(2):
        l.append("s_cmp_lg_u32 %s, 0x1000000\ns_cbranch_scc1 NOOWN%d%d" % (s(T_XO + ch), m, ch))
        for j in range(2):
            for nb in range(5): l.append("ds_write_b128 %s, %s offset:%d" % (ar, v(t8_acc(m, 5 * ch + nb, j), 4), (j * 5 + nb) * 1024))
        l.append("NOOWN%d%d:" % (m, ch))
    return l
XR = [128, 64]; OWR = [164, 184]
T_SL = 72
def xloads(m):
    l = []
    for i in range(3):
        if m == 1 and REUSE: l.append(("s", "s_mov_b32 %s, %s" % (s(S_TMP + 3), s(T_SL + i))))
        else: l.append(("s", "s_add_u32 %s, %s, %d" % (s(S_TMP + 3), s(T_XO + 2), m * 12 * XPB + i * XPB)))
        for k in range(3): l.append(("m", "buffer_load_dwordx4 %s, %s, %s, %s offen offset:%d%s ;#xr%d" % (v(XR[m] + (i * 3 + k) * 4, 4), v(V_L16), s(T_XS, 4), s(S_TMP + 3), k * 1024, LDFL, m)))
    return l
def xcheck(e, m, first_wait):
    t = S_TMP
    e("s_mov_b32 %s, 0" % s(t + 7))
    e(first_wait)
    e("XCHK%d:" % m)
    for i in range(9): e("v_xor_b32 %s, %s, %s" % (v(20 + i), s(T_TAG), v(XR[m] + 4 * i + 3)))
    for i in range(4): e("v_or3_b32 %s, %s, %s, %s" % (v(20), v(20), v(21 + 2 * i), v(22 + 2 * i)))
    e("v_cmp_lt_u32 vcc, 0xffff, %s" % v(20))
    e("s_add_u32 %s, %s, 1" % (s(t + 7), s(t + 7)))
    e("s_cmp_eq_u64 vcc, 0\ns_cbranch_scc1 XOK%d" % m)
    e("s_cmp_ge_u32 %s, 0x40000\ns_cbranch_scc1 XOK%d" % (s(t + 7), m))
    if m == 0 and opt("dprb", 1):
        e("v_min_u32 %s, 2, %s\nv_mul_u32_u24 %s, %d, %s\ns_add_u32 %s, %s, %d" % (v(31), v(V_LANE), v(31), XPB, v(31), s(t + 3), s(T_XO + 2), 2048 + 1008 + 12))
        e("DPROBE:")
        e("s_sleep %d" % opt("dslp", 24))
        e("@buffer_load_dword %s, %s, %s, %s offen%s" % (v(30), v(31), s(T_XS, 4), s(t + 3), LDFL))
        e("s_waitcnt vmcnt(0)")
        e("v_xor_b32 %s, %s, %s\nv_cmp_lt_u32 vcc, 0xffff, %s" % (v(30), s(T_TAG), v(30), v(30)))
        e("s_add_u32 %s, %s, 1" % (s(t + 7), s(t + 7)))
        e("s_cmp_ge_u32 %s, 0x40000\ns_cbranch_scc1 DPROBED" % s(t + 7))
        e("s_cmp_lg_u64 vcc, 0\ns_cbranch_scc1 DPROBE")
        e("DPROBED:")
    else:
        e("s_sleep %d" % opt("xslp", 4))
    for x in cond_lines([x for _, x in xloads(m)]): e(x)
    e("s_waitcnt vmcnt(0)\ns_branch XCHK%d" % m)
    e("XOK%d:" % m)
def xsum(e, m, nb):
    o = OWR[m] + 4 * nb
    for i in range(3):
        for k in range(4):
            idx = nb * 4 + k; gi, pos = idx // 7, idx % 7
            src = XR[m] + (i * 3 + gi) * 4 + pos // 2
            e(("v_and_b32 %s, 0xffff0000, %s" if pos & 1 else "v_lshlrev_b32 %s, 16, %s") % (v(20 + 4 * i + k), v(src)))
    for h in range(2):
        e("v_pk_add_f32 %s, %s, %s" % (v(o + 2 * h, 2), v(o + 2 * h, 2), v(20 + 2 * h, 2)))
        e("v_pk_add_f32 %s, %s, %s" % (v(24 + 2 * h, 2), v(24 + 2 * h, 2), v(28 + 2 * h, 2)))
    for h in range(2): e("v_pk_add_f32 %s, %s, %s" % (v(o + 2 * h, 2), v(o + 2 * h, 2), v(24 + 2 * h, 2)))

CV_G, CV_L, CV_X, LROW, L_FIN = 8, 11, 224, 336, 20480
NIN = opt("nin", 6)
OGAP = opt("og", 50)
def gen_t8(e, inner):
    t = S_TMP
    mf = []
    NF = 20 * NSG
    for F in range(NF):
        sg, f = F // 20, F % 20
        m = 0 if sg < NSD else 1
        if opt("t8c", 1):
            j = f & 1; F0 = F - j
            d = v(t8_acc(m, f >> 1, j), 4)
            for i, half in enumerate((0, 1) if j == 0 else (1, 0)):
                mf.append("%s %s, %s, %s, %s" % (MF, d, t8_wf(F0 + half), t8_af(sg, half, j), "0" if (sg in (0, NSD) and i == 0) else d))
            continue
        for j in range(2):
            d = v(t8_acc(m, f % 10, j), 4)
            mf.append("%s %s, %s, %s, %s" % (MF, d, t8_wf(F), t8_af(sg, f // 10, j), "0" if (sg in (0, NSD) and f < 10) else d))
    G = Gaps(mf)
    DA = opt("t8d", 8)
    SIGS = opt("sigs", 3); CKS = opt("cks", 6); PLS = CKS - opt("polld", 1)
    bars = {}
    cur = 0
    for F in range(DA, NF):
        sg, f = F // 20, F % 20
        lo = 2 * (F - DA)
        if f == 0:
            if sg % 3 == 0:
                d = 61440 if sg % 6 == 3 else -61440
                G.place("v", ("v_add_u32 %s, %d, %s" % (v(TV_WR), d, v(TV_WR))) if d > 0 else ("v_subrev_u32 %s, %d, %s" % (v(TV_WR), -d, v(TV_WR))), cur - 1, cur - 1)
            pre = E(); post = E()
            if sg == CKS:
                stamp(pre, 11)
                pre("s_cmp_lg_u32 %s, 0\ns_cbranch_scc1 SPUN_O\ns_waitcnt SINCE{p3}" % s(S_WAVE))
                poll_spin(pre, False, s(K_FLG), 4, "O")
                stamp(post, 12)
            if sg == SIGS:
                W = V_T + 12
                post("ds_read_b128 %s, %s\ns_waitcnt lgkmcnt(0)" % (v(W + 4, 4), v(W + 2)))
                post("v_or3_b32 %s, %s, %s, %s\nv_or_b32 %s, %s, %s\ns_nop 0" % (v(W + 4), v(W + 4), v(W + 5), v(W + 6), v(W + 4), v(W + 4), v(W + 7)))
                post("v_readfirstlane_b32 %s, %s" % (s(t), v(W + 4)))
                post("s_nop 3\ns_andn2_b32 %s, %s, %s" % (s(t), s(t), s(S_RETRY)))
                post("s_cbranch_scc1 ATT_RETRY")
                post("s_cmp_lg_u32 %s, 0\ns_cbranch_scc1 NOSIG3" % s(S_WAVE))
                set_flag(post, 4)
                post("s_cmp_lg_u32 s2, 0\ns_cbranch_scc1 NOSIG3")
                post("s_add_u32 %s, %s, 0x10001\ns_mov_b64 exec, 1\nv_mov_b32 %s, %s\ns_mov_b32 %s, %d" % (s(t + 7), s(S_EPOCH), v(V_PL + 1), s(t + 7), s(t + 6), EP_OFF))
                post("buffer_store_dword %s, off, %s, %s sc1\ns_mov_b64 exec, -1" % (v(V_PL + 1), s(S_FL, 4), s(t + 6)))
                post("NOSIG3:")
                stamp(post, 10)
            if sg == PLS:
                post("s_cmp_lg_u32 %s, 0\ns_cbranch_scc1 NOPOLL3" % s(S_WAVE))
                post(poll_load(False, s(K_FLG)))
                post("NOPOLL3:\nMARK p3")
            b = G.place("b", "\n".join(cond_lines(pre.L) + ["s_barrier"] + cond_lines(post.L)), max(cur, lo - 1))
            lateA = NSD <= sg < NSD + opt("latea", 2) or NPRE_G <= sg < NPRE_G + opt("lateb", 1)
            G.put(b, "s", "s_waitcnt WAITVM{D%d%s%s}" % (sg, "" if lateA else ",A%d" % sg, ",ost" if sg == SIGS else ""))
            if lateA: G.put(40 * sg - 1, "s", "s_waitcnt WAITVM{A%d}" % sg)
            bars[sg] = b; cur = b + 1
        cur = G.place("d", t8_read(F), max(cur, lo)) + 1
    LG = OGAP if opt("ldel", 1) and inner else 0
    if inner:
        body, fin = inner
        free = [g for g in range(OGAP) if g not in bars.values()]
        for i, x in enumerate(body):
            g = free[(i * len(free)) // len(body)]
            G.va[g].append(x); G.used[g] = 2
        g = OGAP + 8
        while g in bars.values(): g += 1
        G.va[g].append("\n".join(fin)); G.used[g] = 2
        assert g + 16 < bars[SIGS], "retry flag must be written (and waited for) before the deciding barrier"
    qw = [(t8_w(sg), bars[sg - RW8 + 2] if sg >= RW8 else LG, sg) for sg in range(max(NPRE_G, NWP), NSG)]
    qa = [(t8_a(sg), max(40 * (sg - RA8 + 1) if sg >= RA8 else 0, bars[CKS] if sg >= NSD else LG), sg) for sg in range(NPRE_G, NSG)]
    DP = opt("dpub", 1)
    side = []
    if DP:
        side.append((publish(0), 40 * NSD + 8 + opt("dpd", 8)))
        side.append((xloads(0), 40 * opt("dld", 20)))
    if COAL:
        seq = []
        for i in range(3):
            seq += [("v", "v_add_u32 %s, %d, %s" % (v(CV_G + i), 64 * i, v(V_LANE))), ("v", "v_mul_u32_u24 %s, 6554, %s" % (v(36), v(CV_G + i))), ("v", "v_lshrrev_b32 %s, 16, %s" % (v(36), v(36))),
                    ("v", "v_lshlrev_b32 %s, 5, %s" % (v(CV_L + i), v(CV_G + i))), ("v", "v_mad_u32_u24 %s, %s, %d, %s" % (v(CV_L + i), v(36), LROW - 320, v(CV_L + i))),
                    ("v", "v_mul_u32_u24 %s, 1120, %s" % (v(36), v(36))), ("v", "v_lshl_add_u32 %s, %s, 4, %s" % (v(CV_G + i), v(CV_G + i), v(36))),
                    ("m", "buffer_load_dwordx4 %s, %s, %s, 0 offen ;#xx" % (v(CV_X + 4 * i, 4), v(CV_G + i), s(K_SX, 4)))]
        side.append((seq, 40 * opt("xld", 19)))
    else:
        side.append(([("m", "buffer_load_dwordx2 %s, %s, %s, 0 offen offset:%d ;#xx" % (v(KV_X + 2 * nb, 2), v(KV_XO), s(K_SX, 4), nb * 32)) for nb in range(5)], 40 * opt("xld", 19)))
    side.sort(key=lambda x: x[1])
    MG = opt("mg", 4)
    g = 0; lastm = -9
    while qw or qa:
        c = [x for x in (qw, qa) if x]
        c.sort(key=lambda x: (max(x[0][1], g), x[0][2]))
        seq, lo, _ = c[0].pop(0)
        g = max(g, lo)
        for k, x in seq:
            g = G.place(k, x, max(g + 1, lastm + MG if k == "m" else 0))
            if k == "m": lastm = g
    for seq, lo in side:
        g = lo; lastm = -99
        for k, x in seq:
            g = G.place(k, x, max(g + (0 if k == "v" else 1), lastm + (opt("smg", 16) if "xst" in x else 6) if k == "m" else 0))
            if k == "m": lastm = g
        if "xst0" in seq[-1][1]:
            G.va[g + 1].append("\n".join(own_write(0))); pubend = g + 1
    if DP: assert pubend < 40 * opt("dld", 20) - 40
    auto_lgkm(G, eager=opt("eag", 8))
    if VERBOSE: print("t8", G.pattern())
    for F in range(DA): e(t8_read(F))
    e("s_waitcnt lgkmcnt(0)")
    nm = 0
    for x in G.lines():
        if x.startswith("v_mfma"):
            if nm == 40 * NSD: stamp(e, 13)
            if STAMPS and opt("t8st", 0) and nm > 40 * NSD and (nm - 40 * NSD) % 160 == 0: stamp(e, 25 + (nm - 40 * NSD) // 160)
            nm += 1
        e(x)

def gen_tail(e0, head):
    head, neg = head
    e = E(); e.ext(head)
    T = V_T; t = S_TMP
    stamp(e, 8)
    C = 252
    W = T + 12
    wq = [x for sg in range(NPRE_X, NPRE_G) for x in (t8_w(sg) if sg >= NWP else []) + t8_a(sg)]
    def wsome(n):
        while wq and n > 0:
            k, x = wq.pop(0); n -= (k == "m")
            e(x + ("\ns_nop 0" if k == "s" else ""))
    wsome(opt("wpre", 0))
    pro, grp = o_ops()
    body = []
    for i in range(neg, 16):
        blk = i < 16 - NIN
        if i == 8: (e.L if blk else body).extend(pro[1])
        for x in grp(i, blk):
            if blk: e(x)
            else: body.append(x)
    wsome(99)
    f = E()
    f("v_cmp_u_f32 vcc, %s, %s" % (v(T + 8), v(C)))
    f("s_cmp_lg_u64 vcc, 0\ns_cselect_b32 %s, 1, 0" % s(t))
    f("v_mov_b32 %s, %s" % (v(W), s(t)))
    f("s_lshl_b32 %s, %s, 2\ns_add_u32 %s, %s, %d" % (s(t + 1), s(S_WAVE), s(t + 1), s(t + 1), L_MISC))
    f("v_mov_b32 %s, %s\nv_mov_b32 %s, %d" % (v(W + 1), s(t + 1), v(W + 2), L_MISC))
    f("ds_write_b32 %s, %s" % (v(W + 1), v(W)))
    if not body:
        e("s_nop 7"); e.ext(f.L)
    e("s_waitcnt WAITVM{D0,A0} lgkmcnt(0)")
    e("s_cmp_lg_u32 %s, 0\ns_cbranch_scc1 SPUN_EARLY3" % s(S_WAVE))
    w0 = E(); poll_spin(w0, True, None, 3, "EARLY3")
    for x in cond_lines(w0.L): e(x)
    e("v_min_u32 %s, 7, %s\nv_lshlrev_b32 %s, %d, %s" % (v(V_PL + 3), v(V_LANE), v(V_PL + 3), FSH, v(V_PL + 3)))
    e("s_barrier")
    stamp(e, 9)
    gen_t8(e, (body, f.L) if body else None)
    stamp(e, 14)
    if REUSE:
        xcheck(e, 0, "s_waitcnt WAITVM{xr0,xx}")
        e("s_barrier")
        e("s_xor_b32 %s, %s, 0x80000000\nv_mov_b32 %s, %s" % (s(T_TAG), s(T_TAG), v(TV_TAG), s(T_TAG)))
    else:
        e("s_nop 6")
    for k, x in publish(1): e(x)
    stamp(e, 23)
    for x in own_write(1): e(x)
    e("v_add_u32 %s, %d, %s" % (v(52), L_OWN[0], v(TV_OR)))
    if REUSE:
        for i in range(3):
            e("s_and_b32 %s, s2, 3\ns_xor_b32 %s, %s, %d\ns_sub_u32 %s, %s, %s\ns_mul_i32 %s, %s, %d\ns_add_u32 %s, %s, %s\ns_add_u32 %s, %s, %d" % (
                s(t), s(t + 1), s(t), i + 1, s(t), s(t + 1), s(t), s(t), s(t), 3 * XPB, s(t), s(t), s(T_XO + 2), s(T_SL + i), s(t), i * XPB))
    e("s_waitcnt lgkmcnt(0)")
    e("s_barrier")
    for nb in range(5): e("ds_read_b128 %s, %s offset:%d" % (v(OWR[0] + 4 * nb, 4), v(52), nb * 1024))
    for nb in range(5): e("ds_read_b128 %s, %s offset:%d" % (v(OWR[1] + 4 * nb, 4), v(TV_OR), L_OWN[1] + nb * 1024))
    if REUSE: e("s_waitcnt lgkmcnt(0)")
    else: xcheck(e, 0, "s_waitcnt WAITVM{xr0,xx} lgkmcnt(0)")
    GG = 100; XU = 204
    e("v_mov_b32 %s, %s" % (v(36), f2u(1.0 / DSC)))
    MP0, MP1 = opt("mp0", 2), opt("mp1", 9)
    e("v_mov_b32 %s, %s\nv_writelane_b32 %s, %s, 0\nv_writelane_b32 %s, %s, 1\ns_movk_i32 %s, %d\ns_mov_b32 %s, 0" % (v(38), s(T_SL + 2), v(38), s(T_SL), v(38), s(T_SL + 1), s(t + 4), 2048 + 1008 + 12, s(t + 5)))
    PLD = "@buffer_load_dword %s, %s, %s, %s offen%s" % (v(37), v(38), s(T_XS, 4), s(t + 4), LDFL)
    for nb in range(5):
        if nb == MP0 and MP1 < 9: e(PLD)
        if nb == MP1:
            e("s_waitcnt vmcnt(0)")
            e("v_xor_b32 %s, %s, %s\nv_cmp_lt_u32 vcc, 0xffff, %s" % (v(37), s(T_TAG), v(37), v(37)))
            e("s_cmp_lg_u64 vcc, 0\ns_cbranch_scc1 NOEARLY")
            for x in cond_lines([x for _, x in xloads(1)]): e(x)
            e("s_mov_b32 %s, 1\nNOEARLY:" % s(t + 5))
        d = OWR[0] + 4 * nb; gq = GG + 4 * nb
        xsum(e, 0, nb)
        for k in range(4): e("v_mul_f32 %s, %s, %s" % (v(gq + k), f2u(-math.log2(math.e) * DSC), v(d + k)))
        for k in range(4): e("v_exp_f32 %s, %s" % (v(gq + k), v(gq + k)))
        e("s_nop 0")
        for k in range(4): e("v_fma_f32 %s, %s, %s, %s" % (v(gq + k), v(gq + k), v(36), v(36)))
        for k in range(4): e("v_rcp_f32 %s, %s" % (v(gq + k), v(gq + k)))
        if not COAL:
            for h in range(2):
                e("v_lshlrev_b32 %s, 16, %s" % (v(XU + 4 * nb + 2 * h), v(KV_X + 2 * nb + h)))
                e("v_and_b32 %s, 0xffff0000, %s" % (v(XU + 4 * nb + 2 * h + 1), v(KV_X + 2 * nb + h)))
        else: e("s_nop 0")
        for k in range(4): e("v_mul_f32 %s, %s, %s" % (v(gq + k), v(gq + k), v(d + k)))
    if COAL:
        XU = 128
        for i in range(12):
            e("v_lshlrev_b32 %s, 16, %s\nv_and_b32 %s, 0xffff0000, %s" % (v(XU + 2 * i), v(CV_X + i), v(XU + 2 * i + 1), v(CV_X + i)))
        e("s_mul_i32 %s, %s, %d\ns_add_u32 %s, %s, %d" % (s(t), s(S_WAVE), 20 * LROW, s(t), s(t), L_FIN))
        e("v_and_b32 %s, 15, %s\nv_mul_u32_u24 %s, %d, %s\nv_lshrrev_b32 %s, 4, %s\nv_lshl_add_u32 %s, %s, 4, %s\nv_add_u32 %s, %s, %s" % (v(14), v(V_LANE), v(14), LROW, v(14), v(15), v(V_LANE), v(14), v(15), v(14), v(14), s(t), v(14)))
        for i in range(3): e("v_add_u32 %s, %s, %s" % (v(CV_L + i), s(t), v(CV_L + i)))
    stamp(e, 24)
    e("s_mov_b32 %s, 0" % s(t + 7))
    e("s_cmp_lg_u32 %s, 0\ns_cbranch_scc1 LOADED" % s(t + 5))
    e("PROBE:")
    e(PLD)
    e("s_waitcnt vmcnt(0)")
    e("v_xor_b32 %s, %s, %s\nv_cmp_lt_u32 vcc, 0xffff, %s" % (v(37), s(T_TAG), v(37), v(37)))
    e("s_add_u32 %s, %s, 1" % (s(t + 7), s(t + 7)))
    e("s_cmp_eq_u64 vcc, 0\ns_cbranch_scc1 PROBED")
    e("s_cmp_ge_u32 %s, 0x40000\ns_cbranch_scc1 PROBED" % s(t + 7))
    e("s_sleep %d\ns_branch PROBE" % opt("pslp", 12))
    e("PROBED:")
    for k, x in xloads(1): e(x)
    e("LOADED:")
    xcheck(e, 1, "s_waitcnt vmcnt(0)")
    stamp(e, 25)
    OFL = opt("ofl", "_sc1").replace("_", " ")
    for nb in range(5):
        o = OWR[1] + 4 * nb; gq = GG + 4 * nb; xu = XU + 4 * nb
        xsum(e, 1, nb)
        if COAL:
            for h in range(2): e("v_pk_mul_f32 %s, %s, %s" % (v(o + 2 * h, 2), v(o + 2 * h, 2), v(gq + 2 * h, 2)))
            e("ds_write_b128 %s, %s offset:%d" % (v(14), v(o, 4), nb * 64))
            continue
        for r in range(4): e("v_fma_f32 %s, %s, %s, %s" % (v(xu + r), v(o + r), v(gq + r), v(xu + r)))
        for h in range(2): e("v_cvt_pk_bf16_f32 %s, %s, %s" % (v(gq + h), v(xu + 2 * h), v(xu + 2 * h + 1)))
        e("buffer_store_dwordx2 %s, %s, %s, 0 offen offset:%d%s" % (v(gq, 2), v(KV_XO), s(K_SO, 4), nb * 32, OFL))
    if COAL:
        for i in range(3):
            for h in range(2): e("ds_read_b128 %s, %s offset:%d" % (v(64 + 8 * i + 4 * h, 4), v(CV_L + i), 16 * h))
        for i in range(3):
            e("s_waitcnt lgkmcnt(%d)" % (4 - 2 * i))
            for h in range(4): e("v_pk_add_f32 %s, %s, %s" % (v(64 + 8 * i + 2 * h, 2), v(64 + 8 * i + 2 * h, 2), v(XU + 8 * i + 2 * h, 2)))
            for h in range(4): e("v_cvt_pk_bf16_f32 %s, %s, %s" % (v(100 + 4 * i + h), v(64 + 8 * i + 2 * h), v(65 + 8 * i + 2 * h)))
            e("buffer_store_dwordx4 %s, %s, %s, 0 offen%s" % (v(100 + 4 * i, 4), v(CV_G + i), s(K_SO, 4), OFL))
    e0.ext([x.lstrip("@") for x in resolve_vm(e.L)])
    e = e0
    stamp(e, 15)
    if STAMPS: e("s_waitcnt vmcnt(0)")
    stamp(e, 16)
    stamp_fin(e)

def gen_kv_addr(e):
    T = V_T + 12; L = V_LANE
    e("s_lshl_b32 %s, %s, 19" % (s(S_TMP), s(S_HEAD)))
    srd(e, S_K, 54, s(S_TMP), 524288)
    srd(e, S_V, 56, s(S_TMP), 524288 + VSH * 8192)
    e("s_sub_u32 %s, %s, %d\ns_subb_u32 %s, %s, 0" % (s(S_V), s(S_V), VSH * 8192, s(S_V + 1), s(S_V + 1)))
    e("v_lshrrev_b32 %s, 4, %s\ns_lshl_b32 %s, %s, 3\nv_add_u32 %s, %s, %s\nv_and_b32 %s, 15, %s" % (v(T), v(L), s(S_TMP), s(S_WAVE), v(T), s(S_TMP), v(T), v(T + 1), v(L)))
    e("v_lshlrev_b32 %s, 8, %s" % (v(T + 2), v(T)))
    for i in range(2):
        e("v_add_u32 %s, %d, %s\nv_and_b32 %s, 15, %s\nv_xor_b32 %s, %s, %s\nv_lshl_add_u32 %s, %s, 4, %s" % (v(T + 3), 4 * i, v(T), v(T + 4), v(T + 3), v(T + 4), v(T + 4), v(T + 1), v(V_KD + i), v(T + 4), v(T + 2)))
        e("v_and_b32 %s, 7, %s\nv_lshlrev_b32 %s, 1, %s\nv_xor_b32 %s, %s, %s\nv_lshl_add_u32 %s, %s, 4, %s" % (v(T + 4), v(T + 3), v(T + 4), v(T + 4), v(T + 4), v(T + 4), v(T + 1), v(V_VD + i), v(T + 4), v(T + 2)))
    e("v_and_b32 %s, 15, %s\nv_lshrrev_b32 %s, 4, %s\nv_xor_b32 %s, %s, %s" % (v(T), v(L), v(T + 1), v(L), v(T + 1), v(T + 1), v(T)))
    e("v_lshlrev_b32 %s, 8, %s\nv_lshl_add_u32 %s, %s, 4, %s" % (v(T), v(T), v(T), v(T + 1), v(T)))
    for sl in range(4): e("v_xor_b32 %s, %d, %s" % (v(V_KA + sl), sl * 64, v(T)))
    e("v_lshrrev_b32 %s, 2, %s\nv_and_b32 %s, 7, %s\nv_lshlrev_b32 %s, 8, %s\nv_lshl_add_u32 %s, %s, 5, %s" % (v(T), v(L), v(T + 1), v(T), v(T), v(T), v(T), v(T + 1), v(T)))
    e("v_and_b32 %s, 3, %s\nv_lshl_add_u32 %s, %s, 3, %s\nv_add_u32 %s, %d, %s" % (v(T + 1), v(L), v(T), v(T + 1), v(T), v(T), L_V, v(T)))
    for db in range(8): e("v_xor_b32 %s, %d, %s" % (v(V_VA + db), db * 32, v(T)))

def gen_retry(e):
    e("ATT_RETRY:")
    e("s_waitcnt vmcnt(0) lgkmcnt(0)\ns_mov_b32 %s, 1\nv_mov_b32 %s, %s" % (s(S_RETRY), v(TV_WR), v(V_L16)))
    gen_kv_addr(e)
    for qb in range(4): e("v_mov_b32 %s, 0xff800000" % v(V_NEGM + 4 * qb))
    e("s_mov_b32 %s, 0" % s(S_KVOFF))
    e("RETRY_LOOP:")
    e("s_barrier")
    e("s_add_u32 m0, %s, %d\ns_nop 0" % (s(S_M0K), L_K))
    e(kv_dma("K", 0)); e(kv_dma("K", 1))
    e("s_waitcnt vmcnt(0)\ns_barrier")
    for kb in range(2):
        for sl in range(4): e(k_read(kb, sl, 0))
    e("s_waitcnt lgkmcnt(0)")
    e.ext(qk_mfmas(0, czero=True))
    e("s_nop 7")
    for qb in range(4):
        b = Sreg(0, qb, 0); m = v(V_NEGM + 4 * qb)
        for k in range(4): e("v_max3_f32 %s, %s, %s, %s" % (m, m, v(b + 2 * k), v(b + 2 * k + 1)))
    e("s_add_u32 %s, %s, 8192\ns_cmp_lt_u32 %s, %d\ns_cbranch_scc1 RETRY_LOOP" % (s(S_KVOFF), s(S_KVOFF), s(S_KVOFF), 64 * 8192))
    e("s_barrier")
    kv_preload(e)
    e("s_barrier")
    for kb in range(2):
        for sl in range(4): e(k_read(kb, sl, 0))
    e.ext(ones_ops(V_T))
    for r in range(128): e("v_accvgpr_write_b32 %s, 0" % a(A_O + r))
    for r in range(8): e("v_mov_b32 %s, 0" % v(V_L + r))
    e("s_waitcnt lgkmcnt(0)")
    e.ext(qk_mfmas(0, czero=True))
    for kb in range(2):
        for sl in range(4): e(k_read(kb, sl, 8192))
    e("s_branch ATT_START")

def gen_common_setup(e):
    T = V_T + 12; L = V_LANE
    e("s_lshl2_add_u32 %s, %s, %s" % (s(S_TMP + 1), s(S_QT), s(S_WAVE)))
    e("s_mul_i32 %s, %s, %d" % (s(S_TMP), s(S_TMP + 1), AFS))
    srd(e, S_AF, ptr(11), s(S_TMP), NSLAB * 4096)
    e("s_mul_i32 %s, %s, %d\ns_add_u32 %s, %s, %d" % (s(S_TMP), s(S_TMP + 1), 20 * 4096, s(S_TMP), s(S_TMP), XF_OFF))
    srd(e, S_X, ptr(11), s(S_TMP), 20 * 4096)
    e("s_mov_b64 %s, %s\ns_mov_b64 %s, %s" % (s(54, 2), s(ptr(1), 2), s(56, 2), s(ptr(2), 2)))
    e("v_bfe_u32 %s, %s, 2, 2\nv_lshrrev_b32 %s, 4, %s\nv_and_b32 %s, 3, %s" % (v(T), v(L), v(T + 1), v(L), v(T + 2), v(L)))
    e("v_lshlrev_b32 %s, 12, %s" % (v(T + 3), v(T + 1)))
    e("v_mul_u32_u24 %s, 320, %s\nv_add_u32 %s, %s, %s\nv_lshl_add_u32 %s, %s, 4, %s" % (v(T + 4), v(T), v(T + 4), v(T + 4), v(T + 3), v(T + 4), v(T + 2), v(T + 4)))
    for sl in range(4): e("v_xor_b32 %s, %d, %s" % (v(V_AQ + sl), sl * 64, v(T + 4)))
    e("v_lshl_add_u32 %s, %s, 7, %s\nv_lshl_add_u32 %s, %s, 3, %s" % (v(T + 4), v(T), v(T + 3), v(T + 4), v(T + 2), v(T + 4)))
    e("v_bfe_u32 %s, %s, 3, 2\nv_lshl_add_u32 %s, %s, 5, %s" % (v(T + 5), v(L), v(T + 4), v(T + 5), v(T + 4)))
    for u in range(4): e("v_xor_b32 %s, %d, %s" % (v(V_AG + u), u * 32, v(T + 4)))
    gen_kv_addr(e)

def gen_w_setup(e):
    T = V_T + 12; L = V_LANE
    e("v_lshrrev_b32 %s, 4, %s\nv_lshlrev_b32 %s, 2, %s\nv_and_b32 %s, 15, %s\nv_xor_b32 %s, %s, %s" % (v(T), v(L), v(T + 1), v(T), v(T + 2), v(L), v(T + 1), v(T + 1), v(T + 2)))
    e("v_lshlrev_b32 %s, 13, %s\nv_lshl_add_u32 %s, %s, 4, %s" % (v(T), v(T), v(V_WD), v(T + 1), v(T)))
    e("v_add_u32 %s, %d, %s" % (v(V_WD + 1), 4 * 8192 - 1024, v(V_WD)))
    e("v_lshrrev_b32 %s, 3, %s\nv_bfe_u32 %s, %s, 4, 1\nv_lshlrev_b32 %s, 1, %s" % (v(T), v(L), v(T + 1), v(L), v(T + 1), v(T + 1)))
    e("s_and_b32 %s, %s, 1\ns_lshl_b32 %s, %s, 2\nv_or_b32 %s, %s, %s" % (s(S_TMP), s(S_WAVE), s(S_TMP), s(S_TMP), v(T + 1), s(S_TMP), v(T + 1)))
    e("v_and_b32 %s, 7, %s\nv_xor_b32 %s, %s, %s" % (v(T + 2), v(L), v(T + 1), v(T + 1), v(T + 2)))
    e("v_mul_u32_u24 %s, 3456, %s\nv_lshl_add_u32 %s, %s, 4, %s" % (v(T), v(T), v(V_WD + 2), v(T + 1), v(T)))
    e("s_lshl_b32 %s, %s, 8\ns_sub_u32 %s, %d, %s" % (s(S_TMP), s(S_HEAD), s(S_TMP + 1), 640 * 8192, s(S_TMP)))
    srd(e, S_WQ, ptr(3), s(S_TMP), s(S_TMP + 1))
    for (d, p, sh) in ((S_WG, 6, 2048), (S_WU, 7, 3072)):
        e("s_lshl_b32 %s, %s, 7\ns_sub_u32 %s, %d, %s" % (s(S_TMP), s(S_FS), s(S_TMP + 1), 640 * 3456 + sh, s(S_TMP)))
        e("s_cmp_lt_u32 %s, 27\ns_cselect_b32 %s, %s, 0" % (s(S_FS), s(S_TMP + 1), s(S_TMP + 1)))
        srd(e, d, ptr(p), s(S_TMP), s(S_TMP + 1))
        e("s_sub_u32 %s, %s, %d\ns_subb_u32 %s, %s, 0" % (s(d), s(d), sh, s(d + 1), s(d + 1)))

def gen_kernel(e, name):
    T = V_T; L = V_LANE
    e(".text\n.globl %s\n.p2align 8\n.type %s,@function\n%s:" % (name, name, name))
    if STAMPS: e("s_memrealtime s[96:97]")
    e("s_cmp_ge_u32 s2, 256\ns_cbranch_scc1 K_END")
    e("s_load_dwordx8 %s, s[0:1], 0\ns_load_dwordx8 %s, s[0:1], 32\ns_load_dwordx8 %s, s[0:1], 64" % (s(S_PTR, 8), s(S_PTR + 8, 8), s(S_PTR + 16, 8)))
    TLB = opt("tlb", 0)
    if TLB:
        e("s_bfe_u32 s4, s2, 0x30003\ns_lshl_b32 s5, s4, 2\ns_lshr_b32 s6, 0x021bb763, s5\ns_and_b32 s6, s6, 15\ns_lshl_b32 s6, s6, 3\ns_load_dwordx2 s[8:9], s[0:1], s6")
        e("s_lshr_b32 s6, 0x10000112, s5\ns_and_b32 s6, s6, 15\ns_lshr_b32 s7, s2, 6\ns_min_u32 s6, s6, s7\ns_lshl_b32 s6, s6, 21")
        e("s_cmp_eq_u32 s4, 3\ns_cselect_b32 s6, 0x2000000, s6\ns_cmp_eq_u32 s4, 4\ns_cselect_b32 s6, 0x23f0000, s6")
        e("s_and_b32 s7, s2, 7\ns_lshl_b32 s7, s7, 21\ns_sub_u32 s5, s4, 5\ns_cmp_lt_u32 s5, 2\ns_cselect_b32 s6, s7, s6\nv_mov_b32 v9, s6")
    e("v_and_b32 %s, 63, v0\nv_lshrrev_b32 %s, 6, v0\nv_lshlrev_b32 %s, 4, %s\nv_readfirstlane_b32 %s, %s" % (v(L), v(T), v(V_L16), v(L), s(S_WAVE), v(T)))
    e("s_and_b32 %s, s2, 7\ns_lshr_b32 %s, s2, 3\ns_and_b32 %s, %s, 3\ns_lshr_b32 %s, %s, 2" % (s(S_TMP), s(S_TMP + 1), s(S_HL), s(S_TMP + 1), s(S_QT), s(S_TMP + 1)))
    e("s_lshl_b32 %s, %s, 2\ns_add_u32 %s, %s, %s" % (s(S_HEAD), s(S_TMP), s(S_HEAD), s(S_HEAD), s(S_HL)))
    e("s_lshl_b32 %s, %s, 3\ns_add_u32 %s, %s, %s" % (s(S_FS), s(S_HL), s(S_FS), s(S_FS), s(S_TMP)))
    e("s_mov_b32 %s, 0" % s(S_RETRY))
    e("s_lshl_b32 %s, %s, 12\ns_lshl_b32 %s, %s, 11" % (s(S_M0W), s(S_WAVE), s(S_M0K), s(S_WAVE)))
    if STAMPS: e("v_mov_b32 v0, -1\nv_mov_b32 v19, -1")
    stamp(e, 0)
    if STAMPS: e("v_writelane_b32 v19, s96, 40\nv_writelane_b32 v0, s96, 40")
    def codetouch(e):
        e("s_getpc_b64 %s\nCODE0:" % s(S_TMP + 4, 2))
        e("s_lshr_b32 %s, s2, 3\ns_lshl2_add_u32 %s, %s, %s\ns_mul_i32 %s, %s, 640" % (s(S_EVT + 6), s(S_EVT + 6), s(S_EVT + 6), s(S_WAVE), s(S_EVT + 6), s(S_EVT + 6)))
        if opt("cpm", "v") == "s":
            e("s_min_u32 %s, %s, CODE1-CODE0-644\ns_add_u32 %s, %s, %s\ns_addc_u32 %s, %s, 0" % (s(S_EVT + 6), s(S_EVT + 6), s(S_TMP + 4), s(S_TMP + 4), s(S_EVT + 6), s(S_TMP + 5), s(S_TMP + 5)))
            for i in range(10): e("s_load_dword %s, %s, %d" % (s(4 + i), s(S_TMP + 4, 2), 64 * i))
            return
        if opt("cpm", "v") == "h":
            e("v_min_u32 %s, 9, %s\nv_lshlrev_b32 %s, 6, %s\nv_add_u32 %s, %s, %s\nv_min_u32 %s, CODE1-CODE0-4, %s" % (v(8), v(L), v(8), v(8), v(8), s(S_EVT + 6), v(8), v(8), v(8)))
        else:
            e("v_min_u32 %s, 4, %s\nv_lshlrev_b32 %s, 7, %s\nv_add_u32 %s, %s, %s\nv_min_u32 %s, CODE1-CODE0-4, %s" % (v(8), v(L), v(8), v(8), v(8), s(S_EVT + 6), v(8), v(8), v(8)))
        e("global_load_dword %s, %s, %s" % (v(V_PL), v(8), s(S_TMP + 4, 2)))
    CPOS = opt("cpos", 0); WPOS = opt("wpos", 0)
    if CPOS == 0: codetouch(e)
    if CPOS == 9: e("CODE0:")
    gen_ln_loads(e)
    e("s_add_u32 %s, %s, %d\ns_addc_u32 %s, %s, 0\ns_load_dword %s, %s, 0" % (s(S_TMP + 2), s(ptr(11)), FL_OFF + EP_OFF, s(S_TMP + 3), s(ptr(11) + 1), s(S_EPOCH), s(S_TMP + 2, 2)))
    ny = 0
    if opt("tlb", 0) == 2: e("global_load_dword %s, v9, s[8:9]" % v(V_TRA)); ny += 1
    if CPOS == 1: codetouch(e); ny += 1
    gen_w_setup(e)
    e("s_lshl_b32 %s, %s, 16\ns_mul_i32 %s, %s, %d" % (s(S_WQOFF), s(S_WAVE), s(S_WGOFF), s(S_WAVE), 8 * 3456))
    WT = max(opt("wt", 4), 1)
    X = V_TC
    e("s_lshl2_add_u32 %s, %s, %s\ns_add_u32 %s, %s, %d" % (s(S_TMP), s(S_QT), s(S_WAVE), s(S_TMP), s(S_TMP), 32 * NI))
    e("v_lshrrev_b32 %s, 1, %s\nv_min_u32 %s, %d, %s\nv_lshlrev_b32 %s, 5, %s\nv_add_u32 %s, %s, %s" % (v(X), v(L), v(X), WT - 1, v(X), v(X), v(X), v(X), s(S_TMP), v(X)))
    e("v_and_b32 %s, 1, %s\nv_lshlrev_b32 %s, 7, %s\nv_lshl_add_u32 %s, %s, 13, %s\nv_mul_u32_u24 %s, 3456, %s" % (v(X + 1), v(L), v(X + 1), v(X + 1), v(X + 1), v(X), v(X + 1), v(X), v(X)))
    w0 = E(); wt = E()
    for sl in range(NI): w_slab(w0, sl, True)
    wt("buffer_load_dword %s, %s, %s, 0 offen" % (v(V_PL + 1), v(X + 1), s(S_WQ, 4)))
    wt("buffer_load_dword %s, %s, %s, 0 offen offset:2048" % (v(V_PL + 2), v(X), s(S_WG, 4)))
    wt("buffer_load_dword %s, %s, %s, 0 offen offset:3072" % (v(V_DUMP), v(X), s(S_WU, 4)))
    if opt("wt", 4) == 0: wt.L = []
    early = {0: w0.L + wt.L, 1: [], 2: w0.L, 3: w0.L}[WPOS]
    mid = {0: [], 1: w0.L + wt.L, 2: wt.L, 3: []}[WPOS]
    after = wt.L if WPOS == 3 else []
    e.ext(early); ny += sum(x.startswith("buffer") for x in early)
    LATE = opt("late", 2)
    srd(e, S_FL, ptr(11), FL_OFF, EP_OFF + 4096)
    e("s_lshl_b32 %s, %s, 5\ns_add_u32 %s, %s, %s\ns_lshl_b32 %s, %s, %d" % (s(S_MYFL), s(S_QT), s(S_MYFL), s(S_MYFL), s(S_HEAD), s(S_MYFL), s(S_MYFL), FSH))
    e("v_min_u32 %s, 31, %s\nv_lshlrev_b32 %s, %d, %s\ns_lshl_b32 %s, %s, %d" % (v(V_PL + 3), v(L), v(V_PL + 3), FSH, v(V_PL + 3), s(S_XOFF), s(S_QT), FSH + 5))
    def rest():
        gen_common_setup(e)
        for i in range(8): e("v_add_u32 %s, 65536, %s" % (v(V_AHI + i), v(V_AQ + i)))
        if opt("tw2", -1) >= 0:
            t = S_TMP
            e("s_lshr_b32 %s, s2, 3\ns_mul_i32 %s, %s, %d\ns_add_u32 %s, %s, %d\nv_mov_b32 %s, %s" % (s(t), s(t + 1), s(t), AFS, s(t + 1), s(t + 1), NSLAB * 4096, v(V_T2), s(t + 1)))
            e("s_mul_i32 %s, %s, %d\ns_add_u32 %s, %s, %d" % (s(t + 1), s(t), 4 * XGS, s(t + 1), s(t + 1), XP_OFF + 12 * 12288))
            e("s_and_b32 %s, %s, 3\ns_mul_i32 %s, %s, %d\ns_add_u32 %s, %s, %d" % (s(t + 2), s(t), s(t + 2), s(t + 2), WFS, s(t + 2), s(t + 2), WF_OFF + NSLAB * 10240))
            e("s_cmp_lt_u32 %s, 16\ns_cselect_b32 %s, %s, %s\nv_mov_b32 %s, %s" % (s(t), s(t + 1), s(t + 1), s(t + 2), v(V_T2 + 1), s(t + 1)))
            e("s_and_b32 %s, %s, 1\ns_lshl_b32 %s, %s, 21\nv_mov_b32 %s, %s" % (s(t), s(t), s(t), s(t), v(V_T2 + 2), s(t)))
        e("v_mov_b32 %s, %d" % (v(V_ZA), L_MISC + 512))
        for i in range(4): e("v_mov_b32 %s, 0" % v(52 + i))
        e("ds_write_b128 %s, %s" % (v(V_ZA), v(52, 4)))
    stamp(e, 1)
    gen_ln_compute(e, ny, mid)
    e.ext(after)
    stamp(e, 29)
    if LATE == 1: rest()
    e("s_mul_i32 %s, %s, 0x9e3779b1\ns_add_u32 %s, %s, 0x7f4a7c15" % (s(S_TAG), s(S_EPOCH), s(S_TAG), s(S_TAG)))
    e("s_waitcnt vmcnt(%d)\ns_barrier" % len(after))
    stamp(e, 18)
    e("s_cmp_lg_u32 %s, 0\ns_cbranch_scc1 NOFL1" % s(S_WAVE))
    set_flag(e, 1)
    e("NOFL1:")
    if LATE == 2: rest()
    e("s_cmp_lg_u32 %s, 0\ns_cbranch_scc1 SPUN_XN" % s(S_WAVE))
    e(poll_load(False, s(S_XOFF)))
    e("s_waitcnt vmcnt(0)")
    poll_spin(e, False, s(S_XOFF), 1, "XN")
    e("s_barrier")
    stamp(e, 2)
    e("s_cmp_ge_u32 %s, %d\ns_cbranch_scc1 LIGHT" % (s(S_FS), 0 if opt("alll", 0) else 27))
    gen_proj(e, True, "H")
    e("PROJ_DONE:")
    head = gen_attention(e)
    gen_tail(e, head)
    e("K_END:\ns_endpgm")
    gen_events(e)
    gen_retry(e)
    e("LIGHT:")
    gen_proj(e, False, "L")
    e("s_branch PROJ_DONE")
    e("CODE1:")
    e(kd(name))

def main():
    e = E()
    hdr = open("cdna_kernels/%s.s.ref" % NAME).read().split("; Override launch")[0]
    e.L += hdr.strip().split("\n")
    e("; @launch grid=(256,1,1) block=(256,1,1) lds=%d" % LDS_BYTES)
    e('.amdgcn_target "amdgcn-amd-amdhsa--gfx950"')
    gen_kernel(e, NAME + "_kernel")
    t = re.sub(r" ;#\w*", "", e.text()).replace("NVWAIT", str(min(NV01)))
    if VERBOSE: print("NV01", NV01)
    errs = [x for x in asmcheck.check(t, [NAME + "_kernel"]) if x.count("_load_dword v%d," % V_DUMP) != 2 and poll_load(True).split("\n")[-1] not in x]
    if errs:
        print("\n".join(errs[:40])); print(len(errs), "problems")
    out = [x for x in sys.argv[1:] if x.endswith(".s")]
    open(out[0] if out else "cdna_kernels/%s.s" % NAME, "w").write(t)

if __name__ == "__main__":
    main()
```

```python
import sys, math, os, struct, re
from sched import Gaps, auto_lgkm
import asmcheck

NAME = "recurrent_scan__mha_block_cached__glu_gated_reglu__prompt"
MF = "v_mfma_f32_16x16x32_bf16"
OPT = dict(x.split("=") for x in sys.argv[1:] if "=" in x)
def opt(k, d): return type(d)(OPT.get(k, d))
VERBOSE = "-v" in sys.argv
STAMPS = "--stamps" in sys.argv
STFL = opt("stfl", " sc1").replace("_", " ")
LDFL = opt("ldfl", " sc1").replace("_", " ")

NSLAB = 182
QSC = math.log2(math.e) / math.sqrt(128.0)
DSC = 1.0 / (QSC * QSC)
WF_OFF = 0x1800000
AFS = (NSLAB + 1) * 4096
WFS = NSLAB * 10240 + 4096
XGS = 13 * 12288
XF_OFF = 0x2001000
XP_OFF = 0x2400000
MAXST = 4
FL_OFF = 0x2300000

class E:
    def __init__(self): self.L = []
    def __call__(self, s):
        for x in s.split("\n"):
            x = x.strip()
            if x: self.L.append(x)
    def ext(self, l): self.L += l
    def text(self): return "\n".join(self.L) + "\n"

def v(a, n=1): return "v%d" % a if n == 1 else "v[%d:%d]" % (a, a + n - 1)
def a(a_, n=1): return "a%d" % a_ if n == 1 else "a[%d:%d]" % (a_, a_ + n - 1)
def s(a_, n=1): return "s%d" % a_ if n == 1 else "s[%d:%d]" % (a_, a_ + n - 1)
def f2u(x): return "0x%08x" % struct.unpack("<I", struct.pack("<f", x))[0]

def kd(name, vgpr=512, acc=256):
    return """.section .rodata,"a"
.p2align 6
.amdhsa_kernel %s
  .amdhsa_next_free_vgpr %d
  .amdhsa_next_free_sgpr 102
  .amdhsa_accum_offset %d
  .amdhsa_group_segment_fixed_size 0
  .amdhsa_kernarg_size 96
  .amdhsa_user_sgpr_count 2
  .amdhsa_user_sgpr_kernarg_segment_ptr 1
  .amdhsa_system_sgpr_workgroup_id_x 1
.end_amdhsa_kernel
""" % (name, vgpr, acc)

def stamp(e, i):
    if not STAMPS: return
    e("s_waitcnt lgkmcnt(0)\ns_memtime s[98:99]\ns_memrealtime s[100:101]\ns_waitcnt lgkmcnt(0)")
    e("v_writelane_b32 v0, s98, %d\nv_writelane_b32 v19, s100, %d" % (i, i))
def stamp_fin(e):
    if not STAMPS: return
    if opt("echo", ""):
        i, j = [int(x) for x in opt("echo", "").split(".")]
        e("s_nop 1\nv_readlane_b32 s96, v19, %d\nv_readlane_b32 s97, v19, %d\nv_readlane_b32 s98, v19, 16\ns_nop 3\ns_sub_u32 s96, s97, s96\ns_min_u32 s96, s96, 20000\ns_cmp_%s_u32 %s, 27\ns_cselect_b32 s96, s96, 0" % (i, j, "ge" if opt("el", 0) else "lt", s(S_FS)))
        if opt("ecyc", 0):
            e("v_readlane_b32 s96, v0, %d\nv_readlane_b32 s97, v0, %d\ns_nop 3\ns_sub_u32 s96, s97, s96\ns_lshr_b32 s96, s96, 3\ns_min_u32 s96, s96, 20000\ns_cmp_lt_u32 %s, 27\ns_cselect_b32 s96, s96, 0" % (i, j, s(S_FS)))
            i = 40
        if opt("eneg", 0):
            e("s_cmp_eq_u32 s96, 0\ns_cselect_b32 s96, 3000, s96\ns_min_u32 s96, s96, 3000\ns_sub_u32 s96, 3000, s96")
            i = 40
        if opt("emul", 0): e("s_mul_i32 s96, s96, %d" % opt("emul", 0))
        if opt("eabs", 0): e("v_readlane_b32 s98, v19, %d\ns_add_u32 s96, s96, 10000\ns_nop 3" % i)
        e("ECHO:\ns_sleep 1\ns_memrealtime s[100:101]\ns_waitcnt lgkmcnt(0)\ns_sub_u32 s97, s100, s98\ns_cmp_lt_u32 s97, s96\ns_cbranch_scc1 ECHO")
        return
    if opt("dbgout", -1) >= 0:
        e("s_cmp_lg_u32 s2, %d\ns_cbranch_scc1 NODBG\ns_cmp_lg_u32 %s, 0\ns_cbranch_scc1 NODBG" % (opt("dbgout", -1), s(S_WAVE)))
        e("v_readlane_b32 s98, v19, 0\ns_nop 3\nv_subrev_u32 v18, s98, v19\nv_lshlrev_b32 v20, 2, v1\nv_subrev_u32 v20, 4, v20")
        e("s_mov_b32 s96, %s\ns_mov_b32 s97, %s\ns_mov_b32 s98, 64\ns_mov_b32 s99, 0x20000" % (s(ptr(10)), s(ptr(10) + 1)))
        e("buffer_store_dword v18, v20, s[96:99], 0 offen\ns_waitcnt vmcnt(0)\nNODBG:")
        return
    if opt("wsb", 0): e("s_sub_u32 %s, %s, %d\ns_subb_u32 %s, %s, 0" % (s(ptr(11)), s(ptr(11)), opt("wsb", 0) << 20, s(ptr(11) + 1), s(ptr(11) + 1)))
    e("s_lshl_b32 s98, s2, 2\ns_add_u32 s98, s98, %s\ns_lshl_b32 s98, s98, 9\ns_add_u32 s98, s98, %d" % (s(S_WAVE), 0x4000000))
    e("s_add_u32 s96, %s, s98\ns_addc_u32 s97, %s, 0\ns_mov_b32 s98, 512\ns_mov_b32 s99, 0x20000" % (s(ptr(11)), s(ptr(11) + 1)))
    e("v_mov_b32 v18, v0\nv_lshlrev_b32 v20, 3, v1\nbuffer_store_dwordx2 v[18:19], v20, s[96:99], 0 offen\ns_waitcnt vmcnt(0)")

def srd(e, d, base, off_lo, nbytes):
    e("s_add_u32 %s, %s, %s" % (s(d), s(base), off_lo))
    e("s_addc_u32 %s, %s, 0" % (s(d + 1), s(base + 1)))
    e("s_mov_b32 %s, %s" % (s(d + 2), nbytes))
    e("s_mov_b32 %s, 0x20000" % s(d + 3))

def uncond(x): return False
def resolve_vm(lines):
    out = []; ops = []; waited = set(); lastm0 = None; done = 0; marks = {}
    for x in lines:
        mm = re.search(r"vmcnt\((\d+)\)", x)
        if mm and not x.startswith("@") and uncond(x): done = max(done, len(ops) - int(mm.group(1)))
        if x.startswith(("buffer_", "global_")) and len(ops) - done >= 58:
            out.append("s_waitcnt vmcnt(52)"); done = len(ops) - 52
        if x.startswith("s_add_u32 m0,"): lastm0 = x.split(",")[1].strip()
        if " lds" in x and ";#" in x:
            tg = x.split(";#")[1].strip()
            exp = s(S_M0W) if tg.startswith("w") else (s(S_TRM) if tg == "trs" else s(S_M0K))
            if tg.startswith("D"): exp = s(T_M0W)
            assert lastm0 == exp, "M0 collision at %s" % x
        if x.startswith("MARK"):
            marks[x.split()[1]] = len(ops); continue
        m = re.search(r"SINCE\{(\w+)\}", x)
        if m: x = x.replace(m.group(0), "vmcnt(%d)" % min(63, len(ops) - marks[m.group(1)]))
        m = re.search(r"WAITVM\{([^}]*)\}", x)
        if m:
            need = set(m.group(1).split(","))
            waited |= need
            idx = [i for i, t in enumerate(ops) if t in need]
            n = len(ops) - 1 - max(idx) if idx else 63
            done = max(done, len(ops) - min(n, 63))
            x = x.replace(m.group(0), "vmcnt(%d)" % min(n, 63))
        elif x.startswith(("buffer_", "global_")):
            t = x.split(";#")[1].strip() if ";#" in x else ""
            assert t not in waited, "op %s issued after its wait" % t
            ops.append(t)
        out.append(x)
    return out

S_FL = 4
S_X, S_WQ, S_WG, S_WU, S_K, S_V, S_AF, S_T, S_WF = 8, 12, 16, 20, 24, 28, 32, 36, 40
S_PTR = 44
S_WAVE, S_HEAD, S_QT, S_FS = 68, 69, 70, 71
S_XOFF, S_WQOFF, S_WGOFF, S_M0W = 72, 73, 74, 75
S_KVOFF, S_M0K, S_TOG, S_RETRY = 76, 77, 78, 79
S_TMP = 80
S_TRS, S_TRM, S_TRD, S_TRU = 88, 89, 90, 91
S_EPOCH, S_TAG, S_MYFL = 92, 93, 94
S_HL = 3
S_EVT = 85
def EV(n): return (10 + 2 * n) * 8192
EVT0 = EV(3)
EVTE = (62 + 10) * 8192
NWH = opt("nwh", 0)
S_LN = 84
def ptr(i): return S_PTR + 2 * i

L_K = 0
L_V = 65536
RW = 8
L_TR = 114688
L_MISC = 155648
LDS_BYTES = 163840

V_LANE = 1
V_L16 = 2
V_WD = 3
V_TRA = 6
V_AQ = 10
V_AG = 14
V_KA = 20
V_VA = 24
V_KD = 32
V_VD = 34
V_DUMP = 18
V_SIDX = 7
V_ZA = 6
V_T2 = 40
NL = 2
VSH = 4
NOE = 4
V_PW = 5
PWARM = opt("pw", 0)
V_TC = 62
V_PL = 36
V_T = 40
V_ACCQ = 64
V_ACCG = 192
V_Q = 64
V_S = 128
V_P = 192
V_NEGM = 224
V_L = 240
A_ACCU = 0
XD = 8
A_X = 64
A_W = 192
A_TR = 208
V_ONE = 56
A_O = 64
A_KF = 224
A_KF1 = 192
A_VF = 0
V_AHI = 44

def qacc(blk, qb): return (V_S if blk & 1 else V_Q) + ((blk >> 1) * 4 + qb) * 4
def wslot(sl): return (sl + 4) % RW
def accreg(blk, qb):
    if blk < 8: return v(qacc(blk, qb), 4)
    if blk < 12: return v(V_ACCG + ((blk - 8) * 4 + qb) * 4, 4)
    return a(A_ACCU + ((blk - 12) * 4 + qb) * 4, 4)

def w_read(dst, blk, j, rel):
    if blk < 8:
        ar = V_AQ + (blk >> 1); off = rel + j * 1024 + (blk & 1) * 8
    else:
        ar = V_AG + ((blk - 8) & 3); off = rel + 2048 + (1024 if blk >= 12 else 0) + j * 512
    if rel >= 65536: ar += V_AHI - V_AQ; off -= 65536
    assert 0 <= off < 65536
    return "ds_read_b64_tr_b16 %s, %s offset:%d" % (a(dst + 2 * j, 2), v(ar), off)

def w_dma(heavy, tag):
    l = ["buffer_load_dwordx4 %s, %s, %s offen lds ;#%s" % (v(V_WD), s(S_WQ, 4), s(S_WQOFF), tag),
         "buffer_load_dwordx4 %s, %s, %s offen offset:1024 lds ;#%s" % (v(V_WD + 1), s(S_WQ, 4), s(S_WQOFF), tag)]
    if heavy:
        l += ["buffer_load_dwordx4 %s, %s, %s offen offset:2048 lds ;#%s" % (v(V_WD + 2), s(S_WG, 4), s(S_WGOFF), tag),
              "buffer_load_dwordx4 %s, %s, %s offen offset:3072 lds ;#%s" % (v(V_WD + 2), s(S_WU, 4), s(S_WGOFF), tag)]
    return l

def x_load(sl, qb):
    return "buffer_load_dwordx4 %s, %s, %s, %s offen offset:%d%s ;#x%d" % (a(A_X + ((sl % XD) * 4 + qb) * 4, 4), v(V_L16), s(S_X, 4), s(S_XOFF), qb * 1024, LDFL, sl)

def kv_dma(which, i, tag=""):
    vo = (V_KD if which == "K" else V_VD) + i
    return "buffer_load_dwordx4 %s, %s, %s offen offset:%d%s lds ;#%s" % (v(vo), s(S_K if which == "K" else S_V, 4), s(S_KVOFF), 1024 * i, opt("kvfl", "_sc1").replace("_", " "), tag)

FSH = opt("fsh", 7)
EP_OFF = 65536
CF_OFF = EP_OFF + 1024
def set_flag(e, stage):
    if stage in (2, 3) and FSH > 2:
        e("s_add_u32 %s, %s, %d\ns_mov_b64 exec, 1\nv_mov_b32 %s, %s\ns_lshr_b32 %s, %s, %d\ns_add_u32 %s, %s, %d" % (s(S_TMP + 7), s(S_TAG), stage, v(V_PL), s(S_TMP + 7), s(S_TMP + 7), s(S_MYFL), FSH - 2, s(S_TMP + 7), s(S_TMP + 7), CF_OFF))
        e("buffer_store_dword %s, off, %s, %s sc1" % (v(V_PL), s(S_FL, 4), s(S_TMP + 7)))
    elif opt("fwide", 0):
        n = (1 << FSH) // 8
        e("s_add_u32 %s, %s, %d\ns_mov_b64 exec, 0x%x\nv_mov_b32 %s, %s\nv_mov_b32 %s, %s\nv_lshlrev_b32 %s, 3, %s" % (s(S_TMP + 7), s(S_TAG), stage, (1 << n) - 1, v(V_PL), s(S_TMP + 7), v(V_PL + 1), s(S_TMP + 7), v(V_PL + 2), v(V_LANE)))
        e("buffer_store_dwordx2 %s, %s, %s, %s offen sc1" % (v(V_PL, 2), v(V_PL + 2), s(S_FL, 4), s(S_MYFL)))
    else:
        e("s_add_u32 %s, %s, %d\ns_mov_b64 exec, 1\nv_mov_b32 %s, %s" % (s(S_TMP + 7), s(S_TAG), stage, v(V_PL), s(S_TMP + 7)))
        e("buffer_store_dword %s, off, %s, %s sc1" % (v(V_PL), s(S_FL, 4), s(S_MYFL)))
    e("s_mov_b64 exec, -1")

def poll_load(allq, qoff=None):
    if allq and FSH > 2: return "s_mov_b32 %s, %d\nbuffer_load_dwordx4 %s, %s, %s, %s offen sc1" % (s(S_TMP + 1), CF_OFF, v(V_PL, 4), v(V_L16), s(S_FL, 4), s(S_TMP + 1))
    if allq: return "buffer_load_dwordx4 %s, %s, %s, 0 offen sc1" % (v(V_PL, 4), v(V_L16), s(S_FL, 4))
    return "buffer_load_dword %s, %s, %s, %s offen sc1" % (v(V_PL), v(V_PL + 3), s(S_FL, 4), qoff)

def poll_spin(e, allq, qoff, stage, tag):
    e("s_mov_b32 %s, 0\ns_add_u32 %s, %s, %d" % (s(S_TMP + 7), s(S_TMP + 6), s(S_TAG), stage))
    e("SPIN_%s:" % tag)
    n = 4 if allq else 1
    for i in range(n): e("v_subrev_u32 %s, %s, %s" % (v(V_PL + i), s(S_TMP + 6), v(V_PL + i)))
    if allq: e("v_max3_u32 %s, %s, %s, %s\nv_max_u32 %s, %s, %s" % (v(V_PL), v(V_PL), v(V_PL + 1), v(V_PL + 2), v(V_PL), v(V_PL), v(V_PL + 3)))
    e("v_cmp_lt_u32 vcc, %d, %s" % (MAXST - stage, v(V_PL)))
    e("s_add_u32 %s, %s, 1" % (s(S_TMP + 7), s(S_TMP + 7)))
    e("s_cmp_eq_u64 vcc, 0\ns_cbranch_scc1 SPUN_%s" % tag)
    e("s_cmp_ge_u32 %s, 0x40000\ns_cbranch_scc1 SPUN_%s" % (s(S_TMP + 7), tag))
    e("s_sleep %d" % opt("slp", 2))
    e(poll_load(allq, qoff))
    e("s_waitcnt vmcnt(0)\ns_branch SPIN_%s" % tag)
    e("SPUN_%s:" % tag)

def zero_acc(e, heavy=True):
    for r in range(V_ACCQ, 256): e("v_mov_b32 %s, 0" % v(r))
    for r in range(A_ACCU, A_ACCU + 64): e("v_accvgpr_write_b32 %s, 0" % a(r))

NI = opt("ni", 1)
NI2 = max(NI, opt("ni2", 1))

def gen_ln_loads(e):
    T = V_T; L = V_LANE
    R = V_ACCQ
    e("v_bfe_u32 %s, %s, 1, 3\nv_lshrrev_b32 %s, 4, %s\nv_and_b32 %s, 1, %s" % (v(T), v(L), v(T + 1), v(L), v(T + 2), v(L)))
    e("v_mul_u32_u24 %s, 1280, %s\nv_lshl_add_u32 %s, %s, 4, %s\nv_lshl_add_u32 %s, %s, 3, %s" % (v(T + 3), v(T), v(T + 3), v(T + 1), v(T + 3), v(T + 3), v(T + 2), v(T + 3)))
    e("s_lshl_b32 %s, %s, 5\ns_add_u32 %s, %s, %s\ns_mul_i32 %s, %s, %d\ns_mul_i32 %s, %s, 320" % (s(S_TMP), s(S_QT), s(S_TMP), s(S_TMP), s(S_HEAD), s(S_TMP), s(S_TMP), 8 * 1280, s(S_TMP + 1), s(S_WAVE)))
    e("s_waitcnt lgkmcnt(0)")
    if opt("wsb", 0): e("s_add_u32 %s, %s, %d\ns_addc_u32 %s, %s, 0" % (s(ptr(11)), s(ptr(11)), opt("wsb", 0) << 20, s(ptr(11) + 1), s(ptr(11) + 1)))
    if opt("tlb", 0) == 1: e("global_load_dword %s, v9, s[8:9]" % v(V_TRA))
    srd(e, S_T, ptr(0), s(S_TMP), 8 * 1280)
    for i in range(5): e("buffer_load_dwordx2 %s, %s, %s, %s offen offset:%d" % (v(R + 2 * i, 2), v(T + 3), s(S_T, 4), s(S_TMP + 1), 64 * i))

def gen_ln_compute(e, nyounger, mid=()):
    T = V_T; L = V_LANE
    R = V_ACCQ; U = R + 10
    e("v_and_b32 %s, 15, %s\nv_lshlrev_b32 %s, 3, %s\nv_lshl_add_u32 %s, %s, 8, %s" % (v(T + 3), v(L), v(T + 3), v(T + 3), v(T + 3), v(T + 1), v(T + 3)))
    e("s_lshr_b32 %s, %s, 3\ns_lshl2_add_u32 %s, %s, %s\ns_mul_i32 %s, %s, %d" % (s(S_TMP), s(S_HEAD), s(S_TMP), s(S_QT), s(S_TMP), s(S_TMP), s(S_TMP), 20 * 4096))
    e("s_bfe_u32 %s, %s, 0x20001\ns_lshl_b32 %s, %s, 10\ns_add_u32 %s, %s, %s" % (s(S_TMP + 1), s(S_HEAD), s(S_TMP + 1), s(S_TMP + 1), s(S_TMP), s(S_TMP), s(S_TMP + 1)))
    e("s_and_b32 %s, %s, 1\ns_lshl_b32 %s, %s, 7\ns_add_u32 %s, %s, %s\ns_add_u32 %s, %s, %d" % (s(S_TMP + 1), s(S_HEAD), s(S_TMP + 1), s(S_TMP + 1), s(S_TMP), s(S_TMP), s(S_TMP + 1), s(S_TMP), s(S_TMP), XF_OFF))
    srd(e, S_LN, ptr(11), s(S_TMP), 20 * 4096)
    e("s_mul_i32 %s, %s, %d" % (s(S_TMP), s(S_WAVE), 5 * 4096))
    e("v_lshlrev_b32 %s, 5, %s\nv_add_u32 %s, %d, %s\ns_lshl_b32 %s, %s, 3\nv_add_u32 %s, %s, %s" % (v(T + 4), v(T), v(T + 4), L_MISC, v(T + 4), s(S_TMP + 1), s(S_WAVE), v(T + 5), s(S_TMP + 1), v(T + 4)))
    A0 = T + 6; M = T + 8
    e("s_waitcnt vmcnt(%d)" % nyounger)
    stamp(e, 17)
    e.ext(list(mid))
    for d in range(10): e("v_lshlrev_b32 %s, 16, %s\nv_and_b32 %s, 0xffff0000, %s" % (v(U + 2 * d), v(R + d), v(U + 2 * d + 1), v(R + d)))
    e("v_pk_add_f32 %s, %s, %s\nv_pk_add_f32 %s, %s, %s" % (v(A0, 2), v(U, 2), v(U + 2, 2), v(M, 2), v(U + 4, 2), v(U + 6, 2)))
    for d in range(4, 10): e("v_pk_add_f32 %s, %s, %s" % (v((A0, M)[d & 1], 2), v((A0, M)[d & 1], 2), v(U + 2 * d, 2)))
    def reduce(dst):
        e("v_pk_add_f32 %s, %s, %s" % (v(A0, 2), v(A0, 2), v(M, 2) if dst == M else v(T + 10, 2)))
        e("v_add_f32 %s, %s, %s\ns_nop 1" % (v(A0), v(A0), v(A0 + 1)))
        e("v_add_f32_dpp %s, %s, %s quad_perm:[1,0,3,2] row_mask:0xf bank_mask:0xf" % (v(A0), v(A0), v(A0)))
        for sw in ("v_permlane32_swap_b32", "v_permlane16_swap_b32"):
            e("v_mov_b32 %s, %s\ns_nop 1\n%s %s, %s\nv_add_f32 %s, %s, %s" % (v(A0 + 1), v(A0), sw, v(A0), v(A0 + 1), v(A0), v(A0), v(A0 + 1)))
    reduce(M)
    e("v_mul_f32 %s, %s, %s\nv_mul_f32 %s, %s, %s" % (v(M), f2u(-1.0 / 160), v(A0), v(M + 1), f2u(-1.0 / 160), v(A0)))
    for d in range(10): e("v_pk_add_f32 %s, %s, %s" % (v(U + 2 * d, 2), v(U + 2 * d, 2), v(M, 2)))
    e("v_pk_mul_f32 %s, %s, %s\nv_pk_mul_f32 %s, %s, %s" % (v(A0, 2), v(U, 2), v(U, 2), v(T + 10, 2), v(U + 2, 2), v(U + 2, 2)))
    for d in range(2, 10): e("v_pk_fma_f32 %s, %s, %s, %s" % (v((A0, T + 10)[d & 1], 2), v(U + 2 * d, 2), v(U + 2 * d, 2), v((A0, T + 10)[d & 1], 2)))
    reduce(None)
    e("v_mov_b32 %s, %s" % (v(M + 1), v(A0)))
    e("ds_write_b64 %s, %s\ns_waitcnt lgkmcnt(0)\ns_barrier" % (v(T + 5), v(M, 2)))
    X = T + 12
    e("ds_read_b128 %s, %s\nds_read_b128 %s, %s offset:16\ns_waitcnt lgkmcnt(0)" % (v(X, 4), v(T + 4), v(X + 4, 4), v(T + 4)))
    e("v_pk_add_f32 %s, %s, %s\nv_pk_add_f32 %s, %s, %s\nv_pk_add_f32 %s, %s, %s" % (v(A0, 2), v(X, 2), v(X + 2, 2), v(T + 10, 2), v(X + 4, 2), v(X + 6, 2), v(A0, 2), v(A0, 2), v(T + 10, 2)))
    e("v_mul_f32 %s, 0.25, %s" % (v(A0), v(A0)) if False else "v_mul_f32 %s, %s, %s" % (v(A0), f2u(0.25), v(A0)))
    for k in range(4): e("v_sub_f32 %s, %s, %s" % (v(X + 2 * k), v(X + 2 * k), v(A0)))
    e("v_mul_f32 %s, %s, %s" % (v(X + 1), v(X), v(X)))
    for k in range(1, 4): e("v_fmac_f32 %s, %s, %s" % (v(X + 1), v(X + 2 * k), v(X + 2 * k)))
    e("v_fmac_f32 %s, %s, %s" % (v(A0 + 1), f2u(160.0), v(X + 1)))
    e("v_mov_b32 %s, %s\nv_fmac_f32 %s, %s, %s\nv_rsq_f32 %s, %s" % (v(X), f2u(1e-5 * DSC), v(X), f2u(DSC / 640), v(A0 + 1), v(X), v(X)))
    e("v_sub_f32 %s, %s, %s" % (v(M), v(A0), v(M)))
    e("v_mov_b32 %s, %s\nv_mul_f32 %s, %s, %s\nv_mul_f32 %s, %s, %s" % (v(X + 1), v(X), v(M + 1), v(M), v(X), v(M), v(M), v(X)))
    for i in range(5):
        for d in (2 * i, 2 * i + 1): e("v_pk_fma_f32 %s, %s, %s, %s" % (v(U + 2 * d, 2), v(U + 2 * d, 2), v(X, 2), v(M, 2)))
        for d in (2 * i, 2 * i + 1): e("v_cvt_pk_bf16_f32 %s, %s, %s" % (v(R + d), v(U + 2 * d), v(U + 2 * d + 1)))
        e("buffer_store_dwordx2 %s, %s, %s, %s offen%s" % (v(R + 2 * i, 2), v(T + 3), s(S_LN, 4), s(S_TMP), STFL))
        if i < 4: e("s_add_u32 %s, %s, 4096" % (s(S_TMP), s(S_TMP)))

def w_slab(e, sl, heavy):
    e("s_add_u32 m0, %s, %d\ns_nop 0" % (s(S_M0W), wslot(sl) * 16384))
    e.ext(w_dma(heavy, "w%d" % sl))
    e("s_add_u32 %s, %s, %d\ns_add_u32 %s, %s, %d" % (s(S_WQOFF), s(S_WQOFF), 32 * 8192, s(S_WGOFF), s(S_WGOFF), 32 * 3456))

def ones_ops(tmp):
    L = V_LANE
    return ["v_lshrrev_b32 %s, 4, %s" % (v(tmp), v(L)), "v_xor_b32 %s, %s, %s" % (v(tmp), v(tmp), v(L)), "v_bfe_u32 %s, %s, 1, 1" % (v(tmp), v(tmp)),
            "v_subrev_u32 %s, 1, %s" % (v(tmp), v(tmp)), "v_and_b32 %s, 0x3f803f80, %s" % (v(tmp), v(tmp))] + \
           ["v_mov_b32 %s, %s" % (v(V_ONE + r), v(tmp)) for r in range(4)] + \
           ["v_and_b32 %s, 1, %s" % (v(V_SIDX), v(L)), "v_mul_u32_u24 %s, 0xaaaa, %s" % (v(V_SIDX), v(V_SIDX)), "v_or_b32 %s, 0x4444, %s" % (v(V_SIDX), v(V_SIDX))]

NV01 = []
def gen_proj(e0, heavy, tag):
    e = E()
    T = V_T; L = V_LANE
    NS = opt("ns", 4) if heavy else 0
    GU = [b for fb in range(4) for b in (12 + fb, 8 + fb)]
    PC0 = opt("pc0", 2) if heavy else opt("lpc0", 4)
    def grp(lo, hi):
        out = []; sl = lo
        while sl < hi:
            if sl >= PC0 and sl + 1 < hi: out.append((sl, sl + 1)); sl += 2
            else: out.append((sl,)); sl += 1
        return out
    units = []
    for ss in grp(0, 20 - NS): units.append((ss, list(range(8)) + (GU if heavy else [])))
    for part in {0: (GU,), 1: (GU[:4], GU[4:]), 2: (GU[:2], GU[2:4], GU[4:6], GU[6:])}[opt("split", 2)]:
        for ss in grp(20 - NS, 20): units.append((ss, part))
    for ss in grp(20 - NS, 20): units.append((ss, list(range(8))))
    order = []; mf = []; firstuse = []
    for ss, bl in units:
        for b in bl:
            F0 = len(order)
            for sl in ss: order.append((sl, b)); firstuse.append(4 * F0)
            for qb in (range(4) if (not opt("psn", 1) or (F0 // len(ss)) % 2 == 0) else range(3, -1, -1)):
                idx = list(range(len(ss)))
                if qb & 1: idx.reverse()
                for i in idx:
                    sl = ss[i]
                    c = "0" if (0 in ss and i == idx[0]) else accreg(b, qb)
                    mf.append("%s %s, %s, %s, %s" % (MF, accreg(b, qb), a(A_W + 4 * ((F0 + i) % 8), 4), a(A_X + ((sl % XD) * 4 + qb) * 4, 4), c))
    NF = len(order)
    NP = len(mf)
    for sl in range(4):
        for kb in range(2):
            for qb in range(4):
                d = v(Sreg(0, qb, kb), 4)
                mf.append("%s %s, %s, %s, %s" % (MF, d, a(A_KF + (kb * 4 + sl) * 4, 4), v(V_Q + (sl * 4 + qb) * 4, 4), d if sl else "0"))
    G = Gaps(mf)
    ustart = []; n = 0
    for ss, bl in units: ustart.append(n); n += len(bl) * len(ss)
    lastF = {}; lastblk = {}; firstF = {}
    for u, (ss, bl) in enumerate(units):
        for k, sl in enumerate(ss):
            lastF[sl] = ustart[u] + len(bl) * len(ss) - 1
            firstF.setdefault(sl, ustart[u] + k * len(bl))
        for i, b in enumerate(bl): lastblk[b] = ustart[u] + (i + 1) * len(ss) - 1
    G1 = lambda sl: 4 * firstF[sl]
    DA = opt("pda", 6)
    rd = lambda F, j: w_read(A_W + 4 * (F % 8), order[F][1], j, wslot(order[F][0]) * 16384)
    pre_reads = [rd(F, j) for F in range(DA) for j in range(2)]
    TRW = opt("trw", 15) if heavy else 14
    bars = {}; cur = 0; seen = set(units[0][0])
    def barrier(u, lo, need):
        bb = G.place("b", "s_barrier", lo)
        G.put(bb, "s", "s_waitcnt WAITVM{%s}" % ",".join(need))
        bars[u] = bb
        return bb + 1
    for F in range(DA, NF):
        lo = 4 * (F - DA)
        if F in ustart:
            u = ustart.index(F)
            need = [k + str(sl) for sl in units[u][0] if sl not in seen for k in "xw"]
            seen |= set(units[u][0])
            if need or units[u][1][0] == 0: cur = barrier(u, max(cur, lo - 1), need or ["none"])
        if (opt("midb", 0) or F - DA - 1 == ustart[-1]) and (F - DA - 1) in ustart and len(units[ustart.index(F - DA - 1)][0]) == 2 and units[ustart.index(F - DA - 1)][1][0] == 0:
            cur = barrier(1000 + F, max(cur, lo - 1), ["none"])
        for j in range(2): cur = G.place("d", rd(F, j), max(cur, lo + 2 * j), firstuse[F] - 6) + 1
    NU = len(units)
    cur = barrier(NU, cur + 1, ["K0", "K1"])
    kord = [(kb, sl) for sl in range(4) for kb in range(2)]
    for kb, sl in kord: cur = G.place("d", k_read(kb, sl, 0), cur) + 1
    barrier(NU + 1, max(cur + 5, NP), ["none"])
    kpost = []
    for i, (kb, sl) in enumerate(kord):
        lo = NP + 4 * i + 3
        try: cur = G.place("d", k_read(kb, sl, 8192), max(cur, lo)) + 1
        except RuntimeError: kpost.append(k_read(kb, sl, 8192))
    freeg = lambda sl: min(x for x in bars.values() if x >= 4 * lastF[sl])
    def wseq(sl):
        return [("s", "s_add_u32 m0, %s, %d" % (s(S_M0W), wslot(sl) * 16384))] + [("m", x) for x in w_dma(heavy, "w%d" % sl)] + \
               [("s", "s_add_u32 %s, %s, %d\ns_add_u32 %s, %s, %d" % (s(S_WQOFF), s(S_WQOFF), 32 * 8192, s(S_WGOFF), s(S_WGOFF), 32 * 3456))]
    def xseq(sl): return [("m", x_load(sl, qb)) for qb in range(4)] + [("s", "s_add_u32 %s, %s, 4096" % (s(S_XOFF), s(S_XOFF)))]
    def kvseq(which, i):
        return [("s", "s_add_u32 m0, %s, %d\ns_mov_b32 %s, %d" % (s(S_M0K), (L_K if which == "K" else L_V) + i * 8192, s(S_KVOFF), (i + (VSH if which == "V" else 0)) * 8192))] + \
               [("m", kv_dma(which, k, "%s%d" % (which, i))) for k in range(2)]
    NX0 = opt("nx0", 2) if heavy else opt("lnx0", 3)
    e("s_mov_b32 %s, 0" % s(S_XOFF))
    q = []
    for sl in range(20):
        for kind in "wx":
            if kind == "w" and sl < NI2: continue
            seq = wseq(sl) if kind == "w" else xseq(sl)
            if sl < NX0:
                for k, x in seq: e(x + ("\ns_nop 0" if " m0," in x else ""))
            else:
                lo = 0 if sl < RW else (freeg(sl - RW) if kind == "w" else 4 * lastF[sl - XD] + 3)
                q.append((lo, seq))
    late = {12: [("K", 0), ("K", 1)], 13: [("K", 2), ("K", 3)], 14: [("K", 4), ("K", 5)], 15: [("K", 6), ("K", 7)],
            16: [("V", 0), ("V", 1)], 17: [("V", 2), ("V", 3)], 18: [("V", 4)]}
    side = []
    for sl in range(12, 19):
        for which, i in late[sl]: side.append((freeg(sl), kvseq(which, i)))
    WT = opt("wt", 4)
    if WT:
        for k, sl in enumerate([int(x) for x in opt("wts", "0.1.4.7").split(".")], 1):
            seq = [("s", "s_mov_b32 %s, %d" % (s(S_TMP), k * WT * 32 * 8192)), ("m", "buffer_load_dword %s, %s, %s, %s offen" % (v(V_DUMP), v(V_TC + 1), s(S_WQ, 4), s(S_TMP)))]
            if heavy:
                seq += [("s", "s_mov_b32 %s, %d" % (s(S_TMP), k * WT * 32 * 3456)),
                        ("m", "buffer_load_dword %s, %s, %s, %s offen offset:2048" % (v(V_DUMP), v(V_TC), s(S_WG, 4), s(S_TMP))),
                        ("m", "buffer_load_dword %s, %s, %s, %s offen offset:3072" % (v(V_DUMP), v(V_TC), s(S_WU, 4), s(S_TMP)))]
            side.append((G1(sl) + opt("wtg", 30), seq))
    if opt("tw2", -1) >= 0:
        side.append((G1(opt("tw2", -1)), [("m", "global_load_dword %s, %s, %s" % (v(V_DUMP), v(V_T2), s(ptr(11), 2)))]))
        side.append((G1(opt("tw3", 8)), [("m", "global_load_dword %s, %s, %s" % (v(V_DUMP), v(V_T2 + 1), s(ptr(11), 2)))]))
        side.append((G1(opt("tw4", 10)), [("m", "global_load_dword %s, %s, %s" % (v(V_DUMP), v(V_T2 + 2), s(ptr(9), 2)))]))
    t0 = v(V_TRA + 3)
    if opt("kvt", 12): side.append((G1(opt("kvt", 12)), [("v", "v_min_u32 %s, 15, %s" % (t0, v(L))), ("v", "v_lshlrev_b32 %s, 7, %s" % (t0, t0)),
               ("s", "s_lshl2_add_u32 %s, %s, %s\ns_lshl_b32 %s, %s, 11" % (s(S_TMP), s(S_QT), s(S_WAVE), s(S_TMP), s(S_TMP))),
               ("m", "buffer_load_dword %s, %s, %s, %s offen" % (v(V_DUMP), t0, s(S_K, 4), s(S_TMP))),
               ("s", "s_add_u32 %s, %s, %d" % (s(S_TMP), s(S_TMP), VSH * 8192)),
               ("m", "buffer_load_dword %s, %s, %s, %s offen" % (v(V_DUMP), t0, s(S_V, 4), s(S_TMP)))]))
    side.sort(key=lambda t: t[0])
    MG = opt("pmg", 5) if heavy else opt("lmg", 4)
    g = 0; lastm = -9; vpost = []
    trlast = 0; lastload = 0
    while q or side:
        if side and (not q or side[0][0] <= max(g, q[0][0])): lo, seq = side.pop(0)
        else: lo, seq = q.pop(0)
        g = max(g, lo)
        for k, x in seq:
            if not vpost:
                try:
                    g = G.place(k, x, max(g + 1, lastm + (MG if g > opt("pmg0", 150) or not heavy else 4) if k == "m" else 0))
                    if k == "m": lastm = g
                    if re.search(r";#[xw]\d|;#trs", x) or "v%d," % V_DUMP in x: lastload = g
                    continue
                except RuntimeError: pass
            vpost.append(x + ("\ns_nop 0" if " m0," in x else ""))
    zlim = 4 * lastF[19 - max(NS, 1)] + 4 if opt("zds", 1) else 10 ** 9
    g = 0
    for sl in range(20 - XD, 20):
        lo = 4 * lastF[sl] + 4
        if lo <= zlim: continue
        for i in range(4):
            x = "ds_read_b128 %s, %s" % (a(A_X + 16 * (sl % XD) + 4 * i, 4), v(V_ZA))
            try: g = G.place("d", x, max(g, lo)) + 2
            except RuntimeError: kpost.append(x)
    auto_lgkm(G, eager=opt("peag", 8))
    g = lastload + 2
    for x in gen_tail_setup():
        g = G.place("v" if x.startswith("v_") else "s", x, g + 1)
    setup_end = g
    g = max(g, trlast)
    for x in gen_tail_setup2(): g = G.place("v" if x.startswith("v_") else "s", x, g + 1)
    HZ = 8
    post = []
    def lay(items):
        g = 0; out = []
        for lo, k, x, hi in items:
            if not out:
                try:
                    g = G.place(k, x, max(g + (0 if k == "v" else 1), lo), hi, force=(hi is not None)); continue
                except RuntimeError: pass
            assert hi is None
            out.append(x)
        return out
    its = []
    for sl in range(4):
        for qb in range(4):
            d0 = V_Q + (sl * 4 + qb) * 4
            lo = 4 * lastblk[2 * sl + 1] + 3 + HZ
            hi = NP - 3 if sl < 2 else NP + 8 * sl - 3
            for b in range(2):
                g0 = qacc(2 * sl + b, qb)
                for h in range(2): its.append((min(lo, hi), "v", "v_cvt_pk_bf16_f32 %s, %s, %s" % (v(d0 + 2 * b + h), v(g0 + 2 * h), v(g0 + 2 * h + 1)), hi))
    assert not lay(its)
    its = []
    if heavy:
        U = T
        for fb in range(4):
            for qb in range(4):
                g0 = V_ACCG + (fb * 4 + qb) * 4
                lo = 4 * lastblk[8 + fb] + 3 + HZ
                for r in range(4): its.append((lo, "v", "v_accvgpr_read_b32 %s, %s" % (v(U + r), a(A_ACCU + (fb * 4 + qb) * 4 + r)), None))
                for r in range(4): its.append((lo, "v", "v_max_f32 %s, 0, %s" % (v(g0 + r), v(g0 + r)), None))
                for r in range(4): its.append((lo, "v", "v_mul_f32 %s, %s, %s" % (v(g0 + r), v(g0 + r), v(U + r)), None))
                d0 = V_ACCG + ((fb & ~1) * 4 + qb) * 4 + 2 * (fb & 1)
                for h in range(2): its.append((lo, "v", "v_cvt_pk_bf16_f32 %s, %s, %s" % (v(d0 + h), v(g0 + 2 * h), v(g0 + 2 * h + 1)), None))
                if fb & 1:
                    if qb == 0: its.append((lo, "s", "s_lshl_b32 %s, %s, 13\ns_add_u32 %s, %s, %d" % (s(S_TMP + 6), s(S_FS), s(S_TMP + 6), s(S_TMP + 6), (128 + (fb >> 1)) * 4096), None))
                    its.append((lo, "m", "buffer_store_dwordx4 %s, %s, %s, %s offen offset:%d%s" % (v(d0 - 2, 4), v(V_L16), s(S_AF, 4), s(S_TMP + 6), 1024 * qb, STFL), None))
    post += lay(its)
    its = [(300, "v", x, None) for x in ones_ops(V_TRA + 2)]
    zs = []
    for k in range(XD):
        sl = max(x for x in range(20) if x % XD == k)
        zs.append((4 * lastF[sl] + 4, range(A_X + 16 * k, A_X + 16 * k + 16)))
    for lo, rr in sorted(zs, key=lambda t: t[0]):
        if lo > zlim: break
        for r in rr: its.append((lo, "v", "v_accvgpr_write_b32 %s, 0" % a(r), None))
    post += lay(its)
    if VERBOSE: print("proj", tag, G.pattern(), "| post", len(post), len(vpost), len(kpost))
    e.ext(pre_reads)
    e("s_waitcnt WAITVM{x%d} lgkmcnt(0)" % max(units[0][0]))
    stamp(e, 3)
    nm = 0
    for x in G.lines():
        if x.startswith("v_mfma"):
            if STAMPS and nm % (NP // 5) == 0 and 0 < nm < NP: stamp(e, 18 + nm // (NP // 5))
            if nm == NP: stamp(e, 4)
            nm += 1
        e(x)
    for x in kpost + vpost + post: e(x)
    e("s_mov_b32 %s, %d" % (s(S_KVOFF), 8 * 8192))
    e("s_nop 1")
    for r in range(8): e("v_mov_b32 %s, 0" % v(V_L + r))
    for qb in range(4): e("v_mov_b32 %s, 0xff800000" % v(V_NEGM + 4 * qb))
    e("s_waitcnt WAITVM{K2,K3}")
    e("s_waitcnt WAITVM{V0,V1,K4,K5}")
    r = resolve_vm(e.L)
    NV01.append(int(re.search(r"vmcnt\((\d+)\)", r.pop()).group(1)))
    e0.ext(r)

def kv_preload(e):
    e("s_mov_b32 %s, 0" % s(S_KVOFF))
    for i in range(9):
        if i < 8:
            e("s_add_u32 m0, %s, %d\ns_nop 0" % (s(S_M0K), L_K + i * 8192))
            e(kv_dma("K", 0)); e(kv_dma("K", 1))
        if i >= VSH:
            e("s_add_u32 m0, %s, %d\ns_nop 0" % (s(S_M0K), L_V + (i - VSH) * 8192))
            e(kv_dma("V", 0)); e(kv_dma("V", 1))
        if i < 8: e("s_add_u32 %s, %s, 8192" % (s(S_KVOFF), s(S_KVOFF)))
    e("s_waitcnt vmcnt(0)")

def Sreg(buf, qb, kb): return V_S + buf * 32 + qb * 8 + kb * 4
def Preg(buf, qb): return V_P + buf * 16 + qb * 4

def qk_mfmas(buf, czero=False, full=False):
    out = []
    if opt("qko", "snake") == "qks" and not czero and full:
        for qb in range(4):
            for i in range(2):
                kb = i if qb % 2 == 0 else 1 - i
                d = v(Sreg(buf, qb, kb), 4)
                for n, sl in enumerate(range(4) if i == 0 else range(3, -1, -1)):
                    out.append("%s %s, %s, %s, %s" % (MF, d, a(A_KF + (kb * 4 + sl) * 4, 4), v(V_Q + (sl * 4 + qb) * 4, 4), d if n else v(V_NEGM + 4 * qb, 4)))
        return out
    order = {"qks": [(kb, qb, sl) for kb in range(2) for qb in range(4) for sl in range(4)], "kqs": [(kb, qb, sl) for kb in range(2) for qb in range(4) for sl in range(4)],
             "ksq": [(kb, qb, sl) for kb in range(2) for sl in range(4) for qb in range(4)],
             "snake": [(kb, qb, sl) for kb in range(2) for qb in range(4) for sl in range(4)]}[opt("qko", "snake")]
    for kb, qb, sl0 in order:
                sl = sl0
                d = v(Sreg(buf, qb, kb), 4)
                if opt("qko", "snake") == "snake":
                    first = sl0 == 0
                    sl = sl0 if qb % 2 == 0 else 3 - sl0
                    c = ("0" if czero else v(V_NEGM + 4 * qb, 4)) if first else d
                    out.append("%s %s, %s, %s, %s" % (MF, d, a(A_KF + (kb * 4 + sl) * 4, 4), v(V_Q + (sl * 4 + qb) * 4, 4), c))
                    continue
                c = d if sl else ("0" if czero else v(V_NEGM + 4 * qb, 4))
                out.append("%s %s, %s, %s, %s" % (MF, d, a(A_KF + (kb * 4 + sl) * 4, 4), v(V_Q + (sl * 4 + qb) * 4, 4), c))
    return out

def pv_mfmas(buf, tailmode=False):
    out = []
    for h in range(2):
        out.append("v_smfmac_f32_16x16x64_bf16 %s, %s, %s, %s" % (v(V_L + 4 * h, 4), v(V_ONE, 4), v(Preg(buf, 2 * h), 8), v(V_SIDX)))
    pvo = opt("pvo", "qd2s")
    if pvo == "fake" and not tailmode:
        for h in range(4):
            for i in range(4):
                qb = i if h % 2 == 0 else 3 - i
                o = a(A_O + ((2 * h + buf) * 4 + qb) * 4, 4)
                for d in ((0, 1) if i % 2 == 0 else (1, 0)):
                    out.append("%s %s, %s, %s, %s" % (MF, o, a(A_VF + (2 * h + d) * 4, 4), v(Preg(buf, (qb + 2 * d) % 4), 4), o))
        return out
    if pvo == "fake": pvo = "dq"
    order = {"dq": [(db, qb) for db in range(8) for qb in range(4)],
             "snake": [(db, qb if db % 2 == 0 else 3 - qb) for db in range(8) for qb in range(4)],
             "qd2s": [(2 * h + (d if (i & 1) == 0 else 1 - d), i if h % 2 == 0 else 3 - i) for h in range(4) for i in range(4) for d in range(2)],
             "qd2": [(2 * h + d, qb) for h in range(4) for qb in range(4) for d in range(2)],
             "qd4": [(4 * h + d, qb) for h in range(2) for qb in range(4) for d in range(4)]}[pvo if not tailmode else "dq"]
    for db, qb in order:
            o = a(A_O + (db * 4 + qb) * 4, 4)
            out.append("%s %s, %s, %s, %s" % (MF, o, a(A_VF + db * 4, 4), v(Preg(buf, qb), 4), o))
    return out

def k_read(kb, sl, off, t=0): return "ds_read_b128 %s, %s offset:%d" % (a((A_KF, A_KF1)[t] + (kb * 4 + sl) * 4, 4), v(V_KA + sl), off + kb * 4096)
def v_read(db, j, t): return "ds_read_b64_tr_b16 %s, %s offset:%d" % (a(A_VF + 32 * t + db * 4 + 2 * j, 2), v(V_VA + db), 8192 * t + j * 4096)

def softmax_ops(buf):
    ex = []; cv = []
    for qb in range(4):
        for kb in range(2):
            for r in range(4):
                x = v(Sreg(buf, qb, kb) + r)
                ex.append("v_exp_f32 %s, %s" % (x, x))
            for h in range(2):
                b = Sreg(buf, qb, kb) + 2 * h
                if opt("perm", 0): cv.append("v_perm_b32 %s, %s, %s, %s" % (v(Preg(buf, qb) + kb * 2 + h), v(b + 1), v(b), s(59)))
                else: cv.append("v_cvt_pk_bf16_f32 %s, %s, %s" % (v(Preg(buf, qb) + kb * 2 + h), v(b), v(b + 1)))
    return ex, cv

def gen_attention(e):
    T = V_T
    e("ATT_START:")
    if opt("perm", 0): e("s_mov_b32 s59, 0x07060302")
    stamp(e, 5)
    e("s_barrier")
    for qb in range(4):
        b = Sreg(0, qb, 0)
        e("v_max3_f32 %s, %s, %s, %s" % (v(T + 2 * qb), v(b), v(b + 1), v(b + 2)))
    for qb in range(4):
        b = Sreg(0, qb, 0)
        e("v_max3_f32 %s, %s, %s, %s" % (v(T + 2 * qb), v(T + 2 * qb), v(b + 3), v(V_NEGM + 4 * qb)))
    for n, sw in enumerate(("v_permlane32_swap_b32", "v_permlane16_swap_b32")):
        for qb in range(4): e("v_mov_b32 %s, %s" % (v(T + 2 * qb + 1), v(T + 2 * qb)))
        e("s_nop 0")
        for qb in range(4): e("%s %s, %s" % (sw, v(T + 2 * qb), v(T + 2 * qb + 1)))
        for qb in range(4):
            if n == 0: e("v_max_f32 %s, %s, %s" % (v(T + 2 * qb), v(T + 2 * qb), v(T + 2 * qb + 1)))
            else:
                for r in range(4): e("v_min_f32 %s, -%s, -%s" % (v(V_NEGM + 4 * qb + r), v(T + 2 * qb), v(T + 2 * qb + 1)))
    for qb in range(4):
        for r in range(0, 8, 2): e("v_pk_add_f32 %s, %s, %s" % (v(Sreg(0, qb, 0) + r, 2), v(Sreg(0, qb, 0) + r, 2), v(V_NEGM + 4 * qb, 2)))
    e("s_waitcnt lgkmcnt(0)")

    exE, cvE = softmax_ops(0); exO, cvO = softmax_ops(1)
    smf = lambda t, h: "v_smfmac_f32_16x16x64_bf16 %s, %s, %s, %s" % (v(V_L + 4 * h, 4), v(V_ONE, 4), v(Preg(t, 2 * h), 8), v(V_SIDX))
    def pvm(db, qb, t):
        o = a(A_O + (db * 4 + qb) * 4, 4)
        return "%s %s, %s, %s, %s" % (MF, o, a(A_VF + 32 * t + db * 4, 4), v(Preg(t, qb), 4), o)
    G = Gaps(qk_mfmas(1))
    for i in range(8): G.put(1 + 2 * i, "d", k_read(i // 4, i % 4, 24576, 1))
    for i in range(4): G.put(17 + 2 * i, "d", k_read(0, i, 16384))
    for i in range(4): G.put(31, "d", k_read(1, i, 16384))
    for i, x in enumerate(exE): G.put(i, "e", x)
    for i, x in enumerate(cvE[:4]): G.put(24 + 2 * i, "v", x)
    e.ext(G.lines())
    e.ext(exO[:NOE])
    for sl in range(4): e("v_add_u32 %s, 32768, %s" % (v(V_KA + sl), v(V_KA + sl)))
    e("s_mov_b32 %s, 16384" % s(S_TOG))
    e("s_mov_b32 %s, %d\ns_mov_b32 %s, %d" % (s(S_TMP + 3), 2 * 8192, s(S_TMP + 4), 6 * 8192 + L_V))
    e("s_waitcnt vmcnt(NVWAIT) lgkmcnt(0)\ns_barrier")
    for which, m0, inc in (("K", L_K, 1), ("K", L_K + 8192, 0), ("V", L_V + 5 * 8192, 1)):
        e("s_add_u32 m0, %s, %d\ns_nop 0" % (s(S_M0K), m0))
        e(kv_dma(which, 0)); e(kv_dma(which, 1))
        if inc: e("s_add_u32 %s, %s, 8192" % (s(S_KVOFF), s(S_KVOFF)))
    e("s_mov_b32 %s, %d\ns_cmp_eq_u32 %s, 0\ns_cselect_b32 %s, %d, %s" % (s(S_EVT), EV(27), s(S_WAVE), s(S_EVT), EVT0, s(S_EVT)))
    stamp(e, 6)
    e("s_cmp_lg_u32 %s, 0\ns_cbranch_scc1 NOSIG2" % s(S_RETRY))
    e("s_cmp_ge_u32 %s, 27\ns_cbranch_scc1 LT_INIT" % s(S_FS))
    e("NOSIG2:")
    mf = []
    for t in range(2):
        for qb in range(4):
            for i in range(2):
                kb = i if qb % 2 == 0 else 1 - i
                d = v(Sreg(t, qb, kb), 4)
                for n, sl in enumerate(range(4) if i == 0 else range(3, -1, -1)):
                    mf.append("%s %s, %s, %s, %s" % (MF, d, a((A_KF, A_KF1)[t] + (kb * 4 + sl) * 4, 4), v(V_Q + (sl * 4 + qb) * 4, 4), d if n else v(V_NEGM + 4 * qb, 4)))
    mf += [smf(0, 0), smf(1, 0), smf(1, 1), smf(0, 1)]
    H2 = 68
    for db in range(8):
        for i in range(4):
            qb = 3 - i if db % 2 == 0 else i
            for t in ((0, 1) if i % 2 == 0 else (1, 0)): mf.append(pvm(db, qb, t))
    G = Gaps(mf); end = G.n() - 1
    G.put(1, "b", "s_barrier"); G.put(0, "s", "s_waitcnt vmcnt(16) lgkmcnt(0)")
    NV1 = opt("nv1", 22)
    vrd = [(db, j, t) for db in range(8) for t in range(2) for j in range(2)]
    vg = {}
    eg = {}
    for i in range(NOE, 32): eg[i] = G.put(2 * (i - NOE), "e", exO[i])
    vvg = [int(x) for x in opt("vvg", "3.7.11.15.55").split(".")]
    dgs = [g for g in range(3, 64, 2) if g not in vvg]
    for i in range(NV1):
        db, j, t = vrd[i]; vg[db] = G.put(dgs[i], "d", v_read(db, j, t))
    rd2 = [("v",) + x for x in vrd[NV1:]] + [("k", kb, sl, 0) for kb in range(2) for sl in range(4)] + [("k", kb, sl, 1) for kb in range(2) for sl in range(4)]
    g = 64; kg = {}
    for i, x in enumerate(rd2):
        if x[0] == "v": g = G.place("d", v_read(*x[1:]), g, H2 + 8 * x[1] - 6); vg[x[1]] = g
        else: g = G.place("d", k_read(x[1], x[2], 8192 * x[3], x[3]), g); kg[x[2]] = g
        g += 1 if i < 4 else 2
    def adv(r, base):
        return ["s_add_u32 %s, %s, 8192" % (s(r), s(r)), "s_and_b32 %s, %s, 0xffff" % (s(r), s(r))] + (["s_or_b32 %s, %s, %d" % (s(r), s(r), base)] if base else [])
    last = 0
    for g in (opt("dg1", 54), opt("dg2", 76)):
        for which, r in (("K", S_TMP + 3), ("V", S_TMP + 4)):
            g = G.place("s", "s_add_u32 m0, %s, %s" % (s(S_M0K), s(r)), g)
            for i in range(2): g = G.place("m", kv_dma(which, i), g + opt("dsp", 2))
            g += 1
        for x in ["s_add_u32 %s, %s, 8192" % (s(S_KVOFF), s(S_KVOFF))] + adv(S_TMP + 3, 0) + adv(S_TMP + 4, L_V): g = G.place("s", x, g) + 1
        last = g
    items = [(0, 8 * (i // 4) - 1, cvE[i]) for i in range(4, 16)] + [(eg.get(2 * i + 1, -1) + 1, 32 + 8 * (i // 4) - 1, cvO[i]) for i in range(16)]
    for lo, hi, x in sorted(items, key=lambda t: t[1]): G.place("v", x, lo, hi)
    for i in range(4): G.place("v", cvE[i], end - 5 + opt("c0g", 2))
    g = 56
    xg = 0
    for db in range(8):
        y = max(vg[db], 64)
        while not (G.ds[y] and G.fits(y, "v")): y += 1
        xg = max(xg, G.put(y, "v", "v_xor_b32 %s, %s, %s" % (v(V_VA + db), s(S_TOG), v(V_VA + db))))
    for sl in range(4): xg = max(xg, G.place("v", "v_xor_b32 %s, %s, %s" % (v(V_KA + sl), s(S_TOG), v(V_KA + sl)), kg[sl]))
    for i, x in enumerate(exE + exO[:NOE]): g = G.place("e", x, g, end - 6 if i < 8 else end)
    g = G.place("s", "s_xor_b32 %s, %s, 32768" % (s(S_TOG), s(S_TOG)), xg + 1)
    G.place("s", "s_cmp_lt_u32 %s, %s" % (s(S_KVOFF), s(S_EVT)), max(g, last) + 1)
    auto_lgkm(G, [], loop=True, eager=opt("leag", 8))
    if VERBOSE: print("loop", G.pattern())
    e(".p2align 6\nATT_LOOP:")
    for x in G.lines(): e(x)
    e("s_cbranch_scc1 ATT_LOOP")
    e("s_cmp_lt_u32 %s, %d\ns_cbranch_scc1 ATT_EVT" % (s(S_KVOFF), EVTE))
    e("TAILC0:")
    global LIGHT_LOOP
    LIGHT_LOOP = light_loop(G)
    if STAMPS and opt("dly", 0):
        e("s_and_b32 s98, s2, 7\ns_cmp_lg_u32 s98, 1\ns_cbranch_scc1 NODLY")
        for _ in range(opt("dly", 0)): e("s_sleep 32")
        e("NODLY:")
    stamp(e, 7)
    e("s_waitcnt vmcnt(16) lgkmcnt(0)\ns_barrier")
    e("s_cmp_lg_u32 %s, 0\ns_cbranch_scc1 NOPOLLW" % s(S_WAVE))
    e(poll_load(True))
    e("NOPOLLW:")
    vr = [v_read(db, j, 0) for db in range(8) for j in range(2)]
    e.ext(vr)
    e.ext(cvE[4:])
    e("s_nop 0")
    h = E()
    sn2 = lambda q0: [(db, q0 + (i if db % 2 == 0 else 1 - i)) for db in range(8) for i in range(2)]
    mf = [smf(0, 0)] + [pvm(db, qb, 0) for db, qb in sn2(0)] + [smf(0, 1), smf(1, 0)] + [pvm(db, qb, 1) for db, qb in sn2(0)]
    P3 = len(mf)
    mf += [smf(1, 1)]
    for n, (db, qb) in enumerate(sn2(2)):
        for t in ((0, 1) if n % 2 == 0 else (1, 0)): mf.append(pvm(db, qb, t))
    G = Gaps(mf)
    for i in range(16): G.put(i, "d", v_read(i // 2, i % 2, 1))
    for i in range(NOE, 16): G.put(i - NOE + 1, "e", exO[i])
    for i in range(8): G.put(max(2 * i + 3 - NOE, 0) + 1, "v", cvO[i])
    for i in range(16, 32): G.put(i, "e", exO[i])
    for i in range(8, 16): G.put(min(2 * i + 2, P3 - 3), "v", cvO[i])
    pq = [x for sg in range(NPRE_X) for x in t8_a(sg)]
    assert NPRE_X <= 3
    G.put(P3 - 8, "s", "s_waitcnt lgkmcnt(0)\ns_barrier")
    pre, pend = auto_lgkm(G, [asmcheck.I(x, 0, 0).W for x in vr])
    g = 1
    while pq:
        k, x = pq.pop(0)
        if k == "s": G.sc[g].append(x); g += 1
        else: G.va[g].append(x); g += opt("x63", 2) if len(pq) % 3 else 1
    assert g < P3 + 8, g
    pro, grp = o_ops()
    NEG = opt("neg", 5)
    fill = pro[0] + [x for i in range(NEG) for x in grp(i, False)]
    g0 = max(P3 + 1, g); n = G.n() - g0
    for i, x in enumerate(fill): G.va[g0 + (i * n) // len(fill)].append(x)
    if pre is not None: h("s_waitcnt lgkmcnt(%d)" % pre)
    for x in G.lines(): h(x)
    return h.L, NEG

def o_ops():
    T = V_T; t = S_TMP
    Z = 248; C = 252; W = 224
    pro = []
    for hh in range(2):
        e = E()
        for qb in (2 * hh, 2 * hh + 1): e("v_add_f32 %s, %s, %s" % (v(V_L + 2 * qb), v(V_L + 2 * qb), v(V_L + 2 * qb + 1)))
        for qb in (2 * hh, 2 * hh + 1): e("v_rcp_f32 %s, %s" % (v(T + 2 * qb), v(V_L + 2 * qb)))
        if hh == 0:
            for r in range(4): e("v_mov_b32 %s, 0" % v(Z + r))
            for sl in range(4): e("s_lshl_b32 %s, %s, 14" % (s(44), s(S_HEAD)) if sl == 0 else "s_add_u32 %s, %s, %d" % (s(44 + sl), s(44), 4096 * sl))
        else:
            e("v_max3_f32 %s, %s, %s, %s" % (v(T + 8), v(V_L), v(V_L + 2), v(V_L + 4)))
            e("v_max_f32 %s, %s, %s" % (v(T + 8), v(T + 8), v(V_L + 6)))
            e("v_mul_f32 %s, %s, %s" % (v(T + 8), f2u(2.0 ** 64), v(T + 8)))
            e("v_mul_f32 %s, 0, %s" % (v(T + 8), v(T + 8)))
            for qb in range(4): e("v_fma_f32 %s, %s, 0, %s" % (v(T + 8), v(V_L + 2 * qb), v(T + 8)))
        for qb in (2 * hh, 2 * hh + 1): e("v_mov_b32 %s, %s" % (v(T + 2 * qb + 1), v(T + 2 * qb)))
        pro.append(e.L)
    def grp(i, pk):
        e = E()
        sl, qb = (i % 8) // 2, 2 * (i // 8) + i % 2
        d0 = 232 + 4 * (i % 2)
        for b in range(2):
            for r in range(4): e("v_accvgpr_read_b32 %s, %s" % (v(W + 4 * b + r), a(A_O + ((2 * sl + b) * 4 + qb) * 4 + r)))
        if pk:
            for h in range(4): e("v_pk_mul_f32 %s, %s, %s" % (v(W + 2 * h, 2), v(W + 2 * h, 2), v(T + 2 * qb, 2)))
        else:
            for r in range(8): e("v_mul_f32 %s, %s, %s" % (v(W + r), v(W + r), v(T + 2 * qb)))
        for h in range(4): e("v_cvt_pk_bf16_f32 %s, %s, %s" % (v(d0 + h), v(W + 2 * h), v(W + 2 * h + 1)))
        e("buffer_store_dwordx4 %s, %s, %s, %s offen offset:%d%s ;#ost" % (v(d0, 4), v(V_L16), s(S_AF, 4), s(44 + sl), 1024 * qb, STFL))
        e.L.append("s_nop 0\n%s %s, %s, %s, %s" % (MF, v(C, 4), v(Z, 4), v(d0, 4), "0" if i == 0 else v(C, 4)))
        return e.L
    return pro, grp

LT_SS, LT_SD = 44, 48
LT_SO, LT_DO, LT_R = 91, 96, 97
LT_VO, LT_VB, LT_VR, LT_AD = 40, 42, 44, 48
L_TRB = 131072
def light_loop(G):
    import copy
    G = copy.deepcopy(G)
    n = G.n()
    b = [g for g in range(n) if any("s_barrier" in x for x in G.va[g])][0]
    for bb in (b - 1, b): G.sc[bb] = [x.replace("vmcnt(%d)" % (16 + 2 * PWARM), "vmcnt(%d)" % (24 + 2 * PWARM)) for x in G.sc[bb]]
    lastm = max(g for g in range(n) if any(x.startswith("buffer") for x in G.va[g]))
    cmpg = [g for g in range(n) if any(x.startswith("s_cmp_lt_u32 %s" % s(S_KVOFF)) for x in G.sc[g])][-1]
    def lay(seq, g, hi, step=1):
        for k, x in seq:
            if k == "s":
                while not G.fits(g, "s"): g += 1
                G.put(g, "s", x)
            else:
                win = opt("ltw", 4) if k != "m" else opt("ltm", 4)
                g = min(range(g, min(g + win, hi) + 1), key=lambda y: (G.used[y] + (3 if (k == "d" and G.ds[y] and opt("ltd", 0)) else 0), y))
                (G.ds if k == "d" else G.va)[g].append(x); G.used[g] += 1 if k != "m" else 2
            g += step
            assert g <= hi + 1, (x, g, hi)
        return g
    g = lay([("d", "ds_read_b64_tr_b16 %s, %s offset:%d" % (v(LT_AD + 4 * f + 2 * j, 2), v(LT_VR + f), 1024 * j)) for f in range(2) for j in range(2)], b + 1, b + 30, 2)
    g1, g2 = opt("lts1", 44), opt("lts2", 50)
    lay(([("s", "s_waitcnt lgkmcnt(2)")] if g1 < 68 else []) + [("m", "buffer_store_dwordx4 %s, %s, %s, %s offen%s" % (v(LT_AD, 4), v(V_L16), s(LT_SD, 4), s(LT_DO), STFL))], g1, cmpg - 1)
    lay([("m", "buffer_store_dwordx4 %s, %s, %s, %s offen offset:1024%s" % (v(LT_AD + 4, 4), v(V_L16), s(LT_SD, 4), s(LT_DO), STFL)),
         ("s", "s_add_u32 %s, %s, %d" % (s(LT_DO), s(LT_DO), 8 * 10240)),
         ("s", "s_sub_u32 %s, %s, %d\ns_cselect_b32 %s, %s, %s" % (s(S_TMP + 1), s(LT_DO), 184 * 10240, s(LT_DO), s(LT_DO), s(S_TMP + 1)))], g2, cmpg - 1)
    g = lastm + 1
    lay([("s", "s_add_u32 m0, %s, %s" % (s(LT_R), s(S_TMP)))] +
        [("m", "buffer_load_dwordx4 %s, %s, %s offen offset:%d lds" % (v(LT_VO + i), s(LT_SS, 4), s(LT_SO), 1024 * i)) for i in range(2)] +
        [("s", "s_add_u32 %s, %s, %d\ns_add_u32 %s, %s, 2048" % (s(LT_SO), s(LT_SO), 8 * 40960, s(LT_R), s(LT_R))),
         ("s", "s_cmp_eq_u32 %s, 6144\ns_cselect_b32 %s, 0, %s" % (s(LT_R), s(LT_R), s(LT_R)))] +
        [("v", "v_add_u32 %s, %s, %s" % (v(LT_VR + f), s(LT_R), v(LT_VB + f))) for f in range(2)], g, cmpg - 1)
    if VERBOSE: print("lightloop", G.pattern())
    return G.lines()

def gen_events(e):
    L = V_LANE; t = S_TMP
    e("LT_INIT:")
    e("s_sub_u32 %s, %s, 27\ns_lshl_b32 %s, %s, 3\ns_add_u32 %s, %s, %s\ns_lshl2_add_u32 %s, %s, %s" % (s(t), s(S_FS), s(t), s(t), s(t), s(t), s(S_QT), s(t), s(t), s(S_WAVE)))
    e("s_mul_i32 %s, %s, 3277\ns_lshr_b32 %s, %s, 16\ns_mul_i32 %s, %s, 20\ns_sub_u32 %s, %s, %s" % (s(t + 1), s(t), s(t + 1), s(t + 1), s(t + 6), s(t + 1), s(t), s(t), s(t + 6)))
    e("s_mul_i32 %s, %s, 40960\ns_lshl_b32 %s, %s, 6\ns_add_u32 %s, %s, %s" % (s(LT_SO), s(t + 1), s(t + 6), s(t), s(LT_SO), s(LT_SO), s(t + 6)))
    e("s_add_u32 %s, %s, 104\ns_mul_i32 %s, %s, 10240" % (s(LT_DO), s(t + 1), s(LT_DO), s(LT_DO)))
    srd(e, LT_SS, ptr(8), 0, 1728 * 1280)
    e("s_mul_i32 %s, %s, 13108\ns_lshr_b32 %s, %s, 16\ns_mul_i32 %s, %s, %d\ns_lshl_b32 %s, %s, 11\ns_add_u32 %s, %s, %s\ns_add_u32 %s, %s, %d" % (
        s(t + 6), s(t), s(t + 6), s(t + 6), s(t + 6), s(t + 6), WFS - 10240, s(t + 1), s(t), s(t + 6), s(t + 6), s(t + 1), s(t + 6), s(t + 6), WF_OFF))
    srd(e, LT_SD, ptr(11), s(t + 6), (NSLAB - 1) * 10240 + 2048)
    e("s_mul_i32 %s, %s, 6144\ns_add_u32 %s, %s, %d\ns_mov_b32 %s, 0\ns_mov_b32 %s, %d" % (s(t), s(S_WAVE), s(t), s(t), L_TRB, s(LT_R), s(S_EVT), EV(7)))
    e("v_lshrrev_b32 %s, 2, %s\nv_bfe_u32 %s, %s, 4, 1\nv_and_b32 %s, 3, %s" % (v(46), v(L), v(47), v(L), v(48), v(L)))
    e("v_lshlrev_b32 %s, 1, %s\nv_xor_b32 %s, %s, %s\nv_mul_u32_u24 %s, 1280, %s\nv_lshl_add_u32 %s, %s, 4, %s\nv_add_u32 %s, %d, %s" % (
        v(49), v(47), v(49), v(49), v(48), v(LT_VO), v(46), v(LT_VO), v(49), v(LT_VO), v(LT_VO + 1), 16 * 1280 - 1024, v(LT_VO)))
    e("v_lshlrev_b32 %s, 6, %s\nv_lshl_add_u32 %s, %s, 3, %s\nv_lshl_add_u32 %s, %s, 5, %s\nv_add_u32 %s, %s, %s\nv_xor_b32 %s, 32, %s" % (
        v(LT_VB), v(46), v(LT_VB), v(48), v(LT_VB), v(LT_VB), v(47), v(LT_VB), v(LT_VB), s(t), v(LT_VB), v(LT_VB + 1), v(LT_VB)))
    e("v_mov_b32 %s, %s\nv_mov_b32 %s, %s" % (v(LT_VR), v(LT_VB), v(LT_VR + 1), v(LT_VB + 1)))
    e(".p2align 6\nLT_LOOP:")
    for x in LIGHT_LOOP: e(x)
    e("s_cbranch_scc1 LT_LOOP")
    e("s_cmp_lg_u32 %s, %d\ns_cbranch_scc1 LT_E2" % (s(S_KVOFF), EV(7)))
    srd(e, LT_SS, ptr(4), 0, 4096 * 1280)
    e("s_sub_u32 %s, %s, %d\ns_mov_b32 %s, %d\ns_branch LT_LOOP" % (s(LT_SO), s(LT_SO), 56 * 40960, s(S_EVT), EV(13)))
    e("LT_E2:")
    e("s_cmp_lg_u32 %s, %d\ns_cbranch_scc1 LT_E3" % (s(S_KVOFF), EV(13)))
    e("s_mov_b32 %s, %d\ns_cmp_lg_u32 %s, 0\ns_cbranch_scc1 LT_LOOP" % (s(S_EVT), EV(26), s(S_WAVE)))
    set_flag(e, 2)
    e("s_mov_b32 %s, %d\ns_branch LT_LOOP" % (s(S_EVT), EV(23)))
    e("LT_E3:")
    e("s_cmp_lg_u32 %s, %d\ns_cbranch_scc1 LT_END" % (s(S_KVOFF), EV(23)))
    e(poll_load(True))
    e("s_mov_b32 %s, %d\ns_branch LT_LOOP" % (s(S_EVT), EV(26)))
    e("LT_END:")
    e("s_mov_b32 %s, %d\ns_branch ATT_LOOP" % (s(S_EVT), EV(27)))
    def redirect(d, vd, shift, size):
        e("s_sub_u32 %s, %s, %s\ns_add_u32 %s, %s, %s\ns_addc_u32 %s, %s, 0" % (s(t + 6), s(T_BW[0]), s(T_M0W), s(d), s(T_SW), s(t + 6), s(d + 1), s(T_SW + 1)))
        e("s_sub_u32 %s, %s, %d\ns_subb_u32 %s, %s, 0\ns_mov_b32 %s, %d" % (s(d), s(d), shift, s(d + 1), s(d + 1), s(d + 2), size))
        e("v_add_u32 %s, %s, %s\nv_add_u32 %s, %s, %s" % (v(vd), s(S_M0K), v(V_L16), v(vd + 1), s(S_M0K), v(V_L16)))
    e("ATT_EVT:")
    e("s_cmp_lg_u32 %s, %d\ns_cbranch_scc1 ATT_EVT1" % (s(S_KVOFF), EV(27)))
    redirect(S_K, V_KD, 64 * 8192, 72 * 8192)
    e("s_mov_b32 %s, %d\ns_cmp_lg_u32 %s, 0\ns_cbranch_scc1 ATT_LOOP" % (s(S_EVT), EV(29) if NWP == 4 else EVTE, s(S_WAVE)))
    if NWP < 4: e("s_cmp_ge_u32 %s, 27\ns_cselect_b32 %s, %d, %s" % (s(S_FS), s(S_EVT), EV(29), s(S_EVT)))
    e("s_waitcnt vmcnt(16)")
    poll_spin(e, True, None, 2, "EARLY")
    e("s_branch ATT_LOOP")
    e("ATT_EVT1:")
    e("s_cmp_lg_u32 %s, %d\ns_cbranch_scc1 ATT_EVT2" % (s(S_KVOFF), EV(29)))
    if NWP == 4: redirect(S_V, V_VD, 68 * 8192 - 65536, 68 * 8192 + NWP * 20480 - 65536)
    e("s_mov_b32 %s, %d\ns_cmp_lg_u32 %s, 0\ns_cbranch_scc1 ATT_LOOP" % (s(S_EVT), EVTE, s(S_WAVE)))
    e("s_cmp_lt_u32 %s, 27\ns_cbranch_scc1 ATT_LOOP" % s(S_FS))
    set_flag(e, 3)
    e("s_branch ATT_LOOP")
    e("ATT_EVT2:")
    e("s_cmp_lg_u32 %s, %d\ns_cbranch_scc1 ATT_EVT3" % (s(S_KVOFF), EV(3)))
    set_flag(e, 3)
    e("s_mov_b32 %s, %d\ns_branch ATT_LOOP" % (s(S_EVT), EV(25)))
    e("ATT_EVT3:")
    if opt("ctt", 0):
        e("s_getpc_b64 %s\nCODE2:\ns_sub_u32 %s, %s, CODE2-TAILC0\ns_subb_u32 %s, %s, 0" % (s(t + 6, 2), s(t + 6), s(t + 6), s(t + 7), s(t + 7)))
        e("s_lshr_b32 %s, s2, 3\ns_lshl_b32 %s, %s, 10" % (s(t + 1), s(t + 1), s(t + 1)))
        e("v_min_u32 %s, 7, %s\nv_lshlrev_b32 %s, 7, %s\nv_add_u32 %s, %s, %s\nv_min_u32 %s, K_END-TAILC0, %s" % (v(V_PL), v(L), v(V_PL), v(V_PL), v(V_PL), s(t + 1), v(V_PL), v(V_PL), v(V_PL)))
        e("global_load_dword %s, %s, %s" % (v(V_DUMP), v(V_PL), s(t + 6, 2)))
    e(poll_load(True))
    e("s_mov_b32 %s, %d\ns_branch ATT_LOOP" % (s(S_EVT), EV(27)))
assert all((g * 3277) >> 16 == g // 20 for g in range(160)) and all((c * 13108) >> 16 == c // 5 for c in range(40))

K_SX, K_SO = S_WU, S_X
T_SA, T_SW, T_XS = S_T, S_WF, S_WQ
T_XO = S_WG
T_TAG = S_WG + 3
T_M0W, T_OA, T_OW = 88, 89, 90
T_BA, T_BW = (S_XOFF, S_WQOFF), (S_WGOFF, S_M0W)
K_FLG = 95
KV_XO = 63; KV_X = 8
TV_WR, TV_L4K, TV_TAG, TV_OW, TV_OR = 60, 61, 62, 3, 4
XPB = 12288
REUSE = 1
COAL = opt("coal", 1)
NSD, NSG = 7, 23
ROTW = opt("rotw", 0)
T_ROT = 58
RW8, RA8, RF8 = 6, 5, 10
L_OWN = [122880, 0]

def join_scalar(lines):
    out = []
    for x in lines:
        if x.startswith(("s_addc", "s_cselect")): out[-1] += "\n" + x
        else: out.append(x)
    return out

def gen_tail_setup():
    e = E()
    L = V_LANE; t = S_TMP
    R, Cc, KQ = t + 3, t + 4, t + 5
    e("s_bfe_u32 %s, s2, 0x10002\ns_lshl_b32 %s, %s, 3\ns_lshr_b32 %s, s2, 5\ns_add_u32 %s, %s, %s" % (s(R), s(R), s(R), s(t), s(R), s(R), s(t)))
    e("s_bfe_u32 %s, s2, 0x20003\ns_and_b32 %s, s2, 3" % (s(Cc), s(KQ)))
    e("s_lshr_b32 %s, %s, 1\ns_lshl1_add_u32 %s, %s, %s\ns_lshl2_add_u32 %s, %s, %s\ns_mul_i32 %s, %s, %d" % (s(t), s(KQ), s(t), s(R), s(t), s(t), s(t), s(S_WAVE), s(t), s(t), 16 * 1280))
    e("s_and_b32 %s, %s, 1\ns_lshl1_add_u32 %s, %s, %s\ns_mul_i32 %s, %s, 160\ns_add_u32 %s, %s, %s" % (s(t + 1), s(KQ), s(t + 1), s(Cc), s(t + 1), s(t + 1), s(t + 1), s(t), s(t), s(t + 1)))
    srd(e, K_SX, ptr(0), s(t), 15 * 1280 + 160)
    srd(e, K_SO, ptr(9), s(t), 15 * 1280 + 160)
    e("v_and_b32 %s, 15, %s\nv_mul_u32_u24 %s, 1280, %s\nv_lshrrev_b32 %s, 4, %s\nv_lshl_add_u32 %s, %s, 3, %s" % (v(KV_XO), v(L), v(KV_XO), v(KV_XO), v(52), v(L), v(KV_XO), v(52), v(KV_XO)))
    e("s_lshr_b32 %s, %s, 1\ns_lshl2_add_u32 %s, %s, %s\ns_lshl_b32 %s, %s, %d" % (s(K_FLG), s(R), s(K_FLG), s(K_FLG), s(KQ), s(K_FLG), s(K_FLG), FSH + 3))
    e("s_mul_i32 %s, %s, 7\ns_add_u32 %s, %s, 64\ns_lshl_b32 %s, %s, 13\ns_mul_i32 %s, %s, 20480" % (s(t), s(KQ), s(t), s(t), s(T_BA[0]), s(t), s(T_BW[0]), s(t)))
    e("s_lshl_b32 %s, %s, 17\ns_mul_i32 %s, %s, %d" % (s(T_BA[1]), s(KQ), s(T_BW[1]), s(KQ), 16 * 20480))
    if ROTW: e("s_mul_i32 %s, %s, %d\ns_mul_i32 %s, %s, %d\ns_add_u32 %s, %s, %s" % (s(t), s(R), opt("rotr", 1), s(T_ROT), s(Cc), opt("rotc", 2), s(T_ROT), s(T_ROT), s(t)))
    e("s_lshl2_add_u32 %s, %s, %s\ns_mul_i32 %s, %s, %d\ns_add_u32 %s, %s, %d" % (s(t), s(R), s(Cc), s(t), s(t), XGS, s(t), s(t), XP_OFF))
    srd(e, T_XS, ptr(11), s(t), 12 * XPB)
    for ch in range(2):
        d = T_XO + ch
        e("s_and_b32 %s, %s, 2\ns_add_u32 %s, %s, %d\ns_xor_b32 %s, %s, %s\ns_mul_i32 %s, %s, 3\ns_add_u32 %s, %s, %s\ns_sub_u32 %s, %s, 1" % (
            s(t), s(S_WAVE), s(t), s(t), ch, s(t + 1), s(t), s(KQ), s(t), s(t), s(t), s(t), s(t + 1), s(t), s(t)))
        e("s_mul_i32 %s, %s, %d\ns_and_b32 %s, %s, 1\ns_mul_i32 %s, %s, 6144\ns_add_u32 %s, %s, %s" % (s(t), s(t), XPB, s(d), s(S_WAVE), s(d), s(d), s(d), s(d), s(t)))
        e("s_cmp_eq_u32 %s, 0\ns_cselect_b32 %s, 0x1000000, %s" % (s(t + 1), s(d), s(d)))
    if PWARM:
        e("s_lshl2_add_u32 %s, %s, %s\ns_mul_i32 %s, %s, %d\ns_lshl_b32 %s, %s, 14\ns_add_u32 %s, %s, %s" % (s(t), s(S_QT), s(S_WAVE), s(t), s(t), NSLAB * 4096, s(t + 1), s(S_HEAD), s(t), s(t), s(t + 1)))
        e("v_mov_b32 %s, %s" % (v(V_PW), s(t)))
        for i, o in ((1, 6144), (2, 10240)):
            e("s_add_u32 %s, %s, %d\nv_writelane_b32 %s, %s, %d\nv_writelane_b32 %s, %s, %d" % (s(t + 1), s(t), o, v(V_PW), s(t + 1), 2 * i, v(V_PW), s(t + 1), 2 * i + 1))
        e("s_lshl2_add_u32 %s, %s, %s\ns_mul_i32 %s, %s, %d\ns_add_u32 %s, %s, %d" % (s(t + 2), s(R), s(Cc), s(t + 2), s(t + 2), 24 * XPB, s(t + 2), s(t + 2), XP_OFF))
        for m in range(2):
            for ch in range(2):
                i = 3 + 2 * m + ch
                e("s_add_u32 %s, %s, %s\ns_add_u32 %s, %s, %d" % (s(t + 1), s(t + 2), s(T_XO + ch), s(t + 1), s(t + 1), m * 12 * XPB))
                e("s_cmp_eq_u32 %s, 0x1000000\ns_cselect_b32 %s, %s, %s" % (s(T_XO + ch), s(t + 1), s(t), s(t + 1)))
                e("v_writelane_b32 %s, %s, %d\nv_writelane_b32 %s, %s, %d" % (v(V_PW), s(t + 1), 2 * i, v(V_PW), s(t + 1), 2 * i + 1))
        e("v_min_u32 %s, 14, %s" % (v(V_T), v(L)))
        L = V_T
        e("v_and_b32 %s, 1, %s\nv_lshl_add_u32 %s, %s, 7, %s\nv_subrev_u32 %s, 1280, %s" % (v(V_T), v(L), v(V_PW), v(V_T), v(V_PW), v(V_PW), v(V_PW)))
        L = V_LANE
    e("s_mul_i32 %s, %s, %d\ns_mul_i32 %s, %s, 3072\ns_add_u32 %s, %s, %s" % (s(T_XO + 2), s(KQ), 3 * XPB, s(t), s(S_WAVE), s(T_XO + 2), s(T_XO + 2), s(t)))
    e("s_add_u32 %s, %s, 0x10000\ns_and_b32 %s, %s, 0x1fff0000\ns_or_b32 %s, %s, 0x40000000\nv_mov_b32 %s, %s" % (s(t), s(S_EPOCH), s(t), s(t), s(T_TAG), s(t), v(TV_TAG), s(T_TAG)))
    e("s_and_b32 %s, %s, 1\ns_mul_i32 %s, %s, 10240\nv_add_u32 %s, %s, %s" % (s(t), s(S_WAVE), s(t), s(t), v(TV_OW), s(t), v(V_L16)))
    e("s_mul_i32 %s, %s, 5120\nv_add_u32 %s, %s, %s" % (s(t), s(S_WAVE), v(TV_OR), s(t), v(V_L16)))
    e("s_lshr_b32 %s, %s, 1\ns_lshl1_add_u32 %s, %s, %s\ns_mul_i32 %s, %s, %d" % (s(t), s(S_WAVE), s(t), s(R), s(t), s(t), s(t), AFS))
    e("s_and_b32 %s, %s, 1\ns_lshl_b32 %s, %s, 11\ns_add_u32 %s, %s, %s" % (s(t + 1), s(S_WAVE), s(t + 1), s(t + 1), s(t), s(t), s(t + 1)))
    srd(e, T_SA, ptr(11), s(t), NSLAB * 4096 - 2048)
    e("s_mul_i32 %s, %s, 5120" % (s(T_M0W), s(S_WAVE)))
    e("s_mul_i32 %s, %s, %d\ns_add_u32 %s, %s, %s\ns_add_u32 %s, %s, %d" % (s(t), s(Cc), WFS, s(t), s(t), s(T_M0W), s(t), s(t), WF_OFF))
    return join_scalar(e.L)

def gen_tail_setup2():
    e = E()
    srd(e, T_SW, ptr(11), s(S_TMP), 90 * 20480 + 5120)
    e("v_mov_b32 %s, %s\nv_add_u32 %s, 4096, %s" % (v(TV_WR), v(V_L16), v(TV_L4K), v(V_L16)))
    return join_scalar(e.L)

def t8_w(sg):
    base = (sg % RW8) * 20480; tag = "D%d" % sg
    m, i = (0, sg) if sg < NSD else (1, sg - NSD)
    W = lambda vo, off: ("m", "buffer_load_dwordx4 %s, %s, %s offen offset:%d%s lds ;#%s" % (v(vo), s(T_SW, 4), s(T_OW), off, LDFL, tag))
    if m and ROTW:
        hd = [("s", "s_add_u32 %s, %s, %d\ns_and_b32 %s, %s, %d" % (s(T_OW), s(T_ROT), i, s(T_OW), s(T_OW), ROTW - 1)),
              ("s", "s_mul_i32 %s, %s, 20480\ns_add_u32 %s, %s, %s" % (s(T_OW), s(T_OW), s(T_OW), s(T_OW), s(T_BW[m]))),
              ("s", ("s_add_u32 %s, %s, %d\n" % (s(T_OW), s(T_OW), (i & ~(ROTW - 1)) * 20480) if i >= ROTW else "") + "s_add_u32 m0, %s, %d" % (s(T_M0W), base))]
    else:
        hd = [("s", "s_add_u32 %s, %s, %d\ns_add_u32 m0, %s, %d" % (s(T_OW), s(T_BW[m]), i * 20480, s(T_M0W), base))]
    return hd + [
            W(V_L16, 0), W(V_L16, 1024), W(V_L16, 2048), W(V_L16, 3072),
            ("s", "s_add_u32 m0, %s, %d" % (s(T_M0W), base + 4096)), W(TV_L4K, 0)]
def t8_af(sg, half, j): return a((192, 208, 224, 32, 48)[sg % RA8] + half * 8 + j * 4, 4)
def t8_a(sg):
    m, i = (0, sg) if sg < NSD else (1, sg - NSD)
    l = [("s", "s_add_u32 %s, %s, %d" % (s(T_OA), s(T_BA[m]), i * 8192))]
    if m and ROTW:
        l = [("s", "s_add_u32 %s, %s, %d\ns_and_b32 %s, %s, %d" % (s(T_OA), s(T_ROT), i, s(T_OA), s(T_OA), ROTW - 1)),
             ("s", "s_lshl_b32 %s, %s, 13\ns_add_u32 %s, %s, %s" % (s(T_OA), s(T_OA), s(T_OA), s(T_OA), s(T_BA[m])))]
        if i >= ROTW: l.append(("s", "s_add_u32 %s, %s, %d" % (s(T_OA), s(T_OA), (i & ~(ROTW - 1)) * 8192)))
    for half in range(2):
        for j in range(2):
            l.append(("m", "buffer_load_dwordx4 %s, %s, %s, %s offen offset:%d%s ;#A%d" % (t8_af(sg, half, j), v(TV_L4K if half else V_L16), s(T_SA, 4), s(T_OA), j * 1024, LDFL, sg)))
    return l
def t8_wf(F):
    k = F % RF8
    return a(4 * k if k < 8 else 240 + 4 * (k - 8), 4)
def t8_read(F):
    sg, f = F // 20, F % 20
    if opt("t8c", 1): f = (f & 1) * 10 + (f >> 1)
    return "ds_read_b128 %s, %s offset:%d" % (t8_wf(F), v(TV_WR), (sg % 3) * 20480 + f * 1024)
def t8_acc(m, n10, j):
    i = n10 * 2 + j
    if m == 0: return 128 + 4 * i
    return 64 + 4 * i if i < 16 else 208 + 4 * (i - 16)
NWP = opt("nwp", 4)
NPRE_X = opt("nprex", 3)
NPRE_G = opt("npreg", 3)

def cond_lines(lines): return [("@" + x) if x.startswith("buffer") else x for x in lines]

def publish(m):
    out = []; n = 0
    for ch in range(2):
        if m == 1 and REUSE:
            t = S_TMP
            out.append(("s", "s_and_b32 %s, s2, 3\ns_and_b32 %s, %s, 2\ns_sub_u32 %s, %s, %s\ns_sub_u32 %s, %s, %d\ns_mul_i32 %s, %s, %d\ns_add_u32 %s, %s, %s" % (
                s(t), s(t + 1), s(S_WAVE), s(t), s(t), s(t + 1), s(t), s(t), ch, s(t), s(t), 3 * XPB, s(t + 2), s(T_XO + ch), s(t))))
        else:
            out.append(("s", "s_add_u32 %s, %s, %d" % (s(S_TMP + 2), s(T_XO + ch), m * 12 * XPB)))
        for j in range(2):
            vals = [t8_acc(m, 5 * ch + nb, j) + k for nb in range(5) for k in range(4)]
            pb = (40, 240)[n % 2]; n += 1
            for gi in range(3):
                vs = vals[7 * gi:7 * gi + 7]
                if len(vs) < 7: vs = vs + [TV_TAG]
                for h in range(3): out.append(("v", "v_cvt_pk_bf16_f32 %s, %s, %s" % (v(pb + 4 * gi + h), v(vs[2 * h]), v(vs[2 * h + 1]))))
                out.append(("v", "v_cvt_pk_bf16_f32 %s, %s, %s" % (v(pb + 4 * gi + 3), v(vs[6]), v(TV_TAG))))
                off = j * 3072 + gi * 1024
                out.append(("m", "buffer_store_dwordx4 %s, %s, %s, %s offen offset:%d%s ;#xst%d" % (v(pb + 4 * gi, 4), v(TV_L4K if off >= 4096 else V_L16), s(T_XS, 4), s(S_TMP + 2), off % 4096, STFL, m)))
    return out
def own_write(m):
    l = []
    if L_OWN[m]: l.append("v_add_u32 %s, %d, %s" % (v(52), L_OWN[m], v(TV_OW)))
    ar = v(52) if L_OWN[m] else v(TV_OW)
    for ch in range(2):
        l.append("s_cmp_lg_u32 %s, 0x1000000\ns_cbranch_scc1 NOOWN%d%d" % (s(T_XO + ch), m, ch))
        for j in range(2):
            for nb in range(5): l.append("ds_write_b128 %s, %s offset:%d" % (ar, v(t8_acc(m, 5 * ch + nb, j), 4), (j * 5 + nb) * 1024))
        l.append("NOOWN%d%d:" % (m, ch))
    return l
XR = [128, 64]; OWR = [164, 184]
T_SL = 72
def xloads(m):
    l = []
    for i in range(3):
        if m == 1 and REUSE: l.append(("s", "s_mov_b32 %s, %s" % (s(S_TMP + 3), s(T_SL + i))))
        else: l.append(("s", "s_add_u32 %s, %s, %d" % (s(S_TMP + 3), s(T_XO + 2), m * 12 * XPB + i * XPB)))
        for k in range(3): l.append(("m", "buffer_load_dwordx4 %s, %s, %s, %s offen offset:%d%s ;#xr%d" % (v(XR[m] + (i * 3 + k) * 4, 4), v(V_L16), s(T_XS, 4), s(S_TMP + 3), k * 1024, LDFL, m)))
    return l
def xcheck(e, m, first_wait):
    t = S_TMP
    e("s_mov_b32 %s, 0" % s(t + 7))
    e(first_wait)
    e("XCHK%d:" % m)
    for i in range(9): e("v_xor_b32 %s, %s, %s" % (v(20 + i), s(T_TAG), v(XR[m] + 4 * i + 3)))
    for i in range(4): e("v_or3_b32 %s, %s, %s, %s" % (v(20), v(20), v(21 + 2 * i), v(22 + 2 * i)))
    e("v_cmp_lt_u32 vcc, 0xffff, %s" % v(20))
    e("s_add_u32 %s, %s, 1" % (s(t + 7), s(t + 7)))
    e("s_cmp_eq_u64 vcc, 0\ns_cbranch_scc1 XOK%d" % m)
    e("s_cmp_ge_u32 %s, 0x40000\ns_cbranch_scc1 XOK%d" % (s(t + 7), m))
    if m == 0 and opt("dprb", 1):
        e("v_min_u32 %s, 2, %s\nv_mul_u32_u24 %s, %d, %s\ns_add_u32 %s, %s, %d" % (v(31), v(V_LANE), v(31), XPB, v(31), s(t + 3), s(T_XO + 2), 2048 + 1008 + 12))
        e("DPROBE:")
        e("s_sleep %d" % opt("dslp", 24))
        e("@buffer_load_dword %s, %s, %s, %s offen%s" % (v(30), v(31), s(T_XS, 4), s(t + 3), LDFL))
        e("s_waitcnt vmcnt(0)")
        e("v_xor_b32 %s, %s, %s\nv_cmp_lt_u32 vcc, 0xffff, %s" % (v(30), s(T_TAG), v(30), v(30)))
        e("s_add_u32 %s, %s, 1" % (s(t + 7), s(t + 7)))
        e("s_cmp_ge_u32 %s, 0x40000\ns_cbranch_scc1 DPROBED" % s(t + 7))
        e("s_cmp_lg_u64 vcc, 0\ns_cbranch_scc1 DPROBE")
        e("DPROBED:")
    else:
        e("s_sleep %d" % opt("xslp", 4))
    for x in cond_lines([x for _, x in xloads(m)]): e(x)
    e("s_waitcnt vmcnt(0)\ns_branch XCHK%d" % m)
    e("XOK%d:" % m)
def xsum(e, m, nb):
    o = OWR[m] + 4 * nb
    for i in range(3):
        for k in range(4):
            idx = nb * 4 + k; gi, pos = idx // 7, idx % 7
            src = XR[m] + (i * 3 + gi) * 4 + pos // 2
            e(("v_and_b32 %s, 0xffff0000, %s" if pos & 1 else "v_lshlrev_b32 %s, 16, %s") % (v(20 + 4 * i + k), v(src)))
    for h in range(2):
        e("v_pk_add_f32 %s, %s, %s" % (v(o + 2 * h, 2), v(o + 2 * h, 2), v(20 + 2 * h, 2)))
        e("v_pk_add_f32 %s, %s, %s" % (v(24 + 2 * h, 2), v(24 + 2 * h, 2), v(28 + 2 * h, 2)))
    for h in range(2): e("v_pk_add_f32 %s, %s, %s" % (v(o + 2 * h, 2), v(o + 2 * h, 2), v(24 + 2 * h, 2)))

CV_G, CV_L, CV_X, LROW, L_FIN = 8, 11, 224, 336, 20480
NIN = opt("nin", 6)
OGAP = opt("og", 50)
def gen_t8(e, inner):
    t = S_TMP
    mf = []
    NF = 20 * NSG
    for F in range(NF):
        sg, f = F // 20, F % 20
        m = 0 if sg < NSD else 1
        if opt("t8c", 1):
            j = f & 1; F0 = F - j
            d = v(t8_acc(m, f >> 1, j), 4)
            for i, half in enumerate((0, 1) if j == 0 else (1, 0)):
                mf.append("%s %s, %s, %s, %s" % (MF, d, t8_wf(F0 + half), t8_af(sg, half, j), "0" if (sg in (0, NSD) and i == 0) else d))
            continue
        for j in range(2):
            d = v(t8_acc(m, f % 10, j), 4)
            mf.append("%s %s, %s, %s, %s" % (MF, d, t8_wf(F), t8_af(sg, f // 10, j), "0" if (sg in (0, NSD) and f < 10) else d))
    G = Gaps(mf)
    DA = opt("t8d", 8)
    SIGS = opt("sigs", 3); CKS = opt("cks", 6); PLS = CKS - opt("polld", 1)
    bars = {}
    cur = 0
    for F in range(DA, NF):
        sg, f = F // 20, F % 20
        lo = 2 * (F - DA)
        if f == 0:
            if sg % 3 == 0:
                d = 61440 if sg % 6 == 3 else -61440
                G.place("v", ("v_add_u32 %s, %d, %s" % (v(TV_WR), d, v(TV_WR))) if d > 0 else ("v_subrev_u32 %s, %d, %s" % (v(TV_WR), -d, v(TV_WR))), cur - 1, cur - 1)
            pre = E(); post = E()
            if sg == CKS:
                stamp(pre, 11)
                pre("s_cmp_lg_u32 %s, 0\ns_cbranch_scc1 SPUN_O\ns_waitcnt SINCE{p3}" % s(S_WAVE))
                poll_spin(pre, False, s(K_FLG), 4, "O")
                stamp(post, 12)
            if sg == SIGS:
                W = V_T + 12
                post("ds_read_b128 %s, %s\ns_waitcnt lgkmcnt(0)" % (v(W + 4, 4), v(W + 2)))
                post("v_or3_b32 %s, %s, %s, %s\nv_or_b32 %s, %s, %s\ns_nop 0" % (v(W + 4), v(W + 4), v(W + 5), v(W + 6), v(W + 4), v(W + 4), v(W + 7)))
                post("v_readfirstlane_b32 %s, %s" % (s(t), v(W + 4)))
                post("s_nop 3\ns_andn2_b32 %s, %s, %s" % (s(t), s(t), s(S_RETRY)))
                post("s_cbranch_scc1 ATT_RETRY")
                post("s_cmp_lg_u32 %s, 0\ns_cbranch_scc1 NOSIG3" % s(S_WAVE))
                set_flag(post, 4)
                post("s_cmp_lg_u32 s2, 0\ns_cbranch_scc1 NOSIG3")
                post("s_add_u32 %s, %s, 0x10001\ns_mov_b64 exec, 1\nv_mov_b32 %s, %s\ns_mov_b32 %s, %d" % (s(t + 7), s(S_EPOCH), v(V_PL + 1), s(t + 7), s(t + 6), EP_OFF))
                post("buffer_store_dword %s, off, %s, %s sc1\ns_mov_b64 exec, -1" % (v(V_PL + 1), s(S_FL, 4), s(t + 6)))
                post("NOSIG3:")
                stamp(post, 10)
            if sg == PLS:
                post("s_cmp_lg_u32 %s, 0\ns_cbranch_scc1 NOPOLL3" % s(S_WAVE))
                post(poll_load(False, s(K_FLG)))
                post("NOPOLL3:\nMARK p3")
            b = G.place("b", "\n".join(cond_lines(pre.L) + ["s_barrier"] + cond_lines(post.L)), max(cur, lo - 1))
            lateA = NSD <= sg < NSD + opt("latea", 2) or NPRE_G <= sg < NPRE_G + opt("lateb", 1)
            G.put(b, "s", "s_waitcnt WAITVM{D%d%s%s}" % (sg, "" if lateA else ",A%d" % sg, ",ost" if sg == SIGS else ""))
            if lateA: G.put(40 * sg - 1, "s", "s_waitcnt WAITVM{A%d}" % sg)
            bars[sg] = b; cur = b + 1
        cur = G.place("d", t8_read(F), max(cur, lo)) + 1
    LG = OGAP if opt("ldel", 1) and inner else 0
    if inner:
        body, fin = inner
        free = [g for g in range(OGAP) if g not in bars.values()]
        for i, x in enumerate(body):
            g = free[(i * len(free)) // len(body)]
            G.va[g].append(x); G.used[g] = 2
        g = OGAP + 8
        while g in bars.values(): g += 1
        G.va[g].append("\n".join(fin)); G.used[g] = 2
        assert g + 16 < bars[SIGS], "retry flag must be written (and waited for) before the deciding barrier"
    qw = [(t8_w(sg), bars[sg - RW8 + 2] if sg >= RW8 else LG, sg) for sg in range(max(NPRE_G, NWP), NSG)]
    qa = [(t8_a(sg), max(40 * (sg - RA8 + 1) if sg >= RA8 else 0, bars[CKS] if sg >= NSD else LG), sg) for sg in range(NPRE_G, NSG)]
    DP = opt("dpub", 1)
    side = []
    if DP:
        side.append((publish(0), 40 * NSD + 8 + opt("dpd", 8)))
        side.append((xloads(0), 40 * opt("dld", 20)))
    if COAL:
        seq = []
        for i in range(3):
            seq += [("v", "v_add_u32 %s, %d, %s" % (v(CV_G + i), 64 * i, v(V_LANE))), ("v", "v_mul_u32_u24 %s, 6554, %s" % (v(36), v(CV_G + i))), ("v", "v_lshrrev_b32 %s, 16, %s" % (v(36), v(36))),
                    ("v", "v_lshlrev_b32 %s, 5, %s" % (v(CV_L + i), v(CV_G + i))), ("v", "v_mad_u32_u24 %s, %s, %d, %s" % (v(CV_L + i), v(36), LROW - 320, v(CV_L + i))),
                    ("v", "v_mul_u32_u24 %s, 1120, %s" % (v(36), v(36))), ("v", "v_lshl_add_u32 %s, %s, 4, %s" % (v(CV_G + i), v(CV_G + i), v(36))),
                    ("m", "buffer_load_dwordx4 %s, %s, %s, 0 offen ;#xx" % (v(CV_X + 4 * i, 4), v(CV_G + i), s(K_SX, 4)))]
        side.append((seq, 40 * opt("xld", 19)))
    else:
        side.append(([("m", "buffer_load_dwordx2 %s, %s, %s, 0 offen offset:%d ;#xx" % (v(KV_X + 2 * nb, 2), v(KV_XO), s(K_SX, 4), nb * 32)) for nb in range(5)], 40 * opt("xld", 19)))
    side.sort(key=lambda x: x[1])
    MG = opt("mg", 4)
    g = 0; lastm = -9
    while qw or qa:
        c = [x for x in (qw, qa) if x]
        c.sort(key=lambda x: (max(x[0][1], g), x[0][2]))
        seq, lo, sg_ = c[0].pop(0)
        g = max(g, lo)
        for k, x in seq:
            mg = opt("mgf", 4) if bars[sg_] - g < opt("mgl", 0) else MG
            g = G.place(k, x, max(g + 1, lastm + mg if k == "m" else 0))
            if k == "m": lastm = g
        if VERBOSE: print("la", sg_, "W" if " lds" in seq[-1][1] else "A", bars[sg_] - g, end="; ")
    for seq, lo in side:
        g = lo; lastm = -99
        for k, x in seq:
            g = G.place(k, x, max(g + (0 if k == "v" else 1), lastm + (opt("smg", 16) if "xst" in x else 6) if k == "m" else 0))
            if k == "m": lastm = g
        if "xst0" in seq[-1][1]:
            G.va[g + 1].append("\n".join(own_write(0))); pubend = g + 1
    if DP: assert pubend < 40 * opt("dld", 20) - 40
    auto_lgkm(G, eager=opt("eag", 8))
    if VERBOSE: print("t8", G.pattern())
    for F in range(DA): e(t8_read(F))
    e("s_waitcnt lgkmcnt(0)")
    nm = 0
    for x in G.lines():
        if x.startswith("v_mfma"):
            if nm == 40 * NSD: stamp(e, 13)
            if STAMPS and opt("t8st", 0) and nm > 40 * NSD and (nm - 40 * NSD) % 160 == 0: stamp(e, 25 + (nm - 40 * NSD) // 160)
            nm += 1
        e(x)

def gen_tail(e0, head):
    head, neg = head
    e = E(); e.ext(head)
    T = V_T; t = S_TMP
    stamp(e, 8)
    C = 252
    W = T + 12
    wq = [x for sg in range(NPRE_X, NPRE_G) for x in (t8_w(sg) if sg >= NWP else []) + t8_a(sg)]
    def wsome(n):
        while wq and n > 0:
            k, x = wq.pop(0); n -= (k == "m")
            e(x + ("\ns_nop 0" if k == "s" else ""))
    wsome(opt("wpre", 0))
    pro, grp = o_ops()
    body = []
    for i in range(neg, 16):
        blk = i < 16 - NIN
        if i == 8: (e.L if blk else body).extend(pro[1])
        for x in grp(i, blk):
            if blk: e(x)
            else: body.append(x)
    wsome(99)
    f = E()
    f("v_cmp_u_f32 vcc, %s, %s" % (v(T + 8), v(C)))
    f("s_cmp_lg_u64 vcc, 0\ns_cselect_b32 %s, 1, 0" % s(t))
    f("v_mov_b32 %s, %s" % (v(W), s(t)))
    f("s_lshl_b32 %s, %s, 2\ns_add_u32 %s, %s, %d" % (s(t + 1), s(S_WAVE), s(t + 1), s(t + 1), L_MISC))
    f("v_mov_b32 %s, %s\nv_mov_b32 %s, %d" % (v(W + 1), s(t + 1), v(W + 2), L_MISC))
    f("ds_write_b32 %s, %s" % (v(W + 1), v(W)))
    if not body:
        e("s_nop 7"); e.ext(f.L)
    e("s_waitcnt WAITVM{D0,A0} lgkmcnt(0)")
    e("s_cmp_lg_u32 %s, 0\ns_cbranch_scc1 SPUN_EARLY3" % s(S_WAVE))
    w0 = E(); poll_spin(w0, True, None, 3, "EARLY3")
    for x in cond_lines(w0.L): e(x)
    e("v_min_u32 %s, 7, %s\nv_lshlrev_b32 %s, %d, %s" % (v(V_PL + 3), v(V_LANE), v(V_PL + 3), FSH, v(V_PL + 3)))
    e("s_barrier")
    stamp(e, 9)
    gen_t8(e, (body, f.L) if body else None)
    stamp(e, 14)
    if REUSE:
        xcheck(e, 0, "s_waitcnt WAITVM{xr0,xx}")
        e("s_barrier")
        e("s_xor_b32 %s, %s, 0x80000000\nv_mov_b32 %s, %s" % (s(T_TAG), s(T_TAG), v(TV_TAG), s(T_TAG)))
    else:
        e("s_nop 6")
    if opt("skp", 1):
        pb = publish(1); half = len(pb) // 2
        ow = own_write(1)
        for ch in range(2):
            e("s_cmp_eq_u32 %s, 0x1000000\ns_cbranch_scc1 NOPUB%d" % (s(T_XO + ch), ch))
            for x in cond_lines([x for k, x in pb[ch * half:(ch + 1) * half]]): e(x)
            e("NOPUB%d:" % ch)
    else:
        for k, x in publish(1): e(x)
    stamp(e, 23)
    for x in own_write(1): e(x)
    e("v_add_u32 %s, %d, %s" % (v(52), L_OWN[0], v(TV_OR)))
    if REUSE:
        for i in range(3):
            e("s_and_b32 %s, s2, 3\ns_xor_b32 %s, %s, %d\ns_sub_u32 %s, %s, %s\ns_mul_i32 %s, %s, %d\ns_add_u32 %s, %s, %s\ns_add_u32 %s, %s, %d" % (
                s(t), s(t + 1), s(t), i + 1, s(t), s(t + 1), s(t), s(t), s(t), 3 * XPB, s(t), s(t), s(T_XO + 2), s(T_SL + i), s(t), i * XPB))
    e("s_waitcnt lgkmcnt(0)")
    e("s_barrier")
    for nb in range(5): e("ds_read_b128 %s, %s offset:%d" % (v(OWR[0] + 4 * nb, 4), v(52), nb * 1024))
    for nb in range(5): e("ds_read_b128 %s, %s offset:%d" % (v(OWR[1] + 4 * nb, 4), v(TV_OR), L_OWN[1] + nb * 1024))
    if REUSE: e("s_waitcnt lgkmcnt(0)")
    else: xcheck(e, 0, "s_waitcnt WAITVM{xr0,xx} lgkmcnt(0)")
    GG = 100; XU = 204
    e("v_mov_b32 %s, %s" % (v(36), f2u(1.0 / DSC)))
    MP0, MP1 = opt("mp0", 2), opt("mp1", 9)
    e("v_mov_b32 %s, %s\nv_writelane_b32 %s, %s, 0\nv_writelane_b32 %s, %s, 1\ns_movk_i32 %s, %d\ns_mov_b32 %s, 0" % (v(38), s(T_SL + 2), v(38), s(T_SL), v(38), s(T_SL + 1), s(t + 4), 2048 + 1008 + 12, s(t + 5)))
    PLD = "@buffer_load_dword %s, %s, %s, %s offen%s" % (v(37), v(38), s(T_XS, 4), s(t + 4), LDFL)
    for nb in range(5):
        if nb == MP0 and MP1 < 9: e(PLD)
        if nb == MP1:
            e("s_waitcnt vmcnt(0)")
            e("v_xor_b32 %s, %s, %s\nv_cmp_lt_u32 vcc, 0xffff, %s" % (v(37), s(T_TAG), v(37), v(37)))
            e("s_cmp_lg_u64 vcc, 0\ns_cbranch_scc1 NOEARLY")
            for x in cond_lines([x for _, x in xloads(1)]): e(x)
            e("s_mov_b32 %s, 1\nNOEARLY:" % s(t + 5))
        d = OWR[0] + 4 * nb; gq = GG + 4 * nb
        xsum(e, 0, nb)
        for k in range(4): e("v_mul_f32 %s, %s, %s" % (v(gq + k), f2u(-math.log2(math.e) * DSC), v(d + k)))
        for k in range(4): e("v_exp_f32 %s, %s" % (v(gq + k), v(gq + k)))
        e("s_nop 0")
        for k in range(4): e("v_fma_f32 %s, %s, %s, %s" % (v(gq + k), v(gq + k), v(36), v(36)))
        for k in range(4): e("v_rcp_f32 %s, %s" % (v(gq + k), v(gq + k)))
        if not COAL:
            for h in range(2):
                e("v_lshlrev_b32 %s, 16, %s" % (v(XU + 4 * nb + 2 * h), v(KV_X + 2 * nb + h)))
                e("v_and_b32 %s, 0xffff0000, %s" % (v(XU + 4 * nb + 2 * h + 1), v(KV_X + 2 * nb + h)))
        else: e("s_nop 0")
        for k in range(4): e("v_mul_f32 %s, %s, %s" % (v(gq + k), v(gq + k), v(d + k)))
    if COAL:
        XU = 128
        for i in range(12):
            e("v_lshlrev_b32 %s, 16, %s\nv_and_b32 %s, 0xffff0000, %s" % (v(XU + 2 * i), v(CV_X + i), v(XU + 2 * i + 1), v(CV_X + i)))
        e("s_mul_i32 %s, %s, %d\ns_add_u32 %s, %s, %d" % (s(t), s(S_WAVE), 20 * LROW, s(t), s(t), L_FIN))
        e("v_and_b32 %s, 15, %s\nv_mul_u32_u24 %s, %d, %s\nv_lshrrev_b32 %s, 4, %s\nv_lshl_add_u32 %s, %s, 4, %s\nv_add_u32 %s, %s, %s" % (v(14), v(V_LANE), v(14), LROW, v(14), v(15), v(V_LANE), v(14), v(15), v(14), v(14), s(t), v(14)))
        for i in range(3): e("v_add_u32 %s, %s, %s" % (v(CV_L + i), s(t), v(CV_L + i)))
    stamp(e, 24)
    e("s_mov_b32 %s, 0" % s(t + 7))
    e("s_cmp_lg_u32 %s, 0\ns_cbranch_scc1 LOADED" % s(t + 5))
    e("PROBE:")
    e(PLD)
    e("s_waitcnt vmcnt(0)")
    e("v_xor_b32 %s, %s, %s\nv_cmp_lt_u32 vcc, 0xffff, %s" % (v(37), s(T_TAG), v(37), v(37)))
    e("s_add_u32 %s, %s, 1" % (s(t + 7), s(t + 7)))
    e("s_cmp_eq_u64 vcc, 0\ns_cbranch_scc1 PROBED")
    e("s_cmp_ge_u32 %s, 0x40000\ns_cbranch_scc1 PROBED" % s(t + 7))
    e("s_sleep %d\ns_branch PROBE" % opt("pslp", 12))
    e("PROBED:")
    for k, x in xloads(1): e(x)
    e("LOADED:")
    xcheck(e, 1, "s_waitcnt vmcnt(0)")
    stamp(e, 25)
    OFL = opt("ofl", "_sc1").replace("_", " ")
    for nb in range(5):
        o = OWR[1] + 4 * nb; gq = GG + 4 * nb; xu = XU + 4 * nb
        xsum(e, 1, nb)
        if COAL:
            for h in range(2): e("v_pk_mul_f32 %s, %s, %s" % (v(o + 2 * h, 2), v(o + 2 * h, 2), v(gq + 2 * h, 2)))
            e("ds_write_b128 %s, %s offset:%d" % (v(14), v(o, 4), nb * 64))
            continue
        for r in range(4): e("v_fma_f32 %s, %s, %s, %s" % (v(xu + r), v(o + r), v(gq + r), v(xu + r)))
        for h in range(2): e("v_cvt_pk_bf16_f32 %s, %s, %s" % (v(gq + h), v(xu + 2 * h), v(xu + 2 * h + 1)))
        e("buffer_store_dwordx2 %s, %s, %s, 0 offen offset:%d%s" % (v(gq, 2), v(KV_XO), s(K_SO, 4), nb * 32, OFL))
    if COAL:
        for i in range(3):
            for h in range(2): e("ds_read_b128 %s, %s offset:%d" % (v(64 + 8 * i + 4 * h, 4), v(CV_L + i), 16 * h))
        for i in range(3):
            e("s_waitcnt lgkmcnt(%d)" % (4 - 2 * i))
            for h in range(4): e("v_pk_add_f32 %s, %s, %s" % (v(64 + 8 * i + 2 * h, 2), v(64 + 8 * i + 2 * h, 2), v(XU + 8 * i + 2 * h, 2)))
            for h in range(4): e("v_cvt_pk_bf16_f32 %s, %s, %s" % (v(100 + 4 * i + h), v(64 + 8 * i + 2 * h), v(65 + 8 * i + 2 * h)))
            e("buffer_store_dwordx4 %s, %s, %s, 0 offen%s" % (v(100 + 4 * i, 4), v(CV_G + i), s(K_SO, 4), OFL))
    e0.ext([x.lstrip("@") for x in resolve_vm(e.L)])
    e = e0
    stamp(e, 15)
    if STAMPS: e("s_waitcnt vmcnt(0)")
    stamp(e, 16)
    stamp_fin(e)

def gen_kv_addr(e):
    T = V_T + 12; L = V_LANE
    e("s_lshl_b32 %s, %s, 19" % (s(S_TMP), s(S_HEAD)))
    srd(e, S_K, 54, s(S_TMP), 524288)
    srd(e, S_V, 56, s(S_TMP), 524288 + VSH * 8192)
    e("s_sub_u32 %s, %s, %d\ns_subb_u32 %s, %s, 0" % (s(S_V), s(S_V), VSH * 8192, s(S_V + 1), s(S_V + 1)))
    e("v_lshrrev_b32 %s, 4, %s\ns_lshl_b32 %s, %s, 3\nv_add_u32 %s, %s, %s\nv_and_b32 %s, 15, %s" % (v(T), v(L), s(S_TMP), s(S_WAVE), v(T), s(S_TMP), v(T), v(T + 1), v(L)))
    e("v_lshlrev_b32 %s, 8, %s" % (v(T + 2), v(T)))
    for i in range(2):
        e("v_add_u32 %s, %d, %s\nv_and_b32 %s, 15, %s\nv_xor_b32 %s, %s, %s\nv_lshl_add_u32 %s, %s, 4, %s" % (v(T + 3), 4 * i, v(T), v(T + 4), v(T + 3), v(T + 4), v(T + 4), v(T + 1), v(V_KD + i), v(T + 4), v(T + 2)))
        e("v_and_b32 %s, 7, %s\nv_lshlrev_b32 %s, 1, %s\nv_xor_b32 %s, %s, %s\nv_lshl_add_u32 %s, %s, 4, %s" % (v(T + 4), v(T + 3), v(T + 4), v(T + 4), v(T + 4), v(T + 4), v(T + 1), v(V_VD + i), v(T + 4), v(T + 2)))
    e("v_and_b32 %s, 15, %s\nv_lshrrev_b32 %s, 4, %s\nv_xor_b32 %s, %s, %s" % (v(T), v(L), v(T + 1), v(L), v(T + 1), v(T + 1), v(T)))
    e("v_lshlrev_b32 %s, 8, %s\nv_lshl_add_u32 %s, %s, 4, %s" % (v(T), v(T), v(T), v(T + 1), v(T)))
    for sl in range(4): e("v_xor_b32 %s, %d, %s" % (v(V_KA + sl), sl * 64, v(T)))
    e("v_lshrrev_b32 %s, 2, %s\nv_and_b32 %s, 7, %s\nv_lshlrev_b32 %s, 8, %s\nv_lshl_add_u32 %s, %s, 5, %s" % (v(T), v(L), v(T + 1), v(T), v(T), v(T), v(T), v(T + 1), v(T)))
    e("v_and_b32 %s, 3, %s\nv_lshl_add_u32 %s, %s, 3, %s\nv_add_u32 %s, %d, %s" % (v(T + 1), v(L), v(T), v(T + 1), v(T), v(T), L_V, v(T)))
    for db in range(8): e("v_xor_b32 %s, %d, %s" % (v(V_VA + db), db * 32, v(T)))

def gen_retry(e):
    e("ATT_RETRY:")
    e("s_waitcnt vmcnt(0) lgkmcnt(0)\ns_mov_b32 %s, 1\nv_mov_b32 %s, %s" % (s(S_RETRY), v(TV_WR), v(V_L16)))
    gen_kv_addr(e)
    for qb in range(4): e("v_mov_b32 %s, 0xff800000" % v(V_NEGM + 4 * qb))
    e("s_mov_b32 %s, 0" % s(S_KVOFF))
    e("RETRY_LOOP:")
    e("s_barrier")
    e("s_add_u32 m0, %s, %d\ns_nop 0" % (s(S_M0K), L_K))
    e(kv_dma("K", 0)); e(kv_dma("K", 1))
    e("s_waitcnt vmcnt(0)\ns_barrier")
    for kb in range(2):
        for sl in range(4): e(k_read(kb, sl, 0))
    e("s_waitcnt lgkmcnt(0)")
    e.ext(qk_mfmas(0, czero=True))
    e("s_nop 7")
    for qb in range(4):
        b = Sreg(0, qb, 0); m = v(V_NEGM + 4 * qb)
        for k in range(4): e("v_max3_f32 %s, %s, %s, %s" % (m, m, v(b + 2 * k), v(b + 2 * k + 1)))
    e("s_add_u32 %s, %s, 8192\ns_cmp_lt_u32 %s, %d\ns_cbranch_scc1 RETRY_LOOP" % (s(S_KVOFF), s(S_KVOFF), s(S_KVOFF), 64 * 8192))
    e("s_barrier")
    kv_preload(e)
    e("s_barrier")
    for kb in range(2):
        for sl in range(4): e(k_read(kb, sl, 0))
    e.ext(ones_ops(V_T))
    for r in range(128): e("v_accvgpr_write_b32 %s, 0" % a(A_O + r))
    for r in range(8): e("v_mov_b32 %s, 0" % v(V_L + r))
    e("s_waitcnt lgkmcnt(0)")
    e.ext(qk_mfmas(0, czero=True))
    for kb in range(2):
        for sl in range(4): e(k_read(kb, sl, 8192))
    e("s_branch ATT_START")

def gen_common_setup(e):
    T = V_T + 12; L = V_LANE
    e("s_lshl2_add_u32 %s, %s, %s" % (s(S_TMP + 1), s(S_QT), s(S_WAVE)))
    e("s_mul_i32 %s, %s, %d" % (s(S_TMP), s(S_TMP + 1), AFS))
    srd(e, S_AF, ptr(11), s(S_TMP), NSLAB * 4096)
    e("s_mul_i32 %s, %s, %d\ns_add_u32 %s, %s, %d" % (s(S_TMP), s(S_TMP + 1), 20 * 4096, s(S_TMP), s(S_TMP), XF_OFF))
    srd(e, S_X, ptr(11), s(S_TMP), 20 * 4096)
    e("s_mov_b64 %s, %s\ns_mov_b64 %s, %s" % (s(54, 2), s(ptr(1), 2), s(56, 2), s(ptr(2), 2)))
    e("v_bfe_u32 %s, %s, 2, 2\nv_lshrrev_b32 %s, 4, %s\nv_and_b32 %s, 3, %s" % (v(T), v(L), v(T + 1), v(L), v(T + 2), v(L)))
    e("v_lshlrev_b32 %s, 12, %s" % (v(T + 3), v(T + 1)))
    e("v_mul_u32_u24 %s, 320, %s\nv_add_u32 %s, %s, %s\nv_lshl_add_u32 %s, %s, 4, %s" % (v(T + 4), v(T), v(T + 4), v(T + 4), v(T + 3), v(T + 4), v(T + 2), v(T + 4)))
    for sl in range(4): e("v_xor_b32 %s, %d, %s" % (v(V_AQ + sl), sl * 64, v(T + 4)))
    e("v_lshl_add_u32 %s, %s, 7, %s\nv_lshl_add_u32 %s, %s, 3, %s" % (v(T + 4), v(T), v(T + 3), v(T + 4), v(T + 2), v(T + 4)))
    e("v_bfe_u32 %s, %s, 3, 2\nv_lshl_add_u32 %s, %s, 5, %s" % (v(T + 5), v(L), v(T + 4), v(T + 5), v(T + 4)))
    for u in range(4): e("v_xor_b32 %s, %d, %s" % (v(V_AG + u), u * 32, v(T + 4)))
    gen_kv_addr(e)

def gen_w_setup(e):
    T = V_T + 12; L = V_LANE
    e("v_lshrrev_b32 %s, 4, %s\nv_lshlrev_b32 %s, 2, %s\nv_and_b32 %s, 15, %s\nv_xor_b32 %s, %s, %s" % (v(T), v(L), v(T + 1), v(T), v(T + 2), v(L), v(T + 1), v(T + 1), v(T + 2)))
    e("v_lshlrev_b32 %s, 13, %s\nv_lshl_add_u32 %s, %s, 4, %s" % (v(T), v(T), v(V_WD), v(T + 1), v(T)))
    e("v_add_u32 %s, %d, %s" % (v(V_WD + 1), 4 * 8192 - 1024, v(V_WD)))
    e("v_lshrrev_b32 %s, 3, %s\nv_bfe_u32 %s, %s, 4, 1\nv_lshlrev_b32 %s, 1, %s" % (v(T), v(L), v(T + 1), v(L), v(T + 1), v(T + 1)))
    e("s_and_b32 %s, %s, 1\ns_lshl_b32 %s, %s, 2\nv_or_b32 %s, %s, %s" % (s(S_TMP), s(S_WAVE), s(S_TMP), s(S_TMP), v(T + 1), s(S_TMP), v(T + 1)))
    e("v_and_b32 %s, 7, %s\nv_xor_b32 %s, %s, %s" % (v(T + 2), v(L), v(T + 1), v(T + 1), v(T + 2)))
    e("v_mul_u32_u24 %s, 3456, %s\nv_lshl_add_u32 %s, %s, 4, %s" % (v(T), v(T), v(V_WD + 2), v(T + 1), v(T)))
    e("s_lshl_b32 %s, %s, 8\ns_sub_u32 %s, %d, %s" % (s(S_TMP), s(S_HEAD), s(S_TMP + 1), 640 * 8192, s(S_TMP)))
    srd(e, S_WQ, ptr(3), s(S_TMP), s(S_TMP + 1))
    for (d, p, sh) in ((S_WG, 6, 2048), (S_WU, 7, 3072)):
        e("s_lshl_b32 %s, %s, 7\ns_sub_u32 %s, %d, %s" % (s(S_TMP), s(S_FS), s(S_TMP + 1), 640 * 3456 + sh, s(S_TMP)))
        e("s_cmp_lt_u32 %s, 27\ns_cselect_b32 %s, %s, 0" % (s(S_FS), s(S_TMP + 1), s(S_TMP + 1)))
        srd(e, d, ptr(p), s(S_TMP), s(S_TMP + 1))
        e("s_sub_u32 %s, %s, %d\ns_subb_u32 %s, %s, 0" % (s(d), s(d), sh, s(d + 1), s(d + 1)))

def gen_kernel(e, name):
    T = V_T; L = V_LANE
    e(".text\n.globl %s\n.p2align 8\n.type %s,@function\n%s:" % (name, name, name))
    if STAMPS: e("s_memrealtime s[96:97]")
    e("s_cmp_ge_u32 s2, 256\ns_cbranch_scc1 K_END")
    e("s_load_dwordx8 %s, s[0:1], 0\ns_load_dwordx8 %s, s[0:1], 32\ns_load_dwordx8 %s, s[0:1], 64" % (s(S_PTR, 8), s(S_PTR + 8, 8), s(S_PTR + 16, 8)))
    TLB = opt("tlb", 0)
    if TLB:
        e("s_bfe_u32 s4, s2, 0x30003\ns_lshl_b32 s5, s4, 2\ns_lshr_b32 s6, 0x021bb763, s5\ns_and_b32 s6, s6, 15\ns_lshl_b32 s6, s6, 3\ns_load_dwordx2 s[8:9], s[0:1], s6")
        e("s_lshr_b32 s6, 0x10000112, s5\ns_and_b32 s6, s6, 15\ns_lshr_b32 s7, s2, 6\ns_min_u32 s6, s6, s7\ns_lshl_b32 s6, s6, 21")
        e("s_cmp_eq_u32 s4, 3\ns_cselect_b32 s6, 0x2000000, s6\ns_cmp_eq_u32 s4, 4\ns_cselect_b32 s6, 0x23f0000, s6")
        e("s_and_b32 s7, s2, 7\ns_lshl_b32 s7, s7, 21\ns_sub_u32 s5, s4, 5\ns_cmp_lt_u32 s5, 2\ns_cselect_b32 s6, s7, s6\nv_mov_b32 v9, s6")
    e("v_and_b32 %s, 63, v0\nv_lshrrev_b32 %s, 6, v0\nv_lshlrev_b32 %s, 4, %s\nv_readfirstlane_b32 %s, %s" % (v(L), v(T), v(V_L16), v(L), s(S_WAVE), v(T)))
    e("s_and_b32 %s, s2, 7\ns_lshr_b32 %s, s2, 3\ns_and_b32 %s, %s, 3\ns_lshr_b32 %s, %s, 2" % (s(S_TMP), s(S_TMP + 1), s(S_HL), s(S_TMP + 1), s(S_QT), s(S_TMP + 1)))
    e("s_lshl_b32 %s, %s, 2\ns_add_u32 %s, %s, %s" % (s(S_HEAD), s(S_TMP), s(S_HEAD), s(S_HEAD), s(S_HL)))
    e("s_lshl_b32 %s, %s, 3\ns_add_u32 %s, %s, %s" % (s(S_FS), s(S_HL), s(S_FS), s(S_FS), s(S_TMP)))
    e("s_mov_b32 %s, 0" % s(S_RETRY))
    e("s_lshl_b32 %s, %s, 12\ns_lshl_b32 %s, %s, 11" % (s(S_M0W), s(S_WAVE), s(S_M0K), s(S_WAVE)))
    if STAMPS: e("v_mov_b32 v0, -1\nv_mov_b32 v19, -1")
    stamp(e, 0)
    if STAMPS: e("v_writelane_b32 v19, s96, 40\nv_writelane_b32 v0, s96, 40")
    def codetouch(e):
        e("s_getpc_b64 %s\nCODE0:" % s(S_TMP + 4, 2))
        e("s_lshr_b32 %s, s2, 3\ns_lshl2_add_u32 %s, %s, %s\ns_mul_i32 %s, %s, 640" % (s(S_EVT + 6), s(S_EVT + 6), s(S_EVT + 6), s(S_WAVE), s(S_EVT + 6), s(S_EVT + 6)))
        if opt("cpm", "v") == "s":
            e("s_min_u32 %s, %s, CODE1-CODE0-644\ns_add_u32 %s, %s, %s\ns_addc_u32 %s, %s, 0" % (s(S_EVT + 6), s(S_EVT + 6), s(S_TMP + 4), s(S_TMP + 4), s(S_EVT + 6), s(S_TMP + 5), s(S_TMP + 5)))
            for i in range(10): e("s_load_dword %s, %s, %d" % (s(4 + i), s(S_TMP + 4, 2), 64 * i))
            return
        if opt("cpm", "v") == "h":
            e("v_min_u32 %s, 9, %s\nv_lshlrev_b32 %s, 6, %s\nv_add_u32 %s, %s, %s\nv_min_u32 %s, CODE1-CODE0-4, %s" % (v(8), v(L), v(8), v(8), v(8), s(S_EVT + 6), v(8), v(8), v(8)))
        else:
            e("v_min_u32 %s, 4, %s\nv_lshlrev_b32 %s, 7, %s\nv_add_u32 %s, %s, %s\nv_min_u32 %s, CODE1-CODE0-4, %s" % (v(8), v(L), v(8), v(8), v(8), s(S_EVT + 6), v(8), v(8), v(8)))
        e("global_load_dword %s, %s, %s" % (v(V_PL), v(8), s(S_TMP + 4, 2)))
    CPOS = opt("cpos", 0); WPOS = opt("wpos", 0)
    if CPOS == 0: codetouch(e)
    if CPOS == 9: e("CODE0:")
    gen_ln_loads(e)
    e("s_add_u32 %s, %s, %d\ns_addc_u32 %s, %s, 0\ns_load_dword %s, %s, 0" % (s(S_TMP + 2), s(ptr(11)), FL_OFF + EP_OFF, s(S_TMP + 3), s(ptr(11) + 1), s(S_EPOCH), s(S_TMP + 2, 2)))
    ny = 0
    if opt("tlb", 0) == 2: e("global_load_dword %s, v9, s[8:9]" % v(V_TRA)); ny += 1
    if CPOS == 1: codetouch(e); ny += 1
    gen_w_setup(e)
    e("s_lshl_b32 %s, %s, 16\ns_mul_i32 %s, %s, %d" % (s(S_WQOFF), s(S_WAVE), s(S_WGOFF), s(S_WAVE), 8 * 3456))
    WT = max(opt("wt", 4), 1)
    X = V_TC
    e("s_lshl2_add_u32 %s, %s, %s\ns_add_u32 %s, %s, %d" % (s(S_TMP), s(S_QT), s(S_WAVE), s(S_TMP), s(S_TMP), 32 * NI))
    e("v_lshrrev_b32 %s, 1, %s\nv_min_u32 %s, %d, %s\nv_lshlrev_b32 %s, 5, %s\nv_add_u32 %s, %s, %s" % (v(X), v(L), v(X), WT - 1, v(X), v(X), v(X), v(X), s(S_TMP), v(X)))
    e("v_and_b32 %s, 1, %s\nv_lshlrev_b32 %s, 7, %s\nv_lshl_add_u32 %s, %s, 13, %s\nv_mul_u32_u24 %s, 3456, %s" % (v(X + 1), v(L), v(X + 1), v(X + 1), v(X + 1), v(X), v(X + 1), v(X), v(X)))
    w0 = E(); wt = E()
    for sl in range(NI): w_slab(w0, sl, True)
    wt("buffer_load_dword %s, %s, %s, 0 offen" % (v(V_PL + 1), v(X + 1), s(S_WQ, 4)))
    wt("buffer_load_dword %s, %s, %s, 0 offen offset:2048" % (v(V_PL + 2), v(X), s(S_WG, 4)))
    wt("buffer_load_dword %s, %s, %s, 0 offen offset:3072" % (v(V_DUMP), v(X), s(S_WU, 4)))
    if opt("wt", 4) == 0: wt.L = []
    early = {0: w0.L + wt.L, 1: [], 2: w0.L, 3: w0.L}[WPOS]
    mid = {0: [], 1: w0.L + wt.L, 2: wt.L, 3: []}[WPOS]
    after = wt.L if WPOS == 3 else []
    e.ext(early); ny += sum(x.startswith("buffer") for x in early)
    LATE = opt("late", 2)
    srd(e, S_FL, ptr(11), FL_OFF, EP_OFF + 4096)
    e("s_lshl_b32 %s, %s, 5\ns_add_u32 %s, %s, %s\ns_lshl_b32 %s, %s, %d" % (s(S_MYFL), s(S_QT), s(S_MYFL), s(S_MYFL), s(S_HEAD), s(S_MYFL), s(S_MYFL), FSH))
    e("v_min_u32 %s, 31, %s\nv_lshlrev_b32 %s, %d, %s\ns_lshl_b32 %s, %s, %d" % (v(V_PL + 3), v(L), v(V_PL + 3), FSH, v(V_PL + 3), s(S_XOFF), s(S_QT), FSH + 5))
    def rest():
        gen_common_setup(e)
        for i in range(8): e("v_add_u32 %s, 65536, %s" % (v(V_AHI + i), v(V_AQ + i)))
        if opt("tw2", -1) >= 0:
            t = S_TMP
            e("s_lshr_b32 %s, s2, 3\ns_mul_i32 %s, %s, %d\ns_add_u32 %s, %s, %d\nv_mov_b32 %s, %s" % (s(t), s(t + 1), s(t), AFS, s(t + 1), s(t + 1), NSLAB * 4096, v(V_T2), s(t + 1)))
            e("s_mul_i32 %s, %s, %d\ns_add_u32 %s, %s, %d" % (s(t + 1), s(t), 4 * XGS, s(t + 1), s(t + 1), XP_OFF + 12 * 12288))
            e("s_and_b32 %s, %s, 3\ns_mul_i32 %s, %s, %d\ns_add_u32 %s, %s, %d" % (s(t + 2), s(t), s(t + 2), s(t + 2), WFS, s(t + 2), s(t + 2), WF_OFF + NSLAB * 10240))
            e("s_cmp_lt_u32 %s, 16\ns_cselect_b32 %s, %s, %s\nv_mov_b32 %s, %s" % (s(t), s(t + 1), s(t + 1), s(t + 2), v(V_T2 + 1), s(t + 1)))
            e("s_and_b32 %s, %s, 1\ns_lshl_b32 %s, %s, 21\nv_mov_b32 %s, %s" % (s(t), s(t), s(t), s(t), v(V_T2 + 2), s(t)))
        e("v_mov_b32 %s, %d" % (v(V_ZA), L_MISC + 512))
        for i in range(4): e("v_mov_b32 %s, 0" % v(52 + i))
        e("ds_write_b128 %s, %s" % (v(V_ZA), v(52, 4)))
    stamp(e, 1)
    gen_ln_compute(e, ny, mid)
    e.ext(after)
    stamp(e, 29)
    if LATE == 1: rest()
    e("s_mul_i32 %s, %s, 0x9e3779b1\ns_add_u32 %s, %s, 0x7f4a7c15" % (s(S_TAG), s(S_EPOCH), s(S_TAG), s(S_TAG)))
    e("s_waitcnt vmcnt(%d)\ns_barrier" % len(after))
    stamp(e, 18)
    e("s_cmp_lg_u32 %s, 0\ns_cbranch_scc1 NOFL1" % s(S_WAVE))
    set_flag(e, 1)
    e("NOFL1:")
    for sl in range(NI, NI2): w_slab(e, sl, True)
    if LATE == 2: rest()
    e("s_cmp_lg_u32 %s, 0\ns_cbranch_scc1 SPUN_XN" % s(S_WAVE))
    e(poll_load(False, s(S_XOFF)))
    e("s_waitcnt vmcnt(0)")
    poll_spin(e, False, s(S_XOFF), 1, "XN")
    e("s_barrier")
    stamp(e, 2)
    e("s_cmp_ge_u32 %s, %d\ns_cbranch_scc1 LIGHT" % (s(S_FS), 0 if opt("alll", 0) else 27))
    gen_proj(e, True, "H")
    e("PROJ_DONE:")
    head = gen_attention(e)
    gen_tail(e, head)
    e("K_END:\ns_endpgm")
    gen_events(e)
    gen_retry(e)
    e("LIGHT:")
    gen_proj(e, False, "L")
    e("s_branch PROJ_DONE")
    e("CODE1:")
    e(kd(name))

DOC = """
"""

def main():
    e = E()
    hdr = open("cdna_kernels/%s.s.ref" % NAME).read().split("; Override launch")[0]
    e.L += hdr.strip().split("\n")
    e("; @launch grid=(256,1,1) block=(256,1,1) lds=%d" % LDS_BYTES)
    e.L += DOC.strip().split("\n")
    e('.amdgcn_target "amdgcn-amd-amdhsa--gfx950"')
    gen_kernel(e, NAME + "_kernel")
    t = re.sub(r" ;#\w*", "", e.text()).replace("NVWAIT", str(min(NV01)))
    if VERBOSE: print("NV01", NV01)
    errs = [x for x in asmcheck.check(t, [NAME + "_kernel"]) if x.count("_load_dword v%d," % V_DUMP) != 2 and poll_load(True).split("\n")[-1] not in x]
    if errs:
        print("\n".join(errs[:40])); print(len(errs), "problems")
    out = [x for x in sys.argv[1:] if x.endswith(".s")]
    open(out[0] if out else "cdna_kernels/%s.s" % NAME, "w").write(t)

if __name__ == "__main__":
    main()
```

```python
import sys, math, os, struct, re
from sched import Gaps, auto_lgkm
import asmcheck

NAME = "recurrent_scan__mha_block_cached__glu_gated_reglu__prompt"
MF = "v_mfma_f32_16x16x32_bf16"
OPT = dict(x.split("=") for x in sys.argv[1:] if "=" in x)
def opt(k, d): return type(d)(OPT.get(k, d))
VERBOSE = "-v" in sys.argv
STAMPS = "--stamps" in sys.argv
STFL = opt("stfl", " sc1").replace("_", " ")
LDFL = opt("ldfl", " sc1").replace("_", " ")

NSLAB = 182
QSC = math.log2(math.e) / math.sqrt(128.0)
DSC = 1.0 / (QSC * QSC)
WF_OFF = 0x1800000
AFS = (NSLAB + 1) * 4096
WFS = NSLAB * 10240 + 4096
XGS = 13 * 12288
XF_OFF = 0x2001000
XP_OFF = 0x2400000
MAXST = 4
FL_OFF = 0x2300000

class E:
    def __init__(self): self.L = []
    def __call__(self, s):
        for x in s.split("\n"):
            x = x.strip()
            if x: self.L.append(x)
    def ext(self, l): self.L += l
    def text(self): return "\n".join(self.L) + "\n"

def v(a, n=1): return "v%d" % a if n == 1 else "v[%d:%d]" % (a, a + n - 1)
def a(a_, n=1): return "a%d" % a_ if n == 1 else "a[%d:%d]" % (a_, a_ + n - 1)
def s(a_, n=1): return "s%d" % a_ if n == 1 else "s[%d:%d]" % (a_, a_ + n - 1)
def f2u(x): return "0x%08x" % struct.unpack("<I", struct.pack("<f", x))[0]

def kd(name, vgpr=512, acc=256):
    return """.section .rodata,"a"
.p2align 6
.amdhsa_kernel %s
  .amdhsa_next_free_vgpr %d
  .amdhsa_next_free_sgpr 102
  .amdhsa_accum_offset %d
  .amdhsa_group_segment_fixed_size 0
  .amdhsa_kernarg_size 96
  .amdhsa_user_sgpr_count 2
  .amdhsa_user_sgpr_kernarg_segment_ptr 1
  .amdhsa_system_sgpr_workgroup_id_x 1
.end_amdhsa_kernel
""" % (name, vgpr, acc)

def stamp(e, i):
    if not STAMPS: return
    e("s_waitcnt lgkmcnt(0)\ns_memtime s[98:99]\ns_memrealtime s[100:101]\ns_waitcnt lgkmcnt(0)")
    e("v_writelane_b32 v0, s98, %d\nv_writelane_b32 v19, s100, %d" % (i, i))
def stamp_fin(e):
    if not STAMPS: return
    if opt("echo", ""):
        i, j = [int(x) for x in opt("echo", "").split(".")]
        e("s_nop 1\nv_readlane_b32 s96, v19, %d\nv_readlane_b32 s97, v19, %d\nv_readlane_b32 s98, v19, 16\ns_nop 3\ns_sub_u32 s96, s97, s96\ns_min_u32 s96, s96, 20000\ns_cmp_%s_u32 %s, 27\ns_cselect_b32 s96, s96, 0" % (i, j, "ge" if opt("el", 0) else "lt", s(S_FS)))
        if opt("ecyc", 0):
            e("v_readlane_b32 s96, v0, %d\nv_readlane_b32 s97, v0, %d\ns_nop 3\ns_sub_u32 s96, s97, s96\ns_lshr_b32 s96, s96, 3\ns_min_u32 s96, s96, 20000\ns_cmp_lt_u32 %s, 27\ns_cselect_b32 s96, s96, 0" % (i, j, s(S_FS)))
            i = 40
        if opt("eneg", 0):
            e("s_cmp_eq_u32 s96, 0\ns_cselect_b32 s96, 3000, s96\ns_min_u32 s96, s96, 3000\ns_sub_u32 s96, 3000, s96")
            i = 40
        if opt("emul", 0): e("s_mul_i32 s96, s96, %d" % opt("emul", 0))
        if opt("eabs", 0): e("v_readlane_b32 s98, v19, %d\ns_add_u32 s96, s96, 10000\ns_nop 3" % i)
        e("ECHO:\ns_sleep 1\ns_memrealtime s[100:101]\ns_waitcnt lgkmcnt(0)\ns_sub_u32 s97, s100, s98\ns_cmp_lt_u32 s97, s96\ns_cbranch_scc1 ECHO")
        return
    if opt("dbgout", -1) >= 0:
        e("s_cmp_lg_u32 s2, %d\ns_cbranch_scc1 NODBG\ns_cmp_lg_u32 %s, 0\ns_cbranch_scc1 NODBG" % (opt("dbgout", -1), s(S_WAVE)))
        e("v_readlane_b32 s98, v19, 0\ns_nop 3\nv_subrev_u32 v18, s98, v19\nv_lshlrev_b32 v20, 2, v1\nv_subrev_u32 v20, 4, v20")
        e("s_mov_b32 s96, %s\ns_mov_b32 s97, %s\ns_mov_b32 s98, 64\ns_mov_b32 s99, 0x20000" % (s(ptr(10)), s(ptr(10) + 1)))
        e("buffer_store_dword v18, v20, s[96:99], 0 offen\ns_waitcnt vmcnt(0)\nNODBG:")
        return
    if opt("wsb", 0): e("s_sub_u32 %s, %s, %d\ns_subb_u32 %s, %s, 0" % (s(ptr(11)), s(ptr(11)), opt("wsb", 0) << 20, s(ptr(11) + 1), s(ptr(11) + 1)))
    e("s_lshl_b32 s98, s2, 2\ns_add_u32 s98, s98, %s\ns_lshl_b32 s98, s98, 9\ns_add_u32 s98, s98, %d" % (s(S_WAVE), 0x4000000))
    e("s_add_u32 s96, %s, s98\ns_addc_u32 s97, %s, 0\ns_mov_b32 s98, 512\ns_mov_b32 s99, 0x20000" % (s(ptr(11)), s(ptr(11) + 1)))
    e("v_mov_b32 v18, v0\nv_lshlrev_b32 v20, 3, v1\nbuffer_store_dwordx2 v[18:19], v20, s[96:99], 0 offen\ns_waitcnt vmcnt(0)")

def srd(e, d, base, off_lo, nbytes):
    e("s_add_u32 %s, %s, %s" % (s(d), s(base), off_lo))
    e("s_addc_u32 %s, %s, 0" % (s(d + 1), s(base + 1)))
    e("s_mov_b32 %s, %s" % (s(d + 2), nbytes))
    e("s_mov_b32 %s, 0x20000" % s(d + 3))

def uncond(x): return False
def resolve_vm(lines):
    out = []; ops = []; waited = set(); lastm0 = None; done = 0; marks = {}
    for x in lines:
        mm = re.search(r"vmcnt\((\d+)\)", x)
        if mm and not x.startswith("@") and uncond(x): done = max(done, len(ops) - int(mm.group(1)))
        if x.startswith(("buffer_", "global_")) and len(ops) - done >= 58:
            out.append("s_waitcnt vmcnt(52)"); done = len(ops) - 52
        if x.startswith("s_add_u32 m0,"): lastm0 = x.split(",")[1].strip()
        if " lds" in x and ";#" in x:
            tg = x.split(";#")[1].strip()
            exp = s(S_M0W) if tg.startswith("w") else (s(S_TRM) if tg == "trs" else s(S_M0K))
            if tg.startswith("D"): exp = s(T_M0W)
            assert lastm0 == exp, "M0 collision at %s" % x
        if x.startswith("MARK"):
            marks[x.split()[1]] = len(ops); continue
        m = re.search(r"SINCE\{(\w+)\}", x)
        if m: x = x.replace(m.group(0), "vmcnt(%d)" % min(63, len(ops) - marks[m.group(1)]))
        m = re.search(r"WAITVM\{([^}]*)\}", x)
        if m:
            need = set(m.group(1).split(","))
            waited |= need
            idx = [i for i, t in enumerate(ops) if t in need]
            n = len(ops) - 1 - max(idx) if idx else 63
            done = max(done, len(ops) - min(n, 63))
            x = x.replace(m.group(0), "vmcnt(%d)" % min(n, 63))
        elif x.startswith(("buffer_", "global_")):
            t = x.split(";#")[1].strip() if ";#" in x else ""
            assert t not in waited, "op %s issued after its wait" % t
            ops.append(t)
        out.append(x)
    return out

S_FL = 4
S_X, S_WQ, S_WG, S_WU, S_K, S_V, S_AF, S_T, S_WF = 8, 12, 16, 20, 24, 28, 32, 36, 40
S_PTR = 44
S_WAVE, S_HEAD, S_QT, S_FS = 68, 69, 70, 71
S_XOFF, S_WQOFF, S_WGOFF, S_M0W = 72, 73, 74, 75
S_KVOFF, S_M0K, S_TOG, S_RETRY = 76, 77, 78, 79
S_TMP = 80
S_TRS, S_TRM, S_TRD, S_TRU = 88, 89, 90, 91
S_EPOCH, S_TAG, S_MYFL = 92, 93, 94
S_HL = 3
S_EVT = 85
def EV(n): return (10 + 2 * n) * 8192
EVT0 = EV(3)
EVTE = (62 + 10) * 8192
NWH = opt("nwh", 0)
S_LN = 84
def ptr(i): return S_PTR + 2 * i

L_K = 0
L_V = 65536
RW = 8
L_TR = 114688
L_MISC = 155648
LDS_BYTES = 163840

V_LANE = 1
V_L16 = 2
V_WD = 3
V_TRA = 6
V_AQ = 10
V_AG = 14
V_KA = 20
V_VA = 24
V_KD = 32
V_VD = 34
V_DUMP = 18
V_SIDX = 7
V_ZA = 6
V_T2 = 40
NL = 2
VSH = 4
NOE = 4
V_PW = 5
PWARM = opt("pw", 0)
V_TC = 62
V_PL = 36
V_T = 40
V_ACCQ = 64
V_ACCG = 192
V_Q = 64
V_S = 128
V_P = 192
V_NEGM = 224
V_L = 240
A_ACCU = 0
XD = 8
A_X = 64
A_W = 192
A_TR = 208
V_ONE = 56
A_O = 64
A_KF = 224
A_KF1 = 192
A_VF = 0
V_AHI = 44

def qacc(blk, qb): return (V_S if blk & 1 else V_Q) + ((blk >> 1) * 4 + qb) * 4
def wslot(sl): return (sl + 4) % RW
def accreg(blk, qb):
    if blk < 8: return v(qacc(blk, qb), 4)
    if blk < 12: return v(V_ACCG + ((blk - 8) * 4 + qb) * 4, 4)
    return a(A_ACCU + ((blk - 12) * 4 + qb) * 4, 4)

def w_read(dst, blk, j, rel):
    if blk < 8:
        ar = V_AQ + (blk >> 1); off = rel + j * 1024 + (blk & 1) * 8
    else:
        ar = V_AG + ((blk - 8) & 3); off = rel + 2048 + (1024 if blk >= 12 else 0) + j * 512
    if rel >= 65536: ar += V_AHI - V_AQ; off -= 65536
    assert 0 <= off < 65536
    return "ds_read_b64_tr_b16 %s, %s offset:%d" % (a(dst + 2 * j, 2), v(ar), off)

def w_dma(heavy, tag):
    l = ["buffer_load_dwordx4 %s, %s, %s offen lds ;#%s" % (v(V_WD), s(S_WQ, 4), s(S_WQOFF), tag),
         "buffer_load_dwordx4 %s, %s, %s offen offset:1024 lds ;#%s" % (v(V_WD + 1), s(S_WQ, 4), s(S_WQOFF), tag)]
    if heavy:
        l += ["buffer_load_dwordx4 %s, %s, %s offen offset:2048 lds ;#%s" % (v(V_WD + 2), s(S_WG, 4), s(S_WGOFF), tag),
              "buffer_load_dwordx4 %s, %s, %s offen offset:3072 lds ;#%s" % (v(V_WD + 2), s(S_WU, 4), s(S_WGOFF), tag)]
    return l

def x_load(sl, qb):
    return "buffer_load_dwordx4 %s, %s, %s, %s offen offset:%d%s ;#x%d" % (a(A_X + ((sl % XD) * 4 + qb) * 4, 4), v(V_L16), s(S_X, 4), s(S_XOFF), qb * 1024, LDFL, sl)

def kv_dma(which, i, tag=""):
    vo = (V_KD if which == "K" else V_VD) + i
    return "buffer_load_dwordx4 %s, %s, %s offen offset:%d%s lds ;#%s" % (v(vo), s(S_K if which == "K" else S_V, 4), s(S_KVOFF), 1024 * i, opt("kvfl", "_sc1").replace("_", " "), tag)

FSH = opt("fsh", 7)
EP_OFF = 65536
CF_OFF = EP_OFF + 1024
def set_flag(e, stage):
    if stage in (2, 3) and FSH > 2:
        e("s_add_u32 %s, %s, %d\ns_mov_b64 exec, 1\nv_mov_b32 %s, %s\ns_lshr_b32 %s, %s, %d\ns_add_u32 %s, %s, %d" % (s(S_TMP + 7), s(S_TAG), stage, v(V_PL), s(S_TMP + 7), s(S_TMP + 7), s(S_MYFL), FSH - 2, s(S_TMP + 7), s(S_TMP + 7), CF_OFF))
        e("buffer_store_dword %s, off, %s, %s sc1" % (v(V_PL), s(S_FL, 4), s(S_TMP + 7)))
    elif opt("fwide", 0):
        n = (1 << FSH) // 8
        e("s_add_u32 %s, %s, %d\ns_mov_b64 exec, 0x%x\nv_mov_b32 %s, %s\nv_mov_b32 %s, %s\nv_lshlrev_b32 %s, 3, %s" % (s(S_TMP + 7), s(S_TAG), stage, (1 << n) - 1, v(V_PL), s(S_TMP + 7), v(V_PL + 1), s(S_TMP + 7), v(V_PL + 2), v(V_LANE)))
        e("buffer_store_dwordx2 %s, %s, %s, %s offen sc1" % (v(V_PL, 2), v(V_PL + 2), s(S_FL, 4), s(S_MYFL)))
    else:
        e("s_add_u32 %s, %s, %d\ns_mov_b64 exec, 1\nv_mov_b32 %s, %s" % (s(S_TMP + 7), s(S_TAG), stage, v(V_PL), s(S_TMP + 7)))
        e("buffer_store_dword %s, off, %s, %s sc1" % (v(V_PL), s(S_FL, 4), s(S_MYFL)))
    e("s_mov_b64 exec, -1")

def poll_load(allq, qoff=None):
    if allq and FSH > 2: return "s_mov_b32 %s, %d\nbuffer_load_dwordx4 %s, %s, %s, %s offen sc1" % (s(S_TMP + 1), CF_OFF, v(V_PL, 4), v(V_L16), s(S_FL, 4), s(S_TMP + 1))
    if allq: return "buffer_load_dwordx4 %s, %s, %s, 0 offen sc1" % (v(V_PL, 4), v(V_L16), s(S_FL, 4))
    return "buffer_load_dword %s, %s, %s, %s offen sc1" % (v(V_PL), v(V_PL + 3), s(S_FL, 4), qoff)

def poll_spin(e, allq, qoff, stage, tag):
    e("s_mov_b32 %s, 0\ns_add_u32 %s, %s, %d" % (s(S_TMP + 7), s(S_TMP + 6), s(S_TAG), stage))
    e("SPIN_%s:" % tag)
    n = 4 if allq else 1
    for i in range(n): e("v_subrev_u32 %s, %s, %s" % (v(V_PL + i), s(S_TMP + 6), v(V_PL + i)))
    if allq: e("v_max3_u32 %s, %s, %s, %s\nv_max_u32 %s, %s, %s" % (v(V_PL), v(V_PL), v(V_PL + 1), v(V_PL + 2), v(V_PL), v(V_PL), v(V_PL + 3)))
    e("v_cmp_lt_u32 vcc, %d, %s" % (MAXST - stage, v(V_PL)))
    e("s_add_u32 %s, %s, 1" % (s(S_TMP + 7), s(S_TMP + 7)))
    e("s_cmp_eq_u64 vcc, 0\ns_cbranch_scc1 SPUN_%s" % tag)
    e("s_cmp_ge_u32 %s, 0x40000\ns_cbranch_scc1 SPUN_%s" % (s(S_TMP + 7), tag))
    e("s_sleep %d" % opt("slp", 2))
    e(poll_load(allq, qoff))
    e("s_waitcnt vmcnt(0)\ns_branch SPIN_%s" % tag)
    e("SPUN_%s:" % tag)

def zero_acc(e, heavy=True):
    for r in range(V_ACCQ, 256): e("v_mov_b32 %s, 0" % v(r))
    for r in range(A_ACCU, A_ACCU + 64): e("v_accvgpr_write_b32 %s, 0" % a(r))

NI = opt("ni", 1)
NI2 = max(NI, opt("ni2", 5))

def gen_ln_loads(e):
    T = V_T; L = V_LANE
    R = V_ACCQ
    e("v_bfe_u32 %s, %s, 1, 3\nv_lshrrev_b32 %s, 4, %s\nv_and_b32 %s, 1, %s" % (v(T), v(L), v(T + 1), v(L), v(T + 2), v(L)))
    e("v_mul_u32_u24 %s, 1280, %s\nv_lshl_add_u32 %s, %s, 4, %s\nv_lshl_add_u32 %s, %s, 3, %s" % (v(T + 3), v(T), v(T + 3), v(T + 1), v(T + 3), v(T + 3), v(T + 2), v(T + 3)))
    e("s_lshl_b32 %s, %s, 5\ns_add_u32 %s, %s, %s\ns_mul_i32 %s, %s, %d\ns_mul_i32 %s, %s, 320" % (s(S_TMP), s(S_QT), s(S_TMP), s(S_TMP), s(S_HEAD), s(S_TMP), s(S_TMP), 8 * 1280, s(S_TMP + 1), s(S_WAVE)))
    e("s_waitcnt lgkmcnt(0)")
    if opt("wsb", 0): e("s_add_u32 %s, %s, %d\ns_addc_u32 %s, %s, 0" % (s(ptr(11)), s(ptr(11)), opt("wsb", 0) << 20, s(ptr(11) + 1), s(ptr(11) + 1)))
    if opt("tlb", 0) == 1: e("global_load_dword %s, v9, s[8:9]" % v(V_TRA))
    srd(e, S_T, ptr(0), s(S_TMP), 8 * 1280)
    for i in range(5): e("buffer_load_dwordx2 %s, %s, %s, %s offen offset:%d" % (v(R + 2 * i, 2), v(T + 3), s(S_T, 4), s(S_TMP + 1), 64 * i))

def gen_ln_compute(e, nyounger, mid=()):
    T = V_T; L = V_LANE
    R = V_ACCQ; U = R + 10
    e("v_and_b32 %s, 15, %s\nv_lshlrev_b32 %s, 3, %s\nv_lshl_add_u32 %s, %s, 8, %s" % (v(T + 3), v(L), v(T + 3), v(T + 3), v(T + 3), v(T + 1), v(T + 3)))
    e("s_lshr_b32 %s, %s, 3\ns_lshl2_add_u32 %s, %s, %s\ns_mul_i32 %s, %s, %d" % (s(S_TMP), s(S_HEAD), s(S_TMP), s(S_QT), s(S_TMP), s(S_TMP), s(S_TMP), 20 * 4096))
    e("s_bfe_u32 %s, %s, 0x20001\ns_lshl_b32 %s, %s, 10\ns_add_u32 %s, %s, %s" % (s(S_TMP + 1), s(S_HEAD), s(S_TMP + 1), s(S_TMP + 1), s(S_TMP), s(S_TMP), s(S_TMP + 1)))
    e("s_and_b32 %s, %s, 1\ns_lshl_b32 %s, %s, 7\ns_add_u32 %s, %s, %s\ns_add_u32 %s, %s, %d" % (s(S_TMP + 1), s(S_HEAD), s(S_TMP + 1), s(S_TMP + 1), s(S_TMP), s(S_TMP), s(S_TMP + 1), s(S_TMP), s(S_TMP), XF_OFF))
    srd(e, S_LN, ptr(11), s(S_TMP), 20 * 4096)
    e("s_mul_i32 %s, %s, %d" % (s(S_TMP), s(S_WAVE), 5 * 4096))
    e("v_lshlrev_b32 %s, 5, %s\nv_add_u32 %s, %d, %s\ns_lshl_b32 %s, %s, 3\nv_add_u32 %s, %s, %s" % (v(T + 4), v(T), v(T + 4), L_MISC, v(T + 4), s(S_TMP + 1), s(S_WAVE), v(T + 5), s(S_TMP + 1), v(T + 4)))
    A0 = T + 6; M = T + 8
    e("s_waitcnt vmcnt(%d)" % nyounger)
    stamp(e, 17)
    e.ext(list(mid))
    for d in range(10): e("v_lshlrev_b32 %s, 16, %s\nv_and_b32 %s, 0xffff0000, %s" % (v(U + 2 * d), v(R + d), v(U + 2 * d + 1), v(R + d)))
    e("v_pk_add_f32 %s, %s, %s\nv_pk_add_f32 %s, %s, %s" % (v(A0, 2), v(U, 2), v(U + 2, 2), v(M, 2), v(U + 4, 2), v(U + 6, 2)))
    for d in range(4, 10): e("v_pk_add_f32 %s, %s, %s" % (v((A0, M)[d & 1], 2), v((A0, M)[d & 1], 2), v(U + 2 * d, 2)))
    def reduce(dst):
        e("v_pk_add_f32 %s, %s, %s" % (v(A0, 2), v(A0, 2), v(M, 2) if dst == M else v(T + 10, 2)))
        e("v_add_f32 %s, %s, %s\ns_nop 1" % (v(A0), v(A0), v(A0 + 1)))
        e("v_add_f32_dpp %s, %s, %s quad_perm:[1,0,3,2] row_mask:0xf bank_mask:0xf" % (v(A0), v(A0), v(A0)))
        for sw in ("v_permlane32_swap_b32", "v_permlane16_swap_b32"):
            e("v_mov_b32 %s, %s\ns_nop 1\n%s %s, %s\nv_add_f32 %s, %s, %s" % (v(A0 + 1), v(A0), sw, v(A0), v(A0 + 1), v(A0), v(A0), v(A0 + 1)))
    reduce(M)
    e("v_mul_f32 %s, %s, %s\nv_mul_f32 %s, %s, %s" % (v(M), f2u(-1.0 / 160), v(A0), v(M + 1), f2u(-1.0 / 160), v(A0)))
    for d in range(10): e("v_pk_add_f32 %s, %s, %s" % (v(U + 2 * d, 2), v(U + 2 * d, 2), v(M, 2)))
    e("v_pk_mul_f32 %s, %s, %s\nv_pk_mul_f32 %s, %s, %s" % (v(A0, 2), v(U, 2), v(U, 2), v(T + 10, 2), v(U + 2, 2), v(U + 2, 2)))
    for d in range(2, 10): e("v_pk_fma_f32 %s, %s, %s, %s" % (v((A0, T + 10)[d & 1], 2), v(U + 2 * d, 2), v(U + 2 * d, 2), v((A0, T + 10)[d & 1], 2)))
    reduce(None)
    e("v_mov_b32 %s, %s" % (v(M + 1), v(A0)))
    e("ds_write_b64 %s, %s\ns_waitcnt lgkmcnt(0)\ns_barrier" % (v(T + 5), v(M, 2)))
    X = T + 12
    e("ds_read_b128 %s, %s\nds_read_b128 %s, %s offset:16\ns_waitcnt lgkmcnt(0)" % (v(X, 4), v(T + 4), v(X + 4, 4), v(T + 4)))
    e("v_pk_add_f32 %s, %s, %s\nv_pk_add_f32 %s, %s, %s\nv_pk_add_f32 %s, %s, %s" % (v(A0, 2), v(X, 2), v(X + 2, 2), v(T + 10, 2), v(X + 4, 2), v(X + 6, 2), v(A0, 2), v(A0, 2), v(T + 10, 2)))
    e("v_mul_f32 %s, 0.25, %s" % (v(A0), v(A0)) if False else "v_mul_f32 %s, %s, %s" % (v(A0), f2u(0.25), v(A0)))
    for k in range(4): e("v_sub_f32 %s, %s, %s" % (v(X + 2 * k), v(X + 2 * k), v(A0)))
    e("v_mul_f32 %s, %s, %s" % (v(X + 1), v(X), v(X)))
    for k in range(1, 4): e("v_fmac_f32 %s, %s, %s" % (v(X + 1), v(X + 2 * k), v(X + 2 * k)))
    e("v_fmac_f32 %s, %s, %s" % (v(A0 + 1), f2u(160.0), v(X + 1)))
    e("v_mov_b32 %s, %s\nv_fmac_f32 %s, %s, %s\nv_rsq_f32 %s, %s" % (v(X), f2u(1e-5 * DSC), v(X), f2u(DSC / 640), v(A0 + 1), v(X), v(X)))
    e("v_sub_f32 %s, %s, %s" % (v(M), v(A0), v(M)))
    e("v_mov_b32 %s, %s\nv_mul_f32 %s, %s, %s\nv_mul_f32 %s, %s, %s" % (v(X + 1), v(X), v(M + 1), v(M), v(X), v(M), v(M), v(X)))
    for i in range(5):
        for d in (2 * i, 2 * i + 1): e("v_pk_fma_f32 %s, %s, %s, %s" % (v(U + 2 * d, 2), v(U + 2 * d, 2), v(X, 2), v(M, 2)))
        for d in (2 * i, 2 * i + 1): e("v_cvt_pk_bf16_f32 %s, %s, %s" % (v(R + d), v(U + 2 * d), v(U + 2 * d + 1)))
        e("buffer_store_dwordx2 %s, %s, %s, %s offen%s" % (v(R + 2 * i, 2), v(T + 3), s(S_LN, 4), s(S_TMP), STFL))
        if i < 4: e("s_add_u32 %s, %s, 4096" % (s(S_TMP), s(S_TMP)))

def w_slab(e, sl, heavy):
    e("s_add_u32 m0, %s, %d\ns_nop 0" % (s(S_M0W), wslot(sl) * 16384))
    e.ext(w_dma(heavy, "w%d" % sl))
    e("s_add_u32 %s, %s, %d\ns_add_u32 %s, %s, %d" % (s(S_WQOFF), s(S_WQOFF), 32 * 8192, s(S_WGOFF), s(S_WGOFF), 32 * 3456))

def ones_ops(tmp):
    L = V_LANE
    return ["v_lshrrev_b32 %s, 4, %s" % (v(tmp), v(L)), "v_xor_b32 %s, %s, %s" % (v(tmp), v(tmp), v(L)), "v_bfe_u32 %s, %s, 1, 1" % (v(tmp), v(tmp)),
            "v_subrev_u32 %s, 1, %s" % (v(tmp), v(tmp)), "v_and_b32 %s, 0x3f803f80, %s" % (v(tmp), v(tmp))] + \
           ["v_mov_b32 %s, %s" % (v(V_ONE + r), v(tmp)) for r in range(4)] + \
           ["v_and_b32 %s, 1, %s" % (v(V_SIDX), v(L)), "v_mul_u32_u24 %s, 0xaaaa, %s" % (v(V_SIDX), v(V_SIDX)), "v_or_b32 %s, 0x4444, %s" % (v(V_SIDX), v(V_SIDX))]

NV01 = []
def gen_proj(e0, heavy, tag):
    e = E()
    T = V_T; L = V_LANE
    NS = opt("ns", 4) if heavy else 0
    GU = [b for fb in range(4) for b in (12 + fb, 8 + fb)]
    PC0 = opt("pc0", 2) if heavy else opt("lpc0", 4)
    def grp(lo, hi):
        out = []; sl = lo
        while sl < hi:
            if sl >= PC0 and sl + 1 < hi: out.append((sl, sl + 1)); sl += 2
            else: out.append((sl,)); sl += 1
        return out
    units = []
    for ss in grp(0, 20 - NS): units.append((ss, list(range(8)) + (GU if heavy else [])))
    for part in {0: (GU,), 1: (GU[:4], GU[4:]), 2: (GU[:2], GU[2:4], GU[4:6], GU[6:])}[opt("split", 2)]:
        for ss in grp(20 - NS, 20): units.append((ss, part))
    for ss in grp(20 - NS, 20): units.append((ss, list(range(8))))
    order = []; mf = []; firstuse = []
    for ss, bl in units:
        for b in bl:
            F0 = len(order)
            for sl in ss: order.append((sl, b)); firstuse.append(4 * F0)
            for qb in (range(4) if (not opt("psn", 1) or (F0 // len(ss)) % 2 == 0) else range(3, -1, -1)):
                idx = list(range(len(ss)))
                if qb & 1: idx.reverse()
                for i in idx:
                    sl = ss[i]
                    c = "0" if (0 in ss and i == idx[0]) else accreg(b, qb)
                    mf.append("%s %s, %s, %s, %s" % (MF, accreg(b, qb), a(A_W + 4 * ((F0 + i) % 8), 4), a(A_X + ((sl % XD) * 4 + qb) * 4, 4), c))
    NF = len(order)
    NP = len(mf)
    for sl in range(4):
        for kb in range(2):
            for qb in range(4):
                d = v(Sreg(0, qb, kb), 4)
                mf.append("%s %s, %s, %s, %s" % (MF, d, a(A_KF + (kb * 4 + sl) * 4, 4), v(V_Q + (sl * 4 + qb) * 4, 4), d if sl else "0"))
    G = Gaps(mf)
    ustart = []; n = 0
    for ss, bl in units: ustart.append(n); n += len(bl) * len(ss)
    lastF = {}; lastblk = {}; firstF = {}
    for u, (ss, bl) in enumerate(units):
        for k, sl in enumerate(ss):
            lastF[sl] = ustart[u] + len(bl) * len(ss) - 1
            firstF.setdefault(sl, ustart[u] + k * len(bl))
        for i, b in enumerate(bl): lastblk[b] = ustart[u] + (i + 1) * len(ss) - 1
    G1 = lambda sl: 4 * firstF[sl]
    DA = opt("pda", 6)
    rd = lambda F, j: w_read(A_W + 4 * (F % 8), order[F][1], j, wslot(order[F][0]) * 16384)
    pre_reads = [rd(F, j) for F in range(DA) for j in range(2)]
    TRW = opt("trw", 15) if heavy else 14
    bars = {}; cur = 0; seen = set(units[0][0])
    def barrier(u, lo, need):
        bb = G.place("b", "s_barrier", lo)
        G.put(bb, "s", "s_waitcnt WAITVM{%s}" % ",".join(need))
        bars[u] = bb
        return bb + 1
    for F in range(DA, NF):
        lo = 4 * (F - DA)
        if F in ustart:
            u = ustart.index(F)
            need = [k + str(sl) for sl in units[u][0] if sl not in seen for k in "xw"]
            seen |= set(units[u][0])
            if need or units[u][1][0] == 0: cur = barrier(u, max(cur, lo - 1), need or ["none"])
        if (opt("midb", 0) or F - DA - 1 == ustart[-1]) and (F - DA - 1) in ustart and len(units[ustart.index(F - DA - 1)][0]) == 2 and units[ustart.index(F - DA - 1)][1][0] == 0:
            cur = barrier(1000 + F, max(cur, lo - 1), ["none"])
        for j in range(2): cur = G.place("d", rd(F, j), max(cur, lo + 2 * j), firstuse[F] - 6) + 1
    NU = len(units)
    cur = barrier(NU, cur + 1, ["K0", "K1"])
    kord = [(kb, sl) for sl in range(4) for kb in range(2)]
    for kb, sl in kord: cur = G.place("d", k_read(kb, sl, 0), cur) + 1
    barrier(NU + 1, max(cur + 5, NP), ["none"])
    kpost = []
    for i, (kb, sl) in enumerate(kord):
        lo = NP + 4 * i + 3
        try: cur = G.place("d", k_read(kb, sl, 8192), max(cur, lo)) + 1
        except RuntimeError: kpost.append(k_read(kb, sl, 8192))
    freeg = lambda sl: min(x for x in bars.values() if x >= 4 * lastF[sl])
    def wseq(sl):
        return [("s", "s_add_u32 m0, %s, %d" % (s(S_M0W), wslot(sl) * 16384))] + [("m", x) for x in w_dma(heavy, "w%d" % sl)] + \
               [("s", "s_add_u32 %s, %s, %d\ns_add_u32 %s, %s, %d" % (s(S_WQOFF), s(S_WQOFF), 32 * 8192, s(S_WGOFF), s(S_WGOFF), 32 * 3456))]
    def xseq(sl): return [("m", x_load(sl, qb)) for qb in range(4)] + [("s", "s_add_u32 %s, %s, 4096" % (s(S_XOFF), s(S_XOFF)))]
    def kvseq(which, i):
        return [("s", "s_add_u32 m0, %s, %d\ns_mov_b32 %s, %d" % (s(S_M0K), (L_K if which == "K" else L_V) + i * 8192, s(S_KVOFF), (i + (VSH if which == "V" else 0)) * 8192))] + \
               [("m", kv_dma(which, k, "%s%d" % (which, i))) for k in range(2)]
    NX0 = opt("nx0", 2) if heavy else opt("lnx0", 3)
    e("s_mov_b32 %s, 0" % s(S_XOFF))
    q = []
    for sl in range(20):
        for kind in "wx":
            if kind == "w" and sl < NI2: continue
            seq = wseq(sl) if kind == "w" else xseq(sl)
            if sl < NX0:
                for k, x in seq: e(x + ("\ns_nop 0" if " m0," in x else ""))
            else:
                lo = 0 if sl < RW else (freeg(sl - RW) if kind == "w" else 4 * lastF[sl - XD] + 3)
                q.append((lo, seq))
    late = {12: [("K", 0), ("K", 1)], 13: [("K", 2), ("K", 3)], 14: [("K", 4), ("K", 5)], 15: [("K", 6), ("K", 7)],
            16: [("V", 0), ("V", 1)], 17: [("V", 2), ("V", 3)], 18: [("V", 4)]}
    side = []
    for sl in range(12, 19):
        for which, i in late[sl]: side.append((freeg(sl), kvseq(which, i)))
    WT = opt("wt", 4)
    if WT:
        for k, sl in enumerate([int(x) for x in opt("wts", "0.1.4.7").split(".")], 1):
            seq = [("s", "s_mov_b32 %s, %d" % (s(S_TMP), k * WT * 32 * 8192)), ("m", "buffer_load_dword %s, %s, %s, %s offen" % (v(V_DUMP), v(V_TC + 1), s(S_WQ, 4), s(S_TMP)))]
            if heavy:
                seq += [("s", "s_mov_b32 %s, %d" % (s(S_TMP), k * WT * 32 * 3456)),
                        ("m", "buffer_load_dword %s, %s, %s, %s offen offset:2048" % (v(V_DUMP), v(V_TC), s(S_WG, 4), s(S_TMP))),
                        ("m", "buffer_load_dword %s, %s, %s, %s offen offset:3072" % (v(V_DUMP), v(V_TC), s(S_WU, 4), s(S_TMP)))]
            side.append((G1(sl) + opt("wtg", 30), seq))
    if opt("tw2", -1) >= 0:
        side.append((G1(opt("tw2", -1)), [("m", "global_load_dword %s, %s, %s" % (v(V_DUMP), v(V_T2), s(ptr(11), 2)))]))
        side.append((G1(opt("tw3", 8)), [("m", "global_load_dword %s, %s, %s" % (v(V_DUMP), v(V_T2 + 1), s(ptr(11), 2)))]))
        side.append((G1(opt("tw4", 10)), [("m", "global_load_dword %s, %s, %s" % (v(V_DUMP), v(V_T2 + 2), s(ptr(9), 2)))]))
    if opt("ct2", 9) and heavy:
        t = S_TMP
        side.append((G1(opt("ct2", 9)), [("s", "s_getpc_b64 %s\nCODE3:\ns_add_u32 %s, %s, TAILC0-CODE3-12288\ns_addc_u32 %s, %s, 0" % (s(t + 2, 2), s(t + 2), s(t + 2), s(t + 3), s(t + 3))),
                                         ("s", "s_lshr_b32 %s, s2, 3\ns_lshl2_add_u32 %s, %s, %s" % (s(t), s(t), s(t), s(S_WAVE))), ("s", "s_min_u32 %s, %s, 95\ns_lshl_b32 %s, %s, 7" % (s(t), s(t), s(t), s(t))),
                                         ("v", "v_mov_b32 %s, %s" % (v(V_T2), s(t))),
                                         ("m", "global_load_dword %s, %s, %s" % (v(V_DUMP), v(V_T2), s(t + 2, 2)))]))
    t0 = v(V_TRA + 3)
    if opt("kvt", 12): side.append((G1(opt("kvt", 12)), [("v", "v_min_u32 %s, 15, %s" % (t0, v(L))), ("v", "v_lshlrev_b32 %s, 7, %s" % (t0, t0)),
               ("s", "s_lshl2_add_u32 %s, %s, %s\ns_lshl_b32 %s, %s, 11" % (s(S_TMP), s(S_QT), s(S_WAVE), s(S_TMP), s(S_TMP))),
               ("m", "buffer_load_dword %s, %s, %s, %s offen" % (v(V_DUMP), t0, s(S_K, 4), s(S_TMP))),
               ("s", "s_add_u32 %s, %s, %d" % (s(S_TMP), s(S_TMP), VSH * 8192)),
               ("m", "buffer_load_dword %s, %s, %s, %s offen" % (v(V_DUMP), t0, s(S_V, 4), s(S_TMP)))]))
    side.sort(key=lambda t: t[0])
    MG = opt("pmg", 5) if heavy else opt("lmg", 4)
    g = 0; lastm = -9; vpost = []
    trlast = 0; lastload = 0
    while q or side:
        if side and (not q or side[0][0] <= max(g, q[0][0])): lo, seq = side.pop(0)
        else: lo, seq = q.pop(0)
        g = max(g, lo)
        for k, x in seq:
            if not vpost:
                try:
                    g = G.place(k, x, max(g + 1, lastm + (MG if g > opt("pmg0", 500) or not heavy else opt("pmga", 6)) if k == "m" else 0))
                    if k == "m": lastm = g
                    if re.search(r";#[xw]\d|;#trs", x) or "v%d," % V_DUMP in x: lastload = g
                    continue
                except RuntimeError: pass
            vpost.append(x + ("\ns_nop 0" if " m0," in x else ""))
    zlim = 4 * lastF[19 - max(NS, 1)] + 4 if opt("zds", 1) else 10 ** 9
    g = 0
    for sl in range(20 - XD, 20):
        lo = 4 * lastF[sl] + 4
        if lo <= zlim: continue
        for i in range(4):
            x = "ds_read_b128 %s, %s" % (a(A_X + 16 * (sl % XD) + 4 * i, 4), v(V_ZA))
            try: g = G.place("d", x, max(g, lo)) + 2
            except RuntimeError: kpost.append(x)
    auto_lgkm(G, eager=opt("peag", 8))
    g = lastload + 2
    for x in gen_tail_setup():
        g = G.place("v" if x.startswith("v_") else "s", x, g + 1)
    setup_end = g
    g = max(g, trlast)
    for x in gen_tail_setup2(): g = G.place("v" if x.startswith("v_") else "s", x, g + 1)
    HZ = 8
    post = []
    def lay(items):
        g = 0; out = []
        for lo, k, x, hi in items:
            if not out:
                try:
                    g = G.place(k, x, max(g + (0 if k == "v" else 1), lo), hi, force=(hi is not None)); continue
                except RuntimeError: pass
            assert hi is None
            out.append(x)
        return out
    its = []
    for sl in range(4):
        for qb in range(4):
            d0 = V_Q + (sl * 4 + qb) * 4
            lo = 4 * lastblk[2 * sl + 1] + 3 + HZ
            hi = NP - 3 if sl < 2 else NP + 8 * sl - 3
            for b in range(2):
                g0 = qacc(2 * sl + b, qb)
                for h in range(2): its.append((min(lo, hi), "v", "v_cvt_pk_bf16_f32 %s, %s, %s" % (v(d0 + 2 * b + h), v(g0 + 2 * h), v(g0 + 2 * h + 1)), hi))
    assert not lay(its)
    its = []
    if heavy:
        U = T
        for fb in range(4):
            for qb in range(4):
                g0 = V_ACCG + (fb * 4 + qb) * 4
                lo = 4 * lastblk[8 + fb] + 3 + HZ
                for r in range(4): its.append((lo, "v", "v_accvgpr_read_b32 %s, %s" % (v(U + r), a(A_ACCU + (fb * 4 + qb) * 4 + r)), None))
                for r in range(4): its.append((lo, "v", "v_max_f32 %s, 0, %s" % (v(g0 + r), v(g0 + r)), None))
                for r in range(4): its.append((lo, "v", "v_mul_f32 %s, %s, %s" % (v(g0 + r), v(g0 + r), v(U + r)), None))
                d0 = V_ACCG + ((fb & ~1) * 4 + qb) * 4 + 2 * (fb & 1)
                for h in range(2): its.append((lo, "v", "v_cvt_pk_bf16_f32 %s, %s, %s" % (v(d0 + h), v(g0 + 2 * h), v(g0 + 2 * h + 1)), None))
                if fb & 1:
                    if qb == 0: its.append((lo, "s", "s_lshl_b32 %s, %s, 13\ns_add_u32 %s, %s, %d" % (s(S_TMP + 6), s(S_FS), s(S_TMP + 6), s(S_TMP + 6), (128 + (fb >> 1)) * 4096), None))
                    its.append((lo, "m", "buffer_store_dwordx4 %s, %s, %s, %s offen offset:%d%s" % (v(d0 - 2, 4), v(V_L16), s(S_AF, 4), s(S_TMP + 6), 1024 * qb, STFL), None))
    post += lay(its)
    its = [(300, "v", x, None) for x in ones_ops(V_TRA + 2)]
    zs = []
    for k in range(XD):
        sl = max(x for x in range(20) if x % XD == k)
        zs.append((4 * lastF[sl] + 4, range(A_X + 16 * k, A_X + 16 * k + 16)))
    for lo, rr in sorted(zs, key=lambda t: t[0]):
        if lo > zlim: break
        for r in rr: its.append((lo, "v", "v_accvgpr_write_b32 %s, 0" % a(r), None))
    post += lay(its)
    if VERBOSE: print("proj", tag, G.pattern(), "| post", len(post), len(vpost), len(kpost))
    e.ext(pre_reads)
    e("s_waitcnt WAITVM{x%d} lgkmcnt(0)" % max(units[0][0]))
    stamp(e, 3)
    nm = 0
    for x in G.lines():
        if x.startswith("v_mfma"):
            if STAMPS and nm % (NP // 5) == 0 and 0 < nm < NP: stamp(e, 18 + nm // (NP // 5))
            if nm == NP: stamp(e, 4)
            nm += 1
        e(x)
    for x in kpost + vpost + post: e(x)
    e("s_mov_b32 %s, %d" % (s(S_KVOFF), 8 * 8192))
    e("s_nop 1")
    for r in range(8): e("v_mov_b32 %s, 0" % v(V_L + r))
    for qb in range(4): e("v_mov_b32 %s, 0xff800000" % v(V_NEGM + 4 * qb))
    e("s_waitcnt WAITVM{K2,K3}")
    e("s_waitcnt WAITVM{V0,V1,K4,K5}")
    r = resolve_vm(e.L)
    NV01.append(int(re.search(r"vmcnt\((\d+)\)", r.pop()).group(1)))
    e0.ext(r)

def kv_preload(e):
    e("s_mov_b32 %s, 0" % s(S_KVOFF))
    for i in range(9):
        if i < 8:
            e("s_add_u32 m0, %s, %d\ns_nop 0" % (s(S_M0K), L_K + i * 8192))
            e(kv_dma("K", 0)); e(kv_dma("K", 1))
        if i >= VSH:
            e("s_add_u32 m0, %s, %d\ns_nop 0" % (s(S_M0K), L_V + (i - VSH) * 8192))
            e(kv_dma("V", 0)); e(kv_dma("V", 1))
        if i < 8: e("s_add_u32 %s, %s, 8192" % (s(S_KVOFF), s(S_KVOFF)))
    e("s_waitcnt vmcnt(0)")

def Sreg(buf, qb, kb): return V_S + buf * 32 + qb * 8 + kb * 4
def Preg(buf, qb): return V_P + buf * 16 + qb * 4

def qk_mfmas(buf, czero=False, full=False):
    out = []
    if opt("qko", "snake") == "qks" and not czero and full:
        for qb in range(4):
            for i in range(2):
                kb = i if qb % 2 == 0 else 1 - i
                d = v(Sreg(buf, qb, kb), 4)
                for n, sl in enumerate(range(4) if i == 0 else range(3, -1, -1)):
                    out.append("%s %s, %s, %s, %s" % (MF, d, a(A_KF + (kb * 4 + sl) * 4, 4), v(V_Q + (sl * 4 + qb) * 4, 4), d if n else v(V_NEGM + 4 * qb, 4)))
        return out
    order = {"qks": [(kb, qb, sl) for kb in range(2) for qb in range(4) for sl in range(4)], "kqs": [(kb, qb, sl) for kb in range(2) for qb in range(4) for sl in range(4)],
             "ksq": [(kb, qb, sl) for kb in range(2) for sl in range(4) for qb in range(4)],
             "snake": [(kb, qb, sl) for kb in range(2) for qb in range(4) for sl in range(4)]}[opt("qko", "snake")]
    for kb, qb, sl0 in order:
                sl = sl0
                d = v(Sreg(buf, qb, kb), 4)
                if opt("qko", "snake") == "snake":
                    first = sl0 == 0
                    sl = sl0 if qb % 2 == 0 else 3 - sl0
                    c = ("0" if czero else v(V_NEGM + 4 * qb, 4)) if first else d
                    out.append("%s %s, %s, %s, %s" % (MF, d, a(A_KF + (kb * 4 + sl) * 4, 4), v(V_Q + (sl * 4 + qb) * 4, 4), c))
                    continue
                c = d if sl else ("0" if czero else v(V_NEGM + 4 * qb, 4))
                out.append("%s %s, %s, %s, %s" % (MF, d, a(A_KF + (kb * 4 + sl) * 4, 4), v(V_Q + (sl * 4 + qb) * 4, 4), c))
    return out

def pv_mfmas(buf, tailmode=False):
    out = []
    for h in range(2):
        out.append("v_smfmac_f32_16x16x64_bf16 %s, %s, %s, %s" % (v(V_L + 4 * h, 4), v(V_ONE, 4), v(Preg(buf, 2 * h), 8), v(V_SIDX)))
    pvo = opt("pvo", "qd2s")
    if pvo == "fake" and not tailmode:
        for h in range(4):
            for i in range(4):
                qb = i if h % 2 == 0 else 3 - i
                o = a(A_O + ((2 * h + buf) * 4 + qb) * 4, 4)
                for d in ((0, 1) if i % 2 == 0 else (1, 0)):
                    out.append("%s %s, %s, %s, %s" % (MF, o, a(A_VF + (2 * h + d) * 4, 4), v(Preg(buf, (qb + 2 * d) % 4), 4), o))
        return out
    if pvo == "fake": pvo = "dq"
    order = {"dq": [(db, qb) for db in range(8) for qb in range(4)],
             "snake": [(db, qb if db % 2 == 0 else 3 - qb) for db in range(8) for qb in range(4)],
             "qd2s": [(2 * h + (d if (i & 1) == 0 else 1 - d), i if h % 2 == 0 else 3 - i) for h in range(4) for i in range(4) for d in range(2)],
             "qd2": [(2 * h + d, qb) for h in range(4) for qb in range(4) for d in range(2)],
             "qd4": [(4 * h + d, qb) for h in range(2) for qb in range(4) for d in range(4)]}[pvo if not tailmode else "dq"]
    for db, qb in order:
            o = a(A_O + (db * 4 + qb) * 4, 4)
            out.append("%s %s, %s, %s, %s" % (MF, o, a(A_VF + db * 4, 4), v(Preg(buf, qb), 4), o))
    return out

def k_read(kb, sl, off, t=0): return "ds_read_b128 %s, %s offset:%d" % (a((A_KF, A_KF1)[t] + (kb * 4 + sl) * 4, 4), v(V_KA + sl), off + kb * 4096)
def v_read(db, j, t): return "ds_read_b64_tr_b16 %s, %s offset:%d" % (a(A_VF + 32 * t + db * 4 + 2 * j, 2), v(V_VA + db), 8192 * t + j * 4096)

def softmax_ops(buf):
    ex = []; cv = []
    for qb in range(4):
        for kb in range(2):
            for r in range(4):
                x = v(Sreg(buf, qb, kb) + r)
                ex.append("v_exp_f32 %s, %s" % (x, x))
            for h in range(2):
                b = Sreg(buf, qb, kb) + 2 * h
                if opt("perm", 0): cv.append("v_perm_b32 %s, %s, %s, %s" % (v(Preg(buf, qb) + kb * 2 + h), v(b + 1), v(b), s(59)))
                else: cv.append("v_cvt_pk_bf16_f32 %s, %s, %s" % (v(Preg(buf, qb) + kb * 2 + h), v(b), v(b + 1)))
    return ex, cv

def gen_attention(e):
    T = V_T
    e("ATT_START:")
    if opt("perm", 0): e("s_mov_b32 s59, 0x07060302")
    stamp(e, 5)
    e("s_barrier")
    for qb in range(4):
        b = Sreg(0, qb, 0)
        e("v_max3_f32 %s, %s, %s, %s" % (v(T + 2 * qb), v(b), v(b + 1), v(b + 2)))
    for qb in range(4):
        b = Sreg(0, qb, 0)
        e("v_max3_f32 %s, %s, %s, %s" % (v(T + 2 * qb), v(T + 2 * qb), v(b + 3), v(V_NEGM + 4 * qb)))
    for n, sw in enumerate(("v_permlane32_swap_b32", "v_permlane16_swap_b32")):
        for qb in range(4): e("v_mov_b32 %s, %s" % (v(T + 2 * qb + 1), v(T + 2 * qb)))
        e("s_nop 0")
        for qb in range(4): e("%s %s, %s" % (sw, v(T + 2 * qb), v(T + 2 * qb + 1)))
        for qb in range(4):
            if n == 0: e("v_max_f32 %s, %s, %s" % (v(T + 2 * qb), v(T + 2 * qb), v(T + 2 * qb + 1)))
            else:
                for r in range(4): e("v_min_f32 %s, -%s, -%s" % (v(V_NEGM + 4 * qb + r), v(T + 2 * qb), v(T + 2 * qb + 1)))
    for qb in range(4):
        for r in range(0, 8, 2): e("v_pk_add_f32 %s, %s, %s" % (v(Sreg(0, qb, 0) + r, 2), v(Sreg(0, qb, 0) + r, 2), v(V_NEGM + 4 * qb, 2)))
    e("s_waitcnt lgkmcnt(0)")

    exE, cvE = softmax_ops(0); exO, cvO = softmax_ops(1)
    smf = lambda t, h: "v_smfmac_f32_16x16x64_bf16 %s, %s, %s, %s" % (v(V_L + 4 * h, 4), v(V_ONE, 4), v(Preg(t, 2 * h), 8), v(V_SIDX))
    def pvm(db, qb, t):
        o = a(A_O + (db * 4 + qb) * 4, 4)
        return "%s %s, %s, %s, %s" % (MF, o, a(A_VF + 32 * t + db * 4, 4), v(Preg(t, qb), 4), o)
    G = Gaps(qk_mfmas(1))
    for i in range(8): G.put(1 + 2 * i, "d", k_read(i // 4, i % 4, 24576, 1))
    for i in range(4): G.put(17 + 2 * i, "d", k_read(0, i, 16384))
    for i in range(4): G.put(31, "d", k_read(1, i, 16384))
    for i, x in enumerate(exE): G.put(i, "e", x)
    for i, x in enumerate(cvE[:4]): G.put(24 + 2 * i, "v", x)
    e.ext(G.lines())
    e.ext(exO[:NOE])
    for sl in range(4): e("v_add_u32 %s, 32768, %s" % (v(V_KA + sl), v(V_KA + sl)))
    e("s_mov_b32 %s, 16384" % s(S_TOG))
    e("s_mov_b32 %s, %d\ns_mov_b32 %s, %d" % (s(S_TMP + 3), 2 * 8192, s(S_TMP + 4), 6 * 8192 + L_V))
    e("s_waitcnt vmcnt(NVWAIT) lgkmcnt(0)\ns_barrier")
    for which, m0, inc in (("K", L_K, 1), ("K", L_K + 8192, 0), ("V", L_V + 5 * 8192, 1)):
        e("s_add_u32 m0, %s, %d\ns_nop 0" % (s(S_M0K), m0))
        e(kv_dma(which, 0)); e(kv_dma(which, 1))
        if inc: e("s_add_u32 %s, %s, 8192" % (s(S_KVOFF), s(S_KVOFF)))
    e("s_mov_b32 %s, %d\ns_cmp_eq_u32 %s, 0\ns_cselect_b32 %s, %d, %s" % (s(S_EVT), EV(27), s(S_WAVE), s(S_EVT), EVT0, s(S_EVT)))
    stamp(e, 6)
    e("s_cmp_lg_u32 %s, 0\ns_cbranch_scc1 NOSIG2" % s(S_RETRY))
    e("s_cmp_ge_u32 %s, 27\ns_cbranch_scc1 LT_INIT" % s(S_FS))
    e("NOSIG2:")
    mf = []
    for t in range(2):
        for qb in range(4):
            for i in range(2):
                kb = i if qb % 2 == 0 else 1 - i
                d = v(Sreg(t, qb, kb), 4)
                for n, sl in enumerate(range(4) if i == 0 else range(3, -1, -1)):
                    mf.append("%s %s, %s, %s, %s" % (MF, d, a((A_KF, A_KF1)[t] + (kb * 4 + sl) * 4, 4), v(V_Q + (sl * 4 + qb) * 4, 4), d if n else v(V_NEGM + 4 * qb, 4)))
    mf += [smf(0, 0), smf(1, 0), smf(1, 1), smf(0, 1)]
    H2 = 68
    for db in range(8):
        for i in range(4):
            qb = 3 - i if db % 2 == 0 else i
            for t in ((0, 1) if i % 2 == 0 else (1, 0)): mf.append(pvm(db, qb, t))
    G = Gaps(mf); end = G.n() - 1
    G.put(1, "b", "s_barrier"); G.put(0, "s", "s_waitcnt vmcnt(16) lgkmcnt(0)")
    NV1 = opt("nv1", 22)
    vrd = [(db, j, t) for db in range(8) for t in range(2) for j in range(2)]
    vg = {}
    eg = {}
    for i in range(NOE, 32): eg[i] = G.put(2 * (i - NOE), "e", exO[i])
    vvg = [int(x) for x in opt("vvg", "3.7.11.15.55").split(".")]
    dgs = [g for g in range(3, 64, 2) if g not in vvg]
    for i in range(NV1):
        db, j, t = vrd[i]; vg[db] = G.put(dgs[i], "d", v_read(db, j, t))
    rd2 = [("v",) + x for x in vrd[NV1:]] + [("k", kb, sl, 0) for kb in range(2) for sl in range(4)] + [("k", kb, sl, 1) for kb in range(2) for sl in range(4)]
    g = 64; kg = {}
    for i, x in enumerate(rd2):
        if x[0] == "v": g = G.place("d", v_read(*x[1:]), g, H2 + 8 * x[1] - 6); vg[x[1]] = g
        else: g = G.place("d", k_read(x[1], x[2], 8192 * x[3], x[3]), g); kg[x[2]] = g
        g += 1 if i < 4 else 2
    def adv(r, base):
        return ["s_add_u32 %s, %s, 8192" % (s(r), s(r)), "s_and_b32 %s, %s, 0xffff" % (s(r), s(r))] + (["s_or_b32 %s, %s, %d" % (s(r), s(r), base)] if base else [])
    last = 0
    for g in (opt("dg1", 54), opt("dg2", 76)):
        for which, r in (("K", S_TMP + 3), ("V", S_TMP + 4)):
            g = G.place("s", "s_add_u32 m0, %s, %s" % (s(S_M0K), s(r)), g)
            for i in range(2): g = G.place("m", kv_dma(which, i), g + opt("dsp", 2))
            g += 1
        for x in ["s_add_u32 %s, %s, 8192" % (s(S_KVOFF), s(S_KVOFF))] + adv(S_TMP + 3, 0) + adv(S_TMP + 4, L_V): g = G.place("s", x, g) + 1
        last = g
    items = [(0, 8 * (i // 4) - 1, cvE[i]) for i in range(4, 16)] + [(eg.get(2 * i + 1, -1) + 1, 32 + 8 * (i // 4) - 1, cvO[i]) for i in range(16)]
    for lo, hi, x in sorted(items, key=lambda t: t[1]): G.place("v", x, lo, hi)
    for i in range(4): G.place("v", cvE[i], end - 5 + opt("c0g", 2))
    g = 56
    xg = 0
    for db in range(8):
        y = max(vg[db], 64)
        while not (G.ds[y] and G.fits(y, "v")): y += 1
        xg = max(xg, G.put(y, "v", "v_xor_b32 %s, %s, %s" % (v(V_VA + db), s(S_TOG), v(V_VA + db))))
    for sl in range(4): xg = max(xg, G.place("v", "v_xor_b32 %s, %s, %s" % (v(V_KA + sl), s(S_TOG), v(V_KA + sl)), kg[sl]))
    for i, x in enumerate(exE + exO[:NOE]): g = G.place("e", x, g, end - 6 if i < 8 else end)
    g = G.place("s", "s_xor_b32 %s, %s, 32768" % (s(S_TOG), s(S_TOG)), xg + 1)
    G.place("s", "s_cmp_lt_u32 %s, %s" % (s(S_KVOFF), s(S_EVT)), max(g, last) + 1)
    auto_lgkm(G, [], loop=True, eager=opt("leag", 8))
    if VERBOSE: print("loop", G.pattern())
    e(".p2align 6\nATT_LOOP:")
    for x in G.lines(): e(x)
    e("s_cbranch_scc1 ATT_LOOP")
    e("s_cmp_lt_u32 %s, %d\ns_cbranch_scc1 ATT_EVT" % (s(S_KVOFF), EVTE))
    e("TAILC0:")
    global LIGHT_LOOP
    LIGHT_LOOP = light_loop(G)
    if STAMPS and opt("dly", 0):
        e("s_and_b32 s98, s2, 7\ns_cmp_lg_u32 s98, 1\ns_cbranch_scc1 NODLY")
        for _ in range(opt("dly", 0)): e("s_sleep 32")
        e("NODLY:")
    stamp(e, 7)
    e("s_waitcnt vmcnt(16) lgkmcnt(0)\ns_barrier")
    e("s_cmp_lg_u32 %s, 0\ns_cbranch_scc1 NOPOLLW" % s(S_WAVE))
    e(poll_load(True))
    e("NOPOLLW:")
    vr = [v_read(db, j, 0) for db in range(8) for j in range(2)]
    e.ext(vr)
    e.ext(cvE[4:])
    e("s_nop 0")
    h = E()
    sn2 = lambda q0: [(db, q0 + (i if db % 2 == 0 else 1 - i)) for db in range(8) for i in range(2)]
    mf = [smf(0, 0)] + [pvm(db, qb, 0) for db, qb in sn2(0)] + [smf(0, 1), smf(1, 0)] + [pvm(db, qb, 1) for db, qb in sn2(0)]
    P3 = len(mf)
    mf += [smf(1, 1)]
    for n, (db, qb) in enumerate(sn2(2)):
        for t in ((0, 1) if n % 2 == 0 else (1, 0)): mf.append(pvm(db, qb, t))
    G = Gaps(mf)
    for i in range(16): G.put(i, "d", v_read(i // 2, i % 2, 1))
    for i in range(NOE, 16): G.put(i - NOE + 1, "e", exO[i])
    for i in range(8): G.put(max(2 * i + 3 - NOE, 0) + 1, "v", cvO[i])
    for i in range(16, 32): G.put(i, "e", exO[i])
    for i in range(8, 16): G.put(min(2 * i + 2, P3 - 3), "v", cvO[i])
    pq = [x for sg in range(NPRE_X) for x in t8_a(sg)]
    assert NPRE_X <= 3
    G.put(P3 - 8, "s", "s_waitcnt lgkmcnt(0)\ns_barrier")
    pre, pend = auto_lgkm(G, [asmcheck.I(x, 0, 0).W for x in vr])
    g = 1
    while pq:
        k, x = pq.pop(0)
        if k == "s": G.sc[g].append(x); g += 1
        else: G.va[g].append(x); g += opt("x63", 2) if len(pq) % 3 else 1
    assert g < P3 + 8, g
    pro, grp = o_ops()
    NEG = opt("neg", 5)
    fill = pro[0] + [x for i in range(NEG) for x in grp(i, False)]
    g0 = max(P3 + 1, g); n = G.n() - g0
    for i, x in enumerate(fill): G.va[g0 + (i * n) // len(fill)].append(x)
    if pre is not None: h("s_waitcnt lgkmcnt(%d)" % pre)
    for x in G.lines(): h(x)
    return h.L, NEG

def o_ops():
    T = V_T; t = S_TMP
    Z = 248; C = 252; W = 224
    pro = []
    for hh in range(2):
        e = E()
        for qb in (2 * hh, 2 * hh + 1): e("v_add_f32 %s, %s, %s" % (v(V_L + 2 * qb), v(V_L + 2 * qb), v(V_L + 2 * qb + 1)))
        for qb in (2 * hh, 2 * hh + 1): e("v_rcp_f32 %s, %s" % (v(T + 2 * qb), v(V_L + 2 * qb)))
        if hh == 0:
            for r in range(4): e("v_mov_b32 %s, 0" % v(Z + r))
            for sl in range(4): e("s_lshl_b32 %s, %s, 14" % (s(44), s(S_HEAD)) if sl == 0 else "s_add_u32 %s, %s, %d" % (s(44 + sl), s(44), 4096 * sl))
        else:
            e("v_max3_f32 %s, %s, %s, %s" % (v(T + 8), v(V_L), v(V_L + 2), v(V_L + 4)))
            e("v_max_f32 %s, %s, %s" % (v(T + 8), v(T + 8), v(V_L + 6)))
            e("v_mul_f32 %s, %s, %s" % (v(T + 8), f2u(2.0 ** 64), v(T + 8)))
            e("v_mul_f32 %s, 0, %s" % (v(T + 8), v(T + 8)))
            for qb in range(4): e("v_fma_f32 %s, %s, 0, %s" % (v(T + 8), v(V_L + 2 * qb), v(T + 8)))
        for qb in (2 * hh, 2 * hh + 1): e("v_mov_b32 %s, %s" % (v(T + 2 * qb + 1), v(T + 2 * qb)))
        pro.append(e.L)
    def grp(i, pk):
        e = E()
        sl, qb = (i % 8) // 2, 2 * (i // 8) + i % 2
        d0 = 232 + 4 * (i % 2)
        for b in range(2):
            for r in range(4): e("v_accvgpr_read_b32 %s, %s" % (v(W + 4 * b + r), a(A_O + ((2 * sl + b) * 4 + qb) * 4 + r)))
        if pk:
            for h in range(4): e("v_pk_mul_f32 %s, %s, %s" % (v(W + 2 * h, 2), v(W + 2 * h, 2), v(T + 2 * qb, 2)))
        else:
            for r in range(8): e("v_mul_f32 %s, %s, %s" % (v(W + r), v(W + r), v(T + 2 * qb)))
        for h in range(4): e("v_cvt_pk_bf16_f32 %s, %s, %s" % (v(d0 + h), v(W + 2 * h), v(W + 2 * h + 1)))
        e("buffer_store_dwordx4 %s, %s, %s, %s offen offset:%d%s ;#ost" % (v(d0, 4), v(V_L16), s(S_AF, 4), s(44 + sl), 1024 * qb, STFL))
        e.L.append("s_nop 0\n%s %s, %s, %s, %s" % (MF, v(C, 4), v(Z, 4), v(d0, 4), "0" if i == 0 else v(C, 4)))
        return e.L
    return pro, grp

LT_SS, LT_SD = 44, 48
LT_SO, LT_DO, LT_R = 91, 96, 97
LT_VO, LT_VB, LT_VR, LT_AD = 40, 42, 44, 48
L_TRB = 131072
def light_loop(G):
    import copy
    G = copy.deepcopy(G)
    n = G.n()
    b = [g for g in range(n) if any("s_barrier" in x for x in G.va[g])][0]
    for bb in (b - 1, b): G.sc[bb] = [x.replace("vmcnt(%d)" % (16 + 2 * PWARM), "vmcnt(%d)" % (24 + 2 * PWARM)) for x in G.sc[bb]]
    lastm = max(g for g in range(n) if any(x.startswith("buffer") for x in G.va[g]))
    cmpg = [g for g in range(n) if any(x.startswith("s_cmp_lt_u32 %s" % s(S_KVOFF)) for x in G.sc[g])][-1]
    def lay(seq, g, hi, step=1):
        for k, x in seq:
            if k == "s":
                while not G.fits(g, "s"): g += 1
                G.put(g, "s", x)
            else:
                win = opt("ltw", 4) if k != "m" else opt("ltm", 4)
                g = min(range(g, min(g + win, hi) + 1), key=lambda y: (G.used[y] + (3 if (k == "d" and G.ds[y] and opt("ltd", 0)) else 0), y))
                (G.ds if k == "d" else G.va)[g].append(x); G.used[g] += 1 if k != "m" else 2
            g += step
            assert g <= hi + 1, (x, g, hi)
        return g
    g = lay([("d", "ds_read_b64_tr_b16 %s, %s offset:%d" % (v(LT_AD + 4 * f + 2 * j, 2), v(LT_VR + f), 1024 * j)) for f in range(2) for j in range(2)], b + 1, b + 30, 2)
    g1, g2 = opt("lts1", 44), opt("lts2", 50)
    lay(([("s", "s_waitcnt lgkmcnt(2)")] if g1 < 68 else []) + [("m", "buffer_store_dwordx4 %s, %s, %s, %s offen%s" % (v(LT_AD, 4), v(V_L16), s(LT_SD, 4), s(LT_DO), STFL))], g1, cmpg - 1)
    lay([("m", "buffer_store_dwordx4 %s, %s, %s, %s offen offset:1024%s" % (v(LT_AD + 4, 4), v(V_L16), s(LT_SD, 4), s(LT_DO), STFL)),
         ("s", "s_add_u32 %s, %s, %d" % (s(LT_DO), s(LT_DO), 8 * 10240)),
         ("s", "s_sub_u32 %s, %s, %d\ns_cselect_b32 %s, %s, %s" % (s(S_TMP + 1), s(LT_DO), 184 * 10240, s(LT_DO), s(LT_DO), s(S_TMP + 1)))], g2, cmpg - 1)
    g = lastm + 1
    lay([("s", "s_add_u32 m0, %s, %s" % (s(LT_R), s(S_TMP)))] +
        [("m", "buffer_load_dwordx4 %s, %s, %s offen offset:%d lds" % (v(LT_VO + i), s(LT_SS, 4), s(LT_SO), 1024 * i)) for i in range(2)] +
        [("s", "s_add_u32 %s, %s, %d\ns_add_u32 %s, %s, 2048" % (s(LT_SO), s(LT_SO), 8 * 40960, s(LT_R), s(LT_R))),
         ("s", "s_cmp_eq_u32 %s, 6144\ns_cselect_b32 %s, 0, %s" % (s(LT_R), s(LT_R), s(LT_R)))] +
        [("v", "v_add_u32 %s, %s, %s" % (v(LT_VR + f), s(LT_R), v(LT_VB + f))) for f in range(2)], g, cmpg - 1)
    if VERBOSE: print("lightloop", G.pattern())
    return G.lines()

def gen_events(e):
    L = V_LANE; t = S_TMP
    e("LT_INIT:")
    e("s_sub_u32 %s, %s, 27\ns_lshl_b32 %s, %s, 3\ns_add_u32 %s, %s, %s\ns_lshl2_add_u32 %s, %s, %s" % (s(t), s(S_FS), s(t), s(t), s(t), s(t), s(S_QT), s(t), s(t), s(S_WAVE)))
    e("s_mul_i32 %s, %s, 3277\ns_lshr_b32 %s, %s, 16\ns_mul_i32 %s, %s, 20\ns_sub_u32 %s, %s, %s" % (s(t + 1), s(t), s(t + 1), s(t + 1), s(t + 6), s(t + 1), s(t), s(t), s(t + 6)))
    e("s_mul_i32 %s, %s, 40960\ns_lshl_b32 %s, %s, 6\ns_add_u32 %s, %s, %s" % (s(LT_SO), s(t + 1), s(t + 6), s(t), s(LT_SO), s(LT_SO), s(t + 6)))
    e("s_add_u32 %s, %s, 104\ns_mul_i32 %s, %s, 10240" % (s(LT_DO), s(t + 1), s(LT_DO), s(LT_DO)))
    srd(e, LT_SS, ptr(8), 0, 1728 * 1280)
    e("s_mul_i32 %s, %s, 13108\ns_lshr_b32 %s, %s, 16\ns_mul_i32 %s, %s, %d\ns_lshl_b32 %s, %s, 11\ns_add_u32 %s, %s, %s\ns_add_u32 %s, %s, %d" % (
        s(t + 6), s(t), s(t + 6), s(t + 6), s(t + 6), s(t + 6), WFS - 10240, s(t + 1), s(t), s(t + 6), s(t + 6), s(t + 1), s(t + 6), s(t + 6), WF_OFF))
    srd(e, LT_SD, ptr(11), s(t + 6), (NSLAB - 1) * 10240 + 2048)
    e("s_mul_i32 %s, %s, 6144\ns_add_u32 %s, %s, %d\ns_mov_b32 %s, 0\ns_mov_b32 %s, %d" % (s(t), s(S_WAVE), s(t), s(t), L_TRB, s(LT_R), s(S_EVT), EV(7)))
    e("v_lshrrev_b32 %s, 2, %s\nv_bfe_u32 %s, %s, 4, 1\nv_and_b32 %s, 3, %s" % (v(46), v(L), v(47), v(L), v(48), v(L)))
    e("v_lshlrev_b32 %s, 1, %s\nv_xor_b32 %s, %s, %s\nv_mul_u32_u24 %s, 1280, %s\nv_lshl_add_u32 %s, %s, 4, %s\nv_add_u32 %s, %d, %s" % (
        v(49), v(47), v(49), v(49), v(48), v(LT_VO), v(46), v(LT_VO), v(49), v(LT_VO), v(LT_VO + 1), 16 * 1280 - 1024, v(LT_VO)))
    e("v_lshlrev_b32 %s, 6, %s\nv_lshl_add_u32 %s, %s, 3, %s\nv_lshl_add_u32 %s, %s, 5, %s\nv_add_u32 %s, %s, %s\nv_xor_b32 %s, 32, %s" % (
        v(LT_VB), v(46), v(LT_VB), v(48), v(LT_VB), v(LT_VB), v(47), v(LT_VB), v(LT_VB), s(t), v(LT_VB), v(LT_VB + 1), v(LT_VB)))
    e("v_mov_b32 %s, %s\nv_mov_b32 %s, %s" % (v(LT_VR), v(LT_VB), v(LT_VR + 1), v(LT_VB + 1)))
    e(".p2align 6\nLT_LOOP:")
    for x in LIGHT_LOOP: e(x)
    e("s_cbranch_scc1 LT_LOOP")
    e("s_cmp_lg_u32 %s, %d\ns_cbranch_scc1 LT_E2" % (s(S_KVOFF), EV(7)))
    srd(e, LT_SS, ptr(4), 0, 4096 * 1280)
    e("s_sub_u32 %s, %s, %d\ns_mov_b32 %s, %d\ns_branch LT_LOOP" % (s(LT_SO), s(LT_SO), 56 * 40960, s(S_EVT), EV(13)))
    e("LT_E2:")
    e("s_cmp_lg_u32 %s, %d\ns_cbranch_scc1 LT_E3" % (s(S_KVOFF), EV(13)))
    e("s_mov_b32 %s, %d\ns_cmp_lg_u32 %s, 0\ns_cbranch_scc1 LT_LOOP" % (s(S_EVT), EV(26), s(S_WAVE)))
    set_flag(e, 2)
    e("s_mov_b32 %s, %d\ns_branch LT_LOOP" % (s(S_EVT), EV(23)))
    e("LT_E3:")
    e("s_cmp_lg_u32 %s, %d\ns_cbranch_scc1 LT_END" % (s(S_KVOFF), EV(23)))
    e(poll_load(True))
    e("s_mov_b32 %s, %d\ns_branch LT_LOOP" % (s(S_EVT), EV(26)))
    e("LT_END:")
    e("s_mov_b32 %s, %d\ns_branch ATT_LOOP" % (s(S_EVT), EV(27)))
    def redirect(d, vd, shift, size):
        e("s_sub_u32 %s, %s, %s\ns_add_u32 %s, %s, %s\ns_addc_u32 %s, %s, 0" % (s(t + 6), s(T_BW[0]), s(T_M0W), s(d), s(T_SW), s(t + 6), s(d + 1), s(T_SW + 1)))
        e("s_sub_u32 %s, %s, %d\ns_subb_u32 %s, %s, 0\ns_mov_b32 %s, %d" % (s(d), s(d), shift, s(d + 1), s(d + 1), s(d + 2), size))
        e("v_add_u32 %s, %s, %s\nv_add_u32 %s, %s, %s" % (v(vd), s(S_M0K), v(V_L16), v(vd + 1), s(S_M0K), v(V_L16)))
    e("ATT_EVT:")
    e("s_cmp_lg_u32 %s, %d\ns_cbranch_scc1 ATT_EVT1" % (s(S_KVOFF), EV(27)))
    redirect(S_K, V_KD, 64 * 8192, 72 * 8192)
    e("s_mov_b32 %s, %d\ns_cmp_lg_u32 %s, 0\ns_cbranch_scc1 ATT_LOOP" % (s(S_EVT), EV(29) if NWP == 4 else EVTE, s(S_WAVE)))
    if NWP < 4: e("s_cmp_ge_u32 %s, 27\ns_cselect_b32 %s, %d, %s" % (s(S_FS), s(S_EVT), EV(29), s(S_EVT)))
    e("s_waitcnt vmcnt(16)")
    poll_spin(e, True, None, 2, "EARLY")
    e("s_branch ATT_LOOP")
    e("ATT_EVT1:")
    e("s_cmp_lg_u32 %s, %d\ns_cbranch_scc1 ATT_EVT2" % (s(S_KVOFF), EV(29)))
    if NWP == 4: redirect(S_V, V_VD, 68 * 8192 - 65536, 68 * 8192 + NWP * 20480 - 65536)
    e("s_mov_b32 %s, %d\ns_cmp_lg_u32 %s, 0\ns_cbranch_scc1 ATT_LOOP" % (s(S_EVT), EVTE, s(S_WAVE)))
    e("s_cmp_lt_u32 %s, 27\ns_cbranch_scc1 ATT_LOOP" % s(S_FS))
    set_flag(e, 3)
    e("s_branch ATT_LOOP")
    e("ATT_EVT2:")
    e("s_cmp_lg_u32 %s, %d\ns_cbranch_scc1 ATT_EVT3" % (s(S_KVOFF), EV(3)))
    set_flag(e, 3)
    e("s_mov_b32 %s, %d\ns_branch ATT_LOOP" % (s(S_EVT), EV(25)))
    e("ATT_EVT3:")
    if opt("ctt", 0):
        e("s_getpc_b64 %s\nCODE2:\ns_sub_u32 %s, %s, CODE2-TAILC0\ns_subb_u32 %s, %s, 0" % (s(t + 6, 2), s(t + 6), s(t + 6), s(t + 7), s(t + 7)))
        e("s_lshr_b32 %s, s2, 3\ns_lshl_b32 %s, %s, 10" % (s(t + 1), s(t + 1), s(t + 1)))
        e("v_min_u32 %s, 7, %s\nv_lshlrev_b32 %s, 7, %s\nv_add_u32 %s, %s, %s\nv_min_u32 %s, K_END-TAILC0, %s" % (v(V_PL), v(L), v(V_PL), v(V_PL), v(V_PL), s(t + 1), v(V_PL), v(V_PL), v(V_PL)))
        e("global_load_dword %s, %s, %s" % (v(V_DUMP), v(V_PL), s(t + 6, 2)))
    e(poll_load(True))
    e("s_mov_b32 %s, %d\ns_branch ATT_LOOP" % (s(S_EVT), EV(27)))
assert all((g * 3277) >> 16 == g // 20 for g in range(160)) and all((c * 13108) >> 16 == c // 5 for c in range(40))

K_SX, K_SO = S_WU, S_X
T_SA, T_SW, T_XS = S_T, S_WF, S_WQ
T_XO = S_WG
T_TAG = S_WG + 3
T_M0W, T_OA, T_OW = 88, 89, 90
T_BA, T_BW = (S_XOFF, S_WQOFF), (S_WGOFF, S_M0W)
K_FLG = 95
KV_XO = 63; KV_X = 8
TV_WR, TV_L4K, TV_TAG, TV_OW, TV_OR = 60, 61, 62, 3, 4
XPB = 12288
REUSE = 1
COAL = opt("coal", 1)
NSD, NSG = 7, 23
ROTW = opt("rotw", 0)
T_ROT = 58
RW8, RA8, RF8 = 6, 5, 10
L_OWN = [122880, 0]

def join_scalar(lines):
    out = []
    for x in lines:
        if x.startswith(("s_addc", "s_cselect")): out[-1] += "\n" + x
        else: out.append(x)
    return out

def gen_tail_setup():
    e = E()
    L = V_LANE; t = S_TMP
    R, Cc, KQ = t + 3, t + 4, t + 5
    e("s_bfe_u32 %s, s2, 0x10002\ns_lshl_b32 %s, %s, 3\ns_lshr_b32 %s, s2, 5\ns_add_u32 %s, %s, %s" % (s(R), s(R), s(R), s(t), s(R), s(R), s(t)))
    e("s_bfe_u32 %s, s2, 0x20003\ns_and_b32 %s, s2, 3" % (s(Cc), s(KQ)))
    e("s_lshr_b32 %s, %s, 1\ns_lshl1_add_u32 %s, %s, %s\ns_lshl2_add_u32 %s, %s, %s\ns_mul_i32 %s, %s, %d" % (s(t), s(KQ), s(t), s(R), s(t), s(t), s(t), s(S_WAVE), s(t), s(t), 16 * 1280))
    e("s_and_b32 %s, %s, 1\ns_lshl1_add_u32 %s, %s, %s\ns_mul_i32 %s, %s, 160\ns_add_u32 %s, %s, %s" % (s(t + 1), s(KQ), s(t + 1), s(Cc), s(t + 1), s(t + 1), s(t + 1), s(t), s(t), s(t + 1)))
    srd(e, K_SX, ptr(0), s(t), 15 * 1280 + 160)
    srd(e, K_SO, ptr(9), s(t), 15 * 1280 + 160)
    e("v_and_b32 %s, 15, %s\nv_mul_u32_u24 %s, 1280, %s\nv_lshrrev_b32 %s, 4, %s\nv_lshl_add_u32 %s, %s, 3, %s" % (v(KV_XO), v(L), v(KV_XO), v(KV_XO), v(52), v(L), v(KV_XO), v(52), v(KV_XO)))
    e("s_lshr_b32 %s, %s, 1\ns_lshl2_add_u32 %s, %s, %s\ns_lshl_b32 %s, %s, %d" % (s(K_FLG), s(R), s(K_FLG), s(K_FLG), s(KQ), s(K_FLG), s(K_FLG), FSH + 3))
    e("s_mul_i32 %s, %s, 7\ns_add_u32 %s, %s, 64\ns_lshl_b32 %s, %s, 13\ns_mul_i32 %s, %s, 20480" % (s(t), s(KQ), s(t), s(t), s(T_BA[0]), s(t), s(T_BW[0]), s(t)))
    e("s_lshl_b32 %s, %s, 17\ns_mul_i32 %s, %s, %d" % (s(T_BA[1]), s(KQ), s(T_BW[1]), s(KQ), 16 * 20480))
    if ROTW: e("s_mul_i32 %s, %s, %d\ns_mul_i32 %s, %s, %d\ns_add_u32 %s, %s, %s" % (s(t), s(R), opt("rotr", 1), s(T_ROT), s(Cc), opt("rotc", 2), s(T_ROT), s(T_ROT), s(t)))
    e("s_lshl2_add_u32 %s, %s, %s\ns_mul_i32 %s, %s, %d\ns_add_u32 %s, %s, %d" % (s(t), s(R), s(Cc), s(t), s(t), XGS, s(t), s(t), XP_OFF))
    srd(e, T_XS, ptr(11), s(t), 12 * XPB)
    for ch in range(2):
        d = T_XO + ch
        e("s_and_b32 %s, %s, 2\ns_add_u32 %s, %s, %d\ns_xor_b32 %s, %s, %s\ns_mul_i32 %s, %s, 3\ns_add_u32 %s, %s, %s\ns_sub_u32 %s, %s, 1" % (
            s(t), s(S_WAVE), s(t), s(t), ch, s(t + 1), s(t), s(KQ), s(t), s(t), s(t), s(t), s(t + 1), s(t), s(t)))
        e("s_mul_i32 %s, %s, %d\ns_and_b32 %s, %s, 1\ns_mul_i32 %s, %s, 6144\ns_add_u32 %s, %s, %s" % (s(t), s(t), XPB, s(d), s(S_WAVE), s(d), s(d), s(d), s(d), s(t)))
        e("s_cmp_eq_u32 %s, 0\ns_cselect_b32 %s, 0x1000000, %s" % (s(t + 1), s(d), s(d)))
    if PWARM:
        e("s_lshl2_add_u32 %s, %s, %s\ns_mul_i32 %s, %s, %d\ns_lshl_b32 %s, %s, 14\ns_add_u32 %s, %s, %s" % (s(t), s(S_QT), s(S_WAVE), s(t), s(t), NSLAB * 4096, s(t + 1), s(S_HEAD), s(t), s(t), s(t + 1)))
        e("v_mov_b32 %s, %s" % (v(V_PW), s(t)))
        for i, o in ((1, 6144), (2, 10240)):
            e("s_add_u32 %s, %s, %d\nv_writelane_b32 %s, %s, %d\nv_writelane_b32 %s, %s, %d" % (s(t + 1), s(t), o, v(V_PW), s(t + 1), 2 * i, v(V_PW), s(t + 1), 2 * i + 1))
        e("s_lshl2_add_u32 %s, %s, %s\ns_mul_i32 %s, %s, %d\ns_add_u32 %s, %s, %d" % (s(t + 2), s(R), s(Cc), s(t + 2), s(t + 2), 24 * XPB, s(t + 2), s(t + 2), XP_OFF))
        for m in range(2):
            for ch in range(2):
                i = 3 + 2 * m + ch
                e("s_add_u32 %s, %s, %s\ns_add_u32 %s, %s, %d" % (s(t + 1), s(t + 2), s(T_XO + ch), s(t + 1), s(t + 1), m * 12 * XPB))
                e("s_cmp_eq_u32 %s, 0x1000000\ns_cselect_b32 %s, %s, %s" % (s(T_XO + ch), s(t + 1), s(t), s(t + 1)))
                e("v_writelane_b32 %s, %s, %d\nv_writelane_b32 %s, %s, %d" % (v(V_PW), s(t + 1), 2 * i, v(V_PW), s(t + 1), 2 * i + 1))
        e("v_min_u32 %s, 14, %s" % (v(V_T), v(L)))
        L = V_T
        e("v_and_b32 %s, 1, %s\nv_lshl_add_u32 %s, %s, 7, %s\nv_subrev_u32 %s, 1280, %s" % (v(V_T), v(L), v(V_PW), v(V_T), v(V_PW), v(V_PW), v(V_PW)))
        L = V_LANE
    e("s_mul_i32 %s, %s, %d\ns_mul_i32 %s, %s, 3072\ns_add_u32 %s, %s, %s" % (s(T_XO + 2), s(KQ), 3 * XPB, s(t), s(S_WAVE), s(T_XO + 2), s(T_XO + 2), s(t)))
    e("s_add_u32 %s, %s, 0x10000\ns_and_b32 %s, %s, 0x1fff0000\ns_or_b32 %s, %s, 0x40000000\nv_mov_b32 %s, %s" % (s(t), s(S_EPOCH), s(t), s(t), s(T_TAG), s(t), v(TV_TAG), s(T_TAG)))
    e("s_and_b32 %s, %s, 1\ns_mul_i32 %s, %s, 10240\nv_add_u32 %s, %s, %s" % (s(t), s(S_WAVE), s(t), s(t), v(TV_OW), s(t), v(V_L16)))
    e("s_mul_i32 %s, %s, 5120\nv_add_u32 %s, %s, %s" % (s(t), s(S_WAVE), v(TV_OR), s(t), v(V_L16)))
    e("s_lshr_b32 %s, %s, 1\ns_lshl1_add_u32 %s, %s, %s\ns_mul_i32 %s, %s, %d" % (s(t), s(S_WAVE), s(t), s(R), s(t), s(t), s(t), AFS))
    e("s_and_b32 %s, %s, 1\ns_lshl_b32 %s, %s, 11\ns_add_u32 %s, %s, %s" % (s(t + 1), s(S_WAVE), s(t + 1), s(t + 1), s(t), s(t), s(t + 1)))
    srd(e, T_SA, ptr(11), s(t), NSLAB * 4096 - 2048)
    e("s_mul_i32 %s, %s, 5120" % (s(T_M0W), s(S_WAVE)))
    e("s_mul_i32 %s, %s, %d\ns_add_u32 %s, %s, %s\ns_add_u32 %s, %s, %d" % (s(t), s(Cc), WFS, s(t), s(t), s(T_M0W), s(t), s(t), WF_OFF))
    return join_scalar(e.L)

def gen_tail_setup2():
    e = E()
    srd(e, T_SW, ptr(11), s(S_TMP), 90 * 20480 + 5120)
    e("v_mov_b32 %s, %s\nv_add_u32 %s, 4096, %s" % (v(TV_WR), v(V_L16), v(TV_L4K), v(V_L16)))
    return join_scalar(e.L)

def t8_w(sg):
    base = (sg % RW8) * 20480; tag = "D%d" % sg
    m, i = (0, sg) if sg < NSD else (1, sg - NSD)
    W = lambda vo, off: ("m", "buffer_load_dwordx4 %s, %s, %s offen offset:%d%s lds ;#%s" % (v(vo), s(T_SW, 4), s(T_OW), off, LDFL, tag))
    if m and ROTW:
        hd = [("s", "s_add_u32 %s, %s, %d\ns_and_b32 %s, %s, %d" % (s(T_OW), s(T_ROT), i, s(T_OW), s(T_OW), ROTW - 1)),
              ("s", "s_mul_i32 %s, %s, 20480\ns_add_u32 %s, %s, %s" % (s(T_OW), s(T_OW), s(T_OW), s(T_OW), s(T_BW[m]))),
              ("s", ("s_add_u32 %s, %s, %d\n" % (s(T_OW), s(T_OW), (i & ~(ROTW - 1)) * 20480) if i >= ROTW else "") + "s_add_u32 m0, %s, %d" % (s(T_M0W), base))]
    else:
        hd = [("s", "s_add_u32 %s, %s, %d\ns_add_u32 m0, %s, %d" % (s(T_OW), s(T_BW[m]), i * 20480, s(T_M0W), base))]
    return hd + [
            W(V_L16, 0), W(V_L16, 1024), W(V_L16, 2048), W(V_L16, 3072),
            ("s", "s_add_u32 m0, %s, %d" % (s(T_M0W), base + 4096)), W(TV_L4K, 0)]
def t8_af(sg, half, j): return a((192, 208, 224, 32, 48)[sg % RA8] + half * 8 + j * 4, 4)
def t8_a(sg):
    m, i = (0, sg) if sg < NSD else (1, sg - NSD)
    l = [("s", "s_add_u32 %s, %s, %d" % (s(T_OA), s(T_BA[m]), i * 8192))]
    if m and ROTW:
        l = [("s", "s_add_u32 %s, %s, %d\ns_and_b32 %s, %s, %d" % (s(T_OA), s(T_ROT), i, s(T_OA), s(T_OA), ROTW - 1)),
             ("s", "s_lshl_b32 %s, %s, 13\ns_add_u32 %s, %s, %s" % (s(T_OA), s(T_OA), s(T_OA), s(T_OA), s(T_BA[m])))]
        if i >= ROTW: l.append(("s", "s_add_u32 %s, %s, %d" % (s(T_OA), s(T_OA), (i & ~(ROTW - 1)) * 8192)))
    for half in range(2):
        for j in range(2):
            l.append(("m", "buffer_load_dwordx4 %s, %s, %s, %s offen offset:%d%s ;#A%d" % (t8_af(sg, half, j), v(TV_L4K if half else V_L16), s(T_SA, 4), s(T_OA), j * 1024, LDFL, sg)))
    return l
def t8_wf(F):
    k = F % RF8
    return a(4 * k if k < 8 else 240 + 4 * (k - 8), 4)
def t8_read(F):
    sg, f = F // 20, F % 20
    if opt("t8c", 1): f = (f & 1) * 10 + (f >> 1)
    return "ds_read_b128 %s, %s offset:%d" % (t8_wf(F), v(TV_WR), (sg % 3) * 20480 + f * 1024)
def t8_acc(m, n10, j):
    i = n10 * 2 + j
    if m == 0: return 128 + 4 * i
    return 64 + 4 * i if i < 16 else 208 + 4 * (i - 16)
NWP = opt("nwp", 4)
NPRE_X = opt("nprex", 3)
NPRE_G = opt("npreg", 3)

def cond_lines(lines): return [("@" + x) if x.startswith("buffer") else x for x in lines]

def publish(m):
    out = []; n = 0
    for ch in range(2):
        if m == 1 and REUSE:
            t = S_TMP
            out.append(("s", "s_and_b32 %s, s2, 3\ns_and_b32 %s, %s, 2\ns_sub_u32 %s, %s, %s\ns_sub_u32 %s, %s, %d\ns_mul_i32 %s, %s, %d\ns_add_u32 %s, %s, %s" % (
                s(t), s(t + 1), s(S_WAVE), s(t), s(t), s(t + 1), s(t), s(t), ch, s(t), s(t), 3 * XPB, s(t + 2), s(T_XO + ch), s(t))))
        else:
            out.append(("s", "s_add_u32 %s, %s, %d" % (s(S_TMP + 2), s(T_XO + ch), m * 12 * XPB)))
        for j in range(2):
            vals = [t8_acc(m, 5 * ch + nb, j) + k for nb in range(5) for k in range(4)]
            pb = (40, 240)[n % 2]; n += 1
            for gi in range(3):
                vs = vals[7 * gi:7 * gi + 7]
                if len(vs) < 7: vs = vs + [TV_TAG]
                for h in range(3): out.append(("v", "v_cvt_pk_bf16_f32 %s, %s, %s" % (v(pb + 4 * gi + h), v(vs[2 * h]), v(vs[2 * h + 1]))))
                out.append(("v", "v_cvt_pk_bf16_f32 %s, %s, %s" % (v(pb + 4 * gi + 3), v(vs[6]), v(TV_TAG))))
                off = j * 3072 + gi * 1024
                out.append(("m", "buffer_store_dwordx4 %s, %s, %s, %s offen offset:%d%s ;#xst%d" % (v(pb + 4 * gi, 4), v(TV_L4K if off >= 4096 else V_L16), s(T_XS, 4), s(S_TMP + 2), off % 4096, STFL, m)))
    return out
def own_write(m):
    l = []
    if L_OWN[m]: l.append("v_add_u32 %s, %d, %s" % (v(52), L_OWN[m], v(TV_OW)))
    ar = v(52) if L_OWN[m] else v(TV_OW)
    for ch in range(2):
        l.append("s_cmp_lg_u32 %s, 0x1000000\ns_cbranch_scc1 NOOWN%d%d" % (s(T_XO + ch), m, ch))
        for j in range(2):
            for nb in range(5): l.append("ds_write_b128 %s, %s offset:%d" % (ar, v(t8_acc(m, 5 * ch + nb, j), 4), (j * 5 + nb) * 1024))
        l.append("NOOWN%d%d:" % (m, ch))
    return l
XR = [128, 64]; OWR = [164, 184]
T_SL = 72
def xloads(m):
    l = []
    for i in range(3):
        if m == 1 and REUSE: l.append(("s", "s_mov_b32 %s, %s" % (s(S_TMP + 3), s(T_SL + i))))
        else: l.append(("s", "s_add_u32 %s, %s, %d" % (s(S_TMP + 3), s(T_XO + 2), m * 12 * XPB + i * XPB)))
        for k in range(3): l.append(("m", "buffer_load_dwordx4 %s, %s, %s, %s offen offset:%d%s ;#xr%d" % (v(XR[m] + (i * 3 + k) * 4, 4), v(V_L16), s(T_XS, 4), s(S_TMP + 3), k * 1024, LDFL, m)))
    return l
def xcheck(e, m, first_wait):
    t = S_TMP
    e("s_mov_b32 %s, 0" % s(t + 7))
    e(first_wait)
    e("XCHK%d:" % m)
    for i in range(9): e("v_xor_b32 %s, %s, %s" % (v(20 + i), s(T_TAG), v(XR[m] + 4 * i + 3)))
    for i in range(4): e("v_or3_b32 %s, %s, %s, %s" % (v(20), v(20), v(21 + 2 * i), v(22 + 2 * i)))
    e("v_cmp_lt_u32 vcc, 0xffff, %s" % v(20))
    e("s_add_u32 %s, %s, 1" % (s(t + 7), s(t + 7)))
    e("s_cmp_eq_u64 vcc, 0\ns_cbranch_scc1 XOK%d" % m)
    e("s_cmp_ge_u32 %s, 0x40000\ns_cbranch_scc1 XOK%d" % (s(t + 7), m))
    if m == 0 and opt("dprb", 1):
        e("v_min_u32 %s, 2, %s\nv_mul_u32_u24 %s, %d, %s\ns_add_u32 %s, %s, %d" % (v(31), v(V_LANE), v(31), XPB, v(31), s(t + 3), s(T_XO + 2), 2048 + 1008 + 12))
        e("DPROBE:")
        e("s_sleep %d" % opt("dslp", 24))
        e("@buffer_load_dword %s, %s, %s, %s offen%s" % (v(30), v(31), s(T_XS, 4), s(t + 3), LDFL))
        e("s_waitcnt vmcnt(0)")
        e("v_xor_b32 %s, %s, %s\nv_cmp_lt_u32 vcc, 0xffff, %s" % (v(30), s(T_TAG), v(30), v(30)))
        e("s_add_u32 %s, %s, 1" % (s(t + 7), s(t + 7)))
        e("s_cmp_ge_u32 %s, 0x40000\ns_cbranch_scc1 DPROBED" % s(t + 7))
        e("s_cmp_lg_u64 vcc, 0\ns_cbranch_scc1 DPROBE")
        e("DPROBED:")
    else:
        e("s_sleep %d" % opt("xslp", 4))
    for x in cond_lines([x for _, x in xloads(m)]): e(x)
    e("s_waitcnt vmcnt(0)\ns_branch XCHK%d" % m)
    e("XOK%d:" % m)
def xsum(e, m, nb):
    o = OWR[m] + 4 * nb
    for i in range(3):
        for k in range(4):
            idx = nb * 4 + k; gi, pos = idx // 7, idx % 7
            src = XR[m] + (i * 3 + gi) * 4 + pos // 2
            e(("v_and_b32 %s, 0xffff0000, %s" if pos & 1 else "v_lshlrev_b32 %s, 16, %s") % (v(20 + 4 * i + k), v(src)))
    for h in range(2):
        e("v_pk_add_f32 %s, %s, %s" % (v(o + 2 * h, 2), v(o + 2 * h, 2), v(20 + 2 * h, 2)))
        e("v_pk_add_f32 %s, %s, %s" % (v(24 + 2 * h, 2), v(24 + 2 * h, 2), v(28 + 2 * h, 2)))
    for h in range(2): e("v_pk_add_f32 %s, %s, %s" % (v(o + 2 * h, 2), v(o + 2 * h, 2), v(24 + 2 * h, 2)))

CV_G, CV_L, CV_X, LROW, L_FIN = 8, 11, 224, 336, 20480
NIN = opt("nin", 6)
OGAP = opt("og", 50)
def gen_t8(e, inner):
    t = S_TMP
    mf = []
    NF = 20 * NSG
    for F in range(NF):
        sg, f = F // 20, F % 20
        m = 0 if sg < NSD else 1
        if opt("t8c", 1):
            j = f & 1; F0 = F - j
            d = v(t8_acc(m, f >> 1, j), 4)
            for i, half in enumerate((0, 1) if j == 0 else (1, 0)):
                mf.append("%s %s, %s, %s, %s" % (MF, d, t8_wf(F0 + half), t8_af(sg, half, j), "0" if (sg in (0, NSD) and i == 0) else d))
            continue
        for j in range(2):
            d = v(t8_acc(m, f % 10, j), 4)
            mf.append("%s %s, %s, %s, %s" % (MF, d, t8_wf(F), t8_af(sg, f // 10, j), "0" if (sg in (0, NSD) and f < 10) else d))
    G = Gaps(mf)
    DA = opt("t8d", 8)
    SIGS = opt("sigs", 3); CKS = opt("cks", 6); PLS = CKS - opt("polld", 1)
    bars = {}
    cur = 0
    for F in range(DA, NF):
        sg, f = F // 20, F % 20
        lo = 2 * (F - DA)
        if f == 0:
            if sg % 3 == 0:
                d = 61440 if sg % 6 == 3 else -61440
                G.place("v", ("v_add_u32 %s, %d, %s" % (v(TV_WR), d, v(TV_WR))) if d > 0 else ("v_subrev_u32 %s, %d, %s" % (v(TV_WR), -d, v(TV_WR))), cur - 1, cur - 1)
            pre = E(); post = E()
            if sg == CKS:
                stamp(pre, 11)
                pre("s_cmp_lg_u32 %s, 0\ns_cbranch_scc1 SPUN_O\ns_waitcnt SINCE{p3}" % s(S_WAVE))
                poll_spin(pre, False, s(K_FLG), 4, "O")
                stamp(post, 12)
            if sg == SIGS:
                W = V_T + 12
                post("ds_read_b128 %s, %s\ns_waitcnt lgkmcnt(0)" % (v(W + 4, 4), v(W + 2)))
                post("v_or3_b32 %s, %s, %s, %s\nv_or_b32 %s, %s, %s\ns_nop 0" % (v(W + 4), v(W + 4), v(W + 5), v(W + 6), v(W + 4), v(W + 4), v(W + 7)))
                post("v_readfirstlane_b32 %s, %s" % (s(t), v(W + 4)))
                post("s_nop 3\ns_andn2_b32 %s, %s, %s" % (s(t), s(t), s(S_RETRY)))
                post("s_cbranch_scc1 ATT_RETRY")
                post("s_cmp_lg_u32 %s, 0\ns_cbranch_scc1 NOSIG3" % s(S_WAVE))
                set_flag(post, 4)
                post("s_cmp_lg_u32 s2, 0\ns_cbranch_scc1 NOSIG3")
                post("s_add_u32 %s, %s, 0x10001\ns_mov_b64 exec, 1\nv_mov_b32 %s, %s\ns_mov_b32 %s, %d" % (s(t + 7), s(S_EPOCH), v(V_PL + 1), s(t + 7), s(t + 6), EP_OFF))
                post("buffer_store_dword %s, off, %s, %s sc1\ns_mov_b64 exec, -1" % (v(V_PL + 1), s(S_FL, 4), s(t + 6)))
                post("NOSIG3:")
                stamp(post, 10)
            if sg == PLS:
                post("s_cmp_lg_u32 %s, 0\ns_cbranch_scc1 NOPOLL3" % s(S_WAVE))
                post(poll_load(False, s(K_FLG)))
                post("NOPOLL3:\nMARK p3")
            b = G.place("b", "\n".join(cond_lines(pre.L) + ["s_barrier"] + cond_lines(post.L)), max(cur, lo - 1))
            lateA = NSD <= sg < NSD + opt("latea", 2) or NPRE_G <= sg < NPRE_G + opt("lateb", 1)
            G.put(b, "s", "s_waitcnt WAITVM{D%d%s%s}" % (sg, "" if lateA else ",A%d" % sg, ",ost" if sg == SIGS else ""))
            if lateA: G.put(40 * sg - 1, "s", "s_waitcnt WAITVM{A%d}" % sg)
            bars[sg] = b; cur = b + 1
        cur = G.place("d", t8_read(F), max(cur, lo)) + 1
    LG = OGAP if opt("ldel", 1) and inner else 0
    if inner:
        body, fin = inner
        free = [g for g in range(OGAP) if g not in bars.values()]
        for i, x in enumerate(body):
            g = free[(i * len(free)) // len(body)]
            G.va[g].append(x); G.used[g] = 2
        g = OGAP + 8
        while g in bars.values(): g += 1
        G.va[g].append("\n".join(fin)); G.used[g] = 2
        assert g + 16 < bars[SIGS], "retry flag must be written (and waited for) before the deciding barrier"
    qw = [(t8_w(sg), bars[sg - RW8 + 2] if sg >= RW8 else LG, sg) for sg in range(max(NPRE_G, NWP), NSG)]
    qa = [(t8_a(sg), max(40 * (sg - RA8 + 1) if sg >= RA8 else 0, bars[CKS] if sg >= NSD else LG), sg) for sg in range(NPRE_G, NSG)]
    DP = opt("dpub", 1)
    side = []
    if DP:
        side.append((publish(0), 40 * NSD + 8 + opt("dpd", 8)))
        side.append((xloads(0), 40 * opt("dld", 20)))
    if COAL:
        seq = []
        for i in range(3):
            seq += [("v", "v_add_u32 %s, %d, %s" % (v(CV_G + i), 64 * i, v(V_LANE))), ("v", "v_mul_u32_u24 %s, 6554, %s" % (v(36), v(CV_G + i))), ("v", "v_lshrrev_b32 %s, 16, %s" % (v(36), v(36))),
                    ("v", "v_lshlrev_b32 %s, 5, %s" % (v(CV_L + i), v(CV_G + i))), ("v", "v_mad_u32_u24 %s, %s, %d, %s" % (v(CV_L + i), v(36), LROW - 320, v(CV_L + i))),
                    ("v", "v_mul_u32_u24 %s, 1120, %s" % (v(36), v(36))), ("v", "v_lshl_add_u32 %s, %s, 4, %s" % (v(CV_G + i), v(CV_G + i), v(36))),
                    ("m", "buffer_load_dwordx4 %s, %s, %s, 0 offen ;#xx" % (v(CV_X + 4 * i, 4), v(CV_G + i), s(K_SX, 4)))]
        side.append((seq, 40 * opt("xld", 19)))
    else:
        side.append(([("m", "buffer_load_dwordx2 %s, %s, %s, 0 offen offset:%d ;#xx" % (v(KV_X + 2 * nb, 2), v(KV_XO), s(K_SX, 4), nb * 32)) for nb in range(5)], 40 * opt("xld", 19)))
    if opt("ct3", 12):
        side.append(([("s", "s_getpc_b64 %s\nCODE4:\ns_add_u32 %s, %s, K_END-CODE4-8192\ns_addc_u32 %s, %s, 0" % (s(t + 4, 2), s(t + 4), s(t + 4), s(t + 5), s(t + 5))),
                      ("s", "s_lshr_b32 %s, s2, 3\ns_lshl2_add_u32 %s, %s, %s" % (s(t), s(t), s(t), s(S_WAVE))), ("s", "s_min_u32 %s, %s, 63\ns_lshl_b32 %s, %s, 7" % (s(t), s(t), s(t), s(t))),
                      ("v", "v_mov_b32 %s, %s" % (v(37), s(t))),
                      ("m", "global_load_dword %s, %s, %s" % (v(V_DUMP), v(37), s(t + 4, 2)))], 40 * opt("ct3", 12)))
    side.sort(key=lambda x: x[1])
    MG = opt("mg", 4)
    g = 0; lastm = -9
    while qw or qa:
        c = [x for x in (qw, qa) if x]
        c.sort(key=lambda x: (max(x[0][1], g), x[0][2]))
        seq, lo, sg_ = c[0].pop(0)
        g = max(g, lo)
        for k, x in seq:
            mg = opt("mgf", 4) if bars[sg_] - g < opt("mgl", 0) else MG
            g = G.place(k, x, max(g + 1, lastm + mg if k == "m" else 0))
            if k == "m": lastm = g
        if VERBOSE: print("la", sg_, "W" if " lds" in seq[-1][1] else "A", bars[sg_] - g, end="; ")
    for seq, lo in side:
        g = lo; lastm = -99
        for k, x in seq:
            g = G.place(k, x, max(g + (0 if k == "v" else 1), lastm + (opt("smg", 16) if "xst" in x else 6) if k == "m" else 0))
            if k == "m": lastm = g
        if "xst0" in seq[-1][1]:
            G.va[g + 1].append("\n".join(own_write(0))); pubend = g + 1
    if DP: assert pubend < 40 * opt("dld", 20) - 40
    auto_lgkm(G, eager=opt("eag", 8))
    if VERBOSE: print("t8", G.pattern())
    for F in range(DA): e(t8_read(F))
    e("s_waitcnt lgkmcnt(0)")
    nm = 0
    for x in G.lines():
        if x.startswith("v_mfma"):
            if nm == 40 * NSD: stamp(e, 13)
            if STAMPS and opt("t8st", 0) and nm > 40 * NSD and (nm - 40 * NSD) % 160 == 0: stamp(e, 25 + (nm - 40 * NSD) // 160)
            nm += 1
        e(x)

def gen_tail(e0, head):
    head, neg = head
    e = E(); e.ext(head)
    T = V_T; t = S_TMP
    stamp(e, 8)
    C = 252
    W = T + 12
    wq = [x for sg in range(NPRE_X, NPRE_G) for x in (t8_w(sg) if sg >= NWP else []) + t8_a(sg)]
    def wsome(n):
        while wq and n > 0:
            k, x = wq.pop(0); n -= (k == "m")
            e(x + ("\ns_nop 0" if k == "s" else ""))
    wsome(opt("wpre", 0))
    pro, grp = o_ops()
    body = []
    for i in range(neg, 16):
        blk = i < 16 - NIN
        if i == 8: (e.L if blk else body).extend(pro[1])
        for x in grp(i, blk):
            if blk: e(x)
            else: body.append(x)
    wsome(99)
    f = E()
    f("v_cmp_u_f32 vcc, %s, %s" % (v(T + 8), v(C)))
    f("s_cmp_lg_u64 vcc, 0\ns_cselect_b32 %s, 1, 0" % s(t))
    f("v_mov_b32 %s, %s" % (v(W), s(t)))
    f("s_lshl_b32 %s, %s, 2\ns_add_u32 %s, %s, %d" % (s(t + 1), s(S_WAVE), s(t + 1), s(t + 1), L_MISC))
    f("v_mov_b32 %s, %s\nv_mov_b32 %s, %d" % (v(W + 1), s(t + 1), v(W + 2), L_MISC))
    f("ds_write_b32 %s, %s" % (v(W + 1), v(W)))
    if not body:
        e("s_nop 7"); e.ext(f.L)
    e("s_waitcnt WAITVM{D0,A0} lgkmcnt(0)")
    e("s_cmp_lg_u32 %s, 0\ns_cbranch_scc1 SPUN_EARLY3" % s(S_WAVE))
    w0 = E(); poll_spin(w0, True, None, 3, "EARLY3")
    for x in cond_lines(w0.L): e(x)
    e("v_min_u32 %s, 7, %s\nv_lshlrev_b32 %s, %d, %s" % (v(V_PL + 3), v(V_LANE), v(V_PL + 3), FSH, v(V_PL + 3)))
    e("s_barrier")
    stamp(e, 9)
    gen_t8(e, (body, f.L) if body else None)
    stamp(e, 14)
    if REUSE:
        xcheck(e, 0, "s_waitcnt WAITVM{xr0,xx}")
        e("s_barrier")
        e("s_xor_b32 %s, %s, 0x80000000\nv_mov_b32 %s, %s" % (s(T_TAG), s(T_TAG), v(TV_TAG), s(T_TAG)))
    else:
        e("s_nop 6")
    if opt("skp", 1):
        pb = publish(1); half = len(pb) // 2
        ow = own_write(1)
        for ch in range(2):
            e("s_cmp_eq_u32 %s, 0x1000000\ns_cbranch_scc1 NOPUB%d" % (s(T_XO + ch), ch))
            for x in cond_lines([x for k, x in pb[ch * half:(ch + 1) * half]]): e(x)
            e("NOPUB%d:" % ch)
    else:
        for k, x in publish(1): e(x)
    stamp(e, 23)
    for x in own_write(1): e(x)
    e("v_add_u32 %s, %d, %s" % (v(52), L_OWN[0], v(TV_OR)))
    if REUSE:
        for i in range(3):
            e("s_and_b32 %s, s2, 3\ns_xor_b32 %s, %s, %d\ns_sub_u32 %s, %s, %s\ns_mul_i32 %s, %s, %d\ns_add_u32 %s, %s, %s\ns_add_u32 %s, %s, %d" % (
                s(t), s(t + 1), s(t), i + 1, s(t), s(t + 1), s(t), s(t), s(t), 3 * XPB, s(t), s(t), s(T_XO + 2), s(T_SL + i), s(t), i * XPB))
    e("s_waitcnt lgkmcnt(0)")
    e("s_barrier")
    for nb in range(5): e("ds_read_b128 %s, %s offset:%d" % (v(OWR[0] + 4 * nb, 4), v(52), nb * 1024))
    for nb in range(5): e("ds_read_b128 %s, %s offset:%d" % (v(OWR[1] + 4 * nb, 4), v(TV_OR), L_OWN[1] + nb * 1024))
    if REUSE: e("s_waitcnt lgkmcnt(0)")
    else: xcheck(e, 0, "s_waitcnt WAITVM{xr0,xx} lgkmcnt(0)")
    GG = 100; XU = 204
    e("v_mov_b32 %s, %s" % (v(36), f2u(1.0 / DSC)))
    MP0, MP1 = opt("mp0", 2), opt("mp1", 9)
    e("v_mov_b32 %s, %s\nv_writelane_b32 %s, %s, 0\nv_writelane_b32 %s, %s, 1\ns_movk_i32 %s, %d\ns_mov_b32 %s, 0" % (v(38), s(T_SL + 2), v(38), s(T_SL), v(38), s(T_SL + 1), s(t + 4), 2048 + 1008 + 12, s(t + 5)))
    PLD = "@buffer_load_dword %s, %s, %s, %s offen%s" % (v(37), v(38), s(T_XS, 4), s(t + 4), LDFL)
    for nb in range(5):
        if nb == MP0 and MP1 < 9: e(PLD)
        if nb == MP1:
            e("s_waitcnt vmcnt(0)")
            e("v_xor_b32 %s, %s, %s\nv_cmp_lt_u32 vcc, 0xffff, %s" % (v(37), s(T_TAG), v(37), v(37)))
            e("s_cmp_lg_u64 vcc, 0\ns_cbranch_scc1 NOEARLY")
            for x in cond_lines([x for _, x in xloads(1)]): e(x)
            e("s_mov_b32 %s, 1\nNOEARLY:" % s(t + 5))
        d = OWR[0] + 4 * nb; gq = GG + 4 * nb
        xsum(e, 0, nb)
        for k in range(4): e("v_mul_f32 %s, %s, %s" % (v(gq + k), f2u(-math.log2(math.e) * DSC), v(d + k)))
        for k in range(4): e("v_exp_f32 %s, %s" % (v(gq + k), v(gq + k)))
        e("s_nop 0")
        for k in range(4): e("v_fma_f32 %s, %s, %s, %s" % (v(gq + k), v(gq + k), v(36), v(36)))
        for k in range(4): e("v_rcp_f32 %s, %s" % (v(gq + k), v(gq + k)))
        if not COAL:
            for h in range(2):
                e("v_lshlrev_b32 %s, 16, %s" % (v(XU + 4 * nb + 2 * h), v(KV_X + 2 * nb + h)))
                e("v_and_b32 %s, 0xffff0000, %s" % (v(XU + 4 * nb + 2 * h + 1), v(KV_X + 2 * nb + h)))
        else: e("s_nop 0")
        for k in range(4): e("v_mul_f32 %s, %s, %s" % (v(gq + k), v(gq + k), v(d + k)))
    if COAL:
        XU = 128
        for i in range(12):
            e("v_lshlrev_b32 %s, 16, %s\nv_and_b32 %s, 0xffff0000, %s" % (v(XU + 2 * i), v(CV_X + i), v(XU + 2 * i + 1), v(CV_X + i)))
        e("s_mul_i32 %s, %s, %d\ns_add_u32 %s, %s, %d" % (s(t), s(S_WAVE), 20 * LROW, s(t), s(t), L_FIN))
        e("v_and_b32 %s, 15, %s\nv_mul_u32_u24 %s, %d, %s\nv_lshrrev_b32 %s, 4, %s\nv_lshl_add_u32 %s, %s, 4, %s\nv_add_u32 %s, %s, %s" % (v(14), v(V_LANE), v(14), LROW, v(14), v(15), v(V_LANE), v(14), v(15), v(14), v(14), s(t), v(14)))
        for i in range(3): e("v_add_u32 %s, %s, %s" % (v(CV_L + i), s(t), v(CV_L + i)))
    stamp(e, 24)
    e("s_mov_b32 %s, 0" % s(t + 7))
    e("s_cmp_lg_u32 %s, 0\ns_cbranch_scc1 LOADED" % s(t + 5))
    e("PROBE:")
    e(PLD)
    e("s_waitcnt vmcnt(0)")
    e("v_xor_b32 %s, %s, %s\nv_cmp_lt_u32 vcc, 0xffff, %s" % (v(37), s(T_TAG), v(37), v(37)))
    e("s_add_u32 %s, %s, 1" % (s(t + 7), s(t + 7)))
    e("s_cmp_eq_u64 vcc, 0\ns_cbranch_scc1 PROBED")
    e("s_cmp_ge_u32 %s, 0x40000\ns_cbranch_scc1 PROBED" % s(t + 7))
    e("s_sleep %d\ns_branch PROBE" % opt("pslp", 12))
    e("PROBED:")
    for k, x in xloads(1): e(x)
    e("LOADED:")
    xcheck(e, 1, "s_waitcnt vmcnt(0)")
    stamp(e, 25)
    OFL = opt("ofl", "_sc1").replace("_", " ")
    for nb in range(5):
        o = OWR[1] + 4 * nb; gq = GG + 4 * nb; xu = XU + 4 * nb
        xsum(e, 1, nb)
        if COAL:
            for h in range(2): e("v_pk_mul_f32 %s, %s, %s" % (v(o + 2 * h, 2), v(o + 2 * h, 2), v(gq + 2 * h, 2)))
            e("ds_write_b128 %s, %s offset:%d" % (v(14), v(o, 4), nb * 64))
            continue
        for r in range(4): e("v_fma_f32 %s, %s, %s, %s" % (v(xu + r), v(o + r), v(gq + r), v(xu + r)))
        for h in range(2): e("v_cvt_pk_bf16_f32 %s, %s, %s" % (v(gq + h), v(xu + 2 * h), v(xu + 2 * h + 1)))
        e("buffer_store_dwordx2 %s, %s, %s, 0 offen offset:%d%s" % (v(gq, 2), v(KV_XO), s(K_SO, 4), nb * 32, OFL))
    if COAL:
        for i in range(3):
            for h in range(2): e("ds_read_b128 %s, %s offset:%d" % (v(64 + 8 * i + 4 * h, 4), v(CV_L + i), 16 * h))
        for i in range(3):
            e("s_waitcnt lgkmcnt(%d)" % (4 - 2 * i))
            for h in range(4): e("v_pk_add_f32 %s, %s, %s" % (v(64 + 8 * i + 2 * h, 2), v(64 + 8 * i + 2 * h, 2), v(XU + 8 * i + 2 * h, 2)))
            for h in range(4): e("v_cvt_pk_bf16_f32 %s, %s, %s" % (v(100 + 4 * i + h), v(64 + 8 * i + 2 * h), v(65 + 8 * i + 2 * h)))
            e("buffer_store_dwordx4 %s, %s, %s, 0 offen%s" % (v(100 + 4 * i, 4), v(CV_G + i), s(K_SO, 4), OFL))
    e0.ext([x.lstrip("@") for x in resolve_vm(e.L)])
    e = e0
    stamp(e, 15)
    if STAMPS: e("s_waitcnt vmcnt(0)")
    stamp(e, 16)
    stamp_fin(e)

def gen_kv_addr(e):
    T = V_T + 12; L = V_LANE
    e("s_lshl_b32 %s, %s, 19" % (s(S_TMP), s(S_HEAD)))
    srd(e, S_K, 54, s(S_TMP), 524288)
    srd(e, S_V, 56, s(S_TMP), 524288 + VSH * 8192)
    e("s_sub_u32 %s, %s, %d\ns_subb_u32 %s, %s, 0" % (s(S_V), s(S_V), VSH * 8192, s(S_V + 1), s(S_V + 1)))
    e("v_lshrrev_b32 %s, 4, %s\ns_lshl_b32 %s, %s, 3\nv_add_u32 %s, %s, %s\nv_and_b32 %s, 15, %s" % (v(T), v(L), s(S_TMP), s(S_WAVE), v(T), s(S_TMP), v(T), v(T + 1), v(L)))
    e("v_lshlrev_b32 %s, 8, %s" % (v(T + 2), v(T)))
    for i in range(2):
        e("v_add_u32 %s, %d, %s\nv_and_b32 %s, 15, %s\nv_xor_b32 %s, %s, %s\nv_lshl_add_u32 %s, %s, 4, %s" % (v(T + 3), 4 * i, v(T), v(T + 4), v(T + 3), v(T + 4), v(T + 4), v(T + 1), v(V_KD + i), v(T + 4), v(T + 2)))
        e("v_and_b32 %s, 7, %s\nv_lshlrev_b32 %s, 1, %s\nv_xor_b32 %s, %s, %s\nv_lshl_add_u32 %s, %s, 4, %s" % (v(T + 4), v(T + 3), v(T + 4), v(T + 4), v(T + 4), v(T + 4), v(T + 1), v(V_VD + i), v(T + 4), v(T + 2)))
    e("v_and_b32 %s, 15, %s\nv_lshrrev_b32 %s, 4, %s\nv_xor_b32 %s, %s, %s" % (v(T), v(L), v(T + 1), v(L), v(T + 1), v(T + 1), v(T)))
    e("v_lshlrev_b32 %s, 8, %s\nv_lshl_add_u32 %s, %s, 4, %s" % (v(T), v(T), v(T), v(T + 1), v(T)))
    for sl in range(4): e("v_xor_b32 %s, %d, %s" % (v(V_KA + sl), sl * 64, v(T)))
    e("v_lshrrev_b32 %s, 2, %s\nv_and_b32 %s, 7, %s\nv_lshlrev_b32 %s, 8, %s\nv_lshl_add_u32 %s, %s, 5, %s" % (v(T), v(L), v(T + 1), v(T), v(T), v(T), v(T), v(T + 1), v(T)))
    e("v_and_b32 %s, 3, %s\nv_lshl_add_u32 %s, %s, 3, %s\nv_add_u32 %s, %d, %s" % (v(T + 1), v(L), v(T), v(T + 1), v(T), v(T), L_V, v(T)))
    for db in range(8): e("v_xor_b32 %s, %d, %s" % (v(V_VA + db), db * 32, v(T)))

def gen_retry(e):
    e("ATT_RETRY:")
    e("s_waitcnt vmcnt(0) lgkmcnt(0)\ns_mov_b32 %s, 1\nv_mov_b32 %s, %s" % (s(S_RETRY), v(TV_WR), v(V_L16)))
    gen_kv_addr(e)
    for qb in range(4): e("v_mov_b32 %s, 0xff800000" % v(V_NEGM + 4 * qb))
    e("s_mov_b32 %s, 0" % s(S_KVOFF))
    e("RETRY_LOOP:")
    e("s_barrier")
    e("s_add_u32 m0, %s, %d\ns_nop 0" % (s(S_M0K), L_K))
    e(kv_dma("K", 0)); e(kv_dma("K", 1))
    e("s_waitcnt vmcnt(0)\ns_barrier")
    for kb in range(2):
        for sl in range(4): e(k_read(kb, sl, 0))
    e("s_waitcnt lgkmcnt(0)")
    e.ext(qk_mfmas(0, czero=True))
    e("s_nop 7")
    for qb in range(4):
        b = Sreg(0, qb, 0); m = v(V_NEGM + 4 * qb)
        for k in range(4): e("v_max3_f32 %s, %s, %s, %s" % (m, m, v(b + 2 * k), v(b + 2 * k + 1)))
    e("s_add_u32 %s, %s, 8192\ns_cmp_lt_u32 %s, %d\ns_cbranch_scc1 RETRY_LOOP" % (s(S_KVOFF), s(S_KVOFF), s(S_KVOFF), 64 * 8192))
    e("s_barrier")
    kv_preload(e)
    e("s_barrier")
    for kb in range(2):
        for sl in range(4): e(k_read(kb, sl, 0))
    e.ext(ones_ops(V_T))
    for r in range(128): e("v_accvgpr_write_b32 %s, 0" % a(A_O + r))
    for r in range(8): e("v_mov_b32 %s, 0" % v(V_L + r))
    e("s_waitcnt lgkmcnt(0)")
    e.ext(qk_mfmas(0, czero=True))
    for kb in range(2):
        for sl in range(4): e(k_read(kb, sl, 8192))
    e("s_branch ATT_START")

def gen_common_setup(e):
    T = V_T + 12; L = V_LANE
    e("s_lshl2_add_u32 %s, %s, %s" % (s(S_TMP + 1), s(S_QT), s(S_WAVE)))
    e("s_mul_i32 %s, %s, %d" % (s(S_TMP), s(S_TMP + 1), AFS))
    srd(e, S_AF, ptr(11), s(S_TMP), NSLAB * 4096)
    e("s_mul_i32 %s, %s, %d\ns_add_u32 %s, %s, %d" % (s(S_TMP), s(S_TMP + 1), 20 * 4096, s(S_TMP), s(S_TMP), XF_OFF))
    srd(e, S_X, ptr(11), s(S_TMP), 20 * 4096)
    e("s_mov_b64 %s, %s\ns_mov_b64 %s, %s" % (s(54, 2), s(ptr(1), 2), s(56, 2), s(ptr(2), 2)))
    e("v_bfe_u32 %s, %s, 2, 2\nv_lshrrev_b32 %s, 4, %s\nv_and_b32 %s, 3, %s" % (v(T), v(L), v(T + 1), v(L), v(T + 2), v(L)))
    e("v_lshlrev_b32 %s, 12, %s" % (v(T + 3), v(T + 1)))
    e("v_mul_u32_u24 %s, 320, %s\nv_add_u32 %s, %s, %s\nv_lshl_add_u32 %s, %s, 4, %s" % (v(T + 4), v(T), v(T + 4), v(T + 4), v(T + 3), v(T + 4), v(T + 2), v(T + 4)))
    for sl in range(4): e("v_xor_b32 %s, %d, %s" % (v(V_AQ + sl), sl * 64, v(T + 4)))
    e("v_lshl_add_u32 %s, %s, 7, %s\nv_lshl_add_u32 %s, %s, 3, %s" % (v(T + 4), v(T), v(T + 3), v(T + 4), v(T + 2), v(T + 4)))
    e("v_bfe_u32 %s, %s, 3, 2\nv_lshl_add_u32 %s, %s, 5, %s" % (v(T + 5), v(L), v(T + 4), v(T + 5), v(T + 4)))
    for u in range(4): e("v_xor_b32 %s, %d, %s" % (v(V_AG + u), u * 32, v(T + 4)))
    gen_kv_addr(e)

def gen_w_setup(e):
    T = V_T + 12; L = V_LANE
    e("v_lshrrev_b32 %s, 4, %s\nv_lshlrev_b32 %s, 2, %s\nv_and_b32 %s, 15, %s\nv_xor_b32 %s, %s, %s" % (v(T), v(L), v(T + 1), v(T), v(T + 2), v(L), v(T + 1), v(T + 1), v(T + 2)))
    e("v_lshlrev_b32 %s, 13, %s\nv_lshl_add_u32 %s, %s, 4, %s" % (v(T), v(T), v(V_WD), v(T + 1), v(T)))
    e("v_add_u32 %s, %d, %s" % (v(V_WD + 1), 4 * 8192 - 1024, v(V_WD)))
    e("v_lshrrev_b32 %s, 3, %s\nv_bfe_u32 %s, %s, 4, 1\nv_lshlrev_b32 %s, 1, %s" % (v(T), v(L), v(T + 1), v(L), v(T + 1), v(T + 1)))
    e("s_and_b32 %s, %s, 1\ns_lshl_b32 %s, %s, 2\nv_or_b32 %s, %s, %s" % (s(S_TMP), s(S_WAVE), s(S_TMP), s(S_TMP), v(T + 1), s(S_TMP), v(T + 1)))
    e("v_and_b32 %s, 7, %s\nv_xor_b32 %s, %s, %s" % (v(T + 2), v(L), v(T + 1), v(T + 1), v(T + 2)))
    e("v_mul_u32_u24 %s, 3456, %s\nv_lshl_add_u32 %s, %s, 4, %s" % (v(T), v(T), v(V_WD + 2), v(T + 1), v(T)))
    e("s_lshl_b32 %s, %s, 8\ns_sub_u32 %s, %d, %s" % (s(S_TMP), s(S_HEAD), s(S_TMP + 1), 640 * 8192, s(S_TMP)))
    srd(e, S_WQ, ptr(3), s(S_TMP), s(S_TMP + 1))
    for (d, p, sh) in ((S_WG, 6, 2048), (S_WU, 7, 3072)):
        e("s_lshl_b32 %s, %s, 7\ns_sub_u32 %s, %d, %s" % (s(S_TMP), s(S_FS), s(S_TMP + 1), 640 * 3456 + sh, s(S_TMP)))
        e("s_cmp_lt_u32 %s, 27\ns_cselect_b32 %s, %s, 0" % (s(S_FS), s(S_TMP + 1), s(S_TMP + 1)))
        srd(e, d, ptr(p), s(S_TMP), s(S_TMP + 1))
        e("s_sub_u32 %s, %s, %d\ns_subb_u32 %s, %s, 0" % (s(d), s(d), sh, s(d + 1), s(d + 1)))

def gen_kernel(e, name):
    T = V_T; L = V_LANE
    e(".text\n.globl %s\n.p2align 8\n.type %s,@function\n%s:" % (name, name, name))
    if STAMPS: e("s_memrealtime s[96:97]")
    e("s_cmp_ge_u32 s2, 256\ns_cbranch_scc1 K_END")
    e("s_load_dwordx8 %s, s[0:1], 0\ns_load_dwordx8 %s, s[0:1], 32\ns_load_dwordx8 %s, s[0:1], 64" % (s(S_PTR, 8), s(S_PTR + 8, 8), s(S_PTR + 16, 8)))
    TLB = opt("tlb", 0)
    if TLB:
        e("s_bfe_u32 s4, s2, 0x30003\ns_lshl_b32 s5, s4, 2\ns_lshr_b32 s6, 0x021bb763, s5\ns_and_b32 s6, s6, 15\ns_lshl_b32 s6, s6, 3\ns_load_dwordx2 s[8:9], s[0:1], s6")
        e("s_lshr_b32 s6, 0x10000112, s5\ns_and_b32 s6, s6, 15\ns_lshr_b32 s7, s2, 6\ns_min_u32 s6, s6, s7\ns_lshl_b32 s6, s6, 21")
        e("s_cmp_eq_u32 s4, 3\ns_cselect_b32 s6, 0x2000000, s6\ns_cmp_eq_u32 s4, 4\ns_cselect_b32 s6, 0x23f0000, s6")
        e("s_and_b32 s7, s2, 7\ns_lshl_b32 s7, s7, 21\ns_sub_u32 s5, s4, 5\ns_cmp_lt_u32 s5, 2\ns_cselect_b32 s6, s7, s6\nv_mov_b32 v9, s6")
    e("v_and_b32 %s, 63, v0\nv_lshrrev_b32 %s, 6, v0\nv_lshlrev_b32 %s, 4, %s\nv_readfirstlane_b32 %s, %s" % (v(L), v(T), v(V_L16), v(L), s(S_WAVE), v(T)))
    e("s_and_b32 %s, s2, 7\ns_lshr_b32 %s, s2, 3\ns_and_b32 %s, %s, 3\ns_lshr_b32 %s, %s, 2" % (s(S_TMP), s(S_TMP + 1), s(S_HL), s(S_TMP + 1), s(S_QT), s(S_TMP + 1)))
    e("s_lshl_b32 %s, %s, 2\ns_add_u32 %s, %s, %s" % (s(S_HEAD), s(S_TMP), s(S_HEAD), s(S_HEAD), s(S_HL)))
    e("s_lshl_b32 %s, %s, 3\ns_add_u32 %s, %s, %s" % (s(S_FS), s(S_HL), s(S_FS), s(S_FS), s(S_TMP)))
    e("s_mov_b32 %s, 0" % s(S_RETRY))
    e("s_lshl_b32 %s, %s, 12\ns_lshl_b32 %s, %s, 11" % (s(S_M0W), s(S_WAVE), s(S_M0K), s(S_WAVE)))
    if STAMPS: e("v_mov_b32 v0, -1\nv_mov_b32 v19, -1")
    stamp(e, 0)
    if STAMPS: e("v_writelane_b32 v19, s96, 40\nv_writelane_b32 v0, s96, 40")
    def codetouch(e):
        e("s_getpc_b64 %s\nCODE0:" % s(S_TMP + 4, 2))
        e("s_lshr_b32 %s, s2, 3\ns_lshl2_add_u32 %s, %s, %s\ns_mul_i32 %s, %s, 640" % (s(S_EVT + 6), s(S_EVT + 6), s(S_EVT + 6), s(S_WAVE), s(S_EVT + 6), s(S_EVT + 6)))
        if opt("cpm", "v") == "s":
            e("s_min_u32 %s, %s, CODE1-CODE0-644\ns_add_u32 %s, %s, %s\ns_addc_u32 %s, %s, 0" % (s(S_EVT + 6), s(S_EVT + 6), s(S_TMP + 4), s(S_TMP + 4), s(S_EVT + 6), s(S_TMP + 5), s(S_TMP + 5)))
            for i in range(10): e("s_load_dword %s, %s, %d" % (s(4 + i), s(S_TMP + 4, 2), 64 * i))
            return
        if opt("cpm", "v") == "h":
            e("v_min_u32 %s, 9, %s\nv_lshlrev_b32 %s, 6, %s\nv_add_u32 %s, %s, %s\nv_min_u32 %s, CODE1-CODE0-4, %s" % (v(8), v(L), v(8), v(8), v(8), s(S_EVT + 6), v(8), v(8), v(8)))
        else:
            e("v_min_u32 %s, 4, %s\nv_lshlrev_b32 %s, 7, %s\nv_add_u32 %s, %s, %s\nv_min_u32 %s, CODE1-CODE0-4, %s" % (v(8), v(L), v(8), v(8), v(8), s(S_EVT + 6), v(8), v(8), v(8)))
        e("global_load_dword %s, %s, %s" % (v(V_PL), v(8), s(S_TMP + 4, 2)))
    CPOS = opt("cpos", 0); WPOS = opt("wpos", 0)
    if CPOS == 0: codetouch(e)
    if CPOS == 9: e("CODE0:")
    gen_ln_loads(e)
    e("s_add_u32 %s, %s, %d\ns_addc_u32 %s, %s, 0\ns_load_dword %s, %s, 0" % (s(S_TMP + 2), s(ptr(11)), FL_OFF + EP_OFF, s(S_TMP + 3), s(ptr(11) + 1), s(S_EPOCH), s(S_TMP + 2, 2)))
    ny = 0
    if opt("tlb", 0) == 2: e("global_load_dword %s, v9, s[8:9]" % v(V_TRA)); ny += 1
    if CPOS == 1: codetouch(e); ny += 1
    gen_w_setup(e)
    e("s_lshl_b32 %s, %s, 16\ns_mul_i32 %s, %s, %d" % (s(S_WQOFF), s(S_WAVE), s(S_WGOFF), s(S_WAVE), 8 * 3456))
    WT = max(opt("wt", 4), 1)
    X = V_TC
    e("s_lshl2_add_u32 %s, %s, %s\ns_add_u32 %s, %s, %d" % (s(S_TMP), s(S_QT), s(S_WAVE), s(S_TMP), s(S_TMP), 32 * NI))
    e("v_lshrrev_b32 %s, 1, %s\nv_min_u32 %s, %d, %s\nv_lshlrev_b32 %s, 5, %s\nv_add_u32 %s, %s, %s" % (v(X), v(L), v(X), WT - 1, v(X), v(X), v(X), v(X), s(S_TMP), v(X)))
    e("v_and_b32 %s, 1, %s\nv_lshlrev_b32 %s, 7, %s\nv_lshl_add_u32 %s, %s, 13, %s\nv_mul_u32_u24 %s, 3456, %s" % (v(X + 1), v(L), v(X + 1), v(X + 1), v(X + 1), v(X), v(X + 1), v(X), v(X)))
    w0 = E(); wt = E()
    for sl in range(NI): w_slab(w0, sl, True)
    wt("buffer_load_dword %s, %s, %s, 0 offen" % (v(V_PL + 1), v(X + 1), s(S_WQ, 4)))
    wt("buffer_load_dword %s, %s, %s, 0 offen offset:2048" % (v(V_PL + 2), v(X), s(S_WG, 4)))
    wt("buffer_load_dword %s, %s, %s, 0 offen offset:3072" % (v(V_DUMP), v(X), s(S_WU, 4)))
    if opt("wt", 4) == 0: wt.L = []
    early = {0: w0.L + wt.L, 1: [], 2: w0.L, 3: w0.L}[WPOS]
    mid = {0: [], 1: w0.L + wt.L, 2: wt.L, 3: []}[WPOS]
    after = wt.L if WPOS == 3 else []
    e.ext(early); ny += sum(x.startswith("buffer") for x in early)
    LATE = opt("late", 2)
    srd(e, S_FL, ptr(11), FL_OFF, EP_OFF + 4096)
    e("s_lshl_b32 %s, %s, 5\ns_add_u32 %s, %s, %s\ns_lshl_b32 %s, %s, %d" % (s(S_MYFL), s(S_QT), s(S_MYFL), s(S_MYFL), s(S_HEAD), s(S_MYFL), s(S_MYFL), FSH))
    e("v_min_u32 %s, 31, %s\nv_lshlrev_b32 %s, %d, %s\ns_lshl_b32 %s, %s, %d" % (v(V_PL + 3), v(L), v(V_PL + 3), FSH, v(V_PL + 3), s(S_XOFF), s(S_QT), FSH + 5))
    def rest():
        gen_common_setup(e)
        for i in range(8): e("v_add_u32 %s, 65536, %s" % (v(V_AHI + i), v(V_AQ + i)))
        if opt("tw2", -1) >= 0:
            t = S_TMP
            e("s_lshr_b32 %s, s2, 3\ns_mul_i32 %s, %s, %d\ns_add_u32 %s, %s, %d\nv_mov_b32 %s, %s" % (s(t), s(t + 1), s(t), AFS, s(t + 1), s(t + 1), NSLAB * 4096, v(V_T2), s(t + 1)))
            e("s_mul_i32 %s, %s, %d\ns_add_u32 %s, %s, %d" % (s(t + 1), s(t), 4 * XGS, s(t + 1), s(t + 1), XP_OFF + 12 * 12288))
            e("s_and_b32 %s, %s, 3\ns_mul_i32 %s, %s, %d\ns_add_u32 %s, %s, %d" % (s(t + 2), s(t), s(t + 2), s(t + 2), WFS, s(t + 2), s(t + 2), WF_OFF + NSLAB * 10240))
            e("s_cmp_lt_u32 %s, 16\ns_cselect_b32 %s, %s, %s\nv_mov_b32 %s, %s" % (s(t), s(t + 1), s(t + 1), s(t + 2), v(V_T2 + 1), s(t + 1)))
            e("s_and_b32 %s, %s, 1\ns_lshl_b32 %s, %s, 21\nv_mov_b32 %s, %s" % (s(t), s(t), s(t), s(t), v(V_T2 + 2), s(t)))
        e("v_mov_b32 %s, %d" % (v(V_ZA), L_MISC + 512))
        for i in range(4): e("v_mov_b32 %s, 0" % v(52 + i))
        e("ds_write_b128 %s, %s" % (v(V_ZA), v(52, 4)))
    stamp(e, 1)
    gen_ln_compute(e, ny, mid)
    e.ext(after)
    stamp(e, 29)
    if LATE == 1: rest()
    e("s_mul_i32 %s, %s, 0x9e3779b1\ns_add_u32 %s, %s, 0x7f4a7c15" % (s(S_TAG), s(S_EPOCH), s(S_TAG), s(S_TAG)))
    e("s_waitcnt vmcnt(%d)\ns_barrier" % len(after))
    stamp(e, 18)
    e("s_cmp_lg_u32 %s, 0\ns_cbranch_scc1 NOFL1" % s(S_WAVE))
    set_flag(e, 1)
    if opt("t2e", 0):
        e("s_branch NOFL2")
    e("NOFL1:")
    if opt("t2e", 0):
        e("s_mov_b32 %s, %d\nbuffer_load_dword %s, %s, %s, %s offen" % (s(S_TMP), WT * 32 * 8192, v(V_DUMP), v(V_TC + 1), s(S_WQ, 4), s(S_TMP)))
        e("s_mov_b32 %s, %d\nbuffer_load_dword %s, %s, %s, %s offen offset:2048" % (s(S_TMP), WT * 32 * 3456, v(V_DUMP), v(V_TC), s(S_WG, 4), s(S_TMP)))
        e("buffer_load_dword %s, %s, %s, %s offen offset:3072" % (v(V_DUMP), v(V_TC), s(S_WU, 4), s(S_TMP)))
        e("NOFL2:")
    for sl in range(NI, NI2): w_slab(e, sl, True)
    if LATE == 2: rest()
    e("s_cmp_lg_u32 %s, 0\ns_cbranch_scc1 SPUN_XN" % s(S_WAVE))
    e(poll_load(False, s(S_XOFF)))
    e("s_waitcnt vmcnt(0)")
    poll_spin(e, False, s(S_XOFF), 1, "XN")
    if NI == 0: e("s_waitcnt vmcnt(%d)" % (4 * (NI2 - 1)))
    if opt("pc0", 2) == 0:
        assert NI2 >= 2
        e("s_waitcnt vmcnt(%d)" % (4 * (NI2 - 2)))
    e("s_barrier")
    stamp(e, 2)
    e("s_cmp_ge_u32 %s, %d\ns_cbranch_scc1 LIGHT" % (s(S_FS), 0 if opt("alll", 0) else 27))
    gen_proj(e, True, "H")
    e("PROJ_DONE:")
    head = gen_attention(e)
    gen_tail(e, head)
    e("K_END:\ns_endpgm")
    gen_events(e)
    gen_retry(e)
    e("LIGHT:")
    gen_proj(e, False, "L")
    e("s_branch PROJ_DONE")
    e("CODE1:")
    e(kd(name))

DOC = """
"""

def main():
    e = E()
    hdr = open("cdna_kernels/%s.s.ref" % NAME).read().split("; Override launch")[0]
    e.L += hdr.strip().split("\n")
    e("; @launch grid=(256,1,1) block=(256,1,1) lds=%d" % LDS_BYTES)
    e.L += DOC.strip().split("\n")
    e('.amdgcn_target "amdgcn-amd-amdhsa--gfx950"')
    gen_kernel(e, NAME + "_kernel")
    t = re.sub(r" ;#\w*", "", e.text()).replace("NVWAIT", str(min(NV01)))
    if VERBOSE: print("NV01", NV01)
    errs = [x for x in asmcheck.check(t, [NAME + "_kernel"]) if x.count("_load_dword v%d," % V_DUMP) != 2 and poll_load(True).split("\n")[-1] not in x]
    if errs:
        print("\n".join(errs[:40])); print(len(errs), "problems")
    import subprocess
    open("_chk.s", "w").write(t)
    subprocess.run(["clang", "-x", "assembler", "-target", "amdgcn-amd-amdhsa", "-mcpu=gfx950", "-c", "_chk.s", "-o", "_chk.o"], check=True)
    sym = {l.split()[-1]: int(l.split()[0], 16) for l in subprocess.run(["llvm-objdump", "-t", "_chk.o"], capture_output=True, text=True).stdout.splitlines() if ".text" in l}
    assert "CODE3" not in sym or sym["CODE3"] + 12288 <= sym["TAILC0"]
    assert "CODE4" not in sym or sym["CODE4"] + 8192 <= sym["K_END"]
    out = [x for x in sys.argv[1:] if x.endswith(".s")]
    open(out[0] if out else "cdna_kernels/%s.s" % NAME, "w").write(t)

if __name__ == "__main__":
    main()
```

```python
import sys, math, os, struct, re
from sched import Gaps, auto_lgkm
import asmcheck

NAME = "recurrent_scan__mha_block_cached__glu_gated_reglu__prompt"
MF = "v_mfma_f32_16x16x32_bf16"
OPT = dict(x.split("=") for x in sys.argv[1:] if "=" in x)
def opt(k, d): return type(d)(OPT.get(k, d))
VERBOSE = "-v" in sys.argv
STAMPS = "--stamps" in sys.argv
STFL = opt("stfl", " sc1").replace("_", " ")
LDFL = opt("ldfl", " sc1").replace("_", " ")

NSLAB = 182
QSC = math.log2(math.e) / math.sqrt(128.0)
DSC = 1.0 / (QSC * QSC)
WF_OFF = 0x1800000
AFS = (NSLAB + 1) * 4096
WFS = NSLAB * 10240 + 4096
XGS = 13 * 12288
XF_OFF = 0x2001000
XP_OFF = 0x2400000
MAXST = 4
FL_OFF = 0x2300000

class E:
    def __init__(self): self.L = []
    def __call__(self, s):
        for x in s.split("\n"):
            x = x.strip()
            if x: self.L.append(x)
    def ext(self, l): self.L += l
    def text(self): return "\n".join(self.L) + "\n"

def v(a, n=1): return "v%d" % a if n == 1 else "v[%d:%d]" % (a, a + n - 1)
def a(a_, n=1): return "a%d" % a_ if n == 1 else "a[%d:%d]" % (a_, a_ + n - 1)
def s(a_, n=1): return "s%d" % a_ if n == 1 else "s[%d:%d]" % (a_, a_ + n - 1)
def f2u(x): return "0x%08x" % struct.unpack("<I", struct.pack("<f", x))[0]

def kd(name, vgpr=512, acc=256):
    return """.section .rodata,"a"
.p2align 6
.amdhsa_kernel %s
  .amdhsa_next_free_vgpr %d
  .amdhsa_next_free_sgpr 102
  .amdhsa_accum_offset %d
  .amdhsa_group_segment_fixed_size 0
  .amdhsa_kernarg_size 96
  .amdhsa_user_sgpr_count 2
  .amdhsa_user_sgpr_kernarg_segment_ptr 1
  .amdhsa_system_sgpr_workgroup_id_x 1
.end_amdhsa_kernel
""" % (name, vgpr, acc)

def stamp(e, i):
    if not STAMPS: return
    e("s_waitcnt lgkmcnt(0)\ns_memtime s[98:99]\ns_memrealtime s[100:101]\ns_waitcnt lgkmcnt(0)")
    e("v_writelane_b32 v0, s98, %d\nv_writelane_b32 v19, s100, %d" % (i, i))
def stamp_fin(e):
    if not STAMPS: return
    if opt("echo", ""):
        i, j = [int(x) for x in opt("echo", "").split(".")]
        e("s_nop 1\nv_readlane_b32 s96, v19, %d\nv_readlane_b32 s97, v19, %d\nv_readlane_b32 s98, v19, 16\ns_nop 3\ns_sub_u32 s96, s97, s96\ns_min_u32 s96, s96, 20000\ns_cmp_%s_u32 %s, 27\ns_cselect_b32 s96, s96, 0" % (i, j, "ge" if opt("el", 0) else "lt", s(S_FS)))
        if opt("ecyc", 0):
            e("v_readlane_b32 s96, v0, %d\nv_readlane_b32 s97, v0, %d\ns_nop 3\ns_sub_u32 s96, s97, s96\ns_lshr_b32 s96, s96, 3\ns_min_u32 s96, s96, 20000\ns_cmp_lt_u32 %s, 27\ns_cselect_b32 s96, s96, 0" % (i, j, s(S_FS)))
            i = 40
        if opt("eneg", 0):
            e("s_cmp_eq_u32 s96, 0\ns_cselect_b32 s96, 3000, s96\ns_min_u32 s96, s96, 3000\ns_sub_u32 s96, 3000, s96")
            i = 40
        if opt("emul", 0): e("s_mul_i32 s96, s96, %d" % opt("emul", 0))
        if opt("eabs", 0): e("v_readlane_b32 s98, v19, %d\ns_add_u32 s96, s96, 10000\ns_nop 3" % i)
        e("ECHO:\ns_sleep 1\ns_memrealtime s[100:101]\ns_waitcnt lgkmcnt(0)\ns_sub_u32 s97, s100, s98\ns_cmp_lt_u32 s97, s96\ns_cbranch_scc1 ECHO")
        return
    if opt("dbgout", -1) >= 0:
        e("s_cmp_lg_u32 s2, %d\ns_cbranch_scc1 NODBG\ns_cmp_lg_u32 %s, 0\ns_cbranch_scc1 NODBG" % (opt("dbgout", -1), s(S_WAVE)))
        e("v_readlane_b32 s98, v19, 0\ns_nop 3\nv_subrev_u32 v18, s98, v19\nv_lshlrev_b32 v20, 2, v1\nv_subrev_u32 v20, 4, v20")
        e("s_mov_b32 s96, %s\ns_mov_b32 s97, %s\ns_mov_b32 s98, 64\ns_mov_b32 s99, 0x20000" % (s(ptr(10)), s(ptr(10) + 1)))
        e("buffer_store_dword v18, v20, s[96:99], 0 offen\ns_waitcnt vmcnt(0)\nNODBG:")
        return
    if opt("wsb", 0): e("s_sub_u32 %s, %s, %d\ns_subb_u32 %s, %s, 0" % (s(ptr(11)), s(ptr(11)), opt("wsb", 0) << 20, s(ptr(11) + 1), s(ptr(11) + 1)))
    e("s_lshl_b32 s98, s2, 2\ns_add_u32 s98, s98, %s\ns_lshl_b32 s98, s98, 9\ns_add_u32 s98, s98, %d" % (s(S_WAVE), 0x4000000))
    e("s_add_u32 s96, %s, s98\ns_addc_u32 s97, %s, 0\ns_mov_b32 s98, 512\ns_mov_b32 s99, 0x20000" % (s(ptr(11)), s(ptr(11) + 1)))
    e("v_mov_b32 v18, v0\nv_lshlrev_b32 v20, 3, v1\nbuffer_store_dwordx2 v[18:19], v20, s[96:99], 0 offen\ns_waitcnt vmcnt(0)")

def srd(e, d, base, off_lo, nbytes):
    e("s_add_u32 %s, %s, %s" % (s(d), s(base), off_lo))
    e("s_addc_u32 %s, %s, 0" % (s(d + 1), s(base + 1)))
    e("s_mov_b32 %s, %s" % (s(d + 2), nbytes))
    e("s_mov_b32 %s, 0x20000" % s(d + 3))

def uncond(x): return False
def resolve_vm(lines):
    out = []; ops = []; waited = set(); lastm0 = None; done = 0; marks = {}
    for x in lines:
        mm = re.search(r"vmcnt\((\d+)\)", x)
        if mm and not x.startswith("@") and uncond(x): done = max(done, len(ops) - int(mm.group(1)))
        if x.startswith(("buffer_", "global_")) and len(ops) - done >= 58:
            out.append("s_waitcnt vmcnt(52)"); done = len(ops) - 52
        if x.startswith("s_add_u32 m0,"): lastm0 = x.split(",")[1].strip()
        if " lds" in x and ";#" in x:
            tg = x.split(";#")[1].strip()
            exp = s(S_M0W) if tg.startswith("w") else (s(S_TRM) if tg == "trs" else s(S_M0K))
            if tg.startswith("D"): exp = s(T_M0W)
            assert lastm0 == exp, "M0 collision at %s" % x
        if x.startswith("MARK"):
            marks[x.split()[1]] = len(ops); continue
        m = re.search(r"SINCE\{(\w+)\}", x)
        if m: x = x.replace(m.group(0), "vmcnt(%d)" % min(63, len(ops) - marks[m.group(1)]))
        m = re.search(r"WAITVM\{([^}]*)\}", x)
        if m:
            need = set(m.group(1).split(","))
            waited |= need
            idx = [i for i, t in enumerate(ops) if t in need]
            n = len(ops) - 1 - max(idx) if idx else 63
            done = max(done, len(ops) - min(n, 63))
            x = x.replace(m.group(0), "vmcnt(%d)" % min(n, 63))
        elif x.startswith(("buffer_", "global_")):
            t = x.split(";#")[1].strip() if ";#" in x else ""
            assert t not in waited, "op %s issued after its wait" % t
            ops.append(t)
        out.append(x)
    return out

S_FL = 4
S_X, S_WQ, S_WG, S_WU, S_K, S_V, S_AF, S_T, S_WF = 8, 12, 16, 20, 24, 28, 32, 36, 40
S_PTR = 44
S_WAVE, S_HEAD, S_QT, S_FS = 68, 69, 70, 71
S_XOFF, S_WQOFF, S_WGOFF, S_M0W = 72, 73, 74, 75
S_KVOFF, S_M0K, S_TOG, S_RETRY = 76, 77, 78, 79
S_TMP = 80
S_TRS, S_TRM, S_TRD, S_TRU = 88, 89, 90, 91
S_EPOCH, S_TAG, S_MYFL = 92, 93, 94
S_HL = 3
S_EVT = 85
def EV(n): return (10 + 2 * n) * 8192
EVT0 = EV(3)
EVTE = (62 + 10) * 8192
NWH = opt("nwh", 0)
S_LN = 84
def ptr(i): return S_PTR + 2 * i

L_K = 0
L_V = 65536
RW = 8
L_TR = 114688
L_MISC = 155648
LDS_BYTES = 163840

V_LANE = 1
V_L16 = 2
V_WD = 3
V_TRA = 6
V_AQ = 10
V_AG = 14
V_KA = 20
V_VA = 24
V_KD = 32
V_VD = 34
V_DUMP = 18
V_SIDX = 7
V_ZA = 6
V_T2 = 40
NL = 2
VSH = 4
NOE = 4
V_PW = 5
PWARM = opt("pw", 0)
V_TC = 62
V_PL = 36
V_T = 40
V_ACCQ = 64
V_ACCG = 192
V_Q = 64
V_S = 128
V_P = 192
V_NEGM = 224
V_L = 240
A_ACCU = 0
XD = 8
A_X = 64
A_W = 192
A_TR = 208
V_ONE = 56
A_O = 64
A_KF = 224
A_KF1 = 192
A_VF = 0
V_AHI = 44

def qacc(blk, qb): return (V_S if blk & 1 else V_Q) + ((blk >> 1) * 4 + qb) * 4
def wslot(sl): return (sl + 4) % RW
def accreg(blk, qb):
    if blk < 8: return v(qacc(blk, qb), 4)
    if blk < 12: return v(V_ACCG + ((blk - 8) * 4 + qb) * 4, 4)
    return a(A_ACCU + ((blk - 12) * 4 + qb) * 4, 4)

def w_read(dst, blk, j, rel):
    if blk < 8:
        ar = V_AQ + (blk >> 1); off = rel + j * 1024 + (blk & 1) * 8
    else:
        ar = V_AG + ((blk - 8) & 3); off = rel + 2048 + (1024 if blk >= 12 else 0) + j * 512
    if rel >= 65536: ar += V_AHI - V_AQ; off -= 65536
    assert 0 <= off < 65536
    return "ds_read_b64_tr_b16 %s, %s offset:%d" % (a(dst + 2 * j, 2), v(ar), off)

def w_dma(heavy, tag):
    l = ["buffer_load_dwordx4 %s, %s, %s offen lds ;#%s" % (v(V_WD), s(S_WQ, 4), s(S_WQOFF), tag),
         "buffer_load_dwordx4 %s, %s, %s offen offset:1024 lds ;#%s" % (v(V_WD + 1), s(S_WQ, 4), s(S_WQOFF), tag)]
    if heavy:
        l += ["buffer_load_dwordx4 %s, %s, %s offen offset:2048 lds ;#%s" % (v(V_WD + 2), s(S_WG, 4), s(S_WGOFF), tag),
              "buffer_load_dwordx4 %s, %s, %s offen offset:3072 lds ;#%s" % (v(V_WD + 2), s(S_WU, 4), s(S_WGOFF), tag)]
    return l

def x_load(sl, qb):
    return "buffer_load_dwordx4 %s, %s, %s, %s offen offset:%d%s ;#x%d" % (a(A_X + ((sl % XD) * 4 + qb) * 4, 4), v(V_L16), s(S_X, 4), s(S_XOFF), qb * 1024, LDFL, sl)

def kv_dma(which, i, tag=""):
    vo = (V_KD if which == "K" else V_VD) + i
    return "buffer_load_dwordx4 %s, %s, %s offen offset:%d%s lds ;#%s" % (v(vo), s(S_K if which == "K" else S_V, 4), s(S_KVOFF), 1024 * i, opt("kvfl", "_sc1").replace("_", " "), tag)

FSH = opt("fsh", 7)
EP_OFF = 65536
CF_OFF = EP_OFF + 1024
def set_flag(e, stage):
    if stage in (2, 3) and FSH > 2:
        e("s_add_u32 %s, %s, %d\ns_mov_b64 exec, 1\nv_mov_b32 %s, %s\ns_lshr_b32 %s, %s, %d\ns_add_u32 %s, %s, %d" % (s(S_TMP + 7), s(S_TAG), stage, v(V_PL), s(S_TMP + 7), s(S_TMP + 7), s(S_MYFL), FSH - 2, s(S_TMP + 7), s(S_TMP + 7), CF_OFF))
        e("buffer_store_dword %s, off, %s, %s sc1" % (v(V_PL), s(S_FL, 4), s(S_TMP + 7)))
    elif opt("fwide", 0):
        n = (1 << FSH) // 8
        e("s_add_u32 %s, %s, %d\ns_mov_b64 exec, 0x%x\nv_mov_b32 %s, %s\nv_mov_b32 %s, %s\nv_lshlrev_b32 %s, 3, %s" % (s(S_TMP + 7), s(S_TAG), stage, (1 << n) - 1, v(V_PL), s(S_TMP + 7), v(V_PL + 1), s(S_TMP + 7), v(V_PL + 2), v(V_LANE)))
        e("buffer_store_dwordx2 %s, %s, %s, %s offen sc1" % (v(V_PL, 2), v(V_PL + 2), s(S_FL, 4), s(S_MYFL)))
    else:
        e("s_add_u32 %s, %s, %d\ns_mov_b64 exec, 1\nv_mov_b32 %s, %s" % (s(S_TMP + 7), s(S_TAG), stage, v(V_PL), s(S_TMP + 7)))
        e("buffer_store_dword %s, off, %s, %s sc1" % (v(V_PL), s(S_FL, 4), s(S_MYFL)))
    e("s_mov_b64 exec, -1")

def poll_load(allq, qoff=None):
    if allq and FSH > 2: return "s_mov_b32 %s, %d\nbuffer_load_dwordx4 %s, %s, %s, %s offen sc1" % (s(S_TMP + 1), CF_OFF, v(V_PL, 4), v(V_L16), s(S_FL, 4), s(S_TMP + 1))
    if allq: return "buffer_load_dwordx4 %s, %s, %s, 0 offen sc1" % (v(V_PL, 4), v(V_L16), s(S_FL, 4))
    return "buffer_load_dword %s, %s, %s, %s offen sc1" % (v(V_PL), v(V_PL + 3), s(S_FL, 4), qoff)

def poll_spin(e, allq, qoff, stage, tag):
    e("s_mov_b32 %s, 0\ns_add_u32 %s, %s, %d" % (s(S_TMP + 7), s(S_TMP + 6), s(S_TAG), stage))
    e("SPIN_%s:" % tag)
    n = 4 if allq else 1
    for i in range(n): e("v_subrev_u32 %s, %s, %s" % (v(V_PL + i), s(S_TMP + 6), v(V_PL + i)))
    if allq: e("v_max3_u32 %s, %s, %s, %s\nv_max_u32 %s, %s, %s" % (v(V_PL), v(V_PL), v(V_PL + 1), v(V_PL + 2), v(V_PL), v(V_PL), v(V_PL + 3)))
    e("v_cmp_lt_u32 vcc, %d, %s" % (MAXST - stage, v(V_PL)))
    e("s_add_u32 %s, %s, 1" % (s(S_TMP + 7), s(S_TMP + 7)))
    e("s_cmp_eq_u64 vcc, 0\ns_cbranch_scc1 SPUN_%s" % tag)
    e("s_cmp_ge_u32 %s, 0x40000\ns_cbranch_scc1 SPUN_%s" % (s(S_TMP + 7), tag))
    e("s_sleep %d" % opt("slp", 2))
    e(poll_load(allq, qoff))
    e("s_waitcnt vmcnt(0)\ns_branch SPIN_%s" % tag)
    e("SPUN_%s:" % tag)

def zero_acc(e, heavy=True):
    for r in range(V_ACCQ, 256): e("v_mov_b32 %s, 0" % v(r))
    for r in range(A_ACCU, A_ACCU + 64): e("v_accvgpr_write_b32 %s, 0" % a(r))

NI = opt("ni", 1)
NI2 = max(NI, opt("ni2", 5))

def gen_ln_loads(e):
    T = V_T; L = V_LANE
    R = V_ACCQ
    e("v_bfe_u32 %s, %s, 1, 3\nv_lshrrev_b32 %s, 4, %s\nv_and_b32 %s, 1, %s" % (v(T), v(L), v(T + 1), v(L), v(T + 2), v(L)))
    e("v_mul_u32_u24 %s, 1280, %s\nv_lshl_add_u32 %s, %s, 4, %s\nv_lshl_add_u32 %s, %s, 3, %s" % (v(T + 3), v(T), v(T + 3), v(T + 1), v(T + 3), v(T + 3), v(T + 2), v(T + 3)))
    e("s_lshl_b32 %s, %s, 5\ns_add_u32 %s, %s, %s\ns_mul_i32 %s, %s, %d\ns_mul_i32 %s, %s, 320" % (s(S_TMP), s(S_QT), s(S_TMP), s(S_TMP), s(S_HEAD), s(S_TMP), s(S_TMP), 8 * 1280, s(S_TMP + 1), s(S_WAVE)))
    e("s_waitcnt lgkmcnt(0)")
    if opt("wsb", 0): e("s_add_u32 %s, %s, %d\ns_addc_u32 %s, %s, 0" % (s(ptr(11)), s(ptr(11)), opt("wsb", 0) << 20, s(ptr(11) + 1), s(ptr(11) + 1)))
    if opt("tlb", 0) == 1: e("global_load_dword %s, v9, s[8:9]" % v(V_TRA))
    srd(e, S_T, ptr(0), s(S_TMP), 8 * 1280)
    for i in range(5): e("buffer_load_dwordx2 %s, %s, %s, %s offen offset:%d" % (v(R + 2 * i, 2), v(T + 3), s(S_T, 4), s(S_TMP + 1), 64 * i))

def gen_ln_compute(e, nyounger, mid=()):
    T = V_T; L = V_LANE
    R = V_ACCQ; U = R + 10
    e("v_and_b32 %s, 15, %s\nv_lshlrev_b32 %s, 3, %s\nv_lshl_add_u32 %s, %s, 8, %s" % (v(T + 3), v(L), v(T + 3), v(T + 3), v(T + 3), v(T + 1), v(T + 3)))
    e("s_lshr_b32 %s, %s, 3\ns_lshl2_add_u32 %s, %s, %s\ns_mul_i32 %s, %s, %d" % (s(S_TMP), s(S_HEAD), s(S_TMP), s(S_QT), s(S_TMP), s(S_TMP), s(S_TMP), 20 * 4096))
    e("s_bfe_u32 %s, %s, 0x20001\ns_lshl_b32 %s, %s, 10\ns_add_u32 %s, %s, %s" % (s(S_TMP + 1), s(S_HEAD), s(S_TMP + 1), s(S_TMP + 1), s(S_TMP), s(S_TMP), s(S_TMP + 1)))
    e("s_and_b32 %s, %s, 1\ns_lshl_b32 %s, %s, 7\ns_add_u32 %s, %s, %s\ns_add_u32 %s, %s, %d" % (s(S_TMP + 1), s(S_HEAD), s(S_TMP + 1), s(S_TMP + 1), s(S_TMP), s(S_TMP), s(S_TMP + 1), s(S_TMP), s(S_TMP), XF_OFF))
    srd(e, S_LN, ptr(11), s(S_TMP), 20 * 4096)
    e("s_mul_i32 %s, %s, %d" % (s(S_TMP), s(S_WAVE), 5 * 4096))
    e("v_lshlrev_b32 %s, 5, %s\nv_add_u32 %s, %d, %s\ns_lshl_b32 %s, %s, 3\nv_add_u32 %s, %s, %s" % (v(T + 4), v(T), v(T + 4), L_MISC, v(T + 4), s(S_TMP + 1), s(S_WAVE), v(T + 5), s(S_TMP + 1), v(T + 4)))
    A0 = T + 6; M = T + 8
    e("s_waitcnt vmcnt(%d)" % nyounger)
    stamp(e, 17)
    e.ext(list(mid))
    for d in range(10): e("v_lshlrev_b32 %s, 16, %s\nv_and_b32 %s, 0xffff0000, %s" % (v(U + 2 * d), v(R + d), v(U + 2 * d + 1), v(R + d)))
    e("v_pk_add_f32 %s, %s, %s\nv_pk_add_f32 %s, %s, %s" % (v(A0, 2), v(U, 2), v(U + 2, 2), v(M, 2), v(U + 4, 2), v(U + 6, 2)))
    for d in range(4, 10): e("v_pk_add_f32 %s, %s, %s" % (v((A0, M)[d & 1], 2), v((A0, M)[d & 1], 2), v(U + 2 * d, 2)))
    def reduce(dst):
        e("v_pk_add_f32 %s, %s, %s" % (v(A0, 2), v(A0, 2), v(M, 2) if dst == M else v(T + 10, 2)))
        e("v_add_f32 %s, %s, %s\ns_nop 1" % (v(A0), v(A0), v(A0 + 1)))
        e("v_add_f32_dpp %s, %s, %s quad_perm:[1,0,3,2] row_mask:0xf bank_mask:0xf" % (v(A0), v(A0), v(A0)))
        for sw in ("v_permlane32_swap_b32", "v_permlane16_swap_b32"):
            e("v_mov_b32 %s, %s\ns_nop 1\n%s %s, %s\nv_add_f32 %s, %s, %s" % (v(A0 + 1), v(A0), sw, v(A0), v(A0 + 1), v(A0), v(A0), v(A0 + 1)))
    reduce(M)
    e("v_mul_f32 %s, %s, %s\nv_mul_f32 %s, %s, %s" % (v(M), f2u(-1.0 / 160), v(A0), v(M + 1), f2u(-1.0 / 160), v(A0)))
    for d in range(10): e("v_pk_add_f32 %s, %s, %s" % (v(U + 2 * d, 2), v(U + 2 * d, 2), v(M, 2)))
    e("v_pk_mul_f32 %s, %s, %s\nv_pk_mul_f32 %s, %s, %s" % (v(A0, 2), v(U, 2), v(U, 2), v(T + 10, 2), v(U + 2, 2), v(U + 2, 2)))
    for d in range(2, 10): e("v_pk_fma_f32 %s, %s, %s, %s" % (v((A0, T + 10)[d & 1], 2), v(U + 2 * d, 2), v(U + 2 * d, 2), v((A0, T + 10)[d & 1], 2)))
    reduce(None)
    e("v_mov_b32 %s, %s" % (v(M + 1), v(A0)))
    e("ds_write_b64 %s, %s\ns_waitcnt lgkmcnt(0)\ns_barrier" % (v(T + 5), v(M, 2)))
    X = T + 12
    e("ds_read_b128 %s, %s\nds_read_b128 %s, %s offset:16\ns_waitcnt lgkmcnt(0)" % (v(X, 4), v(T + 4), v(X + 4, 4), v(T + 4)))
    e("v_pk_add_f32 %s, %s, %s\nv_pk_add_f32 %s, %s, %s\nv_pk_add_f32 %s, %s, %s" % (v(A0, 2), v(X, 2), v(X + 2, 2), v(T + 10, 2), v(X + 4, 2), v(X + 6, 2), v(A0, 2), v(A0, 2), v(T + 10, 2)))
    e("v_mul_f32 %s, 0.25, %s" % (v(A0), v(A0)) if False else "v_mul_f32 %s, %s, %s" % (v(A0), f2u(0.25), v(A0)))
    for k in range(4): e("v_sub_f32 %s, %s, %s" % (v(X + 2 * k), v(X + 2 * k), v(A0)))
    e("v_mul_f32 %s, %s, %s" % (v(X + 1), v(X), v(X)))
    for k in range(1, 4): e("v_fmac_f32 %s, %s, %s" % (v(X + 1), v(X + 2 * k), v(X + 2 * k)))
    e("v_fmac_f32 %s, %s, %s" % (v(A0 + 1), f2u(160.0), v(X + 1)))
    e("v_mov_b32 %s, %s\nv_fmac_f32 %s, %s, %s\nv_rsq_f32 %s, %s" % (v(X), f2u(1e-5 * DSC), v(X), f2u(DSC / 640), v(A0 + 1), v(X), v(X)))
    e("v_sub_f32 %s, %s, %s" % (v(M), v(A0), v(M)))
    e("v_mov_b32 %s, %s\nv_mul_f32 %s, %s, %s\nv_mul_f32 %s, %s, %s" % (v(X + 1), v(X), v(M + 1), v(M), v(X), v(M), v(M), v(X)))
    for i in range(5):
        for d in (2 * i, 2 * i + 1): e("v_pk_fma_f32 %s, %s, %s, %s" % (v(U + 2 * d, 2), v(U + 2 * d, 2), v(X, 2), v(M, 2)))
        for d in (2 * i, 2 * i + 1): e("v_cvt_pk_bf16_f32 %s, %s, %s" % (v(R + d), v(U + 2 * d), v(U + 2 * d + 1)))
        e("buffer_store_dwordx2 %s, %s, %s, %s offen%s" % (v(R + 2 * i, 2), v(T + 3), s(S_LN, 4), s(S_TMP), STFL))
        if i < 4: e("s_add_u32 %s, %s, 4096" % (s(S_TMP), s(S_TMP)))

def w_slab(e, sl, heavy):
    e("s_add_u32 m0, %s, %d\ns_nop 0" % (s(S_M0W), wslot(sl) * 16384))
    e.ext(w_dma(heavy, "w%d" % sl))
    e("s_add_u32 %s, %s, %d\ns_add_u32 %s, %s, %d" % (s(S_WQOFF), s(S_WQOFF), 32 * 8192, s(S_WGOFF), s(S_WGOFF), 32 * 3456))

def ones_ops(tmp):
    L = V_LANE
    return ["v_lshrrev_b32 %s, 4, %s" % (v(tmp), v(L)), "v_xor_b32 %s, %s, %s" % (v(tmp), v(tmp), v(L)), "v_bfe_u32 %s, %s, 1, 1" % (v(tmp), v(tmp)),
            "v_subrev_u32 %s, 1, %s" % (v(tmp), v(tmp)), "v_and_b32 %s, 0x3f803f80, %s" % (v(tmp), v(tmp))] + \
           ["v_mov_b32 %s, %s" % (v(V_ONE + r), v(tmp)) for r in range(4)] + \
           ["v_and_b32 %s, 1, %s" % (v(V_SIDX), v(L)), "v_mul_u32_u24 %s, 0xaaaa, %s" % (v(V_SIDX), v(V_SIDX)), "v_or_b32 %s, 0x4444, %s" % (v(V_SIDX), v(V_SIDX))]

NV01 = []
def gen_proj(e0, heavy, tag):
    e = E()
    T = V_T; L = V_LANE
    NS = opt("ns", 4) if heavy else 0
    GU = [b for fb in range(4) for b in (12 + fb, 8 + fb)]
    PC0 = opt("pc0", 2) if heavy else opt("lpc0", 4)
    def grp(lo, hi):
        out = []; sl = lo
        while sl < hi:
            if sl >= PC0 and sl + 1 < hi: out.append((sl, sl + 1)); sl += 2
            else: out.append((sl,)); sl += 1
        return out
    units = []
    for ss in grp(0, 20 - NS): units.append((ss, list(range(8)) + (GU if heavy else [])))
    for part in {0: (GU,), 1: (GU[:4], GU[4:]), 2: (GU[:2], GU[2:4], GU[4:6], GU[6:])}[opt("split", 2)]:
        for ss in grp(20 - NS, 20): units.append((ss, part))
    for ss in grp(20 - NS, 20): units.append((ss, list(range(8))))
    order = []; mf = []; firstuse = []
    for ss, bl in units:
        for b in bl:
            F0 = len(order)
            for sl in ss: order.append((sl, b)); firstuse.append(4 * F0)
            for qb in (range(4) if (not opt("psn", 1) or (F0 // len(ss)) % 2 == 0) else range(3, -1, -1)):
                idx = list(range(len(ss)))
                if qb & 1: idx.reverse()
                for i in idx:
                    sl = ss[i]
                    c = "0" if (0 in ss and i == idx[0]) else accreg(b, qb)
                    mf.append("%s %s, %s, %s, %s" % (MF, accreg(b, qb), a(A_W + 4 * ((F0 + i) % 8), 4), a(A_X + ((sl % XD) * 4 + qb) * 4, 4), c))
    NF = len(order)
    NP = len(mf)
    for sl in range(4):
        for kb in range(2):
            for qb in range(4):
                d = v(Sreg(0, qb, kb), 4)
                mf.append("%s %s, %s, %s, %s" % (MF, d, a(A_KF + (kb * 4 + sl) * 4, 4), v(V_Q + (sl * 4 + qb) * 4, 4), d if sl else "0"))
    G = Gaps(mf)
    ustart = []; n = 0
    for ss, bl in units: ustart.append(n); n += len(bl) * len(ss)
    lastF = {}; lastblk = {}; firstF = {}
    for u, (ss, bl) in enumerate(units):
        for k, sl in enumerate(ss):
            lastF[sl] = ustart[u] + len(bl) * len(ss) - 1
            firstF.setdefault(sl, ustart[u] + k * len(bl))
        for i, b in enumerate(bl): lastblk[b] = ustart[u] + (i + 1) * len(ss) - 1
    G1 = lambda sl: 4 * firstF[sl]
    DA = opt("pda", 6)
    rd = lambda F, j: w_read(A_W + 4 * (F % 8), order[F][1], j, wslot(order[F][0]) * 16384)
    pre_reads = [rd(F, j) for F in range(DA) for j in range(2)]
    TRW = opt("trw", 15) if heavy else 14
    bars = {}; cur = 0; seen = set(units[0][0])
    def barrier(u, lo, need):
        bb = G.place("b", "s_barrier", lo)
        G.put(bb, "s", "s_waitcnt WAITVM{%s}" % ",".join(need))
        bars[u] = bb
        return bb + 1
    for F in range(DA, NF):
        lo = 4 * (F - DA)
        if F in ustart:
            u = ustart.index(F)
            need = [k + str(sl) for sl in units[u][0] if sl not in seen for k in "xw"]
            seen |= set(units[u][0])
            if need or units[u][1][0] == 0: cur = barrier(u, max(cur, lo - 1), need or ["none"])
        if (opt("midb", 0) or F - DA - 1 == ustart[-1]) and (F - DA - 1) in ustart and len(units[ustart.index(F - DA - 1)][0]) == 2 and units[ustart.index(F - DA - 1)][1][0] == 0:
            cur = barrier(1000 + F, max(cur, lo - 1), ["none"])
        for j in range(2): cur = G.place("d", rd(F, j), max(cur, lo + 2 * j), firstuse[F] - 6) + 1
    NU = len(units)
    cur = barrier(NU, cur + 1, ["K0", "K1"])
    kord = [(kb, sl) for sl in range(4) for kb in range(2)]
    for kb, sl in kord: cur = G.place("d", k_read(kb, sl, 0), cur) + 1
    barrier(NU + 1, max(cur + 5, NP), ["none"])
    kpost = []
    for i, (kb, sl) in enumerate(kord):
        lo = NP + 4 * i + 3
        try: cur = G.place("d", k_read(kb, sl, 8192), max(cur, lo)) + 1
        except RuntimeError: kpost.append(k_read(kb, sl, 8192))
    freeg = lambda sl: min(x for x in bars.values() if x >= 4 * lastF[sl])
    def wseq(sl):
        return [("s", "s_add_u32 m0, %s, %d" % (s(S_M0W), wslot(sl) * 16384))] + [("m", x) for x in w_dma(heavy, "w%d" % sl)] + \
               [("s", "s_add_u32 %s, %s, %d\ns_add_u32 %s, %s, %d" % (s(S_WQOFF), s(S_WQOFF), 32 * 8192, s(S_WGOFF), s(S_WGOFF), 32 * 3456))]
    def xseq(sl): return [("m", x_load(sl, qb)) for qb in range(4)] + [("s", "s_add_u32 %s, %s, 4096" % (s(S_XOFF), s(S_XOFF)))]
    def kvseq(which, i):
        return [("s", "s_add_u32 m0, %s, %d\ns_mov_b32 %s, %d" % (s(S_M0K), (L_K if which == "K" else L_V) + i * 8192, s(S_KVOFF), (i + (VSH if which == "V" else 0)) * 8192))] + \
               [("m", kv_dma(which, k, "%s%d" % (which, i))) for k in range(2)]
    NX0 = opt("nx0", 2) if heavy else opt("lnx0", 3)
    e("s_mov_b32 %s, 0" % s(S_XOFF))
    q = []
    for sl in range(20):
        for kind in "wx":
            if kind == "w" and sl < NI2: continue
            seq = wseq(sl) if kind == "w" else xseq(sl)
            if sl < NX0:
                for k, x in seq: e(x + ("\ns_nop 0" if " m0," in x else ""))
            else:
                lo = 0 if sl < RW else (freeg(sl - RW) if kind == "w" else 4 * lastF[sl - XD] + 3)
                q.append((lo, seq))
    late = {12: [("K", 0), ("K", 1)], 13: [("K", 2), ("K", 3)], 14: [("K", 4), ("K", 5)], 15: [("K", 6), ("K", 7)],
            16: [("V", 0), ("V", 1)], 17: [("V", 2), ("V", 3)], 18: [("V", 4)]}
    side = []
    for sl in range(12, 19):
        for which, i in late[sl]: side.append((freeg(sl), kvseq(which, i)))
    WT = opt("wt", 4)
    if WT:
        for k, sl in enumerate([int(x) for x in opt("wts", "0.1.4.7").split(".")], 1):
            seq = [("s", "s_mov_b32 %s, %d" % (s(S_TMP), k * WT * 32 * 8192)), ("m", "buffer_load_dword %s, %s, %s, %s offen" % (v(V_DUMP), v(V_TC + 1), s(S_WQ, 4), s(S_TMP)))]
            if heavy:
                seq += [("s", "s_mov_b32 %s, %d" % (s(S_TMP), k * WT * 32 * 3456)),
                        ("m", "buffer_load_dword %s, %s, %s, %s offen offset:2048" % (v(V_DUMP), v(V_TC), s(S_WG, 4), s(S_TMP))),
                        ("m", "buffer_load_dword %s, %s, %s, %s offen offset:3072" % (v(V_DUMP), v(V_TC), s(S_WU, 4), s(S_TMP)))]
            side.append((G1(sl) + opt("wtg", 30), seq))
    if opt("tw2", -1) >= 0:
        side.append((G1(opt("tw2", -1)), [("m", "global_load_dword %s, %s, %s" % (v(V_DUMP), v(V_T2), s(ptr(11), 2)))]))
        side.append((G1(opt("tw3", 8)), [("m", "global_load_dword %s, %s, %s" % (v(V_DUMP), v(V_T2 + 1), s(ptr(11), 2)))]))
        side.append((G1(opt("tw4", 10)), [("m", "global_load_dword %s, %s, %s" % (v(V_DUMP), v(V_T2 + 2), s(ptr(9), 2)))]))
    if opt("ct2", 9) and heavy:
        t = S_TMP
        side.append((G1(opt("ct2", 9)), [("s", "s_getpc_b64 %s\nCODE3:\ns_add_u32 %s, %s, TAILC0-CODE3-12288\ns_addc_u32 %s, %s, 0" % (s(t + 2, 2), s(t + 2), s(t + 2), s(t + 3), s(t + 3))),
                                         ("s", "s_lshr_b32 %s, s2, 3\ns_lshl2_add_u32 %s, %s, %s" % (s(t), s(t), s(t), s(S_WAVE))), ("s", "s_min_u32 %s, %s, 95\ns_lshl_b32 %s, %s, 7" % (s(t), s(t), s(t), s(t))),
                                         ("v", "v_mov_b32 %s, %s" % (v(V_T2), s(t))),
                                         ("m", "global_load_dword %s, %s, %s" % (v(V_DUMP), v(V_T2), s(t + 2, 2)))]))
    t0 = v(V_TRA + 3)
    if opt("kvt", 12): side.append((G1(opt("kvt", 12)), [("v", "v_min_u32 %s, 15, %s" % (t0, v(L))), ("v", "v_lshlrev_b32 %s, 7, %s" % (t0, t0)),
               ("s", "s_lshl2_add_u32 %s, %s, %s\ns_lshl_b32 %s, %s, 11" % (s(S_TMP), s(S_QT), s(S_WAVE), s(S_TMP), s(S_TMP))),
               ("m", "buffer_load_dword %s, %s, %s, %s offen" % (v(V_DUMP), t0, s(S_K, 4), s(S_TMP))),
               ("s", "s_add_u32 %s, %s, %d" % (s(S_TMP), s(S_TMP), VSH * 8192)),
               ("m", "buffer_load_dword %s, %s, %s, %s offen" % (v(V_DUMP), t0, s(S_V, 4), s(S_TMP)))]))
    side.sort(key=lambda t: t[0])
    MG = opt("pmg", 5) if heavy else opt("lmg", 4)
    g = 0; lastm = -9; vpost = []
    trlast = 0; lastload = 0
    while q or side:
        if side and (not q or side[0][0] <= max(g, q[0][0])): lo, seq = side.pop(0)
        else: lo, seq = q.pop(0)
        g = max(g, lo)
        for k, x in seq:
            if not vpost:
                try:
                    g = G.place(k, x, max(g + 1, lastm + (MG if g > opt("pmg0", 500) or not heavy else opt("pmga", 6)) if k == "m" else 0))
                    if k == "m": lastm = g
                    if re.search(r";#[xw]\d|;#trs", x) or "v%d," % V_DUMP in x: lastload = g
                    continue
                except RuntimeError: pass
            vpost.append(x + ("\ns_nop 0" if " m0," in x else ""))
    zlim = 4 * lastF[19 - max(NS, 1)] + 4 if opt("zds", 1) else 10 ** 9
    g = 0
    for sl in range(20 - XD, 20):
        lo = 4 * lastF[sl] + 4
        if lo <= zlim: continue
        for i in range(4):
            x = "ds_read_b128 %s, %s" % (a(A_X + 16 * (sl % XD) + 4 * i, 4), v(V_ZA))
            try: g = G.place("d", x, max(g, lo)) + 2
            except RuntimeError: kpost.append(x)
    auto_lgkm(G, eager=opt("peag", 8))
    g = lastload + 2
    for x in gen_tail_setup():
        g = G.place("v" if x.startswith("v_") else "s", x, g + 1)
    setup_end = g
    g = max(g, trlast)
    for x in gen_tail_setup2(): g = G.place("v" if x.startswith("v_") else "s", x, g + 1)
    HZ = 8
    post = []
    def lay(items):
        g = 0; out = []
        for lo, k, x, hi in items:
            if not out:
                try:
                    g = G.place(k, x, max(g + (0 if k == "v" else 1), lo), hi, force=(hi is not None)); continue
                except RuntimeError: pass
            assert hi is None
            out.append(x)
        return out
    its = []
    for sl in range(4):
        for qb in range(4):
            d0 = V_Q + (sl * 4 + qb) * 4
            lo = 4 * lastblk[2 * sl + 1] + 3 + HZ
            hi = NP - 3 if sl < 2 else NP + 8 * sl - 3
            for b in range(2):
                g0 = qacc(2 * sl + b, qb)
                for h in range(2): its.append((min(lo, hi), "v", "v_cvt_pk_bf16_f32 %s, %s, %s" % (v(d0 + 2 * b + h), v(g0 + 2 * h), v(g0 + 2 * h + 1)), hi))
    assert not lay(its)
    its = []
    if heavy:
        U = T
        for fb in range(4):
            for qb in range(4):
                g0 = V_ACCG + (fb * 4 + qb) * 4
                lo = 4 * lastblk[8 + fb] + 3 + HZ
                for r in range(4): its.append((lo, "v", "v_accvgpr_read_b32 %s, %s" % (v(U + r), a(A_ACCU + (fb * 4 + qb) * 4 + r)), None))
                for r in range(4): its.append((lo, "v", "v_max_f32 %s, 0, %s" % (v(g0 + r), v(g0 + r)), None))
                for r in range(4): its.append((lo, "v", "v_mul_f32 %s, %s, %s" % (v(g0 + r), v(g0 + r), v(U + r)), None))
                d0 = V_ACCG + ((fb & ~1) * 4 + qb) * 4 + 2 * (fb & 1)
                for h in range(2): its.append((lo, "v", "v_cvt_pk_bf16_f32 %s, %s, %s" % (v(d0 + h), v(g0 + 2 * h), v(g0 + 2 * h + 1)), None))
                if fb & 1:
                    if qb == 0: its.append((lo, "s", "s_lshl_b32 %s, %s, 13\ns_add_u32 %s, %s, %d" % (s(S_TMP + 6), s(S_FS), s(S_TMP + 6), s(S_TMP + 6), (128 + (fb >> 1)) * 4096), None))
                    its.append((lo, "m", "buffer_store_dwordx4 %s, %s, %s, %s offen offset:%d%s" % (v(d0 - 2, 4), v(V_L16), s(S_AF, 4), s(S_TMP + 6), 1024 * qb, STFL), None))
    post += lay(its)
    its = [(300, "v", x, None) for x in ones_ops(V_TRA + 2)]
    zs = []
    for k in range(XD):
        sl = max(x for x in range(20) if x % XD == k)
        zs.append((4 * lastF[sl] + 4, range(A_X + 16 * k, A_X + 16 * k + 16)))
    for lo, rr in sorted(zs, key=lambda t: t[0]):
        if lo > zlim: break
        for r in rr: its.append((lo, "v", "v_accvgpr_write_b32 %s, 0" % a(r), None))
    post += lay(its)
    if VERBOSE: print("proj", tag, G.pattern(), "| post", len(post), len(vpost), len(kpost))
    e.ext(pre_reads)
    e("s_waitcnt WAITVM{x%d} lgkmcnt(0)" % max(units[0][0]))
    stamp(e, 3)
    nm = 0
    for x in G.lines():
        if x.startswith("v_mfma"):
            if STAMPS and nm % (NP // 5) == 0 and 0 < nm < NP: stamp(e, 18 + nm // (NP // 5))
            if nm == NP: stamp(e, 4)
            nm += 1
        e(x)
    for x in kpost + vpost + post: e(x)
    e("s_mov_b32 %s, %d" % (s(S_KVOFF), 8 * 8192))
    e("s_nop 1")
    for r in range(8): e("v_mov_b32 %s, 0" % v(V_L + r))
    for qb in range(4): e("v_mov_b32 %s, 0xff800000" % v(V_NEGM + 4 * qb))
    e("s_waitcnt WAITVM{K2,K3}")
    e("s_waitcnt WAITVM{V0,V1,K4,K5}")
    r = resolve_vm(e.L)
    NV01.append(int(re.search(r"vmcnt\((\d+)\)", r.pop()).group(1)))
    e0.ext(r)

def kv_preload(e):
    e("s_mov_b32 %s, 0" % s(S_KVOFF))
    for i in range(9):
        if i < 8:
            e("s_add_u32 m0, %s, %d\ns_nop 0" % (s(S_M0K), L_K + i * 8192))
            e(kv_dma("K", 0)); e(kv_dma("K", 1))
        if i >= VSH:
            e("s_add_u32 m0, %s, %d\ns_nop 0" % (s(S_M0K), L_V + (i - VSH) * 8192))
            e(kv_dma("V", 0)); e(kv_dma("V", 1))
        if i < 8: e("s_add_u32 %s, %s, 8192" % (s(S_KVOFF), s(S_KVOFF)))
    e("s_waitcnt vmcnt(0)")

def Sreg(buf, qb, kb): return V_S + buf * 32 + qb * 8 + kb * 4
def Preg(buf, qb): return V_P + buf * 16 + qb * 4

def qk_mfmas(buf, czero=False, full=False):
    out = []
    if opt("qko", "snake") == "qks" and not czero and full:
        for qb in range(4):
            for i in range(2):
                kb = i if qb % 2 == 0 else 1 - i
                d = v(Sreg(buf, qb, kb), 4)
                for n, sl in enumerate(range(4) if i == 0 else range(3, -1, -1)):
                    out.append("%s %s, %s, %s, %s" % (MF, d, a(A_KF + (kb * 4 + sl) * 4, 4), v(V_Q + (sl * 4 + qb) * 4, 4), d if n else v(V_NEGM + 4 * qb, 4)))
        return out
    order = {"qks": [(kb, qb, sl) for kb in range(2) for qb in range(4) for sl in range(4)], "kqs": [(kb, qb, sl) for kb in range(2) for qb in range(4) for sl in range(4)],
             "ksq": [(kb, qb, sl) for kb in range(2) for sl in range(4) for qb in range(4)],
             "snake": [(kb, qb, sl) for kb in range(2) for qb in range(4) for sl in range(4)]}[opt("qko", "snake")]
    for kb, qb, sl0 in order:
                sl = sl0
                d = v(Sreg(buf, qb, kb), 4)
                if opt("qko", "snake") == "snake":
                    first = sl0 == 0
                    sl = sl0 if qb % 2 == 0 else 3 - sl0
                    c = ("0" if czero else v(V_NEGM + 4 * qb, 4)) if first else d
                    out.append("%s %s, %s, %s, %s" % (MF, d, a(A_KF + (kb * 4 + sl) * 4, 4), v(V_Q + (sl * 4 + qb) * 4, 4), c))
                    continue
                c = d if sl else ("0" if czero else v(V_NEGM + 4 * qb, 4))
                out.append("%s %s, %s, %s, %s" % (MF, d, a(A_KF + (kb * 4 + sl) * 4, 4), v(V_Q + (sl * 4 + qb) * 4, 4), c))
    return out

def pv_mfmas(buf, tailmode=False):
    out = []
    for h in range(2):
        out.append("v_smfmac_f32_16x16x64_bf16 %s, %s, %s, %s" % (v(V_L + 4 * h, 4), v(V_ONE, 4), v(Preg(buf, 2 * h), 8), v(V_SIDX)))
    pvo = opt("pvo", "qd2s")
    if pvo == "fake" and not tailmode:
        for h in range(4):
            for i in range(4):
                qb = i if h % 2 == 0 else 3 - i
                o = a(A_O + ((2 * h + buf) * 4 + qb) * 4, 4)
                for d in ((0, 1) if i % 2 == 0 else (1, 0)):
                    out.append("%s %s, %s, %s, %s" % (MF, o, a(A_VF + (2 * h + d) * 4, 4), v(Preg(buf, (qb + 2 * d) % 4), 4), o))
        return out
    if pvo == "fake": pvo = "dq"
    order = {"dq": [(db, qb) for db in range(8) for qb in range(4)],
             "snake": [(db, qb if db % 2 == 0 else 3 - qb) for db in range(8) for qb in range(4)],
             "qd2s": [(2 * h + (d if (i & 1) == 0 else 1 - d), i if h % 2 == 0 else 3 - i) for h in range(4) for i in range(4) for d in range(2)],
             "qd2": [(2 * h + d, qb) for h in range(4) for qb in range(4) for d in range(2)],
             "qd4": [(4 * h + d, qb) for h in range(2) for qb in range(4) for d in range(4)]}[pvo if not tailmode else "dq"]
    for db, qb in order:
            o = a(A_O + (db * 4 + qb) * 4, 4)
            out.append("%s %s, %s, %s, %s" % (MF, o, a(A_VF + db * 4, 4), v(Preg(buf, qb), 4), o))
    return out

def k_read(kb, sl, off, t=0): return "ds_read_b128 %s, %s offset:%d" % (a((A_KF, A_KF1)[t] + (kb * 4 + sl) * 4, 4), v(V_KA + sl), off + kb * 4096)
def v_read(db, j, t): return "ds_read_b64_tr_b16 %s, %s offset:%d" % (a(A_VF + 32 * t + db * 4 + 2 * j, 2), v(V_VA + db), 8192 * t + j * 4096)

def softmax_ops(buf):
    ex = []; cv = []
    for qb in range(4):
        for kb in range(2):
            for r in range(4):
                x = v(Sreg(buf, qb, kb) + r)
                ex.append("v_exp_f32 %s, %s" % (x, x))
            for h in range(2):
                b = Sreg(buf, qb, kb) + 2 * h
                if opt("perm", 0): cv.append("v_perm_b32 %s, %s, %s, %s" % (v(Preg(buf, qb) + kb * 2 + h), v(b + 1), v(b), s(59)))
                else: cv.append("v_cvt_pk_bf16_f32 %s, %s, %s" % (v(Preg(buf, qb) + kb * 2 + h), v(b), v(b + 1)))
    return ex, cv

def gen_attention(e):
    T = V_T
    e("ATT_START:")
    if opt("perm", 0): e("s_mov_b32 s59, 0x07060302")
    stamp(e, 5)
    e("s_barrier")
    for qb in range(4):
        b = Sreg(0, qb, 0)
        e("v_max3_f32 %s, %s, %s, %s" % (v(T + 2 * qb), v(b), v(b + 1), v(b + 2)))
    for qb in range(4):
        b = Sreg(0, qb, 0)
        e("v_max3_f32 %s, %s, %s, %s" % (v(T + 2 * qb), v(T + 2 * qb), v(b + 3), v(V_NEGM + 4 * qb)))
    for n, sw in enumerate(("v_permlane32_swap_b32", "v_permlane16_swap_b32")):
        for qb in range(4): e("v_mov_b32 %s, %s" % (v(T + 2 * qb + 1), v(T + 2 * qb)))
        e("s_nop 0")
        for qb in range(4): e("%s %s, %s" % (sw, v(T + 2 * qb), v(T + 2 * qb + 1)))
        for qb in range(4):
            if n == 0: e("v_max_f32 %s, %s, %s" % (v(T + 2 * qb), v(T + 2 * qb), v(T + 2 * qb + 1)))
            else:
                for r in range(4): e("v_min_f32 %s, -%s, -%s" % (v(V_NEGM + 4 * qb + r), v(T + 2 * qb), v(T + 2 * qb + 1)))
    for qb in range(4):
        for r in range(0, 8, 2): e("v_pk_add_f32 %s, %s, %s" % (v(Sreg(0, qb, 0) + r, 2), v(Sreg(0, qb, 0) + r, 2), v(V_NEGM + 4 * qb, 2)))
    e("s_waitcnt lgkmcnt(0)")

    exE, cvE = softmax_ops(0); exO, cvO = softmax_ops(1)
    smf = lambda t, h: "v_smfmac_f32_16x16x64_bf16 %s, %s, %s, %s" % (v(V_L + 4 * h, 4), v(V_ONE, 4), v(Preg(t, 2 * h), 8), v(V_SIDX))
    def pvm(db, qb, t):
        o = a(A_O + (db * 4 + qb) * 4, 4)
        return "%s %s, %s, %s, %s" % (MF, o, a(A_VF + 32 * t + db * 4, 4), v(Preg(t, qb), 4), o)
    G = Gaps(qk_mfmas(1))
    for i in range(8): G.put(1 + 2 * i, "d", k_read(i // 4, i % 4, 24576, 1))
    for i in range(4): G.put(17 + 2 * i, "d", k_read(0, i, 16384))
    for i in range(4): G.put(31, "d", k_read(1, i, 16384))
    for i, x in enumerate(exE): G.put(i, "e", x)
    for i, x in enumerate(cvE[:4]): G.put(24 + 2 * i, "v", x)
    e.ext(G.lines())
    e.ext(exO[:NOE])
    for sl in range(4): e("v_add_u32 %s, 32768, %s" % (v(V_KA + sl), v(V_KA + sl)))
    e("s_mov_b32 %s, 16384" % s(S_TOG))
    e("s_mov_b32 %s, %d\ns_mov_b32 %s, %d" % (s(S_TMP + 3), 2 * 8192, s(S_TMP + 4), 6 * 8192 + L_V))
    e("s_waitcnt vmcnt(NVWAIT) lgkmcnt(0)\ns_barrier")
    for which, m0, inc in (("K", L_K, 1), ("K", L_K + 8192, 0), ("V", L_V + 5 * 8192, 1)):
        e("s_add_u32 m0, %s, %d\ns_nop 0" % (s(S_M0K), m0))
        e(kv_dma(which, 0)); e(kv_dma(which, 1))
        if inc: e("s_add_u32 %s, %s, 8192" % (s(S_KVOFF), s(S_KVOFF)))
    e("s_mov_b32 %s, %d\ns_cmp_eq_u32 %s, 0\ns_cselect_b32 %s, %d, %s" % (s(S_EVT), EV(27), s(S_WAVE), s(S_EVT), EVT0, s(S_EVT)))
    stamp(e, 6)
    e("s_cmp_lg_u32 %s, 0\ns_cbranch_scc1 NOSIG2" % s(S_RETRY))
    e("s_cmp_ge_u32 %s, 27\ns_cbranch_scc1 LT_INIT" % s(S_FS))
    e("NOSIG2:")
    mf = []
    for t in range(2):
        for qb in range(4):
            for i in range(2):
                kb = i if qb % 2 == 0 else 1 - i
                d = v(Sreg(t, qb, kb), 4)
                for n, sl in enumerate(range(4) if i == 0 else range(3, -1, -1)):
                    mf.append("%s %s, %s, %s, %s" % (MF, d, a((A_KF, A_KF1)[t] + (kb * 4 + sl) * 4, 4), v(V_Q + (sl * 4 + qb) * 4, 4), d if n else v(V_NEGM + 4 * qb, 4)))
    mf += [smf(0, 0), smf(1, 0), smf(1, 1), smf(0, 1)]
    H2 = 68
    for db in range(8):
        for i in range(4):
            qb = 3 - i if db % 2 == 0 else i
            for t in ((0, 1) if i % 2 == 0 else (1, 0)): mf.append(pvm(db, qb, t))
    G = Gaps(mf); end = G.n() - 1
    G.put(1, "b", "s_barrier"); G.put(0, "s", "s_waitcnt vmcnt(16) lgkmcnt(0)")
    NV1 = opt("nv1", 22)
    vrd = [(db, j, t) for db in range(8) for t in range(2) for j in range(2)]
    vg = {}
    eg = {}
    for i in range(NOE, 32): eg[i] = G.put(2 * (i - NOE), "e", exO[i])
    vvg = [int(x) for x in opt("vvg", "3.7.11.15.55").split(".")]
    dgs = [g for g in range(3, 64, 2) if g not in vvg]
    for i in range(NV1):
        db, j, t = vrd[i]; vg[db] = G.put(dgs[i], "d", v_read(db, j, t))
    rd2 = [("v",) + x for x in vrd[NV1:]] + [("k", kb, sl, 0) for kb in range(2) for sl in range(4)] + [("k", kb, sl, 1) for kb in range(2) for sl in range(4)]
    g = 64; kg = {}
    for i, x in enumerate(rd2):
        if x[0] == "v": g = G.place("d", v_read(*x[1:]), g, H2 + 8 * x[1] - 6); vg[x[1]] = g
        else: g = G.place("d", k_read(x[1], x[2], 8192 * x[3], x[3]), g); kg[x[2]] = g
        g += 1 if i < 4 else 2
    def adv(r, base):
        return ["s_add_u32 %s, %s, 8192" % (s(r), s(r)), "s_and_b32 %s, %s, 0xffff" % (s(r), s(r))] + (["s_or_b32 %s, %s, %d" % (s(r), s(r), base)] if base else [])
    last = 0
    for g in (opt("dg1", 54), opt("dg2", 76)):
        for which, r in (("K", S_TMP + 3), ("V", S_TMP + 4)):
            g = G.place("s", "s_add_u32 m0, %s, %s" % (s(S_M0K), s(r)), g)
            for i in range(2): g = G.place("m", kv_dma(which, i), g + opt("dsp", 2))
            g += 1
        for x in ["s_add_u32 %s, %s, 8192" % (s(S_KVOFF), s(S_KVOFF))] + adv(S_TMP + 3, 0) + adv(S_TMP + 4, L_V): g = G.place("s", x, g) + 1
        last = g
    items = [(0, 8 * (i // 4) - 1, cvE[i]) for i in range(4, 16)] + [(eg.get(2 * i + 1, -1) + 1, 32 + 8 * (i // 4) - 1, cvO[i]) for i in range(16)]
    for lo, hi, x in sorted(items, key=lambda t: t[1]): G.place("v", x, lo, hi)
    for i in range(4): G.place("v", cvE[i], end - 5 + opt("c0g", 2))
    g = 56
    xg = 0
    for db in range(8):
        y = max(vg[db], 64)
        while not (G.ds[y] and G.fits(y, "v")): y += 1
        xg = max(xg, G.put(y, "v", "v_xor_b32 %s, %s, %s" % (v(V_VA + db), s(S_TOG), v(V_VA + db))))
    for sl in range(4): xg = max(xg, G.place("v", "v_xor_b32 %s, %s, %s" % (v(V_KA + sl), s(S_TOG), v(V_KA + sl)), kg[sl]))
    for i, x in enumerate(exE + exO[:NOE]): g = G.place("e", x, g, end - 6 if i < 8 else end)
    g = G.place("s", "s_xor_b32 %s, %s, 32768" % (s(S_TOG), s(S_TOG)), xg + 1)
    G.place("s", "s_cmp_lt_u32 %s, %s" % (s(S_KVOFF), s(S_EVT)), max(g, last) + 1)
    auto_lgkm(G, [], loop=True, eager=opt("leag", 8))
    if VERBOSE: print("loop", G.pattern())
    e(".p2align 6\nATT_LOOP:")
    for x in G.lines(): e(x)
    e("s_cbranch_scc1 ATT_LOOP")
    e("s_cmp_lt_u32 %s, %d\ns_cbranch_scc1 ATT_EVT" % (s(S_KVOFF), EVTE))
    e("TAILC0:")
    global LIGHT_LOOP
    LIGHT_LOOP = light_loop(G)
    if STAMPS and opt("dly", 0):
        e("s_and_b32 s98, s2, 7\ns_cmp_lg_u32 s98, 1\ns_cbranch_scc1 NODLY")
        for _ in range(opt("dly", 0)): e("s_sleep 32")
        e("NODLY:")
    stamp(e, 7)
    e("s_waitcnt vmcnt(16) lgkmcnt(0)\ns_barrier")
    e("s_cmp_lg_u32 %s, 0\ns_cbranch_scc1 NOPOLLW" % s(S_WAVE))
    e(poll_load(True))
    e("NOPOLLW:")
    vr = [v_read(db, j, 0) for db in range(8) for j in range(2)]
    e.ext(vr)
    e.ext(cvE[4:])
    e("s_nop 0")
    h = E()
    sn2 = lambda q0: [(db, q0 + (i if db % 2 == 0 else 1 - i)) for db in range(8) for i in range(2)]
    mf = [smf(0, 0)] + [pvm(db, qb, 0) for db, qb in sn2(0)] + [smf(0, 1), smf(1, 0)] + [pvm(db, qb, 1) for db, qb in sn2(0)]
    P3 = len(mf)
    mf += [smf(1, 1)]
    for n, (db, qb) in enumerate(sn2(2)):
        for t in ((0, 1) if n % 2 == 0 else (1, 0)): mf.append(pvm(db, qb, t))
    G = Gaps(mf)
    for i in range(16): G.put(i, "d", v_read(i // 2, i % 2, 1))
    for i in range(NOE, 16): G.put(i - NOE + 1, "e", exO[i])
    for i in range(8): G.put(max(2 * i + 3 - NOE, 0) + 1, "v", cvO[i])
    for i in range(16, 32): G.put(i, "e", exO[i])
    for i in range(8, 16): G.put(min(2 * i + 2, P3 - 3), "v", cvO[i])
    pq = [x for sg in range(NPRE_X) for x in t8_a(sg)]
    assert NPRE_X <= 3
    G.put(P3 - 8, "s", "s_waitcnt lgkmcnt(0)\ns_barrier")
    pre, pend = auto_lgkm(G, [asmcheck.I(x, 0, 0).W for x in vr])
    g = 1
    while pq:
        k, x = pq.pop(0)
        if k == "s": G.sc[g].append(x); g += 1
        else: G.va[g].append(x); g += opt("x63", 2) if len(pq) % 3 else 1
    assert g < P3 + 8, g
    pro, grp = o_ops()
    NEG = opt("neg", 5)
    fill = pro[0] + [x for i in range(NEG) for x in grp(i, False)]
    g0 = max(P3 + 1, g); n = G.n() - g0
    for i, x in enumerate(fill): G.va[g0 + (i * n) // len(fill)].append(x)
    if pre is not None: h("s_waitcnt lgkmcnt(%d)" % pre)
    for x in G.lines(): h(x)
    return h.L, NEG

def o_ops():
    T = V_T; t = S_TMP
    Z = 248; C = 252; W = 224
    pro = []
    for hh in range(2):
        e = E()
        for qb in (2 * hh, 2 * hh + 1): e("v_add_f32 %s, %s, %s" % (v(V_L + 2 * qb), v(V_L + 2 * qb), v(V_L + 2 * qb + 1)))
        for qb in (2 * hh, 2 * hh + 1): e("v_rcp_f32 %s, %s" % (v(T + 2 * qb), v(V_L + 2 * qb)))
        if hh == 0:
            for r in range(4): e("v_mov_b32 %s, 0" % v(Z + r))
            for sl in range(4): e("s_lshl_b32 %s, %s, 14" % (s(44), s(S_HEAD)) if sl == 0 else "s_add_u32 %s, %s, %d" % (s(44 + sl), s(44), 4096 * sl))
        else:
            e("v_max3_f32 %s, %s, %s, %s" % (v(T + 8), v(V_L), v(V_L + 2), v(V_L + 4)))
            e("v_max_f32 %s, %s, %s" % (v(T + 8), v(T + 8), v(V_L + 6)))
            e("v_mul_f32 %s, %s, %s" % (v(T + 8), f2u(2.0 ** 64), v(T + 8)))
            e("v_mul_f32 %s, 0, %s" % (v(T + 8), v(T + 8)))
            for qb in range(4): e("v_fma_f32 %s, %s, 0, %s" % (v(T + 8), v(V_L + 2 * qb), v(T + 8)))
        for qb in (2 * hh, 2 * hh + 1): e("v_mov_b32 %s, %s" % (v(T + 2 * qb + 1), v(T + 2 * qb)))
        pro.append(e.L)
    def grp(i, pk):
        e = E()
        sl, qb = (i % 8) // 2, 2 * (i // 8) + i % 2
        d0 = 232 + 4 * (i % 2)
        for b in range(2):
            for r in range(4): e("v_accvgpr_read_b32 %s, %s" % (v(W + 4 * b + r), a(A_O + ((2 * sl + b) * 4 + qb) * 4 + r)))
        if pk:
            for h in range(4): e("v_pk_mul_f32 %s, %s, %s" % (v(W + 2 * h, 2), v(W + 2 * h, 2), v(T + 2 * qb, 2)))
        else:
            for r in range(8): e("v_mul_f32 %s, %s, %s" % (v(W + r), v(W + r), v(T + 2 * qb)))
        for h in range(4): e("v_cvt_pk_bf16_f32 %s, %s, %s" % (v(d0 + h), v(W + 2 * h), v(W + 2 * h + 1)))
        e("buffer_store_dwordx4 %s, %s, %s, %s offen offset:%d%s ;#ost" % (v(d0, 4), v(V_L16), s(S_AF, 4), s(44 + sl), 1024 * qb, STFL))
        e.L.append("s_nop 0\n%s %s, %s, %s, %s" % (MF, v(C, 4), v(Z, 4), v(d0, 4), "0" if i == 0 else v(C, 4)))
        return e.L
    return pro, grp

LT_SS, LT_SD = 44, 48
LT_SO, LT_DO, LT_R = 91, 96, 97
LT_VO, LT_VB, LT_VR, LT_AD = 40, 42, 44, 48
L_TRB = 131072
def light_loop(G):
    import copy
    G = copy.deepcopy(G)
    n = G.n()
    b = [g for g in range(n) if any("s_barrier" in x for x in G.va[g])][0]
    for bb in (b - 1, b): G.sc[bb] = [x.replace("vmcnt(%d)" % (16 + 2 * PWARM), "vmcnt(%d)" % (24 + 2 * PWARM)) for x in G.sc[bb]]
    lastm = max(g for g in range(n) if any(x.startswith("buffer") for x in G.va[g]))
    cmpg = [g for g in range(n) if any(x.startswith("s_cmp_lt_u32 %s" % s(S_KVOFF)) for x in G.sc[g])][-1]
    def lay(seq, g, hi, step=1):
        for k, x in seq:
            if k == "s":
                while not G.fits(g, "s"): g += 1
                G.put(g, "s", x)
            else:
                win = opt("ltw", 4) if k != "m" else opt("ltm", 4)
                g = min(range(g, min(g + win, hi) + 1), key=lambda y: (G.used[y] + (3 if (k == "d" and G.ds[y] and opt("ltd", 0)) else 0), y))
                (G.ds if k == "d" else G.va)[g].append(x); G.used[g] += 1 if k != "m" else 2
            g += step
            assert g <= hi + 1, (x, g, hi)
        return g
    g = lay([("d", "ds_read_b64_tr_b16 %s, %s offset:%d" % (v(LT_AD + 4 * f + 2 * j, 2), v(LT_VR + f), 1024 * j)) for f in range(2) for j in range(2)], b + 1, b + 30, 2)
    g1, g2 = opt("lts1", 44), opt("lts2", 50)
    lay(([("s", "s_waitcnt lgkmcnt(2)")] if g1 < 68 else []) + [("m", "buffer_store_dwordx4 %s, %s, %s, %s offen%s" % (v(LT_AD, 4), v(V_L16), s(LT_SD, 4), s(LT_DO), STFL))], g1, cmpg - 1)
    lay([("m", "buffer_store_dwordx4 %s, %s, %s, %s offen offset:1024%s" % (v(LT_AD + 4, 4), v(V_L16), s(LT_SD, 4), s(LT_DO), STFL)),
         ("s", "s_add_u32 %s, %s, %d" % (s(LT_DO), s(LT_DO), 8 * 10240)),
         ("s", "s_sub_u32 %s, %s, %d\ns_cselect_b32 %s, %s, %s" % (s(S_TMP + 1), s(LT_DO), 184 * 10240, s(LT_DO), s(LT_DO), s(S_TMP + 1)))], g2, cmpg - 1)
    g = lastm + 1
    lay([("s", "s_add_u32 m0, %s, %s" % (s(LT_R), s(S_TMP)))] +
        [("m", "buffer_load_dwordx4 %s, %s, %s offen offset:%d lds" % (v(LT_VO + i), s(LT_SS, 4), s(LT_SO), 1024 * i)) for i in range(2)] +
        [("s", "s_add_u32 %s, %s, %d\ns_add_u32 %s, %s, 2048" % (s(LT_SO), s(LT_SO), 8 * 40960, s(LT_R), s(LT_R))),
         ("s", "s_cmp_eq_u32 %s, 6144\ns_cselect_b32 %s, 0, %s" % (s(LT_R), s(LT_R), s(LT_R)))] +
        [("v", "v_add_u32 %s, %s, %s" % (v(LT_VR + f), s(LT_R), v(LT_VB + f))) for f in range(2)], g, cmpg - 1)
    if VERBOSE: print("lightloop", G.pattern())
    return G.lines()

def gen_events(e):
    L = V_LANE; t = S_TMP
    e("LT_INIT:")
    e("s_sub_u32 %s, %s, 27\ns_lshl_b32 %s, %s, 3\ns_add_u32 %s, %s, %s\ns_lshl2_add_u32 %s, %s, %s" % (s(t), s(S_FS), s(t), s(t), s(t), s(t), s(S_QT), s(t), s(t), s(S_WAVE)))
    e("s_mul_i32 %s, %s, 3277\ns_lshr_b32 %s, %s, 16\ns_mul_i32 %s, %s, 20\ns_sub_u32 %s, %s, %s" % (s(t + 1), s(t), s(t + 1), s(t + 1), s(t + 6), s(t + 1), s(t), s(t), s(t + 6)))
    e("s_mul_i32 %s, %s, 40960\ns_lshl_b32 %s, %s, 6\ns_add_u32 %s, %s, %s" % (s(LT_SO), s(t + 1), s(t + 6), s(t), s(LT_SO), s(LT_SO), s(t + 6)))
    e("s_add_u32 %s, %s, 104\ns_mul_i32 %s, %s, 10240" % (s(LT_DO), s(t + 1), s(LT_DO), s(LT_DO)))
    srd(e, LT_SS, ptr(8), 0, 1728 * 1280)
    e("s_mul_i32 %s, %s, 13108\ns_lshr_b32 %s, %s, 16\ns_mul_i32 %s, %s, %d\ns_lshl_b32 %s, %s, 11\ns_add_u32 %s, %s, %s\ns_add_u32 %s, %s, %d" % (
        s(t + 6), s(t), s(t + 6), s(t + 6), s(t + 6), s(t + 6), WFS - 10240, s(t + 1), s(t), s(t + 6), s(t + 6), s(t + 1), s(t + 6), s(t + 6), WF_OFF))
    srd(e, LT_SD, ptr(11), s(t + 6), (NSLAB - 1) * 10240 + 2048)
    e("s_mul_i32 %s, %s, 6144\ns_add_u32 %s, %s, %d\ns_mov_b32 %s, 0\ns_mov_b32 %s, %d" % (s(t), s(S_WAVE), s(t), s(t), L_TRB, s(LT_R), s(S_EVT), EV(7)))
    e("v_lshrrev_b32 %s, 2, %s\nv_bfe_u32 %s, %s, 4, 1\nv_and_b32 %s, 3, %s" % (v(46), v(L), v(47), v(L), v(48), v(L)))
    e("v_lshlrev_b32 %s, 1, %s\nv_xor_b32 %s, %s, %s\nv_mul_u32_u24 %s, 1280, %s\nv_lshl_add_u32 %s, %s, 4, %s\nv_add_u32 %s, %d, %s" % (
        v(49), v(47), v(49), v(49), v(48), v(LT_VO), v(46), v(LT_VO), v(49), v(LT_VO), v(LT_VO + 1), 16 * 1280 - 1024, v(LT_VO)))
    e("v_lshlrev_b32 %s, 6, %s\nv_lshl_add_u32 %s, %s, 3, %s\nv_lshl_add_u32 %s, %s, 5, %s\nv_add_u32 %s, %s, %s\nv_xor_b32 %s, 32, %s" % (
        v(LT_VB), v(46), v(LT_VB), v(48), v(LT_VB), v(LT_VB), v(47), v(LT_VB), v(LT_VB), s(t), v(LT_VB), v(LT_VB + 1), v(LT_VB)))
    e("v_mov_b32 %s, %s\nv_mov_b32 %s, %s" % (v(LT_VR), v(LT_VB), v(LT_VR + 1), v(LT_VB + 1)))
    e(".p2align 6\nLT_LOOP:")
    for x in LIGHT_LOOP: e(x)
    e("s_cbranch_scc1 LT_LOOP")
    e("s_cmp_lg_u32 %s, %d\ns_cbranch_scc1 LT_E2" % (s(S_KVOFF), EV(7)))
    srd(e, LT_SS, ptr(4), 0, 4096 * 1280)
    e("s_sub_u32 %s, %s, %d\ns_mov_b32 %s, %d\ns_branch LT_LOOP" % (s(LT_SO), s(LT_SO), 56 * 40960, s(S_EVT), EV(13)))
    e("LT_E2:")
    e("s_cmp_lg_u32 %s, %d\ns_cbranch_scc1 LT_E3" % (s(S_KVOFF), EV(13)))
    e("s_mov_b32 %s, %d\ns_cmp_lg_u32 %s, 0\ns_cbranch_scc1 LT_LOOP" % (s(S_EVT), EV(26), s(S_WAVE)))
    set_flag(e, 2)
    e("s_mov_b32 %s, %d\ns_branch LT_LOOP" % (s(S_EVT), EV(23)))
    e("LT_E3:")
    e("s_cmp_lg_u32 %s, %d\ns_cbranch_scc1 LT_END" % (s(S_KVOFF), EV(23)))
    e(poll_load(True))
    e("s_mov_b32 %s, %d\ns_branch LT_LOOP" % (s(S_EVT), EV(26)))
    e("LT_END:")
    e("s_mov_b32 %s, %d\ns_branch ATT_LOOP" % (s(S_EVT), EV(27)))
    def redirect(d, vd, shift, size):
        e("s_sub_u32 %s, %s, %s\ns_add_u32 %s, %s, %s\ns_addc_u32 %s, %s, 0" % (s(t + 6), s(T_BW[0]), s(T_M0W), s(d), s(T_SW), s(t + 6), s(d + 1), s(T_SW + 1)))
        e("s_sub_u32 %s, %s, %d\ns_subb_u32 %s, %s, 0\ns_mov_b32 %s, %d" % (s(d), s(d), shift, s(d + 1), s(d + 1), s(d + 2), size))
        e("v_add_u32 %s, %s, %s\nv_add_u32 %s, %s, %s" % (v(vd), s(S_M0K), v(V_L16), v(vd + 1), s(S_M0K), v(V_L16)))
    e("ATT_EVT:")
    e("s_cmp_lg_u32 %s, %d\ns_cbranch_scc1 ATT_EVT1" % (s(S_KVOFF), EV(27)))
    redirect(S_K, V_KD, 64 * 8192, 72 * 8192)
    e("s_mov_b32 %s, %d\ns_cmp_lg_u32 %s, 0\ns_cbranch_scc1 ATT_LOOP" % (s(S_EVT), EV(29) if NWP == 4 else EVTE, s(S_WAVE)))
    if NWP < 4: e("s_cmp_ge_u32 %s, 27\ns_cselect_b32 %s, %d, %s" % (s(S_FS), s(S_EVT), EV(29), s(S_EVT)))
    e("s_waitcnt vmcnt(16)")
    poll_spin(e, True, None, 2, "EARLY")
    e("s_branch ATT_LOOP")
    e("ATT_EVT1:")
    e("s_cmp_lg_u32 %s, %d\ns_cbranch_scc1 ATT_EVT2" % (s(S_KVOFF), EV(29)))
    if NWP == 4: redirect(S_V, V_VD, 68 * 8192 - 65536, 68 * 8192 + NWP * 20480 - 65536)
    e("s_mov_b32 %s, %d\ns_cmp_lg_u32 %s, 0\ns_cbranch_scc1 ATT_LOOP" % (s(S_EVT), EVTE, s(S_WAVE)))
    e("s_cmp_lt_u32 %s, 27\ns_cbranch_scc1 ATT_LOOP" % s(S_FS))
    set_flag(e, 3)
    e("s_branch ATT_LOOP")
    e("ATT_EVT2:")
    e("s_cmp_lg_u32 %s, %d\ns_cbranch_scc1 ATT_EVT3" % (s(S_KVOFF), EV(3)))
    set_flag(e, 3)
    e("s_mov_b32 %s, %d\ns_branch ATT_LOOP" % (s(S_EVT), EV(25)))
    e("ATT_EVT3:")
    if opt("ctt", 0):
        e("s_getpc_b64 %s\nCODE2:\ns_sub_u32 %s, %s, CODE2-TAILC0\ns_subb_u32 %s, %s, 0" % (s(t + 6, 2), s(t + 6), s(t + 6), s(t + 7), s(t + 7)))
        e("s_lshr_b32 %s, s2, 3\ns_lshl_b32 %s, %s, 10" % (s(t + 1), s(t + 1), s(t + 1)))
        e("v_min_u32 %s, 7, %s\nv_lshlrev_b32 %s, 7, %s\nv_add_u32 %s, %s, %s\nv_min_u32 %s, K_END-TAILC0, %s" % (v(V_PL), v(L), v(V_PL), v(V_PL), v(V_PL), s(t + 1), v(V_PL), v(V_PL), v(V_PL)))
        e("global_load_dword %s, %s, %s" % (v(V_DUMP), v(V_PL), s(t + 6, 2)))
    e(poll_load(True))
    e("s_mov_b32 %s, %d\ns_branch ATT_LOOP" % (s(S_EVT), EV(27)))
assert all((g * 3277) >> 16 == g // 20 for g in range(160)) and all((c * 13108) >> 16 == c // 5 for c in range(40))

K_SX, K_SO = S_WU, S_X
T_SA, T_SW, T_XS = S_T, S_WF, S_WQ
T_XO = S_WG
T_TAG = S_WG + 3
T_M0W, T_OA, T_OW = 88, 89, 90
T_BA, T_BW = (S_XOFF, S_WQOFF), (S_WGOFF, S_M0W)
K_FLG = 95
KV_XO = 63; KV_X = 8
TV_WR, TV_L4K, TV_TAG, TV_OW, TV_OR = 60, 61, 62, 3, 4
XPB = 12288
REUSE = 1
COAL = opt("coal", 1)
NSD, NSG = 7, 23
ROTW = opt("rotw", 0)
T_ROT = 58
RW8, RA8, RF8 = 6, 5, 10
L_OWN = [122880, 0]

def join_scalar(lines):
    out = []
    for x in lines:
        if x.startswith(("s_addc", "s_cselect")): out[-1] += "\n" + x
        else: out.append(x)
    return out

def gen_tail_setup():
    e = E()
    L = V_LANE; t = S_TMP
    R, Cc, KQ = t + 3, t + 4, t + 5
    e("s_bfe_u32 %s, s2, 0x10002\ns_lshl_b32 %s, %s, 3\ns_lshr_b32 %s, s2, 5\ns_add_u32 %s, %s, %s" % (s(R), s(R), s(R), s(t), s(R), s(R), s(t)))
    e("s_bfe_u32 %s, s2, 0x20003\ns_and_b32 %s, s2, 3" % (s(Cc), s(KQ)))
    e("s_lshr_b32 %s, %s, 1\ns_lshl1_add_u32 %s, %s, %s\ns_lshl2_add_u32 %s, %s, %s\ns_mul_i32 %s, %s, %d" % (s(t), s(KQ), s(t), s(R), s(t), s(t), s(t), s(S_WAVE), s(t), s(t), 16 * 1280))
    e("s_and_b32 %s, %s, 1\ns_lshl1_add_u32 %s, %s, %s\ns_mul_i32 %s, %s, 160\ns_add_u32 %s, %s, %s" % (s(t + 1), s(KQ), s(t + 1), s(Cc), s(t + 1), s(t + 1), s(t + 1), s(t), s(t), s(t + 1)))
    srd(e, K_SX, ptr(0), s(t), 15 * 1280 + 160)
    srd(e, K_SO, ptr(9), s(t), 15 * 1280 + 160)
    e("v_and_b32 %s, 15, %s\nv_mul_u32_u24 %s, 1280, %s\nv_lshrrev_b32 %s, 4, %s\nv_lshl_add_u32 %s, %s, 3, %s" % (v(KV_XO), v(L), v(KV_XO), v(KV_XO), v(52), v(L), v(KV_XO), v(52), v(KV_XO)))
    e("s_lshr_b32 %s, %s, 1\ns_lshl2_add_u32 %s, %s, %s\ns_lshl_b32 %s, %s, %d" % (s(K_FLG), s(R), s(K_FLG), s(K_FLG), s(KQ), s(K_FLG), s(K_FLG), FSH + 3))
    e("s_mul_i32 %s, %s, 7\ns_add_u32 %s, %s, 64\ns_lshl_b32 %s, %s, 13\ns_mul_i32 %s, %s, 20480" % (s(t), s(KQ), s(t), s(t), s(T_BA[0]), s(t), s(T_BW[0]), s(t)))
    e("s_lshl_b32 %s, %s, 17\ns_mul_i32 %s, %s, %d" % (s(T_BA[1]), s(KQ), s(T_BW[1]), s(KQ), 16 * 20480))
    if ROTW: e("s_mul_i32 %s, %s, %d\ns_mul_i32 %s, %s, %d\ns_add_u32 %s, %s, %s" % (s(t), s(R), opt("rotr", 1), s(T_ROT), s(Cc), opt("rotc", 2), s(T_ROT), s(T_ROT), s(t)))
    e("s_lshl2_add_u32 %s, %s, %s\ns_mul_i32 %s, %s, %d\ns_add_u32 %s, %s, %d" % (s(t), s(R), s(Cc), s(t), s(t), XGS, s(t), s(t), XP_OFF))
    srd(e, T_XS, ptr(11), s(t), 12 * XPB)
    for ch in range(2):
        d = T_XO + ch
        e("s_and_b32 %s, %s, 2\ns_add_u32 %s, %s, %d\ns_xor_b32 %s, %s, %s\ns_mul_i32 %s, %s, 3\ns_add_u32 %s, %s, %s\ns_sub_u32 %s, %s, 1" % (
            s(t), s(S_WAVE), s(t), s(t), ch, s(t + 1), s(t), s(KQ), s(t), s(t), s(t), s(t), s(t + 1), s(t), s(t)))
        e("s_mul_i32 %s, %s, %d\ns_and_b32 %s, %s, 1\ns_mul_i32 %s, %s, 6144\ns_add_u32 %s, %s, %s" % (s(t), s(t), XPB, s(d), s(S_WAVE), s(d), s(d), s(d), s(d), s(t)))
        e("s_cmp_eq_u32 %s, 0\ns_cselect_b32 %s, 0x1000000, %s" % (s(t + 1), s(d), s(d)))
    if PWARM:
        e("s_lshl2_add_u32 %s, %s, %s\ns_mul_i32 %s, %s, %d\ns_lshl_b32 %s, %s, 14\ns_add_u32 %s, %s, %s" % (s(t), s(S_QT), s(S_WAVE), s(t), s(t), NSLAB * 4096, s(t + 1), s(S_HEAD), s(t), s(t), s(t + 1)))
        e("v_mov_b32 %s, %s" % (v(V_PW), s(t)))
        for i, o in ((1, 6144), (2, 10240)):
            e("s_add_u32 %s, %s, %d\nv_writelane_b32 %s, %s, %d\nv_writelane_b32 %s, %s, %d" % (s(t + 1), s(t), o, v(V_PW), s(t + 1), 2 * i, v(V_PW), s(t + 1), 2 * i + 1))
        e("s_lshl2_add_u32 %s, %s, %s\ns_mul_i32 %s, %s, %d\ns_add_u32 %s, %s, %d" % (s(t + 2), s(R), s(Cc), s(t + 2), s(t + 2), 24 * XPB, s(t + 2), s(t + 2), XP_OFF))
        for m in range(2):
            for ch in range(2):
                i = 3 + 2 * m + ch
                e("s_add_u32 %s, %s, %s\ns_add_u32 %s, %s, %d" % (s(t + 1), s(t + 2), s(T_XO + ch), s(t + 1), s(t + 1), m * 12 * XPB))
                e("s_cmp_eq_u32 %s, 0x1000000\ns_cselect_b32 %s, %s, %s" % (s(T_XO + ch), s(t + 1), s(t), s(t + 1)))
                e("v_writelane_b32 %s, %s, %d\nv_writelane_b32 %s, %s, %d" % (v(V_PW), s(t + 1), 2 * i, v(V_PW), s(t + 1), 2 * i + 1))
        e("v_min_u32 %s, 14, %s" % (v(V_T), v(L)))
        L = V_T
        e("v_and_b32 %s, 1, %s\nv_lshl_add_u32 %s, %s, 7, %s\nv_subrev_u32 %s, 1280, %s" % (v(V_T), v(L), v(V_PW), v(V_T), v(V_PW), v(V_PW), v(V_PW)))
        L = V_LANE
    e("s_mul_i32 %s, %s, %d\ns_mul_i32 %s, %s, 3072\ns_add_u32 %s, %s, %s" % (s(T_XO + 2), s(KQ), 3 * XPB, s(t), s(S_WAVE), s(T_XO + 2), s(T_XO + 2), s(t)))
    e("s_add_u32 %s, %s, 0x10000\ns_and_b32 %s, %s, 0x1fff0000\ns_or_b32 %s, %s, 0x40000000\nv_mov_b32 %s, %s" % (s(t), s(S_EPOCH), s(t), s(t), s(T_TAG), s(t), v(TV_TAG), s(T_TAG)))
    e("s_and_b32 %s, %s, 1\ns_mul_i32 %s, %s, 10240\nv_add_u32 %s, %s, %s" % (s(t), s(S_WAVE), s(t), s(t), v(TV_OW), s(t), v(V_L16)))
    e("s_mul_i32 %s, %s, 5120\nv_add_u32 %s, %s, %s" % (s(t), s(S_WAVE), v(TV_OR), s(t), v(V_L16)))
    e("s_lshr_b32 %s, %s, 1\ns_lshl1_add_u32 %s, %s, %s\ns_mul_i32 %s, %s, %d" % (s(t), s(S_WAVE), s(t), s(R), s(t), s(t), s(t), AFS))
    e("s_and_b32 %s, %s, 1\ns_lshl_b32 %s, %s, 11\ns_add_u32 %s, %s, %s" % (s(t + 1), s(S_WAVE), s(t + 1), s(t + 1), s(t), s(t), s(t + 1)))
    srd(e, T_SA, ptr(11), s(t), NSLAB * 4096 - 2048)
    e("s_mul_i32 %s, %s, 5120" % (s(T_M0W), s(S_WAVE)))
    e("s_mul_i32 %s, %s, %d\ns_add_u32 %s, %s, %s\ns_add_u32 %s, %s, %d" % (s(t), s(Cc), WFS, s(t), s(t), s(T_M0W), s(t), s(t), WF_OFF))
    return join_scalar(e.L)

def gen_tail_setup2():
    e = E()
    srd(e, T_SW, ptr(11), s(S_TMP), 90 * 20480 + 5120)
    e("v_mov_b32 %s, %s\nv_add_u32 %s, 4096, %s" % (v(TV_WR), v(V_L16), v(TV_L4K), v(V_L16)))
    return join_scalar(e.L)

def t8_w(sg):
    base = (sg % RW8) * 20480; tag = "D%d" % sg
    m, i = (0, sg) if sg < NSD else (1, sg - NSD)
    W = lambda vo, off: ("m", "buffer_load_dwordx4 %s, %s, %s offen offset:%d%s lds ;#%s" % (v(vo), s(T_SW, 4), s(T_OW), off, LDFL, tag))
    if m and ROTW:
        hd = [("s", "s_add_u32 %s, %s, %d\ns_and_b32 %s, %s, %d" % (s(T_OW), s(T_ROT), i, s(T_OW), s(T_OW), ROTW - 1)),
              ("s", "s_mul_i32 %s, %s, 20480\ns_add_u32 %s, %s, %s" % (s(T_OW), s(T_OW), s(T_OW), s(T_OW), s(T_BW[m]))),
              ("s", ("s_add_u32 %s, %s, %d\n" % (s(T_OW), s(T_OW), (i & ~(ROTW - 1)) * 20480) if i >= ROTW else "") + "s_add_u32 m0, %s, %d" % (s(T_M0W), base))]
    else:
        hd = [("s", "s_add_u32 %s, %s, %d\ns_add_u32 m0, %s, %d" % (s(T_OW), s(T_BW[m]), i * 20480, s(T_M0W), base))]
    return hd + [
            W(V_L16, 0), W(V_L16, 1024), W(V_L16, 2048), W(V_L16, 3072),
            ("s", "s_add_u32 m0, %s, %d" % (s(T_M0W), base + 4096)), W(TV_L4K, 0)]
def t8_af(sg, half, j): return a((192, 208, 224, 32, 48)[sg % RA8] + half * 8 + j * 4, 4)
def t8_a(sg):
    m, i = (0, sg) if sg < NSD else (1, sg - NSD)
    l = [("s", "s_add_u32 %s, %s, %d" % (s(T_OA), s(T_BA[m]), i * 8192))]
    if m and ROTW:
        l = [("s", "s_add_u32 %s, %s, %d\ns_and_b32 %s, %s, %d" % (s(T_OA), s(T_ROT), i, s(T_OA), s(T_OA), ROTW - 1)),
             ("s", "s_lshl_b32 %s, %s, 13\ns_add_u32 %s, %s, %s" % (s(T_OA), s(T_OA), s(T_OA), s(T_OA), s(T_BA[m])))]
        if i >= ROTW: l.append(("s", "s_add_u32 %s, %s, %d" % (s(T_OA), s(T_OA), (i & ~(ROTW - 1)) * 8192)))
    for half in range(2):
        for j in range(2):
            l.append(("m", "buffer_load_dwordx4 %s, %s, %s, %s offen offset:%d%s ;#A%d" % (t8_af(sg, half, j), v(TV_L4K if half else V_L16), s(T_SA, 4), s(T_OA), j * 1024, LDFL, sg)))
    return l
def t8_wf(F):
    k = F % RF8
    return a(4 * k if k < 8 else 240 + 4 * (k - 8), 4)
def t8_read(F):
    sg, f = F // 20, F % 20
    if opt("t8c", 1): f = (f & 1) * 10 + (f >> 1)
    return "ds_read_b128 %s, %s offset:%d" % (t8_wf(F), v(TV_WR), (sg % 3) * 20480 + f * 1024)
def t8_acc(m, n10, j):
    i = n10 * 2 + j
    if m == 0: return 128 + 4 * i
    return 64 + 4 * i if i < 16 else 208 + 4 * (i - 16)
NWP = opt("nwp", 4)
NPRE_X = opt("nprex", 3)
NPRE_G = opt("npreg", 3)

def cond_lines(lines): return [("@" + x) if x.startswith("buffer") else x for x in lines]

def publish(m):
    out = []; n = 0
    for ch in range(2):
        if m == 1 and REUSE:
            t = S_TMP
            out.append(("s", "s_and_b32 %s, s2, 3\ns_and_b32 %s, %s, 2\ns_sub_u32 %s, %s, %s\ns_sub_u32 %s, %s, %d\ns_mul_i32 %s, %s, %d\ns_add_u32 %s, %s, %s" % (
                s(t), s(t + 1), s(S_WAVE), s(t), s(t), s(t + 1), s(t), s(t), ch, s(t), s(t), 3 * XPB, s(t + 2), s(T_XO + ch), s(t))))
        else:
            out.append(("s", "s_add_u32 %s, %s, %d" % (s(S_TMP + 2), s(T_XO + ch), m * 12 * XPB)))
        for j in range(2):
            vals = [t8_acc(m, 5 * ch + nb, j) + k for nb in range(5) for k in range(4)]
            pb = (40, 240)[n % 2]; n += 1
            for gi in range(3):
                vs = vals[7 * gi:7 * gi + 7]
                if len(vs) < 7: vs = vs + [TV_TAG]
                for h in range(3): out.append(("v", "v_cvt_pk_bf16_f32 %s, %s, %s" % (v(pb + 4 * gi + h), v(vs[2 * h]), v(vs[2 * h + 1]))))
                out.append(("v", "v_cvt_pk_bf16_f32 %s, %s, %s" % (v(pb + 4 * gi + 3), v(vs[6]), v(TV_TAG))))
                off = j * 3072 + gi * 1024
                out.append(("m", "buffer_store_dwordx4 %s, %s, %s, %s offen offset:%d%s ;#xst%d" % (v(pb + 4 * gi, 4), v(TV_L4K if off >= 4096 else V_L16), s(T_XS, 4), s(S_TMP + 2), off % 4096, STFL, m)))
    return out
def own_write(m):
    l = []
    if L_OWN[m]: l.append("v_add_u32 %s, %d, %s" % (v(52), L_OWN[m], v(TV_OW)))
    ar = v(52) if L_OWN[m] else v(TV_OW)
    for ch in range(2):
        l.append("s_cmp_lg_u32 %s, 0x1000000\ns_cbranch_scc1 NOOWN%d%d" % (s(T_XO + ch), m, ch))
        for j in range(2):
            for nb in range(5): l.append("ds_write_b128 %s, %s offset:%d" % (ar, v(t8_acc(m, 5 * ch + nb, j), 4), (j * 5 + nb) * 1024))
        l.append("NOOWN%d%d:" % (m, ch))
    return l
XR = [128, 64]; OWR = [164, 184]
T_SL = 72
def xloads(m):
    l = []
    for i in range(3):
        if m == 1 and REUSE: l.append(("s", "s_mov_b32 %s, %s" % (s(S_TMP + 3), s(T_SL + i))))
        else: l.append(("s", "s_add_u32 %s, %s, %d" % (s(S_TMP + 3), s(T_XO + 2), m * 12 * XPB + i * XPB)))
        for k in range(3): l.append(("m", "buffer_load_dwordx4 %s, %s, %s, %s offen offset:%d%s ;#xr%d" % (v(XR[m] + (i * 3 + k) * 4, 4), v(V_L16), s(T_XS, 4), s(S_TMP + 3), k * 1024, LDFL, m)))
    return l
def xcheck(e, m, first_wait):
    t = S_TMP
    e("s_mov_b32 %s, 0" % s(t + 7))
    e(first_wait)
    e("XCHK%d:" % m)
    for i in range(9): e("v_xor_b32 %s, %s, %s" % (v(20 + i), s(T_TAG), v(XR[m] + 4 * i + 3)))
    for i in range(4): e("v_or3_b32 %s, %s, %s, %s" % (v(20), v(20), v(21 + 2 * i), v(22 + 2 * i)))
    e("v_cmp_lt_u32 vcc, 0xffff, %s" % v(20))
    e("s_add_u32 %s, %s, 1" % (s(t + 7), s(t + 7)))
    e("s_cmp_eq_u64 vcc, 0\ns_cbranch_scc1 XOK%d" % m)
    e("s_cmp_ge_u32 %s, 0x40000\ns_cbranch_scc1 XOK%d" % (s(t + 7), m))
    if m == 0 and opt("dprb", 1):
        e("v_min_u32 %s, 2, %s\nv_mul_u32_u24 %s, %d, %s\ns_add_u32 %s, %s, %d" % (v(31), v(V_LANE), v(31), XPB, v(31), s(t + 3), s(T_XO + 2), 2048 + 1008 + 12))
        e("DPROBE:")
        e("s_sleep %d" % opt("dslp", 24))
        e("@buffer_load_dword %s, %s, %s, %s offen%s" % (v(30), v(31), s(T_XS, 4), s(t + 3), LDFL))
        e("s_waitcnt vmcnt(0)")
        e("v_xor_b32 %s, %s, %s\nv_cmp_lt_u32 vcc, 0xffff, %s" % (v(30), s(T_TAG), v(30), v(30)))
        e("s_add_u32 %s, %s, 1" % (s(t + 7), s(t + 7)))
        e("s_cmp_ge_u32 %s, 0x40000\ns_cbranch_scc1 DPROBED" % s(t + 7))
        e("s_cmp_lg_u64 vcc, 0\ns_cbranch_scc1 DPROBE")
        e("DPROBED:")
    else:
        e("s_sleep %d" % opt("xslp", 4))
    for x in cond_lines([x for _, x in xloads(m)]): e(x)
    e("s_waitcnt vmcnt(0)\ns_branch XCHK%d" % m)
    e("XOK%d:" % m)
def xsum(e, m, nb):
    o = OWR[m] + 4 * nb
    for i in range(3):
        for k in range(4):
            idx = nb * 4 + k; gi, pos = idx // 7, idx % 7
            src = XR[m] + (i * 3 + gi) * 4 + pos // 2
            e(("v_and_b32 %s, 0xffff0000, %s" if pos & 1 else "v_lshlrev_b32 %s, 16, %s") % (v(20 + 4 * i + k), v(src)))
    for h in range(2):
        e("v_pk_add_f32 %s, %s, %s" % (v(o + 2 * h, 2), v(o + 2 * h, 2), v(20 + 2 * h, 2)))
        e("v_pk_add_f32 %s, %s, %s" % (v(24 + 2 * h, 2), v(24 + 2 * h, 2), v(28 + 2 * h, 2)))
    for h in range(2): e("v_pk_add_f32 %s, %s, %s" % (v(o + 2 * h, 2), v(o + 2 * h, 2), v(24 + 2 * h, 2)))

CV_G, CV_L, CV_X, LROW, L_FIN = 8, 11, 224, 336, 20480
NIN = opt("nin", 6)
OGAP = opt("og", 50)
def gen_t8(e, inner):
    t = S_TMP
    mf = []
    NF = 20 * NSG
    for F in range(NF):
        sg, f = F // 20, F % 20
        m = 0 if sg < NSD else 1
        if opt("t8c", 1):
            j = f & 1; F0 = F - j
            d = v(t8_acc(m, f >> 1, j), 4)
            for i, half in enumerate((0, 1) if j == 0 else (1, 0)):
                mf.append("%s %s, %s, %s, %s" % (MF, d, t8_wf(F0 + half), t8_af(sg, half, j), "0" if (sg in (0, NSD) and i == 0) else d))
            continue
        for j in range(2):
            d = v(t8_acc(m, f % 10, j), 4)
            mf.append("%s %s, %s, %s, %s" % (MF, d, t8_wf(F), t8_af(sg, f // 10, j), "0" if (sg in (0, NSD) and f < 10) else d))
    G = Gaps(mf)
    DA = opt("t8d", 8)
    SIGS = opt("sigs", 3); CKS = opt("cks", 6); PLS = CKS - opt("polld", 1)
    bars = {}
    cur = 0
    for F in range(DA, NF):
        sg, f = F // 20, F % 20
        lo = 2 * (F - DA)
        if f == 0:
            if sg % 3 == 0:
                d = 61440 if sg % 6 == 3 else -61440
                G.place("v", ("v_add_u32 %s, %d, %s" % (v(TV_WR), d, v(TV_WR))) if d > 0 else ("v_subrev_u32 %s, %d, %s" % (v(TV_WR), -d, v(TV_WR))), cur - 1, cur - 1)
            pre = E(); post = E()
            if sg == CKS:
                stamp(pre, 11)
                pre("s_cmp_lg_u32 %s, 0\ns_cbranch_scc1 SPUN_O\ns_waitcnt SINCE{p3}" % s(S_WAVE))
                poll_spin(pre, False, s(K_FLG), 4, "O")
                stamp(post, 12)
            if sg == SIGS:
                W = V_T + 12
                post("ds_read_b128 %s, %s\ns_waitcnt lgkmcnt(0)" % (v(W + 4, 4), v(W + 2)))
                post("v_or3_b32 %s, %s, %s, %s\nv_or_b32 %s, %s, %s\ns_nop 0" % (v(W + 4), v(W + 4), v(W + 5), v(W + 6), v(W + 4), v(W + 4), v(W + 7)))
                post("v_readfirstlane_b32 %s, %s" % (s(t), v(W + 4)))
                post("s_nop 3\ns_andn2_b32 %s, %s, %s" % (s(t), s(t), s(S_RETRY)))
                post("s_cbranch_scc1 ATT_RETRY")
                post("s_cmp_lg_u32 %s, 0\ns_cbranch_scc1 NOSIG3" % s(S_WAVE))
                set_flag(post, 4)
                post("s_cmp_lg_u32 s2, 0\ns_cbranch_scc1 NOSIG3")
                post("s_add_u32 %s, %s, 0x10001\ns_mov_b64 exec, 1\nv_mov_b32 %s, %s\ns_mov_b32 %s, %d" % (s(t + 7), s(S_EPOCH), v(V_PL + 1), s(t + 7), s(t + 6), EP_OFF))
                post("buffer_store_dword %s, off, %s, %s sc1\ns_mov_b64 exec, -1" % (v(V_PL + 1), s(S_FL, 4), s(t + 6)))
                post("NOSIG3:")
                stamp(post, 10)
            if sg == PLS:
                post("s_cmp_lg_u32 %s, 0\ns_cbranch_scc1 NOPOLL3" % s(S_WAVE))
                post(poll_load(False, s(K_FLG)))
                post("NOPOLL3:\nMARK p3")
            b = G.place("b", "\n".join(cond_lines(pre.L) + ["s_barrier"] + cond_lines(post.L)), max(cur, lo - 1))
            lateA = NSD <= sg < NSD + opt("latea", 2) or NPRE_G <= sg < NPRE_G + opt("lateb", 1)
            G.put(b, "s", "s_waitcnt WAITVM{D%d%s%s}" % (sg, "" if lateA else ",A%d" % sg, ",ost" if sg == SIGS else ""))
            if lateA: G.put(40 * sg - 1, "s", "s_waitcnt WAITVM{A%d}" % sg)
            bars[sg] = b; cur = b + 1
        cur = G.place("d", t8_read(F), max(cur, lo)) + 1
    LG = OGAP if opt("ldel", 1) and inner else 0
    if inner:
        body, fin = inner
        free = [g for g in range(OGAP) if g not in bars.values()]
        for i, x in enumerate(body):
            g = free[(i * len(free)) // len(body)]
            G.va[g].append(x); G.used[g] = 2
        g = OGAP + 8
        while g in bars.values(): g += 1
        G.va[g].append("\n".join(fin)); G.used[g] = 2
        assert g + 16 < bars[SIGS], "retry flag must be written (and waited for) before the deciding barrier"
    qw = [(t8_w(sg), bars[sg - RW8 + 2] if sg >= RW8 else LG, sg) for sg in range(max(NPRE_G, NWP), NSG)]
    qa = [(t8_a(sg), max(40 * (sg - RA8 + 1) if sg >= RA8 else 0, bars[CKS] if sg >= NSD else LG), sg) for sg in range(NPRE_G, NSG)]
    DP = opt("dpub", 1)
    side = []
    if DP:
        side.append((publish(0), 40 * NSD + 8 + opt("dpd", 8)))
        side.append((xloads(0), 40 * opt("dld", 20)))
    if COAL:
        seq = []
        for i in range(3):
            seq += [("v", "v_add_u32 %s, %d, %s" % (v(CV_G + i), 64 * i, v(V_LANE))), ("v", "v_mul_u32_u24 %s, 6554, %s" % (v(36), v(CV_G + i))), ("v", "v_lshrrev_b32 %s, 16, %s" % (v(36), v(36))),
                    ("v", "v_lshlrev_b32 %s, 5, %s" % (v(CV_L + i), v(CV_G + i))), ("v", "v_mad_u32_u24 %s, %s, %d, %s" % (v(CV_L + i), v(36), LROW - 320, v(CV_L + i))),
                    ("v", "v_mul_u32_u24 %s, 1120, %s" % (v(36), v(36))), ("v", "v_lshl_add_u32 %s, %s, 4, %s" % (v(CV_G + i), v(CV_G + i), v(36))),
                    ("m", "buffer_load_dwordx4 %s, %s, %s, 0 offen ;#xx" % (v(CV_X + 4 * i, 4), v(CV_G + i), s(K_SX, 4)))]
        side.append((seq, 40 * opt("xld", 19)))
    else:
        side.append(([("m", "buffer_load_dwordx2 %s, %s, %s, 0 offen offset:%d ;#xx" % (v(KV_X + 2 * nb, 2), v(KV_XO), s(K_SX, 4), nb * 32)) for nb in range(5)], 40 * opt("xld", 19)))
    if opt("ct3", 12):
        side.append(([("s", "s_getpc_b64 %s\nCODE4:\ns_add_u32 %s, %s, K_END-CODE4-8192\ns_addc_u32 %s, %s, 0" % (s(t + 4, 2), s(t + 4), s(t + 4), s(t + 5), s(t + 5))),
                      ("s", "s_lshr_b32 %s, s2, 3\ns_lshl2_add_u32 %s, %s, %s" % (s(t), s(t), s(t), s(S_WAVE))), ("s", "s_min_u32 %s, %s, 63\ns_lshl_b32 %s, %s, 7" % (s(t), s(t), s(t), s(t))),
                      ("v", "v_mov_b32 %s, %s" % (v(37), s(t))),
                      ("m", "global_load_dword %s, %s, %s" % (v(V_DUMP), v(37), s(t + 4, 2)))], 40 * opt("ct3", 12)))
    side.sort(key=lambda x: x[1])
    MG = opt("mg", 4)
    g = 0; lastm = -9
    while qw or qa:
        c = [x for x in (qw, qa) if x]
        c.sort(key=lambda x: (max(x[0][1], g), x[0][2]))
        seq, lo, sg_ = c[0].pop(0)
        g = max(g, lo)
        for k, x in seq:
            mg = opt("mgf", 4) if bars[sg_] - g < opt("mgl", 0) else MG
            g = G.place(k, x, max(g + 1, lastm + mg if k == "m" else 0))
            if k == "m": lastm = g
        if VERBOSE: print("la", sg_, "W" if " lds" in seq[-1][1] else "A", bars[sg_] - g, end="; ")
    for seq, lo in side:
        g = lo; lastm = -99
        for k, x in seq:
            g = G.place(k, x, max(g + (0 if k == "v" else 1), lastm + (opt("smg", 16) if "xst" in x else 6) if k == "m" else 0))
            if k == "m": lastm = g
        if "xst0" in seq[-1][1]:
            G.va[g + 1].append("\n".join(own_write(0))); pubend = g + 1
    if DP: assert pubend < 40 * opt("dld", 20) - 40
    auto_lgkm(G, eager=opt("eag", 8))
    if VERBOSE: print("t8", G.pattern())
    for F in range(DA): e(t8_read(F))
    e("s_waitcnt lgkmcnt(0)")
    nm = 0
    for x in G.lines():
        if x.startswith("v_mfma"):
            if nm == 40 * NSD: stamp(e, 13)
            if STAMPS and opt("t8st", 0) and nm > 40 * NSD and (nm - 40 * NSD) % 160 == 0: stamp(e, 25 + (nm - 40 * NSD) // 160)
            nm += 1
        e(x)

def gen_tail(e0, head):
    head, neg = head
    e = E(); e.ext(head)
    T = V_T; t = S_TMP
    stamp(e, 8)
    C = 252
    W = T + 12
    wq = [x for sg in range(NPRE_X, NPRE_G) for x in (t8_w(sg) if sg >= NWP else []) + t8_a(sg)]
    def wsome(n):
        while wq and n > 0:
            k, x = wq.pop(0); n -= (k == "m")
            e(x + ("\ns_nop 0" if k == "s" else ""))
    wsome(opt("wpre", 0))
    pro, grp = o_ops()
    body = []
    for i in range(neg, 16):
        blk = i < 16 - NIN
        if i == 8: (e.L if blk else body).extend(pro[1])
        for x in grp(i, blk):
            if blk: e(x)
            else: body.append(x)
    wsome(99)
    f = E()
    f("v_cmp_u_f32 vcc, %s, %s" % (v(T + 8), v(C)))
    f("s_cmp_lg_u64 vcc, 0\ns_cselect_b32 %s, 1, 0" % s(t))
    f("v_mov_b32 %s, %s" % (v(W), s(t)))
    f("s_lshl_b32 %s, %s, 2\ns_add_u32 %s, %s, %d" % (s(t + 1), s(S_WAVE), s(t + 1), s(t + 1), L_MISC))
    f("v_mov_b32 %s, %s\nv_mov_b32 %s, %d" % (v(W + 1), s(t + 1), v(W + 2), L_MISC))
    f("ds_write_b32 %s, %s" % (v(W + 1), v(W)))
    if not body:
        e("s_nop 7"); e.ext(f.L)
    e("s_waitcnt WAITVM{D0,A0} lgkmcnt(0)")
    e("s_cmp_lg_u32 %s, 0\ns_cbranch_scc1 SPUN_EARLY3" % s(S_WAVE))
    w0 = E(); poll_spin(w0, True, None, 3, "EARLY3")
    for x in cond_lines(w0.L): e(x)
    e("v_min_u32 %s, 7, %s\nv_lshlrev_b32 %s, %d, %s" % (v(V_PL + 3), v(V_LANE), v(V_PL + 3), FSH, v(V_PL + 3)))
    e("s_barrier")
    stamp(e, 9)
    gen_t8(e, (body, f.L) if body else None)
    stamp(e, 14)
    if REUSE:
        xcheck(e, 0, "s_waitcnt WAITVM{xr0,xx}")
        e("s_barrier")
        e("s_xor_b32 %s, %s, 0x80000000\nv_mov_b32 %s, %s" % (s(T_TAG), s(T_TAG), v(TV_TAG), s(T_TAG)))
    else:
        e("s_nop 6")
    if opt("skp", 1):
        pb = publish(1); half = len(pb) // 2
        ow = own_write(1)
        for ch in range(2):
            e("s_cmp_eq_u32 %s, 0x1000000\ns_cbranch_scc1 NOPUB%d" % (s(T_XO + ch), ch))
            for x in cond_lines([x for k, x in pb[ch * half:(ch + 1) * half]]): e(x)
            e("NOPUB%d:" % ch)
    else:
        for k, x in publish(1): e(x)
    stamp(e, 23)
    for x in own_write(1): e(x)
    e("v_add_u32 %s, %d, %s" % (v(52), L_OWN[0], v(TV_OR)))
    if REUSE:
        for i in range(3):
            e("s_and_b32 %s, s2, 3\ns_xor_b32 %s, %s, %d\ns_sub_u32 %s, %s, %s\ns_mul_i32 %s, %s, %d\ns_add_u32 %s, %s, %s\ns_add_u32 %s, %s, %d" % (
                s(t), s(t + 1), s(t), i + 1, s(t), s(t + 1), s(t), s(t), s(t), 3 * XPB, s(t), s(t), s(T_XO + 2), s(T_SL + i), s(t), i * XPB))
    e("s_waitcnt lgkmcnt(0)")
    e("s_barrier")
    for nb in range(5): e("ds_read_b128 %s, %s offset:%d" % (v(OWR[0] + 4 * nb, 4), v(52), nb * 1024))
    for nb in range(5): e("ds_read_b128 %s, %s offset:%d" % (v(OWR[1] + 4 * nb, 4), v(TV_OR), L_OWN[1] + nb * 1024))
    if REUSE: e("s_waitcnt lgkmcnt(0)")
    else: xcheck(e, 0, "s_waitcnt WAITVM{xr0,xx} lgkmcnt(0)")
    GG = 100; XU = 204
    e("v_mov_b32 %s, %s" % (v(36), f2u(1.0 / DSC)))
    MP0, MP1 = opt("mp0", 2), opt("mp1", 9)
    e("v_mov_b32 %s, %s\nv_writelane_b32 %s, %s, 0\nv_writelane_b32 %s, %s, 1\ns_movk_i32 %s, %d\ns_mov_b32 %s, 0" % (v(38), s(T_SL + 2), v(38), s(T_SL), v(38), s(T_SL + 1), s(t + 4), 2048 + 1008 + 12, s(t + 5)))
    PLD = "@buffer_load_dword %s, %s, %s, %s offen%s" % (v(37), v(38), s(T_XS, 4), s(t + 4), LDFL)
    for nb in range(5):
        if nb == MP0 and MP1 < 9: e(PLD)
        if nb == MP1:
            e("s_waitcnt vmcnt(0)")
            e("v_xor_b32 %s, %s, %s\nv_cmp_lt_u32 vcc, 0xffff, %s" % (v(37), s(T_TAG), v(37), v(37)))
            e("s_cmp_lg_u64 vcc, 0\ns_cbranch_scc1 NOEARLY")
            for x in cond_lines([x for _, x in xloads(1)]): e(x)
            e("s_mov_b32 %s, 1\nNOEARLY:" % s(t + 5))
        d = OWR[0] + 4 * nb; gq = GG + 4 * nb
        xsum(e, 0, nb)
        for k in range(4): e("v_mul_f32 %s, %s, %s" % (v(gq + k), f2u(-math.log2(math.e) * DSC), v(d + k)))
        for k in range(4): e("v_exp_f32 %s, %s" % (v(gq + k), v(gq + k)))
        e("s_nop 0")
        for k in range(4): e("v_fma_f32 %s, %s, %s, %s" % (v(gq + k), v(gq + k), v(36), v(36)))
        for k in range(4): e("v_rcp_f32 %s, %s" % (v(gq + k), v(gq + k)))
        if not COAL:
            for h in range(2):
                e("v_lshlrev_b32 %s, 16, %s" % (v(XU + 4 * nb + 2 * h), v(KV_X + 2 * nb + h)))
                e("v_and_b32 %s, 0xffff0000, %s" % (v(XU + 4 * nb + 2 * h + 1), v(KV_X + 2 * nb + h)))
        else: e("s_nop 0")
        for k in range(4): e("v_mul_f32 %s, %s, %s" % (v(gq + k), v(gq + k), v(d + k)))
    if COAL:
        XU = 128
        for i in range(12):
            e("v_lshlrev_b32 %s, 16, %s\nv_and_b32 %s, 0xffff0000, %s" % (v(XU + 2 * i), v(CV_X + i), v(XU + 2 * i + 1), v(CV_X + i)))
        e("s_mul_i32 %s, %s, %d\ns_add_u32 %s, %s, %d" % (s(t), s(S_WAVE), 20 * LROW, s(t), s(t), L_FIN))
        e("v_and_b32 %s, 15, %s\nv_mul_u32_u24 %s, %d, %s\nv_lshrrev_b32 %s, 4, %s\nv_lshl_add_u32 %s, %s, 4, %s\nv_add_u32 %s, %s, %s" % (v(14), v(V_LANE), v(14), LROW, v(14), v(15), v(V_LANE), v(14), v(15), v(14), v(14), s(t), v(14)))
        for i in range(3): e("v_add_u32 %s, %s, %s" % (v(CV_L + i), s(t), v(CV_L + i)))
    stamp(e, 24)
    e("s_mov_b32 %s, 0" % s(t + 7))
    e("s_cmp_lg_u32 %s, 0\ns_cbranch_scc1 LOADED" % s(t + 5))
    e("PROBE:")
    e(PLD)
    e("s_waitcnt vmcnt(0)")
    e("v_xor_b32 %s, %s, %s\nv_cmp_lt_u32 vcc, 0xffff, %s" % (v(37), s(T_TAG), v(37), v(37)))
    e("s_add_u32 %s, %s, 1" % (s(t + 7), s(t + 7)))
    e("s_cmp_eq_u64 vcc, 0\ns_cbranch_scc1 PROBED")
    e("s_cmp_ge_u32 %s, 0x40000\ns_cbranch_scc1 PROBED" % s(t + 7))
    e("s_sleep %d\ns_branch PROBE" % opt("pslp", 12))
    e("PROBED:")
    for k, x in xloads(1): e(x)
    e("LOADED:")
    xcheck(e, 1, "s_waitcnt vmcnt(0)")
    stamp(e, 25)
    OFL = opt("ofl", "_sc1").replace("_", " ")
    for nb in range(5):
        o = OWR[1] + 4 * nb; gq = GG + 4 * nb; xu = XU + 4 * nb
        xsum(e, 1, nb)
        if COAL:
            for h in range(2): e("v_pk_mul_f32 %s, %s, %s" % (v(o + 2 * h, 2), v(o + 2 * h, 2), v(gq + 2 * h, 2)))
            e("ds_write_b128 %s, %s offset:%d" % (v(14), v(o, 4), nb * 64))
            continue
        for r in range(4): e("v_fma_f32 %s, %s, %s, %s" % (v(xu + r), v(o + r), v(gq + r), v(xu + r)))
        for h in range(2): e("v_cvt_pk_bf16_f32 %s, %s, %s" % (v(gq + h), v(xu + 2 * h), v(xu + 2 * h + 1)))
        e("buffer_store_dwordx2 %s, %s, %s, 0 offen offset:%d%s" % (v(gq, 2), v(KV_XO), s(K_SO, 4), nb * 32, OFL))
    if COAL:
        for i in range(3):
            for h in range(2): e("ds_read_b128 %s, %s offset:%d" % (v(64 + 8 * i + 4 * h, 4), v(CV_L + i), 16 * h))
        for i in range(3):
            e("s_waitcnt lgkmcnt(%d)" % (4 - 2 * i))
            for h in range(4): e("v_pk_add_f32 %s, %s, %s" % (v(64 + 8 * i + 2 * h, 2), v(64 + 8 * i + 2 * h, 2), v(XU + 8 * i + 2 * h, 2)))
            for h in range(4): e("v_cvt_pk_bf16_f32 %s, %s, %s" % (v(100 + 4 * i + h), v(64 + 8 * i + 2 * h), v(65 + 8 * i + 2 * h)))
            e("buffer_store_dwordx4 %s, %s, %s, 0 offen%s" % (v(100 + 4 * i, 4), v(CV_G + i), s(K_SO, 4), OFL))
    e0.ext([x.lstrip("@") for x in resolve_vm(e.L)])
    e = e0
    stamp(e, 15)
    if STAMPS: e("s_waitcnt vmcnt(0)")
    stamp(e, 16)
    stamp_fin(e)

def gen_kv_addr(e):
    T = V_T + 12; L = V_LANE
    e("s_lshl_b32 %s, %s, 19" % (s(S_TMP), s(S_HEAD)))
    srd(e, S_K, 54, s(S_TMP), 524288)
    srd(e, S_V, 56, s(S_TMP), 524288 + VSH * 8192)
    e("s_sub_u32 %s, %s, %d\ns_subb_u32 %s, %s, 0" % (s(S_V), s(S_V), VSH * 8192, s(S_V + 1), s(S_V + 1)))
    e("v_lshrrev_b32 %s, 4, %s\ns_lshl_b32 %s, %s, 3\nv_add_u32 %s, %s, %s\nv_and_b32 %s, 15, %s" % (v(T), v(L), s(S_TMP), s(S_WAVE), v(T), s(S_TMP), v(T), v(T + 1), v(L)))
    e("v_lshlrev_b32 %s, 8, %s" % (v(T + 2), v(T)))
    for i in range(2):
        e("v_add_u32 %s, %d, %s\nv_and_b32 %s, 15, %s\nv_xor_b32 %s, %s, %s\nv_lshl_add_u32 %s, %s, 4, %s" % (v(T + 3), 4 * i, v(T), v(T + 4), v(T + 3), v(T + 4), v(T + 4), v(T + 1), v(V_KD + i), v(T + 4), v(T + 2)))
        e("v_and_b32 %s, 7, %s\nv_lshlrev_b32 %s, 1, %s\nv_xor_b32 %s, %s, %s\nv_lshl_add_u32 %s, %s, 4, %s" % (v(T + 4), v(T + 3), v(T + 4), v(T + 4), v(T + 4), v(T + 4), v(T + 1), v(V_VD + i), v(T + 4), v(T + 2)))
    e("v_and_b32 %s, 15, %s\nv_lshrrev_b32 %s, 4, %s\nv_xor_b32 %s, %s, %s" % (v(T), v(L), v(T + 1), v(L), v(T + 1), v(T + 1), v(T)))
    e("v_lshlrev_b32 %s, 8, %s\nv_lshl_add_u32 %s, %s, 4, %s" % (v(T), v(T), v(T), v(T + 1), v(T)))
    for sl in range(4): e("v_xor_b32 %s, %d, %s" % (v(V_KA + sl), sl * 64, v(T)))
    e("v_lshrrev_b32 %s, 2, %s\nv_and_b32 %s, 7, %s\nv_lshlrev_b32 %s, 8, %s\nv_lshl_add_u32 %s, %s, 5, %s" % (v(T), v(L), v(T + 1), v(T), v(T), v(T), v(T), v(T + 1), v(T)))
    e("v_and_b32 %s, 3, %s\nv_lshl_add_u32 %s, %s, 3, %s\nv_add_u32 %s, %d, %s" % (v(T + 1), v(L), v(T), v(T + 1), v(T), v(T), L_V, v(T)))
    for db in range(8): e("v_xor_b32 %s, %d, %s" % (v(V_VA + db), db * 32, v(T)))

def gen_retry(e):
    e("ATT_RETRY:")
    e("s_waitcnt vmcnt(0) lgkmcnt(0)\ns_mov_b32 %s, 1\nv_mov_b32 %s, %s" % (s(S_RETRY), v(TV_WR), v(V_L16)))
    gen_kv_addr(e)
    for qb in range(4): e("v_mov_b32 %s, 0xff800000" % v(V_NEGM + 4 * qb))
    e("s_mov_b32 %s, 0" % s(S_KVOFF))
    e("RETRY_LOOP:")
    e("s_barrier")
    e("s_add_u32 m0, %s, %d\ns_nop 0" % (s(S_M0K), L_K))
    e(kv_dma("K", 0)); e(kv_dma("K", 1))
    e("s_waitcnt vmcnt(0)\ns_barrier")
    for kb in range(2):
        for sl in range(4): e(k_read(kb, sl, 0))
    e("s_waitcnt lgkmcnt(0)")
    e.ext(qk_mfmas(0, czero=True))
    e("s_nop 7")
    for qb in range(4):
        b = Sreg(0, qb, 0); m = v(V_NEGM + 4 * qb)
        for k in range(4): e("v_max3_f32 %s, %s, %s, %s" % (m, m, v(b + 2 * k), v(b + 2 * k + 1)))
    e("s_add_u32 %s, %s, 8192\ns_cmp_lt_u32 %s, %d\ns_cbranch_scc1 RETRY_LOOP" % (s(S_KVOFF), s(S_KVOFF), s(S_KVOFF), 64 * 8192))
    e("s_barrier")
    kv_preload(e)
    e("s_barrier")
    for kb in range(2):
        for sl in range(4): e(k_read(kb, sl, 0))
    e.ext(ones_ops(V_T))
    for r in range(128): e("v_accvgpr_write_b32 %s, 0" % a(A_O + r))
    for r in range(8): e("v_mov_b32 %s, 0" % v(V_L + r))
    e("s_waitcnt lgkmcnt(0)")
    e.ext(qk_mfmas(0, czero=True))
    for kb in range(2):
        for sl in range(4): e(k_read(kb, sl, 8192))
    e("s_branch ATT_START")

def gen_common_setup(e):
    T = V_T + 12; L = V_LANE
    e("s_lshl2_add_u32 %s, %s, %s" % (s(S_TMP + 1), s(S_QT), s(S_WAVE)))
    e("s_mul_i32 %s, %s, %d" % (s(S_TMP), s(S_TMP + 1), AFS))
    srd(e, S_AF, ptr(11), s(S_TMP), NSLAB * 4096)
    e("s_mul_i32 %s, %s, %d\ns_add_u32 %s, %s, %d" % (s(S_TMP), s(S_TMP + 1), 20 * 4096, s(S_TMP), s(S_TMP), XF_OFF))
    srd(e, S_X, ptr(11), s(S_TMP), 20 * 4096)
    e("s_mov_b64 %s, %s\ns_mov_b64 %s, %s" % (s(54, 2), s(ptr(1), 2), s(56, 2), s(ptr(2), 2)))
    e("v_bfe_u32 %s, %s, 2, 2\nv_lshrrev_b32 %s, 4, %s\nv_and_b32 %s, 3, %s" % (v(T), v(L), v(T + 1), v(L), v(T + 2), v(L)))
    e("v_lshlrev_b32 %s, 12, %s" % (v(T + 3), v(T + 1)))
    e("v_mul_u32_u24 %s, 320, %s\nv_add_u32 %s, %s, %s\nv_lshl_add_u32 %s, %s, 4, %s" % (v(T + 4), v(T), v(T + 4), v(T + 4), v(T + 3), v(T + 4), v(T + 2), v(T + 4)))
    for sl in range(4): e("v_xor_b32 %s, %d, %s" % (v(V_AQ + sl), sl * 64, v(T + 4)))
    e("v_lshl_add_u32 %s, %s, 7, %s\nv_lshl_add_u32 %s, %s, 3, %s" % (v(T + 4), v(T), v(T + 3), v(T + 4), v(T + 2), v(T + 4)))
    e("v_bfe_u32 %s, %s, 3, 2\nv_lshl_add_u32 %s, %s, 5, %s" % (v(T + 5), v(L), v(T + 4), v(T + 5), v(T + 4)))
    for u in range(4): e("v_xor_b32 %s, %d, %s" % (v(V_AG + u), u * 32, v(T + 4)))
    gen_kv_addr(e)

def gen_w_setup(e):
    T = V_T + 12; L = V_LANE
    e("v_lshrrev_b32 %s, 4, %s\nv_lshlrev_b32 %s, 2, %s\nv_and_b32 %s, 15, %s\nv_xor_b32 %s, %s, %s" % (v(T), v(L), v(T + 1), v(T), v(T + 2), v(L), v(T + 1), v(T + 1), v(T + 2)))
    e("v_lshlrev_b32 %s, 13, %s\nv_lshl_add_u32 %s, %s, 4, %s" % (v(T), v(T), v(V_WD), v(T + 1), v(T)))
    e("v_add_u32 %s, %d, %s" % (v(V_WD + 1), 4 * 8192 - 1024, v(V_WD)))
    e("v_lshrrev_b32 %s, 3, %s\nv_bfe_u32 %s, %s, 4, 1\nv_lshlrev_b32 %s, 1, %s" % (v(T), v(L), v(T + 1), v(L), v(T + 1), v(T + 1)))
    e("s_and_b32 %s, %s, 1\ns_lshl_b32 %s, %s, 2\nv_or_b32 %s, %s, %s" % (s(S_TMP), s(S_WAVE), s(S_TMP), s(S_TMP), v(T + 1), s(S_TMP), v(T + 1)))
    e("v_and_b32 %s, 7, %s\nv_xor_b32 %s, %s, %s" % (v(T + 2), v(L), v(T + 1), v(T + 1), v(T + 2)))
    e("v_mul_u32_u24 %s, 3456, %s\nv_lshl_add_u32 %s, %s, 4, %s" % (v(T), v(T), v(V_WD + 2), v(T + 1), v(T)))
    e("s_lshl_b32 %s, %s, 8\ns_sub_u32 %s, %d, %s" % (s(S_TMP), s(S_HEAD), s(S_TMP + 1), 640 * 8192, s(S_TMP)))
    srd(e, S_WQ, ptr(3), s(S_TMP), s(S_TMP + 1))
    for (d, p, sh) in ((S_WG, 6, 2048), (S_WU, 7, 3072)):
        e("s_lshl_b32 %s, %s, 7\ns_sub_u32 %s, %d, %s" % (s(S_TMP), s(S_FS), s(S_TMP + 1), 640 * 3456 + sh, s(S_TMP)))
        e("s_cmp_lt_u32 %s, 27\ns_cselect_b32 %s, %s, 0" % (s(S_FS), s(S_TMP + 1), s(S_TMP + 1)))
        srd(e, d, ptr(p), s(S_TMP), s(S_TMP + 1))
        e("s_sub_u32 %s, %s, %d\ns_subb_u32 %s, %s, 0" % (s(d), s(d), sh, s(d + 1), s(d + 1)))

def gen_kernel(e, name):
    T = V_T; L = V_LANE
    e(".text\n.globl %s\n.p2align 8\n.type %s,@function\n%s:" % (name, name, name))
    if STAMPS: e("s_memrealtime s[96:97]")
    e("s_cmp_ge_u32 s2, 256\ns_cbranch_scc1 K_END")
    e("s_load_dwordx8 %s, s[0:1], 0\ns_load_dwordx8 %s, s[0:1], 32\ns_load_dwordx8 %s, s[0:1], 64" % (s(S_PTR, 8), s(S_PTR + 8, 8), s(S_PTR + 16, 8)))
    TLB = opt("tlb", 0)
    if TLB:
        e("s_bfe_u32 s4, s2, 0x30003\ns_lshl_b32 s5, s4, 2\ns_lshr_b32 s6, 0x021bb763, s5\ns_and_b32 s6, s6, 15\ns_lshl_b32 s6, s6, 3\ns_load_dwordx2 s[8:9], s[0:1], s6")
        e("s_lshr_b32 s6, 0x10000112, s5\ns_and_b32 s6, s6, 15\ns_lshr_b32 s7, s2, 6\ns_min_u32 s6, s6, s7\ns_lshl_b32 s6, s6, 21")
        e("s_cmp_eq_u32 s4, 3\ns_cselect_b32 s6, 0x2000000, s6\ns_cmp_eq_u32 s4, 4\ns_cselect_b32 s6, 0x23f0000, s6")
        e("s_and_b32 s7, s2, 7\ns_lshl_b32 s7, s7, 21\ns_sub_u32 s5, s4, 5\ns_cmp_lt_u32 s5, 2\ns_cselect_b32 s6, s7, s6\nv_mov_b32 v9, s6")
    e("v_and_b32 %s, 63, v0\nv_lshrrev_b32 %s, 6, v0\nv_lshlrev_b32 %s, 4, %s\nv_readfirstlane_b32 %s, %s" % (v(L), v(T), v(V_L16), v(L), s(S_WAVE), v(T)))
    e("s_and_b32 %s, s2, 7\ns_lshr_b32 %s, s2, 3\ns_and_b32 %s, %s, 3\ns_lshr_b32 %s, %s, 2" % (s(S_TMP), s(S_TMP + 1), s(S_HL), s(S_TMP + 1), s(S_QT), s(S_TMP + 1)))
    e("s_lshl_b32 %s, %s, 2\ns_add_u32 %s, %s, %s" % (s(S_HEAD), s(S_TMP), s(S_HEAD), s(S_HEAD), s(S_HL)))
    e("s_lshl_b32 %s, %s, 3\ns_add_u32 %s, %s, %s" % (s(S_FS), s(S_HL), s(S_FS), s(S_FS), s(S_TMP)))
    e("s_mov_b32 %s, 0" % s(S_RETRY))
    e("s_lshl_b32 %s, %s, 12\ns_lshl_b32 %s, %s, 11" % (s(S_M0W), s(S_WAVE), s(S_M0K), s(S_WAVE)))
    if STAMPS: e("v_mov_b32 v0, -1\nv_mov_b32 v19, -1")
    stamp(e, 0)
    if STAMPS: e("v_writelane_b32 v19, s96, 40\nv_writelane_b32 v0, s96, 40")
    def codetouch(e):
        e("s_getpc_b64 %s\nCODE0:" % s(S_TMP + 4, 2))
        e("s_lshr_b32 %s, s2, 3\ns_lshl2_add_u32 %s, %s, %s\ns_mul_i32 %s, %s, 640" % (s(S_EVT + 6), s(S_EVT + 6), s(S_EVT + 6), s(S_WAVE), s(S_EVT + 6), s(S_EVT + 6)))
        if opt("cpm", "v") == "s":
            e("s_min_u32 %s, %s, CODE1-CODE0-644\ns_add_u32 %s, %s, %s\ns_addc_u32 %s, %s, 0" % (s(S_EVT + 6), s(S_EVT + 6), s(S_TMP + 4), s(S_TMP + 4), s(S_EVT + 6), s(S_TMP + 5), s(S_TMP + 5)))
            for i in range(10): e("s_load_dword %s, %s, %d" % (s(4 + i), s(S_TMP + 4, 2), 64 * i))
            return
        if opt("cpm", "v") == "h":
            e("v_min_u32 %s, 9, %s\nv_lshlrev_b32 %s, 6, %s\nv_add_u32 %s, %s, %s\nv_min_u32 %s, CODE1-CODE0-4, %s" % (v(8), v(L), v(8), v(8), v(8), s(S_EVT + 6), v(8), v(8), v(8)))
        else:
            e("v_min_u32 %s, 4, %s\nv_lshlrev_b32 %s, 7, %s\nv_add_u32 %s, %s, %s\nv_min_u32 %s, CODE1-CODE0-4, %s" % (v(8), v(L), v(8), v(8), v(8), s(S_EVT + 6), v(8), v(8), v(8)))
        e("global_load_dword %s, %s, %s" % (v(V_PL), v(8), s(S_TMP + 4, 2)))
    CPOS = opt("cpos", 0); WPOS = opt("wpos", 0)
    if CPOS == 0: codetouch(e)
    if CPOS == 9: e("CODE0:")
    gen_ln_loads(e)
    e("s_add_u32 %s, %s, %d\ns_addc_u32 %s, %s, 0\ns_load_dword %s, %s, 0" % (s(S_TMP + 2), s(ptr(11)), FL_OFF + EP_OFF, s(S_TMP + 3), s(ptr(11) + 1), s(S_EPOCH), s(S_TMP + 2, 2)))
    ny = 0
    if opt("tlb", 0) == 2: e("global_load_dword %s, v9, s[8:9]" % v(V_TRA)); ny += 1
    if CPOS == 1: codetouch(e); ny += 1
    gen_w_setup(e)
    e("s_lshl_b32 %s, %s, 16\ns_mul_i32 %s, %s, %d" % (s(S_WQOFF), s(S_WAVE), s(S_WGOFF), s(S_WAVE), 8 * 3456))
    WT = max(opt("wt", 4), 1)
    X = V_TC
    e("s_lshl2_add_u32 %s, %s, %s\ns_add_u32 %s, %s, %d" % (s(S_TMP), s(S_QT), s(S_WAVE), s(S_TMP), s(S_TMP), 32 * NI))
    e("v_lshrrev_b32 %s, 1, %s\nv_min_u32 %s, %d, %s\nv_lshlrev_b32 %s, 5, %s\nv_add_u32 %s, %s, %s" % (v(X), v(L), v(X), WT - 1, v(X), v(X), v(X), v(X), s(S_TMP), v(X)))
    e("v_and_b32 %s, 1, %s\nv_lshlrev_b32 %s, 7, %s\nv_lshl_add_u32 %s, %s, 13, %s\nv_mul_u32_u24 %s, 3456, %s" % (v(X + 1), v(L), v(X + 1), v(X + 1), v(X + 1), v(X), v(X + 1), v(X), v(X)))
    w0 = E(); wt = E()
    for sl in range(NI): w_slab(w0, sl, True)
    wt("buffer_load_dword %s, %s, %s, 0 offen" % (v(V_PL + 1), v(X + 1), s(S_WQ, 4)))
    wt("buffer_load_dword %s, %s, %s, 0 offen offset:2048" % (v(V_PL + 2), v(X), s(S_WG, 4)))
    wt("buffer_load_dword %s, %s, %s, 0 offen offset:3072" % (v(V_DUMP), v(X), s(S_WU, 4)))
    if opt("wt", 4) == 0: wt.L = []
    early = {0: w0.L + wt.L, 1: [], 2: w0.L, 3: w0.L}[WPOS]
    mid = {0: [], 1: w0.L + wt.L, 2: wt.L, 3: []}[WPOS]
    after = wt.L if WPOS == 3 else []
    e.ext(early); ny += sum(x.startswith("buffer") for x in early)
    LATE = opt("late", 2)
    srd(e, S_FL, ptr(11), FL_OFF, EP_OFF + 4096)
    e("s_lshl_b32 %s, %s, 5\ns_add_u32 %s, %s, %s\ns_lshl_b32 %s, %s, %d" % (s(S_MYFL), s(S_QT), s(S_MYFL), s(S_MYFL), s(S_HEAD), s(S_MYFL), s(S_MYFL), FSH))
    e("v_min_u32 %s, 31, %s\nv_lshlrev_b32 %s, %d, %s\ns_lshl_b32 %s, %s, %d" % (v(V_PL + 3), v(L), v(V_PL + 3), FSH, v(V_PL + 3), s(S_XOFF), s(S_QT), FSH + 5))
    def rest():
        gen_common_setup(e)
        for i in range(8): e("v_add_u32 %s, 65536, %s" % (v(V_AHI + i), v(V_AQ + i)))
        if opt("tw2", -1) >= 0:
            t = S_TMP
            e("s_lshr_b32 %s, s2, 3\ns_mul_i32 %s, %s, %d\ns_add_u32 %s, %s, %d\nv_mov_b32 %s, %s" % (s(t), s(t + 1), s(t), AFS, s(t + 1), s(t + 1), NSLAB * 4096, v(V_T2), s(t + 1)))
            e("s_mul_i32 %s, %s, %d\ns_add_u32 %s, %s, %d" % (s(t + 1), s(t), 4 * XGS, s(t + 1), s(t + 1), XP_OFF + 12 * 12288))
            e("s_and_b32 %s, %s, 3\ns_mul_i32 %s, %s, %d\ns_add_u32 %s, %s, %d" % (s(t + 2), s(t), s(t + 2), s(t + 2), WFS, s(t + 2), s(t + 2), WF_OFF + NSLAB * 10240))
            e("s_cmp_lt_u32 %s, 16\ns_cselect_b32 %s, %s, %s\nv_mov_b32 %s, %s" % (s(t), s(t + 1), s(t + 1), s(t + 2), v(V_T2 + 1), s(t + 1)))
            e("s_and_b32 %s, %s, 1\ns_lshl_b32 %s, %s, 21\nv_mov_b32 %s, %s" % (s(t), s(t), s(t), s(t), v(V_T2 + 2), s(t)))
        e("v_mov_b32 %s, %d" % (v(V_ZA), L_MISC + 512))
        for i in range(4): e("v_mov_b32 %s, 0" % v(52 + i))
        e("ds_write_b128 %s, %s" % (v(V_ZA), v(52, 4)))
    stamp(e, 1)
    gen_ln_compute(e, ny, mid)
    e.ext(after)
    stamp(e, 29)
    if LATE == 1: rest()
    e("s_mul_i32 %s, %s, 0x9e3779b1\ns_add_u32 %s, %s, 0x7f4a7c15" % (s(S_TAG), s(S_EPOCH), s(S_TAG), s(S_TAG)))
    e("s_waitcnt vmcnt(%d)\ns_barrier" % len(after))
    stamp(e, 18)
    e("s_cmp_lg_u32 %s, 0\ns_cbranch_scc1 NOFL1" % s(S_WAVE))
    set_flag(e, 1)
    if opt("t2e", 0):
        e("s_branch NOFL2")
    e("NOFL1:")
    if opt("t2e", 0):
        e("s_mov_b32 %s, %d\nbuffer_load_dword %s, %s, %s, %s offen" % (s(S_TMP), WT * 32 * 8192, v(V_DUMP), v(V_TC + 1), s(S_WQ, 4), s(S_TMP)))
        e("s_mov_b32 %s, %d\nbuffer_load_dword %s, %s, %s, %s offen offset:2048" % (s(S_TMP), WT * 32 * 3456, v(V_DUMP), v(V_TC), s(S_WG, 4), s(S_TMP)))
        e("buffer_load_dword %s, %s, %s, %s offen offset:3072" % (v(V_DUMP), v(V_TC), s(S_WU, 4), s(S_TMP)))
        e("NOFL2:")
    for sl in range(NI, NI2): w_slab(e, sl, True)
    if LATE == 2: rest()
    if opt("pwp", 0):
        e("v_min_u32 %s, 7, %s\nv_lshlrev_b32 %s, %d, %s\ns_lshl_b32 %s, %s, %d\ns_add_u32 %s, %s, %s" % (v(V_PL + 3), v(L), v(V_PL + 3), FSH, v(V_PL + 3), s(S_TMP), s(S_WAVE), FSH + 3, s(S_XOFF), s(S_XOFF), s(S_TMP)))
    else:
        e("s_cmp_lg_u32 %s, 0\ns_cbranch_scc1 SPUN_XN" % s(S_WAVE))
    e(poll_load(False, s(S_XOFF)))
    e("s_waitcnt vmcnt(0)")
    poll_spin(e, False, s(S_XOFF), 1, "XN")
    if NI == 0: e("s_waitcnt vmcnt(%d)" % (4 * (NI2 - 1)))
    if opt("pc0", 2) == 0:
        assert NI2 >= 2
        e("s_waitcnt vmcnt(%d)" % (4 * (NI2 - 2)))
    if not opt("pwp", 0): e("s_barrier")
    stamp(e, 2)
    e("s_cmp_ge_u32 %s, %d\ns_cbranch_scc1 LIGHT" % (s(S_FS), 0 if opt("alll", 0) else 27))
    gen_proj(e, True, "H")
    e("PROJ_DONE:")
    head = gen_attention(e)
    gen_tail(e, head)
    e("K_END:\ns_endpgm")
    gen_events(e)
    gen_retry(e)
    e("LIGHT:")
    gen_proj(e, False, "L")
    e("s_branch PROJ_DONE")
    e("CODE1:")
    e(kd(name))

DOC = """
"""

def main():
    e = E()
    hdr = open("cdna_kernels/%s.s.ref" % NAME).read().split("; Override launch")[0]
    e.L += hdr.strip().split("\n")
    e("; @launch grid=(256,1,1) block=(256,1,1) lds=%d" % LDS_BYTES)
    e.L += DOC.strip().split("\n")
    e('.amdgcn_target "amdgcn-amd-amdhsa--gfx950"')
    gen_kernel(e, NAME + "_kernel")
    t = re.sub(r" ;#\w*", "", e.text()).replace("NVWAIT", str(min(NV01)))
    if VERBOSE: print("NV01", NV01)
    errs = [x for x in asmcheck.check(t, [NAME + "_kernel"]) if x.count("_load_dword v%d," % V_DUMP) != 2 and poll_load(True).split("\n")[-1] not in x]
    if errs:
        print("\n".join(errs[:40])); print(len(errs), "problems")
    import subprocess
    open("_chk.s", "w").write(t)
    subprocess.run(["clang", "-x", "assembler", "-target", "amdgcn-amd-amdhsa", "-mcpu=gfx950", "-c", "_chk.s", "-o", "_chk.o"], check=True)
    sym = {l.split()[-1]: int(l.split()[0], 16) for l in subprocess.run(["llvm-objdump", "-t", "_chk.o"], capture_output=True, text=True).stdout.splitlines() if ".text" in l}
    assert "CODE3" not in sym or sym["CODE3"] + 12288 <= sym["TAILC0"]
    assert "CODE4" not in sym or sym["CODE4"] + 8192 <= sym["K_END"]
    out = [x for x in sys.argv[1:] if x.endswith(".s")]
    open(out[0] if out else "cdna_kernels/%s.s" % NAME, "w").write(t)

if __name__ == "__main__":
    main()
```
